```python
import torch

def _softmax(x, axis=-1):
    return torch.softmax(x, dim=axis)
def _gelu(x):
    return torch.nn.functional.gelu(x, approximate="tanh")
def _silu(x):
    return torch.nn.functional.silu(x)
def _sigmoid(x):
    return torch.sigmoid(x)
def _layernorm(x, axis=-1, eps=1e-5):
    m = x.mean(dim=axis, keepdim=True)
    v = x.var(dim=axis, keepdim=True, unbiased=False)
    return (x - m) / torch.sqrt(v + eps)
def _scatter_add(tgt, idx, src, axis=0):
    return tgt.clone().index_add_(axis, idx, src)
def _segment_sum(src, seg, n):
    out = torch.zeros((n,) + src.shape[1:], dtype=src.dtype)
    return out.index_add_(0, seg, src)
def _pad(x, pw):
    flat = tuple(v for pair in reversed(pw) for v in pair)
    return torch.nn.functional.pad(x, flat)

kernel_name = 'concat_heads__sliding_local_dilated__linear_attn_block__prompt'

def setup_inputs():

    _w = (lambda a: (lambda t: t.to(torch.bfloat16) if t.is_floating_point() else t)(torch.as_tensor(a)))
    def _A_setup():
        B, S, D = 1, 2048, 576
        return {
            "x": _w((lambda *s: torch.randn(*s, dtype=torch.bfloat16) * 0.2)(B, S, D)),
            "wqkv": _w((lambda *s: torch.randn(*s, dtype=torch.bfloat16) * 0.2)(D, 3 * D)),
            "wo": _w((lambda *s: torch.randn(*s, dtype=torch.bfloat16) * 0.05)(D, D)),
        }
    _A_in = _A_setup()

    def _B_setup():
        B, S, D = 1, 2048, 576
        return {
            "x": _w((lambda *s: torch.randn(*s, dtype=torch.bfloat16) * 0.05)(B, S, D)),
            "wqkv": _w((lambda *s: torch.randn(*s, dtype=torch.bfloat16) * 0.8)(D, 3 * D)),
            "wo": _w((lambda *s: torch.randn(*s, dtype=torch.bfloat16) * 0.8)(D, D)),
        }
    _B_in = _B_setup()

    return {
        "A_x": _A_in["x"],
        "A_wqkv": _A_in["wqkv"],
        "A_wo": _A_in["wo"],
        "B_x": _B_in["x"],
        "B_wqkv": _B_in["wqkv"],
        "B_wo": _B_in["wo"],
    }

def reference(A_x, A_wqkv, A_wo, B_x, B_wqkv, B_wo):
    def _A_ref(x, wqkv, wo):
        B, S, D = x.shape
        H = 32; Dh = D // H
        W, dil = 8, 2
        qkv = (lambda x, *d: x.permute(*d))((x @ wqkv).reshape(B, S, 3, H, Dh), 2, 0, 3, 1, 4)
        q, k, v = qkv[0], qkv[1], qkv[2]
        scale = Dh ** -0.5
        pos = torch.arange(S)
        off = torch.arange(W) * dil
        idx = pos[:, None] - off[None, :]
        mask = idx >= 0
        idx_c = torch.where(mask, idx, 0).reshape(-1)
        kg = k[:, :, idx_c, :].reshape(B, H, S, W, Dh)
        vg = v[:, :, idx_c, :].reshape(B, H, S, W, Dh)
        logits = torch.einsum("bhsd,bhswd->bhsw", q, kg) * scale
        logits = torch.where(mask[None, None, :, :], logits, -1e9)
        attn = _softmax(logits, axis=-1)
        o = torch.einsum("bhsw,bhswd->bhsd", attn, vg)
        return (lambda x, *d: x.permute(*d))(o, 0, 2, 1, 3).reshape(B, S, D) @ wo

    def _B_ref(x, wqkv, wo):
        B, S, D = x.shape
        H = 32; Dh = D // H
        qkv = (lambda x, *d: x.permute(*d))((x @ wqkv).reshape(B, S, 3, H, Dh), 2, 0, 3, 1, 4)
        q, k, v = qkv[0], qkv[1], qkv[2]
        phi = lambda t: torch.where(t > 0, t + 1, torch.exp(t)) + 1e-6
        pq, pk = phi(q), phi(k)
        kv = torch.einsum("bhsd,bhse->bhde", pk, v)
        z = torch.einsum("bhsd->bhd", pk)
        num = torch.einsum("bhqd,bhde->bhqe", pq, kv)
        den = torch.einsum("bhqd,bhd->bhq", pq, z)[..., None] + 1e-6
        o = num / den
        return (lambda x, *d: x.permute(*d))(o, 0, 2, 1, 3).reshape(B, S, D) @ wo

    a = _A_ref(A_x, A_wqkv, A_wo)
    b = _B_ref(B_x, B_wqkv, B_wo)
    return torch.concatenate([a, b], axis=-1)
```

```python
class Asm:
    def __init__(self):
        self.lines = []
    def __call__(self, s=""):
        for l in s.strip("\n").split("\n"):
            self.lines.append(l)
    def text(self):
        return "\n".join(self.lines) + "\n"

def kernel_desc(name, vgpr, sgpr, accum):
    return f""".amdhsa_kernel {name}
  .amdhsa_next_free_vgpr {vgpr}
  .amdhsa_next_free_sgpr {sgpr}
  .amdhsa_accum_offset {accum}
  .amdhsa_group_segment_fixed_size 0
  .amdhsa_kernarg_size 72
  .amdhsa_user_sgpr_count 2
  .amdhsa_user_sgpr_kernarg_segment_ptr 1
  .amdhsa_system_sgpr_workgroup_id_x 1
.end_amdhsa_kernel
"""

def kernel_head(name):
    return f""".globl {name}
.p2align 8
.type {name},@function
{name}:
"""
def vr(i, n=1):
    return f"v{i}" if n == 1 else f"v[{i}:{i+n-1}]"
def ar(i, n=1):
    return f"a{i}" if n == 1 else f"a[{i}:{i+n-1}]"
def sr(i, n=1):
    return f"s{i}" if n == 1 else f"s[{i}:{i+n-1}]"
```

```python
import re

REG = re.compile(r"\b([vsa])(\d+)\b|\b([vsa])\[(\d+):(\d+)\]|\b(vcc|exec|m0|scc)\b")
TRANS = ("v_exp_f32", "v_log_f32", "v_rcp_f32", "v_rsq_f32", "v_sqrt_f32", "v_sin_f32", "v_cos_f32")

def regs(tok):
    out = set()
    for m in REG.finditer(tok):
        if m.group(1):
            out.add((m.group(1), int(m.group(2))))
        elif m.group(3):
            out.update((m.group(3), i) for i in range(int(m.group(4)), int(m.group(5)) + 1))
        else:
            out.add((m.group(6), 0))
    return out

def split_ops(s):
    ops, depth, cur = [], 0, ""
    for ch in s:
        if ch == "[": depth += 1
        if ch == "]": depth -= 1
        if ch == "," and depth == 0:
            ops.append(cur.strip()); cur = ""
        else:
            cur += ch
    if cur.strip(): ops.append(cur.strip())
    return ops

class I:
    def __init__(self, line):
        self.line = line
        code = line.split(";")[0].strip()
        self.kind = None
        self.w = set(); self.r = set(); self.srcc = set(); self.ab = set(); self.sdata = set()
        self.states = 0
        if not code or code.endswith(":") or code.startswith("."):
            return
        parts = code.split(None, 1)
        op = parts[0]; self.op = op
        ops = split_ops(parts[1]) if len(parts) > 1 else []
        self.states = 1
        if op == "s_nop":
            self.kind = "nop"; self.states = int(ops[0], 0) + 1
        elif op.startswith("v_mfma"):
            self.kind = "mfma"
            self.w = regs(ops[0]); self.ab = regs(ops[1]) | regs(ops[2]); self.srcc = regs(ops[3].split()[0])
            self.r = self.ab | self.srcc
            self.passes = 8 if "32x32" in op else 4
        elif op.startswith("v_"):
            self.kind = "valu"
            nd = 1
            if op.startswith("v_add_co") or op.startswith("v_sub_co") or op.startswith("v_addc_co"): nd = 2
            for o in ops[:nd]: self.w |= regs(o)
            for o in ops[nd:]: self.r |= regs(o)
            if op.startswith("v_permlane") and "swap" in op:
                self.w = regs(ops[0]) | regs(ops[1]); self.r = set(self.w)
            if op.startswith("v_fmac") or op.startswith("v_pk_fmac") or op.startswith("v_dot2c"):
                self.r |= self.w
            if op.startswith("v_cmpx"): self.w.add(("exec", 0))
        elif op.startswith("buffer_") or op.startswith("global_"):
            self.kind = "vmem"
            allr = [regs(o) for o in ops]
            lds = re.search(r"\blds\b", code) is not None or "load_lds" in op
            self.lds = lds
            if "load" in op and not lds:
                self.w = allr[0]
                for x in allr[1:]: self.r |= x
            else:
                for x in allr: self.r |= x
                if "store" in op and ("x4" in op or "x3" in op):
                    self.sdata = allr[0] if op.startswith("buffer_") else allr[1]
                if "atomic" in op and " sc0" in code:
                    self.w = allr[0]
            if lds: self.r.add(("m0", 0))
        elif op.startswith("ds_"):
            self.kind = "ds"
            allr = [regs(o) for o in ops]
            if "read" in op or "permute" in op or "swizzle" in op:
                self.w = allr[0]
                for x in allr[1:]: self.r |= x
            else:
                for x in allr: self.r |= x
        else:
            self.kind = "salu"
            if ops and not op.startswith("s_cmp") and not op.startswith("s_cbranch") and not op.startswith("s_waitcnt"):
                self.w = regs(ops[0])
                for o in ops[1:]: self.r |= regs(o)

def vg(s): return {x for x in s if x[0] in "va"}
def sg(s): return {x for x in s if x[0] in ("s", "vcc", "exec")}

def need(p, c):
    n = 0
    if p.kind == "valu":
        if c.kind == "mfma" and vg(p.w) & c.r: n = max(n, 2)
        if c.kind == "valu":
            if p.op.startswith(TRANS) and vg(p.w) & c.r: n = max(n, 1)
            if c.op.startswith("v_permlane") and vg(p.w) & c.r: n = max(n, 2)
            if (c.op.startswith("v_readfirstlane") or c.op.startswith("v_readlane")) and vg(p.w) & c.r: n = max(n, 1)
            if "dpp" in c.line or "row_" in c.line or "quad_perm" in c.line:
                if vg(p.w) & c.r: n = max(n, 2)
            if sg(p.w) & c.r: n = max(n, 2)
            if (("op_sel" in p.line and not p.op.endswith("_f32")) or "sdwa" in p.op) and vg(p.w) & (c.r | c.w): n = max(n, 1)
        if c.kind == "vmem" and sg(p.w) & c.r: n = max(n, 5)
        if c.kind == "mfma" and ("exec", 0) in p.w: n = max(n, 4)
    if p.kind == "mfma":
        big = {4: 8, 8: 12}[p.passes]
        if c.kind == "mfma":
            if p.w & c.ab: n = max(n, big)
            if p.w & c.srcc and p.w != c.srcc: n = max(n, {4: 6, 8: 10}[p.passes])
            if p.w & c.w and p.w != c.srcc: n = max(n, {4: 6, 8: 10}[p.passes])
        elif c.kind in ("valu", "vmem", "ds"):
            if p.w & (c.r | c.w): n = max(n, big)
        if c.kind == "valu" and p.srcc & c.w: n = max(n, {4: 3, 8: 7}[p.passes])
    if p.kind == "vmem" and p.sdata & c.w:
        n = max(n, 2 if c.kind in ("valu", "mfma") else 1)
    if p.kind == "salu" and ("m0", 0) in p.w and c.kind == "vmem" and getattr(c, "lds", False): n = max(n, 1)
    return n

def fix(lines):
    out = []; hist = []; added = 0
    for line in lines:
        c = I(line)
        if c.kind is None:
            out.append(line); continue
        dist = 0; pad = 0
        for p in reversed(hist):
            if dist >= 20: break
            pad = max(pad, need(p, c) - dist)
            dist += p.states
        if pad > 0:
            out.append(f"s_nop {pad-1}"); hist.append(I(f"s_nop {pad-1}")); added += pad
        out.append(line); hist.append(c)
        if len(hist) > 40: hist = hist[-24:]
    return out, added
```

```python
import sys, struct
from asmlib import *
import hz

OPT = dict(stamps=0, extra_empty=0)
for arg in sys.argv[1:]:
    k, v = arg.split("=")
    OPT[k] = int(v)

def f32(x):
    return "0x%08x" % struct.unpack("<I", struct.pack("<f", x))[0]

LOG2E = 1.4426950408889634
CSC = 18 ** -0.5 * LOG2E
NEG = "0xf149f2ca"
EPS = f32(1e-6)
OOB = "0x80000000"

WS_O = 0
O_BR = 0x240000
WS_KV = 0x500000
KV_ST = 0x4000
WS_STAMP = 0x600000
WS_SIZE = 0x700000

sWAVE, sHG, sRB, sBR, sT = 3, 4, 5, 6, 7
SX, SW, SWS, SDBG, SWO, SOUT = 8, 12, 16, 20, 24, 28
sG0, sG01 = 32, 34
sK = 50
sV = 51
sM = 52
sT2, sT3 = 53, 54
sST = 60

a = Asm()
nstamp = [0]

def stamp():
    if OPT["stamps"]:
        i = nstamp[0]; nstamp[0] += 1
        assert i < 16
        a(f"s_memtime s[{sST+2*i}:{sST+2*i+1}]")

def stamps_out(kidx):
    if not OPT["stamps"]:
        return
    n = nstamp[0]
    a("s_waitcnt vmcnt(0) lgkmcnt(0)")
    a(f"s_lshl_b32 s{sT}, s2, 3\ns_add_u32 s{sT}, s{sT}, s{sWAVE}\ns_lshl_b32 s{sT}, s{sT}, 6")
    a(f"s_add_u32 s{sT}, s{sT}, {WS_STAMP + kidx * 0x20000}\nv_mov_b32 v1, s{sT}")
    for i in range(16):
        if i < n:
            a(f"v_mov_b32 v2, s{sST+2*i}")
        else:
            a("v_mov_b32 v2, 0")
        a(f"buffer_store_dword v2, v1, s[{SWS}:{SWS+3}], 0 offen offset:{4*i}")
    a("s_waitcnt vmcnt(0)")

def mfma(d, s0, s1, c):
    cc = c if isinstance(c, str) else vr(c, 4)
    a(f"v_mfma_f32_16x16x32_bf16 {vr(d,4)}, {vr(s0,4)}, {vr(s1,4)}, {cc}")

def cvt(d, x, y):
    a(f"v_cvt_pk_bf16_f32 v{d}, v{x}, v{y}")

def srd(dst, lo, nbytes):
    a(f"s_mov_b32 s{dst}, s{lo}\ns_mov_b32 s{dst+1}, s{lo+1}\ns_mov_b32 s{dst+2}, {nbytes}\ns_mov_b32 s{dst+3}, 0x20000")

def prologue(name, end):
    a(f"""
s_cmp_ge_u32 s2, 256
s_cbranch_scc1 {end}
s_and_b32 s{sT}, s2, 7
s_lshr_b32 s{sBR}, s{sT}, 2
s_mul_i32 s{sT2}, s{sBR}, 24
s_add_u32 s0, s0, s{sT2}
s_addc_u32 s1, s1, 0
s_load_dwordx4 s[36:39], s[0:1], 0
s_load_dwordx2 s[40:41], s[0:1], 16
s_sub_u32 s0, s0, s{sT2}
s_subb_u32 s1, s1, 0
s_load_dwordx4 s[44:47], s[0:1], 48
s_load_dwordx2 s[48:49], s[0:1], 64
s_lshr_b32 s{sT2}, s2, 3
s_and_b32 s{sHG}, s{sT2}, 3
s_and_b32 s{sT3}, s{sT}, 1
s_lshl_b32 s{sT3}, s{sT3}, 2
s_add_u32 s{sHG}, s{sHG}, s{sT3}
s_lshr_b32 s{sRB}, s{sT2}, 2
s_and_b32 s{sT3}, s{sT}, 2
s_lshl_b32 s{sT3}, s{sT3}, 2
s_add_u32 s{sRB}, s{sRB}, s{sT3}
v_lshrrev_b32 v1, 6, v0
v_and_b32 v0, 63, v0
v_readfirstlane_b32 s{sWAVE}, v1
s_mov_b32 s{sG0}, 0xffff
s_mov_b32 s{sG0+1}, 0
s_mov_b32 s{sG01}, -1
s_mov_b32 s{sG01+1}, 0
""")
    nstamp[0] = 0
    stamp()

def srds():
    a("s_waitcnt lgkmcnt(0)")
    srd(SX, 36, 2359296); srd(SW, 38, 1990656); srd(SWO, 40, 663552)
    srd(SOUT, 44, 4718592); srd(SDBG, 46, 256); srd(SWS, 48, WS_SIZE)

def code_prefetch(label, nbytes_per_wave, vtmp, vdst):
    a(f"""
s_getpc_b64 s[42:43]
s_and_b32 s{sT}, s{sWAVE}, 3
s_mul_i32 s{sT}, s{sT}, {nbytes_per_wave}
v_lshlrev_b32 v{vtmp}, 7, v0
v_min_u32 v{vtmp}, {nbytes_per_wave - 128}, v{vtmp}
v_add_u32 v{vtmp}, s{sT}, v{vtmp}
global_load_dword v{vdst}, v{vtmp}, s[42:43]
""")

def tr_lane(dst, R, tmp):
    a(f"""
v_lshrrev_b32 v{dst}, 5, v0
v_lshlrev_b32 v{dst}, 4, v{dst}
v_bfe_u32 v{tmp}, v0, 4, 1
v_lshl_add_u32 v{dst}, v{tmp}, 2, v{dst}
v_bfe_u32 v{tmp}, v0, 2, 2
v_add_u32 v{dst}, v{dst}, v{tmp}
v_mul_u32_u24 v{dst}, {R*16}, v{dst}
v_and_b32 v{tmp}, 3, v0
v_lshl_add_u32 v{dst}, v{tmp}, 3, v{dst}
""")

def x_lane(d0, d1, tmp):
    a(f"""
v_lshrrev_b32 v{d0}, 4, v0
v_bfe_u32 v{tmp}, v0, 1, 3
v_xor_b32 v{d0}, v{d0}, v{tmp}
v_and_b32 v{tmp}, 15, v0
v_lshlrev_b32 v{tmp}, 7, v{tmp}
v_lshl_add_u32 v{d0}, v{d0}, 4, v{tmp}
v_xor_b32 v{d1}, 64, v{d0}
""")

def slab_voffset(dst, pbase_s, pimm, R, p_off, s_off, rowstride, t0, t1, t2, rowmap="k"):
    magic = {18: 3641, 10: 6554}[R]
    a(f"v_add_u32 v{t0}, {pimm}, v0")
    if pbase_s is not None:
        a(f"v_add_u32 v{t0}, s{pbase_s}, v{t0}")
    a(f"""
v_mul_u32_u24 v{t1}, {magic}, v{t0}
v_lshrrev_b32 v{t1}, 16, v{t1}
v_mul_u32_u24 v{t2}, {R}, v{t1}
v_sub_u32 v{t0}, v{t0}, v{t2}
""")
    if R == 18:
        a(f"""
v_lshlrev_b32 v{dst}, 4, v{t0}
v_add_u32 v{t2}, {s_off - p_off - 160}, v{dst}
v_cmp_lt_u32 vcc, 9, v{t0}
v_cndmask_b32 v{dst}, v{dst}, v{t2}, vcc
v_mov_b32 v{t2}, {s_off - p_off + 128}
v_cmp_eq_u32 vcc, 9, v{t0}
v_cndmask_b32 v{dst}, v{dst}, v{t2}, vcc
""")
    else:
        a(f"v_min_u32 v{t0}, 8, v{t0}\nv_lshlrev_b32 v{dst}, 4, v{t0}")
    mul = {"k": (16, 4, 8), "full": (8, 16, 4), "left": (144, 4, 72)}[rowmap]
    a(f"""
v_and_b32 v{t0}, 3, v{t1}
v_bfe_u32 v{t2}, v{t1}, 4, 1
v_mad_u32_u24 v{t0}, v{t2}, {mul[0] if mul[0] <= 64 else 's%d' % sT3}, v{t0}
v_bfe_u32 v{t2}, v{t1}, 3, 1
v_mad_u32_u24 v{t0}, v{t2}, {mul[1]}, v{t0}
v_bfe_u32 v{t2}, v{t1}, 2, 1
v_mad_u32_u24 v{t0}, v{t2}, {mul[2] if mul[2] <= 64 else 's%d' % sT2}, v{t0}
v_mul_u32_u24 v{t0}, {rowstride}, v{t0}
v_add3_u32 v{dst}, v{dst}, v{t0}, s{sM}
""")
    if p_off:
        a(f"v_add_u32 v{dst}, {p_off}, v{dst}")

def dma(voff, srd_, soff, m0imm, m0base=None, half=False):
    if m0base is None:
        a(f"s_mov_b32 m0, {m0imm}")
    else:
        a(f"s_add_u32 m0, s{m0base}, {m0imm}")
    if half:
        a(f"s_mov_b64 exec, s[{sG01}:{sG01+1}]")
    a(f"buffer_load_dwordx4 v{voff}, s[{srd_}:{srd_+3}], {soff} offen lds")
    if half:
        a("s_mov_b64 exec, -1")

def trread(d, addr, off, hhoff):
    a(f"ds_read_b64_tr_b16 {vr(d,2)}, v{addr} offset:{off}")
    a(f"ds_read_b64_tr_b16 {vr(d+2,2)}, v{addr} offset:{off+hhoff}")

A_WSLOT = 14336
A_X0 = 5 * A_WSLOT
A_XSLOT = 18432
A_EX = A_X0 + 3 * A_XSLOT

def o_store_addr(vfull, vleft, tmp, left_lo):
    a(f"""
s_lshl_b32 s{sT}, s{sRB}, 3
s_lshl_b32 s{sT2}, s{sWAVE}, 1
s_add_u32 s{sT}, s{sT}, s{sT2}
s_mul_i32 s{sT}, s{sT}, 18432
s_mul_i32 s{sT2}, s{sBR}, {O_BR}
s_add_u32 s{sT}, s{sT}, s{sT2}
s_lshl_b32 s{sT2}, s{sHG}, 11
s_add_u32 s{sT2}, s{sT2}, s{sT}
v_lshlrev_b32 v{vfull}, 4, v0
v_add_u32 v{vfull}, s{sT2}, v{vfull}
s_lshr_b32 s{sT2}, s{sHG}, 2
s_add_u32 s{sT2}, s{sT2}, 16
s_lshl_b32 s{sT2}, s{sT2}, 10
s_add_u32 s{sT}, s{sT}, s{sT2}
s_and_b32 s{sT2}, s{sHG}, 3
s_lshl_b32 s{sT2}, s{sT2}, 8
s_add_u32 s{sT}, s{sT}, s{sT2}
v_and_b32 v{vleft}, 15, v0
v_lshlrev_b32 v{vleft}, 4, v{vleft}
v_bfe_u32 v{tmp}, v0, 4, 1
v_lshl_add_u32 v{vleft}, v{tmp}, 3, v{vleft}
v_add_u32 v{vleft}, s{sT}, v{vleft}
v_mov_b32 v{tmp}, {OOB}
""")
    if left_lo:
        a(f"v_cndmask_b32 v{vleft}, v{tmp}, v{vleft}, s[{sG01}:{sG01+1}]")
    else:
        a(f"v_cndmask_b32 v{vleft}, v{vleft}, v{tmp}, s[{sG01}:{sG01+1}]")

def o_store(of, vfull, vleft, rt):
    fl = OPT.get("oflags", "")
    a(f"s_mov_b32 s{sK}, {rt*18432}")
    a(f"buffer_store_dwordx4 {vr(of,4)}, v{vfull}, s[{SWS}:{SWS+3}], s{sK} offen")
    a(f"buffer_store_dwordx4 {vr(of+4,4)}, v{vfull}, s[{SWS}:{SWS+3}], s{sK} offen offset:1024")
    a(f"buffer_store_dwordx2 {vr(of+8,2)}, v{vleft}, s[{SWS}:{SWS+3}], s{sK} offen")

SPLITS = {(1, 0): sG0, (2, 0): sG0, (2, 1): sG0, (3, 0): sG01, (3, 1): sG0}

def xlane4(m, op, t0):
    a(f"v_permlane32_swap_b32 v{m[0]}, v{m[1]}\nv_permlane32_swap_b32 v{m[2]}, v{m[3]}")
    a(f"{op} v{m[0]}, v{m[0]}, v{m[1]}\n{op} v{m[2]}, v{m[2]}, v{m[3]}")
    a(f"v_permlane16_swap_b32 v{m[0]}, v{m[2]}")
    a(f"{op} v{m[0]}, v{m[0]}, v{m[2]}")

def bcast4(m):
    a(f"v_mov_b32 v{m[2]}, v{m[0]}")
    a(f"v_permlane16_swap_b32 v{m[0]}, v{m[2]}")
    a(f"v_mov_b32 v{m[1]}, v{m[0]}\nv_mov_b32 v{m[3]}, v{m[2]}")
    a(f"v_permlane32_swap_b32 v{m[0]}, v{m[1]}\nv_permlane32_swap_b32 v{m[2]}, v{m[3]}")

def a_consumer():
    ACC = 144
    acc = lambda t, rt: ACC + (t * 2 + rt) * 4
    WF = 88
    wf = lambda t: WF + 4 * t
    XF = 72
    xf = lambda buf, rt: XF + buf * 8 + rt * 4
    aW18, aW18b, aW10, aW10b, aX0, aX1 = 1, 2, 3, 4, 5, 6
    vOF, vOL, vEXW, vEXR = 7, 8, 9, 10
    MC, MP, MPF, PM = 56, 60, 64, 68
    a("L_a_cons:")
    code_prefetch("L_a_cons", 4096, 11, 12)
    tr_lane(aW18, 18, 11); tr_lane(aW10, 10, 11); x_lane(aX0, aX1, 11)
    a(f"""
v_add_u32 v{aW10}, 9216, v{aW10}
v_add_u32 v{aW18b}, {4*A_WSLOT}, v{aW18}
v_add_u32 v{aW10b}, {4*A_WSLOT}, v{aW10}
s_lshl_b32 s{sT}, s{sWAVE}, 12
s_add_u32 s{sT}, s{sT}, {A_X0}
v_add_u32 v{aX0}, s{sT}, v{aX0}
v_add_u32 v{aX1}, s{sT}, v{aX1}
s_lshr_b32 s{sT}, s{sWAVE}, 1
s_lshl_b32 s{sT}, s{sT}, 3
v_and_b32 v11, 15, v0
v_xor_b32 v11, s{sT}, v11
v_lshrrev_b32 v13, 4, v0
v_lshlrev_b32 v13, 2, v13
v_xor_b32 v13, s{sT}, v13
v_sub_u32 v11, v11, v13
v_mov_b32 v14, {NEG}
s_and_b32 s{sT}, s{sWAVE}, 1
s_or_b32 s{sT}, s{sT}, s{sRB}
s_cmp_eq_u32 s{sT}, 0
s_cselect_b64 s[42:43], -1, 0
""")
    for r in range(4):
        a(f"""
v_subrev_u32 v13, {r}, v11
v_cmp_gt_u32 vcc, 8, v13
v_cndmask_b32 v{MC+r}, v14, 0, vcc
v_cmp_gt_i32 vcc, -8, v13
v_cndmask_b32 v{MP+r}, v14, 0, vcc
v_cndmask_b32 v{MPF+r}, v{MP+r}, v14, s[42:43]
v_cmp_lt_i32 vcc, -1, v13
v_mov_b32 v15, {'0xffff' if r % 2 == 0 else '0xffff0000'}
v_cndmask_b32 v15, 0, v15, vcc
""")
        if r % 2 == 0:
            a(f"v_mov_b32 v{PM + r//2}, v15")
        else:
            a(f"v_or_b32 v{PM + r//2}, v{PM + r//2}, v15")
    o_store_addr(vOF, vOL, 11, True)
    a(f"""
s_lshr_b32 s{sT}, s{sWAVE}, 1
s_add_u32 s{sT}, s{sT}, 1
s_and_b32 s{sT2}, s{sWAVE}, 1
s_cmp_eq_u32 s{sT2}, 0
s_cselect_b32 s{sT2}, s{sT}, 3
s_cselect_b32 s{sT3}, 0, s{sT}
s_mul_i32 s{sT2}, s{sT2}, 5120
s_mul_i32 s{sT3}, s{sT3}, 5120
v_lshlrev_b32 v11, 3, v0
v_add_u32 v11, {A_EX}, v11
v_add_u32 v{vEXW}, s{sT2}, v11
v_add_u32 v{vEXR}, s{sT3}, v11
""")
    srds()

    def wread(ks, t):
        slot = ks % 5
        if t < 9:
            ad, off, hh = (aW18b if slot == 4 else aW18), t * 32, 2304
        else:
            ad, off, hh = (aW10b if slot == 4 else aW10), (t - 9) * 32, 1280
        trread(wf(t), ad, off + (0 if slot == 4 else slot * A_WSLOT), hh)
    def xread(ks):
        for rt in range(2):
            a(f"ds_read_b128 {vr(xf(ks % 2, rt),4)}, v{aX1 if ks % 2 else aX0} offset:{(ks//2 % 3)*A_XSLOT + rt*2048}")

    a("s_barrier")
    stamp()
    xread(0)
    for t in range(14):
        wread(0, t)
    for ks in range(18):
        if ks < 17:
            a("s_barrier")
        a(f"s_waitcnt lgkmcnt({8 if ks else 12})")
        if ks < 17:
            xread(ks + 1)
        for t in range(14):
            if t == (8 if ks == 0 else 10):
                a(f"s_waitcnt lgkmcnt({8 if ks < 17 else 0})")
            for rt in range(2):
                c = acc(t, rt) if ks else "0"
                if t < 9:
                    mfma(acc(t, rt), wf(t), xf(ks % 2, rt), c)
                else:
                    mfma(acc(t, rt), xf(ks % 2, rt), wf(t), c)
            if ks < 17:
                wread(ks + 1, t)
    stamp()
    KP = lambda j: 16 + 10 * j
    QT = lambda rt, h: 88 + 16 * rt + 4 * h
    VP = lambda t, j: 120 + 6 * t + 2 * j if t < 4 else 46 + 2 * j
    def pack_kv(rt):
        for tau in range(4):
            cvt(KP(1+rt) + 2*tau, acc(5+tau, rt), acc(5+tau, rt) + 1)
            cvt(KP(1+rt) + 2*tau + 1, acc(5+tau, rt) + 2, acc(5+tau, rt) + 3)
        for q in range(2):
            cvt(QT(rt, 3) + 2 + q, acc(4, rt) + 2*q, acc(4, rt) + 2*q + 1)
            a(f"v_mov_b32 v{KP(1+rt) + 8 + q}, 0")
        for t in range(5):
            for q in range(2):
                cvt(VP(t, 1+rt) + q, acc(9+t, rt) + 2*q, acc(9+t, rt) + 2*q + 1)
        for q in range(2):
            a(f"v_permlane32_swap_b32 v{QT(rt,3) + 2 + q}, v{KP(1+rt) + 8 + q}")
    def pack_q(rt):
        for t in range(4):
            for q in range(2):
                d = QT(rt, t) + q
                cvt(d, acc(t, rt) + 2*q, acc(t, rt) + 2*q + 1)
                if (t, q) in SPLITS:
                    m = SPLITS[(t, q)]; lo = QT(rt, t-1) + 2 + q
                    a(f"v_cndmask_b32 v{lo}, 0, v{d}, s[{m}:{m+1}]")
                    a(f"v_xor_b32 v{d}, v{d}, v{lo}")
        a(f"v_mov_b32 v{QT(rt,0) + 3}, 0")
    pack_kv(1)
    for j in range(5):
        a(f"ds_write_b64 v{vEXW}, {vr(KP(2) + 2*j, 2)} offset:{512*j}")
        a(f"ds_write_b64 v{vEXW}, {vr(VP(j, 2), 2)} offset:{512*(5+j)}")
    pack_kv(0)
    a("s_waitcnt lgkmcnt(0)\ns_barrier")
    for j in range(5):
        a(f"ds_read_b64 {vr(KP(0) + 2*j, 2)}, v{vEXR} offset:{512*j}")
        a(f"ds_read_b64 {vr(VP(j, 0), 2)}, v{vEXR} offset:{512*(5+j)}")
    pack_q(1); pack_q(0)
    SC = lambda rt, h: 144 + 32 * rt + 8 * h
    MX = lambda rt: [208 + 4 * rt + h for h in range(4)]
    PT = lambda rt, h: 216 + 16 * rt + 4 * h
    a(f"s_mov_b32 s{sT}, {f32(CSC)}\ns_mov_b32 s{sT2}, {f32(-CSC)}")
    for rt in (1, 0):
        if rt == 0:
            a("s_waitcnt lgkmcnt(0)")
        for h in range(4):
            mfma(SC(rt, h), KP(1+rt) + 2*h, QT(rt, h), MC)
            mfma(SC(rt, h) + 4, KP(rt) + 2*h, QT(rt, h), MP if rt else MPF)
    for rt in (1, 0):
        m = MX(rt)
        for h in range(4):
            s = SC(rt, h)
            for r in range(4):
                a(f"v_max_f32 v{s+r}, v{s+r}, v{s+4+r}")
            a(f"v_max3_f32 v{m[h]}, v{s}, v{s+1}, v{s+2}\nv_max_f32 v{m[h]}, v{m[h]}, v{s+3}")
    for rt in (1, 0):
        xlane4(MX(rt), "v_max_f32", None)
        a(f"v_mul_f32 v{MX(rt)[0]}, s{sT2}, v{MX(rt)[0]}")
    for rt in (1, 0):
        bcast4(MX(rt))
    for rt in (1, 0):
        m = MX(rt)
        for h in range(4):
            s = SC(rt, h)
            for r in range(4):
                a(f"v_fma_f32 v{s+r}, v{s+r}, s{sT}, v{m[h]}")
            for r in range(4):
                a(f"v_exp_f32 v{s+r}, v{s+r}")
        for h in range(4):
            s = SC(rt, h)
            a(f"v_add_f32 v{s+4}, v{s}, v{s+1}\nv_add_f32 v{s+5}, v{s+2}, v{s+3}\nv_add_f32 v{m[h]}, v{s+4}, v{s+5}")
    for rt in (1, 0):
        xlane4(MX(rt), "v_add_f32", None)
        a(f"v_rcp_f32 v{MX(rt)[0]}, v{MX(rt)[0]}")
    for rt in (1, 0):
        bcast4(MX(rt))
    for rt in (1, 0):
        m = MX(rt)
        for h in range(4):
            s = SC(rt, h); p = PT(rt, h)
            for r in range(4):
                a(f"v_mul_f32 v{s+r}, v{s+r}, v{m[h]}")
            for q in range(2):
                cvt(p + q, s + 2*q, s + 2*q + 1)
                a(f"v_and_b32 v{p+2+q}, v{p+q}, v{PM+q}\nv_xor_b32 v{p+q}, v{p+q}, v{p+2+q}")
    OA = lambda rt, t: 144 + 32 * rt + 4 * (t - 1)
    OB = lambda rt, t: 144 + 32 * rt + 16 + 4 * t
    OF = lambda rt: 16 + 12 * rt
    for rt in (1, 0):
        for t in range(5):
            if t < 4:
                mfma(OB(rt, t), VP(t, rt), PT(rt, t), "0")
            if t > 0:
                mfma(OA(rt, t), VP(t, rt), PT(rt, t-1), "0")
    for rt in (1, 0):
        for t in range(5):
            for q in range(2):
                d = OF(rt) + 2*t + q
                if t == 4:
                    cvt(d, OA(rt, t) + 2*q, OA(rt, t) + 2*q + 1)
                else:
                    cvt(d, OB(rt, t) + 2*q, OB(rt, t) + 2*q + 1)
                    if (t, q) in SPLITS:
                        m = SPLITS[(t, q)]
                        cvt(11, OA(rt, t) + 2*q, OA(rt, t) + 2*q + 1)
                        a(f"v_cndmask_b32 v{d}, v{d}, v11, s[{m}:{m+1}]")
        o_store(OF(rt), vOF, vOL, rt)
    stamp()
    stamps_out(0)
    a("s_endpgm")

def a_halo(ks, aX, aH, aHb, kind):
    slot = ks % 5
    a(f"ds_read_b128 v[40:43], v{aX[ks % 2]} offset:{(ks//2 % 3)*A_XSLOT}")
    hh = 2304 if kind == "T" else 1280
    off = 0 if slot == 4 else slot * A_WSLOT
    ad = aHb if slot == 4 else aH
    trread(44, ad[0], off, hh); trread(48, ad[0], off + 32, hh); trread(52, ad[1], off, hh)

def a_halo_mfma(ks, kind):
    a("s_waitcnt lgkmcnt(0)")
    for j in range(3):
        c = 60 + 4*j if ks else "0"
        if kind == "T":
            mfma(60 + 4*j, 44 + 4*j, 40, c)
        else:
            mfma(60 + 4*j, 40, 44 + 4*j, c)

def a_loader(kind):
    a(f"L_a_ld{kind}:")
    a(f"s_and_b32 s{sV}, s{sWAVE}, 1")
    VO = 16
    if kind == "T":
        a(f"s_mul_i32 s{sM}, s{sHG}, 144\ns_cmp_eq_u32 s{sV}, 0\ns_cbranch_scc0 L_a_ldT1")
        for j in range(7):
            slab_voffset(VO + j, None, 64*j, 18, 0, 1152, 3456, 11, 12, 13)
        a("s_branch L_a_ldT2\nL_a_ldT1:")
        for j in range(2):
            slab_voffset(VO + j, None, 64*(7+j), 18, 0, 1152, 3456, 11, 12, 13)
        for j in range(5):
            slab_voffset(VO + 2 + j, None, 64*j, 10, 2304, 0, 3456, 11, 12, 13)
        a("L_a_ldT2:")
        a(f"s_mul_i32 s{sM}, s{sV}, 7168")
    else:
        a(f"""
v_lshrrev_b32 v11, 3, v0
v_mul_u32_u24 v11, 2304, v11
v_lshrrev_b32 v12, 4, v0
s_lshl_b32 s{sT}, s{sV}, 2
v_add_u32 v12, s{sT}, v12
v_and_b32 v13, 7, v0
v_xor_b32 v12, v12, v13
v_lshl_add_u32 v11, v12, 4, v11
s_lshl_b32 s{sT}, s{sRB}, 7
s_lshl_b32 s{sT2}, s{sV}, 4
""")
        for q in range(9):
            if q < 4:
                a(f"s_add_u32 s{sT3}, s{sT}, s{sT2}\ns_add_u32 s{sT3}, s{sT3}, {32*q}")
            elif q < 8:
                a(f"s_sub_u32 s{sT3}, s{sT}, s{sT2}\ns_add_u32 s{sT3}, s{sT3}, {32*(q-4) + 17}")
            else:
                a(f"s_sub_u32 s{sT3}, s{sT}, s{sV}\ns_sub_u32 s{sT3}, s{sT3}, 15")
            a(f"s_mul_i32 s{sT3}, s{sT3}, 1152\nv_add_u32 v{VO+q}, s{sT3}, v11")
        a(f"s_lshl_b32 s{sM}, s{sV}, 10\ns_add_u32 s{sM}, s{sM}, {A_X0}")
    srds()
    def issue(c):
        if kind == "T":
            a(f"s_mov_b32 s{sK}, {c*32*3456}")
            for j in range(7):
                dma(VO + j, SW, f"s{sK}", (c % 5)*A_WSLOT + 1024*j, sM)
            return 7
        st = (c + 1) // 2
        qs = range(9) if c == 0 else (range(5) if c % 2 else range(5, 9))
        if st > 8:
            return 0
        a(f"s_mov_b32 s{sK}, {st*128}")
        for q in qs:
            dma(VO + q, SX, f"s{sK}", (st % 3)*A_XSLOT + 2048*q, sM)
        return len(qs)
    cnt = {}
    for c in range(3):
        cnt[c] = issue(c)
    aX = (1, 2); aH = (3, 4); aHb = (5, 6)
    x_lane(1, 2, 11)
    a(f"v_add_u32 v1, {A_X0 + 8*2048}, v1\nv_add_u32 v2, {A_X0 + 8*2048}, v2")
    tr_lane(4, 18 if kind == "T" else 10, 11)
    a(f"s_lshl_b32 s{sT}, s{sV}, 6")
    if kind == "T":
        a(f"s_add_u32 s{sT}, s{sT}, 160\nv_add_u32 v3, s{sT}, v4\nv_add_u32 v4, 128, v4")
    else:
        a(f"s_add_u32 s{sT}, s{sT}, 9216\nv_add_u32 v3, s{sT}, v4\nv_add_u32 v4, {9216+128}, v4")
    a(f"v_add_u32 v5, {4*A_WSLOT}, v3\nv_add_u32 v6, {4*A_WSLOT}, v4")
    a(f"s_lshl_b32 s{sT}, s{sV}, 10\ns_add_u32 s{sT}, s{sT}, {A_EX + (0 if kind == 'T' else 2560)}")
    a(f"v_lshlrev_b32 v8, 3, v0\nv_add_u32 v7, s{sT}, v8\nv_add_u32 v8, {A_EX + (2048 if kind == 'T' else 4608)}, v8")
    a(f"s_waitcnt vmcnt({cnt[1] + cnt[2]})\ns_barrier")
    stamp()
    for i in range(-1, 17):
        a_halo(i + 1, aX, aH, aHb, kind)
        if i + 4 <= 17:
            cnt[i+4] = issue(i + 4)
        a_halo_mfma(i + 1, kind)
        if i + 1 <= 16:
            left = sum(cnt.get(c, 0) for c in range(i + 3, min(i + 4, 17) + 1))
            a(f"s_waitcnt vmcnt({left})\ns_barrier")
    stamp()
    for j in range(3):
        cvt(44 + 2*j, 60 + 4*j, 61 + 4*j); cvt(45 + 2*j, 62 + 4*j, 63 + 4*j)
    if kind == "T":
        a("v_mov_b32 v50, 0\nv_mov_b32 v51, 0")
        a("v_permlane32_swap_b32 v48, v50\nv_permlane32_swap_b32 v49, v51")
    a("ds_write_b64 v7, v[44:45]\nds_write_b64 v7, v[46:47] offset:512")
    a(f"ds_write_b64 v8, {'v[50:51]' if kind == 'T' else 'v[48:49]'}")
    a("s_waitcnt lgkmcnt(0)\ns_barrier")
    stamp()
    stamps_out(0)
    a("s_endpgm")

B_KVSLOT = 9216
B_X0 = 5 * B_KVSLOT
B_XSLOT = 16384
B_WQ = B_X0 + 5 * B_XSLOT
B_EX = 0
B_KVOP = B_WQ + 2 * 5120
QB = (6, 10, 14)
def wq_slot(c):
    if c < 7: return B_WQ + 5120 * c
    if c < 16: return 5120 * (c - 7)
    return B_WQ + 5120 * (c - 16)

def head_of(dst, src):
    a(f"v_mul_u32_u24 v{dst}, 57, v{src}\nv_lshrrev_b32 v{dst}, 10, v{dst}")

def phi(r, n, t):
    for j in range(n):
        a(f"v_fma_f32 v{t+j}, v{r+j}, s{sT}, v15")
    for j in range(n):
        a(f"v_exp_f32 v{t+j}, v{t+j} clamp")
    for j in range(n):
        a(f"v_max_f32 v{r+j}, s{sT2}, v{r+j}")
    for j in range(n):
        a(f"v_add_f32 v{r+j}, v{r+j}, v{t+j}")

def poll(voff, vdst, srd_, target, label, cmp="ge"):
    a(f"""
s_mov_b32 s{sT3}, 0x20000
{label}:
buffer_load_dword v{vdst}, v{voff}, s[{srd_}:{srd_+3}], 0 offen sc1
s_waitcnt vmcnt(0)
v_readfirstlane_b32 s{sT}, v{vdst}
s_sub_u32 s{sT3}, s{sT3}, 1
s_cbranch_scc1 {label}_x
s_cmp_{cmp}_u32 s{sT}, {target}
s_cbranch_scc0 {label}
{label}_x:
""")

def b_consumer():
    ACC = 184
    acc = lambda t, rt: ACC + (t * 2 + rt) * 4
    WF = 148
    wf = lambda t: WF + 4 * t
    XK = 84
    XD = 68
    xf = lambda ks, rt: XK + ks * 8 + rt * 4 if ks < 8 else XD + (ks % 2) * 8 + rt * 4
    aW, aX0, aX1, aX0b, aX1b, aQa, aQb = 1, 2, 3, 4, 5, 6, 7
    vOF, vOL, vZA, vFL, vEA, vE0, vEL = 8, 9, 10, 16, 17, 18, 19
    CK, CS = 60, 64
    VA = 52
    a("L_b_cons:")
    code_prefetch("L_b_cons", 4096, 11, 50)
    tr_lane(aW, 18, 11); tr_lane(aQa, 10, 11); x_lane(aX0, aX1, 11)
    a(f"""
v_add_u32 v{aQb}, {B_WQ}, v{aQa}
s_lshl_b32 s{sT}, s{sWAVE}, 12
s_add_u32 s{sT}, s{sT}, {B_X0}
v_add_u32 v{aX0}, s{sT}, v{aX0}
v_add_u32 v{aX1}, s{sT}, v{aX1}
v_add_u32 v{aX0b}, {3*B_XSLOT}, v{aX0}
v_add_u32 v{aX1b}, {3*B_XSLOT}, v{aX1}
v_and_b32 v11, 15, v0
v_cmp_gt_u32 vcc, 8, v11
v_mov_b32 v13, {EPS}
s_mov_b64 s[56:57], vcc
""")
    for r in range(4):
        a(f"v_mov_b32 v{CK+r}, v13\nv_cndmask_b32 v{CS+r}, 0, v13, vcc")
    o_store_addr(vOF, vOL, 11, False)
    a(f"""
s_mul_i32 s{sM}, s{sHG}, {KV_ST}
s_add_u32 s{sM}, s{sM}, {WS_KV}
s_cmp_eq_u32 s{sWAVE}, 0
s_cselect_b32 s{sV}, 4, s{sWAVE}
v_and_b32 v11, 15, v0
v_lshrrev_b32 v12, 4, v0
v_lshlrev_b32 v12, 2, v12
""")
    for slot in range(4):
        if slot == 0:
            a(f"s_mov_b32 s{sT}, s{sV}\ns_sub_u32 s{sT2}, s{sV}, 1\ns_mov_b32 s{sT3}, s{sT2}")
        elif slot == 1:
            a(f"s_mov_b32 s{sT}, s{sWAVE}\ns_mov_b32 s{sT2}, s{sWAVE}\ns_add_u32 s{sT3}, s{sWAVE}, 4")
        elif slot == 2:
            a(f"s_mov_b32 s{sT}, s{sWAVE}\ns_add_u32 s{sT2}, s{sWAVE}, 1\ns_add_u32 s{sT3}, s{sWAVE}, 9")
        else:
            a(f"s_mov_b32 s{sT}, 4\ns_mov_b32 s{sT2}, 4\ns_mov_b32 s{sT3}, 8")
        a(f"""
s_lshl_b32 s{sT3}, s{sT3}, 10
s_add_u32 s{sT3}, s{sT3}, s{sM}
s_cmp_eq_u32 s{sT2}, 4
s_cselect_b32 s42, 56, 0
s_cselect_b64 s[58:59], s[56:57], 0
s_lshl_b32 s{sT2}, s{sT2}, 4
s_cselect_b32 s{sT2}, s{sT2}, 0
s_cmp_eq_u32 s42, 0
s_cselect_b32 s{sT2}, s{sT2}, s42
v_add_u32 v13, s{sT2}, v11
""")
        head_of(13, 13)
        a(f"v_cndmask_b32 v13, v13, 7, s[58:59]")
        if slot == 3:
            a("v_cmp_eq_u32 vcc, 0, v11\nv_cndmask_b32 v13, v13, 3, vcc")
        a(f"s_lshl_b32 s{sT}, s{sT}, 4")
        for q in range(2):
            a(f"v_add3_u32 v14, v12, s{sT}, {2*q}")
            head_of(14, 14)
            a(f"""
v_cmp_eq_u32 vcc, v13, v14
v_lshl_add_u32 v14, v0, 2, s{sT3}
v_mov_b32 v15, {OOB}
v_cndmask_b32 v{VA + 2*slot + q}, v15, v14, vcc
""")
    a(f"""
s_lshl_b32 s{sT}, s{sWAVE}, 6
s_add_u32 s{sT}, s{sT}, s{sM}
s_add_u32 s{sT}, s{sT}, 13312
v_lshl_add_u32 v14, v0, 2, s{sT}
v_cndmask_b32 v{vZA}, v15, v14, s[{sG0}:{sG0+1}]
v_lshlrev_b32 v{vEL}, 4, v0
s_lshl_b32 s{sT}, s{sWAVE}, 10
v_add_u32 v{vEA}, s{sT}, v{vEL}
s_lshl_b32 s{sT}, s{sV}, 10
v_add_u32 v{vE0}, s{sT}, v{vEL}
s_lshl_b32 s{sT}, s{sHG}, 2
v_mov_b32 v{vFL}, s{sT}
""")
    srds()
    a(f"""
s_or_b32 s{sT}, s{sRB}, s{sWAVE}
s_cmp_eq_u32 s{sT}, 0
s_cselect_b32 s55, 1, 0
s_cbranch_scc0 L_b_noinit
v_mov_b32 v20, 0
v_mov_b32 v21, 0
v_mov_b32 v22, 0
v_mov_b32 v23, 0
v_add_u32 v14, s{sM}, v{vEL}
""")
    for j in range(16):
        a(f"s_mov_b32 s{sK}, {1024*j}\nbuffer_store_dwordx4 v[20:23], v14, s[{SWS}:{SWS+3}], s{sK} offen sc1")
    a("L_b_noinit:")

    def wread(ks, t):
        trread(wf(t), aW, (ks % 5)*B_KVSLOT + t*32, 2304)
    def xread(ks):
        slot = (ks // 2) % 5
        ad = ((aX0, aX1), (aX0b, aX1b))[slot >= 3][ks % 2]
        for rt in range(2):
            a(f"ds_read_b128 {vr(xf(ks, rt),4)}, v{ad} offset:{(slot - 3 if slot >= 3 else slot)*B_XSLOT + rt*2048}")

    a("s_barrier")
    stamp()
    xread(0)
    for t in range(9):
        wread(0, t)
    for ks in range(18):
        if ks < 17:
            a("s_barrier")
        if ks == 3:
            a(f"""
s_cmp_eq_u32 s55, 0
s_cbranch_scc1 L_b_noflag
s_waitcnt vmcnt(0)
v_mov_b32 v20, 1
buffer_store_dword v20, v{vFL}, s[{SDBG}:{SDBG+3}], 0 offen sc1
L_b_noflag:
""")
        if ks == 12:
            a(f"buffer_load_dword v20, v{vFL}, s[{SDBG}:{SDBG+3}], 0 offen sc1")
        a(f"s_waitcnt lgkmcnt(8)")
        if ks < 17:
            xread(ks + 1)
        for t in range(9):
            if t == 5:
                a(f"s_waitcnt lgkmcnt({8 if ks < 17 else 0})")
            for rt in range(2):
                c = acc(t, rt) if ks else (CK if t < 4 else CS if t == 4 else "0")
                mfma(acc(t, rt), xf(ks, rt), wf(t), c)
            if ks < 17:
                wread(ks + 1, t)
    stamp()
    PK = lambda tau: 148 + 4 * tau
    VV = lambda tau: 20 + 4 * tau + 4
    a(f"s_mov_b32 s{sT}, {f32(LOG2E)}\ns_mov_b32 s{sT2}, {EPS}\nv_mov_b32 v15, {f32(-1e-6*LOG2E)}")
    for tau in range(5):
        t = 5 + tau if tau < 4 else 4
        for rt in range(2):
            for q in range(2):
                cvt(VV(tau) + 2*rt + q, acc(t, rt) + 2*q, acc(t, rt) + 2*q + 1)
    a("v_mov_b32 v14, 0x3f803f80")
    for j in range(4):
        a(f"v_cndmask_b32 v{VV(4)+j}, v{VV(4)+j}, v14, s[56:57]")
    for tau in range(5):
        phi(acc(tau, 0), 8, 168)
        for rt in range(2):
            for q in range(2):
                cvt(PK(tau) + 2*rt + q, acc(tau, rt) + 2*q, acc(tau, rt) + 2*q + 1)
    a("s_barrier")
    a(f"s_mul_i32 s{sT}, s{sWAVE}, 10240\nv_add_u32 v14, s{sT}, v{vEL}")
    for tau in range(5):
        a(f"ds_write_b128 v14, {vr(PK(tau),4)} offset:{1024*tau}")
        a(f"ds_write_b128 v14, {vr(VV(tau),4)} offset:{1024*(5+tau)}")
    KT = lambda s: 184 + 4 * s
    mfma(KT(3), PK(4), VV(4), "0")
    a("s_waitcnt lgkmcnt(0)\ns_barrier")
    RD = lambda src, j: 204 + 24 * (src % 2) + 4 * j
    def exread(src):
        o = src * 10240
        for j, (ad, off) in enumerate(((vEA, 0), (vE0, 0), (vE0, 4096), (vEA, 5120), (vEA, 6144), (vEL, 9216))):
            a(f"ds_read_b128 {vr(RD(src, j),4)}, v{ad} offset:{o + off}")
    exread(0); exread(1)
    for src in range(4):
        a(f"s_waitcnt lgkmcnt({6 if src < 3 else 0})")
        c = lambda s: KT(s) if src else "0"
        mfma(KT(0), RD(src, 1), RD(src, 2), c(0))
        mfma(KT(1), RD(src, 0), RD(src, 3), c(1))
        mfma(KT(2), RD(src, 0), RD(src, 4), c(2))
        mfma(KT(4), RD(src, 5), RD(src, 0), c(4))
        if src + 2 < 4:
            exread(src + 2)
    a(f"s_waitcnt vmcnt(0)\nv_readfirstlane_b32 s{sT}, v20\ns_cmp_lg_u32 s{sT}, 0\ns_cbranch_scc1 L_b_flagok")
    poll(vFL, 20, SDBG, 1, "L_b_flagpoll")
    a("L_b_flagok:")
    for s in (3, 0, 1, 2):
        for r in range(4):
            a(f"buffer_atomic_add_f32 v{KT(s)+r}, v{VA + 2*s + r//2}, s[{SWS}:{SWS+3}], 0 offen offset:{256*r}")
    a(f"buffer_atomic_add_f32 v{KT(4)}, v{vZA}, s[{SWS}:{SWS+3}], 0 offen")
    stamp()
    QA = lambda t, rt: 216 + (t * 2 + rt) * 4
    qf = lambda t: 148 + 4 * t
    def qread(ks, t):
        so = wq_slot(ks)
        ad, off = (aQb, so - B_WQ) if so >= B_WQ else (aQa, so)
        trread(qf(t), ad, off + 32*t, 1280)
    a("s_barrier")
    for t in range(5):
        qread(0, t)
    for ks in range(18):
        if ks in QB:
            if ks == QB[OPT.get("sigat", 0)]:
                a("s_waitcnt vmcnt(0)")
            a("s_barrier")
        if 8 <= ks + 1 < 18:
            xread(ks + 1)
        for t in range(5):
            nxt = (2 if 8 <= ks + 1 < 18 else 0)
            if ks < 17:
                a(f"s_waitcnt lgkmcnt({8 + (nxt if True else 0)})")
            else:
                a(f"s_waitcnt lgkmcnt({2*(4-t)})")
            for rt in range(2):
                mfma(QA(t, rt), qf(t), xf(ks, rt), QA(t, rt) if ks else CK)
            if ks < 17:
                qread(ks + 1, t)
    stamp()
    PQ = lambda rt: 20 + 10 * rt
    a(f"s_mov_b32 s{sT}, {f32(LOG2E)}\ns_mov_b32 s{sT2}, {EPS}")
    for t in range(5):
        phi(QA(t, 0), 8, 168)
        for rt in range(2):
            for q in range(2):
                cvt(PQ(rt) + 2*t + q, QA(t, rt) + 2*q, QA(t, rt) + 2*q + 1)
    KO = 84
    tup = {0: KO, 4: KO + 28}
    for t in (1, 2, 3):
        tup[t] = KO + 4 + 8 * (t - 1)
    ZO = KO + 32
    for t in (1, 2, 3):
        a(f"v_mov_b32 v{tup[t]+4}, 0\nv_mov_b32 v{tup[t]+5}, 0")
    a(f"v_mov_b32 v{ZO+8}, 0\nv_mov_b32 v{ZO+9}, 0")
    a(f"v_lshlrev_b32 v14, 3, v0\nv_add_u32 v14, {B_KVOP}, v14")
    stamp()
    a("s_barrier")
    stamp()
    tid = lambda tau, taup: {-1: tau - 1, 0: 4 + tau, 1: 9 + tau}[taup - tau]
    rd = lambda d, slot: a(f"ds_read_b64 {vr(d,2)}, v14 offset:{512*slot}")
    for j, d in enumerate((ZO, ZO + 2, ZO + 4, ZO + 6, ZO + 10)):
        rd(d, 13 + j)
    rd(tup[0], tid(0, 0)); rd(tup[0] + 2, tid(1, 0))
    for t in (1, 2, 3):
        rd(tup[t], tid(t-1, t)); rd(tup[t] + 2, tid(t, t)); rd(tup[t] + 6, tid(t+1, t))
    rd(tup[4], tid(3, 4)); rd(tup[4] + 2, tid(4, 4))
    DN = lambda rt: 148 + 4 * rt
    NM = lambda rt, t: 184 + 20 * rt + 4 * t
    a("s_waitcnt lgkmcnt(13)")
    for rt in range(2):
        mfma(DN(rt), ZO, PQ(rt), CK)
    for rt in range(2):
        mfma(DN(rt), ZO + 4, PQ(rt) + 4, DN(rt))
    for rt in range(2):
        mfma(DN(rt), ZO + 8, PQ(rt) + 6, DN(rt))
    a("s_waitcnt lgkmcnt(0)")
    for rt in range(2):
        mfma(NM(rt, 0), tup[0], PQ(rt), "0")
        for t in (1, 2, 3):
            mfma(NM(rt, t), tup[t], PQ(rt) + 2*(t-1), "0")
        mfma(NM(rt, 4), tup[4], PQ(rt) + 6, "0")
        for t in (1, 2, 3):
            mfma(NM(rt, t), tup[t] + 4, PQ(rt) + 2*t, NM(rt, t))
    OF = lambda rt: 40 + 12 * rt if rt == 0 else 156
    for rt in range(2):
        for h in range(4):
            a(f"v_rcp_f32 v{DN(rt)+h}, v{DN(rt)+h}")
    for rt in range(2):
        for t in range(5):
            for q in range(2):
                inv = DN(rt) + min(t, 3)
                if (t, q) in SPLITS:
                    m = SPLITS[(t, q)]
                    a(f"v_cndmask_b32 v11, v{DN(rt)+t}, v{DN(rt)+t-1}, s[{m}:{m+1}]")
                    inv = 11
                n = NM(rt, t) + 2*q
                a(f"v_mul_f32 v{n}, v{n}, v{inv}\nv_mul_f32 v{n+1}, v{n+1}, v{inv}")
                cvt(OF(rt) + 2*t + q, n, n + 1)
        o_store(OF(rt), vOF, vOL, rt)
    stamp()
    stamps_out(0)
    a("s_endpgm")

def b_loader(kind):
    a(f"L_b_ld{kind}:")
    a(f"s_and_b32 s{sV}, s{sWAVE}, 1")
    VO, VQ = 16, 24
    if kind == "W":
        a(f"s_mul_i32 s{sM}, s{sHG}, 144\ns_mul_i32 s42, s{sV}, 288")
        for j in range(5):
            slab_voffset(VO + j, 42, 64*j, 18, 1152, 2304, 3456, 11, 12, 13)
        a(f"s_mul_i32 s43, s{sV}, 4608")
    else:
        a(f"""
v_lshrrev_b32 v11, 3, v0
v_mul_u32_u24 v11, 1152, v11
v_lshrrev_b32 v12, 4, v0
s_lshl_b32 s{sT}, s{sV}, 2
v_add_u32 v12, s{sT}, v12
v_and_b32 v13, 7, v0
v_xor_b32 v12, v12, v13
v_lshl_add_u32 v11, v12, 4, v11
s_lshl_b32 s{sT}, s{sRB}, 7
s_lshl_b32 s{sT2}, s{sV}, 3
s_add_u32 s{sT}, s{sT}, s{sT2}
""")
        for q in range(8):
            a(f"s_add_u32 s{sT3}, s{sT}, {16*q}\ns_mul_i32 s{sT3}, s{sT3}, 1152\nv_add_u32 v{VO+q}, s{sT3}, v11")
        a(f"s_lshl_b32 s43, s{sV}, 10\ns_add_u32 s43, s43, {B_X0}")
    srds()
    def issue(c):
        if kind == "W":
            a(f"s_mov_b32 s{sK}, {c*32*3456}")
            for j in range(5):
                dma(VO + j, SW, f"s{sK}", (c % 5)*B_KVSLOT + 1024*j, 43, half=(j == 4))
            return 5
        st = (c + 1) // 2
        qs = range(8) if c == 0 else (range(4) if c % 2 else range(4, 8))
        if st > 8:
            return 0
        a(f"s_mov_b32 s{sK}, {st*128}")
        for q in qs:
            dma(VO + q, SX, f"s{sK}", (st % 5)*B_XSLOT + 2048*q, 43)
        return len(qs)
    def issue_q(c):
        a(f"s_mov_b32 s{sK}, {c*32*3456}")
        for j in range(3):
            dma(VQ + j, SW, f"s{sK}", wq_slot(c) + 1024*j, 55, half=(j == 2))
    cnt = {}
    for c in range(3):
        cnt[c] = issue(c)
    if kind == "W":
        a(f"s_mul_i32 s42, s{sV}, 160")
        for j in range(3):
            slab_voffset(VQ + j, 42, 64*j, 10, 0, 0, 3456, 11, 12, 13)
        a(f"s_mul_i32 s55, s{sV}, 2560")
    vKA, vKZ, vK4, vCN, vLW = 28, 29, 30, 31, 32
    ZM = 34
    a(f"""
s_and_b32 s56, s{sWAVE}, 3
s_mul_i32 s{sM}, s{sHG}, {KV_ST}
s_add_u32 s{sM}, s{sM}, {WS_KV}
s_lshl_b32 s{sT}, s56, 10
s_add_u32 s{sT}, s{sT}, s{sM}
v_lshl_add_u32 v{vKA}, v0, 2, s{sT}
v_lshrrev_b32 v11, 4, v0
s_lshl_b32 s{sT}, s56, 6
s_add_u32 s{sT}, s{sT}, s{sM}
s_add_u32 s{sT}, s{sT}, 13312
v_lshl_add_u32 v{vKZ}, v11, 4, s{sT}
s_add_u32 s{sT}, s{sM}, 8192
v_lshl_add_u32 v{vK4}, v11, 6, s{sT}
s_add_u32 s{sT}, s{sM}, 15360
v_mov_b32 v{vCN}, s{sT}
s_lshl_b32 s{sT}, s56, 9
s_add_u32 s{sT}, s{sT}, {B_KVOP}
v_lshl_add_u32 v{vLW}, v0, 3, s{sT}
v_lshlrev_b32 v11, 2, v11
v_and_b32 v12, 3, v0
s_lshl_b32 s{sT}, s56, 4
""")
    for j in range(4):
        if j < 2:
            a(f"v_add3_u32 v13, v11, s{sT}, {2*j}")
        else:
            a(f"v_add_u32 v13, {64 + 2*(j-2)}, v11")
        head_of(13, 13)
        a(f"v_cmp_eq_u32 vcc, v12, v13\nv_cndmask_b32 v{ZM+j}, 0, -1, vcc")
    a(f"s_waitcnt vmcnt({cnt[1] + cnt[2]})\ns_barrier")
    stamp()
    for i in range(-1, 16):
        if i + 4 <= 17:
            cnt[i+4] = issue(i + 4)
        left = sum(cnt.get(c, 0) for c in range(i + 3, min(i + 4, 17) + 1))
        if kind == "W" and i >= 14:
            for c in ((0, 1, 2) if i == 14 else (3, 4, 5, 6)):
                issue_q(c)
            left += 9 if i == 14 else 21
        a(f"s_waitcnt vmcnt({left})\ns_barrier")
    stamp()
    a("s_barrier\ns_barrier")
    a("s_waitcnt vmcnt(0)\ns_barrier")
    if kind == "W":
        for c in range(7, 16):
            issue_q(c)
        a("s_waitcnt vmcnt(15)")
    sig = OPT.get("sigat", 0)
    def signal():
        a(f"""
s_cmp_eq_u32 s{sWAVE}, 6
s_cbranch_scc0 L_b_nosig{kind}
s_mov_b64 exec, 1
v_mov_b32 v11, 1
buffer_atomic_add v11, v{vCN}, s[{SWS}:{SWS+3}], 0 offen
s_mov_b64 exec, -1
L_b_nosig{kind}:
""")
    for n in range(3):
        a("s_barrier")
        if n == sig and kind == "X":
            signal()
        if kind == "W":
            if n == 0:
                issue_q(16); issue_q(17)
                a("s_waitcnt vmcnt(9)")
            elif n == 1:
                a("s_waitcnt vmcnt(0)")
    stamp()
    poll(vCN, 11, SWS, 16, f"L_b_cnt{kind}")
    stamp()
    for j in range(4):
        for r in range(4):
            so = 4096*j if j < 3 else None
            if j < 3:
                a(f"s_mov_b32 s{sK}, {4096*j}")
                a(f"buffer_load_dword v{40+4*j+r}, v{vKA}, s[{SWS}:{SWS+3}], s{sK} offen offset:{256*r} sc1")
    a(f"s_lshl_b32 s{sT}, s56, 10\ns_sub_u32 s{sK}, 12288, s{sT}")
    for r in range(4):
        a(f"buffer_load_dword v{52+r}, v{vKA}, s[{SWS}:{SWS+3}], s{sK} offen offset:{256*r} sc1")
    a(f"buffer_load_dwordx4 v[56:59], v{vKZ}, s[{SWS}:{SWS+3}], 0 offen sc1")
    for r in range(4):
        a(f"buffer_load_dword v{60+r}, v{vK4}, s[{SWS}:{SWS+3}], 0 offen offset:{256*r} sc1")
    a(f"v_lshlrev_b32 v12, 3, v0\nv_add_u32 v12, {B_KVOP}, v12")
    a("s_waitcnt vmcnt(0)")
    for j in range(6):
        cvt(64 + 2*j, 40 + 4*j, 41 + 4*j); cvt(65 + 2*j, 42 + 4*j, 43 + 4*j)
    for j in range(4):
        a(f"v_and_b32 v{72+j}, v{72+j}, v{ZM+j}")
    for j in range(3):
        a(f"ds_write_b64 v{vLW}, {vr(64+2*j,2)} offset:{2048*j}")
    a(f"ds_write_b64 v12, v[70:71] offset:{512*12}")
    a(f"ds_write_b64 v{vLW}, v[72:73] offset:{512*13}")
    a(f"ds_write_b64 v12, v[74:75] offset:{512*17}")
    a("s_waitcnt lgkmcnt(0)\ns_barrier")
    stamp()
    stamps_out(0)
    a("s_endpgm")

P_TR = 92160

def p2_consumer():
    OFR = lambda ks, rt: 112 + ks * 8 + rt * 4
    ACC = lambda t, rt: 72 + (t * 2 + rt) * 4
    wf = lambda t: 52 + 4 * t
    aWa, aWb, vO, vTW, vTR = 1, 2, 3, 4, 5
    VS = 6
    a("L_p_cons:")
    a(f"""
s_lshl_b32 s{sT}, s{sRB}, 3
s_lshl_b32 s{sT2}, s{sWAVE}, 1
s_add_u32 s{sT}, s{sT}, s{sT2}
s_mul_i32 s{sT}, s{sT}, 18432
s_mul_i32 s{sT2}, s{sBR}, {O_BR}
s_add_u32 s{sT}, s{sT}, s{sT2}
v_lshl_add_u32 v{vO}, v0, 4, s{sT}
""")
    srds()
    def oload(ks):
        for rt in range(2):
            o = rt*18432 + ks*1024
            a(f"s_mov_b32 s{sK}, {o}\nbuffer_load_dwordx4 {vr(OFR(ks, rt),4)}, v{vO}, s[{SWS}:{SWS+3}], s{sK} offen")
    AHEAD = 5
    for ks in range(AHEAD):
        oload(ks)
    tr_lane(aWa, 10, 11)
    a(f"v_add_u32 v{aWb}, {9*5120}, v{aWa}")
    a(f"""
s_mul_i32 s{sT}, s{sWAVE}, 4608
s_add_u32 s{sT}, s{sT}, {P_TR}
v_and_b32 v11, 15, v0
v_mul_u32_u24 v11, 144, v11
v_lshrrev_b32 v12, 4, v0
v_lshl_add_u32 v11, v12, 3, v11
v_add_u32 v{vTW}, s{sT}, v11
v_lshl_add_u32 v{vTR}, v0, 4, s{sT}
s_lshr_b32 s{sT}, s{sWAVE}, 1
s_and_b32 s{sT2}, s{sWAVE}, 1
s_lshl_b32 s{sT2}, s{sT2}, 5
s_lshl_b32 s{sT3}, s{sWAVE}, 5
s_cmp_eq_u32 s{sBR}, 0
s_cselect_b32 s42, s{sT}, 0
s_cselect_b32 s43, s{sT2}, s{sT3}
s_cselect_b32 s55, 1, 0
s_lshl_b32 s56, s42, 3
s_lshl_b32 s{sT}, s{sRB}, 7
s_add_u32 s42, s42, s{sT}
s_mul_i32 s{sT}, s{sBR}, 1152
s_mul_i32 s{sT2}, s{sHG}, 144
s_add_u32 s57, s{sT}, s{sT2}
""")
    for n in range(5):
        a(f"""
v_add_u32 v11, {64*n}, v0
v_mul_u32_u24 v12, 7282, v11
v_lshrrev_b32 v12, 16, v12
v_mul_u32_u24 v13, 9, v12
v_sub_u32 v13, v11, v13
v_add_u32 v12, s43, v12
v_xor_b32 v12, s56, v12
v_lshlrev_b32 v12, s55, v12
v_add_u32 v12, s42, v12
v_mul_u32_u24 v12, 2304, v12
v_lshl_add_u32 v12, v13, 4, v12
v_add_u32 v{VS+n}, s57, v12
""")
    a(f"v_mov_b32 v11, {OOB}\nv_cndmask_b32 v{VS+4}, v11, v{VS+4}, s[{sG01}:{sG01+1}]")
    def wread(ks, t):
        ad, off = (aWa, ks*5120) if ks < 9 else (aWb, (ks - 9)*5120)
        trread(wf(t), ad, off + 32*t, 1280)
    a("s_barrier")
    stamp()
    for t in range(5):
        wread(0, t)
    for ks in range(18):
        if ks % 4 == 3:
            a("s_barrier")
        if ks + AHEAD < 18:
            oload(ks + AHEAD)
        a(f"s_waitcnt vmcnt({2*min(AHEAD, 17 - ks)})")
        for t in range(5):
            a(f"s_waitcnt lgkmcnt({8 if ks < 17 else 2*(4-t)})")
            for rt in range(2):
                mfma(ACC(t, rt), wf(t), OFR(ks, rt), ACC(t, rt) if ks else "0")
            if ks < 17:
                wread(ks + 1, t)
    stamp()
    for rt in range(2):
        for t in range(5):
            d = 12 + 2*(rt*5 + t)
            cvt(d, ACC(t, rt), ACC(t, rt) + 1); cvt(d + 1, ACC(t, rt) + 2, ACC(t, rt) + 3)
            if t == 4:
                a(f"s_mov_b64 exec, s[{sG01}:{sG01+1}]")
            a(f"ds_write_b64 v{vTW}, {vr(d,2)} offset:{rt*2304 + 32*t}")
            if t == 4:
                a("s_mov_b64 exec, -1")
    a("s_waitcnt lgkmcnt(0)")
    for n in range(5):
        a(f"ds_read_b128 {vr(112+4*n,4)}, v{vTR} offset:{1024*n}")
    for n in range(5):
        a(f"s_waitcnt lgkmcnt({4-n})")
        a(f"buffer_store_dwordx4 {vr(112+4*n,4)}, v{VS+n}, s[{SOUT}:{SOUT+3}], 0 offen")
    stamp()
    stamps_out(1)
    a("s_endpgm")

def p2_loader():
    a("L_p_ld:")
    VF, VL = 16, 24
    a(f"s_mul_i32 s{sM}, s{sHG}, 144\ns_and_b32 s56, s{sWAVE}, 3")
    for j in range(5):
        slab_voffset(VF + j, None, 64*j, 10, 0, 0, 1152, 11, 12, 13, "full")
    a(f"""
s_lshr_b32 s{sT}, s56, 1
s_mul_i32 s{sT}, s{sT}, 72
s_and_b32 s{sT2}, s56, 1
s_lshl_b32 s{sT2}, s{sT2}, 5
s_add_u32 s{sT}, s{sT}, s{sT2}
s_mul_i32 s42, s{sT}, 1152
s_mul_i32 s43, s56, 5120
""")
    srds()
    for q in range(4):
        a(f"s_add_u32 s{sK}, s42, {q*144*1152}")
        for j in range(5):
            dma(VF + j, SWO, f"s{sK}", q*4*5120 + 1024*j, 43)
    a(f"s_mov_b32 s{sT3}, 144\ns_mov_b32 s{sT2}, 72")
    for j in range(5):
        slab_voffset(VL + j, None, 64*j, 10, 0, 0, 1152, 11, 12, 13, "left")
    a(f"s_and_b32 s{sT}, s56, 1\ns_mul_i32 s{sK}, s{sT}, {288*1152}\ns_add_u32 s{sK}, s{sK}, {64*1152}\ns_mul_i32 s43, s{sT}, 5120")
    for j in range(5):
        dma(VL + j, SWO, f"s{sK}", 16*5120 + 1024*j, 43)
    for q in range(5):
        a(f"s_waitcnt vmcnt({5*(4-q)})\ns_barrier")
        if q == 0:
            stamp()
    stamp()
    stamps_out(1)
    a("s_endpgm")

HEADER = open("concat_heads__sliding_local_dilated__linear_attn_block__prompt.s.ref").read().split("; Override")[0]
out = HEADER
out += "; @launch kernel=qkv_attn_kernel grid=(256,1,1) block=(512,1,1) lds=163840\n"
out += "; @launch kernel=oproj_kernel grid=(256,1,1) block=(512,1,1) lds=111616\n"
for _ in range(OPT["extra_empty"]):
    out += "; @launch kernel=nop_kernel grid=(256,1,1) block=(256,1,1) lds=0\n"
a('.amdgcn_target "amdgcn-amd-amdhsa--gfx950"\n.text')
a(kernel_head("qkv_attn_kernel"))
prologue("k1", "L_k1_end")
a(f"""
s_cmp_lg_u32 s{sBR}, 0
s_cbranch_scc1 L_k1_b
s_cmp_lt_u32 s{sWAVE}, 4
s_cbranch_scc1 L_a_cons
s_cmp_lt_u32 s{sWAVE}, 6
s_cbranch_scc1 L_a_ldT
s_branch L_a_ldN
L_k1_b:
s_cmp_lt_u32 s{sWAVE}, 4
s_cbranch_scc1 L_b_cons
s_cmp_lt_u32 s{sWAVE}, 6
s_cbranch_scc1 L_b_ldW
s_branch L_b_ldX
L_k1_end:
s_endpgm
""")
for fn in (lambda: a_loader("T"), lambda: a_loader("N"), a_consumer, lambda: b_loader("W"), lambda: b_loader("X"), b_consumer):
    nstamp[0] = 1 if OPT["stamps"] else 0
    fn()
a(".fill 64, 4, 0xbf800000\ns_endpgm")
a(kernel_head("oproj_kernel"))
prologue("k2", "L_k2_end")
a(f"s_cmp_lt_u32 s{sWAVE}, 4\ns_cbranch_scc1 L_p_cons\ns_branch L_p_ld\nL_k2_end:\ns_endpgm")
for fn in (p2_loader, p2_consumer):
    nstamp[0] = 1 if OPT["stamps"] else 0
    fn()
if OPT["extra_empty"]:
    a(kernel_head("nop_kernel") + "s_endpgm")
lines, added = hz.fix(a.lines)
out += "\n".join(lines) + "\n"
out += '.section .rodata,"a"\n.p2align 6\n' + kernel_desc("qkv_attn_kernel", 256, 96, 256)
out += ".p2align 6\n" + kernel_desc("oproj_kernel", 256, 96, 256)
if OPT["extra_empty"]:
    out += ".p2align 6\n" + kernel_desc("nop_kernel", 8, 16, 8)
sys.stdout.write(out)
sys.stderr.write(f"nop states added: {added}\n")
```

```python
import sys, struct
from asmlib import *
import hz

OPT = dict(stamps=0, mapping=48, ahead=6)
for arg in sys.argv[1:]:
    k, v = arg.split("=")
    OPT[k] = int(v)
KN = "concat_heads__sliding_local_dilated__linear_attn_block__prompt_kernel"

def f32(x):
    return "0x%08x" % struct.unpack("<I", struct.pack("<f", x))[0]

LOG2E = 1.4426950408889634
CSC = 18 ** -0.5 * LOG2E
NEG = "0xf149f2ca"
EPS = f32(1e-6)
OOB = "0x80000000"

O_BR = 0x240000
WS_KV = 0x500000
KV_ST = 0x2000
WS_CNT = 0x540000
WS_STAMP = 0x600000
WS_SIZE = 0x700000

sWAVE, sHG, sRB, sBR, sT = 3, 4, 5, 6, 7
SX, SW, SWS, SDBG, SWO, SOUT = 8, 12, 16, 20, 24, 28
sG0, sG01 = 32, 34
sK, sV, sM, sT2, sT3 = 50, 51, 52, 53, 54
sST = 60

a = Asm()
nstamp = [0]

def stamp():
    if OPT["stamps"]:
        i = nstamp[0]; nstamp[0] += 1
        assert i < 15
        a(f"{'s_memrealtime' if OPT.get('probe') and not (OPT.get('cyc') and i) else 's_memtime'} s[{sST+2*i}:{sST+2*i+1}]")
        if OPT.get("cyc") and i == 0:
            a("s_memtime s[90:91]")

def stamps_out(last=False):
    if not OPT["stamps"]:
        return
    if OPT.get("probe"):
        if last:
            j = sST + 2 * OPT["probe"]
            a(f"""
s_waitcnt vmcnt(0) lgkmcnt(0)
s_cmp_eq_u32 s2, {OPT.get('wg', 0)}
s_cbranch_scc0 L_probe_x
s_cmp_eq_u32 s{sWAVE}, 0
s_cbranch_scc0 L_probe_x
s_sub_u32 s{sT}, s{j}, s{90 if OPT.get('cyc') else sST}
{'s_lshr_b32 s7, s7, 3' if OPT.get('cyc') else 's_mul_i32 s7, s7, 10'}
s_min_u32 s{sT}, s{sT}, 100000
s_add_u32 s{sT}, s{sT}, 6000
L_probe:
s_memrealtime s[44:45]
s_waitcnt lgkmcnt(0)
s_sub_u32 s44, s44, s{sST}
s_cmp_lt_u32 s44, s{sT}
s_cbranch_scc1 L_probe
L_probe_x:
""")
        return
    a("s_waitcnt vmcnt(0) lgkmcnt(0)")
    a(f"s_lshl_b32 s{sT}, s2, 3\ns_add_u32 s{sT}, s{sT}, s{sWAVE}\ns_lshl_b32 s{sT}, s{sT}, 6")
    a(f"s_add_u32 s{sT}, s{sT}, {WS_STAMP}\nv_mov_b32 v1, s{sT}")
    for i in range(16):
        a(f"v_mov_b32 v2, s{sST+2*i}")
        a(f"buffer_store_dword v2, v1, s[{SWS}:{SWS+3}], 0 offen offset:{4*i}")
    a("s_waitcnt vmcnt(0)")

def mf(d, s0, s1, c):
    cc = c if isinstance(c, str) else vr(c, 4)
    return f"v_mfma_f32_16x16x32_bf16 {vr(d,4)}, {vr(s0,4)}, {vr(s1,4)}, {cc}"
def cv(d, x):
    return f"v_cvt_pk_bf16_f32 v{d}, v{x}, v{x+1}"
def tr(d, addr, off):
    return f"ds_read_b64_tr_b16 {vr(d,2)}, v{addr} offset:{off}"
def weave(mfmas, others, per=2):
    o = list(others)
    for m in mfmas:
        a(m)
        for _ in range(per):
            if o: a(o.pop(0))
    for x in o: a(x)

def srd(dst, lo, nbytes):
    a(f"s_mov_b32 s{dst}, s{lo}\ns_mov_b32 s{dst+1}, s{lo+1}\ns_mov_b32 s{dst+2}, {nbytes}\ns_mov_b32 s{dst+3}, 0x20000")
def srds_rest():
    srd(SWO, 40, 663552); srd(SOUT, 44, 4718592); srd(SDBG, 46, 256); srd(SWS, 48, WS_SIZE)

class M0:
    def __init__(self, base): self.base = base; self.cur = None
    def set(self, imm):
        if self.cur is not None and -32768 <= imm - self.cur <= 32767:
            a(f"s_addk_i32 m0, {imm - self.cur}")
        else:
            a(f"s_add_u32 m0, s{self.base}, {imm}")
        self.cur = imm

def dma(voff, srd_, soff, half=False):
    if OPT.get("nodma") or (OPT.get("nos") and voff == VD + 6 and srd_ == SW and not half):
        return
    if half: a(f"s_mov_b64 exec, s[{sG01}:{sG01+1}]")
    a(f"buffer_load_dwordx4 v{voff}, s[{srd_}:{srd_+3}], {soff} offen lds")
    if half: a("s_mov_b64 exec, -1")

def rd_lanes(r8, r2, t0, t1):
    a(f"""
v_lshrrev_b32 v{t0}, 5, v0
v_lshlrev_b32 v{t0}, 4, v{t0}
v_bfe_u32 v{t1}, v0, 4, 1
v_lshl_add_u32 v{t0}, v{t1}, 2, v{t0}
v_bfe_u32 v{t1}, v0, 2, 2
v_add_u32 v{t0}, v{t0}, v{t1}
v_and_b32 v{t1}, 3, v0
v_lshlrev_b32 v{t1}, 3, v{t1}
v_lshl_add_u32 v{r2}, v{t0}, 5, v{t1}
v_lshl_add_u32 v{r8}, v{t0}, 7, v{t1}
v_bfe_u32 v{t0}, v{t0}, 1, 2
v_lshl_add_u32 v{r8}, v{t0}, 5, v{r8}
""")
    for t in (1, 2, 3):
        a(f"v_xor_b32 v{r8+t}, {32*t}, v{r8}")

def x_lane(d0, d1, tmp):
    a(f"""
v_lshrrev_b32 v{d0}, 4, v0
v_bfe_u32 v{tmp}, v0, 1, 3
v_xor_b32 v{d0}, v{d0}, v{tmp}
v_and_b32 v{tmp}, 15, v0
v_lshlrev_b32 v{tmp}, 7, v{tmp}
v_lshl_add_u32 v{d0}, v{d0}, 4, v{tmp}
v_xor_b32 v{d1}, 64, v{d0}
""")

def col8(dst, tmp):
    a(f"v_bfe_u32 v{tmp}, v0, 4, 2\nv_lshlrev_b32 v{tmp}, 1, v{tmp}\nv_and_b32 v{dst}, 7, v0\nv_xor_b32 v{dst}, v{dst}, v{tmp}\nv_lshlrev_b32 v{dst}, 4, v{dst}")

def head_of(dst, src):
    a(f"v_mul_u32_u24 v{dst}, 57, v{src}\nv_lshrrev_b32 v{dst}, 10, v{dst}")

sOC, sKC, sFO, sFK = 92, 94, 96, 97

def arrive_wait(addr, target, label, arrive=True):
    if arrive:
        a(f"s_mov_b32 s{sT}, 1\ns_atomic_add s{sT}, s[{addr}:{addr+1}], 0 glc\ns_waitcnt lgkmcnt(0)\ns_cmp_ge_u32 s{sT}, {target-1}\ns_cbranch_scc1 {label}_x")
    a(f"""
s_mov_b32 s{sT3}, 0x20000
{label}:
s_mov_b32 s{sT}, 0
s_atomic_add s{sT}, s[{addr}:{addr+1}], 0 glc
s_waitcnt lgkmcnt(0)
s_sub_u32 s{sT3}, s{sT3}, 1
s_cbranch_scc1 {label}_x
s_cmp_ge_u32 s{sT}, {target}
s_cbranch_scc0 {label}
{label}_x:
""")

def flag_load(dst, offreg):
    a(f"s_load_dword s{dst}, s[{SDBG}:{SDBG+1}], s{offreg}")

def flag_check(val, offreg, label):
    a(f"""
s_mov_b32 s{sT3}, 0x20000
{label}:
s_waitcnt lgkmcnt(0)
s_cmp_lg_u32 s{val}, 0
s_cbranch_scc1 {label}_x
s_sub_u32 s{sT3}, s{sT3}, 1
s_cbranch_scc1 {label}_x
s_load_dword s{val}, s[{SDBG}:{SDBG+1}], s{offreg} glc
s_branch {label}
{label}_x:
""")

A_WSLOT, A_XSLOT = 14336, 18432
A_X0 = 5 * A_WSLOT
A_EX = A_X0 + 3 * A_XSLOT
B_KVSLOT, B_XSLOT = 9216, 16384
B_X0 = 5 * B_KVSLOT
B_EX = B_X0 + 3 * B_XSLOT
B_KVOP = 126976
B_STG = 136192
B_DUMP, B_LCNT = B_STG + 5632, B_STG + 6144
B_WQ0 = 143360
QORD = list(range(18))
def wq_slot(p):
    if p < 4: return B_WQ0 + 5120 * p
    if p < 7: return 5120 * (p - 4)
    if p < 13: return 40960 + 5120 * (p - 7)
    return 15360 + 5120 * (p - 13)
R1, R2 = 147456, 43008
WO = [R1, R1 + 5120, R1 + 10240] + [R2 + 5120 * n for n in range(6, 12)] + [0, 5120, 10240] + [R2 + 5120 * n for n in range(6)]
P_TR = 108544
SPLITS = {(1, 0): sG0, (2, 0): sG0, (2, 1): sG0, (3, 0): sG01, (3, 1): sG0}

VD = 16
VWO = 26
vCNT, vFLO, vFLK, vFO, vFK = 30, 31, 32, 33, 34

def w_head(kind):
    parts = (0, 1152, 2304) if kind == "A" else (1152, 2304)
    a(f"L_{kind}W0:")
    col8(VD, 1)
    a(f"""
v_bfe_u32 v1, v0, 5, 1
v_bfe_u32 v2, v0, 3, 2
v_lshl_add_u32 v1, v1, 3, v2
s_mul_i32 s{sT}, s{sV}, {16*3456}
s_add_u32 s{sT}, s{sT}, s{sM}
v_mul_u32_u24 v1, 3456, v1
v_add3_u32 v{VD}, v{VD}, v1, s{sT}
""")
    n = 2 * len(parts)
    for j in range(n - 1, -1, -1):
        off = parts[j // 2] + (j % 2) * 4 * 3456
        if off:
            a(f"v_add_u32 v{VD+j}, {off}, v{VD}")
    a(f"""
v_bfe_u32 v1, v0, 3, 1
v_bfe_u32 v2, v0, 4, 1
v_sub_u32 v1, v1, v2
v_lshrrev_b32 v2, 1, v0
v_lshl_add_u32 v1, v1, 2, v2
v_mul_u32_u24 v1, 3456, v1
v_and_b32 v2, 1, v0
""")
    if kind == "A":
        a(f"""
s_cmp_eq_u32 s{sV}, 0
s_cselect_b32 s{sT2}, 1152, 0
s_cselect_b32 s{sT}, 0, 2304
s_add_u32 s{sT}, s{sT}, s{sM}
s_addk_i32 s{sT}, 128
v_mad_u32_u24 v1, v2, s{sT2}, v1
v_add_u32 v{VD+6}, s{sT}, v1
""")
    else:
        a(f"""
s_add_u32 s{sT}, s{sT}, 128
v_add_u32 v{VD+7}, s{sT}, v1
v_mul_u32_u24 v2, 1152, v2
v_add_u32 v2, 1152, v2
v_add_u32 v{VD+4}, v2, v{VD+7}
""")
    a(f"s_lshl_b32 s42, s{sV}, 11\ns_lshl_b32 s43, s{sV}, {10 if kind == 'A' else 9}\ns_sub_u32 s43, s43, s42")
    a("s_waitcnt lgkmcnt(0)")
    srd(SW, 38, 1990656)
    m = M0(42)
    w_issue(kind, 0, m)
    a(f"s_branch L_{kind}W1")

def w_issue(kind, c, m):
    slot = (c % 5) * (A_WSLOT if kind == "A" else B_KVSLOT)
    n = 6 if kind == "A" else 4
    so = f"s{sK}" if c else "0"
    if OPT.get("rot"):
        so = "s90"
        if c:
            a(f"s_add_u32 s90, s90, {32*3456}\ns_cmp_eq_u32 s90, {18*32*3456}\ns_cselect_b32 s90, 0, s90")
    elif c:
        a(f"s_mov_b32 s{sK}, {c*32*3456}")
    for j in range(n):
        m.set(slot + 4096 * (j // 2) + 1024 * (j % 2))
        dma(VD + j, SW, so)
    m.set(slot + 4096 * (n // 2))
    a("s_add_u32 m0, m0, s43")
    m.cur = None
    dma(VD + n, SW, so, half=(kind == "B"))
    return n + 1

def wq_issue(p, m):
    if OPT.get("rot"):
        a(f"s_add_u32 s{sK}, s90, {(p+1)*32*3456}\ns_cmp_ge_u32 s{sK}, {18*32*3456}\ns_cselect_b32 s{sT}, {18*32*3456}, 0\ns_sub_u32 s{sK}, s{sK}, s{sT}")
    else:
        a(f"s_mov_b32 s{sK}, {QORD[p]*32*3456}")
    for j in range(2):
        m.set(wq_slot(p) + 1024 * j)
        dma(VD + 5 + j, SW, f"s{sK}")
    m.set(wq_slot(p) + 4096)
    a("s_add_u32 m0, m0, s43")
    m.cur = None
    dma(VD + 7, SW, f"s{sK}", half=True)
    return 3

def x_head(kind):
    nq = 9 if kind == "A" else 8
    a(f"L_{kind}X0:")
    a(f"""
v_lshrrev_b32 v1, 3, v0
v_mul_u32_u24 v1, {2304 if kind == 'A' else 1152}, v1
v_lshrrev_b32 v2, 4, v0
v_lshl_add_u32 v2, s{sV}, 2, v2
v_and_b32 v3, 7, v0
v_xor_b32 v2, v2, v3
v_lshl_add_u32 v1, v2, 4, v1
s_mul_i32 s{sT}, s{sRB}, {128*1152}
""")
    if kind == "A":
        a(f"""
s_mul_i32 s{sT2}, s{sV}, {16*1152}
s_add_u32 s{sT3}, s{sT}, s{sT2}
v_add_u32 v{VD}, s{sT3}, v1
s_sub_u32 s{sT3}, s{sT}, s{sT2}
s_add_u32 s{sT3}, s{sT3}, {17*1152}
v_add_u32 v{VD+4}, s{sT3}, v1
s_mul_i32 s{sT2}, s{sV}, 1152
s_sub_u32 s{sT3}, s{sT}, s{sT2}
s_sub_u32 s{sT3}, s{sT3}, {15*1152}
v_add_u32 v{VD+8}, s{sT3}, v1
""")
        for q in (1, 2, 3):
            a(f"v_add_u32 v{VD+q}, {32*1152*q}, v{VD}\nv_add_u32 v{VD+4+q}, {32*1152*q}, v{VD+4}")
    else:
        a(f"s_mul_i32 s{sT2}, s{sV}, {8*1152}\ns_add_u32 s{sT}, s{sT}, s{sT2}\nv_add_u32 v{VD}, s{sT}, v1")
        for q in range(1, 8):
            a(f"v_add_u32 v{VD+q}, {16*1152*q}, v{VD}")
    a(f"s_lshl_b32 s42, s{sV}, 10")
    a("s_waitcnt lgkmcnt(0)")
    srd(SX, 36, 2359296)
    x_issue(kind, 0, M0(42))
    a(f"s_branch L_{kind}X1")

def x_issue(kind, c, m):
    nq, h, x0, xs = (9, 5, A_X0, A_XSLOT) if kind == "A" else (8, 4, B_X0, B_XSLOT)
    st = (c + 1) // 2
    if st > 8:
        return 0
    qs = range(nq) if c == 0 else (range(h) if c % 2 else range(h, nq))
    so = f"s{sK}" if st else "0"
    if OPT.get("rot"):
        so = "s91"
        if c % 2:
            a("s_addk_i32 s91, 128\ns_cmpk_eq_u32 s91, 1152\ns_cselect_b32 s91, 0, s91")
    elif st:
        a(f"s_movk_i32 s{sK}, {st*128}")
    for q in qs:
        m.set(x0 + (st % 3) * xs + 2048 * q)
        a("s_nop 0")
        dma(VD + q, SX, so)
    return len(qs)

def wo_setup():
    col8(VWO, 1)
    a(f"""
s_mul_i32 s{sM}, s{sHG}, 144
v_add_u32 v{VWO}, s{sM}, v{VWO}
v_bfe_u32 v1, v0, 5, 1
v_bfe_u32 v2, v0, 3, 2
v_mul_u32_u24 v1, 72, v1
v_add_u32 v1, v1, v2
v_mul_u32_u24 v1, 1152, v1
v_add_u32 v{VWO+1}, v1, v{VWO}
v_lshrrev_b32 v1, 3, v0
v_mul_u32_u24 v1, 1152, v1
v_add_u32 v{VWO}, v1, v{VWO}
v_bfe_u32 v1, v0, 1, 2
v_bfe_u32 v2, v0, 3, 1
v_bfe_u32 v3, v0, 4, 1
v_bfe_u32 v4, v0, 5, 1
v_lshl_add_u32 v5, v2, 2, v1
v_lshl_add_u32 v5, v3, 4, v5
v_lshl_add_u32 v5, v4, 3, v5
v_mul_u32_u24 v5, 1152, v5
s_add_u32 s{sM}, s{sM}, 128
v_add_u32 v{VWO+2}, s{sM}, v5
v_lshl_add_u32 v5, v3, 2, v1
v_lshl_add_u32 v2, v4, 1, v2
v_mul_u32_u24 v2, 72, v2
v_add_u32 v5, v5, v2
v_mul_u32_u24 v5, 1152, v5
v_add_u32 v{VWO+3}, s{sM}, v5
s_and_b32 s55, s{sWAVE}, 3
s_lshr_b32 s{sT}, s55, 1
s_mul_i32 s{sT}, s{sT}, 72
s_and_b32 s{sT2}, s55, 1
s_lshl_b32 s{sT2}, s{sT2}, 5
s_add_u32 s{sT}, s{sT}, s{sT2}
s_mul_i32 s56, s{sT}, 1152
s_lshl_b32 s57, s55, 3
""")

def wo_issue(q, tag=None):
    ks = [4*q + w for w in range(4)] if q < 4 else [16, 17, 16, 17]
    packed = sum((WO[k] // 1024) << (8 * w) for w, k in enumerate(ks))
    a(f"s_lshr_b32 s{sT}, {packed}, s57\ns_and_b32 s{sT}, s{sT}, 0xff\ns_lshl_b32 m0, s{sT}, 10")
    if q < 4:
        a(f"s_add_u32 s{sK}, s56, {q*144*1152}")
        steps = (16, -8, 16); v8, v2 = VWO, VWO + 2
    else:
        a(f"s_and_b32 s{sT}, s55, 1\ns_mul_i32 s{sK}, s{sT}, {288*1152}\ns_add_u32 s{sK}, s{sK}, {64*1152}")
        steps = (4, 140, 4); v8, v2 = VWO + 1, VWO + 3
    a(f"s_mov_b32 s{sT2}, s{sK}")
    if q == 4:
        a(f"s_cmp_ge_u32 s55, 2\ns_cbranch_scc1 L_wo4_{tag}")
    for j in range(4):
        dma(v8, SWO, f"s{sK}")
        a("s_addk_i32 m0, 1024")
        if j < 3:
            a(f"s_add_u32 s{sK}, s{sK}, {steps[j]*1152 & 0xffffffff}")
        else:
            a("s_nop 0")
    dma(v2, SWO, f"s{sT2}")
    if q == 4:
        a(f"L_wo4_{tag}:")
    return 5

def wo_pair(g):
    a(f"s_mul_i32 s{sT}, s{sV}, {WO[2*g+1] - WO[2*g] & 0xffffffff}\ns_add_u32 m0, s{sT}, {WO[2*g]}")
    if g < 8:
        a(f"s_mul_i32 s{sK}, s{sV}, {32*1152}\ns_add_u32 s{sK}, s{sK}, {g*72*1152}")
        steps = (16, -8, 16); v8, v2 = VWO, VWO + 2
    else:
        a(f"s_mul_i32 s{sK}, s{sV}, {288*1152}\ns_add_u32 s{sK}, s{sK}, {64*1152}")
        steps = (4, 140, 4); v8, v2 = VWO + 1, VWO + 3
    a(f"s_mov_b32 s{sT2}, s{sK}")
    for j in range(4):
        dma(v8, SWO, f"s{sK}")
        a("s_addk_i32 m0, 1024")
        a(f"s_add_u32 s{sK}, s{sK}, {steps[j]*1152 & 0xffffffff}" if j < 3 else "s_nop 0")
    dma(v2, SWO, f"s{sT2}")

def sync_setup():
    a(f"""
s_lshl_b32 s{sT}, s{sBR}, 4
s_add_u32 s{sT}, s{sT}, s{sRB}
s_lshl_b32 s{sT2}, s{sT}, 8
s_add_u32 s{sT2}, s{sT2}, {WS_CNT}
s_add_u32 s{sOC}, s{SWS}, s{sT2}
s_addc_u32 s{sOC+1}, s{SWS+1}, 0
s_lshl_b32 s{sT}, s{sT}, 2
s_add_u32 s98, s{sT}, 32
s_lshl_b32 s99, s{sHG}, 2
s_mul_i32 s{sT2}, s{sHG}, {KV_ST}
s_add_u32 s{sT2}, s{sT2}, {WS_KV + 6144}
s_add_u32 s{sKC}, s{SWS}, s{sT2}
s_addc_u32 s{sKC+1}, s{SWS+1}, 0
""")

def loader_tail(tag, late=()):
    if tag[1] == "X":
        flag_check(sFO, 98, f"L_{tag}_fo")
    a("s_barrier")
    stamp()
    for g in late:
        wo_pair(g)
    if tag[1] == "X":
        a(f"s_cmp_eq_u32 s{sWAVE}, 6\ns_cbranch_scc0 L_{tag}_oc_x")
        arrive_wait(sOC, 8, f"L_{tag}_oc")
    a("s_waitcnt vmcnt(0)")
    stamp()
    a("s_barrier")
    stamps_out()
    a("s_endpgm")

def a_loader(kind):
    a(f"L_A{kind}1:")
    m = M0(42)
    issue = (lambda c: w_issue("A", c, m)) if kind == "W" else (lambda c: x_issue("A", c, m))
    cnt = {c: issue(c) for c in (1, 2)}
    stamp()
    x_lane(8, 9, 1)
    rd_lanes(36, 12, 1, 2)
    a(f"""
v_add_u32 v8, {A_X0 + 8*2048}, v8
v_add_u32 v9, {A_X0 + 8*2048}, v9
s_lshl_b32 s{sT}, s{sV}, 6
v_xor_b32 v10, s{sT}, v36
v_add_u32 v10, {4096 if kind == 'W' else 8192}, v10
v_xor_b32 v11, 32, v10
v_add_u32 v12, {12288 if kind == 'W' else 13312}, v12
v_add_u32 v13, {4*A_WSLOT}, v10
v_add_u32 v14, {4*A_WSLOT}, v11
v_add_u32 v15, {4*A_WSLOT}, v12
s_lshl_b32 s{sT}, s{sV}, 10
s_add_u32 s{sT}, s{sT}, {A_EX + (0 if kind == 'W' else 2560)}
v_lshlrev_b32 v7, 3, v0
v_add_u32 v6, s{sT}, v7
v_add_u32 v7, {A_EX + (2048 if kind == 'W' else 4608)}, v7
""")
    stamp()
    a(f"s_waitcnt vmcnt({cnt[1] + cnt[2]})\ns_barrier")
    stamp()
    extra = 0
    for i in range(-1, 17):
        ks = i + 1
        slot = ks % 5
        off = 0 if slot == 4 else slot * A_WSLOT
        ad = (13, 14, 15) if slot == 4 else (10, 11, 12)
        a(f"ds_read_b128 v[40:43], v{8 + ks % 2} offset:{(ks//2 % 3)*A_XSLOT}")
        for j in range(3 if OPT.get("nohalo", 0) < 2 else 0):
            a(tr(44 + 4*j, ad[j], off)); a(tr(46 + 4*j, ad[j], off + (1024 if j < 2 else 256)))
        if i + 4 <= 17:
            cnt[i+4] = issue(i + 4)
        a("s_waitcnt lgkmcnt(0)")
        for j in range(3 if not OPT.get("nohalo") else 0):
            c = 60 + 4*j if ks else "0"
            a(mf(60 + 4*j, 44 + 4*j, 40, c) if kind == "W" else mf(60 + 4*j, 40, 44 + 4*j, c))
        if i == 1:
            srds_rest(); sync_setup()
        if i == 2:
            wo_setup()
        if i in (14, 15) and OPT.get('woearly', 1):
            extra += wo_issue(i - 14)
        if i == 16 and not OPT.get('woearly', 1):
            wo_issue(0); wo_issue(1)
        if i + 1 <= 16:
            left = sum(cnt.get(c, 0) for c in range(i + 3, min(i + 4, 17) + 1)) + extra
            a(f"s_waitcnt vmcnt({left})\ns_barrier")
    for j in range(3):
        a(cv(44 + 2*j, 60 + 4*j)); a(cv(45 + 2*j, 62 + 4*j))
    if kind == "W":
        a("v_mov_b32 v50, 0\nv_mov_b32 v51, 0")
        a("v_permlane32_swap_b32 v48, v50\nv_permlane32_swap_b32 v49, v51")
    a("ds_write_b64 v6, v[44:45]\nds_write_b64 v6, v[46:47] offset:512")
    a(f"ds_write_b64 v7, {'v[50:51]' if kind == 'W' else 'v[48:49]'}")
    stamp()
    a("s_waitcnt lgkmcnt(0)\ns_barrier")
    if kind == "X":
        flag_load(sFO, 98)
    wo_issue(2); wo_issue(3); wo_issue(4, "A" + kind)
    stamp()
    loader_tail("A" + kind)

def o_store_addr(vfull, vleft, tmp, left_lo):
    a(f"""
s_lshl_b32 s{sT}, s{sRB}, 3
s_lshl_b32 s{sT2}, s{sWAVE}, 1
s_add_u32 s{sT}, s{sT}, s{sT2}
s_mul_i32 s{sT}, s{sT}, 18432
s_mul_i32 s{sT2}, s{sBR}, {O_BR}
s_add_u32 s58, s{sT}, s{sT2}
s_lshl_b32 s{sT2}, s{sHG}, 11
s_add_u32 s{sT2}, s{sT2}, s58
v_lshl_add_u32 v{vfull}, v0, 4, s{sT2}
s_lshr_b32 s{sT2}, s{sHG}, 2
s_add_u32 s{sT2}, s{sT2}, 16
s_lshl_b32 s{sT2}, s{sT2}, 10
s_add_u32 s{sT}, s58, s{sT2}
s_and_b32 s{sT2}, s{sHG}, 3
s_lshl_b32 s{sT2}, s{sT2}, 8
s_add_u32 s{sT}, s{sT}, s{sT2}
v_and_b32 v{vleft}, 15, v0
v_lshlrev_b32 v{vleft}, 4, v{vleft}
v_bfe_u32 v{tmp}, v0, 4, 1
v_lshl_add_u32 v{vleft}, v{tmp}, 3, v{vleft}
v_add_u32 v{vleft}, s{sT}, v{vleft}
v_mov_b32 v{tmp}, {OOB}
""")
    x, y = (tmp, vleft) if left_lo else (vleft, tmp)
    a(f"v_cndmask_b32 v{vleft}, v{x}, v{y}, s[{sG01}:{sG01+1}]")

def o_store(of, vfull, vleft, rt):
    so = f"s{sK}" if rt else "0"
    if rt:
        a(f"s_movk_i32 s{sK}, 18432")
    a(f"buffer_store_dwordx4 {vr(of,4)}, v{vfull}, s[{SWS}:{SWS+3}], {so} offen sc1")
    a(f"buffer_store_dwordx4 {vr(of+4,4)}, v{vfull}, s[{SWS}:{SWS+3}], {so} offen offset:1024 sc1")
    a(f"buffer_store_dwordx2 {vr(of+8,2)}, v{vleft}, s[{SWS}:{SWS+3}], {so} offen sc1")

def init_stores(tag, with_kv):
    a(f"""
s_or_b32 s{sT}, s{sHG}, s{sWAVE}
s_cmp_eq_u32 s{sT}, 0
s_cselect_b32 s55, 1, 0
v_mov_b32 v20, 0
v_mov_b32 v21, 0
v_mov_b32 v22, 0
v_mov_b32 v23, 0
s_cbranch_scc0 L_{tag}_i1
s_lshl_b32 s{sT}, s{sBR}, 4
s_add_u32 s{sT}, s{sT}, s{sRB}
s_lshl_b32 s{sT}, s{sT}, 8
s_add_u32 s{sT}, s{sT}, {WS_CNT}
v_mov_b32 v24, s{sT}
buffer_store_dword v20, v24, s[{SWS}:{SWS+3}], 0 offen sc1
L_{tag}_i1:
""")
    if with_kv:
        a(f"""
s_or_b32 s{sT}, s{sRB}, s{sWAVE}
s_cmp_eq_u32 s{sT}, 0
s_cbranch_scc0 L_{tag}_i2
s_or_b32 s55, s55, 2
s_mul_i32 s{sT}, s{sHG}, {KV_ST}
s_add_u32 s{sT}, s{sT}, {WS_KV}
v_lshl_add_u32 v24, v0, 4, s{sT}
""")
        for j in range(7):
            a(f"s_movk_i32 s{sK}, {1024*j}\nbuffer_store_dwordx4 v[20:23], v24, s[{SWS}:{SWS+3}], s{sK} offen sc1")
        a(f"L_{tag}_i2:")

def init_flags(tag):
    a(f"""
s_waitcnt vmcnt(0)
s_cmp_eq_u32 s55, 0
s_cbranch_scc1 L_{tag}_f2
v_mov_b32 v20, 1
s_bitcmp1_b32 s55, 0
s_cbranch_scc0 L_{tag}_f1
s_lshl_b32 s{sT}, s{sBR}, 4
s_add_u32 s{sT}, s{sT}, s{sRB}
s_lshl_b32 s{sT}, s{sT}, 2
s_add_u32 s{sT}, s{sT}, 32
v_mov_b32 v24, s{sT}
buffer_store_dword v20, v24, s[{SDBG}:{SDBG+3}], 0 offen sc1
L_{tag}_f1:
s_bitcmp1_b32 s55, 1
s_cbranch_scc0 L_{tag}_f2
s_lshl_b32 s{sT}, s{sHG}, 2
v_mov_b32 v25, s{sT}
buffer_store_dword v20, v25, s[{SDBG}:{SDBG+3}], 0 offen sc1
L_{tag}_f2:
""")

def kstep(tiles, nxt_reads, first, waits):
    pend = list(first)
    for t, (m0_, m1_) in enumerate(tiles):
        if t in waits:
            a(waits[t])
        a(m0_)
        for x in pend: a(x)
        a(m1_)
        pend = []
        if nxt_reads:
            a(nxt_reads[t][0]); pend = [nxt_reads[t][1]]
    for x in pend: a(x)

def a_consumer():
    acc = lambda t, rt: 144 + (t * 2 + rt) * 4
    wf = lambda t: 88 + 4 * t
    xf = lambda buf, rt: 72 + buf * 8 + rt * 4
    R8, R2, R8b, R2b, aX = 1, 5, 6, 10, 11
    vOF, vOL, vEXW, vEXR = 13, 14, 15, 16
    MC, MP, MPF, PM = 56, 60, 64, 68
    a("L_AC:\ns_waitcnt lgkmcnt(0)")
    srds_rest()
    init_stores("AC", False)
    rd_lanes(R8, R2, 17, 18); x_lane(aX, aX + 1, 17)
    for j in range(5):
        a(f"v_add_u32 v{R8b+j}, {4*A_WSLOT}, v{R8+j}")
    a(f"""
s_lshl_b32 s{sT}, s{sWAVE}, 12
s_add_u32 s{sT}, s{sT}, {A_X0}
v_add_u32 v{aX}, s{sT}, v{aX}
v_add_u32 v{aX+1}, s{sT}, v{aX+1}
s_lshr_b32 s{sT}, s{sWAVE}, 1
s_lshl_b32 s{sT}, s{sT}, 3
v_and_b32 v17, 15, v0
v_xor_b32 v17, s{sT}, v17
v_lshrrev_b32 v18, 4, v0
v_lshlrev_b32 v18, 2, v18
v_xor_b32 v18, s{sT}, v18
v_sub_u32 v17, v17, v18
v_mov_b32 v19, {NEG}
s_and_b32 s{sT}, s{sWAVE}, 1
s_or_b32 s{sT}, s{sT}, s{sRB}
s_cmp_eq_u32 s{sT}, 0
s_cselect_b64 s[42:43], -1, 0
""")
    for r in range(4):
        a(f"""
v_subrev_u32 v18, {r}, v17
v_cmp_gt_u32 vcc, 8, v18
v_cndmask_b32 v{MC+r}, v19, 0, vcc
v_cmp_gt_i32 vcc, -8, v18
v_cndmask_b32 v{MP+r}, v19, 0, vcc
v_cndmask_b32 v{MPF+r}, v{MP+r}, v19, s[42:43]
v_cmp_lt_i32 vcc, -1, v18
v_mov_b32 v20, {'0xffff' if r % 2 == 0 else '0xffff0000'}
v_cndmask_b32 v20, 0, v20, vcc
""")
        a(f"v_mov_b32 v{PM + r//2}, v20" if r % 2 == 0 else f"v_or_b32 v{PM + r//2}, v{PM + r//2}, v20")
    o_store_addr(vOF, vOL, 17, True)
    a(f"""
s_lshr_b32 s{sT}, s{sWAVE}, 1
s_add_u32 s{sT}, s{sT}, 1
s_mul_i32 s{sT}, s{sT}, 5120
s_bitcmp1_b32 s{sWAVE}, 0
s_cselect_b32 s{sT3}, s{sT}, 0
v_lshlrev_b32 v17, 3, v0
v_add_u32 v17, {A_EX}, v17
v_add_u32 v{vEXW}, s{sT}, v17
v_add_u32 v{vEXR}, s{sT3}, v17
""")

    def wreads(ks, t):
        slot = ks % 5
        o = 0 if slot == 4 else slot * A_WSLOT
        r8, r2 = (R8b, R2b) if slot == 4 else (R8, R2)
        if t == 4 or t == 13:
            o += 12288 if t == 4 else 13312
            return [tr(wf(t), r2, o), tr(wf(t) + 2, r2, o + 256)]
        s, j = (0, t) if t < 4 else (1, t - 5) if t < 9 else (2, t - 9)
        return [tr(wf(t), r8 + j, o + 4096*s), tr(wf(t) + 2, r8 + j, o + 4096*s + 1024)]
    xread = lambda ks, rt: f"ds_read_b128 {vr(xf(ks % 2, rt),4)}, v{aX + ks % 2} offset:{(ks//2 % 3)*A_XSLOT + rt*2048}"

    stamp()
    a("s_barrier")
    stamp()
    a(xread(0, 0)); a(xread(0, 1))
    for t in range(14):
        for x in wreads(0, t): a(x)
    for ks in range(18):
        if ks < 17:
            a("s_barrier")
        if ks == 3:
            init_flags("AC")
        tiles = []
        for t in range(14):
            c = lambda rt: acc(t, rt) if ks else "0"
            tiles.append([mf(acc(t, rt), wf(t), xf(ks % 2, rt), c(rt)) if t < 9 else mf(acc(t, rt), xf(ks % 2, rt), wf(t), c(rt)) for rt in range(2)])
        if ks < 17:
            nxt = [wreads(ks + 1, t) for t in range(14)]
            nxt[1] = [nxt[1][0], nxt[1][1] + "\n" + xread(ks + 1, 1)]
            kstep(tiles, nxt, [xread(ks + 1, 0)], {0: "s_waitcnt lgkmcnt(14)", 7: "s_waitcnt lgkmcnt(15)", 12: "s_waitcnt lgkmcnt(15)"})
        else:
            kstep(tiles, None, [], {0: "s_waitcnt lgkmcnt(14)", 7: "s_waitcnt lgkmcnt(0)"})
    stamp()
    KP = lambda j: 18 + 10 * j
    QT = lambda rt, h: 88 + 16 * rt + 4 * h
    VP = lambda t, j: 120 + 6 * t + 2 * j if t < 4 else 48 + 2 * j
    ONE = 72
    def pack_kv(rt):
        o = []
        for q in range(2):
            o += [cv(QT(rt, 3) + 2 + q, acc(4, rt) + 2*q), f"v_mov_b32 v{KP(1+rt) + 8 + q}, 0"]
        for tau in range(4):
            o += [cv(KP(1+rt) + 2*tau + q, acc(5+tau, rt) + 2*q) for q in range(2)]
        o += [f"v_permlane32_swap_b32 v{QT(rt,3) + 2 + q}, v{KP(1+rt) + 8 + q}" for q in range(2)]
        for t in range(5):
            o += [cv(VP(t, 1+rt) + q, acc(9+t, rt) + 2*q) for q in range(2)]
        return o
    def pack_q(rt):
        o = []
        for t in range(4):
            for q in range(2):
                d = QT(rt, t) + q
                o.append(cv(d, acc(t, rt) + 2*q))
                if (t, q) in SPLITS:
                    m = SPLITS[(t, q)]; lo = QT(rt, t-1) + 2 + q
                    o += [f"v_cndmask_b32 v{lo}, 0, v{d}, s[{m}:{m+1}]", f"v_xor_b32 v{d}, v{d}, v{lo}"]
        return o + [f"v_mov_b32 v{QT(rt,0) + 3}, 0"]
    weave([], pack_kv(1))
    a(f"s_bitcmp1_b32 s{sWAVE}, 0\ns_cbranch_scc1 L_AC_nodump")
    for j in range(5):
        a(f"ds_write_b64 v{vEXW}, {vr(KP(2) + 2*j, 2)} offset:{512*j}")
        a(f"ds_write_b64 v{vEXW}, {vr(VP(j, 2), 2)} offset:{512*(5+j)}")
    a("L_AC_nodump:")
    weave([], pack_kv(0) + pack_q(1))
    a("s_waitcnt lgkmcnt(0)\ns_barrier")
    for j in range(5):
        a(f"ds_read_b64 {vr(KP(0) + 2*j, 2)}, v{vEXR} offset:{512*j}")
        a(f"ds_read_b64 {vr(VP(j, 0), 2)}, v{vEXR} offset:{512*(5+j)}")
    SC = lambda rt, h: (224 if rt else 184) + 8 * h
    MX = lambda rt: [76 + 4 * rt + h for h in range(4)]
    PT = lambda rt, h: 144 + 16 * rt + 4 * h
    def qk(rt):
        o = []
        for h in range(4):
            o += [mf(SC(rt, h), KP(1+rt) + 2*h, QT(rt, h), MC), mf(SC(rt, h) + 4, KP(rt) + 2*h, QT(rt, h), MP if rt else MPF)]
        return o
    def rowmax(rt):
        o = []
        for h in range(4):
            s = SC(rt, h); m = MX(rt)[h]
            o += [f"v_max_f32 v{s+r}, v{s+r}, v{s+4+r}" for r in range(4)]
            o += [f"v_max3_f32 v{m}, v{s}, v{s+1}, v{s+2}", f"v_max_f32 v{m}, v{m}, v{s+3}"]
        return o
    def xmax(rt):
        m = MX(rt)
        return [f"v_permlane32_swap_b32 v{m[0]}, v{m[1]}", f"v_permlane32_swap_b32 v{m[2]}, v{m[3]}",
                f"v_max_f32 v{m[0]}, v{m[0]}, v{m[1]}", f"v_max_f32 v{m[2]}, v{m[2]}, v{m[3]}",
                f"v_permlane16_swap_b32 v{m[0]}, v{m[2]}", f"v_max_f32 v{m[0]}, v{m[0]}, v{m[2]}",
                f"v_mul_f32 v{m[0]}, s{sT2}, v{m[0]}", f"v_mov_b32 v{m[2]}, v{m[0]}",
                f"v_permlane16_swap_b32 v{m[0]}, v{m[2]}", f"v_mov_b32 v{m[1]}, v{m[0]}", f"v_mov_b32 v{m[3]}, v{m[2]}",
                f"v_permlane32_swap_b32 v{m[0]}, v{m[1]}", f"v_permlane32_swap_b32 v{m[2]}, v{m[3]}"]
    def probs(rt):
        o = []
        for h in range(4):
            s = SC(rt, h); p = PT(rt, h)
            o += [f"v_fma_f32 v{s+r}, v{s+r}, s{sT}, v{MX(rt)[h]}" for r in range(4)]
            o += [f"v_exp_f32 v{s+r}, v{s+r}" for r in range(4)]
            if h:
                o += split(rt, h - 1)
        return o + split(rt, 3)
    def split(rt, h):
        s = SC(rt, h); p = PT(rt, h); o = []
        for q in range(2):
            o += [cv(p + q, s + 2*q), f"v_and_b32 v{p+2+q}, v{p+q}, v{PM+q}", f"v_xor_b32 v{p+q}, v{p+q}, v{p+2+q}"]
        return o
    OB = lambda rt, t: (224 if rt else 184) + 4 * t
    OA = lambda rt, t: (224 if rt else 184) + 12 + 4 * t
    SM = lambda rt, h: 88 + 16 * rt + 4 * h
    OF = lambda rt: 18 + 10 * rt
    def pv(rt):
        o = [mf(SM(rt, h), ONE, PT(rt, h), "0") for h in range(4)]
        for t in range(5):
            if t < 4: o.append(mf(OB(rt, t), VP(t, rt), PT(rt, t), "0"))
            if t > 0: o.append(mf(OA(rt, t), VP(t, rt), PT(rt, t-1), "0"))
        return o
    def finish(rt):
        o = [f"v_rcp_f32 v{SM(rt,h)}, v{SM(rt,h)}" for h in range(4)]
        for t in range(5):
            for q in range(2):
                d = OF(rt) + 2*t + q
                srcs = []
                if t < 4: srcs.append((OB(rt, t) + 2*q, SM(rt, t), d))
                if t == 4: srcs.append((OA(rt, t) + 2*q, SM(rt, 3), d))
                if (t, q) in SPLITS: srcs.append((OA(rt, t) + 2*q, SM(rt, t-1), 17))
                for x, inv, dd in srcs:
                    o += [f"v_mul_f32 v{x}, v{x}, v{inv}", f"v_mul_f32 v{x+1}, v{x+1}, v{inv}", cv(dd, x)]
                if (t, q) in SPLITS:
                    m = SPLITS[(t, q)]
                    o.append(f"v_cndmask_b32 v{d}, v{d}, v17, s[{m}:{m+1}]")
        return o
    a(f"s_mov_b32 s{sT}, {f32(CSC)}\ns_mov_b32 s{sT2}, {f32(-CSC)}")
    weave(qk(1), pack_q(0) + [f"v_mov_b32 v{ONE+j}, 0x3f803f80" for j in range(4)])
    a("s_waitcnt lgkmcnt(0)")
    weave(qk(0), rowmax(1))
    x1, x0 = xmax(1), xmax(0)
    r0 = rowmax(0)
    for i, x in enumerate(x1):
        a(x)
        for y in r0[2*i:2*i+2]: a(y)
    p1 = probs(1)
    for i, x in enumerate(x0):
        a(x)
        for y in p1[2*i:2*i+2]: a(y)
    weave([], p1[2*len(x0):])
    weave(pv(1), probs(0))
    weave(pv(0), finish(1))
    o_store(OF(1), vOF, vOL, 1)
    weave([], finish(0))
    o_store(OF(0), vOF, vOL, 0)
    stamp()
    a("s_branch L_P2")

def phi(r, n, t):
    o = [f"v_pk_fma_f32 {vr(t+j,2)}, {vr(r+j,2)}, s[56:57], v[14:15]" for j in range(0, n, 2)]
    for j in range(n):
        o += [f"v_exp_f32 v{t+j}, v{t+j} clamp", f"v_max_f32 v{r+j}, s{sT2}, v{r+j}"]
    return o + [f"v_pk_add_f32 {vr(r+j,2)}, {vr(r+j,2)}, {vr(t+j,2)}" for j in range(0, n, 2)]

def b_consumer():
    acc = lambda t, rt: 184 + (t * 2 + rt) * 4
    wf = lambda t: 148 + 4 * t
    xf = lambda ks, rt: 52 + ks * 8 + rt * 4 if ks < 12 else 36 + (ks % 2) * 8 + rt * 4
    R8, R2, aX = 1, 5, 6
    vOF, vOL, vEX = 8, 9, 10
    CK, CS = 28, 32
    a("L_BC:\ns_waitcnt lgkmcnt(0)")
    srds_rest()
    init_stores("BC", True)
    rd_lanes(R8, R2, 17, 18); x_lane(aX, aX + 1, 17)
    a(f"""
s_lshl_b32 s{sT}, s{sWAVE}, 12
s_add_u32 s{sT}, s{sT}, {B_X0}
v_add_u32 v{aX}, s{sT}, v{aX}
v_add_u32 v{aX+1}, s{sT}, v{aX+1}
v_and_b32 v17, 15, v0
v_cmp_gt_u32 vcc, 8, v17
v_mov_b32 v18, {EPS}
s_mov_b64 s[42:43], vcc
s_mul_i32 s{sT}, s{sWAVE}, 10240
s_add_u32 s{sT}, s{sT}, {B_EX}
v_lshl_add_u32 v{vEX}, v0, 4, s{sT}
v_mov_b32 v14, {f32(-1e-6*LOG2E)}
v_mov_b32 v15, v14
s_mov_b32 s56, {f32(LOG2E)}
s_mov_b32 s57, s56
""")
    for r in range(4):
        a(f"v_mov_b32 v{CK+r}, v18\nv_cndmask_b32 v{CS+r}, 0, v18, vcc")
    o_store_addr(vOF, vOL, 17, False)

    def wreads(ks, t):
        o = (ks % 5) * B_KVSLOT
        if t == 4:
            return [tr(wf(t), R2, o + 8192), tr(wf(t) + 2, R2, o + 8192 + 256)]
        s, j = (0, t) if t < 4 else (1, t - 5)
        return [tr(wf(t), R8 + j, o + 4096*s), tr(wf(t) + 2, R8 + j, o + 4096*s + 1024)]
    xread = lambda ks, rt: f"ds_read_b128 {vr(xf(ks, rt),4)}, v{aX + ks % 2} offset:{(ks//2 % 3)*B_XSLOT + rt*2048}"

    stamp()
    a("s_barrier")
    stamp()
    a(xread(0, 0)); a(xread(0, 1))
    for t in range(9):
        for x in wreads(0, t): a(x)
    for ks in range(18):
        if ks < 17:
            a("s_barrier")
        if ks == 3:
            init_flags("BC")
        tiles = [[mf(acc(t, rt), xf(ks, rt), wf(t), acc(t, rt) if ks else (CK if t < 4 else CS if t == 4 else "0")) for rt in range(2)] for t in range(9)]
        if ks < 17:
            nxt = [wreads(ks + 1, t) for t in range(9)]
            nxt[1] = [nxt[1][0], nxt[1][1] + "\n" + xread(ks + 1, 1)]
            kstep(tiles, nxt, [xread(ks + 1, 0)], {0: "s_waitcnt lgkmcnt(12)", 3: "s_waitcnt lgkmcnt(13)", 6: "s_waitcnt lgkmcnt(13)", 8: "s_waitcnt lgkmcnt(11)"})
        else:
            kstep(tiles, None, [], {0: "s_waitcnt lgkmcnt(12)", 3: "s_waitcnt lgkmcnt(0)\ns_barrier"})
    stamp()
    a(f"s_mov_b32 s{sT2}, {EPS}\nv_mov_b32 v16, 0x3f803f80")
    wr = lambda reg, slot: f"ds_write_b128 v{vEX}, {vr(reg,4)} offset:{1024*slot}"
    pk = lambda d, s: [cv(d + j, s + 2*j) for j in range(4)]
    weave([], pk(156, acc(4, 0)) + [f"v_cndmask_b32 v{156+j}, v{156+j}, v16, s[42:43]" for j in range(4)] + [wr(156, 9)])
    xq = lambda ks, rt: 168 + (ks - 12) * 8 + rt * 4 if ks in (12, 13) else acc(2 * (ks - 14) + rt, 1) if ks in (14, 15) else xf(ks, rt)
    reread = lambda ks, rt: f"ds_read_b128 {vr(xq(ks, rt),4)}, v{aX + ks % 2} offset:{(ks//2 % 3)*B_XSLOT + rt*2048}"
    weave([], [reread(ks, rt) for ks in (12, 13) for rt in range(2)])
    for tau in range(5):
        o = phi(acc(tau, 0), 8, 148)
        if tau < 4:
            o = pk(acc(5+tau, 0), acc(5+tau, 0)) + o[:8] + [wr(acc(5+tau, 0), 5 + tau)] + o[8:]
        weave([], o + pk(acc(tau, 0), acc(tau, 0)) + [wr(acc(tau, 0), tau)])
        if tau < 4:
            a(reread(14 + tau // 2, tau % 2))
    for j in range(5):
        a(f"v_add_u32 v{R8+j}, {B_WQ0}, v{R8+j}")
    a("s_waitcnt lgkmcnt(0)\ns_barrier")
    stamp()
    QA = lambda t, rt: 216 + (t * 2 + rt) * 4
    qf = lambda t: 148 + 4 * t
    qbase = lambda p: B_WQ0 if p < 4 else 0 if p < 7 else 15360
    def qreads(p, t):
        o = wq_slot(p) - qbase(p)
        if t == 4:
            return [tr(qf(t), R2, o + 4096), tr(qf(t) + 2, R2, o + 4096 + 256)]
        return [tr(qf(t), R8 + t, o), tr(qf(t) + 2, R8 + t, o + 1024)]
    for t in range(5):
        for x in qreads(0, t): a(x)
    for p in range(18):
        ks = QORD[p]
        if p == 7 or (p == 13 and OPT.get('wob', 0)):
            a("s_barrier")
        tiles = [[mf(QA(t, rt), qf(t), xq(ks, rt), QA(t, rt) if p else CK) for rt in range(2)] for t in range(5)]
        if p < 17:
            nxt = [qreads(p + 1, t) for t in range(5)]
            if qbase(p + 1) != qbase(p):
                d = (qbase(p + 1) - qbase(p)) & 0xffffffff
                for t in range(5):
                    nxt[t][0] = f"v_add_u32 v{R8+t}, {d}, v{R8+t}\n" + nxt[t][0]
            kstep(tiles, nxt, [], {t: f"s_waitcnt lgkmcnt({7 if t else 8})" for t in range(5)})
        else:
            kstep(tiles, None, [], {t: f"s_waitcnt lgkmcnt({8 - 2*t})" for t in range(5)})
    stamp()
    PQ = lambda rt: 36 + 10 * rt
    KO = 84
    tup = {0: KO, 1: KO + 4, 2: KO + 12, 3: KO + 20, 4: KO + 28}
    ZO = KO + 32
    weave([], [f"v_mov_b32 v{r}, 0" for r in (tup[1]+4, tup[1]+5, tup[2]+4, tup[2]+5, tup[3]+4, tup[3]+5, ZO+8, ZO+9)])
    a(f"v_lshlrev_b32 v16, 3, v0\nv_add_u32 v16, {B_KVOP}, v16")
    for t in range(5):
        weave([], phi(QA(t, 0), 8, 148) + [cv(PQ(rt) + 2*t + q, QA(t, rt) + 2*q) for rt in range(2) for q in range(2)])
    stamp()
    a("s_barrier")
    stamp()
    tid = lambda tau, taup: {-1: tau - 1, 0: 4 + tau, 1: 9 + tau}[taup - tau]
    rd = lambda d, slot: a(f"ds_read_b64 {vr(d,2)}, v16 offset:{512*slot}")
    for j, d in enumerate((ZO, ZO + 2, ZO + 4, ZO + 6, ZO + 10)):
        rd(d, 13 + j)
    rd(tup[0], tid(0, 0)); rd(tup[0] + 2, tid(1, 0))
    for t in (1, 2, 3):
        rd(tup[t], tid(t-1, t)); rd(tup[t] + 2, tid(t, t)); rd(tup[t] + 6, tid(t+1, t))
    rd(tup[4], tid(3, 4)); rd(tup[4] + 2, tid(4, 4))
    DN = lambda rt: 148 + 4 * rt
    NM = lambda rt, t: 184 + 20 * rt + 4 * t
    OF = lambda rt: 156 + 10 * rt
    a("s_waitcnt lgkmcnt(13)")
    for k, (zo, po) in enumerate(((0, 0), (4, 4), (8, 6))):
        for rt in range(2):
            a(mf(DN(rt), ZO + zo, PQ(rt) + po, DN(rt) if k else CK))
    a("s_waitcnt lgkmcnt(0)")
    def num(rt):
        o = [mf(NM(rt, t), tup[t], PQ(rt) + 2*(t-1), "0") for t in (1, 2, 3)]
        o += [mf(NM(rt, 0), tup[0], PQ(rt), "0"), mf(NM(rt, 4), tup[4], PQ(rt) + 6, "0")]
        return o + [mf(NM(rt, t), tup[t] + 4, PQ(rt) + 2*t, NM(rt, t)) for t in (1, 2, 3)]
    def fin(rt, packed):
        o = []
        for t in (0, 4, 1, 2, 3):
            for q in range(2):
                inv = DN(rt) + min(t, 3)
                if (t, q) in SPLITS:
                    m = SPLITS[(t, q)]
                    o.append(f"v_cndmask_b32 v17, v{DN(rt)+t}, v{DN(rt)+t-1}, s[{m}:{m+1}]")
                    inv = 17
                n = NM(rt, t) + 2*q
                o += [f"v_mul_f32 v{n}, v{n}, v{inv}", f"v_mul_f32 v{n+1}, v{n+1}, v{inv}", cv(OF(rt) + 2*t + q, n)]
        return o
    weave(num(0), [], 0)
    weave(num(1), [f"v_rcp_f32 v{DN(rt)+h}, v{DN(rt)+h}" for rt in range(2) for h in range(4)], 1)
    for rt in range(2):
        weave([], fin(rt, True))
        o_store(OF(rt), vOF, vOL, rt)
    stamp()

def kv_index(wreg, VS, VG, VZ):
    a(f"s_cmp_eq_u32 s{wreg}, 0\ns_cselect_b32 s58, 4, s{wreg}")
    for slot in range(3):
        if slot == 0:
            a(f"s_lshl_b32 s{sT}, s58, 4\ns_sub_u32 s{sT2}, s{sT}, 16\ns_mov_b64 s[46:47], 0")
        elif slot == 1:
            a(f"s_lshl_b32 s{sT}, s{wreg}, 4\ns_mov_b32 s{sT2}, s{sT}")
        else:
            a(f"s_add_u32 s{sT2}, s{sT}, 16\ns_cmp_eq_u32 s{wreg}, 3\ns_cselect_b32 s{sT2}, 56, s{sT2}\ns_cselect_b64 s[46:47], s[44:45], 0")
        kv_tile(VS and VS + 2*slot, VG and VG + 2*slot, False)
    if VZ:
        kv_z(VZ)

def kv_tile(VS, VG, last):
    a(f"v_add_u32 v3, s{sT2}, v1")
    head_of(4, 3)
    a(f"v_mul_u32_u24 v5, 18, v4\nv_sub_u32 v3, v3, v5\nv_cndmask_b32 v4, v4, 7, s[46:47]")
    if last:
        a("v_cmp_eq_u32 vcc, 0, v1\nv_cndmask_b32 v4, v4, 3, vcc\nv_cndmask_b32 v3, v3, 18, vcc")
    for q in range(2):
        a(f"v_add3_u32 v5, v2, s{sT}, {2*q}")
        head_of(6, 5)
        a("v_cmp_eq_u32 vcc, v4, v6\nv_mad_u32_u24 v5, v5, 19, v3\nv_lshlrev_b32 v5, 2, v5")
        if VS:
            a(f"v_add_u32 v6, {B_STG}, v5\nv_cndmask_b32 v{VS+q}, v8, v6, vcc")
        if VG:
            a(f"v_add_u32 v6, s{sM}, v5\nv_cndmask_b32 v{VG+q}, v9, v6, vcc")

def kv_z(VZ):
    a("v_and_b32 v3, 3, v0")
    for q in range(2):
        a(f"v_add3_u32 v5, v2, s{sT}, {2*q}")
        head_of(6, 5)
        a(f"v_cmp_eq_u32 vcc, v3, v6\nv_mul_u32_u24 v5, 76, v5\nv_add3_u32 v5, v5, s{sM}, 64\nv_add_u32 v5, 8, v5\nv_cndmask_b32 v{VZ+q}, v9, v5, vcc")

def b_loader(kind):
    a(f"L_B{kind}1:")
    m = M0(42)
    issue = (lambda c: w_issue("B", c, m)) if kind == "W" else (lambda c: x_issue("B", c, m))
    cnt = {c: issue(c) for c in (1, 2)}
    stamp()
    mark = len(a.lines)
    VS, VG, vZS, vEA, vE0, vEL, vLA, vGA, vLW = 72, 80, 98, 99, 100, 101, 102, 103, 105
    if kind == "W":
        a(f"v_subrev_u32 v{VD+5}, 1152, v{VD}\nv_subrev_u32 v{VD+6}, 1152, v{VD+1}")
    srds_rest()
    if kind == "W":
        wo_setup()
    else:
        sync_setup()
    a(f"""
s_add_u32 s55, s{sV}, 2
s_mul_i32 s{sM}, s{sHG}, {KV_ST}
s_add_u32 s{sM}, s{sM}, {WS_KV}
v_and_b32 v1, 15, v0
v_lshrrev_b32 v2, 4, v0
v_lshlrev_b32 v2, 2, v2
v_cmp_gt_u32 s[44:45], 8, v1
v_lshlrev_b32 v8, 2, v0
v_add_u32 v8, {B_DUMP}, v8
v_mov_b32 v9, {OOB}
""")
    own = sV if kind == "X" else 55
    if kind == "X":
        kv_index(55, None, VG, VG + 6)
        a(f"s_movk_i32 s{sT}, 64")
        kv_z(10)
    kv_index(own, VS, VG + 8 if kind == "X" else None, VG + 14 if kind == "X" else None)
    a(f"""
v_add_u32 v5, s{sT}, v0
v_mul_u32_u24 v5, 76, v5
v_add_u32 v5, {B_STG + 72}, v5
v_cndmask_b32 v{vZS}, v8, v5, s[{sG0}:{sG0+1}]
v_lshlrev_b32 v{vEL}, 4, v0
v_add_u32 v{vEL}, {B_EX}, v{vEL}
s_lshl_b32 s{sT}, s{own}, 10
v_add_u32 v{vEA}, s{sT}, v{vEL}
s_lshl_b32 s{sT}, s58, 10
v_add_u32 v{vE0}, s{sT}, v{vEL}
""")
    if kind == "X":
        a(f"s_movk_i32 s{sT}, 64\ns_movk_i32 s{sT2}, 56\ns_mov_b64 s[46:47], s[44:45]")
        kv_tile(VS + 6, VG + 16, True)
        a(f"s_cmp_eq_u32 s{sV}, 0\ns_cselect_b64 s[46:47], -1, 0")
        for q in range(2):
            a(f"v_cndmask_b32 v{VS+6+q}, v8, v{VS+6+q}, s[46:47]\nv_cndmask_b32 v{VG+16+q}, v{10+q}, v{VG+16+q}, s[46:47]")
        a(f"""
v_lshlrev_b32 v5, 3, v0
v_add_u32 v5, {B_KVOP}, v5
s_lshl_b32 s{sT2}, s58, 9
s_sub_u32 s{sT2}, s{sT2}, 512
v_add_u32 v{vLW+2}, s{sT2}, v5
s_lshl_b32 s{sT2}, s{sV}, 9
v_add_u32 v{vLW+1}, s{sT2}, v5
v_add_u32 v{vLW}, 1024, v{vLW+1}
s_mul_i32 s{sT2}, s{sV}, {9*512}
v_add_u32 v{vLW+3}, s{sT2}, v5
s_mul_i32 s{sT}, s{sV}, 2816
v_lshl_add_u32 v{vLA}, v0, 2, s{sT}
v_add_u32 v{vGA}, s{sM}, v{vLA}
v_cmp_gt_u32 vcc, {5472 - 2560}, v{vLA}
v_cndmask_b32 v{vGA+1}, v9, v{vGA}, vcc
v_add_u32 v{vLA}, {B_STG}, v{vLA}
v_mov_b32 v4, 0
""")
    a(f"v_mov_b32 v10, {B_LCNT}\nv_mov_b32 v11, 1")
    if kind == "X":
        a("ds_write_b32 v10, v4\ns_waitcnt lgkmcnt(0)")
    setup = a.lines[mark:]
    del a.lines[mark:]
    per = -(-len(setup) // 9)
    a(f"s_waitcnt vmcnt({cnt[1] + cnt[2]})\ns_barrier")
    stamp()
    extra = 0
    for i in range(-1, 16):
        if i + 4 <= 17:
            cnt[i+4] = issue(i + 4)
        if 0 <= i < 9:
            a("s_cmp_eq_u32 s59, 1")
            a.lines += setup[per*i:per*(i+1)]
            a("s_cselect_b32 s59, 1, 0")
        if i == 10 and kind == "X":
            flag_load(sFO, 98); flag_load(sFK, 99)
        if kind == "W" and i >= 14:
            extra += wq_issue(2*(i-14), m) + wq_issue(2*(i-14) + 1, m)
        left = sum(cnt.get(c, 0) for c in range(i + 3, min(i + 4, 17) + 1)) + extra
        a(f"s_waitcnt vmcnt({left})\ns_barrier")
    a("s_barrier")
    if kind == "W":
        for p in (4, 5, 6, 7, 13, 14, 15, 16, 17):
            wq_issue(p, m)
        a("s_waitcnt vmcnt(15)")
    else:
        flag_check(sFK, 99, "L_BX_fk")
    stamp()
    a("s_barrier")
    stamp()
    if kind == "W":
        for p in range(8, 13):
            wq_issue(p, m)
    KT = lambda s: 40 + 4 * s
    RD = lambda src, j: 112 + 28 * src + 4 * j
    srcs = ((vEA, 0), (vE0, 0), (vE0, 4096), (vEA, 5120), (vEA, 6144), (vEL, 9216), (vEL, 4096))
    prods = ((1, 2), (0, 3), (0, 4), (6, 5), (5, 0))
    if kind == "W":
        srcs = ((vEA, 0), None, (vE0, 4096), (vEA, 5120), (vEA, 6144), (vEL, 9216))
        prods = ((0, 2), (0, 3), (0, 4), None, (5, 0))
    nr = sum(x is not None for x in srcs)
    for src in range(4):
        for j, x in enumerate(srcs):
            if x: a(f"ds_read_b128 {vr(RD(src, j),4)}, v{x[0]} offset:{src*10240 + x[1]}")
    for src in range(4):
        a(f"s_waitcnt lgkmcnt({min(15, nr*(3-src))})")
        for s_, x in enumerate(prods):
            if x: a(mf(KT(s_), RD(src, x[0]), RD(src, x[1]), KT(s_) if src else "0"))
    for s_ in range(4 if kind == "X" else 3):
        for r in range(4):
            a(f"ds_write_b32 v{VS + 2*s_ + r//2}, v{KT(s_)+r} offset:{76*(r%2)}")
    a(f"ds_write_b32 v{vZS}, v{KT(4)}")
    a("s_waitcnt lgkmcnt(0)\ns_mov_b64 exec, 1\nds_add_u32 v10, v11\ns_mov_b64 exec, -1")
    stamp()
    b1, b2, b3 = {0: ((0, 1, 2, 3, 4, 5), (), (6, 7, 8)), 1: ((0, 1, 2), (3, 4, 5, 6, 7, 8), ()), 2: ((0, 1, 2), (3, 4, 5), (6, 7, 8))}[OPT.get("wob", 0)]
    if kind == "W":
        a("s_waitcnt vmcnt(0)\ns_barrier")
        for g in b1: wo_pair(g)
        if b2:
            a("s_barrier")
            for g in b2: wo_pair(g)
        stamp()
        a("s_barrier")
        loader_tail("BW", b3)
        return
    a(f"""
s_mov_b32 s{sT3}, 0x400000
L_BX_st:
ds_read_b32 v2, v10
s_waitcnt lgkmcnt(0)
v_readfirstlane_b32 s{sT}, v2
s_sub_u32 s{sT3}, s{sT3}, 1
s_cbranch_scc1 L_BX_st_x
s_cmp_ge_u32 s{sT}, 4
s_cbranch_scc0 L_BX_st
L_BX_st_x:
""")
    for n in range(11):
        a(f"ds_read_b32 v{40+n}, v{vLA} offset:{256*n}")
    for n in range(11):
        a(f"s_waitcnt lgkmcnt({10-n})")
        a(f"buffer_atomic_add_f32 v{40+n}, v{vGA + (n == 10)}, s[{SWS}:{SWS+3}], 0 offen offset:{256*n}")
    stamp()
    a("s_barrier")
    if b2:
        a("s_barrier")
    a("s_waitcnt vmcnt(0)")
    stamp()
    arrive_wait(sKC, 32, "L_BX_kc")
    stamp()
    for s_ in range(9):
        for r in range(4):
            a(f"buffer_load_dword v{112+4*s_+r}, v{VG + 2*s_ + r//2}, s[{SWS}:{SWS+3}], 0 offen offset:{76*(r%2)} sc1")
    dst = ((vLW, -1), (vLW, 4), (vLW, 9), (vLW, 13), (vLW + 2, 0), (vLW + 1, 4), (vLW + 1, 9), (vLW + 1, 13), (vLW + 3, 8))
    a(f"v_subrev_u32 v11, 512, v{vLW}")
    for s_, (ad, off) in enumerate(dst):
        a(f"s_waitcnt vmcnt({4*(8-s_)})")
        a(cv(40 + 2*s_, 112 + 4*s_)); a(cv(41 + 2*s_, 114 + 4*s_))
        a(f"ds_write_b64 v{11 if off < 0 else ad}, {vr(40+2*s_,2)} offset:{512*max(off, 0)}")
    a("s_waitcnt lgkmcnt(0)")
    stamp()
    a("s_barrier")
    loader_tail("BX")

def p2_consumer():
    OFR = lambda ks, rt: 112 + ks * 8 + rt * 4
    ACC = lambda t, rt: 72 + (t * 2 + rt) * 4
    wf = lambda t: 52 + 4 * t
    R8, R2, vO, vTW, vTR, VS = 1, 5, 6, 7, 8, 9
    AH = OPT["ahead"]
    a("L_P2:")
    nstamp[0] = 10
    rd_lanes(R8, R2, 17, 18)
    for j in range(5):
        a(f"v_add_u32 v{R8+j}, {R1}, v{R8+j}")
    a(f"""
v_lshl_add_u32 v{vO}, v0, 4, s58
s_mul_i32 s{sT}, s{sWAVE}, 4608
s_add_u32 s{sT}, s{sT}, {P_TR}
v_and_b32 v17, 15, v0
v_mul_u32_u24 v17, 144, v17
v_lshrrev_b32 v18, 4, v0
v_lshl_add_u32 v17, v18, 3, v17
v_add_u32 v{vTW}, s{sT}, v17
v_lshl_add_u32 v{vTR}, v0, 4, s{sT}
s_lshr_b32 s{sT}, s{sWAVE}, 1
s_and_b32 s{sT2}, s{sWAVE}, 1
s_lshl_b32 s{sT2}, s{sT2}, 5
s_lshl_b32 s{sT3}, s{sWAVE}, 5
s_cmp_eq_u32 s{sBR}, 0
s_cselect_b32 s42, s{sT}, 0
s_cselect_b32 s43, s{sT2}, s{sT3}
s_cselect_b32 s55, 1, 0
s_lshl_b32 s56, s42, 3
s_lshl_b32 s{sT}, s{sRB}, 7
s_add_u32 s42, s42, s{sT}
s_mul_i32 s{sT}, s{sBR}, 1152
s_mul_i32 s{sT2}, s{sHG}, 144
s_add_u32 s57, s{sT}, s{sT2}
""")
    for n in range(5):
        a(f"""
v_add_u32 v17, {64*n}, v0
v_mul_u32_u24 v18, 7282, v17
v_lshrrev_b32 v18, 16, v18
v_mul_u32_u24 v19, 9, v18
v_sub_u32 v19, v17, v19
v_add_u32 v18, s43, v18
v_xor_b32 v18, s56, v18
v_lshlrev_b32 v18, s55, v18
v_add_u32 v18, s42, v18
v_mul_u32_u24 v18, 2304, v18
v_lshl_add_u32 v18, v19, 4, v18
v_add_u32 v{VS+n}, s57, v18
""")
    a(f"v_mov_b32 v17, {OOB}\nv_cndmask_b32 v{VS+4}, v17, v{VS+4}, s[{sG01}:{sG01+1}]")
    a(f"v_add_u32 v14, 18432, v{vO}")
    a("s_waitcnt vmcnt(0)")
    stamp()
    a("s_barrier\ns_barrier")
    stamp()
    def oload(ks, rt):
        hi, lo = divmod(ks, 4)
        return f"buffer_load_dwordx4 {vr(OFR(ks, rt),4)}, v{14 if rt else vO}, s[{SWS}:{SWS+3}], s{44+hi} offen offset:{1024*lo} sc1"
    for hi in range(5):
        a(f"s_movk_i32 s{44+hi}, {4096*hi}")
    base = lambda ks: R1 if ks < 3 else 0 if 9 <= ks < 12 else R2_
    R2_ = 43008
    def wreads(ks, t):
        o = WO[ks] - base(ks)
        if t == 4:
            return [tr(wf(t), R2, o + 4096), tr(wf(t) + 2, R2, o + 4096 + 256)]
        return [tr(wf(t), R8 + t, o), tr(wf(t) + 2, R8 + t, o + 1024)]
    for ks in range(AH):
        a(oload(ks, 0)); a(oload(ks, 1))
    for t in range(5):
        for x in wreads(0, t): a(x)
    for ks in range(18):
        tiles = [[mf(ACC(t, rt), wf(t), OFR(ks, rt), ACC(t, rt) if ks else "0") for rt in range(2)] for t in range(5)]
        w0 = f"s_waitcnt vmcnt({2*min(AH - 1, 17 - ks)}) lgkmcnt(8)"
        if ks < 17:
            nxt = [wreads(ks + 1, t) for t in range(5)]
            if base(ks + 1) != base(ks):
                d = (base(ks + 1) - base(ks)) & 0xffffffff
                for t in range(5):
                    nxt[t][0] = f"v_add_u32 v{R8+t}, {d}, v{R8+t}\n" + nxt[t][0]
            first = []
            if ks + AH < 18:
                first = [oload(ks + AH, 0)]
                nxt[1][1] += "\n" + oload(ks + AH, 1)
            kstep(tiles, nxt, first, {t: "s_waitcnt lgkmcnt(7)" if t else w0 for t in range(5)})
        else:
            kstep(tiles, None, [], {t: f"s_waitcnt lgkmcnt({8 - 2*t})" if t else w0 for t in range(5)})
        if ks == 0:
            stamp()
    stamp()
    for rt in range(2):
        for t in range(5):
            d = 20 + 2*(rt*5 + t)
            a(cv(d, ACC(t, rt))); a(cv(d + 1, ACC(t, rt) + 2))
            if t == 4:
                a(f"s_mov_b64 exec, s[{sG01}:{sG01+1}]")
            a(f"ds_write_b64 v{vTW}, {vr(d,2)} offset:{rt*2304 + 32*t}")
            if t == 4:
                a("s_mov_b64 exec, -1")
    a("s_waitcnt lgkmcnt(0)")
    for n in range(5):
        a(f"ds_read_b128 {vr(112+4*n,4)}, v{vTR} offset:{1024*n}")
    for n in range(5):
        a(f"s_waitcnt lgkmcnt({4-n})")
        a(f"buffer_store_dwordx4 {vr(112+4*n,4)}, v{VS+n}, s[{SOUT}:{SOUT+3}], 0 offen")
    stamp()
    stamps_out(True)
    a("s_endpgm")

HEADER = open("concat_heads__sliding_local_dilated__linear_attn_block__prompt.s.ref").read().split("; Override")[0]
out = HEADER + "; @launch grid=(256,1,1) block=(512,1,1) lds=163840\n"
a('.amdgcn_target "amdgcn-amd-amdhsa--gfx950"\n.text')
a(kernel_head(KN))
if OPT["stamps"]:
    for i in range(16):
        a(f"s_mov_b32 s{sST+2*i}, 0")
stamp()
a(f"""
s_cmp_ge_u32 s2, 256
s_cbranch_scc1 L_end
s_and_b32 s{sT}, s2, 7
s_lshr_b32 s{sBR}, s{sT}, 2
s_mul_i32 s{sT2}, s{sBR}, 24
s_add_u32 s0, s0, s{sT2}
s_addc_u32 s1, s1, 0
s_load_dwordx4 s[36:39], s[0:1], 0
s_load_dwordx2 s[40:41], s[0:1], 16
s_sub_u32 s0, s0, s{sT2}
s_subb_u32 s1, s1, 0
s_load_dwordx4 s[44:47], s[0:1], 48
s_load_dwordx2 s[48:49], s[0:1], 64
v_lshrrev_b32 v1, 6, v0
v_and_b32 v0, 63, v0
v_readfirstlane_b32 s{sWAVE}, v1
s_lshr_b32 s{sT2}, s2, 3
""")
if OPT["mapping"] == 84:
    a(f"""
s_and_b32 s{sHG}, s{sT2}, 3
s_and_b32 s{sT3}, s{sT}, 1
s_lshl_b32 s{sT3}, s{sT3}, 2
s_add_u32 s{sHG}, s{sHG}, s{sT3}
s_lshr_b32 s{sRB}, s{sT2}, 2
s_and_b32 s{sT3}, s{sT}, 2
s_lshl_b32 s{sT3}, s{sT3}, 2
s_add_u32 s{sRB}, s{sRB}, s{sT3}
""")
else:
    a(f"""
s_and_b32 s{sHG}, s{sT2}, 7
s_lshr_b32 s{sRB}, s{sT2}, 3
s_and_b32 s{sT3}, s{sT}, 3
s_lshl_b32 s{sT3}, s{sT3}, 2
s_add_u32 s{sRB}, s{sRB}, s{sT3}
""")
rot = ""
if OPT.get("rot") == 2:
    rot = f"""s_lshr_b32 s90, s2, 1
s_xor_b32 s90, s90, s2
s_and_b32 s90, s90, 1
s_mul_i32 s91, s90, {OPT.get("rotby", 5)*128}
s_mul_i32 s90, s90, {OPT.get("rotby", 5)*64*3456}"""
elif OPT.get("rot"):
    few, many = (sRB, sHG) if OPT["mapping"] == 48 else (sHG, sRB)
    rot = f"""s_and_b32 s90, s{few}, 3
s_lshl_b32 s90, s90, 2
s_lshr_b32 s90, 0x7520, s90
s_and_b32 s90, s90, 15
s_and_b32 s91, s{many}, 7
s_add_u32 s90, s90, s91
s_cmp_ge_u32 s90, 9
s_cselect_b32 s91, 9, 0
s_sub_u32 s90, s90, s91
s_lshl_b32 s91, s90, 7
s_mul_i32 s90, s90, {64*3456}"""
a(f"""
s_mov_b32 s{sG0}, 0xffff
s_mov_b32 s{sG0+1}, 0
s_mov_b32 s{sG01}, -1
s_mov_b32 s{sG01+1}, 0
s_and_b32 s{sV}, s{sWAVE}, 1
s_mul_i32 s{sM}, s{sHG}, 144
s_cmp_lt_u32 s{sWAVE}, 4
s_cbranch_scc1 L_cons
s_setprio {OPT.get("prio", 2)}
s_mov_b32 s59, 0
{rot}
s_cmp_lt_u32 s{sWAVE}, 6
s_cbranch_scc1 L_wld
s_cmp_eq_u32 s{sBR}, 0
s_cbranch_scc1 L_AX0
s_branch L_BX0
L_wld:
s_cmp_eq_u32 s{sBR}, 0
s_cbranch_scc1 L_AW0
s_branch L_BW0
L_cons:
s_getpc_b64 s[42:43]
L_pc:
s_lshl_b32 s{sT}, s{sT2}, 2
s_add_u32 s{sT}, s{sT}, s{sWAVE}
s_lshl_b32 s{sT}, s{sT}, 9
v_and_b32 v1, 3, v0
v_lshlrev_b32 v1, 7, v1
v_add_u32 v1, s{sT}, v1
v_min_u32 v1, L_last-L_pc, v1
global_load_dword v27, v1, s[42:43]
s_cmp_eq_u32 s{sBR}, 0
s_cbranch_scc1 L_AC
s_branch L_BC
L_end:
s_endpgm
""")
w_head("A"); w_head("B"); x_head("A"); x_head("B")
n0 = nstamp[0]
for fn in (lambda: a_loader("W"), lambda: a_loader("X"), a_consumer, lambda: b_loader("W"), lambda: b_loader("X"), b_consumer, p2_consumer):
    nstamp[0] = n0
    fn()
a("L_last:\ns_endpgm")
lines = []
for l in a.lines: lines += l.split("\n")
if OPT.get("noread"):
    lines = [l for l in lines if not l.startswith("ds_read_b64_tr")]
if OPT.get("nomfma"):
    lines = [l for l in lines if not l.startswith("v_mfma")]
lines, added = hz.fix(lines)
out += "\n".join(lines) + "\n"
out += '.section .rodata,"a"\n.p2align 6\n' + kernel_desc(KN, 256, 100, 256)
sys.stdout.write(out)
sys.stderr.write(f"nop states added: {added}\n")
```

```python
import sys, struct
from asmlib import *
import hz

OPT = dict(stamps=0, mapping=48, ahead=6, rot=4, nt=1)
for arg in sys.argv[1:]:
    k, v = arg.split("=")
    OPT[k] = int(v)
KN = "concat_heads__sliding_local_dilated__linear_attn_block__prompt_kernel"

def f32(x):
    return "0x%08x" % struct.unpack("<I", struct.pack("<f", x))[0]

LOG2E = 1.4426950408889634
CSC = 18 ** -0.5 * LOG2E
NEG = "0xf149f2ca"
EPS = f32(1e-6)
OOB = "0x80000000"

O_BR = 0x240000
WS_KV = 0x500000
KV_ST = 0x2000
WS_CNT = 0x540000
WS_STAMP = 0x600000
WS_SIZE = 0x700000

sWAVE, sHG, sRB, sBR, sT = 3, 4, 5, 6, 7
SX, SW, SWS, SDBG, SWO, SOUT = 8, 12, 16, 20, 24, 28
sG0, sG01 = 32, 34
sK, sV, sM, sT2, sT3 = 50, 51, 52, 53, 54
sST = 60

a = Asm()
nstamp = [0]

def stamp():
    if OPT["stamps"]:
        i = nstamp[0]; nstamp[0] += 1
        assert i < 15
        a(f"{'s_memrealtime' if OPT.get('rt') or OPT.get('probe') and not (OPT.get('cyc') and i) else 's_memtime'} s[{sST+2*i}:{sST+2*i+1}]")
        if OPT.get("cyc") and i == 0:
            a("s_memtime s[90:91]")

def stamps_out(last=False):
    if not OPT["stamps"]:
        return
    if OPT.get("probe"):
        if last:
            j = sST + 2 * OPT["probe"]
            a(f"""
s_waitcnt vmcnt(0) lgkmcnt(0)
s_cmp_eq_u32 s2, {OPT.get('wg', 0)}
s_cbranch_scc0 L_probe_x
s_cmp_eq_u32 s{sWAVE}, 0
s_cbranch_scc0 L_probe_x
s_sub_u32 s{sT}, s{j}, s{90 if OPT.get('cyc') else sST}
{'s_lshr_b32 s7, s7, 3' if OPT.get('cyc') else 's_mul_i32 s7, s7, 10'}
s_min_u32 s{sT}, s{sT}, 100000
s_add_u32 s{sT}, s{sT}, 6000
L_probe:
s_memrealtime s[44:45]
s_waitcnt lgkmcnt(0)
s_sub_u32 s44, s44, s{sST}
s_cmp_lt_u32 s44, s{sT}
s_cbranch_scc1 L_probe
L_probe_x:
""")
        return
    a("s_waitcnt vmcnt(0) lgkmcnt(0)")
    a(f"s_lshl_b32 s{sT}, s2, 3\ns_add_u32 s{sT}, s{sT}, s{sWAVE}\ns_lshl_b32 s{sT}, s{sT}, 6")
    a(f"s_add_u32 s{sT}, s{sT}, {WS_STAMP}\nv_mov_b32 v1, s{sT}")
    for i in range(16):
        a(f"v_mov_b32 v2, s{sST+2*i}")
        a(f"buffer_store_dword v2, v1, s[{SWS}:{SWS+3}], 0 offen offset:{4*i}")
    a("s_waitcnt vmcnt(0)")

def mf(d, s0, s1, c):
    cc = c if isinstance(c, str) else vr(c, 4)
    return f"v_mfma_f32_16x16x32_bf16 {vr(d,4)}, {vr(s0,4)}, {vr(s1,4)}, {cc}"
def cv(d, x):
    return f"v_cvt_pk_bf16_f32 v{d}, v{x}, v{x+1}"
def tr(d, addr, off):
    return f"ds_read_b64_tr_b16 {vr(d,2)}, v{addr} offset:{off}"
def weave(mfmas, others, per=2):
    o = list(others)
    for m in mfmas:
        a(m)
        for _ in range(per):
            if o: a(o.pop(0))
    for x in o: a(x)

def srd(dst, lo, nbytes):
    a(f"s_mov_b32 s{dst}, s{lo}\ns_mov_b32 s{dst+1}, s{lo+1}\ns_mov_b32 s{dst+2}, {nbytes}\ns_mov_b32 s{dst+3}, 0x20000")
def srds_rest():
    srd(SWO, 40, 663552); srd(SOUT, 44, 4718592); srd(SDBG, 46, 256); srd(SWS, 48, WS_SIZE)

class M0:
    def __init__(self, base): self.base = base; self.cur = None
    def set(self, imm):
        if self.cur is not None and -32768 <= imm - self.cur <= 32767:
            a(f"s_addk_i32 m0, {imm - self.cur}")
        else:
            a(f"s_add_u32 m0, s{self.base}, {imm}")
        self.cur = imm

CUR = [0]
def dma(voff, srd_, soff, half=False):
    if OPT.get("nodma") or (OPT.get("nos") and voff == VD + 6 and srd_ == SW and not half):
        return
    if half: a(f"s_mov_b64 exec, s[{sG01}:{sG01+1}]")
    nt = " nt" if OPT.get("nt", 0) >> {SX: 0, SW: 1, SWO: 2}[srd_] & 1 and CUR[0] < OPT.get("ntc", 99) else ""
    a(f"buffer_load_dwordx4 v{voff}, s[{srd_}:{srd_+3}], {soff} offen{nt} lds")
    if half: a("s_mov_b64 exec, -1")

def rd_lanes(r8, r2, t0, t1):
    a(f"""
v_lshrrev_b32 v{t0}, 5, v0
v_lshlrev_b32 v{t0}, 4, v{t0}
v_bfe_u32 v{t1}, v0, 4, 1
v_lshl_add_u32 v{t0}, v{t1}, 2, v{t0}
v_bfe_u32 v{t1}, v0, 2, 2
v_add_u32 v{t0}, v{t0}, v{t1}
v_and_b32 v{t1}, 3, v0
v_lshlrev_b32 v{t1}, 3, v{t1}
v_lshl_add_u32 v{r2}, v{t0}, 5, v{t1}
v_lshl_add_u32 v{r8}, v{t0}, 7, v{t1}
v_bfe_u32 v{t0}, v{t0}, 1, 2
v_lshl_add_u32 v{r8}, v{t0}, 5, v{r8}
""")
    for t in (1, 2, 3):
        a(f"v_xor_b32 v{r8+t}, {32*t}, v{r8}")

def x_lane(d0, d1, tmp):
    a(f"""
v_lshrrev_b32 v{d0}, 4, v0
v_bfe_u32 v{tmp}, v0, 1, 3
v_xor_b32 v{d0}, v{d0}, v{tmp}
v_and_b32 v{tmp}, 15, v0
v_lshlrev_b32 v{tmp}, 7, v{tmp}
v_lshl_add_u32 v{d0}, v{d0}, 4, v{tmp}
v_xor_b32 v{d1}, 64, v{d0}
""")

def col8(dst, tmp):
    a(f"v_bfe_u32 v{tmp}, v0, 4, 2\nv_lshlrev_b32 v{tmp}, 1, v{tmp}\nv_and_b32 v{dst}, 7, v0\nv_xor_b32 v{dst}, v{dst}, v{tmp}\nv_lshlrev_b32 v{dst}, 4, v{dst}")

def head_of(dst, src):
    a(f"v_mul_u32_u24 v{dst}, 57, v{src}\nv_lshrrev_b32 v{dst}, 10, v{dst}")

sOC, sKC, sFO, sFK = 92, 94, 96, 97

def arrive_wait(addr, target, label, arrive=True):
    if arrive:
        a(f"s_mov_b32 s{sT}, 1\ns_atomic_add s{sT}, s[{addr}:{addr+1}], 0 glc\ns_waitcnt lgkmcnt(0)\ns_cmp_ge_u32 s{sT}, {target-1}\ns_cbranch_scc1 {label}_x")
    a(f"""
s_mov_b32 s{sT3}, 0x20000
{label}:
s_mov_b32 s{sT}, 0
s_atomic_add s{sT}, s[{addr}:{addr+1}], 0 glc
s_waitcnt lgkmcnt(0)
s_sub_u32 s{sT3}, s{sT3}, 1
s_cbranch_scc1 {label}_x
s_cmp_ge_u32 s{sT}, {target}
s_cbranch_scc0 {label}
{label}_x:
""")

def flag_load(dst, offreg):
    a(f"s_load_dword s{dst}, s[{SDBG}:{SDBG+1}], s{offreg}")

def flag_check(val, offreg, label):
    a(f"""
s_mov_b32 s{sT3}, 0x20000
{label}:
s_waitcnt lgkmcnt(0)
s_cmp_lg_u32 s{val}, 0
s_cbranch_scc1 {label}_x
s_sub_u32 s{sT3}, s{sT3}, 1
s_cbranch_scc1 {label}_x
s_load_dword s{val}, s[{SDBG}:{SDBG+1}], s{offreg} glc
s_branch {label}
{label}_x:
""")

A_WSLOT, A_XSLOT = 14336, 18432
A_X0 = 5 * A_WSLOT
A_EX = A_X0 + 3 * A_XSLOT
B_KVSLOT, B_XSLOT = 9216, 16384
B_X0 = 5 * B_KVSLOT
B_EX = B_X0 + 3 * B_XSLOT
B_KVOP = 126976
B_STG = 136192
B_DUMP, B_LCNT = B_STG + 5632, B_STG + 6144
B_WQ0 = 143360
QORD = list(range(18))
def wq_slot(p):
    if p < 4: return B_WQ0 + 5120 * p
    if p < 7: return 5120 * (p - 4)
    if p < 13: return 40960 + 5120 * (p - 7)
    return 15360 + 5120 * (p - 13)
R1, R2 = 147456, 43008
WO = [R1, R1 + 5120, R1 + 10240] + [R2 + 5120 * n for n in range(6, 12)] + [0, 5120, 10240] + [R2 + 5120 * n for n in range(6)]
P_TR = 108544
SPLITS = {(1, 0): sG0, (2, 0): sG0, (2, 1): sG0, (3, 0): sG01, (3, 1): sG0}

VD = 16
VWO = 26
vCNT, vFLO, vFLK, vFO, vFK = 30, 31, 32, 33, 34

def w_head(kind):
    parts = (0, 1152, 2304) if kind == "A" else (1152, 2304)
    a(f"L_{kind}W0:")
    col8(VD, 1)
    a(f"""
v_bfe_u32 v1, v0, 5, 1
v_bfe_u32 v2, v0, 3, 2
v_lshl_add_u32 v1, v1, 3, v2
s_mul_i32 s{sT}, s{sV}, {16*3456}
s_add_u32 s{sT}, s{sT}, s{sM}
v_mul_u32_u24 v1, 3456, v1
v_add3_u32 v{VD}, v{VD}, v1, s{sT}
""")
    n = 2 * len(parts)
    for j in range(n - 1, -1, -1):
        off = parts[j // 2] + (j % 2) * 4 * 3456
        if off:
            a(f"v_add_u32 v{VD+j}, {off}, v{VD}")
    a(f"""
v_bfe_u32 v1, v0, 3, 1
v_bfe_u32 v2, v0, 4, 1
v_sub_u32 v1, v1, v2
v_lshrrev_b32 v2, 1, v0
v_lshl_add_u32 v1, v1, 2, v2
v_mul_u32_u24 v1, 3456, v1
v_and_b32 v2, 1, v0
""")
    if kind == "A":
        a(f"""
s_cmp_eq_u32 s{sV}, 0
s_cselect_b32 s{sT2}, 1152, 0
s_cselect_b32 s{sT}, 0, 2304
s_add_u32 s{sT}, s{sT}, s{sM}
s_addk_i32 s{sT}, 128
v_mad_u32_u24 v1, v2, s{sT2}, v1
v_add_u32 v{VD+6}, s{sT}, v1
""")
    else:
        a(f"""
s_add_u32 s{sT}, s{sT}, 128
v_add_u32 v{VD+7}, s{sT}, v1
v_mul_u32_u24 v2, 1152, v2
v_add_u32 v2, 1152, v2
v_add_u32 v{VD+4}, v2, v{VD+7}
""")
    a(f"s_lshl_b32 s42, s{sV}, 11\ns_lshl_b32 s43, s{sV}, {10 if kind == 'A' else 9}\ns_sub_u32 s43, s43, s42")
    a("s_waitcnt lgkmcnt(0)")
    srd(SW, 38, 1990656)
    m = M0(42)
    w_issue(kind, 0, m)
    a(f"s_branch L_{kind}W1")

def w_issue(kind, c, m):
    CUR[0] = c
    slot = (c % 5) * (A_WSLOT if kind == "A" else B_KVSLOT)
    n = 6 if kind == "A" else 4
    so = f"s{sK}" if c else "0"
    if OPT.get("rot"):
        so = "s90"
        if c:
            a(f"s_add_u32 s90, s90, {32*3456}\ns_cmp_eq_u32 s90, {18*32*3456}\ns_cselect_b32 s90, 0, s90")
    elif c:
        a(f"s_mov_b32 s{sK}, {c*32*3456}")
    for j in range(n):
        m.set(slot + 4096 * (j // 2) + 1024 * (j % 2))
        dma(VD + j, SW, so)
    m.set(slot + 4096 * (n // 2))
    a("s_add_u32 m0, m0, s43")
    m.cur = None
    dma(VD + n, SW, so, half=(kind == "B"))
    return n + 1

def wq_issue(p, m):
    if OPT.get("rot"):
        a(f"s_add_u32 s{sK}, s90, {(p+1)*32*3456}\ns_cmp_ge_u32 s{sK}, {18*32*3456}\ns_cselect_b32 s{sT}, {18*32*3456}, 0\ns_sub_u32 s{sK}, s{sK}, s{sT}")
    else:
        a(f"s_mov_b32 s{sK}, {QORD[p]*32*3456}")
    for j in range(2):
        m.set(wq_slot(p) + 1024 * j)
        dma(VD + 5 + j, SW, f"s{sK}")
    m.set(wq_slot(p) + 4096)
    a("s_add_u32 m0, m0, s43")
    m.cur = None
    dma(VD + 7, SW, f"s{sK}", half=True)
    return 3

def x_head(kind):
    nq = 9 if kind == "A" else 8
    a(f"L_{kind}X0:")
    a(f"""
v_lshrrev_b32 v1, 3, v0
v_mul_u32_u24 v1, {2304 if kind == 'A' else 1152}, v1
v_lshrrev_b32 v2, 4, v0
v_lshl_add_u32 v2, s{sV}, 2, v2
v_and_b32 v3, 7, v0
v_xor_b32 v2, v2, v3
v_lshl_add_u32 v1, v2, 4, v1
s_mul_i32 s{sT}, s{sRB}, {128*1152}
""")
    if kind == "A":
        a(f"""
s_mul_i32 s{sT2}, s{sV}, {16*1152}
s_add_u32 s{sT3}, s{sT}, s{sT2}
v_add_u32 v{VD}, s{sT3}, v1
s_sub_u32 s{sT3}, s{sT}, s{sT2}
s_add_u32 s{sT3}, s{sT3}, {17*1152}
v_add_u32 v{VD+4}, s{sT3}, v1
s_mul_i32 s{sT2}, s{sV}, 1152
s_sub_u32 s{sT3}, s{sT}, s{sT2}
s_sub_u32 s{sT3}, s{sT3}, {15*1152}
v_add_u32 v{VD+8}, s{sT3}, v1
""")
        for q in (1, 2, 3):
            a(f"v_add_u32 v{VD+q}, {32*1152*q}, v{VD}\nv_add_u32 v{VD+4+q}, {32*1152*q}, v{VD+4}")
    else:
        a(f"s_mul_i32 s{sT2}, s{sV}, {8*1152}\ns_add_u32 s{sT}, s{sT}, s{sT2}\nv_add_u32 v{VD}, s{sT}, v1")
        for q in range(1, 8):
            a(f"v_add_u32 v{VD+q}, {16*1152*q}, v{VD}")
    a(f"s_lshl_b32 s42, s{sV}, 10")
    a("s_waitcnt lgkmcnt(0)")
    srd(SX, 36, 2359296)
    x_issue(kind, 0, M0(42))
    a(f"s_branch L_{kind}X1")

def x_issue(kind, c, m):
    CUR[0] = c + (c & 1)
    nq, h, x0, xs = (9, 5, A_X0, A_XSLOT) if kind == "A" else (8, 4, B_X0, B_XSLOT)
    st = (c + 1) // 2
    if st > 8:
        return 0
    qs = range(nq) if c == 0 else (range(h) if c % 2 else range(h, nq))
    so = f"s{sK}" if st else "0"
    if OPT.get("rot"):
        so = "s91"
        if c % 2:
            a("s_addk_i32 s91, 128\ns_cmpk_eq_u32 s91, 1152\ns_cselect_b32 s91, 0, s91")
    elif st:
        a(f"s_movk_i32 s{sK}, {st*128}")
    for q in qs:
        m.set(x0 + (st % 3) * xs + 2048 * q)
        a("s_nop 0")
        dma(VD + q, SX, so)
    return len(qs)

def wo_setup(quad):
    col8(VWO, 1)
    a(f"""
s_mul_i32 s{sM}, s{sHG}, 144
v_add_u32 v{VWO}, s{sM}, v{VWO}
v_bfe_u32 v1, v0, 5, 1
v_bfe_u32 v2, v0, 3, 2
v_mul_u32_u24 v1, 72, v1
v_add_u32 v1, v1, v2
v_mul_u32_u24 v1, 1152, v1
v_add_u32 v{VWO+1}, v1, v{VWO}
v_lshrrev_b32 v1, 3, v0
v_mul_u32_u24 v1, 1152, v1
v_add_u32 v{VWO}, v1, v{VWO}
v_bfe_u32 v1, v0, 1, 2
v_bfe_u32 v2, v0, 3, 1
v_bfe_u32 v3, v0, 4, 1
v_bfe_u32 v4, v0, 5, 1
v_lshl_add_u32 v5, v2, 2, v1
v_lshl_add_u32 v5, v3, 4, v5
v_lshl_add_u32 v5, v4, 3, v5
v_mul_u32_u24 v5, 1152, v5
s_add_u32 s{sM}, s{sM}, 128
v_add_u32 v{VWO+2}, s{sM}, v5
v_lshl_add_u32 v5, v3, 2, v1
v_lshl_add_u32 v2, v4, 1, v2
v_mul_u32_u24 v2, 72, v2
v_add_u32 v5, v5, v2
v_mul_u32_u24 v5, 1152, v5
v_add_u32 v{VWO+3}, s{sM}, v5
s_and_b32 s55, s{sWAVE}, 3
s_lshl_b32 s57, s55, 3
""")
    rho(56)
    a(f"s_add_u32 s56, s56, s{55 if quad else sV}")

def rho(dst):
    few, many = (sRB, sHG) if OPT["mapping"] == 48 else (sHG, sRB)
    if OPT["mapping"] > 99:
        a(f"s_cmp_eq_u32 s{sBR}, {0 if OPT['mapping'] == 8448 else 1}\ns_cselect_b32 s{sT}, s{sHG}, s{sRB}\ns_cselect_b32 s{sT2}, s{sRB}, s{sHG}")
        few, many = sT, sT2
    a(f"s_lshl_b32 s{dst}, s{few}, 1\ns_add_u32 s{dst}, s{dst}, s{many}\ns_lshl_b32 s{dst}, s{dst}, 1")
    if not OPT.get("worot", 1):
        a(f"s_mov_b32 s{dst}, 0")

def wo_chunk(left, fadd):
    if left:
        a(f"s_mul_i32 s{sK}, s{sV}, {288*1152}\ns_add_u32 s{sK}, s{sK}, {64*1152}")
        steps = (4, 140, 4); v8, v2 = VWO + 1, VWO + 3
    else:
        a(f"""
s_add_u32 s{sT}, s56, {fadd}
s_bfe_u32 s{sK}, s{sT}, 0x30001
s_mul_i32 s{sK}, s{sK}, {72*1152}
s_bitcmp1_b32 s{sT}, 0
s_cselect_b32 s{sT}, {32*1152}, 0
s_add_u32 s{sK}, s{sK}, s{sT}
""")
        steps = (16, -8, 16); v8, v2 = VWO, VWO + 2
    a(f"s_mov_b32 s{sT2}, s{sK}")
    for j in range(4):
        dma(v8, SWO, f"s{sK}")
        a("s_addk_i32 m0, 1024")
        a(f"s_add_u32 s{sK}, s{sK}, {steps[j]*1152 & 0xffffffff}" if j < 3 else "s_nop 0")
    dma(v2, SWO, f"s{sT2}")
    return 5

def wo_issue(q):
    packed = sum((WO[2 + 4*q + w] // 1024) << (8 * w) for w in range(4))
    a(f"s_lshr_b32 s{sT}, {packed}, s57\ns_and_b32 s{sT}, s{sT}, 0xff\ns_lshl_b32 m0, s{sT}, 10")
    return wo_chunk(False, 4*q)

def wo_pair(g):
    a(f"s_mul_i32 s{sT}, s{sV}, {WO[2*g+1] - WO[2*g] & 0xffffffff}\ns_add_u32 m0, s{sT}, {WO[2*g]}")
    return wo_chunk(g == 0, 2*g - 2)

def sync_setup():
    a(f"""
s_lshl_b32 s{sT}, s{sBR}, 4
s_add_u32 s{sT}, s{sT}, s{sRB}
s_lshl_b32 s{sT2}, s{sT}, 8
s_add_u32 s{sT2}, s{sT2}, {WS_CNT}
s_add_u32 s{sOC}, s{SWS}, s{sT2}
s_addc_u32 s{sOC+1}, s{SWS+1}, 0
s_lshl_b32 s{sT}, s{sT}, 2
s_add_u32 s98, s{sT}, 32
s_lshl_b32 s99, s{sHG}, 2
s_mul_i32 s{sT2}, s{sHG}, {KV_ST}
s_add_u32 s{sT2}, s{sT2}, {WS_KV + 6144}
s_add_u32 s{sKC}, s{SWS}, s{sT2}
s_addc_u32 s{sKC+1}, s{SWS+1}, 0
""")

def loader_tail(tag, late=()):
    if tag[1] == "X":
        flag_check(sFO, 98, f"L_{tag}_fo")
    a("s_barrier")
    stamp()
    for g in late:
        wo_pair(g)
    if tag[1] == "X":
        a(f"s_cmp_eq_u32 s{sWAVE}, 6\ns_cbranch_scc0 L_{tag}_oc_x")
        arrive_wait(sOC, 8, f"L_{tag}_oc")
    a("s_waitcnt vmcnt(0)")
    stamp()
    a("s_barrier")
    stamps_out()
    a("s_endpgm")

def a_loader(kind):
    a(f"L_A{kind}1:")
    m = M0(42)
    issue = (lambda c: w_issue("A", c, m)) if kind == "W" else (lambda c: x_issue("A", c, m))
    pre = 1 if OPT.get("early") and kind == "W" else 2
    cnt = {c: issue(c) for c in range(1, pre + 1)}
    stamp()
    x_lane(8, 9, 1)
    rd_lanes(36, 12, 1, 2)
    a(f"""
v_add_u32 v8, {A_X0 + 8*2048}, v8
v_add_u32 v9, {A_X0 + 8*2048}, v9
s_lshl_b32 s{sT}, s{sV}, 6
v_xor_b32 v10, s{sT}, v36
v_add_u32 v10, {4096 if kind == 'W' else 8192}, v10
v_xor_b32 v11, 32, v10
v_add_u32 v12, {12288 if kind == 'W' else 13312}, v12
v_add_u32 v13, {4*A_WSLOT}, v10
v_add_u32 v14, {4*A_WSLOT}, v11
v_add_u32 v15, {4*A_WSLOT}, v12
s_lshl_b32 s{sT}, s{sV}, 10
s_add_u32 s{sT}, s{sT}, {A_EX + (0 if kind == 'W' else 2560)}
v_lshlrev_b32 v7, 3, v0
v_add_u32 v6, s{sT}, v7
v_add_u32 v7, {A_EX + (2048 if kind == 'W' else 4608)}, v7
""")
    stamp()
    a(f"s_waitcnt vmcnt({sum(cnt.values())})\ns_barrier")
    stamp()
    extra = 0
    for i in range(-1, 17):
        ks = i + 1
        slot = ks % 5
        off = 0 if slot == 4 else slot * A_WSLOT
        ad = (13, 14, 15) if slot == 4 else (10, 11, 12)
        a(f"ds_read_b128 v[40:43], v{8 + ks % 2} offset:{(ks//2 % 3)*A_XSLOT}")
        for j in range(3 if OPT.get("nohalo", 0) < 2 else 0):
            a(tr(44 + 4*j, ad[j], off)); a(tr(46 + 4*j, ad[j], off + (1024 if j < 2 else 256)))
        if i == -1 and pre == 1:
            cnt[2] = issue(2)
        if i + 4 <= 17:
            cnt[i+4] = issue(i + 4)
        a("s_waitcnt lgkmcnt(0)")
        for j in range(3 if not OPT.get("nohalo") else 0):
            c = 60 + 4*j if ks else "0"
            a(mf(60 + 4*j, 44 + 4*j, 40, c) if kind == "W" else mf(60 + 4*j, 40, 44 + 4*j, c))
        if i == 1:
            srds_rest(); sync_setup()
        if i == 2:
            wo_setup(True)
        if i == 14 and kind == "W":
            extra += wo_pair(0)
        if i == 15:
            extra += wo_issue(0)
        if i + 1 <= 16:
            left = sum(cnt.get(c, 0) for c in range(i + 3, min(i + 4, 17) + 1)) + extra
            a(f"s_waitcnt vmcnt({left})\ns_barrier")
            if OPT.get("fine") and kind == "W" and i % 2 == 1 and 0 < i < 14:
                stamp()
    for j in range(3):
        a(cv(44 + 2*j, 60 + 4*j)); a(cv(45 + 2*j, 62 + 4*j))
    if kind == "W":
        a("v_mov_b32 v50, 0\nv_mov_b32 v51, 0")
        a("v_permlane32_swap_b32 v48, v50\nv_permlane32_swap_b32 v49, v51")
    a("ds_write_b64 v6, v[44:45]\nds_write_b64 v6, v[46:47] offset:512")
    a(f"ds_write_b64 v7, {'v[50:51]' if kind == 'W' else 'v[48:49]'}")
    stamp()
    a("s_waitcnt lgkmcnt(0)\ns_barrier")
    if kind == "X":
        flag_load(sFO, 98)
    wo_issue(1); wo_issue(2); wo_issue(3)
    stamp()
    loader_tail("A" + kind)

def o_store_addr(vfull, vleft, tmp, left_lo):
    a(f"""
s_lshl_b32 s{sT}, s{sRB}, 3
s_lshl_b32 s{sT2}, s{sWAVE}, 1
s_add_u32 s{sT}, s{sT}, s{sT2}
s_mul_i32 s{sT}, s{sT}, 18432
s_mul_i32 s{sT2}, s{sBR}, {O_BR}
s_add_u32 s58, s{sT}, s{sT2}
s_lshl_b32 s{sT2}, s{sHG}, 11
s_add_u32 s{sT2}, s{sT2}, s58
v_lshl_add_u32 v{vfull}, v0, 4, s{sT2}
s_lshr_b32 s{sT2}, s{sHG}, 2
s_add_u32 s{sT2}, s{sT2}, 16
s_lshl_b32 s{sT2}, s{sT2}, 10
s_add_u32 s{sT}, s58, s{sT2}
s_and_b32 s{sT2}, s{sHG}, 3
s_lshl_b32 s{sT2}, s{sT2}, 8
s_add_u32 s{sT}, s{sT}, s{sT2}
v_and_b32 v{vleft}, 15, v0
v_lshlrev_b32 v{vleft}, 4, v{vleft}
v_bfe_u32 v{tmp}, v0, 4, 1
v_lshl_add_u32 v{vleft}, v{tmp}, 3, v{vleft}
v_add_u32 v{vleft}, s{sT}, v{vleft}
v_mov_b32 v{tmp}, {OOB}
""")
    x, y = (tmp, vleft) if left_lo else (vleft, tmp)
    a(f"v_cndmask_b32 v{vleft}, v{x}, v{y}, s[{sG01}:{sG01+1}]")

def o_store(of, vfull, vleft, rt):
    so = f"s{sK}" if rt else "0"
    if rt:
        a(f"s_movk_i32 s{sK}, 18432")
    a(f"buffer_store_dwordx4 {vr(of,4)}, v{vfull}, s[{SWS}:{SWS+3}], {so} offen sc1")
    a(f"buffer_store_dwordx4 {vr(of+4,4)}, v{vfull}, s[{SWS}:{SWS+3}], {so} offen offset:1024 sc1")
    a(f"buffer_store_dwordx2 {vr(of+8,2)}, v{vleft}, s[{SWS}:{SWS+3}], {so} offen sc1")

def gap_touch(tag, parts):
    if not OPT.get("touch"):
        return
    nt = " nt" if OPT.get("tnt") else ""
    a(f"""
s_cmp_eq_u32 s{sWAVE}, 1
s_cbranch_scc1 L_{tag}_tw
s_cmp_eq_u32 s{sWAVE}, 2
s_cbranch_scc0 L_{tag}_tx
s_and_b32 s{sT}, s{sRB}, 7
s_cmp_eq_u32 s{sT}, 0
s_cselect_b32 s{sT}, 9, s{sT}
s_sub_u32 s{sT}, s{sT}, 1
s_lshl_b32 s{sT}, s{sT}, 7
s_and_b32 s{sT2}, s{sHG}, 3
s_lshl_b32 s{sT2}, s{sT2}, 5
s_lshl_b32 s{sT3}, s{sRB}, 7
s_add_u32 s{sT2}, s{sT2}, s{sT3}
v_and_b32 v1, 31, v0
v_add_u32 v1, s{sT2}, v1
v_mul_u32_u24 v1, 1152, v1
""")
    srd(SX, 36, 2359296)
    a(f"""
buffer_load_dword v26, v1, s[{SX}:{SX+3}], s{sT} offen{nt}
s_branch L_{tag}_tx
L_{tag}_tw:
s_and_b32 s{sT}, s{sHG}, 3
s_lshl_b32 s{sT}, s{sT}, 1
s_cmp_eq_u32 s{sT}, 0
s_cselect_b32 s{sT}, 9, s{sT}
s_sub_u32 s{sT}, s{sT}, 1
s_lshl_b32 s{sT}, s{sT}, 3
s_and_b32 s{sT2}, s{sRB}, 7
s_add_u32 s{sT}, s{sT}, s{sT2}
s_mul_i32 s{sT}, s{sT}, {8*3456}
s_add_u32 s{sT}, s{sT}, s{sM}
v_lshrrev_b32 v1, 3, v0
v_mul_u32_u24 v1, 3456, v1
v_bfe_u32 v2, v0, 1, 2
v_min_u32 v2, {parts-1}, v2
v_mul_u32_u24 v2, 1152, v2
v_and_b32 v3, 1, v0
v_mul_u32_u24 v3, 140, v3
v_add3_u32 v1, v1, v2, v3
""")
    srd(SW, 38, 1990656)
    a(f"buffer_load_dword v26, v1, s[{SW}:{SW+3}], s{sT} offen offset:{1152*(3-parts)}{nt}\nL_{tag}_tx:")

def init_stores(tag, with_kv):
    a(f"""
s_or_b32 s{sT}, s{sHG}, s{sWAVE}
s_cmp_eq_u32 s{sT}, 0
s_cselect_b32 s55, 1, 0
v_mov_b32 v20, 0
v_mov_b32 v21, 0
v_mov_b32 v22, 0
v_mov_b32 v23, 0
s_cbranch_scc0 L_{tag}_i1
s_lshl_b32 s{sT}, s{sBR}, 4
s_add_u32 s{sT}, s{sT}, s{sRB}
s_lshl_b32 s{sT}, s{sT}, 8
s_add_u32 s{sT}, s{sT}, {WS_CNT}
v_mov_b32 v24, s{sT}
buffer_store_dword v20, v24, s[{SWS}:{SWS+3}], 0 offen sc1
L_{tag}_i1:
""")
    if with_kv:
        a(f"""
s_or_b32 s{sT}, s{sRB}, s{sWAVE}
s_cmp_eq_u32 s{sT}, 0
s_cbranch_scc0 L_{tag}_i2
s_or_b32 s55, s55, 2
s_mul_i32 s{sT}, s{sHG}, {KV_ST}
s_add_u32 s{sT}, s{sT}, {WS_KV}
v_lshl_add_u32 v24, v0, 4, s{sT}
""")
        for j in range(7):
            a(f"s_movk_i32 s{sK}, {1024*j}\nbuffer_store_dwordx4 v[20:23], v24, s[{SWS}:{SWS+3}], s{sK} offen sc1")
        a(f"L_{tag}_i2:")

def init_flags(tag):
    a(f"""
s_waitcnt vmcnt(0)
s_cmp_eq_u32 s55, 0
s_cbranch_scc1 L_{tag}_f2
v_mov_b32 v20, 1
s_bitcmp1_b32 s55, 0
s_cbranch_scc0 L_{tag}_f1
s_lshl_b32 s{sT}, s{sBR}, 4
s_add_u32 s{sT}, s{sT}, s{sRB}
s_lshl_b32 s{sT}, s{sT}, 2
s_add_u32 s{sT}, s{sT}, 32
v_mov_b32 v24, s{sT}
buffer_store_dword v20, v24, s[{SDBG}:{SDBG+3}], 0 offen sc1
L_{tag}_f1:
s_bitcmp1_b32 s55, 1
s_cbranch_scc0 L_{tag}_f2
s_lshl_b32 s{sT}, s{sHG}, 2
v_mov_b32 v25, s{sT}
buffer_store_dword v20, v25, s[{SDBG}:{SDBG+3}], 0 offen sc1
L_{tag}_f2:
""")

def kstep(tiles, nxt_reads, first, waits):
    pend = list(first)
    for t, (m0_, m1_) in enumerate(tiles):
        if t in waits:
            a(waits[t])
        a(m0_)
        for x in pend: a(x)
        a(m1_)
        pend = []
        if nxt_reads:
            a(nxt_reads[t][0]); pend = [nxt_reads[t][1]]
    for x in pend: a(x)

def a_consumer():
    acc = lambda t, rt: 144 + (t * 2 + rt) * 4
    wf = lambda t: 88 + 4 * t
    xf = lambda buf, rt: 72 + buf * 8 + rt * 4
    R8, R2, R8b, R2b, aX = 1, 5, 6, 10, 11
    vOF, vOL, vEXW, vEXR = 13, 14, 15, 16
    MC, MP, MPF, PM = 56, 60, 64, 68
    a("L_AC:\ns_waitcnt lgkmcnt(0)")
    gap_touch("AC", 3)
    srds_rest()
    init_stores("AC", False)
    rd_lanes(R8, R2, 17, 18); x_lane(aX, aX + 1, 17)
    for j in range(5):
        a(f"v_add_u32 v{R8b+j}, {4*A_WSLOT}, v{R8+j}")
    a(f"""
s_lshl_b32 s{sT}, s{sWAVE}, 12
s_add_u32 s{sT}, s{sT}, {A_X0}
v_add_u32 v{aX}, s{sT}, v{aX}
v_add_u32 v{aX+1}, s{sT}, v{aX+1}
s_lshr_b32 s{sT}, s{sWAVE}, 1
s_lshl_b32 s{sT}, s{sT}, 3
v_and_b32 v17, 15, v0
v_xor_b32 v17, s{sT}, v17
v_lshrrev_b32 v18, 4, v0
v_lshlrev_b32 v18, 2, v18
v_xor_b32 v18, s{sT}, v18
v_sub_u32 v17, v17, v18
v_mov_b32 v19, {NEG}
s_and_b32 s{sT}, s{sWAVE}, 1
s_or_b32 s{sT}, s{sT}, s{sRB}
s_cmp_eq_u32 s{sT}, 0
s_cselect_b64 s[42:43], -1, 0
""")
    for r in range(4):
        a(f"""
v_subrev_u32 v18, {r}, v17
v_cmp_gt_u32 vcc, 8, v18
v_cndmask_b32 v{MC+r}, v19, 0, vcc
v_cmp_gt_i32 vcc, -8, v18
v_cndmask_b32 v{MP+r}, v19, 0, vcc
v_cndmask_b32 v{MPF+r}, v{MP+r}, v19, s[42:43]
v_cmp_lt_i32 vcc, -1, v18
v_mov_b32 v20, {'0xffff' if r % 2 == 0 else '0xffff0000'}
v_cndmask_b32 v20, 0, v20, vcc
""")
        a(f"v_mov_b32 v{PM + r//2}, v20" if r % 2 == 0 else f"v_or_b32 v{PM + r//2}, v{PM + r//2}, v20")
    o_store_addr(vOF, vOL, 17, True)
    a(f"""
s_lshr_b32 s{sT}, s{sWAVE}, 1
s_add_u32 s{sT}, s{sT}, 1
s_mul_i32 s{sT}, s{sT}, 5120
s_bitcmp1_b32 s{sWAVE}, 0
s_cselect_b32 s{sT3}, s{sT}, 0
v_lshlrev_b32 v17, 3, v0
v_add_u32 v17, {A_EX}, v17
v_add_u32 v{vEXW}, s{sT}, v17
v_add_u32 v{vEXR}, s{sT3}, v17
""")

    def wreads(ks, t):
        slot = ks % 5
        o = 0 if slot == 4 else slot * A_WSLOT
        r8, r2 = (R8b, R2b) if slot == 4 else (R8, R2)
        if t == 4 or t == 13:
            o += 12288 if t == 4 else 13312
            return [tr(wf(t), r2, o), tr(wf(t) + 2, r2, o + 256)]
        s, j = (0, t) if t < 4 else (1, t - 5) if t < 9 else (2, t - 9)
        return [tr(wf(t), r8 + j, o + 4096*s), tr(wf(t) + 2, r8 + j, o + 4096*s + 1024)]
    xread = lambda ks, rt: f"ds_read_b128 {vr(xf(ks % 2, rt),4)}, v{aX + ks % 2} offset:{(ks//2 % 3)*A_XSLOT + rt*2048}"

    stamp()
    a("s_barrier")
    stamp()
    a(xread(0, 0)); a(xread(0, 1))
    for t in range(14):
        for x in wreads(0, t): a(x)
    for ks in range(18):
        if ks < 17:
            a("s_barrier")
        if ks == 3:
            init_flags("AC")
        tiles = []
        for t in range(14):
            c = lambda rt: acc(t, rt) if ks else "0"
            tiles.append([mf(acc(t, rt), wf(t), xf(ks % 2, rt), c(rt)) if t < 9 else mf(acc(t, rt), xf(ks % 2, rt), wf(t), c(rt)) for rt in range(2)])
        if ks < 17:
            nxt = [wreads(ks + 1, t) for t in range(14)]
            nxt[1] = [nxt[1][0], nxt[1][1] + "\n" + xread(ks + 1, 1)]
            kstep(tiles, nxt, [xread(ks + 1, 0)], {0: "s_waitcnt lgkmcnt(14)", 7: "s_waitcnt lgkmcnt(15)", 12: "s_waitcnt lgkmcnt(15)"})
        else:
            kstep(tiles, None, [], {0: "s_waitcnt lgkmcnt(14)", 7: "s_waitcnt lgkmcnt(0)"})
    stamp()
    KP = lambda j: 18 + 10 * j
    QT = lambda rt, h: 88 + 16 * rt + 4 * h
    VP = lambda t, j: 120 + 6 * t + 2 * j if t < 4 else 48 + 2 * j
    ONE = 72
    def pack_kv(rt):
        o = []
        for q in range(2):
            o += [cv(QT(rt, 3) + 2 + q, acc(4, rt) + 2*q), f"v_mov_b32 v{KP(1+rt) + 8 + q}, 0"]
        for tau in range(4):
            o += [cv(KP(1+rt) + 2*tau + q, acc(5+tau, rt) + 2*q) for q in range(2)]
        o += [f"v_permlane32_swap_b32 v{QT(rt,3) + 2 + q}, v{KP(1+rt) + 8 + q}" for q in range(2)]
        for t in range(5):
            o += [cv(VP(t, 1+rt) + q, acc(9+t, rt) + 2*q) for q in range(2)]
        return o
    def pack_q(rt):
        o = []
        for t in range(4):
            for q in range(2):
                d = QT(rt, t) + q
                o.append(cv(d, acc(t, rt) + 2*q))
                if (t, q) in SPLITS:
                    m = SPLITS[(t, q)]; lo = QT(rt, t-1) + 2 + q
                    o += [f"v_cndmask_b32 v{lo}, 0, v{d}, s[{m}:{m+1}]", f"v_xor_b32 v{d}, v{d}, v{lo}"]
        return o + [f"v_mov_b32 v{QT(rt,0) + 3}, 0"]
    weave([], pack_kv(1))
    a(f"s_bitcmp1_b32 s{sWAVE}, 0\ns_cbranch_scc1 L_AC_nodump")
    for j in range(5):
        a(f"ds_write_b64 v{vEXW}, {vr(KP(2) + 2*j, 2)} offset:{512*j}")
        a(f"ds_write_b64 v{vEXW}, {vr(VP(j, 2), 2)} offset:{512*(5+j)}")
    a("L_AC_nodump:")
    weave([], pack_kv(0) + pack_q(1))
    a("s_waitcnt lgkmcnt(0)\ns_barrier")
    for j in range(5):
        a(f"ds_read_b64 {vr(KP(0) + 2*j, 2)}, v{vEXR} offset:{512*j}")
        a(f"ds_read_b64 {vr(VP(j, 0), 2)}, v{vEXR} offset:{512*(5+j)}")
    SC = lambda rt, h: (224 if rt else 184) + 8 * h
    MX = lambda rt: [76 + 4 * rt + h for h in range(4)]
    PT = lambda rt, h: 144 + 16 * rt + 4 * h
    def qk(rt):
        o = []
        for h in range(4):
            o += [mf(SC(rt, h), KP(1+rt) + 2*h, QT(rt, h), MC), mf(SC(rt, h) + 4, KP(rt) + 2*h, QT(rt, h), MP if rt else MPF)]
        return o
    def rowmax(rt):
        o = []
        for h in range(4):
            s = SC(rt, h); m = MX(rt)[h]
            o += [f"v_max_f32 v{s+r}, v{s+r}, v{s+4+r}" for r in range(4)]
            o += [f"v_max3_f32 v{m}, v{s}, v{s+1}, v{s+2}", f"v_max_f32 v{m}, v{m}, v{s+3}"]
        return o
    def xmax(rt):
        m = MX(rt)
        return [f"v_permlane32_swap_b32 v{m[0]}, v{m[1]}", f"v_permlane32_swap_b32 v{m[2]}, v{m[3]}",
                f"v_max_f32 v{m[0]}, v{m[0]}, v{m[1]}", f"v_max_f32 v{m[2]}, v{m[2]}, v{m[3]}",
                f"v_permlane16_swap_b32 v{m[0]}, v{m[2]}", f"v_max_f32 v{m[0]}, v{m[0]}, v{m[2]}",
                f"v_mul_f32 v{m[0]}, s{sT2}, v{m[0]}", f"v_mov_b32 v{m[2]}, v{m[0]}",
                f"v_permlane16_swap_b32 v{m[0]}, v{m[2]}", f"v_mov_b32 v{m[1]}, v{m[0]}", f"v_mov_b32 v{m[3]}, v{m[2]}",
                f"v_permlane32_swap_b32 v{m[0]}, v{m[1]}", f"v_permlane32_swap_b32 v{m[2]}, v{m[3]}"]
    def probs(rt):
        o = []
        for h in range(4):
            s = SC(rt, h); p = PT(rt, h)
            o += [f"v_fma_f32 v{s+r}, v{s+r}, s{sT}, v{MX(rt)[h]}" for r in range(4)]
            o += [f"v_exp_f32 v{s+r}, v{s+r}" for r in range(4)]
            if h:
                o += split(rt, h - 1)
        return o + split(rt, 3)
    def split(rt, h):
        s = SC(rt, h); p = PT(rt, h); o = []
        for q in range(2):
            o += [cv(p + q, s + 2*q), f"v_and_b32 v{p+2+q}, v{p+q}, v{PM+q}", f"v_xor_b32 v{p+q}, v{p+q}, v{p+2+q}"]
        return o
    OB = lambda rt, t: (224 if rt else 184) + 4 * t
    OA = lambda rt, t: (224 if rt else 184) + 12 + 4 * t
    SM = lambda rt, h: 88 + 16 * rt + 4 * h
    OF = lambda rt: 18 + 10 * rt
    def pv(rt):
        o = [mf(SM(rt, h), ONE, PT(rt, h), "0") for h in range(4)]
        for t in range(5):
            if t < 4: o.append(mf(OB(rt, t), VP(t, rt), PT(rt, t), "0"))
            if t > 0: o.append(mf(OA(rt, t), VP(t, rt), PT(rt, t-1), "0"))
        return o
    def finish(rt):
        o = [f"v_rcp_f32 v{SM(rt,h)}, v{SM(rt,h)}" for h in range(4)]
        for t in range(5):
            for q in range(2):
                d = OF(rt) + 2*t + q
                srcs = []
                if t < 4: srcs.append((OB(rt, t) + 2*q, SM(rt, t), d))
                if t == 4: srcs.append((OA(rt, t) + 2*q, SM(rt, 3), d))
                if (t, q) in SPLITS: srcs.append((OA(rt, t) + 2*q, SM(rt, t-1), 17))
                for x, inv, dd in srcs:
                    o += [f"v_mul_f32 v{x}, v{x}, v{inv}", f"v_mul_f32 v{x+1}, v{x+1}, v{inv}", cv(dd, x)]
                if (t, q) in SPLITS:
                    m = SPLITS[(t, q)]
                    o.append(f"v_cndmask_b32 v{d}, v{d}, v17, s[{m}:{m+1}]")
        return o
    a(f"s_mov_b32 s{sT}, {f32(CSC)}\ns_mov_b32 s{sT2}, {f32(-CSC)}")
    weave(qk(1), pack_q(0) + [f"v_mov_b32 v{ONE+j}, 0x3f803f80" for j in range(4)])
    a("s_waitcnt lgkmcnt(0)")
    weave(qk(0), rowmax(1))
    x1, x0 = xmax(1), xmax(0)
    r0 = rowmax(0)
    for i, x in enumerate(x1):
        a(x)
        for y in r0[2*i:2*i+2]: a(y)
    p1 = probs(1)
    for i, x in enumerate(x0):
        a(x)
        for y in p1[2*i:2*i+2]: a(y)
    weave([], p1[2*len(x0):])
    weave(pv(1), probs(0))
    weave(pv(0), finish(1))
    o_store(OF(1), vOF, vOL, 1)
    weave([], finish(0))
    o_store(OF(0), vOF, vOL, 0)
    stamp()
    a("s_branch L_P2")

def phi(r, n, t):
    o = [f"v_pk_fma_f32 {vr(t+j,2)}, {vr(r+j,2)}, s[56:57], v[14:15]" for j in range(0, n, 2)]
    for j in range(n):
        o += [f"v_exp_f32 v{t+j}, v{t+j} clamp", f"v_max_f32 v{r+j}, s{sT2}, v{r+j}"]
    return o + [f"v_pk_add_f32 {vr(r+j,2)}, {vr(r+j,2)}, {vr(t+j,2)}" for j in range(0, n, 2)]

def b_consumer():
    acc = lambda t, rt: 184 + (t * 2 + rt) * 4
    wf = lambda t: 148 + 4 * t
    xf = lambda ks, rt: 52 + ks * 8 + rt * 4 if ks < 12 else 36 + (ks % 2) * 8 + rt * 4
    R8, R2, aX = 1, 5, 6
    vOF, vOL, vEX = 8, 9, 10
    CK, CS = 28, 32
    a("L_BC:\ns_waitcnt lgkmcnt(0)")
    gap_touch("BC", 2)
    srds_rest()
    init_stores("BC", True)
    rd_lanes(R8, R2, 17, 18); x_lane(aX, aX + 1, 17)
    a(f"""
s_lshl_b32 s{sT}, s{sWAVE}, 12
s_add_u32 s{sT}, s{sT}, {B_X0}
v_add_u32 v{aX}, s{sT}, v{aX}
v_add_u32 v{aX+1}, s{sT}, v{aX+1}
v_and_b32 v17, 15, v0
v_cmp_gt_u32 vcc, 8, v17
v_mov_b32 v18, {EPS}
s_mov_b64 s[42:43], vcc
s_mul_i32 s{sT}, s{sWAVE}, 10240
s_add_u32 s{sT}, s{sT}, {B_EX}
v_lshl_add_u32 v{vEX}, v0, 4, s{sT}
v_mov_b32 v14, {f32(-1e-6*LOG2E)}
v_mov_b32 v15, v14
s_mov_b32 s56, {f32(LOG2E)}
s_mov_b32 s57, s56
""")
    for r in range(4):
        a(f"v_mov_b32 v{CK+r}, v18\nv_cndmask_b32 v{CS+r}, 0, v18, vcc")
    o_store_addr(vOF, vOL, 17, False)

    def wreads(ks, t):
        o = (ks % 5) * B_KVSLOT
        if t == 4:
            return [tr(wf(t), R2, o + 8192), tr(wf(t) + 2, R2, o + 8192 + 256)]
        s, j = (0, t) if t < 4 else (1, t - 5)
        return [tr(wf(t), R8 + j, o + 4096*s), tr(wf(t) + 2, R8 + j, o + 4096*s + 1024)]
    xread = lambda ks, rt: f"ds_read_b128 {vr(xf(ks, rt),4)}, v{aX + ks % 2} offset:{(ks//2 % 3)*B_XSLOT + rt*2048}"

    stamp()
    a("s_barrier")
    stamp()
    a(xread(0, 0)); a(xread(0, 1))
    for t in range(9):
        for x in wreads(0, t): a(x)
    for ks in range(18):
        if ks < 17:
            a("s_barrier")
        if ks == 3:
            init_flags("BC")
        tiles = [[mf(acc(t, rt), xf(ks, rt), wf(t), acc(t, rt) if ks else (CK if t < 4 else CS if t == 4 else "0")) for rt in range(2)] for t in range(9)]
        if ks < 17:
            nxt = [wreads(ks + 1, t) for t in range(9)]
            nxt[1] = [nxt[1][0], nxt[1][1] + "\n" + xread(ks + 1, 1)]
            kstep(tiles, nxt, [xread(ks + 1, 0)], {0: "s_waitcnt lgkmcnt(12)", 3: "s_waitcnt lgkmcnt(13)", 6: "s_waitcnt lgkmcnt(13)", 8: "s_waitcnt lgkmcnt(11)"})
        else:
            kstep(tiles, None, [], {0: "s_waitcnt lgkmcnt(12)", 3: "s_waitcnt lgkmcnt(0)\ns_barrier"})
    stamp()
    a(f"s_mov_b32 s{sT2}, {EPS}\nv_mov_b32 v16, 0x3f803f80")
    wr = lambda reg, slot: f"ds_write_b128 v{vEX}, {vr(reg,4)} offset:{1024*slot}"
    pk = lambda d, s: [cv(d + j, s + 2*j) for j in range(4)]
    weave([], pk(156, acc(4, 0)) + [f"v_cndmask_b32 v{156+j}, v{156+j}, v16, s[42:43]" for j in range(4)] + [wr(156, 9)])
    xq = lambda ks, rt: 168 + (ks - 12) * 8 + rt * 4 if ks in (12, 13) else acc(2 * (ks - 14) + rt, 1) if ks in (14, 15) else xf(ks, rt)
    reread = lambda ks, rt: f"ds_read_b128 {vr(xq(ks, rt),4)}, v{aX + ks % 2} offset:{(ks//2 % 3)*B_XSLOT + rt*2048}"
    weave([], [reread(ks, rt) for ks in (12, 13) for rt in range(2)])
    for tau in range(5):
        o = phi(acc(tau, 0), 8, 148)
        if tau < 4:
            o = pk(acc(5+tau, 0), acc(5+tau, 0)) + o[:8] + [wr(acc(5+tau, 0), 5 + tau)] + o[8:]
        weave([], o + pk(acc(tau, 0), acc(tau, 0)) + [wr(acc(tau, 0), tau)])
        if tau < 4:
            a(reread(14 + tau // 2, tau % 2))
    for j in range(5):
        a(f"v_add_u32 v{R8+j}, {B_WQ0}, v{R8+j}")
    a("s_waitcnt lgkmcnt(0)\ns_barrier")
    stamp()
    QA = lambda t, rt: 216 + (t * 2 + rt) * 4
    qf = lambda t: 148 + 4 * t
    qbase = lambda p: B_WQ0 if p < 4 else 0 if p < 7 else 15360
    def qreads(p, t):
        o = wq_slot(p) - qbase(p)
        if t == 4:
            return [tr(qf(t), R2, o + 4096), tr(qf(t) + 2, R2, o + 4096 + 256)]
        return [tr(qf(t), R8 + t, o), tr(qf(t) + 2, R8 + t, o + 1024)]
    for t in range(5):
        for x in qreads(0, t): a(x)
    for p in range(18):
        ks = QORD[p]
        if p == 7 or (p == 13 and OPT.get('wob', 0)):
            a("s_barrier")
        tiles = [[mf(QA(t, rt), qf(t), xq(ks, rt), QA(t, rt) if p else CK) for rt in range(2)] for t in range(5)]
        if p < 17:
            nxt = [qreads(p + 1, t) for t in range(5)]
            if qbase(p + 1) != qbase(p):
                d = (qbase(p + 1) - qbase(p)) & 0xffffffff
                for t in range(5):
                    nxt[t][0] = f"v_add_u32 v{R8+t}, {d}, v{R8+t}\n" + nxt[t][0]
            kstep(tiles, nxt, [], {t: f"s_waitcnt lgkmcnt({7 if t else 8})" for t in range(5)})
        else:
            kstep(tiles, None, [], {t: f"s_waitcnt lgkmcnt({8 - 2*t})" for t in range(5)})
    stamp()
    PQ = lambda rt: 36 + 10 * rt
    KO = 84
    tup = {0: KO, 1: KO + 4, 2: KO + 12, 3: KO + 20, 4: KO + 28}
    ZO = KO + 32
    weave([], [f"v_mov_b32 v{r}, 0" for r in (tup[1]+4, tup[1]+5, tup[2]+4, tup[2]+5, tup[3]+4, tup[3]+5, ZO+8, ZO+9)])
    a(f"v_lshlrev_b32 v16, 3, v0\nv_add_u32 v16, {B_KVOP}, v16")
    for t in range(5):
        weave([], phi(QA(t, 0), 8, 148) + [cv(PQ(rt) + 2*t + q, QA(t, rt) + 2*q) for rt in range(2) for q in range(2)])
    stamp()
    a("s_barrier")
    stamp()
    tid = lambda tau, taup: {-1: tau - 1, 0: 4 + tau, 1: 9 + tau}[taup - tau]
    rd = lambda d, slot: a(f"ds_read_b64 {vr(d,2)}, v16 offset:{512*slot}")
    for j, d in enumerate((ZO, ZO + 2, ZO + 4, ZO + 6, ZO + 10)):
        rd(d, 13 + j)
    rd(tup[0], tid(0, 0)); rd(tup[0] + 2, tid(1, 0))
    for t in (1, 2, 3):
        rd(tup[t], tid(t-1, t)); rd(tup[t] + 2, tid(t, t)); rd(tup[t] + 6, tid(t+1, t))
    rd(tup[4], tid(3, 4)); rd(tup[4] + 2, tid(4, 4))
    DN = lambda rt: 148 + 4 * rt
    NM = lambda rt, t: 184 + 20 * rt + 4 * t
    OF = lambda rt: 156 + 10 * rt
    a("s_waitcnt lgkmcnt(13)")
    for k, (zo, po) in enumerate(((0, 0), (4, 4), (8, 6))):
        for rt in range(2):
            a(mf(DN(rt), ZO + zo, PQ(rt) + po, DN(rt) if k else CK))
    a("s_waitcnt lgkmcnt(0)")
    def num(rt):
        o = [mf(NM(rt, t), tup[t], PQ(rt) + 2*(t-1), "0") for t in (1, 2, 3)]
        o += [mf(NM(rt, 0), tup[0], PQ(rt), "0"), mf(NM(rt, 4), tup[4], PQ(rt) + 6, "0")]
        return o + [mf(NM(rt, t), tup[t] + 4, PQ(rt) + 2*t, NM(rt, t)) for t in (1, 2, 3)]
    def fin(rt, packed):
        o = []
        for t in (0, 4, 1, 2, 3):
            for q in range(2):
                inv = DN(rt) + min(t, 3)
                if (t, q) in SPLITS:
                    m = SPLITS[(t, q)]
                    o.append(f"v_cndmask_b32 v17, v{DN(rt)+t}, v{DN(rt)+t-1}, s[{m}:{m+1}]")
                    inv = 17
                n = NM(rt, t) + 2*q
                o += [f"v_mul_f32 v{n}, v{n}, v{inv}", f"v_mul_f32 v{n+1}, v{n+1}, v{inv}", cv(OF(rt) + 2*t + q, n)]
        return o
    weave(num(0), [], 0)
    weave(num(1), [f"v_rcp_f32 v{DN(rt)+h}, v{DN(rt)+h}" for rt in range(2) for h in range(4)], 1)
    for rt in range(2):
        weave([], fin(rt, True))
        o_store(OF(rt), vOF, vOL, rt)
    stamp()

def kv_index(wreg, VS, VG, VZ):
    a(f"s_cmp_eq_u32 s{wreg}, 0\ns_cselect_b32 s58, 4, s{wreg}")
    for slot in range(3):
        if slot == 0:
            a(f"s_lshl_b32 s{sT}, s58, 4\ns_sub_u32 s{sT2}, s{sT}, 16\ns_mov_b64 s[46:47], 0")
        elif slot == 1:
            a(f"s_lshl_b32 s{sT}, s{wreg}, 4\ns_mov_b32 s{sT2}, s{sT}")
        else:
            a(f"s_add_u32 s{sT2}, s{sT}, 16\ns_cmp_eq_u32 s{wreg}, 3\ns_cselect_b32 s{sT2}, 56, s{sT2}\ns_cselect_b64 s[46:47], s[44:45], 0")
        kv_tile(VS and VS + 2*slot, VG and VG + 2*slot, False)
    if VZ:
        kv_z(VZ)

def kv_tile(VS, VG, last):
    a(f"v_add_u32 v3, s{sT2}, v1")
    head_of(4, 3)
    a(f"v_mul_u32_u24 v5, 18, v4\nv_sub_u32 v3, v3, v5\nv_cndmask_b32 v4, v4, 7, s[46:47]")
    if last:
        a("v_cmp_eq_u32 vcc, 0, v1\nv_cndmask_b32 v4, v4, 3, vcc\nv_cndmask_b32 v3, v3, 18, vcc")
    for q in range(2):
        a(f"v_add3_u32 v5, v2, s{sT}, {2*q}")
        head_of(6, 5)
        a("v_cmp_eq_u32 vcc, v4, v6\nv_mad_u32_u24 v5, v5, 19, v3\nv_lshlrev_b32 v5, 2, v5")
        if VS:
            a(f"v_add_u32 v6, {B_STG}, v5\nv_cndmask_b32 v{VS+q}, v8, v6, vcc")
        if VG:
            a(f"v_add_u32 v6, s{sM}, v5\nv_cndmask_b32 v{VG+q}, v9, v6, vcc")

def kv_z(VZ):
    a("v_and_b32 v3, 3, v0")
    for q in range(2):
        a(f"v_add3_u32 v5, v2, s{sT}, {2*q}")
        head_of(6, 5)
        a(f"v_cmp_eq_u32 vcc, v3, v6\nv_mul_u32_u24 v5, 76, v5\nv_add3_u32 v5, v5, s{sM}, 64\nv_add_u32 v5, 8, v5\nv_cndmask_b32 v{VZ+q}, v9, v5, vcc")

def b_loader(kind):
    a(f"L_B{kind}1:")
    m = M0(42)
    issue = (lambda c: w_issue("B", c, m)) if kind == "W" else (lambda c: x_issue("B", c, m))
    pre = 1 if OPT.get("early") and kind == "W" else 2
    cnt = {c: issue(c) for c in range(1, pre + 1)}
    stamp()
    mark = len(a.lines)
    VS, VG, vZS, vEA, vE0, vEL, vLA, vGA, vLW = 72, 80, 98, 99, 100, 101, 102, 103, 105
    if kind == "W":
        a(f"v_subrev_u32 v{VD+5}, 1152, v{VD}\nv_subrev_u32 v{VD+6}, 1152, v{VD+1}")
    srds_rest()
    if kind == "W":
        wo_setup(False)
    else:
        sync_setup()
    a(f"""
s_add_u32 s55, s{sV}, 2
s_mul_i32 s{sM}, s{sHG}, {KV_ST}
s_add_u32 s{sM}, s{sM}, {WS_KV}
v_and_b32 v1, 15, v0
v_lshrrev_b32 v2, 4, v0
v_lshlrev_b32 v2, 2, v2
v_cmp_gt_u32 s[44:45], 8, v1
v_lshlrev_b32 v8, 2, v0
v_add_u32 v8, {B_DUMP}, v8
v_mov_b32 v9, {OOB}
""")
    own = sV if kind == "X" else 55
    if kind == "X":
        kv_index(55, None, VG, VG + 6)
        a(f"s_movk_i32 s{sT}, 64")
        kv_z(10)
    kv_index(own, VS, VG + 8 if kind == "X" else None, VG + 14 if kind == "X" else None)
    a(f"""
v_add_u32 v5, s{sT}, v0
v_mul_u32_u24 v5, 76, v5
v_add_u32 v5, {B_STG + 72}, v5
v_cndmask_b32 v{vZS}, v8, v5, s[{sG0}:{sG0+1}]
v_lshlrev_b32 v{vEL}, 4, v0
v_add_u32 v{vEL}, {B_EX}, v{vEL}
s_lshl_b32 s{sT}, s{own}, 10
v_add_u32 v{vEA}, s{sT}, v{vEL}
s_lshl_b32 s{sT}, s58, 10
v_add_u32 v{vE0}, s{sT}, v{vEL}
""")
    if kind == "X":
        a(f"s_movk_i32 s{sT}, 64\ns_movk_i32 s{sT2}, 56\ns_mov_b64 s[46:47], s[44:45]")
        kv_tile(VS + 6, VG + 16, True)
        a(f"s_cmp_eq_u32 s{sV}, 0\ns_cselect_b64 s[46:47], -1, 0")
        for q in range(2):
            a(f"v_cndmask_b32 v{VS+6+q}, v8, v{VS+6+q}, s[46:47]\nv_cndmask_b32 v{VG+16+q}, v{10+q}, v{VG+16+q}, s[46:47]")
        a(f"""
v_lshlrev_b32 v5, 3, v0
v_add_u32 v5, {B_KVOP}, v5
s_lshl_b32 s{sT2}, s58, 9
s_sub_u32 s{sT2}, s{sT2}, 512
v_add_u32 v{vLW+2}, s{sT2}, v5
s_lshl_b32 s{sT2}, s{sV}, 9
v_add_u32 v{vLW+1}, s{sT2}, v5
v_add_u32 v{vLW}, 1024, v{vLW+1}
s_mul_i32 s{sT2}, s{sV}, {9*512}
v_add_u32 v{vLW+3}, s{sT2}, v5
s_mul_i32 s{sT}, s{sV}, 2816
v_lshl_add_u32 v{vLA}, v0, 2, s{sT}
v_add_u32 v{vGA}, s{sM}, v{vLA}
v_cmp_gt_u32 vcc, {5472 - 2560}, v{vLA}
v_cndmask_b32 v{vGA+1}, v9, v{vGA}, vcc
v_add_u32 v{vLA}, {B_STG}, v{vLA}
v_mov_b32 v4, 0
""")
    a(f"v_mov_b32 v10, {B_LCNT}\nv_mov_b32 v11, 1")
    if kind == "X":
        a("ds_write_b32 v10, v4\ns_waitcnt lgkmcnt(0)")
    setup = a.lines[mark:]
    del a.lines[mark:]
    per = -(-len(setup) // 9)
    a(f"s_waitcnt vmcnt({sum(cnt.values())})\ns_barrier")
    stamp()
    extra = 0
    for i in range(-1, 16):
        if i == -1 and pre == 1:
            cnt[2] = issue(2)
        if i + 4 <= 17:
            cnt[i+4] = issue(i + 4)
        if 0 <= i < 9:
            a("s_cmp_eq_u32 s59, 1")
            a.lines += setup[per*i:per*(i+1)]
            a("s_cselect_b32 s59, 1, 0")
        if i == 10 and kind == "X":
            flag_load(sFO, 98); flag_load(sFK, 99)
        if kind == "W" and i >= 14:
            extra += wq_issue(2*(i-14), m) + wq_issue(2*(i-14) + 1, m)
        left = sum(cnt.get(c, 0) for c in range(i + 3, min(i + 4, 17) + 1)) + extra
        a(f"s_waitcnt vmcnt({left})\ns_barrier")
    a("s_barrier")
    if kind == "W":
        for p in (4, 5, 6, 7, 13, 14, 15, 16, 17):
            wq_issue(p, m)
        a("s_waitcnt vmcnt(15)")
    else:
        flag_check(sFK, 99, "L_BX_fk")
    stamp()
    a("s_barrier")
    stamp()
    if kind == "W":
        for p in range(8, 13):
            wq_issue(p, m)
    KT = lambda s: 40 + 4 * s
    RD = lambda src, j: 112 + 28 * src + 4 * j
    srcs = ((vEA, 0), (vE0, 0), (vE0, 4096), (vEA, 5120), (vEA, 6144), (vEL, 9216), (vEL, 4096))
    prods = ((1, 2), (0, 3), (0, 4), (6, 5), (5, 0))
    if kind == "W":
        srcs = ((vEA, 0), None, (vE0, 4096), (vEA, 5120), (vEA, 6144), (vEL, 9216))
        prods = ((0, 2), (0, 3), (0, 4), None, (5, 0))
    nr = sum(x is not None for x in srcs)
    for src in range(4):
        for j, x in enumerate(srcs):
            if x: a(f"ds_read_b128 {vr(RD(src, j),4)}, v{x[0]} offset:{src*10240 + x[1]}")
    for src in range(4):
        a(f"s_waitcnt lgkmcnt({min(15, nr*(3-src))})")
        for s_, x in enumerate(prods):
            if x: a(mf(KT(s_), RD(src, x[0]), RD(src, x[1]), KT(s_) if src else "0"))
    for s_ in range(4 if kind == "X" else 3):
        for r in range(4):
            a(f"ds_write_b32 v{VS + 2*s_ + r//2}, v{KT(s_)+r} offset:{76*(r%2)}")
    a(f"ds_write_b32 v{vZS}, v{KT(4)}")
    a("s_waitcnt lgkmcnt(0)\ns_mov_b64 exec, 1\nds_add_u32 v10, v11\ns_mov_b64 exec, -1")
    stamp()
    b1, b2, b3 = {0: ((0, 1, 2, 3, 4, 5), (), (6, 7, 8)), 1: ((0, 1, 2), (3, 4, 5, 6, 7, 8), ()), 2: ((0, 1, 2), (3, 4, 5), (6, 7, 8))}[OPT.get("wob", 0)]
    if kind == "W":
        a("s_waitcnt vmcnt(0)\ns_barrier")
        for g in b1: wo_pair(g)
        if b2:
            a("s_barrier")
            for g in b2: wo_pair(g)
        stamp()
        a("s_barrier")
        loader_tail("BW", b3)
        return
    a(f"""
s_mov_b32 s{sT3}, 0x400000
L_BX_st:
ds_read_b32 v2, v10
s_waitcnt lgkmcnt(0)
v_readfirstlane_b32 s{sT}, v2
s_sub_u32 s{sT3}, s{sT3}, 1
s_cbranch_scc1 L_BX_st_x
s_cmp_ge_u32 s{sT}, 4
s_cbranch_scc0 L_BX_st
L_BX_st_x:
""")
    for n in range(11):
        a(f"ds_read_b32 v{40+n}, v{vLA} offset:{256*n}")
    for n in range(11):
        a(f"s_waitcnt lgkmcnt({10-n})")
        a(f"buffer_atomic_add_f32 v{40+n}, v{vGA + (n == 10)}, s[{SWS}:{SWS+3}], 0 offen offset:{256*n}")
    stamp()
    a("s_barrier")
    if b2:
        a("s_barrier")
    a("s_waitcnt vmcnt(0)")
    stamp()
    arrive_wait(sKC, 32, "L_BX_kc")
    stamp()
    for s_ in range(9):
        for r in range(4):
            a(f"buffer_load_dword v{112+4*s_+r}, v{VG + 2*s_ + r//2}, s[{SWS}:{SWS+3}], 0 offen offset:{76*(r%2)} sc1")
    dst = ((vLW, -1), (vLW, 4), (vLW, 9), (vLW, 13), (vLW + 2, 0), (vLW + 1, 4), (vLW + 1, 9), (vLW + 1, 13), (vLW + 3, 8))
    a(f"v_subrev_u32 v11, 512, v{vLW}")
    for s_, (ad, off) in enumerate(dst):
        a(f"s_waitcnt vmcnt({4*(8-s_)})")
        a(cv(40 + 2*s_, 112 + 4*s_)); a(cv(41 + 2*s_, 114 + 4*s_))
        a(f"ds_write_b64 v{11 if off < 0 else ad}, {vr(40+2*s_,2)} offset:{512*max(off, 0)}")
    a("s_waitcnt lgkmcnt(0)")
    stamp()
    a("s_barrier")
    loader_tail("BX")

def p2_consumer():
    OFR = lambda ks, rt: 112 + ks * 8 + rt * 4
    ACC = lambda t, rt: 72 + (t * 2 + rt) * 4
    wf = lambda t: 52 + 4 * t
    R8, R2, vO, vTW, vTR, VS = 1, 5, 6, 7, 8, 9
    AH = OPT["ahead"]
    a("L_P2:")
    nstamp[0] = 10
    rd_lanes(R8, R2, 17, 18)
    for j in range(5):
        a(f"v_add_u32 v{R8+j}, {R1}, v{R8+j}")
    a(f"""
v_lshl_add_u32 v{vO}, v0, 4, s58
s_mul_i32 s{sT}, s{sWAVE}, 4608
s_add_u32 s{sT}, s{sT}, {P_TR}
v_and_b32 v17, 15, v0
v_mul_u32_u24 v17, 144, v17
v_lshrrev_b32 v18, 4, v0
v_lshl_add_u32 v17, v18, 3, v17
v_add_u32 v{vTW}, s{sT}, v17
v_lshl_add_u32 v{vTR}, v0, 4, s{sT}
s_lshr_b32 s{sT}, s{sWAVE}, 1
s_and_b32 s{sT2}, s{sWAVE}, 1
s_lshl_b32 s{sT2}, s{sT2}, 5
s_lshl_b32 s{sT3}, s{sWAVE}, 5
s_cmp_eq_u32 s{sBR}, 0
s_cselect_b32 s42, s{sT}, 0
s_cselect_b32 s43, s{sT2}, s{sT3}
s_cselect_b32 s55, 1, 0
s_lshl_b32 s56, s42, 3
s_lshl_b32 s{sT}, s{sRB}, 7
s_add_u32 s42, s42, s{sT}
s_mul_i32 s{sT}, s{sBR}, 1152
s_mul_i32 s{sT2}, s{sHG}, 144
s_add_u32 s57, s{sT}, s{sT2}
""")
    for n in range(5):
        a(f"""
v_add_u32 v17, {64*n}, v0
v_mul_u32_u24 v18, 7282, v17
v_lshrrev_b32 v18, 16, v18
v_mul_u32_u24 v19, 9, v18
v_sub_u32 v19, v17, v19
v_add_u32 v18, s43, v18
v_xor_b32 v18, s56, v18
v_lshlrev_b32 v18, s55, v18
v_add_u32 v18, s42, v18
v_mul_u32_u24 v18, 2304, v18
v_lshl_add_u32 v18, v19, 4, v18
v_add_u32 v{VS+n}, s57, v18
""")
    a(f"v_mov_b32 v17, {OOB}\nv_cndmask_b32 v{VS+4}, v17, v{VS+4}, s[{sG01}:{sG01+1}]")
    a(f"v_add_u32 v14, 18432, v{vO}")
    SO = [8, 9, 10, 11, 12, 13, 14, 15, 36]
    rho(37)
    a(f"s_movk_i32 s{SO[0]}, 16384")
    for j in range(1, 9):
        a(f"s_add_u32 s{sT}, s37, {2*j-2}\ns_and_b32 s{sT}, s{sT}, 15\ns_lshl_b32 s{SO[j]}, s{sT}, 10")
    a("s_waitcnt vmcnt(0)")
    stamp()
    a("s_barrier\ns_barrier")
    stamp()
    def oload(ks, rt):
        return f"buffer_load_dwordx4 {vr(OFR(ks, rt),4)}, v{14 if rt else vO}, s[{SWS}:{SWS+3}], s{SO[ks//2]} offen offset:{1024*(ks%2)} sc1"
    base = lambda ks: R1 if ks < 3 else 0 if 9 <= ks < 12 else R2_
    R2_ = 43008
    def wreads(ks, t):
        o = WO[ks] - base(ks)
        if t == 4:
            return [tr(wf(t), R2, o + 4096), tr(wf(t) + 2, R2, o + 4096 + 256)]
        return [tr(wf(t), R8 + t, o), tr(wf(t) + 2, R8 + t, o + 1024)]
    for ks in range(AH):
        a(oload(ks, 0)); a(oload(ks, 1))
    for t in range(5):
        for x in wreads(0, t): a(x)
    for ks in range(18):
        tiles = [[mf(ACC(t, rt), wf(t), OFR(ks, rt), ACC(t, rt) if ks else "0") for rt in range(2)] for t in range(5)]
        w0 = f"s_waitcnt vmcnt({2*min(AH - 1, 17 - ks)}) lgkmcnt(8)"
        if ks < 17:
            nxt = [wreads(ks + 1, t) for t in range(5)]
            if base(ks + 1) != base(ks):
                d = (base(ks + 1) - base(ks)) & 0xffffffff
                for t in range(5):
                    nxt[t][0] = f"v_add_u32 v{R8+t}, {d}, v{R8+t}\n" + nxt[t][0]
            first = []
            if ks + AH < 18:
                first = [oload(ks + AH, 0)]
                nxt[1][1] += "\n" + oload(ks + AH, 1)
            kstep(tiles, nxt, first, {t: "s_waitcnt lgkmcnt(7)" if t else w0 for t in range(5)})
        else:
            kstep(tiles, None, [], {t: f"s_waitcnt lgkmcnt({8 - 2*t})" if t else w0 for t in range(5)})
        if ks == 0:
            stamp()
    stamp()
    for rt in range(2):
        for t in range(5):
            d = 20 + 2*(rt*5 + t)
            a(cv(d, ACC(t, rt))); a(cv(d + 1, ACC(t, rt) + 2))
            if t == 4:
                a(f"s_mov_b64 exec, s[{sG01}:{sG01+1}]")
            a(f"ds_write_b64 v{vTW}, {vr(d,2)} offset:{rt*2304 + 32*t}")
            if t == 4:
                a("s_mov_b64 exec, -1")
    a("s_waitcnt lgkmcnt(0)")
    for n in range(5):
        a(f"ds_read_b128 {vr(112+4*n,4)}, v{vTR} offset:{1024*n}")
    for n in range(5):
        a(f"s_waitcnt lgkmcnt({4-n})")
        a(f"buffer_store_dwordx4 {vr(112+4*n,4)}, v{VS+n}, s[{SOUT}:{SOUT+3}], 0 offen")
    stamp()
    stamps_out(True)
    a("s_endpgm")

HEADER = open("concat_heads__sliding_local_dilated__linear_attn_block__prompt.s.ref").read().split("; Override")[0]
out = HEADER + "; @launch grid=(256,1,1) block=(512,1,1) lds=163840\n"
a('.amdgcn_target "amdgcn-amd-amdhsa--gfx950"\n.text')
a(kernel_head(KN))
if OPT["stamps"]:
    for i in range(16):
        a(f"s_mov_b32 s{sST+2*i}, 0")
stamp()
a(f"""
s_cmp_ge_u32 s2, 256
s_cbranch_scc1 L_end
s_and_b32 s{sT}, s2, 7
s_lshr_b32 s{sBR}, s{sT}, 2
{'s_xor_b32 s6, s6, 1' if OPT.get('swap') else ''}
s_mul_i32 s{sT2}, s{sBR}, 24
s_add_u32 s0, s0, s{sT2}
s_addc_u32 s1, s1, 0
s_load_dwordx4 s[36:39], s[0:1], 0
s_load_dwordx2 s[40:41], s[0:1], 16
s_sub_u32 s0, s0, s{sT2}
s_subb_u32 s1, s1, 0
s_load_dwordx4 s[44:47], s[0:1], 48
s_load_dwordx2 s[48:49], s[0:1], 64
v_lshrrev_b32 v1, 6, v0
v_and_b32 v0, 63, v0
v_readfirstlane_b32 s{sWAVE}, v1
s_lshr_b32 s{sT2}, s2, 3
""")
m84 = f"""
s_and_b32 s{sHG}, s{sT2}, 3
s_and_b32 s{sT3}, s{sT}, 1
s_lshl_b32 s{sT3}, s{sT3}, 2
s_add_u32 s{sHG}, s{sHG}, s{sT3}
s_lshr_b32 s{sRB}, s{sT2}, 2
s_and_b32 s{sT3}, s{sT}, 2
s_lshl_b32 s{sT3}, s{sT3}, 2
s_add_u32 s{sRB}, s{sRB}, s{sT3}
"""
m48 = f"""
s_and_b32 s{sHG}, s{sT2}, 7
s_lshr_b32 s{sRB}, s{sT2}, 3
s_and_b32 s{sT3}, s{sT}, 3
s_lshl_b32 s{sT3}, s{sT3}, 2
s_add_u32 s{sRB}, s{sRB}, s{sT3}
"""
if OPT["mapping"] == 84:
    a(m84)
elif OPT["mapping"] == 48:
    a(m48)
else:
    a(m48 + f"s_cmp_eq_u32 s{sBR}, {0 if OPT['mapping'] == 8448 else 1}\ns_cbranch_scc0 L_map" + m84 + "L_map:")
rot = ""
if OPT.get("rot") == 2:
    rot = f"""s_lshr_b32 s90, s2, 1
s_xor_b32 s90, s90, s2
s_and_b32 s90, s90, 1
s_mul_i32 s91, s90, {OPT.get("rotby", 5)*128}
s_mul_i32 s90, s90, {OPT.get("rotby", 5)*64*3456}"""
elif OPT.get("rot") == 3:
    rot = f"""s_lshr_b32 s90, s2, 1
s_xor_b32 s90, s90, s2
s_and_b32 s90, s90, 1
s_mul_i32 s90, s90, 5
s_add_u32 s91, s{sRB}, s{sHG}
s_and_b32 s91, s91, 3
s_add_u32 s90, s90, s91
s_lshl_b32 s91, s90, 7
s_mul_i32 s90, s90, {64*3456}"""
elif OPT.get("rot") == 7:
    rot = f"""s_and_b32 s90, s{sHG}, 3
s_and_b32 s91, s{sRB}, 7
s_lshl1_add_u32 s90, s90, s91
s_cmp_ge_u32 s90, 9
s_cselect_b32 s91, 9, 0
s_sub_u32 s90, s90, s91
s_lshl_b32 s91, s90, 7
s_mul_i32 s90, s90, {64*3456}"""
elif OPT.get("rot") in (4, 5, 6):
    tab = {4: 0x75207520, 5: 0x63006300, 6: 0x86427531}[OPT["rot"]]
    rot = f"""s_add_u32 s90, s{sRB}, s{sHG}
s_and_b32 s90, s90, 7
s_lshl_b32 s90, s90, 2
s_lshr_b32 s90, {hex(OPT.get("tab", tab))}, s90
s_and_b32 s90, s90, 15
s_lshl_b32 s91, s90, 7
s_mul_i32 s90, s90, {64*3456}"""
elif OPT.get("rot"):
    few, many = (sRB, sHG) if OPT["mapping"] == 48 else (sHG, sRB)
    rot = f"""s_and_b32 s90, s{few}, 3
s_lshl_b32 s90, s90, 2
s_lshr_b32 s90, 0x7520, s90
s_and_b32 s90, s90, 15
s_and_b32 s91, s{many}, 7
s_add_u32 s90, s90, s91
s_cmp_ge_u32 s90, 9
s_cselect_b32 s91, 9, 0
s_sub_u32 s90, s90, s91
s_lshl_b32 s91, s90, 7
s_mul_i32 s90, s90, {64*3456}"""
a(f"""
s_mov_b32 s{sG0}, 0xffff
s_mov_b32 s{sG0+1}, 0
s_mov_b32 s{sG01}, -1
s_mov_b32 s{sG01+1}, 0
s_and_b32 s{sV}, s{sWAVE}, 1
s_mul_i32 s{sM}, s{sHG}, 144
s_cmp_lt_u32 s{sWAVE}, 4
s_cbranch_scc1 L_cons
s_setprio {OPT.get("prio", 2)}
s_mov_b32 s59, 0
{rot}
s_cmp_lt_u32 s{sWAVE}, 6
s_cbranch_scc1 L_wld
s_cmp_eq_u32 s{sBR}, 0
s_cbranch_scc1 L_AX0
s_branch L_BX0
L_wld:
s_cmp_eq_u32 s{sBR}, 0
s_cbranch_scc1 L_AW0
s_branch L_BW0
L_cons:
s_getpc_b64 s[42:43]
L_pc:
s_lshl_b32 s{sT}, s{sT2}, 2
s_add_u32 s{sT}, s{sT}, s{sWAVE}
s_lshl_b32 s{sT}, s{sT}, 9
v_and_b32 v1, 3, v0
v_lshlrev_b32 v1, 7, v1
v_add_u32 v1, s{sT}, v1
v_min_u32 v1, L_last-L_pc, v1
global_load_dword v27, v1, s[42:43]
s_cmp_eq_u32 s{sBR}, 0
s_cbranch_scc1 L_AC
s_branch L_BC
L_end:
s_endpgm
""")
w_head("A"); w_head("B"); x_head("A"); x_head("B")
n0 = nstamp[0]
for fn in (lambda: a_loader("W"), lambda: a_loader("X"), a_consumer, lambda: b_loader("W"), lambda: b_loader("X"), b_consumer, p2_consumer):
    nstamp[0] = n0
    fn()
a("L_last:\ns_endpgm")
lines = []
for l in a.lines: lines += l.split("\n")
if OPT.get("noread"):
    lines = [l for l in lines if not l.startswith("ds_read_b64_tr")]
if OPT.get("nomfma"):
    lines = [l for l in lines if not l.startswith("v_mfma")]
lines, added = hz.fix(lines)
out += "\n".join(lines) + "\n"
out += '.section .rodata,"a"\n.p2align 6\n' + kernel_desc(KN, 256, 100, 256)
sys.stdout.write(out)
sys.stderr.write(f"nop states added: {added}\n")
```

```python
import sys, struct
from asmlib import *
import hz

OPT = dict(stamps=0, mapping=48, ahead=6, rot=4, nt=1)
for arg in sys.argv[1:]:
    k, v = arg.split("=")
    OPT[k] = int(v)
KN = "concat_heads__sliding_local_dilated__linear_attn_block__prompt_kernel"

def f32(x):
    return "0x%08x" % struct.unpack("<I", struct.pack("<f", x))[0]

LOG2E = 1.4426950408889634
CSC = 18 ** -0.5 * LOG2E
NEG = "0xf149f2ca"
EPS = f32(1e-6)
OOB = "0x80000000"

O_BR = 0x240000
WS_KV = 0x500000
KV_ST = 0x2000
WS_CNT = 0x540000
WS_STAMP = 0x600000
WS_SIZE = 0x700000

sWAVE, sHG, sRB, sBR, sT = 3, 4, 5, 6, 7
SX, SW, SWS, SDBG, SWO, SOUT = 8, 12, 16, 20, 24, 28
sG0, sG01 = 32, 34
sK, sV, sM, sT2, sT3 = 50, 51, 52, 53, 54
sST = 60

a = Asm()
nstamp = [0]

def stamp():
    if OPT["stamps"]:
        i = nstamp[0]; nstamp[0] += 1
        assert i < 15
        a(f"{'s_memrealtime' if OPT.get('rt') or OPT.get('probe') and not (OPT.get('cyc') and i) else 's_memtime'} s[{sST+2*i}:{sST+2*i+1}]")
        if OPT.get("cyc") and i == 0:
            a("s_memtime s[90:91]")

def stamps_out(last=False):
    if not OPT["stamps"]:
        return
    if OPT.get("probe"):
        if last:
            j = sST + 2 * OPT["probe"]
            if OPT.get("xcc"):
                a(f"""
s_waitcnt vmcnt(0) lgkmcnt(0)
v_and_b32 v1, 31, v0
v_lshlrev_b32 v1, {5 if OPT['xcc'] == 1 else 2}, v1
v_add_u32 v1, 0x6f0000, v1
buffer_load_dword v2, v1, s[{SWS}:{SWS+3}], 0 offen sc1
s_getreg_b32 s44, hwreg(HW_REG_XCC_ID, 0, 4)
s_waitcnt vmcnt(0)
v_cmp_eq_u32 vcc, s44, v2
s_bcnt1_i32_b32 s44, vcc_lo
s_mul_i32 s44, s44, 10
s_add_u32 s{j}, s{sST}, s44
""")
            a(f"""
s_waitcnt vmcnt(0) lgkmcnt(0)
s_cmp_eq_u32 s2, {OPT.get('wg', 0)}
s_cbranch_scc0 L_probe_x
s_cmp_eq_u32 s{sWAVE}, 0
s_cbranch_scc0 L_probe_x
s_sub_u32 s{sT}, s{j}, s{90 if OPT.get('cyc') else sST}
{'s_lshr_b32 s7, s7, 3' if OPT.get('cyc') else 's_mul_i32 s7, s7, 10'}
s_min_u32 s{sT}, s{sT}, 100000
s_add_u32 s{sT}, s{sT}, 6000
L_probe:
s_memrealtime s[44:45]
s_waitcnt lgkmcnt(0)
s_sub_u32 s44, s44, s{sST}
s_cmp_lt_u32 s44, s{sT}
s_cbranch_scc1 L_probe
L_probe_x:
""")
        return
    a("s_waitcnt vmcnt(0) lgkmcnt(0)")
    a(f"s_lshl_b32 s{sT}, s2, 3\ns_add_u32 s{sT}, s{sT}, s{sWAVE}\ns_lshl_b32 s{sT}, s{sT}, 6")
    a(f"s_add_u32 s{sT}, s{sT}, {WS_STAMP}\nv_mov_b32 v1, s{sT}")
    for i in range(16):
        a(f"v_mov_b32 v2, s{sST+2*i}")
        a(f"buffer_store_dword v2, v1, s[{SWS}:{SWS+3}], 0 offen offset:{4*i}")
    a("s_waitcnt vmcnt(0)")

def mf(d, s0, s1, c):
    cc = c if isinstance(c, str) else vr(c, 4)
    return f"v_mfma_f32_16x16x32_bf16 {vr(d,4)}, {vr(s0,4)}, {vr(s1,4)}, {cc}"
def cv(d, x):
    return f"v_cvt_pk_bf16_f32 v{d}, v{x}, v{x+1}"
def tr(d, addr, off):
    return f"ds_read_b64_tr_b16 {vr(d,2)}, v{addr} offset:{off}"
def weave(mfmas, others, per=2):
    o = list(others)
    for m in mfmas:
        a(m)
        for _ in range(per):
            if o: a(o.pop(0))
    for x in o: a(x)

def srd(dst, lo, nbytes):
    a(f"s_mov_b32 s{dst}, s{lo}\ns_mov_b32 s{dst+1}, s{lo+1}\ns_mov_b32 s{dst+2}, {nbytes}\ns_mov_b32 s{dst+3}, 0x20000")
def srds_rest():
    srd(SWO, 40, 663552); srd(SOUT, 44, 4718592); srd(SDBG, 46, 256); srd(SWS, 48, WS_SIZE)

class M0:
    def __init__(self, base): self.base = base; self.cur = None
    def set(self, imm):
        if self.cur is not None and -32768 <= imm - self.cur <= 32767:
            a(f"s_addk_i32 m0, {imm - self.cur}")
        else:
            a(f"s_add_u32 m0, s{self.base}, {imm}")
        self.cur = imm

CUR = [0]
def dma(voff, srd_, soff, half=False):
    if OPT.get("nodma") or (OPT.get("nos") and voff == VD + 6 and srd_ == SW and not half):
        return
    if half: a(f"s_mov_b64 exec, s[{sG01}:{sG01+1}]")
    nt = " nt" if OPT.get("nt", 0) >> {SX: 0, SW: 1, SWO: 2}[srd_] & 1 and CUR[0] < OPT.get("ntc", 99) else ""
    a(f"buffer_load_dwordx4 v{voff}, s[{srd_}:{srd_+3}], {soff} offen{nt} lds")
    if half: a("s_mov_b64 exec, -1")

def rd_lanes(r8, r2, t0, t1):
    a(f"""
v_lshrrev_b32 v{t0}, 5, v0
v_lshlrev_b32 v{t0}, 4, v{t0}
v_bfe_u32 v{t1}, v0, 4, 1
v_lshl_add_u32 v{t0}, v{t1}, 2, v{t0}
v_bfe_u32 v{t1}, v0, 2, 2
v_add_u32 v{t0}, v{t0}, v{t1}
v_and_b32 v{t1}, 3, v0
v_lshlrev_b32 v{t1}, 3, v{t1}
v_lshl_add_u32 v{r2}, v{t0}, 5, v{t1}
v_lshl_add_u32 v{r8}, v{t0}, 7, v{t1}
v_bfe_u32 v{t0}, v{t0}, 1, 2
v_lshl_add_u32 v{r8}, v{t0}, 5, v{r8}
""")
    for t in (1, 2, 3):
        a(f"v_xor_b32 v{r8+t}, {32*t}, v{r8}")

def x_lane(d0, d1, tmp):
    a(f"""
v_lshrrev_b32 v{d0}, 4, v0
v_bfe_u32 v{tmp}, v0, 1, 3
v_xor_b32 v{d0}, v{d0}, v{tmp}
v_and_b32 v{tmp}, 15, v0
v_lshlrev_b32 v{tmp}, 7, v{tmp}
v_lshl_add_u32 v{d0}, v{d0}, 4, v{tmp}
v_xor_b32 v{d1}, 64, v{d0}
""")

def col8(dst, tmp):
    a(f"v_bfe_u32 v{tmp}, v0, 4, 2\nv_lshlrev_b32 v{tmp}, 1, v{tmp}\nv_and_b32 v{dst}, 7, v0\nv_xor_b32 v{dst}, v{dst}, v{tmp}\nv_lshlrev_b32 v{dst}, 4, v{dst}")

def head_of(dst, src):
    a(f"v_mul_u32_u24 v{dst}, 57, v{src}\nv_lshrrev_b32 v{dst}, 10, v{dst}")

sOC, sKC, sFO, sFK = 92, 94, 96, 97

def arrive_wait(addr, target, label, arrive=True):
    if arrive:
        a(f"s_mov_b32 s{sT}, 1\ns_atomic_add s{sT}, s[{addr}:{addr+1}], 0 glc\ns_waitcnt lgkmcnt(0)\ns_cmp_ge_u32 s{sT}, {target-1}\ns_cbranch_scc1 {label}_x")
    a(f"""
s_mov_b32 s{sT3}, 0x20000
{label}:
s_mov_b32 s{sT}, 0
s_atomic_add s{sT}, s[{addr}:{addr+1}], 0 glc
s_waitcnt lgkmcnt(0)
s_sub_u32 s{sT3}, s{sT3}, 1
s_cbranch_scc1 {label}_x
s_cmp_ge_u32 s{sT}, {target}
s_cbranch_scc0 {label}
{label}_x:
""")

def flag_load(dst, offreg):
    a(f"s_load_dword s{dst}, s[{SDBG}:{SDBG+1}], s{offreg}")

def flag_check(val, offreg, label):
    a(f"""
s_mov_b32 s{sT3}, 0x20000
{label}:
s_waitcnt lgkmcnt(0)
s_cmp_lg_u32 s{val}, 0
s_cbranch_scc1 {label}_x
s_sub_u32 s{sT3}, s{sT3}, 1
s_cbranch_scc1 {label}_x
s_load_dword s{val}, s[{SDBG}:{SDBG+1}], s{offreg} glc
s_branch {label}
{label}_x:
""")

A_WSLOT, A_XSLOT = 14336, 18432
A_X0 = 5 * A_WSLOT
A_EX = A_X0 + 3 * A_XSLOT
B_KVSLOT, B_XSLOT = 9216, 16384
B_X0 = 5 * B_KVSLOT
B_EX = B_X0 + 3 * B_XSLOT
B_KVOP = 126976
B_STG = 136192
B_DUMP, B_LCNT = B_STG + 5632, B_STG + 6144
B_WQ0 = 143360
QORD = list(range(18))
def wq_slot(p):
    if p < 4: return B_WQ0 + 5120 * p
    if p < 7: return 5120 * (p - 4)
    if p < 13: return 40960 + 5120 * (p - 7)
    return 15360 + 5120 * (p - 13)
R1, R2 = 147456, 43008
WO = [R1, R1 + 5120, R1 + 10240] + [R2 + 5120 * n for n in range(6, 12)] + [0, 5120, 10240] + [R2 + 5120 * n for n in range(6)]
P_TR = 108544
SPLITS = {(1, 0): sG0, (2, 0): sG0, (2, 1): sG0, (3, 0): sG01, (3, 1): sG0}

VD = 16
VWO = 26
vCNT, vFLO, vFLK, vFO, vFK = 30, 31, 32, 33, 34

def w_head(kind):
    parts = (0, 1152, 2304) if kind == "A" else (1152, 2304)
    a(f"L_{kind}W0:")
    col8(VD, 1)
    a(f"""
v_bfe_u32 v1, v0, 5, 1
v_bfe_u32 v2, v0, 3, 2
v_lshl_add_u32 v1, v1, 3, v2
s_mul_i32 s{sT}, s{sV}, {16*3456}
s_add_u32 s{sT}, s{sT}, s{sM}
v_mul_u32_u24 v1, 3456, v1
v_add3_u32 v{VD}, v{VD}, v1, s{sT}
""")
    n = 2 * len(parts)
    for j in range(n - 1, -1, -1):
        off = parts[j // 2] + (j % 2) * 4 * 3456
        if off:
            a(f"v_add_u32 v{VD+j}, {off}, v{VD}")
    a(f"""
v_bfe_u32 v1, v0, 3, 1
v_bfe_u32 v2, v0, 4, 1
v_sub_u32 v1, v1, v2
v_lshrrev_b32 v2, 1, v0
v_lshl_add_u32 v1, v1, 2, v2
v_mul_u32_u24 v1, 3456, v1
v_and_b32 v2, 1, v0
""")
    if kind == "A":
        a(f"""
s_cmp_eq_u32 s{sV}, 0
s_cselect_b32 s{sT2}, 1152, 0
s_cselect_b32 s{sT}, 0, 2304
s_add_u32 s{sT}, s{sT}, s{sM}
s_addk_i32 s{sT}, 128
v_mad_u32_u24 v1, v2, s{sT2}, v1
v_add_u32 v{VD+6}, s{sT}, v1
""")
    else:
        a(f"""
s_add_u32 s{sT}, s{sT}, 128
v_add_u32 v{VD+7}, s{sT}, v1
v_mul_u32_u24 v2, 1152, v2
v_add_u32 v2, 1152, v2
v_add_u32 v{VD+4}, v2, v{VD+7}
""")
    a(f"s_lshl_b32 s42, s{sV}, 11\ns_lshl_b32 s43, s{sV}, {10 if kind == 'A' else 9}\ns_sub_u32 s43, s43, s42")
    a("s_waitcnt lgkmcnt(0)")
    srd(SW, 38, 1990656)
    m = M0(42)
    w_issue(kind, 0, m)
    a(f"s_branch L_{kind}W1")

def w_issue(kind, c, m):
    CUR[0] = c
    slot = (c % 5) * (A_WSLOT if kind == "A" else B_KVSLOT)
    n = 6 if kind == "A" else 4
    so = f"s{sK}" if c else "0"
    if OPT.get("rot"):
        so = "s90"
        if c:
            a(f"s_add_u32 s90, s90, {32*3456}\ns_cmp_eq_u32 s90, {18*32*3456}\ns_cselect_b32 s90, 0, s90")
    elif c:
        a(f"s_mov_b32 s{sK}, {c*32*3456}")
    for j in range(n):
        m.set(slot + 4096 * (j // 2) + 1024 * (j % 2))
        dma(VD + j, SW, so)
    m.set(slot + 4096 * (n // 2))
    a("s_add_u32 m0, m0, s43")
    m.cur = None
    dma(VD + n, SW, so, half=(kind == "B"))
    return n + 1

def wq_issue(p, m):
    if OPT.get("rot"):
        a(f"s_add_u32 s{sK}, s90, {(p+1)*32*3456}\ns_cmp_ge_u32 s{sK}, {18*32*3456}\ns_cselect_b32 s{sT}, {18*32*3456}, 0\ns_sub_u32 s{sK}, s{sK}, s{sT}")
    else:
        a(f"s_mov_b32 s{sK}, {QORD[p]*32*3456}")
    for j in range(2):
        m.set(wq_slot(p) + 1024 * j)
        dma(VD + 5 + j, SW, f"s{sK}")
    m.set(wq_slot(p) + 4096)
    a("s_add_u32 m0, m0, s43")
    m.cur = None
    dma(VD + 7, SW, f"s{sK}", half=True)
    return 3

def x_head(kind):
    nq = 9 if kind == "A" else 8
    a(f"L_{kind}X0:")
    a(f"""
v_lshrrev_b32 v1, 3, v0
v_mul_u32_u24 v1, {2304 if kind == 'A' else 1152}, v1
v_lshrrev_b32 v2, 4, v0
v_lshl_add_u32 v2, s{sV}, 2, v2
v_and_b32 v3, 7, v0
v_xor_b32 v2, v2, v3
v_lshl_add_u32 v1, v2, 4, v1
s_mul_i32 s{sT}, s{sRB}, {128*1152}
""")
    if kind == "A":
        a(f"""
s_mul_i32 s{sT2}, s{sV}, {16*1152}
s_add_u32 s{sT3}, s{sT}, s{sT2}
v_add_u32 v{VD}, s{sT3}, v1
s_sub_u32 s{sT3}, s{sT}, s{sT2}
s_add_u32 s{sT3}, s{sT3}, {17*1152}
v_add_u32 v{VD+4}, s{sT3}, v1
s_mul_i32 s{sT2}, s{sV}, 1152
s_sub_u32 s{sT3}, s{sT}, s{sT2}
s_sub_u32 s{sT3}, s{sT3}, {15*1152}
v_add_u32 v{VD+8}, s{sT3}, v1
""")
        for q in (1, 2, 3):
            a(f"v_add_u32 v{VD+q}, {32*1152*q}, v{VD}\nv_add_u32 v{VD+4+q}, {32*1152*q}, v{VD+4}")
    else:
        a(f"s_mul_i32 s{sT2}, s{sV}, {8*1152}\ns_add_u32 s{sT}, s{sT}, s{sT2}\nv_add_u32 v{VD}, s{sT}, v1")
        for q in range(1, 8):
            a(f"v_add_u32 v{VD+q}, {16*1152*q}, v{VD}")
    a(f"s_lshl_b32 s42, s{sV}, 10")
    a("s_waitcnt lgkmcnt(0)")
    srd(SX, 36, 2359296)
    x_issue(kind, 0, M0(42))
    a(f"s_branch L_{kind}X1")

def x_issue(kind, c, m):
    CUR[0] = c + (c & 1)
    nq, h, x0, xs = (9, 5, A_X0, A_XSLOT) if kind == "A" else (8, 4, B_X0, B_XSLOT)
    st = (c + 1) // 2
    if st > 8:
        return 0
    qs = range(nq) if c == 0 else (range(h) if c % 2 else range(h, nq))
    so = f"s{sK}" if st else "0"
    if OPT.get("rot"):
        so = "s91"
        if c % 2:
            a("s_addk_i32 s91, 128\ns_cmpk_eq_u32 s91, 1152\ns_cselect_b32 s91, 0, s91")
    elif st:
        a(f"s_movk_i32 s{sK}, {st*128}")
    for q in qs:
        m.set(x0 + (st % 3) * xs + 2048 * q)
        a("s_nop 0")
        dma(VD + q, SX, so)
    return len(qs)

def wo_setup(quad):
    col8(VWO, 1)
    a(f"""
s_mul_i32 s{sM}, s{sHG}, 144
v_add_u32 v{VWO}, s{sM}, v{VWO}
v_bfe_u32 v1, v0, 5, 1
v_bfe_u32 v2, v0, 3, 2
v_mul_u32_u24 v1, 72, v1
v_add_u32 v1, v1, v2
v_mul_u32_u24 v1, 1152, v1
v_add_u32 v{VWO+1}, v1, v{VWO}
v_lshrrev_b32 v1, 3, v0
v_mul_u32_u24 v1, 1152, v1
v_add_u32 v{VWO}, v1, v{VWO}
v_bfe_u32 v1, v0, 1, 2
v_bfe_u32 v2, v0, 3, 1
v_bfe_u32 v3, v0, 4, 1
v_bfe_u32 v4, v0, 5, 1
v_lshl_add_u32 v5, v2, 2, v1
v_lshl_add_u32 v5, v3, 4, v5
v_lshl_add_u32 v5, v4, 3, v5
v_mul_u32_u24 v5, 1152, v5
s_add_u32 s{sM}, s{sM}, 128
v_add_u32 v{VWO+2}, s{sM}, v5
v_lshl_add_u32 v5, v3, 2, v1
v_lshl_add_u32 v2, v4, 1, v2
v_mul_u32_u24 v2, 72, v2
v_add_u32 v5, v5, v2
v_mul_u32_u24 v5, 1152, v5
v_add_u32 v{VWO+3}, s{sM}, v5
s_and_b32 s55, s{sWAVE}, 3
s_lshl_b32 s57, s55, 3
""")
    rho(56)
    a(f"s_add_u32 s56, s56, s{55 if quad else sV}")

def rho(dst):
    few, many = (sRB, sHG) if OPT["mapping"] == 48 else (sHG, sRB)
    if OPT["mapping"] > 99:
        a(f"s_cmp_eq_u32 s{sBR}, {0 if OPT['mapping'] == 8448 else 1}\ns_cselect_b32 s{sT}, s{sHG}, s{sRB}\ns_cselect_b32 s{sT2}, s{sRB}, s{sHG}")
        few, many = sT, sT2
    a(f"s_lshl_b32 s{dst}, s{few}, 1\ns_add_u32 s{dst}, s{dst}, s{many}\ns_lshl_b32 s{dst}, s{dst}, 1")
    if not OPT.get("worot", 1):
        a(f"s_mov_b32 s{dst}, 0")

def wo_chunk(left, fadd):
    if left:
        a(f"s_mul_i32 s{sK}, s{sV}, {288*1152}\ns_add_u32 s{sK}, s{sK}, {64*1152}")
        steps = (4, 140, 4); v8, v2 = VWO + 1, VWO + 3
    else:
        a(f"""
s_add_u32 s{sT}, s56, {fadd}
s_bfe_u32 s{sK}, s{sT}, 0x30001
s_mul_i32 s{sK}, s{sK}, {72*1152}
s_bitcmp1_b32 s{sT}, 0
s_cselect_b32 s{sT}, {32*1152}, 0
s_add_u32 s{sK}, s{sK}, s{sT}
""")
        steps = (16, -8, 16); v8, v2 = VWO, VWO + 2
    a(f"s_mov_b32 s{sT2}, s{sK}")
    for j in range(4):
        dma(v8, SWO, f"s{sK}")
        a("s_addk_i32 m0, 1024")
        a(f"s_add_u32 s{sK}, s{sK}, {steps[j]*1152 & 0xffffffff}" if j < 3 else "s_nop 0")
    dma(v2, SWO, f"s{sT2}")
    return 5

def wo_issue(q):
    packed = sum((WO[2 + 4*q + w] // 1024) << (8 * w) for w in range(4))
    a(f"s_lshr_b32 s{sT}, {packed}, s57\ns_and_b32 s{sT}, s{sT}, 0xff\ns_lshl_b32 m0, s{sT}, 10")
    return wo_chunk(False, 4*q)

def wo_pair(g):
    a(f"s_mul_i32 s{sT}, s{sV}, {WO[2*g+1] - WO[2*g] & 0xffffffff}\ns_add_u32 m0, s{sT}, {WO[2*g]}")
    return wo_chunk(g == 0, 2*g - 2)

def sync_setup():
    a(f"""
s_lshl_b32 s{sT}, s{sBR}, 4
s_add_u32 s{sT}, s{sT}, s{sRB}
s_lshl_b32 s{sT2}, s{sT}, 8
s_add_u32 s{sT2}, s{sT2}, {WS_CNT}
s_add_u32 s{sOC}, s{SWS}, s{sT2}
s_addc_u32 s{sOC+1}, s{SWS+1}, 0
s_lshl_b32 s{sT}, s{sT}, 2
s_add_u32 s98, s{sT}, 32
s_lshl_b32 s99, s{sHG}, 2
s_mul_i32 s{sT2}, s{sHG}, {KV_ST}
s_add_u32 s{sT2}, s{sT2}, {WS_KV + 6144}
s_add_u32 s{sKC}, s{SWS}, s{sT2}
s_addc_u32 s{sKC+1}, s{SWS+1}, 0
""")

def loader_tail(tag, late=()):
    if tag[1] == "X":
        flag_check(sFO, 98, f"L_{tag}_fo")
    a("s_barrier")
    stamp()
    for g in late:
        wo_pair(g)
    if tag[1] == "X":
        a(f"s_cmp_eq_u32 s{sWAVE}, 6\ns_cbranch_scc0 L_{tag}_oc_x")
        arrive_wait(sOC, 8, f"L_{tag}_oc")
    a("s_waitcnt vmcnt(0)")
    stamp()
    a("s_barrier")
    stamps_out()
    a("s_endpgm")

def a_loader(kind):
    a(f"L_A{kind}1:")
    m = M0(42)
    issue = (lambda c: w_issue("A", c, m)) if kind == "W" else (lambda c: x_issue("A", c, m))
    pre = 1 if OPT.get("early") and kind == "W" else 2
    cnt = {c: issue(c) for c in range(1, pre + 1)}
    stamp()
    x_lane(8, 9, 1)
    rd_lanes(36, 12, 1, 2)
    a(f"""
v_add_u32 v8, {A_X0 + 8*2048}, v8
v_add_u32 v9, {A_X0 + 8*2048}, v9
s_lshl_b32 s{sT}, s{sV}, 6
v_xor_b32 v10, s{sT}, v36
v_add_u32 v10, {4096 if kind == 'W' else 8192}, v10
v_xor_b32 v11, 32, v10
v_add_u32 v12, {12288 if kind == 'W' else 13312}, v12
v_add_u32 v13, {4*A_WSLOT}, v10
v_add_u32 v14, {4*A_WSLOT}, v11
v_add_u32 v15, {4*A_WSLOT}, v12
s_lshl_b32 s{sT}, s{sV}, 10
s_add_u32 s{sT}, s{sT}, {A_EX + (0 if kind == 'W' else 2560)}
v_lshlrev_b32 v7, 3, v0
v_add_u32 v6, s{sT}, v7
v_add_u32 v7, {A_EX + (2048 if kind == 'W' else 4608)}, v7
""")
    stamp()
    a(f"s_waitcnt vmcnt({sum(cnt.values())})\ns_barrier")
    stamp()
    extra = 0
    for i in range(-1, 17):
        ks = i + 1
        slot = ks % 5
        off = 0 if slot == 4 else slot * A_WSLOT
        ad = (13, 14, 15) if slot == 4 else (10, 11, 12)
        a(f"ds_read_b128 v[40:43], v{8 + ks % 2} offset:{(ks//2 % 3)*A_XSLOT}")
        for j in range(3 if OPT.get("nohalo", 0) < 2 else 0):
            a(tr(44 + 4*j, ad[j], off)); a(tr(46 + 4*j, ad[j], off + (1024 if j < 2 else 256)))
        if i == -1 and pre == 1:
            cnt[2] = issue(2)
        if i + 4 <= 17:
            cnt[i+4] = issue(i + 4)
        a("s_waitcnt lgkmcnt(0)")
        for j in range(3 if not OPT.get("nohalo") else 0):
            c = 60 + 4*j if ks else "0"
            a(mf(60 + 4*j, 44 + 4*j, 40, c) if kind == "W" else mf(60 + 4*j, 40, 44 + 4*j, c))
        if i == 1:
            srds_rest(); sync_setup()
        if i == 2:
            wo_setup(True)
        if i == 14 and kind == "W":
            extra += wo_pair(0)
        if i == 15:
            extra += wo_issue(0)
        if i + 1 <= 16:
            left = sum(cnt.get(c, 0) for c in range(i + 3, min(i + 4, 17) + 1)) + extra
            a(f"s_waitcnt vmcnt({left})\ns_barrier")
            if OPT.get("fine") and kind == "W" and i % 2 == 1 and 0 < i < 14:
                stamp()
    for j in range(3):
        a(cv(44 + 2*j, 60 + 4*j)); a(cv(45 + 2*j, 62 + 4*j))
    if kind == "W":
        a("v_mov_b32 v50, 0\nv_mov_b32 v51, 0")
        a("v_permlane32_swap_b32 v48, v50\nv_permlane32_swap_b32 v49, v51")
    a("ds_write_b64 v6, v[44:45]\nds_write_b64 v6, v[46:47] offset:512")
    a(f"ds_write_b64 v7, {'v[50:51]' if kind == 'W' else 'v[48:49]'}")
    stamp()
    a("s_waitcnt lgkmcnt(0)\ns_barrier")
    if kind == "X":
        flag_load(sFO, 98)
    wo_issue(1); wo_issue(2); wo_issue(3)
    stamp()
    loader_tail("A" + kind)

def o_store_addr(vfull, vleft, tmp, left_lo):
    a(f"""
s_lshl_b32 s{sT}, s{sRB}, 3
s_lshl_b32 s{sT2}, s{sWAVE}, 1
s_add_u32 s{sT}, s{sT}, s{sT2}
s_mul_i32 s{sT}, s{sT}, 18432
s_mul_i32 s{sT2}, s{sBR}, {O_BR}
s_add_u32 s58, s{sT}, s{sT2}
s_lshl_b32 s{sT2}, s{sHG}, 11
s_add_u32 s{sT2}, s{sT2}, s58
v_lshl_add_u32 v{vfull}, v0, 4, s{sT2}
s_lshr_b32 s{sT2}, s{sHG}, 2
s_add_u32 s{sT2}, s{sT2}, 16
s_lshl_b32 s{sT2}, s{sT2}, 10
s_add_u32 s{sT}, s58, s{sT2}
s_and_b32 s{sT2}, s{sHG}, 3
s_lshl_b32 s{sT2}, s{sT2}, 8
s_add_u32 s{sT}, s{sT}, s{sT2}
v_and_b32 v{vleft}, 15, v0
v_lshlrev_b32 v{vleft}, 4, v{vleft}
v_bfe_u32 v{tmp}, v0, 4, 1
v_lshl_add_u32 v{vleft}, v{tmp}, 3, v{vleft}
v_add_u32 v{vleft}, s{sT}, v{vleft}
v_mov_b32 v{tmp}, {OOB}
""")
    x, y = (tmp, vleft) if left_lo else (vleft, tmp)
    a(f"v_cndmask_b32 v{vleft}, v{x}, v{y}, s[{sG01}:{sG01+1}]")

def o_store(of, vfull, vleft, rt):
    so = f"s{sK}" if rt else "0"
    if rt:
        a(f"s_movk_i32 s{sK}, 18432")
    a(f"buffer_store_dwordx4 {vr(of,4)}, v{vfull}, s[{SWS}:{SWS+3}], {so} offen sc1")
    a(f"buffer_store_dwordx4 {vr(of+4,4)}, v{vfull}, s[{SWS}:{SWS+3}], {so} offen offset:1024 sc1")
    a(f"buffer_store_dwordx2 {vr(of+8,2)}, v{vleft}, s[{SWS}:{SWS+3}], {so} offen sc1")

def gap_touch(tag, parts):
    if not OPT.get("touch"):
        return
    nt = " nt" if OPT.get("tnt") else ""
    a(f"""
s_cmp_eq_u32 s{sWAVE}, 1
s_cbranch_scc1 L_{tag}_tw
s_cmp_eq_u32 s{sWAVE}, 2
s_cbranch_scc0 L_{tag}_tx
s_and_b32 s{sT}, s{sRB}, 7
s_cmp_eq_u32 s{sT}, 0
s_cselect_b32 s{sT}, 9, s{sT}
s_sub_u32 s{sT}, s{sT}, 1
s_lshl_b32 s{sT}, s{sT}, 7
s_and_b32 s{sT2}, s{sHG}, 3
s_lshl_b32 s{sT2}, s{sT2}, 5
s_lshl_b32 s{sT3}, s{sRB}, 7
s_add_u32 s{sT2}, s{sT2}, s{sT3}
v_and_b32 v1, 31, v0
v_add_u32 v1, s{sT2}, v1
v_mul_u32_u24 v1, 1152, v1
""")
    srd(SX, 36, 2359296)
    a(f"""
buffer_load_dword v26, v1, s[{SX}:{SX+3}], s{sT} offen{nt}
s_branch L_{tag}_tx
L_{tag}_tw:
s_and_b32 s{sT}, s{sHG}, 3
s_lshl_b32 s{sT}, s{sT}, 1
s_cmp_eq_u32 s{sT}, 0
s_cselect_b32 s{sT}, 9, s{sT}
s_sub_u32 s{sT}, s{sT}, 1
s_lshl_b32 s{sT}, s{sT}, 3
s_and_b32 s{sT2}, s{sRB}, 7
s_add_u32 s{sT}, s{sT}, s{sT2}
s_mul_i32 s{sT}, s{sT}, {8*3456}
s_add_u32 s{sT}, s{sT}, s{sM}
v_lshrrev_b32 v1, 3, v0
v_mul_u32_u24 v1, 3456, v1
v_bfe_u32 v2, v0, 1, 2
v_min_u32 v2, {parts-1}, v2
v_mul_u32_u24 v2, 1152, v2
v_and_b32 v3, 1, v0
v_mul_u32_u24 v3, 140, v3
v_add3_u32 v1, v1, v2, v3
""")
    srd(SW, 38, 1990656)
    a(f"buffer_load_dword v26, v1, s[{SW}:{SW+3}], s{sT} offen offset:{1152*(3-parts)}{nt}\nL_{tag}_tx:")

def init_stores(tag, with_kv):
    if OPT.get("xcc"):
        a(f"s_getreg_b32 s{sT}, hwreg(HW_REG_XCC_ID, 0, 4)\nv_mov_b32 v2, s{sT}\ns_lshl_b32 s{sT}, s2, 2\ns_add_u32 s{sT}, s{sT}, 0x6f0000\nv_mov_b32 v1, s{sT}\nbuffer_store_dword v2, v1, s[{SWS}:{SWS+3}], 0 offen sc1")
    a(f"""
s_or_b32 s{sT}, s{sHG}, s{sWAVE}
s_cmp_eq_u32 s{sT}, 0
s_cselect_b32 s55, 1, 0
v_mov_b32 v20, 0
v_mov_b32 v21, 0
v_mov_b32 v22, 0
v_mov_b32 v23, 0
s_cbranch_scc0 L_{tag}_i1
s_lshl_b32 s{sT}, s{sBR}, 4
s_add_u32 s{sT}, s{sT}, s{sRB}
s_lshl_b32 s{sT}, s{sT}, 8
s_add_u32 s{sT}, s{sT}, {WS_CNT}
v_mov_b32 v24, s{sT}
buffer_store_dword v20, v24, s[{SWS}:{SWS+3}], 0 offen sc1
L_{tag}_i1:
""")
    if with_kv:
        a(f"""
s_or_b32 s{sT}, s{sRB}, s{sWAVE}
s_cmp_eq_u32 s{sT}, 0
s_cbranch_scc0 L_{tag}_i2
s_or_b32 s55, s55, 2
s_mul_i32 s{sT}, s{sHG}, {KV_ST}
s_add_u32 s{sT}, s{sT}, {WS_KV}
v_lshl_add_u32 v24, v0, 4, s{sT}
""")
        for j in range(7):
            a(f"s_movk_i32 s{sK}, {1024*j}\nbuffer_store_dwordx4 v[20:23], v24, s[{SWS}:{SWS+3}], s{sK} offen sc1")
        a(f"L_{tag}_i2:")

def init_flags(tag):
    a(f"""
s_waitcnt vmcnt(0)
s_cmp_eq_u32 s55, 0
s_cbranch_scc1 L_{tag}_f2
v_mov_b32 v20, 1
s_bitcmp1_b32 s55, 0
s_cbranch_scc0 L_{tag}_f1
s_lshl_b32 s{sT}, s{sBR}, 4
s_add_u32 s{sT}, s{sT}, s{sRB}
s_lshl_b32 s{sT}, s{sT}, 2
s_add_u32 s{sT}, s{sT}, 32
v_mov_b32 v24, s{sT}
buffer_store_dword v20, v24, s[{SDBG}:{SDBG+3}], 0 offen sc1
L_{tag}_f1:
s_bitcmp1_b32 s55, 1
s_cbranch_scc0 L_{tag}_f2
s_lshl_b32 s{sT}, s{sHG}, 2
v_mov_b32 v25, s{sT}
buffer_store_dword v20, v25, s[{SDBG}:{SDBG+3}], 0 offen sc1
L_{tag}_f2:
""")

def kstep(tiles, nxt_reads, first, waits):
    pend = list(first)
    for t, (m0_, m1_) in enumerate(tiles):
        if t in waits:
            a(waits[t])
        a(m0_)
        for x in pend: a(x)
        a(m1_)
        pend = []
        if nxt_reads:
            a(nxt_reads[t][0]); pend = [nxt_reads[t][1]]
    for x in pend: a(x)

def a_consumer():
    acc = lambda t, rt: 144 + (t * 2 + rt) * 4
    wf = lambda t: 88 + 4 * t
    xf = lambda buf, rt: 72 + buf * 8 + rt * 4
    R8, R2, R8b, R2b, aX = 1, 5, 6, 10, 11
    vOF, vOL, vEXW, vEXR = 13, 14, 15, 16
    MC, MP, MPF, PM = 56, 60, 64, 68
    a("L_AC:\ns_waitcnt lgkmcnt(0)")
    gap_touch("AC", 3)
    srds_rest()
    init_stores("AC", False)
    rd_lanes(R8, R2, 17, 18); x_lane(aX, aX + 1, 17)
    for j in range(5):
        a(f"v_add_u32 v{R8b+j}, {4*A_WSLOT}, v{R8+j}")
    a(f"""
s_lshl_b32 s{sT}, s{sWAVE}, 12
s_add_u32 s{sT}, s{sT}, {A_X0}
v_add_u32 v{aX}, s{sT}, v{aX}
v_add_u32 v{aX+1}, s{sT}, v{aX+1}
s_lshr_b32 s{sT}, s{sWAVE}, 1
s_lshl_b32 s{sT}, s{sT}, 3
v_and_b32 v17, 15, v0
v_xor_b32 v17, s{sT}, v17
v_lshrrev_b32 v18, 4, v0
v_lshlrev_b32 v18, 2, v18
v_xor_b32 v18, s{sT}, v18
v_sub_u32 v17, v17, v18
v_mov_b32 v19, {NEG}
s_and_b32 s{sT}, s{sWAVE}, 1
s_or_b32 s{sT}, s{sT}, s{sRB}
s_cmp_eq_u32 s{sT}, 0
s_cselect_b64 s[42:43], -1, 0
""")
    for r in range(4):
        a(f"""
v_subrev_u32 v18, {r}, v17
v_cmp_gt_u32 vcc, 8, v18
v_cndmask_b32 v{MC+r}, v19, 0, vcc
v_cmp_gt_i32 vcc, -8, v18
v_cndmask_b32 v{MP+r}, v19, 0, vcc
v_cndmask_b32 v{MPF+r}, v{MP+r}, v19, s[42:43]
v_cmp_lt_i32 vcc, -1, v18
v_mov_b32 v20, {'0xffff' if r % 2 == 0 else '0xffff0000'}
v_cndmask_b32 v20, 0, v20, vcc
""")
        a(f"v_mov_b32 v{PM + r//2}, v20" if r % 2 == 0 else f"v_or_b32 v{PM + r//2}, v{PM + r//2}, v20")
    o_store_addr(vOF, vOL, 17, True)
    a(f"""
s_lshr_b32 s{sT}, s{sWAVE}, 1
s_add_u32 s{sT}, s{sT}, 1
s_mul_i32 s{sT}, s{sT}, 5120
s_bitcmp1_b32 s{sWAVE}, 0
s_cselect_b32 s{sT3}, s{sT}, 0
v_lshlrev_b32 v17, 3, v0
v_add_u32 v17, {A_EX}, v17
v_add_u32 v{vEXW}, s{sT}, v17
v_add_u32 v{vEXR}, s{sT3}, v17
""")

    def wreads(ks, t):
        slot = ks % 5
        o = 0 if slot == 4 else slot * A_WSLOT
        r8, r2 = (R8b, R2b) if slot == 4 else (R8, R2)
        if t == 4 or t == 13:
            o += 12288 if t == 4 else 13312
            return [tr(wf(t), r2, o), tr(wf(t) + 2, r2, o + 256)]
        s, j = (0, t) if t < 4 else (1, t - 5) if t < 9 else (2, t - 9)
        return [tr(wf(t), r8 + j, o + 4096*s), tr(wf(t) + 2, r8 + j, o + 4096*s + 1024)]
    xread = lambda ks, rt: f"ds_read_b128 {vr(xf(ks % 2, rt),4)}, v{aX + ks % 2} offset:{(ks//2 % 3)*A_XSLOT + rt*2048}"

    stamp()
    a("s_barrier")
    stamp()
    a(xread(0, 0)); a(xread(0, 1))
    for t in range(14):
        for x in wreads(0, t): a(x)
    for ks in range(18):
        if ks < 17:
            a("s_barrier")
        if ks == 3:
            init_flags("AC")
        tiles = []
        for t in range(14):
            c = lambda rt: acc(t, rt) if ks else "0"
            tiles.append([mf(acc(t, rt), wf(t), xf(ks % 2, rt), c(rt)) if t < 9 else mf(acc(t, rt), xf(ks % 2, rt), wf(t), c(rt)) for rt in range(2)])
        if ks < 17:
            nxt = [wreads(ks + 1, t) for t in range(14)]
            nxt[1] = [nxt[1][0], nxt[1][1] + "\n" + xread(ks + 1, 1)]
            kstep(tiles, nxt, [xread(ks + 1, 0)], {0: "s_waitcnt lgkmcnt(14)", 7: "s_waitcnt lgkmcnt(15)", 12: "s_waitcnt lgkmcnt(15)"})
        else:
            kstep(tiles, None, [], {0: "s_waitcnt lgkmcnt(14)", 7: "s_waitcnt lgkmcnt(0)"})
    stamp()
    KP = lambda j: 18 + 10 * j
    QT = lambda rt, h: 88 + 16 * rt + 4 * h
    VP = lambda t, j: 120 + 6 * t + 2 * j if t < 4 else 48 + 2 * j
    ONE = 72
    def pack_kv(rt):
        o = []
        for q in range(2):
            o += [cv(QT(rt, 3) + 2 + q, acc(4, rt) + 2*q), f"v_mov_b32 v{KP(1+rt) + 8 + q}, 0"]
        for tau in range(4):
            o += [cv(KP(1+rt) + 2*tau + q, acc(5+tau, rt) + 2*q) for q in range(2)]
        o += [f"v_permlane32_swap_b32 v{QT(rt,3) + 2 + q}, v{KP(1+rt) + 8 + q}" for q in range(2)]
        for t in range(5):
            o += [cv(VP(t, 1+rt) + q, acc(9+t, rt) + 2*q) for q in range(2)]
        return o
    def pack_q(rt):
        o = []
        for t in range(4):
            for q in range(2):
                d = QT(rt, t) + q
                o.append(cv(d, acc(t, rt) + 2*q))
                if (t, q) in SPLITS:
                    m = SPLITS[(t, q)]; lo = QT(rt, t-1) + 2 + q
                    o += [f"v_cndmask_b32 v{lo}, 0, v{d}, s[{m}:{m+1}]", f"v_xor_b32 v{d}, v{d}, v{lo}"]
        return o + [f"v_mov_b32 v{QT(rt,0) + 3}, 0"]
    weave([], pack_kv(1))
    a(f"s_bitcmp1_b32 s{sWAVE}, 0\ns_cbranch_scc1 L_AC_nodump")
    for j in range(5):
        a(f"ds_write_b64 v{vEXW}, {vr(KP(2) + 2*j, 2)} offset:{512*j}")
        a(f"ds_write_b64 v{vEXW}, {vr(VP(j, 2), 2)} offset:{512*(5+j)}")
    a("L_AC_nodump:")
    weave([], pack_kv(0) + pack_q(1))
    a("s_waitcnt lgkmcnt(0)\ns_barrier")
    for j in range(5):
        a(f"ds_read_b64 {vr(KP(0) + 2*j, 2)}, v{vEXR} offset:{512*j}")
        a(f"ds_read_b64 {vr(VP(j, 0), 2)}, v{vEXR} offset:{512*(5+j)}")
    SC = lambda rt, h: (224 if rt else 184) + 8 * h
    MX = lambda rt: [76 + 4 * rt + h for h in range(4)]
    PT = lambda rt, h: 144 + 16 * rt + 4 * h
    def qk(rt):
        o = []
        for h in range(4):
            o += [mf(SC(rt, h), KP(1+rt) + 2*h, QT(rt, h), MC), mf(SC(rt, h) + 4, KP(rt) + 2*h, QT(rt, h), MP if rt else MPF)]
        return o
    def rowmax(rt):
        o = []
        for h in range(4):
            s = SC(rt, h); m = MX(rt)[h]
            o += [f"v_max_f32 v{s+r}, v{s+r}, v{s+4+r}" for r in range(4)]
            o += [f"v_max3_f32 v{m}, v{s}, v{s+1}, v{s+2}", f"v_max_f32 v{m}, v{m}, v{s+3}"]
        return o
    def xmax(rt):
        m = MX(rt)
        return [f"v_permlane32_swap_b32 v{m[0]}, v{m[1]}", f"v_permlane32_swap_b32 v{m[2]}, v{m[3]}",
                f"v_max_f32 v{m[0]}, v{m[0]}, v{m[1]}", f"v_max_f32 v{m[2]}, v{m[2]}, v{m[3]}",
                f"v_permlane16_swap_b32 v{m[0]}, v{m[2]}", f"v_max_f32 v{m[0]}, v{m[0]}, v{m[2]}",
                f"v_mul_f32 v{m[0]}, s{sT2}, v{m[0]}", f"v_mov_b32 v{m[2]}, v{m[0]}",
                f"v_permlane16_swap_b32 v{m[0]}, v{m[2]}", f"v_mov_b32 v{m[1]}, v{m[0]}", f"v_mov_b32 v{m[3]}, v{m[2]}",
                f"v_permlane32_swap_b32 v{m[0]}, v{m[1]}", f"v_permlane32_swap_b32 v{m[2]}, v{m[3]}"]
    def probs(rt):
        o = []
        for h in range(4):
            s = SC(rt, h); p = PT(rt, h)
            o += [f"v_fma_f32 v{s+r}, v{s+r}, s{sT}, v{MX(rt)[h]}" for r in range(4)]
            o += [f"v_exp_f32 v{s+r}, v{s+r}" for r in range(4)]
            if h:
                o += split(rt, h - 1)
        return o + split(rt, 3)
    def split(rt, h):
        s = SC(rt, h); p = PT(rt, h); o = []
        for q in range(2):
            o += [cv(p + q, s + 2*q), f"v_and_b32 v{p+2+q}, v{p+q}, v{PM+q}", f"v_xor_b32 v{p+q}, v{p+q}, v{p+2+q}"]
        return o
    OB = lambda rt, t: (224 if rt else 184) + 4 * t
    OA = lambda rt, t: (224 if rt else 184) + 12 + 4 * t
    SM = lambda rt, h: 88 + 16 * rt + 4 * h
    OF = lambda rt: 18 + 10 * rt
    def pv(rt):
        o = [mf(SM(rt, h), ONE, PT(rt, h), "0") for h in range(4)]
        for t in range(5):
            if t < 4: o.append(mf(OB(rt, t), VP(t, rt), PT(rt, t), "0"))
            if t > 0: o.append(mf(OA(rt, t), VP(t, rt), PT(rt, t-1), "0"))
        return o
    def finish(rt):
        o = [f"v_rcp_f32 v{SM(rt,h)}, v{SM(rt,h)}" for h in range(4)]
        for t in range(5):
            for q in range(2):
                d = OF(rt) + 2*t + q
                srcs = []
                if t < 4: srcs.append((OB(rt, t) + 2*q, SM(rt, t), d))
                if t == 4: srcs.append((OA(rt, t) + 2*q, SM(rt, 3), d))
                if (t, q) in SPLITS: srcs.append((OA(rt, t) + 2*q, SM(rt, t-1), 17))
                for x, inv, dd in srcs:
                    o += [f"v_mul_f32 v{x}, v{x}, v{inv}", f"v_mul_f32 v{x+1}, v{x+1}, v{inv}", cv(dd, x)]
                if (t, q) in SPLITS:
                    m = SPLITS[(t, q)]
                    o.append(f"v_cndmask_b32 v{d}, v{d}, v17, s[{m}:{m+1}]")
        return o
    a(f"s_mov_b32 s{sT}, {f32(CSC)}\ns_mov_b32 s{sT2}, {f32(-CSC)}")
    weave(qk(1), pack_q(0) + [f"v_mov_b32 v{ONE+j}, 0x3f803f80" for j in range(4)])
    a("s_waitcnt lgkmcnt(0)")
    weave(qk(0), rowmax(1))
    x1, x0 = xmax(1), xmax(0)
    r0 = rowmax(0)
    for i, x in enumerate(x1):
        a(x)
        for y in r0[2*i:2*i+2]: a(y)
    p1 = probs(1)
    for i, x in enumerate(x0):
        a(x)
        for y in p1[2*i:2*i+2]: a(y)
    weave([], p1[2*len(x0):])
    weave(pv(1), probs(0))
    weave(pv(0), finish(1))
    o_store(OF(1), vOF, vOL, 1)
    weave([], finish(0))
    o_store(OF(0), vOF, vOL, 0)
    stamp()
    a("s_branch L_P2")

def phi(r, n, t):
    o = [f"v_pk_fma_f32 {vr(t+j,2)}, {vr(r+j,2)}, s[56:57], v[14:15]" for j in range(0, n, 2)]
    for j in range(n):
        o += [f"v_exp_f32 v{t+j}, v{t+j} clamp", f"v_max_f32 v{r+j}, s{sT2}, v{r+j}"]
    return o + [f"v_pk_add_f32 {vr(r+j,2)}, {vr(r+j,2)}, {vr(t+j,2)}" for j in range(0, n, 2)]

def b_consumer():
    acc = lambda t, rt: 184 + (t * 2 + rt) * 4
    wf = lambda t: 148 + 4 * t
    xf = lambda ks, rt: 52 + ks * 8 + rt * 4 if ks < 12 else 36 + (ks % 2) * 8 + rt * 4
    R8, R2, aX = 1, 5, 6
    vOF, vOL, vEX = 8, 9, 10
    CK, CS = 28, 32
    a("L_BC:\ns_waitcnt lgkmcnt(0)")
    gap_touch("BC", 2)
    srds_rest()
    init_stores("BC", True)
    rd_lanes(R8, R2, 17, 18); x_lane(aX, aX + 1, 17)
    a(f"""
s_lshl_b32 s{sT}, s{sWAVE}, 12
s_add_u32 s{sT}, s{sT}, {B_X0}
v_add_u32 v{aX}, s{sT}, v{aX}
v_add_u32 v{aX+1}, s{sT}, v{aX+1}
v_and_b32 v17, 15, v0
v_cmp_gt_u32 vcc, 8, v17
v_mov_b32 v18, {EPS}
s_mov_b64 s[42:43], vcc
s_mul_i32 s{sT}, s{sWAVE}, 10240
s_add_u32 s{sT}, s{sT}, {B_EX}
v_lshl_add_u32 v{vEX}, v0, 4, s{sT}
v_mov_b32 v14, {f32(-1e-6*LOG2E)}
v_mov_b32 v15, v14
s_mov_b32 s56, {f32(LOG2E)}
s_mov_b32 s57, s56
""")
    for r in range(4):
        a(f"v_mov_b32 v{CK+r}, v18\nv_cndmask_b32 v{CS+r}, 0, v18, vcc")
    o_store_addr(vOF, vOL, 17, False)

    def wreads(ks, t):
        o = (ks % 5) * B_KVSLOT
        if t == 4:
            return [tr(wf(t), R2, o + 8192), tr(wf(t) + 2, R2, o + 8192 + 256)]
        s, j = (0, t) if t < 4 else (1, t - 5)
        return [tr(wf(t), R8 + j, o + 4096*s), tr(wf(t) + 2, R8 + j, o + 4096*s + 1024)]
    xread = lambda ks, rt: f"ds_read_b128 {vr(xf(ks, rt),4)}, v{aX + ks % 2} offset:{(ks//2 % 3)*B_XSLOT + rt*2048}"

    stamp()
    a("s_barrier")
    stamp()
    a(xread(0, 0)); a(xread(0, 1))
    for t in range(9):
        for x in wreads(0, t): a(x)
    for ks in range(18):
        if ks < 17:
            a("s_barrier")
        if ks == 3:
            init_flags("BC")
        tiles = [[mf(acc(t, rt), xf(ks, rt), wf(t), acc(t, rt) if ks else (CK if t < 4 else CS if t == 4 else "0")) for rt in range(2)] for t in range(9)]
        if ks < 17:
            nxt = [wreads(ks + 1, t) for t in range(9)]
            nxt[1] = [nxt[1][0], nxt[1][1] + "\n" + xread(ks + 1, 1)]
            kstep(tiles, nxt, [xread(ks + 1, 0)], {0: "s_waitcnt lgkmcnt(12)", 3: "s_waitcnt lgkmcnt(13)", 6: "s_waitcnt lgkmcnt(13)", 8: "s_waitcnt lgkmcnt(11)"})
        else:
            kstep(tiles, None, [], {0: "s_waitcnt lgkmcnt(12)", 3: "s_waitcnt lgkmcnt(0)\ns_barrier"})
    stamp()
    a(f"s_mov_b32 s{sT2}, {EPS}\nv_mov_b32 v16, 0x3f803f80")
    wr = lambda reg, slot: f"ds_write_b128 v{vEX}, {vr(reg,4)} offset:{1024*slot}"
    pk = lambda d, s: [cv(d + j, s + 2*j) for j in range(4)]
    weave([], pk(156, acc(4, 0)) + [f"v_cndmask_b32 v{156+j}, v{156+j}, v16, s[42:43]" for j in range(4)] + [wr(156, 9)])
    xq = lambda ks, rt: 168 + (ks - 12) * 8 + rt * 4 if ks in (12, 13) else acc(2 * (ks - 14) + rt, 1) if ks in (14, 15) else xf(ks, rt)
    reread = lambda ks, rt: f"ds_read_b128 {vr(xq(ks, rt),4)}, v{aX + ks % 2} offset:{(ks//2 % 3)*B_XSLOT + rt*2048}"
    weave([], [reread(ks, rt) for ks in (12, 13) for rt in range(2)])
    for tau in range(5):
        o = phi(acc(tau, 0), 8, 148)
        if tau < 4:
            o = pk(acc(5+tau, 0), acc(5+tau, 0)) + o[:8] + [wr(acc(5+tau, 0), 5 + tau)] + o[8:]
        weave([], o + pk(acc(tau, 0), acc(tau, 0)) + [wr(acc(tau, 0), tau)])
        if tau < 4:
            a(reread(14 + tau // 2, tau % 2))
    for j in range(5):
        a(f"v_add_u32 v{R8+j}, {B_WQ0}, v{R8+j}")
    a("s_waitcnt lgkmcnt(0)\ns_barrier")
    stamp()
    QA = lambda t, rt: 216 + (t * 2 + rt) * 4
    qf = lambda t: 148 + 4 * t
    qbase = lambda p: B_WQ0 if p < 4 else 0 if p < 7 else 15360
    def qreads(p, t):
        o = wq_slot(p) - qbase(p)
        if t == 4:
            return [tr(qf(t), R2, o + 4096), tr(qf(t) + 2, R2, o + 4096 + 256)]
        return [tr(qf(t), R8 + t, o), tr(qf(t) + 2, R8 + t, o + 1024)]
    for t in range(5):
        for x in qreads(0, t): a(x)
    for p in range(18):
        ks = QORD[p]
        if p == 7 or (p == 13 and OPT.get('wob', 0)):
            a("s_barrier")
        tiles = [[mf(QA(t, rt), qf(t), xq(ks, rt), QA(t, rt) if p else CK) for rt in range(2)] for t in range(5)]
        if p < 17:
            nxt = [qreads(p + 1, t) for t in range(5)]
            if qbase(p + 1) != qbase(p):
                d = (qbase(p + 1) - qbase(p)) & 0xffffffff
                for t in range(5):
                    nxt[t][0] = f"v_add_u32 v{R8+t}, {d}, v{R8+t}\n" + nxt[t][0]
            kstep(tiles, nxt, [], {t: f"s_waitcnt lgkmcnt({7 if t else 8})" for t in range(5)})
        else:
            kstep(tiles, None, [], {t: f"s_waitcnt lgkmcnt({8 - 2*t})" for t in range(5)})
    stamp()
    PQ = lambda rt: 36 + 10 * rt
    KO = 84
    tup = {0: KO, 1: KO + 4, 2: KO + 12, 3: KO + 20, 4: KO + 28}
    ZO = KO + 32
    weave([], [f"v_mov_b32 v{r}, 0" for r in (tup[1]+4, tup[1]+5, tup[2]+4, tup[2]+5, tup[3]+4, tup[3]+5, ZO+8, ZO+9)])
    a(f"v_lshlrev_b32 v16, 3, v0\nv_add_u32 v16, {B_KVOP}, v16")
    for t in range(5):
        weave([], phi(QA(t, 0), 8, 148) + [cv(PQ(rt) + 2*t + q, QA(t, rt) + 2*q) for rt in range(2) for q in range(2)])
    stamp()
    a("s_barrier")
    stamp()
    tid = lambda tau, taup: {-1: tau - 1, 0: 4 + tau, 1: 9 + tau}[taup - tau]
    rd = lambda d, slot: a(f"ds_read_b64 {vr(d,2)}, v16 offset:{512*slot}")
    for j, d in enumerate((ZO, ZO + 2, ZO + 4, ZO + 6, ZO + 10)):
        rd(d, 13 + j)
    rd(tup[0], tid(0, 0)); rd(tup[0] + 2, tid(1, 0))
    for t in (1, 2, 3):
        rd(tup[t], tid(t-1, t)); rd(tup[t] + 2, tid(t, t)); rd(tup[t] + 6, tid(t+1, t))
    rd(tup[4], tid(3, 4)); rd(tup[4] + 2, tid(4, 4))
    DN = lambda rt: 148 + 4 * rt
    NM = lambda rt, t: 184 + 20 * rt + 4 * t
    OF = lambda rt: 156 + 10 * rt
    a("s_waitcnt lgkmcnt(13)")
    for k, (zo, po) in enumerate(((0, 0), (4, 4), (8, 6))):
        for rt in range(2):
            a(mf(DN(rt), ZO + zo, PQ(rt) + po, DN(rt) if k else CK))
    a("s_waitcnt lgkmcnt(0)")
    def num(rt):
        o = [mf(NM(rt, t), tup[t], PQ(rt) + 2*(t-1), "0") for t in (1, 2, 3)]
        o += [mf(NM(rt, 0), tup[0], PQ(rt), "0"), mf(NM(rt, 4), tup[4], PQ(rt) + 6, "0")]
        return o + [mf(NM(rt, t), tup[t] + 4, PQ(rt) + 2*t, NM(rt, t)) for t in (1, 2, 3)]
    def fin(rt, packed):
        o = []
        for t in (0, 4, 1, 2, 3):
            for q in range(2):
                inv = DN(rt) + min(t, 3)
                if (t, q) in SPLITS:
                    m = SPLITS[(t, q)]
                    o.append(f"v_cndmask_b32 v17, v{DN(rt)+t}, v{DN(rt)+t-1}, s[{m}:{m+1}]")
                    inv = 17
                n = NM(rt, t) + 2*q
                o += [f"v_mul_f32 v{n}, v{n}, v{inv}", f"v_mul_f32 v{n+1}, v{n+1}, v{inv}", cv(OF(rt) + 2*t + q, n)]
        return o
    weave(num(0), [], 0)
    weave(num(1), [f"v_rcp_f32 v{DN(rt)+h}, v{DN(rt)+h}" for rt in range(2) for h in range(4)], 1)
    for rt in range(2):
        weave([], fin(rt, True))
        o_store(OF(rt), vOF, vOL, rt)
    stamp()

def kv_index(wreg, VS, VG, VZ):
    a(f"s_cmp_eq_u32 s{wreg}, 0\ns_cselect_b32 s58, 4, s{wreg}")
    for slot in range(3):
        if slot == 0:
            a(f"s_lshl_b32 s{sT}, s58, 4\ns_sub_u32 s{sT2}, s{sT}, 16\ns_mov_b64 s[46:47], 0")
        elif slot == 1:
            a(f"s_lshl_b32 s{sT}, s{wreg}, 4\ns_mov_b32 s{sT2}, s{sT}")
        else:
            a(f"s_add_u32 s{sT2}, s{sT}, 16\ns_cmp_eq_u32 s{wreg}, 3\ns_cselect_b32 s{sT2}, 56, s{sT2}\ns_cselect_b64 s[46:47], s[44:45], 0")
        kv_tile(VS and VS + 2*slot, VG and VG + 2*slot, False)
    if VZ:
        kv_z(VZ)

def kv_tile(VS, VG, last):
    a(f"v_add_u32 v3, s{sT2}, v1")
    head_of(4, 3)
    a(f"v_mul_u32_u24 v5, 18, v4\nv_sub_u32 v3, v3, v5\nv_cndmask_b32 v4, v4, 7, s[46:47]")
    if last:
        a("v_cmp_eq_u32 vcc, 0, v1\nv_cndmask_b32 v4, v4, 3, vcc\nv_cndmask_b32 v3, v3, 18, vcc")
    for q in range(2):
        a(f"v_add3_u32 v5, v2, s{sT}, {2*q}")
        head_of(6, 5)
        a("v_cmp_eq_u32 vcc, v4, v6\nv_mad_u32_u24 v5, v5, 19, v3\nv_lshlrev_b32 v5, 2, v5")
        if VS:
            a(f"v_add_u32 v6, {B_STG}, v5\nv_cndmask_b32 v{VS+q}, v8, v6, vcc")
        if VG:
            a(f"v_add_u32 v6, s{sM}, v5\nv_cndmask_b32 v{VG+q}, v9, v6, vcc")

def kv_z(VZ):
    a("v_and_b32 v3, 3, v0")
    for q in range(2):
        a(f"v_add3_u32 v5, v2, s{sT}, {2*q}")
        head_of(6, 5)
        a(f"v_cmp_eq_u32 vcc, v3, v6\nv_mul_u32_u24 v5, 76, v5\nv_add3_u32 v5, v5, s{sM}, 64\nv_add_u32 v5, 8, v5\nv_cndmask_b32 v{VZ+q}, v9, v5, vcc")

def b_loader(kind):
    a(f"L_B{kind}1:")
    m = M0(42)
    issue = (lambda c: w_issue("B", c, m)) if kind == "W" else (lambda c: x_issue("B", c, m))
    pre = 1 if OPT.get("early") and kind == "W" else 2
    cnt = {c: issue(c) for c in range(1, pre + 1)}
    stamp()
    mark = len(a.lines)
    VS, VG, vZS, vEA, vE0, vEL, vLA, vGA, vLW = 72, 80, 98, 99, 100, 101, 102, 103, 105
    if kind == "W":
        a(f"v_subrev_u32 v{VD+5}, 1152, v{VD}\nv_subrev_u32 v{VD+6}, 1152, v{VD+1}")
    srds_rest()
    if kind == "W":
        wo_setup(False)
    else:
        sync_setup()
    a(f"""
s_add_u32 s55, s{sV}, 2
s_mul_i32 s{sM}, s{sHG}, {KV_ST}
s_add_u32 s{sM}, s{sM}, {WS_KV}
v_and_b32 v1, 15, v0
v_lshrrev_b32 v2, 4, v0
v_lshlrev_b32 v2, 2, v2
v_cmp_gt_u32 s[44:45], 8, v1
v_lshlrev_b32 v8, 2, v0
v_add_u32 v8, {B_DUMP}, v8
v_mov_b32 v9, {OOB}
""")
    own = sV if kind == "X" else 55
    if kind == "X":
        kv_index(55, None, VG, VG + 6)
        a(f"s_movk_i32 s{sT}, 64")
        kv_z(10)
    kv_index(own, VS, VG + 8 if kind == "X" else None, VG + 14 if kind == "X" else None)
    a(f"""
v_add_u32 v5, s{sT}, v0
v_mul_u32_u24 v5, 76, v5
v_add_u32 v5, {B_STG + 72}, v5
v_cndmask_b32 v{vZS}, v8, v5, s[{sG0}:{sG0+1}]
v_lshlrev_b32 v{vEL}, 4, v0
v_add_u32 v{vEL}, {B_EX}, v{vEL}
s_lshl_b32 s{sT}, s{own}, 10
v_add_u32 v{vEA}, s{sT}, v{vEL}
s_lshl_b32 s{sT}, s58, 10
v_add_u32 v{vE0}, s{sT}, v{vEL}
""")
    if kind == "X":
        a(f"s_movk_i32 s{sT}, 64\ns_movk_i32 s{sT2}, 56\ns_mov_b64 s[46:47], s[44:45]")
        kv_tile(VS + 6, VG + 16, True)
        a(f"s_cmp_eq_u32 s{sV}, 0\ns_cselect_b64 s[46:47], -1, 0")
        for q in range(2):
            a(f"v_cndmask_b32 v{VS+6+q}, v8, v{VS+6+q}, s[46:47]\nv_cndmask_b32 v{VG+16+q}, v{10+q}, v{VG+16+q}, s[46:47]")
        a(f"""
v_lshlrev_b32 v5, 3, v0
v_add_u32 v5, {B_KVOP}, v5
s_lshl_b32 s{sT2}, s58, 9
s_sub_u32 s{sT2}, s{sT2}, 512
v_add_u32 v{vLW+2}, s{sT2}, v5
s_lshl_b32 s{sT2}, s{sV}, 9
v_add_u32 v{vLW+1}, s{sT2}, v5
v_add_u32 v{vLW}, 1024, v{vLW+1}
s_mul_i32 s{sT2}, s{sV}, {9*512}
v_add_u32 v{vLW+3}, s{sT2}, v5
s_mul_i32 s{sT}, s{sV}, 2816
v_lshl_add_u32 v{vLA}, v0, 2, s{sT}
v_add_u32 v{vGA}, s{sM}, v{vLA}
v_cmp_gt_u32 vcc, {5472 - 2560}, v{vLA}
v_cndmask_b32 v{vGA+1}, v9, v{vGA}, vcc
v_add_u32 v{vLA}, {B_STG}, v{vLA}
v_mov_b32 v4, 0
""")
    a(f"v_mov_b32 v10, {B_LCNT}\nv_mov_b32 v11, 1")
    if kind == "X":
        a("ds_write_b32 v10, v4\ns_waitcnt lgkmcnt(0)")
    setup = a.lines[mark:]
    del a.lines[mark:]
    per = -(-len(setup) // 9)
    a(f"s_waitcnt vmcnt({sum(cnt.values())})\ns_barrier")
    stamp()
    extra = 0
    for i in range(-1, 16):
        if i == -1 and pre == 1:
            cnt[2] = issue(2)
        if i + 4 <= 17:
            cnt[i+4] = issue(i + 4)
        if 0 <= i < 9:
            a("s_cmp_eq_u32 s59, 1")
            a.lines += setup[per*i:per*(i+1)]
            a("s_cselect_b32 s59, 1, 0")
        if i == 10 and kind == "X":
            flag_load(sFO, 98); flag_load(sFK, 99)
        if kind == "W" and i >= 14:
            extra += wq_issue(2*(i-14), m) + wq_issue(2*(i-14) + 1, m)
        left = sum(cnt.get(c, 0) for c in range(i + 3, min(i + 4, 17) + 1)) + extra
        a(f"s_waitcnt vmcnt({left})\ns_barrier")
    a("s_barrier")
    if kind == "W":
        for p in (4, 5, 6, 7, 13, 14, 15, 16, 17):
            wq_issue(p, m)
        a("s_waitcnt vmcnt(15)")
    else:
        flag_check(sFK, 99, "L_BX_fk")
    stamp()
    a("s_barrier")
    stamp()
    if kind == "W":
        for p in range(8, 13):
            wq_issue(p, m)
    KT = lambda s: 40 + 4 * s
    RD = lambda src, j: 112 + 28 * src + 4 * j
    srcs = ((vEA, 0), (vE0, 0), (vE0, 4096), (vEA, 5120), (vEA, 6144), (vEL, 9216), (vEL, 4096))
    prods = ((1, 2), (0, 3), (0, 4), (6, 5), (5, 0))
    if kind == "W":
        srcs = ((vEA, 0), None, (vE0, 4096), (vEA, 5120), (vEA, 6144), (vEL, 9216))
        prods = ((0, 2), (0, 3), (0, 4), None, (5, 0))
    nr = sum(x is not None for x in srcs)
    for src in range(4):
        for j, x in enumerate(srcs):
            if x: a(f"ds_read_b128 {vr(RD(src, j),4)}, v{x[0]} offset:{src*10240 + x[1]}")
    for src in range(4):
        a(f"s_waitcnt lgkmcnt({min(15, nr*(3-src))})")
        for s_, x in enumerate(prods):
            if x: a(mf(KT(s_), RD(src, x[0]), RD(src, x[1]), KT(s_) if src else "0"))
    for s_ in range(4 if kind == "X" else 3):
        for r in range(4):
            a(f"ds_write_b32 v{VS + 2*s_ + r//2}, v{KT(s_)+r} offset:{76*(r%2)}")
    a(f"ds_write_b32 v{vZS}, v{KT(4)}")
    a("s_waitcnt lgkmcnt(0)\ns_mov_b64 exec, 1\nds_add_u32 v10, v11\ns_mov_b64 exec, -1")
    stamp()
    b1, b2, b3 = {0: ((0, 1, 2, 3, 4, 5), (), (6, 7, 8)), 1: ((0, 1, 2), (3, 4, 5, 6, 7, 8), ()), 2: ((0, 1, 2), (3, 4, 5), (6, 7, 8))}[OPT.get("wob", 0)]
    if kind == "W":
        a("s_waitcnt vmcnt(0)\ns_barrier")
        for g in b1: wo_pair(g)
        if b2:
            a("s_barrier")
            for g in b2: wo_pair(g)
        stamp()
        a("s_barrier")
        loader_tail("BW", b3)
        return
    a(f"""
s_mov_b32 s{sT3}, 0x400000
L_BX_st:
ds_read_b32 v2, v10
s_waitcnt lgkmcnt(0)
v_readfirstlane_b32 s{sT}, v2
s_sub_u32 s{sT3}, s{sT3}, 1
s_cbranch_scc1 L_BX_st_x
s_cmp_ge_u32 s{sT}, 4
s_cbranch_scc0 L_BX_st
L_BX_st_x:
""")
    for n in range(11):
        a(f"ds_read_b32 v{40+n}, v{vLA} offset:{256*n}")
    for n in range(11):
        a(f"s_waitcnt lgkmcnt({10-n})")
        a(f"buffer_atomic_add_f32 v{40+n}, v{vGA + (n == 10)}, s[{SWS}:{SWS+3}], 0 offen offset:{256*n}")
    stamp()
    a("s_barrier")
    if b2:
        a("s_barrier")
    a("s_waitcnt vmcnt(0)")
    stamp()
    arrive_wait(sKC, 32, "L_BX_kc")
    stamp()
    for s_ in range(9):
        for r in range(4):
            a(f"buffer_load_dword v{112+4*s_+r}, v{VG + 2*s_ + r//2}, s[{SWS}:{SWS+3}], 0 offen offset:{76*(r%2)} sc1")
    dst = ((vLW, -1), (vLW, 4), (vLW, 9), (vLW, 13), (vLW + 2, 0), (vLW + 1, 4), (vLW + 1, 9), (vLW + 1, 13), (vLW + 3, 8))
    a(f"v_subrev_u32 v11, 512, v{vLW}")
    for s_, (ad, off) in enumerate(dst):
        a(f"s_waitcnt vmcnt({4*(8-s_)})")
        a(cv(40 + 2*s_, 112 + 4*s_)); a(cv(41 + 2*s_, 114 + 4*s_))
        a(f"ds_write_b64 v{11 if off < 0 else ad}, {vr(40+2*s_,2)} offset:{512*max(off, 0)}")
    a("s_waitcnt lgkmcnt(0)")
    stamp()
    a("s_barrier")
    loader_tail("BX")

def p2_consumer():
    OFR = lambda ks, rt: 112 + ks * 8 + rt * 4
    ACC = lambda t, rt: 72 + (t * 2 + rt) * 4
    wf = lambda t: 52 + 4 * t
    R8, R2, vO, vTW, vTR, VS = 1, 5, 6, 7, 8, 9
    AH = OPT["ahead"]
    a("L_P2:")
    nstamp[0] = 10
    rd_lanes(R8, R2, 17, 18)
    for j in range(5):
        a(f"v_add_u32 v{R8+j}, {R1}, v{R8+j}")
    a(f"""
v_lshl_add_u32 v{vO}, v0, 4, s58
s_mul_i32 s{sT}, s{sWAVE}, 4608
s_add_u32 s{sT}, s{sT}, {P_TR}
v_and_b32 v17, 15, v0
v_mul_u32_u24 v17, 144, v17
v_lshrrev_b32 v18, 4, v0
v_lshl_add_u32 v17, v18, 3, v17
v_add_u32 v{vTW}, s{sT}, v17
v_lshl_add_u32 v{vTR}, v0, 4, s{sT}
s_lshr_b32 s{sT}, s{sWAVE}, 1
s_and_b32 s{sT2}, s{sWAVE}, 1
s_lshl_b32 s{sT2}, s{sT2}, 5
s_lshl_b32 s{sT3}, s{sWAVE}, 5
s_cmp_eq_u32 s{sBR}, 0
s_cselect_b32 s42, s{sT}, 0
s_cselect_b32 s43, s{sT2}, s{sT3}
s_cselect_b32 s55, 1, 0
s_lshl_b32 s56, s42, 3
s_lshl_b32 s{sT}, s{sRB}, 7
s_add_u32 s42, s42, s{sT}
s_mul_i32 s{sT}, s{sBR}, 1152
s_mul_i32 s{sT2}, s{sHG}, 144
s_add_u32 s57, s{sT}, s{sT2}
""")
    for n in range(5):
        a(f"""
v_add_u32 v17, {64*n}, v0
v_mul_u32_u24 v18, 7282, v17
v_lshrrev_b32 v18, 16, v18
v_mul_u32_u24 v19, 9, v18
v_sub_u32 v19, v17, v19
v_add_u32 v18, s43, v18
v_xor_b32 v18, s56, v18
v_lshlrev_b32 v18, s55, v18
v_add_u32 v18, s42, v18
v_mul_u32_u24 v18, 2304, v18
v_lshl_add_u32 v18, v19, 4, v18
v_add_u32 v{VS+n}, s57, v18
""")
    a(f"v_mov_b32 v17, {OOB}\nv_cndmask_b32 v{VS+4}, v17, v{VS+4}, s[{sG01}:{sG01+1}]")
    a(f"v_add_u32 v14, 18432, v{vO}")
    SO = [8, 9, 10, 11, 12, 13, 14, 15, 36]
    rho(37)
    a(f"s_movk_i32 s{SO[0]}, 16384")
    for j in range(1, 9):
        a(f"s_add_u32 s{sT}, s37, {2*j-2}\ns_and_b32 s{sT}, s{sT}, 15\ns_lshl_b32 s{SO[j]}, s{sT}, 10")
    a("s_waitcnt vmcnt(0)")
    stamp()
    a("s_barrier\ns_barrier")
    stamp()
    def oload(ks, rt):
        return f"buffer_load_dwordx4 {vr(OFR(ks, rt),4)}, v{14 if rt else vO}, s[{SWS}:{SWS+3}], s{SO[ks//2]} offen offset:{1024*(ks%2)} sc1"
    base = lambda ks: R1 if ks < 3 else 0 if 9 <= ks < 12 else R2_
    R2_ = 43008
    def wreads(ks, t):
        o = WO[ks] - base(ks)
        if t == 4:
            return [tr(wf(t), R2, o + 4096), tr(wf(t) + 2, R2, o + 4096 + 256)]
        return [tr(wf(t), R8 + t, o), tr(wf(t) + 2, R8 + t, o + 1024)]
    for ks in range(AH):
        a(oload(ks, 0)); a(oload(ks, 1))
    for t in range(5):
        for x in wreads(0, t): a(x)
    for ks in range(18):
        tiles = [[mf(ACC(t, rt), wf(t), OFR(ks, rt), ACC(t, rt) if ks else "0") for rt in range(2)] for t in range(5)]
        w0 = f"s_waitcnt vmcnt({2*min(AH - 1, 17 - ks)}) lgkmcnt(8)"
        if ks < 17:
            nxt = [wreads(ks + 1, t) for t in range(5)]
            if base(ks + 1) != base(ks):
                d = (base(ks + 1) - base(ks)) & 0xffffffff
                for t in range(5):
                    nxt[t][0] = f"v_add_u32 v{R8+t}, {d}, v{R8+t}\n" + nxt[t][0]
            first = []
            if ks + AH < 18:
                first = [oload(ks + AH, 0)]
                nxt[1][1] += "\n" + oload(ks + AH, 1)
            kstep(tiles, nxt, first, {t: "s_waitcnt lgkmcnt(7)" if t else w0 for t in range(5)})
        else:
            kstep(tiles, None, [], {t: f"s_waitcnt lgkmcnt({8 - 2*t})" if t else w0 for t in range(5)})
        if ks == 0:
            stamp()
    stamp()
    for rt in range(2):
        for t in range(5):
            d = 20 + 2*(rt*5 + t)
            a(cv(d, ACC(t, rt))); a(cv(d + 1, ACC(t, rt) + 2))
            if t == 4:
                a(f"s_mov_b64 exec, s[{sG01}:{sG01+1}]")
            a(f"ds_write_b64 v{vTW}, {vr(d,2)} offset:{rt*2304 + 32*t}")
            if t == 4:
                a("s_mov_b64 exec, -1")
    a("s_waitcnt lgkmcnt(0)")
    for n in range(5):
        a(f"ds_read_b128 {vr(112+4*n,4)}, v{vTR} offset:{1024*n}")
    for n in range(5):
        a(f"s_waitcnt lgkmcnt({4-n})")
        a(f"buffer_store_dwordx4 {vr(112+4*n,4)}, v{VS+n}, s[{SOUT}:{SOUT+3}], 0 offen")
    stamp()
    stamps_out(True)
    a("s_endpgm")

HEADER = open("concat_heads__sliding_local_dilated__linear_attn_block__prompt.s.ref").read().split("; Override")[0]
out = HEADER + "; @launch grid=(256,1,1) block=(512,1,1) lds=163840\n"
a('.amdgcn_target "amdgcn-amd-amdhsa--gfx950"\n.text')
a(kernel_head(KN))
if OPT["stamps"]:
    for i in range(16):
        a(f"s_mov_b32 s{sST+2*i}, 0")
stamp()
a(f"""
s_cmp_ge_u32 s2, 256
s_cbranch_scc1 L_end
s_and_b32 s{sT}, s2, 7
s_lshr_b32 s{sBR}, s{sT}, 2
{'s_xor_b32 s6, s6, 1' if OPT.get('swap') else ''}
s_mul_i32 s{sT2}, s{sBR}, 24
s_add_u32 s0, s0, s{sT2}
s_addc_u32 s1, s1, 0
s_load_dwordx4 s[36:39], s[0:1], 0
s_load_dwordx2 s[40:41], s[0:1], 16
s_sub_u32 s0, s0, s{sT2}
s_subb_u32 s1, s1, 0
s_load_dwordx4 s[44:47], s[0:1], 48
s_load_dwordx2 s[48:49], s[0:1], 64
v_lshrrev_b32 v1, 6, v0
v_and_b32 v0, 63, v0
v_readfirstlane_b32 s{sWAVE}, v1
s_lshr_b32 s{sT2}, s2, 3
""")
m84 = f"""
s_and_b32 s{sHG}, s{sT2}, 3
s_and_b32 s{sT3}, s{sT}, 1
s_lshl_b32 s{sT3}, s{sT3}, 2
s_add_u32 s{sHG}, s{sHG}, s{sT3}
s_lshr_b32 s{sRB}, s{sT2}, 2
s_and_b32 s{sT3}, s{sT}, 2
s_lshl_b32 s{sT3}, s{sT3}, 2
s_add_u32 s{sRB}, s{sRB}, s{sT3}
"""
m48 = f"""
s_and_b32 s{sHG}, s{sT2}, 7
s_lshr_b32 s{sRB}, s{sT2}, 3
s_and_b32 s{sT3}, s{sT}, 3
s_lshl_b32 s{sT3}, s{sT3}, 2
s_add_u32 s{sRB}, s{sRB}, s{sT3}
"""
if OPT["mapping"] == 84:
    a(m84)
elif OPT["mapping"] == 48:
    a(m48)
else:
    a(m48 + f"s_cmp_eq_u32 s{sBR}, {0 if OPT['mapping'] == 8448 else 1}\ns_cbranch_scc0 L_map" + m84 + "L_map:")
rot = ""
if OPT.get("rot") == 2:
    rot = f"""s_lshr_b32 s90, s2, 1
s_xor_b32 s90, s90, s2
s_and_b32 s90, s90, 1
s_mul_i32 s91, s90, {OPT.get("rotby", 5)*128}
s_mul_i32 s90, s90, {OPT.get("rotby", 5)*64*3456}"""
elif OPT.get("rot") == 3:
    rot = f"""s_lshr_b32 s90, s2, 1
s_xor_b32 s90, s90, s2
s_and_b32 s90, s90, 1
s_mul_i32 s90, s90, 5
s_add_u32 s91, s{sRB}, s{sHG}
s_and_b32 s91, s91, 3
s_add_u32 s90, s90, s91
s_lshl_b32 s91, s90, 7
s_mul_i32 s90, s90, {64*3456}"""
elif OPT.get("rot") == 7:
    rot = f"""s_and_b32 s90, s{sHG}, 3
s_and_b32 s91, s{sRB}, 7
s_lshl1_add_u32 s90, s90, s91
s_cmp_ge_u32 s90, 9
s_cselect_b32 s91, 9, 0
s_sub_u32 s90, s90, s91
s_lshl_b32 s91, s90, 7
s_mul_i32 s90, s90, {64*3456}"""
elif OPT.get("rot") in (4, 5, 6):
    tab = {4: 0x75207520, 5: 0x63006300, 6: 0x86427531}[OPT["rot"]]
    rot = f"""s_add_u32 s90, s{sRB}, s{sHG}
s_and_b32 s90, s90, 7
s_lshl_b32 s90, s90, 2
s_lshr_b32 s90, {hex(OPT.get("tab", tab))}, s90
s_and_b32 s90, s90, 15
s_lshl_b32 s91, s90, 7
s_mul_i32 s90, s90, {64*3456}"""
elif OPT.get("rot"):
    few, many = (sRB, sHG) if OPT["mapping"] == 48 else (sHG, sRB)
    rot = f"""s_and_b32 s90, s{few}, 3
s_lshl_b32 s90, s90, 2
s_lshr_b32 s90, 0x7520, s90
s_and_b32 s90, s90, 15
s_and_b32 s91, s{many}, 7
s_add_u32 s90, s90, s91
s_cmp_ge_u32 s90, 9
s_cselect_b32 s91, 9, 0
s_sub_u32 s90, s90, s91
s_lshl_b32 s91, s90, 7
s_mul_i32 s90, s90, {64*3456}"""
a(f"""
s_mov_b32 s{sG0}, 0xffff
s_mov_b32 s{sG0+1}, 0
s_mov_b32 s{sG01}, -1
s_mov_b32 s{sG01+1}, 0
s_and_b32 s{sV}, s{sWAVE}, 1
s_mul_i32 s{sM}, s{sHG}, 144
s_cmp_lt_u32 s{sWAVE}, 4
s_cbranch_scc1 L_cons
s_setprio {OPT.get("prio", 2)}
s_mov_b32 s59, 0
{rot}
s_cmp_lt_u32 s{sWAVE}, 6
s_cbranch_scc1 L_wld
s_cmp_eq_u32 s{sBR}, 0
s_cbranch_scc1 L_AX0
s_branch L_BX0
L_wld:
s_cmp_eq_u32 s{sBR}, 0
s_cbranch_scc1 L_AW0
s_branch L_BW0
L_cons:
s_getpc_b64 s[42:43]
L_pc:
s_lshl_b32 s{sT}, s{sT2}, 2
s_add_u32 s{sT}, s{sT}, s{sWAVE}
s_lshl_b32 s{sT}, s{sT}, 9
v_and_b32 v1, 3, v0
v_lshlrev_b32 v1, 7, v1
v_add_u32 v1, s{sT}, v1
v_min_u32 v1, L_last-L_pc, v1
global_load_dword v27, v1, s[42:43]
s_cmp_eq_u32 s{sBR}, 0
s_cbranch_scc1 L_AC
s_branch L_BC
L_end:
s_endpgm
""")
w_head("A"); w_head("B"); x_head("A"); x_head("B")
n0 = nstamp[0]
for fn in (lambda: a_loader("W"), lambda: a_loader("X"), a_consumer, lambda: b_loader("W"), lambda: b_loader("X"), b_consumer, p2_consumer):
    nstamp[0] = n0
    fn()
a("L_last:\ns_endpgm")
lines = []
for l in a.lines: lines += l.split("\n")
if OPT.get("noread"):
    lines = [l for l in lines if not l.startswith("ds_read_b64_tr")]
if OPT.get("nomfma"):
    lines = [l for l in lines if not l.startswith("v_mfma")]
lines, added = hz.fix(lines)
out += "\n".join(lines) + "\n"
out += '.section .rodata,"a"\n.p2align 6\n' + kernel_desc(KN, 256, 100, 256)
sys.stdout.write(out)
sys.stderr.write(f"nop states added: {added}\n")
```

```python
import sys, struct
from asmlib import *
import hz

OPT = dict(stamps=0, mapping=48, ahead=6, rot=4, nt=1)
for arg in sys.argv[1:]:
    k, v = arg.split("=")
    OPT[k] = int(v)
KN = "concat_heads__sliding_local_dilated__linear_attn_block__prompt_kernel"

def f32(x):
    return "0x%08x" % struct.unpack("<I", struct.pack("<f", x))[0]

LOG2E = 1.4426950408889634
CSC = 18 ** -0.5 * LOG2E
NEG = "0xf149f2ca"
EPS = f32(1e-6)
OOB = "0x80000000"

O_BR = 0x240000
WS_KV = 0x500000
KV_ST = 0x2000
WS_CNT = 0x540000
WS_STAMP = 0x600000
WS_SIZE = 0x700000

sWAVE, sHG, sRB, sBR, sT = 3, 4, 5, 6, 7
SX, SW, SWS, SDBG, SWO, SOUT = 8, 12, 16, 20, 24, 28
sG0, sG01 = 32, 34
sK, sV, sM, sT2, sT3 = 50, 51, 52, 53, 54
sST = 60

a = Asm()
nstamp = [0]

def stamp():
    if OPT["stamps"]:
        i = nstamp[0]; nstamp[0] += 1
        assert i < 15
        a(f"{'s_memrealtime' if OPT.get('rt') or OPT.get('probe') and not (OPT.get('cyc') and i) else 's_memtime'} s[{sST+2*i}:{sST+2*i+1}]")
        if OPT.get("cyc") and i == 0:
            a("s_memtime s[100:101]")

def stamps_out(last=False):
    if not OPT["stamps"]:
        return
    if OPT.get("probe"):
        if last:
            j = sST + 2 * OPT["probe"]
            if OPT.get("xcc"):
                a(f"""
s_waitcnt vmcnt(0) lgkmcnt(0)
v_and_b32 v1, 31, v0
v_lshlrev_b32 v1, {5 if OPT['xcc'] == 1 else 2}, v1
v_add_u32 v1, 0x6f0000, v1
buffer_load_dword v2, v1, s[{SWS}:{SWS+3}], 0 offen sc1
s_getreg_b32 s44, hwreg(HW_REG_XCC_ID, 0, 4)
s_waitcnt vmcnt(0)
v_cmp_eq_u32 vcc, s44, v2
s_bcnt1_i32_b32 s44, vcc_lo
s_mul_i32 s44, s44, 10
s_add_u32 s{j}, s{sST}, s44
""")
            a(f"""
s_waitcnt vmcnt(0) lgkmcnt(0)
s_cmp_eq_u32 s2, {OPT.get('wg', 0)}
s_cbranch_scc0 L_probe_x
s_cmp_eq_u32 s{sWAVE}, 0
s_cbranch_scc0 L_probe_x
s_sub_u32 s{sT}, s{j}, s{100 if OPT.get('cyc') else sST}
{'s_lshr_b32 s7, s7, 3' if OPT.get('cyc') else 's_mul_i32 s7, s7, 10'}
s_min_u32 s{sT}, s{sT}, 100000
s_add_u32 s{sT}, s{sT}, 6000
L_probe:
s_memrealtime s[44:45]
s_waitcnt lgkmcnt(0)
s_sub_u32 s44, s44, s{sST}
s_cmp_lt_u32 s44, s{sT}
s_cbranch_scc1 L_probe
L_probe_x:
""")
        return
    a("s_waitcnt vmcnt(0) lgkmcnt(0)")
    a(f"s_lshl_b32 s{sT}, s2, 3\ns_add_u32 s{sT}, s{sT}, s{sWAVE}\ns_lshl_b32 s{sT}, s{sT}, 6")
    a(f"s_add_u32 s{sT}, s{sT}, {WS_STAMP}\nv_mov_b32 v1, s{sT}")
    for i in range(16):
        a(f"v_mov_b32 v2, s{sST+2*i}")
        a(f"buffer_store_dword v2, v1, s[{SWS}:{SWS+3}], 0 offen offset:{4*i}")
    a("s_waitcnt vmcnt(0)")

def mf(d, s0, s1, c):
    cc = c if isinstance(c, str) else vr(c, 4)
    return f"v_mfma_f32_16x16x32_bf16 {vr(d,4)}, {vr(s0,4)}, {vr(s1,4)}, {cc}"
def cv(d, x):
    return f"v_cvt_pk_bf16_f32 v{d}, v{x}, v{x+1}"
def tr(d, addr, off):
    return f"ds_read_b64_tr_b16 {vr(d,2)}, v{addr} offset:{off}"
def weave(mfmas, others, per=2):
    o = list(others)
    for m in mfmas:
        a(m)
        for _ in range(per):
            if o: a(o.pop(0))
    for x in o: a(x)

def srd(dst, lo, nbytes):
    a(f"s_mov_b32 s{dst}, s{lo}\ns_mov_b32 s{dst+1}, s{lo+1}\ns_mov_b32 s{dst+2}, {nbytes}\ns_mov_b32 s{dst+3}, 0x20000")
def srds_rest():
    srd(SWO, 40, 663552); srd(SOUT, 44, 4718592); srd(SDBG, 46, 256); srd(SWS, 48, WS_SIZE)

class M0:
    def __init__(self, base): self.base = base; self.cur = None
    def set(self, imm):
        if self.cur is not None and -32768 <= imm - self.cur <= 32767:
            a(f"s_addk_i32 m0, {imm - self.cur}")
        else:
            a(f"s_add_u32 m0, s{self.base}, {imm}")
        self.cur = imm

CUR = [0]
def dma(voff, srd_, soff, half=False):
    if OPT.get("nodma") or (OPT.get("nos") and voff == VD + 6 and srd_ == SW and not half):
        return
    if half: a(f"s_mov_b64 exec, s[{sG01}:{sG01+1}]")
    nt = " nt" if OPT.get("nt", 0) >> {SX: 0, SW: 1, SWO: 2}[srd_] & 1 and CUR[0] < OPT.get("ntc", 99) else ""
    a(f"buffer_load_dwordx4 v{voff}, s[{srd_}:{srd_+3}], {soff} offen{nt} lds")
    if half: a("s_mov_b64 exec, -1")

def rd_lanes(r8, r2, t0, t1):
    a(f"""
v_lshrrev_b32 v{t0}, 5, v0
v_lshlrev_b32 v{t0}, 4, v{t0}
v_bfe_u32 v{t1}, v0, 4, 1
v_lshl_add_u32 v{t0}, v{t1}, 2, v{t0}
v_bfe_u32 v{t1}, v0, 2, 2
v_add_u32 v{t0}, v{t0}, v{t1}
v_and_b32 v{t1}, 3, v0
v_lshlrev_b32 v{t1}, 3, v{t1}
v_lshl_add_u32 v{r2}, v{t0}, 5, v{t1}
v_lshl_add_u32 v{r8}, v{t0}, 7, v{t1}
v_bfe_u32 v{t0}, v{t0}, 1, 2
v_lshl_add_u32 v{r8}, v{t0}, 5, v{r8}
""")
    for t in (1, 2, 3):
        a(f"v_xor_b32 v{r8+t}, {32*t}, v{r8}")

def x_lane(d0, d1, tmp):
    a(f"""
v_lshrrev_b32 v{d0}, 4, v0
v_bfe_u32 v{tmp}, v0, 1, 3
v_xor_b32 v{d0}, v{d0}, v{tmp}
v_and_b32 v{tmp}, 15, v0
v_lshlrev_b32 v{tmp}, 7, v{tmp}
v_lshl_add_u32 v{d0}, v{d0}, 4, v{tmp}
v_xor_b32 v{d1}, 64, v{d0}
""")

def col8(dst, tmp):
    a(f"v_bfe_u32 v{tmp}, v0, 4, 2\nv_lshlrev_b32 v{tmp}, 1, v{tmp}\nv_and_b32 v{dst}, 7, v0\nv_xor_b32 v{dst}, v{dst}, v{tmp}\nv_lshlrev_b32 v{dst}, 4, v{dst}")

def head_of(dst, src):
    a(f"v_mul_u32_u24 v{dst}, 57, v{src}\nv_lshrrev_b32 v{dst}, 10, v{dst}")

sOC, sKC, sFO, sFK = 92, 94, 96, 97

def arrive_wait(addr, target, label, arrive=True):
    if arrive:
        a(f"s_mov_b32 s{sT}, 1\ns_atomic_add s{sT}, s[{addr}:{addr+1}], 0 glc\ns_waitcnt lgkmcnt(0)\ns_cmp_ge_u32 s{sT}, {target-1}\ns_cbranch_scc1 {label}_x")
    a(f"""
s_mov_b32 s{sT3}, 0x20000
{label}:
s_mov_b32 s{sT}, 0
s_atomic_add s{sT}, s[{addr}:{addr+1}], 0 glc
s_waitcnt lgkmcnt(0)
s_sub_u32 s{sT3}, s{sT3}, 1
s_cbranch_scc1 {label}_x
s_cmp_ge_u32 s{sT}, {target}
s_cbranch_scc0 {label}
{label}_x:
""")

def flag_load(dst, offreg):
    a(f"s_load_dword s{dst}, s[{SDBG}:{SDBG+1}], s{offreg}")

def flag_check(val, offreg, label):
    a(f"""
s_mov_b32 s{sT3}, 0x20000
{label}:
s_waitcnt lgkmcnt(0)
s_cmp_lg_u32 s{val}, 0
s_cbranch_scc1 {label}_x
s_sub_u32 s{sT3}, s{sT3}, 1
s_cbranch_scc1 {label}_x
s_load_dword s{val}, s[{SDBG}:{SDBG+1}], s{offreg} glc
s_branch {label}
{label}_x:
""")

A_WSLOT, A_XSLOT = 14336, 18432
A_X0 = 5 * A_WSLOT
A_EX = A_X0 + 3 * A_XSLOT
B_KVSLOT, B_XSLOT = 9216, 16384
B_X0 = 5 * B_KVSLOT
B_EX = B_X0 + 3 * B_XSLOT
B_KVOP = 126976
B_STG = 136192
B_DUMP, B_LCNT = B_STG + 5632, B_STG + 6144
B_WQ0 = 143360
QORD = list(range(18))
def wq_slot(p):
    if p < 4: return B_WQ0 + 5120 * p
    if p < 7: return 5120 * (p - 4)
    if p < 13: return 40960 + 5120 * (p - 7)
    return 15360 + 5120 * (p - 13)
R1, R2 = 147456, 43008
WO = [R1, R1 + 5120, R1 + 10240] + [R2 + 5120 * n for n in range(6, 12)] + [0, 5120, 10240] + [R2 + 5120 * n for n in range(6)]
P_TR = 108544
SPLITS = {(1, 0): sG0, (2, 0): sG0, (2, 1): sG0, (3, 0): sG01, (3, 1): sG0}

VD = 16
VWO = 26
vCNT, vFLO, vFLK, vFO, vFK = 30, 31, 32, 33, 34

def w_head(kind):
    parts = (0, 1152, 2304) if kind == "A" else (1152, 2304)
    a(f"L_{kind}W0:")
    col8(VD, 1)
    a(f"""
v_bfe_u32 v1, v0, 5, 1
v_bfe_u32 v2, v0, 3, 2
v_lshl_add_u32 v1, v1, 3, v2
s_mul_i32 s{sT}, s{sV}, {16*3456}
s_add_u32 s{sT}, s{sT}, s{sM}
v_mul_u32_u24 v1, 3456, v1
v_add3_u32 v{VD}, v{VD}, v1, s{sT}
""")
    n = 2 * len(parts)
    for j in range(n - 1, -1, -1):
        off = parts[j // 2] + (j % 2) * 4 * 3456
        if off:
            a(f"v_add_u32 v{VD+j}, {off}, v{VD}")
    a(f"""
v_bfe_u32 v1, v0, 3, 1
v_bfe_u32 v2, v0, 4, 1
v_sub_u32 v1, v1, v2
v_lshrrev_b32 v2, 1, v0
v_lshl_add_u32 v1, v1, 2, v2
v_mul_u32_u24 v1, 3456, v1
v_and_b32 v2, 1, v0
""")
    if kind == "A":
        a(f"""
s_cmp_eq_u32 s{sV}, 0
s_cselect_b32 s{sT2}, 1152, 0
s_cselect_b32 s{sT}, 0, 2304
s_add_u32 s{sT}, s{sT}, s{sM}
s_addk_i32 s{sT}, 128
v_mad_u32_u24 v1, v2, s{sT2}, v1
v_add_u32 v{VD+6}, s{sT}, v1
""")
    else:
        a(f"""
s_add_u32 s{sT}, s{sT}, 128
v_add_u32 v{VD+7}, s{sT}, v1
v_mul_u32_u24 v2, 1152, v2
v_add_u32 v2, 1152, v2
v_add_u32 v{VD+4}, v2, v{VD+7}
""")
    a(f"s_lshl_b32 s42, s{sV}, 11\ns_lshl_b32 s43, s{sV}, {10 if kind == 'A' else 9}\ns_sub_u32 s43, s43, s42")
    a("s_waitcnt lgkmcnt(0)")
    srd(SW, 38, 1990656)
    m = M0(42)
    w_issue(kind, 0, m)
    a(f"s_branch L_{kind}W1")

def w_issue(kind, c, m):
    CUR[0] = c
    slot = (c % 5) * (A_WSLOT if kind == "A" else B_KVSLOT)
    n = 6 if kind == "A" else 4
    so = f"s{sK}" if c else "0"
    if OPT.get("rot"):
        so = "s90"
        if c:
            a(f"s_add_u32 s90, s90, {32*3456}\ns_cmp_eq_u32 s90, {18*32*3456}\ns_cselect_b32 s90, 0, s90")
    elif c:
        a(f"s_mov_b32 s{sK}, {c*32*3456}")
    for j in range(n):
        m.set(slot + 4096 * (j // 2) + 1024 * (j % 2))
        dma(VD + j, SW, so)
    m.set(slot + 4096 * (n // 2))
    a("s_add_u32 m0, m0, s43")
    m.cur = None
    dma(VD + n, SW, so, half=(kind == "B"))
    return n + 1

def wq_issue(p, m):
    if OPT.get("rot"):
        a(f"s_add_u32 s{sK}, s90, {(p+1)*32*3456}\ns_cmp_ge_u32 s{sK}, {18*32*3456}\ns_cselect_b32 s{sT}, {18*32*3456}, 0\ns_sub_u32 s{sK}, s{sK}, s{sT}")
    else:
        a(f"s_mov_b32 s{sK}, {QORD[p]*32*3456}")
    for j in range(2):
        m.set(wq_slot(p) + 1024 * j)
        dma(VD + 5 + j, SW, f"s{sK}")
    m.set(wq_slot(p) + 4096)
    a("s_add_u32 m0, m0, s43")
    m.cur = None
    dma(VD + 7, SW, f"s{sK}", half=True)
    return 3

def x_head(kind):
    nq = 9 if kind == "A" else 8
    a(f"L_{kind}X0:")
    a(f"""
v_lshrrev_b32 v1, 3, v0
v_mul_u32_u24 v1, {2304 if kind == 'A' else 1152}, v1
v_lshrrev_b32 v2, 4, v0
v_lshl_add_u32 v2, s{sV}, 2, v2
v_and_b32 v3, 7, v0
v_xor_b32 v2, v2, v3
v_lshl_add_u32 v1, v2, 4, v1
s_mul_i32 s{sT}, s{sRB}, {128*1152}
""")
    if kind == "A":
        a(f"""
s_mul_i32 s{sT2}, s{sV}, {16*1152}
s_add_u32 s{sT3}, s{sT}, s{sT2}
v_add_u32 v{VD}, s{sT3}, v1
s_sub_u32 s{sT3}, s{sT}, s{sT2}
s_add_u32 s{sT3}, s{sT3}, {17*1152}
v_add_u32 v{VD+4}, s{sT3}, v1
s_mul_i32 s{sT2}, s{sV}, 1152
s_sub_u32 s{sT3}, s{sT}, s{sT2}
s_sub_u32 s{sT3}, s{sT3}, {15*1152}
v_add_u32 v{VD+8}, s{sT3}, v1
""")
        for q in (1, 2, 3):
            a(f"v_add_u32 v{VD+q}, {32*1152*q}, v{VD}\nv_add_u32 v{VD+4+q}, {32*1152*q}, v{VD+4}")
    else:
        a(f"s_mul_i32 s{sT2}, s{sV}, {8*1152}\ns_add_u32 s{sT}, s{sT}, s{sT2}\nv_add_u32 v{VD}, s{sT}, v1")
        for q in range(1, 8):
            a(f"v_add_u32 v{VD+q}, {16*1152*q}, v{VD}")
    a(f"s_lshl_b32 s42, s{sV}, 10")
    a("s_waitcnt lgkmcnt(0)")
    srd(SX, 36, 2359296)
    x_issue(kind, 0, M0(42))
    a(f"s_branch L_{kind}X1")

def x_issue(kind, c, m):
    CUR[0] = c + (c & 1)
    nq, h, x0, xs = (9, 5, A_X0, A_XSLOT) if kind == "A" else (8, 4, B_X0, B_XSLOT)
    st = (c + 1) // 2
    if st > 8:
        return 0
    qs = range(nq) if c == 0 else (range(h) if c % 2 else range(h, nq))
    so = f"s{sK}" if st else "0"
    if OPT.get("rot"):
        so = "s91"
        if c % 2:
            a("s_addk_i32 s91, 128\ns_cmpk_eq_u32 s91, 1152\ns_cselect_b32 s91, 0, s91")
    elif st:
        a(f"s_movk_i32 s{sK}, {st*128}")
    for q in qs:
        m.set(x0 + (st % 3) * xs + 2048 * q)
        a("s_nop 0")
        dma(VD + q, SX, so)
    return len(qs)

def wo_setup(quad):
    col8(VWO, 1)
    a(f"""
s_mul_i32 s{sM}, s{sHG}, 144
v_add_u32 v{VWO}, s{sM}, v{VWO}
v_bfe_u32 v1, v0, 5, 1
v_bfe_u32 v2, v0, 3, 2
v_mul_u32_u24 v1, 72, v1
v_add_u32 v1, v1, v2
v_mul_u32_u24 v1, 1152, v1
v_add_u32 v{VWO+1}, v1, v{VWO}
v_lshrrev_b32 v1, 3, v0
v_mul_u32_u24 v1, 1152, v1
v_add_u32 v{VWO}, v1, v{VWO}
v_bfe_u32 v1, v0, 1, 2
v_bfe_u32 v2, v0, 3, 1
v_bfe_u32 v3, v0, 4, 1
v_bfe_u32 v4, v0, 5, 1
v_lshl_add_u32 v5, v2, 2, v1
v_lshl_add_u32 v5, v3, 4, v5
v_lshl_add_u32 v5, v4, 3, v5
v_mul_u32_u24 v5, 1152, v5
s_add_u32 s{sM}, s{sM}, 128
v_add_u32 v{VWO+2}, s{sM}, v5
v_lshl_add_u32 v5, v3, 2, v1
v_lshl_add_u32 v2, v4, 1, v2
v_mul_u32_u24 v2, 72, v2
v_add_u32 v5, v5, v2
v_mul_u32_u24 v5, 1152, v5
v_add_u32 v{VWO+3}, s{sM}, v5
s_and_b32 s55, s{sWAVE}, 3
s_lshl_b32 s57, s55, 3
""")
    rho(56)
    a(f"s_add_u32 s56, s56, s{55 if quad else sV}")

def rho(dst):
    few, many = (sRB, sHG) if OPT["mapping"] == 48 else (sHG, sRB)
    if OPT["mapping"] > 99:
        a(f"s_cmp_eq_u32 s{sBR}, {0 if OPT['mapping'] == 8448 else 1}\ns_cselect_b32 s{sT}, s{sHG}, s{sRB}\ns_cselect_b32 s{sT2}, s{sRB}, s{sHG}")
        few, many = sT, sT2
    a(f"s_lshl_b32 s{dst}, s{few}, 1\ns_add_u32 s{dst}, s{dst}, s{many}\ns_lshl_b32 s{dst}, s{dst}, 1")
    if not OPT.get("worot", 1):
        a(f"s_mov_b32 s{dst}, 0")

def wo_chunk(left, fadd):
    if left:
        a(f"s_mul_i32 s{sK}, s{sV}, {288*1152}\ns_add_u32 s{sK}, s{sK}, {64*1152}")
        steps = (4, 140, 4); v8, v2 = VWO + 1, VWO + 3
    else:
        a(f"""
s_add_u32 s{sT}, s56, {fadd}
s_bfe_u32 s{sK}, s{sT}, 0x30001
s_mul_i32 s{sK}, s{sK}, {72*1152}
s_bitcmp1_b32 s{sT}, 0
s_cselect_b32 s{sT}, {32*1152}, 0
s_add_u32 s{sK}, s{sK}, s{sT}
""")
        steps = (16, -8, 16); v8, v2 = VWO, VWO + 2
    a(f"s_mov_b32 s{sT2}, s{sK}")
    for j in range(4):
        dma(v8, SWO, f"s{sK}")
        a("s_addk_i32 m0, 1024")
        a(f"s_add_u32 s{sK}, s{sK}, {steps[j]*1152 & 0xffffffff}" if j < 3 else "s_nop 0")
    dma(v2, SWO, f"s{sT2}")
    return 5

def wo_issue(q):
    packed = sum((WO[2 + 4*q + w] // 1024) << (8 * w) for w in range(4))
    a(f"s_lshr_b32 s{sT}, {packed}, s57\ns_and_b32 s{sT}, s{sT}, 0xff\ns_lshl_b32 m0, s{sT}, 10")
    return wo_chunk(False, 4*q)

def wo_pair(g):
    a(f"s_mul_i32 s{sT}, s{sV}, {WO[2*g+1] - WO[2*g] & 0xffffffff}\ns_add_u32 m0, s{sT}, {WO[2*g]}")
    return wo_chunk(g == 0, 2*g - 2)

def sync_setup():
    a(f"""
s_lshl_b32 s{sT}, s{sBR}, 4
s_add_u32 s{sT}, s{sT}, s{sRB}
s_lshl_b32 s{sT2}, s{sT}, 8
s_add_u32 s{sT2}, s{sT2}, {WS_CNT}
s_add_u32 s{sOC}, s{SWS}, s{sT2}
s_addc_u32 s{sOC+1}, s{SWS+1}, 0
s_lshl_b32 s{sT}, s{sT}, 2
s_add_u32 s98, s{sT}, 32
s_lshl_b32 s99, s{sHG}, 2
s_mul_i32 s{sT2}, s{sHG}, {KV_ST}
s_add_u32 s{sT2}, s{sT2}, {WS_KV + 6144}
s_add_u32 s{sKC}, s{SWS}, s{sT2}
s_addc_u32 s{sKC+1}, s{SWS+1}, 0
""")

def loader_tail(tag, late=()):
    if tag[1] == "X":
        flag_check(sFO, 98, f"L_{tag}_fo")
    a("s_barrier")
    stamp()
    for g in late:
        wo_pair(g)
    if tag[1] == "X":
        a(f"s_cmp_eq_u32 s{sWAVE}, 6\ns_cbranch_scc0 L_{tag}_oc_x")
        arrive_wait(sOC, 8, f"L_{tag}_oc")
    a("s_waitcnt vmcnt(0)")
    stamp()
    a("s_barrier")
    stamps_out()
    a("s_endpgm")

def a_loader(kind):
    a(f"L_A{kind}1:")
    m = M0(42)
    issue = (lambda c: w_issue("A", c, m)) if kind == "W" else (lambda c: x_issue("A", c, m))
    pre = 1 if OPT.get("early") and kind == "W" else 2
    cnt = {c: issue(c) for c in range(1, pre + 1)}
    stamp()
    x_lane(8, 9, 1)
    rd_lanes(36, 12, 1, 2)
    a(f"""
v_add_u32 v8, {A_X0 + 8*2048}, v8
v_add_u32 v9, {A_X0 + 8*2048}, v9
s_lshl_b32 s{sT}, s{sV}, 6
v_xor_b32 v10, s{sT}, v36
v_add_u32 v10, {4096 if kind == 'W' else 8192}, v10
v_xor_b32 v11, 32, v10
v_add_u32 v12, {12288 if kind == 'W' else 13312}, v12
v_add_u32 v13, {4*A_WSLOT}, v10
v_add_u32 v14, {4*A_WSLOT}, v11
v_add_u32 v15, {4*A_WSLOT}, v12
s_lshl_b32 s{sT}, s{sV}, 10
s_add_u32 s{sT}, s{sT}, {A_EX + (0 if kind == 'W' else 2560)}
v_lshlrev_b32 v7, 3, v0
v_add_u32 v6, s{sT}, v7
v_add_u32 v7, {A_EX + (2048 if kind == 'W' else 4608)}, v7
""")
    stamp()
    a(f"s_waitcnt vmcnt({sum(cnt.values())})\ns_barrier")
    stamp()
    extra = 0
    for i in range(-1, 17):
        ks = i + 1
        slot = ks % 5
        off = 0 if slot == 4 else slot * A_WSLOT
        ad = (13, 14, 15) if slot == 4 else (10, 11, 12)
        a(f"ds_read_b128 v[40:43], v{8 + ks % 2} offset:{(ks//2 % 3)*A_XSLOT}")
        for j in range(3 if OPT.get("nohalo", 0) < 2 else 0):
            a(tr(44 + 4*j, ad[j], off)); a(tr(46 + 4*j, ad[j], off + (1024 if j < 2 else 256)))
        if i == -1 and pre == 1:
            cnt[2] = issue(2)
        if i + 4 <= 17:
            cnt[i+4] = issue(i + 4)
        a("s_waitcnt lgkmcnt(0)")
        for j in range(3 if not OPT.get("nohalo") else 0):
            c = 60 + 4*j if ks else "0"
            a(mf(60 + 4*j, 44 + 4*j, 40, c) if kind == "W" else mf(60 + 4*j, 40, 44 + 4*j, c))
        if i == 1:
            srds_rest(); sync_setup()
        if i == 2:
            wo_setup(True)
        if i == 14 and kind == "W":
            extra += wo_pair(0)
        if i == 15:
            extra += wo_issue(0)
        if i + 1 <= 16:
            left = sum(cnt.get(c, 0) for c in range(i + 3, min(i + 4, 17) + 1)) + extra
            a(f"s_waitcnt vmcnt({left})\ns_barrier")
            if OPT.get("fine") and kind == "W" and i % 2 == 1 and 0 < i < 14:
                stamp()
    for j in range(3):
        a(cv(44 + 2*j, 60 + 4*j)); a(cv(45 + 2*j, 62 + 4*j))
    if kind == "W":
        a("v_mov_b32 v50, 0\nv_mov_b32 v51, 0")
        a("v_permlane32_swap_b32 v48, v50\nv_permlane32_swap_b32 v49, v51")
    a("ds_write_b64 v6, v[44:45]\nds_write_b64 v6, v[46:47] offset:512")
    a(f"ds_write_b64 v7, {'v[50:51]' if kind == 'W' else 'v[48:49]'}")
    stamp()
    a("s_waitcnt lgkmcnt(0)\ns_barrier")
    if kind == "X":
        flag_load(sFO, 98)
    wo_issue(1); wo_issue(2); wo_issue(3)
    stamp()
    loader_tail("A" + kind)

def o_store_addr(vfull, vleft, tmp, left_lo):
    a(f"""
s_lshl_b32 s{sT}, s{sRB}, 3
s_lshl_b32 s{sT2}, s{sWAVE}, 1
s_add_u32 s{sT}, s{sT}, s{sT2}
s_mul_i32 s{sT}, s{sT}, 18432
s_mul_i32 s{sT2}, s{sBR}, {O_BR}
s_add_u32 s58, s{sT}, s{sT2}
s_lshl_b32 s{sT2}, s{sHG}, 11
s_add_u32 s{sT2}, s{sT2}, s58
v_lshl_add_u32 v{vfull}, v0, 4, s{sT2}
s_lshr_b32 s{sT2}, s{sHG}, 2
s_add_u32 s{sT2}, s{sT2}, 16
s_lshl_b32 s{sT2}, s{sT2}, 10
s_add_u32 s{sT}, s58, s{sT2}
s_and_b32 s{sT2}, s{sHG}, 3
s_lshl_b32 s{sT2}, s{sT2}, 8
s_add_u32 s{sT}, s{sT}, s{sT2}
v_and_b32 v{vleft}, 15, v0
v_lshlrev_b32 v{vleft}, 4, v{vleft}
v_bfe_u32 v{tmp}, v0, 4, 1
v_lshl_add_u32 v{vleft}, v{tmp}, 3, v{vleft}
v_add_u32 v{vleft}, s{sT}, v{vleft}
v_mov_b32 v{tmp}, {OOB}
""")
    x, y = (tmp, vleft) if left_lo else (vleft, tmp)
    a(f"v_cndmask_b32 v{vleft}, v{x}, v{y}, s[{sG01}:{sG01+1}]")

def o_store(of, vfull, vleft, rt):
    so = f"s{sK}" if rt else "0"
    if rt:
        a(f"s_movk_i32 s{sK}, 18432")
    a(f"buffer_store_dwordx4 {vr(of,4)}, v{vfull}, s[{SWS}:{SWS+3}], {so} offen sc1")
    a(f"buffer_store_dwordx4 {vr(of+4,4)}, v{vfull}, s[{SWS}:{SWS+3}], {so} offen offset:1024 sc1")
    a(f"buffer_store_dwordx2 {vr(of+8,2)}, v{vleft}, s[{SWS}:{SWS+3}], {so} offen sc1")

def gap_touch(tag, parts):
    if not OPT.get("touch"):
        return
    nt = " nt" if OPT.get("tnt") else ""
    a(f"""
s_cmp_eq_u32 s{sWAVE}, 1
s_cbranch_scc1 L_{tag}_tw
s_cmp_eq_u32 s{sWAVE}, 2
s_cbranch_scc0 L_{tag}_tx
s_and_b32 s{sT}, s{sRB}, 7
s_cmp_eq_u32 s{sT}, 0
s_cselect_b32 s{sT}, 9, s{sT}
s_sub_u32 s{sT}, s{sT}, 1
s_lshl_b32 s{sT}, s{sT}, 7
s_and_b32 s{sT2}, s{sHG}, 3
s_lshl_b32 s{sT2}, s{sT2}, 5
s_lshl_b32 s{sT3}, s{sRB}, 7
s_add_u32 s{sT2}, s{sT2}, s{sT3}
v_and_b32 v1, 31, v0
v_add_u32 v1, s{sT2}, v1
v_mul_u32_u24 v1, 1152, v1
""")
    srd(SX, 36, 2359296)
    a(f"""
buffer_load_dword v26, v1, s[{SX}:{SX+3}], s{sT} offen{nt}
s_branch L_{tag}_tx
L_{tag}_tw:
s_and_b32 s{sT}, s{sHG}, 3
s_lshl_b32 s{sT}, s{sT}, 1
s_cmp_eq_u32 s{sT}, 0
s_cselect_b32 s{sT}, 9, s{sT}
s_sub_u32 s{sT}, s{sT}, 1
s_lshl_b32 s{sT}, s{sT}, 3
s_and_b32 s{sT2}, s{sRB}, 7
s_add_u32 s{sT}, s{sT}, s{sT2}
s_mul_i32 s{sT}, s{sT}, {8*3456}
s_add_u32 s{sT}, s{sT}, s{sM}
v_lshrrev_b32 v1, 3, v0
v_mul_u32_u24 v1, 3456, v1
v_bfe_u32 v2, v0, 1, 2
v_min_u32 v2, {parts-1}, v2
v_mul_u32_u24 v2, 1152, v2
v_and_b32 v3, 1, v0
v_mul_u32_u24 v3, 140, v3
v_add3_u32 v1, v1, v2, v3
""")
    srd(SW, 38, 1990656)
    a(f"buffer_load_dword v26, v1, s[{SW}:{SW+3}], s{sT} offen offset:{1152*(3-parts)}{nt}\nL_{tag}_tx:")

def init_stores(tag, with_kv):
    if OPT.get("xcc"):
        a(f"s_getreg_b32 s{sT}, hwreg(HW_REG_XCC_ID, 0, 4)\nv_mov_b32 v2, s{sT}\ns_lshl_b32 s{sT}, s2, 2\ns_add_u32 s{sT}, s{sT}, 0x6f0000\nv_mov_b32 v1, s{sT}\nbuffer_store_dword v2, v1, s[{SWS}:{SWS+3}], 0 offen sc1")
    a(f"""
s_or_b32 s{sT}, s{sHG}, s{sWAVE}
s_cmp_eq_u32 s{sT}, 0
s_cselect_b32 s55, 1, 0
v_mov_b32 v20, 0
v_mov_b32 v21, 0
v_mov_b32 v22, 0
v_mov_b32 v23, 0
s_cbranch_scc0 L_{tag}_i1
s_lshl_b32 s{sT}, s{sBR}, 4
s_add_u32 s{sT}, s{sT}, s{sRB}
s_lshl_b32 s{sT}, s{sT}, 8
s_add_u32 s{sT}, s{sT}, {WS_CNT}
v_mov_b32 v24, s{sT}
buffer_store_dword v20, v24, s[{SWS}:{SWS+3}], 0 offen sc1
L_{tag}_i1:
""")
    if with_kv:
        a(f"""
s_or_b32 s{sT}, s{sRB}, s{sWAVE}
s_cmp_eq_u32 s{sT}, 0
s_cbranch_scc0 L_{tag}_i2
s_or_b32 s55, s55, 2
s_mul_i32 s{sT}, s{sHG}, {KV_ST}
s_add_u32 s{sT}, s{sT}, {WS_KV}
v_lshl_add_u32 v24, v0, 4, s{sT}
""")
        for j in range(7):
            a(f"s_movk_i32 s{sK}, {1024*j}\nbuffer_store_dwordx4 v[20:23], v24, s[{SWS}:{SWS+3}], s{sK} offen sc1")
        a(f"L_{tag}_i2:")

def init_flags(tag):
    a(f"""
s_waitcnt vmcnt(0)
s_cmp_eq_u32 s55, 0
s_cbranch_scc1 L_{tag}_f2
v_mov_b32 v20, 1
s_bitcmp1_b32 s55, 0
s_cbranch_scc0 L_{tag}_f1
s_lshl_b32 s{sT}, s{sBR}, 4
s_add_u32 s{sT}, s{sT}, s{sRB}
s_lshl_b32 s{sT}, s{sT}, 2
s_add_u32 s{sT}, s{sT}, 32
v_mov_b32 v24, s{sT}
buffer_store_dword v20, v24, s[{SDBG}:{SDBG+3}], 0 offen sc1
L_{tag}_f1:
s_bitcmp1_b32 s55, 1
s_cbranch_scc0 L_{tag}_f2
s_lshl_b32 s{sT}, s{sHG}, 2
v_mov_b32 v25, s{sT}
buffer_store_dword v20, v25, s[{SDBG}:{SDBG+3}], 0 offen sc1
L_{tag}_f2:
""")

def kstep(tiles, nxt_reads, first, waits):
    pend = list(first)
    for t, (m0_, m1_) in enumerate(tiles):
        if t in waits:
            a(waits[t])
        a(m0_)
        for x in pend: a(x)
        a(m1_)
        pend = []
        if nxt_reads:
            a(nxt_reads[t][0]); pend = [nxt_reads[t][1]]
    for x in pend: a(x)

def a_consumer():
    acc = lambda t, rt: 144 + (t * 2 + rt) * 4
    wf = lambda t: 88 + 4 * t
    xf = lambda buf, rt: 72 + buf * 8 + rt * 4
    R8, R2, R8b, R2b, aX = 1, 5, 6, 10, 11
    vOF, vOL, vEXW, vEXR = 13, 14, 15, 16
    MC, MP, MPF, PM = 56, 60, 64, 68
    a("L_AC:\ns_waitcnt lgkmcnt(0)")
    gap_touch("AC", 3)
    srds_rest()
    init_stores("AC", False)
    rd_lanes(R8, R2, 17, 18); x_lane(aX, aX + 1, 17)
    for j in range(5):
        a(f"v_add_u32 v{R8b+j}, {4*A_WSLOT}, v{R8+j}")
    a(f"""
s_lshl_b32 s{sT}, s{sWAVE}, 12
s_add_u32 s{sT}, s{sT}, {A_X0}
v_add_u32 v{aX}, s{sT}, v{aX}
v_add_u32 v{aX+1}, s{sT}, v{aX+1}
s_lshr_b32 s{sT}, s{sWAVE}, 1
s_lshl_b32 s{sT}, s{sT}, 3
v_and_b32 v17, 15, v0
v_xor_b32 v17, s{sT}, v17
v_lshrrev_b32 v18, 4, v0
v_lshlrev_b32 v18, 2, v18
v_xor_b32 v18, s{sT}, v18
v_sub_u32 v17, v17, v18
v_mov_b32 v19, {NEG}
s_and_b32 s{sT}, s{sWAVE}, 1
s_or_b32 s{sT}, s{sT}, s{sRB}
s_cmp_eq_u32 s{sT}, 0
s_cselect_b64 s[42:43], -1, 0
""")
    for r in range(4):
        a(f"""
v_subrev_u32 v18, {r}, v17
v_cmp_gt_u32 vcc, 8, v18
v_cndmask_b32 v{MC+r}, v19, 0, vcc
v_cmp_gt_i32 vcc, -8, v18
v_cndmask_b32 v{MP+r}, v19, 0, vcc
v_cndmask_b32 v{MPF+r}, v{MP+r}, v19, s[42:43]
v_cmp_lt_i32 vcc, -1, v18
v_mov_b32 v20, {'0xffff' if r % 2 == 0 else '0xffff0000'}
v_cndmask_b32 v20, 0, v20, vcc
""")
        a(f"v_mov_b32 v{PM + r//2}, v20" if r % 2 == 0 else f"v_or_b32 v{PM + r//2}, v{PM + r//2}, v20")
    o_store_addr(vOF, vOL, 17, True)
    a(f"""
s_lshr_b32 s{sT}, s{sWAVE}, 1
s_add_u32 s{sT}, s{sT}, 1
s_mul_i32 s{sT}, s{sT}, 5120
s_bitcmp1_b32 s{sWAVE}, 0
s_cselect_b32 s{sT3}, s{sT}, 0
v_lshlrev_b32 v17, 3, v0
v_add_u32 v17, {A_EX}, v17
v_add_u32 v{vEXW}, s{sT}, v17
v_add_u32 v{vEXR}, s{sT3}, v17
""")

    def wreads(ks, t):
        slot = ks % 5
        o = 0 if slot == 4 else slot * A_WSLOT
        r8, r2 = (R8b, R2b) if slot == 4 else (R8, R2)
        if t == 4 or t == 13:
            o += 12288 if t == 4 else 13312
            return [tr(wf(t), r2, o), tr(wf(t) + 2, r2, o + 256)]
        s, j = (0, t) if t < 4 else (1, t - 5) if t < 9 else (2, t - 9)
        return [tr(wf(t), r8 + j, o + 4096*s), tr(wf(t) + 2, r8 + j, o + 4096*s + 1024)]
    xread = lambda ks, rt: f"ds_read_b128 {vr(xf(ks % 2, rt),4)}, v{aX + ks % 2} offset:{(ks//2 % 3)*A_XSLOT + rt*2048}"

    stamp()
    a("s_barrier")
    stamp()
    a(xread(0, 0)); a(xread(0, 1))
    for t in range(14):
        for x in wreads(0, t): a(x)
    for ks in range(18):
        if ks < 17:
            a("s_barrier")
        if OPT.get("fine") == 2 and ks in (2, 5, 8, 11, 14):
            stamp()
        if ks == 3:
            init_flags("AC")
        tiles = []
        for t in range(14):
            c = lambda rt: acc(t, rt) if ks else "0"
            tiles.append([mf(acc(t, rt), wf(t), xf(ks % 2, rt), c(rt)) if t < 9 else mf(acc(t, rt), xf(ks % 2, rt), wf(t), c(rt)) for rt in range(2)])
        if ks < 17:
            nxt = [wreads(ks + 1, t) for t in range(14)]
            nxt[1] = [nxt[1][0], nxt[1][1] + "\n" + xread(ks + 1, 1)]
            kstep(tiles, nxt, [xread(ks + 1, 0)], {0: "s_waitcnt lgkmcnt(14)", 7: "s_waitcnt lgkmcnt(15)", 12: "s_waitcnt lgkmcnt(15)"})
        else:
            kstep(tiles, None, [], {0: "s_waitcnt lgkmcnt(14)", 7: "s_waitcnt lgkmcnt(0)"})
    stamp()
    KP = lambda j: 18 + 10 * j
    QT = lambda rt, h: 88 + 16 * rt + 4 * h
    VP = lambda t, j: 120 + 6 * t + 2 * j if t < 4 else 48 + 2 * j
    ONE = 72
    def pack_kv(rt):
        o = []
        for q in range(2):
            o += [cv(QT(rt, 3) + 2 + q, acc(4, rt) + 2*q), f"v_mov_b32 v{KP(1+rt) + 8 + q}, 0"]
        for tau in range(4):
            o += [cv(KP(1+rt) + 2*tau + q, acc(5+tau, rt) + 2*q) for q in range(2)]
        o += [f"v_permlane32_swap_b32 v{QT(rt,3) + 2 + q}, v{KP(1+rt) + 8 + q}" for q in range(2)]
        for t in range(5):
            o += [cv(VP(t, 1+rt) + q, acc(9+t, rt) + 2*q) for q in range(2)]
        return o
    def pack_q(rt):
        o = []
        for t in range(4):
            for q in range(2):
                d = QT(rt, t) + q
                o.append(cv(d, acc(t, rt) + 2*q))
                if (t, q) in SPLITS:
                    m = SPLITS[(t, q)]; lo = QT(rt, t-1) + 2 + q
                    o += [f"v_cndmask_b32 v{lo}, 0, v{d}, s[{m}:{m+1}]", f"v_xor_b32 v{d}, v{d}, v{lo}"]
        return o + [f"v_mov_b32 v{QT(rt,0) + 3}, 0"]
    weave([], pack_kv(1))
    a(f"s_bitcmp1_b32 s{sWAVE}, 0\ns_cbranch_scc1 L_AC_nodump")
    for j in range(5):
        a(f"ds_write_b64 v{vEXW}, {vr(KP(2) + 2*j, 2)} offset:{512*j}")
        a(f"ds_write_b64 v{vEXW}, {vr(VP(j, 2), 2)} offset:{512*(5+j)}")
    a("L_AC_nodump:")
    weave([], pack_kv(0) + pack_q(1))
    a("s_waitcnt lgkmcnt(0)\ns_barrier")
    for j in range(5):
        a(f"ds_read_b64 {vr(KP(0) + 2*j, 2)}, v{vEXR} offset:{512*j}")
        a(f"ds_read_b64 {vr(VP(j, 0), 2)}, v{vEXR} offset:{512*(5+j)}")
    SC = lambda rt, h: (224 if rt else 184) + 8 * h
    MX = lambda rt: [76 + 4 * rt + h for h in range(4)]
    PT = lambda rt, h: 144 + 16 * rt + 4 * h
    def qk(rt):
        o = []
        for h in range(4):
            o += [mf(SC(rt, h), KP(1+rt) + 2*h, QT(rt, h), MC), mf(SC(rt, h) + 4, KP(rt) + 2*h, QT(rt, h), MP if rt else MPF)]
        return o
    def rowmax(rt):
        o = []
        for h in range(4):
            s = SC(rt, h); m = MX(rt)[h]
            o += [f"v_max_f32 v{s+r}, v{s+r}, v{s+4+r}" for r in range(4)]
            o += [f"v_max3_f32 v{m}, v{s}, v{s+1}, v{s+2}", f"v_max_f32 v{m}, v{m}, v{s+3}"]
        return o
    def xmax(rt):
        m = MX(rt)
        return [f"v_permlane32_swap_b32 v{m[0]}, v{m[1]}", f"v_permlane32_swap_b32 v{m[2]}, v{m[3]}",
                f"v_max_f32 v{m[0]}, v{m[0]}, v{m[1]}", f"v_max_f32 v{m[2]}, v{m[2]}, v{m[3]}",
                f"v_permlane16_swap_b32 v{m[0]}, v{m[2]}", f"v_max_f32 v{m[0]}, v{m[0]}, v{m[2]}",
                f"v_mul_f32 v{m[0]}, s{sT2}, v{m[0]}", f"v_mov_b32 v{m[2]}, v{m[0]}",
                f"v_permlane16_swap_b32 v{m[0]}, v{m[2]}", f"v_mov_b32 v{m[1]}, v{m[0]}", f"v_mov_b32 v{m[3]}, v{m[2]}",
                f"v_permlane32_swap_b32 v{m[0]}, v{m[1]}", f"v_permlane32_swap_b32 v{m[2]}, v{m[3]}"]
    def probs(rt):
        o = []
        for h in range(4):
            s = SC(rt, h); p = PT(rt, h)
            o += [f"v_fma_f32 v{s+r}, v{s+r}, s{sT}, v{MX(rt)[h]}" for r in range(4)]
            o += [f"v_exp_f32 v{s+r}, v{s+r}" for r in range(4)]
            if h:
                o += split(rt, h - 1)
        return o + split(rt, 3)
    def split(rt, h):
        s = SC(rt, h); p = PT(rt, h); o = []
        for q in range(2):
            o += [cv(p + q, s + 2*q), f"v_and_b32 v{p+2+q}, v{p+q}, v{PM+q}", f"v_xor_b32 v{p+q}, v{p+q}, v{p+2+q}"]
        return o
    OB = lambda rt, t: (224 if rt else 184) + 4 * t
    OA = lambda rt, t: (224 if rt else 184) + 12 + 4 * t
    SM = lambda rt, h: 88 + 16 * rt + 4 * h
    OF = lambda rt: 18 + 10 * rt
    def pv(rt):
        o = [mf(SM(rt, h), ONE, PT(rt, h), "0") for h in range(4)]
        for t in range(5):
            if t < 4: o.append(mf(OB(rt, t), VP(t, rt), PT(rt, t), "0"))
            if t > 0: o.append(mf(OA(rt, t), VP(t, rt), PT(rt, t-1), "0"))
        return o
    def finish(rt):
        o = [f"v_rcp_f32 v{SM(rt,h)}, v{SM(rt,h)}" for h in range(4)]
        for t in range(5):
            for q in range(2):
                d = OF(rt) + 2*t + q
                srcs = []
                if t < 4: srcs.append((OB(rt, t) + 2*q, SM(rt, t), d))
                if t == 4: srcs.append((OA(rt, t) + 2*q, SM(rt, 3), d))
                if (t, q) in SPLITS: srcs.append((OA(rt, t) + 2*q, SM(rt, t-1), 17))
                for x, inv, dd in srcs:
                    o += [f"v_mul_f32 v{x}, v{x}, v{inv}", f"v_mul_f32 v{x+1}, v{x+1}, v{inv}", cv(dd, x)]
                if (t, q) in SPLITS:
                    m = SPLITS[(t, q)]
                    o.append(f"v_cndmask_b32 v{d}, v{d}, v17, s[{m}:{m+1}]")
        return o
    a(f"s_mov_b32 s{sT}, {f32(CSC)}\ns_mov_b32 s{sT2}, {f32(-CSC)}")
    weave(qk(1), pack_q(0) + [f"v_mov_b32 v{ONE+j}, 0x3f803f80" for j in range(4)])
    a("s_waitcnt lgkmcnt(0)")
    weave(qk(0), rowmax(1))
    x1, x0 = xmax(1), xmax(0)
    r0 = rowmax(0)
    for i, x in enumerate(x1):
        a(x)
        for y in r0[2*i:2*i+2]: a(y)
    p1 = probs(1)
    for i, x in enumerate(x0):
        a(x)
        for y in p1[2*i:2*i+2]: a(y)
    weave([], p1[2*len(x0):])
    weave(pv(1), probs(0))
    weave(pv(0), finish(1))
    o_store(OF(1), vOF, vOL, 1)
    weave([], finish(0))
    o_store(OF(0), vOF, vOL, 0)
    stamp()
    a("s_branch L_P2")

def phi(r, n, t):
    o = [f"v_pk_fma_f32 {vr(t+j,2)}, {vr(r+j,2)}, s[56:57], v[14:15]" for j in range(0, n, 2)]
    for j in range(n):
        o += [f"v_exp_f32 v{t+j}, v{t+j} clamp", f"v_max_f32 v{r+j}, s{sT2}, v{r+j}"]
    return o + [f"v_pk_add_f32 {vr(r+j,2)}, {vr(r+j,2)}, {vr(t+j,2)}" for j in range(0, n, 2)]

def b_consumer():
    acc = lambda t, rt: 184 + (t * 2 + rt) * 4
    wf = lambda t: 148 + 4 * t
    xf = lambda ks, rt: 52 + ks * 8 + rt * 4 if ks < 12 else 36 + (ks % 2) * 8 + rt * 4
    R8, R2, aX = 1, 5, 6
    vOF, vOL, vEX = 8, 9, 10
    CK, CS = 28, 32
    a("L_BC:\ns_waitcnt lgkmcnt(0)")
    gap_touch("BC", 2)
    srds_rest()
    init_stores("BC", True)
    rd_lanes(R8, R2, 17, 18); x_lane(aX, aX + 1, 17)
    a(f"""
s_lshl_b32 s{sT}, s{sWAVE}, 12
s_add_u32 s{sT}, s{sT}, {B_X0}
v_add_u32 v{aX}, s{sT}, v{aX}
v_add_u32 v{aX+1}, s{sT}, v{aX+1}
v_and_b32 v17, 15, v0
v_cmp_gt_u32 vcc, 8, v17
v_mov_b32 v18, {EPS}
s_mov_b64 s[42:43], vcc
s_mul_i32 s{sT}, s{sWAVE}, 10240
s_add_u32 s{sT}, s{sT}, {B_EX}
v_lshl_add_u32 v{vEX}, v0, 4, s{sT}
v_mov_b32 v14, {f32(-1e-6*LOG2E)}
v_mov_b32 v15, v14
s_mov_b32 s56, {f32(LOG2E)}
s_mov_b32 s57, s56
""")
    for r in range(4):
        a(f"v_mov_b32 v{CK+r}, v18\nv_cndmask_b32 v{CS+r}, 0, v18, vcc")
    o_store_addr(vOF, vOL, 17, False)

    def wreads(ks, t):
        o = (ks % 5) * B_KVSLOT
        if t == 4:
            return [tr(wf(t), R2, o + 8192), tr(wf(t) + 2, R2, o + 8192 + 256)]
        s, j = (0, t) if t < 4 else (1, t - 5)
        return [tr(wf(t), R8 + j, o + 4096*s), tr(wf(t) + 2, R8 + j, o + 4096*s + 1024)]
    xread = lambda ks, rt: f"ds_read_b128 {vr(xf(ks, rt),4)}, v{aX + ks % 2} offset:{(ks//2 % 3)*B_XSLOT + rt*2048}"

    stamp()
    a("s_barrier")
    stamp()
    a(xread(0, 0)); a(xread(0, 1))
    for t in range(9):
        for x in wreads(0, t): a(x)
    for ks in range(18):
        if ks < 17:
            a("s_barrier")
        if ks == 3:
            init_flags("BC")
        tiles = [[mf(acc(t, rt), xf(ks, rt), wf(t), acc(t, rt) if ks else (CK if t < 4 else CS if t == 4 else "0")) for rt in range(2)] for t in range(9)]
        if ks < 17:
            nxt = [wreads(ks + 1, t) for t in range(9)]
            nxt[1] = [nxt[1][0], nxt[1][1] + "\n" + xread(ks + 1, 1)]
            kstep(tiles, nxt, [xread(ks + 1, 0)], {0: "s_waitcnt lgkmcnt(12)", 3: "s_waitcnt lgkmcnt(13)", 6: "s_waitcnt lgkmcnt(13)", 8: "s_waitcnt lgkmcnt(11)"})
        else:
            kstep(tiles, None, [], {0: "s_waitcnt lgkmcnt(12)", 3: "s_waitcnt lgkmcnt(0)\ns_barrier"})
    stamp()
    a(f"s_mov_b32 s{sT2}, {EPS}\nv_mov_b32 v16, 0x3f803f80")
    wr = lambda reg, slot: f"ds_write_b128 v{vEX}, {vr(reg,4)} offset:{1024*slot}"
    pk = lambda d, s: [cv(d + j, s + 2*j) for j in range(4)]
    weave([], pk(156, acc(4, 0)) + [f"v_cndmask_b32 v{156+j}, v{156+j}, v16, s[42:43]" for j in range(4)] + [wr(156, 9)])
    xq = lambda ks, rt: 168 + (ks - 12) * 8 + rt * 4 if ks in (12, 13) else acc(2 * (ks - 14) + rt, 1) if ks in (14, 15) else xf(ks, rt)
    reread = lambda ks, rt: f"ds_read_b128 {vr(xq(ks, rt),4)}, v{aX + ks % 2} offset:{(ks//2 % 3)*B_XSLOT + rt*2048}"
    weave([], [reread(ks, rt) for ks in (12, 13) for rt in range(2)])
    for tau in range(5):
        o = phi(acc(tau, 0), 8, 148)
        if tau < 4:
            o = pk(acc(5+tau, 0), acc(5+tau, 0)) + o[:8] + [wr(acc(5+tau, 0), 5 + tau)] + o[8:]
        weave([], o + pk(acc(tau, 0), acc(tau, 0)) + [wr(acc(tau, 0), tau)])
        if tau < 4:
            a(reread(14 + tau // 2, tau % 2))
    for j in range(5):
        a(f"v_add_u32 v{R8+j}, {B_WQ0}, v{R8+j}")
    a("s_waitcnt lgkmcnt(0)\ns_barrier")
    stamp()
    QA = lambda t, rt: 216 + (t * 2 + rt) * 4
    qf = lambda t: 148 + 4 * t
    qbase = lambda p: B_WQ0 if p < 4 else 0 if p < 7 else 15360
    def qreads(p, t):
        o = wq_slot(p) - qbase(p)
        if t == 4:
            return [tr(qf(t), R2, o + 4096), tr(qf(t) + 2, R2, o + 4096 + 256)]
        return [tr(qf(t), R8 + t, o), tr(qf(t) + 2, R8 + t, o + 1024)]
    for t in range(5):
        for x in qreads(0, t): a(x)
    for p in range(18):
        ks = QORD[p]
        if p == 7 or (p == 13 and OPT.get('wob', 0)):
            a("s_barrier")
        tiles = [[mf(QA(t, rt), qf(t), xq(ks, rt), QA(t, rt) if p else CK) for rt in range(2)] for t in range(5)]
        if p < 17:
            nxt = [qreads(p + 1, t) for t in range(5)]
            if qbase(p + 1) != qbase(p):
                d = (qbase(p + 1) - qbase(p)) & 0xffffffff
                for t in range(5):
                    nxt[t][0] = f"v_add_u32 v{R8+t}, {d}, v{R8+t}\n" + nxt[t][0]
            kstep(tiles, nxt, [], {t: f"s_waitcnt lgkmcnt({7 if t else 8})" for t in range(5)})
        else:
            kstep(tiles, None, [], {t: f"s_waitcnt lgkmcnt({8 - 2*t})" for t in range(5)})
    stamp()
    PQ = lambda rt: 36 + 10 * rt
    KO = 84
    tup = {0: KO, 1: KO + 4, 2: KO + 12, 3: KO + 20, 4: KO + 28}
    ZO = KO + 32
    weave([], [f"v_mov_b32 v{r}, 0" for r in (tup[1]+4, tup[1]+5, tup[2]+4, tup[2]+5, tup[3]+4, tup[3]+5, ZO+8, ZO+9)])
    a(f"v_lshlrev_b32 v16, 3, v0\nv_add_u32 v16, {B_KVOP}, v16")
    for t in range(5):
        weave([], phi(QA(t, 0), 8, 148) + [cv(PQ(rt) + 2*t + q, QA(t, rt) + 2*q) for rt in range(2) for q in range(2)])
    stamp()
    a("s_barrier")
    stamp()
    tid = lambda tau, taup: {-1: tau - 1, 0: 4 + tau, 1: 9 + tau}[taup - tau]
    rd = lambda d, slot: a(f"ds_read_b64 {vr(d,2)}, v16 offset:{512*slot}")
    for j, d in enumerate((ZO, ZO + 2, ZO + 4, ZO + 6, ZO + 10)):
        rd(d, 13 + j)
    rd(tup[0], tid(0, 0)); rd(tup[0] + 2, tid(1, 0))
    for t in (1, 2, 3):
        rd(tup[t], tid(t-1, t)); rd(tup[t] + 2, tid(t, t)); rd(tup[t] + 6, tid(t+1, t))
    rd(tup[4], tid(3, 4)); rd(tup[4] + 2, tid(4, 4))
    DN = lambda rt: 148 + 4 * rt
    NM = lambda rt, t: 184 + 20 * rt + 4 * t
    OF = lambda rt: 156 + 10 * rt
    a("s_waitcnt lgkmcnt(13)")
    for k, (zo, po) in enumerate(((0, 0), (4, 4), (8, 6))):
        for rt in range(2):
            a(mf(DN(rt), ZO + zo, PQ(rt) + po, DN(rt) if k else CK))
    a("s_waitcnt lgkmcnt(0)")
    def num(rt):
        o = [mf(NM(rt, t), tup[t], PQ(rt) + 2*(t-1), "0") for t in (1, 2, 3)]
        o += [mf(NM(rt, 0), tup[0], PQ(rt), "0"), mf(NM(rt, 4), tup[4], PQ(rt) + 6, "0")]
        return o + [mf(NM(rt, t), tup[t] + 4, PQ(rt) + 2*t, NM(rt, t)) for t in (1, 2, 3)]
    def fin(rt, packed):
        o = []
        for t in (0, 4, 1, 2, 3):
            for q in range(2):
                inv = DN(rt) + min(t, 3)
                if (t, q) in SPLITS:
                    m = SPLITS[(t, q)]
                    o.append(f"v_cndmask_b32 v17, v{DN(rt)+t}, v{DN(rt)+t-1}, s[{m}:{m+1}]")
                    inv = 17
                n = NM(rt, t) + 2*q
                o += [f"v_mul_f32 v{n}, v{n}, v{inv}", f"v_mul_f32 v{n+1}, v{n+1}, v{inv}", cv(OF(rt) + 2*t + q, n)]
        return o
    weave(num(0), [], 0)
    weave(num(1), [f"v_rcp_f32 v{DN(rt)+h}, v{DN(rt)+h}" for rt in range(2) for h in range(4)], 1)
    for rt in range(2):
        weave([], fin(rt, True))
        o_store(OF(rt), vOF, vOL, rt)
    stamp()

def kv_index(wreg, VS, VG, VZ):
    a(f"s_cmp_eq_u32 s{wreg}, 0\ns_cselect_b32 s58, 4, s{wreg}")
    for slot in range(3):
        if slot == 0:
            a(f"s_lshl_b32 s{sT}, s58, 4\ns_sub_u32 s{sT2}, s{sT}, 16\ns_mov_b64 s[46:47], 0")
        elif slot == 1:
            a(f"s_lshl_b32 s{sT}, s{wreg}, 4\ns_mov_b32 s{sT2}, s{sT}")
        else:
            a(f"s_add_u32 s{sT2}, s{sT}, 16\ns_cmp_eq_u32 s{wreg}, 3\ns_cselect_b32 s{sT2}, 56, s{sT2}\ns_cselect_b64 s[46:47], s[44:45], 0")
        kv_tile(VS and VS + 2*slot, VG and VG + 2*slot, False)
    if VZ:
        kv_z(VZ)

def kv_tile(VS, VG, last):
    a(f"v_add_u32 v3, s{sT2}, v1")
    head_of(4, 3)
    a(f"v_mul_u32_u24 v5, 18, v4\nv_sub_u32 v3, v3, v5\nv_cndmask_b32 v4, v4, 7, s[46:47]")
    if last:
        a("v_cmp_eq_u32 vcc, 0, v1\nv_cndmask_b32 v4, v4, 3, vcc\nv_cndmask_b32 v3, v3, 18, vcc")
    for q in range(2):
        a(f"v_add3_u32 v5, v2, s{sT}, {2*q}")
        head_of(6, 5)
        a("v_cmp_eq_u32 vcc, v4, v6\nv_mad_u32_u24 v5, v5, 19, v3\nv_lshlrev_b32 v5, 2, v5")
        if VS:
            a(f"v_add_u32 v6, {B_STG}, v5\nv_cndmask_b32 v{VS+q}, v8, v6, vcc")
        if VG:
            a(f"v_add_u32 v6, s{sM}, v5\nv_cndmask_b32 v{VG+q}, v9, v6, vcc")

def kv_z(VZ):
    a("v_and_b32 v3, 3, v0")
    for q in range(2):
        a(f"v_add3_u32 v5, v2, s{sT}, {2*q}")
        head_of(6, 5)
        a(f"v_cmp_eq_u32 vcc, v3, v6\nv_mul_u32_u24 v5, 76, v5\nv_add3_u32 v5, v5, s{sM}, 64\nv_add_u32 v5, 8, v5\nv_cndmask_b32 v{VZ+q}, v9, v5, vcc")

def b_loader(kind):
    a(f"L_B{kind}1:")
    m = M0(42)
    issue = (lambda c: w_issue("B", c, m)) if kind == "W" else (lambda c: x_issue("B", c, m))
    pre = 1 if OPT.get("early") and kind == "W" else 2
    cnt = {c: issue(c) for c in range(1, pre + 1)}
    stamp()
    mark = len(a.lines)
    VS, VG, vZS, vEA, vE0, vEL, vLA, vGA, vLW = 72, 80, 98, 99, 100, 101, 102, 103, 105
    if kind == "W":
        a(f"v_subrev_u32 v{VD+5}, 1152, v{VD}\nv_subrev_u32 v{VD+6}, 1152, v{VD+1}")
    srds_rest()
    if kind == "W":
        wo_setup(False)
    else:
        sync_setup()
    a(f"""
s_add_u32 s55, s{sV}, 2
s_mul_i32 s{sM}, s{sHG}, {KV_ST}
s_add_u32 s{sM}, s{sM}, {WS_KV}
v_and_b32 v1, 15, v0
v_lshrrev_b32 v2, 4, v0
v_lshlrev_b32 v2, 2, v2
v_cmp_gt_u32 s[44:45], 8, v1
v_lshlrev_b32 v8, 2, v0
v_add_u32 v8, {B_DUMP}, v8
v_mov_b32 v9, {OOB}
""")
    own = sV if kind == "X" else 55
    if kind == "X":
        kv_index(55, None, VG, VG + 6)
        a(f"s_movk_i32 s{sT}, 64")
        kv_z(10)
    kv_index(own, VS, VG + 8 if kind == "X" else None, VG + 14 if kind == "X" else None)
    a(f"""
v_add_u32 v5, s{sT}, v0
v_mul_u32_u24 v5, 76, v5
v_add_u32 v5, {B_STG + 72}, v5
v_cndmask_b32 v{vZS}, v8, v5, s[{sG0}:{sG0+1}]
v_lshlrev_b32 v{vEL}, 4, v0
v_add_u32 v{vEL}, {B_EX}, v{vEL}
s_lshl_b32 s{sT}, s{own}, 10
v_add_u32 v{vEA}, s{sT}, v{vEL}
s_lshl_b32 s{sT}, s58, 10
v_add_u32 v{vE0}, s{sT}, v{vEL}
""")
    if kind == "X":
        a(f"s_movk_i32 s{sT}, 64\ns_movk_i32 s{sT2}, 56\ns_mov_b64 s[46:47], s[44:45]")
        kv_tile(VS + 6, VG + 16, True)
        a(f"s_cmp_eq_u32 s{sV}, 0\ns_cselect_b64 s[46:47], -1, 0")
        for q in range(2):
            a(f"v_cndmask_b32 v{VS+6+q}, v8, v{VS+6+q}, s[46:47]\nv_cndmask_b32 v{VG+16+q}, v{10+q}, v{VG+16+q}, s[46:47]")
        a(f"""
v_lshlrev_b32 v5, 3, v0
v_add_u32 v5, {B_KVOP}, v5
s_lshl_b32 s{sT2}, s58, 9
s_sub_u32 s{sT2}, s{sT2}, 512
v_add_u32 v{vLW+2}, s{sT2}, v5
s_lshl_b32 s{sT2}, s{sV}, 9
v_add_u32 v{vLW+1}, s{sT2}, v5
v_add_u32 v{vLW}, 1024, v{vLW+1}
s_mul_i32 s{sT2}, s{sV}, {9*512}
v_add_u32 v{vLW+3}, s{sT2}, v5
s_mul_i32 s{sT}, s{sV}, 2816
v_lshl_add_u32 v{vLA}, v0, 2, s{sT}
v_add_u32 v{vGA}, s{sM}, v{vLA}
v_cmp_gt_u32 vcc, {5472 - 2560}, v{vLA}
v_cndmask_b32 v{vGA+1}, v9, v{vGA}, vcc
v_add_u32 v{vLA}, {B_STG}, v{vLA}
v_mov_b32 v4, 0
""")
    a(f"v_mov_b32 v10, {B_LCNT}\nv_mov_b32 v11, 1")
    if kind == "X":
        a("ds_write_b32 v10, v4\ns_waitcnt lgkmcnt(0)")
    setup = a.lines[mark:]
    del a.lines[mark:]
    per = -(-len(setup) // 9)
    a(f"s_waitcnt vmcnt({sum(cnt.values())})\ns_barrier")
    stamp()
    extra = 0
    for i in range(-1, 16):
        if i == -1 and pre == 1:
            cnt[2] = issue(2)
        if i + 4 <= 17:
            cnt[i+4] = issue(i + 4)
        if 0 <= i < 9:
            a("s_cmp_eq_u32 s59, 1")
            a.lines += setup[per*i:per*(i+1)]
            a("s_cselect_b32 s59, 1, 0")
        if i == 10 and kind == "X":
            flag_load(sFO, 98); flag_load(sFK, 99)
        if kind == "W" and i >= 14:
            extra += wq_issue(2*(i-14), m) + wq_issue(2*(i-14) + 1, m)
        left = sum(cnt.get(c, 0) for c in range(i + 3, min(i + 4, 17) + 1)) + extra
        a(f"s_waitcnt vmcnt({left})\ns_barrier")
    a("s_barrier")
    if kind == "W":
        for p in (4, 5, 6, 7, 13, 14, 15, 16, 17):
            wq_issue(p, m)
        a("s_waitcnt vmcnt(15)")
    else:
        flag_check(sFK, 99, "L_BX_fk")
    stamp()
    a("s_barrier")
    stamp()
    if kind == "W":
        for p in range(8, 13):
            wq_issue(p, m)
    KT = lambda s: 40 + 4 * s
    RD = lambda src, j: 112 + 28 * src + 4 * j
    srcs = ((vEA, 0), (vE0, 0), (vE0, 4096), (vEA, 5120), (vEA, 6144), (vEL, 9216), (vEL, 4096))
    prods = ((1, 2), (0, 3), (0, 4), (6, 5), (5, 0))
    if kind == "W":
        srcs = ((vEA, 0), None, (vE0, 4096), (vEA, 5120), (vEA, 6144), (vEL, 9216))
        prods = ((0, 2), (0, 3), (0, 4), None, (5, 0))
    nr = sum(x is not None for x in srcs)
    for src in range(4):
        for j, x in enumerate(srcs):
            if x: a(f"ds_read_b128 {vr(RD(src, j),4)}, v{x[0]} offset:{src*10240 + x[1]}")
    for src in range(4):
        a(f"s_waitcnt lgkmcnt({min(15, nr*(3-src))})")
        for s_, x in enumerate(prods):
            if x: a(mf(KT(s_), RD(src, x[0]), RD(src, x[1]), KT(s_) if src else "0"))
    for s_ in range(4 if kind == "X" else 3):
        for r in range(4):
            a(f"ds_write_b32 v{VS + 2*s_ + r//2}, v{KT(s_)+r} offset:{76*(r%2)}")
    a(f"ds_write_b32 v{vZS}, v{KT(4)}")
    a("s_waitcnt lgkmcnt(0)\ns_mov_b64 exec, 1\nds_add_u32 v10, v11\ns_mov_b64 exec, -1")
    stamp()
    b1, b2, b3 = {0: ((0, 1, 2, 3, 4, 5), (), (6, 7, 8)), 1: ((0, 1, 2), (3, 4, 5, 6, 7, 8), ()), 2: ((0, 1, 2), (3, 4, 5), (6, 7, 8))}[OPT.get("wob", 0)]
    if kind == "W":
        a("s_waitcnt vmcnt(0)\ns_barrier")
        for g in b1: wo_pair(g)
        if b2:
            a("s_barrier")
            for g in b2: wo_pair(g)
        stamp()
        a("s_barrier")
        loader_tail("BW", b3)
        return
    a(f"""
s_mov_b32 s{sT3}, 0x400000
L_BX_st:
ds_read_b32 v2, v10
s_waitcnt lgkmcnt(0)
v_readfirstlane_b32 s{sT}, v2
s_sub_u32 s{sT3}, s{sT3}, 1
s_cbranch_scc1 L_BX_st_x
s_cmp_ge_u32 s{sT}, 4
s_cbranch_scc0 L_BX_st
L_BX_st_x:
""")
    for n in range(11):
        a(f"ds_read_b32 v{40+n}, v{vLA} offset:{256*n}")
    for n in range(11):
        a(f"s_waitcnt lgkmcnt({10-n})")
        a(f"buffer_atomic_add_f32 v{40+n}, v{vGA + (n == 10)}, s[{SWS}:{SWS+3}], 0 offen offset:{256*n}")
    stamp()
    a("s_barrier")
    if b2:
        a("s_barrier")
    a("s_waitcnt vmcnt(0)")
    stamp()
    arrive_wait(sKC, 32, "L_BX_kc")
    stamp()
    for s_ in range(9):
        for r in range(4):
            a(f"buffer_load_dword v{112+4*s_+r}, v{VG + 2*s_ + r//2}, s[{SWS}:{SWS+3}], 0 offen offset:{76*(r%2)} sc1")
    dst = ((vLW, -1), (vLW, 4), (vLW, 9), (vLW, 13), (vLW + 2, 0), (vLW + 1, 4), (vLW + 1, 9), (vLW + 1, 13), (vLW + 3, 8))
    a(f"v_subrev_u32 v11, 512, v{vLW}")
    for s_, (ad, off) in enumerate(dst):
        a(f"s_waitcnt vmcnt({4*(8-s_)})")
        a(cv(40 + 2*s_, 112 + 4*s_)); a(cv(41 + 2*s_, 114 + 4*s_))
        a(f"ds_write_b64 v{11 if off < 0 else ad}, {vr(40+2*s_,2)} offset:{512*max(off, 0)}")
    a("s_waitcnt lgkmcnt(0)")
    stamp()
    a("s_barrier")
    loader_tail("BX")

def p2_consumer():
    OFR = lambda ks, rt: 112 + ks * 8 + rt * 4
    ACC = lambda t, rt: 72 + (t * 2 + rt) * 4
    wf = lambda t: 52 + 4 * t
    R8, R2, vO, vTW, vTR, VS = 1, 5, 6, 7, 8, 9
    AH = OPT["ahead"]
    a("L_P2:")
    nstamp[0] = 10
    rd_lanes(R8, R2, 17, 18)
    for j in range(5):
        a(f"v_add_u32 v{R8+j}, {R1}, v{R8+j}")
    a(f"""
v_lshl_add_u32 v{vO}, v0, 4, s58
s_mul_i32 s{sT}, s{sWAVE}, 4608
s_add_u32 s{sT}, s{sT}, {P_TR}
v_and_b32 v17, 15, v0
v_mul_u32_u24 v17, 144, v17
v_lshrrev_b32 v18, 4, v0
v_lshl_add_u32 v17, v18, 3, v17
v_add_u32 v{vTW}, s{sT}, v17
v_lshl_add_u32 v{vTR}, v0, 4, s{sT}
s_lshr_b32 s{sT}, s{sWAVE}, 1
s_and_b32 s{sT2}, s{sWAVE}, 1
s_lshl_b32 s{sT2}, s{sT2}, 5
s_lshl_b32 s{sT3}, s{sWAVE}, 5
s_cmp_eq_u32 s{sBR}, 0
s_cselect_b32 s42, s{sT}, 0
s_cselect_b32 s43, s{sT2}, s{sT3}
s_cselect_b32 s55, 1, 0
s_lshl_b32 s56, s42, 3
s_lshl_b32 s{sT}, s{sRB}, 7
s_add_u32 s42, s42, s{sT}
s_mul_i32 s{sT}, s{sBR}, 1152
s_mul_i32 s{sT2}, s{sHG}, 144
s_add_u32 s57, s{sT}, s{sT2}
""")
    for n in range(5):
        a(f"""
v_add_u32 v17, {64*n}, v0
v_mul_u32_u24 v18, 7282, v17
v_lshrrev_b32 v18, 16, v18
v_mul_u32_u24 v19, 9, v18
v_sub_u32 v19, v17, v19
v_add_u32 v18, s43, v18
v_xor_b32 v18, s56, v18
v_lshlrev_b32 v18, s55, v18
v_add_u32 v18, s42, v18
v_mul_u32_u24 v18, 2304, v18
v_lshl_add_u32 v18, v19, 4, v18
v_add_u32 v{VS+n}, s57, v18
""")
    a(f"v_mov_b32 v17, {OOB}\nv_cndmask_b32 v{VS+4}, v17, v{VS+4}, s[{sG01}:{sG01+1}]")
    a(f"v_add_u32 v14, 18432, v{vO}")
    SO = [8, 9, 10, 11, 12, 13, 14, 15, 36]
    rho(37)
    a(f"s_movk_i32 s{SO[0]}, 16384")
    for j in range(1, 9):
        a(f"s_add_u32 s{sT}, s37, {2*j-2}\ns_and_b32 s{sT}, s{sT}, 15\ns_lshl_b32 s{SO[j]}, s{sT}, 10")
    a("s_waitcnt vmcnt(0)")
    stamp()
    a("s_barrier\ns_barrier")
    stamp()
    def oload(ks, rt):
        return f"buffer_load_dwordx4 {vr(OFR(ks, rt),4)}, v{14 if rt else vO}, s[{SWS}:{SWS+3}], s{SO[ks//2]} offen offset:{1024*(ks%2)} sc1"
    base = lambda ks: R1 if ks < 3 else 0 if 9 <= ks < 12 else R2_
    R2_ = 43008
    def wreads(ks, t):
        o = WO[ks] - base(ks)
        if t == 4:
            return [tr(wf(t), R2, o + 4096), tr(wf(t) + 2, R2, o + 4096 + 256)]
        return [tr(wf(t), R8 + t, o), tr(wf(t) + 2, R8 + t, o + 1024)]
    for ks in range(AH):
        a(oload(ks, 0)); a(oload(ks, 1))
    for t in range(5):
        for x in wreads(0, t): a(x)
    for ks in range(18):
        tiles = [[mf(ACC(t, rt), wf(t), OFR(ks, rt), ACC(t, rt) if ks else "0") for rt in range(2)] for t in range(5)]
        w0 = f"s_waitcnt vmcnt({2*min(AH - 1, 17 - ks)}) lgkmcnt(8)"
        if ks < 17:
            nxt = [wreads(ks + 1, t) for t in range(5)]
            if base(ks + 1) != base(ks):
                d = (base(ks + 1) - base(ks)) & 0xffffffff
                for t in range(5):
                    nxt[t][0] = f"v_add_u32 v{R8+t}, {d}, v{R8+t}\n" + nxt[t][0]
            first = []
            if ks + AH < 18:
                first = [oload(ks + AH, 0)]
                nxt[1][1] += "\n" + oload(ks + AH, 1)
            kstep(tiles, nxt, first, {t: "s_waitcnt lgkmcnt(7)" if t else w0 for t in range(5)})
        else:
            kstep(tiles, None, [], {t: f"s_waitcnt lgkmcnt({8 - 2*t})" if t else w0 for t in range(5)})
        if ks == 0:
            stamp()
    stamp()
    for rt in range(2):
        for t in range(5):
            d = 20 + 2*(rt*5 + t)
            a(cv(d, ACC(t, rt))); a(cv(d + 1, ACC(t, rt) + 2))
            if t == 4:
                a(f"s_mov_b64 exec, s[{sG01}:{sG01+1}]")
            a(f"ds_write_b64 v{vTW}, {vr(d,2)} offset:{rt*2304 + 32*t}")
            if t == 4:
                a("s_mov_b64 exec, -1")
    a("s_waitcnt lgkmcnt(0)")
    for n in range(5):
        a(f"ds_read_b128 {vr(112+4*n,4)}, v{vTR} offset:{1024*n}")
    for n in range(5):
        a(f"s_waitcnt lgkmcnt({4-n})")
        a(f"buffer_store_dwordx4 {vr(112+4*n,4)}, v{VS+n}, s[{SOUT}:{SOUT+3}], 0 offen")
    stamp()
    stamps_out(True)
    a("s_endpgm")

HEADER = open("concat_heads__sliding_local_dilated__linear_attn_block__prompt.s.ref").read().split("; Override")[0]
out = HEADER + "; @launch grid=(256,1,1) block=(512,1,1) lds=163840\n"
a('.amdgcn_target "amdgcn-amd-amdhsa--gfx950"\n.text')
a(kernel_head(KN))
if OPT["stamps"]:
    for i in range(16):
        a(f"s_mov_b32 s{sST+2*i}, 0")
stamp()
a(f"""
s_cmp_ge_u32 s2, 256
s_cbranch_scc1 L_end
s_and_b32 s{sT}, s2, 7
s_lshr_b32 s{sBR}, s{sT}, 2
{'s_xor_b32 s6, s6, 1' if OPT.get('swap') else ''}
s_mul_i32 s{sT2}, s{sBR}, 24
s_add_u32 s0, s0, s{sT2}
s_addc_u32 s1, s1, 0
s_load_dwordx4 s[36:39], s[0:1], 0
s_load_dwordx2 s[40:41], s[0:1], 16
s_sub_u32 s0, s0, s{sT2}
s_subb_u32 s1, s1, 0
s_load_dwordx4 s[44:47], s[0:1], 48
s_load_dwordx2 s[48:49], s[0:1], 64
v_lshrrev_b32 v1, 6, v0
v_and_b32 v0, 63, v0
v_readfirstlane_b32 s{sWAVE}, v1
s_lshr_b32 s{sT2}, s2, 3
""")
m84 = f"""
s_and_b32 s{sHG}, s{sT2}, 3
s_and_b32 s{sT3}, s{sT}, 1
s_lshl_b32 s{sT3}, s{sT3}, 2
s_add_u32 s{sHG}, s{sHG}, s{sT3}
s_lshr_b32 s{sRB}, s{sT2}, 2
s_and_b32 s{sT3}, s{sT}, 2
s_lshl_b32 s{sT3}, s{sT3}, 2
s_add_u32 s{sRB}, s{sRB}, s{sT3}
"""
m48 = f"""
s_and_b32 s{sHG}, s{sT2}, 7
s_lshr_b32 s{sRB}, s{sT2}, 3
s_and_b32 s{sT3}, s{sT}, 3
s_lshl_b32 s{sT3}, s{sT3}, 2
s_add_u32 s{sRB}, s{sRB}, s{sT3}
"""
if OPT["mapping"] == 84:
    a(m84)
elif OPT["mapping"] == 48:
    a(m48)
else:
    a(m48 + f"s_cmp_eq_u32 s{sBR}, {0 if OPT['mapping'] == 8448 else 1}\ns_cbranch_scc0 L_map" + m84 + "L_map:")
rot = ""
if OPT.get("rot") == 2:
    rot = f"""s_lshr_b32 s90, s2, 1
s_xor_b32 s90, s90, s2
s_and_b32 s90, s90, 1
s_mul_i32 s91, s90, {OPT.get("rotby", 5)*128}
s_mul_i32 s90, s90, {OPT.get("rotby", 5)*64*3456}"""
elif OPT.get("rot") == 3:
    rot = f"""s_lshr_b32 s90, s2, 1
s_xor_b32 s90, s90, s2
s_and_b32 s90, s90, 1
s_mul_i32 s90, s90, 5
s_add_u32 s91, s{sRB}, s{sHG}
s_and_b32 s91, s91, 3
s_add_u32 s90, s90, s91
s_lshl_b32 s91, s90, 7
s_mul_i32 s90, s90, {64*3456}"""
elif OPT.get("rot") == 7:
    rot = f"""s_and_b32 s90, s{sHG}, 3
s_and_b32 s91, s{sRB}, 7
s_lshl1_add_u32 s90, s90, s91
s_cmp_ge_u32 s90, 9
s_cselect_b32 s91, 9, 0
s_sub_u32 s90, s90, s91
s_lshl_b32 s91, s90, 7
s_mul_i32 s90, s90, {64*3456}"""
elif OPT.get("rot") in (4, 5, 6):
    tab = {4: 0x75207520, 5: 0x63006300, 6: 0x86427531}[OPT["rot"]]
    rot = f"""s_add_u32 s90, s{sRB}, s{sHG}
s_and_b32 s90, s90, 7
s_lshl_b32 s90, s90, 2
s_lshr_b32 s90, {hex(OPT.get("tab", tab))}, s90
s_and_b32 s90, s90, 15
s_lshl_b32 s91, s90, 7
s_mul_i32 s90, s90, {64*3456}"""
elif OPT.get("rot"):
    few, many = (sRB, sHG) if OPT["mapping"] == 48 else (sHG, sRB)
    rot = f"""s_and_b32 s90, s{few}, 3
s_lshl_b32 s90, s90, 2
s_lshr_b32 s90, 0x7520, s90
s_and_b32 s90, s90, 15
s_and_b32 s91, s{many}, 7
s_add_u32 s90, s90, s91
s_cmp_ge_u32 s90, 9
s_cselect_b32 s91, 9, 0
s_sub_u32 s90, s90, s91
s_lshl_b32 s91, s90, 7
s_mul_i32 s90, s90, {64*3456}"""
a(f"""
s_mov_b32 s{sG0}, 0xffff
s_mov_b32 s{sG0+1}, 0
s_mov_b32 s{sG01}, -1
s_mov_b32 s{sG01+1}, 0
s_and_b32 s{sV}, s{sWAVE}, 1
s_mul_i32 s{sM}, s{sHG}, 144
s_cmp_lt_u32 s{sWAVE}, 4
s_cbranch_scc1 L_cons
s_setprio {OPT.get("prio", 2)}
s_mov_b32 s59, 0
{rot}
s_cmp_lt_u32 s{sWAVE}, 6
s_cbranch_scc1 L_wld
s_cmp_eq_u32 s{sBR}, 0
s_cbranch_scc1 L_AX0
s_branch L_BX0
L_wld:
s_cmp_eq_u32 s{sBR}, 0
s_cbranch_scc1 L_AW0
s_branch L_BW0
L_cons:
s_getpc_b64 s[42:43]
L_pc:
s_lshl_b32 s{sT}, s{sT2}, 2
s_add_u32 s{sT}, s{sT}, s{sWAVE}
s_lshl_b32 s{sT}, s{sT}, 9
v_and_b32 v1, 3, v0
v_lshlrev_b32 v1, 7, v1
v_add_u32 v1, s{sT}, v1
v_min_u32 v1, L_last-L_pc, v1
global_load_dword v27, v1, s[42:43]
s_cmp_eq_u32 s{sBR}, 0
s_cbranch_scc1 L_AC
s_branch L_BC
L_end:
s_endpgm
""")
w_head("A"); w_head("B"); x_head("A"); x_head("B")
n0 = nstamp[0]
for fn in (lambda: a_loader("W"), lambda: a_loader("X"), a_consumer, lambda: b_loader("W"), lambda: b_loader("X"), b_consumer, p2_consumer):
    nstamp[0] = n0
    fn()
a("L_last:\ns_endpgm")
lines = []
for l in a.lines: lines += l.split("\n")
if OPT.get("noread"):
    lines = [l for l in lines if not l.startswith("ds_read_b64_tr")]
if OPT.get("nomfma"):
    lines = [l for l in lines if not l.startswith("v_mfma")]
lines, added = hz.fix(lines)
out += "\n".join(lines) + "\n"
out += '.section .rodata,"a"\n.p2align 6\n' + kernel_desc(KN, 256, 102 if OPT.get('cyc') else 100, 256)
sys.stdout.write(out)
sys.stderr.write(f"nop states added: {added}\n")
```

```python
import sys, struct
from asmlib import *
import hz

OPT = dict(stamps=0, mapping=48, ahead=6, rot=4, nt=1)
for arg in sys.argv[1:]:
    k, v = arg.split("=")
    OPT[k] = int(v)
KN = "concat_heads__sliding_local_dilated__linear_attn_block__prompt_kernel"

def f32(x):
    return "0x%08x" % struct.unpack("<I", struct.pack("<f", x))[0]

LOG2E = 1.4426950408889634
CSC = 18 ** -0.5 * LOG2E
NEG = "0xf149f2ca"
EPS = f32(1e-6)
OOB = "0x80000000"

O_BR = 0x240000
WS_KV = 0x500000
KV_ST = 0x2000
WS_CNT = 0x540000
WS_STAMP = 0x600000
WS_SIZE = 0x700000

sWAVE, sHG, sRB, sBR, sT = 3, 4, 5, 6, 7
SX, SW, SWS, SDBG, SWO, SOUT = 8, 12, 16, 20, 24, 28
sG0, sG01 = 32, 34
sK, sV, sM, sT2, sT3 = 50, 51, 52, 53, 54
sST = 60

a = Asm()
nstamp = [0]

def stamp():
    if OPT["stamps"]:
        i = nstamp[0]; nstamp[0] += 1
        assert i < 15
        a(f"{'s_memrealtime' if OPT.get('rt') or OPT.get('probe') and not (OPT.get('cyc') and i) else 's_memtime'} s[{sST+2*i}:{sST+2*i+1}]")
        if OPT.get("cyc") and i == 0:
            a("s_memtime s[100:101]")

def stamps_out(last=False):
    if not OPT["stamps"]:
        return
    if OPT.get("probe"):
        if last:
            j = sST + 2 * OPT["probe"]
            if OPT.get("lat"):
                a(f"""
s_waitcnt vmcnt(0) lgkmcnt(0)
s_load_dwordx2 s[44:45], s[0:1], {OPT['lat'] - 8}
s_sleep 127
s_sleep 127
s_sleep 127
s_waitcnt lgkmcnt(0)
s_mov_b32 s46, 0x100000
s_mov_b32 s47, 0x20000
v_mov_b32 v1, 0x20000
buffer_load_dword v2, v1, s[44:47], 0 offen {'sc1' if OPT.get('first') != 2 else ''}
s_waitcnt vmcnt(0)
v_mov_b32 v1, {'0x20000' if not OPT.get('first') else '0x20040'}
s_memtime s[100:101]
s_waitcnt lgkmcnt(0)
buffer_load_dword v2, v1, s[44:47], 0 offen sc1
s_waitcnt vmcnt(0)
s_memtime s[{j}:{j+1}]
s_waitcnt lgkmcnt(0)
s_sub_u32 s{j}, s{j}, s100
s_lshl_b32 s{j}, s{j}, 5
s_add_u32 s{j}, s{j}, s100
""")
            if OPT.get("xcc"):
                a(f"""
s_waitcnt vmcnt(0) lgkmcnt(0)
v_and_b32 v1, 31, v0
v_lshlrev_b32 v1, {5 if OPT['xcc'] == 1 else 2}, v1
v_add_u32 v1, 0x6f0000, v1
buffer_load_dword v2, v1, s[{SWS}:{SWS+3}], 0 offen sc1
s_getreg_b32 s44, hwreg(HW_REG_XCC_ID, 0, 4)
s_waitcnt vmcnt(0)
v_cmp_eq_u32 vcc, s44, v2
s_bcnt1_i32_b32 s44, vcc_lo
s_mul_i32 s44, s44, 10
s_add_u32 s{j}, s{sST}, s44
""")
            a(f"""
s_waitcnt vmcnt(0) lgkmcnt(0)
s_cmp_eq_u32 s2, {OPT.get('wg', 0)}
s_cbranch_scc0 L_probe_x
s_cmp_eq_u32 s{sWAVE}, 0
s_cbranch_scc0 L_probe_x
s_sub_u32 s{sT}, s{j}, s{100 if OPT.get('cyc') else sST}
{'s_lshr_b32 s7, s7, 3' if OPT.get('cyc') else 's_mul_i32 s7, s7, 10'}
s_min_u32 s{sT}, s{sT}, 100000
s_add_u32 s{sT}, s{sT}, 6000
L_probe:
s_memrealtime s[44:45]
s_waitcnt lgkmcnt(0)
s_sub_u32 s44, s44, s{sST}
s_cmp_lt_u32 s44, s{sT}
s_cbranch_scc1 L_probe
L_probe_x:
""")
        return
    a("s_waitcnt vmcnt(0) lgkmcnt(0)")
    a(f"s_lshl_b32 s{sT}, s2, 3\ns_add_u32 s{sT}, s{sT}, s{sWAVE}\ns_lshl_b32 s{sT}, s{sT}, 6")
    a(f"s_add_u32 s{sT}, s{sT}, {WS_STAMP}\nv_mov_b32 v1, s{sT}")
    for i in range(16):
        a(f"v_mov_b32 v2, s{sST+2*i}")
        a(f"buffer_store_dword v2, v1, s[{SWS}:{SWS+3}], 0 offen offset:{4*i}")
    a("s_waitcnt vmcnt(0)")

def mf(d, s0, s1, c):
    cc = c if isinstance(c, str) else vr(c, 4)
    return f"v_mfma_f32_16x16x32_bf16 {vr(d,4)}, {vr(s0,4)}, {vr(s1,4)}, {cc}"
def cv(d, x):
    return f"v_cvt_pk_bf16_f32 v{d}, v{x}, v{x+1}"
def tr(d, addr, off):
    return f"ds_read_b64_tr_b16 {vr(d,2)}, v{addr} offset:{off}"
def weave(mfmas, others, per=2):
    o = list(others)
    for m in mfmas:
        a(m)
        for _ in range(per):
            if o: a(o.pop(0))
    for x in o: a(x)

def srd(dst, lo, nbytes):
    a(f"s_mov_b32 s{dst}, s{lo}\ns_mov_b32 s{dst+1}, s{lo+1}\ns_mov_b32 s{dst+2}, {nbytes}\ns_mov_b32 s{dst+3}, 0x20000")
def srds_rest():
    srd(SWO, 40, 663552); srd(SOUT, 44, 4718592); srd(SDBG, 46, 256); srd(SWS, 48, WS_SIZE)

class M0:
    def __init__(self, base): self.base = base; self.cur = None
    def set(self, imm):
        if self.cur is not None and -32768 <= imm - self.cur <= 32767:
            a(f"s_addk_i32 m0, {imm - self.cur}")
        else:
            a(f"s_add_u32 m0, s{self.base}, {imm}")
        self.cur = imm

CUR = [0]
def dma(voff, srd_, soff, half=False):
    if OPT.get("nodma") or (OPT.get("nos") and voff == VD + 6 and srd_ == SW and not half):
        return
    if half: a(f"s_mov_b64 exec, s[{sG01}:{sG01+1}]")
    nt = " nt" if OPT.get("nt", 0) >> {SX: 0, SW: 1, SWO: 2}[srd_] & 1 and CUR[0] < OPT.get("ntc", 99) else ""
    a(f"buffer_load_dwordx4 v{voff}, s[{srd_}:{srd_+3}], {soff} offen{nt} lds")
    if half: a("s_mov_b64 exec, -1")

def rd_lanes(r8, r2, t0, t1):
    a(f"""
v_lshrrev_b32 v{t0}, 5, v0
v_lshlrev_b32 v{t0}, 4, v{t0}
v_bfe_u32 v{t1}, v0, 4, 1
v_lshl_add_u32 v{t0}, v{t1}, 2, v{t0}
v_bfe_u32 v{t1}, v0, 2, 2
v_add_u32 v{t0}, v{t0}, v{t1}
v_and_b32 v{t1}, 3, v0
v_lshlrev_b32 v{t1}, 3, v{t1}
v_lshl_add_u32 v{r2}, v{t0}, 5, v{t1}
v_lshl_add_u32 v{r8}, v{t0}, 7, v{t1}
v_bfe_u32 v{t0}, v{t0}, 1, 2
v_lshl_add_u32 v{r8}, v{t0}, 5, v{r8}
""")
    for t in (1, 2, 3):
        a(f"v_xor_b32 v{r8+t}, {32*t}, v{r8}")

def x_lane(d0, d1, tmp):
    a(f"""
v_lshrrev_b32 v{d0}, 4, v0
v_bfe_u32 v{tmp}, v0, 1, 3
v_xor_b32 v{d0}, v{d0}, v{tmp}
v_and_b32 v{tmp}, 15, v0
v_lshlrev_b32 v{tmp}, 7, v{tmp}
v_lshl_add_u32 v{d0}, v{d0}, 4, v{tmp}
v_xor_b32 v{d1}, 64, v{d0}
""")

def col8(dst, tmp):
    a(f"v_bfe_u32 v{tmp}, v0, 4, 2\nv_lshlrev_b32 v{tmp}, 1, v{tmp}\nv_and_b32 v{dst}, 7, v0\nv_xor_b32 v{dst}, v{dst}, v{tmp}\nv_lshlrev_b32 v{dst}, 4, v{dst}")

def head_of(dst, src):
    a(f"v_mul_u32_u24 v{dst}, 57, v{src}\nv_lshrrev_b32 v{dst}, 10, v{dst}")

sOC, sKC, sFO, sFK = 92, 94, 96, 97

def arrive_wait(addr, target, label, arrive=True):
    if arrive:
        a(f"s_mov_b32 s{sT}, 1\ns_atomic_add s{sT}, s[{addr}:{addr+1}], 0 glc\ns_waitcnt lgkmcnt(0)\ns_cmp_ge_u32 s{sT}, {target-1}\ns_cbranch_scc1 {label}_x")
    a(f"""
s_mov_b32 s{sT3}, 0x20000
{label}:
s_mov_b32 s{sT}, 0
s_atomic_add s{sT}, s[{addr}:{addr+1}], 0 glc
s_waitcnt lgkmcnt(0)
s_sub_u32 s{sT3}, s{sT3}, 1
s_cbranch_scc1 {label}_x
s_cmp_ge_u32 s{sT}, {target}
s_cbranch_scc0 {label}
{label}_x:
""")

def flag_load(dst, offreg):
    a(f"s_load_dword s{dst}, s[{SDBG}:{SDBG+1}], s{offreg}")

def flag_check(val, offreg, label):
    a(f"""
s_mov_b32 s{sT3}, 0x20000
{label}:
s_waitcnt lgkmcnt(0)
s_cmp_lg_u32 s{val}, 0
s_cbranch_scc1 {label}_x
s_sub_u32 s{sT3}, s{sT3}, 1
s_cbranch_scc1 {label}_x
s_load_dword s{val}, s[{SDBG}:{SDBG+1}], s{offreg} glc
s_branch {label}
{label}_x:
""")

A_WSLOT, A_XSLOT = 14336, 18432
A_X0 = 5 * A_WSLOT
A_EX = A_X0 + 3 * A_XSLOT
B_KVSLOT, B_XSLOT = 9216, 16384
B_X0 = 5 * B_KVSLOT
B_EX = B_X0 + 3 * B_XSLOT
B_KVOP = 126976
B_STG = 136192
B_DUMP, B_LCNT = B_STG + 5632, B_STG + 6144
B_WQ0 = 143360
QORD = list(range(18))
def wq_slot(p):
    if p < 4: return B_WQ0 + 5120 * p
    if p < 7: return 5120 * (p - 4)
    if p < 13: return 40960 + 5120 * (p - 7)
    return 15360 + 5120 * (p - 13)
R1, R2 = 147456, 43008
WO = [R1, R1 + 5120, R1 + 10240] + [R2 + 5120 * n for n in range(6, 12)] + [0, 5120, 10240] + [R2 + 5120 * n for n in range(6)]
P_TR = 108544
SPLITS = {(1, 0): sG0, (2, 0): sG0, (2, 1): sG0, (3, 0): sG01, (3, 1): sG0}

VD = 16
VWO = 26
vCNT, vFLO, vFLK, vFO, vFK = 30, 31, 32, 33, 34

def w_head(kind):
    parts = (0, 1152, 2304) if kind == "A" else (1152, 2304)
    a(f"L_{kind}W0:")
    col8(VD, 1)
    a(f"""
v_bfe_u32 v1, v0, 5, 1
v_bfe_u32 v2, v0, 3, 2
v_lshl_add_u32 v1, v1, 3, v2
s_mul_i32 s{sT}, s{sV}, {16*3456}
s_add_u32 s{sT}, s{sT}, s{sM}
v_mul_u32_u24 v1, 3456, v1
v_add3_u32 v{VD}, v{VD}, v1, s{sT}
""")
    n = 2 * len(parts)
    for j in range(n - 1, -1, -1):
        off = parts[j // 2] + (j % 2) * 4 * 3456
        if off:
            a(f"v_add_u32 v{VD+j}, {off}, v{VD}")
    a(f"""
v_bfe_u32 v1, v0, 3, 1
v_bfe_u32 v2, v0, 4, 1
v_sub_u32 v1, v1, v2
v_lshrrev_b32 v2, 1, v0
v_lshl_add_u32 v1, v1, 2, v2
v_mul_u32_u24 v1, 3456, v1
v_and_b32 v2, 1, v0
""")
    if kind == "A":
        a(f"""
s_cmp_eq_u32 s{sV}, 0
s_cselect_b32 s{sT2}, 1152, 0
s_cselect_b32 s{sT}, 0, 2304
s_add_u32 s{sT}, s{sT}, s{sM}
s_addk_i32 s{sT}, 128
v_mad_u32_u24 v1, v2, s{sT2}, v1
v_add_u32 v{VD+6}, s{sT}, v1
""")
    else:
        a(f"""
s_add_u32 s{sT}, s{sT}, 128
v_add_u32 v{VD+7}, s{sT}, v1
v_mul_u32_u24 v2, 1152, v2
v_add_u32 v2, 1152, v2
v_add_u32 v{VD+4}, v2, v{VD+7}
""")
    a(f"s_lshl_b32 s42, s{sV}, 11\ns_lshl_b32 s43, s{sV}, {10 if kind == 'A' else 9}\ns_sub_u32 s43, s43, s42")
    a("s_waitcnt lgkmcnt(0)")
    srd(SW, 38, 1990656)
    m = M0(42)
    w_issue(kind, 0, m)
    a(f"s_branch L_{kind}W1")

def w_issue(kind, c, m):
    CUR[0] = c
    slot = (c % 5) * (A_WSLOT if kind == "A" else B_KVSLOT)
    n = 6 if kind == "A" else 4
    so = f"s{sK}" if c else "0"
    if OPT.get("rot"):
        so = "s90"
        if c:
            a(f"s_add_u32 s90, s90, {32*3456}\ns_cmp_eq_u32 s90, {18*32*3456}\ns_cselect_b32 s90, 0, s90")
    elif c:
        a(f"s_mov_b32 s{sK}, {c*32*3456}")
    for j in range(n):
        m.set(slot + 4096 * (j // 2) + 1024 * (j % 2))
        dma(VD + j, SW, so)
    m.set(slot + 4096 * (n // 2))
    a("s_add_u32 m0, m0, s43")
    m.cur = None
    dma(VD + n, SW, so, half=(kind == "B"))
    return n + 1

def wq_issue(p, m):
    if OPT.get("rot"):
        a(f"s_add_u32 s{sK}, s90, {(p+1)*32*3456}\ns_cmp_ge_u32 s{sK}, {18*32*3456}\ns_cselect_b32 s{sT}, {18*32*3456}, 0\ns_sub_u32 s{sK}, s{sK}, s{sT}")
    else:
        a(f"s_mov_b32 s{sK}, {QORD[p]*32*3456}")
    for j in range(2):
        m.set(wq_slot(p) + 1024 * j)
        dma(VD + 5 + j, SW, f"s{sK}")
    m.set(wq_slot(p) + 4096)
    a("s_add_u32 m0, m0, s43")
    m.cur = None
    dma(VD + 7, SW, f"s{sK}", half=True)
    return 3

def x_head(kind):
    nq = 9 if kind == "A" else 8
    a(f"L_{kind}X0:")
    a(f"""
v_lshrrev_b32 v1, 3, v0
v_mul_u32_u24 v1, {2304 if kind == 'A' else 1152}, v1
v_lshrrev_b32 v2, 4, v0
v_lshl_add_u32 v2, s{sV}, 2, v2
v_and_b32 v3, 7, v0
v_xor_b32 v2, v2, v3
v_lshl_add_u32 v1, v2, 4, v1
s_mul_i32 s{sT}, s{sRB}, {128*1152}
""")
    if kind == "A":
        a(f"""
s_mul_i32 s{sT2}, s{sV}, {16*1152}
s_add_u32 s{sT3}, s{sT}, s{sT2}
v_add_u32 v{VD}, s{sT3}, v1
s_sub_u32 s{sT3}, s{sT}, s{sT2}
s_add_u32 s{sT3}, s{sT3}, {17*1152}
v_add_u32 v{VD+4}, s{sT3}, v1
s_mul_i32 s{sT2}, s{sV}, 1152
s_sub_u32 s{sT3}, s{sT}, s{sT2}
s_sub_u32 s{sT3}, s{sT3}, {15*1152}
v_add_u32 v{VD+8}, s{sT3}, v1
""")
        for q in (1, 2, 3):
            a(f"v_add_u32 v{VD+q}, {32*1152*q}, v{VD}\nv_add_u32 v{VD+4+q}, {32*1152*q}, v{VD+4}")
    else:
        a(f"s_mul_i32 s{sT2}, s{sV}, {8*1152}\ns_add_u32 s{sT}, s{sT}, s{sT2}\nv_add_u32 v{VD}, s{sT}, v1")
        for q in range(1, 8):
            a(f"v_add_u32 v{VD+q}, {16*1152*q}, v{VD}")
    a(f"s_lshl_b32 s42, s{sV}, 10")
    a("s_waitcnt lgkmcnt(0)")
    srd(SX, 36, 2359296)
    x_issue(kind, 0, M0(42))
    a(f"s_branch L_{kind}X1")

def x_issue(kind, c, m):
    CUR[0] = c + (c & 1)
    nq, h, x0, xs = (9, 5, A_X0, A_XSLOT) if kind == "A" else (8, 4, B_X0, B_XSLOT)
    st = (c + 1) // 2
    if st > 8:
        return 0
    qs = range(nq) if c == 0 else (range(h) if c % 2 else range(h, nq))
    so = f"s{sK}" if st else "0"
    if OPT.get("rot"):
        so = "s91"
        if c % 2:
            a("s_addk_i32 s91, 128\ns_cmpk_eq_u32 s91, 1152\ns_cselect_b32 s91, 0, s91")
    elif st:
        a(f"s_movk_i32 s{sK}, {st*128}")
    for q in qs:
        m.set(x0 + (st % 3) * xs + 2048 * q)
        a("s_nop 0")
        dma(VD + q, SX, so)
    return len(qs)

def wo_setup(quad):
    col8(VWO, 1)
    a(f"""
s_mul_i32 s{sM}, s{sHG}, 144
v_add_u32 v{VWO}, s{sM}, v{VWO}
v_bfe_u32 v1, v0, 5, 1
v_bfe_u32 v2, v0, 3, 2
v_mul_u32_u24 v1, 72, v1
v_add_u32 v1, v1, v2
v_mul_u32_u24 v1, 1152, v1
v_add_u32 v{VWO+1}, v1, v{VWO}
v_lshrrev_b32 v1, 3, v0
v_mul_u32_u24 v1, 1152, v1
v_add_u32 v{VWO}, v1, v{VWO}
v_bfe_u32 v1, v0, 1, 2
v_bfe_u32 v2, v0, 3, 1
v_bfe_u32 v3, v0, 4, 1
v_bfe_u32 v4, v0, 5, 1
v_lshl_add_u32 v5, v2, 2, v1
v_lshl_add_u32 v5, v3, 4, v5
v_lshl_add_u32 v5, v4, 3, v5
v_mul_u32_u24 v5, 1152, v5
s_add_u32 s{sM}, s{sM}, 128
v_add_u32 v{VWO+2}, s{sM}, v5
v_lshl_add_u32 v5, v3, 2, v1
v_lshl_add_u32 v2, v4, 1, v2
v_mul_u32_u24 v2, 72, v2
v_add_u32 v5, v5, v2
v_mul_u32_u24 v5, 1152, v5
v_add_u32 v{VWO+3}, s{sM}, v5
s_and_b32 s55, s{sWAVE}, 3
s_lshl_b32 s57, s55, 3
""")
    rho(56)
    a(f"s_add_u32 s56, s56, s{55 if quad else sV}")

def rho(dst):
    few, many = (sRB, sHG) if OPT["mapping"] == 48 else (sHG, sRB)
    if OPT["mapping"] > 99:
        a(f"s_cmp_eq_u32 s{sBR}, {0 if OPT['mapping'] == 8448 else 1}\ns_cselect_b32 s{sT}, s{sHG}, s{sRB}\ns_cselect_b32 s{sT2}, s{sRB}, s{sHG}")
        few, many = sT, sT2
    a(f"s_lshl_b32 s{dst}, s{few}, 1\ns_add_u32 s{dst}, s{dst}, s{many}\ns_lshl_b32 s{dst}, s{dst}, 1")
    if not OPT.get("worot", 1):
        a(f"s_mov_b32 s{dst}, 0")

def wo_chunk(left, fadd):
    if left:
        a(f"s_mul_i32 s{sK}, s{sV}, {288*1152}\ns_add_u32 s{sK}, s{sK}, {64*1152}")
        steps = (4, 140, 4); v8, v2 = VWO + 1, VWO + 3
    else:
        a(f"""
s_add_u32 s{sT}, s56, {fadd}
s_bfe_u32 s{sK}, s{sT}, 0x30001
s_mul_i32 s{sK}, s{sK}, {72*1152}
s_bitcmp1_b32 s{sT}, 0
s_cselect_b32 s{sT}, {32*1152}, 0
s_add_u32 s{sK}, s{sK}, s{sT}
""")
        steps = (16, -8, 16); v8, v2 = VWO, VWO + 2
    a(f"s_mov_b32 s{sT2}, s{sK}")
    for j in range(4):
        dma(v8, SWO, f"s{sK}")
        a("s_addk_i32 m0, 1024")
        a(f"s_add_u32 s{sK}, s{sK}, {steps[j]*1152 & 0xffffffff}" if j < 3 else "s_nop 0")
    dma(v2, SWO, f"s{sT2}")
    return 5

def wo_issue(q):
    packed = sum((WO[2 + 4*q + w] // 1024) << (8 * w) for w in range(4))
    a(f"s_lshr_b32 s{sT}, {packed}, s57\ns_and_b32 s{sT}, s{sT}, 0xff\ns_lshl_b32 m0, s{sT}, 10")
    return wo_chunk(False, 4*q)

def wo_pair(g):
    a(f"s_mul_i32 s{sT}, s{sV}, {WO[2*g+1] - WO[2*g] & 0xffffffff}\ns_add_u32 m0, s{sT}, {WO[2*g]}")
    return wo_chunk(g == 0, 2*g - 2)

def sync_setup():
    a(f"""
s_lshl_b32 s{sT}, s{sBR}, 4
s_add_u32 s{sT}, s{sT}, s{sRB}
s_lshl_b32 s{sT2}, s{sT}, 8
s_add_u32 s{sT2}, s{sT2}, {WS_CNT}
s_add_u32 s{sOC}, s{SWS}, s{sT2}
s_addc_u32 s{sOC+1}, s{SWS+1}, 0
s_lshl_b32 s{sT}, s{sT}, 2
s_add_u32 s98, s{sT}, 32
s_lshl_b32 s99, s{sHG}, 2
s_mul_i32 s{sT2}, s{sHG}, {KV_ST}
s_add_u32 s{sT2}, s{sT2}, {WS_KV + 6144}
s_add_u32 s{sKC}, s{SWS}, s{sT2}
s_addc_u32 s{sKC+1}, s{SWS+1}, 0
""")

def loader_tail(tag, late=()):
    if tag[1] == "X":
        flag_check(sFO, 98, f"L_{tag}_fo")
    a("s_barrier")
    stamp()
    for g in late:
        wo_pair(g)
    if tag[1] == "X":
        a(f"s_cmp_eq_u32 s{sWAVE}, 6\ns_cbranch_scc0 L_{tag}_oc_x")
        arrive_wait(sOC, 8, f"L_{tag}_oc")
    a("s_waitcnt vmcnt(0)")
    stamp()
    a("s_barrier")
    stamps_out()
    a("s_endpgm")

def a_loader(kind):
    a(f"L_A{kind}1:")
    m = M0(42)
    issue = (lambda c: w_issue("A", c, m)) if kind == "W" else (lambda c: x_issue("A", c, m))
    pre = 1 if OPT.get("early") and kind == "W" else 2
    cnt = {c: issue(c) for c in range(1, pre + 1)}
    stamp()
    x_lane(8, 9, 1)
    rd_lanes(36, 12, 1, 2)
    a(f"""
v_add_u32 v8, {A_X0 + 8*2048}, v8
v_add_u32 v9, {A_X0 + 8*2048}, v9
s_lshl_b32 s{sT}, s{sV}, 6
v_xor_b32 v10, s{sT}, v36
v_add_u32 v10, {4096 if kind == 'W' else 8192}, v10
v_xor_b32 v11, 32, v10
v_add_u32 v12, {12288 if kind == 'W' else 13312}, v12
v_add_u32 v13, {4*A_WSLOT}, v10
v_add_u32 v14, {4*A_WSLOT}, v11
v_add_u32 v15, {4*A_WSLOT}, v12
s_lshl_b32 s{sT}, s{sV}, 10
s_add_u32 s{sT}, s{sT}, {A_EX + (0 if kind == 'W' else 2560)}
v_lshlrev_b32 v7, 3, v0
v_add_u32 v6, s{sT}, v7
v_add_u32 v7, {A_EX + (2048 if kind == 'W' else 4608)}, v7
""")
    stamp()
    a(f"s_waitcnt vmcnt({sum(cnt.values())})\ns_barrier")
    stamp()
    extra = 0
    for i in range(-1, 17):
        ks = i + 1
        slot = ks % 5
        off = 0 if slot == 4 else slot * A_WSLOT
        ad = (13, 14, 15) if slot == 4 else (10, 11, 12)
        a(f"ds_read_b128 v[40:43], v{8 + ks % 2} offset:{(ks//2 % 3)*A_XSLOT}")
        for j in range(3 if OPT.get("nohalo", 0) < 2 else 0):
            a(tr(44 + 4*j, ad[j], off)); a(tr(46 + 4*j, ad[j], off + (1024 if j < 2 else 256)))
        if i == -1 and pre == 1:
            cnt[2] = issue(2)
        if i + 4 <= 17:
            cnt[i+4] = issue(i + 4)
        a("s_waitcnt lgkmcnt(0)")
        for j in range(3 if not OPT.get("nohalo") else 0):
            c = 60 + 4*j if ks else "0"
            a(mf(60 + 4*j, 44 + 4*j, 40, c) if kind == "W" else mf(60 + 4*j, 40, 44 + 4*j, c))
        if i == 1:
            srds_rest(); sync_setup()
        if i == 2:
            wo_setup(True)
        if i == 14 and kind == "W":
            extra += wo_pair(0)
        if i == 15:
            extra += wo_issue(0)
        if i + 1 <= 16:
            left = sum(cnt.get(c, 0) for c in range(i + 3, min(i + 4, 17) + 1)) + extra
            a(f"s_waitcnt vmcnt({left})\ns_barrier")
            if OPT.get("fine") and kind == "W" and i % 2 == 1 and 0 < i < 14:
                stamp()
    for j in range(3):
        a(cv(44 + 2*j, 60 + 4*j)); a(cv(45 + 2*j, 62 + 4*j))
    if kind == "W":
        a("v_mov_b32 v50, 0\nv_mov_b32 v51, 0")
        a("v_permlane32_swap_b32 v48, v50\nv_permlane32_swap_b32 v49, v51")
    a("ds_write_b64 v6, v[44:45]\nds_write_b64 v6, v[46:47] offset:512")
    a(f"ds_write_b64 v7, {'v[50:51]' if kind == 'W' else 'v[48:49]'}")
    stamp()
    a("s_waitcnt lgkmcnt(0)\ns_barrier")
    if kind == "X":
        flag_load(sFO, 98)
    wo_issue(1); wo_issue(2); wo_issue(3)
    stamp()
    loader_tail("A" + kind)

def o_store_addr(vfull, vleft, tmp, left_lo):
    a(f"""
s_lshl_b32 s{sT}, s{sRB}, 3
s_lshl_b32 s{sT2}, s{sWAVE}, 1
s_add_u32 s{sT}, s{sT}, s{sT2}
s_mul_i32 s{sT}, s{sT}, 18432
s_mul_i32 s{sT2}, s{sBR}, {O_BR}
s_add_u32 s58, s{sT}, s{sT2}
s_lshl_b32 s{sT2}, s{sHG}, 11
s_add_u32 s{sT2}, s{sT2}, s58
v_lshl_add_u32 v{vfull}, v0, 4, s{sT2}
s_lshr_b32 s{sT2}, s{sHG}, 2
s_add_u32 s{sT2}, s{sT2}, 16
s_lshl_b32 s{sT2}, s{sT2}, 10
s_add_u32 s{sT}, s58, s{sT2}
s_and_b32 s{sT2}, s{sHG}, 3
s_lshl_b32 s{sT2}, s{sT2}, 8
s_add_u32 s{sT}, s{sT}, s{sT2}
v_and_b32 v{vleft}, 15, v0
v_lshlrev_b32 v{vleft}, 4, v{vleft}
v_bfe_u32 v{tmp}, v0, 4, 1
v_lshl_add_u32 v{vleft}, v{tmp}, 3, v{vleft}
v_add_u32 v{vleft}, s{sT}, v{vleft}
v_mov_b32 v{tmp}, {OOB}
""")
    x, y = (tmp, vleft) if left_lo else (vleft, tmp)
    a(f"v_cndmask_b32 v{vleft}, v{x}, v{y}, s[{sG01}:{sG01+1}]")

def o_store(of, vfull, vleft, rt):
    so = f"s{sK}" if rt else "0"
    if rt:
        a(f"s_movk_i32 s{sK}, 18432")
    a(f"buffer_store_dwordx4 {vr(of,4)}, v{vfull}, s[{SWS}:{SWS+3}], {so} offen sc1")
    a(f"buffer_store_dwordx4 {vr(of+4,4)}, v{vfull}, s[{SWS}:{SWS+3}], {so} offen offset:1024 sc1")
    a(f"buffer_store_dwordx2 {vr(of+8,2)}, v{vleft}, s[{SWS}:{SWS+3}], {so} offen sc1")

def gap_touch(tag, parts):
    if not OPT.get("touch"):
        return
    nt = " nt" if OPT.get("tnt") else ""
    a(f"""
s_cmp_eq_u32 s{sWAVE}, 1
s_cbranch_scc1 L_{tag}_tw
s_cmp_eq_u32 s{sWAVE}, 2
s_cbranch_scc0 L_{tag}_tx
s_and_b32 s{sT}, s{sRB}, 7
s_cmp_eq_u32 s{sT}, 0
s_cselect_b32 s{sT}, 9, s{sT}
s_sub_u32 s{sT}, s{sT}, 1
s_lshl_b32 s{sT}, s{sT}, 7
s_and_b32 s{sT2}, s{sHG}, 3
s_lshl_b32 s{sT2}, s{sT2}, 5
s_lshl_b32 s{sT3}, s{sRB}, 7
s_add_u32 s{sT2}, s{sT2}, s{sT3}
v_and_b32 v1, 31, v0
v_add_u32 v1, s{sT2}, v1
v_mul_u32_u24 v1, 1152, v1
""")
    srd(SX, 36, 2359296)
    a(f"""
buffer_load_dword v26, v1, s[{SX}:{SX+3}], s{sT} offen{nt}
s_branch L_{tag}_tx
L_{tag}_tw:
s_and_b32 s{sT}, s{sHG}, 3
s_lshl_b32 s{sT}, s{sT}, 1
s_cmp_eq_u32 s{sT}, 0
s_cselect_b32 s{sT}, 9, s{sT}
s_sub_u32 s{sT}, s{sT}, 1
s_lshl_b32 s{sT}, s{sT}, 3
s_and_b32 s{sT2}, s{sRB}, 7
s_add_u32 s{sT}, s{sT}, s{sT2}
s_mul_i32 s{sT}, s{sT}, {8*3456}
s_add_u32 s{sT}, s{sT}, s{sM}
v_lshrrev_b32 v1, 3, v0
v_mul_u32_u24 v1, 3456, v1
v_bfe_u32 v2, v0, 1, 2
v_min_u32 v2, {parts-1}, v2
v_mul_u32_u24 v2, 1152, v2
v_and_b32 v3, 1, v0
v_mul_u32_u24 v3, 140, v3
v_add3_u32 v1, v1, v2, v3
""")
    srd(SW, 38, 1990656)
    a(f"buffer_load_dword v26, v1, s[{SW}:{SW+3}], s{sT} offen offset:{1152*(3-parts)}{nt}\nL_{tag}_tx:")

def init_stores(tag, with_kv):
    if OPT.get("xcc"):
        a(f"s_getreg_b32 s{sT}, hwreg(HW_REG_XCC_ID, 0, 4)\nv_mov_b32 v2, s{sT}\ns_lshl_b32 s{sT}, s2, 2\ns_add_u32 s{sT}, s{sT}, 0x6f0000\nv_mov_b32 v1, s{sT}\nbuffer_store_dword v2, v1, s[{SWS}:{SWS+3}], 0 offen sc1")
    a(f"""
s_or_b32 s{sT}, s{sHG}, s{sWAVE}
s_cmp_eq_u32 s{sT}, 0
s_cselect_b32 s55, 1, 0
v_mov_b32 v20, 0
v_mov_b32 v21, 0
v_mov_b32 v22, 0
v_mov_b32 v23, 0
s_cbranch_scc0 L_{tag}_i1
s_lshl_b32 s{sT}, s{sBR}, 4
s_add_u32 s{sT}, s{sT}, s{sRB}
s_lshl_b32 s{sT}, s{sT}, 8
s_add_u32 s{sT}, s{sT}, {WS_CNT}
v_mov_b32 v24, s{sT}
buffer_store_dword v20, v24, s[{SWS}:{SWS+3}], 0 offen sc1
L_{tag}_i1:
""")
    if with_kv:
        a(f"""
s_or_b32 s{sT}, s{sRB}, s{sWAVE}
s_cmp_eq_u32 s{sT}, 0
s_cbranch_scc0 L_{tag}_i2
s_or_b32 s55, s55, 2
s_mul_i32 s{sT}, s{sHG}, {KV_ST}
s_add_u32 s{sT}, s{sT}, {WS_KV}
v_lshl_add_u32 v24, v0, 4, s{sT}
""")
        for j in range(7):
            a(f"s_movk_i32 s{sK}, {1024*j}\nbuffer_store_dwordx4 v[20:23], v24, s[{SWS}:{SWS+3}], s{sK} offen sc1")
        a(f"L_{tag}_i2:")

def init_flags(tag):
    a(f"""
s_waitcnt vmcnt(0)
s_cmp_eq_u32 s55, 0
s_cbranch_scc1 L_{tag}_f2
v_mov_b32 v20, 1
s_bitcmp1_b32 s55, 0
s_cbranch_scc0 L_{tag}_f1
s_lshl_b32 s{sT}, s{sBR}, 4
s_add_u32 s{sT}, s{sT}, s{sRB}
s_lshl_b32 s{sT}, s{sT}, 2
s_add_u32 s{sT}, s{sT}, 32
v_mov_b32 v24, s{sT}
buffer_store_dword v20, v24, s[{SDBG}:{SDBG+3}], 0 offen sc1
L_{tag}_f1:
s_bitcmp1_b32 s55, 1
s_cbranch_scc0 L_{tag}_f2
s_lshl_b32 s{sT}, s{sHG}, 2
v_mov_b32 v25, s{sT}
buffer_store_dword v20, v25, s[{SDBG}:{SDBG+3}], 0 offen sc1
L_{tag}_f2:
""")

def kstep(tiles, nxt_reads, first, waits):
    pend = list(first)
    for t, (m0_, m1_) in enumerate(tiles):
        if t in waits:
            a(waits[t])
        a(m0_)
        for x in pend: a(x)
        a(m1_)
        pend = []
        if nxt_reads:
            a(nxt_reads[t][0]); pend = [nxt_reads[t][1]]
    for x in pend: a(x)

def a_consumer():
    acc = lambda t, rt: 144 + (t * 2 + rt) * 4
    wf = lambda t: 88 + 4 * t
    xf = lambda buf, rt: 72 + buf * 8 + rt * 4
    R8, R2, R8b, R2b, aX = 1, 5, 6, 10, 11
    vOF, vOL, vEXW, vEXR = 13, 14, 15, 16
    MC, MP, MPF, PM = 56, 60, 64, 68
    a("L_AC:\ns_waitcnt lgkmcnt(0)")
    gap_touch("AC", 3)
    srds_rest()
    init_stores("AC", False)
    rd_lanes(R8, R2, 17, 18); x_lane(aX, aX + 1, 17)
    for j in range(5):
        a(f"v_add_u32 v{R8b+j}, {4*A_WSLOT}, v{R8+j}")
    a(f"""
s_lshl_b32 s{sT}, s{sWAVE}, 12
s_add_u32 s{sT}, s{sT}, {A_X0}
v_add_u32 v{aX}, s{sT}, v{aX}
v_add_u32 v{aX+1}, s{sT}, v{aX+1}
s_lshr_b32 s{sT}, s{sWAVE}, 1
s_lshl_b32 s{sT}, s{sT}, 3
v_and_b32 v17, 15, v0
v_xor_b32 v17, s{sT}, v17
v_lshrrev_b32 v18, 4, v0
v_lshlrev_b32 v18, 2, v18
v_xor_b32 v18, s{sT}, v18
v_sub_u32 v17, v17, v18
v_mov_b32 v19, {NEG}
s_and_b32 s{sT}, s{sWAVE}, 1
s_or_b32 s{sT}, s{sT}, s{sRB}
s_cmp_eq_u32 s{sT}, 0
s_cselect_b64 s[42:43], -1, 0
""")
    for r in range(4):
        a(f"""
v_subrev_u32 v18, {r}, v17
v_cmp_gt_u32 vcc, 8, v18
v_cndmask_b32 v{MC+r}, v19, 0, vcc
v_cmp_gt_i32 vcc, -8, v18
v_cndmask_b32 v{MP+r}, v19, 0, vcc
v_cndmask_b32 v{MPF+r}, v{MP+r}, v19, s[42:43]
v_cmp_lt_i32 vcc, -1, v18
v_mov_b32 v20, {'0xffff' if r % 2 == 0 else '0xffff0000'}
v_cndmask_b32 v20, 0, v20, vcc
""")
        a(f"v_mov_b32 v{PM + r//2}, v20" if r % 2 == 0 else f"v_or_b32 v{PM + r//2}, v{PM + r//2}, v20")
    o_store_addr(vOF, vOL, 17, True)
    a(f"""
s_lshr_b32 s{sT}, s{sWAVE}, 1
s_add_u32 s{sT}, s{sT}, 1
s_mul_i32 s{sT}, s{sT}, 5120
s_bitcmp1_b32 s{sWAVE}, 0
s_cselect_b32 s{sT3}, s{sT}, 0
v_lshlrev_b32 v17, 3, v0
v_add_u32 v17, {A_EX}, v17
v_add_u32 v{vEXW}, s{sT}, v17
v_add_u32 v{vEXR}, s{sT3}, v17
""")

    def wreads(ks, t):
        slot = ks % 5
        o = 0 if slot == 4 else slot * A_WSLOT
        r8, r2 = (R8b, R2b) if slot == 4 else (R8, R2)
        if t == 4 or t == 13:
            o += 12288 if t == 4 else 13312
            return [tr(wf(t), r2, o), tr(wf(t) + 2, r2, o + 256)]
        s, j = (0, t) if t < 4 else (1, t - 5) if t < 9 else (2, t - 9)
        return [tr(wf(t), r8 + j, o + 4096*s), tr(wf(t) + 2, r8 + j, o + 4096*s + 1024)]
    xread = lambda ks, rt: f"ds_read_b128 {vr(xf(ks % 2, rt),4)}, v{aX + ks % 2} offset:{(ks//2 % 3)*A_XSLOT + rt*2048}"

    stamp()
    a("s_barrier")
    stamp()
    a(xread(0, 0)); a(xread(0, 1))
    for t in range(14):
        for x in wreads(0, t): a(x)
    for ks in range(18):
        if ks < 17:
            a("s_barrier")
        if OPT.get("fine") == 2 and ks in (2, 5, 8, 11, 14):
            stamp()
        if ks == 3:
            init_flags("AC")
        tiles = []
        for t in range(14):
            c = lambda rt: acc(t, rt) if ks else "0"
            tiles.append([mf(acc(t, rt), wf(t), xf(ks % 2, rt), c(rt)) if t < 9 else mf(acc(t, rt), xf(ks % 2, rt), wf(t), c(rt)) for rt in range(2)])
        if ks < 17:
            nxt = [wreads(ks + 1, t) for t in range(14)]
            nxt[1] = [nxt[1][0], nxt[1][1] + "\n" + xread(ks + 1, 1)]
            kstep(tiles, nxt, [xread(ks + 1, 0)], {0: "s_waitcnt lgkmcnt(14)", 7: "s_waitcnt lgkmcnt(15)", 12: "s_waitcnt lgkmcnt(15)"})
        else:
            kstep(tiles, None, [], {0: "s_waitcnt lgkmcnt(14)", 7: "s_waitcnt lgkmcnt(0)"})
    stamp()
    KP = lambda j: 18 + 10 * j
    QT = lambda rt, h: 88 + 16 * rt + 4 * h
    VP = lambda t, j: 120 + 6 * t + 2 * j if t < 4 else 48 + 2 * j
    ONE = 72
    def pack_kv(rt):
        o = []
        for q in range(2):
            o += [cv(QT(rt, 3) + 2 + q, acc(4, rt) + 2*q), f"v_mov_b32 v{KP(1+rt) + 8 + q}, 0"]
        for tau in range(4):
            o += [cv(KP(1+rt) + 2*tau + q, acc(5+tau, rt) + 2*q) for q in range(2)]
        o += [f"v_permlane32_swap_b32 v{QT(rt,3) + 2 + q}, v{KP(1+rt) + 8 + q}" for q in range(2)]
        for t in range(5):
            o += [cv(VP(t, 1+rt) + q, acc(9+t, rt) + 2*q) for q in range(2)]
        return o
    def pack_q(rt):
        o = []
        for t in range(4):
            for q in range(2):
                d = QT(rt, t) + q
                o.append(cv(d, acc(t, rt) + 2*q))
                if (t, q) in SPLITS:
                    m = SPLITS[(t, q)]; lo = QT(rt, t-1) + 2 + q
                    o += [f"v_cndmask_b32 v{lo}, 0, v{d}, s[{m}:{m+1}]", f"v_xor_b32 v{d}, v{d}, v{lo}"]
        return o + [f"v_mov_b32 v{QT(rt,0) + 3}, 0"]
    weave([], pack_kv(1))
    a(f"s_bitcmp1_b32 s{sWAVE}, 0\ns_cbranch_scc1 L_AC_nodump")
    for j in range(5):
        a(f"ds_write_b64 v{vEXW}, {vr(KP(2) + 2*j, 2)} offset:{512*j}")
        a(f"ds_write_b64 v{vEXW}, {vr(VP(j, 2), 2)} offset:{512*(5+j)}")
    a("L_AC_nodump:")
    weave([], pack_kv(0) + pack_q(1))
    a("s_waitcnt lgkmcnt(0)\ns_barrier")
    for j in range(5):
        a(f"ds_read_b64 {vr(KP(0) + 2*j, 2)}, v{vEXR} offset:{512*j}")
        a(f"ds_read_b64 {vr(VP(j, 0), 2)}, v{vEXR} offset:{512*(5+j)}")
    SC = lambda rt, h: (224 if rt else 184) + 8 * h
    MX = lambda rt: [76 + 4 * rt + h for h in range(4)]
    PT = lambda rt, h: 144 + 16 * rt + 4 * h
    def qk(rt):
        o = []
        for h in range(4):
            o += [mf(SC(rt, h), KP(1+rt) + 2*h, QT(rt, h), MC), mf(SC(rt, h) + 4, KP(rt) + 2*h, QT(rt, h), MP if rt else MPF)]
        return o
    def rowmax(rt):
        o = []
        for h in range(4):
            s = SC(rt, h); m = MX(rt)[h]
            o += [f"v_max_f32 v{s+r}, v{s+r}, v{s+4+r}" for r in range(4)]
            o += [f"v_max3_f32 v{m}, v{s}, v{s+1}, v{s+2}", f"v_max_f32 v{m}, v{m}, v{s+3}"]
        return o
    def xmax(rt):
        m = MX(rt)
        return [f"v_permlane32_swap_b32 v{m[0]}, v{m[1]}", f"v_permlane32_swap_b32 v{m[2]}, v{m[3]}",
                f"v_max_f32 v{m[0]}, v{m[0]}, v{m[1]}", f"v_max_f32 v{m[2]}, v{m[2]}, v{m[3]}",
                f"v_permlane16_swap_b32 v{m[0]}, v{m[2]}", f"v_max_f32 v{m[0]}, v{m[0]}, v{m[2]}",
                f"v_mul_f32 v{m[0]}, s{sT2}, v{m[0]}", f"v_mov_b32 v{m[2]}, v{m[0]}",
                f"v_permlane16_swap_b32 v{m[0]}, v{m[2]}", f"v_mov_b32 v{m[1]}, v{m[0]}", f"v_mov_b32 v{m[3]}, v{m[2]}",
                f"v_permlane32_swap_b32 v{m[0]}, v{m[1]}", f"v_permlane32_swap_b32 v{m[2]}, v{m[3]}"]
    def probs(rt):
        o = []
        for h in range(4):
            s = SC(rt, h); p = PT(rt, h)
            o += [f"v_fma_f32 v{s+r}, v{s+r}, s{sT}, v{MX(rt)[h]}" for r in range(4)]
            o += [f"v_exp_f32 v{s+r}, v{s+r}" for r in range(4)]
            if h:
                o += split(rt, h - 1)
        return o + split(rt, 3)
    def split(rt, h):
        s = SC(rt, h); p = PT(rt, h); o = []
        for q in range(2):
            o += [cv(p + q, s + 2*q), f"v_and_b32 v{p+2+q}, v{p+q}, v{PM+q}", f"v_xor_b32 v{p+q}, v{p+q}, v{p+2+q}"]
        return o
    OB = lambda rt, t: (224 if rt else 184) + 4 * t
    OA = lambda rt, t: (224 if rt else 184) + 12 + 4 * t
    SM = lambda rt, h: 88 + 16 * rt + 4 * h
    OF = lambda rt: 18 + 10 * rt
    def pv(rt):
        o = [mf(SM(rt, h), ONE, PT(rt, h), "0") for h in range(4)]
        for t in range(5):
            if t < 4: o.append(mf(OB(rt, t), VP(t, rt), PT(rt, t), "0"))
            if t > 0: o.append(mf(OA(rt, t), VP(t, rt), PT(rt, t-1), "0"))
        return o
    def finish(rt):
        o = [f"v_rcp_f32 v{SM(rt,h)}, v{SM(rt,h)}" for h in range(4)]
        for t in range(5):
            for q in range(2):
                d = OF(rt) + 2*t + q
                srcs = []
                if t < 4: srcs.append((OB(rt, t) + 2*q, SM(rt, t), d))
                if t == 4: srcs.append((OA(rt, t) + 2*q, SM(rt, 3), d))
                if (t, q) in SPLITS: srcs.append((OA(rt, t) + 2*q, SM(rt, t-1), 17))
                for x, inv, dd in srcs:
                    o += [f"v_mul_f32 v{x}, v{x}, v{inv}", f"v_mul_f32 v{x+1}, v{x+1}, v{inv}", cv(dd, x)]
                if (t, q) in SPLITS:
                    m = SPLITS[(t, q)]
                    o.append(f"v_cndmask_b32 v{d}, v{d}, v17, s[{m}:{m+1}]")
        return o
    a(f"s_mov_b32 s{sT}, {f32(CSC)}\ns_mov_b32 s{sT2}, {f32(-CSC)}")
    weave(qk(1), pack_q(0) + [f"v_mov_b32 v{ONE+j}, 0x3f803f80" for j in range(4)])
    a("s_waitcnt lgkmcnt(0)")
    weave(qk(0), rowmax(1))
    x1, x0 = xmax(1), xmax(0)
    r0 = rowmax(0)
    for i, x in enumerate(x1):
        a(x)
        for y in r0[2*i:2*i+2]: a(y)
    p1 = probs(1)
    for i, x in enumerate(x0):
        a(x)
        for y in p1[2*i:2*i+2]: a(y)
    weave([], p1[2*len(x0):])
    weave(pv(1), probs(0))
    weave(pv(0), finish(1))
    o_store(OF(1), vOF, vOL, 1)
    weave([], finish(0))
    o_store(OF(0), vOF, vOL, 0)
    stamp()
    a("s_branch L_P2")

def phi(r, n, t):
    o = [f"v_pk_fma_f32 {vr(t+j,2)}, {vr(r+j,2)}, s[56:57], v[14:15]" for j in range(0, n, 2)]
    for j in range(n):
        o += [f"v_exp_f32 v{t+j}, v{t+j} clamp", f"v_max_f32 v{r+j}, s{sT2}, v{r+j}"]
    return o + [f"v_pk_add_f32 {vr(r+j,2)}, {vr(r+j,2)}, {vr(t+j,2)}" for j in range(0, n, 2)]

def b_consumer():
    acc = lambda t, rt: 184 + (t * 2 + rt) * 4
    wf = lambda t: 148 + 4 * t
    xf = lambda ks, rt: 52 + ks * 8 + rt * 4 if ks < 12 else 36 + (ks % 2) * 8 + rt * 4
    R8, R2, aX = 1, 5, 6
    vOF, vOL, vEX = 8, 9, 10
    CK, CS = 28, 32
    a("L_BC:\ns_waitcnt lgkmcnt(0)")
    gap_touch("BC", 2)
    srds_rest()
    init_stores("BC", True)
    rd_lanes(R8, R2, 17, 18); x_lane(aX, aX + 1, 17)
    a(f"""
s_lshl_b32 s{sT}, s{sWAVE}, 12
s_add_u32 s{sT}, s{sT}, {B_X0}
v_add_u32 v{aX}, s{sT}, v{aX}
v_add_u32 v{aX+1}, s{sT}, v{aX+1}
v_and_b32 v17, 15, v0
v_cmp_gt_u32 vcc, 8, v17
v_mov_b32 v18, {EPS}
s_mov_b64 s[42:43], vcc
s_mul_i32 s{sT}, s{sWAVE}, 10240
s_add_u32 s{sT}, s{sT}, {B_EX}
v_lshl_add_u32 v{vEX}, v0, 4, s{sT}
v_mov_b32 v14, {f32(-1e-6*LOG2E)}
v_mov_b32 v15, v14
s_mov_b32 s56, {f32(LOG2E)}
s_mov_b32 s57, s56
""")
    for r in range(4):
        a(f"v_mov_b32 v{CK+r}, v18\nv_cndmask_b32 v{CS+r}, 0, v18, vcc")
    o_store_addr(vOF, vOL, 17, False)

    def wreads(ks, t):
        o = (ks % 5) * B_KVSLOT
        if t == 4:
            return [tr(wf(t), R2, o + 8192), tr(wf(t) + 2, R2, o + 8192 + 256)]
        s, j = (0, t) if t < 4 else (1, t - 5)
        return [tr(wf(t), R8 + j, o + 4096*s), tr(wf(t) + 2, R8 + j, o + 4096*s + 1024)]
    xread = lambda ks, rt: f"ds_read_b128 {vr(xf(ks, rt),4)}, v{aX + ks % 2} offset:{(ks//2 % 3)*B_XSLOT + rt*2048}"

    stamp()
    a("s_barrier")
    stamp()
    a(xread(0, 0)); a(xread(0, 1))
    for t in range(9):
        for x in wreads(0, t): a(x)
    for ks in range(18):
        if ks < 17:
            a("s_barrier")
        if ks == 3:
            init_flags("BC")
        tiles = [[mf(acc(t, rt), xf(ks, rt), wf(t), acc(t, rt) if ks else (CK if t < 4 else CS if t == 4 else "0")) for rt in range(2)] for t in range(9)]
        if ks < 17:
            nxt = [wreads(ks + 1, t) for t in range(9)]
            nxt[1] = [nxt[1][0], nxt[1][1] + "\n" + xread(ks + 1, 1)]
            kstep(tiles, nxt, [xread(ks + 1, 0)], {0: "s_waitcnt lgkmcnt(12)", 3: "s_waitcnt lgkmcnt(13)", 6: "s_waitcnt lgkmcnt(13)", 8: "s_waitcnt lgkmcnt(11)"})
        else:
            kstep(tiles, None, [], {0: "s_waitcnt lgkmcnt(12)", 3: "s_waitcnt lgkmcnt(0)\ns_barrier"})
    stamp()
    a(f"s_mov_b32 s{sT2}, {EPS}\nv_mov_b32 v16, 0x3f803f80")
    wr = lambda reg, slot: f"ds_write_b128 v{vEX}, {vr(reg,4)} offset:{1024*slot}"
    pk = lambda d, s: [cv(d + j, s + 2*j) for j in range(4)]
    weave([], pk(156, acc(4, 0)) + [f"v_cndmask_b32 v{156+j}, v{156+j}, v16, s[42:43]" for j in range(4)] + [wr(156, 9)])
    xq = lambda ks, rt: 168 + (ks - 12) * 8 + rt * 4 if ks in (12, 13) else acc(2 * (ks - 14) + rt, 1) if ks in (14, 15) else xf(ks, rt)
    reread = lambda ks, rt: f"ds_read_b128 {vr(xq(ks, rt),4)}, v{aX + ks % 2} offset:{(ks//2 % 3)*B_XSLOT + rt*2048}"
    weave([], [reread(ks, rt) for ks in (12, 13) for rt in range(2)])
    for tau in range(5):
        o = phi(acc(tau, 0), 8, 148)
        if tau < 4:
            o = pk(acc(5+tau, 0), acc(5+tau, 0)) + o[:8] + [wr(acc(5+tau, 0), 5 + tau)] + o[8:]
        weave([], o + pk(acc(tau, 0), acc(tau, 0)) + [wr(acc(tau, 0), tau)])
        if tau < 4:
            a(reread(14 + tau // 2, tau % 2))
    for j in range(5):
        a(f"v_add_u32 v{R8+j}, {B_WQ0}, v{R8+j}")
    a("s_waitcnt lgkmcnt(0)\ns_barrier")
    stamp()
    QA = lambda t, rt: 216 + (t * 2 + rt) * 4
    qf = lambda t: 148 + 4 * t
    qbase = lambda p: B_WQ0 if p < 4 else 0 if p < 7 else 15360
    def qreads(p, t):
        o = wq_slot(p) - qbase(p)
        if t == 4:
            return [tr(qf(t), R2, o + 4096), tr(qf(t) + 2, R2, o + 4096 + 256)]
        return [tr(qf(t), R8 + t, o), tr(qf(t) + 2, R8 + t, o + 1024)]
    for t in range(5):
        for x in qreads(0, t): a(x)
    for p in range(18):
        ks = QORD[p]
        if p == 7 or (p == 13 and OPT.get('wob', 0)):
            a("s_barrier")
        tiles = [[mf(QA(t, rt), qf(t), xq(ks, rt), QA(t, rt) if p else CK) for rt in range(2)] for t in range(5)]
        if p < 17:
            nxt = [qreads(p + 1, t) for t in range(5)]
            if qbase(p + 1) != qbase(p):
                d = (qbase(p + 1) - qbase(p)) & 0xffffffff
                for t in range(5):
                    nxt[t][0] = f"v_add_u32 v{R8+t}, {d}, v{R8+t}\n" + nxt[t][0]
            kstep(tiles, nxt, [], {t: f"s_waitcnt lgkmcnt({7 if t else 8})" for t in range(5)})
        else:
            kstep(tiles, None, [], {t: f"s_waitcnt lgkmcnt({8 - 2*t})" for t in range(5)})
    stamp()
    PQ = lambda rt: 36 + 10 * rt
    KO = 84
    tup = {0: KO, 1: KO + 4, 2: KO + 12, 3: KO + 20, 4: KO + 28}
    ZO = KO + 32
    weave([], [f"v_mov_b32 v{r}, 0" for r in (tup[1]+4, tup[1]+5, tup[2]+4, tup[2]+5, tup[3]+4, tup[3]+5, ZO+8, ZO+9)])
    a(f"v_lshlrev_b32 v16, 3, v0\nv_add_u32 v16, {B_KVOP}, v16")
    for t in range(5):
        weave([], phi(QA(t, 0), 8, 148) + [cv(PQ(rt) + 2*t + q, QA(t, rt) + 2*q) for rt in range(2) for q in range(2)])
    stamp()
    a("s_barrier")
    stamp()
    tid = lambda tau, taup: {-1: tau - 1, 0: 4 + tau, 1: 9 + tau}[taup - tau]
    rd = lambda d, slot: a(f"ds_read_b64 {vr(d,2)}, v16 offset:{512*slot}")
    for j, d in enumerate((ZO, ZO + 2, ZO + 4, ZO + 6, ZO + 10)):
        rd(d, 13 + j)
    rd(tup[0], tid(0, 0)); rd(tup[0] + 2, tid(1, 0))
    for t in (1, 2, 3):
        rd(tup[t], tid(t-1, t)); rd(tup[t] + 2, tid(t, t)); rd(tup[t] + 6, tid(t+1, t))
    rd(tup[4], tid(3, 4)); rd(tup[4] + 2, tid(4, 4))
    DN = lambda rt: 148 + 4 * rt
    NM = lambda rt, t: 184 + 20 * rt + 4 * t
    OF = lambda rt: 156 + 10 * rt
    a("s_waitcnt lgkmcnt(13)")
    for k, (zo, po) in enumerate(((0, 0), (4, 4), (8, 6))):
        for rt in range(2):
            a(mf(DN(rt), ZO + zo, PQ(rt) + po, DN(rt) if k else CK))
    a("s_waitcnt lgkmcnt(0)")
    def num(rt):
        o = [mf(NM(rt, t), tup[t], PQ(rt) + 2*(t-1), "0") for t in (1, 2, 3)]
        o += [mf(NM(rt, 0), tup[0], PQ(rt), "0"), mf(NM(rt, 4), tup[4], PQ(rt) + 6, "0")]
        return o + [mf(NM(rt, t), tup[t] + 4, PQ(rt) + 2*t, NM(rt, t)) for t in (1, 2, 3)]
    def fin(rt, packed):
        o = []
        for t in (0, 4, 1, 2, 3):
            for q in range(2):
                inv = DN(rt) + min(t, 3)
                if (t, q) in SPLITS:
                    m = SPLITS[(t, q)]
                    o.append(f"v_cndmask_b32 v17, v{DN(rt)+t}, v{DN(rt)+t-1}, s[{m}:{m+1}]")
                    inv = 17
                n = NM(rt, t) + 2*q
                o += [f"v_mul_f32 v{n}, v{n}, v{inv}", f"v_mul_f32 v{n+1}, v{n+1}, v{inv}", cv(OF(rt) + 2*t + q, n)]
        return o
    weave(num(0), [], 0)
    weave(num(1), [f"v_rcp_f32 v{DN(rt)+h}, v{DN(rt)+h}" for rt in range(2) for h in range(4)], 1)
    for rt in range(2):
        weave([], fin(rt, True))
        o_store(OF(rt), vOF, vOL, rt)
    stamp()

def kv_index(wreg, VS, VG, VZ):
    a(f"s_cmp_eq_u32 s{wreg}, 0\ns_cselect_b32 s58, 4, s{wreg}")
    for slot in range(3):
        if slot == 0:
            a(f"s_lshl_b32 s{sT}, s58, 4\ns_sub_u32 s{sT2}, s{sT}, 16\ns_mov_b64 s[46:47], 0")
        elif slot == 1:
            a(f"s_lshl_b32 s{sT}, s{wreg}, 4\ns_mov_b32 s{sT2}, s{sT}")
        else:
            a(f"s_add_u32 s{sT2}, s{sT}, 16\ns_cmp_eq_u32 s{wreg}, 3\ns_cselect_b32 s{sT2}, 56, s{sT2}\ns_cselect_b64 s[46:47], s[44:45], 0")
        kv_tile(VS and VS + 2*slot, VG and VG + 2*slot, False)
    if VZ:
        kv_z(VZ)

def kv_tile(VS, VG, last):
    a(f"v_add_u32 v3, s{sT2}, v1")
    head_of(4, 3)
    a(f"v_mul_u32_u24 v5, 18, v4\nv_sub_u32 v3, v3, v5\nv_cndmask_b32 v4, v4, 7, s[46:47]")
    if last:
        a("v_cmp_eq_u32 vcc, 0, v1\nv_cndmask_b32 v4, v4, 3, vcc\nv_cndmask_b32 v3, v3, 18, vcc")
    for q in range(2):
        a(f"v_add3_u32 v5, v2, s{sT}, {2*q}")
        head_of(6, 5)
        a("v_cmp_eq_u32 vcc, v4, v6\nv_mad_u32_u24 v5, v5, 19, v3\nv_lshlrev_b32 v5, 2, v5")
        if VS:
            a(f"v_add_u32 v6, {B_STG}, v5\nv_cndmask_b32 v{VS+q}, v8, v6, vcc")
        if VG:
            a(f"v_add_u32 v6, s{sM}, v5\nv_cndmask_b32 v{VG+q}, v9, v6, vcc")

def kv_z(VZ):
    a("v_and_b32 v3, 3, v0")
    for q in range(2):
        a(f"v_add3_u32 v5, v2, s{sT}, {2*q}")
        head_of(6, 5)
        a(f"v_cmp_eq_u32 vcc, v3, v6\nv_mul_u32_u24 v5, 76, v5\nv_add3_u32 v5, v5, s{sM}, 64\nv_add_u32 v5, 8, v5\nv_cndmask_b32 v{VZ+q}, v9, v5, vcc")

def b_loader(kind):
    a(f"L_B{kind}1:")
    m = M0(42)
    issue = (lambda c: w_issue("B", c, m)) if kind == "W" else (lambda c: x_issue("B", c, m))
    pre = 1 if OPT.get("early") and kind == "W" else 2
    cnt = {c: issue(c) for c in range(1, pre + 1)}
    stamp()
    mark = len(a.lines)
    VS, VG, vZS, vEA, vE0, vEL, vLA, vGA, vLW = 72, 80, 98, 99, 100, 101, 102, 103, 105
    if kind == "W":
        a(f"v_subrev_u32 v{VD+5}, 1152, v{VD}\nv_subrev_u32 v{VD+6}, 1152, v{VD+1}")
    srds_rest()
    if kind == "W":
        wo_setup(False)
    else:
        sync_setup()
    a(f"""
s_add_u32 s55, s{sV}, 2
s_mul_i32 s{sM}, s{sHG}, {KV_ST}
s_add_u32 s{sM}, s{sM}, {WS_KV}
v_and_b32 v1, 15, v0
v_lshrrev_b32 v2, 4, v0
v_lshlrev_b32 v2, 2, v2
v_cmp_gt_u32 s[44:45], 8, v1
v_lshlrev_b32 v8, 2, v0
v_add_u32 v8, {B_DUMP}, v8
v_mov_b32 v9, {OOB}
""")
    own = sV if kind == "X" else 55
    if kind == "X":
        kv_index(55, None, VG, VG + 6)
        a(f"s_movk_i32 s{sT}, 64")
        kv_z(10)
    kv_index(own, VS, VG + 8 if kind == "X" else None, VG + 14 if kind == "X" else None)
    a(f"""
v_add_u32 v5, s{sT}, v0
v_mul_u32_u24 v5, 76, v5
v_add_u32 v5, {B_STG + 72}, v5
v_cndmask_b32 v{vZS}, v8, v5, s[{sG0}:{sG0+1}]
v_lshlrev_b32 v{vEL}, 4, v0
v_add_u32 v{vEL}, {B_EX}, v{vEL}
s_lshl_b32 s{sT}, s{own}, 10
v_add_u32 v{vEA}, s{sT}, v{vEL}
s_lshl_b32 s{sT}, s58, 10
v_add_u32 v{vE0}, s{sT}, v{vEL}
""")
    if kind == "X":
        a(f"s_movk_i32 s{sT}, 64\ns_movk_i32 s{sT2}, 56\ns_mov_b64 s[46:47], s[44:45]")
        kv_tile(VS + 6, VG + 16, True)
        a(f"s_cmp_eq_u32 s{sV}, 0\ns_cselect_b64 s[46:47], -1, 0")
        for q in range(2):
            a(f"v_cndmask_b32 v{VS+6+q}, v8, v{VS+6+q}, s[46:47]\nv_cndmask_b32 v{VG+16+q}, v{10+q}, v{VG+16+q}, s[46:47]")
        a(f"""
v_lshlrev_b32 v5, 3, v0
v_add_u32 v5, {B_KVOP}, v5
s_lshl_b32 s{sT2}, s58, 9
s_sub_u32 s{sT2}, s{sT2}, 512
v_add_u32 v{vLW+2}, s{sT2}, v5
s_lshl_b32 s{sT2}, s{sV}, 9
v_add_u32 v{vLW+1}, s{sT2}, v5
v_add_u32 v{vLW}, 1024, v{vLW+1}
s_mul_i32 s{sT2}, s{sV}, {9*512}
v_add_u32 v{vLW+3}, s{sT2}, v5
s_mul_i32 s{sT}, s{sV}, 2816
v_lshl_add_u32 v{vLA}, v0, 2, s{sT}
v_add_u32 v{vGA}, s{sM}, v{vLA}
v_cmp_gt_u32 vcc, {5472 - 2560}, v{vLA}
v_cndmask_b32 v{vGA+1}, v9, v{vGA}, vcc
v_add_u32 v{vLA}, {B_STG}, v{vLA}
v_mov_b32 v4, 0
""")
    a(f"v_mov_b32 v10, {B_LCNT}\nv_mov_b32 v11, 1")
    if kind == "X":
        a("ds_write_b32 v10, v4\ns_waitcnt lgkmcnt(0)")
    setup = a.lines[mark:]
    del a.lines[mark:]
    per = -(-len(setup) // 9)
    a(f"s_waitcnt vmcnt({sum(cnt.values())})\ns_barrier")
    stamp()
    extra = 0
    for i in range(-1, 16):
        if i == -1 and pre == 1:
            cnt[2] = issue(2)
        if i + 4 <= 17:
            cnt[i+4] = issue(i + 4)
        if 0 <= i < 9:
            a("s_cmp_eq_u32 s59, 1")
            a.lines += setup[per*i:per*(i+1)]
            a("s_cselect_b32 s59, 1, 0")
        if i == 10 and kind == "X":
            flag_load(sFO, 98); flag_load(sFK, 99)
        if kind == "W" and i >= 14:
            extra += wq_issue(2*(i-14), m) + wq_issue(2*(i-14) + 1, m)
        left = sum(cnt.get(c, 0) for c in range(i + 3, min(i + 4, 17) + 1)) + extra
        a(f"s_waitcnt vmcnt({left})\ns_barrier")
    a("s_barrier")
    if kind == "W":
        for p in (4, 5, 6, 7, 13, 14, 15, 16, 17):
            wq_issue(p, m)
        a("s_waitcnt vmcnt(15)")
    else:
        flag_check(sFK, 99, "L_BX_fk")
    stamp()
    a("s_barrier")
    stamp()
    if kind == "W":
        for p in range(8, 13):
            wq_issue(p, m)
    KT = lambda s: 40 + 4 * s
    RD = lambda src, j: 112 + 28 * src + 4 * j
    srcs = ((vEA, 0), (vE0, 0), (vE0, 4096), (vEA, 5120), (vEA, 6144), (vEL, 9216), (vEL, 4096))
    prods = ((1, 2), (0, 3), (0, 4), (6, 5), (5, 0))
    if kind == "W":
        srcs = ((vEA, 0), None, (vE0, 4096), (vEA, 5120), (vEA, 6144), (vEL, 9216))
        prods = ((0, 2), (0, 3), (0, 4), None, (5, 0))
    nr = sum(x is not None for x in srcs)
    for src in range(4):
        for j, x in enumerate(srcs):
            if x: a(f"ds_read_b128 {vr(RD(src, j),4)}, v{x[0]} offset:{src*10240 + x[1]}")
    for src in range(4):
        a(f"s_waitcnt lgkmcnt({min(15, nr*(3-src))})")
        for s_, x in enumerate(prods):
            if x: a(mf(KT(s_), RD(src, x[0]), RD(src, x[1]), KT(s_) if src else "0"))
    for s_ in range(4 if kind == "X" else 3):
        for r in range(4):
            a(f"ds_write_b32 v{VS + 2*s_ + r//2}, v{KT(s_)+r} offset:{76*(r%2)}")
    a(f"ds_write_b32 v{vZS}, v{KT(4)}")
    a("s_waitcnt lgkmcnt(0)\ns_mov_b64 exec, 1\nds_add_u32 v10, v11\ns_mov_b64 exec, -1")
    stamp()
    b1, b2, b3 = {0: ((0, 1, 2, 3, 4, 5), (), (6, 7, 8)), 1: ((0, 1, 2), (3, 4, 5, 6, 7, 8), ()), 2: ((0, 1, 2), (3, 4, 5), (6, 7, 8))}[OPT.get("wob", 0)]
    if kind == "W":
        a("s_waitcnt vmcnt(0)\ns_barrier")
        for g in b1: wo_pair(g)
        if b2:
            a("s_barrier")
            for g in b2: wo_pair(g)
        stamp()
        a("s_barrier")
        loader_tail("BW", b3)
        return
    a(f"""
s_mov_b32 s{sT3}, 0x400000
L_BX_st:
ds_read_b32 v2, v10
s_waitcnt lgkmcnt(0)
v_readfirstlane_b32 s{sT}, v2
s_sub_u32 s{sT3}, s{sT3}, 1
s_cbranch_scc1 L_BX_st_x
s_cmp_ge_u32 s{sT}, 4
s_cbranch_scc0 L_BX_st
L_BX_st_x:
""")
    for n in range(11):
        a(f"ds_read_b32 v{40+n}, v{vLA} offset:{256*n}")
    for n in range(11):
        a(f"s_waitcnt lgkmcnt({10-n})")
        a(f"buffer_atomic_add_f32 v{40+n}, v{vGA + (n == 10)}, s[{SWS}:{SWS+3}], 0 offen offset:{256*n}")
    stamp()
    a("s_barrier")
    if b2:
        a("s_barrier")
    a("s_waitcnt vmcnt(0)")
    stamp()
    arrive_wait(sKC, 32, "L_BX_kc")
    stamp()
    for s_ in range(9):
        for r in range(4):
            a(f"buffer_load_dword v{112+4*s_+r}, v{VG + 2*s_ + r//2}, s[{SWS}:{SWS+3}], 0 offen offset:{76*(r%2)} sc1")
    dst = ((vLW, -1), (vLW, 4), (vLW, 9), (vLW, 13), (vLW + 2, 0), (vLW + 1, 4), (vLW + 1, 9), (vLW + 1, 13), (vLW + 3, 8))
    a(f"v_subrev_u32 v11, 512, v{vLW}")
    for s_, (ad, off) in enumerate(dst):
        a(f"s_waitcnt vmcnt({4*(8-s_)})")
        a(cv(40 + 2*s_, 112 + 4*s_)); a(cv(41 + 2*s_, 114 + 4*s_))
        a(f"ds_write_b64 v{11 if off < 0 else ad}, {vr(40+2*s_,2)} offset:{512*max(off, 0)}")
    a("s_waitcnt lgkmcnt(0)")
    stamp()
    a("s_barrier")
    loader_tail("BX")

def p2_consumer():
    OFR = lambda ks, rt: 112 + ks * 8 + rt * 4
    ACC = lambda t, rt: 72 + (t * 2 + rt) * 4
    wf = lambda t: 52 + 4 * t
    R8, R2, vO, vTW, vTR, VS = 1, 5, 6, 7, 8, 9
    AH = OPT["ahead"]
    a("L_P2:")
    nstamp[0] = 10
    rd_lanes(R8, R2, 17, 18)
    for j in range(5):
        a(f"v_add_u32 v{R8+j}, {R1}, v{R8+j}")
    a(f"""
v_lshl_add_u32 v{vO}, v0, 4, s58
s_mul_i32 s{sT}, s{sWAVE}, 4608
s_add_u32 s{sT}, s{sT}, {P_TR}
v_and_b32 v17, 15, v0
v_mul_u32_u24 v17, 144, v17
v_lshrrev_b32 v18, 4, v0
v_lshl_add_u32 v17, v18, 3, v17
v_add_u32 v{vTW}, s{sT}, v17
v_lshl_add_u32 v{vTR}, v0, 4, s{sT}
s_lshr_b32 s{sT}, s{sWAVE}, 1
s_and_b32 s{sT2}, s{sWAVE}, 1
s_lshl_b32 s{sT2}, s{sT2}, 5
s_lshl_b32 s{sT3}, s{sWAVE}, 5
s_cmp_eq_u32 s{sBR}, 0
s_cselect_b32 s42, s{sT}, 0
s_cselect_b32 s43, s{sT2}, s{sT3}
s_cselect_b32 s55, 1, 0
s_lshl_b32 s56, s42, 3
s_lshl_b32 s{sT}, s{sRB}, 7
s_add_u32 s42, s42, s{sT}
s_mul_i32 s{sT}, s{sBR}, 1152
s_mul_i32 s{sT2}, s{sHG}, 144
s_add_u32 s57, s{sT}, s{sT2}
""")
    for n in range(5):
        a(f"""
v_add_u32 v17, {64*n}, v0
v_mul_u32_u24 v18, 7282, v17
v_lshrrev_b32 v18, 16, v18
v_mul_u32_u24 v19, 9, v18
v_sub_u32 v19, v17, v19
v_add_u32 v18, s43, v18
v_xor_b32 v18, s56, v18
v_lshlrev_b32 v18, s55, v18
v_add_u32 v18, s42, v18
v_mul_u32_u24 v18, 2304, v18
v_lshl_add_u32 v18, v19, 4, v18
v_add_u32 v{VS+n}, s57, v18
""")
    a(f"v_mov_b32 v17, {OOB}\nv_cndmask_b32 v{VS+4}, v17, v{VS+4}, s[{sG01}:{sG01+1}]")
    a(f"v_add_u32 v14, 18432, v{vO}")
    SO = [8, 9, 10, 11, 12, 13, 14, 15, 36]
    rho(37)
    a(f"s_movk_i32 s{SO[0]}, 16384")
    for j in range(1, 9):
        a(f"s_add_u32 s{sT}, s37, {2*j-2}\ns_and_b32 s{sT}, s{sT}, 15\ns_lshl_b32 s{SO[j]}, s{sT}, 10")
    a("s_waitcnt vmcnt(0)")
    stamp()
    a("s_barrier\ns_barrier")
    stamp()
    def oload(ks, rt):
        return f"buffer_load_dwordx4 {vr(OFR(ks, rt),4)}, v{14 if rt else vO}, s[{SWS}:{SWS+3}], s{SO[ks//2]} offen offset:{1024*(ks%2)} sc1"
    base = lambda ks: R1 if ks < 3 else 0 if 9 <= ks < 12 else R2_
    R2_ = 43008
    def wreads(ks, t):
        o = WO[ks] - base(ks)
        if t == 4:
            return [tr(wf(t), R2, o + 4096), tr(wf(t) + 2, R2, o + 4096 + 256)]
        return [tr(wf(t), R8 + t, o), tr(wf(t) + 2, R8 + t, o + 1024)]
    for ks in range(AH):
        a(oload(ks, 0)); a(oload(ks, 1))
    for t in range(5):
        for x in wreads(0, t): a(x)
    for ks in range(18):
        tiles = [[mf(ACC(t, rt), wf(t), OFR(ks, rt), ACC(t, rt) if ks else "0") for rt in range(2)] for t in range(5)]
        w0 = f"s_waitcnt vmcnt({2*min(AH - 1, 17 - ks)}) lgkmcnt(8)"
        if ks < 17:
            nxt = [wreads(ks + 1, t) for t in range(5)]
            if base(ks + 1) != base(ks):
                d = (base(ks + 1) - base(ks)) & 0xffffffff
                for t in range(5):
                    nxt[t][0] = f"v_add_u32 v{R8+t}, {d}, v{R8+t}\n" + nxt[t][0]
            first = []
            if ks + AH < 18:
                first = [oload(ks + AH, 0)]
                nxt[1][1] += "\n" + oload(ks + AH, 1)
            kstep(tiles, nxt, first, {t: "s_waitcnt lgkmcnt(7)" if t else w0 for t in range(5)})
        else:
            kstep(tiles, None, [], {t: f"s_waitcnt lgkmcnt({8 - 2*t})" if t else w0 for t in range(5)})
        if ks == 0:
            stamp()
    stamp()
    for rt in range(2):
        for t in range(5):
            d = 20 + 2*(rt*5 + t)
            a(cv(d, ACC(t, rt))); a(cv(d + 1, ACC(t, rt) + 2))
            if t == 4:
                a(f"s_mov_b64 exec, s[{sG01}:{sG01+1}]")
            a(f"ds_write_b64 v{vTW}, {vr(d,2)} offset:{rt*2304 + 32*t}")
            if t == 4:
                a("s_mov_b64 exec, -1")
    a("s_waitcnt lgkmcnt(0)")
    for n in range(5):
        a(f"ds_read_b128 {vr(112+4*n,4)}, v{vTR} offset:{1024*n}")
    for n in range(5):
        a(f"s_waitcnt lgkmcnt({4-n})")
        a(f"buffer_store_dwordx4 {vr(112+4*n,4)}, v{VS+n}, s[{SOUT}:{SOUT+3}], 0 offen")
    stamp()
    stamps_out(True)
    a("s_endpgm")

HEADER = open("concat_heads__sliding_local_dilated__linear_attn_block__prompt.s.ref").read().split("; Override")[0]
out = HEADER + "; @launch grid=(256,1,1) block=(512,1,1) lds=163840\n"
a('.amdgcn_target "amdgcn-amd-amdhsa--gfx950"\n.text')
a(kernel_head(KN))
if OPT["stamps"]:
    for i in range(16):
        a(f"s_mov_b32 s{sST+2*i}, 0")
stamp()
a(f"""
s_cmp_ge_u32 s2, 256
s_cbranch_scc1 L_end
s_and_b32 s{sT}, s2, 7
s_lshr_b32 s{sBR}, s{sT}, 2
{'s_xor_b32 s6, s6, 1' if OPT.get('swap') else ''}
s_mul_i32 s{sT2}, s{sBR}, 24
s_add_u32 s0, s0, s{sT2}
s_addc_u32 s1, s1, 0
s_load_dwordx4 s[36:39], s[0:1], 0
s_load_dwordx2 s[40:41], s[0:1], 16
s_sub_u32 s0, s0, s{sT2}
s_subb_u32 s1, s1, 0
s_load_dwordx4 s[44:47], s[0:1], 48
s_load_dwordx2 s[48:49], s[0:1], 64
v_lshrrev_b32 v1, 6, v0
v_and_b32 v0, 63, v0
v_readfirstlane_b32 s{sWAVE}, v1
s_lshr_b32 s{sT2}, s2, 3
""")
m84 = f"""
s_and_b32 s{sHG}, s{sT2}, 3
s_and_b32 s{sT3}, s{sT}, 1
s_lshl_b32 s{sT3}, s{sT3}, 2
s_add_u32 s{sHG}, s{sHG}, s{sT3}
s_lshr_b32 s{sRB}, s{sT2}, 2
s_and_b32 s{sT3}, s{sT}, 2
s_lshl_b32 s{sT3}, s{sT3}, 2
s_add_u32 s{sRB}, s{sRB}, s{sT3}
"""
m48 = f"""
s_and_b32 s{sHG}, s{sT2}, 7
s_lshr_b32 s{sRB}, s{sT2}, 3
s_and_b32 s{sT3}, s{sT}, 3
s_lshl_b32 s{sT3}, s{sT3}, 2
s_add_u32 s{sRB}, s{sRB}, s{sT3}
"""
if OPT["mapping"] == 84:
    a(m84)
elif OPT["mapping"] == 48:
    a(m48)
else:
    a(m48 + f"s_cmp_eq_u32 s{sBR}, {0 if OPT['mapping'] == 8448 else 1}\ns_cbranch_scc0 L_map" + m84 + "L_map:")
rot = ""
if OPT.get("rot") == 2:
    rot = f"""s_lshr_b32 s90, s2, 1
s_xor_b32 s90, s90, s2
s_and_b32 s90, s90, 1
s_mul_i32 s91, s90, {OPT.get("rotby", 5)*128}
s_mul_i32 s90, s90, {OPT.get("rotby", 5)*64*3456}"""
elif OPT.get("rot") == 3:
    rot = f"""s_lshr_b32 s90, s2, 1
s_xor_b32 s90, s90, s2
s_and_b32 s90, s90, 1
s_mul_i32 s90, s90, 5
s_add_u32 s91, s{sRB}, s{sHG}
s_and_b32 s91, s91, 3
s_add_u32 s90, s90, s91
s_lshl_b32 s91, s90, 7
s_mul_i32 s90, s90, {64*3456}"""
elif OPT.get("rot") == 7:
    rot = f"""s_and_b32 s90, s{sHG}, 3
s_and_b32 s91, s{sRB}, 7
s_lshl1_add_u32 s90, s90, s91
s_cmp_ge_u32 s90, 9
s_cselect_b32 s91, 9, 0
s_sub_u32 s90, s90, s91
s_lshl_b32 s91, s90, 7
s_mul_i32 s90, s90, {64*3456}"""
elif OPT.get("rot") in (4, 5, 6):
    tab = {4: 0x75207520, 5: 0x63006300, 6: 0x86427531}[OPT["rot"]]
    rot = f"""s_add_u32 s90, s{sRB}, s{sHG}
s_and_b32 s90, s90, 7
s_lshl_b32 s90, s90, 2
s_lshr_b32 s90, {hex(OPT.get("tab", tab))}, s90
s_and_b32 s90, s90, 15
s_lshl_b32 s91, s90, 7
s_mul_i32 s90, s90, {64*3456}"""
elif OPT.get("rot"):
    few, many = (sRB, sHG) if OPT["mapping"] == 48 else (sHG, sRB)
    rot = f"""s_and_b32 s90, s{few}, 3
s_lshl_b32 s90, s90, 2
s_lshr_b32 s90, 0x7520, s90
s_and_b32 s90, s90, 15
s_and_b32 s91, s{many}, 7
s_add_u32 s90, s90, s91
s_cmp_ge_u32 s90, 9
s_cselect_b32 s91, 9, 0
s_sub_u32 s90, s90, s91
s_lshl_b32 s91, s90, 7
s_mul_i32 s90, s90, {64*3456}"""
a(f"""
s_mov_b32 s{sG0}, 0xffff
s_mov_b32 s{sG0+1}, 0
s_mov_b32 s{sG01}, -1
s_mov_b32 s{sG01+1}, 0
s_and_b32 s{sV}, s{sWAVE}, 1
s_mul_i32 s{sM}, s{sHG}, 144
s_cmp_lt_u32 s{sWAVE}, 4
s_cbranch_scc1 L_cons
s_setprio {OPT.get("prio", 2)}
s_mov_b32 s59, 0
{rot}
s_cmp_lt_u32 s{sWAVE}, 6
s_cbranch_scc1 L_wld
s_cmp_eq_u32 s{sBR}, 0
s_cbranch_scc1 L_AX0
s_branch L_BX0
L_wld:
s_cmp_eq_u32 s{sBR}, 0
s_cbranch_scc1 L_AW0
s_branch L_BW0
L_cons:
s_getpc_b64 s[42:43]
L_pc:
s_lshl_b32 s{sT}, s{sT2}, 2
s_add_u32 s{sT}, s{sT}, s{sWAVE}
s_lshl_b32 s{sT}, s{sT}, 9
v_and_b32 v1, 3, v0
v_lshlrev_b32 v1, 7, v1
v_add_u32 v1, s{sT}, v1
v_min_u32 v1, L_last-L_pc, v1
global_load_dword v27, v1, s[42:43]
s_cmp_eq_u32 s{sBR}, 0
s_cbranch_scc1 L_AC
s_branch L_BC
L_end:
s_endpgm
""")
w_head("A"); w_head("B"); x_head("A"); x_head("B")
n0 = nstamp[0]
for fn in (lambda: a_loader("W"), lambda: a_loader("X"), a_consumer, lambda: b_loader("W"), lambda: b_loader("X"), b_consumer, p2_consumer):
    nstamp[0] = n0
    fn()
a("L_last:\ns_endpgm")
lines = []
for l in a.lines: lines += l.split("\n")
if OPT.get("noread"):
    lines = [l for l in lines if not l.startswith("ds_read_b64_tr")]
if OPT.get("nomfma"):
    lines = [l for l in lines if not l.startswith("v_mfma")]
lines, added = hz.fix(lines)
out += "\n".join(lines) + "\n"
out += '.section .rodata,"a"\n.p2align 6\n' + kernel_desc(KN, 256, 102 if OPT.get('cyc') else 100, 256)
sys.stdout.write(out)
sys.stderr.write(f"nop states added: {added}\n")
```

```python
import sys, struct
from asmlib import *
import hz

OPT = dict(stamps=0, mapping=48, ahead=6, rot=4, nt=1)
for arg in sys.argv[1:]:
    k, v = arg.split("=")
    OPT[k] = int(v)
KN = "concat_heads__sliding_local_dilated__linear_attn_block__prompt_kernel"

def f32(x):
    return "0x%08x" % struct.unpack("<I", struct.pack("<f", x))[0]

LOG2E = 1.4426950408889634
CSC = 18 ** -0.5 * LOG2E
NEG = "0xf149f2ca"
EPS = f32(1e-6)
OOB = "0x80000000"

O_BR = 0x240000
WS_KV = 0x500000
KV_ST = 0x2000
WS_CNT = 0x540000
WS_STAMP = 0x600000
WS_SIZE = 0x700000

sWAVE, sHG, sRB, sBR, sT = 3, 4, 5, 6, 7
SX, SW, SWS, SDBG, SWO, SOUT = 8, 12, 16, 20, 24, 28
sG0, sG01 = 32, 34
sK, sV, sM, sT2, sT3 = 50, 51, 52, 53, 54
sST = 60

a = Asm()
nstamp = [0]

def stamp():
    if OPT["stamps"]:
        i = nstamp[0]; nstamp[0] += 1
        assert i < 15
        a(f"{'s_memrealtime' if OPT.get('rt') or OPT.get('probe') and not (OPT.get('cyc') and i) else 's_memtime'} s[{sST+2*i}:{sST+2*i+1}]")
        if OPT.get("cyc") and i == 0:
            a("s_memtime s[100:101]")

def stamps_out(last=False):
    if not OPT["stamps"]:
        return
    if OPT.get("probe"):
        if last:
            j = sST + 2 * OPT["probe"]
            if OPT.get("lat"):
                a(f"""
s_waitcnt vmcnt(0) lgkmcnt(0)
s_load_dwordx2 s[44:45], s[0:1], {OPT['lat'] - 8}
s_sleep 127
s_sleep 127
s_sleep 127
s_waitcnt lgkmcnt(0)
s_mov_b32 s46, 0x100000
s_mov_b32 s47, 0x20000
v_mov_b32 v1, 0x20000
buffer_load_dword v2, v1, s[44:47], 0 offen {'sc1' if OPT.get('first') != 2 else ''}
s_waitcnt vmcnt(0)
v_mov_b32 v1, {'0x20000' if not OPT.get('first') else '0x20040'}
s_memtime s[100:101]
s_waitcnt lgkmcnt(0)
buffer_load_dword v2, v1, s[44:47], 0 offen sc1
s_waitcnt vmcnt(0)
s_memtime s[{j}:{j+1}]
s_waitcnt lgkmcnt(0)
s_sub_u32 s{j}, s{j}, s100
s_lshl_b32 s{j}, s{j}, 5
s_add_u32 s{j}, s{j}, s100
""")
            if OPT.get("xcc"):
                a(f"""
s_waitcnt vmcnt(0) lgkmcnt(0)
v_and_b32 v1, 31, v0
v_lshlrev_b32 v1, {5 if OPT['xcc'] == 1 else 2}, v1
v_add_u32 v1, 0x6f0000, v1
buffer_load_dword v2, v1, s[{SWS}:{SWS+3}], 0 offen sc1
s_getreg_b32 s44, hwreg(HW_REG_XCC_ID, 0, 4)
s_waitcnt vmcnt(0)
v_cmp_eq_u32 vcc, s44, v2
s_bcnt1_i32_b32 s44, vcc_lo
s_mul_i32 s44, s44, 10
s_add_u32 s{j}, s{sST}, s44
""")
            a(f"""
s_waitcnt vmcnt(0) lgkmcnt(0)
s_cmp_eq_u32 s2, {OPT.get('wg', 0)}
s_cbranch_scc0 L_probe_x
s_cmp_eq_u32 s{sWAVE}, 0
s_cbranch_scc0 L_probe_x
s_sub_u32 s{sT}, s{j}, s{100 if OPT.get('cyc') else sST}
{'s_lshr_b32 s7, s7, 3' if OPT.get('cyc') else 's_mul_i32 s7, s7, 10'}
s_min_u32 s{sT}, s{sT}, 100000
s_add_u32 s{sT}, s{sT}, 6000
L_probe:
s_memrealtime s[44:45]
s_waitcnt lgkmcnt(0)
s_sub_u32 s44, s44, s{sST}
s_cmp_lt_u32 s44, s{sT}
s_cbranch_scc1 L_probe
L_probe_x:
""")
        return
    a("s_waitcnt vmcnt(0) lgkmcnt(0)")
    a(f"s_lshl_b32 s{sT}, s2, 3\ns_add_u32 s{sT}, s{sT}, s{sWAVE}\ns_lshl_b32 s{sT}, s{sT}, 6")
    a(f"s_add_u32 s{sT}, s{sT}, {WS_STAMP}\nv_mov_b32 v1, s{sT}")
    for i in range(16):
        a(f"v_mov_b32 v2, s{sST+2*i}")
        a(f"buffer_store_dword v2, v1, s[{SWS}:{SWS+3}], 0 offen offset:{4*i}")
    a("s_waitcnt vmcnt(0)")

def mf(d, s0, s1, c):
    cc = c if isinstance(c, str) else vr(c, 4)
    return f"v_mfma_f32_16x16x32_bf16 {vr(d,4)}, {vr(s0,4)}, {vr(s1,4)}, {cc}"
def cv(d, x):
    return f"v_cvt_pk_bf16_f32 v{d}, v{x}, v{x+1}"
def tr(d, addr, off):
    return f"ds_read_b64_tr_b16 {vr(d,2)}, v{addr} offset:{off}"
def weave(mfmas, others, per=2):
    o = list(others)
    for m in mfmas:
        a(m)
        for _ in range(per):
            if o: a(o.pop(0))
    for x in o: a(x)

def srd(dst, lo, nbytes):
    a(f"s_mov_b32 s{dst}, s{lo}\ns_mov_b32 s{dst+1}, s{lo+1}\ns_mov_b32 s{dst+2}, {nbytes}\ns_mov_b32 s{dst+3}, 0x20000")
def srds_rest():
    srd(SWO, 40, 663552); srd(SOUT, 44, 4718592); srd(SDBG, 46, 256); srd(SWS, 48, WS_SIZE)

class M0:
    def __init__(self, base): self.base = base; self.cur = None
    def set(self, imm):
        if self.cur is not None and -32768 <= imm - self.cur <= 32767:
            a(f"s_addk_i32 m0, {imm - self.cur}")
        else:
            a(f"s_add_u32 m0, s{self.base}, {imm}")
        self.cur = imm

CUR = [0]
def dma(voff, srd_, soff, half=False):
    if OPT.get("nodma") or (OPT.get("nos") and voff == VD + 6 and srd_ == SW and not half):
        return
    if half: a(f"s_mov_b64 exec, s[{sG01}:{sG01+1}]")
    nt = " nt" if OPT.get("nt", 0) >> {SX: 0, SW: 1, SWO: 2}[srd_] & 1 and CUR[0] < OPT.get("ntc", 99) else ""
    a(f"buffer_load_dwordx4 v{voff}, s[{srd_}:{srd_+3}], {soff} offen{nt} lds")
    if half: a("s_mov_b64 exec, -1")

def rd_lanes(r8, r2, t0, t1):
    a(f"""
v_lshrrev_b32 v{t0}, 5, v0
v_lshlrev_b32 v{t0}, 4, v{t0}
v_bfe_u32 v{t1}, v0, 4, 1
v_lshl_add_u32 v{t0}, v{t1}, 2, v{t0}
v_bfe_u32 v{t1}, v0, 2, 2
v_add_u32 v{t0}, v{t0}, v{t1}
v_and_b32 v{t1}, 3, v0
v_lshlrev_b32 v{t1}, 3, v{t1}
v_lshl_add_u32 v{r2}, v{t0}, 5, v{t1}
v_lshl_add_u32 v{r8}, v{t0}, 7, v{t1}
v_bfe_u32 v{t0}, v{t0}, 1, 2
v_lshl_add_u32 v{r8}, v{t0}, 5, v{r8}
""")
    for t in (1, 2, 3):
        a(f"v_xor_b32 v{r8+t}, {32*t}, v{r8}")

def x_lane(d0, d1, tmp):
    a(f"""
v_lshrrev_b32 v{d0}, 4, v0
v_bfe_u32 v{tmp}, v0, 1, 3
v_xor_b32 v{d0}, v{d0}, v{tmp}
v_and_b32 v{tmp}, 15, v0
v_lshlrev_b32 v{tmp}, 7, v{tmp}
v_lshl_add_u32 v{d0}, v{d0}, 4, v{tmp}
v_xor_b32 v{d1}, 64, v{d0}
""")

def col8(dst, tmp):
    a(f"v_bfe_u32 v{tmp}, v0, 4, 2\nv_lshlrev_b32 v{tmp}, 1, v{tmp}\nv_and_b32 v{dst}, 7, v0\nv_xor_b32 v{dst}, v{dst}, v{tmp}\nv_lshlrev_b32 v{dst}, 4, v{dst}")

def head_of(dst, src):
    a(f"v_mul_u32_u24 v{dst}, 57, v{src}\nv_lshrrev_b32 v{dst}, 10, v{dst}")

sOC, sKC, sFO, sFK = 92, 94, 96, 97

def arrive_wait(addr, target, label, arrive=True):
    if arrive:
        a(f"s_mov_b32 s{sT}, 1\ns_atomic_add s{sT}, s[{addr}:{addr+1}], 0 glc\ns_waitcnt lgkmcnt(0)\ns_cmp_ge_u32 s{sT}, {target-1}\ns_cbranch_scc1 {label}_x")
    a(f"""
s_mov_b32 s{sT3}, 0x20000
{label}:
s_mov_b32 s{sT}, 0
s_atomic_add s{sT}, s[{addr}:{addr+1}], 0 glc
s_waitcnt lgkmcnt(0)
s_sub_u32 s{sT3}, s{sT3}, 1
s_cbranch_scc1 {label}_x
s_cmp_ge_u32 s{sT}, {target}
s_cbranch_scc0 {label}
{label}_x:
""")

def flag_load(dst, offreg):
    a(f"s_load_dword s{dst}, s[{SDBG}:{SDBG+1}], s{offreg}")

def flag_check(val, offreg, label):
    a(f"""
s_mov_b32 s{sT3}, 0x20000
{label}:
s_waitcnt lgkmcnt(0)
s_cmp_lg_u32 s{val}, 0
s_cbranch_scc1 {label}_x
s_sub_u32 s{sT3}, s{sT3}, 1
s_cbranch_scc1 {label}_x
s_load_dword s{val}, s[{SDBG}:{SDBG+1}], s{offreg} glc
s_branch {label}
{label}_x:
""")

A_WSLOT, A_XSLOT = 14336, 18432
A_X0 = 5 * A_WSLOT
A_EX = A_X0 + 3 * A_XSLOT
B_KVSLOT, B_XSLOT = 9216, 16384
B_X0 = 5 * B_KVSLOT
B_EX = B_X0 + 3 * B_XSLOT
B_KVOP = 126976
B_STG = 136192
B_DUMP, B_LCNT = B_STG + 5632, B_STG + 6144
B_WQ0 = 143360
QORD = list(range(18))
def wq_slot(p):
    if p < 4: return B_WQ0 + 5120 * p
    if p < 7: return 5120 * (p - 4)
    if p < 13: return 40960 + 5120 * (p - 7)
    return 15360 + 5120 * (p - 13)
R1, R2 = 147456, 43008
WO = [R1, R1 + 5120, R1 + 10240] + [R2 + 5120 * n for n in range(6, 12)] + [0, 5120, 10240] + [R2 + 5120 * n for n in range(6)]
P_TR = 108544
SPLITS = {(1, 0): sG0, (2, 0): sG0, (2, 1): sG0, (3, 0): sG01, (3, 1): sG0}

VD = 16
VWO = 26
vCNT, vFLO, vFLK, vFO, vFK = 30, 31, 32, 33, 34

def w_head(kind):
    parts = (0, 1152, 2304) if kind == "A" else (1152, 2304)
    a(f"L_{kind}W0:")
    col8(VD, 1)
    a(f"""
v_bfe_u32 v1, v0, 5, 1
v_bfe_u32 v2, v0, 3, 2
v_lshl_add_u32 v1, v1, 3, v2
s_mul_i32 s{sT}, s{sV}, {16*3456}
s_add_u32 s{sT}, s{sT}, s{sM}
v_mul_u32_u24 v1, 3456, v1
v_add3_u32 v{VD}, v{VD}, v1, s{sT}
""")
    n = 2 * len(parts)
    for j in range(n - 1, -1, -1):
        off = parts[j // 2] + (j % 2) * 4 * 3456
        if off:
            a(f"v_add_u32 v{VD+j}, {off}, v{VD}")
    a(f"""
v_bfe_u32 v1, v0, 3, 1
v_bfe_u32 v2, v0, 4, 1
v_sub_u32 v1, v1, v2
v_lshrrev_b32 v2, 1, v0
v_lshl_add_u32 v1, v1, 2, v2
v_mul_u32_u24 v1, 3456, v1
v_and_b32 v2, 1, v0
""")
    if kind == "A":
        a(f"""
s_cmp_eq_u32 s{sV}, 0
s_cselect_b32 s{sT2}, 1152, 0
s_cselect_b32 s{sT}, 0, 2304
s_add_u32 s{sT}, s{sT}, s{sM}
s_addk_i32 s{sT}, 128
v_mad_u32_u24 v1, v2, s{sT2}, v1
v_add_u32 v{VD+6}, s{sT}, v1
""")
    else:
        a(f"""
s_add_u32 s{sT}, s{sT}, 128
v_add_u32 v{VD+7}, s{sT}, v1
v_mul_u32_u24 v2, 1152, v2
v_add_u32 v2, 1152, v2
v_add_u32 v{VD+4}, v2, v{VD+7}
""")
    a(f"s_lshl_b32 s42, s{sV}, 11\ns_lshl_b32 s43, s{sV}, {10 if kind == 'A' else 9}\ns_sub_u32 s43, s43, s42")
    a("s_waitcnt lgkmcnt(0)")
    srd(SW, 38, 1990656)
    m = M0(42)
    w_issue(kind, 0, m)
    a(f"s_branch L_{kind}W1")

def w_issue(kind, c, m):
    CUR[0] = c
    slot = (c % 5) * (A_WSLOT if kind == "A" else B_KVSLOT)
    n = 6 if kind == "A" else 4
    so = f"s{sK}" if c else "0"
    if OPT.get("rot"):
        so = "s90"
        if c:
            a(f"s_add_u32 s90, s90, {32*3456}\ns_cmp_eq_u32 s90, {18*32*3456}\ns_cselect_b32 s90, 0, s90")
    elif c:
        a(f"s_mov_b32 s{sK}, {c*32*3456}")
    for j in range(n):
        m.set(slot + 4096 * (j // 2) + 1024 * (j % 2))
        dma(VD + j, SW, so)
    m.set(slot + 4096 * (n // 2))
    a("s_add_u32 m0, m0, s43")
    m.cur = None
    dma(VD + n, SW, so, half=(kind == "B"))
    return n + 1

def wq_issue(p, m):
    if OPT.get("rot"):
        a(f"s_add_u32 s{sK}, s90, {(p+1)*32*3456}\ns_cmp_ge_u32 s{sK}, {18*32*3456}\ns_cselect_b32 s{sT}, {18*32*3456}, 0\ns_sub_u32 s{sK}, s{sK}, s{sT}")
    else:
        a(f"s_mov_b32 s{sK}, {QORD[p]*32*3456}")
    for j in range(2):
        m.set(wq_slot(p) + 1024 * j)
        dma(VD + 5 + j, SW, f"s{sK}")
    m.set(wq_slot(p) + 4096)
    a("s_add_u32 m0, m0, s43")
    m.cur = None
    dma(VD + 7, SW, f"s{sK}", half=True)
    return 3

def x_head(kind):
    nq = 9 if kind == "A" else 8
    a(f"L_{kind}X0:")
    a(f"""
v_lshrrev_b32 v1, 3, v0
v_mul_u32_u24 v1, {2304 if kind == 'A' else 1152}, v1
v_lshrrev_b32 v2, 4, v0
v_lshl_add_u32 v2, s{sV}, 2, v2
v_and_b32 v3, 7, v0
v_xor_b32 v2, v2, v3
v_lshl_add_u32 v1, v2, 4, v1
s_mul_i32 s{sT}, s{sRB}, {128*1152}
""")
    if kind == "A":
        a(f"""
s_mul_i32 s{sT2}, s{sV}, {16*1152}
s_add_u32 s{sT3}, s{sT}, s{sT2}
v_add_u32 v{VD}, s{sT3}, v1
s_sub_u32 s{sT3}, s{sT}, s{sT2}
s_add_u32 s{sT3}, s{sT3}, {17*1152}
v_add_u32 v{VD+4}, s{sT3}, v1
s_mul_i32 s{sT2}, s{sV}, 1152
s_sub_u32 s{sT3}, s{sT}, s{sT2}
s_sub_u32 s{sT3}, s{sT3}, {15*1152}
v_add_u32 v{VD+8}, s{sT3}, v1
""")
        for q in (1, 2, 3):
            a(f"v_add_u32 v{VD+q}, {32*1152*q}, v{VD}\nv_add_u32 v{VD+4+q}, {32*1152*q}, v{VD+4}")
    else:
        a(f"s_mul_i32 s{sT2}, s{sV}, {8*1152}\ns_add_u32 s{sT}, s{sT}, s{sT2}\nv_add_u32 v{VD}, s{sT}, v1")
        for q in range(1, 8):
            a(f"v_add_u32 v{VD+q}, {16*1152*q}, v{VD}")
    a(f"s_lshl_b32 s42, s{sV}, 10")
    a("s_waitcnt lgkmcnt(0)")
    srd(SX, 36, 2359296)
    x_issue(kind, 0, M0(42))
    a(f"s_branch L_{kind}X1")

def x_issue(kind, c, m):
    CUR[0] = c + (c & 1)
    nq, h, x0, xs = (9, 5, A_X0, A_XSLOT) if kind == "A" else (8, 4, B_X0, B_XSLOT)
    st = (c + 1) // 2
    if st > 8:
        return 0
    qs = range(nq) if c == 0 else (range(h) if c % 2 else range(h, nq))
    so = f"s{sK}" if st else "0"
    if OPT.get("rot"):
        so = "s91"
        if c % 2:
            a("s_addk_i32 s91, 128\ns_cmpk_eq_u32 s91, 1152\ns_cselect_b32 s91, 0, s91")
    elif st:
        a(f"s_movk_i32 s{sK}, {st*128}")
    for q in qs:
        m.set(x0 + (st % 3) * xs + 2048 * q)
        a("s_nop 0")
        dma(VD + q, SX, so)
    return len(qs)

def wo_setup(quad):
    col8(VWO, 1)
    a(f"""
s_mul_i32 s{sM}, s{sHG}, 144
v_add_u32 v{VWO}, s{sM}, v{VWO}
v_bfe_u32 v1, v0, 5, 1
v_bfe_u32 v2, v0, 3, 2
v_mul_u32_u24 v1, 72, v1
v_add_u32 v1, v1, v2
v_mul_u32_u24 v1, 1152, v1
v_add_u32 v{VWO+1}, v1, v{VWO}
v_lshrrev_b32 v1, 3, v0
v_mul_u32_u24 v1, 1152, v1
v_add_u32 v{VWO}, v1, v{VWO}
v_bfe_u32 v1, v0, 1, 2
v_bfe_u32 v2, v0, 3, 1
v_bfe_u32 v3, v0, 4, 1
v_bfe_u32 v4, v0, 5, 1
v_lshl_add_u32 v5, v2, 2, v1
v_lshl_add_u32 v5, v3, 4, v5
v_lshl_add_u32 v5, v4, 3, v5
v_mul_u32_u24 v5, 1152, v5
s_add_u32 s{sM}, s{sM}, 128
v_add_u32 v{VWO+2}, s{sM}, v5
v_lshl_add_u32 v5, v3, 2, v1
v_lshl_add_u32 v2, v4, 1, v2
v_mul_u32_u24 v2, 72, v2
v_add_u32 v5, v5, v2
v_mul_u32_u24 v5, 1152, v5
v_add_u32 v{VWO+3}, s{sM}, v5
s_and_b32 s55, s{sWAVE}, 3
s_lshl_b32 s57, s55, 3
""")
    rho(56)
    a(f"s_add_u32 s56, s56, s{55 if quad else sV}")

def rho(dst):
    few, many = (sRB, sHG) if OPT["mapping"] == 48 else (sHG, sRB)
    if OPT["mapping"] > 99:
        a(f"s_cmp_eq_u32 s{sBR}, {0 if OPT['mapping'] == 8448 else 1}\ns_cselect_b32 s{sT}, s{sHG}, s{sRB}\ns_cselect_b32 s{sT2}, s{sRB}, s{sHG}")
        few, many = sT, sT2
    a(f"s_lshl_b32 s{dst}, s{few}, 1\ns_add_u32 s{dst}, s{dst}, s{many}\ns_lshl_b32 s{dst}, s{dst}, 1")
    if not OPT.get("worot", 1):
        a(f"s_mov_b32 s{dst}, 0")

def wo_chunk(left, fadd):
    if left:
        a(f"s_mul_i32 s{sK}, s{sV}, {288*1152}\ns_add_u32 s{sK}, s{sK}, {64*1152}")
        steps = (4, 140, 4); v8, v2 = VWO + 1, VWO + 3
    else:
        a(f"""
s_add_u32 s{sT}, s56, {fadd}
s_bfe_u32 s{sK}, s{sT}, 0x30001
s_mul_i32 s{sK}, s{sK}, {72*1152}
s_bitcmp1_b32 s{sT}, 0
s_cselect_b32 s{sT}, {32*1152}, 0
s_add_u32 s{sK}, s{sK}, s{sT}
""")
        steps = (16, -8, 16); v8, v2 = VWO, VWO + 2
    a(f"s_mov_b32 s{sT2}, s{sK}")
    for j in range(4):
        dma(v8, SWO, f"s{sK}")
        a("s_addk_i32 m0, 1024")
        a(f"s_add_u32 s{sK}, s{sK}, {steps[j]*1152 & 0xffffffff}" if j < 3 else "s_nop 0")
    dma(v2, SWO, f"s{sT2}")
    return 5

def wo_issue(q):
    packed = sum((WO[2 + 4*q + w] // 1024) << (8 * w) for w in range(4))
    a(f"s_lshr_b32 s{sT}, {packed}, s57\ns_and_b32 s{sT}, s{sT}, 0xff\ns_lshl_b32 m0, s{sT}, 10")
    return wo_chunk(False, 4*q)

def wo_pair(g):
    a(f"s_mul_i32 s{sT}, s{sV}, {WO[2*g+1] - WO[2*g] & 0xffffffff}\ns_add_u32 m0, s{sT}, {WO[2*g]}")
    return wo_chunk(g == 0, 2*g - 2)

def sync_setup():
    a(f"""
s_lshl_b32 s{sT}, s{sBR}, 4
s_add_u32 s{sT}, s{sT}, s{sRB}
s_lshl_b32 s{sT2}, s{sT}, 8
s_add_u32 s{sT2}, s{sT2}, {WS_CNT}
s_add_u32 s{sOC}, s{SWS}, s{sT2}
s_addc_u32 s{sOC+1}, s{SWS+1}, 0
s_lshl_b32 s{sT}, s{sT}, 2
s_add_u32 s98, s{sT}, 32
s_lshl_b32 s99, s{sHG}, 2
s_mul_i32 s{sT2}, s{sHG}, {KV_ST}
s_add_u32 s{sT2}, s{sT2}, {WS_KV + 6144}
s_add_u32 s{sKC}, s{SWS}, s{sT2}
s_addc_u32 s{sKC+1}, s{SWS+1}, 0
""")

def loader_tail(tag, late=()):
    if tag[1] == "X":
        flag_check(sFO, 98, f"L_{tag}_fo")
    a("s_barrier")
    stamp()
    for g in late:
        wo_pair(g)
    if tag[1] == "X":
        a(f"s_cmp_eq_u32 s{sWAVE}, 6\ns_cbranch_scc0 L_{tag}_oc_x")
        arrive_wait(sOC, 8, f"L_{tag}_oc")
    a("s_waitcnt vmcnt(0)")
    stamp()
    a("s_barrier")
    stamps_out()
    a("s_endpgm")

def a_loader(kind):
    a(f"L_A{kind}1:")
    m = M0(42)
    issue = (lambda c: w_issue("A", c, m)) if kind == "W" else (lambda c: x_issue("A", c, m))
    pre = 1 if OPT.get("early") and kind == "W" else 2
    cnt = {c: issue(c) for c in range(1, pre + 1)}
    stamp()
    x_lane(8, 9, 1)
    rd_lanes(36, 12, 1, 2)
    a(f"""
v_add_u32 v8, {A_X0 + 8*2048}, v8
v_add_u32 v9, {A_X0 + 8*2048}, v9
s_lshl_b32 s{sT}, s{sV}, 6
v_xor_b32 v10, s{sT}, v36
v_add_u32 v10, {4096 if kind == 'W' else 8192}, v10
v_xor_b32 v11, 32, v10
v_add_u32 v12, {12288 if kind == 'W' else 13312}, v12
v_add_u32 v13, {4*A_WSLOT}, v10
v_add_u32 v14, {4*A_WSLOT}, v11
v_add_u32 v15, {4*A_WSLOT}, v12
s_lshl_b32 s{sT}, s{sV}, 10
s_add_u32 s{sT}, s{sT}, {A_EX + (0 if kind == 'W' else 2560)}
v_lshlrev_b32 v7, 3, v0
v_add_u32 v6, s{sT}, v7
v_add_u32 v7, {A_EX + (2048 if kind == 'W' else 4608)}, v7
""")
    stamp()
    a(f"s_waitcnt vmcnt({sum(cnt.values())})\ns_barrier")
    stamp()
    extra = 0
    for i in range(-1, 17):
        ks = i + 1
        slot = ks % 5
        off = 0 if slot == 4 else slot * A_WSLOT
        ad = (13, 14, 15) if slot == 4 else (10, 11, 12)
        a(f"ds_read_b128 v[40:43], v{8 + ks % 2} offset:{(ks//2 % 3)*A_XSLOT}")
        for j in range(3 if OPT.get("nohalo", 0) < 2 else 0):
            a(tr(44 + 4*j, ad[j], off)); a(tr(46 + 4*j, ad[j], off + (1024 if j < 2 else 256)))
        if i == -1 and pre == 1:
            cnt[2] = issue(2)
        if i + 4 <= 17:
            cnt[i+4] = issue(i + 4)
        a("s_waitcnt lgkmcnt(0)")
        for j in range(3 if not OPT.get("nohalo") else 0):
            c = 60 + 4*j if ks else "0"
            a(mf(60 + 4*j, 44 + 4*j, 40, c) if kind == "W" else mf(60 + 4*j, 40, 44 + 4*j, c))
        if i == 1:
            srds_rest(); sync_setup()
        if i == 2:
            wo_setup(True)
        if i == 14 and kind == "W":
            extra += wo_pair(0)
        if i == 15:
            extra += wo_issue(0)
        if i + 1 <= 16:
            left = sum(cnt.get(c, 0) for c in range(i + 3, min(i + 4, 17) + 1)) + extra
            a(f"s_waitcnt vmcnt({left})\ns_barrier")
            if OPT.get("fine") and kind == "W" and i % 2 == 1 and 0 < i < 14:
                stamp()
    for j in range(3):
        a(cv(44 + 2*j, 60 + 4*j)); a(cv(45 + 2*j, 62 + 4*j))
    if kind == "W":
        a("v_mov_b32 v50, 0\nv_mov_b32 v51, 0")
        a("v_permlane32_swap_b32 v48, v50\nv_permlane32_swap_b32 v49, v51")
    a("ds_write_b64 v6, v[44:45]\nds_write_b64 v6, v[46:47] offset:512")
    a(f"ds_write_b64 v7, {'v[50:51]' if kind == 'W' else 'v[48:49]'}")
    stamp()
    a("s_waitcnt lgkmcnt(0)\ns_barrier")
    if kind == "X":
        flag_load(sFO, 98)
    wo_issue(1); wo_issue(2); wo_issue(3)
    stamp()
    loader_tail("A" + kind)

def o_store_addr(vfull, vleft, tmp, left_lo):
    a(f"""
s_lshl_b32 s{sT}, s{sRB}, 3
s_lshl_b32 s{sT2}, s{sWAVE}, 1
s_add_u32 s{sT}, s{sT}, s{sT2}
s_mul_i32 s{sT}, s{sT}, 18432
s_mul_i32 s{sT2}, s{sBR}, {O_BR}
s_add_u32 s58, s{sT}, s{sT2}
s_lshl_b32 s{sT2}, s{sHG}, 11
s_add_u32 s{sT2}, s{sT2}, s58
v_lshl_add_u32 v{vfull}, v0, 4, s{sT2}
s_lshr_b32 s{sT2}, s{sHG}, 2
s_add_u32 s{sT2}, s{sT2}, 16
s_lshl_b32 s{sT2}, s{sT2}, 10
s_add_u32 s{sT}, s58, s{sT2}
s_and_b32 s{sT2}, s{sHG}, 3
s_lshl_b32 s{sT2}, s{sT2}, 8
s_add_u32 s{sT}, s{sT}, s{sT2}
v_and_b32 v{vleft}, 15, v0
v_lshlrev_b32 v{vleft}, 4, v{vleft}
v_bfe_u32 v{tmp}, v0, 4, 1
v_lshl_add_u32 v{vleft}, v{tmp}, 3, v{vleft}
v_add_u32 v{vleft}, s{sT}, v{vleft}
v_mov_b32 v{tmp}, {OOB}
""")
    x, y = (tmp, vleft) if left_lo else (vleft, tmp)
    a(f"v_cndmask_b32 v{vleft}, v{x}, v{y}, s[{sG01}:{sG01+1}]")

def o_store(of, vfull, vleft, rt):
    so = f"s{sK}" if rt else "0"
    if rt:
        a(f"s_movk_i32 s{sK}, 18432")
    a(f"buffer_store_dwordx4 {vr(of,4)}, v{vfull}, s[{SWS}:{SWS+3}], {so} offen sc1")
    a(f"buffer_store_dwordx4 {vr(of+4,4)}, v{vfull}, s[{SWS}:{SWS+3}], {so} offen offset:1024 sc1")
    a(f"buffer_store_dwordx2 {vr(of+8,2)}, v{vleft}, s[{SWS}:{SWS+3}], {so} offen sc1")

def gap_touch(tag, parts):
    if not OPT.get("touch"):
        return
    nt = " nt" if OPT.get("tnt") else ""
    a(f"""
s_cmp_eq_u32 s{sWAVE}, 1
s_cbranch_scc1 L_{tag}_tw
s_cmp_eq_u32 s{sWAVE}, 2
s_cbranch_scc0 L_{tag}_tx
s_and_b32 s{sT}, s{sRB}, 7
s_cmp_eq_u32 s{sT}, 0
s_cselect_b32 s{sT}, 9, s{sT}
s_sub_u32 s{sT}, s{sT}, 1
s_lshl_b32 s{sT}, s{sT}, 7
s_and_b32 s{sT2}, s{sHG}, 3
s_lshl_b32 s{sT2}, s{sT2}, 5
s_lshl_b32 s{sT3}, s{sRB}, 7
s_add_u32 s{sT2}, s{sT2}, s{sT3}
v_and_b32 v1, 31, v0
v_add_u32 v1, s{sT2}, v1
v_mul_u32_u24 v1, 1152, v1
""")
    srd(SX, 36, 2359296)
    a(f"""
buffer_load_dword v26, v1, s[{SX}:{SX+3}], s{sT} offen{nt}
s_branch L_{tag}_tx
L_{tag}_tw:
s_and_b32 s{sT}, s{sHG}, 3
s_lshl_b32 s{sT}, s{sT}, 1
s_cmp_eq_u32 s{sT}, 0
s_cselect_b32 s{sT}, 9, s{sT}
s_sub_u32 s{sT}, s{sT}, 1
s_lshl_b32 s{sT}, s{sT}, 3
s_and_b32 s{sT2}, s{sRB}, 7
s_add_u32 s{sT}, s{sT}, s{sT2}
s_mul_i32 s{sT}, s{sT}, {8*3456}
s_add_u32 s{sT}, s{sT}, s{sM}
v_lshrrev_b32 v1, 3, v0
v_mul_u32_u24 v1, 3456, v1
v_bfe_u32 v2, v0, 1, 2
v_min_u32 v2, {parts-1}, v2
v_mul_u32_u24 v2, 1152, v2
v_and_b32 v3, 1, v0
v_mul_u32_u24 v3, 140, v3
v_add3_u32 v1, v1, v2, v3
""")
    srd(SW, 38, 1990656)
    a(f"buffer_load_dword v26, v1, s[{SW}:{SW+3}], s{sT} offen offset:{1152*(3-parts)}{nt}\nL_{tag}_tx:")

def init_stores(tag, with_kv):
    if OPT.get("xcc"):
        a(f"s_getreg_b32 s{sT}, hwreg(HW_REG_XCC_ID, 0, 4)\nv_mov_b32 v2, s{sT}\ns_lshl_b32 s{sT}, s2, 2\ns_add_u32 s{sT}, s{sT}, 0x6f0000\nv_mov_b32 v1, s{sT}\nbuffer_store_dword v2, v1, s[{SWS}:{SWS+3}], 0 offen sc1")
    a(f"""
s_or_b32 s{sT}, s{sHG}, s{sWAVE}
s_cmp_eq_u32 s{sT}, 0
s_cselect_b32 s55, 1, 0
v_mov_b32 v20, 0
v_mov_b32 v21, 0
v_mov_b32 v22, 0
v_mov_b32 v23, 0
s_cbranch_scc0 L_{tag}_i1
s_lshl_b32 s{sT}, s{sBR}, 4
s_add_u32 s{sT}, s{sT}, s{sRB}
s_lshl_b32 s{sT}, s{sT}, 8
s_add_u32 s{sT}, s{sT}, {WS_CNT}
v_mov_b32 v24, s{sT}
buffer_store_dword v20, v24, s[{SWS}:{SWS+3}], 0 offen sc1
L_{tag}_i1:
""")
    if with_kv:
        a(f"""
s_or_b32 s{sT}, s{sRB}, s{sWAVE}
s_cmp_eq_u32 s{sT}, 0
s_cbranch_scc0 L_{tag}_i2
s_or_b32 s55, s55, 2
s_mul_i32 s{sT}, s{sHG}, {KV_ST}
s_add_u32 s{sT}, s{sT}, {WS_KV}
v_lshl_add_u32 v24, v0, 4, s{sT}
""")
        for j in range(7):
            a(f"s_movk_i32 s{sK}, {1024*j}\nbuffer_store_dwordx4 v[20:23], v24, s[{SWS}:{SWS+3}], s{sK} offen sc1")
        a(f"L_{tag}_i2:")

def init_flags(tag):
    a(f"""
s_waitcnt vmcnt(0)
s_cmp_eq_u32 s55, 0
s_cbranch_scc1 L_{tag}_f2
v_mov_b32 v20, 1
s_bitcmp1_b32 s55, 0
s_cbranch_scc0 L_{tag}_f1
s_lshl_b32 s{sT}, s{sBR}, 4
s_add_u32 s{sT}, s{sT}, s{sRB}
s_lshl_b32 s{sT}, s{sT}, 2
s_add_u32 s{sT}, s{sT}, 32
v_mov_b32 v24, s{sT}
buffer_store_dword v20, v24, s[{SDBG}:{SDBG+3}], 0 offen sc1
L_{tag}_f1:
s_bitcmp1_b32 s55, 1
s_cbranch_scc0 L_{tag}_f2
s_lshl_b32 s{sT}, s{sHG}, 2
v_mov_b32 v25, s{sT}
buffer_store_dword v20, v25, s[{SDBG}:{SDBG+3}], 0 offen sc1
L_{tag}_f2:
""")

def kstep(tiles, nxt_reads, first, waits):
    pend = list(first)
    for t, (m0_, m1_) in enumerate(tiles):
        if t in waits:
            a(waits[t])
        a(m0_)
        for x in pend: a(x)
        a(m1_)
        pend = []
        if nxt_reads:
            a(nxt_reads[t][0]); pend = [nxt_reads[t][1]]
    for x in pend: a(x)

def a_consumer():
    acc = lambda t, rt: 144 + (t * 2 + rt) * 4
    wf = lambda t: 88 + 4 * t
    xf = lambda buf, rt: 72 + buf * 8 + rt * 4
    R8, R2, R8b, R2b, aX = 1, 5, 6, 10, 11
    vOF, vOL, vEXW, vEXR = 13, 14, 15, 16
    MC, MP, MPF, PM = 56, 60, 64, 68
    a("L_AC:\ns_waitcnt lgkmcnt(0)")
    gap_touch("AC", 3)
    srds_rest()
    init_stores("AC", False)
    rd_lanes(R8, R2, 17, 18); x_lane(aX, aX + 1, 17)
    for j in range(5):
        a(f"v_add_u32 v{R8b+j}, {4*A_WSLOT}, v{R8+j}")
    a(f"""
s_lshl_b32 s{sT}, s{sWAVE}, 12
s_add_u32 s{sT}, s{sT}, {A_X0}
v_add_u32 v{aX}, s{sT}, v{aX}
v_add_u32 v{aX+1}, s{sT}, v{aX+1}
s_lshr_b32 s{sT}, s{sWAVE}, 1
s_lshl_b32 s{sT}, s{sT}, 3
v_and_b32 v17, 15, v0
v_xor_b32 v17, s{sT}, v17
v_lshrrev_b32 v18, 4, v0
v_lshlrev_b32 v18, 2, v18
v_xor_b32 v18, s{sT}, v18
v_sub_u32 v17, v17, v18
v_mov_b32 v19, {NEG}
s_and_b32 s{sT}, s{sWAVE}, 1
s_or_b32 s{sT}, s{sT}, s{sRB}
s_cmp_eq_u32 s{sT}, 0
s_cselect_b64 s[42:43], -1, 0
""")
    for r in range(4):
        a(f"""
v_subrev_u32 v18, {r}, v17
v_cmp_gt_u32 vcc, 8, v18
v_cndmask_b32 v{MC+r}, v19, 0, vcc
v_cmp_gt_i32 vcc, -8, v18
v_cndmask_b32 v{MP+r}, v19, 0, vcc
v_cndmask_b32 v{MPF+r}, v{MP+r}, v19, s[42:43]
v_cmp_lt_i32 vcc, -1, v18
v_mov_b32 v20, {'0xffff' if r % 2 == 0 else '0xffff0000'}
v_cndmask_b32 v20, 0, v20, vcc
""")
        a(f"v_mov_b32 v{PM + r//2}, v20" if r % 2 == 0 else f"v_or_b32 v{PM + r//2}, v{PM + r//2}, v20")
    o_store_addr(vOF, vOL, 17, True)
    a(f"""
s_lshr_b32 s{sT}, s{sWAVE}, 1
s_add_u32 s{sT}, s{sT}, 1
s_mul_i32 s{sT}, s{sT}, 5120
s_bitcmp1_b32 s{sWAVE}, 0
s_cselect_b32 s{sT3}, s{sT}, 0
v_lshlrev_b32 v17, 3, v0
v_add_u32 v17, {A_EX}, v17
v_add_u32 v{vEXW}, s{sT}, v17
v_add_u32 v{vEXR}, s{sT3}, v17
""")

    def wreads(ks, t):
        slot = ks % 5
        o = 0 if slot == 4 else slot * A_WSLOT
        r8, r2 = (R8b, R2b) if slot == 4 else (R8, R2)
        if t == 4 or t == 13:
            o += 12288 if t == 4 else 13312
            return [tr(wf(t), r2, o), tr(wf(t) + 2, r2, o + 256)]
        s, j = (0, t) if t < 4 else (1, t - 5) if t < 9 else (2, t - 9)
        return [tr(wf(t), r8 + j, o + 4096*s), tr(wf(t) + 2, r8 + j, o + 4096*s + 1024)]
    xread = lambda ks, rt: f"ds_read_b128 {vr(xf(ks % 2, rt),4)}, v{aX + ks % 2} offset:{(ks//2 % 3)*A_XSLOT + rt*2048}"

    stamp()
    a("s_barrier")
    stamp()
    a(xread(0, 0)); a(xread(0, 1))
    for t in range(14):
        for x in wreads(0, t): a(x)
    for ks in range(18):
        if ks < 17:
            a("s_barrier")
        if OPT.get("fine") == 2 and ks in (2, 5, 8, 11, 14):
            stamp()
        if OPT.get("dummy") == ks:
            a("s_waitcnt lgkmcnt(0)\ns_memtime s[100:101]\ns_memrealtime s[40:41]\ns_waitcnt lgkmcnt(0)")
            for n in range(128):
                kind = OPT.get("dkind", 0)
                if kind == 0:
                    a(mf(28 + 4 * (n % 4), 88, 72, "0"))
                elif kind == 1:
                    a(f"v_add3_u32 v{28 + n % 8}, v0, v0, v0\nv_add3_u32 v{36 + n % 8}, v0, v0, v0")
                else:
                    a(f"ds_read_b128 v[{28 + 4 * (n % 4)}:{31 + 4 * (n % 4)}], v{aX} offset:0")
            a("s_waitcnt lgkmcnt(0)")
            stamp()
            a("s_waitcnt lgkmcnt(0)")
            if not OPT.get("cyc"):
                a(f"s_sub_u32 s40, s{sST + 2*(nstamp[0]-1)}, s40\ns_add_u32 s{sST + 2*(nstamp[0]-1)}, s{sST}, s40")
        if ks == 3:
            init_flags("AC")
        tiles = []
        for t in range(14):
            c = lambda rt: acc(t, rt) if ks else "0"
            tiles.append([mf(acc(t, rt), wf(t), xf(ks % 2, rt), c(rt)) if t < 9 else mf(acc(t, rt), xf(ks % 2, rt), wf(t), c(rt)) for rt in range(2)])
        if ks < 17:
            nxt = [wreads(ks + 1, t) for t in range(14)]
            nxt[1] = [nxt[1][0], nxt[1][1] + "\n" + xread(ks + 1, 1)]
            kstep(tiles, nxt, [xread(ks + 1, 0)], {0: "s_waitcnt lgkmcnt(14)", 7: "s_waitcnt lgkmcnt(15)", 12: "s_waitcnt lgkmcnt(15)"})
        else:
            kstep(tiles, None, [], {0: "s_waitcnt lgkmcnt(14)", 7: "s_waitcnt lgkmcnt(0)"})
    stamp()
    KP = lambda j: 18 + 10 * j
    QT = lambda rt, h: 88 + 16 * rt + 4 * h
    VP = lambda t, j: 120 + 6 * t + 2 * j if t < 4 else 48 + 2 * j
    ONE = 72
    def pack_kv(rt):
        o = []
        for q in range(2):
            o += [cv(QT(rt, 3) + 2 + q, acc(4, rt) + 2*q), f"v_mov_b32 v{KP(1+rt) + 8 + q}, 0"]
        for tau in range(4):
            o += [cv(KP(1+rt) + 2*tau + q, acc(5+tau, rt) + 2*q) for q in range(2)]
        o += [f"v_permlane32_swap_b32 v{QT(rt,3) + 2 + q}, v{KP(1+rt) + 8 + q}" for q in range(2)]
        for t in range(5):
            o += [cv(VP(t, 1+rt) + q, acc(9+t, rt) + 2*q) for q in range(2)]
        return o
    def pack_q(rt):
        o = []
        for t in range(4):
            for q in range(2):
                d = QT(rt, t) + q
                o.append(cv(d, acc(t, rt) + 2*q))
                if (t, q) in SPLITS:
                    m = SPLITS[(t, q)]; lo = QT(rt, t-1) + 2 + q
                    o += [f"v_cndmask_b32 v{lo}, 0, v{d}, s[{m}:{m+1}]", f"v_xor_b32 v{d}, v{d}, v{lo}"]
        return o + [f"v_mov_b32 v{QT(rt,0) + 3}, 0"]
    weave([], pack_kv(1))
    a(f"s_bitcmp1_b32 s{sWAVE}, 0\ns_cbranch_scc1 L_AC_nodump")
    for j in range(5):
        a(f"ds_write_b64 v{vEXW}, {vr(KP(2) + 2*j, 2)} offset:{512*j}")
        a(f"ds_write_b64 v{vEXW}, {vr(VP(j, 2), 2)} offset:{512*(5+j)}")
    a("L_AC_nodump:")
    weave([], pack_kv(0) + pack_q(1))
    a("s_waitcnt lgkmcnt(0)\ns_barrier")
    for j in range(5):
        a(f"ds_read_b64 {vr(KP(0) + 2*j, 2)}, v{vEXR} offset:{512*j}")
        a(f"ds_read_b64 {vr(VP(j, 0), 2)}, v{vEXR} offset:{512*(5+j)}")
    SC = lambda rt, h: (224 if rt else 184) + 8 * h
    MX = lambda rt: [76 + 4 * rt + h for h in range(4)]
    PT = lambda rt, h: 144 + 16 * rt + 4 * h
    def qk(rt):
        o = []
        for h in range(4):
            o += [mf(SC(rt, h), KP(1+rt) + 2*h, QT(rt, h), MC), mf(SC(rt, h) + 4, KP(rt) + 2*h, QT(rt, h), MP if rt else MPF)]
        return o
    def rowmax(rt):
        o = []
        for h in range(4):
            s = SC(rt, h); m = MX(rt)[h]
            o += [f"v_max_f32 v{s+r}, v{s+r}, v{s+4+r}" for r in range(4)]
            o += [f"v_max3_f32 v{m}, v{s}, v{s+1}, v{s+2}", f"v_max_f32 v{m}, v{m}, v{s+3}"]
        return o
    def xmax(rt):
        m = MX(rt)
        return [f"v_permlane32_swap_b32 v{m[0]}, v{m[1]}", f"v_permlane32_swap_b32 v{m[2]}, v{m[3]}",
                f"v_max_f32 v{m[0]}, v{m[0]}, v{m[1]}", f"v_max_f32 v{m[2]}, v{m[2]}, v{m[3]}",
                f"v_permlane16_swap_b32 v{m[0]}, v{m[2]}", f"v_max_f32 v{m[0]}, v{m[0]}, v{m[2]}",
                f"v_mul_f32 v{m[0]}, s{sT2}, v{m[0]}", f"v_mov_b32 v{m[2]}, v{m[0]}",
                f"v_permlane16_swap_b32 v{m[0]}, v{m[2]}", f"v_mov_b32 v{m[1]}, v{m[0]}", f"v_mov_b32 v{m[3]}, v{m[2]}",
                f"v_permlane32_swap_b32 v{m[0]}, v{m[1]}", f"v_permlane32_swap_b32 v{m[2]}, v{m[3]}"]
    def probs(rt):
        o = []
        for h in range(4):
            s = SC(rt, h); p = PT(rt, h)
            o += [f"v_fma_f32 v{s+r}, v{s+r}, s{sT}, v{MX(rt)[h]}" for r in range(4)]
            o += [f"v_exp_f32 v{s+r}, v{s+r}" for r in range(4)]
            if h:
                o += split(rt, h - 1)
        return o + split(rt, 3)
    def split(rt, h):
        s = SC(rt, h); p = PT(rt, h); o = []
        for q in range(2):
            o += [cv(p + q, s + 2*q), f"v_and_b32 v{p+2+q}, v{p+q}, v{PM+q}", f"v_xor_b32 v{p+q}, v{p+q}, v{p+2+q}"]
        return o
    OB = lambda rt, t: (224 if rt else 184) + 4 * t
    OA = lambda rt, t: (224 if rt else 184) + 12 + 4 * t
    SM = lambda rt, h: 88 + 16 * rt + 4 * h
    OF = lambda rt: 18 + 10 * rt
    def pv(rt):
        o = [mf(SM(rt, h), ONE, PT(rt, h), "0") for h in range(4)]
        for t in range(5):
            if t < 4: o.append(mf(OB(rt, t), VP(t, rt), PT(rt, t), "0"))
            if t > 0: o.append(mf(OA(rt, t), VP(t, rt), PT(rt, t-1), "0"))
        return o
    def finish(rt):
        o = [f"v_rcp_f32 v{SM(rt,h)}, v{SM(rt,h)}" for h in range(4)]
        for t in range(5):
            for q in range(2):
                d = OF(rt) + 2*t + q
                srcs = []
                if t < 4: srcs.append((OB(rt, t) + 2*q, SM(rt, t), d))
                if t == 4: srcs.append((OA(rt, t) + 2*q, SM(rt, 3), d))
                if (t, q) in SPLITS: srcs.append((OA(rt, t) + 2*q, SM(rt, t-1), 17))
                for x, inv, dd in srcs:
                    o += [f"v_mul_f32 v{x}, v{x}, v{inv}", f"v_mul_f32 v{x+1}, v{x+1}, v{inv}", cv(dd, x)]
                if (t, q) in SPLITS:
                    m = SPLITS[(t, q)]
                    o.append(f"v_cndmask_b32 v{d}, v{d}, v17, s[{m}:{m+1}]")
        return o
    a(f"s_mov_b32 s{sT}, {f32(CSC)}\ns_mov_b32 s{sT2}, {f32(-CSC)}")
    weave(qk(1), pack_q(0) + [f"v_mov_b32 v{ONE+j}, 0x3f803f80" for j in range(4)])
    a("s_waitcnt lgkmcnt(0)")
    weave(qk(0), rowmax(1))
    x1, x0 = xmax(1), xmax(0)
    r0 = rowmax(0)
    for i, x in enumerate(x1):
        a(x)
        for y in r0[2*i:2*i+2]: a(y)
    p1 = probs(1)
    for i, x in enumerate(x0):
        a(x)
        for y in p1[2*i:2*i+2]: a(y)
    weave([], p1[2*len(x0):])
    weave(pv(1), probs(0))
    weave(pv(0), finish(1))
    o_store(OF(1), vOF, vOL, 1)
    weave([], finish(0))
    o_store(OF(0), vOF, vOL, 0)
    stamp()
    a("s_branch L_P2")

def phi(r, n, t):
    o = [f"v_pk_fma_f32 {vr(t+j,2)}, {vr(r+j,2)}, s[56:57], v[14:15]" for j in range(0, n, 2)]
    for j in range(n):
        o += [f"v_exp_f32 v{t+j}, v{t+j} clamp", f"v_max_f32 v{r+j}, s{sT2}, v{r+j}"]
    return o + [f"v_pk_add_f32 {vr(r+j,2)}, {vr(r+j,2)}, {vr(t+j,2)}" for j in range(0, n, 2)]

def b_consumer():
    acc = lambda t, rt: 184 + (t * 2 + rt) * 4
    wf = lambda t: 148 + 4 * t
    xf = lambda ks, rt: 52 + ks * 8 + rt * 4 if ks < 12 else 36 + (ks % 2) * 8 + rt * 4
    R8, R2, aX = 1, 5, 6
    vOF, vOL, vEX = 8, 9, 10
    CK, CS = 28, 32
    a("L_BC:\ns_waitcnt lgkmcnt(0)")
    gap_touch("BC", 2)
    srds_rest()
    init_stores("BC", True)
    rd_lanes(R8, R2, 17, 18); x_lane(aX, aX + 1, 17)
    a(f"""
s_lshl_b32 s{sT}, s{sWAVE}, 12
s_add_u32 s{sT}, s{sT}, {B_X0}
v_add_u32 v{aX}, s{sT}, v{aX}
v_add_u32 v{aX+1}, s{sT}, v{aX+1}
v_and_b32 v17, 15, v0
v_cmp_gt_u32 vcc, 8, v17
v_mov_b32 v18, {EPS}
s_mov_b64 s[42:43], vcc
s_mul_i32 s{sT}, s{sWAVE}, 10240
s_add_u32 s{sT}, s{sT}, {B_EX}
v_lshl_add_u32 v{vEX}, v0, 4, s{sT}
v_mov_b32 v14, {f32(-1e-6*LOG2E)}
v_mov_b32 v15, v14
s_mov_b32 s56, {f32(LOG2E)}
s_mov_b32 s57, s56
""")
    for r in range(4):
        a(f"v_mov_b32 v{CK+r}, v18\nv_cndmask_b32 v{CS+r}, 0, v18, vcc")
    o_store_addr(vOF, vOL, 17, False)

    def wreads(ks, t):
        o = (ks % 5) * B_KVSLOT
        if t == 4:
            return [tr(wf(t), R2, o + 8192), tr(wf(t) + 2, R2, o + 8192 + 256)]
        s, j = (0, t) if t < 4 else (1, t - 5)
        return [tr(wf(t), R8 + j, o + 4096*s), tr(wf(t) + 2, R8 + j, o + 4096*s + 1024)]
    xread = lambda ks, rt: f"ds_read_b128 {vr(xf(ks, rt),4)}, v{aX + ks % 2} offset:{(ks//2 % 3)*B_XSLOT + rt*2048}"

    stamp()
    a("s_barrier")
    stamp()
    a(xread(0, 0)); a(xread(0, 1))
    for t in range(9):
        for x in wreads(0, t): a(x)
    for ks in range(18):
        if ks < 17:
            a("s_barrier")
        if ks == 3:
            init_flags("BC")
        tiles = [[mf(acc(t, rt), xf(ks, rt), wf(t), acc(t, rt) if ks else (CK if t < 4 else CS if t == 4 else "0")) for rt in range(2)] for t in range(9)]
        if ks < 17:
            nxt = [wreads(ks + 1, t) for t in range(9)]
            nxt[1] = [nxt[1][0], nxt[1][1] + "\n" + xread(ks + 1, 1)]
            kstep(tiles, nxt, [xread(ks + 1, 0)], {0: "s_waitcnt lgkmcnt(12)", 3: "s_waitcnt lgkmcnt(13)", 6: "s_waitcnt lgkmcnt(13)", 8: "s_waitcnt lgkmcnt(11)"})
        else:
            kstep(tiles, None, [], {0: "s_waitcnt lgkmcnt(12)", 3: "s_waitcnt lgkmcnt(0)\ns_barrier"})
    stamp()
    a(f"s_mov_b32 s{sT2}, {EPS}\nv_mov_b32 v16, 0x3f803f80")
    wr = lambda reg, slot: f"ds_write_b128 v{vEX}, {vr(reg,4)} offset:{1024*slot}"
    pk = lambda d, s: [cv(d + j, s + 2*j) for j in range(4)]
    weave([], pk(156, acc(4, 0)) + [f"v_cndmask_b32 v{156+j}, v{156+j}, v16, s[42:43]" for j in range(4)] + [wr(156, 9)])
    xq = lambda ks, rt: 168 + (ks - 12) * 8 + rt * 4 if ks in (12, 13) else acc(2 * (ks - 14) + rt, 1) if ks in (14, 15) else xf(ks, rt)
    reread = lambda ks, rt: f"ds_read_b128 {vr(xq(ks, rt),4)}, v{aX + ks % 2} offset:{(ks//2 % 3)*B_XSLOT + rt*2048}"
    weave([], [reread(ks, rt) for ks in (12, 13) for rt in range(2)])
    for tau in range(5):
        o = phi(acc(tau, 0), 8, 148)
        if tau < 4:
            o = pk(acc(5+tau, 0), acc(5+tau, 0)) + o[:8] + [wr(acc(5+tau, 0), 5 + tau)] + o[8:]
        weave([], o + pk(acc(tau, 0), acc(tau, 0)) + [wr(acc(tau, 0), tau)])
        if tau < 4:
            a(reread(14 + tau // 2, tau % 2))
    for j in range(5):
        a(f"v_add_u32 v{R8+j}, {B_WQ0}, v{R8+j}")
    a("s_waitcnt lgkmcnt(0)\ns_barrier")
    stamp()
    QA = lambda t, rt: 216 + (t * 2 + rt) * 4
    qf = lambda t: 148 + 4 * t
    qbase = lambda p: B_WQ0 if p < 4 else 0 if p < 7 else 15360
    def qreads(p, t):
        o = wq_slot(p) - qbase(p)
        if t == 4:
            return [tr(qf(t), R2, o + 4096), tr(qf(t) + 2, R2, o + 4096 + 256)]
        return [tr(qf(t), R8 + t, o), tr(qf(t) + 2, R8 + t, o + 1024)]
    for t in range(5):
        for x in qreads(0, t): a(x)
    for p in range(18):
        ks = QORD[p]
        if p == 7 or (p == 13 and OPT.get('wob', 0)):
            a("s_barrier")
        tiles = [[mf(QA(t, rt), qf(t), xq(ks, rt), QA(t, rt) if p else CK) for rt in range(2)] for t in range(5)]
        if p < 17:
            nxt = [qreads(p + 1, t) for t in range(5)]
            if qbase(p + 1) != qbase(p):
                d = (qbase(p + 1) - qbase(p)) & 0xffffffff
                for t in range(5):
                    nxt[t][0] = f"v_add_u32 v{R8+t}, {d}, v{R8+t}\n" + nxt[t][0]
            kstep(tiles, nxt, [], {t: f"s_waitcnt lgkmcnt({7 if t else 8})" for t in range(5)})
        else:
            kstep(tiles, None, [], {t: f"s_waitcnt lgkmcnt({8 - 2*t})" for t in range(5)})
    stamp()
    PQ = lambda rt: 36 + 10 * rt
    KO = 84
    tup = {0: KO, 1: KO + 4, 2: KO + 12, 3: KO + 20, 4: KO + 28}
    ZO = KO + 32
    weave([], [f"v_mov_b32 v{r}, 0" for r in (tup[1]+4, tup[1]+5, tup[2]+4, tup[2]+5, tup[3]+4, tup[3]+5, ZO+8, ZO+9)])
    a(f"v_lshlrev_b32 v16, 3, v0\nv_add_u32 v16, {B_KVOP}, v16")
    for t in range(5):
        weave([], phi(QA(t, 0), 8, 148) + [cv(PQ(rt) + 2*t + q, QA(t, rt) + 2*q) for rt in range(2) for q in range(2)])
    stamp()
    a("s_barrier")
    stamp()
    tid = lambda tau, taup: {-1: tau - 1, 0: 4 + tau, 1: 9 + tau}[taup - tau]
    rd = lambda d, slot: a(f"ds_read_b64 {vr(d,2)}, v16 offset:{512*slot}")
    for j, d in enumerate((ZO, ZO + 2, ZO + 4, ZO + 6, ZO + 10)):
        rd(d, 13 + j)
    rd(tup[0], tid(0, 0)); rd(tup[0] + 2, tid(1, 0))
    for t in (1, 2, 3):
        rd(tup[t], tid(t-1, t)); rd(tup[t] + 2, tid(t, t)); rd(tup[t] + 6, tid(t+1, t))
    rd(tup[4], tid(3, 4)); rd(tup[4] + 2, tid(4, 4))
    DN = lambda rt: 148 + 4 * rt
    NM = lambda rt, t: 184 + 20 * rt + 4 * t
    OF = lambda rt: 156 + 10 * rt
    a("s_waitcnt lgkmcnt(13)")
    for k, (zo, po) in enumerate(((0, 0), (4, 4), (8, 6))):
        for rt in range(2):
            a(mf(DN(rt), ZO + zo, PQ(rt) + po, DN(rt) if k else CK))
    a("s_waitcnt lgkmcnt(0)")
    def num(rt):
        o = [mf(NM(rt, t), tup[t], PQ(rt) + 2*(t-1), "0") for t in (1, 2, 3)]
        o += [mf(NM(rt, 0), tup[0], PQ(rt), "0"), mf(NM(rt, 4), tup[4], PQ(rt) + 6, "0")]
        return o + [mf(NM(rt, t), tup[t] + 4, PQ(rt) + 2*t, NM(rt, t)) for t in (1, 2, 3)]
    def fin(rt, packed):
        o = []
        for t in (0, 4, 1, 2, 3):
            for q in range(2):
                inv = DN(rt) + min(t, 3)
                if (t, q) in SPLITS:
                    m = SPLITS[(t, q)]
                    o.append(f"v_cndmask_b32 v17, v{DN(rt)+t}, v{DN(rt)+t-1}, s[{m}:{m+1}]")
                    inv = 17
                n = NM(rt, t) + 2*q
                o += [f"v_mul_f32 v{n}, v{n}, v{inv}", f"v_mul_f32 v{n+1}, v{n+1}, v{inv}", cv(OF(rt) + 2*t + q, n)]
        return o
    weave(num(0), [], 0)
    weave(num(1), [f"v_rcp_f32 v{DN(rt)+h}, v{DN(rt)+h}" for rt in range(2) for h in range(4)], 1)
    for rt in range(2):
        weave([], fin(rt, True))
        o_store(OF(rt), vOF, vOL, rt)
    stamp()

def kv_index(wreg, VS, VG, VZ):
    a(f"s_cmp_eq_u32 s{wreg}, 0\ns_cselect_b32 s58, 4, s{wreg}")
    for slot in range(3):
        if slot == 0:
            a(f"s_lshl_b32 s{sT}, s58, 4\ns_sub_u32 s{sT2}, s{sT}, 16\ns_mov_b64 s[46:47], 0")
        elif slot == 1:
            a(f"s_lshl_b32 s{sT}, s{wreg}, 4\ns_mov_b32 s{sT2}, s{sT}")
        else:
            a(f"s_add_u32 s{sT2}, s{sT}, 16\ns_cmp_eq_u32 s{wreg}, 3\ns_cselect_b32 s{sT2}, 56, s{sT2}\ns_cselect_b64 s[46:47], s[44:45], 0")
        kv_tile(VS and VS + 2*slot, VG and VG + 2*slot, False)
    if VZ:
        kv_z(VZ)

def kv_tile(VS, VG, last):
    a(f"v_add_u32 v3, s{sT2}, v1")
    head_of(4, 3)
    a(f"v_mul_u32_u24 v5, 18, v4\nv_sub_u32 v3, v3, v5\nv_cndmask_b32 v4, v4, 7, s[46:47]")
    if last:
        a("v_cmp_eq_u32 vcc, 0, v1\nv_cndmask_b32 v4, v4, 3, vcc\nv_cndmask_b32 v3, v3, 18, vcc")
    for q in range(2):
        a(f"v_add3_u32 v5, v2, s{sT}, {2*q}")
        head_of(6, 5)
        a("v_cmp_eq_u32 vcc, v4, v6\nv_mad_u32_u24 v5, v5, 19, v3\nv_lshlrev_b32 v5, 2, v5")
        if VS:
            a(f"v_add_u32 v6, {B_STG}, v5\nv_cndmask_b32 v{VS+q}, v8, v6, vcc")
        if VG:
            a(f"v_add_u32 v6, s{sM}, v5\nv_cndmask_b32 v{VG+q}, v9, v6, vcc")

def kv_z(VZ):
    a("v_and_b32 v3, 3, v0")
    for q in range(2):
        a(f"v_add3_u32 v5, v2, s{sT}, {2*q}")
        head_of(6, 5)
        a(f"v_cmp_eq_u32 vcc, v3, v6\nv_mul_u32_u24 v5, 76, v5\nv_add3_u32 v5, v5, s{sM}, 64\nv_add_u32 v5, 8, v5\nv_cndmask_b32 v{VZ+q}, v9, v5, vcc")

def b_loader(kind):
    a(f"L_B{kind}1:")
    m = M0(42)
    issue = (lambda c: w_issue("B", c, m)) if kind == "W" else (lambda c: x_issue("B", c, m))
    pre = 1 if OPT.get("early") and kind == "W" else 2
    cnt = {c: issue(c) for c in range(1, pre + 1)}
    stamp()
    mark = len(a.lines)
    VS, VG, vZS, vEA, vE0, vEL, vLA, vGA, vLW = 72, 80, 98, 99, 100, 101, 102, 103, 105
    if kind == "W":
        a(f"v_subrev_u32 v{VD+5}, 1152, v{VD}\nv_subrev_u32 v{VD+6}, 1152, v{VD+1}")
    srds_rest()
    if kind == "W":
        wo_setup(False)
    else:
        sync_setup()
    a(f"""
s_add_u32 s55, s{sV}, 2
s_mul_i32 s{sM}, s{sHG}, {KV_ST}
s_add_u32 s{sM}, s{sM}, {WS_KV}
v_and_b32 v1, 15, v0
v_lshrrev_b32 v2, 4, v0
v_lshlrev_b32 v2, 2, v2
v_cmp_gt_u32 s[44:45], 8, v1
v_lshlrev_b32 v8, 2, v0
v_add_u32 v8, {B_DUMP}, v8
v_mov_b32 v9, {OOB}
""")
    own = sV if kind == "X" else 55
    if kind == "X":
        kv_index(55, None, VG, VG + 6)
        a(f"s_movk_i32 s{sT}, 64")
        kv_z(10)
    kv_index(own, VS, VG + 8 if kind == "X" else None, VG + 14 if kind == "X" else None)
    a(f"""
v_add_u32 v5, s{sT}, v0
v_mul_u32_u24 v5, 76, v5
v_add_u32 v5, {B_STG + 72}, v5
v_cndmask_b32 v{vZS}, v8, v5, s[{sG0}:{sG0+1}]
v_lshlrev_b32 v{vEL}, 4, v0
v_add_u32 v{vEL}, {B_EX}, v{vEL}
s_lshl_b32 s{sT}, s{own}, 10
v_add_u32 v{vEA}, s{sT}, v{vEL}
s_lshl_b32 s{sT}, s58, 10
v_add_u32 v{vE0}, s{sT}, v{vEL}
""")
    if kind == "X":
        a(f"s_movk_i32 s{sT}, 64\ns_movk_i32 s{sT2}, 56\ns_mov_b64 s[46:47], s[44:45]")
        kv_tile(VS + 6, VG + 16, True)
        a(f"s_cmp_eq_u32 s{sV}, 0\ns_cselect_b64 s[46:47], -1, 0")
        for q in range(2):
            a(f"v_cndmask_b32 v{VS+6+q}, v8, v{VS+6+q}, s[46:47]\nv_cndmask_b32 v{VG+16+q}, v{10+q}, v{VG+16+q}, s[46:47]")
        a(f"""
v_lshlrev_b32 v5, 3, v0
v_add_u32 v5, {B_KVOP}, v5
s_lshl_b32 s{sT2}, s58, 9
s_sub_u32 s{sT2}, s{sT2}, 512
v_add_u32 v{vLW+2}, s{sT2}, v5
s_lshl_b32 s{sT2}, s{sV}, 9
v_add_u32 v{vLW+1}, s{sT2}, v5
v_add_u32 v{vLW}, 1024, v{vLW+1}
s_mul_i32 s{sT2}, s{sV}, {9*512}
v_add_u32 v{vLW+3}, s{sT2}, v5
s_mul_i32 s{sT}, s{sV}, 2816
v_lshl_add_u32 v{vLA}, v0, 2, s{sT}
v_add_u32 v{vGA}, s{sM}, v{vLA}
v_cmp_gt_u32 vcc, {5472 - 2560}, v{vLA}
v_cndmask_b32 v{vGA+1}, v9, v{vGA}, vcc
v_add_u32 v{vLA}, {B_STG}, v{vLA}
v_mov_b32 v4, 0
""")
    a(f"v_mov_b32 v10, {B_LCNT}\nv_mov_b32 v11, 1")
    if kind == "X":
        a("ds_write_b32 v10, v4\ns_waitcnt lgkmcnt(0)")
    setup = a.lines[mark:]
    del a.lines[mark:]
    per = -(-len(setup) // 9)
    a(f"s_waitcnt vmcnt({sum(cnt.values())})\ns_barrier")
    stamp()
    extra = 0
    for i in range(-1, 16):
        if i == -1 and pre == 1:
            cnt[2] = issue(2)
        if i + 4 <= 17:
            cnt[i+4] = issue(i + 4)
        if 0 <= i < 9:
            a("s_cmp_eq_u32 s59, 1")
            a.lines += setup[per*i:per*(i+1)]
            a("s_cselect_b32 s59, 1, 0")
        if i == 10 and kind == "X":
            flag_load(sFO, 98); flag_load(sFK, 99)
        if kind == "W" and i >= 14:
            extra += wq_issue(2*(i-14), m) + wq_issue(2*(i-14) + 1, m)
        left = sum(cnt.get(c, 0) for c in range(i + 3, min(i + 4, 17) + 1)) + extra
        a(f"s_waitcnt vmcnt({left})\ns_barrier")
    a("s_barrier")
    if kind == "W":
        for p in (4, 5, 6, 7, 13, 14, 15, 16, 17):
            wq_issue(p, m)
        a("s_waitcnt vmcnt(15)")
    else:
        flag_check(sFK, 99, "L_BX_fk")
    stamp()
    a("s_barrier")
    stamp()
    if kind == "W":
        for p in range(8, 13):
            wq_issue(p, m)
    KT = lambda s: 40 + 4 * s
    RD = lambda src, j: 112 + 28 * src + 4 * j
    srcs = ((vEA, 0), (vE0, 0), (vE0, 4096), (vEA, 5120), (vEA, 6144), (vEL, 9216), (vEL, 4096))
    prods = ((1, 2), (0, 3), (0, 4), (6, 5), (5, 0))
    if kind == "W":
        srcs = ((vEA, 0), None, (vE0, 4096), (vEA, 5120), (vEA, 6144), (vEL, 9216))
        prods = ((0, 2), (0, 3), (0, 4), None, (5, 0))
    nr = sum(x is not None for x in srcs)
    for src in range(4):
        for j, x in enumerate(srcs):
            if x: a(f"ds_read_b128 {vr(RD(src, j),4)}, v{x[0]} offset:{src*10240 + x[1]}")
    for src in range(4):
        a(f"s_waitcnt lgkmcnt({min(15, nr*(3-src))})")
        for s_, x in enumerate(prods):
            if x: a(mf(KT(s_), RD(src, x[0]), RD(src, x[1]), KT(s_) if src else "0"))
    for s_ in range(4 if kind == "X" else 3):
        for r in range(4):
            a(f"ds_write_b32 v{VS + 2*s_ + r//2}, v{KT(s_)+r} offset:{76*(r%2)}")
    a(f"ds_write_b32 v{vZS}, v{KT(4)}")
    a("s_waitcnt lgkmcnt(0)\ns_mov_b64 exec, 1\nds_add_u32 v10, v11\ns_mov_b64 exec, -1")
    stamp()
    b1, b2, b3 = {0: ((0, 1, 2, 3, 4, 5), (), (6, 7, 8)), 1: ((0, 1, 2), (3, 4, 5, 6, 7, 8), ()), 2: ((0, 1, 2), (3, 4, 5), (6, 7, 8))}[OPT.get("wob", 0)]
    if kind == "W":
        a("s_waitcnt vmcnt(0)\ns_barrier")
        for g in b1: wo_pair(g)
        if b2:
            a("s_barrier")
            for g in b2: wo_pair(g)
        stamp()
        a("s_barrier")
        loader_tail("BW", b3)
        return
    a(f"""
s_mov_b32 s{sT3}, 0x400000
L_BX_st:
ds_read_b32 v2, v10
s_waitcnt lgkmcnt(0)
v_readfirstlane_b32 s{sT}, v2
s_sub_u32 s{sT3}, s{sT3}, 1
s_cbranch_scc1 L_BX_st_x
s_cmp_ge_u32 s{sT}, 4
s_cbranch_scc0 L_BX_st
L_BX_st_x:
""")
    for n in range(11):
        a(f"ds_read_b32 v{40+n}, v{vLA} offset:{256*n}")
    for n in range(11):
        a(f"s_waitcnt lgkmcnt({10-n})")
        a(f"buffer_atomic_add_f32 v{40+n}, v{vGA + (n == 10)}, s[{SWS}:{SWS+3}], 0 offen offset:{256*n}")
    stamp()
    a("s_barrier")
    if b2:
        a("s_barrier")
    a("s_waitcnt vmcnt(0)")
    stamp()
    arrive_wait(sKC, 32, "L_BX_kc")
    stamp()
    for s_ in range(9):
        for r in range(4):
            a(f"buffer_load_dword v{112+4*s_+r}, v{VG + 2*s_ + r//2}, s[{SWS}:{SWS+3}], 0 offen offset:{76*(r%2)} sc1")
    dst = ((vLW, -1), (vLW, 4), (vLW, 9), (vLW, 13), (vLW + 2, 0), (vLW + 1, 4), (vLW + 1, 9), (vLW + 1, 13), (vLW + 3, 8))
    a(f"v_subrev_u32 v11, 512, v{vLW}")
    for s_, (ad, off) in enumerate(dst):
        a(f"s_waitcnt vmcnt({4*(8-s_)})")
        a(cv(40 + 2*s_, 112 + 4*s_)); a(cv(41 + 2*s_, 114 + 4*s_))
        a(f"ds_write_b64 v{11 if off < 0 else ad}, {vr(40+2*s_,2)} offset:{512*max(off, 0)}")
    a("s_waitcnt lgkmcnt(0)")
    stamp()
    a("s_barrier")
    loader_tail("BX")

def p2_consumer():
    OFR = lambda ks, rt: 112 + ks * 8 + rt * 4
    ACC = lambda t, rt: 72 + (t * 2 + rt) * 4
    wf = lambda t: 52 + 4 * t
    R8, R2, vO, vTW, vTR, VS = 1, 5, 6, 7, 8, 9
    AH = OPT["ahead"]
    a("L_P2:")
    nstamp[0] = 10
    rd_lanes(R8, R2, 17, 18)
    for j in range(5):
        a(f"v_add_u32 v{R8+j}, {R1}, v{R8+j}")
    a(f"""
v_lshl_add_u32 v{vO}, v0, 4, s58
s_mul_i32 s{sT}, s{sWAVE}, 4608
s_add_u32 s{sT}, s{sT}, {P_TR}
v_and_b32 v17, 15, v0
v_mul_u32_u24 v17, 144, v17
v_lshrrev_b32 v18, 4, v0
v_lshl_add_u32 v17, v18, 3, v17
v_add_u32 v{vTW}, s{sT}, v17
v_lshl_add_u32 v{vTR}, v0, 4, s{sT}
s_lshr_b32 s{sT}, s{sWAVE}, 1
s_and_b32 s{sT2}, s{sWAVE}, 1
s_lshl_b32 s{sT2}, s{sT2}, 5
s_lshl_b32 s{sT3}, s{sWAVE}, 5
s_cmp_eq_u32 s{sBR}, 0
s_cselect_b32 s42, s{sT}, 0
s_cselect_b32 s43, s{sT2}, s{sT3}
s_cselect_b32 s55, 1, 0
s_lshl_b32 s56, s42, 3
s_lshl_b32 s{sT}, s{sRB}, 7
s_add_u32 s42, s42, s{sT}
s_mul_i32 s{sT}, s{sBR}, 1152
s_mul_i32 s{sT2}, s{sHG}, 144
s_add_u32 s57, s{sT}, s{sT2}
""")
    for n in range(5):
        a(f"""
v_add_u32 v17, {64*n}, v0
v_mul_u32_u24 v18, 7282, v17
v_lshrrev_b32 v18, 16, v18
v_mul_u32_u24 v19, 9, v18
v_sub_u32 v19, v17, v19
v_add_u32 v18, s43, v18
v_xor_b32 v18, s56, v18
v_lshlrev_b32 v18, s55, v18
v_add_u32 v18, s42, v18
v_mul_u32_u24 v18, 2304, v18
v_lshl_add_u32 v18, v19, 4, v18
v_add_u32 v{VS+n}, s57, v18
""")
    a(f"v_mov_b32 v17, {OOB}\nv_cndmask_b32 v{VS+4}, v17, v{VS+4}, s[{sG01}:{sG01+1}]")
    a(f"v_add_u32 v14, 18432, v{vO}")
    SO = [8, 9, 10, 11, 12, 13, 14, 15, 36]
    rho(37)
    a(f"s_movk_i32 s{SO[0]}, 16384")
    for j in range(1, 9):
        a(f"s_add_u32 s{sT}, s37, {2*j-2}\ns_and_b32 s{sT}, s{sT}, 15\ns_lshl_b32 s{SO[j]}, s{sT}, 10")
    a("s_waitcnt vmcnt(0)")
    stamp()
    a("s_barrier\ns_barrier")
    stamp()
    def oload(ks, rt):
        return f"buffer_load_dwordx4 {vr(OFR(ks, rt),4)}, v{14 if rt else vO}, s[{SWS}:{SWS+3}], s{SO[ks//2]} offen offset:{1024*(ks%2)} sc1"
    base = lambda ks: R1 if ks < 3 else 0 if 9 <= ks < 12 else R2_
    R2_ = 43008
    def wreads(ks, t):
        o = WO[ks] - base(ks)
        if t == 4:
            return [tr(wf(t), R2, o + 4096), tr(wf(t) + 2, R2, o + 4096 + 256)]
        return [tr(wf(t), R8 + t, o), tr(wf(t) + 2, R8 + t, o + 1024)]
    for ks in range(AH):
        a(oload(ks, 0)); a(oload(ks, 1))
    for t in range(5):
        for x in wreads(0, t): a(x)
    for ks in range(18):
        tiles = [[mf(ACC(t, rt), wf(t), OFR(ks, rt), ACC(t, rt) if ks else "0") for rt in range(2)] for t in range(5)]
        w0 = f"s_waitcnt vmcnt({2*min(AH - 1, 17 - ks)}) lgkmcnt(8)"
        if ks < 17:
            nxt = [wreads(ks + 1, t) for t in range(5)]
            if base(ks + 1) != base(ks):
                d = (base(ks + 1) - base(ks)) & 0xffffffff
                for t in range(5):
                    nxt[t][0] = f"v_add_u32 v{R8+t}, {d}, v{R8+t}\n" + nxt[t][0]
            first = []
            if ks + AH < 18:
                first = [oload(ks + AH, 0)]
                nxt[1][1] += "\n" + oload(ks + AH, 1)
            kstep(tiles, nxt, first, {t: "s_waitcnt lgkmcnt(7)" if t else w0 for t in range(5)})
        else:
            kstep(tiles, None, [], {t: f"s_waitcnt lgkmcnt({8 - 2*t})" if t else w0 for t in range(5)})
        if ks == 0:
            stamp()
    stamp()
    for rt in range(2):
        for t in range(5):
            d = 20 + 2*(rt*5 + t)
            a(cv(d, ACC(t, rt))); a(cv(d + 1, ACC(t, rt) + 2))
            if t == 4:
                a(f"s_mov_b64 exec, s[{sG01}:{sG01+1}]")
            a(f"ds_write_b64 v{vTW}, {vr(d,2)} offset:{rt*2304 + 32*t}")
            if t == 4:
                a("s_mov_b64 exec, -1")
    a("s_waitcnt lgkmcnt(0)")
    for n in range(5):
        a(f"ds_read_b128 {vr(112+4*n,4)}, v{vTR} offset:{1024*n}")
    for n in range(5):
        a(f"s_waitcnt lgkmcnt({4-n})")
        a(f"buffer_store_dwordx4 {vr(112+4*n,4)}, v{VS+n}, s[{SOUT}:{SOUT+3}], 0 offen")
    stamp()
    stamps_out(True)
    a("s_endpgm")

HEADER = open("concat_heads__sliding_local_dilated__linear_attn_block__prompt.s.ref").read().split("; Override")[0]
out = HEADER + "; @launch grid=(256,1,1) block=(512,1,1) lds=163840\n"
a('.amdgcn_target "amdgcn-amd-amdhsa--gfx950"\n.text')
a(kernel_head(KN))
if OPT["stamps"]:
    for i in range(16):
        a(f"s_mov_b32 s{sST+2*i}, 0")
stamp()
a(f"""
s_cmp_ge_u32 s2, 256
s_cbranch_scc1 L_end
s_and_b32 s{sT}, s2, 7
s_lshr_b32 s{sBR}, s{sT}, 2
{'s_xor_b32 s6, s6, 1' if OPT.get('swap') else ''}
s_mul_i32 s{sT2}, s{sBR}, 24
s_add_u32 s0, s0, s{sT2}
s_addc_u32 s1, s1, 0
s_load_dwordx4 s[36:39], s[0:1], 0
s_load_dwordx2 s[40:41], s[0:1], 16
s_sub_u32 s0, s0, s{sT2}
s_subb_u32 s1, s1, 0
s_load_dwordx4 s[44:47], s[0:1], 48
s_load_dwordx2 s[48:49], s[0:1], 64
v_lshrrev_b32 v1, 6, v0
v_and_b32 v0, 63, v0
v_readfirstlane_b32 s{sWAVE}, v1
s_lshr_b32 s{sT2}, s2, 3
""")
m84 = f"""
s_and_b32 s{sHG}, s{sT2}, 3
s_and_b32 s{sT3}, s{sT}, 1
s_lshl_b32 s{sT3}, s{sT3}, 2
s_add_u32 s{sHG}, s{sHG}, s{sT3}
s_lshr_b32 s{sRB}, s{sT2}, 2
s_and_b32 s{sT3}, s{sT}, 2
s_lshl_b32 s{sT3}, s{sT3}, 2
s_add_u32 s{sRB}, s{sRB}, s{sT3}
"""
m48 = f"""
s_and_b32 s{sHG}, s{sT2}, 7
s_lshr_b32 s{sRB}, s{sT2}, 3
s_and_b32 s{sT3}, s{sT}, 3
s_lshl_b32 s{sT3}, s{sT3}, 2
s_add_u32 s{sRB}, s{sRB}, s{sT3}
"""
if OPT["mapping"] == 84:
    a(m84)
elif OPT["mapping"] == 48:
    a(m48)
else:
    a(m48 + f"s_cmp_eq_u32 s{sBR}, {0 if OPT['mapping'] == 8448 else 1}\ns_cbranch_scc0 L_map" + m84 + "L_map:")
rot = ""
if OPT.get("rot") == 2:
    rot = f"""s_lshr_b32 s90, s2, 1
s_xor_b32 s90, s90, s2
s_and_b32 s90, s90, 1
s_mul_i32 s91, s90, {OPT.get("rotby", 5)*128}
s_mul_i32 s90, s90, {OPT.get("rotby", 5)*64*3456}"""
elif OPT.get("rot") == 3:
    rot = f"""s_lshr_b32 s90, s2, 1
s_xor_b32 s90, s90, s2
s_and_b32 s90, s90, 1
s_mul_i32 s90, s90, 5
s_add_u32 s91, s{sRB}, s{sHG}
s_and_b32 s91, s91, 3
s_add_u32 s90, s90, s91
s_lshl_b32 s91, s90, 7
s_mul_i32 s90, s90, {64*3456}"""
elif OPT.get("rot") == 7:
    rot = f"""s_and_b32 s90, s{sHG}, 3
s_and_b32 s91, s{sRB}, 7
s_lshl1_add_u32 s90, s90, s91
s_cmp_ge_u32 s90, 9
s_cselect_b32 s91, 9, 0
s_sub_u32 s90, s90, s91
s_lshl_b32 s91, s90, 7
s_mul_i32 s90, s90, {64*3456}"""
elif OPT.get("rot") in (4, 5, 6):
    tab = {4: 0x75207520, 5: 0x63006300, 6: 0x86427531}[OPT["rot"]]
    rot = f"""s_add_u32 s90, s{sRB}, s{sHG}
s_and_b32 s90, s90, 7
s_lshl_b32 s90, s90, 2
s_lshr_b32 s90, {hex(OPT.get("tab", tab))}, s90
s_and_b32 s90, s90, 15
s_lshl_b32 s91, s90, 7
s_mul_i32 s90, s90, {64*3456}"""
elif OPT.get("rot"):
    few, many = (sRB, sHG) if OPT["mapping"] == 48 else (sHG, sRB)
    rot = f"""s_and_b32 s90, s{few}, 3
s_lshl_b32 s90, s90, 2
s_lshr_b32 s90, 0x7520, s90
s_and_b32 s90, s90, 15
s_and_b32 s91, s{many}, 7
s_add_u32 s90, s90, s91
s_cmp_ge_u32 s90, 9
s_cselect_b32 s91, 9, 0
s_sub_u32 s90, s90, s91
s_lshl_b32 s91, s90, 7
s_mul_i32 s90, s90, {64*3456}"""
a(f"""
s_mov_b32 s{sG0}, 0xffff
s_mov_b32 s{sG0+1}, 0
s_mov_b32 s{sG01}, -1
s_mov_b32 s{sG01+1}, 0
s_and_b32 s{sV}, s{sWAVE}, 1
s_mul_i32 s{sM}, s{sHG}, 144
s_cmp_lt_u32 s{sWAVE}, 4
s_cbranch_scc1 L_cons
s_setprio {OPT.get("prio", 2)}
s_mov_b32 s59, 0
{rot}
s_cmp_lt_u32 s{sWAVE}, 6
s_cbranch_scc1 L_wld
s_cmp_eq_u32 s{sBR}, 0
s_cbranch_scc1 L_AX0
s_branch L_BX0
L_wld:
s_cmp_eq_u32 s{sBR}, 0
s_cbranch_scc1 L_AW0
s_branch L_BW0
L_cons:
s_getpc_b64 s[42:43]
L_pc:
s_lshl_b32 s{sT}, s{sT2}, 2
s_add_u32 s{sT}, s{sT}, s{sWAVE}
s_lshl_b32 s{sT}, s{sT}, 9
v_and_b32 v1, 3, v0
v_lshlrev_b32 v1, 7, v1
v_add_u32 v1, s{sT}, v1
v_min_u32 v1, L_last-L_pc, v1
global_load_dword v27, v1, s[42:43]
s_cmp_eq_u32 s{sBR}, 0
s_cbranch_scc1 L_AC
s_branch L_BC
L_end:
s_endpgm
""")
w_head("A"); w_head("B"); x_head("A"); x_head("B")
n0 = nstamp[0]
for fn in (lambda: a_loader("W"), lambda: a_loader("X"), a_consumer, lambda: b_loader("W"), lambda: b_loader("X"), b_consumer, p2_consumer):
    nstamp[0] = n0
    fn()
a("L_last:\ns_endpgm")
lines = []
for l in a.lines: lines += l.split("\n")
if OPT.get("noread"):
    lines = [l for l in lines if not l.startswith("ds_read_b64_tr")]
if OPT.get("nomfma"):
    lines = [l for l in lines if not l.startswith("v_mfma")]
lines, added = hz.fix(lines)
out += "\n".join(lines) + "\n"
out += '.section .rodata,"a"\n.p2align 6\n' + kernel_desc(KN, 256, 102 if OPT.get('cyc') else 100, 256)
sys.stdout.write(out)
sys.stderr.write(f"nop states added: {added}\n")
```

```python
import sys, struct
from asmlib import *
import hz

OPT = dict(stamps=0, mapping=48, ahead=6, rot=4, nt=1)
for arg in sys.argv[1:]:
    k, v = arg.split("=")
    OPT[k] = int(v)
KN = "concat_heads__sliding_local_dilated__linear_attn_block__prompt_kernel"

def f32(x):
    return "0x%08x" % struct.unpack("<I", struct.pack("<f", x))[0]

LOG2E = 1.4426950408889634
CSC = 18 ** -0.5 * LOG2E
NEG = "0xf149f2ca"
EPS = f32(1e-6)
OOB = "0x80000000"

O_BR = 0x240000
WS_KV = 0x500000
KV_ST = 0x2000
WS_CNT = 0x540000
WS_STAMP = 0x600000
WS_SIZE = 0x700000

sWAVE, sHG, sRB, sBR, sT = 3, 4, 5, 6, 7
SX, SW, SWS, SDBG, SWO, SOUT = 8, 12, 16, 20, 24, 28
sG0, sG01 = 32, 34
sK, sV, sM, sT2, sT3 = 50, 51, 52, 53, 54
sST = 60

a = Asm()
nstamp = [0]

def stamp():
    if OPT["stamps"]:
        i = nstamp[0]; nstamp[0] += 1
        assert i < 15
        a(f"{'s_memrealtime' if OPT.get('rt') or OPT.get('probe') and not (OPT.get('cyc') and i) else 's_memtime'} s[{sST+2*i}:{sST+2*i+1}]")
        if OPT.get("cyc") and i == 0:
            a("s_memtime s[100:101]")

def stamps_out(last=False):
    if not OPT["stamps"]:
        return
    if OPT.get("probe"):
        if last:
            j = sST + 2 * OPT["probe"]
            if OPT.get("ifetch"):
                mode = OPT["ifetch"]
                a(f"""
s_waitcnt vmcnt(0) lgkmcnt(0)
s_cmp_eq_u32 s2, {OPT.get('wg', 0)}
s_cbranch_scc0 L_probe_x
s_cmp_eq_u32 s{sWAVE}, 0
s_cbranch_scc0 L_probe_x
s_sleep 127
s_sleep 127
s_getpc_b64 s[44:45]
L_if_pc:
s_add_u32 s44, s44, L_if_blk-L_if_pc
s_addc_u32 s45, s45, 0
v_lshlrev_b32 v1, 7, v0
v_min_u32 v1, 4096, v1
""")
                if mode == 2:
                    a("global_load_dword v2, v1, s[44:45]\ns_waitcnt vmcnt(0)")
                a(f"""
s_memtime s[100:101]
s_waitcnt lgkmcnt(0)
s_branch L_if_blk
L_last:
.fill {(0 if mode == 1 else 8192)}, 4, 0xbf800000
L_if_blk:
.rept 512
v_add3_u32 v5, v0, v0, v0
.endr
s_memtime s[{j}:{j+1}]
s_waitcnt lgkmcnt(0)
s_sub_u32 s{j}, s{j}, s100
s_lshl_b32 s{j}, s{j}, 3
s_add_u32 s{j}, s{j}, s100
""")
            if OPT.get("lat"):
                a(f"""
s_waitcnt vmcnt(0) lgkmcnt(0)
s_load_dwordx2 s[44:45], s[0:1], {OPT['lat'] - 8}
s_sleep 127
s_sleep 127
s_sleep 127
s_waitcnt lgkmcnt(0)
s_mov_b32 s46, 0x100000
s_mov_b32 s47, 0x20000
v_mov_b32 v1, 0x20000
buffer_load_dword v2, v1, s[44:47], 0 offen {'sc1' if OPT.get('first') != 2 else ''}
s_waitcnt vmcnt(0)
v_mov_b32 v1, {'0x20000' if not OPT.get('first') else '0x20040'}
s_memtime s[100:101]
s_waitcnt lgkmcnt(0)
buffer_load_dword v2, v1, s[44:47], 0 offen sc1
s_waitcnt vmcnt(0)
s_memtime s[{j}:{j+1}]
s_waitcnt lgkmcnt(0)
s_sub_u32 s{j}, s{j}, s100
s_lshl_b32 s{j}, s{j}, 5
s_add_u32 s{j}, s{j}, s100
""")
            if OPT.get("xcc"):
                a(f"""
s_waitcnt vmcnt(0) lgkmcnt(0)
v_and_b32 v1, 31, v0
v_lshlrev_b32 v1, {5 if OPT['xcc'] == 1 else 2}, v1
v_add_u32 v1, 0x6f0000, v1
buffer_load_dword v2, v1, s[{SWS}:{SWS+3}], 0 offen sc1
s_getreg_b32 s44, hwreg(HW_REG_XCC_ID, 0, 4)
s_waitcnt vmcnt(0)
v_cmp_eq_u32 vcc, s44, v2
s_bcnt1_i32_b32 s44, vcc_lo
s_mul_i32 s44, s44, 10
s_add_u32 s{j}, s{sST}, s44
""")
            a(f"""
s_waitcnt vmcnt(0) lgkmcnt(0)
s_cmp_eq_u32 s2, {OPT.get('wg', 0)}
s_cbranch_scc0 L_probe_x
s_cmp_eq_u32 s{sWAVE}, 0
s_cbranch_scc0 L_probe_x
s_sub_u32 s{sT}, s{j}, s{100 if OPT.get('cyc') else sST}
{'s_lshr_b32 s7, s7, 3' if OPT.get('cyc') else 's_mul_i32 s7, s7, 10'}
s_min_u32 s{sT}, s{sT}, 100000
s_add_u32 s{sT}, s{sT}, 6000
L_probe:
s_memrealtime s[44:45]
s_waitcnt lgkmcnt(0)
s_sub_u32 s44, s44, s{sST}
s_cmp_lt_u32 s44, s{sT}
s_cbranch_scc1 L_probe
L_probe_x:
""")
        return
    a("s_waitcnt vmcnt(0) lgkmcnt(0)")
    a(f"s_lshl_b32 s{sT}, s2, 3\ns_add_u32 s{sT}, s{sT}, s{sWAVE}\ns_lshl_b32 s{sT}, s{sT}, 6")
    a(f"s_add_u32 s{sT}, s{sT}, {WS_STAMP}\nv_mov_b32 v1, s{sT}")
    for i in range(16):
        a(f"v_mov_b32 v2, s{sST+2*i}")
        a(f"buffer_store_dword v2, v1, s[{SWS}:{SWS+3}], 0 offen offset:{4*i}")
    a("s_waitcnt vmcnt(0)")

def mf(d, s0, s1, c):
    cc = c if isinstance(c, str) else vr(c, 4)
    return f"v_mfma_f32_16x16x32_bf16 {vr(d,4)}, {vr(s0,4)}, {vr(s1,4)}, {cc}"
def cv(d, x):
    return f"v_cvt_pk_bf16_f32 v{d}, v{x}, v{x+1}"
def tr(d, addr, off):
    return f"ds_read_b64_tr_b16 {vr(d,2)}, v{addr} offset:{off}"
def weave(mfmas, others, per=2):
    o = list(others)
    for m in mfmas:
        a(m)
        for _ in range(per):
            if o: a(o.pop(0))
    for x in o: a(x)

def srd(dst, lo, nbytes):
    a(f"s_mov_b32 s{dst}, s{lo}\ns_mov_b32 s{dst+1}, s{lo+1}\ns_mov_b32 s{dst+2}, {nbytes}\ns_mov_b32 s{dst+3}, 0x20000")
def srds_rest():
    srd(SWO, 40, 663552); srd(SOUT, 44, 4718592); srd(SDBG, 46, 256); srd(SWS, 48, WS_SIZE)

class M0:
    def __init__(self, base): self.base = base; self.cur = None
    def set(self, imm):
        if self.cur is not None and -32768 <= imm - self.cur <= 32767:
            a(f"s_addk_i32 m0, {imm - self.cur}")
        else:
            a(f"s_add_u32 m0, s{self.base}, {imm}")
        self.cur = imm

CUR = [0]
def dma(voff, srd_, soff, half=False):
    if OPT.get("nodma") or (OPT.get("nos") and voff == VD + 6 and srd_ == SW and not half):
        return
    if half: a(f"s_mov_b64 exec, s[{sG01}:{sG01+1}]")
    nt = " nt" if OPT.get("nt", 0) >> {SX: 0, SW: 1, SWO: 2}[srd_] & 1 and CUR[0] < OPT.get("ntc", 99) else ""
    a(f"buffer_load_dwordx4 v{voff}, s[{srd_}:{srd_+3}], {soff} offen{nt} lds")
    if half: a("s_mov_b64 exec, -1")

def rd_lanes(r8, r2, t0, t1):
    a(f"""
v_lshrrev_b32 v{t0}, 5, v0
v_lshlrev_b32 v{t0}, 4, v{t0}
v_bfe_u32 v{t1}, v0, 4, 1
v_lshl_add_u32 v{t0}, v{t1}, 2, v{t0}
v_bfe_u32 v{t1}, v0, 2, 2
v_add_u32 v{t0}, v{t0}, v{t1}
v_and_b32 v{t1}, 3, v0
v_lshlrev_b32 v{t1}, 3, v{t1}
v_lshl_add_u32 v{r2}, v{t0}, 5, v{t1}
v_lshl_add_u32 v{r8}, v{t0}, 7, v{t1}
v_bfe_u32 v{t0}, v{t0}, 1, 2
v_lshl_add_u32 v{r8}, v{t0}, 5, v{r8}
""")
    for t in (1, 2, 3):
        a(f"v_xor_b32 v{r8+t}, {32*t}, v{r8}")

def x_lane(d0, d1, tmp):
    a(f"""
v_lshrrev_b32 v{d0}, 4, v0
v_bfe_u32 v{tmp}, v0, 1, 3
v_xor_b32 v{d0}, v{d0}, v{tmp}
v_and_b32 v{tmp}, 15, v0
v_lshlrev_b32 v{tmp}, 7, v{tmp}
v_lshl_add_u32 v{d0}, v{d0}, 4, v{tmp}
v_xor_b32 v{d1}, 64, v{d0}
""")

def col8(dst, tmp):
    a(f"v_bfe_u32 v{tmp}, v0, 4, 2\nv_lshlrev_b32 v{tmp}, 1, v{tmp}\nv_and_b32 v{dst}, 7, v0\nv_xor_b32 v{dst}, v{dst}, v{tmp}\nv_lshlrev_b32 v{dst}, 4, v{dst}")

def head_of(dst, src):
    a(f"v_mul_u32_u24 v{dst}, 57, v{src}\nv_lshrrev_b32 v{dst}, 10, v{dst}")

sOC, sKC, sFO, sFK = 92, 94, 96, 97

def arrive_wait(addr, target, label, arrive=True):
    if arrive:
        a(f"s_mov_b32 s{sT}, 1\ns_atomic_add s{sT}, s[{addr}:{addr+1}], 0 glc\ns_waitcnt lgkmcnt(0)\ns_cmp_ge_u32 s{sT}, {target-1}\ns_cbranch_scc1 {label}_x")
    a(f"""
s_mov_b32 s{sT3}, 0x20000
{label}:
s_mov_b32 s{sT}, 0
s_atomic_add s{sT}, s[{addr}:{addr+1}], 0 glc
s_waitcnt lgkmcnt(0)
s_sub_u32 s{sT3}, s{sT3}, 1
s_cbranch_scc1 {label}_x
s_cmp_ge_u32 s{sT}, {target}
s_cbranch_scc0 {label}
{label}_x:
""")

def flag_load(dst, offreg):
    a(f"s_load_dword s{dst}, s[{SDBG}:{SDBG+1}], s{offreg}")

def flag_check(val, offreg, label):
    a(f"""
s_mov_b32 s{sT3}, 0x20000
{label}:
s_waitcnt lgkmcnt(0)
s_cmp_lg_u32 s{val}, 0
s_cbranch_scc1 {label}_x
s_sub_u32 s{sT3}, s{sT3}, 1
s_cbranch_scc1 {label}_x
s_load_dword s{val}, s[{SDBG}:{SDBG+1}], s{offreg} glc
s_branch {label}
{label}_x:
""")

A_WSLOT, A_XSLOT = 14336, 18432
A_X0 = 5 * A_WSLOT
A_EX = A_X0 + 3 * A_XSLOT
B_KVSLOT, B_XSLOT = 9216, 16384
B_X0 = 5 * B_KVSLOT
B_EX = B_X0 + 3 * B_XSLOT
B_KVOP = 126976
B_STG = 136192
B_DUMP, B_LCNT = B_STG + 5632, B_STG + 6144
B_WQ0 = 143360
QORD = list(range(18))
def wq_slot(p):
    if p < 4: return B_WQ0 + 5120 * p
    if p < 7: return 5120 * (p - 4)
    if p < 13: return 40960 + 5120 * (p - 7)
    return 15360 + 5120 * (p - 13)
R1, R2 = 147456, 43008
WO = [R1, R1 + 5120, R1 + 10240] + [R2 + 5120 * n for n in range(6, 12)] + [0, 5120, 10240] + [R2 + 5120 * n for n in range(6)]
P_TR = 108544
SPLITS = {(1, 0): sG0, (2, 0): sG0, (2, 1): sG0, (3, 0): sG01, (3, 1): sG0}

VD = 16
VWO = 26
vCNT, vFLO, vFLK, vFO, vFK = 30, 31, 32, 33, 34

def w_head(kind):
    parts = (0, 1152, 2304) if kind == "A" else (1152, 2304)
    a(f"L_{kind}W0:")
    col8(VD, 1)
    a(f"""
v_bfe_u32 v1, v0, 5, 1
v_bfe_u32 v2, v0, 3, 2
v_lshl_add_u32 v1, v1, 3, v2
s_mul_i32 s{sT}, s{sV}, {16*3456}
s_add_u32 s{sT}, s{sT}, s{sM}
v_mul_u32_u24 v1, 3456, v1
v_add3_u32 v{VD}, v{VD}, v1, s{sT}
""")
    n = 2 * len(parts)
    for j in range(n - 1, -1, -1):
        off = parts[j // 2] + (j % 2) * 4 * 3456
        if off:
            a(f"v_add_u32 v{VD+j}, {off}, v{VD}")
    a(f"""
v_bfe_u32 v1, v0, 3, 1
v_bfe_u32 v2, v0, 4, 1
v_sub_u32 v1, v1, v2
v_lshrrev_b32 v2, 1, v0
v_lshl_add_u32 v1, v1, 2, v2
v_mul_u32_u24 v1, 3456, v1
v_and_b32 v2, 1, v0
""")
    if kind == "A":
        a(f"""
s_cmp_eq_u32 s{sV}, 0
s_cselect_b32 s{sT2}, 1152, 0
s_cselect_b32 s{sT}, 0, 2304
s_add_u32 s{sT}, s{sT}, s{sM}
s_addk_i32 s{sT}, 128
v_mad_u32_u24 v1, v2, s{sT2}, v1
v_add_u32 v{VD+6}, s{sT}, v1
""")
    else:
        a(f"""
s_add_u32 s{sT}, s{sT}, 128
v_add_u32 v{VD+7}, s{sT}, v1
v_mul_u32_u24 v2, 1152, v2
v_add_u32 v2, 1152, v2
v_add_u32 v{VD+4}, v2, v{VD+7}
""")
    a(f"s_lshl_b32 s42, s{sV}, 11\ns_lshl_b32 s43, s{sV}, {10 if kind == 'A' else 9}\ns_sub_u32 s43, s43, s42")
    a("s_waitcnt lgkmcnt(0)")
    srd(SW, 38, 1990656)
    m = M0(42)
    w_issue(kind, 0, m)
    a(f"s_branch L_{kind}W1")

def w_issue(kind, c, m):
    CUR[0] = c
    slot = (c % 5) * (A_WSLOT if kind == "A" else B_KVSLOT)
    n = 6 if kind == "A" else 4
    so = f"s{sK}" if c else "0"
    if OPT.get("rot"):
        so = "s90"
        if c:
            a(f"s_add_u32 s90, s90, {32*3456}\ns_cmp_eq_u32 s90, {18*32*3456}\ns_cselect_b32 s90, 0, s90")
    elif c:
        a(f"s_mov_b32 s{sK}, {c*32*3456}")
    for j in range(n):
        m.set(slot + 4096 * (j // 2) + 1024 * (j % 2))
        dma(VD + j, SW, so)
    m.set(slot + 4096 * (n // 2))
    a("s_add_u32 m0, m0, s43")
    m.cur = None
    dma(VD + n, SW, so, half=(kind == "B"))
    return n + 1

def wq_issue(p, m):
    if OPT.get("rot"):
        a(f"s_add_u32 s{sK}, s90, {(p+1)*32*3456}\ns_cmp_ge_u32 s{sK}, {18*32*3456}\ns_cselect_b32 s{sT}, {18*32*3456}, 0\ns_sub_u32 s{sK}, s{sK}, s{sT}")
    else:
        a(f"s_mov_b32 s{sK}, {QORD[p]*32*3456}")
    for j in range(2):
        m.set(wq_slot(p) + 1024 * j)
        dma(VD + 5 + j, SW, f"s{sK}")
    m.set(wq_slot(p) + 4096)
    a("s_add_u32 m0, m0, s43")
    m.cur = None
    dma(VD + 7, SW, f"s{sK}", half=True)
    return 3

def x_head(kind):
    nq = 9 if kind == "A" else 8
    a(f"L_{kind}X0:")
    a(f"""
v_lshrrev_b32 v1, 3, v0
v_mul_u32_u24 v1, {2304 if kind == 'A' else 1152}, v1
v_lshrrev_b32 v2, 4, v0
v_lshl_add_u32 v2, s{sV}, 2, v2
v_and_b32 v3, 7, v0
v_xor_b32 v2, v2, v3
v_lshl_add_u32 v1, v2, 4, v1
s_mul_i32 s{sT}, s{sRB}, {128*1152}
""")
    if kind == "A":
        a(f"""
s_mul_i32 s{sT2}, s{sV}, {16*1152}
s_add_u32 s{sT3}, s{sT}, s{sT2}
v_add_u32 v{VD}, s{sT3}, v1
s_sub_u32 s{sT3}, s{sT}, s{sT2}
s_add_u32 s{sT3}, s{sT3}, {17*1152}
v_add_u32 v{VD+4}, s{sT3}, v1
s_mul_i32 s{sT2}, s{sV}, 1152
s_sub_u32 s{sT3}, s{sT}, s{sT2}
s_sub_u32 s{sT3}, s{sT3}, {15*1152}
v_add_u32 v{VD+8}, s{sT3}, v1
""")
        for q in (1, 2, 3):
            a(f"v_add_u32 v{VD+q}, {32*1152*q}, v{VD}\nv_add_u32 v{VD+4+q}, {32*1152*q}, v{VD+4}")
    else:
        a(f"s_mul_i32 s{sT2}, s{sV}, {8*1152}\ns_add_u32 s{sT}, s{sT}, s{sT2}\nv_add_u32 v{VD}, s{sT}, v1")
        for q in range(1, 8):
            a(f"v_add_u32 v{VD+q}, {16*1152*q}, v{VD}")
    a(f"s_lshl_b32 s42, s{sV}, 10")
    a("s_waitcnt lgkmcnt(0)")
    srd(SX, 36, 2359296)
    x_issue(kind, 0, M0(42))
    a(f"s_branch L_{kind}X1")

def x_issue(kind, c, m):
    CUR[0] = c + (c & 1)
    nq, h, x0, xs = (9, 5, A_X0, A_XSLOT) if kind == "A" else (8, 4, B_X0, B_XSLOT)
    st = (c + 1) // 2
    if st > 8:
        return 0
    qs = range(nq) if c == 0 else (range(h) if c % 2 else range(h, nq))
    so = f"s{sK}" if st else "0"
    if OPT.get("rot"):
        so = "s91"
        if c % 2:
            a("s_addk_i32 s91, 128\ns_cmpk_eq_u32 s91, 1152\ns_cselect_b32 s91, 0, s91")
    elif st:
        a(f"s_movk_i32 s{sK}, {st*128}")
    for q in qs:
        m.set(x0 + (st % 3) * xs + 2048 * q)
        a("s_nop 0")
        dma(VD + q, SX, so)
    return len(qs)

def wo_setup(quad):
    col8(VWO, 1)
    a(f"""
s_mul_i32 s{sM}, s{sHG}, 144
v_add_u32 v{VWO}, s{sM}, v{VWO}
v_bfe_u32 v1, v0, 5, 1
v_bfe_u32 v2, v0, 3, 2
v_mul_u32_u24 v1, 72, v1
v_add_u32 v1, v1, v2
v_mul_u32_u24 v1, 1152, v1
v_add_u32 v{VWO+1}, v1, v{VWO}
v_lshrrev_b32 v1, 3, v0
v_mul_u32_u24 v1, 1152, v1
v_add_u32 v{VWO}, v1, v{VWO}
v_bfe_u32 v1, v0, 1, 2
v_bfe_u32 v2, v0, 3, 1
v_bfe_u32 v3, v0, 4, 1
v_bfe_u32 v4, v0, 5, 1
v_lshl_add_u32 v5, v2, 2, v1
v_lshl_add_u32 v5, v3, 4, v5
v_lshl_add_u32 v5, v4, 3, v5
v_mul_u32_u24 v5, 1152, v5
s_add_u32 s{sM}, s{sM}, 128
v_add_u32 v{VWO+2}, s{sM}, v5
v_lshl_add_u32 v5, v3, 2, v1
v_lshl_add_u32 v2, v4, 1, v2
v_mul_u32_u24 v2, 72, v2
v_add_u32 v5, v5, v2
v_mul_u32_u24 v5, 1152, v5
v_add_u32 v{VWO+3}, s{sM}, v5
s_and_b32 s55, s{sWAVE}, 3
s_lshl_b32 s57, s55, 3
""")
    rho(56)
    a(f"s_add_u32 s56, s56, s{55 if quad else sV}")

def rho(dst):
    few, many = (sRB, sHG) if OPT["mapping"] == 48 else (sHG, sRB)
    if OPT["mapping"] > 99:
        a(f"s_cmp_eq_u32 s{sBR}, {0 if OPT['mapping'] == 8448 else 1}\ns_cselect_b32 s{sT}, s{sHG}, s{sRB}\ns_cselect_b32 s{sT2}, s{sRB}, s{sHG}")
        few, many = sT, sT2
    a(f"s_lshl_b32 s{dst}, s{few}, 1\ns_add_u32 s{dst}, s{dst}, s{many}\ns_lshl_b32 s{dst}, s{dst}, 1")
    if not OPT.get("worot", 1):
        a(f"s_mov_b32 s{dst}, 0")

def wo_chunk(left, fadd):
    if left:
        a(f"s_mul_i32 s{sK}, s{sV}, {288*1152}\ns_add_u32 s{sK}, s{sK}, {64*1152}")
        steps = (4, 140, 4); v8, v2 = VWO + 1, VWO + 3
    else:
        a(f"""
s_add_u32 s{sT}, s56, {fadd}
s_bfe_u32 s{sK}, s{sT}, 0x30001
s_mul_i32 s{sK}, s{sK}, {72*1152}
s_bitcmp1_b32 s{sT}, 0
s_cselect_b32 s{sT}, {32*1152}, 0
s_add_u32 s{sK}, s{sK}, s{sT}
""")
        steps = (16, -8, 16); v8, v2 = VWO, VWO + 2
    a(f"s_mov_b32 s{sT2}, s{sK}")
    for j in range(4):
        dma(v8, SWO, f"s{sK}")
        a("s_addk_i32 m0, 1024")
        a(f"s_add_u32 s{sK}, s{sK}, {steps[j]*1152 & 0xffffffff}" if j < 3 else "s_nop 0")
    dma(v2, SWO, f"s{sT2}")
    return 5

def wo_issue(q):
    packed = sum((WO[2 + 4*q + w] // 1024) << (8 * w) for w in range(4))
    a(f"s_lshr_b32 s{sT}, {packed}, s57\ns_and_b32 s{sT}, s{sT}, 0xff\ns_lshl_b32 m0, s{sT}, 10")
    return wo_chunk(False, 4*q)

def wo_pair(g):
    a(f"s_mul_i32 s{sT}, s{sV}, {WO[2*g+1] - WO[2*g] & 0xffffffff}\ns_add_u32 m0, s{sT}, {WO[2*g]}")
    return wo_chunk(g == 0, 2*g - 2)

def sync_setup():
    a(f"""
s_lshl_b32 s{sT}, s{sBR}, 4
s_add_u32 s{sT}, s{sT}, s{sRB}
s_lshl_b32 s{sT2}, s{sT}, 8
s_add_u32 s{sT2}, s{sT2}, {WS_CNT}
s_add_u32 s{sOC}, s{SWS}, s{sT2}
s_addc_u32 s{sOC+1}, s{SWS+1}, 0
s_lshl_b32 s{sT}, s{sT}, 2
s_add_u32 s98, s{sT}, 32
s_lshl_b32 s99, s{sHG}, 2
s_mul_i32 s{sT2}, s{sHG}, {KV_ST}
s_add_u32 s{sT2}, s{sT2}, {WS_KV + 6144}
s_add_u32 s{sKC}, s{SWS}, s{sT2}
s_addc_u32 s{sKC+1}, s{SWS+1}, 0
""")

def loader_tail(tag, late=()):
    if tag[1] == "X":
        flag_check(sFO, 98, f"L_{tag}_fo")
    a("s_barrier")
    stamp()
    for g in late:
        wo_pair(g)
    if tag[1] == "X":
        a(f"s_cmp_eq_u32 s{sWAVE}, 6\ns_cbranch_scc0 L_{tag}_oc_x")
        arrive_wait(sOC, 8, f"L_{tag}_oc")
    a("s_waitcnt vmcnt(0)")
    stamp()
    a("s_barrier")
    stamps_out()
    a("s_endpgm")

def a_loader(kind):
    a(f"L_A{kind}1:")
    m = M0(42)
    issue = (lambda c: w_issue("A", c, m)) if kind == "W" else (lambda c: x_issue("A", c, m))
    pre = 1 if OPT.get("early") and kind == "W" else 2
    cnt = {c: issue(c) for c in range(1, pre + 1)}
    stamp()
    x_lane(8, 9, 1)
    rd_lanes(36, 12, 1, 2)
    a(f"""
v_add_u32 v8, {A_X0 + 8*2048}, v8
v_add_u32 v9, {A_X0 + 8*2048}, v9
s_lshl_b32 s{sT}, s{sV}, 6
v_xor_b32 v10, s{sT}, v36
v_add_u32 v10, {4096 if kind == 'W' else 8192}, v10
v_xor_b32 v11, 32, v10
v_add_u32 v12, {12288 if kind == 'W' else 13312}, v12
v_add_u32 v13, {4*A_WSLOT}, v10
v_add_u32 v14, {4*A_WSLOT}, v11
v_add_u32 v15, {4*A_WSLOT}, v12
s_lshl_b32 s{sT}, s{sV}, 10
s_add_u32 s{sT}, s{sT}, {A_EX + (0 if kind == 'W' else 2560)}
v_lshlrev_b32 v7, 3, v0
v_add_u32 v6, s{sT}, v7
v_add_u32 v7, {A_EX + (2048 if kind == 'W' else 4608)}, v7
""")
    stamp()
    a(f"s_waitcnt vmcnt({sum(cnt.values())})\ns_barrier")
    stamp()
    extra = 0
    for i in range(-1, 17):
        ks = i + 1
        slot = ks % 5
        off = 0 if slot == 4 else slot * A_WSLOT
        ad = (13, 14, 15) if slot == 4 else (10, 11, 12)
        a(f"ds_read_b128 v[40:43], v{8 + ks % 2} offset:{(ks//2 % 3)*A_XSLOT}")
        for j in range(3 if OPT.get("nohalo", 0) < 2 else 0):
            a(tr(44 + 4*j, ad[j], off)); a(tr(46 + 4*j, ad[j], off + (1024 if j < 2 else 256)))
        if i == -1 and pre == 1:
            cnt[2] = issue(2)
        if i + 4 <= 17:
            cnt[i+4] = issue(i + 4)
        a("s_waitcnt lgkmcnt(0)")
        for j in range(3 if not OPT.get("nohalo") else 0):
            c = 60 + 4*j if ks else "0"
            a(mf(60 + 4*j, 44 + 4*j, 40, c) if kind == "W" else mf(60 + 4*j, 40, 44 + 4*j, c))
        if i == 1:
            srds_rest(); sync_setup()
        if i == 2:
            wo_setup(True)
        if i == 14 and kind == "W":
            extra += wo_pair(0)
        if i == 15:
            extra += wo_issue(0)
        if i + 1 <= 16:
            left = sum(cnt.get(c, 0) for c in range(i + 3, min(i + 4, 17) + 1)) + extra
            a(f"s_waitcnt vmcnt({left})\ns_barrier")
            if OPT.get("fine") and kind == "W" and i % 2 == 1 and 0 < i < 14:
                stamp()
    for j in range(3):
        a(cv(44 + 2*j, 60 + 4*j)); a(cv(45 + 2*j, 62 + 4*j))
    if kind == "W":
        a("v_mov_b32 v50, 0\nv_mov_b32 v51, 0")
        a("v_permlane32_swap_b32 v48, v50\nv_permlane32_swap_b32 v49, v51")
    a("ds_write_b64 v6, v[44:45]\nds_write_b64 v6, v[46:47] offset:512")
    a(f"ds_write_b64 v7, {'v[50:51]' if kind == 'W' else 'v[48:49]'}")
    stamp()
    a("s_waitcnt lgkmcnt(0)\ns_barrier")
    if kind == "X":
        flag_load(sFO, 98)
    wo_issue(1); wo_issue(2); wo_issue(3)
    stamp()
    loader_tail("A" + kind)

def o_store_addr(vfull, vleft, tmp, left_lo):
    a(f"""
s_lshl_b32 s{sT}, s{sRB}, 3
s_lshl_b32 s{sT2}, s{sWAVE}, 1
s_add_u32 s{sT}, s{sT}, s{sT2}
s_mul_i32 s{sT}, s{sT}, 18432
s_mul_i32 s{sT2}, s{sBR}, {O_BR}
s_add_u32 s58, s{sT}, s{sT2}
s_lshl_b32 s{sT2}, s{sHG}, 11
s_add_u32 s{sT2}, s{sT2}, s58
v_lshl_add_u32 v{vfull}, v0, 4, s{sT2}
s_lshr_b32 s{sT2}, s{sHG}, 2
s_add_u32 s{sT2}, s{sT2}, 16
s_lshl_b32 s{sT2}, s{sT2}, 10
s_add_u32 s{sT}, s58, s{sT2}
s_and_b32 s{sT2}, s{sHG}, 3
s_lshl_b32 s{sT2}, s{sT2}, 8
s_add_u32 s{sT}, s{sT}, s{sT2}
v_and_b32 v{vleft}, 15, v0
v_lshlrev_b32 v{vleft}, 4, v{vleft}
v_bfe_u32 v{tmp}, v0, 4, 1
v_lshl_add_u32 v{vleft}, v{tmp}, 3, v{vleft}
v_add_u32 v{vleft}, s{sT}, v{vleft}
v_mov_b32 v{tmp}, {OOB}
""")
    x, y = (tmp, vleft) if left_lo else (vleft, tmp)
    a(f"v_cndmask_b32 v{vleft}, v{x}, v{y}, s[{sG01}:{sG01+1}]")

def o_store(of, vfull, vleft, rt):
    so = f"s{sK}" if rt else "0"
    if rt:
        a(f"s_movk_i32 s{sK}, 18432")
    a(f"buffer_store_dwordx4 {vr(of,4)}, v{vfull}, s[{SWS}:{SWS+3}], {so} offen sc1")
    a(f"buffer_store_dwordx4 {vr(of+4,4)}, v{vfull}, s[{SWS}:{SWS+3}], {so} offen offset:1024 sc1")
    a(f"buffer_store_dwordx2 {vr(of+8,2)}, v{vleft}, s[{SWS}:{SWS+3}], {so} offen sc1")

def gap_touch(tag, parts):
    if not OPT.get("touch"):
        return
    nt = " nt" if OPT.get("tnt") else ""
    a(f"""
s_cmp_eq_u32 s{sWAVE}, 1
s_cbranch_scc1 L_{tag}_tw
s_cmp_eq_u32 s{sWAVE}, 2
s_cbranch_scc0 L_{tag}_tx
s_and_b32 s{sT}, s{sRB}, 7
s_cmp_eq_u32 s{sT}, 0
s_cselect_b32 s{sT}, 9, s{sT}
s_sub_u32 s{sT}, s{sT}, 1
s_lshl_b32 s{sT}, s{sT}, 7
s_and_b32 s{sT2}, s{sHG}, 3
s_lshl_b32 s{sT2}, s{sT2}, 5
s_lshl_b32 s{sT3}, s{sRB}, 7
s_add_u32 s{sT2}, s{sT2}, s{sT3}
v_and_b32 v1, 31, v0
v_add_u32 v1, s{sT2}, v1
v_mul_u32_u24 v1, 1152, v1
""")
    srd(SX, 36, 2359296)
    a(f"""
buffer_load_dword v26, v1, s[{SX}:{SX+3}], s{sT} offen{nt}
s_branch L_{tag}_tx
L_{tag}_tw:
s_and_b32 s{sT}, s{sHG}, 3
s_lshl_b32 s{sT}, s{sT}, 1
s_cmp_eq_u32 s{sT}, 0
s_cselect_b32 s{sT}, 9, s{sT}
s_sub_u32 s{sT}, s{sT}, 1
s_lshl_b32 s{sT}, s{sT}, 3
s_and_b32 s{sT2}, s{sRB}, 7
s_add_u32 s{sT}, s{sT}, s{sT2}
s_mul_i32 s{sT}, s{sT}, {8*3456}
s_add_u32 s{sT}, s{sT}, s{sM}
v_lshrrev_b32 v1, 3, v0
v_mul_u32_u24 v1, 3456, v1
v_bfe_u32 v2, v0, 1, 2
v_min_u32 v2, {parts-1}, v2
v_mul_u32_u24 v2, 1152, v2
v_and_b32 v3, 1, v0
v_mul_u32_u24 v3, 140, v3
v_add3_u32 v1, v1, v2, v3
""")
    srd(SW, 38, 1990656)
    a(f"buffer_load_dword v26, v1, s[{SW}:{SW+3}], s{sT} offen offset:{1152*(3-parts)}{nt}\nL_{tag}_tx:")

def init_stores(tag, with_kv):
    if OPT.get("xcc"):
        a(f"s_getreg_b32 s{sT}, hwreg(HW_REG_XCC_ID, 0, 4)\nv_mov_b32 v2, s{sT}\ns_lshl_b32 s{sT}, s2, 2\ns_add_u32 s{sT}, s{sT}, 0x6f0000\nv_mov_b32 v1, s{sT}\nbuffer_store_dword v2, v1, s[{SWS}:{SWS+3}], 0 offen sc1")
    a(f"""
s_or_b32 s{sT}, s{sHG}, s{sWAVE}
s_cmp_eq_u32 s{sT}, 0
s_cselect_b32 s55, 1, 0
v_mov_b32 v20, 0
v_mov_b32 v21, 0
v_mov_b32 v22, 0
v_mov_b32 v23, 0
s_cbranch_scc0 L_{tag}_i1
s_lshl_b32 s{sT}, s{sBR}, 4
s_add_u32 s{sT}, s{sT}, s{sRB}
s_lshl_b32 s{sT}, s{sT}, 8
s_add_u32 s{sT}, s{sT}, {WS_CNT}
v_mov_b32 v24, s{sT}
buffer_store_dword v20, v24, s[{SWS}:{SWS+3}], 0 offen sc1
L_{tag}_i1:
""")
    if with_kv:
        a(f"""
s_or_b32 s{sT}, s{sRB}, s{sWAVE}
s_cmp_eq_u32 s{sT}, 0
s_cbranch_scc0 L_{tag}_i2
s_or_b32 s55, s55, 2
s_mul_i32 s{sT}, s{sHG}, {KV_ST}
s_add_u32 s{sT}, s{sT}, {WS_KV}
v_lshl_add_u32 v24, v0, 4, s{sT}
""")
        for j in range(7):
            a(f"s_movk_i32 s{sK}, {1024*j}\nbuffer_store_dwordx4 v[20:23], v24, s[{SWS}:{SWS+3}], s{sK} offen sc1")
        a(f"L_{tag}_i2:")

def init_flags(tag):
    a(f"""
s_waitcnt vmcnt(0)
s_cmp_eq_u32 s55, 0
s_cbranch_scc1 L_{tag}_f2
v_mov_b32 v20, 1
s_bitcmp1_b32 s55, 0
s_cbranch_scc0 L_{tag}_f1
s_lshl_b32 s{sT}, s{sBR}, 4
s_add_u32 s{sT}, s{sT}, s{sRB}
s_lshl_b32 s{sT}, s{sT}, 2
s_add_u32 s{sT}, s{sT}, 32
v_mov_b32 v24, s{sT}
buffer_store_dword v20, v24, s[{SDBG}:{SDBG+3}], 0 offen sc1
L_{tag}_f1:
s_bitcmp1_b32 s55, 1
s_cbranch_scc0 L_{tag}_f2
s_lshl_b32 s{sT}, s{sHG}, 2
v_mov_b32 v25, s{sT}
buffer_store_dword v20, v25, s[{SDBG}:{SDBG+3}], 0 offen sc1
L_{tag}_f2:
""")

def kstep(tiles, nxt_reads, first, waits):
    pend = list(first)
    for t, (m0_, m1_) in enumerate(tiles):
        if t in waits:
            a(waits[t])
        a(m0_)
        for x in pend: a(x)
        a(m1_)
        pend = []
        if nxt_reads:
            a(nxt_reads[t][0]); pend = [nxt_reads[t][1]]
    for x in pend: a(x)

def a_consumer():
    acc = lambda t, rt: 144 + (t * 2 + rt) * 4
    wf = lambda t: 88 + 4 * t
    xf = lambda buf, rt: 72 + buf * 8 + rt * 4
    R8, R2, R8b, R2b, aX = 1, 5, 6, 10, 11
    vOF, vOL, vEXW, vEXR = 13, 14, 15, 16
    MC, MP, MPF, PM = 56, 60, 64, 68
    a("L_AC:\ns_waitcnt lgkmcnt(0)")
    gap_touch("AC", 3)
    srds_rest()
    init_stores("AC", False)
    rd_lanes(R8, R2, 17, 18); x_lane(aX, aX + 1, 17)
    for j in range(5):
        a(f"v_add_u32 v{R8b+j}, {4*A_WSLOT}, v{R8+j}")
    a(f"""
s_lshl_b32 s{sT}, s{sWAVE}, 12
s_add_u32 s{sT}, s{sT}, {A_X0}
v_add_u32 v{aX}, s{sT}, v{aX}
v_add_u32 v{aX+1}, s{sT}, v{aX+1}
s_lshr_b32 s{sT}, s{sWAVE}, 1
s_lshl_b32 s{sT}, s{sT}, 3
v_and_b32 v17, 15, v0
v_xor_b32 v17, s{sT}, v17
v_lshrrev_b32 v18, 4, v0
v_lshlrev_b32 v18, 2, v18
v_xor_b32 v18, s{sT}, v18
v_sub_u32 v17, v17, v18
v_mov_b32 v19, {NEG}
s_and_b32 s{sT}, s{sWAVE}, 1
s_or_b32 s{sT}, s{sT}, s{sRB}
s_cmp_eq_u32 s{sT}, 0
s_cselect_b64 s[42:43], -1, 0
""")
    for r in range(4):
        a(f"""
v_subrev_u32 v18, {r}, v17
v_cmp_gt_u32 vcc, 8, v18
v_cndmask_b32 v{MC+r}, v19, 0, vcc
v_cmp_gt_i32 vcc, -8, v18
v_cndmask_b32 v{MP+r}, v19, 0, vcc
v_cndmask_b32 v{MPF+r}, v{MP+r}, v19, s[42:43]
v_cmp_lt_i32 vcc, -1, v18
v_mov_b32 v20, {'0xffff' if r % 2 == 0 else '0xffff0000'}
v_cndmask_b32 v20, 0, v20, vcc
""")
        a(f"v_mov_b32 v{PM + r//2}, v20" if r % 2 == 0 else f"v_or_b32 v{PM + r//2}, v{PM + r//2}, v20")
    o_store_addr(vOF, vOL, 17, True)
    a(f"""
s_lshr_b32 s{sT}, s{sWAVE}, 1
s_add_u32 s{sT}, s{sT}, 1
s_mul_i32 s{sT}, s{sT}, 5120
s_bitcmp1_b32 s{sWAVE}, 0
s_cselect_b32 s{sT3}, s{sT}, 0
v_lshlrev_b32 v17, 3, v0
v_add_u32 v17, {A_EX}, v17
v_add_u32 v{vEXW}, s{sT}, v17
v_add_u32 v{vEXR}, s{sT3}, v17
""")

    def wreads(ks, t):
        slot = ks % 5
        o = 0 if slot == 4 else slot * A_WSLOT
        r8, r2 = (R8b, R2b) if slot == 4 else (R8, R2)
        if t == 4 or t == 13:
            o += 12288 if t == 4 else 13312
            return [tr(wf(t), r2, o), tr(wf(t) + 2, r2, o + 256)]
        s, j = (0, t) if t < 4 else (1, t - 5) if t < 9 else (2, t - 9)
        return [tr(wf(t), r8 + j, o + 4096*s), tr(wf(t) + 2, r8 + j, o + 4096*s + 1024)]
    xread = lambda ks, rt: f"ds_read_b128 {vr(xf(ks % 2, rt),4)}, v{aX + ks % 2} offset:{(ks//2 % 3)*A_XSLOT + rt*2048}"

    stamp()
    a("s_barrier")
    stamp()
    a(xread(0, 0)); a(xread(0, 1))
    for t in range(14):
        for x in wreads(0, t): a(x)
    for ks in range(18):
        if ks < 17:
            a("s_barrier")
        if OPT.get("fine") == 2 and ks in (2, 5, 8, 11, 14):
            stamp()
        if OPT.get("dummy") == ks:
            a("s_waitcnt lgkmcnt(0)\ns_memtime s[100:101]\ns_memrealtime s[40:41]\ns_waitcnt lgkmcnt(0)")
            for n in range(128):
                kind = OPT.get("dkind", 0)
                if kind == 0:
                    a(mf(28 + 4 * (n % 4), 88, 72, "0"))
                elif kind == 1:
                    a(f"v_add3_u32 v{28 + n % 8}, v0, v0, v0\nv_add3_u32 v{36 + n % 8}, v0, v0, v0")
                else:
                    a(f"ds_read_b128 v[{28 + 4 * (n % 4)}:{31 + 4 * (n % 4)}], v{aX} offset:0")
            a("s_waitcnt lgkmcnt(0)")
            stamp()
            a("s_waitcnt lgkmcnt(0)")
            if not OPT.get("cyc"):
                a(f"s_sub_u32 s40, s{sST + 2*(nstamp[0]-1)}, s40\ns_add_u32 s{sST + 2*(nstamp[0]-1)}, s{sST}, s40")
        if ks == 3:
            init_flags("AC")
        tiles = []
        for t in range(14):
            c = lambda rt: acc(t, rt) if ks else "0"
            tiles.append([mf(acc(t, rt), wf(t), xf(ks % 2, rt), c(rt)) if t < 9 else mf(acc(t, rt), xf(ks % 2, rt), wf(t), c(rt)) for rt in range(2)])
        if ks < 17:
            nxt = [wreads(ks + 1, t) for t in range(14)]
            nxt[1] = [nxt[1][0], nxt[1][1] + "\n" + xread(ks + 1, 1)]
            kstep(tiles, nxt, [xread(ks + 1, 0)], {0: "s_waitcnt lgkmcnt(14)", 7: "s_waitcnt lgkmcnt(15)", 12: "s_waitcnt lgkmcnt(15)"})
        else:
            kstep(tiles, None, [], {0: "s_waitcnt lgkmcnt(14)", 7: "s_waitcnt lgkmcnt(0)"})
    stamp()
    KP = lambda j: 18 + 10 * j
    QT = lambda rt, h: 88 + 16 * rt + 4 * h
    VP = lambda t, j: 120 + 6 * t + 2 * j if t < 4 else 48 + 2 * j
    ONE = 72
    def pack_kv(rt):
        o = []
        for q in range(2):
            o += [cv(QT(rt, 3) + 2 + q, acc(4, rt) + 2*q), f"v_mov_b32 v{KP(1+rt) + 8 + q}, 0"]
        for tau in range(4):
            o += [cv(KP(1+rt) + 2*tau + q, acc(5+tau, rt) + 2*q) for q in range(2)]
        o += [f"v_permlane32_swap_b32 v{QT(rt,3) + 2 + q}, v{KP(1+rt) + 8 + q}" for q in range(2)]
        for t in range(5):
            o += [cv(VP(t, 1+rt) + q, acc(9+t, rt) + 2*q) for q in range(2)]
        return o
    def pack_q(rt):
        o = []
        for t in range(4):
            for q in range(2):
                d = QT(rt, t) + q
                o.append(cv(d, acc(t, rt) + 2*q))
                if (t, q) in SPLITS:
                    m = SPLITS[(t, q)]; lo = QT(rt, t-1) + 2 + q
                    o += [f"v_cndmask_b32 v{lo}, 0, v{d}, s[{m}:{m+1}]", f"v_xor_b32 v{d}, v{d}, v{lo}"]
        return o + [f"v_mov_b32 v{QT(rt,0) + 3}, 0"]
    weave([], pack_kv(1))
    a(f"s_bitcmp1_b32 s{sWAVE}, 0\ns_cbranch_scc1 L_AC_nodump")
    for j in range(5):
        a(f"ds_write_b64 v{vEXW}, {vr(KP(2) + 2*j, 2)} offset:{512*j}")
        a(f"ds_write_b64 v{vEXW}, {vr(VP(j, 2), 2)} offset:{512*(5+j)}")
    a("L_AC_nodump:")
    weave([], pack_kv(0) + pack_q(1))
    a("s_waitcnt lgkmcnt(0)\ns_barrier")
    for j in range(5):
        a(f"ds_read_b64 {vr(KP(0) + 2*j, 2)}, v{vEXR} offset:{512*j}")
        a(f"ds_read_b64 {vr(VP(j, 0), 2)}, v{vEXR} offset:{512*(5+j)}")
    SC = lambda rt, h: (224 if rt else 184) + 8 * h
    MX = lambda rt: [76 + 4 * rt + h for h in range(4)]
    PT = lambda rt, h: 144 + 16 * rt + 4 * h
    def qk(rt):
        o = []
        for h in range(4):
            o += [mf(SC(rt, h), KP(1+rt) + 2*h, QT(rt, h), MC), mf(SC(rt, h) + 4, KP(rt) + 2*h, QT(rt, h), MP if rt else MPF)]
        return o
    def rowmax(rt):
        o = []
        for h in range(4):
            s = SC(rt, h); m = MX(rt)[h]
            o += [f"v_max_f32 v{s+r}, v{s+r}, v{s+4+r}" for r in range(4)]
            o += [f"v_max3_f32 v{m}, v{s}, v{s+1}, v{s+2}", f"v_max_f32 v{m}, v{m}, v{s+3}"]
        return o
    def xmax(rt):
        m = MX(rt)
        return [f"v_permlane32_swap_b32 v{m[0]}, v{m[1]}", f"v_permlane32_swap_b32 v{m[2]}, v{m[3]}",
                f"v_max_f32 v{m[0]}, v{m[0]}, v{m[1]}", f"v_max_f32 v{m[2]}, v{m[2]}, v{m[3]}",
                f"v_permlane16_swap_b32 v{m[0]}, v{m[2]}", f"v_max_f32 v{m[0]}, v{m[0]}, v{m[2]}",
                f"v_mul_f32 v{m[0]}, s{sT2}, v{m[0]}", f"v_mov_b32 v{m[2]}, v{m[0]}",
                f"v_permlane16_swap_b32 v{m[0]}, v{m[2]}", f"v_mov_b32 v{m[1]}, v{m[0]}", f"v_mov_b32 v{m[3]}, v{m[2]}",
                f"v_permlane32_swap_b32 v{m[0]}, v{m[1]}", f"v_permlane32_swap_b32 v{m[2]}, v{m[3]}"]
    def probs(rt):
        o = []
        for h in range(4):
            s = SC(rt, h); p = PT(rt, h)
            o += [f"v_fma_f32 v{s+r}, v{s+r}, s{sT}, v{MX(rt)[h]}" for r in range(4)]
            o += [f"v_exp_f32 v{s+r}, v{s+r}" for r in range(4)]
            if h:
                o += split(rt, h - 1)
        return o + split(rt, 3)
    def split(rt, h):
        s = SC(rt, h); p = PT(rt, h); o = []
        for q in range(2):
            o += [cv(p + q, s + 2*q), f"v_and_b32 v{p+2+q}, v{p+q}, v{PM+q}", f"v_xor_b32 v{p+q}, v{p+q}, v{p+2+q}"]
        return o
    OB = lambda rt, t: (224 if rt else 184) + 4 * t
    OA = lambda rt, t: (224 if rt else 184) + 12 + 4 * t
    SM = lambda rt, h: 88 + 16 * rt + 4 * h
    OF = lambda rt: 18 + 10 * rt
    def pv(rt):
        o = [mf(SM(rt, h), ONE, PT(rt, h), "0") for h in range(4)]
        for t in range(5):
            if t < 4: o.append(mf(OB(rt, t), VP(t, rt), PT(rt, t), "0"))
            if t > 0: o.append(mf(OA(rt, t), VP(t, rt), PT(rt, t-1), "0"))
        return o
    def finish(rt):
        o = [f"v_rcp_f32 v{SM(rt,h)}, v{SM(rt,h)}" for h in range(4)]
        for t in range(5):
            for q in range(2):
                d = OF(rt) + 2*t + q
                srcs = []
                if t < 4: srcs.append((OB(rt, t) + 2*q, SM(rt, t), d))
                if t == 4: srcs.append((OA(rt, t) + 2*q, SM(rt, 3), d))
                if (t, q) in SPLITS: srcs.append((OA(rt, t) + 2*q, SM(rt, t-1), 17))
                for x, inv, dd in srcs:
                    o += [f"v_mul_f32 v{x}, v{x}, v{inv}", f"v_mul_f32 v{x+1}, v{x+1}, v{inv}", cv(dd, x)]
                if (t, q) in SPLITS:
                    m = SPLITS[(t, q)]
                    o.append(f"v_cndmask_b32 v{d}, v{d}, v17, s[{m}:{m+1}]")
        return o
    a(f"s_mov_b32 s{sT}, {f32(CSC)}\ns_mov_b32 s{sT2}, {f32(-CSC)}")
    weave(qk(1), pack_q(0) + [f"v_mov_b32 v{ONE+j}, 0x3f803f80" for j in range(4)])
    a("s_waitcnt lgkmcnt(0)")
    weave(qk(0), rowmax(1))
    x1, x0 = xmax(1), xmax(0)
    r0 = rowmax(0)
    for i, x in enumerate(x1):
        a(x)
        for y in r0[2*i:2*i+2]: a(y)
    p1 = probs(1)
    for i, x in enumerate(x0):
        a(x)
        for y in p1[2*i:2*i+2]: a(y)
    weave([], p1[2*len(x0):])
    weave(pv(1), probs(0))
    weave(pv(0), finish(1))
    o_store(OF(1), vOF, vOL, 1)
    weave([], finish(0))
    o_store(OF(0), vOF, vOL, 0)
    stamp()
    a("s_branch L_P2")

def phi(r, n, t):
    o = [f"v_pk_fma_f32 {vr(t+j,2)}, {vr(r+j,2)}, s[56:57], v[14:15]" for j in range(0, n, 2)]
    for j in range(n):
        o += [f"v_exp_f32 v{t+j}, v{t+j} clamp", f"v_max_f32 v{r+j}, s{sT2}, v{r+j}"]
    return o + [f"v_pk_add_f32 {vr(r+j,2)}, {vr(r+j,2)}, {vr(t+j,2)}" for j in range(0, n, 2)]

def b_consumer():
    acc = lambda t, rt: 184 + (t * 2 + rt) * 4
    wf = lambda t: 148 + 4 * t
    xf = lambda ks, rt: 52 + ks * 8 + rt * 4 if ks < 12 else 36 + (ks % 2) * 8 + rt * 4
    R8, R2, aX = 1, 5, 6
    vOF, vOL, vEX = 8, 9, 10
    CK, CS = 28, 32
    a("L_BC:\ns_waitcnt lgkmcnt(0)")
    gap_touch("BC", 2)
    srds_rest()
    init_stores("BC", True)
    rd_lanes(R8, R2, 17, 18); x_lane(aX, aX + 1, 17)
    a(f"""
s_lshl_b32 s{sT}, s{sWAVE}, 12
s_add_u32 s{sT}, s{sT}, {B_X0}
v_add_u32 v{aX}, s{sT}, v{aX}
v_add_u32 v{aX+1}, s{sT}, v{aX+1}
v_and_b32 v17, 15, v0
v_cmp_gt_u32 vcc, 8, v17
v_mov_b32 v18, {EPS}
s_mov_b64 s[42:43], vcc
s_mul_i32 s{sT}, s{sWAVE}, 10240
s_add_u32 s{sT}, s{sT}, {B_EX}
v_lshl_add_u32 v{vEX}, v0, 4, s{sT}
v_mov_b32 v14, {f32(-1e-6*LOG2E)}
v_mov_b32 v15, v14
s_mov_b32 s56, {f32(LOG2E)}
s_mov_b32 s57, s56
""")
    for r in range(4):
        a(f"v_mov_b32 v{CK+r}, v18\nv_cndmask_b32 v{CS+r}, 0, v18, vcc")
    o_store_addr(vOF, vOL, 17, False)

    def wreads(ks, t):
        o = (ks % 5) * B_KVSLOT
        if t == 4:
            return [tr(wf(t), R2, o + 8192), tr(wf(t) + 2, R2, o + 8192 + 256)]
        s, j = (0, t) if t < 4 else (1, t - 5)
        return [tr(wf(t), R8 + j, o + 4096*s), tr(wf(t) + 2, R8 + j, o + 4096*s + 1024)]
    xread = lambda ks, rt: f"ds_read_b128 {vr(xf(ks, rt),4)}, v{aX + ks % 2} offset:{(ks//2 % 3)*B_XSLOT + rt*2048}"

    stamp()
    a("s_barrier")
    stamp()
    a(xread(0, 0)); a(xread(0, 1))
    for t in range(9):
        for x in wreads(0, t): a(x)
    for ks in range(18):
        if ks < 17:
            a("s_barrier")
        if ks == 3:
            init_flags("BC")
        tiles = [[mf(acc(t, rt), xf(ks, rt), wf(t), acc(t, rt) if ks else (CK if t < 4 else CS if t == 4 else "0")) for rt in range(2)] for t in range(9)]
        if ks < 17:
            nxt = [wreads(ks + 1, t) for t in range(9)]
            nxt[1] = [nxt[1][0], nxt[1][1] + "\n" + xread(ks + 1, 1)]
            kstep(tiles, nxt, [xread(ks + 1, 0)], {0: "s_waitcnt lgkmcnt(12)", 3: "s_waitcnt lgkmcnt(13)", 6: "s_waitcnt lgkmcnt(13)", 8: "s_waitcnt lgkmcnt(11)"})
        else:
            kstep(tiles, None, [], {0: "s_waitcnt lgkmcnt(12)", 3: "s_waitcnt lgkmcnt(0)\ns_barrier"})
    stamp()
    a(f"s_mov_b32 s{sT2}, {EPS}\nv_mov_b32 v16, 0x3f803f80")
    wr = lambda reg, slot: f"ds_write_b128 v{vEX}, {vr(reg,4)} offset:{1024*slot}"
    pk = lambda d, s: [cv(d + j, s + 2*j) for j in range(4)]
    weave([], pk(156, acc(4, 0)) + [f"v_cndmask_b32 v{156+j}, v{156+j}, v16, s[42:43]" for j in range(4)] + [wr(156, 9)])
    xq = lambda ks, rt: 168 + (ks - 12) * 8 + rt * 4 if ks in (12, 13) else acc(2 * (ks - 14) + rt, 1) if ks in (14, 15) else xf(ks, rt)
    reread = lambda ks, rt: f"ds_read_b128 {vr(xq(ks, rt),4)}, v{aX + ks % 2} offset:{(ks//2 % 3)*B_XSLOT + rt*2048}"
    weave([], [reread(ks, rt) for ks in (12, 13) for rt in range(2)])
    for tau in range(5):
        o = phi(acc(tau, 0), 8, 148)
        if tau < 4:
            o = pk(acc(5+tau, 0), acc(5+tau, 0)) + o[:8] + [wr(acc(5+tau, 0), 5 + tau)] + o[8:]
        weave([], o + pk(acc(tau, 0), acc(tau, 0)) + [wr(acc(tau, 0), tau)])
        if tau < 4:
            a(reread(14 + tau // 2, tau % 2))
    for j in range(5):
        a(f"v_add_u32 v{R8+j}, {B_WQ0}, v{R8+j}")
    a("s_waitcnt lgkmcnt(0)\ns_barrier")
    stamp()
    QA = lambda t, rt: 216 + (t * 2 + rt) * 4
    qf = lambda t: 148 + 4 * t
    qbase = lambda p: B_WQ0 if p < 4 else 0 if p < 7 else 15360
    def qreads(p, t):
        o = wq_slot(p) - qbase(p)
        if t == 4:
            return [tr(qf(t), R2, o + 4096), tr(qf(t) + 2, R2, o + 4096 + 256)]
        return [tr(qf(t), R8 + t, o), tr(qf(t) + 2, R8 + t, o + 1024)]
    for t in range(5):
        for x in qreads(0, t): a(x)
    for p in range(18):
        ks = QORD[p]
        if p == 7 or (p == 13 and OPT.get('wob', 0)):
            a("s_barrier")
        tiles = [[mf(QA(t, rt), qf(t), xq(ks, rt), QA(t, rt) if p else CK) for rt in range(2)] for t in range(5)]
        if p < 17:
            nxt = [qreads(p + 1, t) for t in range(5)]
            if qbase(p + 1) != qbase(p):
                d = (qbase(p + 1) - qbase(p)) & 0xffffffff
                for t in range(5):
                    nxt[t][0] = f"v_add_u32 v{R8+t}, {d}, v{R8+t}\n" + nxt[t][0]
            kstep(tiles, nxt, [], {t: f"s_waitcnt lgkmcnt({7 if t else 8})" for t in range(5)})
        else:
            kstep(tiles, None, [], {t: f"s_waitcnt lgkmcnt({8 - 2*t})" for t in range(5)})
    stamp()
    PQ = lambda rt: 36 + 10 * rt
    KO = 84
    tup = {0: KO, 1: KO + 4, 2: KO + 12, 3: KO + 20, 4: KO + 28}
    ZO = KO + 32
    weave([], [f"v_mov_b32 v{r}, 0" for r in (tup[1]+4, tup[1]+5, tup[2]+4, tup[2]+5, tup[3]+4, tup[3]+5, ZO+8, ZO+9)])
    a(f"v_lshlrev_b32 v16, 3, v0\nv_add_u32 v16, {B_KVOP}, v16")
    for t in range(5):
        weave([], phi(QA(t, 0), 8, 148) + [cv(PQ(rt) + 2*t + q, QA(t, rt) + 2*q) for rt in range(2) for q in range(2)])
    stamp()
    a("s_barrier")
    stamp()
    tid = lambda tau, taup: {-1: tau - 1, 0: 4 + tau, 1: 9 + tau}[taup - tau]
    rd = lambda d, slot: a(f"ds_read_b64 {vr(d,2)}, v16 offset:{512*slot}")
    for j, d in enumerate((ZO, ZO + 2, ZO + 4, ZO + 6, ZO + 10)):
        rd(d, 13 + j)
    rd(tup[0], tid(0, 0)); rd(tup[0] + 2, tid(1, 0))
    for t in (1, 2, 3):
        rd(tup[t], tid(t-1, t)); rd(tup[t] + 2, tid(t, t)); rd(tup[t] + 6, tid(t+1, t))
    rd(tup[4], tid(3, 4)); rd(tup[4] + 2, tid(4, 4))
    DN = lambda rt: 148 + 4 * rt
    NM = lambda rt, t: 184 + 20 * rt + 4 * t
    OF = lambda rt: 156 + 10 * rt
    a("s_waitcnt lgkmcnt(13)")
    for k, (zo, po) in enumerate(((0, 0), (4, 4), (8, 6))):
        for rt in range(2):
            a(mf(DN(rt), ZO + zo, PQ(rt) + po, DN(rt) if k else CK))
    a("s_waitcnt lgkmcnt(0)")
    def num(rt):
        o = [mf(NM(rt, t), tup[t], PQ(rt) + 2*(t-1), "0") for t in (1, 2, 3)]
        o += [mf(NM(rt, 0), tup[0], PQ(rt), "0"), mf(NM(rt, 4), tup[4], PQ(rt) + 6, "0")]
        return o + [mf(NM(rt, t), tup[t] + 4, PQ(rt) + 2*t, NM(rt, t)) for t in (1, 2, 3)]
    def fin(rt, packed):
        o = []
        for t in (0, 4, 1, 2, 3):
            for q in range(2):
                inv = DN(rt) + min(t, 3)
                if (t, q) in SPLITS:
                    m = SPLITS[(t, q)]
                    o.append(f"v_cndmask_b32 v17, v{DN(rt)+t}, v{DN(rt)+t-1}, s[{m}:{m+1}]")
                    inv = 17
                n = NM(rt, t) + 2*q
                o += [f"v_mul_f32 v{n}, v{n}, v{inv}", f"v_mul_f32 v{n+1}, v{n+1}, v{inv}", cv(OF(rt) + 2*t + q, n)]
        return o
    weave(num(0), [], 0)
    weave(num(1), [f"v_rcp_f32 v{DN(rt)+h}, v{DN(rt)+h}" for rt in range(2) for h in range(4)], 1)
    for rt in range(2):
        weave([], fin(rt, True))
        o_store(OF(rt), vOF, vOL, rt)
    stamp()

def kv_index(wreg, VS, VG, VZ):
    a(f"s_cmp_eq_u32 s{wreg}, 0\ns_cselect_b32 s58, 4, s{wreg}")
    for slot in range(3):
        if slot == 0:
            a(f"s_lshl_b32 s{sT}, s58, 4\ns_sub_u32 s{sT2}, s{sT}, 16\ns_mov_b64 s[46:47], 0")
        elif slot == 1:
            a(f"s_lshl_b32 s{sT}, s{wreg}, 4\ns_mov_b32 s{sT2}, s{sT}")
        else:
            a(f"s_add_u32 s{sT2}, s{sT}, 16\ns_cmp_eq_u32 s{wreg}, 3\ns_cselect_b32 s{sT2}, 56, s{sT2}\ns_cselect_b64 s[46:47], s[44:45], 0")
        kv_tile(VS and VS + 2*slot, VG and VG + 2*slot, False)
    if VZ:
        kv_z(VZ)

def kv_tile(VS, VG, last):
    a(f"v_add_u32 v3, s{sT2}, v1")
    head_of(4, 3)
    a(f"v_mul_u32_u24 v5, 18, v4\nv_sub_u32 v3, v3, v5\nv_cndmask_b32 v4, v4, 7, s[46:47]")
    if last:
        a("v_cmp_eq_u32 vcc, 0, v1\nv_cndmask_b32 v4, v4, 3, vcc\nv_cndmask_b32 v3, v3, 18, vcc")
    for q in range(2):
        a(f"v_add3_u32 v5, v2, s{sT}, {2*q}")
        head_of(6, 5)
        a("v_cmp_eq_u32 vcc, v4, v6\nv_mad_u32_u24 v5, v5, 19, v3\nv_lshlrev_b32 v5, 2, v5")
        if VS:
            a(f"v_add_u32 v6, {B_STG}, v5\nv_cndmask_b32 v{VS+q}, v8, v6, vcc")
        if VG:
            a(f"v_add_u32 v6, s{sM}, v5\nv_cndmask_b32 v{VG+q}, v9, v6, vcc")

def kv_z(VZ):
    a("v_and_b32 v3, 3, v0")
    for q in range(2):
        a(f"v_add3_u32 v5, v2, s{sT}, {2*q}")
        head_of(6, 5)
        a(f"v_cmp_eq_u32 vcc, v3, v6\nv_mul_u32_u24 v5, 76, v5\nv_add3_u32 v5, v5, s{sM}, 64\nv_add_u32 v5, 8, v5\nv_cndmask_b32 v{VZ+q}, v9, v5, vcc")

def b_loader(kind):
    a(f"L_B{kind}1:")
    m = M0(42)
    issue = (lambda c: w_issue("B", c, m)) if kind == "W" else (lambda c: x_issue("B", c, m))
    pre = 1 if OPT.get("early") and kind == "W" else 2
    cnt = {c: issue(c) for c in range(1, pre + 1)}
    stamp()
    mark = len(a.lines)
    VS, VG, vZS, vEA, vE0, vEL, vLA, vGA, vLW = 72, 80, 98, 99, 100, 101, 102, 103, 105
    if kind == "W":
        a(f"v_subrev_u32 v{VD+5}, 1152, v{VD}\nv_subrev_u32 v{VD+6}, 1152, v{VD+1}")
    srds_rest()
    if kind == "W":
        wo_setup(False)
    else:
        sync_setup()
    a(f"""
s_add_u32 s55, s{sV}, 2
s_mul_i32 s{sM}, s{sHG}, {KV_ST}
s_add_u32 s{sM}, s{sM}, {WS_KV}
v_and_b32 v1, 15, v0
v_lshrrev_b32 v2, 4, v0
v_lshlrev_b32 v2, 2, v2
v_cmp_gt_u32 s[44:45], 8, v1
v_lshlrev_b32 v8, 2, v0
v_add_u32 v8, {B_DUMP}, v8
v_mov_b32 v9, {OOB}
""")
    own = sV if kind == "X" else 55
    if kind == "X":
        kv_index(55, None, VG, VG + 6)
        a(f"s_movk_i32 s{sT}, 64")
        kv_z(10)
    kv_index(own, VS, VG + 8 if kind == "X" else None, VG + 14 if kind == "X" else None)
    a(f"""
v_add_u32 v5, s{sT}, v0
v_mul_u32_u24 v5, 76, v5
v_add_u32 v5, {B_STG + 72}, v5
v_cndmask_b32 v{vZS}, v8, v5, s[{sG0}:{sG0+1}]
v_lshlrev_b32 v{vEL}, 4, v0
v_add_u32 v{vEL}, {B_EX}, v{vEL}
s_lshl_b32 s{sT}, s{own}, 10
v_add_u32 v{vEA}, s{sT}, v{vEL}
s_lshl_b32 s{sT}, s58, 10
v_add_u32 v{vE0}, s{sT}, v{vEL}
""")
    if kind == "X":
        a(f"s_movk_i32 s{sT}, 64\ns_movk_i32 s{sT2}, 56\ns_mov_b64 s[46:47], s[44:45]")
        kv_tile(VS + 6, VG + 16, True)
        a(f"s_cmp_eq_u32 s{sV}, 0\ns_cselect_b64 s[46:47], -1, 0")
        for q in range(2):
            a(f"v_cndmask_b32 v{VS+6+q}, v8, v{VS+6+q}, s[46:47]\nv_cndmask_b32 v{VG+16+q}, v{10+q}, v{VG+16+q}, s[46:47]")
        a(f"""
v_lshlrev_b32 v5, 3, v0
v_add_u32 v5, {B_KVOP}, v5
s_lshl_b32 s{sT2}, s58, 9
s_sub_u32 s{sT2}, s{sT2}, 512
v_add_u32 v{vLW+2}, s{sT2}, v5
s_lshl_b32 s{sT2}, s{sV}, 9
v_add_u32 v{vLW+1}, s{sT2}, v5
v_add_u32 v{vLW}, 1024, v{vLW+1}
s_mul_i32 s{sT2}, s{sV}, {9*512}
v_add_u32 v{vLW+3}, s{sT2}, v5
s_mul_i32 s{sT}, s{sV}, 2816
v_lshl_add_u32 v{vLA}, v0, 2, s{sT}
v_add_u32 v{vGA}, s{sM}, v{vLA}
v_cmp_gt_u32 vcc, {5472 - 2560}, v{vLA}
v_cndmask_b32 v{vGA+1}, v9, v{vGA}, vcc
v_add_u32 v{vLA}, {B_STG}, v{vLA}
v_mov_b32 v4, 0
""")
    a(f"v_mov_b32 v10, {B_LCNT}\nv_mov_b32 v11, 1")
    if kind == "X":
        a("ds_write_b32 v10, v4\ns_waitcnt lgkmcnt(0)")
    setup = a.lines[mark:]
    del a.lines[mark:]
    per = -(-len(setup) // 9)
    a(f"s_waitcnt vmcnt({sum(cnt.values())})\ns_barrier")
    stamp()
    extra = 0
    for i in range(-1, 16):
        if i == -1 and pre == 1:
            cnt[2] = issue(2)
        if i + 4 <= 17:
            cnt[i+4] = issue(i + 4)
        if 0 <= i < 9:
            a("s_cmp_eq_u32 s59, 1")
            a.lines += setup[per*i:per*(i+1)]
            a("s_cselect_b32 s59, 1, 0")
        if i == 10 and kind == "X":
            flag_load(sFO, 98); flag_load(sFK, 99)
        if kind == "W" and i >= 14:
            extra += wq_issue(2*(i-14), m) + wq_issue(2*(i-14) + 1, m)
        left = sum(cnt.get(c, 0) for c in range(i + 3, min(i + 4, 17) + 1)) + extra
        a(f"s_waitcnt vmcnt({left})\ns_barrier")
    a("s_barrier")
    if kind == "W":
        for p in (4, 5, 6, 7, 13, 14, 15, 16, 17):
            wq_issue(p, m)
        a("s_waitcnt vmcnt(15)")
    else:
        flag_check(sFK, 99, "L_BX_fk")
    stamp()
    a("s_barrier")
    stamp()
    if kind == "W":
        for p in range(8, 13):
            wq_issue(p, m)
    KT = lambda s: 40 + 4 * s
    RD = lambda src, j: 112 + 28 * src + 4 * j
    srcs = ((vEA, 0), (vE0, 0), (vE0, 4096), (vEA, 5120), (vEA, 6144), (vEL, 9216), (vEL, 4096))
    prods = ((1, 2), (0, 3), (0, 4), (6, 5), (5, 0))
    if kind == "W":
        srcs = ((vEA, 0), None, (vE0, 4096), (vEA, 5120), (vEA, 6144), (vEL, 9216))
        prods = ((0, 2), (0, 3), (0, 4), None, (5, 0))
    nr = sum(x is not None for x in srcs)
    for src in range(4):
        for j, x in enumerate(srcs):
            if x: a(f"ds_read_b128 {vr(RD(src, j),4)}, v{x[0]} offset:{src*10240 + x[1]}")
    for src in range(4):
        a(f"s_waitcnt lgkmcnt({min(15, nr*(3-src))})")
        for s_, x in enumerate(prods):
            if x: a(mf(KT(s_), RD(src, x[0]), RD(src, x[1]), KT(s_) if src else "0"))
    for s_ in range(4 if kind == "X" else 3):
        for r in range(4):
            a(f"ds_write_b32 v{VS + 2*s_ + r//2}, v{KT(s_)+r} offset:{76*(r%2)}")
    a(f"ds_write_b32 v{vZS}, v{KT(4)}")
    a("s_waitcnt lgkmcnt(0)\ns_mov_b64 exec, 1\nds_add_u32 v10, v11\ns_mov_b64 exec, -1")
    stamp()
    b1, b2, b3 = {0: ((0, 1, 2, 3, 4, 5), (), (6, 7, 8)), 1: ((0, 1, 2), (3, 4, 5, 6, 7, 8), ()), 2: ((0, 1, 2), (3, 4, 5), (6, 7, 8))}[OPT.get("wob", 0)]
    if kind == "W":
        a("s_waitcnt vmcnt(0)\ns_barrier")
        for g in b1: wo_pair(g)
        if b2:
            a("s_barrier")
            for g in b2: wo_pair(g)
        stamp()
        a("s_barrier")
        loader_tail("BW", b3)
        return
    a(f"""
s_mov_b32 s{sT3}, 0x400000
L_BX_st:
ds_read_b32 v2, v10
s_waitcnt lgkmcnt(0)
v_readfirstlane_b32 s{sT}, v2
s_sub_u32 s{sT3}, s{sT3}, 1
s_cbranch_scc1 L_BX_st_x
s_cmp_ge_u32 s{sT}, 4
s_cbranch_scc0 L_BX_st
L_BX_st_x:
""")
    for n in range(11):
        a(f"ds_read_b32 v{40+n}, v{vLA} offset:{256*n}")
    for n in range(11):
        a(f"s_waitcnt lgkmcnt({10-n})")
        a(f"buffer_atomic_add_f32 v{40+n}, v{vGA + (n == 10)}, s[{SWS}:{SWS+3}], 0 offen offset:{256*n}")
    stamp()
    a("s_barrier")
    if b2:
        a("s_barrier")
    a("s_waitcnt vmcnt(0)")
    stamp()
    arrive_wait(sKC, 32, "L_BX_kc")
    stamp()
    for s_ in range(9):
        for r in range(4):
            a(f"buffer_load_dword v{112+4*s_+r}, v{VG + 2*s_ + r//2}, s[{SWS}:{SWS+3}], 0 offen offset:{76*(r%2)} sc1")
    dst = ((vLW, -1), (vLW, 4), (vLW, 9), (vLW, 13), (vLW + 2, 0), (vLW + 1, 4), (vLW + 1, 9), (vLW + 1, 13), (vLW + 3, 8))
    a(f"v_subrev_u32 v11, 512, v{vLW}")
    for s_, (ad, off) in enumerate(dst):
        a(f"s_waitcnt vmcnt({4*(8-s_)})")
        a(cv(40 + 2*s_, 112 + 4*s_)); a(cv(41 + 2*s_, 114 + 4*s_))
        a(f"ds_write_b64 v{11 if off < 0 else ad}, {vr(40+2*s_,2)} offset:{512*max(off, 0)}")
    a("s_waitcnt lgkmcnt(0)")
    stamp()
    a("s_barrier")
    loader_tail("BX")

def p2_consumer():
    OFR = lambda ks, rt: 112 + ks * 8 + rt * 4
    ACC = lambda t, rt: 72 + (t * 2 + rt) * 4
    wf = lambda t: 52 + 4 * t
    R8, R2, vO, vTW, vTR, VS = 1, 5, 6, 7, 8, 9
    AH = OPT["ahead"]
    a("L_P2:")
    nstamp[0] = 10
    rd_lanes(R8, R2, 17, 18)
    for j in range(5):
        a(f"v_add_u32 v{R8+j}, {R1}, v{R8+j}")
    a(f"""
v_lshl_add_u32 v{vO}, v0, 4, s58
s_mul_i32 s{sT}, s{sWAVE}, 4608
s_add_u32 s{sT}, s{sT}, {P_TR}
v_and_b32 v17, 15, v0
v_mul_u32_u24 v17, 144, v17
v_lshrrev_b32 v18, 4, v0
v_lshl_add_u32 v17, v18, 3, v17
v_add_u32 v{vTW}, s{sT}, v17
v_lshl_add_u32 v{vTR}, v0, 4, s{sT}
s_lshr_b32 s{sT}, s{sWAVE}, 1
s_and_b32 s{sT2}, s{sWAVE}, 1
s_lshl_b32 s{sT2}, s{sT2}, 5
s_lshl_b32 s{sT3}, s{sWAVE}, 5
s_cmp_eq_u32 s{sBR}, 0
s_cselect_b32 s42, s{sT}, 0
s_cselect_b32 s43, s{sT2}, s{sT3}
s_cselect_b32 s55, 1, 0
s_lshl_b32 s56, s42, 3
s_lshl_b32 s{sT}, s{sRB}, 7
s_add_u32 s42, s42, s{sT}
s_mul_i32 s{sT}, s{sBR}, 1152
s_mul_i32 s{sT2}, s{sHG}, 144
s_add_u32 s57, s{sT}, s{sT2}
""")
    for n in range(5):
        a(f"""
v_add_u32 v17, {64*n}, v0
v_mul_u32_u24 v18, 7282, v17
v_lshrrev_b32 v18, 16, v18
v_mul_u32_u24 v19, 9, v18
v_sub_u32 v19, v17, v19
v_add_u32 v18, s43, v18
v_xor_b32 v18, s56, v18
v_lshlrev_b32 v18, s55, v18
v_add_u32 v18, s42, v18
v_mul_u32_u24 v18, 2304, v18
v_lshl_add_u32 v18, v19, 4, v18
v_add_u32 v{VS+n}, s57, v18
""")
    a(f"v_mov_b32 v17, {OOB}\nv_cndmask_b32 v{VS+4}, v17, v{VS+4}, s[{sG01}:{sG01+1}]")
    a(f"v_add_u32 v14, 18432, v{vO}")
    SO = [8, 9, 10, 11, 12, 13, 14, 15, 36]
    rho(37)
    a(f"s_movk_i32 s{SO[0]}, 16384")
    for j in range(1, 9):
        a(f"s_add_u32 s{sT}, s37, {2*j-2}\ns_and_b32 s{sT}, s{sT}, 15\ns_lshl_b32 s{SO[j]}, s{sT}, 10")
    a("s_waitcnt vmcnt(0)")
    stamp()
    a("s_barrier\ns_barrier")
    stamp()
    def oload(ks, rt):
        return f"buffer_load_dwordx4 {vr(OFR(ks, rt),4)}, v{14 if rt else vO}, s[{SWS}:{SWS+3}], s{SO[ks//2]} offen offset:{1024*(ks%2)} sc1"
    base = lambda ks: R1 if ks < 3 else 0 if 9 <= ks < 12 else R2_
    R2_ = 43008
    def wreads(ks, t):
        o = WO[ks] - base(ks)
        if t == 4:
            return [tr(wf(t), R2, o + 4096), tr(wf(t) + 2, R2, o + 4096 + 256)]
        return [tr(wf(t), R8 + t, o), tr(wf(t) + 2, R8 + t, o + 1024)]
    for ks in range(AH):
        a(oload(ks, 0)); a(oload(ks, 1))
    for t in range(5):
        for x in wreads(0, t): a(x)
    for ks in range(18):
        tiles = [[mf(ACC(t, rt), wf(t), OFR(ks, rt), ACC(t, rt) if ks else "0") for rt in range(2)] for t in range(5)]
        w0 = f"s_waitcnt vmcnt({2*min(AH - 1, 17 - ks)}) lgkmcnt(8)"
        if ks < 17:
            nxt = [wreads(ks + 1, t) for t in range(5)]
            if base(ks + 1) != base(ks):
                d = (base(ks + 1) - base(ks)) & 0xffffffff
                for t in range(5):
                    nxt[t][0] = f"v_add_u32 v{R8+t}, {d}, v{R8+t}\n" + nxt[t][0]
            first = []
            if ks + AH < 18:
                first = [oload(ks + AH, 0)]
                nxt[1][1] += "\n" + oload(ks + AH, 1)
            kstep(tiles, nxt, first, {t: "s_waitcnt lgkmcnt(7)" if t else w0 for t in range(5)})
        else:
            kstep(tiles, None, [], {t: f"s_waitcnt lgkmcnt({8 - 2*t})" if t else w0 for t in range(5)})
        if ks == 0:
            stamp()
    stamp()
    for rt in range(2):
        for t in range(5):
            d = 20 + 2*(rt*5 + t)
            a(cv(d, ACC(t, rt))); a(cv(d + 1, ACC(t, rt) + 2))
            if t == 4:
                a(f"s_mov_b64 exec, s[{sG01}:{sG01+1}]")
            a(f"ds_write_b64 v{vTW}, {vr(d,2)} offset:{rt*2304 + 32*t}")
            if t == 4:
                a("s_mov_b64 exec, -1")
    a("s_waitcnt lgkmcnt(0)")
    for n in range(5):
        a(f"ds_read_b128 {vr(112+4*n,4)}, v{vTR} offset:{1024*n}")
    for n in range(5):
        a(f"s_waitcnt lgkmcnt({4-n})")
        a(f"buffer_store_dwordx4 {vr(112+4*n,4)}, v{VS+n}, s[{SOUT}:{SOUT+3}], 0 offen")
    stamp()
    stamps_out(True)
    a("s_endpgm")

HEADER = open("concat_heads__sliding_local_dilated__linear_attn_block__prompt.s.ref").read().split("; Override")[0]
out = HEADER + "; @launch grid=(256,1,1) block=(512,1,1) lds=163840\n"
a('.amdgcn_target "amdgcn-amd-amdhsa--gfx950"\n.text')
a(kernel_head(KN))
if OPT["stamps"]:
    for i in range(16):
        a(f"s_mov_b32 s{sST+2*i}, 0")
stamp()
a(f"""
s_cmp_ge_u32 s2, 256
s_cbranch_scc1 L_end
s_and_b32 s{sT}, s2, 7
s_lshr_b32 s{sBR}, s{sT}, 2
{'s_xor_b32 s6, s6, 1' if OPT.get('swap') else ''}
s_mul_i32 s{sT2}, s{sBR}, 24
s_add_u32 s0, s0, s{sT2}
s_addc_u32 s1, s1, 0
s_load_dwordx4 s[36:39], s[0:1], 0
s_load_dwordx2 s[40:41], s[0:1], 16
s_sub_u32 s0, s0, s{sT2}
s_subb_u32 s1, s1, 0
s_load_dwordx4 s[44:47], s[0:1], 48
s_load_dwordx2 s[48:49], s[0:1], 64
v_lshrrev_b32 v1, 6, v0
v_and_b32 v0, 63, v0
v_readfirstlane_b32 s{sWAVE}, v1
s_lshr_b32 s{sT2}, s2, 3
""")
m84 = f"""
s_and_b32 s{sHG}, s{sT2}, 3
s_and_b32 s{sT3}, s{sT}, 1
s_lshl_b32 s{sT3}, s{sT3}, 2
s_add_u32 s{sHG}, s{sHG}, s{sT3}
s_lshr_b32 s{sRB}, s{sT2}, 2
s_and_b32 s{sT3}, s{sT}, 2
s_lshl_b32 s{sT3}, s{sT3}, 2
s_add_u32 s{sRB}, s{sRB}, s{sT3}
"""
m48 = f"""
s_and_b32 s{sHG}, s{sT2}, 7
s_lshr_b32 s{sRB}, s{sT2}, 3
s_and_b32 s{sT3}, s{sT}, 3
s_lshl_b32 s{sT3}, s{sT3}, 2
s_add_u32 s{sRB}, s{sRB}, s{sT3}
"""
if OPT["mapping"] == 84:
    a(m84)
elif OPT["mapping"] == 48:
    a(m48)
else:
    a(m48 + f"s_cmp_eq_u32 s{sBR}, {0 if OPT['mapping'] == 8448 else 1}\ns_cbranch_scc0 L_map" + m84 + "L_map:")
rot = ""
if OPT.get("rot") == 2:
    rot = f"""s_lshr_b32 s90, s2, 1
s_xor_b32 s90, s90, s2
s_and_b32 s90, s90, 1
s_mul_i32 s91, s90, {OPT.get("rotby", 5)*128}
s_mul_i32 s90, s90, {OPT.get("rotby", 5)*64*3456}"""
elif OPT.get("rot") == 3:
    rot = f"""s_lshr_b32 s90, s2, 1
s_xor_b32 s90, s90, s2
s_and_b32 s90, s90, 1
s_mul_i32 s90, s90, 5
s_add_u32 s91, s{sRB}, s{sHG}
s_and_b32 s91, s91, 3
s_add_u32 s90, s90, s91
s_lshl_b32 s91, s90, 7
s_mul_i32 s90, s90, {64*3456}"""
elif OPT.get("rot") == 7:
    rot = f"""s_and_b32 s90, s{sHG}, 3
s_and_b32 s91, s{sRB}, 7
s_lshl1_add_u32 s90, s90, s91
s_cmp_ge_u32 s90, 9
s_cselect_b32 s91, 9, 0
s_sub_u32 s90, s90, s91
s_lshl_b32 s91, s90, 7
s_mul_i32 s90, s90, {64*3456}"""
elif OPT.get("rot") in (4, 5, 6):
    tab = {4: 0x75207520, 5: 0x63006300, 6: 0x86427531}[OPT["rot"]]
    rot = f"""s_add_u32 s90, s{sRB}, s{sHG}
s_and_b32 s90, s90, 7
s_lshl_b32 s90, s90, 2
s_lshr_b32 s90, {hex(OPT.get("tab", tab))}, s90
s_and_b32 s90, s90, 15
s_lshl_b32 s91, s90, 7
s_mul_i32 s90, s90, {64*3456}"""
elif OPT.get("rot"):
    few, many = (sRB, sHG) if OPT["mapping"] == 48 else (sHG, sRB)
    rot = f"""s_and_b32 s90, s{few}, 3
s_lshl_b32 s90, s90, 2
s_lshr_b32 s90, 0x7520, s90
s_and_b32 s90, s90, 15
s_and_b32 s91, s{many}, 7
s_add_u32 s90, s90, s91
s_cmp_ge_u32 s90, 9
s_cselect_b32 s91, 9, 0
s_sub_u32 s90, s90, s91
s_lshl_b32 s91, s90, 7
s_mul_i32 s90, s90, {64*3456}"""
a(f"""
s_mov_b32 s{sG0}, 0xffff
s_mov_b32 s{sG0+1}, 0
s_mov_b32 s{sG01}, -1
s_mov_b32 s{sG01+1}, 0
s_and_b32 s{sV}, s{sWAVE}, 1
s_mul_i32 s{sM}, s{sHG}, 144
s_cmp_lt_u32 s{sWAVE}, 4
s_cbranch_scc1 L_cons
s_setprio {OPT.get("prio", 2)}
s_mov_b32 s59, 0
{rot}
s_cmp_lt_u32 s{sWAVE}, 6
s_cbranch_scc1 L_wld
s_cmp_eq_u32 s{sBR}, 0
s_cbranch_scc1 L_AX0
s_branch L_BX0
L_wld:
s_cmp_eq_u32 s{sBR}, 0
s_cbranch_scc1 L_AW0
s_branch L_BW0
L_cons:
s_getpc_b64 s[42:43]
L_pc:
s_lshl_b32 s{sT}, s{sT2}, 2
s_add_u32 s{sT}, s{sT}, s{sWAVE}
s_lshl_b32 s{sT}, s{sT}, 9
v_and_b32 v1, 3, v0
v_lshlrev_b32 v1, 7, v1
v_add_u32 v1, s{sT}, v1
v_min_u32 v1, {'L_last2' if OPT.get('ifetch') == 1 else 'L_last'}-L_pc, v1
global_load_dword v27, v1, s[42:43]
s_cmp_eq_u32 s{sBR}, 0
s_cbranch_scc1 L_AC
s_branch L_BC
L_end:
s_endpgm
""")
w_head("A"); w_head("B"); x_head("A"); x_head("B")
n0 = nstamp[0]
for fn in (lambda: a_loader("W"), lambda: a_loader("X"), a_consumer, lambda: b_loader("W"), lambda: b_loader("X"), b_consumer, p2_consumer):
    nstamp[0] = n0
    fn()
a("s_endpgm" if OPT.get("ifetch", 0) > 1 else "L_last2:\ns_endpgm" if OPT.get("ifetch") else "L_last:\ns_endpgm")
lines = []
for l in a.lines: lines += l.split("\n")
if OPT.get("noread"):
    lines = [l for l in lines if not l.startswith("ds_read_b64_tr")]
if OPT.get("nomfma"):
    lines = [l for l in lines if not l.startswith("v_mfma")]
lines, added = hz.fix(lines)
out += "\n".join(lines) + "\n"
out += '.section .rodata,"a"\n.p2align 6\n' + kernel_desc(KN, 256, 102 if OPT.get('cyc') else 100, 256)
sys.stdout.write(out)
sys.stderr.write(f"nop states added: {added}\n")
```

```python
import sys, struct
from asmlib import *
import hz

OPT = dict(stamps=0, mapping=48, ahead=6, rot=4, nt=1)
for arg in sys.argv[1:]:
    k, v = arg.split("=")
    OPT[k] = int(v)
KN = "concat_heads__sliding_local_dilated__linear_attn_block__prompt_kernel"

def f32(x):
    return "0x%08x" % struct.unpack("<I", struct.pack("<f", x))[0]

LOG2E = 1.4426950408889634
CSC = 18 ** -0.5 * LOG2E
NEG = "0xf149f2ca"
EPS = f32(1e-6)
OOB = "0x80000000"

O_BR = 0x240000
WS_KV = 0x500000
KV_ST = 0x2000
WS_CNT = 0x540000
WS_STAMP = 0x600000
WS_SIZE = 0x700000

sWAVE, sHG, sRB, sBR, sT = 3, 4, 5, 6, 7
SX, SW, SWS, SDBG, SWO, SOUT = 8, 12, 16, 20, 24, 28
sG0, sG01 = 32, 34
sK, sV, sM, sT2, sT3 = 50, 51, 52, 53, 54
sST = 60

a = Asm()
nstamp = [0]

def stamp():
    if OPT["stamps"]:
        i = nstamp[0]; nstamp[0] += 1
        assert i < 15
        a(f"{'s_memrealtime' if OPT.get('rt') or OPT.get('probe') and not (OPT.get('cyc') and i) else 's_memtime'} s[{sST+2*i}:{sST+2*i+1}]")
        if OPT.get("cyc") and i == 0:
            a("s_memtime s[100:101]")

def stamps_out(last=False):
    if not OPT["stamps"]:
        return
    if OPT.get("probe"):
        if last:
            j = sST + 2 * OPT["probe"]
            if OPT.get("ifetch"):
                mode = OPT["ifetch"]
                a(f"""
s_waitcnt vmcnt(0) lgkmcnt(0)
s_cmp_eq_u32 s2, {OPT.get('wg', 0)}
s_cbranch_scc0 L_probe_x
s_cmp_eq_u32 s{sWAVE}, 0
s_cbranch_scc0 L_probe_x
s_sleep 127
s_sleep 127
s_getpc_b64 s[44:45]
L_if_pc:
s_add_u32 s44, s44, L_if_blk-L_if_pc
s_addc_u32 s45, s45, 0
v_lshlrev_b32 v1, 7, v0
v_min_u32 v1, 4096, v1
""")
                if mode == 2:
                    a("global_load_dword v2, v1, s[44:45]\ns_waitcnt vmcnt(0)")
                a(f"""
s_memtime s[100:101]
s_waitcnt lgkmcnt(0)
s_branch L_if_blk
L_last:
.fill {(0 if mode == 1 else 8192)}, 4, 0xbf800000
L_if_blk:
.rept 512
v_add3_u32 v5, v0, v0, v0
.endr
s_memtime s[{j}:{j+1}]
s_waitcnt lgkmcnt(0)
s_sub_u32 s{j}, s{j}, s100
s_lshl_b32 s{j}, s{j}, 3
s_add_u32 s{j}, s{j}, s100
""")
            if OPT.get("lat"):
                a(f"""
s_waitcnt vmcnt(0) lgkmcnt(0)
s_load_dwordx2 s[44:45], s[0:1], {OPT['lat'] - 8}
s_sleep 127
s_sleep 127
s_sleep 127
s_waitcnt lgkmcnt(0)
s_mov_b32 s46, 0x100000
s_mov_b32 s47, 0x20000
v_mov_b32 v1, 0x20000
buffer_load_dword v2, v1, s[44:47], 0 offen {'sc1' if OPT.get('first') != 2 else ''}
s_waitcnt vmcnt(0)
v_mov_b32 v1, {'0x20000' if not OPT.get('first') else '0x20040'}
s_memtime s[100:101]
s_waitcnt lgkmcnt(0)
buffer_load_dword v2, v1, s[44:47], 0 offen sc1
s_waitcnt vmcnt(0)
s_memtime s[{j}:{j+1}]
s_waitcnt lgkmcnt(0)
s_sub_u32 s{j}, s{j}, s100
s_lshl_b32 s{j}, s{j}, 5
s_add_u32 s{j}, s{j}, s100
""")
            if OPT.get("xcc"):
                a(f"""
s_waitcnt vmcnt(0) lgkmcnt(0)
v_and_b32 v1, 31, v0
v_lshlrev_b32 v1, {5 if OPT['xcc'] == 1 else 2}, v1
v_add_u32 v1, 0x6f0000, v1
buffer_load_dword v2, v1, s[{SWS}:{SWS+3}], 0 offen sc1
s_getreg_b32 s44, hwreg(HW_REG_XCC_ID, 0, 4)
s_waitcnt vmcnt(0)
v_cmp_eq_u32 vcc, s44, v2
s_bcnt1_i32_b32 s44, vcc_lo
s_mul_i32 s44, s44, 10
s_add_u32 s{j}, s{sST}, s44
""")
            a(f"""
s_waitcnt vmcnt(0) lgkmcnt(0)
s_cmp_eq_u32 s2, {OPT.get('wg', 0)}
s_cbranch_scc0 L_probe_x
s_cmp_eq_u32 s{sWAVE}, 0
s_cbranch_scc0 L_probe_x
s_sub_u32 s{sT}, s{j}, s{100 if OPT.get('cyc') else sST}
{'s_lshr_b32 s7, s7, 3' if OPT.get('cyc') else 's_mul_i32 s7, s7, 10'}
s_min_u32 s{sT}, s{sT}, 100000
s_add_u32 s{sT}, s{sT}, 6000
L_probe:
s_memrealtime s[44:45]
s_waitcnt lgkmcnt(0)
s_sub_u32 s44, s44, s{sST}
s_cmp_lt_u32 s44, s{sT}
s_cbranch_scc1 L_probe
L_probe_x:
""")
        return
    a("s_waitcnt vmcnt(0) lgkmcnt(0)")
    a(f"s_lshl_b32 s{sT}, s2, 3\ns_add_u32 s{sT}, s{sT}, s{sWAVE}\ns_lshl_b32 s{sT}, s{sT}, 6")
    a(f"s_add_u32 s{sT}, s{sT}, {WS_STAMP}\nv_mov_b32 v1, s{sT}")
    for i in range(16):
        a(f"v_mov_b32 v2, s{sST+2*i}")
        a(f"buffer_store_dword v2, v1, s[{SWS}:{SWS+3}], 0 offen offset:{4*i}")
    a("s_waitcnt vmcnt(0)")

def mf(d, s0, s1, c):
    cc = c if isinstance(c, str) else vr(c, 4)
    return f"v_mfma_f32_16x16x32_bf16 {vr(d,4)}, {vr(s0,4)}, {vr(s1,4)}, {cc}"
def cv(d, x):
    return f"v_cvt_pk_bf16_f32 v{d}, v{x}, v{x+1}"
def tr(d, addr, off):
    return f"ds_read_b64_tr_b16 {vr(d,2)}, v{addr} offset:{off}"
def weave(mfmas, others, per=2):
    o = list(others)
    for m in mfmas:
        a(m)
        for _ in range(per):
            if o: a(o.pop(0))
    for x in o: a(x)

def srd(dst, lo, nbytes):
    a(f"s_mov_b32 s{dst}, s{lo}\ns_mov_b32 s{dst+1}, s{lo+1}\ns_mov_b32 s{dst+2}, {nbytes}\ns_mov_b32 s{dst+3}, 0x20000")
def srds_rest():
    srd(SWO, 40, 663552); srd(SOUT, 44, 4718592); srd(SDBG, 46, 256); srd(SWS, 48, WS_SIZE)

class M0:
    def __init__(self, base): self.base = base; self.cur = None
    def set(self, imm):
        if self.cur is not None and -32768 <= imm - self.cur <= 32767:
            a(f"s_addk_i32 m0, {imm - self.cur}")
        else:
            a(f"s_add_u32 m0, s{self.base}, {imm}")
        self.cur = imm

CUR = [0]
def dma(voff, srd_, soff, half=False):
    if OPT.get("nodma") or (OPT.get("nos") and voff == VD + 6 and srd_ == SW and not half):
        return
    if half: a(f"s_mov_b64 exec, s[{sG01}:{sG01+1}]")
    nt = " nt" if OPT.get("nt", 0) >> {SX: 0, SW: 1, SWO: 2}[srd_] & 1 and CUR[0] < OPT.get("ntc", 99) else ""
    a(f"buffer_load_dwordx4 v{voff}, s[{srd_}:{srd_+3}], {soff} offen{nt} lds")
    if half: a("s_mov_b64 exec, -1")

def rd_lanes(r8, r2, t0, t1):
    a(f"""
v_lshrrev_b32 v{t0}, 5, v0
v_lshlrev_b32 v{t0}, 4, v{t0}
v_bfe_u32 v{t1}, v0, 4, 1
v_lshl_add_u32 v{t0}, v{t1}, 2, v{t0}
v_bfe_u32 v{t1}, v0, 2, 2
v_add_u32 v{t0}, v{t0}, v{t1}
v_and_b32 v{t1}, 3, v0
v_lshlrev_b32 v{t1}, 3, v{t1}
v_lshl_add_u32 v{r2}, v{t0}, 5, v{t1}
v_lshl_add_u32 v{r8}, v{t0}, 7, v{t1}
v_bfe_u32 v{t0}, v{t0}, 1, 2
v_lshl_add_u32 v{r8}, v{t0}, 5, v{r8}
""")
    for t in (1, 2, 3):
        a(f"v_xor_b32 v{r8+t}, {32*t}, v{r8}")

def x_lane(d0, d1, tmp):
    a(f"""
v_lshrrev_b32 v{d0}, 4, v0
v_bfe_u32 v{tmp}, v0, 1, 3
v_xor_b32 v{d0}, v{d0}, v{tmp}
v_and_b32 v{tmp}, 15, v0
v_lshlrev_b32 v{tmp}, 7, v{tmp}
v_lshl_add_u32 v{d0}, v{d0}, 4, v{tmp}
v_xor_b32 v{d1}, 64, v{d0}
""")

def col8(dst, tmp):
    a(f"v_bfe_u32 v{tmp}, v0, 4, 2\nv_lshlrev_b32 v{tmp}, 1, v{tmp}\nv_and_b32 v{dst}, 7, v0\nv_xor_b32 v{dst}, v{dst}, v{tmp}\nv_lshlrev_b32 v{dst}, 4, v{dst}")

def head_of(dst, src):
    a(f"v_mul_u32_u24 v{dst}, 57, v{src}\nv_lshrrev_b32 v{dst}, 10, v{dst}")

sOC, sKC, sFO, sFK = 92, 94, 96, 97

def arrive_wait(addr, target, label, arrive=True):
    if arrive:
        a(f"s_mov_b32 s{sT}, 1\ns_atomic_add s{sT}, s[{addr}:{addr+1}], 0 glc\ns_waitcnt lgkmcnt(0)\ns_cmp_ge_u32 s{sT}, {target-1}\ns_cbranch_scc1 {label}_x")
    a(f"""
s_mov_b32 s{sT3}, 0x20000
{label}:
s_mov_b32 s{sT}, 0
s_atomic_add s{sT}, s[{addr}:{addr+1}], 0 glc
s_waitcnt lgkmcnt(0)
s_sub_u32 s{sT3}, s{sT3}, 1
s_cbranch_scc1 {label}_x
s_cmp_ge_u32 s{sT}, {target}
s_cbranch_scc0 {label}
{label}_x:
""")

def flag_load(dst, offreg):
    a(f"s_load_dword s{dst}, s[{SDBG}:{SDBG+1}], s{offreg}")

def flag_check(val, offreg, label):
    a(f"""
s_mov_b32 s{sT3}, 0x20000
{label}:
s_waitcnt lgkmcnt(0)
s_cmp_lg_u32 s{val}, 0
s_cbranch_scc1 {label}_x
s_sub_u32 s{sT3}, s{sT3}, 1
s_cbranch_scc1 {label}_x
s_load_dword s{val}, s[{SDBG}:{SDBG+1}], s{offreg} glc
s_branch {label}
{label}_x:
""")

A_WSLOT, A_XSLOT = 14336, 18432
A_X0 = 5 * A_WSLOT
A_EX = A_X0 + 3 * A_XSLOT
B_KVSLOT, B_XSLOT = 9216, 16384
B_X0 = 5 * B_KVSLOT
B_EX = B_X0 + 3 * B_XSLOT
B_KVOP = 126976
B_STG = 136192
B_DUMP, B_LCNT = B_STG + 5632, B_STG + 6144
B_WQ0 = 143360
QORD = list(range(18))
def wq_slot(p):
    if p < 4: return B_WQ0 + 5120 * p
    if p < 7: return 5120 * (p - 4)
    if p < 13: return 40960 + 5120 * (p - 7)
    return 15360 + 5120 * (p - 13)
R1, R2 = 147456, 43008
WO = [R1, R1 + 5120, R1 + 10240] + [R2 + 5120 * n for n in range(6, 12)] + [0, 5120, 10240] + [R2 + 5120 * n for n in range(6)]
P_TR = 108544
SPLITS = {(1, 0): sG0, (2, 0): sG0, (2, 1): sG0, (3, 0): sG01, (3, 1): sG0}

VD = 16
VWO = 26
vCNT, vFLO, vFLK, vFO, vFK = 30, 31, 32, 33, 34

def w_head(kind):
    parts = (0, 1152, 2304) if kind == "A" else (1152, 2304)
    a(f"L_{kind}W0:")
    col8(VD, 1)
    a(f"""
v_bfe_u32 v1, v0, 5, 1
v_bfe_u32 v2, v0, 3, 2
v_lshl_add_u32 v1, v1, 3, v2
s_mul_i32 s{sT}, s{sV}, {16*3456}
s_add_u32 s{sT}, s{sT}, s{sM}
v_mul_u32_u24 v1, 3456, v1
v_add3_u32 v{VD}, v{VD}, v1, s{sT}
""")
    n = 2 * len(parts)
    for j in range(n - 1, -1, -1):
        off = parts[j // 2] + (j % 2) * 4 * 3456
        if off:
            a(f"v_add_u32 v{VD+j}, {off}, v{VD}")
    a(f"""
v_bfe_u32 v1, v0, 3, 1
v_bfe_u32 v2, v0, 4, 1
v_sub_u32 v1, v1, v2
v_lshrrev_b32 v2, 1, v0
v_lshl_add_u32 v1, v1, 2, v2
v_mul_u32_u24 v1, 3456, v1
v_and_b32 v2, 1, v0
""")
    if kind == "A":
        a(f"""
s_cmp_eq_u32 s{sV}, 0
s_cselect_b32 s{sT2}, 1152, 0
s_cselect_b32 s{sT}, 0, 2304
s_add_u32 s{sT}, s{sT}, s{sM}
s_addk_i32 s{sT}, 128
v_mad_u32_u24 v1, v2, s{sT2}, v1
v_add_u32 v{VD+6}, s{sT}, v1
""")
    else:
        a(f"""
s_add_u32 s{sT}, s{sT}, 128
v_add_u32 v{VD+7}, s{sT}, v1
v_mul_u32_u24 v2, 1152, v2
v_add_u32 v2, 1152, v2
v_add_u32 v{VD+4}, v2, v{VD+7}
""")
    a(f"s_lshl_b32 s42, s{sV}, 11\ns_lshl_b32 s43, s{sV}, {10 if kind == 'A' else 9}\ns_sub_u32 s43, s43, s42")
    a("s_waitcnt lgkmcnt(0)")
    srd(SW, 38, 1990656)
    m = M0(42)
    w_issue(kind, 0, m)
    a(f"s_branch L_{kind}W1")

def w_issue(kind, c, m):
    CUR[0] = c
    slot = (c % 5) * (A_WSLOT if kind == "A" else B_KVSLOT)
    n = 6 if kind == "A" else 4
    so = f"s{sK}" if c else "0"
    if OPT.get("rot"):
        so = "s90"
        if c:
            a(f"s_add_u32 s90, s90, {32*3456}\ns_cmp_eq_u32 s90, {18*32*3456}\ns_cselect_b32 s90, 0, s90")
    elif c:
        a(f"s_mov_b32 s{sK}, {c*32*3456}")
    for j in range(n):
        m.set(slot + 4096 * (j // 2) + 1024 * (j % 2))
        dma(VD + j, SW, so)
    m.set(slot + 4096 * (n // 2))
    a("s_add_u32 m0, m0, s43")
    m.cur = None
    dma(VD + n, SW, so, half=(kind == "B"))
    return n + 1

def wq_issue(p, m):
    if OPT.get("rot"):
        a(f"s_add_u32 s{sK}, s90, {(p+1)*32*3456}\ns_cmp_ge_u32 s{sK}, {18*32*3456}\ns_cselect_b32 s{sT}, {18*32*3456}, 0\ns_sub_u32 s{sK}, s{sK}, s{sT}")
    else:
        a(f"s_mov_b32 s{sK}, {QORD[p]*32*3456}")
    for j in range(2):
        m.set(wq_slot(p) + 1024 * j)
        dma(VD + 5 + j, SW, f"s{sK}")
    m.set(wq_slot(p) + 4096)
    a("s_add_u32 m0, m0, s43")
    m.cur = None
    dma(VD + 7, SW, f"s{sK}", half=True)
    return 3

def x_head(kind):
    nq = 9 if kind == "A" else 8
    a(f"L_{kind}X0:")
    a(f"""
v_lshrrev_b32 v1, 3, v0
v_mul_u32_u24 v1, {2304 if kind == 'A' else 1152}, v1
v_lshrrev_b32 v2, 4, v0
v_lshl_add_u32 v2, s{sV}, 2, v2
v_and_b32 v3, 7, v0
v_xor_b32 v2, v2, v3
v_lshl_add_u32 v1, v2, 4, v1
s_mul_i32 s{sT}, s{sRB}, {128*1152}
""")
    if kind == "A":
        a(f"""
s_mul_i32 s{sT2}, s{sV}, {16*1152}
s_add_u32 s{sT3}, s{sT}, s{sT2}
v_add_u32 v{VD}, s{sT3}, v1
s_sub_u32 s{sT3}, s{sT}, s{sT2}
s_add_u32 s{sT3}, s{sT3}, {17*1152}
v_add_u32 v{VD+4}, s{sT3}, v1
s_mul_i32 s{sT2}, s{sV}, 1152
s_sub_u32 s{sT3}, s{sT}, s{sT2}
s_sub_u32 s{sT3}, s{sT3}, {15*1152}
v_add_u32 v{VD+8}, s{sT3}, v1
""")
        for q in (1, 2, 3):
            a(f"v_add_u32 v{VD+q}, {32*1152*q}, v{VD}\nv_add_u32 v{VD+4+q}, {32*1152*q}, v{VD+4}")
    else:
        a(f"s_mul_i32 s{sT2}, s{sV}, {8*1152}\ns_add_u32 s{sT}, s{sT}, s{sT2}\nv_add_u32 v{VD}, s{sT}, v1")
        for q in range(1, 8):
            a(f"v_add_u32 v{VD+q}, {16*1152*q}, v{VD}")
    a(f"s_lshl_b32 s42, s{sV}, 10")
    a("s_waitcnt lgkmcnt(0)")
    srd(SX, 36, 2359296)
    x_issue(kind, 0, M0(42))
    a(f"s_branch L_{kind}X1")

def x_issue(kind, c, m):
    CUR[0] = c + (c & 1)
    nq, h, x0, xs = (9, 5, A_X0, A_XSLOT) if kind == "A" else (8, 4, B_X0, B_XSLOT)
    st = (c + 1) // 2
    if st > 8:
        return 0
    qs = range(nq) if c == 0 else (range(h) if c % 2 else range(h, nq))
    so = f"s{sK}" if st else "0"
    if OPT.get("rot"):
        so = "s91"
        if c % 2:
            a("s_addk_i32 s91, 128\ns_cmpk_eq_u32 s91, 1152\ns_cselect_b32 s91, 0, s91")
    elif st:
        a(f"s_movk_i32 s{sK}, {st*128}")
    for q in qs:
        m.set(x0 + (st % 3) * xs + 2048 * q)
        a("s_nop 0")
        dma(VD + q, SX, so)
    return len(qs)

def wo_setup(quad):
    col8(VWO, 1)
    a(f"""
s_mul_i32 s{sM}, s{sHG}, 144
v_add_u32 v{VWO}, s{sM}, v{VWO}
v_bfe_u32 v1, v0, 5, 1
v_bfe_u32 v2, v0, 3, 2
v_mul_u32_u24 v1, 72, v1
v_add_u32 v1, v1, v2
v_mul_u32_u24 v1, 1152, v1
v_add_u32 v{VWO+1}, v1, v{VWO}
v_lshrrev_b32 v1, 3, v0
v_mul_u32_u24 v1, 1152, v1
v_add_u32 v{VWO}, v1, v{VWO}
v_bfe_u32 v1, v0, 1, 2
v_bfe_u32 v2, v0, 3, 1
v_bfe_u32 v3, v0, 4, 1
v_bfe_u32 v4, v0, 5, 1
v_lshl_add_u32 v5, v2, 2, v1
v_lshl_add_u32 v5, v3, 4, v5
v_lshl_add_u32 v5, v4, 3, v5
v_mul_u32_u24 v5, 1152, v5
s_add_u32 s{sM}, s{sM}, 128
v_add_u32 v{VWO+2}, s{sM}, v5
v_lshl_add_u32 v5, v3, 2, v1
v_lshl_add_u32 v2, v4, 1, v2
v_mul_u32_u24 v2, 72, v2
v_add_u32 v5, v5, v2
v_mul_u32_u24 v5, 1152, v5
v_add_u32 v{VWO+3}, s{sM}, v5
s_and_b32 s55, s{sWAVE}, 3
s_lshl_b32 s57, s55, 3
""")
    rho(56)
    a(f"s_add_u32 s56, s56, s{55 if quad else sV}")

def rho(dst):
    few, many = (sRB, sHG) if OPT["mapping"] == 48 else (sHG, sRB)
    if OPT["mapping"] > 99:
        a(f"s_cmp_eq_u32 s{sBR}, {0 if OPT['mapping'] == 8448 else 1}\ns_cselect_b32 s{sT}, s{sHG}, s{sRB}\ns_cselect_b32 s{sT2}, s{sRB}, s{sHG}")
        few, many = sT, sT2
    a(f"s_lshl_b32 s{dst}, s{few}, 1\ns_add_u32 s{dst}, s{dst}, s{many}\ns_lshl_b32 s{dst}, s{dst}, 1")
    if not OPT.get("worot", 1):
        a(f"s_mov_b32 s{dst}, 0")

def wo_chunk(left, fadd):
    if left:
        a(f"s_mul_i32 s{sK}, s{sV}, {288*1152}\ns_add_u32 s{sK}, s{sK}, {64*1152}")
        steps = (4, 140, 4); v8, v2 = VWO + 1, VWO + 3
    else:
        a(f"""
s_add_u32 s{sT}, s56, {fadd}
s_bfe_u32 s{sK}, s{sT}, 0x30001
s_mul_i32 s{sK}, s{sK}, {72*1152}
s_bitcmp1_b32 s{sT}, 0
s_cselect_b32 s{sT}, {32*1152}, 0
s_add_u32 s{sK}, s{sK}, s{sT}
""")
        steps = (16, -8, 16); v8, v2 = VWO, VWO + 2
    a(f"s_mov_b32 s{sT2}, s{sK}")
    for j in range(4):
        dma(v8, SWO, f"s{sK}")
        a("s_addk_i32 m0, 1024")
        a(f"s_add_u32 s{sK}, s{sK}, {steps[j]*1152 & 0xffffffff}" if j < 3 else "s_nop 0")
    dma(v2, SWO, f"s{sT2}")
    return 5

def wo_issue(q):
    packed = sum((WO[2 + 4*q + w] // 1024) << (8 * w) for w in range(4))
    a(f"s_lshr_b32 s{sT}, {packed}, s57\ns_and_b32 s{sT}, s{sT}, 0xff\ns_lshl_b32 m0, s{sT}, 10")
    return wo_chunk(False, 4*q)

def wo_pair(g):
    a(f"s_mul_i32 s{sT}, s{sV}, {WO[2*g+1] - WO[2*g] & 0xffffffff}\ns_add_u32 m0, s{sT}, {WO[2*g]}")
    return wo_chunk(g == 0, 2*g - 2)

def sync_setup():
    a(f"""
s_lshl_b32 s{sT}, s{sBR}, 4
s_add_u32 s{sT}, s{sT}, s{sRB}
s_lshl_b32 s{sT2}, s{sT}, 8
s_add_u32 s{sT2}, s{sT2}, {WS_CNT}
s_add_u32 s{sOC}, s{SWS}, s{sT2}
s_addc_u32 s{sOC+1}, s{SWS+1}, 0
s_lshl_b32 s{sT}, s{sT}, 2
s_add_u32 s98, s{sT}, 32
s_lshl_b32 s99, s{sHG}, 2
s_mul_i32 s{sT2}, s{sHG}, {KV_ST}
s_add_u32 s{sT2}, s{sT2}, {WS_KV + 6144}
s_add_u32 s{sKC}, s{SWS}, s{sT2}
s_addc_u32 s{sKC+1}, s{SWS+1}, 0
""")

def loader_tail(tag, late=()):
    if tag[1] == "X":
        flag_check(sFO, 98, f"L_{tag}_fo")
    a("s_barrier")
    stamp()
    for g in late:
        wo_pair(g)
    if tag[1] == "X":
        a(f"s_cmp_eq_u32 s{sWAVE}, 6\ns_cbranch_scc0 L_{tag}_oc_x")
        arrive_wait(sOC, 8, f"L_{tag}_oc")
    a("s_waitcnt vmcnt(0)")
    stamp()
    a("s_barrier")
    stamps_out()
    a("s_endpgm")

def a_loader(kind):
    a(f"L_A{kind}1:")
    m = M0(42)
    issue = (lambda c: w_issue("A", c, m)) if kind == "W" else (lambda c: x_issue("A", c, m))
    pre = 1 if OPT.get("early") and kind == "W" else 2
    cnt = {c: issue(c) for c in range(1, pre + 1)}
    stamp()
    x_lane(8, 9, 1)
    rd_lanes(36, 12, 1, 2)
    a(f"""
v_add_u32 v8, {A_X0 + 8*2048}, v8
v_add_u32 v9, {A_X0 + 8*2048}, v9
s_lshl_b32 s{sT}, s{sV}, 6
v_xor_b32 v10, s{sT}, v36
v_add_u32 v10, {4096 if kind == 'W' else 8192}, v10
v_xor_b32 v11, 32, v10
v_add_u32 v12, {12288 if kind == 'W' else 13312}, v12
v_add_u32 v13, {4*A_WSLOT}, v10
v_add_u32 v14, {4*A_WSLOT}, v11
v_add_u32 v15, {4*A_WSLOT}, v12
s_lshl_b32 s{sT}, s{sV}, 10
s_add_u32 s{sT}, s{sT}, {A_EX + (0 if kind == 'W' else 2560)}
v_lshlrev_b32 v7, 3, v0
v_add_u32 v6, s{sT}, v7
v_add_u32 v7, {A_EX + (2048 if kind == 'W' else 4608)}, v7
""")
    stamp()
    a(f"s_waitcnt vmcnt({sum(cnt.values())})\ns_barrier")
    stamp()
    extra = 0
    for i in range(-1, 17):
        ks = i + 1
        slot = ks % 5
        off = 0 if slot == 4 else slot * A_WSLOT
        ad = (13, 14, 15) if slot == 4 else (10, 11, 12)
        a(f"ds_read_b128 v[40:43], v{8 + ks % 2} offset:{(ks//2 % 3)*A_XSLOT}")
        for j in range(3 if OPT.get("nohalo", 0) < 2 else 0):
            a(tr(44 + 4*j, ad[j], off)); a(tr(46 + 4*j, ad[j], off + (1024 if j < 2 else 256)))
        if i == -1 and pre == 1:
            cnt[2] = issue(2)
        if i + 4 <= 17:
            cnt[i+4] = issue(i + 4)
        a("s_waitcnt lgkmcnt(0)")
        for j in range(3 if not OPT.get("nohalo") else 0):
            c = 60 + 4*j if ks else "0"
            a(mf(60 + 4*j, 44 + 4*j, 40, c) if kind == "W" else mf(60 + 4*j, 40, 44 + 4*j, c))
        if i == 1:
            srds_rest(); sync_setup()
        if i == 2:
            wo_setup(True)
        if i == 14 and kind == "W":
            extra += wo_pair(0)
        if i == 15:
            extra += wo_issue(0)
        if i + 1 <= 16:
            left = sum(cnt.get(c, 0) for c in range(i + 3, min(i + 4, 17) + 1)) + extra
            a(f"s_waitcnt vmcnt({left})\ns_barrier")
            if OPT.get("fine") and kind == "W" and i % 2 == 1 and 0 < i < 14:
                stamp()
    for j in range(3):
        a(cv(44 + 2*j, 60 + 4*j)); a(cv(45 + 2*j, 62 + 4*j))
    if kind == "W":
        a("v_mov_b32 v50, 0\nv_mov_b32 v51, 0")
        a("v_permlane32_swap_b32 v48, v50\nv_permlane32_swap_b32 v49, v51")
    a("ds_write_b64 v6, v[44:45]\nds_write_b64 v6, v[46:47] offset:512")
    a(f"ds_write_b64 v7, {'v[50:51]' if kind == 'W' else 'v[48:49]'}")
    stamp()
    a("s_waitcnt lgkmcnt(0)\ns_barrier")
    if kind == "X":
        flag_load(sFO, 98)
    wo_issue(1); wo_issue(2); wo_issue(3)
    stamp()
    loader_tail("A" + kind)

def o_store_addr(vfull, vleft, tmp, left_lo):
    a(f"""
s_lshl_b32 s{sT}, s{sRB}, 3
s_lshl_b32 s{sT2}, s{sWAVE}, 1
s_add_u32 s{sT}, s{sT}, s{sT2}
s_mul_i32 s{sT}, s{sT}, 18432
s_mul_i32 s{sT2}, s{sBR}, {O_BR}
s_add_u32 s58, s{sT}, s{sT2}
s_lshl_b32 s{sT2}, s{sHG}, 11
s_add_u32 s{sT2}, s{sT2}, s58
v_lshl_add_u32 v{vfull}, v0, 4, s{sT2}
s_lshr_b32 s{sT2}, s{sHG}, 2
s_add_u32 s{sT2}, s{sT2}, 16
s_lshl_b32 s{sT2}, s{sT2}, 10
s_add_u32 s{sT}, s58, s{sT2}
s_and_b32 s{sT2}, s{sHG}, 3
s_lshl_b32 s{sT2}, s{sT2}, 8
s_add_u32 s{sT}, s{sT}, s{sT2}
v_and_b32 v{vleft}, 15, v0
v_lshlrev_b32 v{vleft}, 4, v{vleft}
v_bfe_u32 v{tmp}, v0, 4, 1
v_lshl_add_u32 v{vleft}, v{tmp}, 3, v{vleft}
v_add_u32 v{vleft}, s{sT}, v{vleft}
v_mov_b32 v{tmp}, {OOB}
""")
    x, y = (tmp, vleft) if left_lo else (vleft, tmp)
    a(f"v_cndmask_b32 v{vleft}, v{x}, v{y}, s[{sG01}:{sG01+1}]")

def o_store(of, vfull, vleft, rt):
    so = f"s{sK}" if rt else "0"
    if rt:
        a(f"s_movk_i32 s{sK}, 18432")
    a(f"buffer_store_dwordx4 {vr(of,4)}, v{vfull}, s[{SWS}:{SWS+3}], {so} offen sc1")
    a(f"buffer_store_dwordx4 {vr(of+4,4)}, v{vfull}, s[{SWS}:{SWS+3}], {so} offen offset:1024 sc1")
    a(f"buffer_store_dwordx2 {vr(of+8,2)}, v{vleft}, s[{SWS}:{SWS+3}], {so} offen sc1")

def gap_touch(tag, parts):
    if not OPT.get("touch"):
        return
    nt = " nt" if OPT.get("tnt") else ""
    a(f"""
s_cmp_eq_u32 s{sWAVE}, 1
s_cbranch_scc1 L_{tag}_tw
s_cmp_eq_u32 s{sWAVE}, 2
s_cbranch_scc0 L_{tag}_tx
s_and_b32 s{sT}, s{sRB}, 7
s_cmp_eq_u32 s{sT}, 0
s_cselect_b32 s{sT}, 9, s{sT}
s_sub_u32 s{sT}, s{sT}, 1
s_lshl_b32 s{sT}, s{sT}, 7
s_and_b32 s{sT2}, s{sHG}, 3
s_lshl_b32 s{sT2}, s{sT2}, 5
s_lshl_b32 s{sT3}, s{sRB}, 7
s_add_u32 s{sT2}, s{sT2}, s{sT3}
v_and_b32 v1, 31, v0
v_add_u32 v1, s{sT2}, v1
v_mul_u32_u24 v1, 1152, v1
""")
    srd(SX, 36, 2359296)
    a(f"""
buffer_load_dword v26, v1, s[{SX}:{SX+3}], s{sT} offen{nt}
s_branch L_{tag}_tx
L_{tag}_tw:
s_and_b32 s{sT}, s{sHG}, 3
s_lshl_b32 s{sT}, s{sT}, 1
s_cmp_eq_u32 s{sT}, 0
s_cselect_b32 s{sT}, 9, s{sT}
s_sub_u32 s{sT}, s{sT}, 1
s_lshl_b32 s{sT}, s{sT}, 3
s_and_b32 s{sT2}, s{sRB}, 7
s_add_u32 s{sT}, s{sT}, s{sT2}
s_mul_i32 s{sT}, s{sT}, {8*3456}
s_add_u32 s{sT}, s{sT}, s{sM}
v_lshrrev_b32 v1, 3, v0
v_mul_u32_u24 v1, 3456, v1
v_bfe_u32 v2, v0, 1, 2
v_min_u32 v2, {parts-1}, v2
v_mul_u32_u24 v2, 1152, v2
v_and_b32 v3, 1, v0
v_mul_u32_u24 v3, 140, v3
v_add3_u32 v1, v1, v2, v3
""")
    srd(SW, 38, 1990656)
    a(f"buffer_load_dword v26, v1, s[{SW}:{SW+3}], s{sT} offen offset:{1152*(3-parts)}{nt}\nL_{tag}_tx:")

def init_stores(tag, with_kv):
    if OPT.get("xcc"):
        a(f"s_getreg_b32 s{sT}, hwreg(HW_REG_XCC_ID, 0, 4)\nv_mov_b32 v2, s{sT}\ns_lshl_b32 s{sT}, s2, 2\ns_add_u32 s{sT}, s{sT}, 0x6f0000\nv_mov_b32 v1, s{sT}\nbuffer_store_dword v2, v1, s[{SWS}:{SWS+3}], 0 offen sc1")
    a(f"""
s_or_b32 s{sT}, s{sHG}, s{sWAVE}
s_cmp_eq_u32 s{sT}, 0
s_cselect_b32 s55, 1, 0
v_mov_b32 v20, 0
v_mov_b32 v21, 0
v_mov_b32 v22, 0
v_mov_b32 v23, 0
s_cbranch_scc0 L_{tag}_i1
s_lshl_b32 s{sT}, s{sBR}, 4
s_add_u32 s{sT}, s{sT}, s{sRB}
s_lshl_b32 s{sT}, s{sT}, 8
s_add_u32 s{sT}, s{sT}, {WS_CNT}
v_mov_b32 v24, s{sT}
buffer_store_dword v20, v24, s[{SWS}:{SWS+3}], 0 offen sc1
L_{tag}_i1:
""")
    if with_kv:
        a(f"""
s_or_b32 s{sT}, s{sRB}, s{sWAVE}
s_cmp_eq_u32 s{sT}, 0
s_cbranch_scc0 L_{tag}_i2
s_or_b32 s55, s55, 2
s_mul_i32 s{sT}, s{sHG}, {KV_ST}
s_add_u32 s{sT}, s{sT}, {WS_KV}
v_lshl_add_u32 v24, v0, 4, s{sT}
""")
        for j in range(7):
            a(f"s_movk_i32 s{sK}, {1024*j}\nbuffer_store_dwordx4 v[20:23], v24, s[{SWS}:{SWS+3}], s{sK} offen sc1")
        a(f"L_{tag}_i2:")

def init_flags(tag):
    a(f"""
s_waitcnt vmcnt(0)
s_cmp_eq_u32 s55, 0
s_cbranch_scc1 L_{tag}_f2
v_mov_b32 v20, 1
s_bitcmp1_b32 s55, 0
s_cbranch_scc0 L_{tag}_f1
s_lshl_b32 s{sT}, s{sBR}, 4
s_add_u32 s{sT}, s{sT}, s{sRB}
s_lshl_b32 s{sT}, s{sT}, 2
s_add_u32 s{sT}, s{sT}, 32
v_mov_b32 v24, s{sT}
buffer_store_dword v20, v24, s[{SDBG}:{SDBG+3}], 0 offen sc1
L_{tag}_f1:
s_bitcmp1_b32 s55, 1
s_cbranch_scc0 L_{tag}_f2
s_lshl_b32 s{sT}, s{sHG}, 2
v_mov_b32 v25, s{sT}
buffer_store_dword v20, v25, s[{SDBG}:{SDBG+3}], 0 offen sc1
L_{tag}_f2:
""")

def kstep(tiles, nxt_reads, first, waits):
    pend = list(first)
    for t, (m0_, m1_) in enumerate(tiles):
        if t in waits:
            a(waits[t])
        a(m0_)
        for x in pend: a(x)
        a(m1_)
        pend = []
        if nxt_reads:
            a(nxt_reads[t][0]); pend = [nxt_reads[t][1]]
    for x in pend: a(x)

def a_consumer():
    acc = lambda t, rt: 144 + (t * 2 + rt) * 4
    wf = lambda t: 88 + 4 * t
    xf = lambda buf, rt: 72 + buf * 8 + rt * 4
    R8, R2, R8b, R2b, aX = 1, 5, 6, 10, 11
    vOF, vOL, vEXW, vEXR = 13, 14, 15, 16
    MC, MP, MPF, PM = 56, 60, 64, 68
    a("L_AC:\ns_waitcnt lgkmcnt(0)")
    gap_touch("AC", 3)
    srds_rest()
    init_stores("AC", False)
    rd_lanes(R8, R2, 17, 18); x_lane(aX, aX + 1, 17)
    for j in range(5):
        a(f"v_add_u32 v{R8b+j}, {4*A_WSLOT}, v{R8+j}")
    a(f"""
s_lshl_b32 s{sT}, s{sWAVE}, 12
s_add_u32 s{sT}, s{sT}, {A_X0}
v_add_u32 v{aX}, s{sT}, v{aX}
v_add_u32 v{aX+1}, s{sT}, v{aX+1}
s_lshr_b32 s{sT}, s{sWAVE}, 1
s_lshl_b32 s{sT}, s{sT}, 3
v_and_b32 v17, 15, v0
v_xor_b32 v17, s{sT}, v17
v_lshrrev_b32 v18, 4, v0
v_lshlrev_b32 v18, 2, v18
v_xor_b32 v18, s{sT}, v18
v_sub_u32 v17, v17, v18
v_mov_b32 v19, {NEG}
s_and_b32 s{sT}, s{sWAVE}, 1
s_or_b32 s{sT}, s{sT}, s{sRB}
s_cmp_eq_u32 s{sT}, 0
s_cselect_b64 s[42:43], -1, 0
""")
    for r in range(4):
        a(f"""
v_subrev_u32 v18, {r}, v17
v_cmp_gt_u32 vcc, 8, v18
v_cndmask_b32 v{MC+r}, v19, 0, vcc
v_cmp_gt_i32 vcc, -8, v18
v_cndmask_b32 v{MP+r}, v19, 0, vcc
v_cndmask_b32 v{MPF+r}, v{MP+r}, v19, s[42:43]
v_cmp_lt_i32 vcc, -1, v18
v_mov_b32 v20, {'0xffff' if r % 2 == 0 else '0xffff0000'}
v_cndmask_b32 v20, 0, v20, vcc
""")
        a(f"v_mov_b32 v{PM + r//2}, v20" if r % 2 == 0 else f"v_or_b32 v{PM + r//2}, v{PM + r//2}, v20")
    o_store_addr(vOF, vOL, 17, True)
    a(f"""
s_lshr_b32 s{sT}, s{sWAVE}, 1
s_add_u32 s{sT}, s{sT}, 1
s_mul_i32 s{sT}, s{sT}, 5120
s_bitcmp1_b32 s{sWAVE}, 0
s_cselect_b32 s{sT3}, s{sT}, 0
v_lshlrev_b32 v17, 3, v0
v_add_u32 v17, {A_EX}, v17
v_add_u32 v{vEXW}, s{sT}, v17
v_add_u32 v{vEXR}, s{sT3}, v17
""")

    def wreads(ks, t):
        slot = ks % 5
        o = 0 if slot == 4 else slot * A_WSLOT
        r8, r2 = (R8b, R2b) if slot == 4 else (R8, R2)
        if t == 4 or t == 13:
            o += 12288 if t == 4 else 13312
            return [tr(wf(t), r2, o), tr(wf(t) + 2, r2, o + 256)]
        s, j = (0, t) if t < 4 else (1, t - 5) if t < 9 else (2, t - 9)
        return [tr(wf(t), r8 + j, o + 4096*s), tr(wf(t) + 2, r8 + j, o + 4096*s + 1024)]
    xread = lambda ks, rt: f"ds_read_b128 {vr(xf(ks % 2, rt),4)}, v{aX + ks % 2} offset:{(ks//2 % 3)*A_XSLOT + rt*2048}"

    stamp()
    a("s_barrier")
    stamp()
    a(xread(0, 0)); a(xread(0, 1))
    for t in range(14):
        for x in wreads(0, t): a(x)
    for ks in range(18):
        if ks < 17:
            a("s_barrier")
        if OPT.get("fine") == 2 and ks in (2, 5, 8, 11, 14):
            stamp()
        if OPT.get("ret") and ks == 1:
            a(f"s_lshl_b32 s40, s2, 10\ns_lshl_b32 s41, s{sWAVE}, 8\ns_add_u32 s40, s40, s41\ns_add_u32 s40, s40, 0x580000\ns_add_u32 s40, s40, s{SWS}\ns_addc_u32 s41, s{SWS+1}, 0")
            if OPT["ret"] == 1:
                a("v_mov_b32 v28, 0\nglobal_load_dword v29, v28, s[40:41]")
        if OPT.get("ret") and ks == OPT.get("at", 7):
            if OPT["ret"] == 2:
                a("v_mov_b32 v28, 0\nglobal_load_dword v29, v28, s[40:41]\ns_waitcnt vmcnt(0)")
            a("s_waitcnt lgkmcnt(0)\ns_memtime s[100:101]\ns_waitcnt lgkmcnt(0)\ns_load_dword s38, s[40:41], 64\ns_waitcnt lgkmcnt(0)")
            stamp()
            j_ = sST + 2*(nstamp[0]-1)
            a(f"s_waitcnt lgkmcnt(0)\ns_sub_u32 s{j_}, s{j_}, s100\ns_lshl_b32 s{j_}, s{j_}, 3\ns_add_u32 s{j_}, s{j_}, s100")
        if OPT.get("dummy") == ks:
            if OPT.get("dpre"):
                a("s_getpc_b64 s[38:39]\nv_lshlrev_b32 v28, 7, v0\nv_min_u32 v28, 2304, v28\nglobal_load_dword v29, v28, s[38:39]\ns_waitcnt vmcnt(0)")
            a("s_waitcnt lgkmcnt(0)\ns_memtime s[100:101]\ns_memrealtime s[40:41]\ns_waitcnt lgkmcnt(0)")
            for n in range(128):
                kind = OPT.get("dkind", 0)
                if kind == 0:
                    a(mf(28 + 4 * (n % 4), 88, 72, "0"))
                elif kind == 1:
                    a(f"v_add3_u32 v{28 + n % 8}, v0, v0, v0\nv_add3_u32 v{36 + n % 8}, v0, v0, v0")
                else:
                    a(f"ds_read_b128 v[{28 + 4 * (n % 4)}:{31 + 4 * (n % 4)}], v{aX} offset:0")
            a("s_waitcnt lgkmcnt(0)")
            stamp()
            a("s_waitcnt lgkmcnt(0)")
            if not OPT.get("cyc"):
                a(f"s_sub_u32 s40, s{sST + 2*(nstamp[0]-1)}, s40\ns_add_u32 s{sST + 2*(nstamp[0]-1)}, s{sST}, s40")
        if ks == 3:
            init_flags("AC")
        tiles = []
        for t in range(14):
            c = lambda rt: acc(t, rt) if ks else "0"
            tiles.append([mf(acc(t, rt), wf(t), xf(ks % 2, rt), c(rt)) if t < 9 else mf(acc(t, rt), xf(ks % 2, rt), wf(t), c(rt)) for rt in range(2)])
        if ks < 17:
            nxt = [wreads(ks + 1, t) for t in range(14)]
            nxt[1] = [nxt[1][0], nxt[1][1] + "\n" + xread(ks + 1, 1)]
            kstep(tiles, nxt, [xread(ks + 1, 0)], {0: "s_waitcnt lgkmcnt(14)", 7: "s_waitcnt lgkmcnt(15)", 12: "s_waitcnt lgkmcnt(15)"})
        else:
            kstep(tiles, None, [], {0: "s_waitcnt lgkmcnt(14)", 7: "s_waitcnt lgkmcnt(0)"})
    stamp()
    KP = lambda j: 18 + 10 * j
    QT = lambda rt, h: 88 + 16 * rt + 4 * h
    VP = lambda t, j: 120 + 6 * t + 2 * j if t < 4 else 48 + 2 * j
    ONE = 72
    def pack_kv(rt):
        o = []
        for q in range(2):
            o += [cv(QT(rt, 3) + 2 + q, acc(4, rt) + 2*q), f"v_mov_b32 v{KP(1+rt) + 8 + q}, 0"]
        for tau in range(4):
            o += [cv(KP(1+rt) + 2*tau + q, acc(5+tau, rt) + 2*q) for q in range(2)]
        o += [f"v_permlane32_swap_b32 v{QT(rt,3) + 2 + q}, v{KP(1+rt) + 8 + q}" for q in range(2)]
        for t in range(5):
            o += [cv(VP(t, 1+rt) + q, acc(9+t, rt) + 2*q) for q in range(2)]
        return o
    def pack_q(rt):
        o = []
        for t in range(4):
            for q in range(2):
                d = QT(rt, t) + q
                o.append(cv(d, acc(t, rt) + 2*q))
                if (t, q) in SPLITS:
                    m = SPLITS[(t, q)]; lo = QT(rt, t-1) + 2 + q
                    o += [f"v_cndmask_b32 v{lo}, 0, v{d}, s[{m}:{m+1}]", f"v_xor_b32 v{d}, v{d}, v{lo}"]
        return o + [f"v_mov_b32 v{QT(rt,0) + 3}, 0"]
    weave([], pack_kv(1))
    a(f"s_bitcmp1_b32 s{sWAVE}, 0\ns_cbranch_scc1 L_AC_nodump")
    for j in range(5):
        a(f"ds_write_b64 v{vEXW}, {vr(KP(2) + 2*j, 2)} offset:{512*j}")
        a(f"ds_write_b64 v{vEXW}, {vr(VP(j, 2), 2)} offset:{512*(5+j)}")
    a("L_AC_nodump:")
    weave([], pack_kv(0) + pack_q(1))
    a("s_waitcnt lgkmcnt(0)\ns_barrier")
    for j in range(5):
        a(f"ds_read_b64 {vr(KP(0) + 2*j, 2)}, v{vEXR} offset:{512*j}")
        a(f"ds_read_b64 {vr(VP(j, 0), 2)}, v{vEXR} offset:{512*(5+j)}")
    SC = lambda rt, h: (224 if rt else 184) + 8 * h
    MX = lambda rt: [76 + 4 * rt + h for h in range(4)]
    PT = lambda rt, h: 144 + 16 * rt + 4 * h
    def qk(rt):
        o = []
        for h in range(4):
            o += [mf(SC(rt, h), KP(1+rt) + 2*h, QT(rt, h), MC), mf(SC(rt, h) + 4, KP(rt) + 2*h, QT(rt, h), MP if rt else MPF)]
        return o
    def rowmax(rt):
        o = []
        for h in range(4):
            s = SC(rt, h); m = MX(rt)[h]
            o += [f"v_max_f32 v{s+r}, v{s+r}, v{s+4+r}" for r in range(4)]
            o += [f"v_max3_f32 v{m}, v{s}, v{s+1}, v{s+2}", f"v_max_f32 v{m}, v{m}, v{s+3}"]
        return o
    def xmax(rt):
        m = MX(rt)
        return [f"v_permlane32_swap_b32 v{m[0]}, v{m[1]}", f"v_permlane32_swap_b32 v{m[2]}, v{m[3]}",
                f"v_max_f32 v{m[0]}, v{m[0]}, v{m[1]}", f"v_max_f32 v{m[2]}, v{m[2]}, v{m[3]}",
                f"v_permlane16_swap_b32 v{m[0]}, v{m[2]}", f"v_max_f32 v{m[0]}, v{m[0]}, v{m[2]}",
                f"v_mul_f32 v{m[0]}, s{sT2}, v{m[0]}", f"v_mov_b32 v{m[2]}, v{m[0]}",
                f"v_permlane16_swap_b32 v{m[0]}, v{m[2]}", f"v_mov_b32 v{m[1]}, v{m[0]}", f"v_mov_b32 v{m[3]}, v{m[2]}",
                f"v_permlane32_swap_b32 v{m[0]}, v{m[1]}", f"v_permlane32_swap_b32 v{m[2]}, v{m[3]}"]
    def probs(rt):
        o = []
        for h in range(4):
            s = SC(rt, h); p = PT(rt, h)
            o += [f"v_fma_f32 v{s+r}, v{s+r}, s{sT}, v{MX(rt)[h]}" for r in range(4)]
            o += [f"v_exp_f32 v{s+r}, v{s+r}" for r in range(4)]
            if h:
                o += split(rt, h - 1)
        return o + split(rt, 3)
    def split(rt, h):
        s = SC(rt, h); p = PT(rt, h); o = []
        for q in range(2):
            o += [cv(p + q, s + 2*q), f"v_and_b32 v{p+2+q}, v{p+q}, v{PM+q}", f"v_xor_b32 v{p+q}, v{p+q}, v{p+2+q}"]
        return o
    OB = lambda rt, t: (224 if rt else 184) + 4 * t
    OA = lambda rt, t: (224 if rt else 184) + 12 + 4 * t
    SM = lambda rt, h: 88 + 16 * rt + 4 * h
    OF = lambda rt: 18 + 10 * rt
    def pv(rt):
        o = [mf(SM(rt, h), ONE, PT(rt, h), "0") for h in range(4)]
        for t in range(5):
            if t < 4: o.append(mf(OB(rt, t), VP(t, rt), PT(rt, t), "0"))
            if t > 0: o.append(mf(OA(rt, t), VP(t, rt), PT(rt, t-1), "0"))
        return o
    def finish(rt):
        o = [f"v_rcp_f32 v{SM(rt,h)}, v{SM(rt,h)}" for h in range(4)]
        for t in range(5):
            for q in range(2):
                d = OF(rt) + 2*t + q
                srcs = []
                if t < 4: srcs.append((OB(rt, t) + 2*q, SM(rt, t), d))
                if t == 4: srcs.append((OA(rt, t) + 2*q, SM(rt, 3), d))
                if (t, q) in SPLITS: srcs.append((OA(rt, t) + 2*q, SM(rt, t-1), 17))
                for x, inv, dd in srcs:
                    o += [f"v_mul_f32 v{x}, v{x}, v{inv}", f"v_mul_f32 v{x+1}, v{x+1}, v{inv}", cv(dd, x)]
                if (t, q) in SPLITS:
                    m = SPLITS[(t, q)]
                    o.append(f"v_cndmask_b32 v{d}, v{d}, v17, s[{m}:{m+1}]")
        return o
    a(f"s_mov_b32 s{sT}, {f32(CSC)}\ns_mov_b32 s{sT2}, {f32(-CSC)}")
    weave(qk(1), pack_q(0) + [f"v_mov_b32 v{ONE+j}, 0x3f803f80" for j in range(4)])
    a("s_waitcnt lgkmcnt(0)")
    weave(qk(0), rowmax(1))
    x1, x0 = xmax(1), xmax(0)
    r0 = rowmax(0)
    for i, x in enumerate(x1):
        a(x)
        for y in r0[2*i:2*i+2]: a(y)
    p1 = probs(1)
    for i, x in enumerate(x0):
        a(x)
        for y in p1[2*i:2*i+2]: a(y)
    weave([], p1[2*len(x0):])
    weave(pv(1), probs(0))
    weave(pv(0), finish(1))
    o_store(OF(1), vOF, vOL, 1)
    weave([], finish(0))
    o_store(OF(0), vOF, vOL, 0)
    stamp()
    a("s_branch L_P2")

def phi(r, n, t):
    o = [f"v_pk_fma_f32 {vr(t+j,2)}, {vr(r+j,2)}, s[56:57], v[14:15]" for j in range(0, n, 2)]
    for j in range(n):
        o += [f"v_exp_f32 v{t+j}, v{t+j} clamp", f"v_max_f32 v{r+j}, s{sT2}, v{r+j}"]
    return o + [f"v_pk_add_f32 {vr(r+j,2)}, {vr(r+j,2)}, {vr(t+j,2)}" for j in range(0, n, 2)]

def b_consumer():
    acc = lambda t, rt: 184 + (t * 2 + rt) * 4
    wf = lambda t: 148 + 4 * t
    xf = lambda ks, rt: 52 + ks * 8 + rt * 4 if ks < 12 else 36 + (ks % 2) * 8 + rt * 4
    R8, R2, aX = 1, 5, 6
    vOF, vOL, vEX = 8, 9, 10
    CK, CS = 28, 32
    a("L_BC:\ns_waitcnt lgkmcnt(0)")
    gap_touch("BC", 2)
    srds_rest()
    init_stores("BC", True)
    rd_lanes(R8, R2, 17, 18); x_lane(aX, aX + 1, 17)
    a(f"""
s_lshl_b32 s{sT}, s{sWAVE}, 12
s_add_u32 s{sT}, s{sT}, {B_X0}
v_add_u32 v{aX}, s{sT}, v{aX}
v_add_u32 v{aX+1}, s{sT}, v{aX+1}
v_and_b32 v17, 15, v0
v_cmp_gt_u32 vcc, 8, v17
v_mov_b32 v18, {EPS}
s_mov_b64 s[42:43], vcc
s_mul_i32 s{sT}, s{sWAVE}, 10240
s_add_u32 s{sT}, s{sT}, {B_EX}
v_lshl_add_u32 v{vEX}, v0, 4, s{sT}
v_mov_b32 v14, {f32(-1e-6*LOG2E)}
v_mov_b32 v15, v14
s_mov_b32 s56, {f32(LOG2E)}
s_mov_b32 s57, s56
""")
    for r in range(4):
        a(f"v_mov_b32 v{CK+r}, v18\nv_cndmask_b32 v{CS+r}, 0, v18, vcc")
    o_store_addr(vOF, vOL, 17, False)

    def wreads(ks, t):
        o = (ks % 5) * B_KVSLOT
        if t == 4:
            return [tr(wf(t), R2, o + 8192), tr(wf(t) + 2, R2, o + 8192 + 256)]
        s, j = (0, t) if t < 4 else (1, t - 5)
        return [tr(wf(t), R8 + j, o + 4096*s), tr(wf(t) + 2, R8 + j, o + 4096*s + 1024)]
    xread = lambda ks, rt: f"ds_read_b128 {vr(xf(ks, rt),4)}, v{aX + ks % 2} offset:{(ks//2 % 3)*B_XSLOT + rt*2048}"

    stamp()
    a("s_barrier")
    stamp()
    a(xread(0, 0)); a(xread(0, 1))
    for t in range(9):
        for x in wreads(0, t): a(x)
    for ks in range(18):
        if ks < 17:
            a("s_barrier")
        if ks == 3:
            init_flags("BC")
        tiles = [[mf(acc(t, rt), xf(ks, rt), wf(t), acc(t, rt) if ks else (CK if t < 4 else CS if t == 4 else "0")) for rt in range(2)] for t in range(9)]
        if ks < 17:
            nxt = [wreads(ks + 1, t) for t in range(9)]
            nxt[1] = [nxt[1][0], nxt[1][1] + "\n" + xread(ks + 1, 1)]
            kstep(tiles, nxt, [xread(ks + 1, 0)], {0: "s_waitcnt lgkmcnt(12)", 3: "s_waitcnt lgkmcnt(13)", 6: "s_waitcnt lgkmcnt(13)", 8: "s_waitcnt lgkmcnt(11)"})
        else:
            kstep(tiles, None, [], {0: "s_waitcnt lgkmcnt(12)", 3: "s_waitcnt lgkmcnt(0)\ns_barrier"})
    stamp()
    a(f"s_mov_b32 s{sT2}, {EPS}\nv_mov_b32 v16, 0x3f803f80")
    wr = lambda reg, slot: f"ds_write_b128 v{vEX}, {vr(reg,4)} offset:{1024*slot}"
    pk = lambda d, s: [cv(d + j, s + 2*j) for j in range(4)]
    weave([], pk(156, acc(4, 0)) + [f"v_cndmask_b32 v{156+j}, v{156+j}, v16, s[42:43]" for j in range(4)] + [wr(156, 9)])
    xq = lambda ks, rt: 168 + (ks - 12) * 8 + rt * 4 if ks in (12, 13) else acc(2 * (ks - 14) + rt, 1) if ks in (14, 15) else xf(ks, rt)
    reread = lambda ks, rt: f"ds_read_b128 {vr(xq(ks, rt),4)}, v{aX + ks % 2} offset:{(ks//2 % 3)*B_XSLOT + rt*2048}"
    weave([], [reread(ks, rt) for ks in (12, 13) for rt in range(2)])
    for tau in range(5):
        o = phi(acc(tau, 0), 8, 148)
        if tau < 4:
            o = pk(acc(5+tau, 0), acc(5+tau, 0)) + o[:8] + [wr(acc(5+tau, 0), 5 + tau)] + o[8:]
        weave([], o + pk(acc(tau, 0), acc(tau, 0)) + [wr(acc(tau, 0), tau)])
        if tau < 4:
            a(reread(14 + tau // 2, tau % 2))
    for j in range(5):
        a(f"v_add_u32 v{R8+j}, {B_WQ0}, v{R8+j}")
    a("s_waitcnt lgkmcnt(0)\ns_barrier")
    stamp()
    QA = lambda t, rt: 216 + (t * 2 + rt) * 4
    qf = lambda t: 148 + 4 * t
    qbase = lambda p: B_WQ0 if p < 4 else 0 if p < 7 else 15360
    def qreads(p, t):
        o = wq_slot(p) - qbase(p)
        if t == 4:
            return [tr(qf(t), R2, o + 4096), tr(qf(t) + 2, R2, o + 4096 + 256)]
        return [tr(qf(t), R8 + t, o), tr(qf(t) + 2, R8 + t, o + 1024)]
    for t in range(5):
        for x in qreads(0, t): a(x)
    for p in range(18):
        ks = QORD[p]
        if p == 7 or (p == 13 and OPT.get('wob', 0)):
            a("s_barrier")
        tiles = [[mf(QA(t, rt), qf(t), xq(ks, rt), QA(t, rt) if p else CK) for rt in range(2)] for t in range(5)]
        if p < 17:
            nxt = [qreads(p + 1, t) for t in range(5)]
            if qbase(p + 1) != qbase(p):
                d = (qbase(p + 1) - qbase(p)) & 0xffffffff
                for t in range(5):
                    nxt[t][0] = f"v_add_u32 v{R8+t}, {d}, v{R8+t}\n" + nxt[t][0]
            kstep(tiles, nxt, [], {t: f"s_waitcnt lgkmcnt({7 if t else 8})" for t in range(5)})
        else:
            kstep(tiles, None, [], {t: f"s_waitcnt lgkmcnt({8 - 2*t})" for t in range(5)})
    stamp()
    PQ = lambda rt: 36 + 10 * rt
    KO = 84
    tup = {0: KO, 1: KO + 4, 2: KO + 12, 3: KO + 20, 4: KO + 28}
    ZO = KO + 32
    weave([], [f"v_mov_b32 v{r}, 0" for r in (tup[1]+4, tup[1]+5, tup[2]+4, tup[2]+5, tup[3]+4, tup[3]+5, ZO+8, ZO+9)])
    a(f"v_lshlrev_b32 v16, 3, v0\nv_add_u32 v16, {B_KVOP}, v16")
    for t in range(5):
        weave([], phi(QA(t, 0), 8, 148) + [cv(PQ(rt) + 2*t + q, QA(t, rt) + 2*q) for rt in range(2) for q in range(2)])
    stamp()
    a("s_barrier")
    stamp()
    tid = lambda tau, taup: {-1: tau - 1, 0: 4 + tau, 1: 9 + tau}[taup - tau]
    rd = lambda d, slot: a(f"ds_read_b64 {vr(d,2)}, v16 offset:{512*slot}")
    for j, d in enumerate((ZO, ZO + 2, ZO + 4, ZO + 6, ZO + 10)):
        rd(d, 13 + j)
    rd(tup[0], tid(0, 0)); rd(tup[0] + 2, tid(1, 0))
    for t in (1, 2, 3):
        rd(tup[t], tid(t-1, t)); rd(tup[t] + 2, tid(t, t)); rd(tup[t] + 6, tid(t+1, t))
    rd(tup[4], tid(3, 4)); rd(tup[4] + 2, tid(4, 4))
    DN = lambda rt: 148 + 4 * rt
    NM = lambda rt, t: 184 + 20 * rt + 4 * t
    OF = lambda rt: 156 + 10 * rt
    a("s_waitcnt lgkmcnt(13)")
    for k, (zo, po) in enumerate(((0, 0), (4, 4), (8, 6))):
        for rt in range(2):
            a(mf(DN(rt), ZO + zo, PQ(rt) + po, DN(rt) if k else CK))
    a("s_waitcnt lgkmcnt(0)")
    def num(rt):
        o = [mf(NM(rt, t), tup[t], PQ(rt) + 2*(t-1), "0") for t in (1, 2, 3)]
        o += [mf(NM(rt, 0), tup[0], PQ(rt), "0"), mf(NM(rt, 4), tup[4], PQ(rt) + 6, "0")]
        return o + [mf(NM(rt, t), tup[t] + 4, PQ(rt) + 2*t, NM(rt, t)) for t in (1, 2, 3)]
    def fin(rt, packed):
        o = []
        for t in (0, 4, 1, 2, 3):
            for q in range(2):
                inv = DN(rt) + min(t, 3)
                if (t, q) in SPLITS:
                    m = SPLITS[(t, q)]
                    o.append(f"v_cndmask_b32 v17, v{DN(rt)+t}, v{DN(rt)+t-1}, s[{m}:{m+1}]")
                    inv = 17
                n = NM(rt, t) + 2*q
                o += [f"v_mul_f32 v{n}, v{n}, v{inv}", f"v_mul_f32 v{n+1}, v{n+1}, v{inv}", cv(OF(rt) + 2*t + q, n)]
        return o
    weave(num(0), [], 0)
    weave(num(1), [f"v_rcp_f32 v{DN(rt)+h}, v{DN(rt)+h}" for rt in range(2) for h in range(4)], 1)
    for rt in range(2):
        weave([], fin(rt, True))
        o_store(OF(rt), vOF, vOL, rt)
    stamp()

def kv_index(wreg, VS, VG, VZ):
    a(f"s_cmp_eq_u32 s{wreg}, 0\ns_cselect_b32 s58, 4, s{wreg}")
    for slot in range(3):
        if slot == 0:
            a(f"s_lshl_b32 s{sT}, s58, 4\ns_sub_u32 s{sT2}, s{sT}, 16\ns_mov_b64 s[46:47], 0")
        elif slot == 1:
            a(f"s_lshl_b32 s{sT}, s{wreg}, 4\ns_mov_b32 s{sT2}, s{sT}")
        else:
            a(f"s_add_u32 s{sT2}, s{sT}, 16\ns_cmp_eq_u32 s{wreg}, 3\ns_cselect_b32 s{sT2}, 56, s{sT2}\ns_cselect_b64 s[46:47], s[44:45], 0")
        kv_tile(VS and VS + 2*slot, VG and VG + 2*slot, False)
    if VZ:
        kv_z(VZ)

def kv_tile(VS, VG, last):
    a(f"v_add_u32 v3, s{sT2}, v1")
    head_of(4, 3)
    a(f"v_mul_u32_u24 v5, 18, v4\nv_sub_u32 v3, v3, v5\nv_cndmask_b32 v4, v4, 7, s[46:47]")
    if last:
        a("v_cmp_eq_u32 vcc, 0, v1\nv_cndmask_b32 v4, v4, 3, vcc\nv_cndmask_b32 v3, v3, 18, vcc")
    for q in range(2):
        a(f"v_add3_u32 v5, v2, s{sT}, {2*q}")
        head_of(6, 5)
        a("v_cmp_eq_u32 vcc, v4, v6\nv_mad_u32_u24 v5, v5, 19, v3\nv_lshlrev_b32 v5, 2, v5")
        if VS:
            a(f"v_add_u32 v6, {B_STG}, v5\nv_cndmask_b32 v{VS+q}, v8, v6, vcc")
        if VG:
            a(f"v_add_u32 v6, s{sM}, v5\nv_cndmask_b32 v{VG+q}, v9, v6, vcc")

def kv_z(VZ):
    a("v_and_b32 v3, 3, v0")
    for q in range(2):
        a(f"v_add3_u32 v5, v2, s{sT}, {2*q}")
        head_of(6, 5)
        a(f"v_cmp_eq_u32 vcc, v3, v6\nv_mul_u32_u24 v5, 76, v5\nv_add3_u32 v5, v5, s{sM}, 64\nv_add_u32 v5, 8, v5\nv_cndmask_b32 v{VZ+q}, v9, v5, vcc")

def b_loader(kind):
    a(f"L_B{kind}1:")
    m = M0(42)
    issue = (lambda c: w_issue("B", c, m)) if kind == "W" else (lambda c: x_issue("B", c, m))
    pre = 1 if OPT.get("early") and kind == "W" else 2
    cnt = {c: issue(c) for c in range(1, pre + 1)}
    stamp()
    mark = len(a.lines)
    VS, VG, vZS, vEA, vE0, vEL, vLA, vGA, vLW = 72, 80, 98, 99, 100, 101, 102, 103, 105
    if kind == "W":
        a(f"v_subrev_u32 v{VD+5}, 1152, v{VD}\nv_subrev_u32 v{VD+6}, 1152, v{VD+1}")
    srds_rest()
    if kind == "W":
        wo_setup(False)
    else:
        sync_setup()
    a(f"""
s_add_u32 s55, s{sV}, 2
s_mul_i32 s{sM}, s{sHG}, {KV_ST}
s_add_u32 s{sM}, s{sM}, {WS_KV}
v_and_b32 v1, 15, v0
v_lshrrev_b32 v2, 4, v0
v_lshlrev_b32 v2, 2, v2
v_cmp_gt_u32 s[44:45], 8, v1
v_lshlrev_b32 v8, 2, v0
v_add_u32 v8, {B_DUMP}, v8
v_mov_b32 v9, {OOB}
""")
    own = sV if kind == "X" else 55
    if kind == "X":
        kv_index(55, None, VG, VG + 6)
        a(f"s_movk_i32 s{sT}, 64")
        kv_z(10)
    kv_index(own, VS, VG + 8 if kind == "X" else None, VG + 14 if kind == "X" else None)
    a(f"""
v_add_u32 v5, s{sT}, v0
v_mul_u32_u24 v5, 76, v5
v_add_u32 v5, {B_STG + 72}, v5
v_cndmask_b32 v{vZS}, v8, v5, s[{sG0}:{sG0+1}]
v_lshlrev_b32 v{vEL}, 4, v0
v_add_u32 v{vEL}, {B_EX}, v{vEL}
s_lshl_b32 s{sT}, s{own}, 10
v_add_u32 v{vEA}, s{sT}, v{vEL}
s_lshl_b32 s{sT}, s58, 10
v_add_u32 v{vE0}, s{sT}, v{vEL}
""")
    if kind == "X":
        a(f"s_movk_i32 s{sT}, 64\ns_movk_i32 s{sT2}, 56\ns_mov_b64 s[46:47], s[44:45]")
        kv_tile(VS + 6, VG + 16, True)
        a(f"s_cmp_eq_u32 s{sV}, 0\ns_cselect_b64 s[46:47], -1, 0")
        for q in range(2):
            a(f"v_cndmask_b32 v{VS+6+q}, v8, v{VS+6+q}, s[46:47]\nv_cndmask_b32 v{VG+16+q}, v{10+q}, v{VG+16+q}, s[46:47]")
        a(f"""
v_lshlrev_b32 v5, 3, v0
v_add_u32 v5, {B_KVOP}, v5
s_lshl_b32 s{sT2}, s58, 9
s_sub_u32 s{sT2}, s{sT2}, 512
v_add_u32 v{vLW+2}, s{sT2}, v5
s_lshl_b32 s{sT2}, s{sV}, 9
v_add_u32 v{vLW+1}, s{sT2}, v5
v_add_u32 v{vLW}, 1024, v{vLW+1}
s_mul_i32 s{sT2}, s{sV}, {9*512}
v_add_u32 v{vLW+3}, s{sT2}, v5
s_mul_i32 s{sT}, s{sV}, 2816
v_lshl_add_u32 v{vLA}, v0, 2, s{sT}
v_add_u32 v{vGA}, s{sM}, v{vLA}
v_cmp_gt_u32 vcc, {5472 - 2560}, v{vLA}
v_cndmask_b32 v{vGA+1}, v9, v{vGA}, vcc
v_add_u32 v{vLA}, {B_STG}, v{vLA}
v_mov_b32 v4, 0
""")
    a(f"v_mov_b32 v10, {B_LCNT}\nv_mov_b32 v11, 1")
    if kind == "X":
        a("ds_write_b32 v10, v4\ns_waitcnt lgkmcnt(0)")
    setup = a.lines[mark:]
    del a.lines[mark:]
    per = -(-len(setup) // 9)
    a(f"s_waitcnt vmcnt({sum(cnt.values())})\ns_barrier")
    stamp()
    extra = 0
    for i in range(-1, 16):
        if i == -1 and pre == 1:
            cnt[2] = issue(2)
        if i + 4 <= 17:
            cnt[i+4] = issue(i + 4)
        if 0 <= i < 9:
            a("s_cmp_eq_u32 s59, 1")
            a.lines += setup[per*i:per*(i+1)]
            a("s_cselect_b32 s59, 1, 0")
        if i == 10 and kind == "X":
            flag_load(sFO, 98); flag_load(sFK, 99)
        if kind == "W" and i >= 14:
            extra += wq_issue(2*(i-14), m) + wq_issue(2*(i-14) + 1, m)
        left = sum(cnt.get(c, 0) for c in range(i + 3, min(i + 4, 17) + 1)) + extra
        a(f"s_waitcnt vmcnt({left})\ns_barrier")
    a("s_barrier")
    if kind == "W":
        for p in (4, 5, 6, 7, 13, 14, 15, 16, 17):
            wq_issue(p, m)
        a("s_waitcnt vmcnt(15)")
    else:
        flag_check(sFK, 99, "L_BX_fk")
    stamp()
    a("s_barrier")
    stamp()
    if kind == "W":
        for p in range(8, 13):
            wq_issue(p, m)
    KT = lambda s: 40 + 4 * s
    RD = lambda src, j: 112 + 28 * src + 4 * j
    srcs = ((vEA, 0), (vE0, 0), (vE0, 4096), (vEA, 5120), (vEA, 6144), (vEL, 9216), (vEL, 4096))
    prods = ((1, 2), (0, 3), (0, 4), (6, 5), (5, 0))
    if kind == "W":
        srcs = ((vEA, 0), None, (vE0, 4096), (vEA, 5120), (vEA, 6144), (vEL, 9216))
        prods = ((0, 2), (0, 3), (0, 4), None, (5, 0))
    nr = sum(x is not None for x in srcs)
    for src in range(4):
        for j, x in enumerate(srcs):
            if x: a(f"ds_read_b128 {vr(RD(src, j),4)}, v{x[0]} offset:{src*10240 + x[1]}")
    for src in range(4):
        a(f"s_waitcnt lgkmcnt({min(15, nr*(3-src))})")
        for s_, x in enumerate(prods):
            if x: a(mf(KT(s_), RD(src, x[0]), RD(src, x[1]), KT(s_) if src else "0"))
    for s_ in range(4 if kind == "X" else 3):
        for r in range(4):
            a(f"ds_write_b32 v{VS + 2*s_ + r//2}, v{KT(s_)+r} offset:{76*(r%2)}")
    a(f"ds_write_b32 v{vZS}, v{KT(4)}")
    a("s_waitcnt lgkmcnt(0)\ns_mov_b64 exec, 1\nds_add_u32 v10, v11\ns_mov_b64 exec, -1")
    stamp()
    b1, b2, b3 = {0: ((0, 1, 2, 3, 4, 5), (), (6, 7, 8)), 1: ((0, 1, 2), (3, 4, 5, 6, 7, 8), ()), 2: ((0, 1, 2), (3, 4, 5), (6, 7, 8))}[OPT.get("wob", 0)]
    if kind == "W":
        a("s_waitcnt vmcnt(0)\ns_barrier")
        for g in b1: wo_pair(g)
        if b2:
            a("s_barrier")
            for g in b2: wo_pair(g)
        stamp()
        a("s_barrier")
        loader_tail("BW", b3)
        return
    a(f"""
s_mov_b32 s{sT3}, 0x400000
L_BX_st:
ds_read_b32 v2, v10
s_waitcnt lgkmcnt(0)
v_readfirstlane_b32 s{sT}, v2
s_sub_u32 s{sT3}, s{sT3}, 1
s_cbranch_scc1 L_BX_st_x
s_cmp_ge_u32 s{sT}, 4
s_cbranch_scc0 L_BX_st
L_BX_st_x:
""")
    for n in range(11):
        a(f"ds_read_b32 v{40+n}, v{vLA} offset:{256*n}")
    for n in range(11):
        a(f"s_waitcnt lgkmcnt({10-n})")
        a(f"buffer_atomic_add_f32 v{40+n}, v{vGA + (n == 10)}, s[{SWS}:{SWS+3}], 0 offen offset:{256*n}")
    stamp()
    a("s_barrier")
    if b2:
        a("s_barrier")
    a("s_waitcnt vmcnt(0)")
    stamp()
    arrive_wait(sKC, 32, "L_BX_kc")
    stamp()
    for s_ in range(9):
        for r in range(4):
            a(f"buffer_load_dword v{112+4*s_+r}, v{VG + 2*s_ + r//2}, s[{SWS}:{SWS+3}], 0 offen offset:{76*(r%2)} sc1")
    dst = ((vLW, -1), (vLW, 4), (vLW, 9), (vLW, 13), (vLW + 2, 0), (vLW + 1, 4), (vLW + 1, 9), (vLW + 1, 13), (vLW + 3, 8))
    a(f"v_subrev_u32 v11, 512, v{vLW}")
    for s_, (ad, off) in enumerate(dst):
        a(f"s_waitcnt vmcnt({4*(8-s_)})")
        a(cv(40 + 2*s_, 112 + 4*s_)); a(cv(41 + 2*s_, 114 + 4*s_))
        a(f"ds_write_b64 v{11 if off < 0 else ad}, {vr(40+2*s_,2)} offset:{512*max(off, 0)}")
    a("s_waitcnt lgkmcnt(0)")
    stamp()
    a("s_barrier")
    loader_tail("BX")

def p2_consumer():
    OFR = lambda ks, rt: 112 + ks * 8 + rt * 4
    ACC = lambda t, rt: 72 + (t * 2 + rt) * 4
    wf = lambda t: 52 + 4 * t
    R8, R2, vO, vTW, vTR, VS = 1, 5, 6, 7, 8, 9
    AH = OPT["ahead"]
    a("L_P2:")
    nstamp[0] = 10
    rd_lanes(R8, R2, 17, 18)
    for j in range(5):
        a(f"v_add_u32 v{R8+j}, {R1}, v{R8+j}")
    a(f"""
v_lshl_add_u32 v{vO}, v0, 4, s58
s_mul_i32 s{sT}, s{sWAVE}, 4608
s_add_u32 s{sT}, s{sT}, {P_TR}
v_and_b32 v17, 15, v0
v_mul_u32_u24 v17, 144, v17
v_lshrrev_b32 v18, 4, v0
v_lshl_add_u32 v17, v18, 3, v17
v_add_u32 v{vTW}, s{sT}, v17
v_lshl_add_u32 v{vTR}, v0, 4, s{sT}
s_lshr_b32 s{sT}, s{sWAVE}, 1
s_and_b32 s{sT2}, s{sWAVE}, 1
s_lshl_b32 s{sT2}, s{sT2}, 5
s_lshl_b32 s{sT3}, s{sWAVE}, 5
s_cmp_eq_u32 s{sBR}, 0
s_cselect_b32 s42, s{sT}, 0
s_cselect_b32 s43, s{sT2}, s{sT3}
s_cselect_b32 s55, 1, 0
s_lshl_b32 s56, s42, 3
s_lshl_b32 s{sT}, s{sRB}, 7
s_add_u32 s42, s42, s{sT}
s_mul_i32 s{sT}, s{sBR}, 1152
s_mul_i32 s{sT2}, s{sHG}, 144
s_add_u32 s57, s{sT}, s{sT2}
""")
    for n in range(5):
        a(f"""
v_add_u32 v17, {64*n}, v0
v_mul_u32_u24 v18, 7282, v17
v_lshrrev_b32 v18, 16, v18
v_mul_u32_u24 v19, 9, v18
v_sub_u32 v19, v17, v19
v_add_u32 v18, s43, v18
v_xor_b32 v18, s56, v18
v_lshlrev_b32 v18, s55, v18
v_add_u32 v18, s42, v18
v_mul_u32_u24 v18, 2304, v18
v_lshl_add_u32 v18, v19, 4, v18
v_add_u32 v{VS+n}, s57, v18
""")
    a(f"v_mov_b32 v17, {OOB}\nv_cndmask_b32 v{VS+4}, v17, v{VS+4}, s[{sG01}:{sG01+1}]")
    a(f"v_add_u32 v14, 18432, v{vO}")
    SO = [8, 9, 10, 11, 12, 13, 14, 15, 36]
    rho(37)
    a(f"s_movk_i32 s{SO[0]}, 16384")
    for j in range(1, 9):
        a(f"s_add_u32 s{sT}, s37, {2*j-2}\ns_and_b32 s{sT}, s{sT}, 15\ns_lshl_b32 s{SO[j]}, s{sT}, 10")
    a("s_waitcnt vmcnt(0)")
    stamp()
    a("s_barrier\ns_barrier")
    stamp()
    def oload(ks, rt):
        return f"buffer_load_dwordx4 {vr(OFR(ks, rt),4)}, v{14 if rt else vO}, s[{SWS}:{SWS+3}], s{SO[ks//2]} offen offset:{1024*(ks%2)} sc1"
    base = lambda ks: R1 if ks < 3 else 0 if 9 <= ks < 12 else R2_
    R2_ = 43008
    def wreads(ks, t):
        o = WO[ks] - base(ks)
        if t == 4:
            return [tr(wf(t), R2, o + 4096), tr(wf(t) + 2, R2, o + 4096 + 256)]
        return [tr(wf(t), R8 + t, o), tr(wf(t) + 2, R8 + t, o + 1024)]
    for ks in range(AH):
        a(oload(ks, 0)); a(oload(ks, 1))
    for t in range(5):
        for x in wreads(0, t): a(x)
    for ks in range(18):
        tiles = [[mf(ACC(t, rt), wf(t), OFR(ks, rt), ACC(t, rt) if ks else "0") for rt in range(2)] for t in range(5)]
        w0 = f"s_waitcnt vmcnt({2*min(AH - 1, 17 - ks)}) lgkmcnt(8)"
        if ks < 17:
            nxt = [wreads(ks + 1, t) for t in range(5)]
            if base(ks + 1) != base(ks):
                d = (base(ks + 1) - base(ks)) & 0xffffffff
                for t in range(5):
                    nxt[t][0] = f"v_add_u32 v{R8+t}, {d}, v{R8+t}\n" + nxt[t][0]
            first = []
            if ks + AH < 18:
                first = [oload(ks + AH, 0)]
                nxt[1][1] += "\n" + oload(ks + AH, 1)
            kstep(tiles, nxt, first, {t: "s_waitcnt lgkmcnt(7)" if t else w0 for t in range(5)})
        else:
            kstep(tiles, None, [], {t: f"s_waitcnt lgkmcnt({8 - 2*t})" if t else w0 for t in range(5)})
        if ks == 0:
            stamp()
    stamp()
    for rt in range(2):
        for t in range(5):
            d = 20 + 2*(rt*5 + t)
            a(cv(d, ACC(t, rt))); a(cv(d + 1, ACC(t, rt) + 2))
            if t == 4:
                a(f"s_mov_b64 exec, s[{sG01}:{sG01+1}]")
            a(f"ds_write_b64 v{vTW}, {vr(d,2)} offset:{rt*2304 + 32*t}")
            if t == 4:
                a("s_mov_b64 exec, -1")
    a("s_waitcnt lgkmcnt(0)")
    for n in range(5):
        a(f"ds_read_b128 {vr(112+4*n,4)}, v{vTR} offset:{1024*n}")
    for n in range(5):
        a(f"s_waitcnt lgkmcnt({4-n})")
        a(f"buffer_store_dwordx4 {vr(112+4*n,4)}, v{VS+n}, s[{SOUT}:{SOUT+3}], 0 offen")
    stamp()
    stamps_out(True)
    a("s_endpgm")

HEADER = open("concat_heads__sliding_local_dilated__linear_attn_block__prompt.s.ref").read().split("; Override")[0]
out = HEADER + "; @launch grid=(256,1,1) block=(512,1,1) lds=163840\n"
a('.amdgcn_target "amdgcn-amd-amdhsa--gfx950"\n.text')
a(kernel_head(KN))
if OPT["stamps"]:
    for i in range(16):
        a(f"s_mov_b32 s{sST+2*i}, 0")
stamp()
a(f"""
s_cmp_ge_u32 s2, 256
s_cbranch_scc1 L_end
s_and_b32 s{sT}, s2, 7
s_lshr_b32 s{sBR}, s{sT}, 2
{'s_xor_b32 s6, s6, 1' if OPT.get('swap') else ''}
s_mul_i32 s{sT2}, s{sBR}, 24
s_add_u32 s0, s0, s{sT2}
s_addc_u32 s1, s1, 0
s_load_dwordx4 s[36:39], s[0:1], 0
s_load_dwordx2 s[40:41], s[0:1], 16
s_sub_u32 s0, s0, s{sT2}
s_subb_u32 s1, s1, 0
s_load_dwordx4 s[44:47], s[0:1], 48
s_load_dwordx2 s[48:49], s[0:1], 64
v_lshrrev_b32 v1, 6, v0
v_and_b32 v0, 63, v0
v_readfirstlane_b32 s{sWAVE}, v1
s_lshr_b32 s{sT2}, s2, 3
""")
m84 = f"""
s_and_b32 s{sHG}, s{sT2}, 3
s_and_b32 s{sT3}, s{sT}, 1
s_lshl_b32 s{sT3}, s{sT3}, 2
s_add_u32 s{sHG}, s{sHG}, s{sT3}
s_lshr_b32 s{sRB}, s{sT2}, 2
s_and_b32 s{sT3}, s{sT}, 2
s_lshl_b32 s{sT3}, s{sT3}, 2
s_add_u32 s{sRB}, s{sRB}, s{sT3}
"""
m48 = f"""
s_and_b32 s{sHG}, s{sT2}, 7
s_lshr_b32 s{sRB}, s{sT2}, 3
s_and_b32 s{sT3}, s{sT}, 3
s_lshl_b32 s{sT3}, s{sT3}, 2
s_add_u32 s{sRB}, s{sRB}, s{sT3}
"""
if OPT["mapping"] == 84:
    a(m84)
elif OPT["mapping"] == 48:
    a(m48)
else:
    a(m48 + f"s_cmp_eq_u32 s{sBR}, {0 if OPT['mapping'] == 8448 else 1}\ns_cbranch_scc0 L_map" + m84 + "L_map:")
rot = ""
if OPT.get("rot") == 2:
    rot = f"""s_lshr_b32 s90, s2, 1
s_xor_b32 s90, s90, s2
s_and_b32 s90, s90, 1
s_mul_i32 s91, s90, {OPT.get("rotby", 5)*128}
s_mul_i32 s90, s90, {OPT.get("rotby", 5)*64*3456}"""
elif OPT.get("rot") == 3:
    rot = f"""s_lshr_b32 s90, s2, 1
s_xor_b32 s90, s90, s2
s_and_b32 s90, s90, 1
s_mul_i32 s90, s90, 5
s_add_u32 s91, s{sRB}, s{sHG}
s_and_b32 s91, s91, 3
s_add_u32 s90, s90, s91
s_lshl_b32 s91, s90, 7
s_mul_i32 s90, s90, {64*3456}"""
elif OPT.get("rot") == 7:
    rot = f"""s_and_b32 s90, s{sHG}, 3
s_and_b32 s91, s{sRB}, 7
s_lshl1_add_u32 s90, s90, s91
s_cmp_ge_u32 s90, 9
s_cselect_b32 s91, 9, 0
s_sub_u32 s90, s90, s91
s_lshl_b32 s91, s90, 7
s_mul_i32 s90, s90, {64*3456}"""
elif OPT.get("rot") in (4, 5, 6):
    tab = {4: 0x75207520, 5: 0x63006300, 6: 0x86427531}[OPT["rot"]]
    rot = f"""s_add_u32 s90, s{sRB}, s{sHG}
s_and_b32 s90, s90, 7
s_lshl_b32 s90, s90, 2
s_lshr_b32 s90, {hex(OPT.get("tab", tab))}, s90
s_and_b32 s90, s90, 15
s_lshl_b32 s91, s90, 7
s_mul_i32 s90, s90, {64*3456}"""
elif OPT.get("rot"):
    few, many = (sRB, sHG) if OPT["mapping"] == 48 else (sHG, sRB)
    rot = f"""s_and_b32 s90, s{few}, 3
s_lshl_b32 s90, s90, 2
s_lshr_b32 s90, 0x7520, s90
s_and_b32 s90, s90, 15
s_and_b32 s91, s{many}, 7
s_add_u32 s90, s90, s91
s_cmp_ge_u32 s90, 9
s_cselect_b32 s91, 9, 0
s_sub_u32 s90, s90, s91
s_lshl_b32 s91, s90, 7
s_mul_i32 s90, s90, {64*3456}"""
a(f"""
s_mov_b32 s{sG0}, 0xffff
s_mov_b32 s{sG0+1}, 0
s_mov_b32 s{sG01}, -1
s_mov_b32 s{sG01+1}, 0
s_and_b32 s{sV}, s{sWAVE}, 1
s_mul_i32 s{sM}, s{sHG}, 144
s_cmp_lt_u32 s{sWAVE}, 4
s_cbranch_scc1 L_cons
s_setprio {OPT.get("prio", 2)}
s_mov_b32 s59, 0
{rot}
s_cmp_lt_u32 s{sWAVE}, 6
s_cbranch_scc1 L_wld
s_cmp_eq_u32 s{sBR}, 0
s_cbranch_scc1 L_AX0
s_branch L_BX0
L_wld:
s_cmp_eq_u32 s{sBR}, 0
s_cbranch_scc1 L_AW0
s_branch L_BW0
L_cons:
s_getpc_b64 s[42:43]
L_pc:
s_lshl_b32 s{sT}, s{sT2}, 2
s_add_u32 s{sT}, s{sT}, s{sWAVE}
s_lshl_b32 s{sT}, s{sT}, 9
v_and_b32 v1, 3, v0
v_lshlrev_b32 v1, 7, v1
v_add_u32 v1, s{sT}, v1
v_min_u32 v1, {'L_last2' if OPT.get('ifetch') == 1 else 'L_last'}-L_pc, v1
{'global_load_dword v27, v1, s[42:43]' if not OPT.get('nopf') else ''}
s_cmp_eq_u32 s{sBR}, 0
s_cbranch_scc1 L_AC
s_branch L_BC
L_end:
s_endpgm
""")
w_head("A"); w_head("B"); x_head("A"); x_head("B")
n0 = nstamp[0]
for fn in (lambda: a_loader("W"), lambda: a_loader("X"), a_consumer, lambda: b_loader("W"), lambda: b_loader("X"), b_consumer, p2_consumer):
    nstamp[0] = n0
    fn()
a("s_endpgm" if OPT.get("ifetch", 0) > 1 else "L_last2:\ns_endpgm" if OPT.get("ifetch") else "L_last:\ns_endpgm")
lines = []
for l in a.lines: lines += l.split("\n")
if OPT.get("noread"):
    lines = [l for l in lines if not l.startswith("ds_read_b64_tr")]
if OPT.get("nomfma"):
    lines = [l for l in lines if not l.startswith("v_mfma")]
lines, added = hz.fix(lines)
out += "\n".join(lines) + "\n"
out += '.section .rodata,"a"\n.p2align 6\n' + kernel_desc(KN, 256, 102 if OPT.get('cyc') else 100, 256)
sys.stdout.write(out)
sys.stderr.write(f"nop states added: {added}\n")
```

```python
import sys, struct
from asmlib import *
import hz

OPT = dict(stamps=0, mapping=48, ahead=6, rot=4, nt=1)
for arg in sys.argv[1:]:
    k, v = arg.split("=")
    OPT[k] = int(v)
KN = "concat_heads__sliding_local_dilated__linear_attn_block__prompt_kernel"

def f32(x):
    return "0x%08x" % struct.unpack("<I", struct.pack("<f", x))[0]

LOG2E = 1.4426950408889634
CSC = 18 ** -0.5 * LOG2E
NEG = "0xf149f2ca"
EPS = f32(1e-6)
OOB = "0x80000000"

O_BR = 0x240000
WS_KV = 0x500000
KV_ST = 0x2000
WS_CNT = 0x540000
WS_STAMP = 0x600000
WS_SIZE = 0x700000

sWAVE, sHG, sRB, sBR, sT = 3, 4, 5, 6, 7
SX, SW, SWS, SDBG, SWO, SOUT = 8, 12, 16, 20, 24, 28
sG0, sG01 = 32, 34
sK, sV, sM, sT2, sT3 = 50, 51, 52, 53, 54
sST = 60

a = Asm()
nstamp = [0]

def stamp():
    if OPT["stamps"]:
        i = nstamp[0]; nstamp[0] += 1
        assert i < 15
        a(f"{'s_memrealtime' if OPT.get('rt') or OPT.get('probe') and not (OPT.get('cyc') and i) else 's_memtime'} s[{sST+2*i}:{sST+2*i+1}]")
        if OPT.get("cyc") and i == 0:
            a("s_memtime s[100:101]")

def stamps_out(last=False):
    if not OPT["stamps"]:
        return
    if OPT.get("probe"):
        if last:
            j = sST + 2 * OPT["probe"]
            if OPT.get("ifetch"):
                mode = OPT["ifetch"]
                a(f"""
s_waitcnt vmcnt(0) lgkmcnt(0)
s_cmp_eq_u32 s2, {OPT.get('wg', 0)}
s_cbranch_scc0 L_probe_x
s_cmp_eq_u32 s{sWAVE}, 0
s_cbranch_scc0 L_probe_x
s_sleep 127
s_sleep 127
s_getpc_b64 s[44:45]
L_if_pc:
s_add_u32 s44, s44, L_if_blk-L_if_pc
s_addc_u32 s45, s45, 0
v_lshlrev_b32 v1, 7, v0
v_min_u32 v1, 4096, v1
""")
                if mode == 2:
                    a("global_load_dword v2, v1, s[44:45]\ns_waitcnt vmcnt(0)")
                a(f"""
s_memtime s[100:101]
s_waitcnt lgkmcnt(0)
s_branch L_if_blk
L_last:
.fill {(0 if mode == 1 else 8192)}, 4, 0xbf800000
L_if_blk:
.rept 512
v_add3_u32 v5, v0, v0, v0
.endr
s_memtime s[{j}:{j+1}]
s_waitcnt lgkmcnt(0)
s_sub_u32 s{j}, s{j}, s100
s_lshl_b32 s{j}, s{j}, 3
s_add_u32 s{j}, s{j}, s100
""")
            if OPT.get("vrate"):
                isw = OPT["vrate"] == 1
                a(f"""
s_waitcnt vmcnt(0) lgkmcnt(0)
s_load_dwordx2 s[44:45], s[0:1], {8 if isw else 0}
s_sleep 127
s_sleep 127
s_waitcnt lgkmcnt(0)
s_mov_b32 s46, {1990656 if isw else 2359296}
s_mov_b32 s47, 0x20000
v_lshrrev_b32 v1, 3, v0
v_mul_u32_u24 v1, {3456 if isw else 2304}, v1
v_and_b32 v2, 7, v0
v_lshl_add_u32 v1, v2, 4, v1
s_mov_b32 m0, 0
""")
                for rep in range(2):
                    if rep:
                        a("s_memtime s[100:101]\ns_waitcnt lgkmcnt(0)")
                    a(f"s_mov_b32 s40, 0\nL_vr{rep}:")
                    for n in range(3):
                        a(f"buffer_load_dwordx4 v1, s[44:47], s40 offen offset:{n*1152 if isw else n*128} lds")
                    a(f"s_waitcnt vmcnt(24)\ns_add_u32 s40, s40, {8*3456 if isw else 8*2304}\ns_cmp_lt_u32 s40, {72*8*3456 if isw else 72*8*2304}\ns_cbranch_scc1 L_vr{rep}\ns_waitcnt vmcnt(0)")
                a(f"s_memtime s[{j}:{j+1}]\ns_waitcnt lgkmcnt(0)\ns_sub_u32 s{j}, s{j}, s100\ns_lshl_b32 s{j}, s{j}, 3\ns_add_u32 s{j}, s{j}, s100")
            if OPT.get("lat"):
                a(f"""
s_waitcnt vmcnt(0) lgkmcnt(0)
s_load_dwordx2 s[44:45], s[0:1], {OPT['lat'] - 8}
s_sleep 127
s_sleep 127
s_sleep 127
s_waitcnt lgkmcnt(0)
s_mov_b32 s46, 0x100000
s_mov_b32 s47, 0x20000
v_mov_b32 v1, 0x20000
buffer_load_dword v2, v1, s[44:47], 0 offen {'sc1' if OPT.get('first') != 2 else ''}
s_waitcnt vmcnt(0)
v_mov_b32 v1, {'0x20000' if not OPT.get('first') else '0x20040'}
s_memtime s[100:101]
s_waitcnt lgkmcnt(0)
buffer_load_dword v2, v1, s[44:47], 0 offen sc1
s_waitcnt vmcnt(0)
s_memtime s[{j}:{j+1}]
s_waitcnt lgkmcnt(0)
s_sub_u32 s{j}, s{j}, s100
s_lshl_b32 s{j}, s{j}, 5
s_add_u32 s{j}, s{j}, s100
""")
            if OPT.get("xcc"):
                a(f"""
s_waitcnt vmcnt(0) lgkmcnt(0)
v_and_b32 v1, 31, v0
v_lshlrev_b32 v1, {5 if OPT['xcc'] == 1 else 2}, v1
v_add_u32 v1, 0x6f0000, v1
buffer_load_dword v2, v1, s[{SWS}:{SWS+3}], 0 offen sc1
s_getreg_b32 s44, hwreg(HW_REG_XCC_ID, 0, 4)
s_waitcnt vmcnt(0)
v_cmp_eq_u32 vcc, s44, v2
s_bcnt1_i32_b32 s44, vcc_lo
s_mul_i32 s44, s44, 10
s_add_u32 s{j}, s{sST}, s44
""")
            a(f"""
s_waitcnt vmcnt(0) lgkmcnt(0)
s_cmp_eq_u32 s2, {OPT.get('wg', 0)}
s_cbranch_scc0 L_probe_x
s_cmp_eq_u32 s{sWAVE}, 0
s_cbranch_scc0 L_probe_x
s_sub_u32 s{sT}, s{j}, s{100 if OPT.get('cyc') else sST}
{'s_lshr_b32 s7, s7, 3' if OPT.get('cyc') else 's_mul_i32 s7, s7, 10'}
s_min_u32 s{sT}, s{sT}, 100000
s_add_u32 s{sT}, s{sT}, 6000
L_probe:
s_memrealtime s[44:45]
s_waitcnt lgkmcnt(0)
s_sub_u32 s44, s44, s{sST}
s_cmp_lt_u32 s44, s{sT}
s_cbranch_scc1 L_probe
L_probe_x:
""")
        return
    a("s_waitcnt vmcnt(0) lgkmcnt(0)")
    a(f"s_lshl_b32 s{sT}, s2, 3\ns_add_u32 s{sT}, s{sT}, s{sWAVE}\ns_lshl_b32 s{sT}, s{sT}, 6")
    a(f"s_add_u32 s{sT}, s{sT}, {WS_STAMP}\nv_mov_b32 v1, s{sT}")
    for i in range(16):
        a(f"v_mov_b32 v2, s{sST+2*i}")
        a(f"buffer_store_dword v2, v1, s[{SWS}:{SWS+3}], 0 offen offset:{4*i}")
    a("s_waitcnt vmcnt(0)")

def mf(d, s0, s1, c):
    cc = c if isinstance(c, str) else vr(c, 4)
    return f"v_mfma_f32_16x16x32_bf16 {vr(d,4)}, {vr(s0,4)}, {vr(s1,4)}, {cc}"
def cv(d, x):
    return f"v_cvt_pk_bf16_f32 v{d}, v{x}, v{x+1}"
def tr(d, addr, off):
    return f"ds_read_b64_tr_b16 {vr(d,2)}, v{addr} offset:{off}"
def weave(mfmas, others, per=2):
    o = list(others)
    for m in mfmas:
        a(m)
        for _ in range(per):
            if o: a(o.pop(0))
    for x in o: a(x)

def srd(dst, lo, nbytes):
    a(f"s_mov_b32 s{dst}, s{lo}\ns_mov_b32 s{dst+1}, s{lo+1}\ns_mov_b32 s{dst+2}, {nbytes}\ns_mov_b32 s{dst+3}, 0x20000")
def srds_rest():
    srd(SWO, 40, 663552); srd(SOUT, 44, 4718592); srd(SDBG, 46, 256); srd(SWS, 48, WS_SIZE)

class M0:
    def __init__(self, base): self.base = base; self.cur = None
    def set(self, imm):
        if self.cur is not None and -32768 <= imm - self.cur <= 32767:
            a(f"s_addk_i32 m0, {imm - self.cur}")
        else:
            a(f"s_add_u32 m0, s{self.base}, {imm}")
        self.cur = imm

CUR = [0]
def dma(voff, srd_, soff, half=False):
    if OPT.get("nodma") or (OPT.get("nos") and voff == VD + 6 and srd_ == SW and not half):
        return
    if half: a(f"s_mov_b64 exec, s[{sG01}:{sG01+1}]")
    nt = " nt" if OPT.get("nt", 0) >> {SX: 0, SW: 1, SWO: 2}[srd_] & 1 and CUR[0] < OPT.get("ntc", 99) else ""
    a(f"buffer_load_dwordx4 v{voff}, s[{srd_}:{srd_+3}], {soff} offen{nt} lds")
    if half: a("s_mov_b64 exec, -1")

def rd_lanes(r8, r2, t0, t1):
    a(f"""
v_lshrrev_b32 v{t0}, 5, v0
v_lshlrev_b32 v{t0}, 4, v{t0}
v_bfe_u32 v{t1}, v0, 4, 1
v_lshl_add_u32 v{t0}, v{t1}, 2, v{t0}
v_bfe_u32 v{t1}, v0, 2, 2
v_add_u32 v{t0}, v{t0}, v{t1}
v_and_b32 v{t1}, 3, v0
v_lshlrev_b32 v{t1}, 3, v{t1}
v_lshl_add_u32 v{r2}, v{t0}, 5, v{t1}
v_lshl_add_u32 v{r8}, v{t0}, 7, v{t1}
v_bfe_u32 v{t0}, v{t0}, 1, 2
v_lshl_add_u32 v{r8}, v{t0}, 5, v{r8}
""")
    for t in (1, 2, 3):
        a(f"v_xor_b32 v{r8+t}, {32*t}, v{r8}")

def x_lane(d0, d1, tmp):
    a(f"""
v_lshrrev_b32 v{d0}, 4, v0
v_bfe_u32 v{tmp}, v0, 1, 3
v_xor_b32 v{d0}, v{d0}, v{tmp}
v_and_b32 v{tmp}, 15, v0
v_lshlrev_b32 v{tmp}, 7, v{tmp}
v_lshl_add_u32 v{d0}, v{d0}, 4, v{tmp}
v_xor_b32 v{d1}, 64, v{d0}
""")

def col8(dst, tmp):
    a(f"v_bfe_u32 v{tmp}, v0, 4, 2\nv_lshlrev_b32 v{tmp}, 1, v{tmp}\nv_and_b32 v{dst}, 7, v0\nv_xor_b32 v{dst}, v{dst}, v{tmp}\nv_lshlrev_b32 v{dst}, 4, v{dst}")

def head_of(dst, src):
    a(f"v_mul_u32_u24 v{dst}, 57, v{src}\nv_lshrrev_b32 v{dst}, 10, v{dst}")

sOC, sKC, sFO, sFK = 92, 94, 96, 97

def arrive_wait(addr, target, label, arrive=True):
    if arrive:
        a(f"s_mov_b32 s{sT}, 1\ns_atomic_add s{sT}, s[{addr}:{addr+1}], 0 glc\ns_waitcnt lgkmcnt(0)\ns_cmp_ge_u32 s{sT}, {target-1}\ns_cbranch_scc1 {label}_x")
    a(f"""
s_mov_b32 s{sT3}, 0x20000
{label}:
s_mov_b32 s{sT}, 0
s_atomic_add s{sT}, s[{addr}:{addr+1}], 0 glc
s_waitcnt lgkmcnt(0)
s_sub_u32 s{sT3}, s{sT3}, 1
s_cbranch_scc1 {label}_x
s_cmp_ge_u32 s{sT}, {target}
s_cbranch_scc0 {label}
{label}_x:
""")

def flag_load(dst, offreg):
    a(f"s_load_dword s{dst}, s[{SDBG}:{SDBG+1}], s{offreg}")

def flag_check(val, offreg, label):
    a(f"""
s_mov_b32 s{sT3}, 0x20000
{label}:
s_waitcnt lgkmcnt(0)
s_cmp_lg_u32 s{val}, 0
s_cbranch_scc1 {label}_x
s_sub_u32 s{sT3}, s{sT3}, 1
s_cbranch_scc1 {label}_x
s_load_dword s{val}, s[{SDBG}:{SDBG+1}], s{offreg} glc
s_branch {label}
{label}_x:
""")

A_WSLOT, A_XSLOT = 14336, 18432
A_X0 = 5 * A_WSLOT
A_EX = A_X0 + 3 * A_XSLOT
B_KVSLOT, B_XSLOT = 9216, 16384
B_X0 = 5 * B_KVSLOT
B_EX = B_X0 + 3 * B_XSLOT
B_KVOP = 126976
B_STG = 136192
B_DUMP, B_LCNT = B_STG + 5632, B_STG + 6144
B_WQ0 = 143360
QORD = list(range(18))
def wq_slot(p):
    if p < 4: return B_WQ0 + 5120 * p
    if p < 7: return 5120 * (p - 4)
    if p < 13: return 40960 + 5120 * (p - 7)
    return 15360 + 5120 * (p - 13)
R1, R2 = 147456, 43008
WO = [R1, R1 + 5120, R1 + 10240] + [R2 + 5120 * n for n in range(6, 12)] + [0, 5120, 10240] + [R2 + 5120 * n for n in range(6)]
P_TR = 108544
SPLITS = {(1, 0): sG0, (2, 0): sG0, (2, 1): sG0, (3, 0): sG01, (3, 1): sG0}

VD = 16
VWO = 26
vCNT, vFLO, vFLK, vFO, vFK = 30, 31, 32, 33, 34

def w_head(kind):
    parts = (0, 1152, 2304) if kind == "A" else (1152, 2304)
    a(f"L_{kind}W0:")
    col8(VD, 1)
    a(f"""
v_bfe_u32 v1, v0, 5, 1
v_bfe_u32 v2, v0, 3, 2
v_lshl_add_u32 v1, v1, 3, v2
s_mul_i32 s{sT}, s{sV}, {16*3456}
s_add_u32 s{sT}, s{sT}, s{sM}
v_mul_u32_u24 v1, 3456, v1
v_add3_u32 v{VD}, v{VD}, v1, s{sT}
""")
    n = 2 * len(parts)
    for j in range(n - 1, -1, -1):
        off = parts[j // 2] + (j % 2) * 4 * 3456
        if off:
            a(f"v_add_u32 v{VD+j}, {off}, v{VD}")
    a(f"""
v_bfe_u32 v1, v0, 3, 1
v_bfe_u32 v2, v0, 4, 1
v_sub_u32 v1, v1, v2
v_lshrrev_b32 v2, 1, v0
v_lshl_add_u32 v1, v1, 2, v2
v_mul_u32_u24 v1, 3456, v1
v_and_b32 v2, 1, v0
""")
    if kind == "A":
        a(f"""
s_cmp_eq_u32 s{sV}, 0
s_cselect_b32 s{sT2}, 1152, 0
s_cselect_b32 s{sT}, 0, 2304
s_add_u32 s{sT}, s{sT}, s{sM}
s_addk_i32 s{sT}, 128
v_mad_u32_u24 v1, v2, s{sT2}, v1
v_add_u32 v{VD+6}, s{sT}, v1
""")
    else:
        a(f"""
s_add_u32 s{sT}, s{sT}, 128
v_add_u32 v{VD+7}, s{sT}, v1
v_mul_u32_u24 v2, 1152, v2
v_add_u32 v2, 1152, v2
v_add_u32 v{VD+4}, v2, v{VD+7}
""")
    a(f"s_lshl_b32 s42, s{sV}, 11\ns_lshl_b32 s43, s{sV}, {10 if kind == 'A' else 9}\ns_sub_u32 s43, s43, s42")
    a("s_waitcnt lgkmcnt(0)")
    srd(SW, 38, 1990656)
    m = M0(42)
    w_issue(kind, 0, m)
    a(f"s_branch L_{kind}W1")

def w_issue(kind, c, m):
    CUR[0] = c
    slot = (c % 5) * (A_WSLOT if kind == "A" else B_KVSLOT)
    n = 6 if kind == "A" else 4
    so = f"s{sK}" if c else "0"
    if OPT.get("rot"):
        so = "s90"
        if c:
            a(f"s_add_u32 s90, s90, {32*3456}\ns_cmp_eq_u32 s90, {18*32*3456}\ns_cselect_b32 s90, 0, s90")
    elif c:
        a(f"s_mov_b32 s{sK}, {c*32*3456}")
    for j in range(n):
        m.set(slot + 4096 * (j // 2) + 1024 * (j % 2))
        dma(VD + j, SW, so)
    m.set(slot + 4096 * (n // 2))
    a("s_add_u32 m0, m0, s43")
    m.cur = None
    dma(VD + n, SW, so, half=(kind == "B"))
    return n + 1

def wq_issue(p, m):
    if OPT.get("rot"):
        a(f"s_add_u32 s{sK}, s90, {(p+1)*32*3456}\ns_cmp_ge_u32 s{sK}, {18*32*3456}\ns_cselect_b32 s{sT}, {18*32*3456}, 0\ns_sub_u32 s{sK}, s{sK}, s{sT}")
    else:
        a(f"s_mov_b32 s{sK}, {QORD[p]*32*3456}")
    for j in range(2):
        m.set(wq_slot(p) + 1024 * j)
        dma(VD + 5 + j, SW, f"s{sK}")
    m.set(wq_slot(p) + 4096)
    a("s_add_u32 m0, m0, s43")
    m.cur = None
    dma(VD + 7, SW, f"s{sK}", half=True)
    return 3

def x_head(kind):
    nq = 9 if kind == "A" else 8
    a(f"L_{kind}X0:")
    a(f"""
v_lshrrev_b32 v1, 3, v0
v_mul_u32_u24 v1, {2304 if kind == 'A' else 1152}, v1
v_lshrrev_b32 v2, 4, v0
v_lshl_add_u32 v2, s{sV}, 2, v2
v_and_b32 v3, 7, v0
v_xor_b32 v2, v2, v3
v_lshl_add_u32 v1, v2, 4, v1
s_mul_i32 s{sT}, s{sRB}, {128*1152}
""")
    if kind == "A":
        a(f"""
s_mul_i32 s{sT2}, s{sV}, {16*1152}
s_add_u32 s{sT3}, s{sT}, s{sT2}
v_add_u32 v{VD}, s{sT3}, v1
s_sub_u32 s{sT3}, s{sT}, s{sT2}
s_add_u32 s{sT3}, s{sT3}, {17*1152}
v_add_u32 v{VD+4}, s{sT3}, v1
s_mul_i32 s{sT2}, s{sV}, 1152
s_sub_u32 s{sT3}, s{sT}, s{sT2}
s_sub_u32 s{sT3}, s{sT3}, {15*1152}
v_add_u32 v{VD+8}, s{sT3}, v1
""")
        for q in (1, 2, 3):
            a(f"v_add_u32 v{VD+q}, {32*1152*q}, v{VD}\nv_add_u32 v{VD+4+q}, {32*1152*q}, v{VD+4}")
    else:
        a(f"s_mul_i32 s{sT2}, s{sV}, {8*1152}\ns_add_u32 s{sT}, s{sT}, s{sT2}\nv_add_u32 v{VD}, s{sT}, v1")
        for q in range(1, 8):
            a(f"v_add_u32 v{VD+q}, {16*1152*q}, v{VD}")
    a(f"s_lshl_b32 s42, s{sV}, 10")
    a("s_waitcnt lgkmcnt(0)")
    srd(SX, 36, 2359296)
    x_issue(kind, 0, M0(42))
    a(f"s_branch L_{kind}X1")

def x_issue(kind, c, m):
    CUR[0] = c + (c & 1)
    nq, h, x0, xs = (9, 5, A_X0, A_XSLOT) if kind == "A" else (8, 4, B_X0, B_XSLOT)
    st = (c + 1) // 2
    if st > 8:
        return 0
    qs = range(nq) if c == 0 else (range(h) if c % 2 else range(h, nq))
    so = f"s{sK}" if st else "0"
    if OPT.get("rot"):
        so = "s91"
        if c % 2:
            a("s_addk_i32 s91, 128\ns_cmpk_eq_u32 s91, 1152\ns_cselect_b32 s91, 0, s91")
    elif st:
        a(f"s_movk_i32 s{sK}, {st*128}")
    for q in qs:
        m.set(x0 + (st % 3) * xs + 2048 * q)
        a("s_nop 0")
        dma(VD + q, SX, so)
    return len(qs)

def wo_setup(quad):
    col8(VWO, 1)
    a(f"""
s_mul_i32 s{sM}, s{sHG}, 144
v_add_u32 v{VWO}, s{sM}, v{VWO}
v_bfe_u32 v1, v0, 5, 1
v_bfe_u32 v2, v0, 3, 2
v_mul_u32_u24 v1, 72, v1
v_add_u32 v1, v1, v2
v_mul_u32_u24 v1, 1152, v1
v_add_u32 v{VWO+1}, v1, v{VWO}
v_lshrrev_b32 v1, 3, v0
v_mul_u32_u24 v1, 1152, v1
v_add_u32 v{VWO}, v1, v{VWO}
v_bfe_u32 v1, v0, 1, 2
v_bfe_u32 v2, v0, 3, 1
v_bfe_u32 v3, v0, 4, 1
v_bfe_u32 v4, v0, 5, 1
v_lshl_add_u32 v5, v2, 2, v1
v_lshl_add_u32 v5, v3, 4, v5
v_lshl_add_u32 v5, v4, 3, v5
v_mul_u32_u24 v5, 1152, v5
s_add_u32 s{sM}, s{sM}, 128
v_add_u32 v{VWO+2}, s{sM}, v5
v_lshl_add_u32 v5, v3, 2, v1
v_lshl_add_u32 v2, v4, 1, v2
v_mul_u32_u24 v2, 72, v2
v_add_u32 v5, v5, v2
v_mul_u32_u24 v5, 1152, v5
v_add_u32 v{VWO+3}, s{sM}, v5
s_and_b32 s55, s{sWAVE}, 3
s_lshl_b32 s57, s55, 3
""")
    rho(56)
    a(f"s_add_u32 s56, s56, s{55 if quad else sV}")

def rho(dst):
    few, many = (sRB, sHG) if OPT["mapping"] == 48 else (sHG, sRB)
    if OPT["mapping"] > 99:
        a(f"s_cmp_eq_u32 s{sBR}, {0 if OPT['mapping'] == 8448 else 1}\ns_cselect_b32 s{sT}, s{sHG}, s{sRB}\ns_cselect_b32 s{sT2}, s{sRB}, s{sHG}")
        few, many = sT, sT2
    a(f"s_lshl_b32 s{dst}, s{few}, 1\ns_add_u32 s{dst}, s{dst}, s{many}\ns_lshl_b32 s{dst}, s{dst}, 1")
    if not OPT.get("worot", 1):
        a(f"s_mov_b32 s{dst}, 0")

def wo_chunk(left, fadd):
    if left:
        a(f"s_mul_i32 s{sK}, s{sV}, {288*1152}\ns_add_u32 s{sK}, s{sK}, {64*1152}")
        steps = (4, 140, 4); v8, v2 = VWO + 1, VWO + 3
    else:
        a(f"""
s_add_u32 s{sT}, s56, {fadd}
s_bfe_u32 s{sK}, s{sT}, 0x30001
s_mul_i32 s{sK}, s{sK}, {72*1152}
s_bitcmp1_b32 s{sT}, 0
s_cselect_b32 s{sT}, {32*1152}, 0
s_add_u32 s{sK}, s{sK}, s{sT}
""")
        steps = (16, -8, 16); v8, v2 = VWO, VWO + 2
    a(f"s_mov_b32 s{sT2}, s{sK}")
    for j in range(4):
        dma(v8, SWO, f"s{sK}")
        a("s_addk_i32 m0, 1024")
        a(f"s_add_u32 s{sK}, s{sK}, {steps[j]*1152 & 0xffffffff}" if j < 3 else "s_nop 0")
    dma(v2, SWO, f"s{sT2}")
    return 5

def wo_issue(q):
    packed = sum((WO[2 + 4*q + w] // 1024) << (8 * w) for w in range(4))
    a(f"s_lshr_b32 s{sT}, {packed}, s57\ns_and_b32 s{sT}, s{sT}, 0xff\ns_lshl_b32 m0, s{sT}, 10")
    return wo_chunk(False, 4*q)

def wo_pair(g):
    a(f"s_mul_i32 s{sT}, s{sV}, {WO[2*g+1] - WO[2*g] & 0xffffffff}\ns_add_u32 m0, s{sT}, {WO[2*g]}")
    return wo_chunk(g == 0, 2*g - 2)

def sync_setup():
    a(f"""
s_lshl_b32 s{sT}, s{sBR}, 4
s_add_u32 s{sT}, s{sT}, s{sRB}
s_lshl_b32 s{sT2}, s{sT}, 8
s_add_u32 s{sT2}, s{sT2}, {WS_CNT}
s_add_u32 s{sOC}, s{SWS}, s{sT2}
s_addc_u32 s{sOC+1}, s{SWS+1}, 0
s_lshl_b32 s{sT}, s{sT}, 2
s_add_u32 s98, s{sT}, 32
s_lshl_b32 s99, s{sHG}, 2
s_mul_i32 s{sT2}, s{sHG}, {KV_ST}
s_add_u32 s{sT2}, s{sT2}, {WS_KV + 6144}
s_add_u32 s{sKC}, s{SWS}, s{sT2}
s_addc_u32 s{sKC+1}, s{SWS+1}, 0
""")

def loader_tail(tag, late=()):
    if tag[1] == "X":
        flag_check(sFO, 98, f"L_{tag}_fo")
    a("s_barrier")
    stamp()
    for g in late:
        wo_pair(g)
    if tag[1] == "X":
        a(f"s_cmp_eq_u32 s{sWAVE}, 6\ns_cbranch_scc0 L_{tag}_oc_x")
        arrive_wait(sOC, 8, f"L_{tag}_oc")
    a("s_waitcnt vmcnt(0)")
    stamp()
    a("s_barrier")
    stamps_out()
    a("s_endpgm")

def a_loader(kind):
    a(f"L_A{kind}1:")
    m = M0(42)
    issue = (lambda c: w_issue("A", c, m)) if kind == "W" else (lambda c: x_issue("A", c, m))
    pre = 1 if OPT.get("early") and kind == "W" else 2
    cnt = {c: issue(c) for c in range(1, pre + 1)}
    stamp()
    x_lane(8, 9, 1)
    rd_lanes(36, 12, 1, 2)
    a(f"""
v_add_u32 v8, {A_X0 + 8*2048}, v8
v_add_u32 v9, {A_X0 + 8*2048}, v9
s_lshl_b32 s{sT}, s{sV}, 6
v_xor_b32 v10, s{sT}, v36
v_add_u32 v10, {4096 if kind == 'W' else 8192}, v10
v_xor_b32 v11, 32, v10
v_add_u32 v12, {12288 if kind == 'W' else 13312}, v12
v_add_u32 v13, {4*A_WSLOT}, v10
v_add_u32 v14, {4*A_WSLOT}, v11
v_add_u32 v15, {4*A_WSLOT}, v12
s_lshl_b32 s{sT}, s{sV}, 10
s_add_u32 s{sT}, s{sT}, {A_EX + (0 if kind == 'W' else 2560)}
v_lshlrev_b32 v7, 3, v0
v_add_u32 v6, s{sT}, v7
v_add_u32 v7, {A_EX + (2048 if kind == 'W' else 4608)}, v7
""")
    stamp()
    a(f"s_waitcnt vmcnt({sum(cnt.values())})\ns_barrier")
    stamp()
    extra = 0
    for i in range(-1, 17):
        ks = i + 1
        slot = ks % 5
        off = 0 if slot == 4 else slot * A_WSLOT
        ad = (13, 14, 15) if slot == 4 else (10, 11, 12)
        a(f"ds_read_b128 v[40:43], v{8 + ks % 2} offset:{(ks//2 % 3)*A_XSLOT}")
        for j in range(3 if OPT.get("nohalo", 0) < 2 else 0):
            a(tr(44 + 4*j, ad[j], off)); a(tr(46 + 4*j, ad[j], off + (1024 if j < 2 else 256)))
        if i == -1 and pre == 1:
            cnt[2] = issue(2)
        if i + 4 <= 17:
            cnt[i+4] = issue(i + 4)
        a("s_waitcnt lgkmcnt(0)")
        for j in range(3 if not OPT.get("nohalo") else 0):
            c = 60 + 4*j if ks else "0"
            a(mf(60 + 4*j, 44 + 4*j, 40, c) if kind == "W" else mf(60 + 4*j, 40, 44 + 4*j, c))
        if i == 1:
            srds_rest(); sync_setup()
        if i == 2:
            wo_setup(True)
        if i == 14 and kind == "W":
            extra += wo_pair(0)
        if i == 15:
            extra += wo_issue(0)
        if i + 1 <= 16:
            left = sum(cnt.get(c, 0) for c in range(i + 3, min(i + 4, 17) + 1)) + extra
            a(f"s_waitcnt vmcnt({left})\ns_barrier")
            if OPT.get("fine") and kind == "W" and i % 2 == 1 and 0 < i < 14:
                stamp()
    for j in range(3):
        a(cv(44 + 2*j, 60 + 4*j)); a(cv(45 + 2*j, 62 + 4*j))
    if kind == "W":
        a("v_mov_b32 v50, 0\nv_mov_b32 v51, 0")
        a("v_permlane32_swap_b32 v48, v50\nv_permlane32_swap_b32 v49, v51")
    a("ds_write_b64 v6, v[44:45]\nds_write_b64 v6, v[46:47] offset:512")
    a(f"ds_write_b64 v7, {'v[50:51]' if kind == 'W' else 'v[48:49]'}")
    stamp()
    a("s_waitcnt lgkmcnt(0)\ns_barrier")
    if kind == "X":
        flag_load(sFO, 98)
    wo_issue(1); wo_issue(2); wo_issue(3)
    stamp()
    loader_tail("A" + kind)

def o_store_addr(vfull, vleft, tmp, left_lo):
    a(f"""
s_lshl_b32 s{sT}, s{sRB}, 3
s_lshl_b32 s{sT2}, s{sWAVE}, 1
s_add_u32 s{sT}, s{sT}, s{sT2}
s_mul_i32 s{sT}, s{sT}, 18432
s_mul_i32 s{sT2}, s{sBR}, {O_BR}
s_add_u32 s58, s{sT}, s{sT2}
s_lshl_b32 s{sT2}, s{sHG}, 11
s_add_u32 s{sT2}, s{sT2}, s58
v_lshl_add_u32 v{vfull}, v0, 4, s{sT2}
s_lshr_b32 s{sT2}, s{sHG}, 2
s_add_u32 s{sT2}, s{sT2}, 16
s_lshl_b32 s{sT2}, s{sT2}, 10
s_add_u32 s{sT}, s58, s{sT2}
s_and_b32 s{sT2}, s{sHG}, 3
s_lshl_b32 s{sT2}, s{sT2}, 8
s_add_u32 s{sT}, s{sT}, s{sT2}
v_and_b32 v{vleft}, 15, v0
v_lshlrev_b32 v{vleft}, 4, v{vleft}
v_bfe_u32 v{tmp}, v0, 4, 1
v_lshl_add_u32 v{vleft}, v{tmp}, 3, v{vleft}
v_add_u32 v{vleft}, s{sT}, v{vleft}
v_mov_b32 v{tmp}, {OOB}
""")
    x, y = (tmp, vleft) if left_lo else (vleft, tmp)
    a(f"v_cndmask_b32 v{vleft}, v{x}, v{y}, s[{sG01}:{sG01+1}]")

def o_store(of, vfull, vleft, rt):
    so = f"s{sK}" if rt else "0"
    if rt:
        a(f"s_movk_i32 s{sK}, 18432")
    a(f"buffer_store_dwordx4 {vr(of,4)}, v{vfull}, s[{SWS}:{SWS+3}], {so} offen sc1")
    a(f"buffer_store_dwordx4 {vr(of+4,4)}, v{vfull}, s[{SWS}:{SWS+3}], {so} offen offset:1024 sc1")
    a(f"buffer_store_dwordx2 {vr(of+8,2)}, v{vleft}, s[{SWS}:{SWS+3}], {so} offen sc1")

def gap_touch(tag, parts):
    if not OPT.get("touch"):
        return
    nt = " nt" if OPT.get("tnt") else ""
    a(f"""
s_cmp_eq_u32 s{sWAVE}, 1
s_cbranch_scc1 L_{tag}_tw
s_cmp_eq_u32 s{sWAVE}, 2
s_cbranch_scc0 L_{tag}_tx
s_and_b32 s{sT}, s{sRB}, 7
s_cmp_eq_u32 s{sT}, 0
s_cselect_b32 s{sT}, 9, s{sT}
s_sub_u32 s{sT}, s{sT}, 1
s_lshl_b32 s{sT}, s{sT}, 7
s_and_b32 s{sT2}, s{sHG}, 3
s_lshl_b32 s{sT2}, s{sT2}, 5
s_lshl_b32 s{sT3}, s{sRB}, 7
s_add_u32 s{sT2}, s{sT2}, s{sT3}
v_and_b32 v1, 31, v0
v_add_u32 v1, s{sT2}, v1
v_mul_u32_u24 v1, 1152, v1
""")
    srd(SX, 36, 2359296)
    a(f"""
buffer_load_dword v26, v1, s[{SX}:{SX+3}], s{sT} offen{nt}
s_branch L_{tag}_tx
L_{tag}_tw:
s_and_b32 s{sT}, s{sHG}, 3
s_lshl_b32 s{sT}, s{sT}, 1
s_cmp_eq_u32 s{sT}, 0
s_cselect_b32 s{sT}, 9, s{sT}
s_sub_u32 s{sT}, s{sT}, 1
s_lshl_b32 s{sT}, s{sT}, 3
s_and_b32 s{sT2}, s{sRB}, 7
s_add_u32 s{sT}, s{sT}, s{sT2}
s_mul_i32 s{sT}, s{sT}, {8*3456}
s_add_u32 s{sT}, s{sT}, s{sM}
v_lshrrev_b32 v1, 3, v0
v_mul_u32_u24 v1, 3456, v1
v_bfe_u32 v2, v0, 1, 2
v_min_u32 v2, {parts-1}, v2
v_mul_u32_u24 v2, 1152, v2
v_and_b32 v3, 1, v0
v_mul_u32_u24 v3, 140, v3
v_add3_u32 v1, v1, v2, v3
""")
    srd(SW, 38, 1990656)
    a(f"buffer_load_dword v26, v1, s[{SW}:{SW+3}], s{sT} offen offset:{1152*(3-parts)}{nt}\nL_{tag}_tx:")

def init_stores(tag, with_kv):
    if OPT.get("xcc"):
        a(f"s_getreg_b32 s{sT}, hwreg(HW_REG_XCC_ID, 0, 4)\nv_mov_b32 v2, s{sT}\ns_lshl_b32 s{sT}, s2, 2\ns_add_u32 s{sT}, s{sT}, 0x6f0000\nv_mov_b32 v1, s{sT}\nbuffer_store_dword v2, v1, s[{SWS}:{SWS+3}], 0 offen sc1")
    a(f"""
s_or_b32 s{sT}, s{sHG}, s{sWAVE}
s_cmp_eq_u32 s{sT}, 0
s_cselect_b32 s55, 1, 0
v_mov_b32 v20, 0
v_mov_b32 v21, 0
v_mov_b32 v22, 0
v_mov_b32 v23, 0
s_cbranch_scc0 L_{tag}_i1
s_lshl_b32 s{sT}, s{sBR}, 4
s_add_u32 s{sT}, s{sT}, s{sRB}
s_lshl_b32 s{sT}, s{sT}, 8
s_add_u32 s{sT}, s{sT}, {WS_CNT}
v_mov_b32 v24, s{sT}
buffer_store_dword v20, v24, s[{SWS}:{SWS+3}], 0 offen sc1
L_{tag}_i1:
""")
    if with_kv:
        a(f"""
s_or_b32 s{sT}, s{sRB}, s{sWAVE}
s_cmp_eq_u32 s{sT}, 0
s_cbranch_scc0 L_{tag}_i2
s_or_b32 s55, s55, 2
s_mul_i32 s{sT}, s{sHG}, {KV_ST}
s_add_u32 s{sT}, s{sT}, {WS_KV}
v_lshl_add_u32 v24, v0, 4, s{sT}
""")
        for j in range(7):
            a(f"s_movk_i32 s{sK}, {1024*j}\nbuffer_store_dwordx4 v[20:23], v24, s[{SWS}:{SWS+3}], s{sK} offen sc1")
        a(f"L_{tag}_i2:")

def init_flags(tag):
    a(f"""
s_waitcnt vmcnt(0)
s_cmp_eq_u32 s55, 0
s_cbranch_scc1 L_{tag}_f2
v_mov_b32 v20, 1
s_bitcmp1_b32 s55, 0
s_cbranch_scc0 L_{tag}_f1
s_lshl_b32 s{sT}, s{sBR}, 4
s_add_u32 s{sT}, s{sT}, s{sRB}
s_lshl_b32 s{sT}, s{sT}, 2
s_add_u32 s{sT}, s{sT}, 32
v_mov_b32 v24, s{sT}
buffer_store_dword v20, v24, s[{SDBG}:{SDBG+3}], 0 offen sc1
L_{tag}_f1:
s_bitcmp1_b32 s55, 1
s_cbranch_scc0 L_{tag}_f2
s_lshl_b32 s{sT}, s{sHG}, 2
v_mov_b32 v25, s{sT}
buffer_store_dword v20, v25, s[{SDBG}:{SDBG+3}], 0 offen sc1
L_{tag}_f2:
""")

def kstep(tiles, nxt_reads, first, waits):
    pend = list(first)
    for t, (m0_, m1_) in enumerate(tiles):
        if t in waits:
            a(waits[t])
        a(m0_)
        for x in pend: a(x)
        a(m1_)
        pend = []
        if nxt_reads:
            a(nxt_reads[t][0]); pend = [nxt_reads[t][1]]
    for x in pend: a(x)

def a_consumer():
    acc = lambda t, rt: 144 + (t * 2 + rt) * 4
    wf = lambda t: 88 + 4 * t
    xf = lambda buf, rt: 72 + buf * 8 + rt * 4
    R8, R2, R8b, R2b, aX = 1, 5, 6, 10, 11
    vOF, vOL, vEXW, vEXR = 13, 14, 15, 16
    MC, MP, MPF, PM = 56, 60, 64, 68
    a("L_AC:\ns_waitcnt lgkmcnt(0)")
    gap_touch("AC", 3)
    srds_rest()
    init_stores("AC", False)
    rd_lanes(R8, R2, 17, 18); x_lane(aX, aX + 1, 17)
    for j in range(5):
        a(f"v_add_u32 v{R8b+j}, {4*A_WSLOT}, v{R8+j}")
    a(f"""
s_lshl_b32 s{sT}, s{sWAVE}, 12
s_add_u32 s{sT}, s{sT}, {A_X0}
v_add_u32 v{aX}, s{sT}, v{aX}
v_add_u32 v{aX+1}, s{sT}, v{aX+1}
s_lshr_b32 s{sT}, s{sWAVE}, 1
s_lshl_b32 s{sT}, s{sT}, 3
v_and_b32 v17, 15, v0
v_xor_b32 v17, s{sT}, v17
v_lshrrev_b32 v18, 4, v0
v_lshlrev_b32 v18, 2, v18
v_xor_b32 v18, s{sT}, v18
v_sub_u32 v17, v17, v18
v_mov_b32 v19, {NEG}
s_and_b32 s{sT}, s{sWAVE}, 1
s_or_b32 s{sT}, s{sT}, s{sRB}
s_cmp_eq_u32 s{sT}, 0
s_cselect_b64 s[42:43], -1, 0
""")
    for r in range(4):
        a(f"""
v_subrev_u32 v18, {r}, v17
v_cmp_gt_u32 vcc, 8, v18
v_cndmask_b32 v{MC+r}, v19, 0, vcc
v_cmp_gt_i32 vcc, -8, v18
v_cndmask_b32 v{MP+r}, v19, 0, vcc
v_cndmask_b32 v{MPF+r}, v{MP+r}, v19, s[42:43]
v_cmp_lt_i32 vcc, -1, v18
v_mov_b32 v20, {'0xffff' if r % 2 == 0 else '0xffff0000'}
v_cndmask_b32 v20, 0, v20, vcc
""")
        a(f"v_mov_b32 v{PM + r//2}, v20" if r % 2 == 0 else f"v_or_b32 v{PM + r//2}, v{PM + r//2}, v20")
    o_store_addr(vOF, vOL, 17, True)
    a(f"""
s_lshr_b32 s{sT}, s{sWAVE}, 1
s_add_u32 s{sT}, s{sT}, 1
s_mul_i32 s{sT}, s{sT}, 5120
s_bitcmp1_b32 s{sWAVE}, 0
s_cselect_b32 s{sT3}, s{sT}, 0
v_lshlrev_b32 v17, 3, v0
v_add_u32 v17, {A_EX}, v17
v_add_u32 v{vEXW}, s{sT}, v17
v_add_u32 v{vEXR}, s{sT3}, v17
""")

    def wreads(ks, t):
        slot = ks % 5
        o = 0 if slot == 4 else slot * A_WSLOT
        r8, r2 = (R8b, R2b) if slot == 4 else (R8, R2)
        if t == 4 or t == 13:
            o += 12288 if t == 4 else 13312
            return [tr(wf(t), r2, o), tr(wf(t) + 2, r2, o + 256)]
        s, j = (0, t) if t < 4 else (1, t - 5) if t < 9 else (2, t - 9)
        return [tr(wf(t), r8 + j, o + 4096*s), tr(wf(t) + 2, r8 + j, o + 4096*s + 1024)]
    xread = lambda ks, rt: f"ds_read_b128 {vr(xf(ks % 2, rt),4)}, v{aX + ks % 2} offset:{(ks//2 % 3)*A_XSLOT + rt*2048}"

    stamp()
    a("s_barrier")
    stamp()
    a(xread(0, 0)); a(xread(0, 1))
    for t in range(14):
        for x in wreads(0, t): a(x)
    for ks in range(18):
        if ks < 17:
            a("s_barrier")
        if OPT.get("fine") == 2 and ks in (2, 5, 8, 11, 14):
            stamp()
        if OPT.get("ret") and ks == 1:
            a(f"s_lshl_b32 s40, s2, 10\ns_lshl_b32 s41, s{sWAVE}, 8\ns_add_u32 s40, s40, s41\ns_add_u32 s40, s40, 0x580000\ns_add_u32 s40, s40, s{SWS}\ns_addc_u32 s41, s{SWS+1}, 0")
            if OPT["ret"] == 1:
                a("v_mov_b32 v28, 0\nglobal_load_dword v29, v28, s[40:41]")
        if OPT.get("ret") and ks == OPT.get("at", 7):
            if OPT["ret"] == 2:
                a("v_mov_b32 v28, 0\nglobal_load_dword v29, v28, s[40:41]\ns_waitcnt vmcnt(0)")
            a("s_waitcnt lgkmcnt(0)\ns_memtime s[100:101]\ns_waitcnt lgkmcnt(0)\ns_load_dword s38, s[40:41], 64\ns_waitcnt lgkmcnt(0)")
            stamp()
            j_ = sST + 2*(nstamp[0]-1)
            a(f"s_waitcnt lgkmcnt(0)\ns_sub_u32 s{j_}, s{j_}, s100\ns_lshl_b32 s{j_}, s{j_}, 3\ns_add_u32 s{j_}, s{j_}, s100")
        if OPT.get("dummy") == ks:
            if OPT.get("dpre"):
                a("s_getpc_b64 s[38:39]\nv_lshlrev_b32 v28, 7, v0\nv_min_u32 v28, 2304, v28\nglobal_load_dword v29, v28, s[38:39]\ns_waitcnt vmcnt(0)")
            a("s_waitcnt lgkmcnt(0)\ns_memtime s[100:101]\ns_memrealtime s[40:41]\ns_waitcnt lgkmcnt(0)")
            for n in range(128):
                kind = OPT.get("dkind", 0)
                if kind == 0:
                    a(mf(28 + 4 * (n % 4), 88, 72, "0"))
                elif kind == 1:
                    a(f"v_add3_u32 v{28 + n % 8}, v0, v0, v0\nv_add3_u32 v{36 + n % 8}, v0, v0, v0")
                else:
                    a(f"ds_read_b128 v[{28 + 4 * (n % 4)}:{31 + 4 * (n % 4)}], v{aX} offset:0")
            a("s_waitcnt lgkmcnt(0)")
            stamp()
            a("s_waitcnt lgkmcnt(0)")
            if not OPT.get("cyc"):
                a(f"s_sub_u32 s40, s{sST + 2*(nstamp[0]-1)}, s40\ns_add_u32 s{sST + 2*(nstamp[0]-1)}, s{sST}, s40")
        if ks == 3:
            init_flags("AC")
        tiles = []
        for t in range(14):
            c = lambda rt: acc(t, rt) if ks else "0"
            tiles.append([mf(acc(t, rt), wf(t), xf(ks % 2, rt), c(rt)) if t < 9 else mf(acc(t, rt), xf(ks % 2, rt), wf(t), c(rt)) for rt in range(2)])
        if ks < 17:
            nxt = [wreads(ks + 1, t) for t in range(14)]
            nxt[1] = [nxt[1][0], nxt[1][1] + "\n" + xread(ks + 1, 1)]
            kstep(tiles, nxt, [xread(ks + 1, 0)], {0: "s_waitcnt lgkmcnt(14)", 7: "s_waitcnt lgkmcnt(15)", 12: "s_waitcnt lgkmcnt(15)"})
        else:
            kstep(tiles, None, [], {0: "s_waitcnt lgkmcnt(14)", 7: "s_waitcnt lgkmcnt(0)"})
    stamp()
    KP = lambda j: 18 + 10 * j
    QT = lambda rt, h: 88 + 16 * rt + 4 * h
    VP = lambda t, j: 120 + 6 * t + 2 * j if t < 4 else 48 + 2 * j
    ONE = 72
    def pack_kv(rt):
        o = []
        for q in range(2):
            o += [cv(QT(rt, 3) + 2 + q, acc(4, rt) + 2*q), f"v_mov_b32 v{KP(1+rt) + 8 + q}, 0"]
        for tau in range(4):
            o += [cv(KP(1+rt) + 2*tau + q, acc(5+tau, rt) + 2*q) for q in range(2)]
        o += [f"v_permlane32_swap_b32 v{QT(rt,3) + 2 + q}, v{KP(1+rt) + 8 + q}" for q in range(2)]
        for t in range(5):
            o += [cv(VP(t, 1+rt) + q, acc(9+t, rt) + 2*q) for q in range(2)]
        return o
    def pack_q(rt):
        o = []
        for t in range(4):
            for q in range(2):
                d = QT(rt, t) + q
                o.append(cv(d, acc(t, rt) + 2*q))
                if (t, q) in SPLITS:
                    m = SPLITS[(t, q)]; lo = QT(rt, t-1) + 2 + q
                    o += [f"v_cndmask_b32 v{lo}, 0, v{d}, s[{m}:{m+1}]", f"v_xor_b32 v{d}, v{d}, v{lo}"]
        return o + [f"v_mov_b32 v{QT(rt,0) + 3}, 0"]
    weave([], pack_kv(1))
    a(f"s_bitcmp1_b32 s{sWAVE}, 0\ns_cbranch_scc1 L_AC_nodump")
    for j in range(5):
        a(f"ds_write_b64 v{vEXW}, {vr(KP(2) + 2*j, 2)} offset:{512*j}")
        a(f"ds_write_b64 v{vEXW}, {vr(VP(j, 2), 2)} offset:{512*(5+j)}")
    a("L_AC_nodump:")
    weave([], pack_kv(0) + pack_q(1))
    a("s_waitcnt lgkmcnt(0)\ns_barrier")
    for j in range(5):
        a(f"ds_read_b64 {vr(KP(0) + 2*j, 2)}, v{vEXR} offset:{512*j}")
        a(f"ds_read_b64 {vr(VP(j, 0), 2)}, v{vEXR} offset:{512*(5+j)}")
    SC = lambda rt, h: (224 if rt else 184) + 8 * h
    MX = lambda rt: [76 + 4 * rt + h for h in range(4)]
    PT = lambda rt, h: 144 + 16 * rt + 4 * h
    def qk(rt):
        o = []
        for h in range(4):
            o += [mf(SC(rt, h), KP(1+rt) + 2*h, QT(rt, h), MC), mf(SC(rt, h) + 4, KP(rt) + 2*h, QT(rt, h), MP if rt else MPF)]
        return o
    def rowmax(rt):
        o = []
        for h in range(4):
            s = SC(rt, h); m = MX(rt)[h]
            o += [f"v_max_f32 v{s+r}, v{s+r}, v{s+4+r}" for r in range(4)]
            o += [f"v_max3_f32 v{m}, v{s}, v{s+1}, v{s+2}", f"v_max_f32 v{m}, v{m}, v{s+3}"]
        return o
    def xmax(rt):
        m = MX(rt)
        return [f"v_permlane32_swap_b32 v{m[0]}, v{m[1]}", f"v_permlane32_swap_b32 v{m[2]}, v{m[3]}",
                f"v_max_f32 v{m[0]}, v{m[0]}, v{m[1]}", f"v_max_f32 v{m[2]}, v{m[2]}, v{m[3]}",
                f"v_permlane16_swap_b32 v{m[0]}, v{m[2]}", f"v_max_f32 v{m[0]}, v{m[0]}, v{m[2]}",
                f"v_mul_f32 v{m[0]}, s{sT2}, v{m[0]}", f"v_mov_b32 v{m[2]}, v{m[0]}",
                f"v_permlane16_swap_b32 v{m[0]}, v{m[2]}", f"v_mov_b32 v{m[1]}, v{m[0]}", f"v_mov_b32 v{m[3]}, v{m[2]}",
                f"v_permlane32_swap_b32 v{m[0]}, v{m[1]}", f"v_permlane32_swap_b32 v{m[2]}, v{m[3]}"]
    def probs(rt):
        o = []
        for h in range(4):
            s = SC(rt, h); p = PT(rt, h)
            o += [f"v_fma_f32 v{s+r}, v{s+r}, s{sT}, v{MX(rt)[h]}" for r in range(4)]
            o += [f"v_exp_f32 v{s+r}, v{s+r}" for r in range(4)]
            if h:
                o += split(rt, h - 1)
        return o + split(rt, 3)
    def split(rt, h):
        s = SC(rt, h); p = PT(rt, h); o = []
        for q in range(2):
            o += [cv(p + q, s + 2*q), f"v_and_b32 v{p+2+q}, v{p+q}, v{PM+q}", f"v_xor_b32 v{p+q}, v{p+q}, v{p+2+q}"]
        return o
    OB = lambda rt, t: (224 if rt else 184) + 4 * t
    OA = lambda rt, t: (224 if rt else 184) + 12 + 4 * t
    SM = lambda rt, h: 88 + 16 * rt + 4 * h
    OF = lambda rt: 18 + 10 * rt
    def pv(rt):
        o = [mf(SM(rt, h), ONE, PT(rt, h), "0") for h in range(4)]
        for t in range(5):
            if t < 4: o.append(mf(OB(rt, t), VP(t, rt), PT(rt, t), "0"))
            if t > 0: o.append(mf(OA(rt, t), VP(t, rt), PT(rt, t-1), "0"))
        return o
    def finish(rt):
        o = [f"v_rcp_f32 v{SM(rt,h)}, v{SM(rt,h)}" for h in range(4)]
        for t in range(5):
            for q in range(2):
                d = OF(rt) + 2*t + q
                srcs = []
                if t < 4: srcs.append((OB(rt, t) + 2*q, SM(rt, t), d))
                if t == 4: srcs.append((OA(rt, t) + 2*q, SM(rt, 3), d))
                if (t, q) in SPLITS: srcs.append((OA(rt, t) + 2*q, SM(rt, t-1), 17))
                for x, inv, dd in srcs:
                    o += [f"v_mul_f32 v{x}, v{x}, v{inv}", f"v_mul_f32 v{x+1}, v{x+1}, v{inv}", cv(dd, x)]
                if (t, q) in SPLITS:
                    m = SPLITS[(t, q)]
                    o.append(f"v_cndmask_b32 v{d}, v{d}, v17, s[{m}:{m+1}]")
        return o
    a(f"s_mov_b32 s{sT}, {f32(CSC)}\ns_mov_b32 s{sT2}, {f32(-CSC)}")
    weave(qk(1), pack_q(0) + [f"v_mov_b32 v{ONE+j}, 0x3f803f80" for j in range(4)])
    a("s_waitcnt lgkmcnt(0)")
    weave(qk(0), rowmax(1))
    x1, x0 = xmax(1), xmax(0)
    r0 = rowmax(0)
    for i, x in enumerate(x1):
        a(x)
        for y in r0[2*i:2*i+2]: a(y)
    p1 = probs(1)
    for i, x in enumerate(x0):
        a(x)
        for y in p1[2*i:2*i+2]: a(y)
    weave([], p1[2*len(x0):])
    weave(pv(1), probs(0))
    weave(pv(0), finish(1))
    o_store(OF(1), vOF, vOL, 1)
    weave([], finish(0))
    o_store(OF(0), vOF, vOL, 0)
    stamp()
    a("s_branch L_P2")

def phi(r, n, t):
    o = [f"v_pk_fma_f32 {vr(t+j,2)}, {vr(r+j,2)}, s[56:57], v[14:15]" for j in range(0, n, 2)]
    for j in range(n):
        o += [f"v_exp_f32 v{t+j}, v{t+j} clamp", f"v_max_f32 v{r+j}, s{sT2}, v{r+j}"]
    return o + [f"v_pk_add_f32 {vr(r+j,2)}, {vr(r+j,2)}, {vr(t+j,2)}" for j in range(0, n, 2)]

def b_consumer():
    acc = lambda t, rt: 184 + (t * 2 + rt) * 4
    wf = lambda t: 148 + 4 * t
    xf = lambda ks, rt: 52 + ks * 8 + rt * 4 if ks < 12 else 36 + (ks % 2) * 8 + rt * 4
    R8, R2, aX = 1, 5, 6
    vOF, vOL, vEX = 8, 9, 10
    CK, CS = 28, 32
    a("L_BC:\ns_waitcnt lgkmcnt(0)")
    gap_touch("BC", 2)
    srds_rest()
    init_stores("BC", True)
    rd_lanes(R8, R2, 17, 18); x_lane(aX, aX + 1, 17)
    a(f"""
s_lshl_b32 s{sT}, s{sWAVE}, 12
s_add_u32 s{sT}, s{sT}, {B_X0}
v_add_u32 v{aX}, s{sT}, v{aX}
v_add_u32 v{aX+1}, s{sT}, v{aX+1}
v_and_b32 v17, 15, v0
v_cmp_gt_u32 vcc, 8, v17
v_mov_b32 v18, {EPS}
s_mov_b64 s[42:43], vcc
s_mul_i32 s{sT}, s{sWAVE}, 10240
s_add_u32 s{sT}, s{sT}, {B_EX}
v_lshl_add_u32 v{vEX}, v0, 4, s{sT}
v_mov_b32 v14, {f32(-1e-6*LOG2E)}
v_mov_b32 v15, v14
s_mov_b32 s56, {f32(LOG2E)}
s_mov_b32 s57, s56
""")
    for r in range(4):
        a(f"v_mov_b32 v{CK+r}, v18\nv_cndmask_b32 v{CS+r}, 0, v18, vcc")
    o_store_addr(vOF, vOL, 17, False)

    def wreads(ks, t):
        o = (ks % 5) * B_KVSLOT
        if t == 4:
            return [tr(wf(t), R2, o + 8192), tr(wf(t) + 2, R2, o + 8192 + 256)]
        s, j = (0, t) if t < 4 else (1, t - 5)
        return [tr(wf(t), R8 + j, o + 4096*s), tr(wf(t) + 2, R8 + j, o + 4096*s + 1024)]
    xread = lambda ks, rt: f"ds_read_b128 {vr(xf(ks, rt),4)}, v{aX + ks % 2} offset:{(ks//2 % 3)*B_XSLOT + rt*2048}"

    stamp()
    a("s_barrier")
    stamp()
    a(xread(0, 0)); a(xread(0, 1))
    for t in range(9):
        for x in wreads(0, t): a(x)
    for ks in range(18):
        if ks < 17:
            a("s_barrier")
        if ks == 3:
            init_flags("BC")
        tiles = [[mf(acc(t, rt), xf(ks, rt), wf(t), acc(t, rt) if ks else (CK if t < 4 else CS if t == 4 else "0")) for rt in range(2)] for t in range(9)]
        if ks < 17:
            nxt = [wreads(ks + 1, t) for t in range(9)]
            nxt[1] = [nxt[1][0], nxt[1][1] + "\n" + xread(ks + 1, 1)]
            kstep(tiles, nxt, [xread(ks + 1, 0)], {0: "s_waitcnt lgkmcnt(12)", 3: "s_waitcnt lgkmcnt(13)", 6: "s_waitcnt lgkmcnt(13)", 8: "s_waitcnt lgkmcnt(11)"})
        else:
            kstep(tiles, None, [], {0: "s_waitcnt lgkmcnt(12)", 3: "s_waitcnt lgkmcnt(0)\ns_barrier"})
    stamp()
    a(f"s_mov_b32 s{sT2}, {EPS}\nv_mov_b32 v16, 0x3f803f80")
    wr = lambda reg, slot: f"ds_write_b128 v{vEX}, {vr(reg,4)} offset:{1024*slot}"
    pk = lambda d, s: [cv(d + j, s + 2*j) for j in range(4)]
    weave([], pk(156, acc(4, 0)) + [f"v_cndmask_b32 v{156+j}, v{156+j}, v16, s[42:43]" for j in range(4)] + [wr(156, 9)])
    xq = lambda ks, rt: 168 + (ks - 12) * 8 + rt * 4 if ks in (12, 13) else acc(2 * (ks - 14) + rt, 1) if ks in (14, 15) else xf(ks, rt)
    reread = lambda ks, rt: f"ds_read_b128 {vr(xq(ks, rt),4)}, v{aX + ks % 2} offset:{(ks//2 % 3)*B_XSLOT + rt*2048}"
    weave([], [reread(ks, rt) for ks in (12, 13) for rt in range(2)])
    for tau in range(5):
        o = phi(acc(tau, 0), 8, 148)
        if tau < 4:
            o = pk(acc(5+tau, 0), acc(5+tau, 0)) + o[:8] + [wr(acc(5+tau, 0), 5 + tau)] + o[8:]
        weave([], o + pk(acc(tau, 0), acc(tau, 0)) + [wr(acc(tau, 0), tau)])
        if tau < 4:
            a(reread(14 + tau // 2, tau % 2))
    for j in range(5):
        a(f"v_add_u32 v{R8+j}, {B_WQ0}, v{R8+j}")
    a("s_waitcnt lgkmcnt(0)\ns_barrier")
    stamp()
    QA = lambda t, rt: 216 + (t * 2 + rt) * 4
    qf = lambda t: 148 + 4 * t
    qbase = lambda p: B_WQ0 if p < 4 else 0 if p < 7 else 15360
    def qreads(p, t):
        o = wq_slot(p) - qbase(p)
        if t == 4:
            return [tr(qf(t), R2, o + 4096), tr(qf(t) + 2, R2, o + 4096 + 256)]
        return [tr(qf(t), R8 + t, o), tr(qf(t) + 2, R8 + t, o + 1024)]
    for t in range(5):
        for x in qreads(0, t): a(x)
    for p in range(18):
        ks = QORD[p]
        if p == 7 or (p == 13 and OPT.get('wob', 0)):
            a("s_barrier")
        tiles = [[mf(QA(t, rt), qf(t), xq(ks, rt), QA(t, rt) if p else CK) for rt in range(2)] for t in range(5)]
        if p < 17:
            nxt = [qreads(p + 1, t) for t in range(5)]
            if qbase(p + 1) != qbase(p):
                d = (qbase(p + 1) - qbase(p)) & 0xffffffff
                for t in range(5):
                    nxt[t][0] = f"v_add_u32 v{R8+t}, {d}, v{R8+t}\n" + nxt[t][0]
            kstep(tiles, nxt, [], {t: f"s_waitcnt lgkmcnt({7 if t else 8})" for t in range(5)})
        else:
            kstep(tiles, None, [], {t: f"s_waitcnt lgkmcnt({8 - 2*t})" for t in range(5)})
    stamp()
    PQ = lambda rt: 36 + 10 * rt
    KO = 84
    tup = {0: KO, 1: KO + 4, 2: KO + 12, 3: KO + 20, 4: KO + 28}
    ZO = KO + 32
    weave([], [f"v_mov_b32 v{r}, 0" for r in (tup[1]+4, tup[1]+5, tup[2]+4, tup[2]+5, tup[3]+4, tup[3]+5, ZO+8, ZO+9)])
    a(f"v_lshlrev_b32 v16, 3, v0\nv_add_u32 v16, {B_KVOP}, v16")
    for t in range(5):
        weave([], phi(QA(t, 0), 8, 148) + [cv(PQ(rt) + 2*t + q, QA(t, rt) + 2*q) for rt in range(2) for q in range(2)])
    stamp()
    a("s_barrier")
    stamp()
    tid = lambda tau, taup: {-1: tau - 1, 0: 4 + tau, 1: 9 + tau}[taup - tau]
    rd = lambda d, slot: a(f"ds_read_b64 {vr(d,2)}, v16 offset:{512*slot}")
    for j, d in enumerate((ZO, ZO + 2, ZO + 4, ZO + 6, ZO + 10)):
        rd(d, 13 + j)
    rd(tup[0], tid(0, 0)); rd(tup[0] + 2, tid(1, 0))
    for t in (1, 2, 3):
        rd(tup[t], tid(t-1, t)); rd(tup[t] + 2, tid(t, t)); rd(tup[t] + 6, tid(t+1, t))
    rd(tup[4], tid(3, 4)); rd(tup[4] + 2, tid(4, 4))
    DN = lambda rt: 148 + 4 * rt
    NM = lambda rt, t: 184 + 20 * rt + 4 * t
    OF = lambda rt: 156 + 10 * rt
    a("s_waitcnt lgkmcnt(13)")
    for k, (zo, po) in enumerate(((0, 0), (4, 4), (8, 6))):
        for rt in range(2):
            a(mf(DN(rt), ZO + zo, PQ(rt) + po, DN(rt) if k else CK))
    a("s_waitcnt lgkmcnt(0)")
    def num(rt):
        o = [mf(NM(rt, t), tup[t], PQ(rt) + 2*(t-1), "0") for t in (1, 2, 3)]
        o += [mf(NM(rt, 0), tup[0], PQ(rt), "0"), mf(NM(rt, 4), tup[4], PQ(rt) + 6, "0")]
        return o + [mf(NM(rt, t), tup[t] + 4, PQ(rt) + 2*t, NM(rt, t)) for t in (1, 2, 3)]
    def fin(rt, packed):
        o = []
        for t in (0, 4, 1, 2, 3):
            for q in range(2):
                inv = DN(rt) + min(t, 3)
                if (t, q) in SPLITS:
                    m = SPLITS[(t, q)]
                    o.append(f"v_cndmask_b32 v17, v{DN(rt)+t}, v{DN(rt)+t-1}, s[{m}:{m+1}]")
                    inv = 17
                n = NM(rt, t) + 2*q
                o += [f"v_mul_f32 v{n}, v{n}, v{inv}", f"v_mul_f32 v{n+1}, v{n+1}, v{inv}", cv(OF(rt) + 2*t + q, n)]
        return o
    weave(num(0), [], 0)
    weave(num(1), [f"v_rcp_f32 v{DN(rt)+h}, v{DN(rt)+h}" for rt in range(2) for h in range(4)], 1)
    for rt in range(2):
        weave([], fin(rt, True))
        o_store(OF(rt), vOF, vOL, rt)
    stamp()

def kv_index(wreg, VS, VG, VZ):
    a(f"s_cmp_eq_u32 s{wreg}, 0\ns_cselect_b32 s58, 4, s{wreg}")
    for slot in range(3):
        if slot == 0:
            a(f"s_lshl_b32 s{sT}, s58, 4\ns_sub_u32 s{sT2}, s{sT}, 16\ns_mov_b64 s[46:47], 0")
        elif slot == 1:
            a(f"s_lshl_b32 s{sT}, s{wreg}, 4\ns_mov_b32 s{sT2}, s{sT}")
        else:
            a(f"s_add_u32 s{sT2}, s{sT}, 16\ns_cmp_eq_u32 s{wreg}, 3\ns_cselect_b32 s{sT2}, 56, s{sT2}\ns_cselect_b64 s[46:47], s[44:45], 0")
        kv_tile(VS and VS + 2*slot, VG and VG + 2*slot, False)
    if VZ:
        kv_z(VZ)

def kv_tile(VS, VG, last):
    a(f"v_add_u32 v3, s{sT2}, v1")
    head_of(4, 3)
    a(f"v_mul_u32_u24 v5, 18, v4\nv_sub_u32 v3, v3, v5\nv_cndmask_b32 v4, v4, 7, s[46:47]")
    if last:
        a("v_cmp_eq_u32 vcc, 0, v1\nv_cndmask_b32 v4, v4, 3, vcc\nv_cndmask_b32 v3, v3, 18, vcc")
    for q in range(2):
        a(f"v_add3_u32 v5, v2, s{sT}, {2*q}")
        head_of(6, 5)
        a("v_cmp_eq_u32 vcc, v4, v6\nv_mad_u32_u24 v5, v5, 19, v3\nv_lshlrev_b32 v5, 2, v5")
        if VS:
            a(f"v_add_u32 v6, {B_STG}, v5\nv_cndmask_b32 v{VS+q}, v8, v6, vcc")
        if VG:
            a(f"v_add_u32 v6, s{sM}, v5\nv_cndmask_b32 v{VG+q}, v9, v6, vcc")

def kv_z(VZ):
    a("v_and_b32 v3, 3, v0")
    for q in range(2):
        a(f"v_add3_u32 v5, v2, s{sT}, {2*q}")
        head_of(6, 5)
        a(f"v_cmp_eq_u32 vcc, v3, v6\nv_mul_u32_u24 v5, 76, v5\nv_add3_u32 v5, v5, s{sM}, 64\nv_add_u32 v5, 8, v5\nv_cndmask_b32 v{VZ+q}, v9, v5, vcc")

def b_loader(kind):
    a(f"L_B{kind}1:")
    m = M0(42)
    issue = (lambda c: w_issue("B", c, m)) if kind == "W" else (lambda c: x_issue("B", c, m))
    pre = 1 if OPT.get("early") and kind == "W" else 2
    cnt = {c: issue(c) for c in range(1, pre + 1)}
    stamp()
    mark = len(a.lines)
    VS, VG, vZS, vEA, vE0, vEL, vLA, vGA, vLW = 72, 80, 98, 99, 100, 101, 102, 103, 105
    if kind == "W":
        a(f"v_subrev_u32 v{VD+5}, 1152, v{VD}\nv_subrev_u32 v{VD+6}, 1152, v{VD+1}")
    srds_rest()
    if kind == "W":
        wo_setup(False)
    else:
        sync_setup()
    a(f"""
s_add_u32 s55, s{sV}, 2
s_mul_i32 s{sM}, s{sHG}, {KV_ST}
s_add_u32 s{sM}, s{sM}, {WS_KV}
v_and_b32 v1, 15, v0
v_lshrrev_b32 v2, 4, v0
v_lshlrev_b32 v2, 2, v2
v_cmp_gt_u32 s[44:45], 8, v1
v_lshlrev_b32 v8, 2, v0
v_add_u32 v8, {B_DUMP}, v8
v_mov_b32 v9, {OOB}
""")
    own = sV if kind == "X" else 55
    if kind == "X":
        kv_index(55, None, VG, VG + 6)
        a(f"s_movk_i32 s{sT}, 64")
        kv_z(10)
    kv_index(own, VS, VG + 8 if kind == "X" else None, VG + 14 if kind == "X" else None)
    a(f"""
v_add_u32 v5, s{sT}, v0
v_mul_u32_u24 v5, 76, v5
v_add_u32 v5, {B_STG + 72}, v5
v_cndmask_b32 v{vZS}, v8, v5, s[{sG0}:{sG0+1}]
v_lshlrev_b32 v{vEL}, 4, v0
v_add_u32 v{vEL}, {B_EX}, v{vEL}
s_lshl_b32 s{sT}, s{own}, 10
v_add_u32 v{vEA}, s{sT}, v{vEL}
s_lshl_b32 s{sT}, s58, 10
v_add_u32 v{vE0}, s{sT}, v{vEL}
""")
    if kind == "X":
        a(f"s_movk_i32 s{sT}, 64\ns_movk_i32 s{sT2}, 56\ns_mov_b64 s[46:47], s[44:45]")
        kv_tile(VS + 6, VG + 16, True)
        a(f"s_cmp_eq_u32 s{sV}, 0\ns_cselect_b64 s[46:47], -1, 0")
        for q in range(2):
            a(f"v_cndmask_b32 v{VS+6+q}, v8, v{VS+6+q}, s[46:47]\nv_cndmask_b32 v{VG+16+q}, v{10+q}, v{VG+16+q}, s[46:47]")
        a(f"""
v_lshlrev_b32 v5, 3, v0
v_add_u32 v5, {B_KVOP}, v5
s_lshl_b32 s{sT2}, s58, 9
s_sub_u32 s{sT2}, s{sT2}, 512
v_add_u32 v{vLW+2}, s{sT2}, v5
s_lshl_b32 s{sT2}, s{sV}, 9
v_add_u32 v{vLW+1}, s{sT2}, v5
v_add_u32 v{vLW}, 1024, v{vLW+1}
s_mul_i32 s{sT2}, s{sV}, {9*512}
v_add_u32 v{vLW+3}, s{sT2}, v5
s_mul_i32 s{sT}, s{sV}, 2816
v_lshl_add_u32 v{vLA}, v0, 2, s{sT}
v_add_u32 v{vGA}, s{sM}, v{vLA}
v_cmp_gt_u32 vcc, {5472 - 2560}, v{vLA}
v_cndmask_b32 v{vGA+1}, v9, v{vGA}, vcc
v_add_u32 v{vLA}, {B_STG}, v{vLA}
v_mov_b32 v4, 0
""")
    a(f"v_mov_b32 v10, {B_LCNT}\nv_mov_b32 v11, 1")
    if kind == "X":
        a("ds_write_b32 v10, v4\ns_waitcnt lgkmcnt(0)")
    setup = a.lines[mark:]
    del a.lines[mark:]
    per = -(-len(setup) // 9)
    a(f"s_waitcnt vmcnt({sum(cnt.values())})\ns_barrier")
    stamp()
    extra = 0
    for i in range(-1, 16):
        if i == -1 and pre == 1:
            cnt[2] = issue(2)
        if i + 4 <= 17:
            cnt[i+4] = issue(i + 4)
        if 0 <= i < 9:
            a("s_cmp_eq_u32 s59, 1")
            a.lines += setup[per*i:per*(i+1)]
            a("s_cselect_b32 s59, 1, 0")
        if i == 10 and kind == "X":
            flag_load(sFO, 98); flag_load(sFK, 99)
        if kind == "W" and i >= 14:
            extra += wq_issue(2*(i-14), m) + wq_issue(2*(i-14) + 1, m)
        left = sum(cnt.get(c, 0) for c in range(i + 3, min(i + 4, 17) + 1)) + extra
        a(f"s_waitcnt vmcnt({left})\ns_barrier")
    a("s_barrier")
    if kind == "W":
        for p in (4, 5, 6, 7, 13, 14, 15, 16, 17):
            wq_issue(p, m)
        a("s_waitcnt vmcnt(15)")
    else:
        flag_check(sFK, 99, "L_BX_fk")
    stamp()
    a("s_barrier")
    stamp()
    if kind == "W":
        for p in range(8, 13):
            wq_issue(p, m)
    KT = lambda s: 40 + 4 * s
    RD = lambda src, j: 112 + 28 * src + 4 * j
    srcs = ((vEA, 0), (vE0, 0), (vE0, 4096), (vEA, 5120), (vEA, 6144), (vEL, 9216), (vEL, 4096))
    prods = ((1, 2), (0, 3), (0, 4), (6, 5), (5, 0))
    if kind == "W":
        srcs = ((vEA, 0), None, (vE0, 4096), (vEA, 5120), (vEA, 6144), (vEL, 9216))
        prods = ((0, 2), (0, 3), (0, 4), None, (5, 0))
    nr = sum(x is not None for x in srcs)
    for src in range(4):
        for j, x in enumerate(srcs):
            if x: a(f"ds_read_b128 {vr(RD(src, j),4)}, v{x[0]} offset:{src*10240 + x[1]}")
    for src in range(4):
        a(f"s_waitcnt lgkmcnt({min(15, nr*(3-src))})")
        for s_, x in enumerate(prods):
            if x: a(mf(KT(s_), RD(src, x[0]), RD(src, x[1]), KT(s_) if src else "0"))
    for s_ in range(4 if kind == "X" else 3):
        for r in range(4):
            a(f"ds_write_b32 v{VS + 2*s_ + r//2}, v{KT(s_)+r} offset:{76*(r%2)}")
    a(f"ds_write_b32 v{vZS}, v{KT(4)}")
    a("s_waitcnt lgkmcnt(0)\ns_mov_b64 exec, 1\nds_add_u32 v10, v11\ns_mov_b64 exec, -1")
    stamp()
    b1, b2, b3 = {0: ((0, 1, 2, 3, 4, 5), (), (6, 7, 8)), 1: ((0, 1, 2), (3, 4, 5, 6, 7, 8), ()), 2: ((0, 1, 2), (3, 4, 5), (6, 7, 8))}[OPT.get("wob", 0)]
    if kind == "W":
        a("s_waitcnt vmcnt(0)\ns_barrier")
        for g in b1: wo_pair(g)
        if b2:
            a("s_barrier")
            for g in b2: wo_pair(g)
        stamp()
        a("s_barrier")
        loader_tail("BW", b3)
        return
    a(f"""
s_mov_b32 s{sT3}, 0x400000
L_BX_st:
ds_read_b32 v2, v10
s_waitcnt lgkmcnt(0)
v_readfirstlane_b32 s{sT}, v2
s_sub_u32 s{sT3}, s{sT3}, 1
s_cbranch_scc1 L_BX_st_x
s_cmp_ge_u32 s{sT}, 4
s_cbranch_scc0 L_BX_st
L_BX_st_x:
""")
    for n in range(11):
        a(f"ds_read_b32 v{40+n}, v{vLA} offset:{256*n}")
    for n in range(11):
        a(f"s_waitcnt lgkmcnt({10-n})")
        a(f"buffer_atomic_add_f32 v{40+n}, v{vGA + (n == 10)}, s[{SWS}:{SWS+3}], 0 offen offset:{256*n}")
    stamp()
    a("s_barrier")
    if b2:
        a("s_barrier")
    a("s_waitcnt vmcnt(0)")
    stamp()
    arrive_wait(sKC, 32, "L_BX_kc")
    stamp()
    for s_ in range(9):
        for r in range(4):
            a(f"buffer_load_dword v{112+4*s_+r}, v{VG + 2*s_ + r//2}, s[{SWS}:{SWS+3}], 0 offen offset:{76*(r%2)} sc1")
    dst = ((vLW, -1), (vLW, 4), (vLW, 9), (vLW, 13), (vLW + 2, 0), (vLW + 1, 4), (vLW + 1, 9), (vLW + 1, 13), (vLW + 3, 8))
    a(f"v_subrev_u32 v11, 512, v{vLW}")
    for s_, (ad, off) in enumerate(dst):
        a(f"s_waitcnt vmcnt({4*(8-s_)})")
        a(cv(40 + 2*s_, 112 + 4*s_)); a(cv(41 + 2*s_, 114 + 4*s_))
        a(f"ds_write_b64 v{11 if off < 0 else ad}, {vr(40+2*s_,2)} offset:{512*max(off, 0)}")
    a("s_waitcnt lgkmcnt(0)")
    stamp()
    a("s_barrier")
    loader_tail("BX")

def p2_consumer():
    OFR = lambda ks, rt: 112 + ks * 8 + rt * 4
    ACC = lambda t, rt: 72 + (t * 2 + rt) * 4
    wf = lambda t: 52 + 4 * t
    R8, R2, vO, vTW, vTR, VS = 1, 5, 6, 7, 8, 9
    AH = OPT["ahead"]
    a("L_P2:")
    nstamp[0] = 10
    rd_lanes(R8, R2, 17, 18)
    for j in range(5):
        a(f"v_add_u32 v{R8+j}, {R1}, v{R8+j}")
    a(f"""
v_lshl_add_u32 v{vO}, v0, 4, s58
s_mul_i32 s{sT}, s{sWAVE}, 4608
s_add_u32 s{sT}, s{sT}, {P_TR}
v_and_b32 v17, 15, v0
v_mul_u32_u24 v17, 144, v17
v_lshrrev_b32 v18, 4, v0
v_lshl_add_u32 v17, v18, 3, v17
v_add_u32 v{vTW}, s{sT}, v17
v_lshl_add_u32 v{vTR}, v0, 4, s{sT}
s_lshr_b32 s{sT}, s{sWAVE}, 1
s_and_b32 s{sT2}, s{sWAVE}, 1
s_lshl_b32 s{sT2}, s{sT2}, 5
s_lshl_b32 s{sT3}, s{sWAVE}, 5
s_cmp_eq_u32 s{sBR}, 0
s_cselect_b32 s42, s{sT}, 0
s_cselect_b32 s43, s{sT2}, s{sT3}
s_cselect_b32 s55, 1, 0
s_lshl_b32 s56, s42, 3
s_lshl_b32 s{sT}, s{sRB}, 7
s_add_u32 s42, s42, s{sT}
s_mul_i32 s{sT}, s{sBR}, 1152
s_mul_i32 s{sT2}, s{sHG}, 144
s_add_u32 s57, s{sT}, s{sT2}
""")
    for n in range(5):
        a(f"""
v_add_u32 v17, {64*n}, v0
v_mul_u32_u24 v18, 7282, v17
v_lshrrev_b32 v18, 16, v18
v_mul_u32_u24 v19, 9, v18
v_sub_u32 v19, v17, v19
v_add_u32 v18, s43, v18
v_xor_b32 v18, s56, v18
v_lshlrev_b32 v18, s55, v18
v_add_u32 v18, s42, v18
v_mul_u32_u24 v18, 2304, v18
v_lshl_add_u32 v18, v19, 4, v18
v_add_u32 v{VS+n}, s57, v18
""")
    a(f"v_mov_b32 v17, {OOB}\nv_cndmask_b32 v{VS+4}, v17, v{VS+4}, s[{sG01}:{sG01+1}]")
    a(f"v_add_u32 v14, 18432, v{vO}")
    SO = [8, 9, 10, 11, 12, 13, 14, 15, 36]
    rho(37)
    a(f"s_movk_i32 s{SO[0]}, 16384")
    for j in range(1, 9):
        a(f"s_add_u32 s{sT}, s37, {2*j-2}\ns_and_b32 s{sT}, s{sT}, 15\ns_lshl_b32 s{SO[j]}, s{sT}, 10")
    a("s_waitcnt vmcnt(0)")
    stamp()
    a("s_barrier\ns_barrier")
    stamp()
    def oload(ks, rt):
        return f"buffer_load_dwordx4 {vr(OFR(ks, rt),4)}, v{14 if rt else vO}, s[{SWS}:{SWS+3}], s{SO[ks//2]} offen offset:{1024*(ks%2)} sc1"
    base = lambda ks: R1 if ks < 3 else 0 if 9 <= ks < 12 else R2_
    R2_ = 43008
    def wreads(ks, t):
        o = WO[ks] - base(ks)
        if t == 4:
            return [tr(wf(t), R2, o + 4096), tr(wf(t) + 2, R2, o + 4096 + 256)]
        return [tr(wf(t), R8 + t, o), tr(wf(t) + 2, R8 + t, o + 1024)]
    for ks in range(AH):
        a(oload(ks, 0)); a(oload(ks, 1))
    for t in range(5):
        for x in wreads(0, t): a(x)
    for ks in range(18):
        tiles = [[mf(ACC(t, rt), wf(t), OFR(ks, rt), ACC(t, rt) if ks else "0") for rt in range(2)] for t in range(5)]
        w0 = f"s_waitcnt vmcnt({2*min(AH - 1, 17 - ks)}) lgkmcnt(8)"
        if ks < 17:
            nxt = [wreads(ks + 1, t) for t in range(5)]
            if base(ks + 1) != base(ks):
                d = (base(ks + 1) - base(ks)) & 0xffffffff
                for t in range(5):
                    nxt[t][0] = f"v_add_u32 v{R8+t}, {d}, v{R8+t}\n" + nxt[t][0]
            first = []
            if ks + AH < 18:
                first = [oload(ks + AH, 0)]
                nxt[1][1] += "\n" + oload(ks + AH, 1)
            kstep(tiles, nxt, first, {t: "s_waitcnt lgkmcnt(7)" if t else w0 for t in range(5)})
        else:
            kstep(tiles, None, [], {t: f"s_waitcnt lgkmcnt({8 - 2*t})" if t else w0 for t in range(5)})
        if ks == 0:
            stamp()
    stamp()
    for rt in range(2):
        for t in range(5):
            d = 20 + 2*(rt*5 + t)
            a(cv(d, ACC(t, rt))); a(cv(d + 1, ACC(t, rt) + 2))
            if t == 4:
                a(f"s_mov_b64 exec, s[{sG01}:{sG01+1}]")
            a(f"ds_write_b64 v{vTW}, {vr(d,2)} offset:{rt*2304 + 32*t}")
            if t == 4:
                a("s_mov_b64 exec, -1")
    a("s_waitcnt lgkmcnt(0)")
    for n in range(5):
        a(f"ds_read_b128 {vr(112+4*n,4)}, v{vTR} offset:{1024*n}")
    for n in range(5):
        a(f"s_waitcnt lgkmcnt({4-n})")
        a(f"buffer_store_dwordx4 {vr(112+4*n,4)}, v{VS+n}, s[{SOUT}:{SOUT+3}], 0 offen")
    stamp()
    stamps_out(True)
    a("s_endpgm")

HEADER = open("concat_heads__sliding_local_dilated__linear_attn_block__prompt.s.ref").read().split("; Override")[0]
out = HEADER + "; @launch grid=(256,1,1) block=(512,1,1) lds=163840\n"
a('.amdgcn_target "amdgcn-amd-amdhsa--gfx950"\n.text')
a(kernel_head(KN))
if OPT["stamps"]:
    for i in range(16):
        a(f"s_mov_b32 s{sST+2*i}, 0")
stamp()
a(f"""
s_cmp_ge_u32 s2, 256
s_cbranch_scc1 L_end
s_and_b32 s{sT}, s2, 7
s_lshr_b32 s{sBR}, s{sT}, 2
{'s_xor_b32 s6, s6, 1' if OPT.get('swap') else ''}
s_mul_i32 s{sT2}, s{sBR}, 24
s_add_u32 s0, s0, s{sT2}
s_addc_u32 s1, s1, 0
s_load_dwordx4 s[36:39], s[0:1], 0
s_load_dwordx2 s[40:41], s[0:1], 16
s_sub_u32 s0, s0, s{sT2}
s_subb_u32 s1, s1, 0
s_load_dwordx4 s[44:47], s[0:1], 48
s_load_dwordx2 s[48:49], s[0:1], 64
v_lshrrev_b32 v1, 6, v0
v_and_b32 v0, 63, v0
v_readfirstlane_b32 s{sWAVE}, v1
s_lshr_b32 s{sT2}, s2, 3
""")
m84 = f"""
s_and_b32 s{sHG}, s{sT2}, 3
s_and_b32 s{sT3}, s{sT}, 1
s_lshl_b32 s{sT3}, s{sT3}, 2
s_add_u32 s{sHG}, s{sHG}, s{sT3}
s_lshr_b32 s{sRB}, s{sT2}, 2
s_and_b32 s{sT3}, s{sT}, 2
s_lshl_b32 s{sT3}, s{sT3}, 2
s_add_u32 s{sRB}, s{sRB}, s{sT3}
"""
m48 = f"""
s_and_b32 s{sHG}, s{sT2}, 7
s_lshr_b32 s{sRB}, s{sT2}, 3
s_and_b32 s{sT3}, s{sT}, 3
s_lshl_b32 s{sT3}, s{sT3}, 2
s_add_u32 s{sRB}, s{sRB}, s{sT3}
"""
if OPT["mapping"] == 84:
    a(m84)
elif OPT["mapping"] == 48:
    a(m48)
else:
    a(m48 + f"s_cmp_eq_u32 s{sBR}, {0 if OPT['mapping'] == 8448 else 1}\ns_cbranch_scc0 L_map" + m84 + "L_map:")
rot = ""
if OPT.get("rot") == 2:
    rot = f"""s_lshr_b32 s90, s2, 1
s_xor_b32 s90, s90, s2
s_and_b32 s90, s90, 1
s_mul_i32 s91, s90, {OPT.get("rotby", 5)*128}
s_mul_i32 s90, s90, {OPT.get("rotby", 5)*64*3456}"""
elif OPT.get("rot") == 3:
    rot = f"""s_lshr_b32 s90, s2, 1
s_xor_b32 s90, s90, s2
s_and_b32 s90, s90, 1
s_mul_i32 s90, s90, 5
s_add_u32 s91, s{sRB}, s{sHG}
s_and_b32 s91, s91, 3
s_add_u32 s90, s90, s91
s_lshl_b32 s91, s90, 7
s_mul_i32 s90, s90, {64*3456}"""
elif OPT.get("rot") == 7:
    rot = f"""s_and_b32 s90, s{sHG}, 3
s_and_b32 s91, s{sRB}, 7
s_lshl1_add_u32 s90, s90, s91
s_cmp_ge_u32 s90, 9
s_cselect_b32 s91, 9, 0
s_sub_u32 s90, s90, s91
s_lshl_b32 s91, s90, 7
s_mul_i32 s90, s90, {64*3456}"""
elif OPT.get("rot") in (4, 5, 6):
    tab = {4: 0x75207520, 5: 0x63006300, 6: 0x86427531}[OPT["rot"]]
    rot = f"""s_add_u32 s90, s{sRB}, s{sHG}
s_and_b32 s90, s90, 7
s_lshl_b32 s90, s90, 2
s_lshr_b32 s90, {hex(OPT.get("tab", tab))}, s90
s_and_b32 s90, s90, 15
s_lshl_b32 s91, s90, 7
s_mul_i32 s90, s90, {64*3456}"""
elif OPT.get("rot"):
    few, many = (sRB, sHG) if OPT["mapping"] == 48 else (sHG, sRB)
    rot = f"""s_and_b32 s90, s{few}, 3
s_lshl_b32 s90, s90, 2
s_lshr_b32 s90, 0x7520, s90
s_and_b32 s90, s90, 15
s_and_b32 s91, s{many}, 7
s_add_u32 s90, s90, s91
s_cmp_ge_u32 s90, 9
s_cselect_b32 s91, 9, 0
s_sub_u32 s90, s90, s91
s_lshl_b32 s91, s90, 7
s_mul_i32 s90, s90, {64*3456}"""
a(f"""
s_mov_b32 s{sG0}, 0xffff
s_mov_b32 s{sG0+1}, 0
s_mov_b32 s{sG01}, -1
s_mov_b32 s{sG01+1}, 0
s_and_b32 s{sV}, s{sWAVE}, 1
s_mul_i32 s{sM}, s{sHG}, 144
s_cmp_lt_u32 s{sWAVE}, 4
s_cbranch_scc1 L_cons
s_setprio {OPT.get("prio", 2)}
s_mov_b32 s59, 0
{rot}
s_cmp_lt_u32 s{sWAVE}, 6
s_cbranch_scc1 L_wld
s_cmp_eq_u32 s{sBR}, 0
s_cbranch_scc1 L_AX0
s_branch L_BX0
L_wld:
s_cmp_eq_u32 s{sBR}, 0
s_cbranch_scc1 L_AW0
s_branch L_BW0
L_cons:
s_getpc_b64 s[42:43]
L_pc:
s_lshl_b32 s{sT}, s{sT2}, 2
s_add_u32 s{sT}, s{sT}, s{sWAVE}
s_lshl_b32 s{sT}, s{sT}, 9
v_and_b32 v1, 3, v0
v_lshlrev_b32 v1, 7, v1
v_add_u32 v1, s{sT}, v1
v_min_u32 v1, {'L_last2' if OPT.get('ifetch') == 1 else 'L_last'}-L_pc, v1
{'global_load_dword v27, v1, s[42:43]' if not OPT.get('nopf') else ''}
s_cmp_eq_u32 s{sBR}, 0
s_cbranch_scc1 L_AC
s_branch L_BC
L_end:
s_endpgm
""")
w_head("A"); w_head("B"); x_head("A"); x_head("B")
n0 = nstamp[0]
for fn in (lambda: a_loader("W"), lambda: a_loader("X"), a_consumer, lambda: b_loader("W"), lambda: b_loader("X"), b_consumer, p2_consumer):
    nstamp[0] = n0
    fn()
a("s_endpgm" if OPT.get("ifetch", 0) > 1 else "L_last2:\ns_endpgm" if OPT.get("ifetch") else "L_last:\ns_endpgm")
lines = []
for l in a.lines: lines += l.split("\n")
if OPT.get("noread"):
    lines = [l for l in lines if not l.startswith("ds_read_b64_tr")]
if OPT.get("nomfma"):
    lines = [l for l in lines if not l.startswith("v_mfma")]
lines, added = hz.fix(lines)
out += "\n".join(lines) + "\n"
out += '.section .rodata,"a"\n.p2align 6\n' + kernel_desc(KN, 256, 102 if OPT.get('cyc') else 100, 256)
sys.stdout.write(out)
sys.stderr.write(f"nop states added: {added}\n")
```

```python
import sys, struct
from asmlib import *
import hz

OPT = dict(stamps=0, mapping=48, ahead=6, rot=4, nt=1)
for arg in sys.argv[1:]:
    k, v = arg.split("=")
    OPT[k] = int(v)
KN = "concat_heads__sliding_local_dilated__linear_attn_block__prompt_kernel"

def f32(x):
    return "0x%08x" % struct.unpack("<I", struct.pack("<f", x))[0]

LOG2E = 1.4426950408889634
CSC = 18 ** -0.5 * LOG2E
NEG = "0xf149f2ca"
EPS = f32(1e-6)
OOB = "0x80000000"

O_BR = 0x240000
WS_KV = 0x500000
KV_ST = 0x2000
WS_CNT = 0x540000
WS_STAMP = 0x600000
WS_SIZE = 0x700000

sWAVE, sHG, sRB, sBR, sT = 3, 4, 5, 6, 7
SX, SW, SWS, SDBG, SWO, SOUT = 8, 12, 16, 20, 24, 28
sG0, sG01 = 32, 34
sK, sV, sM, sT2, sT3 = 50, 51, 52, 53, 54
sST = 60

a = Asm()
nstamp = [0]

def stamp():
    if OPT["stamps"]:
        i = nstamp[0]; nstamp[0] += 1
        assert i < 15
        a(f"{'s_memrealtime' if OPT.get('rt') or OPT.get('probe') and not (OPT.get('cyc') and i) else 's_memtime'} s[{sST+2*i}:{sST+2*i+1}]")
        if OPT.get("cyc") and i == 0:
            a("s_memtime s[100:101]")

def stamps_out(last=False):
    if not OPT["stamps"]:
        return
    if OPT.get("probe"):
        if last:
            j = sST + 2 * OPT["probe"]
            if OPT.get("ifetch"):
                mode = OPT["ifetch"]
                a(f"""
s_waitcnt vmcnt(0) lgkmcnt(0)
s_cmp_eq_u32 s2, {OPT.get('wg', 0)}
s_cbranch_scc0 L_probe_x
s_cmp_eq_u32 s{sWAVE}, 0
s_cbranch_scc0 L_probe_x
s_sleep 127
s_sleep 127
s_getpc_b64 s[44:45]
L_if_pc:
s_add_u32 s44, s44, L_if_blk-L_if_pc
s_addc_u32 s45, s45, 0
v_lshlrev_b32 v1, 7, v0
v_min_u32 v1, 4096, v1
""")
                if mode == 2:
                    a("global_load_dword v2, v1, s[44:45]\ns_waitcnt vmcnt(0)")
                a(f"""
s_memtime s[100:101]
s_waitcnt lgkmcnt(0)
s_branch L_if_blk
L_last:
.fill {(0 if mode == 1 else 8192)}, 4, 0xbf800000
L_if_blk:
.rept 512
v_add3_u32 v5, v0, v0, v0
.endr
s_memtime s[{j}:{j+1}]
s_waitcnt lgkmcnt(0)
s_sub_u32 s{j}, s{j}, s100
s_lshl_b32 s{j}, s{j}, 3
s_add_u32 s{j}, s{j}, s100
""")
            if OPT.get("vrate"):
                isw = OPT["vrate"] == 1
                a(f"""
s_waitcnt vmcnt(0) lgkmcnt(0)
s_load_dwordx2 s[44:45], s[0:1], {8 if isw else 0}
s_sleep 127
s_sleep 127
s_waitcnt lgkmcnt(0)
s_mov_b32 s46, {1990656 if isw else 2359296}
s_mov_b32 s47, 0x20000
v_lshrrev_b32 v1, 3, v0
v_mul_u32_u24 v1, {3456 if isw else 2304}, v1
v_and_b32 v2, 7, v0
v_lshl_add_u32 v1, v2, 4, v1
s_mov_b32 m0, 0
""")
                for rep in range(2):
                    if rep:
                        a("s_memtime s[100:101]\ns_waitcnt lgkmcnt(0)")
                    a(f"s_mov_b32 s40, 0\nL_vr{rep}:")
                    for n in range(3):
                        a(f"buffer_load_dwordx4 v1, s[44:47], s40 offen offset:{n*1152 if isw else n*128} lds")
                    a(f"s_waitcnt vmcnt(24)\ns_add_u32 s40, s40, {8*3456 if isw else 8*2304}\ns_cmp_lt_u32 s40, {72*8*3456 if isw else 72*8*2304}\ns_cbranch_scc1 L_vr{rep}\ns_waitcnt vmcnt(0)")
                a(f"s_memtime s[{j}:{j+1}]\ns_waitcnt lgkmcnt(0)\ns_sub_u32 s{j}, s{j}, s100\ns_lshl_b32 s{j}, s{j}, 3\ns_add_u32 s{j}, s{j}, s100")
            if OPT.get("skew"):
                op = "max" if OPT["skew"] in (1, 3) else "min"
                a(f"""
s_waitcnt vmcnt(0) lgkmcnt(0)
v_lshlrev_b32 v1, {4 if OPT['skew'] < 3 else 5}, v0
{'v_and_b32 v1, 0x3e0, v1' if OPT['skew'] >= 3 else ''}
v_add_u32 v1, 0x6f0000, v1
buffer_load_dwordx4 v[4:7], v1, s[{SWS}:{SWS+3}], 0 offen sc1
s_waitcnt vmcnt(0)
v_subrev_u32 v4, s{sST}, v4
v_subrev_u32 v5, s{sST}, v5
v_subrev_u32 v6, s{sST}, v6
v_subrev_u32 v7, s{sST}, v7
""")
                if OPT["skew"] < 3:
                    a(f"v_{op}_i32 v4, v4, v5\nv_{op}_i32 v6, v6, v7\nv_{op}_i32 v4, v4, v6")
                a("s_mov_b32 s44, 0\ns_nop 4")
                for l in range(64):
                    a(f"v_readlane_b32 s45, v4, {l}\ns_nop 3\ns_{op}_i32 s44, s44, s45")
                a(f"s_abs_i32 s44, s44\ns_add_u32 s{j}, s{sST}, s44")
            if OPT.get("lat"):
                a(f"""
s_waitcnt vmcnt(0) lgkmcnt(0)
s_load_dwordx2 s[44:45], s[0:1], {OPT['lat'] - 8}
s_sleep 127
s_sleep 127
s_sleep 127
s_waitcnt lgkmcnt(0)
s_mov_b32 s46, 0x100000
s_mov_b32 s47, 0x20000
v_mov_b32 v1, 0x20000
buffer_load_dword v2, v1, s[44:47], 0 offen {'sc1' if OPT.get('first') != 2 else ''}
s_waitcnt vmcnt(0)
v_mov_b32 v1, {'0x20000' if not OPT.get('first') else '0x20040'}
s_memtime s[100:101]
s_waitcnt lgkmcnt(0)
buffer_load_dword v2, v1, s[44:47], 0 offen sc1
s_waitcnt vmcnt(0)
s_memtime s[{j}:{j+1}]
s_waitcnt lgkmcnt(0)
s_sub_u32 s{j}, s{j}, s100
s_lshl_b32 s{j}, s{j}, 5
s_add_u32 s{j}, s{j}, s100
""")
            if OPT.get("xcc"):
                a(f"""
s_waitcnt vmcnt(0) lgkmcnt(0)
v_and_b32 v1, 31, v0
v_lshlrev_b32 v1, {5 if OPT['xcc'] == 1 else 2}, v1
v_add_u32 v1, 0x6f0000, v1
buffer_load_dword v2, v1, s[{SWS}:{SWS+3}], 0 offen sc1
s_getreg_b32 s44, hwreg(HW_REG_XCC_ID, 0, 4)
s_waitcnt vmcnt(0)
v_cmp_eq_u32 vcc, s44, v2
s_bcnt1_i32_b32 s44, vcc_lo
s_mul_i32 s44, s44, 10
s_add_u32 s{j}, s{sST}, s44
""")
            a(f"""
s_waitcnt vmcnt(0) lgkmcnt(0)
s_cmp_eq_u32 s2, {OPT.get('wg', 0)}
s_cbranch_scc0 L_probe_x
s_cmp_eq_u32 s{sWAVE}, 0
s_cbranch_scc0 L_probe_x
s_sub_u32 s{sT}, s{j}, s{100 if OPT.get('cyc') else sST}
{'s_lshr_b32 s7, s7, 3' if OPT.get('cyc') else 's_mul_i32 s7, s7, 10'}
s_min_u32 s{sT}, s{sT}, 100000
s_add_u32 s{sT}, s{sT}, 6000
L_probe:
s_memrealtime s[44:45]
s_waitcnt lgkmcnt(0)
s_sub_u32 s44, s44, s{sST}
s_cmp_lt_u32 s44, s{sT}
s_cbranch_scc1 L_probe
L_probe_x:
""")
        return
    a("s_waitcnt vmcnt(0) lgkmcnt(0)")
    a(f"s_lshl_b32 s{sT}, s2, 3\ns_add_u32 s{sT}, s{sT}, s{sWAVE}\ns_lshl_b32 s{sT}, s{sT}, 6")
    a(f"s_add_u32 s{sT}, s{sT}, {WS_STAMP}\nv_mov_b32 v1, s{sT}")
    for i in range(16):
        a(f"v_mov_b32 v2, s{sST+2*i}")
        a(f"buffer_store_dword v2, v1, s[{SWS}:{SWS+3}], 0 offen offset:{4*i}")
    a("s_waitcnt vmcnt(0)")

def mf(d, s0, s1, c):
    cc = c if isinstance(c, str) else vr(c, 4)
    return f"v_mfma_f32_16x16x32_bf16 {vr(d,4)}, {vr(s0,4)}, {vr(s1,4)}, {cc}"
def cv(d, x):
    return f"v_cvt_pk_bf16_f32 v{d}, v{x}, v{x+1}"
def tr(d, addr, off):
    return f"ds_read_b64_tr_b16 {vr(d,2)}, v{addr} offset:{off}"
def weave(mfmas, others, per=2):
    o = list(others)
    for m in mfmas:
        a(m)
        for _ in range(per):
            if o: a(o.pop(0))
    for x in o: a(x)

def srd(dst, lo, nbytes):
    a(f"s_mov_b32 s{dst}, s{lo}\ns_mov_b32 s{dst+1}, s{lo+1}\ns_mov_b32 s{dst+2}, {nbytes}\ns_mov_b32 s{dst+3}, 0x20000")
def srds_rest():
    srd(SWO, 40, 663552); srd(SOUT, 44, 4718592); srd(SDBG, 46, 256); srd(SWS, 48, WS_SIZE)

class M0:
    def __init__(self, base): self.base = base; self.cur = None
    def set(self, imm):
        if self.cur is not None and -32768 <= imm - self.cur <= 32767:
            a(f"s_addk_i32 m0, {imm - self.cur}")
        else:
            a(f"s_add_u32 m0, s{self.base}, {imm}")
        self.cur = imm

CUR = [0]
def dma(voff, srd_, soff, half=False):
    if OPT.get("nodma") or (OPT.get("nos") and voff == VD + 6 and srd_ == SW and not half):
        return
    if half: a(f"s_mov_b64 exec, s[{sG01}:{sG01+1}]")
    nt = " nt" if OPT.get("nt", 0) >> {SX: 0, SW: 1, SWO: 2}[srd_] & 1 and CUR[0] < OPT.get("ntc", 99) else ""
    a(f"buffer_load_dwordx4 v{voff}, s[{srd_}:{srd_+3}], {soff} offen{nt} lds")
    if half: a("s_mov_b64 exec, -1")

def rd_lanes(r8, r2, t0, t1):
    a(f"""
v_lshrrev_b32 v{t0}, 5, v0
v_lshlrev_b32 v{t0}, 4, v{t0}
v_bfe_u32 v{t1}, v0, 4, 1
v_lshl_add_u32 v{t0}, v{t1}, 2, v{t0}
v_bfe_u32 v{t1}, v0, 2, 2
v_add_u32 v{t0}, v{t0}, v{t1}
v_and_b32 v{t1}, 3, v0
v_lshlrev_b32 v{t1}, 3, v{t1}
v_lshl_add_u32 v{r2}, v{t0}, 5, v{t1}
v_lshl_add_u32 v{r8}, v{t0}, 7, v{t1}
v_bfe_u32 v{t0}, v{t0}, 1, 2
v_lshl_add_u32 v{r8}, v{t0}, 5, v{r8}
""")
    for t in (1, 2, 3):
        a(f"v_xor_b32 v{r8+t}, {32*t}, v{r8}")

def x_lane(d0, d1, tmp):
    a(f"""
v_lshrrev_b32 v{d0}, 4, v0
v_bfe_u32 v{tmp}, v0, 1, 3
v_xor_b32 v{d0}, v{d0}, v{tmp}
v_and_b32 v{tmp}, 15, v0
v_lshlrev_b32 v{tmp}, 7, v{tmp}
v_lshl_add_u32 v{d0}, v{d0}, 4, v{tmp}
v_xor_b32 v{d1}, 64, v{d0}
""")

def col8(dst, tmp):
    a(f"v_bfe_u32 v{tmp}, v0, 4, 2\nv_lshlrev_b32 v{tmp}, 1, v{tmp}\nv_and_b32 v{dst}, 7, v0\nv_xor_b32 v{dst}, v{dst}, v{tmp}\nv_lshlrev_b32 v{dst}, 4, v{dst}")

def head_of(dst, src):
    a(f"v_mul_u32_u24 v{dst}, 57, v{src}\nv_lshrrev_b32 v{dst}, 10, v{dst}")

sOC, sKC, sFO, sFK = 92, 94, 96, 97

def arrive_wait(addr, target, label, arrive=True):
    if arrive:
        a(f"s_mov_b32 s{sT}, 1\ns_atomic_add s{sT}, s[{addr}:{addr+1}], 0 glc\ns_waitcnt lgkmcnt(0)\ns_cmp_ge_u32 s{sT}, {target-1}\ns_cbranch_scc1 {label}_x")
    a(f"""
s_mov_b32 s{sT3}, 0x20000
{label}:
s_mov_b32 s{sT}, 0
s_atomic_add s{sT}, s[{addr}:{addr+1}], 0 glc
s_waitcnt lgkmcnt(0)
s_sub_u32 s{sT3}, s{sT3}, 1
s_cbranch_scc1 {label}_x
s_cmp_ge_u32 s{sT}, {target}
s_cbranch_scc0 {label}
{label}_x:
""")

def flag_load(dst, offreg):
    a(f"s_load_dword s{dst}, s[{SDBG}:{SDBG+1}], s{offreg}")

def flag_check(val, offreg, label):
    a(f"""
s_mov_b32 s{sT3}, 0x20000
{label}:
s_waitcnt lgkmcnt(0)
s_cmp_lg_u32 s{val}, 0
s_cbranch_scc1 {label}_x
s_sub_u32 s{sT3}, s{sT3}, 1
s_cbranch_scc1 {label}_x
s_load_dword s{val}, s[{SDBG}:{SDBG+1}], s{offreg} glc
s_branch {label}
{label}_x:
""")

A_WSLOT, A_XSLOT = 14336, 18432
A_X0 = 5 * A_WSLOT
A_EX = A_X0 + 3 * A_XSLOT
B_KVSLOT, B_XSLOT = 9216, 16384
B_X0 = 5 * B_KVSLOT
B_EX = B_X0 + 3 * B_XSLOT
B_KVOP = 126976
B_STG = 136192
B_DUMP, B_LCNT = B_STG + 5632, B_STG + 6144
B_WQ0 = 143360
QORD = list(range(18))
def wq_slot(p):
    if p < 4: return B_WQ0 + 5120 * p
    if p < 7: return 5120 * (p - 4)
    if p < 13: return 40960 + 5120 * (p - 7)
    return 15360 + 5120 * (p - 13)
R1, R2 = 147456, 43008
WO = [R1, R1 + 5120, R1 + 10240] + [R2 + 5120 * n for n in range(6, 12)] + [0, 5120, 10240] + [R2 + 5120 * n for n in range(6)]
P_TR = 108544
SPLITS = {(1, 0): sG0, (2, 0): sG0, (2, 1): sG0, (3, 0): sG01, (3, 1): sG0}

VD = 16
VWO = 26
vCNT, vFLO, vFLK, vFO, vFK = 30, 31, 32, 33, 34

def w_head(kind):
    parts = (0, 1152, 2304) if kind == "A" else (1152, 2304)
    a(f"L_{kind}W0:")
    col8(VD, 1)
    a(f"""
v_bfe_u32 v1, v0, 5, 1
v_bfe_u32 v2, v0, 3, 2
v_lshl_add_u32 v1, v1, 3, v2
s_mul_i32 s{sT}, s{sV}, {16*3456}
s_add_u32 s{sT}, s{sT}, s{sM}
v_mul_u32_u24 v1, 3456, v1
v_add3_u32 v{VD}, v{VD}, v1, s{sT}
""")
    n = 2 * len(parts)
    for j in range(n - 1, -1, -1):
        off = parts[j // 2] + (j % 2) * 4 * 3456
        if off:
            a(f"v_add_u32 v{VD+j}, {off}, v{VD}")
    a(f"""
v_bfe_u32 v1, v0, 3, 1
v_bfe_u32 v2, v0, 4, 1
v_sub_u32 v1, v1, v2
v_lshrrev_b32 v2, 1, v0
v_lshl_add_u32 v1, v1, 2, v2
v_mul_u32_u24 v1, 3456, v1
v_and_b32 v2, 1, v0
""")
    if kind == "A":
        a(f"""
s_cmp_eq_u32 s{sV}, 0
s_cselect_b32 s{sT2}, 1152, 0
s_cselect_b32 s{sT}, 0, 2304
s_add_u32 s{sT}, s{sT}, s{sM}
s_addk_i32 s{sT}, 128
v_mad_u32_u24 v1, v2, s{sT2}, v1
v_add_u32 v{VD+6}, s{sT}, v1
""")
    else:
        a(f"""
s_add_u32 s{sT}, s{sT}, 128
v_add_u32 v{VD+7}, s{sT}, v1
v_mul_u32_u24 v2, 1152, v2
v_add_u32 v2, 1152, v2
v_add_u32 v{VD+4}, v2, v{VD+7}
""")
    a(f"s_lshl_b32 s42, s{sV}, 11\ns_lshl_b32 s43, s{sV}, {10 if kind == 'A' else 9}\ns_sub_u32 s43, s43, s42")
    a("s_waitcnt lgkmcnt(0)")
    srd(SW, 38, 1990656)
    m = M0(42)
    w_issue(kind, 0, m)
    a(f"s_branch L_{kind}W1")

def w_issue(kind, c, m):
    CUR[0] = c
    slot = (c % 5) * (A_WSLOT if kind == "A" else B_KVSLOT)
    n = 6 if kind == "A" else 4
    so = f"s{sK}" if c else "0"
    if OPT.get("rot"):
        so = "s90"
        if c:
            a(f"s_add_u32 s90, s90, {32*3456}\ns_cmp_eq_u32 s90, {18*32*3456}\ns_cselect_b32 s90, 0, s90")
    elif c:
        a(f"s_mov_b32 s{sK}, {c*32*3456}")
    for j in range(n):
        m.set(slot + 4096 * (j // 2) + 1024 * (j % 2))
        dma(VD + j, SW, so)
    m.set(slot + 4096 * (n // 2))
    a("s_add_u32 m0, m0, s43")
    m.cur = None
    dma(VD + n, SW, so, half=(kind == "B"))
    return n + 1

def wq_issue(p, m):
    if OPT.get("rot"):
        a(f"s_add_u32 s{sK}, s90, {(p+1)*32*3456}\ns_cmp_ge_u32 s{sK}, {18*32*3456}\ns_cselect_b32 s{sT}, {18*32*3456}, 0\ns_sub_u32 s{sK}, s{sK}, s{sT}")
    else:
        a(f"s_mov_b32 s{sK}, {QORD[p]*32*3456}")
    for j in range(2):
        m.set(wq_slot(p) + 1024 * j)
        dma(VD + 5 + j, SW, f"s{sK}")
    m.set(wq_slot(p) + 4096)
    a("s_add_u32 m0, m0, s43")
    m.cur = None
    dma(VD + 7, SW, f"s{sK}", half=True)
    return 3

def x_head(kind):
    nq = 9 if kind == "A" else 8
    a(f"L_{kind}X0:")
    a(f"""
v_lshrrev_b32 v1, 3, v0
v_mul_u32_u24 v1, {2304 if kind == 'A' else 1152}, v1
v_lshrrev_b32 v2, 4, v0
v_lshl_add_u32 v2, s{sV}, 2, v2
v_and_b32 v3, 7, v0
v_xor_b32 v2, v2, v3
v_lshl_add_u32 v1, v2, 4, v1
s_mul_i32 s{sT}, s{sRB}, {128*1152}
""")
    if kind == "A":
        a(f"""
s_mul_i32 s{sT2}, s{sV}, {16*1152}
s_add_u32 s{sT3}, s{sT}, s{sT2}
v_add_u32 v{VD}, s{sT3}, v1
s_sub_u32 s{sT3}, s{sT}, s{sT2}
s_add_u32 s{sT3}, s{sT3}, {17*1152}
v_add_u32 v{VD+4}, s{sT3}, v1
s_mul_i32 s{sT2}, s{sV}, 1152
s_sub_u32 s{sT3}, s{sT}, s{sT2}
s_sub_u32 s{sT3}, s{sT3}, {15*1152}
v_add_u32 v{VD+8}, s{sT3}, v1
""")
        for q in (1, 2, 3):
            a(f"v_add_u32 v{VD+q}, {32*1152*q}, v{VD}\nv_add_u32 v{VD+4+q}, {32*1152*q}, v{VD+4}")
    else:
        a(f"s_mul_i32 s{sT2}, s{sV}, {8*1152}\ns_add_u32 s{sT}, s{sT}, s{sT2}\nv_add_u32 v{VD}, s{sT}, v1")
        for q in range(1, 8):
            a(f"v_add_u32 v{VD+q}, {16*1152*q}, v{VD}")
    a(f"s_lshl_b32 s42, s{sV}, 10")
    a("s_waitcnt lgkmcnt(0)")
    srd(SX, 36, 2359296)
    x_issue(kind, 0, M0(42))
    a(f"s_branch L_{kind}X1")

def x_issue(kind, c, m):
    CUR[0] = c + (c & 1)
    nq, h, x0, xs = (9, 5, A_X0, A_XSLOT) if kind == "A" else (8, 4, B_X0, B_XSLOT)
    st = (c + 1) // 2
    if st > 8:
        return 0
    qs = range(nq) if c == 0 else (range(h) if c % 2 else range(h, nq))
    so = f"s{sK}" if st else "0"
    if OPT.get("rot"):
        so = "s91"
        if c % 2:
            a("s_addk_i32 s91, 128\ns_cmpk_eq_u32 s91, 1152\ns_cselect_b32 s91, 0, s91")
    elif st:
        a(f"s_movk_i32 s{sK}, {st*128}")
    for q in qs:
        m.set(x0 + (st % 3) * xs + 2048 * q)
        a("s_nop 0")
        dma(VD + q, SX, so)
    return len(qs)

def wo_setup(quad):
    col8(VWO, 1)
    a(f"""
s_mul_i32 s{sM}, s{sHG}, 144
v_add_u32 v{VWO}, s{sM}, v{VWO}
v_bfe_u32 v1, v0, 5, 1
v_bfe_u32 v2, v0, 3, 2
v_mul_u32_u24 v1, 72, v1
v_add_u32 v1, v1, v2
v_mul_u32_u24 v1, 1152, v1
v_add_u32 v{VWO+1}, v1, v{VWO}
v_lshrrev_b32 v1, 3, v0
v_mul_u32_u24 v1, 1152, v1
v_add_u32 v{VWO}, v1, v{VWO}
v_bfe_u32 v1, v0, 1, 2
v_bfe_u32 v2, v0, 3, 1
v_bfe_u32 v3, v0, 4, 1
v_bfe_u32 v4, v0, 5, 1
v_lshl_add_u32 v5, v2, 2, v1
v_lshl_add_u32 v5, v3, 4, v5
v_lshl_add_u32 v5, v4, 3, v5
v_mul_u32_u24 v5, 1152, v5
s_add_u32 s{sM}, s{sM}, 128
v_add_u32 v{VWO+2}, s{sM}, v5
v_lshl_add_u32 v5, v3, 2, v1
v_lshl_add_u32 v2, v4, 1, v2
v_mul_u32_u24 v2, 72, v2
v_add_u32 v5, v5, v2
v_mul_u32_u24 v5, 1152, v5
v_add_u32 v{VWO+3}, s{sM}, v5
s_and_b32 s55, s{sWAVE}, 3
s_lshl_b32 s57, s55, 3
""")
    rho(56)
    a(f"s_add_u32 s56, s56, s{55 if quad else sV}")

def rho(dst):
    few, many = (sRB, sHG) if OPT["mapping"] == 48 else (sHG, sRB)
    if OPT["mapping"] > 99:
        a(f"s_cmp_eq_u32 s{sBR}, {0 if OPT['mapping'] == 8448 else 1}\ns_cselect_b32 s{sT}, s{sHG}, s{sRB}\ns_cselect_b32 s{sT2}, s{sRB}, s{sHG}")
        few, many = sT, sT2
    a(f"s_lshl_b32 s{dst}, s{few}, 1\ns_add_u32 s{dst}, s{dst}, s{many}\ns_lshl_b32 s{dst}, s{dst}, 1")
    if not OPT.get("worot", 1):
        a(f"s_mov_b32 s{dst}, 0")

def wo_chunk(left, fadd):
    if left:
        a(f"s_mul_i32 s{sK}, s{sV}, {288*1152}\ns_add_u32 s{sK}, s{sK}, {64*1152}")
        steps = (4, 140, 4); v8, v2 = VWO + 1, VWO + 3
    else:
        a(f"""
s_add_u32 s{sT}, s56, {fadd}
s_bfe_u32 s{sK}, s{sT}, 0x30001
s_mul_i32 s{sK}, s{sK}, {72*1152}
s_bitcmp1_b32 s{sT}, 0
s_cselect_b32 s{sT}, {32*1152}, 0
s_add_u32 s{sK}, s{sK}, s{sT}
""")
        steps = (16, -8, 16); v8, v2 = VWO, VWO + 2
    a(f"s_mov_b32 s{sT2}, s{sK}")
    for j in range(4):
        dma(v8, SWO, f"s{sK}")
        a("s_addk_i32 m0, 1024")
        a(f"s_add_u32 s{sK}, s{sK}, {steps[j]*1152 & 0xffffffff}" if j < 3 else "s_nop 0")
    dma(v2, SWO, f"s{sT2}")
    return 5

def wo_issue(q):
    packed = sum((WO[2 + 4*q + w] // 1024) << (8 * w) for w in range(4))
    a(f"s_lshr_b32 s{sT}, {packed}, s57\ns_and_b32 s{sT}, s{sT}, 0xff\ns_lshl_b32 m0, s{sT}, 10")
    return wo_chunk(False, 4*q)

def wo_pair(g):
    a(f"s_mul_i32 s{sT}, s{sV}, {WO[2*g+1] - WO[2*g] & 0xffffffff}\ns_add_u32 m0, s{sT}, {WO[2*g]}")
    return wo_chunk(g == 0, 2*g - 2)

def sync_setup():
    a(f"""
s_lshl_b32 s{sT}, s{sBR}, 4
s_add_u32 s{sT}, s{sT}, s{sRB}
s_lshl_b32 s{sT2}, s{sT}, 8
s_add_u32 s{sT2}, s{sT2}, {WS_CNT}
s_add_u32 s{sOC}, s{SWS}, s{sT2}
s_addc_u32 s{sOC+1}, s{SWS+1}, 0
s_lshl_b32 s{sT}, s{sT}, 2
s_add_u32 s98, s{sT}, 32
s_lshl_b32 s99, s{sHG}, 2
s_mul_i32 s{sT2}, s{sHG}, {KV_ST}
s_add_u32 s{sT2}, s{sT2}, {WS_KV + 6144}
s_add_u32 s{sKC}, s{SWS}, s{sT2}
s_addc_u32 s{sKC+1}, s{SWS+1}, 0
""")

def loader_tail(tag, late=()):
    if tag[1] == "X":
        flag_check(sFO, 98, f"L_{tag}_fo")
    a("s_barrier")
    stamp()
    for g in late:
        wo_pair(g)
    if tag[1] == "X":
        a(f"s_cmp_eq_u32 s{sWAVE}, 6\ns_cbranch_scc0 L_{tag}_oc_x")
        arrive_wait(sOC, 8, f"L_{tag}_oc")
    a("s_waitcnt vmcnt(0)")
    stamp()
    a("s_barrier")
    stamps_out()
    a("s_endpgm")

def a_loader(kind):
    a(f"L_A{kind}1:")
    m = M0(42)
    issue = (lambda c: w_issue("A", c, m)) if kind == "W" else (lambda c: x_issue("A", c, m))
    pre = 1 if OPT.get("early") and kind == "W" else 2
    cnt = {c: issue(c) for c in range(1, pre + 1)}
    stamp()
    x_lane(8, 9, 1)
    rd_lanes(36, 12, 1, 2)
    a(f"""
v_add_u32 v8, {A_X0 + 8*2048}, v8
v_add_u32 v9, {A_X0 + 8*2048}, v9
s_lshl_b32 s{sT}, s{sV}, 6
v_xor_b32 v10, s{sT}, v36
v_add_u32 v10, {4096 if kind == 'W' else 8192}, v10
v_xor_b32 v11, 32, v10
v_add_u32 v12, {12288 if kind == 'W' else 13312}, v12
v_add_u32 v13, {4*A_WSLOT}, v10
v_add_u32 v14, {4*A_WSLOT}, v11
v_add_u32 v15, {4*A_WSLOT}, v12
s_lshl_b32 s{sT}, s{sV}, 10
s_add_u32 s{sT}, s{sT}, {A_EX + (0 if kind == 'W' else 2560)}
v_lshlrev_b32 v7, 3, v0
v_add_u32 v6, s{sT}, v7
v_add_u32 v7, {A_EX + (2048 if kind == 'W' else 4608)}, v7
""")
    stamp()
    a(f"s_waitcnt vmcnt({sum(cnt.values())})\ns_barrier")
    stamp()
    extra = 0
    for i in range(-1, 17):
        ks = i + 1
        slot = ks % 5
        off = 0 if slot == 4 else slot * A_WSLOT
        ad = (13, 14, 15) if slot == 4 else (10, 11, 12)
        a(f"ds_read_b128 v[40:43], v{8 + ks % 2} offset:{(ks//2 % 3)*A_XSLOT}")
        for j in range(3 if OPT.get("nohalo", 0) < 2 else 0):
            a(tr(44 + 4*j, ad[j], off)); a(tr(46 + 4*j, ad[j], off + (1024 if j < 2 else 256)))
        if i == -1 and pre == 1:
            cnt[2] = issue(2)
        if i + 4 <= 17:
            cnt[i+4] = issue(i + 4)
        a("s_waitcnt lgkmcnt(0)")
        for j in range(3 if not OPT.get("nohalo") else 0):
            c = 60 + 4*j if ks else "0"
            a(mf(60 + 4*j, 44 + 4*j, 40, c) if kind == "W" else mf(60 + 4*j, 40, 44 + 4*j, c))
        if i == 1:
            srds_rest(); sync_setup()
        if i == 2:
            wo_setup(True)
        if i == 14 and kind == "W":
            extra += wo_pair(0)
        if i == 15:
            extra += wo_issue(0)
        if i + 1 <= 16:
            left = sum(cnt.get(c, 0) for c in range(i + 3, min(i + 4, 17) + 1)) + extra
            a(f"s_waitcnt vmcnt({left})\ns_barrier")
            if OPT.get("fine") and kind == "W" and i % 2 == 1 and 0 < i < 14:
                stamp()
    for j in range(3):
        a(cv(44 + 2*j, 60 + 4*j)); a(cv(45 + 2*j, 62 + 4*j))
    if kind == "W":
        a("v_mov_b32 v50, 0\nv_mov_b32 v51, 0")
        a("v_permlane32_swap_b32 v48, v50\nv_permlane32_swap_b32 v49, v51")
    a("ds_write_b64 v6, v[44:45]\nds_write_b64 v6, v[46:47] offset:512")
    a(f"ds_write_b64 v7, {'v[50:51]' if kind == 'W' else 'v[48:49]'}")
    stamp()
    a("s_waitcnt lgkmcnt(0)\ns_barrier")
    if kind == "X":
        flag_load(sFO, 98)
    wo_issue(1); wo_issue(2); wo_issue(3)
    stamp()
    loader_tail("A" + kind)

def o_store_addr(vfull, vleft, tmp, left_lo):
    a(f"""
s_lshl_b32 s{sT}, s{sRB}, 3
s_lshl_b32 s{sT2}, s{sWAVE}, 1
s_add_u32 s{sT}, s{sT}, s{sT2}
s_mul_i32 s{sT}, s{sT}, 18432
s_mul_i32 s{sT2}, s{sBR}, {O_BR}
s_add_u32 s58, s{sT}, s{sT2}
s_lshl_b32 s{sT2}, s{sHG}, 11
s_add_u32 s{sT2}, s{sT2}, s58
v_lshl_add_u32 v{vfull}, v0, 4, s{sT2}
s_lshr_b32 s{sT2}, s{sHG}, 2
s_add_u32 s{sT2}, s{sT2}, 16
s_lshl_b32 s{sT2}, s{sT2}, 10
s_add_u32 s{sT}, s58, s{sT2}
s_and_b32 s{sT2}, s{sHG}, 3
s_lshl_b32 s{sT2}, s{sT2}, 8
s_add_u32 s{sT}, s{sT}, s{sT2}
v_and_b32 v{vleft}, 15, v0
v_lshlrev_b32 v{vleft}, 4, v{vleft}
v_bfe_u32 v{tmp}, v0, 4, 1
v_lshl_add_u32 v{vleft}, v{tmp}, 3, v{vleft}
v_add_u32 v{vleft}, s{sT}, v{vleft}
v_mov_b32 v{tmp}, {OOB}
""")
    x, y = (tmp, vleft) if left_lo else (vleft, tmp)
    a(f"v_cndmask_b32 v{vleft}, v{x}, v{y}, s[{sG01}:{sG01+1}]")

def o_store(of, vfull, vleft, rt):
    so = f"s{sK}" if rt else "0"
    if rt:
        a(f"s_movk_i32 s{sK}, 18432")
    a(f"buffer_store_dwordx4 {vr(of,4)}, v{vfull}, s[{SWS}:{SWS+3}], {so} offen sc1")
    a(f"buffer_store_dwordx4 {vr(of+4,4)}, v{vfull}, s[{SWS}:{SWS+3}], {so} offen offset:1024 sc1")
    a(f"buffer_store_dwordx2 {vr(of+8,2)}, v{vleft}, s[{SWS}:{SWS+3}], {so} offen sc1")

def gap_touch(tag, parts):
    if not OPT.get("touch"):
        return
    nt = " nt" if OPT.get("tnt") else ""
    a(f"""
s_cmp_eq_u32 s{sWAVE}, 1
s_cbranch_scc1 L_{tag}_tw
s_cmp_eq_u32 s{sWAVE}, 2
s_cbranch_scc0 L_{tag}_tx
s_and_b32 s{sT}, s{sRB}, 7
s_cmp_eq_u32 s{sT}, 0
s_cselect_b32 s{sT}, 9, s{sT}
s_sub_u32 s{sT}, s{sT}, 1
s_lshl_b32 s{sT}, s{sT}, 7
s_and_b32 s{sT2}, s{sHG}, 3
s_lshl_b32 s{sT2}, s{sT2}, 5
s_lshl_b32 s{sT3}, s{sRB}, 7
s_add_u32 s{sT2}, s{sT2}, s{sT3}
v_and_b32 v1, 31, v0
v_add_u32 v1, s{sT2}, v1
v_mul_u32_u24 v1, 1152, v1
""")
    srd(SX, 36, 2359296)
    a(f"""
buffer_load_dword v26, v1, s[{SX}:{SX+3}], s{sT} offen{nt}
s_branch L_{tag}_tx
L_{tag}_tw:
s_and_b32 s{sT}, s{sHG}, 3
s_lshl_b32 s{sT}, s{sT}, 1
s_cmp_eq_u32 s{sT}, 0
s_cselect_b32 s{sT}, 9, s{sT}
s_sub_u32 s{sT}, s{sT}, 1
s_lshl_b32 s{sT}, s{sT}, 3
s_and_b32 s{sT2}, s{sRB}, 7
s_add_u32 s{sT}, s{sT}, s{sT2}
s_mul_i32 s{sT}, s{sT}, {8*3456}
s_add_u32 s{sT}, s{sT}, s{sM}
v_lshrrev_b32 v1, 3, v0
v_mul_u32_u24 v1, 3456, v1
v_bfe_u32 v2, v0, 1, 2
v_min_u32 v2, {parts-1}, v2
v_mul_u32_u24 v2, 1152, v2
v_and_b32 v3, 1, v0
v_mul_u32_u24 v3, 140, v3
v_add3_u32 v1, v1, v2, v3
""")
    srd(SW, 38, 1990656)
    a(f"buffer_load_dword v26, v1, s[{SW}:{SW+3}], s{sT} offen offset:{1152*(3-parts)}{nt}\nL_{tag}_tx:")

def init_stores(tag, with_kv):
    if OPT.get("skew"):
        a(f"v_mov_b32 v2, s{sST}\ns_lshl_b32 s{sT}, s2, 2\ns_add_u32 s{sT}, s{sT}, 0x6f0000\nv_mov_b32 v1, s{sT}\nbuffer_store_dword v2, v1, s[{SWS}:{SWS+3}], 0 offen sc1")
    if OPT.get("xcc"):
        a(f"s_getreg_b32 s{sT}, hwreg(HW_REG_XCC_ID, 0, 4)\nv_mov_b32 v2, s{sT}\ns_lshl_b32 s{sT}, s2, 2\ns_add_u32 s{sT}, s{sT}, 0x6f0000\nv_mov_b32 v1, s{sT}\nbuffer_store_dword v2, v1, s[{SWS}:{SWS+3}], 0 offen sc1")
    a(f"""
s_or_b32 s{sT}, s{sHG}, s{sWAVE}
s_cmp_eq_u32 s{sT}, 0
s_cselect_b32 s55, 1, 0
v_mov_b32 v20, 0
v_mov_b32 v21, 0
v_mov_b32 v22, 0
v_mov_b32 v23, 0
s_cbranch_scc0 L_{tag}_i1
s_lshl_b32 s{sT}, s{sBR}, 4
s_add_u32 s{sT}, s{sT}, s{sRB}
s_lshl_b32 s{sT}, s{sT}, 8
s_add_u32 s{sT}, s{sT}, {WS_CNT}
v_mov_b32 v24, s{sT}
buffer_store_dword v20, v24, s[{SWS}:{SWS+3}], 0 offen sc1
L_{tag}_i1:
""")
    if with_kv:
        a(f"""
s_or_b32 s{sT}, s{sRB}, s{sWAVE}
s_cmp_eq_u32 s{sT}, 0
s_cbranch_scc0 L_{tag}_i2
s_or_b32 s55, s55, 2
s_mul_i32 s{sT}, s{sHG}, {KV_ST}
s_add_u32 s{sT}, s{sT}, {WS_KV}
v_lshl_add_u32 v24, v0, 4, s{sT}
""")
        for j in range(7):
            a(f"s_movk_i32 s{sK}, {1024*j}\nbuffer_store_dwordx4 v[20:23], v24, s[{SWS}:{SWS+3}], s{sK} offen sc1")
        a(f"L_{tag}_i2:")

def init_flags(tag):
    a(f"""
s_waitcnt vmcnt(0)
s_cmp_eq_u32 s55, 0
s_cbranch_scc1 L_{tag}_f2
v_mov_b32 v20, 1
s_bitcmp1_b32 s55, 0
s_cbranch_scc0 L_{tag}_f1
s_lshl_b32 s{sT}, s{sBR}, 4
s_add_u32 s{sT}, s{sT}, s{sRB}
s_lshl_b32 s{sT}, s{sT}, 2
s_add_u32 s{sT}, s{sT}, 32
v_mov_b32 v24, s{sT}
buffer_store_dword v20, v24, s[{SDBG}:{SDBG+3}], 0 offen sc1
L_{tag}_f1:
s_bitcmp1_b32 s55, 1
s_cbranch_scc0 L_{tag}_f2
s_lshl_b32 s{sT}, s{sHG}, 2
v_mov_b32 v25, s{sT}
buffer_store_dword v20, v25, s[{SDBG}:{SDBG+3}], 0 offen sc1
L_{tag}_f2:
""")

def kstep(tiles, nxt_reads, first, waits):
    pend = list(first)
    for t, (m0_, m1_) in enumerate(tiles):
        if t in waits:
            a(waits[t])
        a(m0_)
        for x in pend: a(x)
        a(m1_)
        pend = []
        if nxt_reads:
            a(nxt_reads[t][0]); pend = [nxt_reads[t][1]]
    for x in pend: a(x)

def a_consumer():
    acc = lambda t, rt: 144 + (t * 2 + rt) * 4
    wf = lambda t: 88 + 4 * t
    xf = lambda buf, rt: 72 + buf * 8 + rt * 4
    R8, R2, R8b, R2b, aX = 1, 5, 6, 10, 11
    vOF, vOL, vEXW, vEXR = 13, 14, 15, 16
    MC, MP, MPF, PM = 56, 60, 64, 68
    a("L_AC:\ns_waitcnt lgkmcnt(0)")
    gap_touch("AC", 3)
    srds_rest()
    init_stores("AC", False)
    rd_lanes(R8, R2, 17, 18); x_lane(aX, aX + 1, 17)
    for j in range(5):
        a(f"v_add_u32 v{R8b+j}, {4*A_WSLOT}, v{R8+j}")
    a(f"""
s_lshl_b32 s{sT}, s{sWAVE}, 12
s_add_u32 s{sT}, s{sT}, {A_X0}
v_add_u32 v{aX}, s{sT}, v{aX}
v_add_u32 v{aX+1}, s{sT}, v{aX+1}
s_lshr_b32 s{sT}, s{sWAVE}, 1
s_lshl_b32 s{sT}, s{sT}, 3
v_and_b32 v17, 15, v0
v_xor_b32 v17, s{sT}, v17
v_lshrrev_b32 v18, 4, v0
v_lshlrev_b32 v18, 2, v18
v_xor_b32 v18, s{sT}, v18
v_sub_u32 v17, v17, v18
v_mov_b32 v19, {NEG}
s_and_b32 s{sT}, s{sWAVE}, 1
s_or_b32 s{sT}, s{sT}, s{sRB}
s_cmp_eq_u32 s{sT}, 0
s_cselect_b64 s[42:43], -1, 0
""")
    for r in range(4):
        a(f"""
v_subrev_u32 v18, {r}, v17
v_cmp_gt_u32 vcc, 8, v18
v_cndmask_b32 v{MC+r}, v19, 0, vcc
v_cmp_gt_i32 vcc, -8, v18
v_cndmask_b32 v{MP+r}, v19, 0, vcc
v_cndmask_b32 v{MPF+r}, v{MP+r}, v19, s[42:43]
v_cmp_lt_i32 vcc, -1, v18
v_mov_b32 v20, {'0xffff' if r % 2 == 0 else '0xffff0000'}
v_cndmask_b32 v20, 0, v20, vcc
""")
        a(f"v_mov_b32 v{PM + r//2}, v20" if r % 2 == 0 else f"v_or_b32 v{PM + r//2}, v{PM + r//2}, v20")
    o_store_addr(vOF, vOL, 17, True)
    a(f"""
s_lshr_b32 s{sT}, s{sWAVE}, 1
s_add_u32 s{sT}, s{sT}, 1
s_mul_i32 s{sT}, s{sT}, 5120
s_bitcmp1_b32 s{sWAVE}, 0
s_cselect_b32 s{sT3}, s{sT}, 0
v_lshlrev_b32 v17, 3, v0
v_add_u32 v17, {A_EX}, v17
v_add_u32 v{vEXW}, s{sT}, v17
v_add_u32 v{vEXR}, s{sT3}, v17
""")

    def wreads(ks, t):
        slot = ks % 5
        o = 0 if slot == 4 else slot * A_WSLOT
        r8, r2 = (R8b, R2b) if slot == 4 else (R8, R2)
        if t == 4 or t == 13:
            o += 12288 if t == 4 else 13312
            return [tr(wf(t), r2, o), tr(wf(t) + 2, r2, o + 256)]
        s, j = (0, t) if t < 4 else (1, t - 5) if t < 9 else (2, t - 9)
        return [tr(wf(t), r8 + j, o + 4096*s), tr(wf(t) + 2, r8 + j, o + 4096*s + 1024)]
    xread = lambda ks, rt: f"ds_read_b128 {vr(xf(ks % 2, rt),4)}, v{aX + ks % 2} offset:{(ks//2 % 3)*A_XSLOT + rt*2048}"

    stamp()
    a("s_barrier")
    stamp()
    a(xread(0, 0)); a(xread(0, 1))
    for t in range(14):
        for x in wreads(0, t): a(x)
    for ks in range(18):
        if ks < 17:
            a("s_barrier")
        if OPT.get("fine") == 2 and ks in (2, 5, 8, 11, 14):
            stamp()
        if OPT.get("ret") and ks == 1:
            a(f"s_lshl_b32 s40, s2, 10\ns_lshl_b32 s41, s{sWAVE}, 8\ns_add_u32 s40, s40, s41\ns_add_u32 s40, s40, 0x580000\ns_add_u32 s40, s40, s{SWS}\ns_addc_u32 s41, s{SWS+1}, 0")
            if OPT["ret"] == 1:
                a("v_mov_b32 v28, 0\nglobal_load_dword v29, v28, s[40:41]")
        if OPT.get("ret") and ks == OPT.get("at", 7):
            if OPT["ret"] == 2:
                a("v_mov_b32 v28, 0\nglobal_load_dword v29, v28, s[40:41]\ns_waitcnt vmcnt(0)")
            a("s_waitcnt lgkmcnt(0)\ns_memtime s[100:101]\ns_waitcnt lgkmcnt(0)\ns_load_dword s38, s[40:41], 64\ns_waitcnt lgkmcnt(0)")
            stamp()
            j_ = sST + 2*(nstamp[0]-1)
            a(f"s_waitcnt lgkmcnt(0)\ns_sub_u32 s{j_}, s{j_}, s100\ns_lshl_b32 s{j_}, s{j_}, 3\ns_add_u32 s{j_}, s{j_}, s100")
        if OPT.get("dummy") == ks:
            if OPT.get("dpre"):
                a("s_getpc_b64 s[38:39]\nv_lshlrev_b32 v28, 7, v0\nv_min_u32 v28, 2304, v28\nglobal_load_dword v29, v28, s[38:39]\ns_waitcnt vmcnt(0)")
            a("s_waitcnt lgkmcnt(0)\ns_memtime s[100:101]\ns_memrealtime s[40:41]\ns_waitcnt lgkmcnt(0)")
            for n in range(128):
                kind = OPT.get("dkind", 0)
                if kind == 0:
                    a(mf(28 + 4 * (n % 4), 88, 72, "0"))
                elif kind == 1:
                    a(f"v_add3_u32 v{28 + n % 8}, v0, v0, v0\nv_add3_u32 v{36 + n % 8}, v0, v0, v0")
                else:
                    a(f"ds_read_b128 v[{28 + 4 * (n % 4)}:{31 + 4 * (n % 4)}], v{aX} offset:0")
            a("s_waitcnt lgkmcnt(0)")
            stamp()
            a("s_waitcnt lgkmcnt(0)")
            if not OPT.get("cyc"):
                a(f"s_sub_u32 s40, s{sST + 2*(nstamp[0]-1)}, s40\ns_add_u32 s{sST + 2*(nstamp[0]-1)}, s{sST}, s40")
        if ks == 3:
            init_flags("AC")
        tiles = []
        for t in range(14):
            c = lambda rt: acc(t, rt) if ks else "0"
            tiles.append([mf(acc(t, rt), wf(t), xf(ks % 2, rt), c(rt)) if t < 9 else mf(acc(t, rt), xf(ks % 2, rt), wf(t), c(rt)) for rt in range(2)])
        if ks < 17:
            nxt = [wreads(ks + 1, t) for t in range(14)]
            nxt[1] = [nxt[1][0], nxt[1][1] + "\n" + xread(ks + 1, 1)]
            kstep(tiles, nxt, [xread(ks + 1, 0)], {0: "s_waitcnt lgkmcnt(14)", 7: "s_waitcnt lgkmcnt(15)", 12: "s_waitcnt lgkmcnt(15)"})
        else:
            kstep(tiles, None, [], {0: "s_waitcnt lgkmcnt(14)", 7: "s_waitcnt lgkmcnt(0)"})
    stamp()
    KP = lambda j: 18 + 10 * j
    QT = lambda rt, h: 88 + 16 * rt + 4 * h
    VP = lambda t, j: 120 + 6 * t + 2 * j if t < 4 else 48 + 2 * j
    ONE = 72
    def pack_kv(rt):
        o = []
        for q in range(2):
            o += [cv(QT(rt, 3) + 2 + q, acc(4, rt) + 2*q), f"v_mov_b32 v{KP(1+rt) + 8 + q}, 0"]
        for tau in range(4):
            o += [cv(KP(1+rt) + 2*tau + q, acc(5+tau, rt) + 2*q) for q in range(2)]
        o += [f"v_permlane32_swap_b32 v{QT(rt,3) + 2 + q}, v{KP(1+rt) + 8 + q}" for q in range(2)]
        for t in range(5):
            o += [cv(VP(t, 1+rt) + q, acc(9+t, rt) + 2*q) for q in range(2)]
        return o
    def pack_q(rt):
        o = []
        for t in range(4):
            for q in range(2):
                d = QT(rt, t) + q
                o.append(cv(d, acc(t, rt) + 2*q))
                if (t, q) in SPLITS:
                    m = SPLITS[(t, q)]; lo = QT(rt, t-1) + 2 + q
                    o += [f"v_cndmask_b32 v{lo}, 0, v{d}, s[{m}:{m+1}]", f"v_xor_b32 v{d}, v{d}, v{lo}"]
        return o + [f"v_mov_b32 v{QT(rt,0) + 3}, 0"]
    weave([], pack_kv(1))
    a(f"s_bitcmp1_b32 s{sWAVE}, 0\ns_cbranch_scc1 L_AC_nodump")
    for j in range(5):
        a(f"ds_write_b64 v{vEXW}, {vr(KP(2) + 2*j, 2)} offset:{512*j}")
        a(f"ds_write_b64 v{vEXW}, {vr(VP(j, 2), 2)} offset:{512*(5+j)}")
    a("L_AC_nodump:")
    weave([], pack_kv(0) + pack_q(1))
    a("s_waitcnt lgkmcnt(0)\ns_barrier")
    for j in range(5):
        a(f"ds_read_b64 {vr(KP(0) + 2*j, 2)}, v{vEXR} offset:{512*j}")
        a(f"ds_read_b64 {vr(VP(j, 0), 2)}, v{vEXR} offset:{512*(5+j)}")
    SC = lambda rt, h: (224 if rt else 184) + 8 * h
    MX = lambda rt: [76 + 4 * rt + h for h in range(4)]
    PT = lambda rt, h: 144 + 16 * rt + 4 * h
    def qk(rt):
        o = []
        for h in range(4):
            o += [mf(SC(rt, h), KP(1+rt) + 2*h, QT(rt, h), MC), mf(SC(rt, h) + 4, KP(rt) + 2*h, QT(rt, h), MP if rt else MPF)]
        return o
    def rowmax(rt):
        o = []
        for h in range(4):
            s = SC(rt, h); m = MX(rt)[h]
            o += [f"v_max_f32 v{s+r}, v{s+r}, v{s+4+r}" for r in range(4)]
            o += [f"v_max3_f32 v{m}, v{s}, v{s+1}, v{s+2}", f"v_max_f32 v{m}, v{m}, v{s+3}"]
        return o
    def xmax(rt):
        m = MX(rt)
        return [f"v_permlane32_swap_b32 v{m[0]}, v{m[1]}", f"v_permlane32_swap_b32 v{m[2]}, v{m[3]}",
                f"v_max_f32 v{m[0]}, v{m[0]}, v{m[1]}", f"v_max_f32 v{m[2]}, v{m[2]}, v{m[3]}",
                f"v_permlane16_swap_b32 v{m[0]}, v{m[2]}", f"v_max_f32 v{m[0]}, v{m[0]}, v{m[2]}",
                f"v_mul_f32 v{m[0]}, s{sT2}, v{m[0]}", f"v_mov_b32 v{m[2]}, v{m[0]}",
                f"v_permlane16_swap_b32 v{m[0]}, v{m[2]}", f"v_mov_b32 v{m[1]}, v{m[0]}", f"v_mov_b32 v{m[3]}, v{m[2]}",
                f"v_permlane32_swap_b32 v{m[0]}, v{m[1]}", f"v_permlane32_swap_b32 v{m[2]}, v{m[3]}"]
    def probs(rt):
        o = []
        for h in range(4):
            s = SC(rt, h); p = PT(rt, h)
            o += [f"v_fma_f32 v{s+r}, v{s+r}, s{sT}, v{MX(rt)[h]}" for r in range(4)]
            o += [f"v_exp_f32 v{s+r}, v{s+r}" for r in range(4)]
            if h:
                o += split(rt, h - 1)
        return o + split(rt, 3)
    def split(rt, h):
        s = SC(rt, h); p = PT(rt, h); o = []
        for q in range(2):
            o += [cv(p + q, s + 2*q), f"v_and_b32 v{p+2+q}, v{p+q}, v{PM+q}", f"v_xor_b32 v{p+q}, v{p+q}, v{p+2+q}"]
        return o
    OB = lambda rt, t: (224 if rt else 184) + 4 * t
    OA = lambda rt, t: (224 if rt else 184) + 12 + 4 * t
    SM = lambda rt, h: 88 + 16 * rt + 4 * h
    OF = lambda rt: 18 + 10 * rt
    def pv(rt):
        o = [mf(SM(rt, h), ONE, PT(rt, h), "0") for h in range(4)]
        for t in range(5):
            if t < 4: o.append(mf(OB(rt, t), VP(t, rt), PT(rt, t), "0"))
            if t > 0: o.append(mf(OA(rt, t), VP(t, rt), PT(rt, t-1), "0"))
        return o
    def finish(rt):
        o = [f"v_rcp_f32 v{SM(rt,h)}, v{SM(rt,h)}" for h in range(4)]
        for t in range(5):
            for q in range(2):
                d = OF(rt) + 2*t + q
                srcs = []
                if t < 4: srcs.append((OB(rt, t) + 2*q, SM(rt, t), d))
                if t == 4: srcs.append((OA(rt, t) + 2*q, SM(rt, 3), d))
                if (t, q) in SPLITS: srcs.append((OA(rt, t) + 2*q, SM(rt, t-1), 17))
                for x, inv, dd in srcs:
                    o += [f"v_mul_f32 v{x}, v{x}, v{inv}", f"v_mul_f32 v{x+1}, v{x+1}, v{inv}", cv(dd, x)]
                if (t, q) in SPLITS:
                    m = SPLITS[(t, q)]
                    o.append(f"v_cndmask_b32 v{d}, v{d}, v17, s[{m}:{m+1}]")
        return o
    a(f"s_mov_b32 s{sT}, {f32(CSC)}\ns_mov_b32 s{sT2}, {f32(-CSC)}")
    weave(qk(1), pack_q(0) + [f"v_mov_b32 v{ONE+j}, 0x3f803f80" for j in range(4)])
    a("s_waitcnt lgkmcnt(0)")
    weave(qk(0), rowmax(1))
    x1, x0 = xmax(1), xmax(0)
    r0 = rowmax(0)
    for i, x in enumerate(x1):
        a(x)
        for y in r0[2*i:2*i+2]: a(y)
    p1 = probs(1)
    for i, x in enumerate(x0):
        a(x)
        for y in p1[2*i:2*i+2]: a(y)
    weave([], p1[2*len(x0):])
    weave(pv(1), probs(0))
    weave(pv(0), finish(1))
    o_store(OF(1), vOF, vOL, 1)
    weave([], finish(0))
    o_store(OF(0), vOF, vOL, 0)
    stamp()
    a("s_branch L_P2")

def phi(r, n, t):
    o = [f"v_pk_fma_f32 {vr(t+j,2)}, {vr(r+j,2)}, s[56:57], v[14:15]" for j in range(0, n, 2)]
    for j in range(n):
        o += [f"v_exp_f32 v{t+j}, v{t+j} clamp", f"v_max_f32 v{r+j}, s{sT2}, v{r+j}"]
    return o + [f"v_pk_add_f32 {vr(r+j,2)}, {vr(r+j,2)}, {vr(t+j,2)}" for j in range(0, n, 2)]

def b_consumer():
    acc = lambda t, rt: 184 + (t * 2 + rt) * 4
    wf = lambda t: 148 + 4 * t
    xf = lambda ks, rt: 52 + ks * 8 + rt * 4 if ks < 12 else 36 + (ks % 2) * 8 + rt * 4
    R8, R2, aX = 1, 5, 6
    vOF, vOL, vEX = 8, 9, 10
    CK, CS = 28, 32
    a("L_BC:\ns_waitcnt lgkmcnt(0)")
    gap_touch("BC", 2)
    srds_rest()
    init_stores("BC", True)
    rd_lanes(R8, R2, 17, 18); x_lane(aX, aX + 1, 17)
    a(f"""
s_lshl_b32 s{sT}, s{sWAVE}, 12
s_add_u32 s{sT}, s{sT}, {B_X0}
v_add_u32 v{aX}, s{sT}, v{aX}
v_add_u32 v{aX+1}, s{sT}, v{aX+1}
v_and_b32 v17, 15, v0
v_cmp_gt_u32 vcc, 8, v17
v_mov_b32 v18, {EPS}
s_mov_b64 s[42:43], vcc
s_mul_i32 s{sT}, s{sWAVE}, 10240
s_add_u32 s{sT}, s{sT}, {B_EX}
v_lshl_add_u32 v{vEX}, v0, 4, s{sT}
v_mov_b32 v14, {f32(-1e-6*LOG2E)}
v_mov_b32 v15, v14
s_mov_b32 s56, {f32(LOG2E)}
s_mov_b32 s57, s56
""")
    for r in range(4):
        a(f"v_mov_b32 v{CK+r}, v18\nv_cndmask_b32 v{CS+r}, 0, v18, vcc")
    o_store_addr(vOF, vOL, 17, False)

    def wreads(ks, t):
        o = (ks % 5) * B_KVSLOT
        if t == 4:
            return [tr(wf(t), R2, o + 8192), tr(wf(t) + 2, R2, o + 8192 + 256)]
        s, j = (0, t) if t < 4 else (1, t - 5)
        return [tr(wf(t), R8 + j, o + 4096*s), tr(wf(t) + 2, R8 + j, o + 4096*s + 1024)]
    xread = lambda ks, rt: f"ds_read_b128 {vr(xf(ks, rt),4)}, v{aX + ks % 2} offset:{(ks//2 % 3)*B_XSLOT + rt*2048}"

    stamp()
    a("s_barrier")
    stamp()
    a(xread(0, 0)); a(xread(0, 1))
    for t in range(9):
        for x in wreads(0, t): a(x)
    for ks in range(18):
        if ks < 17:
            a("s_barrier")
        if ks == 3:
            init_flags("BC")
        tiles = [[mf(acc(t, rt), xf(ks, rt), wf(t), acc(t, rt) if ks else (CK if t < 4 else CS if t == 4 else "0")) for rt in range(2)] for t in range(9)]
        if ks < 17:
            nxt = [wreads(ks + 1, t) for t in range(9)]
            nxt[1] = [nxt[1][0], nxt[1][1] + "\n" + xread(ks + 1, 1)]
            kstep(tiles, nxt, [xread(ks + 1, 0)], {0: "s_waitcnt lgkmcnt(12)", 3: "s_waitcnt lgkmcnt(13)", 6: "s_waitcnt lgkmcnt(13)", 8: "s_waitcnt lgkmcnt(11)"})
        else:
            kstep(tiles, None, [], {0: "s_waitcnt lgkmcnt(12)", 3: "s_waitcnt lgkmcnt(0)\ns_barrier"})
    stamp()
    a(f"s_mov_b32 s{sT2}, {EPS}\nv_mov_b32 v16, 0x3f803f80")
    wr = lambda reg, slot: f"ds_write_b128 v{vEX}, {vr(reg,4)} offset:{1024*slot}"
    pk = lambda d, s: [cv(d + j, s + 2*j) for j in range(4)]
    weave([], pk(156, acc(4, 0)) + [f"v_cndmask_b32 v{156+j}, v{156+j}, v16, s[42:43]" for j in range(4)] + [wr(156, 9)])
    xq = lambda ks, rt: 168 + (ks - 12) * 8 + rt * 4 if ks in (12, 13) else acc(2 * (ks - 14) + rt, 1) if ks in (14, 15) else xf(ks, rt)
    reread = lambda ks, rt: f"ds_read_b128 {vr(xq(ks, rt),4)}, v{aX + ks % 2} offset:{(ks//2 % 3)*B_XSLOT + rt*2048}"
    weave([], [reread(ks, rt) for ks in (12, 13) for rt in range(2)])
    for tau in range(5):
        o = phi(acc(tau, 0), 8, 148)
        if tau < 4:
            o = pk(acc(5+tau, 0), acc(5+tau, 0)) + o[:8] + [wr(acc(5+tau, 0), 5 + tau)] + o[8:]
        weave([], o + pk(acc(tau, 0), acc(tau, 0)) + [wr(acc(tau, 0), tau)])
        if tau < 4:
            a(reread(14 + tau // 2, tau % 2))
    for j in range(5):
        a(f"v_add_u32 v{R8+j}, {B_WQ0}, v{R8+j}")
    a("s_waitcnt lgkmcnt(0)\ns_barrier")
    stamp()
    QA = lambda t, rt: 216 + (t * 2 + rt) * 4
    qf = lambda t: 148 + 4 * t
    qbase = lambda p: B_WQ0 if p < 4 else 0 if p < 7 else 15360
    def qreads(p, t):
        o = wq_slot(p) - qbase(p)
        if t == 4:
            return [tr(qf(t), R2, o + 4096), tr(qf(t) + 2, R2, o + 4096 + 256)]
        return [tr(qf(t), R8 + t, o), tr(qf(t) + 2, R8 + t, o + 1024)]
    for t in range(5):
        for x in qreads(0, t): a(x)
    for p in range(18):
        ks = QORD[p]
        if p == 7 or (p == 13 and OPT.get('wob', 0)):
            a("s_barrier")
        tiles = [[mf(QA(t, rt), qf(t), xq(ks, rt), QA(t, rt) if p else CK) for rt in range(2)] for t in range(5)]
        if p < 17:
            nxt = [qreads(p + 1, t) for t in range(5)]
            if qbase(p + 1) != qbase(p):
                d = (qbase(p + 1) - qbase(p)) & 0xffffffff
                for t in range(5):
                    nxt[t][0] = f"v_add_u32 v{R8+t}, {d}, v{R8+t}\n" + nxt[t][0]
            kstep(tiles, nxt, [], {t: f"s_waitcnt lgkmcnt({7 if t else 8})" for t in range(5)})
        else:
            kstep(tiles, None, [], {t: f"s_waitcnt lgkmcnt({8 - 2*t})" for t in range(5)})
    stamp()
    PQ = lambda rt: 36 + 10 * rt
    KO = 84
    tup = {0: KO, 1: KO + 4, 2: KO + 12, 3: KO + 20, 4: KO + 28}
    ZO = KO + 32
    weave([], [f"v_mov_b32 v{r}, 0" for r in (tup[1]+4, tup[1]+5, tup[2]+4, tup[2]+5, tup[3]+4, tup[3]+5, ZO+8, ZO+9)])
    a(f"v_lshlrev_b32 v16, 3, v0\nv_add_u32 v16, {B_KVOP}, v16")
    for t in range(5):
        weave([], phi(QA(t, 0), 8, 148) + [cv(PQ(rt) + 2*t + q, QA(t, rt) + 2*q) for rt in range(2) for q in range(2)])
    stamp()
    a("s_barrier")
    stamp()
    tid = lambda tau, taup: {-1: tau - 1, 0: 4 + tau, 1: 9 + tau}[taup - tau]
    rd = lambda d, slot: a(f"ds_read_b64 {vr(d,2)}, v16 offset:{512*slot}")
    for j, d in enumerate((ZO, ZO + 2, ZO + 4, ZO + 6, ZO + 10)):
        rd(d, 13 + j)
    rd(tup[0], tid(0, 0)); rd(tup[0] + 2, tid(1, 0))
    for t in (1, 2, 3):
        rd(tup[t], tid(t-1, t)); rd(tup[t] + 2, tid(t, t)); rd(tup[t] + 6, tid(t+1, t))
    rd(tup[4], tid(3, 4)); rd(tup[4] + 2, tid(4, 4))
    DN = lambda rt: 148 + 4 * rt
    NM = lambda rt, t: 184 + 20 * rt + 4 * t
    OF = lambda rt: 156 + 10 * rt
    a("s_waitcnt lgkmcnt(13)")
    for k, (zo, po) in enumerate(((0, 0), (4, 4), (8, 6))):
        for rt in range(2):
            a(mf(DN(rt), ZO + zo, PQ(rt) + po, DN(rt) if k else CK))
    a("s_waitcnt lgkmcnt(0)")
    def num(rt):
        o = [mf(NM(rt, t), tup[t], PQ(rt) + 2*(t-1), "0") for t in (1, 2, 3)]
        o += [mf(NM(rt, 0), tup[0], PQ(rt), "0"), mf(NM(rt, 4), tup[4], PQ(rt) + 6, "0")]
        return o + [mf(NM(rt, t), tup[t] + 4, PQ(rt) + 2*t, NM(rt, t)) for t in (1, 2, 3)]
    def fin(rt, packed):
        o = []
        for t in (0, 4, 1, 2, 3):
            for q in range(2):
                inv = DN(rt) + min(t, 3)
                if (t, q) in SPLITS:
                    m = SPLITS[(t, q)]
                    o.append(f"v_cndmask_b32 v17, v{DN(rt)+t}, v{DN(rt)+t-1}, s[{m}:{m+1}]")
                    inv = 17
                n = NM(rt, t) + 2*q
                o += [f"v_mul_f32 v{n}, v{n}, v{inv}", f"v_mul_f32 v{n+1}, v{n+1}, v{inv}", cv(OF(rt) + 2*t + q, n)]
        return o
    weave(num(0), [], 0)
    weave(num(1), [f"v_rcp_f32 v{DN(rt)+h}, v{DN(rt)+h}" for rt in range(2) for h in range(4)], 1)
    for rt in range(2):
        weave([], fin(rt, True))
        o_store(OF(rt), vOF, vOL, rt)
    stamp()

def kv_index(wreg, VS, VG, VZ):
    a(f"s_cmp_eq_u32 s{wreg}, 0\ns_cselect_b32 s58, 4, s{wreg}")
    for slot in range(3):
        if slot == 0:
            a(f"s_lshl_b32 s{sT}, s58, 4\ns_sub_u32 s{sT2}, s{sT}, 16\ns_mov_b64 s[46:47], 0")
        elif slot == 1:
            a(f"s_lshl_b32 s{sT}, s{wreg}, 4\ns_mov_b32 s{sT2}, s{sT}")
        else:
            a(f"s_add_u32 s{sT2}, s{sT}, 16\ns_cmp_eq_u32 s{wreg}, 3\ns_cselect_b32 s{sT2}, 56, s{sT2}\ns_cselect_b64 s[46:47], s[44:45], 0")
        kv_tile(VS and VS + 2*slot, VG and VG + 2*slot, False)
    if VZ:
        kv_z(VZ)

def kv_tile(VS, VG, last):
    a(f"v_add_u32 v3, s{sT2}, v1")
    head_of(4, 3)
    a(f"v_mul_u32_u24 v5, 18, v4\nv_sub_u32 v3, v3, v5\nv_cndmask_b32 v4, v4, 7, s[46:47]")
    if last:
        a("v_cmp_eq_u32 vcc, 0, v1\nv_cndmask_b32 v4, v4, 3, vcc\nv_cndmask_b32 v3, v3, 18, vcc")
    for q in range(2):
        a(f"v_add3_u32 v5, v2, s{sT}, {2*q}")
        head_of(6, 5)
        a("v_cmp_eq_u32 vcc, v4, v6\nv_mad_u32_u24 v5, v5, 19, v3\nv_lshlrev_b32 v5, 2, v5")
        if VS:
            a(f"v_add_u32 v6, {B_STG}, v5\nv_cndmask_b32 v{VS+q}, v8, v6, vcc")
        if VG:
            a(f"v_add_u32 v6, s{sM}, v5\nv_cndmask_b32 v{VG+q}, v9, v6, vcc")

def kv_z(VZ):
    a("v_and_b32 v3, 3, v0")
    for q in range(2):
        a(f"v_add3_u32 v5, v2, s{sT}, {2*q}")
        head_of(6, 5)
        a(f"v_cmp_eq_u32 vcc, v3, v6\nv_mul_u32_u24 v5, 76, v5\nv_add3_u32 v5, v5, s{sM}, 64\nv_add_u32 v5, 8, v5\nv_cndmask_b32 v{VZ+q}, v9, v5, vcc")

def b_loader(kind):
    a(f"L_B{kind}1:")
    m = M0(42)
    issue = (lambda c: w_issue("B", c, m)) if kind == "W" else (lambda c: x_issue("B", c, m))
    pre = 1 if OPT.get("early") and kind == "W" else 2
    cnt = {c: issue(c) for c in range(1, pre + 1)}
    stamp()
    mark = len(a.lines)
    VS, VG, vZS, vEA, vE0, vEL, vLA, vGA, vLW = 72, 80, 98, 99, 100, 101, 102, 103, 105
    if kind == "W":
        a(f"v_subrev_u32 v{VD+5}, 1152, v{VD}\nv_subrev_u32 v{VD+6}, 1152, v{VD+1}")
    srds_rest()
    if kind == "W":
        wo_setup(False)
    else:
        sync_setup()
    a(f"""
s_add_u32 s55, s{sV}, 2
s_mul_i32 s{sM}, s{sHG}, {KV_ST}
s_add_u32 s{sM}, s{sM}, {WS_KV}
v_and_b32 v1, 15, v0
v_lshrrev_b32 v2, 4, v0
v_lshlrev_b32 v2, 2, v2
v_cmp_gt_u32 s[44:45], 8, v1
v_lshlrev_b32 v8, 2, v0
v_add_u32 v8, {B_DUMP}, v8
v_mov_b32 v9, {OOB}
""")
    own = sV if kind == "X" else 55
    if kind == "X":
        kv_index(55, None, VG, VG + 6)
        a(f"s_movk_i32 s{sT}, 64")
        kv_z(10)
    kv_index(own, VS, VG + 8 if kind == "X" else None, VG + 14 if kind == "X" else None)
    a(f"""
v_add_u32 v5, s{sT}, v0
v_mul_u32_u24 v5, 76, v5
v_add_u32 v5, {B_STG + 72}, v5
v_cndmask_b32 v{vZS}, v8, v5, s[{sG0}:{sG0+1}]
v_lshlrev_b32 v{vEL}, 4, v0
v_add_u32 v{vEL}, {B_EX}, v{vEL}
s_lshl_b32 s{sT}, s{own}, 10
v_add_u32 v{vEA}, s{sT}, v{vEL}
s_lshl_b32 s{sT}, s58, 10
v_add_u32 v{vE0}, s{sT}, v{vEL}
""")
    if kind == "X":
        a(f"s_movk_i32 s{sT}, 64\ns_movk_i32 s{sT2}, 56\ns_mov_b64 s[46:47], s[44:45]")
        kv_tile(VS + 6, VG + 16, True)
        a(f"s_cmp_eq_u32 s{sV}, 0\ns_cselect_b64 s[46:47], -1, 0")
        for q in range(2):
            a(f"v_cndmask_b32 v{VS+6+q}, v8, v{VS+6+q}, s[46:47]\nv_cndmask_b32 v{VG+16+q}, v{10+q}, v{VG+16+q}, s[46:47]")
        a(f"""
v_lshlrev_b32 v5, 3, v0
v_add_u32 v5, {B_KVOP}, v5
s_lshl_b32 s{sT2}, s58, 9
s_sub_u32 s{sT2}, s{sT2}, 512
v_add_u32 v{vLW+2}, s{sT2}, v5
s_lshl_b32 s{sT2}, s{sV}, 9
v_add_u32 v{vLW+1}, s{sT2}, v5
v_add_u32 v{vLW}, 1024, v{vLW+1}
s_mul_i32 s{sT2}, s{sV}, {9*512}
v_add_u32 v{vLW+3}, s{sT2}, v5
s_mul_i32 s{sT}, s{sV}, 2816
v_lshl_add_u32 v{vLA}, v0, 2, s{sT}
v_add_u32 v{vGA}, s{sM}, v{vLA}
v_cmp_gt_u32 vcc, {5472 - 2560}, v{vLA}
v_cndmask_b32 v{vGA+1}, v9, v{vGA}, vcc
v_add_u32 v{vLA}, {B_STG}, v{vLA}
v_mov_b32 v4, 0
""")
    a(f"v_mov_b32 v10, {B_LCNT}\nv_mov_b32 v11, 1")
    if kind == "X":
        a("ds_write_b32 v10, v4\ns_waitcnt lgkmcnt(0)")
    setup = a.lines[mark:]
    del a.lines[mark:]
    per = -(-len(setup) // 9)
    a(f"s_waitcnt vmcnt({sum(cnt.values())})\ns_barrier")
    stamp()
    extra = 0
    for i in range(-1, 16):
        if i == -1 and pre == 1:
            cnt[2] = issue(2)
        if i + 4 <= 17:
            cnt[i+4] = issue(i + 4)
        if 0 <= i < 9:
            a("s_cmp_eq_u32 s59, 1")
            a.lines += setup[per*i:per*(i+1)]
            a("s_cselect_b32 s59, 1, 0")
        if i == 10 and kind == "X":
            flag_load(sFO, 98); flag_load(sFK, 99)
        if kind == "W" and i >= 14:
            extra += wq_issue(2*(i-14), m) + wq_issue(2*(i-14) + 1, m)
        left = sum(cnt.get(c, 0) for c in range(i + 3, min(i + 4, 17) + 1)) + extra
        a(f"s_waitcnt vmcnt({left})\ns_barrier")
    a("s_barrier")
    if kind == "W":
        for p in (4, 5, 6, 7, 13, 14, 15, 16, 17):
            wq_issue(p, m)
        a("s_waitcnt vmcnt(15)")
    else:
        flag_check(sFK, 99, "L_BX_fk")
    stamp()
    a("s_barrier")
    stamp()
    if kind == "W":
        for p in range(8, 13):
            wq_issue(p, m)
    KT = lambda s: 40 + 4 * s
    RD = lambda src, j: 112 + 28 * src + 4 * j
    srcs = ((vEA, 0), (vE0, 0), (vE0, 4096), (vEA, 5120), (vEA, 6144), (vEL, 9216), (vEL, 4096))
    prods = ((1, 2), (0, 3), (0, 4), (6, 5), (5, 0))
    if kind == "W":
        srcs = ((vEA, 0), None, (vE0, 4096), (vEA, 5120), (vEA, 6144), (vEL, 9216))
        prods = ((0, 2), (0, 3), (0, 4), None, (5, 0))
    nr = sum(x is not None for x in srcs)
    for src in range(4):
        for j, x in enumerate(srcs):
            if x: a(f"ds_read_b128 {vr(RD(src, j),4)}, v{x[0]} offset:{src*10240 + x[1]}")
    for src in range(4):
        a(f"s_waitcnt lgkmcnt({min(15, nr*(3-src))})")
        for s_, x in enumerate(prods):
            if x: a(mf(KT(s_), RD(src, x[0]), RD(src, x[1]), KT(s_) if src else "0"))
    for s_ in range(4 if kind == "X" else 3):
        for r in range(4):
            a(f"ds_write_b32 v{VS + 2*s_ + r//2}, v{KT(s_)+r} offset:{76*(r%2)}")
    a(f"ds_write_b32 v{vZS}, v{KT(4)}")
    a("s_waitcnt lgkmcnt(0)\ns_mov_b64 exec, 1\nds_add_u32 v10, v11\ns_mov_b64 exec, -1")
    stamp()
    b1, b2, b3 = {0: ((0, 1, 2, 3, 4, 5), (), (6, 7, 8)), 1: ((0, 1, 2), (3, 4, 5, 6, 7, 8), ()), 2: ((0, 1, 2), (3, 4, 5), (6, 7, 8))}[OPT.get("wob", 0)]
    if kind == "W":
        a("s_waitcnt vmcnt(0)\ns_barrier")
        for g in b1: wo_pair(g)
        if b2:
            a("s_barrier")
            for g in b2: wo_pair(g)
        stamp()
        a("s_barrier")
        loader_tail("BW", b3)
        return
    a(f"""
s_mov_b32 s{sT3}, 0x400000
L_BX_st:
ds_read_b32 v2, v10
s_waitcnt lgkmcnt(0)
v_readfirstlane_b32 s{sT}, v2
s_sub_u32 s{sT3}, s{sT3}, 1
s_cbranch_scc1 L_BX_st_x
s_cmp_ge_u32 s{sT}, 4
s_cbranch_scc0 L_BX_st
L_BX_st_x:
""")
    for n in range(11):
        a(f"ds_read_b32 v{40+n}, v{vLA} offset:{256*n}")
    for n in range(11):
        a(f"s_waitcnt lgkmcnt({10-n})")
        a(f"buffer_atomic_add_f32 v{40+n}, v{vGA + (n == 10)}, s[{SWS}:{SWS+3}], 0 offen offset:{256*n}")
    stamp()
    a("s_barrier")
    if b2:
        a("s_barrier")
    a("s_waitcnt vmcnt(0)")
    stamp()
    arrive_wait(sKC, 32, "L_BX_kc")
    stamp()
    for s_ in range(9):
        for r in range(4):
            a(f"buffer_load_dword v{112+4*s_+r}, v{VG + 2*s_ + r//2}, s[{SWS}:{SWS+3}], 0 offen offset:{76*(r%2)} sc1")
    dst = ((vLW, -1), (vLW, 4), (vLW, 9), (vLW, 13), (vLW + 2, 0), (vLW + 1, 4), (vLW + 1, 9), (vLW + 1, 13), (vLW + 3, 8))
    a(f"v_subrev_u32 v11, 512, v{vLW}")
    for s_, (ad, off) in enumerate(dst):
        a(f"s_waitcnt vmcnt({4*(8-s_)})")
        a(cv(40 + 2*s_, 112 + 4*s_)); a(cv(41 + 2*s_, 114 + 4*s_))
        a(f"ds_write_b64 v{11 if off < 0 else ad}, {vr(40+2*s_,2)} offset:{512*max(off, 0)}")
    a("s_waitcnt lgkmcnt(0)")
    stamp()
    a("s_barrier")
    loader_tail("BX")

def p2_consumer():
    OFR = lambda ks, rt: 112 + ks * 8 + rt * 4
    ACC = lambda t, rt: 72 + (t * 2 + rt) * 4
    wf = lambda t: 52 + 4 * t
    R8, R2, vO, vTW, vTR, VS = 1, 5, 6, 7, 8, 9
    AH = OPT["ahead"]
    a("L_P2:")
    nstamp[0] = 10
    rd_lanes(R8, R2, 17, 18)
    for j in range(5):
        a(f"v_add_u32 v{R8+j}, {R1}, v{R8+j}")
    a(f"""
v_lshl_add_u32 v{vO}, v0, 4, s58
s_mul_i32 s{sT}, s{sWAVE}, 4608
s_add_u32 s{sT}, s{sT}, {P_TR}
v_and_b32 v17, 15, v0
v_mul_u32_u24 v17, 144, v17
v_lshrrev_b32 v18, 4, v0
v_lshl_add_u32 v17, v18, 3, v17
v_add_u32 v{vTW}, s{sT}, v17
v_lshl_add_u32 v{vTR}, v0, 4, s{sT}
s_lshr_b32 s{sT}, s{sWAVE}, 1
s_and_b32 s{sT2}, s{sWAVE}, 1
s_lshl_b32 s{sT2}, s{sT2}, 5
s_lshl_b32 s{sT3}, s{sWAVE}, 5
s_cmp_eq_u32 s{sBR}, 0
s_cselect_b32 s42, s{sT}, 0
s_cselect_b32 s43, s{sT2}, s{sT3}
s_cselect_b32 s55, 1, 0
s_lshl_b32 s56, s42, 3
s_lshl_b32 s{sT}, s{sRB}, 7
s_add_u32 s42, s42, s{sT}
s_mul_i32 s{sT}, s{sBR}, 1152
s_mul_i32 s{sT2}, s{sHG}, 144
s_add_u32 s57, s{sT}, s{sT2}
""")
    for n in range(5):
        a(f"""
v_add_u32 v17, {64*n}, v0
v_mul_u32_u24 v18, 7282, v17
v_lshrrev_b32 v18, 16, v18
v_mul_u32_u24 v19, 9, v18
v_sub_u32 v19, v17, v19
v_add_u32 v18, s43, v18
v_xor_b32 v18, s56, v18
v_lshlrev_b32 v18, s55, v18
v_add_u32 v18, s42, v18
v_mul_u32_u24 v18, 2304, v18
v_lshl_add_u32 v18, v19, 4, v18
v_add_u32 v{VS+n}, s57, v18
""")
    a(f"v_mov_b32 v17, {OOB}\nv_cndmask_b32 v{VS+4}, v17, v{VS+4}, s[{sG01}:{sG01+1}]")
    a(f"v_add_u32 v14, 18432, v{vO}")
    SO = [8, 9, 10, 11, 12, 13, 14, 15, 36]
    rho(37)
    a(f"s_movk_i32 s{SO[0]}, 16384")
    for j in range(1, 9):
        a(f"s_add_u32 s{sT}, s37, {2*j-2}\ns_and_b32 s{sT}, s{sT}, 15\ns_lshl_b32 s{SO[j]}, s{sT}, 10")
    a("s_waitcnt vmcnt(0)")
    stamp()
    a("s_barrier\ns_barrier")
    stamp()
    def oload(ks, rt):
        return f"buffer_load_dwordx4 {vr(OFR(ks, rt),4)}, v{14 if rt else vO}, s[{SWS}:{SWS+3}], s{SO[ks//2]} offen offset:{1024*(ks%2)} sc1"
    base = lambda ks: R1 if ks < 3 else 0 if 9 <= ks < 12 else R2_
    R2_ = 43008
    def wreads(ks, t):
        o = WO[ks] - base(ks)
        if t == 4:
            return [tr(wf(t), R2, o + 4096), tr(wf(t) + 2, R2, o + 4096 + 256)]
        return [tr(wf(t), R8 + t, o), tr(wf(t) + 2, R8 + t, o + 1024)]
    for ks in range(AH):
        a(oload(ks, 0)); a(oload(ks, 1))
    for t in range(5):
        for x in wreads(0, t): a(x)
    for ks in range(18):
        tiles = [[mf(ACC(t, rt), wf(t), OFR(ks, rt), ACC(t, rt) if ks else "0") for rt in range(2)] for t in range(5)]
        w0 = f"s_waitcnt vmcnt({2*min(AH - 1, 17 - ks)}) lgkmcnt(8)"
        if ks < 17:
            nxt = [wreads(ks + 1, t) for t in range(5)]
            if base(ks + 1) != base(ks):
                d = (base(ks + 1) - base(ks)) & 0xffffffff
                for t in range(5):
                    nxt[t][0] = f"v_add_u32 v{R8+t}, {d}, v{R8+t}\n" + nxt[t][0]
            first = []
            if ks + AH < 18:
                first = [oload(ks + AH, 0)]
                nxt[1][1] += "\n" + oload(ks + AH, 1)
            kstep(tiles, nxt, first, {t: "s_waitcnt lgkmcnt(7)" if t else w0 for t in range(5)})
        else:
            kstep(tiles, None, [], {t: f"s_waitcnt lgkmcnt({8 - 2*t})" if t else w0 for t in range(5)})
        if ks == 0:
            stamp()
    stamp()
    for rt in range(2):
        for t in range(5):
            d = 20 + 2*(rt*5 + t)
            a(cv(d, ACC(t, rt))); a(cv(d + 1, ACC(t, rt) + 2))
            if t == 4:
                a(f"s_mov_b64 exec, s[{sG01}:{sG01+1}]")
            a(f"ds_write_b64 v{vTW}, {vr(d,2)} offset:{rt*2304 + 32*t}")
            if t == 4:
                a("s_mov_b64 exec, -1")
    a("s_waitcnt lgkmcnt(0)")
    for n in range(5):
        a(f"ds_read_b128 {vr(112+4*n,4)}, v{vTR} offset:{1024*n}")
    for n in range(5):
        a(f"s_waitcnt lgkmcnt({4-n})")
        a(f"buffer_store_dwordx4 {vr(112+4*n,4)}, v{VS+n}, s[{SOUT}:{SOUT+3}], 0 offen")
    stamp()
    stamps_out(True)
    a("s_endpgm")

HEADER = open("concat_heads__sliding_local_dilated__linear_attn_block__prompt.s.ref").read().split("; Override")[0]
out = HEADER + "; @launch grid=(256,1,1) block=(512,1,1) lds=163840\n"
a('.amdgcn_target "amdgcn-amd-amdhsa--gfx950"\n.text')
a(kernel_head(KN))
if OPT["stamps"]:
    for i in range(16):
        a(f"s_mov_b32 s{sST+2*i}, 0")
stamp()
a(f"""
s_cmp_ge_u32 s2, 256
s_cbranch_scc1 L_end
s_and_b32 s{sT}, s2, 7
s_lshr_b32 s{sBR}, s{sT}, 2
{'s_xor_b32 s6, s6, 1' if OPT.get('swap') else ''}
s_mul_i32 s{sT2}, s{sBR}, 24
s_add_u32 s0, s0, s{sT2}
s_addc_u32 s1, s1, 0
s_load_dwordx4 s[36:39], s[0:1], 0
s_load_dwordx2 s[40:41], s[0:1], 16
s_sub_u32 s0, s0, s{sT2}
s_subb_u32 s1, s1, 0
s_load_dwordx4 s[44:47], s[0:1], 48
s_load_dwordx2 s[48:49], s[0:1], 64
v_lshrrev_b32 v1, 6, v0
v_and_b32 v0, 63, v0
v_readfirstlane_b32 s{sWAVE}, v1
s_lshr_b32 s{sT2}, s2, 3
""")
m84 = f"""
s_and_b32 s{sHG}, s{sT2}, 3
s_and_b32 s{sT3}, s{sT}, 1
s_lshl_b32 s{sT3}, s{sT3}, 2
s_add_u32 s{sHG}, s{sHG}, s{sT3}
s_lshr_b32 s{sRB}, s{sT2}, 2
s_and_b32 s{sT3}, s{sT}, 2
s_lshl_b32 s{sT3}, s{sT3}, 2
s_add_u32 s{sRB}, s{sRB}, s{sT3}
"""
m48 = f"""
s_and_b32 s{sHG}, s{sT2}, 7
s_lshr_b32 s{sRB}, s{sT2}, 3
s_and_b32 s{sT3}, s{sT}, 3
s_lshl_b32 s{sT3}, s{sT3}, 2
s_add_u32 s{sRB}, s{sRB}, s{sT3}
"""
if OPT["mapping"] == 84:
    a(m84)
elif OPT["mapping"] == 48:
    a(m48)
else:
    a(m48 + f"s_cmp_eq_u32 s{sBR}, {0 if OPT['mapping'] == 8448 else 1}\ns_cbranch_scc0 L_map" + m84 + "L_map:")
rot = ""
if OPT.get("rot") == 2:
    rot = f"""s_lshr_b32 s90, s2, 1
s_xor_b32 s90, s90, s2
s_and_b32 s90, s90, 1
s_mul_i32 s91, s90, {OPT.get("rotby", 5)*128}
s_mul_i32 s90, s90, {OPT.get("rotby", 5)*64*3456}"""
elif OPT.get("rot") == 3:
    rot = f"""s_lshr_b32 s90, s2, 1
s_xor_b32 s90, s90, s2
s_and_b32 s90, s90, 1
s_mul_i32 s90, s90, 5
s_add_u32 s91, s{sRB}, s{sHG}
s_and_b32 s91, s91, 3
s_add_u32 s90, s90, s91
s_lshl_b32 s91, s90, 7
s_mul_i32 s90, s90, {64*3456}"""
elif OPT.get("rot") == 7:
    rot = f"""s_and_b32 s90, s{sHG}, 3
s_and_b32 s91, s{sRB}, 7
s_lshl1_add_u32 s90, s90, s91
s_cmp_ge_u32 s90, 9
s_cselect_b32 s91, 9, 0
s_sub_u32 s90, s90, s91
s_lshl_b32 s91, s90, 7
s_mul_i32 s90, s90, {64*3456}"""
elif OPT.get("rot") in (4, 5, 6):
    tab = {4: 0x75207520, 5: 0x63006300, 6: 0x86427531}[OPT["rot"]]
    rot = f"""s_add_u32 s90, s{sRB}, s{sHG}
s_and_b32 s90, s90, 7
s_lshl_b32 s90, s90, 2
s_lshr_b32 s90, {hex(OPT.get("tab", tab))}, s90
s_and_b32 s90, s90, 15
s_lshl_b32 s91, s90, 7
s_mul_i32 s90, s90, {64*3456}"""
elif OPT.get("rot"):
    few, many = (sRB, sHG) if OPT["mapping"] == 48 else (sHG, sRB)
    rot = f"""s_and_b32 s90, s{few}, 3
s_lshl_b32 s90, s90, 2
s_lshr_b32 s90, 0x7520, s90
s_and_b32 s90, s90, 15
s_and_b32 s91, s{many}, 7
s_add_u32 s90, s90, s91
s_cmp_ge_u32 s90, 9
s_cselect_b32 s91, 9, 0
s_sub_u32 s90, s90, s91
s_lshl_b32 s91, s90, 7
s_mul_i32 s90, s90, {64*3456}"""
a(f"""
s_mov_b32 s{sG0}, 0xffff
s_mov_b32 s{sG0+1}, 0
s_mov_b32 s{sG01}, -1
s_mov_b32 s{sG01+1}, 0
s_and_b32 s{sV}, s{sWAVE}, 1
s_mul_i32 s{sM}, s{sHG}, 144
s_cmp_lt_u32 s{sWAVE}, 4
s_cbranch_scc1 L_cons
s_setprio {OPT.get("prio", 2)}
s_mov_b32 s59, 0
{rot}
s_cmp_lt_u32 s{sWAVE}, 6
s_cbranch_scc1 L_wld
s_cmp_eq_u32 s{sBR}, 0
s_cbranch_scc1 L_AX0
s_branch L_BX0
L_wld:
s_cmp_eq_u32 s{sBR}, 0
s_cbranch_scc1 L_AW0
s_branch L_BW0
L_cons:
s_getpc_b64 s[42:43]
L_pc:
s_lshl_b32 s{sT}, s{sT2}, 2
s_add_u32 s{sT}, s{sT}, s{sWAVE}
s_lshl_b32 s{sT}, s{sT}, 9
v_and_b32 v1, 3, v0
v_lshlrev_b32 v1, 7, v1
v_add_u32 v1, s{sT}, v1
v_min_u32 v1, {'L_last2' if OPT.get('ifetch') == 1 else 'L_last'}-L_pc, v1
{'global_load_dword v27, v1, s[42:43]' if not OPT.get('nopf') else ''}
s_cmp_eq_u32 s{sBR}, 0
s_cbranch_scc1 L_AC
s_branch L_BC
L_end:
s_endpgm
""")
w_head("A"); w_head("B"); x_head("A"); x_head("B")
n0 = nstamp[0]
for fn in (lambda: a_loader("W"), lambda: a_loader("X"), a_consumer, lambda: b_loader("W"), lambda: b_loader("X"), b_consumer, p2_consumer):
    nstamp[0] = n0
    fn()
a("s_endpgm" if OPT.get("ifetch", 0) > 1 else "L_last2:\ns_endpgm" if OPT.get("ifetch") else "L_last:\ns_endpgm")
lines = []
for l in a.lines: lines += l.split("\n")
if OPT.get("noread"):
    lines = [l for l in lines if not l.startswith("ds_read_b64_tr")]
if OPT.get("nomfma"):
    lines = [l for l in lines if not l.startswith("v_mfma")]
lines, added = hz.fix(lines)
out += "\n".join(lines) + "\n"
out += '.section .rodata,"a"\n.p2align 6\n' + kernel_desc(KN, 256, 102 if OPT.get('cyc') else 100, 256)
sys.stdout.write(out)
sys.stderr.write(f"nop states added: {added}\n")
```

```python
import sys, struct
from asmlib import *
import hz

OPT = dict(stamps=0, mapping=48, ahead=6, rot=4, nt=1)
for arg in sys.argv[1:]:
    k, v = arg.split("=")
    OPT[k] = int(v)
KN = "concat_heads__sliding_local_dilated__linear_attn_block__prompt_kernel"

def f32(x):
    return "0x%08x" % struct.unpack("<I", struct.pack("<f", x))[0]

LOG2E = 1.4426950408889634
CSC = 18 ** -0.5 * LOG2E
NEG = "0xf149f2ca"
EPS = f32(1e-6)
OOB = "0x80000000"

O_BR = 0x240000
WS_KV = 0x500000
KV_ST = 0x2000
WS_CNT = 0x540000
WS_STAMP = 0x600000
WS_SIZE = 0x700000

sWAVE, sHG, sRB, sBR, sT = 3, 4, 5, 6, 7
SX, SW, SWS, SDBG, SWO, SOUT = 8, 12, 16, 20, 24, 28
sG0, sG01 = 32, 34
sK, sV, sM, sT2, sT3 = 50, 51, 52, 53, 54
sST = 60

a = Asm()
nstamp = [0]

def stamp():
    if OPT["stamps"]:
        i = nstamp[0]; nstamp[0] += 1
        assert i < 15
        a(f"{'s_memrealtime' if OPT.get('rt') or OPT.get('probe') and not (OPT.get('cyc') and i) else 's_memtime'} s[{sST+2*i}:{sST+2*i+1}]")
        if OPT.get("cyc") and i == 0:
            a("s_memtime s[100:101]")

def stamps_out(last=-1):
    if not OPT["stamps"]:
        return
    if OPT.get("probe"):
        if last == OPT.get("pwave", 0):
            j = sST + 2 * OPT["probe"]
            if OPT.get("ifetch"):
                mode = OPT["ifetch"]
                a(f"""
s_waitcnt vmcnt(0) lgkmcnt(0)
s_cmp_eq_u32 s2, {OPT.get('wg', 0)}
s_cbranch_scc0 L_probe_x
s_cmp_eq_u32 s{sWAVE}, 0
s_cbranch_scc0 L_probe_x
s_sleep 127
s_sleep 127
s_getpc_b64 s[44:45]
L_if_pc:
s_add_u32 s44, s44, L_if_blk-L_if_pc
s_addc_u32 s45, s45, 0
v_lshlrev_b32 v1, 7, v0
v_min_u32 v1, 4096, v1
""")
                if mode == 2:
                    a("global_load_dword v2, v1, s[44:45]\ns_waitcnt vmcnt(0)")
                a(f"""
s_memtime s[100:101]
s_waitcnt lgkmcnt(0)
s_branch L_if_blk
L_last:
.fill {(0 if mode == 1 else 8192)}, 4, 0xbf800000
L_if_blk:
.rept 512
v_add3_u32 v5, v0, v0, v0
.endr
s_memtime s[{j}:{j+1}]
s_waitcnt lgkmcnt(0)
s_sub_u32 s{j}, s{j}, s100
s_lshl_b32 s{j}, s{j}, 3
s_add_u32 s{j}, s{j}, s100
""")
            if OPT.get("vrate"):
                isw = OPT["vrate"] == 1
                a(f"""
s_waitcnt vmcnt(0) lgkmcnt(0)
s_load_dwordx2 s[44:45], s[0:1], {8 if isw else 0}
s_sleep 127
s_sleep 127
s_waitcnt lgkmcnt(0)
s_mov_b32 s46, {1990656 if isw else 2359296}
s_mov_b32 s47, 0x20000
v_lshrrev_b32 v1, 3, v0
v_mul_u32_u24 v1, {3456 if isw else 2304}, v1
v_and_b32 v2, 7, v0
v_lshl_add_u32 v1, v2, 4, v1
s_mov_b32 m0, 0
""")
                for rep in range(2):
                    if rep:
                        a("s_memtime s[100:101]\ns_waitcnt lgkmcnt(0)")
                    a(f"s_mov_b32 s40, 0\nL_vr{rep}:")
                    for n in range(3):
                        a(f"buffer_load_dwordx4 v1, s[44:47], s40 offen offset:{n*1152 if isw else n*128} lds")
                    a(f"s_waitcnt vmcnt(24)\ns_add_u32 s40, s40, {8*3456 if isw else 8*2304}\ns_cmp_lt_u32 s40, {72*8*3456 if isw else 72*8*2304}\ns_cbranch_scc1 L_vr{rep}\ns_waitcnt vmcnt(0)")
                a(f"s_memtime s[{j}:{j+1}]\ns_waitcnt lgkmcnt(0)\ns_sub_u32 s{j}, s{j}, s100\ns_lshl_b32 s{j}, s{j}, 3\ns_add_u32 s{j}, s{j}, s100")
            if OPT.get("skew"):
                op = "max" if OPT["skew"] in (1, 3) else "min"
                a(f"""
s_waitcnt vmcnt(0) lgkmcnt(0)
v_lshlrev_b32 v1, {4 if OPT['skew'] < 3 else 5}, v0
{'v_and_b32 v1, 0x3e0, v1' if OPT['skew'] >= 3 else ''}
v_add_u32 v1, 0x6f0000, v1
buffer_load_dwordx4 v[4:7], v1, s[{SWS}:{SWS+3}], 0 offen sc1
s_waitcnt vmcnt(0)
v_subrev_u32 v4, s{sST}, v4
v_subrev_u32 v5, s{sST}, v5
v_subrev_u32 v6, s{sST}, v6
v_subrev_u32 v7, s{sST}, v7
""")
                if OPT["skew"] < 3:
                    a(f"v_{op}_i32 v4, v4, v5\nv_{op}_i32 v6, v6, v7\nv_{op}_i32 v4, v4, v6")
                a("s_mov_b32 s44, 0\ns_nop 4")
                for l in range(64):
                    a(f"v_readlane_b32 s45, v4, {l}\ns_nop 3\ns_{op}_i32 s44, s44, s45")
                a(f"s_abs_i32 s44, s44\ns_add_u32 s{j}, s{sST}, s44")
            if OPT.get("ptr"):
                a(f"s_waitcnt vmcnt(0) lgkmcnt(0)\ns_load_dword s44, s[0:1], {OPT['ptr'] - 8}\ns_waitcnt lgkmcnt(0)\ns_lshr_b32 s44, s44, {OPT.get('sh', 4)}\ns_and_b32 s44, s44, 0xff\ns_mul_i32 s44, s44, 10\ns_add_u32 s{j}, s{sST}, s44")
            if OPT.get("lat"):
                a(f"""
s_waitcnt vmcnt(0) lgkmcnt(0)
s_load_dwordx2 s[44:45], s[0:1], {OPT['lat'] - 8}
s_sleep 127
s_sleep 127
s_sleep 127
s_waitcnt lgkmcnt(0)
s_mov_b32 s46, 0x100000
s_mov_b32 s47, 0x20000
v_mov_b32 v1, 0x20000
buffer_load_dword v2, v1, s[44:47], 0 offen {'sc1' if OPT.get('first') != 2 else ''}
s_waitcnt vmcnt(0)
v_mov_b32 v1, {'0x20000' if not OPT.get('first') else '0x20040'}
s_memtime s[100:101]
s_waitcnt lgkmcnt(0)
buffer_load_dword v2, v1, s[44:47], 0 offen sc1
s_waitcnt vmcnt(0)
s_memtime s[{j}:{j+1}]
s_waitcnt lgkmcnt(0)
s_sub_u32 s{j}, s{j}, s100
s_lshl_b32 s{j}, s{j}, 5
s_add_u32 s{j}, s{j}, s100
""")
            if OPT.get("xcc"):
                a(f"""
s_waitcnt vmcnt(0) lgkmcnt(0)
v_and_b32 v1, 31, v0
v_lshlrev_b32 v1, {5 if OPT['xcc'] == 1 else 2}, v1
v_add_u32 v1, 0x6f0000, v1
buffer_load_dword v2, v1, s[{SWS}:{SWS+3}], 0 offen sc1
s_getreg_b32 s44, hwreg(HW_REG_XCC_ID, 0, 4)
s_waitcnt vmcnt(0)
v_cmp_eq_u32 vcc, s44, v2
s_bcnt1_i32_b32 s44, vcc_lo
s_mul_i32 s44, s44, 10
s_add_u32 s{j}, s{sST}, s44
""")
            a(f"""
s_waitcnt vmcnt(0) lgkmcnt(0)
s_cmp_eq_u32 s2, {OPT.get('wg', 0)}
s_cbranch_scc0 L_probe_x
s_cmp_eq_u32 s{sWAVE}, {last}
s_cbranch_scc0 L_probe_x
s_sub_u32 s{sT}, s{j}, s{100 if OPT.get('cyc') else sST}
{'s_lshr_b32 s7, s7, 3' if OPT.get('cyc') else 's_mul_i32 s7, s7, 10'}
s_min_u32 s{sT}, s{sT}, 100000
s_add_u32 s{sT}, s{sT}, 6000
L_probe:
s_memrealtime s[44:45]
s_waitcnt lgkmcnt(0)
s_sub_u32 s44, s44, s{sST}
s_cmp_lt_u32 s44, s{sT}
s_cbranch_scc1 L_probe
L_probe_x:
""")
        return
    a("s_waitcnt vmcnt(0) lgkmcnt(0)")
    a(f"s_lshl_b32 s{sT}, s2, 3\ns_add_u32 s{sT}, s{sT}, s{sWAVE}\ns_lshl_b32 s{sT}, s{sT}, 6")
    a(f"s_add_u32 s{sT}, s{sT}, {WS_STAMP}\nv_mov_b32 v1, s{sT}")
    for i in range(16):
        a(f"v_mov_b32 v2, s{sST+2*i}")
        a(f"buffer_store_dword v2, v1, s[{SWS}:{SWS+3}], 0 offen offset:{4*i}")
    a("s_waitcnt vmcnt(0)")

def mf(d, s0, s1, c):
    cc = c if isinstance(c, str) else vr(c, 4)
    return f"v_mfma_f32_16x16x32_bf16 {vr(d,4)}, {vr(s0,4)}, {vr(s1,4)}, {cc}"
def cv(d, x):
    return f"v_cvt_pk_bf16_f32 v{d}, v{x}, v{x+1}"
def tr(d, addr, off):
    return f"ds_read_b64_tr_b16 {vr(d,2)}, v{addr} offset:{off}"
def weave(mfmas, others, per=2):
    o = list(others)
    for m in mfmas:
        a(m)
        for _ in range(per):
            if o: a(o.pop(0))
    for x in o: a(x)

def srd(dst, lo, nbytes):
    a(f"s_mov_b32 s{dst}, s{lo}\ns_mov_b32 s{dst+1}, s{lo+1}\ns_mov_b32 s{dst+2}, {nbytes}\ns_mov_b32 s{dst+3}, 0x20000")
def srds_rest():
    srd(SWO, 40, 663552); srd(SOUT, 44, 4718592); srd(SDBG, 46, 256); srd(SWS, 48, WS_SIZE)

class M0:
    def __init__(self, base): self.base = base; self.cur = None
    def set(self, imm):
        if self.cur is not None and -32768 <= imm - self.cur <= 32767:
            a(f"s_addk_i32 m0, {imm - self.cur}")
        else:
            a(f"s_add_u32 m0, s{self.base}, {imm}")
        self.cur = imm

CUR = [0]
def dma(voff, srd_, soff, half=False):
    if OPT.get("nodma") or (OPT.get("nos") and voff == VD + 6 and srd_ == SW and not half):
        return
    if half: a(f"s_mov_b64 exec, s[{sG01}:{sG01+1}]")
    nt = " nt" if OPT.get("nt", 0) >> {SX: 0, SW: 1, SWO: 2}[srd_] & 1 and CUR[0] < OPT.get("ntc", 99) else ""
    a(f"buffer_load_dwordx4 v{voff}, s[{srd_}:{srd_+3}], {soff} offen{nt} lds")
    if half: a("s_mov_b64 exec, -1")

def rd_lanes(r8, r2, t0, t1):
    a(f"""
v_lshrrev_b32 v{t0}, 5, v0
v_lshlrev_b32 v{t0}, 4, v{t0}
v_bfe_u32 v{t1}, v0, 4, 1
v_lshl_add_u32 v{t0}, v{t1}, 2, v{t0}
v_bfe_u32 v{t1}, v0, 2, 2
v_add_u32 v{t0}, v{t0}, v{t1}
v_and_b32 v{t1}, 3, v0
v_lshlrev_b32 v{t1}, 3, v{t1}
v_lshl_add_u32 v{r2}, v{t0}, 5, v{t1}
v_lshl_add_u32 v{r8}, v{t0}, 7, v{t1}
v_bfe_u32 v{t0}, v{t0}, 1, 2
v_lshl_add_u32 v{r8}, v{t0}, 5, v{r8}
""")
    for t in (1, 2, 3):
        a(f"v_xor_b32 v{r8+t}, {32*t}, v{r8}")

def x_lane(d0, d1, tmp):
    a(f"""
v_lshrrev_b32 v{d0}, 4, v0
v_bfe_u32 v{tmp}, v0, 1, 3
v_xor_b32 v{d0}, v{d0}, v{tmp}
v_and_b32 v{tmp}, 15, v0
v_lshlrev_b32 v{tmp}, 7, v{tmp}
v_lshl_add_u32 v{d0}, v{d0}, 4, v{tmp}
v_xor_b32 v{d1}, 64, v{d0}
""")

def col8(dst, tmp):
    a(f"v_bfe_u32 v{tmp}, v0, 4, 2\nv_lshlrev_b32 v{tmp}, 1, v{tmp}\nv_and_b32 v{dst}, 7, v0\nv_xor_b32 v{dst}, v{dst}, v{tmp}\nv_lshlrev_b32 v{dst}, 4, v{dst}")

def head_of(dst, src):
    a(f"v_mul_u32_u24 v{dst}, 57, v{src}\nv_lshrrev_b32 v{dst}, 10, v{dst}")

sOC, sKC, sFO, sFK = 92, 94, 96, 97

def arrive_wait(addr, target, label, arrive=True):
    if arrive:
        a(f"s_mov_b32 s{sT}, 1\ns_atomic_add s{sT}, s[{addr}:{addr+1}], 0 glc\ns_waitcnt lgkmcnt(0)\ns_cmp_ge_u32 s{sT}, {target-1}\ns_cbranch_scc1 {label}_x")
    a(f"""
s_mov_b32 s{sT3}, 0x20000
{label}:
s_mov_b32 s{sT}, 0
s_atomic_add s{sT}, s[{addr}:{addr+1}], 0 glc
s_waitcnt lgkmcnt(0)
s_sub_u32 s{sT3}, s{sT3}, 1
s_cbranch_scc1 {label}_x
s_cmp_ge_u32 s{sT}, {target}
s_cbranch_scc0 {label}
{label}_x:
""")

def flag_load(dst, offreg):
    a(f"s_load_dword s{dst}, s[{SDBG}:{SDBG+1}], s{offreg}")

def flag_check(val, offreg, label):
    a(f"""
s_mov_b32 s{sT3}, 0x20000
{label}:
s_waitcnt lgkmcnt(0)
s_cmp_lg_u32 s{val}, 0
s_cbranch_scc1 {label}_x
s_sub_u32 s{sT3}, s{sT3}, 1
s_cbranch_scc1 {label}_x
s_load_dword s{val}, s[{SDBG}:{SDBG+1}], s{offreg} glc
s_branch {label}
{label}_x:
""")

A_WSLOT, A_XSLOT = 14336, 18432
A_X0 = 5 * A_WSLOT
A_EX = A_X0 + 3 * A_XSLOT
B_KVSLOT, B_XSLOT = 9216, 16384
B_X0 = 5 * B_KVSLOT
B_EX = B_X0 + 3 * B_XSLOT
B_KVOP = 126976
B_STG = 136192
B_DUMP, B_LCNT = B_STG + 5632, B_STG + 6144
B_WQ0 = 143360
QORD = list(range(18))
def wq_slot(p):
    if p < 4: return B_WQ0 + 5120 * p
    if p < 7: return 5120 * (p - 4)
    if p < 13: return 40960 + 5120 * (p - 7)
    return 15360 + 5120 * (p - 13)
R1, R2 = 147456, 43008
WO = [R1, R1 + 5120, R1 + 10240] + [R2 + 5120 * n for n in range(6, 12)] + [0, 5120, 10240] + [R2 + 5120 * n for n in range(6)]
P_TR = 108544
SPLITS = {(1, 0): sG0, (2, 0): sG0, (2, 1): sG0, (3, 0): sG01, (3, 1): sG0}

VD = 16
VWO = 26
vCNT, vFLO, vFLK, vFO, vFK = 30, 31, 32, 33, 34

def w_head(kind):
    parts = (0, 1152, 2304) if kind == "A" else (1152, 2304)
    a(f"L_{kind}W0:")
    col8(VD, 1)
    a(f"""
v_bfe_u32 v1, v0, 5, 1
v_bfe_u32 v2, v0, 3, 2
v_lshl_add_u32 v1, v1, 3, v2
s_mul_i32 s{sT}, s{sV}, {16*3456}
s_add_u32 s{sT}, s{sT}, s{sM}
v_mul_u32_u24 v1, 3456, v1
v_add3_u32 v{VD}, v{VD}, v1, s{sT}
""")
    n = 2 * len(parts)
    for j in range(n - 1, -1, -1):
        off = parts[j // 2] + (j % 2) * 4 * 3456
        if off:
            a(f"v_add_u32 v{VD+j}, {off}, v{VD}")
    a(f"""
v_bfe_u32 v1, v0, 3, 1
v_bfe_u32 v2, v0, 4, 1
v_sub_u32 v1, v1, v2
v_lshrrev_b32 v2, 1, v0
v_lshl_add_u32 v1, v1, 2, v2
v_mul_u32_u24 v1, 3456, v1
v_and_b32 v2, 1, v0
""")
    if kind == "A":
        a(f"""
s_cmp_eq_u32 s{sV}, 0
s_cselect_b32 s{sT2}, 1152, 0
s_cselect_b32 s{sT}, 0, 2304
s_add_u32 s{sT}, s{sT}, s{sM}
s_addk_i32 s{sT}, 128
v_mad_u32_u24 v1, v2, s{sT2}, v1
v_add_u32 v{VD+6}, s{sT}, v1
""")
    else:
        a(f"""
s_add_u32 s{sT}, s{sT}, 128
v_add_u32 v{VD+7}, s{sT}, v1
v_mul_u32_u24 v2, 1152, v2
v_add_u32 v2, 1152, v2
v_add_u32 v{VD+4}, v2, v{VD+7}
""")
    a(f"s_lshl_b32 s42, s{sV}, 11\ns_lshl_b32 s43, s{sV}, {10 if kind == 'A' else 9}\ns_sub_u32 s43, s43, s42")
    a("s_waitcnt lgkmcnt(0)")
    srd(SW, 38, 1990656)
    m = M0(42)
    w_issue(kind, 0, m)
    a(f"s_branch L_{kind}W1")

def w_issue(kind, c, m):
    CUR[0] = c
    slot = (c % 5) * (A_WSLOT if kind == "A" else B_KVSLOT)
    n = 6 if kind == "A" else 4
    so = f"s{sK}" if c else "0"
    if OPT.get("rot"):
        so = "s90"
        if c:
            a(f"s_add_u32 s90, s90, {32*3456}\ns_cmp_eq_u32 s90, {18*32*3456}\ns_cselect_b32 s90, 0, s90")
    elif c:
        a(f"s_mov_b32 s{sK}, {c*32*3456}")
    for j in range(n):
        m.set(slot + 4096 * (j // 2) + 1024 * (j % 2))
        dma(VD + j, SW, so)
    m.set(slot + 4096 * (n // 2))
    a("s_add_u32 m0, m0, s43")
    m.cur = None
    dma(VD + n, SW, so, half=(kind == "B"))
    return n + 1

def wq_issue(p, m):
    if OPT.get("rot"):
        a(f"s_add_u32 s{sK}, s90, {(p+1)*32*3456}\ns_cmp_ge_u32 s{sK}, {18*32*3456}\ns_cselect_b32 s{sT}, {18*32*3456}, 0\ns_sub_u32 s{sK}, s{sK}, s{sT}")
    else:
        a(f"s_mov_b32 s{sK}, {QORD[p]*32*3456}")
    for j in range(2):
        m.set(wq_slot(p) + 1024 * j)
        dma(VD + 5 + j, SW, f"s{sK}")
    m.set(wq_slot(p) + 4096)
    a("s_add_u32 m0, m0, s43")
    m.cur = None
    dma(VD + 7, SW, f"s{sK}", half=True)
    return 3

def x_head(kind):
    nq = 9 if kind == "A" else 8
    a(f"L_{kind}X0:")
    a(f"""
v_lshrrev_b32 v1, 3, v0
v_mul_u32_u24 v1, {2304 if kind == 'A' else 1152}, v1
v_lshrrev_b32 v2, 4, v0
v_lshl_add_u32 v2, s{sV}, 2, v2
v_and_b32 v3, 7, v0
v_xor_b32 v2, v2, v3
v_lshl_add_u32 v1, v2, 4, v1
s_mul_i32 s{sT}, s{sRB}, {128*1152}
""")
    if kind == "A":
        a(f"""
s_mul_i32 s{sT2}, s{sV}, {16*1152}
s_add_u32 s{sT3}, s{sT}, s{sT2}
v_add_u32 v{VD}, s{sT3}, v1
s_sub_u32 s{sT3}, s{sT}, s{sT2}
s_add_u32 s{sT3}, s{sT3}, {17*1152}
v_add_u32 v{VD+4}, s{sT3}, v1
s_mul_i32 s{sT2}, s{sV}, 1152
s_sub_u32 s{sT3}, s{sT}, s{sT2}
s_sub_u32 s{sT3}, s{sT3}, {15*1152}
v_add_u32 v{VD+8}, s{sT3}, v1
""")
        for q in (1, 2, 3):
            a(f"v_add_u32 v{VD+q}, {32*1152*q}, v{VD}\nv_add_u32 v{VD+4+q}, {32*1152*q}, v{VD+4}")
    else:
        a(f"s_mul_i32 s{sT2}, s{sV}, {8*1152}\ns_add_u32 s{sT}, s{sT}, s{sT2}\nv_add_u32 v{VD}, s{sT}, v1")
        for q in range(1, 8):
            a(f"v_add_u32 v{VD+q}, {16*1152*q}, v{VD}")
    a(f"s_lshl_b32 s42, s{sV}, 10")
    a("s_waitcnt lgkmcnt(0)")
    srd(SX, 36, 2359296)
    x_issue(kind, 0, M0(42))
    a(f"s_branch L_{kind}X1")

def x_issue(kind, c, m):
    CUR[0] = c + (c & 1)
    nq, h, x0, xs = (9, 5, A_X0, A_XSLOT) if kind == "A" else (8, 4, B_X0, B_XSLOT)
    st = (c + 1) // 2
    if st > 8:
        return 0
    qs = range(nq) if c == 0 else (range(h) if c % 2 else range(h, nq))
    so = f"s{sK}" if st else "0"
    if OPT.get("rot"):
        so = "s91"
        if c % 2:
            a("s_addk_i32 s91, 128\ns_cmpk_eq_u32 s91, 1152\ns_cselect_b32 s91, 0, s91")
    elif st:
        a(f"s_movk_i32 s{sK}, {st*128}")
    for q in qs:
        m.set(x0 + (st % 3) * xs + 2048 * q)
        a("s_nop 0")
        dma(VD + q, SX, so)
    return len(qs)

def wo_setup(quad):
    col8(VWO, 1)
    a(f"""
s_mul_i32 s{sM}, s{sHG}, 144
v_add_u32 v{VWO}, s{sM}, v{VWO}
v_bfe_u32 v1, v0, 5, 1
v_bfe_u32 v2, v0, 3, 2
v_mul_u32_u24 v1, 72, v1
v_add_u32 v1, v1, v2
v_mul_u32_u24 v1, 1152, v1
v_add_u32 v{VWO+1}, v1, v{VWO}
v_lshrrev_b32 v1, 3, v0
v_mul_u32_u24 v1, 1152, v1
v_add_u32 v{VWO}, v1, v{VWO}
v_bfe_u32 v1, v0, 1, 2
v_bfe_u32 v2, v0, 3, 1
v_bfe_u32 v3, v0, 4, 1
v_bfe_u32 v4, v0, 5, 1
v_lshl_add_u32 v5, v2, 2, v1
v_lshl_add_u32 v5, v3, 4, v5
v_lshl_add_u32 v5, v4, 3, v5
v_mul_u32_u24 v5, 1152, v5
s_add_u32 s{sM}, s{sM}, 128
v_add_u32 v{VWO+2}, s{sM}, v5
v_lshl_add_u32 v5, v3, 2, v1
v_lshl_add_u32 v2, v4, 1, v2
v_mul_u32_u24 v2, 72, v2
v_add_u32 v5, v5, v2
v_mul_u32_u24 v5, 1152, v5
v_add_u32 v{VWO+3}, s{sM}, v5
s_and_b32 s55, s{sWAVE}, 3
s_lshl_b32 s57, s55, 3
""")
    rho(56)
    a(f"s_add_u32 s56, s56, s{55 if quad else sV}")

def rho(dst):
    few, many = (sRB, sHG) if OPT["mapping"] == 48 else (sHG, sRB)
    if OPT["mapping"] > 99:
        a(f"s_cmp_eq_u32 s{sBR}, {0 if OPT['mapping'] == 8448 else 1}\ns_cselect_b32 s{sT}, s{sHG}, s{sRB}\ns_cselect_b32 s{sT2}, s{sRB}, s{sHG}")
        few, many = sT, sT2
    a(f"s_lshl_b32 s{dst}, s{few}, 1\ns_add_u32 s{dst}, s{dst}, s{many}\ns_lshl_b32 s{dst}, s{dst}, 1")
    if not OPT.get("worot", 1):
        a(f"s_mov_b32 s{dst}, 0")

def wo_chunk(left, fadd):
    if left:
        a(f"s_mul_i32 s{sK}, s{sV}, {288*1152}\ns_add_u32 s{sK}, s{sK}, {64*1152}")
        steps = (4, 140, 4); v8, v2 = VWO + 1, VWO + 3
    else:
        a(f"""
s_add_u32 s{sT}, s56, {fadd}
s_bfe_u32 s{sK}, s{sT}, 0x30001
s_mul_i32 s{sK}, s{sK}, {72*1152}
s_bitcmp1_b32 s{sT}, 0
s_cselect_b32 s{sT}, {32*1152}, 0
s_add_u32 s{sK}, s{sK}, s{sT}
""")
        steps = (16, -8, 16); v8, v2 = VWO, VWO + 2
    a(f"s_mov_b32 s{sT2}, s{sK}")
    for j in range(4):
        dma(v8, SWO, f"s{sK}")
        a("s_addk_i32 m0, 1024")
        a(f"s_add_u32 s{sK}, s{sK}, {steps[j]*1152 & 0xffffffff}" if j < 3 else "s_nop 0")
    dma(v2, SWO, f"s{sT2}")
    return 5

def wo_issue(q):
    packed = sum((WO[2 + 4*q + w] // 1024) << (8 * w) for w in range(4))
    a(f"s_lshr_b32 s{sT}, {packed}, s57\ns_and_b32 s{sT}, s{sT}, 0xff\ns_lshl_b32 m0, s{sT}, 10")
    return wo_chunk(False, 4*q)

def wo_pair(g):
    a(f"s_mul_i32 s{sT}, s{sV}, {WO[2*g+1] - WO[2*g] & 0xffffffff}\ns_add_u32 m0, s{sT}, {WO[2*g]}")
    return wo_chunk(g == 0, 2*g - 2)

def sync_setup():
    a(f"""
s_lshl_b32 s{sT}, s{sBR}, 4
s_add_u32 s{sT}, s{sT}, s{sRB}
s_lshl_b32 s{sT2}, s{sT}, 8
s_add_u32 s{sT2}, s{sT2}, {WS_CNT}
s_add_u32 s{sOC}, s{SWS}, s{sT2}
s_addc_u32 s{sOC+1}, s{SWS+1}, 0
s_lshl_b32 s{sT}, s{sT}, 2
s_add_u32 s98, s{sT}, 32
s_lshl_b32 s99, s{sHG}, 2
s_mul_i32 s{sT2}, s{sHG}, {KV_ST}
s_add_u32 s{sT2}, s{sT2}, {WS_KV + 6144}
s_add_u32 s{sKC}, s{SWS}, s{sT2}
s_addc_u32 s{sKC+1}, s{SWS+1}, 0
""")

def loader_tail(tag, late=()):
    if tag[1] == "X":
        flag_check(sFO, 98, f"L_{tag}_fo")
    a("s_barrier")
    stamp()
    for g in late:
        wo_pair(g)
    if tag[1] == "X":
        a(f"s_cmp_eq_u32 s{sWAVE}, 6\ns_cbranch_scc0 L_{tag}_oc_x")
        arrive_wait(sOC, 8, f"L_{tag}_oc")
    a("s_waitcnt vmcnt(0)")
    stamp()
    a("s_barrier")
    stamps_out(4 if tag == "AW" else -1)
    a("s_endpgm")

def a_loader(kind):
    a(f"L_A{kind}1:")
    m = M0(42)
    issue = (lambda c: w_issue("A", c, m)) if kind == "W" else (lambda c: x_issue("A", c, m))
    if OPT.get("prepass"):
        a("s_mov_b32 s58, s90\ns_mov_b32 s59, s91")
        n_ = {}
        for c in range(1, 18):
            if OPT["prepass"] == 2:
                a("s_mov_b32 s90, s58\ns_mov_b32 s91, s59")
            n_[c] = issue(c)
            a(f"s_waitcnt vmcnt({n_[c] + n_.get(c-1, 0)})")
            if c in (4, 9):
                stamp()
        a("s_waitcnt vmcnt(0)")
        stamp()
        a("s_barrier\ns_mov_b32 s90, s58\ns_mov_b32 s91, s59")
        m.cur = None
        issue(0)
    pre = 1 if OPT.get("early") and kind == "W" else 2
    cnt = {c: issue(c) for c in range(1, pre + 1)}
    stamp()
    x_lane(8, 9, 1)
    rd_lanes(36, 12, 1, 2)
    a(f"""
v_add_u32 v8, {A_X0 + 8*2048}, v8
v_add_u32 v9, {A_X0 + 8*2048}, v9
s_lshl_b32 s{sT}, s{sV}, 6
v_xor_b32 v10, s{sT}, v36
v_add_u32 v10, {4096 if kind == 'W' else 8192}, v10
v_xor_b32 v11, 32, v10
v_add_u32 v12, {12288 if kind == 'W' else 13312}, v12
v_add_u32 v13, {4*A_WSLOT}, v10
v_add_u32 v14, {4*A_WSLOT}, v11
v_add_u32 v15, {4*A_WSLOT}, v12
s_lshl_b32 s{sT}, s{sV}, 10
s_add_u32 s{sT}, s{sT}, {A_EX + (0 if kind == 'W' else 2560)}
v_lshlrev_b32 v7, 3, v0
v_add_u32 v6, s{sT}, v7
v_add_u32 v7, {A_EX + (2048 if kind == 'W' else 4608)}, v7
""")
    stamp()
    a(f"s_waitcnt vmcnt({sum(cnt.values())})\ns_barrier")
    stamp()
    extra = 0
    for i in range(-1, 17):
        ks = i + 1
        slot = ks % 5
        off = 0 if slot == 4 else slot * A_WSLOT
        ad = (13, 14, 15) if slot == 4 else (10, 11, 12)
        a(f"ds_read_b128 v[40:43], v{8 + ks % 2} offset:{(ks//2 % 3)*A_XSLOT}")
        for j in range(3 if OPT.get("nohalo", 0) < 2 else 0):
            a(tr(44 + 4*j, ad[j], off)); a(tr(46 + 4*j, ad[j], off + (1024 if j < 2 else 256)))
        if i == -1 and pre == 1:
            cnt[2] = issue(2)
        if i + 4 <= 17:
            cnt[i+4] = issue(i + 4)
        a("s_waitcnt lgkmcnt(0)")
        for j in range(3 if not OPT.get("nohalo") else 0):
            c = 60 + 4*j if ks else "0"
            a(mf(60 + 4*j, 44 + 4*j, 40, c) if kind == "W" else mf(60 + 4*j, 40, 44 + 4*j, c))
        if i == 1:
            srds_rest(); sync_setup()
        if i == 2:
            wo_setup(True)
        if i == 14 and kind == "W":
            extra += wo_pair(0)
        if i == 15:
            extra += wo_issue(0)
        if i + 1 <= 16:
            left = sum(cnt.get(c, 0) for c in range(i + 3, min(i + 4, 17) + 1)) + extra
            a(f"s_waitcnt vmcnt({left})\ns_barrier")
            if OPT.get("fine") and kind == "W" and i % 2 == 1 and 0 < i < 14:
                stamp()
    for j in range(3):
        a(cv(44 + 2*j, 60 + 4*j)); a(cv(45 + 2*j, 62 + 4*j))
    if kind == "W":
        a("v_mov_b32 v50, 0\nv_mov_b32 v51, 0")
        a("v_permlane32_swap_b32 v48, v50\nv_permlane32_swap_b32 v49, v51")
    a("ds_write_b64 v6, v[44:45]\nds_write_b64 v6, v[46:47] offset:512")
    a(f"ds_write_b64 v7, {'v[50:51]' if kind == 'W' else 'v[48:49]'}")
    stamp()
    a("s_waitcnt lgkmcnt(0)\ns_barrier")
    if kind == "X":
        flag_load(sFO, 98)
    wo_issue(1); wo_issue(2); wo_issue(3)
    stamp()
    loader_tail("A" + kind)

def o_store_addr(vfull, vleft, tmp, left_lo):
    a(f"""
s_lshl_b32 s{sT}, s{sRB}, 3
s_lshl_b32 s{sT2}, s{sWAVE}, 1
s_add_u32 s{sT}, s{sT}, s{sT2}
s_mul_i32 s{sT}, s{sT}, 18432
s_mul_i32 s{sT2}, s{sBR}, {O_BR}
s_add_u32 s58, s{sT}, s{sT2}
s_lshl_b32 s{sT2}, s{sHG}, 11
s_add_u32 s{sT2}, s{sT2}, s58
v_lshl_add_u32 v{vfull}, v0, 4, s{sT2}
s_lshr_b32 s{sT2}, s{sHG}, 2
s_add_u32 s{sT2}, s{sT2}, 16
s_lshl_b32 s{sT2}, s{sT2}, 10
s_add_u32 s{sT}, s58, s{sT2}
s_and_b32 s{sT2}, s{sHG}, 3
s_lshl_b32 s{sT2}, s{sT2}, 8
s_add_u32 s{sT}, s{sT}, s{sT2}
v_and_b32 v{vleft}, 15, v0
v_lshlrev_b32 v{vleft}, 4, v{vleft}
v_bfe_u32 v{tmp}, v0, 4, 1
v_lshl_add_u32 v{vleft}, v{tmp}, 3, v{vleft}
v_add_u32 v{vleft}, s{sT}, v{vleft}
v_mov_b32 v{tmp}, {OOB}
""")
    x, y = (tmp, vleft) if left_lo else (vleft, tmp)
    a(f"v_cndmask_b32 v{vleft}, v{x}, v{y}, s[{sG01}:{sG01+1}]")

def o_store(of, vfull, vleft, rt):
    so = f"s{sK}" if rt else "0"
    if rt:
        a(f"s_movk_i32 s{sK}, 18432")
    a(f"buffer_store_dwordx4 {vr(of,4)}, v{vfull}, s[{SWS}:{SWS+3}], {so} offen sc1")
    a(f"buffer_store_dwordx4 {vr(of+4,4)}, v{vfull}, s[{SWS}:{SWS+3}], {so} offen offset:1024 sc1")
    a(f"buffer_store_dwordx2 {vr(of+8,2)}, v{vleft}, s[{SWS}:{SWS+3}], {so} offen sc1")

def gap_touch(tag, parts):
    if not OPT.get("touch"):
        return
    nt = " nt" if OPT.get("tnt") else ""
    a(f"""
s_cmp_eq_u32 s{sWAVE}, 1
s_cbranch_scc1 L_{tag}_tw
s_cmp_eq_u32 s{sWAVE}, 2
s_cbranch_scc0 L_{tag}_tx
s_and_b32 s{sT}, s{sRB}, 7
s_cmp_eq_u32 s{sT}, 0
s_cselect_b32 s{sT}, 9, s{sT}
s_sub_u32 s{sT}, s{sT}, 1
s_lshl_b32 s{sT}, s{sT}, 7
s_and_b32 s{sT2}, s{sHG}, 3
s_lshl_b32 s{sT2}, s{sT2}, 5
s_lshl_b32 s{sT3}, s{sRB}, 7
s_add_u32 s{sT2}, s{sT2}, s{sT3}
v_and_b32 v1, 31, v0
v_add_u32 v1, s{sT2}, v1
v_mul_u32_u24 v1, 1152, v1
""")
    srd(SX, 36, 2359296)
    a(f"""
buffer_load_dword v26, v1, s[{SX}:{SX+3}], s{sT} offen{nt}
s_branch L_{tag}_tx
L_{tag}_tw:
s_and_b32 s{sT}, s{sHG}, 3
s_lshl_b32 s{sT}, s{sT}, 1
s_cmp_eq_u32 s{sT}, 0
s_cselect_b32 s{sT}, 9, s{sT}
s_sub_u32 s{sT}, s{sT}, 1
s_lshl_b32 s{sT}, s{sT}, 3
s_and_b32 s{sT2}, s{sRB}, 7
s_add_u32 s{sT}, s{sT}, s{sT2}
s_mul_i32 s{sT}, s{sT}, {8*3456}
s_add_u32 s{sT}, s{sT}, s{sM}
v_lshrrev_b32 v1, 3, v0
v_mul_u32_u24 v1, 3456, v1
v_bfe_u32 v2, v0, 1, 2
v_min_u32 v2, {parts-1}, v2
v_mul_u32_u24 v2, 1152, v2
v_and_b32 v3, 1, v0
v_mul_u32_u24 v3, 140, v3
v_add3_u32 v1, v1, v2, v3
""")
    srd(SW, 38, 1990656)
    a(f"buffer_load_dword v26, v1, s[{SW}:{SW+3}], s{sT} offen offset:{1152*(3-parts)}{nt}\nL_{tag}_tx:")

def init_stores(tag, with_kv):
    if OPT.get("skew"):
        a(f"v_mov_b32 v2, s{sST}\ns_lshl_b32 s{sT}, s2, 2\ns_add_u32 s{sT}, s{sT}, 0x6f0000\nv_mov_b32 v1, s{sT}\nbuffer_store_dword v2, v1, s[{SWS}:{SWS+3}], 0 offen sc1")
    if OPT.get("xcc"):
        a(f"s_getreg_b32 s{sT}, hwreg(HW_REG_XCC_ID, 0, 4)\nv_mov_b32 v2, s{sT}\ns_lshl_b32 s{sT}, s2, 2\ns_add_u32 s{sT}, s{sT}, 0x6f0000\nv_mov_b32 v1, s{sT}\nbuffer_store_dword v2, v1, s[{SWS}:{SWS+3}], 0 offen sc1")
    a(f"""
s_or_b32 s{sT}, s{sHG}, s{sWAVE}
s_cmp_eq_u32 s{sT}, 0
s_cselect_b32 s55, 1, 0
v_mov_b32 v20, 0
v_mov_b32 v21, 0
v_mov_b32 v22, 0
v_mov_b32 v23, 0
s_cbranch_scc0 L_{tag}_i1
s_lshl_b32 s{sT}, s{sBR}, 4
s_add_u32 s{sT}, s{sT}, s{sRB}
s_lshl_b32 s{sT}, s{sT}, 8
s_add_u32 s{sT}, s{sT}, {WS_CNT}
v_mov_b32 v24, s{sT}
buffer_store_dword v20, v24, s[{SWS}:{SWS+3}], 0 offen sc1
L_{tag}_i1:
""")
    if with_kv:
        a(f"""
s_or_b32 s{sT}, s{sRB}, s{sWAVE}
s_cmp_eq_u32 s{sT}, 0
s_cbranch_scc0 L_{tag}_i2
s_or_b32 s55, s55, 2
s_mul_i32 s{sT}, s{sHG}, {KV_ST}
s_add_u32 s{sT}, s{sT}, {WS_KV}
v_lshl_add_u32 v24, v0, 4, s{sT}
""")
        for j in range(7):
            a(f"s_movk_i32 s{sK}, {1024*j}\nbuffer_store_dwordx4 v[20:23], v24, s[{SWS}:{SWS+3}], s{sK} offen sc1")
        a(f"L_{tag}_i2:")

def init_flags(tag):
    a(f"""
s_waitcnt vmcnt(0)
s_cmp_eq_u32 s55, 0
s_cbranch_scc1 L_{tag}_f2
v_mov_b32 v20, 1
s_bitcmp1_b32 s55, 0
s_cbranch_scc0 L_{tag}_f1
s_lshl_b32 s{sT}, s{sBR}, 4
s_add_u32 s{sT}, s{sT}, s{sRB}
s_lshl_b32 s{sT}, s{sT}, 2
s_add_u32 s{sT}, s{sT}, 32
v_mov_b32 v24, s{sT}
buffer_store_dword v20, v24, s[{SDBG}:{SDBG+3}], 0 offen sc1
L_{tag}_f1:
s_bitcmp1_b32 s55, 1
s_cbranch_scc0 L_{tag}_f2
s_lshl_b32 s{sT}, s{sHG}, 2
v_mov_b32 v25, s{sT}
buffer_store_dword v20, v25, s[{SDBG}:{SDBG+3}], 0 offen sc1
L_{tag}_f2:
""")

def kstep(tiles, nxt_reads, first, waits):
    pend = list(first)
    for t, (m0_, m1_) in enumerate(tiles):
        if t in waits:
            a(waits[t])
        a(m0_)
        for x in pend: a(x)
        a(m1_)
        pend = []
        if nxt_reads:
            a(nxt_reads[t][0]); pend = [nxt_reads[t][1]]
    for x in pend: a(x)

def a_consumer():
    acc = lambda t, rt: 144 + (t * 2 + rt) * 4
    wf = lambda t: 88 + 4 * t
    xf = lambda buf, rt: 72 + buf * 8 + rt * 4
    R8, R2, R8b, R2b, aX = 1, 5, 6, 10, 11
    vOF, vOL, vEXW, vEXR = 13, 14, 15, 16
    MC, MP, MPF, PM = 56, 60, 64, 68
    a("L_AC:\ns_waitcnt lgkmcnt(0)")
    gap_touch("AC", 3)
    srds_rest()
    init_stores("AC", False)
    rd_lanes(R8, R2, 17, 18); x_lane(aX, aX + 1, 17)
    for j in range(5):
        a(f"v_add_u32 v{R8b+j}, {4*A_WSLOT}, v{R8+j}")
    a(f"""
s_lshl_b32 s{sT}, s{sWAVE}, 12
s_add_u32 s{sT}, s{sT}, {A_X0}
v_add_u32 v{aX}, s{sT}, v{aX}
v_add_u32 v{aX+1}, s{sT}, v{aX+1}
s_lshr_b32 s{sT}, s{sWAVE}, 1
s_lshl_b32 s{sT}, s{sT}, 3
v_and_b32 v17, 15, v0
v_xor_b32 v17, s{sT}, v17
v_lshrrev_b32 v18, 4, v0
v_lshlrev_b32 v18, 2, v18
v_xor_b32 v18, s{sT}, v18
v_sub_u32 v17, v17, v18
v_mov_b32 v19, {NEG}
s_and_b32 s{sT}, s{sWAVE}, 1
s_or_b32 s{sT}, s{sT}, s{sRB}
s_cmp_eq_u32 s{sT}, 0
s_cselect_b64 s[42:43], -1, 0
""")
    for r in range(4):
        a(f"""
v_subrev_u32 v18, {r}, v17
v_cmp_gt_u32 vcc, 8, v18
v_cndmask_b32 v{MC+r}, v19, 0, vcc
v_cmp_gt_i32 vcc, -8, v18
v_cndmask_b32 v{MP+r}, v19, 0, vcc
v_cndmask_b32 v{MPF+r}, v{MP+r}, v19, s[42:43]
v_cmp_lt_i32 vcc, -1, v18
v_mov_b32 v20, {'0xffff' if r % 2 == 0 else '0xffff0000'}
v_cndmask_b32 v20, 0, v20, vcc
""")
        a(f"v_mov_b32 v{PM + r//2}, v20" if r % 2 == 0 else f"v_or_b32 v{PM + r//2}, v{PM + r//2}, v20")
    o_store_addr(vOF, vOL, 17, True)
    a(f"""
s_lshr_b32 s{sT}, s{sWAVE}, 1
s_add_u32 s{sT}, s{sT}, 1
s_mul_i32 s{sT}, s{sT}, 5120
s_bitcmp1_b32 s{sWAVE}, 0
s_cselect_b32 s{sT3}, s{sT}, 0
v_lshlrev_b32 v17, 3, v0
v_add_u32 v17, {A_EX}, v17
v_add_u32 v{vEXW}, s{sT}, v17
v_add_u32 v{vEXR}, s{sT3}, v17
""")

    def wreads(ks, t):
        slot = ks % 5
        o = 0 if slot == 4 else slot * A_WSLOT
        r8, r2 = (R8b, R2b) if slot == 4 else (R8, R2)
        if t == 4 or t == 13:
            o += 12288 if t == 4 else 13312
            return [tr(wf(t), r2, o), tr(wf(t) + 2, r2, o + 256)]
        s, j = (0, t) if t < 4 else (1, t - 5) if t < 9 else (2, t - 9)
        return [tr(wf(t), r8 + j, o + 4096*s), tr(wf(t) + 2, r8 + j, o + 4096*s + 1024)]
    xread = lambda ks, rt: f"ds_read_b128 {vr(xf(ks % 2, rt),4)}, v{aX + ks % 2} offset:{(ks//2 % 3)*A_XSLOT + rt*2048}"

    if OPT.get("prepass"):
        a("s_barrier")
    stamp()
    a("s_barrier")
    stamp()
    a(xread(0, 0)); a(xread(0, 1))
    for t in range(14):
        for x in wreads(0, t): a(x)
    for ks in range(18):
        if ks < 17:
            a("s_barrier")
        if OPT.get("fine") == 2 and ks in (2, 5, 8, 11, 14):
            stamp()
        if OPT.get("ret") and ks == 1:
            a(f"s_lshl_b32 s40, s2, 10\ns_lshl_b32 s41, s{sWAVE}, 8\ns_add_u32 s40, s40, s41\ns_add_u32 s40, s40, 0x580000\ns_add_u32 s40, s40, s{SWS}\ns_addc_u32 s41, s{SWS+1}, 0")
            if OPT["ret"] == 1:
                a("v_mov_b32 v28, 0\nglobal_load_dword v29, v28, s[40:41]")
        if OPT.get("ret") and ks == OPT.get("at", 7):
            if OPT["ret"] == 2:
                a("v_mov_b32 v28, 0\nglobal_load_dword v29, v28, s[40:41]\ns_waitcnt vmcnt(0)")
            a("s_waitcnt lgkmcnt(0)\ns_memtime s[100:101]\ns_waitcnt lgkmcnt(0)\ns_load_dword s38, s[40:41], 64\ns_waitcnt lgkmcnt(0)")
            stamp()
            j_ = sST + 2*(nstamp[0]-1)
            a(f"s_waitcnt lgkmcnt(0)\ns_sub_u32 s{j_}, s{j_}, s100\ns_lshl_b32 s{j_}, s{j_}, 3\ns_add_u32 s{j_}, s{j_}, s100")
        if OPT.get("dummy") == ks:
            if OPT.get("dpre"):
                a("s_getpc_b64 s[38:39]\nv_lshlrev_b32 v28, 7, v0\nv_min_u32 v28, 2304, v28\nglobal_load_dword v29, v28, s[38:39]\ns_waitcnt vmcnt(0)")
            a("s_waitcnt lgkmcnt(0)\ns_memtime s[100:101]\ns_memrealtime s[40:41]\ns_waitcnt lgkmcnt(0)")
            for n in range(128):
                kind = OPT.get("dkind", 0)
                if kind == 0:
                    a(mf(28 + 4 * (n % 4), 88, 72, "0"))
                elif kind == 1:
                    a(f"v_add3_u32 v{28 + n % 8}, v0, v0, v0\nv_add3_u32 v{36 + n % 8}, v0, v0, v0")
                else:
                    a(f"ds_read_b128 v[{28 + 4 * (n % 4)}:{31 + 4 * (n % 4)}], v{aX} offset:0")
            a("s_waitcnt lgkmcnt(0)")
            stamp()
            a("s_waitcnt lgkmcnt(0)")
            if not OPT.get("cyc"):
                a(f"s_sub_u32 s40, s{sST + 2*(nstamp[0]-1)}, s40\ns_add_u32 s{sST + 2*(nstamp[0]-1)}, s{sST}, s40")
        if ks == 3:
            init_flags("AC")
        tiles = []
        for t in range(14):
            c = lambda rt: acc(t, rt) if ks else "0"
            tiles.append([mf(acc(t, rt), wf(t), xf(ks % 2, rt), c(rt)) if t < 9 else mf(acc(t, rt), xf(ks % 2, rt), wf(t), c(rt)) for rt in range(2)])
        if ks < 17:
            nxt = [wreads(ks + 1, t) for t in range(14)]
            nxt[1] = [nxt[1][0], nxt[1][1] + "\n" + xread(ks + 1, 1)]
            kstep(tiles, nxt, [xread(ks + 1, 0)], {0: "s_waitcnt lgkmcnt(14)", 7: "s_waitcnt lgkmcnt(15)", 12: "s_waitcnt lgkmcnt(15)"})
        else:
            kstep(tiles, None, [], {0: "s_waitcnt lgkmcnt(14)", 7: "s_waitcnt lgkmcnt(0)"})
    stamp()
    KP = lambda j: 18 + 10 * j
    QT = lambda rt, h: 88 + 16 * rt + 4 * h
    VP = lambda t, j: 120 + 6 * t + 2 * j if t < 4 else 48 + 2 * j
    ONE = 72
    def pack_kv(rt):
        o = []
        for q in range(2):
            o += [cv(QT(rt, 3) + 2 + q, acc(4, rt) + 2*q), f"v_mov_b32 v{KP(1+rt) + 8 + q}, 0"]
        for tau in range(4):
            o += [cv(KP(1+rt) + 2*tau + q, acc(5+tau, rt) + 2*q) for q in range(2)]
        o += [f"v_permlane32_swap_b32 v{QT(rt,3) + 2 + q}, v{KP(1+rt) + 8 + q}" for q in range(2)]
        for t in range(5):
            o += [cv(VP(t, 1+rt) + q, acc(9+t, rt) + 2*q) for q in range(2)]
        return o
    def pack_q(rt):
        o = []
        for t in range(4):
            for q in range(2):
                d = QT(rt, t) + q
                o.append(cv(d, acc(t, rt) + 2*q))
                if (t, q) in SPLITS:
                    m = SPLITS[(t, q)]; lo = QT(rt, t-1) + 2 + q
                    o += [f"v_cndmask_b32 v{lo}, 0, v{d}, s[{m}:{m+1}]", f"v_xor_b32 v{d}, v{d}, v{lo}"]
        return o + [f"v_mov_b32 v{QT(rt,0) + 3}, 0"]
    weave([], pack_kv(1))
    a(f"s_bitcmp1_b32 s{sWAVE}, 0\ns_cbranch_scc1 L_AC_nodump")
    for j in range(5):
        a(f"ds_write_b64 v{vEXW}, {vr(KP(2) + 2*j, 2)} offset:{512*j}")
        a(f"ds_write_b64 v{vEXW}, {vr(VP(j, 2), 2)} offset:{512*(5+j)}")
    a("L_AC_nodump:")
    weave([], pack_kv(0) + pack_q(1))
    a("s_waitcnt lgkmcnt(0)\ns_barrier")
    for j in range(5):
        a(f"ds_read_b64 {vr(KP(0) + 2*j, 2)}, v{vEXR} offset:{512*j}")
        a(f"ds_read_b64 {vr(VP(j, 0), 2)}, v{vEXR} offset:{512*(5+j)}")
    SC = lambda rt, h: (224 if rt else 184) + 8 * h
    MX = lambda rt: [76 + 4 * rt + h for h in range(4)]
    PT = lambda rt, h: 144 + 16 * rt + 4 * h
    def qk(rt):
        o = []
        for h in range(4):
            o += [mf(SC(rt, h), KP(1+rt) + 2*h, QT(rt, h), MC), mf(SC(rt, h) + 4, KP(rt) + 2*h, QT(rt, h), MP if rt else MPF)]
        return o
    def rowmax(rt):
        o = []
        for h in range(4):
            s = SC(rt, h); m = MX(rt)[h]
            o += [f"v_max_f32 v{s+r}, v{s+r}, v{s+4+r}" for r in range(4)]
            o += [f"v_max3_f32 v{m}, v{s}, v{s+1}, v{s+2}", f"v_max_f32 v{m}, v{m}, v{s+3}"]
        return o
    def xmax(rt):
        m = MX(rt)
        return [f"v_permlane32_swap_b32 v{m[0]}, v{m[1]}", f"v_permlane32_swap_b32 v{m[2]}, v{m[3]}",
                f"v_max_f32 v{m[0]}, v{m[0]}, v{m[1]}", f"v_max_f32 v{m[2]}, v{m[2]}, v{m[3]}",
                f"v_permlane16_swap_b32 v{m[0]}, v{m[2]}", f"v_max_f32 v{m[0]}, v{m[0]}, v{m[2]}",
                f"v_mul_f32 v{m[0]}, s{sT2}, v{m[0]}", f"v_mov_b32 v{m[2]}, v{m[0]}",
                f"v_permlane16_swap_b32 v{m[0]}, v{m[2]}", f"v_mov_b32 v{m[1]}, v{m[0]}", f"v_mov_b32 v{m[3]}, v{m[2]}",
                f"v_permlane32_swap_b32 v{m[0]}, v{m[1]}", f"v_permlane32_swap_b32 v{m[2]}, v{m[3]}"]
    def probs(rt):
        o = []
        for h in range(4):
            s = SC(rt, h); p = PT(rt, h)
            o += [f"v_fma_f32 v{s+r}, v{s+r}, s{sT}, v{MX(rt)[h]}" for r in range(4)]
            o += [f"v_exp_f32 v{s+r}, v{s+r}" for r in range(4)]
            if h:
                o += split(rt, h - 1)
        return o + split(rt, 3)
    def split(rt, h):
        s = SC(rt, h); p = PT(rt, h); o = []
        for q in range(2):
            o += [cv(p + q, s + 2*q), f"v_and_b32 v{p+2+q}, v{p+q}, v{PM+q}", f"v_xor_b32 v{p+q}, v{p+q}, v{p+2+q}"]
        return o
    OB = lambda rt, t: (224 if rt else 184) + 4 * t
    OA = lambda rt, t: (224 if rt else 184) + 12 + 4 * t
    SM = lambda rt, h: 88 + 16 * rt + 4 * h
    OF = lambda rt: 18 + 10 * rt
    def pv(rt):
        o = [mf(SM(rt, h), ONE, PT(rt, h), "0") for h in range(4)]
        for t in range(5):
            if t < 4: o.append(mf(OB(rt, t), VP(t, rt), PT(rt, t), "0"))
            if t > 0: o.append(mf(OA(rt, t), VP(t, rt), PT(rt, t-1), "0"))
        return o
    def finish(rt):
        o = [f"v_rcp_f32 v{SM(rt,h)}, v{SM(rt,h)}" for h in range(4)]
        for t in range(5):
            for q in range(2):
                d = OF(rt) + 2*t + q
                srcs = []
                if t < 4: srcs.append((OB(rt, t) + 2*q, SM(rt, t), d))
                if t == 4: srcs.append((OA(rt, t) + 2*q, SM(rt, 3), d))
                if (t, q) in SPLITS: srcs.append((OA(rt, t) + 2*q, SM(rt, t-1), 17))
                for x, inv, dd in srcs:
                    o += [f"v_mul_f32 v{x}, v{x}, v{inv}", f"v_mul_f32 v{x+1}, v{x+1}, v{inv}", cv(dd, x)]
                if (t, q) in SPLITS:
                    m = SPLITS[(t, q)]
                    o.append(f"v_cndmask_b32 v{d}, v{d}, v17, s[{m}:{m+1}]")
        return o
    a(f"s_mov_b32 s{sT}, {f32(CSC)}\ns_mov_b32 s{sT2}, {f32(-CSC)}")
    weave(qk(1), pack_q(0) + [f"v_mov_b32 v{ONE+j}, 0x3f803f80" for j in range(4)])
    a("s_waitcnt lgkmcnt(0)")
    weave(qk(0), rowmax(1))
    x1, x0 = xmax(1), xmax(0)
    r0 = rowmax(0)
    for i, x in enumerate(x1):
        a(x)
        for y in r0[2*i:2*i+2]: a(y)
    p1 = probs(1)
    for i, x in enumerate(x0):
        a(x)
        for y in p1[2*i:2*i+2]: a(y)
    weave([], p1[2*len(x0):])
    weave(pv(1), probs(0))
    weave(pv(0), finish(1))
    o_store(OF(1), vOF, vOL, 1)
    weave([], finish(0))
    o_store(OF(0), vOF, vOL, 0)
    stamp()
    a("s_branch L_P2")

def phi(r, n, t):
    o = [f"v_pk_fma_f32 {vr(t+j,2)}, {vr(r+j,2)}, s[56:57], v[14:15]" for j in range(0, n, 2)]
    for j in range(n):
        o += [f"v_exp_f32 v{t+j}, v{t+j} clamp", f"v_max_f32 v{r+j}, s{sT2}, v{r+j}"]
    return o + [f"v_pk_add_f32 {vr(r+j,2)}, {vr(r+j,2)}, {vr(t+j,2)}" for j in range(0, n, 2)]

def b_consumer():
    acc = lambda t, rt: 184 + (t * 2 + rt) * 4
    wf = lambda t: 148 + 4 * t
    xf = lambda ks, rt: 52 + ks * 8 + rt * 4 if ks < 12 else 36 + (ks % 2) * 8 + rt * 4
    R8, R2, aX = 1, 5, 6
    vOF, vOL, vEX = 8, 9, 10
    CK, CS = 28, 32
    a("L_BC:\ns_waitcnt lgkmcnt(0)")
    gap_touch("BC", 2)
    srds_rest()
    init_stores("BC", True)
    rd_lanes(R8, R2, 17, 18); x_lane(aX, aX + 1, 17)
    a(f"""
s_lshl_b32 s{sT}, s{sWAVE}, 12
s_add_u32 s{sT}, s{sT}, {B_X0}
v_add_u32 v{aX}, s{sT}, v{aX}
v_add_u32 v{aX+1}, s{sT}, v{aX+1}
v_and_b32 v17, 15, v0
v_cmp_gt_u32 vcc, 8, v17
v_mov_b32 v18, {EPS}
s_mov_b64 s[42:43], vcc
s_mul_i32 s{sT}, s{sWAVE}, 10240
s_add_u32 s{sT}, s{sT}, {B_EX}
v_lshl_add_u32 v{vEX}, v0, 4, s{sT}
v_mov_b32 v14, {f32(-1e-6*LOG2E)}
v_mov_b32 v15, v14
s_mov_b32 s56, {f32(LOG2E)}
s_mov_b32 s57, s56
""")
    for r in range(4):
        a(f"v_mov_b32 v{CK+r}, v18\nv_cndmask_b32 v{CS+r}, 0, v18, vcc")
    o_store_addr(vOF, vOL, 17, False)

    def wreads(ks, t):
        o = (ks % 5) * B_KVSLOT
        if t == 4:
            return [tr(wf(t), R2, o + 8192), tr(wf(t) + 2, R2, o + 8192 + 256)]
        s, j = (0, t) if t < 4 else (1, t - 5)
        return [tr(wf(t), R8 + j, o + 4096*s), tr(wf(t) + 2, R8 + j, o + 4096*s + 1024)]
    xread = lambda ks, rt: f"ds_read_b128 {vr(xf(ks, rt),4)}, v{aX + ks % 2} offset:{(ks//2 % 3)*B_XSLOT + rt*2048}"

    stamp()
    a("s_barrier")
    stamp()
    a(xread(0, 0)); a(xread(0, 1))
    for t in range(9):
        for x in wreads(0, t): a(x)
    for ks in range(18):
        if ks < 17:
            a("s_barrier")
        if ks == 3:
            init_flags("BC")
        tiles = [[mf(acc(t, rt), xf(ks, rt), wf(t), acc(t, rt) if ks else (CK if t < 4 else CS if t == 4 else "0")) for rt in range(2)] for t in range(9)]
        if ks < 17:
            nxt = [wreads(ks + 1, t) for t in range(9)]
            nxt[1] = [nxt[1][0], nxt[1][1] + "\n" + xread(ks + 1, 1)]
            kstep(tiles, nxt, [xread(ks + 1, 0)], {0: "s_waitcnt lgkmcnt(12)", 3: "s_waitcnt lgkmcnt(13)", 6: "s_waitcnt lgkmcnt(13)", 8: "s_waitcnt lgkmcnt(11)"})
        else:
            kstep(tiles, None, [], {0: "s_waitcnt lgkmcnt(12)", 3: "s_waitcnt lgkmcnt(0)\ns_barrier"})
    stamp()
    a(f"s_mov_b32 s{sT2}, {EPS}\nv_mov_b32 v16, 0x3f803f80")
    wr = lambda reg, slot: f"ds_write_b128 v{vEX}, {vr(reg,4)} offset:{1024*slot}"
    pk = lambda d, s: [cv(d + j, s + 2*j) for j in range(4)]
    weave([], pk(156, acc(4, 0)) + [f"v_cndmask_b32 v{156+j}, v{156+j}, v16, s[42:43]" for j in range(4)] + [wr(156, 9)])
    xq = lambda ks, rt: 168 + (ks - 12) * 8 + rt * 4 if ks in (12, 13) else acc(2 * (ks - 14) + rt, 1) if ks in (14, 15) else xf(ks, rt)
    reread = lambda ks, rt: f"ds_read_b128 {vr(xq(ks, rt),4)}, v{aX + ks % 2} offset:{(ks//2 % 3)*B_XSLOT + rt*2048}"
    weave([], [reread(ks, rt) for ks in (12, 13) for rt in range(2)])
    for tau in range(5):
        o = phi(acc(tau, 0), 8, 148)
        if tau < 4:
            o = pk(acc(5+tau, 0), acc(5+tau, 0)) + o[:8] + [wr(acc(5+tau, 0), 5 + tau)] + o[8:]
        weave([], o + pk(acc(tau, 0), acc(tau, 0)) + [wr(acc(tau, 0), tau)])
        if tau < 4:
            a(reread(14 + tau // 2, tau % 2))
    for j in range(5):
        a(f"v_add_u32 v{R8+j}, {B_WQ0}, v{R8+j}")
    a("s_waitcnt lgkmcnt(0)\ns_barrier")
    stamp()
    QA = lambda t, rt: 216 + (t * 2 + rt) * 4
    qf = lambda t: 148 + 4 * t
    qbase = lambda p: B_WQ0 if p < 4 else 0 if p < 7 else 15360
    def qreads(p, t):
        o = wq_slot(p) - qbase(p)
        if t == 4:
            return [tr(qf(t), R2, o + 4096), tr(qf(t) + 2, R2, o + 4096 + 256)]
        return [tr(qf(t), R8 + t, o), tr(qf(t) + 2, R8 + t, o + 1024)]
    for t in range(5):
        for x in qreads(0, t): a(x)
    for p in range(18):
        ks = QORD[p]
        if p == 7 or (p == 13 and OPT.get('wob', 0)):
            a("s_barrier")
        tiles = [[mf(QA(t, rt), qf(t), xq(ks, rt), QA(t, rt) if p else CK) for rt in range(2)] for t in range(5)]
        if p < 17:
            nxt = [qreads(p + 1, t) for t in range(5)]
            if qbase(p + 1) != qbase(p):
                d = (qbase(p + 1) - qbase(p)) & 0xffffffff
                for t in range(5):
                    nxt[t][0] = f"v_add_u32 v{R8+t}, {d}, v{R8+t}\n" + nxt[t][0]
            kstep(tiles, nxt, [], {t: f"s_waitcnt lgkmcnt({7 if t else 8})" for t in range(5)})
        else:
            kstep(tiles, None, [], {t: f"s_waitcnt lgkmcnt({8 - 2*t})" for t in range(5)})
    stamp()
    PQ = lambda rt: 36 + 10 * rt
    KO = 84
    tup = {0: KO, 1: KO + 4, 2: KO + 12, 3: KO + 20, 4: KO + 28}
    ZO = KO + 32
    weave([], [f"v_mov_b32 v{r}, 0" for r in (tup[1]+4, tup[1]+5, tup[2]+4, tup[2]+5, tup[3]+4, tup[3]+5, ZO+8, ZO+9)])
    a(f"v_lshlrev_b32 v16, 3, v0\nv_add_u32 v16, {B_KVOP}, v16")
    for t in range(5):
        weave([], phi(QA(t, 0), 8, 148) + [cv(PQ(rt) + 2*t + q, QA(t, rt) + 2*q) for rt in range(2) for q in range(2)])
    stamp()
    a("s_barrier")
    stamp()
    tid = lambda tau, taup: {-1: tau - 1, 0: 4 + tau, 1: 9 + tau}[taup - tau]
    rd = lambda d, slot: a(f"ds_read_b64 {vr(d,2)}, v16 offset:{512*slot}")
    for j, d in enumerate((ZO, ZO + 2, ZO + 4, ZO + 6, ZO + 10)):
        rd(d, 13 + j)
    rd(tup[0], tid(0, 0)); rd(tup[0] + 2, tid(1, 0))
    for t in (1, 2, 3):
        rd(tup[t], tid(t-1, t)); rd(tup[t] + 2, tid(t, t)); rd(tup[t] + 6, tid(t+1, t))
    rd(tup[4], tid(3, 4)); rd(tup[4] + 2, tid(4, 4))
    DN = lambda rt: 148 + 4 * rt
    NM = lambda rt, t: 184 + 20 * rt + 4 * t
    OF = lambda rt: 156 + 10 * rt
    a("s_waitcnt lgkmcnt(13)")
    for k, (zo, po) in enumerate(((0, 0), (4, 4), (8, 6))):
        for rt in range(2):
            a(mf(DN(rt), ZO + zo, PQ(rt) + po, DN(rt) if k else CK))
    a("s_waitcnt lgkmcnt(0)")
    def num(rt):
        o = [mf(NM(rt, t), tup[t], PQ(rt) + 2*(t-1), "0") for t in (1, 2, 3)]
        o += [mf(NM(rt, 0), tup[0], PQ(rt), "0"), mf(NM(rt, 4), tup[4], PQ(rt) + 6, "0")]
        return o + [mf(NM(rt, t), tup[t] + 4, PQ(rt) + 2*t, NM(rt, t)) for t in (1, 2, 3)]
    def fin(rt, packed):
        o = []
        for t in (0, 4, 1, 2, 3):
            for q in range(2):
                inv = DN(rt) + min(t, 3)
                if (t, q) in SPLITS:
                    m = SPLITS[(t, q)]
                    o.append(f"v_cndmask_b32 v17, v{DN(rt)+t}, v{DN(rt)+t-1}, s[{m}:{m+1}]")
                    inv = 17
                n = NM(rt, t) + 2*q
                o += [f"v_mul_f32 v{n}, v{n}, v{inv}", f"v_mul_f32 v{n+1}, v{n+1}, v{inv}", cv(OF(rt) + 2*t + q, n)]
        return o
    weave(num(0), [], 0)
    weave(num(1), [f"v_rcp_f32 v{DN(rt)+h}, v{DN(rt)+h}" for rt in range(2) for h in range(4)], 1)
    for rt in range(2):
        weave([], fin(rt, True))
        o_store(OF(rt), vOF, vOL, rt)
    stamp()

def kv_index(wreg, VS, VG, VZ):
    a(f"s_cmp_eq_u32 s{wreg}, 0\ns_cselect_b32 s58, 4, s{wreg}")
    for slot in range(3):
        if slot == 0:
            a(f"s_lshl_b32 s{sT}, s58, 4\ns_sub_u32 s{sT2}, s{sT}, 16\ns_mov_b64 s[46:47], 0")
        elif slot == 1:
            a(f"s_lshl_b32 s{sT}, s{wreg}, 4\ns_mov_b32 s{sT2}, s{sT}")
        else:
            a(f"s_add_u32 s{sT2}, s{sT}, 16\ns_cmp_eq_u32 s{wreg}, 3\ns_cselect_b32 s{sT2}, 56, s{sT2}\ns_cselect_b64 s[46:47], s[44:45], 0")
        kv_tile(VS and VS + 2*slot, VG and VG + 2*slot, False)
    if VZ:
        kv_z(VZ)

def kv_tile(VS, VG, last):
    a(f"v_add_u32 v3, s{sT2}, v1")
    head_of(4, 3)
    a(f"v_mul_u32_u24 v5, 18, v4\nv_sub_u32 v3, v3, v5\nv_cndmask_b32 v4, v4, 7, s[46:47]")
    if last:
        a("v_cmp_eq_u32 vcc, 0, v1\nv_cndmask_b32 v4, v4, 3, vcc\nv_cndmask_b32 v3, v3, 18, vcc")
    for q in range(2):
        a(f"v_add3_u32 v5, v2, s{sT}, {2*q}")
        head_of(6, 5)
        a("v_cmp_eq_u32 vcc, v4, v6\nv_mad_u32_u24 v5, v5, 19, v3\nv_lshlrev_b32 v5, 2, v5")
        if VS:
            a(f"v_add_u32 v6, {B_STG}, v5\nv_cndmask_b32 v{VS+q}, v8, v6, vcc")
        if VG:
            a(f"v_add_u32 v6, s{sM}, v5\nv_cndmask_b32 v{VG+q}, v9, v6, vcc")

def kv_z(VZ):
    a("v_and_b32 v3, 3, v0")
    for q in range(2):
        a(f"v_add3_u32 v5, v2, s{sT}, {2*q}")
        head_of(6, 5)
        a(f"v_cmp_eq_u32 vcc, v3, v6\nv_mul_u32_u24 v5, 76, v5\nv_add3_u32 v5, v5, s{sM}, 64\nv_add_u32 v5, 8, v5\nv_cndmask_b32 v{VZ+q}, v9, v5, vcc")

def b_loader(kind):
    a(f"L_B{kind}1:")
    m = M0(42)
    issue = (lambda c: w_issue("B", c, m)) if kind == "W" else (lambda c: x_issue("B", c, m))
    pre = 1 if OPT.get("early") and kind == "W" else 2
    cnt = {c: issue(c) for c in range(1, pre + 1)}
    stamp()
    mark = len(a.lines)
    VS, VG, vZS, vEA, vE0, vEL, vLA, vGA, vLW = 72, 80, 98, 99, 100, 101, 102, 103, 105
    if kind == "W":
        a(f"v_subrev_u32 v{VD+5}, 1152, v{VD}\nv_subrev_u32 v{VD+6}, 1152, v{VD+1}")
    srds_rest()
    if kind == "W":
        wo_setup(False)
    else:
        sync_setup()
    a(f"""
s_add_u32 s55, s{sV}, 2
s_mul_i32 s{sM}, s{sHG}, {KV_ST}
s_add_u32 s{sM}, s{sM}, {WS_KV}
v_and_b32 v1, 15, v0
v_lshrrev_b32 v2, 4, v0
v_lshlrev_b32 v2, 2, v2
v_cmp_gt_u32 s[44:45], 8, v1
v_lshlrev_b32 v8, 2, v0
v_add_u32 v8, {B_DUMP}, v8
v_mov_b32 v9, {OOB}
""")
    own = sV if kind == "X" else 55
    if kind == "X":
        kv_index(55, None, VG, VG + 6)
        a(f"s_movk_i32 s{sT}, 64")
        kv_z(10)
    kv_index(own, VS, VG + 8 if kind == "X" else None, VG + 14 if kind == "X" else None)
    a(f"""
v_add_u32 v5, s{sT}, v0
v_mul_u32_u24 v5, 76, v5
v_add_u32 v5, {B_STG + 72}, v5
v_cndmask_b32 v{vZS}, v8, v5, s[{sG0}:{sG0+1}]
v_lshlrev_b32 v{vEL}, 4, v0
v_add_u32 v{vEL}, {B_EX}, v{vEL}
s_lshl_b32 s{sT}, s{own}, 10
v_add_u32 v{vEA}, s{sT}, v{vEL}
s_lshl_b32 s{sT}, s58, 10
v_add_u32 v{vE0}, s{sT}, v{vEL}
""")
    if kind == "X":
        a(f"s_movk_i32 s{sT}, 64\ns_movk_i32 s{sT2}, 56\ns_mov_b64 s[46:47], s[44:45]")
        kv_tile(VS + 6, VG + 16, True)
        a(f"s_cmp_eq_u32 s{sV}, 0\ns_cselect_b64 s[46:47], -1, 0")
        for q in range(2):
            a(f"v_cndmask_b32 v{VS+6+q}, v8, v{VS+6+q}, s[46:47]\nv_cndmask_b32 v{VG+16+q}, v{10+q}, v{VG+16+q}, s[46:47]")
        a(f"""
v_lshlrev_b32 v5, 3, v0
v_add_u32 v5, {B_KVOP}, v5
s_lshl_b32 s{sT2}, s58, 9
s_sub_u32 s{sT2}, s{sT2}, 512
v_add_u32 v{vLW+2}, s{sT2}, v5
s_lshl_b32 s{sT2}, s{sV}, 9
v_add_u32 v{vLW+1}, s{sT2}, v5
v_add_u32 v{vLW}, 1024, v{vLW+1}
s_mul_i32 s{sT2}, s{sV}, {9*512}
v_add_u32 v{vLW+3}, s{sT2}, v5
s_mul_i32 s{sT}, s{sV}, 2816
v_lshl_add_u32 v{vLA}, v0, 2, s{sT}
v_add_u32 v{vGA}, s{sM}, v{vLA}
v_cmp_gt_u32 vcc, {5472 - 2560}, v{vLA}
v_cndmask_b32 v{vGA+1}, v9, v{vGA}, vcc
v_add_u32 v{vLA}, {B_STG}, v{vLA}
v_mov_b32 v4, 0
""")
    a(f"v_mov_b32 v10, {B_LCNT}\nv_mov_b32 v11, 1")
    if kind == "X":
        a("ds_write_b32 v10, v4\ns_waitcnt lgkmcnt(0)")
    setup = a.lines[mark:]
    del a.lines[mark:]
    per = -(-len(setup) // 9)
    a(f"s_waitcnt vmcnt({sum(cnt.values())})\ns_barrier")
    stamp()
    extra = 0
    for i in range(-1, 16):
        if i == -1 and pre == 1:
            cnt[2] = issue(2)
        if i + 4 <= 17:
            cnt[i+4] = issue(i + 4)
        if 0 <= i < 9:
            a("s_cmp_eq_u32 s59, 1")
            a.lines += setup[per*i:per*(i+1)]
            a("s_cselect_b32 s59, 1, 0")
        if i == 10 and kind == "X":
            flag_load(sFO, 98); flag_load(sFK, 99)
        if kind == "W" and i >= 14:
            extra += wq_issue(2*(i-14), m) + wq_issue(2*(i-14) + 1, m)
        left = sum(cnt.get(c, 0) for c in range(i + 3, min(i + 4, 17) + 1)) + extra
        a(f"s_waitcnt vmcnt({left})\ns_barrier")
    a("s_barrier")
    if kind == "W":
        for p in (4, 5, 6, 7, 13, 14, 15, 16, 17):
            wq_issue(p, m)
        a("s_waitcnt vmcnt(15)")
    else:
        flag_check(sFK, 99, "L_BX_fk")
    stamp()
    a("s_barrier")
    stamp()
    if kind == "W":
        for p in range(8, 13):
            wq_issue(p, m)
    KT = lambda s: 40 + 4 * s
    RD = lambda src, j: 112 + 28 * src + 4 * j
    srcs = ((vEA, 0), (vE0, 0), (vE0, 4096), (vEA, 5120), (vEA, 6144), (vEL, 9216), (vEL, 4096))
    prods = ((1, 2), (0, 3), (0, 4), (6, 5), (5, 0))
    if kind == "W":
        srcs = ((vEA, 0), None, (vE0, 4096), (vEA, 5120), (vEA, 6144), (vEL, 9216))
        prods = ((0, 2), (0, 3), (0, 4), None, (5, 0))
    nr = sum(x is not None for x in srcs)
    for src in range(4):
        for j, x in enumerate(srcs):
            if x: a(f"ds_read_b128 {vr(RD(src, j),4)}, v{x[0]} offset:{src*10240 + x[1]}")
    for src in range(4):
        a(f"s_waitcnt lgkmcnt({min(15, nr*(3-src))})")
        for s_, x in enumerate(prods):
            if x: a(mf(KT(s_), RD(src, x[0]), RD(src, x[1]), KT(s_) if src else "0"))
    for s_ in range(4 if kind == "X" else 3):
        for r in range(4):
            a(f"ds_write_b32 v{VS + 2*s_ + r//2}, v{KT(s_)+r} offset:{76*(r%2)}")
    a(f"ds_write_b32 v{vZS}, v{KT(4)}")
    a("s_waitcnt lgkmcnt(0)\ns_mov_b64 exec, 1\nds_add_u32 v10, v11\ns_mov_b64 exec, -1")
    stamp()
    b1, b2, b3 = {0: ((0, 1, 2, 3, 4, 5), (), (6, 7, 8)), 1: ((0, 1, 2), (3, 4, 5, 6, 7, 8), ()), 2: ((0, 1, 2), (3, 4, 5), (6, 7, 8))}[OPT.get("wob", 0)]
    if kind == "W":
        a("s_waitcnt vmcnt(0)\ns_barrier")
        for g in b1: wo_pair(g)
        if b2:
            a("s_barrier")
            for g in b2: wo_pair(g)
        stamp()
        a("s_barrier")
        loader_tail("BW", b3)
        return
    a(f"""
s_mov_b32 s{sT3}, 0x400000
L_BX_st:
ds_read_b32 v2, v10
s_waitcnt lgkmcnt(0)
v_readfirstlane_b32 s{sT}, v2
s_sub_u32 s{sT3}, s{sT3}, 1
s_cbranch_scc1 L_BX_st_x
s_cmp_ge_u32 s{sT}, 4
s_cbranch_scc0 L_BX_st
L_BX_st_x:
""")
    for n in range(11):
        a(f"ds_read_b32 v{40+n}, v{vLA} offset:{256*n}")
    for n in range(11):
        a(f"s_waitcnt lgkmcnt({10-n})")
        a(f"buffer_atomic_add_f32 v{40+n}, v{vGA + (n == 10)}, s[{SWS}:{SWS+3}], 0 offen offset:{256*n}")
    stamp()
    a("s_barrier")
    if b2:
        a("s_barrier")
    a("s_waitcnt vmcnt(0)")
    stamp()
    arrive_wait(sKC, 32, "L_BX_kc")
    stamp()
    for s_ in range(9):
        for r in range(4):
            a(f"buffer_load_dword v{112+4*s_+r}, v{VG + 2*s_ + r//2}, s[{SWS}:{SWS+3}], 0 offen offset:{76*(r%2)} sc1")
    dst = ((vLW, -1), (vLW, 4), (vLW, 9), (vLW, 13), (vLW + 2, 0), (vLW + 1, 4), (vLW + 1, 9), (vLW + 1, 13), (vLW + 3, 8))
    a(f"v_subrev_u32 v11, 512, v{vLW}")
    for s_, (ad, off) in enumerate(dst):
        a(f"s_waitcnt vmcnt({4*(8-s_)})")
        a(cv(40 + 2*s_, 112 + 4*s_)); a(cv(41 + 2*s_, 114 + 4*s_))
        a(f"ds_write_b64 v{11 if off < 0 else ad}, {vr(40+2*s_,2)} offset:{512*max(off, 0)}")
    a("s_waitcnt lgkmcnt(0)")
    stamp()
    a("s_barrier")
    loader_tail("BX")

def p2_consumer():
    OFR = lambda ks, rt: 112 + ks * 8 + rt * 4
    ACC = lambda t, rt: 72 + (t * 2 + rt) * 4
    wf = lambda t: 52 + 4 * t
    R8, R2, vO, vTW, vTR, VS = 1, 5, 6, 7, 8, 9
    AH = OPT["ahead"]
    a("L_P2:")
    nstamp[0] = 10
    rd_lanes(R8, R2, 17, 18)
    for j in range(5):
        a(f"v_add_u32 v{R8+j}, {R1}, v{R8+j}")
    a(f"""
v_lshl_add_u32 v{vO}, v0, 4, s58
s_mul_i32 s{sT}, s{sWAVE}, 4608
s_add_u32 s{sT}, s{sT}, {P_TR}
v_and_b32 v17, 15, v0
v_mul_u32_u24 v17, 144, v17
v_lshrrev_b32 v18, 4, v0
v_lshl_add_u32 v17, v18, 3, v17
v_add_u32 v{vTW}, s{sT}, v17
v_lshl_add_u32 v{vTR}, v0, 4, s{sT}
s_lshr_b32 s{sT}, s{sWAVE}, 1
s_and_b32 s{sT2}, s{sWAVE}, 1
s_lshl_b32 s{sT2}, s{sT2}, 5
s_lshl_b32 s{sT3}, s{sWAVE}, 5
s_cmp_eq_u32 s{sBR}, 0
s_cselect_b32 s42, s{sT}, 0
s_cselect_b32 s43, s{sT2}, s{sT3}
s_cselect_b32 s55, 1, 0
s_lshl_b32 s56, s42, 3
s_lshl_b32 s{sT}, s{sRB}, 7
s_add_u32 s42, s42, s{sT}
s_mul_i32 s{sT}, s{sBR}, 1152
s_mul_i32 s{sT2}, s{sHG}, 144
s_add_u32 s57, s{sT}, s{sT2}
""")
    for n in range(5):
        a(f"""
v_add_u32 v17, {64*n}, v0
v_mul_u32_u24 v18, 7282, v17
v_lshrrev_b32 v18, 16, v18
v_mul_u32_u24 v19, 9, v18
v_sub_u32 v19, v17, v19
v_add_u32 v18, s43, v18
v_xor_b32 v18, s56, v18
v_lshlrev_b32 v18, s55, v18
v_add_u32 v18, s42, v18
v_mul_u32_u24 v18, 2304, v18
v_lshl_add_u32 v18, v19, 4, v18
v_add_u32 v{VS+n}, s57, v18
""")
    a(f"v_mov_b32 v17, {OOB}\nv_cndmask_b32 v{VS+4}, v17, v{VS+4}, s[{sG01}:{sG01+1}]")
    a(f"v_add_u32 v14, 18432, v{vO}")
    SO = [8, 9, 10, 11, 12, 13, 14, 15, 36]
    rho(37)
    a(f"s_movk_i32 s{SO[0]}, 16384")
    for j in range(1, 9):
        a(f"s_add_u32 s{sT}, s37, {2*j-2}\ns_and_b32 s{sT}, s{sT}, 15\ns_lshl_b32 s{SO[j]}, s{sT}, 10")
    a("s_waitcnt vmcnt(0)")
    stamp()
    a("s_barrier\ns_barrier")
    stamp()
    def oload(ks, rt):
        return f"buffer_load_dwordx4 {vr(OFR(ks, rt),4)}, v{14 if rt else vO}, s[{SWS}:{SWS+3}], s{SO[ks//2]} offen offset:{1024*(ks%2)} sc1"
    base = lambda ks: R1 if ks < 3 else 0 if 9 <= ks < 12 else R2_
    R2_ = 43008
    def wreads(ks, t):
        o = WO[ks] - base(ks)
        if t == 4:
            return [tr(wf(t), R2, o + 4096), tr(wf(t) + 2, R2, o + 4096 + 256)]
        return [tr(wf(t), R8 + t, o), tr(wf(t) + 2, R8 + t, o + 1024)]
    for ks in range(AH):
        a(oload(ks, 0)); a(oload(ks, 1))
    for t in range(5):
        for x in wreads(0, t): a(x)
    for ks in range(18):
        tiles = [[mf(ACC(t, rt), wf(t), OFR(ks, rt), ACC(t, rt) if ks else "0") for rt in range(2)] for t in range(5)]
        w0 = f"s_waitcnt vmcnt({2*min(AH - 1, 17 - ks)}) lgkmcnt(8)"
        if ks < 17:
            nxt = [wreads(ks + 1, t) for t in range(5)]
            if base(ks + 1) != base(ks):
                d = (base(ks + 1) - base(ks)) & 0xffffffff
                for t in range(5):
                    nxt[t][0] = f"v_add_u32 v{R8+t}, {d}, v{R8+t}\n" + nxt[t][0]
            first = []
            if ks + AH < 18:
                first = [oload(ks + AH, 0)]
                nxt[1][1] += "\n" + oload(ks + AH, 1)
            kstep(tiles, nxt, first, {t: "s_waitcnt lgkmcnt(7)" if t else w0 for t in range(5)})
        else:
            kstep(tiles, None, [], {t: f"s_waitcnt lgkmcnt({8 - 2*t})" if t else w0 for t in range(5)})
        if ks == 0:
            stamp()
    stamp()
    for rt in range(2):
        for t in range(5):
            d = 20 + 2*(rt*5 + t)
            a(cv(d, ACC(t, rt))); a(cv(d + 1, ACC(t, rt) + 2))
            if t == 4:
                a(f"s_mov_b64 exec, s[{sG01}:{sG01+1}]")
            a(f"ds_write_b64 v{vTW}, {vr(d,2)} offset:{rt*2304 + 32*t}")
            if t == 4:
                a("s_mov_b64 exec, -1")
    a("s_waitcnt lgkmcnt(0)")
    for n in range(5):
        a(f"ds_read_b128 {vr(112+4*n,4)}, v{vTR} offset:{1024*n}")
    for n in range(5):
        a(f"s_waitcnt lgkmcnt({4-n})")
        a(f"buffer_store_dwordx4 {vr(112+4*n,4)}, v{VS+n}, s[{SOUT}:{SOUT+3}], 0 offen")
    stamp()
    stamps_out(0)
    a("s_endpgm")

HEADER = open("concat_heads__sliding_local_dilated__linear_attn_block__prompt.s.ref").read().split("; Override")[0]
out = HEADER + "; @launch grid=(256,1,1) block=(512,1,1) lds=163840\n"
a('.amdgcn_target "amdgcn-amd-amdhsa--gfx950"\n.text')
a(kernel_head(KN))
if OPT["stamps"]:
    for i in range(16):
        a(f"s_mov_b32 s{sST+2*i}, 0")
stamp()
a(f"""
s_cmp_ge_u32 s2, 256
s_cbranch_scc1 L_end
s_and_b32 s{sT}, s2, 7
s_lshr_b32 s{sBR}, s{sT}, 2
{'s_xor_b32 s6, s6, 1' if OPT.get('swap') else ''}
s_mul_i32 s{sT2}, s{sBR}, 24
s_add_u32 s0, s0, s{sT2}
s_addc_u32 s1, s1, 0
s_load_dwordx4 s[36:39], s[0:1], 0
s_load_dwordx2 s[40:41], s[0:1], 16
s_sub_u32 s0, s0, s{sT2}
s_subb_u32 s1, s1, 0
s_load_dwordx4 s[44:47], s[0:1], 48
s_load_dwordx2 s[48:49], s[0:1], 64
v_lshrrev_b32 v1, 6, v0
v_and_b32 v0, 63, v0
v_readfirstlane_b32 s{sWAVE}, v1
s_lshr_b32 s{sT2}, s2, 3
""")
m84 = f"""
s_and_b32 s{sHG}, s{sT2}, 3
s_and_b32 s{sT3}, s{sT}, 1
s_lshl_b32 s{sT3}, s{sT3}, 2
s_add_u32 s{sHG}, s{sHG}, s{sT3}
s_lshr_b32 s{sRB}, s{sT2}, 2
s_and_b32 s{sT3}, s{sT}, 2
s_lshl_b32 s{sT3}, s{sT3}, 2
s_add_u32 s{sRB}, s{sRB}, s{sT3}
"""
m48 = f"""
s_and_b32 s{sHG}, s{sT2}, 7
s_lshr_b32 s{sRB}, s{sT2}, 3
s_and_b32 s{sT3}, s{sT}, 3
s_lshl_b32 s{sT3}, s{sT3}, 2
s_add_u32 s{sRB}, s{sRB}, s{sT3}
"""
if OPT["mapping"] == 84:
    a(m84)
elif OPT["mapping"] == 48:
    a(m48)
else:
    a(m48 + f"s_cmp_eq_u32 s{sBR}, {0 if OPT['mapping'] == 8448 else 1}\ns_cbranch_scc0 L_map" + m84 + "L_map:")
rot = ""
if OPT.get("rot") == 2:
    rot = f"""s_lshr_b32 s90, s2, 1
s_xor_b32 s90, s90, s2
s_and_b32 s90, s90, 1
s_mul_i32 s91, s90, {OPT.get("rotby", 5)*128}
s_mul_i32 s90, s90, {OPT.get("rotby", 5)*64*3456}"""
elif OPT.get("rot") == 3:
    rot = f"""s_lshr_b32 s90, s2, 1
s_xor_b32 s90, s90, s2
s_and_b32 s90, s90, 1
s_mul_i32 s90, s90, 5
s_add_u32 s91, s{sRB}, s{sHG}
s_and_b32 s91, s91, 3
s_add_u32 s90, s90, s91
s_lshl_b32 s91, s90, 7
s_mul_i32 s90, s90, {64*3456}"""
elif OPT.get("rot") == 7:
    rot = f"""s_and_b32 s90, s{sHG}, 3
s_and_b32 s91, s{sRB}, 7
s_lshl1_add_u32 s90, s90, s91
s_cmp_ge_u32 s90, 9
s_cselect_b32 s91, 9, 0
s_sub_u32 s90, s90, s91
s_lshl_b32 s91, s90, 7
s_mul_i32 s90, s90, {64*3456}"""
elif OPT.get("rot") in (4, 5, 6):
    tab = {4: 0x75207520, 5: 0x63006300, 6: 0x86427531}[OPT["rot"]]
    rot = f"""s_add_u32 s90, s{sRB}, s{sHG}
s_and_b32 s90, s90, 7
s_lshl_b32 s90, s90, 2
s_lshr_b32 s90, {hex(OPT.get("tab", tab))}, s90
s_and_b32 s90, s90, 15
s_lshl_b32 s91, s90, 7
s_mul_i32 s90, s90, {64*3456}"""
elif OPT.get("rot"):
    few, many = (sRB, sHG) if OPT["mapping"] == 48 else (sHG, sRB)
    rot = f"""s_and_b32 s90, s{few}, 3
s_lshl_b32 s90, s90, 2
s_lshr_b32 s90, 0x7520, s90
s_and_b32 s90, s90, 15
s_and_b32 s91, s{many}, 7
s_add_u32 s90, s90, s91
s_cmp_ge_u32 s90, 9
s_cselect_b32 s91, 9, 0
s_sub_u32 s90, s90, s91
s_lshl_b32 s91, s90, 7
s_mul_i32 s90, s90, {64*3456}"""
a(f"""
s_mov_b32 s{sG0}, 0xffff
s_mov_b32 s{sG0+1}, 0
s_mov_b32 s{sG01}, -1
s_mov_b32 s{sG01+1}, 0
s_and_b32 s{sV}, s{sWAVE}, 1
s_mul_i32 s{sM}, s{sHG}, 144
s_cmp_lt_u32 s{sWAVE}, 4
s_cbranch_scc1 L_cons
s_setprio {OPT.get("prio", 2)}
s_mov_b32 s59, 0
{rot}
s_cmp_lt_u32 s{sWAVE}, 6
s_cbranch_scc1 L_wld
s_cmp_eq_u32 s{sBR}, 0
s_cbranch_scc1 L_AX0
s_branch L_BX0
L_wld:
s_cmp_eq_u32 s{sBR}, 0
s_cbranch_scc1 L_AW0
s_branch L_BW0
L_cons:
s_getpc_b64 s[42:43]
L_pc:
s_lshl_b32 s{sT}, s{sT2}, 2
s_add_u32 s{sT}, s{sT}, s{sWAVE}
s_lshl_b32 s{sT}, s{sT}, 9
v_and_b32 v1, 3, v0
v_lshlrev_b32 v1, 7, v1
v_add_u32 v1, s{sT}, v1
v_min_u32 v1, {'L_last2' if OPT.get('ifetch') == 1 else 'L_last'}-L_pc, v1
{'global_load_dword v27, v1, s[42:43]' if not OPT.get('nopf') else ''}
s_cmp_eq_u32 s{sBR}, 0
s_cbranch_scc1 L_AC
s_branch L_BC
L_end:
s_endpgm
""")
w_head("A"); w_head("B"); x_head("A"); x_head("B")
n0 = nstamp[0]
for fn in (lambda: a_loader("W"), lambda: a_loader("X"), a_consumer, lambda: b_loader("W"), lambda: b_loader("X"), b_consumer, p2_consumer):
    nstamp[0] = n0
    fn()
a("s_endpgm" if OPT.get("ifetch", 0) > 1 else "L_last2:\ns_endpgm" if OPT.get("ifetch") else "L_last:\ns_endpgm")
lines = []
for l in a.lines: lines += l.split("\n")
if OPT.get("noread"):
    lines = [l for l in lines if not l.startswith("ds_read_b64_tr")]
if OPT.get("nomfma"):
    lines = [l for l in lines if not l.startswith("v_mfma")]
lines, added = hz.fix(lines)
out += "\n".join(lines) + "\n"
out += '.section .rodata,"a"\n.p2align 6\n' + kernel_desc(KN, 256, 102 if OPT.get('cyc') else 100, 256)
sys.stdout.write(out)
sys.stderr.write(f"nop states added: {added}\n")
```

```python
import sys, struct
from asmlib import *
import hz

OPT = dict(stamps=0, mapping=48, ahead=6, rot=4, nt=1)
for arg in sys.argv[1:]:
    k, v = arg.split("=")
    OPT[k] = int(v)
KN = "concat_heads__sliding_local_dilated__linear_attn_block__prompt_kernel"

def f32(x):
    return "0x%08x" % struct.unpack("<I", struct.pack("<f", x))[0]

LOG2E = 1.4426950408889634
CSC = 18 ** -0.5 * LOG2E
NEG = "0xf149f2ca"
EPS = f32(1e-6)
OOB = "0x80000000"

O_BR = 0x240000
WS_KV = 0x500000
KV_ST = 0x2000
WS_CNT = 0x540000
WS_STAMP = 0x600000
WS_SIZE = 0x700000

sWAVE, sHG, sRB, sBR, sT = 3, 4, 5, 6, 7
SX, SW, SWS, SDBG, SWO, SOUT = 8, 12, 16, 20, 24, 28
sG0, sG01 = 32, 34
sK, sV, sM, sT2, sT3 = 50, 51, 52, 53, 54
sST = 60

a = Asm()
nstamp = [0]

def stamp():
    if OPT["stamps"]:
        i = nstamp[0]; nstamp[0] += 1
        assert i < 15
        a(f"{'s_memrealtime' if OPT.get('rt') or OPT.get('probe') and not (OPT.get('cyc') and i) else 's_memtime'} s[{sST+2*i}:{sST+2*i+1}]")
        if OPT.get("cyc") and i == 0:
            a("s_memtime s[100:101]")

def stamps_out(last=-1):
    if not OPT["stamps"]:
        return
    if OPT.get("probe"):
        if last == OPT.get("pwave", 0):
            j = sST + 2 * OPT["probe"]
            if OPT.get("ifetch"):
                mode = OPT["ifetch"]
                a(f"""
s_waitcnt vmcnt(0) lgkmcnt(0)
s_cmp_eq_u32 s2, {OPT.get('wg', 0)}
s_cbranch_scc0 L_probe_x
s_cmp_eq_u32 s{sWAVE}, 0
s_cbranch_scc0 L_probe_x
s_sleep 127
s_sleep 127
s_getpc_b64 s[44:45]
L_if_pc:
s_add_u32 s44, s44, L_if_blk-L_if_pc
s_addc_u32 s45, s45, 0
v_lshlrev_b32 v1, 7, v0
v_min_u32 v1, 4096, v1
""")
                if mode == 2:
                    a("global_load_dword v2, v1, s[44:45]\ns_waitcnt vmcnt(0)")
                a(f"""
s_memtime s[100:101]
s_waitcnt lgkmcnt(0)
s_branch L_if_blk
L_last:
.fill {(0 if mode == 1 else 8192)}, 4, 0xbf800000
L_if_blk:
.rept 512
v_add3_u32 v5, v0, v0, v0
.endr
s_memtime s[{j}:{j+1}]
s_waitcnt lgkmcnt(0)
s_sub_u32 s{j}, s{j}, s100
s_lshl_b32 s{j}, s{j}, 3
s_add_u32 s{j}, s{j}, s100
""")
            if OPT.get("vrate"):
                isw = OPT["vrate"] == 1
                a(f"""
s_waitcnt vmcnt(0) lgkmcnt(0)
s_load_dwordx2 s[44:45], s[0:1], {8 if isw else 0}
s_sleep 127
s_sleep 127
s_waitcnt lgkmcnt(0)
s_mov_b32 s46, {1990656 if isw else 2359296}
s_mov_b32 s47, 0x20000
v_lshrrev_b32 v1, 3, v0
v_mul_u32_u24 v1, {3456 if isw else 2304}, v1
v_and_b32 v2, 7, v0
v_lshl_add_u32 v1, v2, 4, v1
s_mov_b32 m0, 0
""")
                for rep in range(2):
                    if rep:
                        a("s_memtime s[100:101]\ns_waitcnt lgkmcnt(0)")
                    a(f"s_mov_b32 s40, 0\nL_vr{rep}:")
                    for n in range(3):
                        a(f"buffer_load_dwordx4 v1, s[44:47], s40 offen offset:{n*1152 if isw else n*128} lds")
                    a(f"s_waitcnt vmcnt(24)\ns_add_u32 s40, s40, {8*3456 if isw else 8*2304}\ns_cmp_lt_u32 s40, {72*8*3456 if isw else 72*8*2304}\ns_cbranch_scc1 L_vr{rep}\ns_waitcnt vmcnt(0)")
                a(f"s_memtime s[{j}:{j+1}]\ns_waitcnt lgkmcnt(0)\ns_sub_u32 s{j}, s{j}, s100\ns_lshl_b32 s{j}, s{j}, 3\ns_add_u32 s{j}, s{j}, s100")
            if OPT.get("skew"):
                op = "max" if OPT["skew"] in (1, 3) else "min"
                a(f"""
s_waitcnt vmcnt(0) lgkmcnt(0)
v_lshlrev_b32 v1, {4 if OPT['skew'] < 3 else 5}, v0
{'v_and_b32 v1, 0x3e0, v1' if OPT['skew'] >= 3 else ''}
v_add_u32 v1, 0x6f0000, v1
buffer_load_dwordx4 v[4:7], v1, s[{SWS}:{SWS+3}], 0 offen sc1
s_waitcnt vmcnt(0)
v_subrev_u32 v4, s{sST}, v4
v_subrev_u32 v5, s{sST}, v5
v_subrev_u32 v6, s{sST}, v6
v_subrev_u32 v7, s{sST}, v7
""")
                if OPT["skew"] < 3:
                    a(f"v_{op}_i32 v4, v4, v5\nv_{op}_i32 v6, v6, v7\nv_{op}_i32 v4, v4, v6")
                a("s_mov_b32 s44, 0\ns_nop 4")
                for l in range(64):
                    a(f"v_readlane_b32 s45, v4, {l}\ns_nop 3\ns_{op}_i32 s44, s44, s45")
                a(f"s_abs_i32 s44, s44\ns_add_u32 s{j}, s{sST}, s44")
            if OPT.get("ptr"):
                a(f"s_waitcnt vmcnt(0) lgkmcnt(0)\ns_load_dword s44, s[0:1], {OPT['ptr'] - 8}\ns_waitcnt lgkmcnt(0)\ns_lshr_b32 s44, s44, {OPT.get('sh', 4)}\ns_and_b32 s44, s44, 0xff\ns_mul_i32 s44, s44, 10\ns_add_u32 s{j}, s{sST}, s44")
            if OPT.get("lat"):
                a(f"""
s_waitcnt vmcnt(0) lgkmcnt(0)
s_load_dwordx2 s[44:45], s[0:1], {OPT['lat'] - 8}
s_sleep 127
s_sleep 127
s_sleep 127
s_waitcnt lgkmcnt(0)
s_mov_b32 s46, 0x100000
s_mov_b32 s47, 0x20000
v_mov_b32 v1, 0x20000
buffer_load_dword v2, v1, s[44:47], 0 offen {'sc1' if OPT.get('first') != 2 else ''}
s_waitcnt vmcnt(0)
v_mov_b32 v1, {'0x20000' if not OPT.get('first') else '0x20040'}
s_memtime s[100:101]
s_waitcnt lgkmcnt(0)
buffer_load_dword v2, v1, s[44:47], 0 offen sc1
s_waitcnt vmcnt(0)
s_memtime s[{j}:{j+1}]
s_waitcnt lgkmcnt(0)
s_sub_u32 s{j}, s{j}, s100
s_lshl_b32 s{j}, s{j}, 5
s_add_u32 s{j}, s{j}, s100
""")
            if OPT.get("xcc"):
                a(f"""
s_waitcnt vmcnt(0) lgkmcnt(0)
v_and_b32 v1, 31, v0
v_lshlrev_b32 v1, {5 if OPT['xcc'] == 1 else 2}, v1
v_add_u32 v1, 0x6f0000, v1
buffer_load_dword v2, v1, s[{SWS}:{SWS+3}], 0 offen sc1
s_getreg_b32 s44, hwreg(HW_REG_XCC_ID, 0, 4)
s_waitcnt vmcnt(0)
v_cmp_eq_u32 vcc, s44, v2
s_bcnt1_i32_b32 s44, vcc_lo
s_mul_i32 s44, s44, 10
s_add_u32 s{j}, s{sST}, s44
""")
            a(f"""
s_waitcnt vmcnt(0) lgkmcnt(0)
s_cmp_eq_u32 s2, {OPT.get('wg', 0)}
s_cbranch_scc0 L_probe_x
s_cmp_eq_u32 s{sWAVE}, {last}
s_cbranch_scc0 L_probe_x
s_sub_u32 s{sT}, s{j}, s{100 if OPT.get('cyc') else sST}
{'s_lshr_b32 s7, s7, 3' if OPT.get('cyc') else 's_mul_i32 s7, s7, 10'}
s_min_u32 s{sT}, s{sT}, 100000
s_add_u32 s{sT}, s{sT}, 6000
L_probe:
s_memrealtime s[44:45]
s_waitcnt lgkmcnt(0)
s_sub_u32 s44, s44, s{sST}
s_cmp_lt_u32 s44, s{sT}
s_cbranch_scc1 L_probe
L_probe_x:
""")
        return
    a("s_waitcnt vmcnt(0) lgkmcnt(0)")
    a(f"s_lshl_b32 s{sT}, s2, 3\ns_add_u32 s{sT}, s{sT}, s{sWAVE}\ns_lshl_b32 s{sT}, s{sT}, 6")
    a(f"s_add_u32 s{sT}, s{sT}, {WS_STAMP}\nv_mov_b32 v1, s{sT}")
    for i in range(16):
        a(f"v_mov_b32 v2, s{sST+2*i}")
        a(f"buffer_store_dword v2, v1, s[{SWS}:{SWS+3}], 0 offen offset:{4*i}")
    a("s_waitcnt vmcnt(0)")

def mf(d, s0, s1, c):
    cc = c if isinstance(c, str) else vr(c, 4)
    return f"v_mfma_f32_16x16x32_bf16 {vr(d,4)}, {vr(s0,4)}, {vr(s1,4)}, {cc}"
def cv(d, x):
    return f"v_cvt_pk_bf16_f32 v{d}, v{x}, v{x+1}"
def tr(d, addr, off):
    return f"ds_read_b64_tr_b16 {vr(d,2)}, v{addr} offset:{off}"
def weave(mfmas, others, per=2):
    o = list(others)
    for m in mfmas:
        a(m)
        for _ in range(per):
            if o: a(o.pop(0))
    for x in o: a(x)

def srd(dst, lo, nbytes):
    a(f"s_mov_b32 s{dst}, s{lo}\ns_mov_b32 s{dst+1}, s{lo+1}\ns_mov_b32 s{dst+2}, {nbytes}\ns_mov_b32 s{dst+3}, 0x20000")
def srds_rest():
    srd(SWO, 40, 663552); srd(SOUT, 44, 4718592); srd(SDBG, 46, 256); srd(SWS, 48, WS_SIZE)

class M0:
    def __init__(self, base): self.base = base; self.cur = None
    def set(self, imm):
        if self.cur is not None and -32768 <= imm - self.cur <= 32767:
            a(f"s_addk_i32 m0, {imm - self.cur}")
        else:
            a(f"s_add_u32 m0, s{self.base}, {imm}")
        self.cur = imm

CUR = [0]
def dma(voff, srd_, soff, half=False):
    if OPT.get("nodma") or (OPT.get("nos") and voff == VD + 6 and srd_ == SW and not half):
        return
    if half: a(f"s_mov_b64 exec, s[{sG01}:{sG01+1}]")
    nt = " nt" if OPT.get("nt", 0) >> {SX: 0, SW: 1, SWO: 2}[srd_] & 1 and CUR[0] < OPT.get("ntc", 99) else ""
    a(f"buffer_load_dwordx4 v{voff}, s[{srd_}:{srd_+3}], {soff} offen{nt} lds")
    if half: a("s_mov_b64 exec, -1")

def rd_lanes(r8, r2, t0, t1):
    a(f"""
v_lshrrev_b32 v{t0}, 5, v0
v_lshlrev_b32 v{t0}, 4, v{t0}
v_bfe_u32 v{t1}, v0, 4, 1
v_lshl_add_u32 v{t0}, v{t1}, 2, v{t0}
v_bfe_u32 v{t1}, v0, 2, 2
v_add_u32 v{t0}, v{t0}, v{t1}
v_and_b32 v{t1}, 3, v0
v_lshlrev_b32 v{t1}, 3, v{t1}
v_lshl_add_u32 v{r2}, v{t0}, 5, v{t1}
v_lshl_add_u32 v{r8}, v{t0}, 7, v{t1}
v_bfe_u32 v{t0}, v{t0}, 1, 2
v_lshl_add_u32 v{r8}, v{t0}, 5, v{r8}
""")
    for t in (1, 2, 3):
        a(f"v_xor_b32 v{r8+t}, {32*t}, v{r8}")

def x_lane(d0, d1, tmp):
    a(f"""
v_lshrrev_b32 v{d0}, 4, v0
v_bfe_u32 v{tmp}, v0, 1, 3
v_xor_b32 v{d0}, v{d0}, v{tmp}
v_and_b32 v{tmp}, 15, v0
v_lshlrev_b32 v{tmp}, 7, v{tmp}
v_lshl_add_u32 v{d0}, v{d0}, 4, v{tmp}
v_xor_b32 v{d1}, 64, v{d0}
""")

def col8(dst, tmp):
    a(f"v_bfe_u32 v{tmp}, v0, 4, 2\nv_lshlrev_b32 v{tmp}, 1, v{tmp}\nv_and_b32 v{dst}, 7, v0\nv_xor_b32 v{dst}, v{dst}, v{tmp}\nv_lshlrev_b32 v{dst}, 4, v{dst}")

def head_of(dst, src):
    a(f"v_mul_u32_u24 v{dst}, 57, v{src}\nv_lshrrev_b32 v{dst}, 10, v{dst}")

sOC, sKC, sFO, sFK = 92, 94, 96, 97

def arrive_wait(addr, target, label, arrive=True):
    if arrive:
        a(f"s_mov_b32 s{sT}, 1\ns_atomic_add s{sT}, s[{addr}:{addr+1}], 0 glc\ns_waitcnt lgkmcnt(0)\ns_cmp_ge_u32 s{sT}, {target-1}\ns_cbranch_scc1 {label}_x")
    a(f"""
s_mov_b32 s{sT3}, 0x20000
{label}:
s_mov_b32 s{sT}, 0
s_atomic_add s{sT}, s[{addr}:{addr+1}], 0 glc
s_waitcnt lgkmcnt(0)
s_sub_u32 s{sT3}, s{sT3}, 1
s_cbranch_scc1 {label}_x
s_cmp_ge_u32 s{sT}, {target}
s_cbranch_scc0 {label}
{label}_x:
""")

def flag_load(dst, offreg):
    a(f"s_load_dword s{dst}, s[{SDBG}:{SDBG+1}], s{offreg}")

def flag_check(val, offreg, label):
    a(f"""
s_mov_b32 s{sT3}, 0x20000
{label}:
s_waitcnt lgkmcnt(0)
s_cmp_lg_u32 s{val}, 0
s_cbranch_scc1 {label}_x
s_sub_u32 s{sT3}, s{sT3}, 1
s_cbranch_scc1 {label}_x
s_load_dword s{val}, s[{SDBG}:{SDBG+1}], s{offreg} glc
s_branch {label}
{label}_x:
""")

A_WSLOT, A_XSLOT = 14336, 18432
A_X0 = 5 * A_WSLOT
A_EX = A_X0 + 3 * A_XSLOT
B_KVSLOT, B_XSLOT = 9216, 16384
B_X0 = 5 * B_KVSLOT
B_EX = B_X0 + 3 * B_XSLOT
B_KVOP = 126976
B_STG = 136192
B_DUMP, B_LCNT = B_STG + 5632, B_STG + 6144
B_WQ0 = 143360
QORD = list(range(18))
def wq_slot(p):
    if p < 4: return B_WQ0 + 5120 * p
    if p < 7: return 5120 * (p - 4)
    if p < 13: return 40960 + 5120 * (p - 7)
    return 15360 + 5120 * (p - 13)
R1, R2 = 147456, 43008
WO = [R1, R1 + 5120, R1 + 10240] + [R2 + 5120 * n for n in range(6, 12)] + [0, 5120, 10240] + [R2 + 5120 * n for n in range(6)]
P_TR = 108544
SPLITS = {(1, 0): sG0, (2, 0): sG0, (2, 1): sG0, (3, 0): sG01, (3, 1): sG0}

VD = 16
VWO = 26
vCNT, vFLO, vFLK, vFO, vFK = 30, 31, 32, 33, 34

def w_head(kind):
    parts = (0, 1152, 2304) if kind == "A" else (1152, 2304)
    a(f"L_{kind}W0:")
    col8(VD, 1)
    a(f"""
v_bfe_u32 v1, v0, 5, 1
v_bfe_u32 v2, v0, 3, 2
v_lshl_add_u32 v1, v1, 3, v2
s_mul_i32 s{sT}, s{sV}, {16*3456}
s_add_u32 s{sT}, s{sT}, s{sM}
v_mul_u32_u24 v1, 3456, v1
v_add3_u32 v{VD}, v{VD}, v1, s{sT}
""")
    n = 2 * len(parts)
    for j in range(n - 1, -1, -1):
        off = parts[j // 2] + (j % 2) * 4 * 3456
        if off:
            a(f"v_add_u32 v{VD+j}, {off}, v{VD}")
    a(f"""
v_bfe_u32 v1, v0, 3, 1
v_bfe_u32 v2, v0, 4, 1
v_sub_u32 v1, v1, v2
v_lshrrev_b32 v2, 1, v0
v_lshl_add_u32 v1, v1, 2, v2
v_mul_u32_u24 v1, 3456, v1
v_and_b32 v2, 1, v0
""")
    if kind == "A":
        a(f"""
s_cmp_eq_u32 s{sV}, 0
s_cselect_b32 s{sT2}, 1152, 0
s_cselect_b32 s{sT}, 0, 2304
s_add_u32 s{sT}, s{sT}, s{sM}
s_addk_i32 s{sT}, 128
v_mad_u32_u24 v1, v2, s{sT2}, v1
v_add_u32 v{VD+6}, s{sT}, v1
""")
    else:
        a(f"""
s_add_u32 s{sT}, s{sT}, 128
v_add_u32 v{VD+7}, s{sT}, v1
v_mul_u32_u24 v2, 1152, v2
v_add_u32 v2, 1152, v2
v_add_u32 v{VD+4}, v2, v{VD+7}
""")
    a(f"s_lshl_b32 s42, s{sV}, 11\ns_lshl_b32 s43, s{sV}, {10 if kind == 'A' else 9}\ns_sub_u32 s43, s43, s42")
    a("s_waitcnt lgkmcnt(0)")
    srd(SW, 38, 1990656)
    m = M0(42)
    w_issue(kind, 0, m)
    a(f"s_branch L_{kind}W1")

def w_issue(kind, c, m):
    CUR[0] = c
    slot = (c % 5) * (A_WSLOT if kind == "A" else B_KVSLOT)
    n = 6 if kind == "A" else 4
    so = f"s{sK}" if c else "0"
    if OPT.get("rot"):
        so = "s90"
        if c:
            a(f"s_add_u32 s90, s90, {32*3456}\ns_cmp_eq_u32 s90, {18*32*3456}\ns_cselect_b32 s90, 0, s90")
    elif c:
        a(f"s_mov_b32 s{sK}, {c*32*3456}")
    for j in range(n):
        m.set(slot + 4096 * (j // 2) + 1024 * (j % 2))
        dma(VD + j, SW, so)
    m.set(slot + 4096 * (n // 2))
    a("s_add_u32 m0, m0, s43")
    m.cur = None
    dma(VD + n, SW, so, half=(kind == "B"))
    return n + 1

def wq_issue(p, m):
    if OPT.get("rot"):
        a(f"s_add_u32 s{sK}, s90, {(p+1)*32*3456}\ns_cmp_ge_u32 s{sK}, {18*32*3456}\ns_cselect_b32 s{sT}, {18*32*3456}, 0\ns_sub_u32 s{sK}, s{sK}, s{sT}")
    else:
        a(f"s_mov_b32 s{sK}, {QORD[p]*32*3456}")
    for j in range(2):
        m.set(wq_slot(p) + 1024 * j)
        dma(VD + 5 + j, SW, f"s{sK}")
    m.set(wq_slot(p) + 4096)
    a("s_add_u32 m0, m0, s43")
    m.cur = None
    dma(VD + 7, SW, f"s{sK}", half=True)
    return 3

def x_head(kind):
    nq = 9 if kind == "A" else 8
    a(f"L_{kind}X0:")
    a(f"""
v_lshrrev_b32 v1, 3, v0
v_mul_u32_u24 v1, {2304 if kind == 'A' else 1152}, v1
v_lshrrev_b32 v2, 4, v0
v_lshl_add_u32 v2, s{sV}, 2, v2
v_and_b32 v3, 7, v0
v_xor_b32 v2, v2, v3
v_lshl_add_u32 v1, v2, 4, v1
s_mul_i32 s{sT}, s{sRB}, {128*1152}
""")
    if kind == "A":
        a(f"""
s_mul_i32 s{sT2}, s{sV}, {16*1152}
s_add_u32 s{sT3}, s{sT}, s{sT2}
v_add_u32 v{VD}, s{sT3}, v1
s_sub_u32 s{sT3}, s{sT}, s{sT2}
s_add_u32 s{sT3}, s{sT3}, {17*1152}
v_add_u32 v{VD+4}, s{sT3}, v1
s_mul_i32 s{sT2}, s{sV}, 1152
s_sub_u32 s{sT3}, s{sT}, s{sT2}
s_sub_u32 s{sT3}, s{sT3}, {15*1152}
v_add_u32 v{VD+8}, s{sT3}, v1
""")
        for q in (1, 2, 3):
            a(f"v_add_u32 v{VD+q}, {32*1152*q}, v{VD}\nv_add_u32 v{VD+4+q}, {32*1152*q}, v{VD+4}")
    else:
        a(f"s_mul_i32 s{sT2}, s{sV}, {8*1152}\ns_add_u32 s{sT}, s{sT}, s{sT2}\nv_add_u32 v{VD}, s{sT}, v1")
        for q in range(1, 8):
            a(f"v_add_u32 v{VD+q}, {16*1152*q}, v{VD}")
    a(f"s_lshl_b32 s42, s{sV}, 10")
    a("s_waitcnt lgkmcnt(0)")
    srd(SX, 36, 2359296)
    x_issue(kind, 0, M0(42))
    a(f"s_branch L_{kind}X1")

def x_issue(kind, c, m):
    CUR[0] = c + (c & 1)
    nq, h, x0, xs = (9, 5, A_X0, A_XSLOT) if kind == "A" else (8, 4, B_X0, B_XSLOT)
    st = (c + 1) // 2
    if st > 8:
        return 0
    qs = range(nq) if c == 0 else (range(h) if c % 2 else range(h, nq))
    so = f"s{sK}" if st else "0"
    if OPT.get("rot"):
        so = "s91"
        if c % 2:
            a("s_addk_i32 s91, 128\ns_cmpk_eq_u32 s91, 1152\ns_cselect_b32 s91, 0, s91")
    elif st:
        a(f"s_movk_i32 s{sK}, {st*128}")
    for q in qs:
        m.set(x0 + (st % 3) * xs + 2048 * q)
        a("s_nop 0")
        dma(VD + q, SX, so)
    return len(qs)

def wo_setup(quad):
    col8(VWO, 1)
    a(f"""
s_mul_i32 s{sM}, s{sHG}, 144
v_add_u32 v{VWO}, s{sM}, v{VWO}
v_bfe_u32 v1, v0, 5, 1
v_bfe_u32 v2, v0, 3, 2
v_mul_u32_u24 v1, 72, v1
v_add_u32 v1, v1, v2
v_mul_u32_u24 v1, 1152, v1
v_add_u32 v{VWO+1}, v1, v{VWO}
v_lshrrev_b32 v1, 3, v0
v_mul_u32_u24 v1, 1152, v1
v_add_u32 v{VWO}, v1, v{VWO}
v_bfe_u32 v1, v0, 1, 2
v_bfe_u32 v2, v0, 3, 1
v_bfe_u32 v3, v0, 4, 1
v_bfe_u32 v4, v0, 5, 1
v_lshl_add_u32 v5, v2, 2, v1
v_lshl_add_u32 v5, v3, 4, v5
v_lshl_add_u32 v5, v4, 3, v5
v_mul_u32_u24 v5, 1152, v5
s_add_u32 s{sM}, s{sM}, 128
v_add_u32 v{VWO+2}, s{sM}, v5
v_lshl_add_u32 v5, v3, 2, v1
v_lshl_add_u32 v2, v4, 1, v2
v_mul_u32_u24 v2, 72, v2
v_add_u32 v5, v5, v2
v_mul_u32_u24 v5, 1152, v5
v_add_u32 v{VWO+3}, s{sM}, v5
s_and_b32 s55, s{sWAVE}, 3
s_lshl_b32 s57, s55, 3
""")
    rho(56)
    a(f"s_add_u32 s56, s56, s{55 if quad else sV}")

def rho(dst):
    few, many = (sRB, sHG) if OPT["mapping"] == 48 else (sHG, sRB)
    if OPT["mapping"] > 99:
        a(f"s_cmp_eq_u32 s{sBR}, {0 if OPT['mapping'] == 8448 else 1}\ns_cselect_b32 s{sT}, s{sHG}, s{sRB}\ns_cselect_b32 s{sT2}, s{sRB}, s{sHG}")
        few, many = sT, sT2
    a(f"s_lshl_b32 s{dst}, s{few}, 1\ns_add_u32 s{dst}, s{dst}, s{many}\ns_lshl_b32 s{dst}, s{dst}, 1")
    if not OPT.get("worot", 1):
        a(f"s_mov_b32 s{dst}, 0")

def wo_chunk(left, fadd):
    if left:
        a(f"s_mul_i32 s{sK}, s{sV}, {288*1152}\ns_add_u32 s{sK}, s{sK}, {64*1152}")
        steps = (4, 140, 4); v8, v2 = VWO + 1, VWO + 3
    else:
        a(f"""
s_add_u32 s{sT}, s56, {fadd}
s_bfe_u32 s{sK}, s{sT}, 0x30001
s_mul_i32 s{sK}, s{sK}, {72*1152}
s_bitcmp1_b32 s{sT}, 0
s_cselect_b32 s{sT}, {32*1152}, 0
s_add_u32 s{sK}, s{sK}, s{sT}
""")
        steps = (16, -8, 16); v8, v2 = VWO, VWO + 2
    a(f"s_mov_b32 s{sT2}, s{sK}")
    for j in range(4):
        dma(v8, SWO, f"s{sK}")
        a("s_addk_i32 m0, 1024")
        a(f"s_add_u32 s{sK}, s{sK}, {steps[j]*1152 & 0xffffffff}" if j < 3 else "s_nop 0")
    dma(v2, SWO, f"s{sT2}")
    return 5

def wo_issue(q):
    packed = sum((WO[2 + 4*q + w] // 1024) << (8 * w) for w in range(4))
    a(f"s_lshr_b32 s{sT}, {packed}, s57\ns_and_b32 s{sT}, s{sT}, 0xff\ns_lshl_b32 m0, s{sT}, 10")
    return wo_chunk(False, 4*q)

def wo_pair(g):
    a(f"s_mul_i32 s{sT}, s{sV}, {WO[2*g+1] - WO[2*g] & 0xffffffff}\ns_add_u32 m0, s{sT}, {WO[2*g]}")
    return wo_chunk(g == 0, 2*g - 2)

def sync_setup():
    a(f"""
s_lshl_b32 s{sT}, s{sBR}, 4
s_add_u32 s{sT}, s{sT}, s{sRB}
s_lshl_b32 s{sT2}, s{sT}, 8
s_add_u32 s{sT2}, s{sT2}, {WS_CNT}
s_add_u32 s{sOC}, s{SWS}, s{sT2}
s_addc_u32 s{sOC+1}, s{SWS+1}, 0
s_lshl_b32 s{sT}, s{sT}, 2
s_add_u32 s98, s{sT}, 32
s_lshl_b32 s99, s{sHG}, 2
s_mul_i32 s{sT2}, s{sHG}, {KV_ST}
s_add_u32 s{sT2}, s{sT2}, {WS_KV + 6144}
s_add_u32 s{sKC}, s{SWS}, s{sT2}
s_addc_u32 s{sKC+1}, s{SWS+1}, 0
""")

def loader_tail(tag, late=()):
    if tag[1] == "X":
        flag_check(sFO, 98, f"L_{tag}_fo")
    a("s_barrier")
    stamp()
    for g in late:
        wo_pair(g)
    if tag[1] == "X":
        a(f"s_cmp_eq_u32 s{sWAVE}, 6\ns_cbranch_scc0 L_{tag}_oc_x")
        arrive_wait(sOC, 8, f"L_{tag}_oc")
    a("s_waitcnt vmcnt(0)")
    stamp()
    a("s_barrier")
    stamps_out(4 if tag == "AW" else -1)
    a("s_endpgm")

def a_loader(kind):
    a(f"L_A{kind}1:")
    m = M0(42)
    issue = (lambda c: w_issue("A", c, m)) if kind == "W" else (lambda c: x_issue("A", c, m))
    if OPT.get("prepass"):
        a("s_mov_b32 s58, s90\ns_mov_b32 s59, s91")
        n_ = {}
        for c in range(1, 18):
            if OPT["prepass"] == 2:
                a("s_mov_b32 s90, s58\ns_mov_b32 s91, s59")
            n_[c] = issue(c)
            a(f"s_waitcnt vmcnt({n_[c] + n_.get(c-1, 0)})")
            if c in (4, 9):
                stamp()
        a("s_waitcnt vmcnt(0)")
        stamp()
        a("s_barrier\ns_mov_b32 s90, s58\ns_mov_b32 s91, s59")
        m.cur = None
        issue(0)
    pre = 1 if OPT.get("early") and kind == "W" else 2
    cnt = {c: issue(c) for c in range(1, pre + 1)}
    stamp()
    x_lane(8, 9, 1)
    rd_lanes(36, 12, 1, 2)
    a(f"""
v_add_u32 v8, {A_X0 + 8*2048}, v8
v_add_u32 v9, {A_X0 + 8*2048}, v9
s_lshl_b32 s{sT}, s{sV}, 6
v_xor_b32 v10, s{sT}, v36
v_add_u32 v10, {4096 if kind == 'W' else 8192}, v10
v_xor_b32 v11, 32, v10
v_add_u32 v12, {12288 if kind == 'W' else 13312}, v12
v_add_u32 v13, {4*A_WSLOT}, v10
v_add_u32 v14, {4*A_WSLOT}, v11
v_add_u32 v15, {4*A_WSLOT}, v12
s_lshl_b32 s{sT}, s{sV}, 10
s_add_u32 s{sT}, s{sT}, {A_EX + (0 if kind == 'W' else 2560)}
v_lshlrev_b32 v7, 3, v0
v_add_u32 v6, s{sT}, v7
v_add_u32 v7, {A_EX + (2048 if kind == 'W' else 4608)}, v7
""")
    stamp()
    a(f"s_waitcnt vmcnt({sum(cnt.values())})\ns_barrier")
    stamp()
    extra = 0
    for i in range(-1, 17):
        ks = i + 1
        slot = ks % 5
        off = 0 if slot == 4 else slot * A_WSLOT
        ad = (13, 14, 15) if slot == 4 else (10, 11, 12)
        a(f"ds_read_b128 v[40:43], v{8 + ks % 2} offset:{(ks//2 % 3)*A_XSLOT}")
        for j in range(3 if OPT.get("nohalo", 0) < 2 else 0):
            a(tr(44 + 4*j, ad[j], off)); a(tr(46 + 4*j, ad[j], off + (1024 if j < 2 else 256)))
        if i == -1 and pre == 1:
            cnt[2] = issue(2)
        if i + 4 <= 17:
            cnt[i+4] = issue(i + 4)
        a("s_waitcnt lgkmcnt(0)")
        for j in range(3 if not OPT.get("nohalo") else 0):
            c = 60 + 4*j if ks else "0"
            a(mf(60 + 4*j, 44 + 4*j, 40, c) if kind == "W" else mf(60 + 4*j, 40, 44 + 4*j, c))
        if i == 1:
            srds_rest(); sync_setup()
        if i == 2:
            wo_setup(True)
        if i == 14 and kind == "W":
            extra += wo_pair(0)
        if i == 15:
            extra += wo_issue(0)
        if i + 1 <= 16:
            left = sum(cnt.get(c, 0) for c in range(i + 3, min(i + 4, 17) + 1)) + extra
            a(f"s_waitcnt vmcnt({left})\ns_barrier")
            if OPT.get("fine") and kind == "W" and i % 2 == 1 and 0 < i < 14:
                stamp()
    for j in range(3):
        a(cv(44 + 2*j, 60 + 4*j)); a(cv(45 + 2*j, 62 + 4*j))
    if kind == "W":
        a("v_mov_b32 v50, 0\nv_mov_b32 v51, 0")
        a("v_permlane32_swap_b32 v48, v50\nv_permlane32_swap_b32 v49, v51")
    a("ds_write_b64 v6, v[44:45]\nds_write_b64 v6, v[46:47] offset:512")
    a(f"ds_write_b64 v7, {'v[50:51]' if kind == 'W' else 'v[48:49]'}")
    stamp()
    a("s_waitcnt lgkmcnt(0)\ns_barrier")
    if kind == "X":
        flag_load(sFO, 98)
    wo_issue(1); wo_issue(2); wo_issue(3)
    stamp()
    loader_tail("A" + kind)

def o_store_addr(vfull, vleft, tmp, left_lo):
    a(f"""
s_lshl_b32 s{sT}, s{sRB}, 3
s_lshl_b32 s{sT2}, s{sWAVE}, 1
s_add_u32 s{sT}, s{sT}, s{sT2}
s_mul_i32 s{sT}, s{sT}, 18432
s_mul_i32 s{sT2}, s{sBR}, {O_BR}
s_add_u32 s58, s{sT}, s{sT2}
s_lshl_b32 s{sT2}, s{sHG}, 11
s_add_u32 s{sT2}, s{sT2}, s58
v_lshl_add_u32 v{vfull}, v0, 4, s{sT2}
s_lshr_b32 s{sT2}, s{sHG}, 2
s_add_u32 s{sT2}, s{sT2}, 16
s_lshl_b32 s{sT2}, s{sT2}, 10
s_add_u32 s{sT}, s58, s{sT2}
s_and_b32 s{sT2}, s{sHG}, 3
s_lshl_b32 s{sT2}, s{sT2}, 8
s_add_u32 s{sT}, s{sT}, s{sT2}
v_and_b32 v{vleft}, 15, v0
v_lshlrev_b32 v{vleft}, 4, v{vleft}
v_bfe_u32 v{tmp}, v0, 4, 1
v_lshl_add_u32 v{vleft}, v{tmp}, 3, v{vleft}
v_add_u32 v{vleft}, s{sT}, v{vleft}
v_mov_b32 v{tmp}, {OOB}
""")
    x, y = (tmp, vleft) if left_lo else (vleft, tmp)
    a(f"v_cndmask_b32 v{vleft}, v{x}, v{y}, s[{sG01}:{sG01+1}]")

def o_store(of, vfull, vleft, rt):
    so = f"s{sK}" if rt else "0"
    if rt:
        a(f"s_movk_i32 s{sK}, 18432")
    a(f"buffer_store_dwordx4 {vr(of,4)}, v{vfull}, s[{SWS}:{SWS+3}], {so} offen sc1")
    a(f"buffer_store_dwordx4 {vr(of+4,4)}, v{vfull}, s[{SWS}:{SWS+3}], {so} offen offset:1024 sc1")
    a(f"buffer_store_dwordx2 {vr(of+8,2)}, v{vleft}, s[{SWS}:{SWS+3}], {so} offen sc1")

def gap_touch(tag, parts):
    if not OPT.get("touch"):
        return
    nt = " nt" if OPT.get("tnt") else ""
    a(f"""
s_cmp_eq_u32 s{sWAVE}, 1
s_cbranch_scc1 L_{tag}_tw
s_cmp_eq_u32 s{sWAVE}, 2
s_cbranch_scc0 L_{tag}_tx
s_and_b32 s{sT}, s{sRB}, 7
s_cmp_eq_u32 s{sT}, 0
s_cselect_b32 s{sT}, 9, s{sT}
s_sub_u32 s{sT}, s{sT}, 1
s_lshl_b32 s{sT}, s{sT}, 7
s_and_b32 s{sT2}, s{sHG}, 3
s_lshl_b32 s{sT2}, s{sT2}, 5
s_lshl_b32 s{sT3}, s{sRB}, 7
s_add_u32 s{sT2}, s{sT2}, s{sT3}
v_and_b32 v1, 31, v0
v_add_u32 v1, s{sT2}, v1
v_mul_u32_u24 v1, 1152, v1
""")
    srd(SX, 36, 2359296)
    a(f"""
buffer_load_dword v26, v1, s[{SX}:{SX+3}], s{sT} offen{nt}
s_branch L_{tag}_tx
L_{tag}_tw:
s_and_b32 s{sT}, s{sHG}, 3
s_lshl_b32 s{sT}, s{sT}, 1
s_cmp_eq_u32 s{sT}, 0
s_cselect_b32 s{sT}, 9, s{sT}
s_sub_u32 s{sT}, s{sT}, 1
s_lshl_b32 s{sT}, s{sT}, 3
s_and_b32 s{sT2}, s{sRB}, 7
s_add_u32 s{sT}, s{sT}, s{sT2}
s_mul_i32 s{sT}, s{sT}, {8*3456}
s_add_u32 s{sT}, s{sT}, s{sM}
v_lshrrev_b32 v1, 3, v0
v_mul_u32_u24 v1, 3456, v1
v_bfe_u32 v2, v0, 1, 2
v_min_u32 v2, {parts-1}, v2
v_mul_u32_u24 v2, 1152, v2
v_and_b32 v3, 1, v0
v_mul_u32_u24 v3, 140, v3
v_add3_u32 v1, v1, v2, v3
""")
    srd(SW, 38, 1990656)
    a(f"buffer_load_dword v26, v1, s[{SW}:{SW+3}], s{sT} offen offset:{1152*(3-parts)}{nt}\nL_{tag}_tx:")

def init_stores(tag, with_kv):
    if OPT.get("skew"):
        a(f"v_mov_b32 v2, s{sST}\ns_lshl_b32 s{sT}, s2, 2\ns_add_u32 s{sT}, s{sT}, 0x6f0000\nv_mov_b32 v1, s{sT}\nbuffer_store_dword v2, v1, s[{SWS}:{SWS+3}], 0 offen sc1")
    if OPT.get("xcc"):
        a(f"s_getreg_b32 s{sT}, hwreg(HW_REG_XCC_ID, 0, 4)\nv_mov_b32 v2, s{sT}\ns_lshl_b32 s{sT}, s2, 2\ns_add_u32 s{sT}, s{sT}, 0x6f0000\nv_mov_b32 v1, s{sT}\nbuffer_store_dword v2, v1, s[{SWS}:{SWS+3}], 0 offen sc1")
    a(f"""
s_or_b32 s{sT}, s{sHG}, s{sWAVE}
s_cmp_eq_u32 s{sT}, 0
s_cselect_b32 s55, 1, 0
v_mov_b32 v20, 0
v_mov_b32 v21, 0
v_mov_b32 v22, 0
v_mov_b32 v23, 0
s_cbranch_scc0 L_{tag}_i1
s_lshl_b32 s{sT}, s{sBR}, 4
s_add_u32 s{sT}, s{sT}, s{sRB}
s_lshl_b32 s{sT}, s{sT}, 8
s_add_u32 s{sT}, s{sT}, {WS_CNT}
v_mov_b32 v24, s{sT}
buffer_store_dword v20, v24, s[{SWS}:{SWS+3}], 0 offen sc1
L_{tag}_i1:
""")
    if with_kv:
        a(f"""
s_or_b32 s{sT}, s{sRB}, s{sWAVE}
s_cmp_eq_u32 s{sT}, 0
s_cbranch_scc0 L_{tag}_i2
s_or_b32 s55, s55, 2
s_mul_i32 s{sT}, s{sHG}, {KV_ST}
s_add_u32 s{sT}, s{sT}, {WS_KV}
v_lshl_add_u32 v24, v0, 4, s{sT}
""")
        for j in range(7):
            a(f"s_movk_i32 s{sK}, {1024*j}\nbuffer_store_dwordx4 v[20:23], v24, s[{SWS}:{SWS+3}], s{sK} offen sc1")
        a(f"L_{tag}_i2:")

def init_flags(tag):
    a(f"""
s_waitcnt vmcnt(0)
s_cmp_eq_u32 s55, 0
s_cbranch_scc1 L_{tag}_f2
v_mov_b32 v20, 1
s_bitcmp1_b32 s55, 0
s_cbranch_scc0 L_{tag}_f1
s_lshl_b32 s{sT}, s{sBR}, 4
s_add_u32 s{sT}, s{sT}, s{sRB}
s_lshl_b32 s{sT}, s{sT}, 2
s_add_u32 s{sT}, s{sT}, 32
v_mov_b32 v24, s{sT}
buffer_store_dword v20, v24, s[{SDBG}:{SDBG+3}], 0 offen sc1
L_{tag}_f1:
s_bitcmp1_b32 s55, 1
s_cbranch_scc0 L_{tag}_f2
s_lshl_b32 s{sT}, s{sHG}, 2
v_mov_b32 v25, s{sT}
buffer_store_dword v20, v25, s[{SDBG}:{SDBG+3}], 0 offen sc1
L_{tag}_f2:
""")

def kstep(tiles, nxt_reads, first, waits):
    pend = list(first)
    for t, (m0_, m1_) in enumerate(tiles):
        if t in waits:
            a(waits[t])
        a(m0_)
        for x in pend: a(x)
        a(m1_)
        pend = []
        if nxt_reads:
            a(nxt_reads[t][0]); pend = [nxt_reads[t][1]]
    for x in pend: a(x)

def a_consumer():
    acc = lambda t, rt: 144 + (t * 2 + rt) * 4
    wf = lambda t: 88 + 4 * t
    xf = lambda buf, rt: 72 + buf * 8 + rt * 4
    R8, R2, R8b, R2b, aX = 1, 5, 6, 10, 11
    vOF, vOL, vEXW, vEXR = 13, 14, 15, 16
    MC, MP, MPF, PM = 56, 60, 64, 68
    a("L_AC:\ns_waitcnt lgkmcnt(0)")
    gap_touch("AC", 3)
    srds_rest()
    init_stores("AC", False)
    rd_lanes(R8, R2, 17, 18); x_lane(aX, aX + 1, 17)
    for j in range(5):
        a(f"v_add_u32 v{R8b+j}, {4*A_WSLOT}, v{R8+j}")
    a(f"""
s_lshl_b32 s{sT}, s{sWAVE}, 12
s_add_u32 s{sT}, s{sT}, {A_X0}
v_add_u32 v{aX}, s{sT}, v{aX}
v_add_u32 v{aX+1}, s{sT}, v{aX+1}
s_lshr_b32 s{sT}, s{sWAVE}, 1
s_lshl_b32 s{sT}, s{sT}, 3
v_and_b32 v17, 15, v0
v_xor_b32 v17, s{sT}, v17
v_lshrrev_b32 v18, 4, v0
v_lshlrev_b32 v18, 2, v18
v_xor_b32 v18, s{sT}, v18
v_sub_u32 v17, v17, v18
v_mov_b32 v19, {NEG}
s_and_b32 s{sT}, s{sWAVE}, 1
s_or_b32 s{sT}, s{sT}, s{sRB}
s_cmp_eq_u32 s{sT}, 0
s_cselect_b64 s[42:43], -1, 0
""")
    for r in range(4):
        a(f"""
v_subrev_u32 v18, {r}, v17
v_cmp_gt_u32 vcc, 8, v18
v_cndmask_b32 v{MC+r}, v19, 0, vcc
v_cmp_gt_i32 vcc, -8, v18
v_cndmask_b32 v{MP+r}, v19, 0, vcc
v_cndmask_b32 v{MPF+r}, v{MP+r}, v19, s[42:43]
v_cmp_lt_i32 vcc, -1, v18
v_mov_b32 v20, {'0xffff' if r % 2 == 0 else '0xffff0000'}
v_cndmask_b32 v20, 0, v20, vcc
""")
        a(f"v_mov_b32 v{PM + r//2}, v20" if r % 2 == 0 else f"v_or_b32 v{PM + r//2}, v{PM + r//2}, v20")
    o_store_addr(vOF, vOL, 17, True)
    a(f"""
s_lshr_b32 s{sT}, s{sWAVE}, 1
s_add_u32 s{sT}, s{sT}, 1
s_mul_i32 s{sT}, s{sT}, 5120
s_bitcmp1_b32 s{sWAVE}, 0
s_cselect_b32 s{sT3}, s{sT}, 0
v_lshlrev_b32 v17, 3, v0
v_add_u32 v17, {A_EX}, v17
v_add_u32 v{vEXW}, s{sT}, v17
v_add_u32 v{vEXR}, s{sT3}, v17
""")

    def wreads(ks, t):
        slot = ks % 5
        o = 0 if slot == 4 else slot * A_WSLOT
        r8, r2 = (R8b, R2b) if slot == 4 else (R8, R2)
        if t == 4 or t == 13:
            o += 12288 if t == 4 else 13312
            return [tr(wf(t), r2, o), tr(wf(t) + 2, r2, o + 256)]
        s, j = (0, t) if t < 4 else (1, t - 5) if t < 9 else (2, t - 9)
        return [tr(wf(t), r8 + j, o + 4096*s), tr(wf(t) + 2, r8 + j, o + 4096*s + 1024)]
    xread = lambda ks, rt: f"ds_read_b128 {vr(xf(ks % 2, rt),4)}, v{aX + ks % 2} offset:{(ks//2 % 3)*A_XSLOT + rt*2048}"

    if OPT.get("prepass"):
        a("s_barrier")
    stamp()
    a("s_barrier")
    stamp()
    a(xread(0, 0)); a(xread(0, 1))
    for t in range(14):
        for x in wreads(0, t): a(x)
    for ks in range(18):
        if OPT.get("body") and ks == OPT["body"] + 1:
            stamp()
            j_ = sST + 2*(nstamp[0]-1)
            a(f"s_waitcnt lgkmcnt(0)\ns_sub_u32 s{j_}, s{j_}, s100\ns_lshl_b32 s{j_}, s{j_}, 4\ns_add_u32 s{j_}, s{j_}, s100")
        if OPT.get("span") and ks == OPT["span"] + 4:
            a("s_barrier")
            stamp()
            j_ = sST + 2*(nstamp[0]-1)
            a(f"s_waitcnt lgkmcnt(0)\ns_sub_u32 s{j_}, s{j_}, s100\ns_lshl_b32 s{j_}, s{j_}, 2\ns_add_u32 s{j_}, s{j_}, s100")
        elif ks < 17:
            a("s_barrier")
        if ks and ks in (OPT.get("body"), OPT.get("span")):
            a("s_memtime s[100:101]")
        if OPT.get("fine") == 2 and ks in (2, 5, 8, 11, 14):
            stamp()
        if OPT.get("ret") and ks == 1:
            a(f"s_lshl_b32 s40, s2, 10\ns_lshl_b32 s41, s{sWAVE}, 8\ns_add_u32 s40, s40, s41\ns_add_u32 s40, s40, 0x580000\ns_add_u32 s40, s40, s{SWS}\ns_addc_u32 s41, s{SWS+1}, 0")
            if OPT["ret"] == 1:
                a("v_mov_b32 v28, 0\nglobal_load_dword v29, v28, s[40:41]")
        if OPT.get("ret") and ks == OPT.get("at", 7):
            if OPT["ret"] == 2:
                a("v_mov_b32 v28, 0\nglobal_load_dword v29, v28, s[40:41]\ns_waitcnt vmcnt(0)")
            a("s_waitcnt lgkmcnt(0)\ns_memtime s[100:101]\ns_waitcnt lgkmcnt(0)\ns_load_dword s38, s[40:41], 64\ns_waitcnt lgkmcnt(0)")
            stamp()
            j_ = sST + 2*(nstamp[0]-1)
            a(f"s_waitcnt lgkmcnt(0)\ns_sub_u32 s{j_}, s{j_}, s100\ns_lshl_b32 s{j_}, s{j_}, 3\ns_add_u32 s{j_}, s{j_}, s100")
        if OPT.get("dummy") == ks:
            if OPT.get("dpre"):
                a("s_getpc_b64 s[38:39]\nv_lshlrev_b32 v28, 7, v0\nv_min_u32 v28, 2304, v28\nglobal_load_dword v29, v28, s[38:39]\ns_waitcnt vmcnt(0)")
            a("s_waitcnt lgkmcnt(0)\ns_memtime s[100:101]\ns_memrealtime s[40:41]\ns_waitcnt lgkmcnt(0)")
            for n in range(128):
                kind = OPT.get("dkind", 0)
                if kind == 0:
                    a(mf(28 + 4 * (n % 4), 88, 72, "0"))
                elif kind == 1:
                    a(f"v_add3_u32 v{28 + n % 8}, v0, v0, v0\nv_add3_u32 v{36 + n % 8}, v0, v0, v0")
                else:
                    a(f"ds_read_b128 v[{28 + 4 * (n % 4)}:{31 + 4 * (n % 4)}], v{aX} offset:0")
            a("s_waitcnt lgkmcnt(0)")
            stamp()
            a("s_waitcnt lgkmcnt(0)")
            if not OPT.get("cyc"):
                a(f"s_sub_u32 s40, s{sST + 2*(nstamp[0]-1)}, s40\ns_add_u32 s{sST + 2*(nstamp[0]-1)}, s{sST}, s40")
        if ks == 3:
            init_flags("AC")
        tiles = []
        for t in range(14):
            c = lambda rt: acc(t, rt) if ks else "0"
            tiles.append([mf(acc(t, rt), wf(t), xf(ks % 2, rt), c(rt)) if t < 9 else mf(acc(t, rt), xf(ks % 2, rt), wf(t), c(rt)) for rt in range(2)])
        if ks < 17:
            nxt = [wreads(ks + 1, t) for t in range(14)]
            nxt[1] = [nxt[1][0], nxt[1][1] + "\n" + xread(ks + 1, 1)]
            kstep(tiles, nxt, [xread(ks + 1, 0)], {0: "s_waitcnt lgkmcnt(14)", 7: "s_waitcnt lgkmcnt(15)", 12: "s_waitcnt lgkmcnt(15)"})
        else:
            kstep(tiles, None, [], {0: "s_waitcnt lgkmcnt(14)", 7: "s_waitcnt lgkmcnt(0)"})
    stamp()
    KP = lambda j: 18 + 10 * j
    QT = lambda rt, h: 88 + 16 * rt + 4 * h
    VP = lambda t, j: 120 + 6 * t + 2 * j if t < 4 else 48 + 2 * j
    ONE = 72
    def pack_kv(rt):
        o = []
        for q in range(2):
            o += [cv(QT(rt, 3) + 2 + q, acc(4, rt) + 2*q), f"v_mov_b32 v{KP(1+rt) + 8 + q}, 0"]
        for tau in range(4):
            o += [cv(KP(1+rt) + 2*tau + q, acc(5+tau, rt) + 2*q) for q in range(2)]
        o += [f"v_permlane32_swap_b32 v{QT(rt,3) + 2 + q}, v{KP(1+rt) + 8 + q}" for q in range(2)]
        for t in range(5):
            o += [cv(VP(t, 1+rt) + q, acc(9+t, rt) + 2*q) for q in range(2)]
        return o
    def pack_q(rt):
        o = []
        for t in range(4):
            for q in range(2):
                d = QT(rt, t) + q
                o.append(cv(d, acc(t, rt) + 2*q))
                if (t, q) in SPLITS:
                    m = SPLITS[(t, q)]; lo = QT(rt, t-1) + 2 + q
                    o += [f"v_cndmask_b32 v{lo}, 0, v{d}, s[{m}:{m+1}]", f"v_xor_b32 v{d}, v{d}, v{lo}"]
        return o + [f"v_mov_b32 v{QT(rt,0) + 3}, 0"]
    weave([], pack_kv(1))
    a(f"s_bitcmp1_b32 s{sWAVE}, 0\ns_cbranch_scc1 L_AC_nodump")
    for j in range(5):
        a(f"ds_write_b64 v{vEXW}, {vr(KP(2) + 2*j, 2)} offset:{512*j}")
        a(f"ds_write_b64 v{vEXW}, {vr(VP(j, 2), 2)} offset:{512*(5+j)}")
    a("L_AC_nodump:")
    weave([], pack_kv(0) + pack_q(1))
    a("s_waitcnt lgkmcnt(0)\ns_barrier")
    for j in range(5):
        a(f"ds_read_b64 {vr(KP(0) + 2*j, 2)}, v{vEXR} offset:{512*j}")
        a(f"ds_read_b64 {vr(VP(j, 0), 2)}, v{vEXR} offset:{512*(5+j)}")
    SC = lambda rt, h: (224 if rt else 184) + 8 * h
    MX = lambda rt: [76 + 4 * rt + h for h in range(4)]
    PT = lambda rt, h: 144 + 16 * rt + 4 * h
    def qk(rt):
        o = []
        for h in range(4):
            o += [mf(SC(rt, h), KP(1+rt) + 2*h, QT(rt, h), MC), mf(SC(rt, h) + 4, KP(rt) + 2*h, QT(rt, h), MP if rt else MPF)]
        return o
    def rowmax(rt):
        o = []
        for h in range(4):
            s = SC(rt, h); m = MX(rt)[h]
            o += [f"v_max_f32 v{s+r}, v{s+r}, v{s+4+r}" for r in range(4)]
            o += [f"v_max3_f32 v{m}, v{s}, v{s+1}, v{s+2}", f"v_max_f32 v{m}, v{m}, v{s+3}"]
        return o
    def xmax(rt):
        m = MX(rt)
        return [f"v_permlane32_swap_b32 v{m[0]}, v{m[1]}", f"v_permlane32_swap_b32 v{m[2]}, v{m[3]}",
                f"v_max_f32 v{m[0]}, v{m[0]}, v{m[1]}", f"v_max_f32 v{m[2]}, v{m[2]}, v{m[3]}",
                f"v_permlane16_swap_b32 v{m[0]}, v{m[2]}", f"v_max_f32 v{m[0]}, v{m[0]}, v{m[2]}",
                f"v_mul_f32 v{m[0]}, s{sT2}, v{m[0]}", f"v_mov_b32 v{m[2]}, v{m[0]}",
                f"v_permlane16_swap_b32 v{m[0]}, v{m[2]}", f"v_mov_b32 v{m[1]}, v{m[0]}", f"v_mov_b32 v{m[3]}, v{m[2]}",
                f"v_permlane32_swap_b32 v{m[0]}, v{m[1]}", f"v_permlane32_swap_b32 v{m[2]}, v{m[3]}"]
    def probs(rt):
        o = []
        for h in range(4):
            s = SC(rt, h); p = PT(rt, h)
            o += [f"v_fma_f32 v{s+r}, v{s+r}, s{sT}, v{MX(rt)[h]}" for r in range(4)]
            o += [f"v_exp_f32 v{s+r}, v{s+r}" for r in range(4)]
            if h:
                o += split(rt, h - 1)
        return o + split(rt, 3)
    def split(rt, h):
        s = SC(rt, h); p = PT(rt, h); o = []
        for q in range(2):
            o += [cv(p + q, s + 2*q), f"v_and_b32 v{p+2+q}, v{p+q}, v{PM+q}", f"v_xor_b32 v{p+q}, v{p+q}, v{p+2+q}"]
        return o
    OB = lambda rt, t: (224 if rt else 184) + 4 * t
    OA = lambda rt, t: (224 if rt else 184) + 12 + 4 * t
    SM = lambda rt, h: 88 + 16 * rt + 4 * h
    OF = lambda rt: 18 + 10 * rt
    def pv(rt):
        o = [mf(SM(rt, h), ONE, PT(rt, h), "0") for h in range(4)]
        for t in range(5):
            if t < 4: o.append(mf(OB(rt, t), VP(t, rt), PT(rt, t), "0"))
            if t > 0: o.append(mf(OA(rt, t), VP(t, rt), PT(rt, t-1), "0"))
        return o
    def finish(rt):
        o = [f"v_rcp_f32 v{SM(rt,h)}, v{SM(rt,h)}" for h in range(4)]
        for t in range(5):
            for q in range(2):
                d = OF(rt) + 2*t + q
                srcs = []
                if t < 4: srcs.append((OB(rt, t) + 2*q, SM(rt, t), d))
                if t == 4: srcs.append((OA(rt, t) + 2*q, SM(rt, 3), d))
                if (t, q) in SPLITS: srcs.append((OA(rt, t) + 2*q, SM(rt, t-1), 17))
                for x, inv, dd in srcs:
                    o += [f"v_mul_f32 v{x}, v{x}, v{inv}", f"v_mul_f32 v{x+1}, v{x+1}, v{inv}", cv(dd, x)]
                if (t, q) in SPLITS:
                    m = SPLITS[(t, q)]
                    o.append(f"v_cndmask_b32 v{d}, v{d}, v17, s[{m}:{m+1}]")
        return o
    a(f"s_mov_b32 s{sT}, {f32(CSC)}\ns_mov_b32 s{sT2}, {f32(-CSC)}")
    weave(qk(1), pack_q(0) + [f"v_mov_b32 v{ONE+j}, 0x3f803f80" for j in range(4)])
    a("s_waitcnt lgkmcnt(0)")
    weave(qk(0), rowmax(1))
    x1, x0 = xmax(1), xmax(0)
    r0 = rowmax(0)
    for i, x in enumerate(x1):
        a(x)
        for y in r0[2*i:2*i+2]: a(y)
    p1 = probs(1)
    for i, x in enumerate(x0):
        a(x)
        for y in p1[2*i:2*i+2]: a(y)
    weave([], p1[2*len(x0):])
    weave(pv(1), probs(0))
    weave(pv(0), finish(1))
    o_store(OF(1), vOF, vOL, 1)
    weave([], finish(0))
    o_store(OF(0), vOF, vOL, 0)
    stamp()
    a("s_branch L_P2")

def phi(r, n, t):
    o = [f"v_pk_fma_f32 {vr(t+j,2)}, {vr(r+j,2)}, s[56:57], v[14:15]" for j in range(0, n, 2)]
    for j in range(n):
        o += [f"v_exp_f32 v{t+j}, v{t+j} clamp", f"v_max_f32 v{r+j}, s{sT2}, v{r+j}"]
    return o + [f"v_pk_add_f32 {vr(r+j,2)}, {vr(r+j,2)}, {vr(t+j,2)}" for j in range(0, n, 2)]

def b_consumer():
    acc = lambda t, rt: 184 + (t * 2 + rt) * 4
    wf = lambda t: 148 + 4 * t
    xf = lambda ks, rt: 52 + ks * 8 + rt * 4 if ks < 12 else 36 + (ks % 2) * 8 + rt * 4
    R8, R2, aX = 1, 5, 6
    vOF, vOL, vEX = 8, 9, 10
    CK, CS = 28, 32
    a("L_BC:\ns_waitcnt lgkmcnt(0)")
    gap_touch("BC", 2)
    srds_rest()
    init_stores("BC", True)
    rd_lanes(R8, R2, 17, 18); x_lane(aX, aX + 1, 17)
    a(f"""
s_lshl_b32 s{sT}, s{sWAVE}, 12
s_add_u32 s{sT}, s{sT}, {B_X0}
v_add_u32 v{aX}, s{sT}, v{aX}
v_add_u32 v{aX+1}, s{sT}, v{aX+1}
v_and_b32 v17, 15, v0
v_cmp_gt_u32 vcc, 8, v17
v_mov_b32 v18, {EPS}
s_mov_b64 s[42:43], vcc
s_mul_i32 s{sT}, s{sWAVE}, 10240
s_add_u32 s{sT}, s{sT}, {B_EX}
v_lshl_add_u32 v{vEX}, v0, 4, s{sT}
v_mov_b32 v14, {f32(-1e-6*LOG2E)}
v_mov_b32 v15, v14
s_mov_b32 s56, {f32(LOG2E)}
s_mov_b32 s57, s56
""")
    for r in range(4):
        a(f"v_mov_b32 v{CK+r}, v18\nv_cndmask_b32 v{CS+r}, 0, v18, vcc")
    o_store_addr(vOF, vOL, 17, False)

    def wreads(ks, t):
        o = (ks % 5) * B_KVSLOT
        if t == 4:
            return [tr(wf(t), R2, o + 8192), tr(wf(t) + 2, R2, o + 8192 + 256)]
        s, j = (0, t) if t < 4 else (1, t - 5)
        return [tr(wf(t), R8 + j, o + 4096*s), tr(wf(t) + 2, R8 + j, o + 4096*s + 1024)]
    xread = lambda ks, rt: f"ds_read_b128 {vr(xf(ks, rt),4)}, v{aX + ks % 2} offset:{(ks//2 % 3)*B_XSLOT + rt*2048}"

    stamp()
    a("s_barrier")
    stamp()
    a(xread(0, 0)); a(xread(0, 1))
    for t in range(9):
        for x in wreads(0, t): a(x)
    for ks in range(18):
        if ks < 17:
            a("s_barrier")
        if ks == 3:
            init_flags("BC")
        tiles = [[mf(acc(t, rt), xf(ks, rt), wf(t), acc(t, rt) if ks else (CK if t < 4 else CS if t == 4 else "0")) for rt in range(2)] for t in range(9)]
        if ks < 17:
            nxt = [wreads(ks + 1, t) for t in range(9)]
            nxt[1] = [nxt[1][0], nxt[1][1] + "\n" + xread(ks + 1, 1)]
            kstep(tiles, nxt, [xread(ks + 1, 0)], {0: "s_waitcnt lgkmcnt(12)", 3: "s_waitcnt lgkmcnt(13)", 6: "s_waitcnt lgkmcnt(13)", 8: "s_waitcnt lgkmcnt(11)"})
        else:
            kstep(tiles, None, [], {0: "s_waitcnt lgkmcnt(12)", 3: "s_waitcnt lgkmcnt(0)\ns_barrier"})
    stamp()
    a(f"s_mov_b32 s{sT2}, {EPS}\nv_mov_b32 v16, 0x3f803f80")
    wr = lambda reg, slot: f"ds_write_b128 v{vEX}, {vr(reg,4)} offset:{1024*slot}"
    pk = lambda d, s: [cv(d + j, s + 2*j) for j in range(4)]
    weave([], pk(156, acc(4, 0)) + [f"v_cndmask_b32 v{156+j}, v{156+j}, v16, s[42:43]" for j in range(4)] + [wr(156, 9)])
    xq = lambda ks, rt: 168 + (ks - 12) * 8 + rt * 4 if ks in (12, 13) else acc(2 * (ks - 14) + rt, 1) if ks in (14, 15) else xf(ks, rt)
    reread = lambda ks, rt: f"ds_read_b128 {vr(xq(ks, rt),4)}, v{aX + ks % 2} offset:{(ks//2 % 3)*B_XSLOT + rt*2048}"
    weave([], [reread(ks, rt) for ks in (12, 13) for rt in range(2)])
    for tau in range(5):
        o = phi(acc(tau, 0), 8, 148)
        if tau < 4:
            o = pk(acc(5+tau, 0), acc(5+tau, 0)) + o[:8] + [wr(acc(5+tau, 0), 5 + tau)] + o[8:]
        weave([], o + pk(acc(tau, 0), acc(tau, 0)) + [wr(acc(tau, 0), tau)])
        if tau < 4:
            a(reread(14 + tau // 2, tau % 2))
    for j in range(5):
        a(f"v_add_u32 v{R8+j}, {B_WQ0}, v{R8+j}")
    a("s_waitcnt lgkmcnt(0)\ns_barrier")
    stamp()
    QA = lambda t, rt: 216 + (t * 2 + rt) * 4
    qf = lambda t: 148 + 4 * t
    qbase = lambda p: B_WQ0 if p < 4 else 0 if p < 7 else 15360
    def qreads(p, t):
        o = wq_slot(p) - qbase(p)
        if t == 4:
            return [tr(qf(t), R2, o + 4096), tr(qf(t) + 2, R2, o + 4096 + 256)]
        return [tr(qf(t), R8 + t, o), tr(qf(t) + 2, R8 + t, o + 1024)]
    for t in range(5):
        for x in qreads(0, t): a(x)
    for p in range(18):
        ks = QORD[p]
        if p == 7 or (p == 13 and OPT.get('wob', 0)):
            a("s_barrier")
        tiles = [[mf(QA(t, rt), qf(t), xq(ks, rt), QA(t, rt) if p else CK) for rt in range(2)] for t in range(5)]
        if p < 17:
            nxt = [qreads(p + 1, t) for t in range(5)]
            if qbase(p + 1) != qbase(p):
                d = (qbase(p + 1) - qbase(p)) & 0xffffffff
                for t in range(5):
                    nxt[t][0] = f"v_add_u32 v{R8+t}, {d}, v{R8+t}\n" + nxt[t][0]
            kstep(tiles, nxt, [], {t: f"s_waitcnt lgkmcnt({7 if t else 8})" for t in range(5)})
        else:
            kstep(tiles, None, [], {t: f"s_waitcnt lgkmcnt({8 - 2*t})" for t in range(5)})
    stamp()
    PQ = lambda rt: 36 + 10 * rt
    KO = 84
    tup = {0: KO, 1: KO + 4, 2: KO + 12, 3: KO + 20, 4: KO + 28}
    ZO = KO + 32
    weave([], [f"v_mov_b32 v{r}, 0" for r in (tup[1]+4, tup[1]+5, tup[2]+4, tup[2]+5, tup[3]+4, tup[3]+5, ZO+8, ZO+9)])
    a(f"v_lshlrev_b32 v16, 3, v0\nv_add_u32 v16, {B_KVOP}, v16")
    for t in range(5):
        weave([], phi(QA(t, 0), 8, 148) + [cv(PQ(rt) + 2*t + q, QA(t, rt) + 2*q) for rt in range(2) for q in range(2)])
    stamp()
    a("s_barrier")
    stamp()
    tid = lambda tau, taup: {-1: tau - 1, 0: 4 + tau, 1: 9 + tau}[taup - tau]
    rd = lambda d, slot: a(f"ds_read_b64 {vr(d,2)}, v16 offset:{512*slot}")
    for j, d in enumerate((ZO, ZO + 2, ZO + 4, ZO + 6, ZO + 10)):
        rd(d, 13 + j)
    rd(tup[0], tid(0, 0)); rd(tup[0] + 2, tid(1, 0))
    for t in (1, 2, 3):
        rd(tup[t], tid(t-1, t)); rd(tup[t] + 2, tid(t, t)); rd(tup[t] + 6, tid(t+1, t))
    rd(tup[4], tid(3, 4)); rd(tup[4] + 2, tid(4, 4))
    DN = lambda rt: 148 + 4 * rt
    NM = lambda rt, t: 184 + 20 * rt + 4 * t
    OF = lambda rt: 156 + 10 * rt
    a("s_waitcnt lgkmcnt(13)")
    for k, (zo, po) in enumerate(((0, 0), (4, 4), (8, 6))):
        for rt in range(2):
            a(mf(DN(rt), ZO + zo, PQ(rt) + po, DN(rt) if k else CK))
    a("s_waitcnt lgkmcnt(0)")
    def num(rt):
        o = [mf(NM(rt, t), tup[t], PQ(rt) + 2*(t-1), "0") for t in (1, 2, 3)]
        o += [mf(NM(rt, 0), tup[0], PQ(rt), "0"), mf(NM(rt, 4), tup[4], PQ(rt) + 6, "0")]
        return o + [mf(NM(rt, t), tup[t] + 4, PQ(rt) + 2*t, NM(rt, t)) for t in (1, 2, 3)]
    def fin(rt, packed):
        o = []
        for t in (0, 4, 1, 2, 3):
            for q in range(2):
                inv = DN(rt) + min(t, 3)
                if (t, q) in SPLITS:
                    m = SPLITS[(t, q)]
                    o.append(f"v_cndmask_b32 v17, v{DN(rt)+t}, v{DN(rt)+t-1}, s[{m}:{m+1}]")
                    inv = 17
                n = NM(rt, t) + 2*q
                o += [f"v_mul_f32 v{n}, v{n}, v{inv}", f"v_mul_f32 v{n+1}, v{n+1}, v{inv}", cv(OF(rt) + 2*t + q, n)]
        return o
    weave(num(0), [], 0)
    weave(num(1), [f"v_rcp_f32 v{DN(rt)+h}, v{DN(rt)+h}" for rt in range(2) for h in range(4)], 1)
    for rt in range(2):
        weave([], fin(rt, True))
        o_store(OF(rt), vOF, vOL, rt)
    stamp()

def kv_index(wreg, VS, VG, VZ):
    a(f"s_cmp_eq_u32 s{wreg}, 0\ns_cselect_b32 s58, 4, s{wreg}")
    for slot in range(3):
        if slot == 0:
            a(f"s_lshl_b32 s{sT}, s58, 4\ns_sub_u32 s{sT2}, s{sT}, 16\ns_mov_b64 s[46:47], 0")
        elif slot == 1:
            a(f"s_lshl_b32 s{sT}, s{wreg}, 4\ns_mov_b32 s{sT2}, s{sT}")
        else:
            a(f"s_add_u32 s{sT2}, s{sT}, 16\ns_cmp_eq_u32 s{wreg}, 3\ns_cselect_b32 s{sT2}, 56, s{sT2}\ns_cselect_b64 s[46:47], s[44:45], 0")
        kv_tile(VS and VS + 2*slot, VG and VG + 2*slot, False)
    if VZ:
        kv_z(VZ)

def kv_tile(VS, VG, last):
    a(f"v_add_u32 v3, s{sT2}, v1")
    head_of(4, 3)
    a(f"v_mul_u32_u24 v5, 18, v4\nv_sub_u32 v3, v3, v5\nv_cndmask_b32 v4, v4, 7, s[46:47]")
    if last:
        a("v_cmp_eq_u32 vcc, 0, v1\nv_cndmask_b32 v4, v4, 3, vcc\nv_cndmask_b32 v3, v3, 18, vcc")
    for q in range(2):
        a(f"v_add3_u32 v5, v2, s{sT}, {2*q}")
        head_of(6, 5)
        a("v_cmp_eq_u32 vcc, v4, v6\nv_mad_u32_u24 v5, v5, 19, v3\nv_lshlrev_b32 v5, 2, v5")
        if VS:
            a(f"v_add_u32 v6, {B_STG}, v5\nv_cndmask_b32 v{VS+q}, v8, v6, vcc")
        if VG:
            a(f"v_add_u32 v6, s{sM}, v5\nv_cndmask_b32 v{VG+q}, v9, v6, vcc")

def kv_z(VZ):
    a("v_and_b32 v3, 3, v0")
    for q in range(2):
        a(f"v_add3_u32 v5, v2, s{sT}, {2*q}")
        head_of(6, 5)
        a(f"v_cmp_eq_u32 vcc, v3, v6\nv_mul_u32_u24 v5, 76, v5\nv_add3_u32 v5, v5, s{sM}, 64\nv_add_u32 v5, 8, v5\nv_cndmask_b32 v{VZ+q}, v9, v5, vcc")

def b_loader(kind):
    a(f"L_B{kind}1:")
    m = M0(42)
    issue = (lambda c: w_issue("B", c, m)) if kind == "W" else (lambda c: x_issue("B", c, m))
    pre = 1 if OPT.get("early") and kind == "W" else 2
    cnt = {c: issue(c) for c in range(1, pre + 1)}
    stamp()
    mark = len(a.lines)
    VS, VG, vZS, vEA, vE0, vEL, vLA, vGA, vLW = 72, 80, 98, 99, 100, 101, 102, 103, 105
    if kind == "W":
        a(f"v_subrev_u32 v{VD+5}, 1152, v{VD}\nv_subrev_u32 v{VD+6}, 1152, v{VD+1}")
    srds_rest()
    if kind == "W":
        wo_setup(False)
    else:
        sync_setup()
    a(f"""
s_add_u32 s55, s{sV}, 2
s_mul_i32 s{sM}, s{sHG}, {KV_ST}
s_add_u32 s{sM}, s{sM}, {WS_KV}
v_and_b32 v1, 15, v0
v_lshrrev_b32 v2, 4, v0
v_lshlrev_b32 v2, 2, v2
v_cmp_gt_u32 s[44:45], 8, v1
v_lshlrev_b32 v8, 2, v0
v_add_u32 v8, {B_DUMP}, v8
v_mov_b32 v9, {OOB}
""")
    own = sV if kind == "X" else 55
    if kind == "X":
        kv_index(55, None, VG, VG + 6)
        a(f"s_movk_i32 s{sT}, 64")
        kv_z(10)
    kv_index(own, VS, VG + 8 if kind == "X" else None, VG + 14 if kind == "X" else None)
    a(f"""
v_add_u32 v5, s{sT}, v0
v_mul_u32_u24 v5, 76, v5
v_add_u32 v5, {B_STG + 72}, v5
v_cndmask_b32 v{vZS}, v8, v5, s[{sG0}:{sG0+1}]
v_lshlrev_b32 v{vEL}, 4, v0
v_add_u32 v{vEL}, {B_EX}, v{vEL}
s_lshl_b32 s{sT}, s{own}, 10
v_add_u32 v{vEA}, s{sT}, v{vEL}
s_lshl_b32 s{sT}, s58, 10
v_add_u32 v{vE0}, s{sT}, v{vEL}
""")
    if kind == "X":
        a(f"s_movk_i32 s{sT}, 64\ns_movk_i32 s{sT2}, 56\ns_mov_b64 s[46:47], s[44:45]")
        kv_tile(VS + 6, VG + 16, True)
        a(f"s_cmp_eq_u32 s{sV}, 0\ns_cselect_b64 s[46:47], -1, 0")
        for q in range(2):
            a(f"v_cndmask_b32 v{VS+6+q}, v8, v{VS+6+q}, s[46:47]\nv_cndmask_b32 v{VG+16+q}, v{10+q}, v{VG+16+q}, s[46:47]")
        a(f"""
v_lshlrev_b32 v5, 3, v0
v_add_u32 v5, {B_KVOP}, v5
s_lshl_b32 s{sT2}, s58, 9
s_sub_u32 s{sT2}, s{sT2}, 512
v_add_u32 v{vLW+2}, s{sT2}, v5
s_lshl_b32 s{sT2}, s{sV}, 9
v_add_u32 v{vLW+1}, s{sT2}, v5
v_add_u32 v{vLW}, 1024, v{vLW+1}
s_mul_i32 s{sT2}, s{sV}, {9*512}
v_add_u32 v{vLW+3}, s{sT2}, v5
s_mul_i32 s{sT}, s{sV}, 2816
v_lshl_add_u32 v{vLA}, v0, 2, s{sT}
v_add_u32 v{vGA}, s{sM}, v{vLA}
v_cmp_gt_u32 vcc, {5472 - 2560}, v{vLA}
v_cndmask_b32 v{vGA+1}, v9, v{vGA}, vcc
v_add_u32 v{vLA}, {B_STG}, v{vLA}
v_mov_b32 v4, 0
""")
    a(f"v_mov_b32 v10, {B_LCNT}\nv_mov_b32 v11, 1")
    if kind == "X":
        a("ds_write_b32 v10, v4\ns_waitcnt lgkmcnt(0)")
    setup = a.lines[mark:]
    del a.lines[mark:]
    per = -(-len(setup) // 9)
    a(f"s_waitcnt vmcnt({sum(cnt.values())})\ns_barrier")
    stamp()
    extra = 0
    for i in range(-1, 16):
        if i == -1 and pre == 1:
            cnt[2] = issue(2)
        if i + 4 <= 17:
            cnt[i+4] = issue(i + 4)
        if 0 <= i < 9:
            a("s_cmp_eq_u32 s59, 1")
            a.lines += setup[per*i:per*(i+1)]
            a("s_cselect_b32 s59, 1, 0")
        if i == 10 and kind == "X":
            flag_load(sFO, 98); flag_load(sFK, 99)
        if kind == "W" and i >= 14:
            extra += wq_issue(2*(i-14), m) + wq_issue(2*(i-14) + 1, m)
        left = sum(cnt.get(c, 0) for c in range(i + 3, min(i + 4, 17) + 1)) + extra
        a(f"s_waitcnt vmcnt({left})\ns_barrier")
    a("s_barrier")
    if kind == "W":
        for p in (4, 5, 6, 7, 13, 14, 15, 16, 17):
            wq_issue(p, m)
        a("s_waitcnt vmcnt(15)")
    else:
        flag_check(sFK, 99, "L_BX_fk")
    stamp()
    a("s_barrier")
    stamp()
    if kind == "W":
        for p in range(8, 13):
            wq_issue(p, m)
    KT = lambda s: 40 + 4 * s
    RD = lambda src, j: 112 + 28 * src + 4 * j
    srcs = ((vEA, 0), (vE0, 0), (vE0, 4096), (vEA, 5120), (vEA, 6144), (vEL, 9216), (vEL, 4096))
    prods = ((1, 2), (0, 3), (0, 4), (6, 5), (5, 0))
    if kind == "W":
        srcs = ((vEA, 0), None, (vE0, 4096), (vEA, 5120), (vEA, 6144), (vEL, 9216))
        prods = ((0, 2), (0, 3), (0, 4), None, (5, 0))
    nr = sum(x is not None for x in srcs)
    for src in range(4):
        for j, x in enumerate(srcs):
            if x: a(f"ds_read_b128 {vr(RD(src, j),4)}, v{x[0]} offset:{src*10240 + x[1]}")
    for src in range(4):
        a(f"s_waitcnt lgkmcnt({min(15, nr*(3-src))})")
        for s_, x in enumerate(prods):
            if x: a(mf(KT(s_), RD(src, x[0]), RD(src, x[1]), KT(s_) if src else "0"))
    for s_ in range(4 if kind == "X" else 3):
        for r in range(4):
            a(f"ds_write_b32 v{VS + 2*s_ + r//2}, v{KT(s_)+r} offset:{76*(r%2)}")
    a(f"ds_write_b32 v{vZS}, v{KT(4)}")
    a("s_waitcnt lgkmcnt(0)\ns_mov_b64 exec, 1\nds_add_u32 v10, v11\ns_mov_b64 exec, -1")
    stamp()
    b1, b2, b3 = {0: ((0, 1, 2, 3, 4, 5), (), (6, 7, 8)), 1: ((0, 1, 2), (3, 4, 5, 6, 7, 8), ()), 2: ((0, 1, 2), (3, 4, 5), (6, 7, 8))}[OPT.get("wob", 0)]
    if kind == "W":
        a("s_waitcnt vmcnt(0)\ns_barrier")
        for g in b1: wo_pair(g)
        if b2:
            a("s_barrier")
            for g in b2: wo_pair(g)
        stamp()
        a("s_barrier")
        loader_tail("BW", b3)
        return
    a(f"""
s_mov_b32 s{sT3}, 0x400000
L_BX_st:
ds_read_b32 v2, v10
s_waitcnt lgkmcnt(0)
v_readfirstlane_b32 s{sT}, v2
s_sub_u32 s{sT3}, s{sT3}, 1
s_cbranch_scc1 L_BX_st_x
s_cmp_ge_u32 s{sT}, 4
s_cbranch_scc0 L_BX_st
L_BX_st_x:
""")
    for n in range(11):
        a(f"ds_read_b32 v{40+n}, v{vLA} offset:{256*n}")
    for n in range(11):
        a(f"s_waitcnt lgkmcnt({10-n})")
        a(f"buffer_atomic_add_f32 v{40+n}, v{vGA + (n == 10)}, s[{SWS}:{SWS+3}], 0 offen offset:{256*n}")
    stamp()
    a("s_barrier")
    if b2:
        a("s_barrier")
    a("s_waitcnt vmcnt(0)")
    stamp()
    arrive_wait(sKC, 32, "L_BX_kc")
    stamp()
    for s_ in range(9):
        for r in range(4):
            a(f"buffer_load_dword v{112+4*s_+r}, v{VG + 2*s_ + r//2}, s[{SWS}:{SWS+3}], 0 offen offset:{76*(r%2)} sc1")
    dst = ((vLW, -1), (vLW, 4), (vLW, 9), (vLW, 13), (vLW + 2, 0), (vLW + 1, 4), (vLW + 1, 9), (vLW + 1, 13), (vLW + 3, 8))
    a(f"v_subrev_u32 v11, 512, v{vLW}")
    for s_, (ad, off) in enumerate(dst):
        a(f"s_waitcnt vmcnt({4*(8-s_)})")
        a(cv(40 + 2*s_, 112 + 4*s_)); a(cv(41 + 2*s_, 114 + 4*s_))
        a(f"ds_write_b64 v{11 if off < 0 else ad}, {vr(40+2*s_,2)} offset:{512*max(off, 0)}")
    a("s_waitcnt lgkmcnt(0)")
    stamp()
    a("s_barrier")
    loader_tail("BX")

def p2_consumer():
    OFR = lambda ks, rt: 112 + ks * 8 + rt * 4
    ACC = lambda t, rt: 72 + (t * 2 + rt) * 4
    wf = lambda t: 52 + 4 * t
    R8, R2, vO, vTW, vTR, VS = 1, 5, 6, 7, 8, 9
    AH = OPT["ahead"]
    a("L_P2:")
    nstamp[0] = 10
    rd_lanes(R8, R2, 17, 18)
    for j in range(5):
        a(f"v_add_u32 v{R8+j}, {R1}, v{R8+j}")
    a(f"""
v_lshl_add_u32 v{vO}, v0, 4, s58
s_mul_i32 s{sT}, s{sWAVE}, 4608
s_add_u32 s{sT}, s{sT}, {P_TR}
v_and_b32 v17, 15, v0
v_mul_u32_u24 v17, 144, v17
v_lshrrev_b32 v18, 4, v0
v_lshl_add_u32 v17, v18, 3, v17
v_add_u32 v{vTW}, s{sT}, v17
v_lshl_add_u32 v{vTR}, v0, 4, s{sT}
s_lshr_b32 s{sT}, s{sWAVE}, 1
s_and_b32 s{sT2}, s{sWAVE}, 1
s_lshl_b32 s{sT2}, s{sT2}, 5
s_lshl_b32 s{sT3}, s{sWAVE}, 5
s_cmp_eq_u32 s{sBR}, 0
s_cselect_b32 s42, s{sT}, 0
s_cselect_b32 s43, s{sT2}, s{sT3}
s_cselect_b32 s55, 1, 0
s_lshl_b32 s56, s42, 3
s_lshl_b32 s{sT}, s{sRB}, 7
s_add_u32 s42, s42, s{sT}
s_mul_i32 s{sT}, s{sBR}, 1152
s_mul_i32 s{sT2}, s{sHG}, 144
s_add_u32 s57, s{sT}, s{sT2}
""")
    for n in range(5):
        a(f"""
v_add_u32 v17, {64*n}, v0
v_mul_u32_u24 v18, 7282, v17
v_lshrrev_b32 v18, 16, v18
v_mul_u32_u24 v19, 9, v18
v_sub_u32 v19, v17, v19
v_add_u32 v18, s43, v18
v_xor_b32 v18, s56, v18
v_lshlrev_b32 v18, s55, v18
v_add_u32 v18, s42, v18
v_mul_u32_u24 v18, 2304, v18
v_lshl_add_u32 v18, v19, 4, v18
v_add_u32 v{VS+n}, s57, v18
""")
    a(f"v_mov_b32 v17, {OOB}\nv_cndmask_b32 v{VS+4}, v17, v{VS+4}, s[{sG01}:{sG01+1}]")
    a(f"v_add_u32 v14, 18432, v{vO}")
    SO = [8, 9, 10, 11, 12, 13, 14, 15, 36]
    rho(37)
    a(f"s_movk_i32 s{SO[0]}, 16384")
    for j in range(1, 9):
        a(f"s_add_u32 s{sT}, s37, {2*j-2}\ns_and_b32 s{sT}, s{sT}, 15\ns_lshl_b32 s{SO[j]}, s{sT}, 10")
    a("s_waitcnt vmcnt(0)")
    stamp()
    a("s_barrier\ns_barrier")
    stamp()
    def oload(ks, rt):
        return f"buffer_load_dwordx4 {vr(OFR(ks, rt),4)}, v{14 if rt else vO}, s[{SWS}:{SWS+3}], s{SO[ks//2]} offen offset:{1024*(ks%2)} sc1"
    base = lambda ks: R1 if ks < 3 else 0 if 9 <= ks < 12 else R2_
    R2_ = 43008
    def wreads(ks, t):
        o = WO[ks] - base(ks)
        if t == 4:
            return [tr(wf(t), R2, o + 4096), tr(wf(t) + 2, R2, o + 4096 + 256)]
        return [tr(wf(t), R8 + t, o), tr(wf(t) + 2, R8 + t, o + 1024)]
    for ks in range(AH):
        a(oload(ks, 0)); a(oload(ks, 1))
    for t in range(5):
        for x in wreads(0, t): a(x)
    for ks in range(18):
        tiles = [[mf(ACC(t, rt), wf(t), OFR(ks, rt), ACC(t, rt) if ks else "0") for rt in range(2)] for t in range(5)]
        w0 = f"s_waitcnt vmcnt({2*min(AH - 1, 17 - ks)}) lgkmcnt(8)"
        if ks < 17:
            nxt = [wreads(ks + 1, t) for t in range(5)]
            if base(ks + 1) != base(ks):
                d = (base(ks + 1) - base(ks)) & 0xffffffff
                for t in range(5):
                    nxt[t][0] = f"v_add_u32 v{R8+t}, {d}, v{R8+t}\n" + nxt[t][0]
            first = []
            if ks + AH < 18:
                first = [oload(ks + AH, 0)]
                nxt[1][1] += "\n" + oload(ks + AH, 1)
            kstep(tiles, nxt, first, {t: "s_waitcnt lgkmcnt(7)" if t else w0 for t in range(5)})
        else:
            kstep(tiles, None, [], {t: f"s_waitcnt lgkmcnt({8 - 2*t})" if t else w0 for t in range(5)})
        if ks == 0:
            stamp()
    stamp()
    for rt in range(2):
        for t in range(5):
            d = 20 + 2*(rt*5 + t)
            a(cv(d, ACC(t, rt))); a(cv(d + 1, ACC(t, rt) + 2))
            if t == 4:
                a(f"s_mov_b64 exec, s[{sG01}:{sG01+1}]")
            a(f"ds_write_b64 v{vTW}, {vr(d,2)} offset:{rt*2304 + 32*t}")
            if t == 4:
                a("s_mov_b64 exec, -1")
    a("s_waitcnt lgkmcnt(0)")
    for n in range(5):
        a(f"ds_read_b128 {vr(112+4*n,4)}, v{vTR} offset:{1024*n}")
    for n in range(5):
        a(f"s_waitcnt lgkmcnt({4-n})")
        a(f"buffer_store_dwordx4 {vr(112+4*n,4)}, v{VS+n}, s[{SOUT}:{SOUT+3}], 0 offen")
    stamp()
    stamps_out(0)
    a("s_endpgm")

HEADER = open("concat_heads__sliding_local_dilated__linear_attn_block__prompt.s.ref").read().split("; Override")[0]
out = HEADER + "; @launch grid=(256,1,1) block=(512,1,1) lds=163840\n"
a('.amdgcn_target "amdgcn-amd-amdhsa--gfx950"\n.text')
a(kernel_head(KN))
if OPT["stamps"]:
    for i in range(16):
        a(f"s_mov_b32 s{sST+2*i}, 0")
stamp()
a(f"""
s_cmp_ge_u32 s2, 256
s_cbranch_scc1 L_end
s_and_b32 s{sT}, s2, 7
s_lshr_b32 s{sBR}, s{sT}, 2
{'s_xor_b32 s6, s6, 1' if OPT.get('swap') else ''}
s_mul_i32 s{sT2}, s{sBR}, 24
s_add_u32 s0, s0, s{sT2}
s_addc_u32 s1, s1, 0
s_load_dwordx4 s[36:39], s[0:1], 0
s_load_dwordx2 s[40:41], s[0:1], 16
s_sub_u32 s0, s0, s{sT2}
s_subb_u32 s1, s1, 0
s_load_dwordx4 s[44:47], s[0:1], 48
s_load_dwordx2 s[48:49], s[0:1], 64
v_lshrrev_b32 v1, 6, v0
v_and_b32 v0, 63, v0
v_readfirstlane_b32 s{sWAVE}, v1
s_lshr_b32 s{sT2}, s2, 3
""")
m84 = f"""
s_and_b32 s{sHG}, s{sT2}, 3
s_and_b32 s{sT3}, s{sT}, 1
s_lshl_b32 s{sT3}, s{sT3}, 2
s_add_u32 s{sHG}, s{sHG}, s{sT3}
s_lshr_b32 s{sRB}, s{sT2}, 2
s_and_b32 s{sT3}, s{sT}, 2
s_lshl_b32 s{sT3}, s{sT3}, 2
s_add_u32 s{sRB}, s{sRB}, s{sT3}
"""
m48 = f"""
s_and_b32 s{sHG}, s{sT2}, 7
s_lshr_b32 s{sRB}, s{sT2}, 3
s_and_b32 s{sT3}, s{sT}, 3
s_lshl_b32 s{sT3}, s{sT3}, 2
s_add_u32 s{sRB}, s{sRB}, s{sT3}
"""
if OPT["mapping"] == 84:
    a(m84)
elif OPT["mapping"] == 48:
    a(m48)
else:
    a(m48 + f"s_cmp_eq_u32 s{sBR}, {0 if OPT['mapping'] == 8448 else 1}\ns_cbranch_scc0 L_map" + m84 + "L_map:")
rot = ""
if OPT.get("rot") == 2:
    rot = f"""s_lshr_b32 s90, s2, 1
s_xor_b32 s90, s90, s2
s_and_b32 s90, s90, 1
s_mul_i32 s91, s90, {OPT.get("rotby", 5)*128}
s_mul_i32 s90, s90, {OPT.get("rotby", 5)*64*3456}"""
elif OPT.get("rot") == 3:
    rot = f"""s_lshr_b32 s90, s2, 1
s_xor_b32 s90, s90, s2
s_and_b32 s90, s90, 1
s_mul_i32 s90, s90, 5
s_add_u32 s91, s{sRB}, s{sHG}
s_and_b32 s91, s91, 3
s_add_u32 s90, s90, s91
s_lshl_b32 s91, s90, 7
s_mul_i32 s90, s90, {64*3456}"""
elif OPT.get("rot") == 7:
    rot = f"""s_and_b32 s90, s{sHG}, 3
s_and_b32 s91, s{sRB}, 7
s_lshl1_add_u32 s90, s90, s91
s_cmp_ge_u32 s90, 9
s_cselect_b32 s91, 9, 0
s_sub_u32 s90, s90, s91
s_lshl_b32 s91, s90, 7
s_mul_i32 s90, s90, {64*3456}"""
elif OPT.get("rot") in (4, 5, 6):
    tab = {4: 0x75207520, 5: 0x63006300, 6: 0x86427531}[OPT["rot"]]
    rot = f"""s_add_u32 s90, s{sRB}, s{sHG}
s_and_b32 s90, s90, 7
s_lshl_b32 s90, s90, 2
s_lshr_b32 s90, {hex(OPT.get("tab", tab))}, s90
s_and_b32 s90, s90, 15
s_lshl_b32 s91, s90, 7
s_mul_i32 s90, s90, {64*3456}"""
elif OPT.get("rot"):
    few, many = (sRB, sHG) if OPT["mapping"] == 48 else (sHG, sRB)
    rot = f"""s_and_b32 s90, s{few}, 3
s_lshl_b32 s90, s90, 2
s_lshr_b32 s90, 0x7520, s90
s_and_b32 s90, s90, 15
s_and_b32 s91, s{many}, 7
s_add_u32 s90, s90, s91
s_cmp_ge_u32 s90, 9
s_cselect_b32 s91, 9, 0
s_sub_u32 s90, s90, s91
s_lshl_b32 s91, s90, 7
s_mul_i32 s90, s90, {64*3456}"""
a(f"""
s_mov_b32 s{sG0}, 0xffff
s_mov_b32 s{sG0+1}, 0
s_mov_b32 s{sG01}, -1
s_mov_b32 s{sG01+1}, 0
s_and_b32 s{sV}, s{sWAVE}, 1
s_mul_i32 s{sM}, s{sHG}, 144
s_cmp_lt_u32 s{sWAVE}, 4
s_cbranch_scc1 L_cons
s_setprio {OPT.get("prio", 2)}
s_mov_b32 s59, 0
{rot}
s_cmp_lt_u32 s{sWAVE}, 6
s_cbranch_scc1 L_wld
s_cmp_eq_u32 s{sBR}, 0
s_cbranch_scc1 L_AX0
s_branch L_BX0
L_wld:
s_cmp_eq_u32 s{sBR}, 0
s_cbranch_scc1 L_AW0
s_branch L_BW0
L_cons:
s_getpc_b64 s[42:43]
L_pc:
s_lshl_b32 s{sT}, s{sT2}, 2
s_add_u32 s{sT}, s{sT}, s{sWAVE}
s_lshl_b32 s{sT}, s{sT}, 9
v_and_b32 v1, 3, v0
v_lshlrev_b32 v1, 7, v1
v_add_u32 v1, s{sT}, v1
v_min_u32 v1, {'L_last2' if OPT.get('ifetch') == 1 else 'L_last'}-L_pc, v1
{'global_load_dword v27, v1, s[42:43]' if not OPT.get('nopf') else ''}
s_cmp_eq_u32 s{sBR}, 0
s_cbranch_scc1 L_AC
s_branch L_BC
L_end:
s_endpgm
""")
w_head("A"); w_head("B"); x_head("A"); x_head("B")
n0 = nstamp[0]
for fn in (lambda: a_loader("W"), lambda: a_loader("X"), a_consumer, lambda: b_loader("W"), lambda: b_loader("X"), b_consumer, p2_consumer):
    nstamp[0] = n0
    fn()
a("s_endpgm" if OPT.get("ifetch", 0) > 1 else "L_last2:\ns_endpgm" if OPT.get("ifetch") else "L_last:\ns_endpgm")
lines = []
for l in a.lines: lines += l.split("\n")
if OPT.get("noread"):
    lines = [l for l in lines if not l.startswith("ds_read_b64_tr")]
if OPT.get("nomfma"):
    lines = [l for l in lines if not l.startswith("v_mfma")]
lines, added = hz.fix(lines)
out += "\n".join(lines) + "\n"
out += '.section .rodata,"a"\n.p2align 6\n' + kernel_desc(KN, 256, 102 if OPT.get('cyc') else 100, 256)
sys.stdout.write(out)
sys.stderr.write(f"nop states added: {added}\n")
```

```python
import sys, struct
from asmlib import *
import hz

OPT = dict(stamps=0, mapping=48, ahead=6, rot=4, nt=1)
for arg in sys.argv[1:]:
    k, v = arg.split("=")
    OPT[k] = int(v)
KN = "concat_heads__sliding_local_dilated__linear_attn_block__prompt_kernel"

def f32(x):
    return "0x%08x" % struct.unpack("<I", struct.pack("<f", x))[0]

LOG2E = 1.4426950408889634
CSC = 18 ** -0.5 * LOG2E
NEG = "0xf149f2ca"
EPS = f32(1e-6)
OOB = "0x80000000"

O_BR = 0x240000
WS_KV = 0x500000
KV_ST = 0x2000
WS_CNT = 0x540000
WS_STAMP = 0x600000
WS_SIZE = 0x700000

sWAVE, sHG, sRB, sBR, sT = 3, 4, 5, 6, 7
SX, SW, SWS, SDBG, SWO, SOUT = 8, 12, 16, 20, 24, 28
sG0, sG01 = 32, 34
sK, sV, sM, sT2, sT3 = 50, 51, 52, 53, 54
sST = 60

a = Asm()
nstamp = [0]

def stamp():
    if OPT["stamps"]:
        i = nstamp[0]; nstamp[0] += 1
        assert i < 15
        a(f"{'s_memrealtime' if OPT.get('rt') or OPT.get('probe') and not (OPT.get('cyc') and i) else 's_memtime'} s[{sST+2*i}:{sST+2*i+1}]")
        if OPT.get("cyc") and i == 0:
            a("s_memtime s[100:101]")

def stamps_out(last=-1):
    if not OPT["stamps"]:
        return
    if OPT.get("probe"):
        if last == OPT.get("pwave", 0):
            j = sST + 2 * OPT["probe"]
            if OPT.get("ifetch"):
                mode = OPT["ifetch"]
                a(f"""
s_waitcnt vmcnt(0) lgkmcnt(0)
s_cmp_eq_u32 s2, {OPT.get('wg', 0)}
s_cbranch_scc0 L_probe_x
s_cmp_eq_u32 s{sWAVE}, 0
s_cbranch_scc0 L_probe_x
s_sleep 127
s_sleep 127
s_getpc_b64 s[44:45]
L_if_pc:
s_add_u32 s44, s44, L_if_blk-L_if_pc
s_addc_u32 s45, s45, 0
v_lshlrev_b32 v1, 7, v0
v_min_u32 v1, 4096, v1
""")
                if mode == 2:
                    a("global_load_dword v2, v1, s[44:45]\ns_waitcnt vmcnt(0)")
                a(f"""
s_memtime s[100:101]
s_waitcnt lgkmcnt(0)
s_branch L_if_blk
L_last:
.fill {(0 if mode == 1 else 8192)}, 4, 0xbf800000
L_if_blk:
.rept 512
v_add3_u32 v5, v0, v0, v0
.endr
s_memtime s[{j}:{j+1}]
s_waitcnt lgkmcnt(0)
s_sub_u32 s{j}, s{j}, s100
s_lshl_b32 s{j}, s{j}, 3
s_add_u32 s{j}, s{j}, s100
""")
            if OPT.get("vrate"):
                isw = OPT["vrate"] == 1
                a(f"""
s_waitcnt vmcnt(0) lgkmcnt(0)
s_load_dwordx2 s[44:45], s[0:1], {8 if isw else 0}
s_sleep 127
s_sleep 127
s_waitcnt lgkmcnt(0)
s_mov_b32 s46, {1990656 if isw else 2359296}
s_mov_b32 s47, 0x20000
v_lshrrev_b32 v1, 3, v0
v_mul_u32_u24 v1, {3456 if isw else 2304}, v1
v_and_b32 v2, 7, v0
v_lshl_add_u32 v1, v2, 4, v1
s_mov_b32 m0, 0
""")
                for rep in range(2):
                    if rep:
                        a("s_memtime s[100:101]\ns_waitcnt lgkmcnt(0)")
                    a(f"s_mov_b32 s40, 0\nL_vr{rep}:")
                    for n in range(3):
                        a(f"buffer_load_dwordx4 v1, s[44:47], s40 offen offset:{n*1152 if isw else n*128} lds")
                    a(f"s_waitcnt vmcnt(24)\ns_add_u32 s40, s40, {8*3456 if isw else 8*2304}\ns_cmp_lt_u32 s40, {72*8*3456 if isw else 72*8*2304}\ns_cbranch_scc1 L_vr{rep}\ns_waitcnt vmcnt(0)")
                a(f"s_memtime s[{j}:{j+1}]\ns_waitcnt lgkmcnt(0)\ns_sub_u32 s{j}, s{j}, s100\ns_lshl_b32 s{j}, s{j}, 3\ns_add_u32 s{j}, s{j}, s100")
            if OPT.get("skew"):
                op = "max" if OPT["skew"] in (1, 3) else "min"
                a(f"""
s_waitcnt vmcnt(0) lgkmcnt(0)
v_lshlrev_b32 v1, {4 if OPT['skew'] < 3 else 5}, v0
{'v_and_b32 v1, 0x3e0, v1' if OPT['skew'] >= 3 else ''}
v_add_u32 v1, 0x6f0000, v1
buffer_load_dwordx4 v[4:7], v1, s[{SWS}:{SWS+3}], 0 offen sc1
s_waitcnt vmcnt(0)
v_subrev_u32 v4, s{sST}, v4
v_subrev_u32 v5, s{sST}, v5
v_subrev_u32 v6, s{sST}, v6
v_subrev_u32 v7, s{sST}, v7
""")
                if OPT["skew"] < 3:
                    a(f"v_{op}_i32 v4, v4, v5\nv_{op}_i32 v6, v6, v7\nv_{op}_i32 v4, v4, v6")
                a("s_mov_b32 s44, 0\ns_nop 4")
                for l in range(64):
                    a(f"v_readlane_b32 s45, v4, {l}\ns_nop 3\ns_{op}_i32 s44, s44, s45")
                a(f"s_abs_i32 s44, s44\ns_add_u32 s{j}, s{sST}, s44")
            if OPT.get("ptr"):
                a(f"s_waitcnt vmcnt(0) lgkmcnt(0)\ns_load_dword s44, s[0:1], {OPT['ptr'] - 8}\ns_waitcnt lgkmcnt(0)\ns_lshr_b32 s44, s44, {OPT.get('sh', 4)}\ns_and_b32 s44, s44, 0xff\ns_mul_i32 s44, s44, 10\ns_add_u32 s{j}, s{sST}, s44")
            if OPT.get("tlb"):
                a(f"""
s_waitcnt vmcnt(0) lgkmcnt(0)
s_cmp_eq_u32 s{sWAVE}, 0
s_cbranch_scc0 L_probe_x
s_load_dwordx2 s[44:45], s[0:1], {OPT['tlb'] - 8}
s_sleep 127
s_sleep 127
s_waitcnt lgkmcnt(0)
s_mov_b32 s46, 0x1e0000
s_mov_b32 s47, 0x20000
v_lshlrev_b32 v1, {OPT.get('sh', 12)}, v0
""")
                for rep in range(2):
                    if rep:
                        a("s_memtime s[100:101]\ns_waitcnt lgkmcnt(0)")
                    a(f"s_mov_b32 s40, 0\nL_vr{rep}:")
                    for n in range(4):
                        a(f"s_add_u32 s41, s40, {n << (OPT.get('sh', 12) + 6)}\nbuffer_load_dword v{4+n}, v1, s[44:47], s41 offen")
                    st = 128 if OPT.get('sh', 12) > 7 else 32768
                    a(f"s_waitcnt vmcnt(4)\ns_add_u32 s40, s40, {st}\ns_cmp_lt_u32 s40, {16*st}\ns_cbranch_scc1 L_vr{rep}\ns_waitcnt vmcnt(0)")
                a(f"s_memtime s[{j}:{j+1}]\ns_waitcnt lgkmcnt(0)\ns_sub_u32 s{j}, s{j}, s100\ns_lshl_b32 s{j}, s{j}, 2\ns_add_u32 s{j}, s{j}, s100")
            if OPT.get("lat"):
                a(f"""
s_waitcnt vmcnt(0) lgkmcnt(0)
s_load_dwordx2 s[44:45], s[0:1], {OPT['lat'] - 8}
s_sleep 127
s_sleep 127
s_sleep 127
s_waitcnt lgkmcnt(0)
s_mov_b32 s46, 0x100000
s_mov_b32 s47, 0x20000
v_mov_b32 v1, 0x20000
buffer_load_dword v2, v1, s[44:47], 0 offen {'sc1' if OPT.get('first') != 2 else ''}
s_waitcnt vmcnt(0)
v_mov_b32 v1, {'0x20000' if not OPT.get('first') else '0x20040'}
s_memtime s[100:101]
s_waitcnt lgkmcnt(0)
buffer_load_dword v2, v1, s[44:47], 0 offen sc1
s_waitcnt vmcnt(0)
s_memtime s[{j}:{j+1}]
s_waitcnt lgkmcnt(0)
s_sub_u32 s{j}, s{j}, s100
s_lshl_b32 s{j}, s{j}, 5
s_add_u32 s{j}, s{j}, s100
""")
            if OPT.get("xcc"):
                a(f"""
s_waitcnt vmcnt(0) lgkmcnt(0)
v_and_b32 v1, 31, v0
v_lshlrev_b32 v1, {5 if OPT['xcc'] == 1 else 2}, v1
v_add_u32 v1, 0x6f0000, v1
buffer_load_dword v2, v1, s[{SWS}:{SWS+3}], 0 offen sc1
s_getreg_b32 s44, hwreg(HW_REG_XCC_ID, 0, 4)
s_waitcnt vmcnt(0)
v_cmp_eq_u32 vcc, s44, v2
s_bcnt1_i32_b32 s44, vcc_lo
s_mul_i32 s44, s44, 10
s_add_u32 s{j}, s{sST}, s44
""")
            a(f"""
s_waitcnt vmcnt(0) lgkmcnt(0)
s_cmp_eq_u32 s2, {OPT.get('wg', 0)}
s_cbranch_scc0 L_probe_x
s_cmp_eq_u32 s{sWAVE}, {last}
s_cbranch_scc0 L_probe_x
s_sub_u32 s{sT}, s{j}, s{100 if OPT.get('cyc') else sST}
{'s_lshr_b32 s7, s7, 3' if OPT.get('cyc') else 's_mul_i32 s7, s7, 10'}
s_min_u32 s{sT}, s{sT}, 100000
s_add_u32 s{sT}, s{sT}, 6000
L_probe:
s_memrealtime s[44:45]
s_waitcnt lgkmcnt(0)
s_sub_u32 s44, s44, s{sST}
s_cmp_lt_u32 s44, s{sT}
s_cbranch_scc1 L_probe
L_probe_x:
""")
        return
    a("s_waitcnt vmcnt(0) lgkmcnt(0)")
    a(f"s_lshl_b32 s{sT}, s2, 3\ns_add_u32 s{sT}, s{sT}, s{sWAVE}\ns_lshl_b32 s{sT}, s{sT}, 6")
    a(f"s_add_u32 s{sT}, s{sT}, {WS_STAMP}\nv_mov_b32 v1, s{sT}")
    for i in range(16):
        a(f"v_mov_b32 v2, s{sST+2*i}")
        a(f"buffer_store_dword v2, v1, s[{SWS}:{SWS+3}], 0 offen offset:{4*i}")
    a("s_waitcnt vmcnt(0)")

def mf(d, s0, s1, c):
    cc = c if isinstance(c, str) else vr(c, 4)
    return f"v_mfma_f32_16x16x32_bf16 {vr(d,4)}, {vr(s0,4)}, {vr(s1,4)}, {cc}"
def cv(d, x):
    return f"v_cvt_pk_bf16_f32 v{d}, v{x}, v{x+1}"
def tr(d, addr, off):
    return f"ds_read_b64_tr_b16 {vr(d,2)}, v{addr} offset:{off}"
def weave(mfmas, others, per=2):
    o = list(others)
    for m in mfmas:
        a(m)
        for _ in range(per):
            if o: a(o.pop(0))
    for x in o: a(x)

def srd(dst, lo, nbytes):
    a(f"s_mov_b32 s{dst}, s{lo}\ns_mov_b32 s{dst+1}, s{lo+1}\ns_mov_b32 s{dst+2}, {nbytes}\ns_mov_b32 s{dst+3}, 0x20000")
def srds_rest():
    srd(SWO, 40, 663552); srd(SOUT, 44, 4718592); srd(SDBG, 46, 256); srd(SWS, 48, WS_SIZE)

class M0:
    def __init__(self, base): self.base = base; self.cur = None
    def set(self, imm):
        if self.cur is not None and -32768 <= imm - self.cur <= 32767:
            a(f"s_addk_i32 m0, {imm - self.cur}")
        else:
            a(f"s_add_u32 m0, s{self.base}, {imm}")
        self.cur = imm

CUR = [0]
def dma(voff, srd_, soff, half=False):
    if OPT.get("nodma") or (OPT.get("nos") and voff == VD + 6 and srd_ == SW and not half):
        return
    if half: a(f"s_mov_b64 exec, s[{sG01}:{sG01+1}]")
    nt = " nt" if OPT.get("nt", 0) >> {SX: 0, SW: 1, SWO: 2}[srd_] & 1 and CUR[0] < OPT.get("ntc", 99) else ""
    a(f"buffer_load_dwordx4 v{voff}, s[{srd_}:{srd_+3}], {soff} offen{nt} lds")
    if half: a("s_mov_b64 exec, -1")

def rd_lanes(r8, r2, t0, t1):
    a(f"""
v_lshrrev_b32 v{t0}, 5, v0
v_lshlrev_b32 v{t0}, 4, v{t0}
v_bfe_u32 v{t1}, v0, 4, 1
v_lshl_add_u32 v{t0}, v{t1}, 2, v{t0}
v_bfe_u32 v{t1}, v0, 2, 2
v_add_u32 v{t0}, v{t0}, v{t1}
v_and_b32 v{t1}, 3, v0
v_lshlrev_b32 v{t1}, 3, v{t1}
v_lshl_add_u32 v{r2}, v{t0}, 5, v{t1}
v_lshl_add_u32 v{r8}, v{t0}, 7, v{t1}
v_bfe_u32 v{t0}, v{t0}, 1, 2
v_lshl_add_u32 v{r8}, v{t0}, 5, v{r8}
""")
    for t in (1, 2, 3):
        a(f"v_xor_b32 v{r8+t}, {32*t}, v{r8}")

def x_lane(d0, d1, tmp):
    a(f"""
v_lshrrev_b32 v{d0}, 4, v0
v_bfe_u32 v{tmp}, v0, 1, 3
v_xor_b32 v{d0}, v{d0}, v{tmp}
v_and_b32 v{tmp}, 15, v0
v_lshlrev_b32 v{tmp}, 7, v{tmp}
v_lshl_add_u32 v{d0}, v{d0}, 4, v{tmp}
v_xor_b32 v{d1}, 64, v{d0}
""")

def col8(dst, tmp):
    a(f"v_bfe_u32 v{tmp}, v0, 4, 2\nv_lshlrev_b32 v{tmp}, 1, v{tmp}\nv_and_b32 v{dst}, 7, v0\nv_xor_b32 v{dst}, v{dst}, v{tmp}\nv_lshlrev_b32 v{dst}, 4, v{dst}")

def head_of(dst, src):
    a(f"v_mul_u32_u24 v{dst}, 57, v{src}\nv_lshrrev_b32 v{dst}, 10, v{dst}")

sOC, sKC, sFO, sFK = 92, 94, 96, 97

def arrive_wait(addr, target, label, arrive=True):
    if arrive:
        a(f"s_mov_b32 s{sT}, 1\ns_atomic_add s{sT}, s[{addr}:{addr+1}], 0 glc\ns_waitcnt lgkmcnt(0)\ns_cmp_ge_u32 s{sT}, {target-1}\ns_cbranch_scc1 {label}_x")
    a(f"""
s_mov_b32 s{sT3}, 0x20000
{label}:
s_mov_b32 s{sT}, 0
s_atomic_add s{sT}, s[{addr}:{addr+1}], 0 glc
s_waitcnt lgkmcnt(0)
s_sub_u32 s{sT3}, s{sT3}, 1
s_cbranch_scc1 {label}_x
s_cmp_ge_u32 s{sT}, {target}
s_cbranch_scc0 {label}
{label}_x:
""")

def flag_load(dst, offreg):
    a(f"s_load_dword s{dst}, s[{SDBG}:{SDBG+1}], s{offreg}")

def flag_check(val, offreg, label):
    a(f"""
s_mov_b32 s{sT3}, 0x20000
{label}:
s_waitcnt lgkmcnt(0)
s_cmp_lg_u32 s{val}, 0
s_cbranch_scc1 {label}_x
s_sub_u32 s{sT3}, s{sT3}, 1
s_cbranch_scc1 {label}_x
s_load_dword s{val}, s[{SDBG}:{SDBG+1}], s{offreg} glc
s_branch {label}
{label}_x:
""")

A_WSLOT, A_XSLOT = 14336, 18432
A_X0 = 5 * A_WSLOT
A_EX = A_X0 + 3 * A_XSLOT
B_KVSLOT, B_XSLOT = 9216, 16384
B_X0 = 5 * B_KVSLOT
B_EX = B_X0 + 3 * B_XSLOT
B_KVOP = 126976
B_STG = 136192
B_DUMP, B_LCNT = B_STG + 5632, B_STG + 6144
B_WQ0 = 143360
QORD = list(range(18))
def wq_slot(p):
    if p < 4: return B_WQ0 + 5120 * p
    if p < 7: return 5120 * (p - 4)
    if p < 13: return 40960 + 5120 * (p - 7)
    return 15360 + 5120 * (p - 13)
R1, R2 = 147456, 43008
WO = [R1, R1 + 5120, R1 + 10240] + [R2 + 5120 * n for n in range(6, 12)] + [0, 5120, 10240] + [R2 + 5120 * n for n in range(6)]
P_TR = 108544
SPLITS = {(1, 0): sG0, (2, 0): sG0, (2, 1): sG0, (3, 0): sG01, (3, 1): sG0}

VD = 16
VWO = 26
vCNT, vFLO, vFLK, vFO, vFK = 30, 31, 32, 33, 34

def w_head(kind):
    parts = (0, 1152, 2304) if kind == "A" else (1152, 2304)
    a(f"L_{kind}W0:")
    col8(VD, 1)
    a(f"""
v_bfe_u32 v1, v0, 5, 1
v_bfe_u32 v2, v0, 3, 2
v_lshl_add_u32 v1, v1, 3, v2
s_mul_i32 s{sT}, s{sV}, {16*3456}
s_add_u32 s{sT}, s{sT}, s{sM}
v_mul_u32_u24 v1, 3456, v1
v_add3_u32 v{VD}, v{VD}, v1, s{sT}
""")
    n = 2 * len(parts)
    for j in range(n - 1, -1, -1):
        off = parts[j // 2] + (j % 2) * 4 * 3456
        if off:
            a(f"v_add_u32 v{VD+j}, {off}, v{VD}")
    a(f"""
v_bfe_u32 v1, v0, 3, 1
v_bfe_u32 v2, v0, 4, 1
v_sub_u32 v1, v1, v2
v_lshrrev_b32 v2, 1, v0
v_lshl_add_u32 v1, v1, 2, v2
v_mul_u32_u24 v1, 3456, v1
v_and_b32 v2, 1, v0
""")
    if kind == "A":
        a(f"""
s_cmp_eq_u32 s{sV}, 0
s_cselect_b32 s{sT2}, 1152, 0
s_cselect_b32 s{sT}, 0, 2304
s_add_u32 s{sT}, s{sT}, s{sM}
s_addk_i32 s{sT}, 128
v_mad_u32_u24 v1, v2, s{sT2}, v1
v_add_u32 v{VD+6}, s{sT}, v1
""")
    else:
        a(f"""
s_add_u32 s{sT}, s{sT}, 128
v_add_u32 v{VD+7}, s{sT}, v1
v_mul_u32_u24 v2, 1152, v2
v_add_u32 v2, 1152, v2
v_add_u32 v{VD+4}, v2, v{VD+7}
""")
    a(f"s_lshl_b32 s42, s{sV}, 11\ns_lshl_b32 s43, s{sV}, {10 if kind == 'A' else 9}\ns_sub_u32 s43, s43, s42")
    a("s_waitcnt lgkmcnt(0)")
    srd(SW, 38, 1990656)
    m = M0(42)
    w_issue(kind, 0, m)
    a(f"s_branch L_{kind}W1")

def w_issue(kind, c, m):
    CUR[0] = c
    slot = (c % 5) * (A_WSLOT if kind == "A" else B_KVSLOT)
    n = 6 if kind == "A" else 4
    so = f"s{sK}" if c else "0"
    if OPT.get("rot"):
        so = "s90"
        if c:
            a(f"s_add_u32 s90, s90, {32*3456}\ns_cmp_eq_u32 s90, {18*32*3456}\ns_cselect_b32 s90, 0, s90")
    elif c:
        a(f"s_mov_b32 s{sK}, {c*32*3456}")
    for j in range(n):
        m.set(slot + 4096 * (j // 2) + 1024 * (j % 2))
        dma(VD + j, SW, so)
    m.set(slot + 4096 * (n // 2))
    a("s_add_u32 m0, m0, s43")
    m.cur = None
    dma(VD + n, SW, so, half=(kind == "B"))
    return n + 1

def wq_issue(p, m):
    if OPT.get("rot"):
        a(f"s_add_u32 s{sK}, s90, {(p+1)*32*3456}\ns_cmp_ge_u32 s{sK}, {18*32*3456}\ns_cselect_b32 s{sT}, {18*32*3456}, 0\ns_sub_u32 s{sK}, s{sK}, s{sT}")
    else:
        a(f"s_mov_b32 s{sK}, {QORD[p]*32*3456}")
    for j in range(2):
        m.set(wq_slot(p) + 1024 * j)
        dma(VD + 5 + j, SW, f"s{sK}")
    m.set(wq_slot(p) + 4096)
    a("s_add_u32 m0, m0, s43")
    m.cur = None
    dma(VD + 7, SW, f"s{sK}", half=True)
    return 3

def x_head(kind):
    nq = 9 if kind == "A" else 8
    a(f"L_{kind}X0:")
    a(f"""
v_lshrrev_b32 v1, 3, v0
v_mul_u32_u24 v1, {2304 if kind == 'A' else 1152}, v1
v_lshrrev_b32 v2, 4, v0
v_lshl_add_u32 v2, s{sV}, 2, v2
v_and_b32 v3, 7, v0
v_xor_b32 v2, v2, v3
v_lshl_add_u32 v1, v2, 4, v1
s_mul_i32 s{sT}, s{sRB}, {128*1152}
""")
    if kind == "A":
        a(f"""
s_mul_i32 s{sT2}, s{sV}, {16*1152}
s_add_u32 s{sT3}, s{sT}, s{sT2}
v_add_u32 v{VD}, s{sT3}, v1
s_sub_u32 s{sT3}, s{sT}, s{sT2}
s_add_u32 s{sT3}, s{sT3}, {17*1152}
v_add_u32 v{VD+4}, s{sT3}, v1
s_mul_i32 s{sT2}, s{sV}, 1152
s_sub_u32 s{sT3}, s{sT}, s{sT2}
s_sub_u32 s{sT3}, s{sT3}, {15*1152}
v_add_u32 v{VD+8}, s{sT3}, v1
""")
        for q in (1, 2, 3):
            a(f"v_add_u32 v{VD+q}, {32*1152*q}, v{VD}\nv_add_u32 v{VD+4+q}, {32*1152*q}, v{VD+4}")
    else:
        a(f"s_mul_i32 s{sT2}, s{sV}, {8*1152}\ns_add_u32 s{sT}, s{sT}, s{sT2}\nv_add_u32 v{VD}, s{sT}, v1")
        for q in range(1, 8):
            a(f"v_add_u32 v{VD+q}, {16*1152*q}, v{VD}")
    a(f"s_lshl_b32 s42, s{sV}, 10")
    a("s_waitcnt lgkmcnt(0)")
    srd(SX, 36, 2359296)
    x_issue(kind, 0, M0(42))
    a(f"s_branch L_{kind}X1")

def x_issue(kind, c, m):
    CUR[0] = c + (c & 1)
    nq, h, x0, xs = (9, 5, A_X0, A_XSLOT) if kind == "A" else (8, 4, B_X0, B_XSLOT)
    st = (c + 1) // 2
    if st > 8:
        return 0
    qs = range(nq) if c == 0 else (range(h) if c % 2 else range(h, nq))
    so = f"s{sK}" if st else "0"
    if OPT.get("rot"):
        so = "s91"
        if c % 2:
            a("s_addk_i32 s91, 128\ns_cmpk_eq_u32 s91, 1152\ns_cselect_b32 s91, 0, s91")
    elif st:
        a(f"s_movk_i32 s{sK}, {st*128}")
    for q in qs:
        m.set(x0 + (st % 3) * xs + 2048 * q)
        a("s_nop 0")
        dma(VD + q, SX, so)
    return len(qs)

def wo_setup(quad):
    col8(VWO, 1)
    a(f"""
s_mul_i32 s{sM}, s{sHG}, 144
v_add_u32 v{VWO}, s{sM}, v{VWO}
v_bfe_u32 v1, v0, 5, 1
v_bfe_u32 v2, v0, 3, 2
v_mul_u32_u24 v1, 72, v1
v_add_u32 v1, v1, v2
v_mul_u32_u24 v1, 1152, v1
v_add_u32 v{VWO+1}, v1, v{VWO}
v_lshrrev_b32 v1, 3, v0
v_mul_u32_u24 v1, 1152, v1
v_add_u32 v{VWO}, v1, v{VWO}
v_bfe_u32 v1, v0, 1, 2
v_bfe_u32 v2, v0, 3, 1
v_bfe_u32 v3, v0, 4, 1
v_bfe_u32 v4, v0, 5, 1
v_lshl_add_u32 v5, v2, 2, v1
v_lshl_add_u32 v5, v3, 4, v5
v_lshl_add_u32 v5, v4, 3, v5
v_mul_u32_u24 v5, 1152, v5
s_add_u32 s{sM}, s{sM}, 128
v_add_u32 v{VWO+2}, s{sM}, v5
v_lshl_add_u32 v5, v3, 2, v1
v_lshl_add_u32 v2, v4, 1, v2
v_mul_u32_u24 v2, 72, v2
v_add_u32 v5, v5, v2
v_mul_u32_u24 v5, 1152, v5
v_add_u32 v{VWO+3}, s{sM}, v5
s_and_b32 s55, s{sWAVE}, 3
s_lshl_b32 s57, s55, 3
""")
    rho(56)
    a(f"s_add_u32 s56, s56, s{55 if quad else sV}")

def rho(dst):
    few, many = (sRB, sHG) if OPT["mapping"] == 48 else (sHG, sRB)
    if OPT["mapping"] > 99:
        a(f"s_cmp_eq_u32 s{sBR}, {0 if OPT['mapping'] == 8448 else 1}\ns_cselect_b32 s{sT}, s{sHG}, s{sRB}\ns_cselect_b32 s{sT2}, s{sRB}, s{sHG}")
        few, many = sT, sT2
    a(f"s_lshl_b32 s{dst}, s{few}, 1\ns_add_u32 s{dst}, s{dst}, s{many}\ns_lshl_b32 s{dst}, s{dst}, 1")
    if not OPT.get("worot", 1):
        a(f"s_mov_b32 s{dst}, 0")

def wo_chunk(left, fadd):
    if left:
        a(f"s_mul_i32 s{sK}, s{sV}, {288*1152}\ns_add_u32 s{sK}, s{sK}, {64*1152}")
        steps = (4, 140, 4); v8, v2 = VWO + 1, VWO + 3
    else:
        a(f"""
s_add_u32 s{sT}, s56, {fadd}
s_bfe_u32 s{sK}, s{sT}, 0x30001
s_mul_i32 s{sK}, s{sK}, {72*1152}
s_bitcmp1_b32 s{sT}, 0
s_cselect_b32 s{sT}, {32*1152}, 0
s_add_u32 s{sK}, s{sK}, s{sT}
""")
        steps = (16, -8, 16); v8, v2 = VWO, VWO + 2
    a(f"s_mov_b32 s{sT2}, s{sK}")
    for j in range(4):
        dma(v8, SWO, f"s{sK}")
        a("s_addk_i32 m0, 1024")
        a(f"s_add_u32 s{sK}, s{sK}, {steps[j]*1152 & 0xffffffff}" if j < 3 else "s_nop 0")
    dma(v2, SWO, f"s{sT2}")
    return 5

def wo_issue(q):
    packed = sum((WO[2 + 4*q + w] // 1024) << (8 * w) for w in range(4))
    a(f"s_lshr_b32 s{sT}, {packed}, s57\ns_and_b32 s{sT}, s{sT}, 0xff\ns_lshl_b32 m0, s{sT}, 10")
    return wo_chunk(False, 4*q)

def wo_pair(g):
    a(f"s_mul_i32 s{sT}, s{sV}, {WO[2*g+1] - WO[2*g] & 0xffffffff}\ns_add_u32 m0, s{sT}, {WO[2*g]}")
    return wo_chunk(g == 0, 2*g - 2)

def sync_setup():
    a(f"""
s_lshl_b32 s{sT}, s{sBR}, 4
s_add_u32 s{sT}, s{sT}, s{sRB}
s_lshl_b32 s{sT2}, s{sT}, 8
s_add_u32 s{sT2}, s{sT2}, {WS_CNT}
s_add_u32 s{sOC}, s{SWS}, s{sT2}
s_addc_u32 s{sOC+1}, s{SWS+1}, 0
s_lshl_b32 s{sT}, s{sT}, 2
s_add_u32 s98, s{sT}, 32
s_lshl_b32 s99, s{sHG}, 2
s_mul_i32 s{sT2}, s{sHG}, {KV_ST}
s_add_u32 s{sT2}, s{sT2}, {WS_KV + 6144}
s_add_u32 s{sKC}, s{SWS}, s{sT2}
s_addc_u32 s{sKC+1}, s{SWS+1}, 0
""")

def loader_tail(tag, late=()):
    if tag[1] == "X":
        flag_check(sFO, 98, f"L_{tag}_fo")
    a("s_barrier")
    stamp()
    for g in late:
        wo_pair(g)
    if tag[1] == "X":
        a(f"s_cmp_eq_u32 s{sWAVE}, 6\ns_cbranch_scc0 L_{tag}_oc_x")
        arrive_wait(sOC, 8, f"L_{tag}_oc")
    a("s_waitcnt vmcnt(0)")
    stamp()
    a("s_barrier")
    stamps_out(4 if tag == "AW" else -1)
    a("s_endpgm")

def a_loader(kind):
    a(f"L_A{kind}1:")
    m = M0(42)
    issue = (lambda c: w_issue("A", c, m)) if kind == "W" else (lambda c: x_issue("A", c, m))
    if OPT.get("prepass"):
        a("s_mov_b32 s58, s90\ns_mov_b32 s59, s91")
        n_ = {}
        for c in range(1, 18):
            if OPT["prepass"] == 2:
                a("s_mov_b32 s90, s58\ns_mov_b32 s91, s59")
            n_[c] = issue(c)
            a(f"s_waitcnt vmcnt({n_[c] + n_.get(c-1, 0)})")
            if c in (4, 9):
                stamp()
        a("s_waitcnt vmcnt(0)")
        stamp()
        a("s_barrier\ns_mov_b32 s90, s58\ns_mov_b32 s91, s59")
        m.cur = None
        issue(0)
    pre = 1 if OPT.get("early") and kind == "W" else 2
    cnt = {c: issue(c) for c in range(1, pre + 1)}
    stamp()
    x_lane(8, 9, 1)
    rd_lanes(36, 12, 1, 2)
    a(f"""
v_add_u32 v8, {A_X0 + 8*2048}, v8
v_add_u32 v9, {A_X0 + 8*2048}, v9
s_lshl_b32 s{sT}, s{sV}, 6
v_xor_b32 v10, s{sT}, v36
v_add_u32 v10, {4096 if kind == 'W' else 8192}, v10
v_xor_b32 v11, 32, v10
v_add_u32 v12, {12288 if kind == 'W' else 13312}, v12
v_add_u32 v13, {4*A_WSLOT}, v10
v_add_u32 v14, {4*A_WSLOT}, v11
v_add_u32 v15, {4*A_WSLOT}, v12
s_lshl_b32 s{sT}, s{sV}, 10
s_add_u32 s{sT}, s{sT}, {A_EX + (0 if kind == 'W' else 2560)}
v_lshlrev_b32 v7, 3, v0
v_add_u32 v6, s{sT}, v7
v_add_u32 v7, {A_EX + (2048 if kind == 'W' else 4608)}, v7
""")
    stamp()
    a(f"s_waitcnt vmcnt({sum(cnt.values())})\ns_barrier")
    stamp()
    extra = 0
    for i in range(-1, 17):
        ks = i + 1
        slot = ks % 5
        off = 0 if slot == 4 else slot * A_WSLOT
        ad = (13, 14, 15) if slot == 4 else (10, 11, 12)
        a(f"ds_read_b128 v[40:43], v{8 + ks % 2} offset:{(ks//2 % 3)*A_XSLOT}")
        for j in range(3 if OPT.get("nohalo", 0) < 2 else 0):
            a(tr(44 + 4*j, ad[j], off)); a(tr(46 + 4*j, ad[j], off + (1024 if j < 2 else 256)))
        if i == -1 and pre == 1:
            cnt[2] = issue(2)
        if i + 4 <= 17:
            cnt[i+4] = issue(i + 4)
        a("s_waitcnt lgkmcnt(0)")
        for j in range(3 if not OPT.get("nohalo") else 0):
            c = 60 + 4*j if ks else "0"
            a(mf(60 + 4*j, 44 + 4*j, 40, c) if kind == "W" else mf(60 + 4*j, 40, 44 + 4*j, c))
        if i == 1:
            srds_rest(); sync_setup()
        if i == 2:
            wo_setup(True)
        if i == 14 and kind == "W":
            extra += wo_pair(0)
        if i == 15:
            extra += wo_issue(0)
        if i + 1 <= 16:
            left = sum(cnt.get(c, 0) for c in range(i + 3, min(i + 4, 17) + 1)) + extra
            a(f"s_waitcnt vmcnt({left})\ns_barrier")
            if OPT.get("fine") and kind == "W" and i % 2 == 1 and 0 < i < 14:
                stamp()
    for j in range(3):
        a(cv(44 + 2*j, 60 + 4*j)); a(cv(45 + 2*j, 62 + 4*j))
    if kind == "W":
        a("v_mov_b32 v50, 0\nv_mov_b32 v51, 0")
        a("v_permlane32_swap_b32 v48, v50\nv_permlane32_swap_b32 v49, v51")
    a("ds_write_b64 v6, v[44:45]\nds_write_b64 v6, v[46:47] offset:512")
    a(f"ds_write_b64 v7, {'v[50:51]' if kind == 'W' else 'v[48:49]'}")
    stamp()
    a("s_waitcnt lgkmcnt(0)\ns_barrier")
    if kind == "X":
        flag_load(sFO, 98)
    wo_issue(1); wo_issue(2); wo_issue(3)
    stamp()
    loader_tail("A" + kind)

def o_store_addr(vfull, vleft, tmp, left_lo):
    a(f"""
s_lshl_b32 s{sT}, s{sRB}, 3
s_lshl_b32 s{sT2}, s{sWAVE}, 1
s_add_u32 s{sT}, s{sT}, s{sT2}
s_mul_i32 s{sT}, s{sT}, 18432
s_mul_i32 s{sT2}, s{sBR}, {O_BR}
s_add_u32 s58, s{sT}, s{sT2}
s_lshl_b32 s{sT2}, s{sHG}, 11
s_add_u32 s{sT2}, s{sT2}, s58
v_lshl_add_u32 v{vfull}, v0, 4, s{sT2}
s_lshr_b32 s{sT2}, s{sHG}, 2
s_add_u32 s{sT2}, s{sT2}, 16
s_lshl_b32 s{sT2}, s{sT2}, 10
s_add_u32 s{sT}, s58, s{sT2}
s_and_b32 s{sT2}, s{sHG}, 3
s_lshl_b32 s{sT2}, s{sT2}, 8
s_add_u32 s{sT}, s{sT}, s{sT2}
v_and_b32 v{vleft}, 15, v0
v_lshlrev_b32 v{vleft}, 4, v{vleft}
v_bfe_u32 v{tmp}, v0, 4, 1
v_lshl_add_u32 v{vleft}, v{tmp}, 3, v{vleft}
v_add_u32 v{vleft}, s{sT}, v{vleft}
v_mov_b32 v{tmp}, {OOB}
""")
    x, y = (tmp, vleft) if left_lo else (vleft, tmp)
    a(f"v_cndmask_b32 v{vleft}, v{x}, v{y}, s[{sG01}:{sG01+1}]")

def o_store(of, vfull, vleft, rt):
    so = f"s{sK}" if rt else "0"
    if rt:
        a(f"s_movk_i32 s{sK}, 18432")
    a(f"buffer_store_dwordx4 {vr(of,4)}, v{vfull}, s[{SWS}:{SWS+3}], {so} offen sc1")
    a(f"buffer_store_dwordx4 {vr(of+4,4)}, v{vfull}, s[{SWS}:{SWS+3}], {so} offen offset:1024 sc1")
    a(f"buffer_store_dwordx2 {vr(of+8,2)}, v{vleft}, s[{SWS}:{SWS+3}], {so} offen sc1")

def gap_touch(tag, parts):
    if not OPT.get("touch"):
        return
    nt = " nt" if OPT.get("tnt") else ""
    a(f"""
s_cmp_eq_u32 s{sWAVE}, 1
s_cbranch_scc1 L_{tag}_tw
s_cmp_eq_u32 s{sWAVE}, 2
s_cbranch_scc0 L_{tag}_tx
s_and_b32 s{sT}, s{sRB}, 7
s_cmp_eq_u32 s{sT}, 0
s_cselect_b32 s{sT}, 9, s{sT}
s_sub_u32 s{sT}, s{sT}, 1
s_lshl_b32 s{sT}, s{sT}, 7
s_and_b32 s{sT2}, s{sHG}, 3
s_lshl_b32 s{sT2}, s{sT2}, 5
s_lshl_b32 s{sT3}, s{sRB}, 7
s_add_u32 s{sT2}, s{sT2}, s{sT3}
v_and_b32 v1, 31, v0
v_add_u32 v1, s{sT2}, v1
v_mul_u32_u24 v1, 1152, v1
""")
    srd(SX, 36, 2359296)
    a(f"""
buffer_load_dword v26, v1, s[{SX}:{SX+3}], s{sT} offen{nt}
s_branch L_{tag}_tx
L_{tag}_tw:
s_and_b32 s{sT}, s{sHG}, 3
s_lshl_b32 s{sT}, s{sT}, 1
s_cmp_eq_u32 s{sT}, 0
s_cselect_b32 s{sT}, 9, s{sT}
s_sub_u32 s{sT}, s{sT}, 1
s_lshl_b32 s{sT}, s{sT}, 3
s_and_b32 s{sT2}, s{sRB}, 7
s_add_u32 s{sT}, s{sT}, s{sT2}
s_mul_i32 s{sT}, s{sT}, {8*3456}
s_add_u32 s{sT}, s{sT}, s{sM}
v_lshrrev_b32 v1, 3, v0
v_mul_u32_u24 v1, 3456, v1
v_bfe_u32 v2, v0, 1, 2
v_min_u32 v2, {parts-1}, v2
v_mul_u32_u24 v2, 1152, v2
v_and_b32 v3, 1, v0
v_mul_u32_u24 v3, 140, v3
v_add3_u32 v1, v1, v2, v3
""")
    srd(SW, 38, 1990656)
    a(f"buffer_load_dword v26, v1, s[{SW}:{SW+3}], s{sT} offen offset:{1152*(3-parts)}{nt}\nL_{tag}_tx:")

def init_stores(tag, with_kv):
    if OPT.get("skew"):
        a(f"v_mov_b32 v2, s{sST}\ns_lshl_b32 s{sT}, s2, 2\ns_add_u32 s{sT}, s{sT}, 0x6f0000\nv_mov_b32 v1, s{sT}\nbuffer_store_dword v2, v1, s[{SWS}:{SWS+3}], 0 offen sc1")
    if OPT.get("xcc"):
        a(f"s_getreg_b32 s{sT}, hwreg(HW_REG_XCC_ID, 0, 4)\nv_mov_b32 v2, s{sT}\ns_lshl_b32 s{sT}, s2, 2\ns_add_u32 s{sT}, s{sT}, 0x6f0000\nv_mov_b32 v1, s{sT}\nbuffer_store_dword v2, v1, s[{SWS}:{SWS+3}], 0 offen sc1")
    a(f"""
s_or_b32 s{sT}, s{sHG}, s{sWAVE}
s_cmp_eq_u32 s{sT}, 0
s_cselect_b32 s55, 1, 0
v_mov_b32 v20, 0
v_mov_b32 v21, 0
v_mov_b32 v22, 0
v_mov_b32 v23, 0
s_cbranch_scc0 L_{tag}_i1
s_lshl_b32 s{sT}, s{sBR}, 4
s_add_u32 s{sT}, s{sT}, s{sRB}
s_lshl_b32 s{sT}, s{sT}, 8
s_add_u32 s{sT}, s{sT}, {WS_CNT}
v_mov_b32 v24, s{sT}
buffer_store_dword v20, v24, s[{SWS}:{SWS+3}], 0 offen sc1
L_{tag}_i1:
""")
    if with_kv:
        a(f"""
s_or_b32 s{sT}, s{sRB}, s{sWAVE}
s_cmp_eq_u32 s{sT}, 0
s_cbranch_scc0 L_{tag}_i2
s_or_b32 s55, s55, 2
s_mul_i32 s{sT}, s{sHG}, {KV_ST}
s_add_u32 s{sT}, s{sT}, {WS_KV}
v_lshl_add_u32 v24, v0, 4, s{sT}
""")
        for j in range(7):
            a(f"s_movk_i32 s{sK}, {1024*j}\nbuffer_store_dwordx4 v[20:23], v24, s[{SWS}:{SWS+3}], s{sK} offen sc1")
        a(f"L_{tag}_i2:")

def init_flags(tag):
    a(f"""
s_waitcnt vmcnt(0)
s_cmp_eq_u32 s55, 0
s_cbranch_scc1 L_{tag}_f2
v_mov_b32 v20, 1
s_bitcmp1_b32 s55, 0
s_cbranch_scc0 L_{tag}_f1
s_lshl_b32 s{sT}, s{sBR}, 4
s_add_u32 s{sT}, s{sT}, s{sRB}
s_lshl_b32 s{sT}, s{sT}, 2
s_add_u32 s{sT}, s{sT}, 32
v_mov_b32 v24, s{sT}
buffer_store_dword v20, v24, s[{SDBG}:{SDBG+3}], 0 offen sc1
L_{tag}_f1:
s_bitcmp1_b32 s55, 1
s_cbranch_scc0 L_{tag}_f2
s_lshl_b32 s{sT}, s{sHG}, 2
v_mov_b32 v25, s{sT}
buffer_store_dword v20, v25, s[{SDBG}:{SDBG+3}], 0 offen sc1
L_{tag}_f2:
""")

def kstep(tiles, nxt_reads, first, waits):
    pend = list(first)
    for t, (m0_, m1_) in enumerate(tiles):
        if t in waits:
            a(waits[t])
        a(m0_)
        for x in pend: a(x)
        a(m1_)
        pend = []
        if nxt_reads:
            a(nxt_reads[t][0]); pend = [nxt_reads[t][1]]
    for x in pend: a(x)

def a_consumer():
    acc = lambda t, rt: 144 + (t * 2 + rt) * 4
    wf = lambda t: 88 + 4 * t
    xf = lambda buf, rt: 72 + buf * 8 + rt * 4
    R8, R2, R8b, R2b, aX = 1, 5, 6, 10, 11
    vOF, vOL, vEXW, vEXR = 13, 14, 15, 16
    MC, MP, MPF, PM = 56, 60, 64, 68
    a("L_AC:\ns_waitcnt lgkmcnt(0)")
    gap_touch("AC", 3)
    srds_rest()
    init_stores("AC", False)
    rd_lanes(R8, R2, 17, 18); x_lane(aX, aX + 1, 17)
    for j in range(5):
        a(f"v_add_u32 v{R8b+j}, {4*A_WSLOT}, v{R8+j}")
    a(f"""
s_lshl_b32 s{sT}, s{sWAVE}, 12
s_add_u32 s{sT}, s{sT}, {A_X0}
v_add_u32 v{aX}, s{sT}, v{aX}
v_add_u32 v{aX+1}, s{sT}, v{aX+1}
s_lshr_b32 s{sT}, s{sWAVE}, 1
s_lshl_b32 s{sT}, s{sT}, 3
v_and_b32 v17, 15, v0
v_xor_b32 v17, s{sT}, v17
v_lshrrev_b32 v18, 4, v0
v_lshlrev_b32 v18, 2, v18
v_xor_b32 v18, s{sT}, v18
v_sub_u32 v17, v17, v18
v_mov_b32 v19, {NEG}
s_and_b32 s{sT}, s{sWAVE}, 1
s_or_b32 s{sT}, s{sT}, s{sRB}
s_cmp_eq_u32 s{sT}, 0
s_cselect_b64 s[42:43], -1, 0
""")
    for r in range(4):
        a(f"""
v_subrev_u32 v18, {r}, v17
v_cmp_gt_u32 vcc, 8, v18
v_cndmask_b32 v{MC+r}, v19, 0, vcc
v_cmp_gt_i32 vcc, -8, v18
v_cndmask_b32 v{MP+r}, v19, 0, vcc
v_cndmask_b32 v{MPF+r}, v{MP+r}, v19, s[42:43]
v_cmp_lt_i32 vcc, -1, v18
v_mov_b32 v20, {'0xffff' if r % 2 == 0 else '0xffff0000'}
v_cndmask_b32 v20, 0, v20, vcc
""")
        a(f"v_mov_b32 v{PM + r//2}, v20" if r % 2 == 0 else f"v_or_b32 v{PM + r//2}, v{PM + r//2}, v20")
    o_store_addr(vOF, vOL, 17, True)
    a(f"""
s_lshr_b32 s{sT}, s{sWAVE}, 1
s_add_u32 s{sT}, s{sT}, 1
s_mul_i32 s{sT}, s{sT}, 5120
s_bitcmp1_b32 s{sWAVE}, 0
s_cselect_b32 s{sT3}, s{sT}, 0
v_lshlrev_b32 v17, 3, v0
v_add_u32 v17, {A_EX}, v17
v_add_u32 v{vEXW}, s{sT}, v17
v_add_u32 v{vEXR}, s{sT3}, v17
""")

    def wreads(ks, t):
        slot = ks % 5
        o = 0 if slot == 4 else slot * A_WSLOT
        r8, r2 = (R8b, R2b) if slot == 4 else (R8, R2)
        if t == 4 or t == 13:
            o += 12288 if t == 4 else 13312
            return [tr(wf(t), r2, o), tr(wf(t) + 2, r2, o + 256)]
        s, j = (0, t) if t < 4 else (1, t - 5) if t < 9 else (2, t - 9)
        return [tr(wf(t), r8 + j, o + 4096*s), tr(wf(t) + 2, r8 + j, o + 4096*s + 1024)]
    xread = lambda ks, rt: f"ds_read_b128 {vr(xf(ks % 2, rt),4)}, v{aX + ks % 2} offset:{(ks//2 % 3)*A_XSLOT + rt*2048}"

    if OPT.get("prepass"):
        a("s_barrier")
    stamp()
    a("s_barrier")
    stamp()
    a(xread(0, 0)); a(xread(0, 1))
    for t in range(14):
        for x in wreads(0, t): a(x)
    for ks in range(18):
        if OPT.get("body") and ks == OPT["body"] + 1:
            stamp()
            j_ = sST + 2*(nstamp[0]-1)
            a(f"s_waitcnt lgkmcnt(0)\ns_sub_u32 s{j_}, s{j_}, s100\ns_lshl_b32 s{j_}, s{j_}, 4\ns_add_u32 s{j_}, s{j_}, s100")
        if OPT.get("span") and ks == OPT["span"] + 4:
            a("s_barrier")
            stamp()
            j_ = sST + 2*(nstamp[0]-1)
            a(f"s_waitcnt lgkmcnt(0)\ns_sub_u32 s{j_}, s{j_}, s100\ns_lshl_b32 s{j_}, s{j_}, 2\ns_add_u32 s{j_}, s{j_}, s100")
        elif ks < 17:
            a("s_barrier")
        if ks and ks in (OPT.get("body"), OPT.get("span")):
            a("s_memtime s[100:101]")
        if OPT.get("fine") == 2 and ks in (2, 5, 8, 11, 14):
            stamp()
        if OPT.get("ret") and ks == 1:
            a(f"s_lshl_b32 s40, s2, 10\ns_lshl_b32 s41, s{sWAVE}, 8\ns_add_u32 s40, s40, s41\ns_add_u32 s40, s40, 0x580000\ns_add_u32 s40, s40, s{SWS}\ns_addc_u32 s41, s{SWS+1}, 0")
            if OPT["ret"] == 1:
                a("v_mov_b32 v28, 0\nglobal_load_dword v29, v28, s[40:41]")
        if OPT.get("ret") and ks == OPT.get("at", 7):
            if OPT["ret"] == 2:
                a("v_mov_b32 v28, 0\nglobal_load_dword v29, v28, s[40:41]\ns_waitcnt vmcnt(0)")
            a("s_waitcnt lgkmcnt(0)\ns_memtime s[100:101]\ns_waitcnt lgkmcnt(0)\ns_load_dword s38, s[40:41], 64\ns_waitcnt lgkmcnt(0)")
            stamp()
            j_ = sST + 2*(nstamp[0]-1)
            a(f"s_waitcnt lgkmcnt(0)\ns_sub_u32 s{j_}, s{j_}, s100\ns_lshl_b32 s{j_}, s{j_}, 3\ns_add_u32 s{j_}, s{j_}, s100")
        if OPT.get("dummy") == ks:
            if OPT.get("dpre"):
                a("s_getpc_b64 s[38:39]\nv_lshlrev_b32 v28, 7, v0\nv_min_u32 v28, 2304, v28\nglobal_load_dword v29, v28, s[38:39]\ns_waitcnt vmcnt(0)")
            a("s_waitcnt lgkmcnt(0)\ns_memtime s[100:101]\ns_memrealtime s[40:41]\ns_waitcnt lgkmcnt(0)")
            for n in range(128):
                kind = OPT.get("dkind", 0)
                if kind == 0:
                    a(mf(28 + 4 * (n % 4), 88, 72, "0"))
                elif kind == 1:
                    a(f"v_add3_u32 v{28 + n % 8}, v0, v0, v0\nv_add3_u32 v{36 + n % 8}, v0, v0, v0")
                else:
                    a(f"ds_read_b128 v[{28 + 4 * (n % 4)}:{31 + 4 * (n % 4)}], v{aX} offset:0")
            a("s_waitcnt lgkmcnt(0)")
            stamp()
            a("s_waitcnt lgkmcnt(0)")
            if not OPT.get("cyc"):
                a(f"s_sub_u32 s40, s{sST + 2*(nstamp[0]-1)}, s40\ns_add_u32 s{sST + 2*(nstamp[0]-1)}, s{sST}, s40")
        if ks == 3:
            init_flags("AC")
        tiles = []
        for t in range(14):
            c = lambda rt: acc(t, rt) if ks else "0"
            tiles.append([mf(acc(t, rt), wf(t), xf(ks % 2, rt), c(rt)) if t < 9 else mf(acc(t, rt), xf(ks % 2, rt), wf(t), c(rt)) for rt in range(2)])
        if ks < 17:
            nxt = [wreads(ks + 1, t) for t in range(14)]
            nxt[1] = [nxt[1][0], nxt[1][1] + "\n" + xread(ks + 1, 1)]
            kstep(tiles, nxt, [xread(ks + 1, 0)], {0: "s_waitcnt lgkmcnt(14)", 7: "s_waitcnt lgkmcnt(15)", 12: "s_waitcnt lgkmcnt(15)"})
        else:
            kstep(tiles, None, [], {0: "s_waitcnt lgkmcnt(14)", 7: "s_waitcnt lgkmcnt(0)"})
    stamp()
    KP = lambda j: 18 + 10 * j
    QT = lambda rt, h: 88 + 16 * rt + 4 * h
    VP = lambda t, j: 120 + 6 * t + 2 * j if t < 4 else 48 + 2 * j
    ONE = 72
    def pack_kv(rt):
        o = []
        for q in range(2):
            o += [cv(QT(rt, 3) + 2 + q, acc(4, rt) + 2*q), f"v_mov_b32 v{KP(1+rt) + 8 + q}, 0"]
        for tau in range(4):
            o += [cv(KP(1+rt) + 2*tau + q, acc(5+tau, rt) + 2*q) for q in range(2)]
        o += [f"v_permlane32_swap_b32 v{QT(rt,3) + 2 + q}, v{KP(1+rt) + 8 + q}" for q in range(2)]
        for t in range(5):
            o += [cv(VP(t, 1+rt) + q, acc(9+t, rt) + 2*q) for q in range(2)]
        return o
    def pack_q(rt):
        o = []
        for t in range(4):
            for q in range(2):
                d = QT(rt, t) + q
                o.append(cv(d, acc(t, rt) + 2*q))
                if (t, q) in SPLITS:
                    m = SPLITS[(t, q)]; lo = QT(rt, t-1) + 2 + q
                    o += [f"v_cndmask_b32 v{lo}, 0, v{d}, s[{m}:{m+1}]", f"v_xor_b32 v{d}, v{d}, v{lo}"]
        return o + [f"v_mov_b32 v{QT(rt,0) + 3}, 0"]
    weave([], pack_kv(1))
    a(f"s_bitcmp1_b32 s{sWAVE}, 0\ns_cbranch_scc1 L_AC_nodump")
    for j in range(5):
        a(f"ds_write_b64 v{vEXW}, {vr(KP(2) + 2*j, 2)} offset:{512*j}")
        a(f"ds_write_b64 v{vEXW}, {vr(VP(j, 2), 2)} offset:{512*(5+j)}")
    a("L_AC_nodump:")
    weave([], pack_kv(0) + pack_q(1))
    a("s_waitcnt lgkmcnt(0)\ns_barrier")
    for j in range(5):
        a(f"ds_read_b64 {vr(KP(0) + 2*j, 2)}, v{vEXR} offset:{512*j}")
        a(f"ds_read_b64 {vr(VP(j, 0), 2)}, v{vEXR} offset:{512*(5+j)}")
    SC = lambda rt, h: (224 if rt else 184) + 8 * h
    MX = lambda rt: [76 + 4 * rt + h for h in range(4)]
    PT = lambda rt, h: 144 + 16 * rt + 4 * h
    def qk(rt):
        o = []
        for h in range(4):
            o += [mf(SC(rt, h), KP(1+rt) + 2*h, QT(rt, h), MC), mf(SC(rt, h) + 4, KP(rt) + 2*h, QT(rt, h), MP if rt else MPF)]
        return o
    def rowmax(rt):
        o = []
        for h in range(4):
            s = SC(rt, h); m = MX(rt)[h]
            o += [f"v_max_f32 v{s+r}, v{s+r}, v{s+4+r}" for r in range(4)]
            o += [f"v_max3_f32 v{m}, v{s}, v{s+1}, v{s+2}", f"v_max_f32 v{m}, v{m}, v{s+3}"]
        return o
    def xmax(rt):
        m = MX(rt)
        return [f"v_permlane32_swap_b32 v{m[0]}, v{m[1]}", f"v_permlane32_swap_b32 v{m[2]}, v{m[3]}",
                f"v_max_f32 v{m[0]}, v{m[0]}, v{m[1]}", f"v_max_f32 v{m[2]}, v{m[2]}, v{m[3]}",
                f"v_permlane16_swap_b32 v{m[0]}, v{m[2]}", f"v_max_f32 v{m[0]}, v{m[0]}, v{m[2]}",
                f"v_mul_f32 v{m[0]}, s{sT2}, v{m[0]}", f"v_mov_b32 v{m[2]}, v{m[0]}",
                f"v_permlane16_swap_b32 v{m[0]}, v{m[2]}", f"v_mov_b32 v{m[1]}, v{m[0]}", f"v_mov_b32 v{m[3]}, v{m[2]}",
                f"v_permlane32_swap_b32 v{m[0]}, v{m[1]}", f"v_permlane32_swap_b32 v{m[2]}, v{m[3]}"]
    def probs(rt):
        o = []
        for h in range(4):
            s = SC(rt, h); p = PT(rt, h)
            o += [f"v_fma_f32 v{s+r}, v{s+r}, s{sT}, v{MX(rt)[h]}" for r in range(4)]
            o += [f"v_exp_f32 v{s+r}, v{s+r}" for r in range(4)]
            if h:
                o += split(rt, h - 1)
        return o + split(rt, 3)
    def split(rt, h):
        s = SC(rt, h); p = PT(rt, h); o = []
        for q in range(2):
            o += [cv(p + q, s + 2*q), f"v_and_b32 v{p+2+q}, v{p+q}, v{PM+q}", f"v_xor_b32 v{p+q}, v{p+q}, v{p+2+q}"]
        return o
    OB = lambda rt, t: (224 if rt else 184) + 4 * t
    OA = lambda rt, t: (224 if rt else 184) + 12 + 4 * t
    SM = lambda rt, h: 88 + 16 * rt + 4 * h
    OF = lambda rt: 18 + 10 * rt
    def pv(rt):
        o = [mf(SM(rt, h), ONE, PT(rt, h), "0") for h in range(4)]
        for t in range(5):
            if t < 4: o.append(mf(OB(rt, t), VP(t, rt), PT(rt, t), "0"))
            if t > 0: o.append(mf(OA(rt, t), VP(t, rt), PT(rt, t-1), "0"))
        return o
    def finish(rt):
        o = [f"v_rcp_f32 v{SM(rt,h)}, v{SM(rt,h)}" for h in range(4)]
        for t in range(5):
            for q in range(2):
                d = OF(rt) + 2*t + q
                srcs = []
                if t < 4: srcs.append((OB(rt, t) + 2*q, SM(rt, t), d))
                if t == 4: srcs.append((OA(rt, t) + 2*q, SM(rt, 3), d))
                if (t, q) in SPLITS: srcs.append((OA(rt, t) + 2*q, SM(rt, t-1), 17))
                for x, inv, dd in srcs:
                    o += [f"v_mul_f32 v{x}, v{x}, v{inv}", f"v_mul_f32 v{x+1}, v{x+1}, v{inv}", cv(dd, x)]
                if (t, q) in SPLITS:
                    m = SPLITS[(t, q)]
                    o.append(f"v_cndmask_b32 v{d}, v{d}, v17, s[{m}:{m+1}]")
        return o
    a(f"s_mov_b32 s{sT}, {f32(CSC)}\ns_mov_b32 s{sT2}, {f32(-CSC)}")
    weave(qk(1), pack_q(0) + [f"v_mov_b32 v{ONE+j}, 0x3f803f80" for j in range(4)])
    a("s_waitcnt lgkmcnt(0)")
    weave(qk(0), rowmax(1))
    x1, x0 = xmax(1), xmax(0)
    r0 = rowmax(0)
    for i, x in enumerate(x1):
        a(x)
        for y in r0[2*i:2*i+2]: a(y)
    p1 = probs(1)
    for i, x in enumerate(x0):
        a(x)
        for y in p1[2*i:2*i+2]: a(y)
    weave([], p1[2*len(x0):])
    weave(pv(1), probs(0))
    weave(pv(0), finish(1))
    o_store(OF(1), vOF, vOL, 1)
    weave([], finish(0))
    o_store(OF(0), vOF, vOL, 0)
    stamp()
    a("s_branch L_P2")

def phi(r, n, t):
    o = [f"v_pk_fma_f32 {vr(t+j,2)}, {vr(r+j,2)}, s[56:57], v[14:15]" for j in range(0, n, 2)]
    for j in range(n):
        o += [f"v_exp_f32 v{t+j}, v{t+j} clamp", f"v_max_f32 v{r+j}, s{sT2}, v{r+j}"]
    return o + [f"v_pk_add_f32 {vr(r+j,2)}, {vr(r+j,2)}, {vr(t+j,2)}" for j in range(0, n, 2)]

def b_consumer():
    acc = lambda t, rt: 184 + (t * 2 + rt) * 4
    wf = lambda t: 148 + 4 * t
    xf = lambda ks, rt: 52 + ks * 8 + rt * 4 if ks < 12 else 36 + (ks % 2) * 8 + rt * 4
    R8, R2, aX = 1, 5, 6
    vOF, vOL, vEX = 8, 9, 10
    CK, CS = 28, 32
    a("L_BC:\ns_waitcnt lgkmcnt(0)")
    gap_touch("BC", 2)
    srds_rest()
    init_stores("BC", True)
    rd_lanes(R8, R2, 17, 18); x_lane(aX, aX + 1, 17)
    a(f"""
s_lshl_b32 s{sT}, s{sWAVE}, 12
s_add_u32 s{sT}, s{sT}, {B_X0}
v_add_u32 v{aX}, s{sT}, v{aX}
v_add_u32 v{aX+1}, s{sT}, v{aX+1}
v_and_b32 v17, 15, v0
v_cmp_gt_u32 vcc, 8, v17
v_mov_b32 v18, {EPS}
s_mov_b64 s[42:43], vcc
s_mul_i32 s{sT}, s{sWAVE}, 10240
s_add_u32 s{sT}, s{sT}, {B_EX}
v_lshl_add_u32 v{vEX}, v0, 4, s{sT}
v_mov_b32 v14, {f32(-1e-6*LOG2E)}
v_mov_b32 v15, v14
s_mov_b32 s56, {f32(LOG2E)}
s_mov_b32 s57, s56
""")
    for r in range(4):
        a(f"v_mov_b32 v{CK+r}, v18\nv_cndmask_b32 v{CS+r}, 0, v18, vcc")
    o_store_addr(vOF, vOL, 17, False)

    def wreads(ks, t):
        o = (ks % 5) * B_KVSLOT
        if t == 4:
            return [tr(wf(t), R2, o + 8192), tr(wf(t) + 2, R2, o + 8192 + 256)]
        s, j = (0, t) if t < 4 else (1, t - 5)
        return [tr(wf(t), R8 + j, o + 4096*s), tr(wf(t) + 2, R8 + j, o + 4096*s + 1024)]
    xread = lambda ks, rt: f"ds_read_b128 {vr(xf(ks, rt),4)}, v{aX + ks % 2} offset:{(ks//2 % 3)*B_XSLOT + rt*2048}"

    stamp()
    a("s_barrier")
    stamp()
    a(xread(0, 0)); a(xread(0, 1))
    for t in range(9):
        for x in wreads(0, t): a(x)
    for ks in range(18):
        if ks < 17:
            a("s_barrier")
        if ks == 3:
            init_flags("BC")
        tiles = [[mf(acc(t, rt), xf(ks, rt), wf(t), acc(t, rt) if ks else (CK if t < 4 else CS if t == 4 else "0")) for rt in range(2)] for t in range(9)]
        if ks < 17:
            nxt = [wreads(ks + 1, t) for t in range(9)]
            nxt[1] = [nxt[1][0], nxt[1][1] + "\n" + xread(ks + 1, 1)]
            kstep(tiles, nxt, [xread(ks + 1, 0)], {0: "s_waitcnt lgkmcnt(12)", 3: "s_waitcnt lgkmcnt(13)", 6: "s_waitcnt lgkmcnt(13)", 8: "s_waitcnt lgkmcnt(11)"})
        else:
            kstep(tiles, None, [], {0: "s_waitcnt lgkmcnt(12)", 3: "s_waitcnt lgkmcnt(0)\ns_barrier"})
    stamp()
    a(f"s_mov_b32 s{sT2}, {EPS}\nv_mov_b32 v16, 0x3f803f80")
    wr = lambda reg, slot: f"ds_write_b128 v{vEX}, {vr(reg,4)} offset:{1024*slot}"
    pk = lambda d, s: [cv(d + j, s + 2*j) for j in range(4)]
    weave([], pk(156, acc(4, 0)) + [f"v_cndmask_b32 v{156+j}, v{156+j}, v16, s[42:43]" for j in range(4)] + [wr(156, 9)])
    xq = lambda ks, rt: 168 + (ks - 12) * 8 + rt * 4 if ks in (12, 13) else acc(2 * (ks - 14) + rt, 1) if ks in (14, 15) else xf(ks, rt)
    reread = lambda ks, rt: f"ds_read_b128 {vr(xq(ks, rt),4)}, v{aX + ks % 2} offset:{(ks//2 % 3)*B_XSLOT + rt*2048}"
    weave([], [reread(ks, rt) for ks in (12, 13) for rt in range(2)])
    for tau in range(5):
        o = phi(acc(tau, 0), 8, 148)
        if tau < 4:
            o = pk(acc(5+tau, 0), acc(5+tau, 0)) + o[:8] + [wr(acc(5+tau, 0), 5 + tau)] + o[8:]
        weave([], o + pk(acc(tau, 0), acc(tau, 0)) + [wr(acc(tau, 0), tau)])
        if tau < 4:
            a(reread(14 + tau // 2, tau % 2))
    for j in range(5):
        a(f"v_add_u32 v{R8+j}, {B_WQ0}, v{R8+j}")
    a("s_waitcnt lgkmcnt(0)\ns_barrier")
    stamp()
    QA = lambda t, rt: 216 + (t * 2 + rt) * 4
    qf = lambda t: 148 + 4 * t
    qbase = lambda p: B_WQ0 if p < 4 else 0 if p < 7 else 15360
    def qreads(p, t):
        o = wq_slot(p) - qbase(p)
        if t == 4:
            return [tr(qf(t), R2, o + 4096), tr(qf(t) + 2, R2, o + 4096 + 256)]
        return [tr(qf(t), R8 + t, o), tr(qf(t) + 2, R8 + t, o + 1024)]
    for t in range(5):
        for x in qreads(0, t): a(x)
    for p in range(18):
        ks = QORD[p]
        if p == 7 or (p == 13 and OPT.get('wob', 0)):
            a("s_barrier")
        tiles = [[mf(QA(t, rt), qf(t), xq(ks, rt), QA(t, rt) if p else CK) for rt in range(2)] for t in range(5)]
        if p < 17:
            nxt = [qreads(p + 1, t) for t in range(5)]
            if qbase(p + 1) != qbase(p):
                d = (qbase(p + 1) - qbase(p)) & 0xffffffff
                for t in range(5):
                    nxt[t][0] = f"v_add_u32 v{R8+t}, {d}, v{R8+t}\n" + nxt[t][0]
            kstep(tiles, nxt, [], {t: f"s_waitcnt lgkmcnt({7 if t else 8})" for t in range(5)})
        else:
            kstep(tiles, None, [], {t: f"s_waitcnt lgkmcnt({8 - 2*t})" for t in range(5)})
    stamp()
    PQ = lambda rt: 36 + 10 * rt
    KO = 84
    tup = {0: KO, 1: KO + 4, 2: KO + 12, 3: KO + 20, 4: KO + 28}
    ZO = KO + 32
    weave([], [f"v_mov_b32 v{r}, 0" for r in (tup[1]+4, tup[1]+5, tup[2]+4, tup[2]+5, tup[3]+4, tup[3]+5, ZO+8, ZO+9)])
    a(f"v_lshlrev_b32 v16, 3, v0\nv_add_u32 v16, {B_KVOP}, v16")
    for t in range(5):
        weave([], phi(QA(t, 0), 8, 148) + [cv(PQ(rt) + 2*t + q, QA(t, rt) + 2*q) for rt in range(2) for q in range(2)])
    stamp()
    a("s_barrier")
    stamp()
    tid = lambda tau, taup: {-1: tau - 1, 0: 4 + tau, 1: 9 + tau}[taup - tau]
    rd = lambda d, slot: a(f"ds_read_b64 {vr(d,2)}, v16 offset:{512*slot}")
    for j, d in enumerate((ZO, ZO + 2, ZO + 4, ZO + 6, ZO + 10)):
        rd(d, 13 + j)
    rd(tup[0], tid(0, 0)); rd(tup[0] + 2, tid(1, 0))
    for t in (1, 2, 3):
        rd(tup[t], tid(t-1, t)); rd(tup[t] + 2, tid(t, t)); rd(tup[t] + 6, tid(t+1, t))
    rd(tup[4], tid(3, 4)); rd(tup[4] + 2, tid(4, 4))
    DN = lambda rt: 148 + 4 * rt
    NM = lambda rt, t: 184 + 20 * rt + 4 * t
    OF = lambda rt: 156 + 10 * rt
    a("s_waitcnt lgkmcnt(13)")
    for k, (zo, po) in enumerate(((0, 0), (4, 4), (8, 6))):
        for rt in range(2):
            a(mf(DN(rt), ZO + zo, PQ(rt) + po, DN(rt) if k else CK))
    a("s_waitcnt lgkmcnt(0)")
    def num(rt):
        o = [mf(NM(rt, t), tup[t], PQ(rt) + 2*(t-1), "0") for t in (1, 2, 3)]
        o += [mf(NM(rt, 0), tup[0], PQ(rt), "0"), mf(NM(rt, 4), tup[4], PQ(rt) + 6, "0")]
        return o + [mf(NM(rt, t), tup[t] + 4, PQ(rt) + 2*t, NM(rt, t)) for t in (1, 2, 3)]
    def fin(rt, packed):
        o = []
        for t in (0, 4, 1, 2, 3):
            for q in range(2):
                inv = DN(rt) + min(t, 3)
                if (t, q) in SPLITS:
                    m = SPLITS[(t, q)]
                    o.append(f"v_cndmask_b32 v17, v{DN(rt)+t}, v{DN(rt)+t-1}, s[{m}:{m+1}]")
                    inv = 17
                n = NM(rt, t) + 2*q
                o += [f"v_mul_f32 v{n}, v{n}, v{inv}", f"v_mul_f32 v{n+1}, v{n+1}, v{inv}", cv(OF(rt) + 2*t + q, n)]
        return o
    weave(num(0), [], 0)
    weave(num(1), [f"v_rcp_f32 v{DN(rt)+h}, v{DN(rt)+h}" for rt in range(2) for h in range(4)], 1)
    for rt in range(2):
        weave([], fin(rt, True))
        o_store(OF(rt), vOF, vOL, rt)
    stamp()

def kv_index(wreg, VS, VG, VZ):
    a(f"s_cmp_eq_u32 s{wreg}, 0\ns_cselect_b32 s58, 4, s{wreg}")
    for slot in range(3):
        if slot == 0:
            a(f"s_lshl_b32 s{sT}, s58, 4\ns_sub_u32 s{sT2}, s{sT}, 16\ns_mov_b64 s[46:47], 0")
        elif slot == 1:
            a(f"s_lshl_b32 s{sT}, s{wreg}, 4\ns_mov_b32 s{sT2}, s{sT}")
        else:
            a(f"s_add_u32 s{sT2}, s{sT}, 16\ns_cmp_eq_u32 s{wreg}, 3\ns_cselect_b32 s{sT2}, 56, s{sT2}\ns_cselect_b64 s[46:47], s[44:45], 0")
        kv_tile(VS and VS + 2*slot, VG and VG + 2*slot, False)
    if VZ:
        kv_z(VZ)

def kv_tile(VS, VG, last):
    a(f"v_add_u32 v3, s{sT2}, v1")
    head_of(4, 3)
    a(f"v_mul_u32_u24 v5, 18, v4\nv_sub_u32 v3, v3, v5\nv_cndmask_b32 v4, v4, 7, s[46:47]")
    if last:
        a("v_cmp_eq_u32 vcc, 0, v1\nv_cndmask_b32 v4, v4, 3, vcc\nv_cndmask_b32 v3, v3, 18, vcc")
    for q in range(2):
        a(f"v_add3_u32 v5, v2, s{sT}, {2*q}")
        head_of(6, 5)
        a("v_cmp_eq_u32 vcc, v4, v6\nv_mad_u32_u24 v5, v5, 19, v3\nv_lshlrev_b32 v5, 2, v5")
        if VS:
            a(f"v_add_u32 v6, {B_STG}, v5\nv_cndmask_b32 v{VS+q}, v8, v6, vcc")
        if VG:
            a(f"v_add_u32 v6, s{sM}, v5\nv_cndmask_b32 v{VG+q}, v9, v6, vcc")

def kv_z(VZ):
    a("v_and_b32 v3, 3, v0")
    for q in range(2):
        a(f"v_add3_u32 v5, v2, s{sT}, {2*q}")
        head_of(6, 5)
        a(f"v_cmp_eq_u32 vcc, v3, v6\nv_mul_u32_u24 v5, 76, v5\nv_add3_u32 v5, v5, s{sM}, 64\nv_add_u32 v5, 8, v5\nv_cndmask_b32 v{VZ+q}, v9, v5, vcc")

def b_loader(kind):
    a(f"L_B{kind}1:")
    m = M0(42)
    issue = (lambda c: w_issue("B", c, m)) if kind == "W" else (lambda c: x_issue("B", c, m))
    pre = 1 if OPT.get("early") and kind == "W" else 2
    cnt = {c: issue(c) for c in range(1, pre + 1)}
    stamp()
    mark = len(a.lines)
    VS, VG, vZS, vEA, vE0, vEL, vLA, vGA, vLW = 72, 80, 98, 99, 100, 101, 102, 103, 105
    if kind == "W":
        a(f"v_subrev_u32 v{VD+5}, 1152, v{VD}\nv_subrev_u32 v{VD+6}, 1152, v{VD+1}")
    srds_rest()
    if kind == "W":
        wo_setup(False)
    else:
        sync_setup()
    a(f"""
s_add_u32 s55, s{sV}, 2
s_mul_i32 s{sM}, s{sHG}, {KV_ST}
s_add_u32 s{sM}, s{sM}, {WS_KV}
v_and_b32 v1, 15, v0
v_lshrrev_b32 v2, 4, v0
v_lshlrev_b32 v2, 2, v2
v_cmp_gt_u32 s[44:45], 8, v1
v_lshlrev_b32 v8, 2, v0
v_add_u32 v8, {B_DUMP}, v8
v_mov_b32 v9, {OOB}
""")
    own = sV if kind == "X" else 55
    if kind == "X":
        kv_index(55, None, VG, VG + 6)
        a(f"s_movk_i32 s{sT}, 64")
        kv_z(10)
    kv_index(own, VS, VG + 8 if kind == "X" else None, VG + 14 if kind == "X" else None)
    a(f"""
v_add_u32 v5, s{sT}, v0
v_mul_u32_u24 v5, 76, v5
v_add_u32 v5, {B_STG + 72}, v5
v_cndmask_b32 v{vZS}, v8, v5, s[{sG0}:{sG0+1}]
v_lshlrev_b32 v{vEL}, 4, v0
v_add_u32 v{vEL}, {B_EX}, v{vEL}
s_lshl_b32 s{sT}, s{own}, 10
v_add_u32 v{vEA}, s{sT}, v{vEL}
s_lshl_b32 s{sT}, s58, 10
v_add_u32 v{vE0}, s{sT}, v{vEL}
""")
    if kind == "X":
        a(f"s_movk_i32 s{sT}, 64\ns_movk_i32 s{sT2}, 56\ns_mov_b64 s[46:47], s[44:45]")
        kv_tile(VS + 6, VG + 16, True)
        a(f"s_cmp_eq_u32 s{sV}, 0\ns_cselect_b64 s[46:47], -1, 0")
        for q in range(2):
            a(f"v_cndmask_b32 v{VS+6+q}, v8, v{VS+6+q}, s[46:47]\nv_cndmask_b32 v{VG+16+q}, v{10+q}, v{VG+16+q}, s[46:47]")
        a(f"""
v_lshlrev_b32 v5, 3, v0
v_add_u32 v5, {B_KVOP}, v5
s_lshl_b32 s{sT2}, s58, 9
s_sub_u32 s{sT2}, s{sT2}, 512
v_add_u32 v{vLW+2}, s{sT2}, v5
s_lshl_b32 s{sT2}, s{sV}, 9
v_add_u32 v{vLW+1}, s{sT2}, v5
v_add_u32 v{vLW}, 1024, v{vLW+1}
s_mul_i32 s{sT2}, s{sV}, {9*512}
v_add_u32 v{vLW+3}, s{sT2}, v5
s_mul_i32 s{sT}, s{sV}, 2816
v_lshl_add_u32 v{vLA}, v0, 2, s{sT}
v_add_u32 v{vGA}, s{sM}, v{vLA}
v_cmp_gt_u32 vcc, {5472 - 2560}, v{vLA}
v_cndmask_b32 v{vGA+1}, v9, v{vGA}, vcc
v_add_u32 v{vLA}, {B_STG}, v{vLA}
v_mov_b32 v4, 0
""")
    a(f"v_mov_b32 v10, {B_LCNT}\nv_mov_b32 v11, 1")
    if kind == "X":
        a("ds_write_b32 v10, v4\ns_waitcnt lgkmcnt(0)")
    setup = a.lines[mark:]
    del a.lines[mark:]
    per = -(-len(setup) // 9)
    a(f"s_waitcnt vmcnt({sum(cnt.values())})\ns_barrier")
    stamp()
    extra = 0
    for i in range(-1, 16):
        if i == -1 and pre == 1:
            cnt[2] = issue(2)
        if i + 4 <= 17:
            cnt[i+4] = issue(i + 4)
        if 0 <= i < 9:
            a("s_cmp_eq_u32 s59, 1")
            a.lines += setup[per*i:per*(i+1)]
            a("s_cselect_b32 s59, 1, 0")
        if i == 10 and kind == "X":
            flag_load(sFO, 98); flag_load(sFK, 99)
        if kind == "W" and i >= 14:
            extra += wq_issue(2*(i-14), m) + wq_issue(2*(i-14) + 1, m)
        left = sum(cnt.get(c, 0) for c in range(i + 3, min(i + 4, 17) + 1)) + extra
        a(f"s_waitcnt vmcnt({left})\ns_barrier")
    a("s_barrier")
    if kind == "W":
        for p in (4, 5, 6, 7, 13, 14, 15, 16, 17):
            wq_issue(p, m)
        a("s_waitcnt vmcnt(15)")
    else:
        flag_check(sFK, 99, "L_BX_fk")
    stamp()
    a("s_barrier")
    stamp()
    if kind == "W":
        for p in range(8, 13):
            wq_issue(p, m)
    KT = lambda s: 40 + 4 * s
    RD = lambda src, j: 112 + 28 * src + 4 * j
    srcs = ((vEA, 0), (vE0, 0), (vE0, 4096), (vEA, 5120), (vEA, 6144), (vEL, 9216), (vEL, 4096))
    prods = ((1, 2), (0, 3), (0, 4), (6, 5), (5, 0))
    if kind == "W":
        srcs = ((vEA, 0), None, (vE0, 4096), (vEA, 5120), (vEA, 6144), (vEL, 9216))
        prods = ((0, 2), (0, 3), (0, 4), None, (5, 0))
    nr = sum(x is not None for x in srcs)
    for src in range(4):
        for j, x in enumerate(srcs):
            if x: a(f"ds_read_b128 {vr(RD(src, j),4)}, v{x[0]} offset:{src*10240 + x[1]}")
    for src in range(4):
        a(f"s_waitcnt lgkmcnt({min(15, nr*(3-src))})")
        for s_, x in enumerate(prods):
            if x: a(mf(KT(s_), RD(src, x[0]), RD(src, x[1]), KT(s_) if src else "0"))
    for s_ in range(4 if kind == "X" else 3):
        for r in range(4):
            a(f"ds_write_b32 v{VS + 2*s_ + r//2}, v{KT(s_)+r} offset:{76*(r%2)}")
    a(f"ds_write_b32 v{vZS}, v{KT(4)}")
    a("s_waitcnt lgkmcnt(0)\ns_mov_b64 exec, 1\nds_add_u32 v10, v11\ns_mov_b64 exec, -1")
    stamp()
    b1, b2, b3 = {0: ((0, 1, 2, 3, 4, 5), (), (6, 7, 8)), 1: ((0, 1, 2), (3, 4, 5, 6, 7, 8), ()), 2: ((0, 1, 2), (3, 4, 5), (6, 7, 8))}[OPT.get("wob", 0)]
    if kind == "W":
        a("s_waitcnt vmcnt(0)\ns_barrier")
        for g in b1: wo_pair(g)
        if b2:
            a("s_barrier")
            for g in b2: wo_pair(g)
        stamp()
        a("s_barrier")
        loader_tail("BW", b3)
        return
    a(f"""
s_mov_b32 s{sT3}, 0x400000
L_BX_st:
ds_read_b32 v2, v10
s_waitcnt lgkmcnt(0)
v_readfirstlane_b32 s{sT}, v2
s_sub_u32 s{sT3}, s{sT3}, 1
s_cbranch_scc1 L_BX_st_x
s_cmp_ge_u32 s{sT}, 4
s_cbranch_scc0 L_BX_st
L_BX_st_x:
""")
    for n in range(11):
        a(f"ds_read_b32 v{40+n}, v{vLA} offset:{256*n}")
    for n in range(11):
        a(f"s_waitcnt lgkmcnt({10-n})")
        a(f"buffer_atomic_add_f32 v{40+n}, v{vGA + (n == 10)}, s[{SWS}:{SWS+3}], 0 offen offset:{256*n}")
    stamp()
    a("s_barrier")
    if b2:
        a("s_barrier")
    a("s_waitcnt vmcnt(0)")
    stamp()
    arrive_wait(sKC, 32, "L_BX_kc")
    stamp()
    for s_ in range(9):
        for r in range(4):
            a(f"buffer_load_dword v{112+4*s_+r}, v{VG + 2*s_ + r//2}, s[{SWS}:{SWS+3}], 0 offen offset:{76*(r%2)} sc1")
    dst = ((vLW, -1), (vLW, 4), (vLW, 9), (vLW, 13), (vLW + 2, 0), (vLW + 1, 4), (vLW + 1, 9), (vLW + 1, 13), (vLW + 3, 8))
    a(f"v_subrev_u32 v11, 512, v{vLW}")
    for s_, (ad, off) in enumerate(dst):
        a(f"s_waitcnt vmcnt({4*(8-s_)})")
        a(cv(40 + 2*s_, 112 + 4*s_)); a(cv(41 + 2*s_, 114 + 4*s_))
        a(f"ds_write_b64 v{11 if off < 0 else ad}, {vr(40+2*s_,2)} offset:{512*max(off, 0)}")
    a("s_waitcnt lgkmcnt(0)")
    stamp()
    a("s_barrier")
    loader_tail("BX")

def p2_consumer():
    OFR = lambda ks, rt: 112 + ks * 8 + rt * 4
    ACC = lambda t, rt: 72 + (t * 2 + rt) * 4
    wf = lambda t: 52 + 4 * t
    R8, R2, vO, vTW, vTR, VS = 1, 5, 6, 7, 8, 9
    AH = OPT["ahead"]
    a("L_P2:")
    nstamp[0] = 10
    rd_lanes(R8, R2, 17, 18)
    for j in range(5):
        a(f"v_add_u32 v{R8+j}, {R1}, v{R8+j}")
    a(f"""
v_lshl_add_u32 v{vO}, v0, 4, s58
s_mul_i32 s{sT}, s{sWAVE}, 4608
s_add_u32 s{sT}, s{sT}, {P_TR}
v_and_b32 v17, 15, v0
v_mul_u32_u24 v17, 144, v17
v_lshrrev_b32 v18, 4, v0
v_lshl_add_u32 v17, v18, 3, v17
v_add_u32 v{vTW}, s{sT}, v17
v_lshl_add_u32 v{vTR}, v0, 4, s{sT}
s_lshr_b32 s{sT}, s{sWAVE}, 1
s_and_b32 s{sT2}, s{sWAVE}, 1
s_lshl_b32 s{sT2}, s{sT2}, 5
s_lshl_b32 s{sT3}, s{sWAVE}, 5
s_cmp_eq_u32 s{sBR}, 0
s_cselect_b32 s42, s{sT}, 0
s_cselect_b32 s43, s{sT2}, s{sT3}
s_cselect_b32 s55, 1, 0
s_lshl_b32 s56, s42, 3
s_lshl_b32 s{sT}, s{sRB}, 7
s_add_u32 s42, s42, s{sT}
s_mul_i32 s{sT}, s{sBR}, 1152
s_mul_i32 s{sT2}, s{sHG}, 144
s_add_u32 s57, s{sT}, s{sT2}
""")
    for n in range(5):
        a(f"""
v_add_u32 v17, {64*n}, v0
v_mul_u32_u24 v18, 7282, v17
v_lshrrev_b32 v18, 16, v18
v_mul_u32_u24 v19, 9, v18
v_sub_u32 v19, v17, v19
v_add_u32 v18, s43, v18
v_xor_b32 v18, s56, v18
v_lshlrev_b32 v18, s55, v18
v_add_u32 v18, s42, v18
v_mul_u32_u24 v18, 2304, v18
v_lshl_add_u32 v18, v19, 4, v18
v_add_u32 v{VS+n}, s57, v18
""")
    a(f"v_mov_b32 v17, {OOB}\nv_cndmask_b32 v{VS+4}, v17, v{VS+4}, s[{sG01}:{sG01+1}]")
    a(f"v_add_u32 v14, 18432, v{vO}")
    SO = [8, 9, 10, 11, 12, 13, 14, 15, 36]
    rho(37)
    a(f"s_movk_i32 s{SO[0]}, 16384")
    for j in range(1, 9):
        a(f"s_add_u32 s{sT}, s37, {2*j-2}\ns_and_b32 s{sT}, s{sT}, 15\ns_lshl_b32 s{SO[j]}, s{sT}, 10")
    a("s_waitcnt vmcnt(0)")
    stamp()
    a("s_barrier\ns_barrier")
    stamp()
    def oload(ks, rt):
        return f"buffer_load_dwordx4 {vr(OFR(ks, rt),4)}, v{14 if rt else vO}, s[{SWS}:{SWS+3}], s{SO[ks//2]} offen offset:{1024*(ks%2)} sc1"
    base = lambda ks: R1 if ks < 3 else 0 if 9 <= ks < 12 else R2_
    R2_ = 43008
    def wreads(ks, t):
        o = WO[ks] - base(ks)
        if t == 4:
            return [tr(wf(t), R2, o + 4096), tr(wf(t) + 2, R2, o + 4096 + 256)]
        return [tr(wf(t), R8 + t, o), tr(wf(t) + 2, R8 + t, o + 1024)]
    for ks in range(AH):
        a(oload(ks, 0)); a(oload(ks, 1))
    for t in range(5):
        for x in wreads(0, t): a(x)
    for ks in range(18):
        tiles = [[mf(ACC(t, rt), wf(t), OFR(ks, rt), ACC(t, rt) if ks else "0") for rt in range(2)] for t in range(5)]
        w0 = f"s_waitcnt vmcnt({2*min(AH - 1, 17 - ks)}) lgkmcnt(8)"
        if ks < 17:
            nxt = [wreads(ks + 1, t) for t in range(5)]
            if base(ks + 1) != base(ks):
                d = (base(ks + 1) - base(ks)) & 0xffffffff
                for t in range(5):
                    nxt[t][0] = f"v_add_u32 v{R8+t}, {d}, v{R8+t}\n" + nxt[t][0]
            first = []
            if ks + AH < 18:
                first = [oload(ks + AH, 0)]
                nxt[1][1] += "\n" + oload(ks + AH, 1)
            kstep(tiles, nxt, first, {t: "s_waitcnt lgkmcnt(7)" if t else w0 for t in range(5)})
        else:
            kstep(tiles, None, [], {t: f"s_waitcnt lgkmcnt({8 - 2*t})" if t else w0 for t in range(5)})
        if ks == 0:
            stamp()
    stamp()
    for rt in range(2):
        for t in range(5):
            d = 20 + 2*(rt*5 + t)
            a(cv(d, ACC(t, rt))); a(cv(d + 1, ACC(t, rt) + 2))
            if t == 4:
                a(f"s_mov_b64 exec, s[{sG01}:{sG01+1}]")
            a(f"ds_write_b64 v{vTW}, {vr(d,2)} offset:{rt*2304 + 32*t}")
            if t == 4:
                a("s_mov_b64 exec, -1")
    a("s_waitcnt lgkmcnt(0)")
    for n in range(5):
        a(f"ds_read_b128 {vr(112+4*n,4)}, v{vTR} offset:{1024*n}")
    for n in range(5):
        a(f"s_waitcnt lgkmcnt({4-n})")
        a(f"buffer_store_dwordx4 {vr(112+4*n,4)}, v{VS+n}, s[{SOUT}:{SOUT+3}], 0 offen")
    stamp()
    stamps_out(0)
    a("s_endpgm")

HEADER = open("concat_heads__sliding_local_dilated__linear_attn_block__prompt.s.ref").read().split("; Override")[0]
out = HEADER + "; @launch grid=(256,1,1) block=(512,1,1) lds=163840\n"
a('.amdgcn_target "amdgcn-amd-amdhsa--gfx950"\n.text')
a(kernel_head(KN))
if OPT["stamps"]:
    for i in range(16):
        a(f"s_mov_b32 s{sST+2*i}, 0")
stamp()
a(f"""
s_cmp_ge_u32 s2, 256
s_cbranch_scc1 L_end
s_and_b32 s{sT}, s2, 7
s_lshr_b32 s{sBR}, s{sT}, 2
{'s_xor_b32 s6, s6, 1' if OPT.get('swap') else ''}
s_mul_i32 s{sT2}, s{sBR}, 24
s_add_u32 s0, s0, s{sT2}
s_addc_u32 s1, s1, 0
s_load_dwordx4 s[36:39], s[0:1], 0
s_load_dwordx2 s[40:41], s[0:1], 16
s_sub_u32 s0, s0, s{sT2}
s_subb_u32 s1, s1, 0
s_load_dwordx4 s[44:47], s[0:1], 48
s_load_dwordx2 s[48:49], s[0:1], 64
v_lshrrev_b32 v1, 6, v0
v_and_b32 v0, 63, v0
v_readfirstlane_b32 s{sWAVE}, v1
s_lshr_b32 s{sT2}, s2, 3
""")
m84 = f"""
s_and_b32 s{sHG}, s{sT2}, 3
s_and_b32 s{sT3}, s{sT}, 1
s_lshl_b32 s{sT3}, s{sT3}, 2
s_add_u32 s{sHG}, s{sHG}, s{sT3}
s_lshr_b32 s{sRB}, s{sT2}, 2
s_and_b32 s{sT3}, s{sT}, 2
s_lshl_b32 s{sT3}, s{sT3}, 2
s_add_u32 s{sRB}, s{sRB}, s{sT3}
"""
m48 = f"""
s_and_b32 s{sHG}, s{sT2}, 7
s_lshr_b32 s{sRB}, s{sT2}, 3
s_and_b32 s{sT3}, s{sT}, 3
s_lshl_b32 s{sT3}, s{sT3}, 2
s_add_u32 s{sRB}, s{sRB}, s{sT3}
"""
if OPT["mapping"] == 84:
    a(m84)
elif OPT["mapping"] == 48:
    a(m48)
else:
    a(m48 + f"s_cmp_eq_u32 s{sBR}, {0 if OPT['mapping'] == 8448 else 1}\ns_cbranch_scc0 L_map" + m84 + "L_map:")
rot = ""
if OPT.get("rot") == 2:
    rot = f"""s_lshr_b32 s90, s2, 1
s_xor_b32 s90, s90, s2
s_and_b32 s90, s90, 1
s_mul_i32 s91, s90, {OPT.get("rotby", 5)*128}
s_mul_i32 s90, s90, {OPT.get("rotby", 5)*64*3456}"""
elif OPT.get("rot") == 3:
    rot = f"""s_lshr_b32 s90, s2, 1
s_xor_b32 s90, s90, s2
s_and_b32 s90, s90, 1
s_mul_i32 s90, s90, 5
s_add_u32 s91, s{sRB}, s{sHG}
s_and_b32 s91, s91, 3
s_add_u32 s90, s90, s91
s_lshl_b32 s91, s90, 7
s_mul_i32 s90, s90, {64*3456}"""
elif OPT.get("rot") == 7:
    rot = f"""s_and_b32 s90, s{sHG}, 3
s_and_b32 s91, s{sRB}, 7
s_lshl1_add_u32 s90, s90, s91
s_cmp_ge_u32 s90, 9
s_cselect_b32 s91, 9, 0
s_sub_u32 s90, s90, s91
s_lshl_b32 s91, s90, 7
s_mul_i32 s90, s90, {64*3456}"""
elif OPT.get("rot") in (4, 5, 6):
    tab = {4: 0x75207520, 5: 0x63006300, 6: 0x86427531}[OPT["rot"]]
    rot = f"""s_add_u32 s90, s{sRB}, s{sHG}
s_and_b32 s90, s90, 7
s_lshl_b32 s90, s90, 2
s_lshr_b32 s90, {hex(OPT.get("tab", tab))}, s90
s_and_b32 s90, s90, 15
s_lshl_b32 s91, s90, 7
s_mul_i32 s90, s90, {64*3456}"""
elif OPT.get("rot"):
    few, many = (sRB, sHG) if OPT["mapping"] == 48 else (sHG, sRB)
    rot = f"""s_and_b32 s90, s{few}, 3
s_lshl_b32 s90, s90, 2
s_lshr_b32 s90, 0x7520, s90
s_and_b32 s90, s90, 15
s_and_b32 s91, s{many}, 7
s_add_u32 s90, s90, s91
s_cmp_ge_u32 s90, 9
s_cselect_b32 s91, 9, 0
s_sub_u32 s90, s90, s91
s_lshl_b32 s91, s90, 7
s_mul_i32 s90, s90, {64*3456}"""
a(f"""
s_mov_b32 s{sG0}, 0xffff
s_mov_b32 s{sG0+1}, 0
s_mov_b32 s{sG01}, -1
s_mov_b32 s{sG01+1}, 0
s_and_b32 s{sV}, s{sWAVE}, 1
s_mul_i32 s{sM}, s{sHG}, 144
s_cmp_lt_u32 s{sWAVE}, 4
s_cbranch_scc1 L_cons
s_setprio {OPT.get("prio", 2)}
s_mov_b32 s59, 0
{rot}
s_cmp_lt_u32 s{sWAVE}, 6
s_cbranch_scc1 L_wld
s_cmp_eq_u32 s{sBR}, 0
s_cbranch_scc1 L_AX0
s_branch L_BX0
L_wld:
s_cmp_eq_u32 s{sBR}, 0
s_cbranch_scc1 L_AW0
s_branch L_BW0
L_cons:
s_getpc_b64 s[42:43]
L_pc:
s_lshl_b32 s{sT}, s{sT2}, 2
s_add_u32 s{sT}, s{sT}, s{sWAVE}
s_lshl_b32 s{sT}, s{sT}, 9
v_and_b32 v1, 3, v0
v_lshlrev_b32 v1, 7, v1
v_add_u32 v1, s{sT}, v1
v_min_u32 v1, {'L_last2' if OPT.get('ifetch') == 1 else 'L_last'}-L_pc, v1
{'global_load_dword v27, v1, s[42:43]' if not OPT.get('nopf') else ''}
s_cmp_eq_u32 s{sBR}, 0
s_cbranch_scc1 L_AC
s_branch L_BC
L_end:
s_endpgm
""")
w_head("A"); w_head("B"); x_head("A"); x_head("B")
n0 = nstamp[0]
for fn in (lambda: a_loader("W"), lambda: a_loader("X"), a_consumer, lambda: b_loader("W"), lambda: b_loader("X"), b_consumer, p2_consumer):
    nstamp[0] = n0
    fn()
a("s_endpgm" if OPT.get("ifetch", 0) > 1 else "L_last2:\ns_endpgm" if OPT.get("ifetch") else "L_last:\ns_endpgm")
lines = []
for l in a.lines: lines += l.split("\n")
if OPT.get("noread"):
    lines = [l for l in lines if not l.startswith("ds_read_b64_tr")]
if OPT.get("nomfma"):
    lines = [l for l in lines if not l.startswith("v_mfma")]
lines, added = hz.fix(lines)
out += "\n".join(lines) + "\n"
out += '.section .rodata,"a"\n.p2align 6\n' + kernel_desc(KN, 256, 102 if OPT.get('cyc') else 100, 256)
sys.stdout.write(out)
sys.stderr.write(f"nop states added: {added}\n")
```

```python
import sys, struct
from asmlib import *
import hz

OPT = dict(stamps=0, mapping=48, ahead=6, rot=4, nt=1)
for arg in sys.argv[1:]:
    k, v = arg.split("=")
    OPT[k] = int(v)
KN = "concat_heads__sliding_local_dilated__linear_attn_block__prompt_kernel"

def f32(x):
    return "0x%08x" % struct.unpack("<I", struct.pack("<f", x))[0]

LOG2E = 1.4426950408889634
CSC = 18 ** -0.5 * LOG2E
NEG = "0xf149f2ca"
EPS = f32(1e-6)
OOB = "0x80000000"

O_BR = 0x240000
WS_KV = 0x500000
KV_ST = 0x2000
WS_CNT = 0x540000
WS_STAMP = 0x600000
WS_SIZE = 0x700000

sWAVE, sHG, sRB, sBR, sT = 3, 4, 5, 6, 7
SX, SW, SWS, SDBG, SWO, SOUT = 8, 12, 16, 20, 24, 28
sG0, sG01 = 32, 34
sK, sV, sM, sT2, sT3 = 50, 51, 52, 53, 54
sST = 60

a = Asm()
nstamp = [0]

def stamp():
    if OPT["stamps"]:
        i = nstamp[0]; nstamp[0] += 1
        assert i < 15
        a(f"{'s_memrealtime' if OPT.get('rt') or OPT.get('probe') and not (OPT.get('cyc') and i) else 's_memtime'} s[{sST+2*i}:{sST+2*i+1}]")
        if OPT.get("cyc") and i == 0:
            a("s_memtime s[100:101]")

def stamps_out(last=-1):
    if not OPT["stamps"]:
        return
    if OPT.get("probe"):
        if last == OPT.get("pwave", 0):
            j = sST + 2 * OPT["probe"]
            if OPT.get("ifetch"):
                mode = OPT["ifetch"]
                a(f"""
s_waitcnt vmcnt(0) lgkmcnt(0)
s_cmp_eq_u32 s2, {OPT.get('wg', 0)}
s_cbranch_scc0 L_probe_x
s_cmp_eq_u32 s{sWAVE}, 0
s_cbranch_scc0 L_probe_x
s_sleep 127
s_sleep 127
s_getpc_b64 s[44:45]
L_if_pc:
s_add_u32 s44, s44, L_if_blk-L_if_pc
s_addc_u32 s45, s45, 0
v_lshlrev_b32 v1, 7, v0
v_min_u32 v1, 4096, v1
""")
                if mode == 2:
                    a("global_load_dword v2, v1, s[44:45]\ns_waitcnt vmcnt(0)")
                a(f"""
s_memtime s[100:101]
s_waitcnt lgkmcnt(0)
s_branch L_if_blk
L_last:
.fill {(0 if mode == 1 else 8192)}, 4, 0xbf800000
L_if_blk:
.rept 512
v_add3_u32 v5, v0, v0, v0
.endr
s_memtime s[{j}:{j+1}]
s_waitcnt lgkmcnt(0)
s_sub_u32 s{j}, s{j}, s100
s_lshl_b32 s{j}, s{j}, 3
s_add_u32 s{j}, s{j}, s100
""")
            if OPT.get("vrate"):
                isw = OPT["vrate"] == 1
                a(f"""
s_waitcnt vmcnt(0) lgkmcnt(0)
s_load_dwordx2 s[44:45], s[0:1], {8 if isw else 0}
s_sleep 127
s_sleep 127
s_waitcnt lgkmcnt(0)
s_mov_b32 s46, {1990656 if isw else 2359296}
s_mov_b32 s47, 0x20000
v_lshrrev_b32 v1, 3, v0
v_mul_u32_u24 v1, {3456 if isw else 2304}, v1
v_and_b32 v2, 7, v0
v_lshl_add_u32 v1, v2, 4, v1
s_mov_b32 m0, 0
""")
                for rep in range(2):
                    if rep:
                        a("s_memtime s[100:101]\ns_waitcnt lgkmcnt(0)")
                    a(f"s_mov_b32 s40, 0\nL_vr{rep}:")
                    for n in range(3):
                        a(f"buffer_load_dwordx4 v1, s[44:47], s40 offen offset:{n*1152 if isw else n*128} lds")
                    a(f"s_waitcnt vmcnt(24)\ns_add_u32 s40, s40, {8*3456 if isw else 8*2304}\ns_cmp_lt_u32 s40, {72*8*3456 if isw else 72*8*2304}\ns_cbranch_scc1 L_vr{rep}\ns_waitcnt vmcnt(0)")
                a(f"s_memtime s[{j}:{j+1}]\ns_waitcnt lgkmcnt(0)\ns_sub_u32 s{j}, s{j}, s100\ns_lshl_b32 s{j}, s{j}, 3\ns_add_u32 s{j}, s{j}, s100")
            if OPT.get("skew"):
                op = "max" if OPT["skew"] in (1, 3) else "min"
                a(f"""
s_waitcnt vmcnt(0) lgkmcnt(0)
v_lshlrev_b32 v1, {4 if OPT['skew'] < 3 else 5}, v0
{'v_and_b32 v1, 0x3e0, v1' if OPT['skew'] >= 3 else ''}
v_add_u32 v1, 0x6f0000, v1
buffer_load_dwordx4 v[4:7], v1, s[{SWS}:{SWS+3}], 0 offen sc1
s_waitcnt vmcnt(0)
v_subrev_u32 v4, s{sST}, v4
v_subrev_u32 v5, s{sST}, v5
v_subrev_u32 v6, s{sST}, v6
v_subrev_u32 v7, s{sST}, v7
""")
                if OPT["skew"] < 3:
                    a(f"v_{op}_i32 v4, v4, v5\nv_{op}_i32 v6, v6, v7\nv_{op}_i32 v4, v4, v6")
                a("s_mov_b32 s44, 0\ns_nop 4")
                for l in range(64):
                    a(f"v_readlane_b32 s45, v4, {l}\ns_nop 3\ns_{op}_i32 s44, s44, s45")
                a(f"s_abs_i32 s44, s44\ns_add_u32 s{j}, s{sST}, s44")
            if OPT.get("ptr"):
                a(f"s_waitcnt vmcnt(0) lgkmcnt(0)\ns_load_dword s44, s[0:1], {OPT['ptr'] - 8}\ns_waitcnt lgkmcnt(0)\ns_lshr_b32 s44, s44, {OPT.get('sh', 4)}\ns_and_b32 s44, s44, 0xff\ns_mul_i32 s44, s44, 10\ns_add_u32 s{j}, s{sST}, s44")
            if OPT.get("tlb"):
                a(f"""
s_waitcnt vmcnt(0) lgkmcnt(0)
s_cmp_eq_u32 s{sWAVE}, 0
s_cbranch_scc0 L_probe_x
s_load_dwordx2 s[44:45], s[0:1], {OPT['tlb'] - 8}
s_sleep 127
s_sleep 127
s_waitcnt lgkmcnt(0)
s_mov_b32 s46, 0x1e0000
s_mov_b32 s47, 0x20000
v_lshlrev_b32 v1, {OPT.get('sh', 12)}, v0
""")
                for rep in range(2):
                    if rep:
                        a("s_memtime s[100:101]\ns_waitcnt lgkmcnt(0)")
                    a(f"s_mov_b32 s40, 0\nL_vr{rep}:")
                    for n in range(4):
                        a(f"s_add_u32 s41, s40, {n << (OPT.get('sh', 12) + 6)}\nbuffer_load_dword v{4+n}, v1, s[44:47], s41 offen")
                    st = 128 if OPT.get('sh', 12) > 7 else 32768
                    a(f"s_waitcnt vmcnt(4)\ns_add_u32 s40, s40, {st}\ns_cmp_lt_u32 s40, {16*st}\ns_cbranch_scc1 L_vr{rep}\ns_waitcnt vmcnt(0)")
                a(f"s_memtime s[{j}:{j+1}]\ns_waitcnt lgkmcnt(0)\ns_sub_u32 s{j}, s{j}, s100\ns_lshl_b32 s{j}, s{j}, 2\ns_add_u32 s{j}, s{j}, s100")
            if OPT.get("lat"):
                a(f"""
s_waitcnt vmcnt(0) lgkmcnt(0)
s_load_dwordx2 s[44:45], s[0:1], {OPT['lat'] - 8}
s_sleep 127
s_sleep 127
s_sleep 127
s_waitcnt lgkmcnt(0)
s_mov_b32 s46, 0x100000
s_mov_b32 s47, 0x20000
v_mov_b32 v1, 0x20000
buffer_load_dword v2, v1, s[44:47], 0 offen {'sc1' if OPT.get('first') != 2 else ''}
s_waitcnt vmcnt(0)
v_mov_b32 v1, {'0x20000' if not OPT.get('first') else '0x20040'}
s_memtime s[100:101]
s_waitcnt lgkmcnt(0)
buffer_load_dword v2, v1, s[44:47], 0 offen sc1
s_waitcnt vmcnt(0)
s_memtime s[{j}:{j+1}]
s_waitcnt lgkmcnt(0)
s_sub_u32 s{j}, s{j}, s100
s_lshl_b32 s{j}, s{j}, 5
s_add_u32 s{j}, s{j}, s100
""")
            if OPT.get("xcc"):
                a(f"""
s_waitcnt vmcnt(0) lgkmcnt(0)
v_and_b32 v1, 31, v0
v_lshlrev_b32 v1, {5 if OPT['xcc'] == 1 else 2}, v1
v_add_u32 v1, 0x6f0000, v1
buffer_load_dword v2, v1, s[{SWS}:{SWS+3}], 0 offen sc1
s_getreg_b32 s44, hwreg(HW_REG_XCC_ID, 0, 4)
s_waitcnt vmcnt(0)
v_cmp_eq_u32 vcc, s44, v2
s_bcnt1_i32_b32 s44, vcc_lo
s_mul_i32 s44, s44, 10
s_add_u32 s{j}, s{sST}, s44
""")
            a(f"""
s_waitcnt vmcnt(0) lgkmcnt(0)
s_cmp_eq_u32 s2, {OPT.get('wg', 0)}
s_cbranch_scc0 L_probe_x
s_cmp_eq_u32 s{sWAVE}, {last}
s_cbranch_scc0 L_probe_x
s_sub_u32 s{sT}, s{j}, s{100 if OPT.get('cyc') else sST}
{'s_lshr_b32 s7, s7, 3' if OPT.get('cyc') else 's_mul_i32 s7, s7, 10'}
s_min_u32 s{sT}, s{sT}, 100000
s_add_u32 s{sT}, s{sT}, 6000
L_probe:
s_memrealtime s[44:45]
s_waitcnt lgkmcnt(0)
s_sub_u32 s44, s44, s{sST}
s_cmp_lt_u32 s44, s{sT}
s_cbranch_scc1 L_probe
L_probe_x:
""")
        return
    a("s_waitcnt vmcnt(0) lgkmcnt(0)")
    a(f"s_lshl_b32 s{sT}, s2, 3\ns_add_u32 s{sT}, s{sT}, s{sWAVE}\ns_lshl_b32 s{sT}, s{sT}, 6")
    a(f"s_add_u32 s{sT}, s{sT}, {WS_STAMP}\nv_mov_b32 v1, s{sT}")
    for i in range(16):
        a(f"v_mov_b32 v2, s{sST+2*i}")
        a(f"buffer_store_dword v2, v1, s[{SWS}:{SWS+3}], 0 offen offset:{4*i}")
    a("s_waitcnt vmcnt(0)")

def mf(d, s0, s1, c):
    cc = c if isinstance(c, str) else vr(c, 4)
    return f"v_mfma_f32_16x16x32_bf16 {vr(d,4)}, {vr(s0,4)}, {vr(s1,4)}, {cc}"
def cv(d, x):
    return f"v_cvt_pk_bf16_f32 v{d}, v{x}, v{x+1}"
def tr(d, addr, off):
    return f"ds_read_b64_tr_b16 {vr(d,2)}, v{addr} offset:{off}"
def weave(mfmas, others, per=2):
    o = list(others)
    for m in mfmas:
        a(m)
        for _ in range(per):
            if o: a(o.pop(0))
    for x in o: a(x)

def srd(dst, lo, nbytes):
    a(f"s_mov_b32 s{dst}, s{lo}\ns_mov_b32 s{dst+1}, s{lo+1}\ns_mov_b32 s{dst+2}, {nbytes}\ns_mov_b32 s{dst+3}, 0x20000")
def srds_rest():
    srd(SWO, 40, 663552); srd(SOUT, 44, 4718592); srd(SDBG, 46, 256); srd(SWS, 48, WS_SIZE)

class M0:
    def __init__(self, base): self.base = base; self.cur = None
    def set(self, imm):
        if self.cur is not None and -32768 <= imm - self.cur <= 32767:
            a(f"s_addk_i32 m0, {imm - self.cur}")
        else:
            a(f"s_add_u32 m0, s{self.base}, {imm}")
        self.cur = imm

CUR = [0]
def dma(voff, srd_, soff, half=False):
    if OPT.get("nodma") or (OPT.get("nos") and voff == VD + 6 and srd_ == SW and not half):
        return
    if half: a(f"s_mov_b64 exec, s[{sG01}:{sG01+1}]")
    nt = " nt" if OPT.get("nt", 0) >> {SX: 0, SW: 1, SWO: 2}[srd_] & 1 and CUR[0] < OPT.get("ntc", 99) else ""
    a(f"buffer_load_dwordx4 v{voff}, s[{srd_}:{srd_+3}], {soff} offen{nt} lds")
    if half: a("s_mov_b64 exec, -1")

def rd_lanes(r8, r2, t0, t1):
    a(f"""
v_lshrrev_b32 v{t0}, 5, v0
v_lshlrev_b32 v{t0}, 4, v{t0}
v_bfe_u32 v{t1}, v0, 4, 1
v_lshl_add_u32 v{t0}, v{t1}, 2, v{t0}
v_bfe_u32 v{t1}, v0, 2, 2
v_add_u32 v{t0}, v{t0}, v{t1}
v_and_b32 v{t1}, 3, v0
v_lshlrev_b32 v{t1}, 3, v{t1}
v_lshl_add_u32 v{r2}, v{t0}, 5, v{t1}
v_lshl_add_u32 v{r8}, v{t0}, 7, v{t1}
v_bfe_u32 v{t0}, v{t0}, 1, 2
v_lshl_add_u32 v{r8}, v{t0}, 5, v{r8}
""")
    for t in (1, 2, 3):
        a(f"v_xor_b32 v{r8+t}, {32*t}, v{r8}")

def x_lane(d0, d1, tmp):
    a(f"""
v_lshrrev_b32 v{d0}, 4, v0
v_bfe_u32 v{tmp}, v0, 1, 3
v_xor_b32 v{d0}, v{d0}, v{tmp}
v_and_b32 v{tmp}, 15, v0
v_lshlrev_b32 v{tmp}, 7, v{tmp}
v_lshl_add_u32 v{d0}, v{d0}, 4, v{tmp}
v_xor_b32 v{d1}, 64, v{d0}
""")

def col8(dst, tmp):
    a(f"v_bfe_u32 v{tmp}, v0, 4, 2\nv_lshlrev_b32 v{tmp}, 1, v{tmp}\nv_and_b32 v{dst}, 7, v0\nv_xor_b32 v{dst}, v{dst}, v{tmp}\nv_lshlrev_b32 v{dst}, 4, v{dst}")

def head_of(dst, src):
    a(f"v_mul_u32_u24 v{dst}, 57, v{src}\nv_lshrrev_b32 v{dst}, 10, v{dst}")

sOC, sKC, sFO, sFK = 92, 94, 96, 97

def arrive_wait(addr, target, label, arrive=True):
    if arrive:
        a(f"s_mov_b32 s{sT}, 1\ns_atomic_add s{sT}, s[{addr}:{addr+1}], 0 glc\ns_waitcnt lgkmcnt(0)\ns_cmp_ge_u32 s{sT}, {target-1}\ns_cbranch_scc1 {label}_x")
    a(f"""
s_mov_b32 s{sT3}, 0x20000
{label}:
s_mov_b32 s{sT}, 0
s_atomic_add s{sT}, s[{addr}:{addr+1}], 0 glc
s_waitcnt lgkmcnt(0)
s_sub_u32 s{sT3}, s{sT3}, 1
s_cbranch_scc1 {label}_x
s_cmp_ge_u32 s{sT}, {target}
s_cbranch_scc0 {label}
{label}_x:
""")

def flag_load(dst, offreg):
    a(f"s_load_dword s{dst}, s[{SDBG}:{SDBG+1}], s{offreg}")

def flag_check(val, offreg, label):
    a(f"""
s_mov_b32 s{sT3}, 0x20000
{label}:
s_waitcnt lgkmcnt(0)
s_cmp_lg_u32 s{val}, 0
s_cbranch_scc1 {label}_x
s_sub_u32 s{sT3}, s{sT3}, 1
s_cbranch_scc1 {label}_x
s_load_dword s{val}, s[{SDBG}:{SDBG+1}], s{offreg} glc
s_branch {label}
{label}_x:
""")

A_WSLOT, A_XSLOT = 14336, 18432
A_X0 = 5 * A_WSLOT
A_EX = A_X0 + 3 * A_XSLOT
B_KVSLOT, B_XSLOT = 9216, 16384
B_X0 = 5 * B_KVSLOT
B_EX = B_X0 + 3 * B_XSLOT
B_KVOP = 126976
B_STG = 136192
B_DUMP, B_LCNT = B_STG + 5632, B_STG + 6144
B_WQ0 = 143360
QORD = list(range(18))
def wq_slot(p):
    if p < 4: return B_WQ0 + 5120 * p
    if p < 7: return 5120 * (p - 4)
    if p < 13: return 40960 + 5120 * (p - 7)
    return 15360 + 5120 * (p - 13)
R1, R2 = 147456, 43008
WO = [R1, R1 + 5120, R1 + 10240] + [R2 + 5120 * n for n in range(6, 12)] + [0, 5120, 10240] + [R2 + 5120 * n for n in range(6)]
P_TR = 108544
SPLITS = {(1, 0): sG0, (2, 0): sG0, (2, 1): sG0, (3, 0): sG01, (3, 1): sG0}

VD = 16
VWO = 26
vCNT, vFLO, vFLK, vFO, vFK = 30, 31, 32, 33, 34

def w_head(kind):
    parts = (0, 1152, 2304) if kind == "A" else (1152, 2304)
    a(f"L_{kind}W0:")
    col8(VD, 1)
    a(f"""
v_bfe_u32 v1, v0, 5, 1
v_bfe_u32 v2, v0, 3, 2
v_lshl_add_u32 v1, v1, 3, v2
s_mul_i32 s{sT}, s{sV}, {16*3456}
s_add_u32 s{sT}, s{sT}, s{sM}
v_mul_u32_u24 v1, 3456, v1
v_add3_u32 v{VD}, v{VD}, v1, s{sT}
""")
    n = 2 * len(parts)
    for j in range(n - 1, -1, -1):
        off = parts[j // 2] + (j % 2) * 4 * 3456
        if off:
            a(f"v_add_u32 v{VD+j}, {off}, v{VD}")
    a(f"""
v_bfe_u32 v1, v0, 3, 1
v_bfe_u32 v2, v0, 4, 1
v_sub_u32 v1, v1, v2
v_lshrrev_b32 v2, 1, v0
v_lshl_add_u32 v1, v1, 2, v2
v_mul_u32_u24 v1, 3456, v1
v_and_b32 v2, 1, v0
""")
    if kind == "A":
        a(f"""
s_cmp_eq_u32 s{sV}, 0
s_cselect_b32 s{sT2}, 1152, 0
s_cselect_b32 s{sT}, 0, 2304
s_add_u32 s{sT}, s{sT}, s{sM}
s_addk_i32 s{sT}, 128
v_mad_u32_u24 v1, v2, s{sT2}, v1
v_add_u32 v{VD+6}, s{sT}, v1
""")
    else:
        a(f"""
s_add_u32 s{sT}, s{sT}, 128
v_add_u32 v{VD+7}, s{sT}, v1
v_mul_u32_u24 v2, 1152, v2
v_add_u32 v2, 1152, v2
v_add_u32 v{VD+4}, v2, v{VD+7}
""")
    a(f"s_lshl_b32 s42, s{sV}, 11\ns_lshl_b32 s43, s{sV}, {10 if kind == 'A' else 9}\ns_sub_u32 s43, s43, s42")
    a("s_waitcnt lgkmcnt(0)")
    srd(SW, 38, 1990656)
    m = M0(42)
    w_issue(kind, 0, m)
    a(f"s_branch L_{kind}W1")

def w_issue(kind, c, m):
    CUR[0] = c
    slot = (c % 5) * (A_WSLOT if kind == "A" else B_KVSLOT)
    n = 6 if kind == "A" else 4
    so = f"s{sK}" if c else "0"
    if OPT.get("rot"):
        so = "s90"
        if c:
            a(f"s_add_u32 s90, s90, {32*3456}\ns_cmp_eq_u32 s90, {18*32*3456}\ns_cselect_b32 s90, 0, s90")
    elif c:
        a(f"s_mov_b32 s{sK}, {c*32*3456}")
    for j in range(n):
        m.set(slot + 4096 * (j // 2) + 1024 * (j % 2))
        dma(VD + j, SW, so)
    m.set(slot + 4096 * (n // 2))
    a("s_add_u32 m0, m0, s43")
    m.cur = None
    dma(VD + n, SW, so, half=(kind == "B"))
    return n + 1

def wq_issue(p, m):
    if OPT.get("rot"):
        a(f"s_add_u32 s{sK}, s90, {(p+1)*32*3456}\ns_cmp_ge_u32 s{sK}, {18*32*3456}\ns_cselect_b32 s{sT}, {18*32*3456}, 0\ns_sub_u32 s{sK}, s{sK}, s{sT}")
    else:
        a(f"s_mov_b32 s{sK}, {QORD[p]*32*3456}")
    for j in range(2):
        m.set(wq_slot(p) + 1024 * j)
        dma(VD + 5 + j, SW, f"s{sK}")
    m.set(wq_slot(p) + 4096)
    a("s_add_u32 m0, m0, s43")
    m.cur = None
    dma(VD + 7, SW, f"s{sK}", half=True)
    return 3

def x_head(kind):
    nq = 9 if kind == "A" else 8
    a(f"L_{kind}X0:")
    a(f"""
v_lshrrev_b32 v1, 3, v0
v_mul_u32_u24 v1, {2304 if kind == 'A' else 1152}, v1
v_lshrrev_b32 v2, 4, v0
v_lshl_add_u32 v2, s{sV}, 2, v2
v_and_b32 v3, 7, v0
v_xor_b32 v2, v2, v3
v_lshl_add_u32 v1, v2, 4, v1
s_mul_i32 s{sT}, s{sRB}, {128*1152}
""")
    if kind == "A":
        a(f"""
s_mul_i32 s{sT2}, s{sV}, {16*1152}
s_add_u32 s{sT3}, s{sT}, s{sT2}
v_add_u32 v{VD}, s{sT3}, v1
s_sub_u32 s{sT3}, s{sT}, s{sT2}
s_add_u32 s{sT3}, s{sT3}, {17*1152}
v_add_u32 v{VD+4}, s{sT3}, v1
s_mul_i32 s{sT2}, s{sV}, 1152
s_sub_u32 s{sT3}, s{sT}, s{sT2}
s_sub_u32 s{sT3}, s{sT3}, {15*1152}
v_add_u32 v{VD+8}, s{sT3}, v1
""")
        for q in (1, 2, 3):
            a(f"v_add_u32 v{VD+q}, {32*1152*q}, v{VD}\nv_add_u32 v{VD+4+q}, {32*1152*q}, v{VD+4}")
    else:
        a(f"s_mul_i32 s{sT2}, s{sV}, {8*1152}\ns_add_u32 s{sT}, s{sT}, s{sT2}\nv_add_u32 v{VD}, s{sT}, v1")
        for q in range(1, 8):
            a(f"v_add_u32 v{VD+q}, {16*1152*q}, v{VD}")
    a(f"s_lshl_b32 s42, s{sV}, 10")
    a("s_waitcnt lgkmcnt(0)")
    srd(SX, 36, 2359296)
    x_issue(kind, 0, M0(42))
    a(f"s_branch L_{kind}X1")

def x_issue(kind, c, m):
    CUR[0] = c + (c & 1)
    nq, h, x0, xs = (9, 5, A_X0, A_XSLOT) if kind == "A" else (8, 4, B_X0, B_XSLOT)
    st = (c + 1) // 2
    if st > 8:
        return 0
    qs = range(nq) if c == 0 else (range(h) if c % 2 else range(h, nq))
    so = f"s{sK}" if st else "0"
    if OPT.get("rot"):
        so = "s91"
        if c % 2:
            a("s_addk_i32 s91, 128\ns_cmpk_eq_u32 s91, 1152\ns_cselect_b32 s91, 0, s91")
    elif st:
        a(f"s_movk_i32 s{sK}, {st*128}")
    for q in qs:
        m.set(x0 + (st % 3) * xs + 2048 * q)
        a("s_nop 0")
        dma(VD + q, SX, so)
    return len(qs)

def wo_setup(quad):
    col8(VWO, 1)
    a(f"""
s_mul_i32 s{sM}, s{sHG}, 144
v_add_u32 v{VWO}, s{sM}, v{VWO}
v_bfe_u32 v1, v0, 5, 1
v_bfe_u32 v2, v0, 3, 2
v_mul_u32_u24 v1, 72, v1
v_add_u32 v1, v1, v2
v_mul_u32_u24 v1, 1152, v1
v_add_u32 v{VWO+1}, v1, v{VWO}
v_lshrrev_b32 v1, 3, v0
v_mul_u32_u24 v1, 1152, v1
v_add_u32 v{VWO}, v1, v{VWO}
v_bfe_u32 v1, v0, 1, 2
v_bfe_u32 v2, v0, 3, 1
v_bfe_u32 v3, v0, 4, 1
v_bfe_u32 v4, v0, 5, 1
v_lshl_add_u32 v5, v2, 2, v1
v_lshl_add_u32 v5, v3, 4, v5
v_lshl_add_u32 v5, v4, 3, v5
v_mul_u32_u24 v5, 1152, v5
s_add_u32 s{sM}, s{sM}, 128
v_add_u32 v{VWO+2}, s{sM}, v5
v_lshl_add_u32 v5, v3, 2, v1
v_lshl_add_u32 v2, v4, 1, v2
v_mul_u32_u24 v2, 72, v2
v_add_u32 v5, v5, v2
v_mul_u32_u24 v5, 1152, v5
v_add_u32 v{VWO+3}, s{sM}, v5
s_and_b32 s55, s{sWAVE}, 3
s_lshl_b32 s57, s55, 3
""")
    rho(56)
    a(f"s_add_u32 s56, s56, s{55 if quad else sV}")

def rho(dst):
    few, many = (sRB, sHG) if OPT["mapping"] == 48 else (sHG, sRB)
    if OPT["mapping"] > 99:
        a(f"s_cmp_eq_u32 s{sBR}, {0 if OPT['mapping'] == 8448 else 1}\ns_cselect_b32 s{sT}, s{sHG}, s{sRB}\ns_cselect_b32 s{sT2}, s{sRB}, s{sHG}")
        few, many = sT, sT2
    a(f"s_lshl_b32 s{dst}, s{few}, 1\ns_add_u32 s{dst}, s{dst}, s{many}\ns_lshl_b32 s{dst}, s{dst}, 1")
    if not OPT.get("worot", 1):
        a(f"s_mov_b32 s{dst}, 0")

def wo_chunk(left, fadd):
    if left:
        a(f"s_mul_i32 s{sK}, s{sV}, {288*1152}\ns_add_u32 s{sK}, s{sK}, {64*1152}")
        steps = (4, 140, 4); v8, v2 = VWO + 1, VWO + 3
    else:
        a(f"""
s_add_u32 s{sT}, s56, {fadd}
s_bfe_u32 s{sK}, s{sT}, 0x30001
s_mul_i32 s{sK}, s{sK}, {72*1152}
s_bitcmp1_b32 s{sT}, 0
s_cselect_b32 s{sT}, {32*1152}, 0
s_add_u32 s{sK}, s{sK}, s{sT}
""")
        steps = (16, -8, 16); v8, v2 = VWO, VWO + 2
    a(f"s_mov_b32 s{sT2}, s{sK}")
    for j in range(4):
        dma(v8, SWO, f"s{sK}")
        a("s_addk_i32 m0, 1024")
        a(f"s_add_u32 s{sK}, s{sK}, {steps[j]*1152 & 0xffffffff}" if j < 3 else "s_nop 0")
    dma(v2, SWO, f"s{sT2}")
    return 5

def wo_issue(q):
    packed = sum((WO[2 + 4*q + w] // 1024) << (8 * w) for w in range(4))
    a(f"s_lshr_b32 s{sT}, {packed}, s57\ns_and_b32 s{sT}, s{sT}, 0xff\ns_lshl_b32 m0, s{sT}, 10")
    return wo_chunk(False, 4*q)

def wo_pair(g):
    a(f"s_mul_i32 s{sT}, s{sV}, {WO[2*g+1] - WO[2*g] & 0xffffffff}\ns_add_u32 m0, s{sT}, {WO[2*g]}")
    return wo_chunk(g == 0, 2*g - 2)

def sync_setup():
    a(f"""
s_lshl_b32 s{sT}, s{sBR}, 4
s_add_u32 s{sT}, s{sT}, s{sRB}
s_lshl_b32 s{sT2}, s{sT}, 8
s_add_u32 s{sT2}, s{sT2}, {WS_CNT}
s_add_u32 s{sOC}, s{SWS}, s{sT2}
s_addc_u32 s{sOC+1}, s{SWS+1}, 0
s_lshl_b32 s{sT}, s{sT}, 2
s_add_u32 s98, s{sT}, 32
s_lshl_b32 s99, s{sHG}, 2
s_mul_i32 s{sT2}, s{sHG}, {KV_ST}
s_add_u32 s{sT2}, s{sT2}, {WS_KV + 6144}
s_add_u32 s{sKC}, s{SWS}, s{sT2}
s_addc_u32 s{sKC+1}, s{SWS+1}, 0
""")

def loader_tail(tag, late=()):
    if tag[1] == "X":
        flag_check(sFO, 98, f"L_{tag}_fo")
    a("s_barrier")
    stamp()
    for g in late:
        wo_pair(g)
    if tag[1] == "X":
        a(f"s_cmp_eq_u32 s{sWAVE}, 6\ns_cbranch_scc0 L_{tag}_oc_x")
        arrive_wait(sOC, 8, f"L_{tag}_oc")
    a("s_waitcnt vmcnt(0)")
    stamp()
    a("s_barrier")
    stamps_out({"AW": 4, "AX": 6}.get(tag, -1))
    a("s_endpgm")

def a_loader(kind):
    a(f"L_A{kind}1:")
    m = M0(42)
    issue = (lambda c: w_issue("A", c, m)) if kind == "W" else (lambda c: x_issue("A", c, m))
    if OPT.get("prepass"):
        a("s_mov_b32 s58, s90\ns_mov_b32 s59, s91")
        n_ = {}
        for c in range(1, 18):
            if OPT["prepass"] == 2:
                a("s_mov_b32 s90, s58\ns_mov_b32 s91, s59")
            n_[c] = issue(c)
            a(f"s_waitcnt vmcnt({n_[c] + n_.get(c-1, 0)})")
            if c in (4, 9):
                stamp()
        a("s_waitcnt vmcnt(0)")
        stamp()
        a("s_barrier\ns_mov_b32 s90, s58\ns_mov_b32 s91, s59")
        m.cur = None
        issue(0)
    pre = 1 if OPT.get("early") and kind == "W" else 2
    cnt = {c: issue(c) for c in range(1, pre + 1)}
    stamp()
    x_lane(8, 9, 1)
    rd_lanes(36, 12, 1, 2)
    a(f"""
v_add_u32 v8, {A_X0 + 8*2048}, v8
v_add_u32 v9, {A_X0 + 8*2048}, v9
s_lshl_b32 s{sT}, s{sV}, 6
v_xor_b32 v10, s{sT}, v36
v_add_u32 v10, {4096 if kind == 'W' else 8192}, v10
v_xor_b32 v11, 32, v10
v_add_u32 v12, {12288 if kind == 'W' else 13312}, v12
v_add_u32 v13, {4*A_WSLOT}, v10
v_add_u32 v14, {4*A_WSLOT}, v11
v_add_u32 v15, {4*A_WSLOT}, v12
s_lshl_b32 s{sT}, s{sV}, 10
s_add_u32 s{sT}, s{sT}, {A_EX + (0 if kind == 'W' else 2560)}
v_lshlrev_b32 v7, 3, v0
v_add_u32 v6, s{sT}, v7
v_add_u32 v7, {A_EX + (2048 if kind == 'W' else 4608)}, v7
""")
    stamp()
    a(f"s_waitcnt vmcnt({sum(cnt.values())})\ns_barrier")
    stamp()
    extra = 0
    for i in range(-1, 17):
        ks = i + 1
        slot = ks % 5
        off = 0 if slot == 4 else slot * A_WSLOT
        ad = (13, 14, 15) if slot == 4 else (10, 11, 12)
        def lp(n):
            if OPT.get("lp") == n and i == OPT.get("lpi", 6):
                stamp()
                j_ = sST + 2*(nstamp[0]-1)
                a(f"s_waitcnt lgkmcnt(0)\ns_sub_u32 s{j_}, s{j_}, s100\ns_lshl_b32 s{j_}, s{j_}, 4\ns_add_u32 s{j_}, s{j_}, s100")
        if OPT.get("lp") and i == OPT.get("lpi", 6):
            a("s_memtime s[100:101]")
        a(f"ds_read_b128 v[40:43], v{8 + ks % 2} offset:{(ks//2 % 3)*A_XSLOT}")
        for j in range(3 if OPT.get("nohalo", 0) < 2 else 0):
            a(tr(44 + 4*j, ad[j], off)); a(tr(46 + 4*j, ad[j], off + (1024 if j < 2 else 256)))
        if i == -1 and pre == 1:
            cnt[2] = issue(2)
        if i + 4 <= 17:
            cnt[i+4] = issue(i + 4)
        lp(1)
        a("s_waitcnt lgkmcnt(0)")
        for j in range(3 if not OPT.get("nohalo") else 0):
            c = 60 + 4*j if ks else "0"
            a(mf(60 + 4*j, 44 + 4*j, 40, c) if kind == "W" else mf(60 + 4*j, 40, 44 + 4*j, c))
        if i == 1:
            srds_rest(); sync_setup()
        if i == 2:
            wo_setup(True)
        if i == 14 and kind == "W":
            extra += wo_pair(0)
        if i == 15:
            extra += wo_issue(0)
        if i + 1 <= 16:
            left = sum(cnt.get(c, 0) for c in range(i + 3, min(i + 4, 17) + 1)) + extra
            lp(2)
            a(f"s_waitcnt vmcnt({left})")
            lp(3)
            a("s_barrier")
            lp(4)
            if OPT.get("fine") and kind == "W" and i % 2 == 1 and 0 < i < 14:
                stamp()
    for j in range(3):
        a(cv(44 + 2*j, 60 + 4*j)); a(cv(45 + 2*j, 62 + 4*j))
    if kind == "W":
        a("v_mov_b32 v50, 0\nv_mov_b32 v51, 0")
        a("v_permlane32_swap_b32 v48, v50\nv_permlane32_swap_b32 v49, v51")
    a("ds_write_b64 v6, v[44:45]\nds_write_b64 v6, v[46:47] offset:512")
    a(f"ds_write_b64 v7, {'v[50:51]' if kind == 'W' else 'v[48:49]'}")
    stamp()
    a("s_waitcnt lgkmcnt(0)\ns_barrier")
    if kind == "X":
        flag_load(sFO, 98)
    wo_issue(1); wo_issue(2); wo_issue(3)
    stamp()
    loader_tail("A" + kind)

def o_store_addr(vfull, vleft, tmp, left_lo):
    a(f"""
s_lshl_b32 s{sT}, s{sRB}, 3
s_lshl_b32 s{sT2}, s{sWAVE}, 1
s_add_u32 s{sT}, s{sT}, s{sT2}
s_mul_i32 s{sT}, s{sT}, 18432
s_mul_i32 s{sT2}, s{sBR}, {O_BR}
s_add_u32 s58, s{sT}, s{sT2}
s_lshl_b32 s{sT2}, s{sHG}, 11
s_add_u32 s{sT2}, s{sT2}, s58
v_lshl_add_u32 v{vfull}, v0, 4, s{sT2}
s_lshr_b32 s{sT2}, s{sHG}, 2
s_add_u32 s{sT2}, s{sT2}, 16
s_lshl_b32 s{sT2}, s{sT2}, 10
s_add_u32 s{sT}, s58, s{sT2}
s_and_b32 s{sT2}, s{sHG}, 3
s_lshl_b32 s{sT2}, s{sT2}, 8
s_add_u32 s{sT}, s{sT}, s{sT2}
v_and_b32 v{vleft}, 15, v0
v_lshlrev_b32 v{vleft}, 4, v{vleft}
v_bfe_u32 v{tmp}, v0, 4, 1
v_lshl_add_u32 v{vleft}, v{tmp}, 3, v{vleft}
v_add_u32 v{vleft}, s{sT}, v{vleft}
v_mov_b32 v{tmp}, {OOB}
""")
    x, y = (tmp, vleft) if left_lo else (vleft, tmp)
    a(f"v_cndmask_b32 v{vleft}, v{x}, v{y}, s[{sG01}:{sG01+1}]")

def o_store(of, vfull, vleft, rt):
    so = f"s{sK}" if rt else "0"
    if rt:
        a(f"s_movk_i32 s{sK}, 18432")
    a(f"buffer_store_dwordx4 {vr(of,4)}, v{vfull}, s[{SWS}:{SWS+3}], {so} offen sc1")
    a(f"buffer_store_dwordx4 {vr(of+4,4)}, v{vfull}, s[{SWS}:{SWS+3}], {so} offen offset:1024 sc1")
    a(f"buffer_store_dwordx2 {vr(of+8,2)}, v{vleft}, s[{SWS}:{SWS+3}], {so} offen sc1")

def gap_touch(tag, parts):
    if not OPT.get("touch"):
        return
    nt = " nt" if OPT.get("tnt") else ""
    a(f"""
s_cmp_eq_u32 s{sWAVE}, 1
s_cbranch_scc1 L_{tag}_tw
s_cmp_eq_u32 s{sWAVE}, 2
s_cbranch_scc0 L_{tag}_tx
s_and_b32 s{sT}, s{sRB}, 7
s_cmp_eq_u32 s{sT}, 0
s_cselect_b32 s{sT}, 9, s{sT}
s_sub_u32 s{sT}, s{sT}, 1
s_lshl_b32 s{sT}, s{sT}, 7
s_and_b32 s{sT2}, s{sHG}, 3
s_lshl_b32 s{sT2}, s{sT2}, 5
s_lshl_b32 s{sT3}, s{sRB}, 7
s_add_u32 s{sT2}, s{sT2}, s{sT3}
v_and_b32 v1, 31, v0
v_add_u32 v1, s{sT2}, v1
v_mul_u32_u24 v1, 1152, v1
""")
    srd(SX, 36, 2359296)
    a(f"""
buffer_load_dword v26, v1, s[{SX}:{SX+3}], s{sT} offen{nt}
s_branch L_{tag}_tx
L_{tag}_tw:
s_and_b32 s{sT}, s{sHG}, 3
s_lshl_b32 s{sT}, s{sT}, 1
s_cmp_eq_u32 s{sT}, 0
s_cselect_b32 s{sT}, 9, s{sT}
s_sub_u32 s{sT}, s{sT}, 1
s_lshl_b32 s{sT}, s{sT}, 3
s_and_b32 s{sT2}, s{sRB}, 7
s_add_u32 s{sT}, s{sT}, s{sT2}
s_mul_i32 s{sT}, s{sT}, {8*3456}
s_add_u32 s{sT}, s{sT}, s{sM}
v_lshrrev_b32 v1, 3, v0
v_mul_u32_u24 v1, 3456, v1
v_bfe_u32 v2, v0, 1, 2
v_min_u32 v2, {parts-1}, v2
v_mul_u32_u24 v2, 1152, v2
v_and_b32 v3, 1, v0
v_mul_u32_u24 v3, 140, v3
v_add3_u32 v1, v1, v2, v3
""")
    srd(SW, 38, 1990656)
    a(f"buffer_load_dword v26, v1, s[{SW}:{SW+3}], s{sT} offen offset:{1152*(3-parts)}{nt}\nL_{tag}_tx:")

def init_stores(tag, with_kv):
    if OPT.get("skew"):
        a(f"v_mov_b32 v2, s{sST}\ns_lshl_b32 s{sT}, s2, 2\ns_add_u32 s{sT}, s{sT}, 0x6f0000\nv_mov_b32 v1, s{sT}\nbuffer_store_dword v2, v1, s[{SWS}:{SWS+3}], 0 offen sc1")
    if OPT.get("xcc"):
        a(f"s_getreg_b32 s{sT}, hwreg(HW_REG_XCC_ID, 0, 4)\nv_mov_b32 v2, s{sT}\ns_lshl_b32 s{sT}, s2, 2\ns_add_u32 s{sT}, s{sT}, 0x6f0000\nv_mov_b32 v1, s{sT}\nbuffer_store_dword v2, v1, s[{SWS}:{SWS+3}], 0 offen sc1")
    a(f"""
s_or_b32 s{sT}, s{sHG}, s{sWAVE}
s_cmp_eq_u32 s{sT}, 0
s_cselect_b32 s55, 1, 0
v_mov_b32 v20, 0
v_mov_b32 v21, 0
v_mov_b32 v22, 0
v_mov_b32 v23, 0
s_cbranch_scc0 L_{tag}_i1
s_lshl_b32 s{sT}, s{sBR}, 4
s_add_u32 s{sT}, s{sT}, s{sRB}
s_lshl_b32 s{sT}, s{sT}, 8
s_add_u32 s{sT}, s{sT}, {WS_CNT}
v_mov_b32 v24, s{sT}
buffer_store_dword v20, v24, s[{SWS}:{SWS+3}], 0 offen sc1
L_{tag}_i1:
""")
    if with_kv:
        a(f"""
s_or_b32 s{sT}, s{sRB}, s{sWAVE}
s_cmp_eq_u32 s{sT}, 0
s_cbranch_scc0 L_{tag}_i2
s_or_b32 s55, s55, 2
s_mul_i32 s{sT}, s{sHG}, {KV_ST}
s_add_u32 s{sT}, s{sT}, {WS_KV}
v_lshl_add_u32 v24, v0, 4, s{sT}
""")
        for j in range(7):
            a(f"s_movk_i32 s{sK}, {1024*j}\nbuffer_store_dwordx4 v[20:23], v24, s[{SWS}:{SWS+3}], s{sK} offen sc1")
        a(f"L_{tag}_i2:")

def init_flags(tag):
    a(f"""
s_waitcnt vmcnt(0)
s_cmp_eq_u32 s55, 0
s_cbranch_scc1 L_{tag}_f2
v_mov_b32 v20, 1
s_bitcmp1_b32 s55, 0
s_cbranch_scc0 L_{tag}_f1
s_lshl_b32 s{sT}, s{sBR}, 4
s_add_u32 s{sT}, s{sT}, s{sRB}
s_lshl_b32 s{sT}, s{sT}, 2
s_add_u32 s{sT}, s{sT}, 32
v_mov_b32 v24, s{sT}
buffer_store_dword v20, v24, s[{SDBG}:{SDBG+3}], 0 offen sc1
L_{tag}_f1:
s_bitcmp1_b32 s55, 1
s_cbranch_scc0 L_{tag}_f2
s_lshl_b32 s{sT}, s{sHG}, 2
v_mov_b32 v25, s{sT}
buffer_store_dword v20, v25, s[{SDBG}:{SDBG+3}], 0 offen sc1
L_{tag}_f2:
""")

def kstep(tiles, nxt_reads, first, waits):
    pend = list(first)
    for t, (m0_, m1_) in enumerate(tiles):
        if t in waits:
            a(waits[t])
        a(m0_)
        for x in pend: a(x)
        a(m1_)
        pend = []
        if nxt_reads:
            a(nxt_reads[t][0]); pend = [nxt_reads[t][1]]
    for x in pend: a(x)

def a_consumer():
    acc = lambda t, rt: 144 + (t * 2 + rt) * 4
    wf = lambda t: 88 + 4 * t
    xf = lambda buf, rt: 72 + buf * 8 + rt * 4
    R8, R2, R8b, R2b, aX = 1, 5, 6, 10, 11
    vOF, vOL, vEXW, vEXR = 13, 14, 15, 16
    MC, MP, MPF, PM = 56, 60, 64, 68
    a("L_AC:\ns_waitcnt lgkmcnt(0)")
    gap_touch("AC", 3)
    srds_rest()
    init_stores("AC", False)
    rd_lanes(R8, R2, 17, 18); x_lane(aX, aX + 1, 17)
    for j in range(5):
        a(f"v_add_u32 v{R8b+j}, {4*A_WSLOT}, v{R8+j}")
    a(f"""
s_lshl_b32 s{sT}, s{sWAVE}, 12
s_add_u32 s{sT}, s{sT}, {A_X0}
v_add_u32 v{aX}, s{sT}, v{aX}
v_add_u32 v{aX+1}, s{sT}, v{aX+1}
s_lshr_b32 s{sT}, s{sWAVE}, 1
s_lshl_b32 s{sT}, s{sT}, 3
v_and_b32 v17, 15, v0
v_xor_b32 v17, s{sT}, v17
v_lshrrev_b32 v18, 4, v0
v_lshlrev_b32 v18, 2, v18
v_xor_b32 v18, s{sT}, v18
v_sub_u32 v17, v17, v18
v_mov_b32 v19, {NEG}
s_and_b32 s{sT}, s{sWAVE}, 1
s_or_b32 s{sT}, s{sT}, s{sRB}
s_cmp_eq_u32 s{sT}, 0
s_cselect_b64 s[42:43], -1, 0
""")
    for r in range(4):
        a(f"""
v_subrev_u32 v18, {r}, v17
v_cmp_gt_u32 vcc, 8, v18
v_cndmask_b32 v{MC+r}, v19, 0, vcc
v_cmp_gt_i32 vcc, -8, v18
v_cndmask_b32 v{MP+r}, v19, 0, vcc
v_cndmask_b32 v{MPF+r}, v{MP+r}, v19, s[42:43]
v_cmp_lt_i32 vcc, -1, v18
v_mov_b32 v20, {'0xffff' if r % 2 == 0 else '0xffff0000'}
v_cndmask_b32 v20, 0, v20, vcc
""")
        a(f"v_mov_b32 v{PM + r//2}, v20" if r % 2 == 0 else f"v_or_b32 v{PM + r//2}, v{PM + r//2}, v20")
    o_store_addr(vOF, vOL, 17, True)
    a(f"""
s_lshr_b32 s{sT}, s{sWAVE}, 1
s_add_u32 s{sT}, s{sT}, 1
s_mul_i32 s{sT}, s{sT}, 5120
s_bitcmp1_b32 s{sWAVE}, 0
s_cselect_b32 s{sT3}, s{sT}, 0
v_lshlrev_b32 v17, 3, v0
v_add_u32 v17, {A_EX}, v17
v_add_u32 v{vEXW}, s{sT}, v17
v_add_u32 v{vEXR}, s{sT3}, v17
""")

    def wreads(ks, t):
        slot = ks % 5
        o = 0 if slot == 4 else slot * A_WSLOT
        r8, r2 = (R8b, R2b) if slot == 4 else (R8, R2)
        if t == 4 or t == 13:
            o += 12288 if t == 4 else 13312
            return [tr(wf(t), r2, o), tr(wf(t) + 2, r2, o + 256)]
        s, j = (0, t) if t < 4 else (1, t - 5) if t < 9 else (2, t - 9)
        return [tr(wf(t), r8 + j, o + 4096*s), tr(wf(t) + 2, r8 + j, o + 4096*s + 1024)]
    xread = lambda ks, rt: f"ds_read_b128 {vr(xf(ks % 2, rt),4)}, v{aX + ks % 2} offset:{(ks//2 % 3)*A_XSLOT + rt*2048}"

    if OPT.get("prepass"):
        a("s_barrier")
    stamp()
    a("s_barrier")
    stamp()
    a(xread(0, 0)); a(xread(0, 1))
    for t in range(14):
        for x in wreads(0, t): a(x)
    for ks in range(18):
        if OPT.get("body") and ks == OPT["body"] + 1:
            stamp()
            j_ = sST + 2*(nstamp[0]-1)
            a(f"s_waitcnt lgkmcnt(0)\ns_sub_u32 s{j_}, s{j_}, s100\ns_lshl_b32 s{j_}, s{j_}, 4\ns_add_u32 s{j_}, s{j_}, s100")
        if OPT.get("span") and ks == OPT["span"] + 4:
            a("s_barrier")
            stamp()
            j_ = sST + 2*(nstamp[0]-1)
            a(f"s_waitcnt lgkmcnt(0)\ns_sub_u32 s{j_}, s{j_}, s100\ns_lshl_b32 s{j_}, s{j_}, 2\ns_add_u32 s{j_}, s{j_}, s100")
        elif ks < 17:
            a("s_barrier")
        if ks and ks in (OPT.get("body"), OPT.get("span")):
            a("s_memtime s[100:101]")
        if OPT.get("fine") == 2 and ks in (2, 5, 8, 11, 14):
            stamp()
        if OPT.get("ret") and ks == 1:
            a(f"s_lshl_b32 s40, s2, 10\ns_lshl_b32 s41, s{sWAVE}, 8\ns_add_u32 s40, s40, s41\ns_add_u32 s40, s40, 0x580000\ns_add_u32 s40, s40, s{SWS}\ns_addc_u32 s41, s{SWS+1}, 0")
            if OPT["ret"] == 1:
                a("v_mov_b32 v28, 0\nglobal_load_dword v29, v28, s[40:41]")
        if OPT.get("ret") and ks == OPT.get("at", 7):
            if OPT["ret"] == 2:
                a("v_mov_b32 v28, 0\nglobal_load_dword v29, v28, s[40:41]\ns_waitcnt vmcnt(0)")
            a("s_waitcnt lgkmcnt(0)\ns_memtime s[100:101]\ns_waitcnt lgkmcnt(0)\ns_load_dword s38, s[40:41], 64\ns_waitcnt lgkmcnt(0)")
            stamp()
            j_ = sST + 2*(nstamp[0]-1)
            a(f"s_waitcnt lgkmcnt(0)\ns_sub_u32 s{j_}, s{j_}, s100\ns_lshl_b32 s{j_}, s{j_}, 3\ns_add_u32 s{j_}, s{j_}, s100")
        if OPT.get("dummy") == ks:
            if OPT.get("dpre"):
                a("s_getpc_b64 s[38:39]\nv_lshlrev_b32 v28, 7, v0\nv_min_u32 v28, 2304, v28\nglobal_load_dword v29, v28, s[38:39]\ns_waitcnt vmcnt(0)")
            a("s_waitcnt lgkmcnt(0)\ns_memtime s[100:101]\ns_memrealtime s[40:41]\ns_waitcnt lgkmcnt(0)")
            for n in range(128):
                kind = OPT.get("dkind", 0)
                if kind == 0:
                    a(mf(28 + 4 * (n % 4), 88, 72, "0"))
                elif kind == 1:
                    a(f"v_add3_u32 v{28 + n % 8}, v0, v0, v0\nv_add3_u32 v{36 + n % 8}, v0, v0, v0")
                else:
                    a(f"ds_read_b128 v[{28 + 4 * (n % 4)}:{31 + 4 * (n % 4)}], v{aX} offset:0")
            a("s_waitcnt lgkmcnt(0)")
            stamp()
            a("s_waitcnt lgkmcnt(0)")
            if not OPT.get("cyc"):
                a(f"s_sub_u32 s40, s{sST + 2*(nstamp[0]-1)}, s40\ns_add_u32 s{sST + 2*(nstamp[0]-1)}, s{sST}, s40")
        if ks == 3:
            init_flags("AC")
        tiles = []
        for t in range(14):
            c = lambda rt: acc(t, rt) if ks else "0"
            tiles.append([mf(acc(t, rt), wf(t), xf(ks % 2, rt), c(rt)) if t < 9 else mf(acc(t, rt), xf(ks % 2, rt), wf(t), c(rt)) for rt in range(2)])
        if ks < 17:
            nxt = [wreads(ks + 1, t) for t in range(14)]
            nxt[1] = [nxt[1][0], nxt[1][1] + "\n" + xread(ks + 1, 1)]
            kstep(tiles, nxt, [xread(ks + 1, 0)], {0: "s_waitcnt lgkmcnt(14)", 7: "s_waitcnt lgkmcnt(15)", 12: "s_waitcnt lgkmcnt(15)"})
        else:
            kstep(tiles, None, [], {0: "s_waitcnt lgkmcnt(14)", 7: "s_waitcnt lgkmcnt(0)"})
    stamp()
    KP = lambda j: 18 + 10 * j
    QT = lambda rt, h: 88 + 16 * rt + 4 * h
    VP = lambda t, j: 120 + 6 * t + 2 * j if t < 4 else 48 + 2 * j
    ONE = 72
    def pack_kv(rt):
        o = []
        for q in range(2):
            o += [cv(QT(rt, 3) + 2 + q, acc(4, rt) + 2*q), f"v_mov_b32 v{KP(1+rt) + 8 + q}, 0"]
        for tau in range(4):
            o += [cv(KP(1+rt) + 2*tau + q, acc(5+tau, rt) + 2*q) for q in range(2)]
        o += [f"v_permlane32_swap_b32 v{QT(rt,3) + 2 + q}, v{KP(1+rt) + 8 + q}" for q in range(2)]
        for t in range(5):
            o += [cv(VP(t, 1+rt) + q, acc(9+t, rt) + 2*q) for q in range(2)]
        return o
    def pack_q(rt):
        o = []
        for t in range(4):
            for q in range(2):
                d = QT(rt, t) + q
                o.append(cv(d, acc(t, rt) + 2*q))
                if (t, q) in SPLITS:
                    m = SPLITS[(t, q)]; lo = QT(rt, t-1) + 2 + q
                    o += [f"v_cndmask_b32 v{lo}, 0, v{d}, s[{m}:{m+1}]", f"v_xor_b32 v{d}, v{d}, v{lo}"]
        return o + [f"v_mov_b32 v{QT(rt,0) + 3}, 0"]
    weave([], pack_kv(1))
    a(f"s_bitcmp1_b32 s{sWAVE}, 0\ns_cbranch_scc1 L_AC_nodump")
    for j in range(5):
        a(f"ds_write_b64 v{vEXW}, {vr(KP(2) + 2*j, 2)} offset:{512*j}")
        a(f"ds_write_b64 v{vEXW}, {vr(VP(j, 2), 2)} offset:{512*(5+j)}")
    a("L_AC_nodump:")
    weave([], pack_kv(0) + pack_q(1))
    a("s_waitcnt lgkmcnt(0)\ns_barrier")
    for j in range(5):
        a(f"ds_read_b64 {vr(KP(0) + 2*j, 2)}, v{vEXR} offset:{512*j}")
        a(f"ds_read_b64 {vr(VP(j, 0), 2)}, v{vEXR} offset:{512*(5+j)}")
    SC = lambda rt, h: (224 if rt else 184) + 8 * h
    MX = lambda rt: [76 + 4 * rt + h for h in range(4)]
    PT = lambda rt, h: 144 + 16 * rt + 4 * h
    def qk(rt):
        o = []
        for h in range(4):
            o += [mf(SC(rt, h), KP(1+rt) + 2*h, QT(rt, h), MC), mf(SC(rt, h) + 4, KP(rt) + 2*h, QT(rt, h), MP if rt else MPF)]
        return o
    def rowmax(rt):
        o = []
        for h in range(4):
            s = SC(rt, h); m = MX(rt)[h]
            o += [f"v_max_f32 v{s+r}, v{s+r}, v{s+4+r}" for r in range(4)]
            o += [f"v_max3_f32 v{m}, v{s}, v{s+1}, v{s+2}", f"v_max_f32 v{m}, v{m}, v{s+3}"]
        return o
    def xmax(rt):
        m = MX(rt)
        return [f"v_permlane32_swap_b32 v{m[0]}, v{m[1]}", f"v_permlane32_swap_b32 v{m[2]}, v{m[3]}",
                f"v_max_f32 v{m[0]}, v{m[0]}, v{m[1]}", f"v_max_f32 v{m[2]}, v{m[2]}, v{m[3]}",
                f"v_permlane16_swap_b32 v{m[0]}, v{m[2]}", f"v_max_f32 v{m[0]}, v{m[0]}, v{m[2]}",
                f"v_mul_f32 v{m[0]}, s{sT2}, v{m[0]}", f"v_mov_b32 v{m[2]}, v{m[0]}",
                f"v_permlane16_swap_b32 v{m[0]}, v{m[2]}", f"v_mov_b32 v{m[1]}, v{m[0]}", f"v_mov_b32 v{m[3]}, v{m[2]}",
                f"v_permlane32_swap_b32 v{m[0]}, v{m[1]}", f"v_permlane32_swap_b32 v{m[2]}, v{m[3]}"]
    def probs(rt):
        o = []
        for h in range(4):
            s = SC(rt, h); p = PT(rt, h)
            o += [f"v_fma_f32 v{s+r}, v{s+r}, s{sT}, v{MX(rt)[h]}" for r in range(4)]
            o += [f"v_exp_f32 v{s+r}, v{s+r}" for r in range(4)]
            if h:
                o += split(rt, h - 1)
        return o + split(rt, 3)
    def split(rt, h):
        s = SC(rt, h); p = PT(rt, h); o = []
        for q in range(2):
            o += [cv(p + q, s + 2*q), f"v_and_b32 v{p+2+q}, v{p+q}, v{PM+q}", f"v_xor_b32 v{p+q}, v{p+q}, v{p+2+q}"]
        return o
    OB = lambda rt, t: (224 if rt else 184) + 4 * t
    OA = lambda rt, t: (224 if rt else 184) + 12 + 4 * t
    SM = lambda rt, h: 88 + 16 * rt + 4 * h
    OF = lambda rt: 18 + 10 * rt
    def pv(rt):
        o = [mf(SM(rt, h), ONE, PT(rt, h), "0") for h in range(4)]
        for t in range(5):
            if t < 4: o.append(mf(OB(rt, t), VP(t, rt), PT(rt, t), "0"))
            if t > 0: o.append(mf(OA(rt, t), VP(t, rt), PT(rt, t-1), "0"))
        return o
    def finish(rt):
        o = [f"v_rcp_f32 v{SM(rt,h)}, v{SM(rt,h)}" for h in range(4)]
        for t in range(5):
            for q in range(2):
                d = OF(rt) + 2*t + q
                srcs = []
                if t < 4: srcs.append((OB(rt, t) + 2*q, SM(rt, t), d))
                if t == 4: srcs.append((OA(rt, t) + 2*q, SM(rt, 3), d))
                if (t, q) in SPLITS: srcs.append((OA(rt, t) + 2*q, SM(rt, t-1), 17))
                for x, inv, dd in srcs:
                    o += [f"v_mul_f32 v{x}, v{x}, v{inv}", f"v_mul_f32 v{x+1}, v{x+1}, v{inv}", cv(dd, x)]
                if (t, q) in SPLITS:
                    m = SPLITS[(t, q)]
                    o.append(f"v_cndmask_b32 v{d}, v{d}, v17, s[{m}:{m+1}]")
        return o
    a(f"s_mov_b32 s{sT}, {f32(CSC)}\ns_mov_b32 s{sT2}, {f32(-CSC)}")
    weave(qk(1), pack_q(0) + [f"v_mov_b32 v{ONE+j}, 0x3f803f80" for j in range(4)])
    a("s_waitcnt lgkmcnt(0)")
    weave(qk(0), rowmax(1))
    x1, x0 = xmax(1), xmax(0)
    r0 = rowmax(0)
    for i, x in enumerate(x1):
        a(x)
        for y in r0[2*i:2*i+2]: a(y)
    p1 = probs(1)
    for i, x in enumerate(x0):
        a(x)
        for y in p1[2*i:2*i+2]: a(y)
    weave([], p1[2*len(x0):])
    weave(pv(1), probs(0))
    weave(pv(0), finish(1))
    o_store(OF(1), vOF, vOL, 1)
    weave([], finish(0))
    o_store(OF(0), vOF, vOL, 0)
    stamp()
    a("s_branch L_P2")

def phi(r, n, t):
    o = [f"v_pk_fma_f32 {vr(t+j,2)}, {vr(r+j,2)}, s[56:57], v[14:15]" for j in range(0, n, 2)]
    for j in range(n):
        o += [f"v_exp_f32 v{t+j}, v{t+j} clamp", f"v_max_f32 v{r+j}, s{sT2}, v{r+j}"]
    return o + [f"v_pk_add_f32 {vr(r+j,2)}, {vr(r+j,2)}, {vr(t+j,2)}" for j in range(0, n, 2)]

def b_consumer():
    acc = lambda t, rt: 184 + (t * 2 + rt) * 4
    wf = lambda t: 148 + 4 * t
    xf = lambda ks, rt: 52 + ks * 8 + rt * 4 if ks < 12 else 36 + (ks % 2) * 8 + rt * 4
    R8, R2, aX = 1, 5, 6
    vOF, vOL, vEX = 8, 9, 10
    CK, CS = 28, 32
    a("L_BC:\ns_waitcnt lgkmcnt(0)")
    gap_touch("BC", 2)
    srds_rest()
    init_stores("BC", True)
    rd_lanes(R8, R2, 17, 18); x_lane(aX, aX + 1, 17)
    a(f"""
s_lshl_b32 s{sT}, s{sWAVE}, 12
s_add_u32 s{sT}, s{sT}, {B_X0}
v_add_u32 v{aX}, s{sT}, v{aX}
v_add_u32 v{aX+1}, s{sT}, v{aX+1}
v_and_b32 v17, 15, v0
v_cmp_gt_u32 vcc, 8, v17
v_mov_b32 v18, {EPS}
s_mov_b64 s[42:43], vcc
s_mul_i32 s{sT}, s{sWAVE}, 10240
s_add_u32 s{sT}, s{sT}, {B_EX}
v_lshl_add_u32 v{vEX}, v0, 4, s{sT}
v_mov_b32 v14, {f32(-1e-6*LOG2E)}
v_mov_b32 v15, v14
s_mov_b32 s56, {f32(LOG2E)}
s_mov_b32 s57, s56
""")
    for r in range(4):
        a(f"v_mov_b32 v{CK+r}, v18\nv_cndmask_b32 v{CS+r}, 0, v18, vcc")
    o_store_addr(vOF, vOL, 17, False)

    def wreads(ks, t):
        o = (ks % 5) * B_KVSLOT
        if t == 4:
            return [tr(wf(t), R2, o + 8192), tr(wf(t) + 2, R2, o + 8192 + 256)]
        s, j = (0, t) if t < 4 else (1, t - 5)
        return [tr(wf(t), R8 + j, o + 4096*s), tr(wf(t) + 2, R8 + j, o + 4096*s + 1024)]
    xread = lambda ks, rt: f"ds_read_b128 {vr(xf(ks, rt),4)}, v{aX + ks % 2} offset:{(ks//2 % 3)*B_XSLOT + rt*2048}"

    stamp()
    a("s_barrier")
    stamp()
    a(xread(0, 0)); a(xread(0, 1))
    for t in range(9):
        for x in wreads(0, t): a(x)
    for ks in range(18):
        if ks < 17:
            a("s_barrier")
        if ks == 3:
            init_flags("BC")
        tiles = [[mf(acc(t, rt), xf(ks, rt), wf(t), acc(t, rt) if ks else (CK if t < 4 else CS if t == 4 else "0")) for rt in range(2)] for t in range(9)]
        if ks < 17:
            nxt = [wreads(ks + 1, t) for t in range(9)]
            nxt[1] = [nxt[1][0], nxt[1][1] + "\n" + xread(ks + 1, 1)]
            kstep(tiles, nxt, [xread(ks + 1, 0)], {0: "s_waitcnt lgkmcnt(12)", 3: "s_waitcnt lgkmcnt(13)", 6: "s_waitcnt lgkmcnt(13)", 8: "s_waitcnt lgkmcnt(11)"})
        else:
            kstep(tiles, None, [], {0: "s_waitcnt lgkmcnt(12)", 3: "s_waitcnt lgkmcnt(0)\ns_barrier"})
    stamp()
    a(f"s_mov_b32 s{sT2}, {EPS}\nv_mov_b32 v16, 0x3f803f80")
    wr = lambda reg, slot: f"ds_write_b128 v{vEX}, {vr(reg,4)} offset:{1024*slot}"
    pk = lambda d, s: [cv(d + j, s + 2*j) for j in range(4)]
    weave([], pk(156, acc(4, 0)) + [f"v_cndmask_b32 v{156+j}, v{156+j}, v16, s[42:43]" for j in range(4)] + [wr(156, 9)])
    xq = lambda ks, rt: 168 + (ks - 12) * 8 + rt * 4 if ks in (12, 13) else acc(2 * (ks - 14) + rt, 1) if ks in (14, 15) else xf(ks, rt)
    reread = lambda ks, rt: f"ds_read_b128 {vr(xq(ks, rt),4)}, v{aX + ks % 2} offset:{(ks//2 % 3)*B_XSLOT + rt*2048}"
    weave([], [reread(ks, rt) for ks in (12, 13) for rt in range(2)])
    for tau in range(5):
        o = phi(acc(tau, 0), 8, 148)
        if tau < 4:
            o = pk(acc(5+tau, 0), acc(5+tau, 0)) + o[:8] + [wr(acc(5+tau, 0), 5 + tau)] + o[8:]
        weave([], o + pk(acc(tau, 0), acc(tau, 0)) + [wr(acc(tau, 0), tau)])
        if tau < 4:
            a(reread(14 + tau // 2, tau % 2))
    for j in range(5):
        a(f"v_add_u32 v{R8+j}, {B_WQ0}, v{R8+j}")
    a("s_waitcnt lgkmcnt(0)\ns_barrier")
    stamp()
    QA = lambda t, rt: 216 + (t * 2 + rt) * 4
    qf = lambda t: 148 + 4 * t
    qbase = lambda p: B_WQ0 if p < 4 else 0 if p < 7 else 15360
    def qreads(p, t):
        o = wq_slot(p) - qbase(p)
        if t == 4:
            return [tr(qf(t), R2, o + 4096), tr(qf(t) + 2, R2, o + 4096 + 256)]
        return [tr(qf(t), R8 + t, o), tr(qf(t) + 2, R8 + t, o + 1024)]
    for t in range(5):
        for x in qreads(0, t): a(x)
    for p in range(18):
        ks = QORD[p]
        if p == 7 or (p == 13 and OPT.get('wob', 0)):
            a("s_barrier")
        tiles = [[mf(QA(t, rt), qf(t), xq(ks, rt), QA(t, rt) if p else CK) for rt in range(2)] for t in range(5)]
        if p < 17:
            nxt = [qreads(p + 1, t) for t in range(5)]
            if qbase(p + 1) != qbase(p):
                d = (qbase(p + 1) - qbase(p)) & 0xffffffff
                for t in range(5):
                    nxt[t][0] = f"v_add_u32 v{R8+t}, {d}, v{R8+t}\n" + nxt[t][0]
            kstep(tiles, nxt, [], {t: f"s_waitcnt lgkmcnt({7 if t else 8})" for t in range(5)})
        else:
            kstep(tiles, None, [], {t: f"s_waitcnt lgkmcnt({8 - 2*t})" for t in range(5)})
    stamp()
    PQ = lambda rt: 36 + 10 * rt
    KO = 84
    tup = {0: KO, 1: KO + 4, 2: KO + 12, 3: KO + 20, 4: KO + 28}
    ZO = KO + 32
    weave([], [f"v_mov_b32 v{r}, 0" for r in (tup[1]+4, tup[1]+5, tup[2]+4, tup[2]+5, tup[3]+4, tup[3]+5, ZO+8, ZO+9)])
    a(f"v_lshlrev_b32 v16, 3, v0\nv_add_u32 v16, {B_KVOP}, v16")
    for t in range(5):
        weave([], phi(QA(t, 0), 8, 148) + [cv(PQ(rt) + 2*t + q, QA(t, rt) + 2*q) for rt in range(2) for q in range(2)])
    stamp()
    a("s_barrier")
    stamp()
    tid = lambda tau, taup: {-1: tau - 1, 0: 4 + tau, 1: 9 + tau}[taup - tau]
    rd = lambda d, slot: a(f"ds_read_b64 {vr(d,2)}, v16 offset:{512*slot}")
    for j, d in enumerate((ZO, ZO + 2, ZO + 4, ZO + 6, ZO + 10)):
        rd(d, 13 + j)
    rd(tup[0], tid(0, 0)); rd(tup[0] + 2, tid(1, 0))
    for t in (1, 2, 3):
        rd(tup[t], tid(t-1, t)); rd(tup[t] + 2, tid(t, t)); rd(tup[t] + 6, tid(t+1, t))
    rd(tup[4], tid(3, 4)); rd(tup[4] + 2, tid(4, 4))
    DN = lambda rt: 148 + 4 * rt
    NM = lambda rt, t: 184 + 20 * rt + 4 * t
    OF = lambda rt: 156 + 10 * rt
    a("s_waitcnt lgkmcnt(13)")
    for k, (zo, po) in enumerate(((0, 0), (4, 4), (8, 6))):
        for rt in range(2):
            a(mf(DN(rt), ZO + zo, PQ(rt) + po, DN(rt) if k else CK))
    a("s_waitcnt lgkmcnt(0)")
    def num(rt):
        o = [mf(NM(rt, t), tup[t], PQ(rt) + 2*(t-1), "0") for t in (1, 2, 3)]
        o += [mf(NM(rt, 0), tup[0], PQ(rt), "0"), mf(NM(rt, 4), tup[4], PQ(rt) + 6, "0")]
        return o + [mf(NM(rt, t), tup[t] + 4, PQ(rt) + 2*t, NM(rt, t)) for t in (1, 2, 3)]
    def fin(rt, packed):
        o = []
        for t in (0, 4, 1, 2, 3):
            for q in range(2):
                inv = DN(rt) + min(t, 3)
                if (t, q) in SPLITS:
                    m = SPLITS[(t, q)]
                    o.append(f"v_cndmask_b32 v17, v{DN(rt)+t}, v{DN(rt)+t-1}, s[{m}:{m+1}]")
                    inv = 17
                n = NM(rt, t) + 2*q
                o += [f"v_mul_f32 v{n}, v{n}, v{inv}", f"v_mul_f32 v{n+1}, v{n+1}, v{inv}", cv(OF(rt) + 2*t + q, n)]
        return o
    weave(num(0), [], 0)
    weave(num(1), [f"v_rcp_f32 v{DN(rt)+h}, v{DN(rt)+h}" for rt in range(2) for h in range(4)], 1)
    for rt in range(2):
        weave([], fin(rt, True))
        o_store(OF(rt), vOF, vOL, rt)
    stamp()

def kv_index(wreg, VS, VG, VZ):
    a(f"s_cmp_eq_u32 s{wreg}, 0\ns_cselect_b32 s58, 4, s{wreg}")
    for slot in range(3):
        if slot == 0:
            a(f"s_lshl_b32 s{sT}, s58, 4\ns_sub_u32 s{sT2}, s{sT}, 16\ns_mov_b64 s[46:47], 0")
        elif slot == 1:
            a(f"s_lshl_b32 s{sT}, s{wreg}, 4\ns_mov_b32 s{sT2}, s{sT}")
        else:
            a(f"s_add_u32 s{sT2}, s{sT}, 16\ns_cmp_eq_u32 s{wreg}, 3\ns_cselect_b32 s{sT2}, 56, s{sT2}\ns_cselect_b64 s[46:47], s[44:45], 0")
        kv_tile(VS and VS + 2*slot, VG and VG + 2*slot, False)
    if VZ:
        kv_z(VZ)

def kv_tile(VS, VG, last):
    a(f"v_add_u32 v3, s{sT2}, v1")
    head_of(4, 3)
    a(f"v_mul_u32_u24 v5, 18, v4\nv_sub_u32 v3, v3, v5\nv_cndmask_b32 v4, v4, 7, s[46:47]")
    if last:
        a("v_cmp_eq_u32 vcc, 0, v1\nv_cndmask_b32 v4, v4, 3, vcc\nv_cndmask_b32 v3, v3, 18, vcc")
    for q in range(2):
        a(f"v_add3_u32 v5, v2, s{sT}, {2*q}")
        head_of(6, 5)
        a("v_cmp_eq_u32 vcc, v4, v6\nv_mad_u32_u24 v5, v5, 19, v3\nv_lshlrev_b32 v5, 2, v5")
        if VS:
            a(f"v_add_u32 v6, {B_STG}, v5\nv_cndmask_b32 v{VS+q}, v8, v6, vcc")
        if VG:
            a(f"v_add_u32 v6, s{sM}, v5\nv_cndmask_b32 v{VG+q}, v9, v6, vcc")

def kv_z(VZ):
    a("v_and_b32 v3, 3, v0")
    for q in range(2):
        a(f"v_add3_u32 v5, v2, s{sT}, {2*q}")
        head_of(6, 5)
        a(f"v_cmp_eq_u32 vcc, v3, v6\nv_mul_u32_u24 v5, 76, v5\nv_add3_u32 v5, v5, s{sM}, 64\nv_add_u32 v5, 8, v5\nv_cndmask_b32 v{VZ+q}, v9, v5, vcc")

def b_loader(kind):
    a(f"L_B{kind}1:")
    m = M0(42)
    issue = (lambda c: w_issue("B", c, m)) if kind == "W" else (lambda c: x_issue("B", c, m))
    pre = 1 if OPT.get("early") and kind == "W" else 2
    cnt = {c: issue(c) for c in range(1, pre + 1)}
    stamp()
    mark = len(a.lines)
    VS, VG, vZS, vEA, vE0, vEL, vLA, vGA, vLW = 72, 80, 98, 99, 100, 101, 102, 103, 105
    if kind == "W":
        a(f"v_subrev_u32 v{VD+5}, 1152, v{VD}\nv_subrev_u32 v{VD+6}, 1152, v{VD+1}")
    srds_rest()
    if kind == "W":
        wo_setup(False)
    else:
        sync_setup()
    a(f"""
s_add_u32 s55, s{sV}, 2
s_mul_i32 s{sM}, s{sHG}, {KV_ST}
s_add_u32 s{sM}, s{sM}, {WS_KV}
v_and_b32 v1, 15, v0
v_lshrrev_b32 v2, 4, v0
v_lshlrev_b32 v2, 2, v2
v_cmp_gt_u32 s[44:45], 8, v1
v_lshlrev_b32 v8, 2, v0
v_add_u32 v8, {B_DUMP}, v8
v_mov_b32 v9, {OOB}
""")
    own = sV if kind == "X" else 55
    if kind == "X":
        kv_index(55, None, VG, VG + 6)
        a(f"s_movk_i32 s{sT}, 64")
        kv_z(10)
    kv_index(own, VS, VG + 8 if kind == "X" else None, VG + 14 if kind == "X" else None)
    a(f"""
v_add_u32 v5, s{sT}, v0
v_mul_u32_u24 v5, 76, v5
v_add_u32 v5, {B_STG + 72}, v5
v_cndmask_b32 v{vZS}, v8, v5, s[{sG0}:{sG0+1}]
v_lshlrev_b32 v{vEL}, 4, v0
v_add_u32 v{vEL}, {B_EX}, v{vEL}
s_lshl_b32 s{sT}, s{own}, 10
v_add_u32 v{vEA}, s{sT}, v{vEL}
s_lshl_b32 s{sT}, s58, 10
v_add_u32 v{vE0}, s{sT}, v{vEL}
""")
    if kind == "X":
        a(f"s_movk_i32 s{sT}, 64\ns_movk_i32 s{sT2}, 56\ns_mov_b64 s[46:47], s[44:45]")
        kv_tile(VS + 6, VG + 16, True)
        a(f"s_cmp_eq_u32 s{sV}, 0\ns_cselect_b64 s[46:47], -1, 0")
        for q in range(2):
            a(f"v_cndmask_b32 v{VS+6+q}, v8, v{VS+6+q}, s[46:47]\nv_cndmask_b32 v{VG+16+q}, v{10+q}, v{VG+16+q}, s[46:47]")
        a(f"""
v_lshlrev_b32 v5, 3, v0
v_add_u32 v5, {B_KVOP}, v5
s_lshl_b32 s{sT2}, s58, 9
s_sub_u32 s{sT2}, s{sT2}, 512
v_add_u32 v{vLW+2}, s{sT2}, v5
s_lshl_b32 s{sT2}, s{sV}, 9
v_add_u32 v{vLW+1}, s{sT2}, v5
v_add_u32 v{vLW}, 1024, v{vLW+1}
s_mul_i32 s{sT2}, s{sV}, {9*512}
v_add_u32 v{vLW+3}, s{sT2}, v5
s_mul_i32 s{sT}, s{sV}, 2816
v_lshl_add_u32 v{vLA}, v0, 2, s{sT}
v_add_u32 v{vGA}, s{sM}, v{vLA}
v_cmp_gt_u32 vcc, {5472 - 2560}, v{vLA}
v_cndmask_b32 v{vGA+1}, v9, v{vGA}, vcc
v_add_u32 v{vLA}, {B_STG}, v{vLA}
v_mov_b32 v4, 0
""")
    a(f"v_mov_b32 v10, {B_LCNT}\nv_mov_b32 v11, 1")
    if kind == "X":
        a("ds_write_b32 v10, v4\ns_waitcnt lgkmcnt(0)")
    setup = a.lines[mark:]
    del a.lines[mark:]
    per = -(-len(setup) // 9)
    a(f"s_waitcnt vmcnt({sum(cnt.values())})\ns_barrier")
    stamp()
    extra = 0
    for i in range(-1, 16):
        if i == -1 and pre == 1:
            cnt[2] = issue(2)
        if i + 4 <= 17:
            cnt[i+4] = issue(i + 4)
        if 0 <= i < 9:
            a("s_cmp_eq_u32 s59, 1")
            a.lines += setup[per*i:per*(i+1)]
            a("s_cselect_b32 s59, 1, 0")
        if i == 10 and kind == "X":
            flag_load(sFO, 98); flag_load(sFK, 99)
        if kind == "W" and i >= 14:
            extra += wq_issue(2*(i-14), m) + wq_issue(2*(i-14) + 1, m)
        left = sum(cnt.get(c, 0) for c in range(i + 3, min(i + 4, 17) + 1)) + extra
        a(f"s_waitcnt vmcnt({left})\ns_barrier")
    a("s_barrier")
    if kind == "W":
        for p in (4, 5, 6, 7, 13, 14, 15, 16, 17):
            wq_issue(p, m)
        a("s_waitcnt vmcnt(15)")
    else:
        flag_check(sFK, 99, "L_BX_fk")
    stamp()
    a("s_barrier")
    stamp()
    if kind == "W":
        for p in range(8, 13):
            wq_issue(p, m)
    KT = lambda s: 40 + 4 * s
    RD = lambda src, j: 112 + 28 * src + 4 * j
    srcs = ((vEA, 0), (vE0, 0), (vE0, 4096), (vEA, 5120), (vEA, 6144), (vEL, 9216), (vEL, 4096))
    prods = ((1, 2), (0, 3), (0, 4), (6, 5), (5, 0))
    if kind == "W":
        srcs = ((vEA, 0), None, (vE0, 4096), (vEA, 5120), (vEA, 6144), (vEL, 9216))
        prods = ((0, 2), (0, 3), (0, 4), None, (5, 0))
    nr = sum(x is not None for x in srcs)
    for src in range(4):
        for j, x in enumerate(srcs):
            if x: a(f"ds_read_b128 {vr(RD(src, j),4)}, v{x[0]} offset:{src*10240 + x[1]}")
    for src in range(4):
        a(f"s_waitcnt lgkmcnt({min(15, nr*(3-src))})")
        for s_, x in enumerate(prods):
            if x: a(mf(KT(s_), RD(src, x[0]), RD(src, x[1]), KT(s_) if src else "0"))
    for s_ in range(4 if kind == "X" else 3):
        for r in range(4):
            a(f"ds_write_b32 v{VS + 2*s_ + r//2}, v{KT(s_)+r} offset:{76*(r%2)}")
    a(f"ds_write_b32 v{vZS}, v{KT(4)}")
    a("s_waitcnt lgkmcnt(0)\ns_mov_b64 exec, 1\nds_add_u32 v10, v11\ns_mov_b64 exec, -1")
    stamp()
    b1, b2, b3 = {0: ((0, 1, 2, 3, 4, 5), (), (6, 7, 8)), 1: ((0, 1, 2), (3, 4, 5, 6, 7, 8), ()), 2: ((0, 1, 2), (3, 4, 5), (6, 7, 8))}[OPT.get("wob", 0)]
    if kind == "W":
        a("s_waitcnt vmcnt(0)\ns_barrier")
        for g in b1: wo_pair(g)
        if b2:
            a("s_barrier")
            for g in b2: wo_pair(g)
        stamp()
        a("s_barrier")
        loader_tail("BW", b3)
        return
    a(f"""
s_mov_b32 s{sT3}, 0x400000
L_BX_st:
ds_read_b32 v2, v10
s_waitcnt lgkmcnt(0)
v_readfirstlane_b32 s{sT}, v2
s_sub_u32 s{sT3}, s{sT3}, 1
s_cbranch_scc1 L_BX_st_x
s_cmp_ge_u32 s{sT}, 4
s_cbranch_scc0 L_BX_st
L_BX_st_x:
""")
    for n in range(11):
        a(f"ds_read_b32 v{40+n}, v{vLA} offset:{256*n}")
    for n in range(11):
        a(f"s_waitcnt lgkmcnt({10-n})")
        a(f"buffer_atomic_add_f32 v{40+n}, v{vGA + (n == 10)}, s[{SWS}:{SWS+3}], 0 offen offset:{256*n}")
    stamp()
    a("s_barrier")
    if b2:
        a("s_barrier")
    a("s_waitcnt vmcnt(0)")
    stamp()
    arrive_wait(sKC, 32, "L_BX_kc")
    stamp()
    for s_ in range(9):
        for r in range(4):
            a(f"buffer_load_dword v{112+4*s_+r}, v{VG + 2*s_ + r//2}, s[{SWS}:{SWS+3}], 0 offen offset:{76*(r%2)} sc1")
    dst = ((vLW, -1), (vLW, 4), (vLW, 9), (vLW, 13), (vLW + 2, 0), (vLW + 1, 4), (vLW + 1, 9), (vLW + 1, 13), (vLW + 3, 8))
    a(f"v_subrev_u32 v11, 512, v{vLW}")
    for s_, (ad, off) in enumerate(dst):
        a(f"s_waitcnt vmcnt({4*(8-s_)})")
        a(cv(40 + 2*s_, 112 + 4*s_)); a(cv(41 + 2*s_, 114 + 4*s_))
        a(f"ds_write_b64 v{11 if off < 0 else ad}, {vr(40+2*s_,2)} offset:{512*max(off, 0)}")
    a("s_waitcnt lgkmcnt(0)")
    stamp()
    a("s_barrier")
    loader_tail("BX")

def p2_consumer():
    OFR = lambda ks, rt: 112 + ks * 8 + rt * 4
    ACC = lambda t, rt: 72 + (t * 2 + rt) * 4
    wf = lambda t: 52 + 4 * t
    R8, R2, vO, vTW, vTR, VS = 1, 5, 6, 7, 8, 9
    AH = OPT["ahead"]
    a("L_P2:")
    nstamp[0] = 10
    rd_lanes(R8, R2, 17, 18)
    for j in range(5):
        a(f"v_add_u32 v{R8+j}, {R1}, v{R8+j}")
    a(f"""
v_lshl_add_u32 v{vO}, v0, 4, s58
s_mul_i32 s{sT}, s{sWAVE}, 4608
s_add_u32 s{sT}, s{sT}, {P_TR}
v_and_b32 v17, 15, v0
v_mul_u32_u24 v17, 144, v17
v_lshrrev_b32 v18, 4, v0
v_lshl_add_u32 v17, v18, 3, v17
v_add_u32 v{vTW}, s{sT}, v17
v_lshl_add_u32 v{vTR}, v0, 4, s{sT}
s_lshr_b32 s{sT}, s{sWAVE}, 1
s_and_b32 s{sT2}, s{sWAVE}, 1
s_lshl_b32 s{sT2}, s{sT2}, 5
s_lshl_b32 s{sT3}, s{sWAVE}, 5
s_cmp_eq_u32 s{sBR}, 0
s_cselect_b32 s42, s{sT}, 0
s_cselect_b32 s43, s{sT2}, s{sT3}
s_cselect_b32 s55, 1, 0
s_lshl_b32 s56, s42, 3
s_lshl_b32 s{sT}, s{sRB}, 7
s_add_u32 s42, s42, s{sT}
s_mul_i32 s{sT}, s{sBR}, 1152
s_mul_i32 s{sT2}, s{sHG}, 144
s_add_u32 s57, s{sT}, s{sT2}
""")
    for n in range(5):
        a(f"""
v_add_u32 v17, {64*n}, v0
v_mul_u32_u24 v18, 7282, v17
v_lshrrev_b32 v18, 16, v18
v_mul_u32_u24 v19, 9, v18
v_sub_u32 v19, v17, v19
v_add_u32 v18, s43, v18
v_xor_b32 v18, s56, v18
v_lshlrev_b32 v18, s55, v18
v_add_u32 v18, s42, v18
v_mul_u32_u24 v18, 2304, v18
v_lshl_add_u32 v18, v19, 4, v18
v_add_u32 v{VS+n}, s57, v18
""")
    a(f"v_mov_b32 v17, {OOB}\nv_cndmask_b32 v{VS+4}, v17, v{VS+4}, s[{sG01}:{sG01+1}]")
    a(f"v_add_u32 v14, 18432, v{vO}")
    SO = [8, 9, 10, 11, 12, 13, 14, 15, 36]
    rho(37)
    a(f"s_movk_i32 s{SO[0]}, 16384")
    for j in range(1, 9):
        a(f"s_add_u32 s{sT}, s37, {2*j-2}\ns_and_b32 s{sT}, s{sT}, 15\ns_lshl_b32 s{SO[j]}, s{sT}, 10")
    a("s_waitcnt vmcnt(0)")
    stamp()
    a("s_barrier\ns_barrier")
    stamp()
    def oload(ks, rt):
        return f"buffer_load_dwordx4 {vr(OFR(ks, rt),4)}, v{14 if rt else vO}, s[{SWS}:{SWS+3}], s{SO[ks//2]} offen offset:{1024*(ks%2)} sc1"
    base = lambda ks: R1 if ks < 3 else 0 if 9 <= ks < 12 else R2_
    R2_ = 43008
    def wreads(ks, t):
        o = WO[ks] - base(ks)
        if t == 4:
            return [tr(wf(t), R2, o + 4096), tr(wf(t) + 2, R2, o + 4096 + 256)]
        return [tr(wf(t), R8 + t, o), tr(wf(t) + 2, R8 + t, o + 1024)]
    for ks in range(AH):
        a(oload(ks, 0)); a(oload(ks, 1))
    for t in range(5):
        for x in wreads(0, t): a(x)
    for ks in range(18):
        tiles = [[mf(ACC(t, rt), wf(t), OFR(ks, rt), ACC(t, rt) if ks else "0") for rt in range(2)] for t in range(5)]
        w0 = f"s_waitcnt vmcnt({2*min(AH - 1, 17 - ks)}) lgkmcnt(8)"
        if ks < 17:
            nxt = [wreads(ks + 1, t) for t in range(5)]
            if base(ks + 1) != base(ks):
                d = (base(ks + 1) - base(ks)) & 0xffffffff
                for t in range(5):
                    nxt[t][0] = f"v_add_u32 v{R8+t}, {d}, v{R8+t}\n" + nxt[t][0]
            first = []
            if ks + AH < 18:
                first = [oload(ks + AH, 0)]
                nxt[1][1] += "\n" + oload(ks + AH, 1)
            kstep(tiles, nxt, first, {t: "s_waitcnt lgkmcnt(7)" if t else w0 for t in range(5)})
        else:
            kstep(tiles, None, [], {t: f"s_waitcnt lgkmcnt({8 - 2*t})" if t else w0 for t in range(5)})
        if ks == 0:
            stamp()
    stamp()
    for rt in range(2):
        for t in range(5):
            d = 20 + 2*(rt*5 + t)
            a(cv(d, ACC(t, rt))); a(cv(d + 1, ACC(t, rt) + 2))
            if t == 4:
                a(f"s_mov_b64 exec, s[{sG01}:{sG01+1}]")
            a(f"ds_write_b64 v{vTW}, {vr(d,2)} offset:{rt*2304 + 32*t}")
            if t == 4:
                a("s_mov_b64 exec, -1")
    a("s_waitcnt lgkmcnt(0)")
    for n in range(5):
        a(f"ds_read_b128 {vr(112+4*n,4)}, v{vTR} offset:{1024*n}")
    for n in range(5):
        a(f"s_waitcnt lgkmcnt({4-n})")
        a(f"buffer_store_dwordx4 {vr(112+4*n,4)}, v{VS+n}, s[{SOUT}:{SOUT+3}], 0 offen")
    stamp()
    stamps_out(0)
    a("s_endpgm")

HEADER = open("concat_heads__sliding_local_dilated__linear_attn_block__prompt.s.ref").read().split("; Override")[0]
out = HEADER + "; @launch grid=(256,1,1) block=(512,1,1) lds=163840\n"
a('.amdgcn_target "amdgcn-amd-amdhsa--gfx950"\n.text')
a(kernel_head(KN))
if OPT["stamps"]:
    for i in range(16):
        a(f"s_mov_b32 s{sST+2*i}, 0")
stamp()
a(f"""
s_cmp_ge_u32 s2, 256
s_cbranch_scc1 L_end
s_and_b32 s{sT}, s2, 7
s_lshr_b32 s{sBR}, s{sT}, 2
{'s_xor_b32 s6, s6, 1' if OPT.get('swap') else ''}
s_mul_i32 s{sT2}, s{sBR}, 24
s_add_u32 s0, s0, s{sT2}
s_addc_u32 s1, s1, 0
s_load_dwordx4 s[36:39], s[0:1], 0
s_load_dwordx2 s[40:41], s[0:1], 16
s_sub_u32 s0, s0, s{sT2}
s_subb_u32 s1, s1, 0
s_load_dwordx4 s[44:47], s[0:1], 48
s_load_dwordx2 s[48:49], s[0:1], 64
v_lshrrev_b32 v1, 6, v0
v_and_b32 v0, 63, v0
v_readfirstlane_b32 s{sWAVE}, v1
s_lshr_b32 s{sT2}, s2, 3
""")
m84 = f"""
s_and_b32 s{sHG}, s{sT2}, 3
s_and_b32 s{sT3}, s{sT}, 1
s_lshl_b32 s{sT3}, s{sT3}, 2
s_add_u32 s{sHG}, s{sHG}, s{sT3}
s_lshr_b32 s{sRB}, s{sT2}, 2
s_and_b32 s{sT3}, s{sT}, 2
s_lshl_b32 s{sT3}, s{sT3}, 2
s_add_u32 s{sRB}, s{sRB}, s{sT3}
"""
m48 = f"""
s_and_b32 s{sHG}, s{sT2}, 7
s_lshr_b32 s{sRB}, s{sT2}, 3
s_and_b32 s{sT3}, s{sT}, 3
s_lshl_b32 s{sT3}, s{sT3}, 2
s_add_u32 s{sRB}, s{sRB}, s{sT3}
"""
if OPT["mapping"] == 84:
    a(m84)
elif OPT["mapping"] == 48:
    a(m48)
else:
    a(m48 + f"s_cmp_eq_u32 s{sBR}, {0 if OPT['mapping'] == 8448 else 1}\ns_cbranch_scc0 L_map" + m84 + "L_map:")
rot = ""
if OPT.get("rot") == 2:
    rot = f"""s_lshr_b32 s90, s2, 1
s_xor_b32 s90, s90, s2
s_and_b32 s90, s90, 1
s_mul_i32 s91, s90, {OPT.get("rotby", 5)*128}
s_mul_i32 s90, s90, {OPT.get("rotby", 5)*64*3456}"""
elif OPT.get("rot") == 3:
    rot = f"""s_lshr_b32 s90, s2, 1
s_xor_b32 s90, s90, s2
s_and_b32 s90, s90, 1
s_mul_i32 s90, s90, 5
s_add_u32 s91, s{sRB}, s{sHG}
s_and_b32 s91, s91, 3
s_add_u32 s90, s90, s91
s_lshl_b32 s91, s90, 7
s_mul_i32 s90, s90, {64*3456}"""
elif OPT.get("rot") == 7:
    rot = f"""s_and_b32 s90, s{sHG}, 3
s_and_b32 s91, s{sRB}, 7
s_lshl1_add_u32 s90, s90, s91
s_cmp_ge_u32 s90, 9
s_cselect_b32 s91, 9, 0
s_sub_u32 s90, s90, s91
s_lshl_b32 s91, s90, 7
s_mul_i32 s90, s90, {64*3456}"""
elif OPT.get("rot") in (4, 5, 6):
    tab = {4: 0x75207520, 5: 0x63006300, 6: 0x86427531}[OPT["rot"]]
    rot = f"""s_add_u32 s90, s{sRB}, s{sHG}
s_and_b32 s90, s90, 7
s_lshl_b32 s90, s90, 2
s_lshr_b32 s90, {hex(OPT.get("tab", tab))}, s90
s_and_b32 s90, s90, 15
s_lshl_b32 s91, s90, 7
s_mul_i32 s90, s90, {64*3456}"""
elif OPT.get("rot"):
    few, many = (sRB, sHG) if OPT["mapping"] == 48 else (sHG, sRB)
    rot = f"""s_and_b32 s90, s{few}, 3
s_lshl_b32 s90, s90, 2
s_lshr_b32 s90, 0x7520, s90
s_and_b32 s90, s90, 15
s_and_b32 s91, s{many}, 7
s_add_u32 s90, s90, s91
s_cmp_ge_u32 s90, 9
s_cselect_b32 s91, 9, 0
s_sub_u32 s90, s90, s91
s_lshl_b32 s91, s90, 7
s_mul_i32 s90, s90, {64*3456}"""
a(f"""
s_mov_b32 s{sG0}, 0xffff
s_mov_b32 s{sG0+1}, 0
s_mov_b32 s{sG01}, -1
s_mov_b32 s{sG01+1}, 0
s_and_b32 s{sV}, s{sWAVE}, 1
s_mul_i32 s{sM}, s{sHG}, 144
s_cmp_lt_u32 s{sWAVE}, 4
s_cbranch_scc1 L_cons
s_setprio {OPT.get("prio", 2)}
s_mov_b32 s59, 0
{rot}
s_cmp_lt_u32 s{sWAVE}, 6
s_cbranch_scc1 L_wld
s_cmp_eq_u32 s{sBR}, 0
s_cbranch_scc1 L_AX0
s_branch L_BX0
L_wld:
s_cmp_eq_u32 s{sBR}, 0
s_cbranch_scc1 L_AW0
s_branch L_BW0
L_cons:
s_getpc_b64 s[42:43]
L_pc:
s_lshl_b32 s{sT}, s{sT2}, 2
s_add_u32 s{sT}, s{sT}, s{sWAVE}
s_lshl_b32 s{sT}, s{sT}, 9
v_and_b32 v1, 3, v0
v_lshlrev_b32 v1, 7, v1
v_add_u32 v1, s{sT}, v1
v_min_u32 v1, {'L_last2' if OPT.get('ifetch') == 1 else 'L_last'}-L_pc, v1
{'global_load_dword v27, v1, s[42:43]' if not OPT.get('nopf') else ''}
s_cmp_eq_u32 s{sBR}, 0
s_cbranch_scc1 L_AC
s_branch L_BC
L_end:
s_endpgm
""")
w_head("A"); w_head("B"); x_head("A"); x_head("B")
n0 = nstamp[0]
for fn in (lambda: a_loader("W"), lambda: a_loader("X"), a_consumer, lambda: b_loader("W"), lambda: b_loader("X"), b_consumer, p2_consumer):
    nstamp[0] = n0
    fn()
a("s_endpgm" if OPT.get("ifetch", 0) > 1 else "L_last2:\ns_endpgm" if OPT.get("ifetch") else "L_last:\ns_endpgm")
lines = []
for l in a.lines: lines += l.split("\n")
if OPT.get("noread"):
    lines = [l for l in lines if not l.startswith("ds_read_b64_tr")]
if OPT.get("nomfma"):
    lines = [l for l in lines if not l.startswith("v_mfma")]
lines, added = hz.fix(lines)
out += "\n".join(lines) + "\n"
out += '.section .rodata,"a"\n.p2align 6\n' + kernel_desc(KN, 256, 102 if OPT.get('cyc') else 100, 256)
sys.stdout.write(out)
sys.stderr.write(f"nop states added: {added}\n")
```

```python
import sys, struct
from asmlib import *
import hz

OPT = dict(stamps=0, mapping=48, ahead=6, rot=4, nt=1)
for arg in sys.argv[1:]:
    k, v = arg.split("=")
    OPT[k] = int(v)
KN = "concat_heads__sliding_local_dilated__linear_attn_block__prompt_kernel"

def f32(x):
    return "0x%08x" % struct.unpack("<I", struct.pack("<f", x))[0]

LOG2E = 1.4426950408889634
CSC = 18 ** -0.5 * LOG2E
NEG = "0xf149f2ca"
EPS = f32(1e-6)
OOB = "0x80000000"

O_BR = 0x240000
WS_KV = 0x500000
KV_ST = 0x2000
WS_CNT = 0x540000
WS_STAMP = 0x600000
WS_SIZE = 0x700000

sWAVE, sHG, sRB, sBR, sT = 3, 4, 5, 6, 7
SX, SW, SWS, SDBG, SWO, SOUT = 8, 12, 16, 20, 24, 28
sG0, sG01 = 32, 34
sK, sV, sM, sT2, sT3 = 50, 51, 52, 53, 54
sST = 60

a = Asm()
nstamp = [0]

def stamp():
    if OPT["stamps"]:
        i = nstamp[0]; nstamp[0] += 1
        assert i < 15
        a(f"{'s_memrealtime' if OPT.get('rt') or OPT.get('probe') and not (OPT.get('cyc') and i) else 's_memtime'} s[{sST+2*i}:{sST+2*i+1}]")
        if OPT.get("cyc") and i == 0:
            a("s_memtime s[100:101]")

def stamps_out(last=-1):
    if not OPT["stamps"]:
        return
    if OPT.get("probe"):
        if last == OPT.get("pwave", 0):
            j = sST + 2 * OPT["probe"]
            if OPT.get("ifetch"):
                mode = OPT["ifetch"]
                a(f"""
s_waitcnt vmcnt(0) lgkmcnt(0)
s_cmp_eq_u32 s2, {OPT.get('wg', 0)}
s_cbranch_scc0 L_probe_x
s_cmp_eq_u32 s{sWAVE}, 0
s_cbranch_scc0 L_probe_x
s_sleep 127
s_sleep 127
s_getpc_b64 s[44:45]
L_if_pc:
s_add_u32 s44, s44, L_if_blk-L_if_pc
s_addc_u32 s45, s45, 0
v_lshlrev_b32 v1, 7, v0
v_min_u32 v1, 4096, v1
""")
                if mode == 2:
                    a("global_load_dword v2, v1, s[44:45]\ns_waitcnt vmcnt(0)")
                a(f"""
s_memtime s[100:101]
s_waitcnt lgkmcnt(0)
s_branch L_if_blk
L_last:
.fill {(0 if mode == 1 else 8192)}, 4, 0xbf800000
L_if_blk:
.rept 512
v_add3_u32 v5, v0, v0, v0
.endr
s_memtime s[{j}:{j+1}]
s_waitcnt lgkmcnt(0)
s_sub_u32 s{j}, s{j}, s100
s_lshl_b32 s{j}, s{j}, 3
s_add_u32 s{j}, s{j}, s100
""")
            if OPT.get("vrate"):
                isw = OPT["vrate"] == 1
                a(f"""
s_waitcnt vmcnt(0) lgkmcnt(0)
s_load_dwordx2 s[44:45], s[0:1], {8 if isw else 0}
s_sleep 127
s_sleep 127
s_waitcnt lgkmcnt(0)
s_mov_b32 s46, {1990656 if isw else 2359296}
s_mov_b32 s47, 0x20000
v_lshrrev_b32 v1, 3, v0
v_mul_u32_u24 v1, {3456 if isw else 2304}, v1
v_and_b32 v2, 7, v0
v_lshl_add_u32 v1, v2, 4, v1
s_mov_b32 m0, 0
""")
                for rep in range(2):
                    if rep:
                        a("s_memtime s[100:101]\ns_waitcnt lgkmcnt(0)")
                    a(f"s_mov_b32 s40, 0\nL_vr{rep}:")
                    for n in range(3):
                        a(f"buffer_load_dwordx4 v1, s[44:47], s40 offen offset:{n*1152 if isw else n*128} lds")
                    a(f"s_waitcnt vmcnt(24)\ns_add_u32 s40, s40, {8*3456 if isw else 8*2304}\ns_cmp_lt_u32 s40, {72*8*3456 if isw else 72*8*2304}\ns_cbranch_scc1 L_vr{rep}\ns_waitcnt vmcnt(0)")
                a(f"s_memtime s[{j}:{j+1}]\ns_waitcnt lgkmcnt(0)\ns_sub_u32 s{j}, s{j}, s100\ns_lshl_b32 s{j}, s{j}, 3\ns_add_u32 s{j}, s{j}, s100")
            if OPT.get("skew"):
                op = "max" if OPT["skew"] in (1, 3) else "min"
                a(f"""
s_waitcnt vmcnt(0) lgkmcnt(0)
v_lshlrev_b32 v1, {4 if OPT['skew'] < 3 else 5}, v0
{'v_and_b32 v1, 0x3e0, v1' if OPT['skew'] >= 3 else ''}
v_add_u32 v1, 0x6f0000, v1
buffer_load_dwordx4 v[4:7], v1, s[{SWS}:{SWS+3}], 0 offen sc1
s_waitcnt vmcnt(0)
v_subrev_u32 v4, s{sST}, v4
v_subrev_u32 v5, s{sST}, v5
v_subrev_u32 v6, s{sST}, v6
v_subrev_u32 v7, s{sST}, v7
""")
                if OPT["skew"] < 3:
                    a(f"v_{op}_i32 v4, v4, v5\nv_{op}_i32 v6, v6, v7\nv_{op}_i32 v4, v4, v6")
                a("s_mov_b32 s44, 0\ns_nop 4")
                for l in range(64):
                    a(f"v_readlane_b32 s45, v4, {l}\ns_nop 3\ns_{op}_i32 s44, s44, s45")
                a(f"s_abs_i32 s44, s44\ns_add_u32 s{j}, s{sST}, s44")
            if OPT.get("ptr"):
                a(f"s_waitcnt vmcnt(0) lgkmcnt(0)\ns_load_dword s44, s[0:1], {OPT['ptr'] - 8}\ns_waitcnt lgkmcnt(0)\ns_lshr_b32 s44, s44, {OPT.get('sh', 4)}\ns_and_b32 s44, s44, 0xff\ns_mul_i32 s44, s44, 10\ns_add_u32 s{j}, s{sST}, s44")
            if OPT.get("tlb"):
                a(f"""
s_waitcnt vmcnt(0) lgkmcnt(0)
s_cmp_eq_u32 s{sWAVE}, 0
s_cbranch_scc0 L_probe_x
s_load_dwordx2 s[44:45], s[0:1], {OPT['tlb'] - 8}
s_sleep 127
s_sleep 127
s_waitcnt lgkmcnt(0)
s_mov_b32 s46, 0x1e0000
s_mov_b32 s47, 0x20000
v_lshlrev_b32 v1, {OPT.get('sh', 12)}, v0
""")
                for rep in range(2):
                    if rep:
                        a("s_memtime s[100:101]\ns_waitcnt lgkmcnt(0)")
                    a(f"s_mov_b32 s40, 0\nL_vr{rep}:")
                    for n in range(4):
                        a(f"s_add_u32 s41, s40, {n << (OPT.get('sh', 12) + 6)}\nbuffer_load_dword v{4+n}, v1, s[44:47], s41 offen")
                    st = 128 if OPT.get('sh', 12) > 7 else 32768
                    a(f"s_waitcnt vmcnt(4)\ns_add_u32 s40, s40, {st}\ns_cmp_lt_u32 s40, {16*st}\ns_cbranch_scc1 L_vr{rep}\ns_waitcnt vmcnt(0)")
                a(f"s_memtime s[{j}:{j+1}]\ns_waitcnt lgkmcnt(0)\ns_sub_u32 s{j}, s{j}, s100\ns_lshl_b32 s{j}, s{j}, 2\ns_add_u32 s{j}, s{j}, s100")
            if OPT.get("lat"):
                a(f"""
s_waitcnt vmcnt(0) lgkmcnt(0)
s_load_dwordx2 s[44:45], s[0:1], {OPT['lat'] - 8}
s_sleep 127
s_sleep 127
s_sleep 127
s_waitcnt lgkmcnt(0)
s_mov_b32 s46, 0x100000
s_mov_b32 s47, 0x20000
v_mov_b32 v1, 0x20000
buffer_load_dword v2, v1, s[44:47], 0 offen {'sc1' if OPT.get('first') != 2 else ''}
s_waitcnt vmcnt(0)
v_mov_b32 v1, {'0x20000' if not OPT.get('first') else '0x20040'}
s_memtime s[100:101]
s_waitcnt lgkmcnt(0)
buffer_load_dword v2, v1, s[44:47], 0 offen sc1
s_waitcnt vmcnt(0)
s_memtime s[{j}:{j+1}]
s_waitcnt lgkmcnt(0)
s_sub_u32 s{j}, s{j}, s100
s_lshl_b32 s{j}, s{j}, 5
s_add_u32 s{j}, s{j}, s100
""")
            if OPT.get("xcc"):
                a(f"""
s_waitcnt vmcnt(0) lgkmcnt(0)
v_and_b32 v1, 31, v0
v_lshlrev_b32 v1, {5 if OPT['xcc'] == 1 else 2}, v1
v_add_u32 v1, 0x6f0000, v1
buffer_load_dword v2, v1, s[{SWS}:{SWS+3}], 0 offen sc1
s_getreg_b32 s44, hwreg(HW_REG_XCC_ID, 0, 4)
s_waitcnt vmcnt(0)
v_cmp_eq_u32 vcc, s44, v2
s_bcnt1_i32_b32 s44, vcc_lo
s_mul_i32 s44, s44, 10
s_add_u32 s{j}, s{sST}, s44
""")
            a(f"""
s_waitcnt vmcnt(0) lgkmcnt(0)
s_cmp_eq_u32 s2, {OPT.get('wg', 0)}
s_cbranch_scc0 L_probe_x
s_cmp_eq_u32 s{sWAVE}, {last}
s_cbranch_scc0 L_probe_x
s_sub_u32 s{sT}, s{j}, s{100 if OPT.get('cyc') else sST}
{'s_lshr_b32 s7, s7, 3' if OPT.get('cyc') else 's_mul_i32 s7, s7, 10'}
s_min_u32 s{sT}, s{sT}, 100000
s_add_u32 s{sT}, s{sT}, 6000
L_probe:
s_memrealtime s[44:45]
s_waitcnt lgkmcnt(0)
s_sub_u32 s44, s44, s{sST}
s_cmp_lt_u32 s44, s{sT}
s_cbranch_scc1 L_probe
L_probe_x:
""")
        return
    a("s_waitcnt vmcnt(0) lgkmcnt(0)")
    a(f"s_lshl_b32 s{sT}, s2, 3\ns_add_u32 s{sT}, s{sT}, s{sWAVE}\ns_lshl_b32 s{sT}, s{sT}, 6")
    a(f"s_add_u32 s{sT}, s{sT}, {WS_STAMP}\nv_mov_b32 v1, s{sT}")
    for i in range(16):
        a(f"v_mov_b32 v2, s{sST+2*i}")
        a(f"buffer_store_dword v2, v1, s[{SWS}:{SWS+3}], 0 offen offset:{4*i}")
    a("s_waitcnt vmcnt(0)")

def mf(d, s0, s1, c):
    cc = c if isinstance(c, str) else vr(c, 4)
    return f"v_mfma_f32_16x16x32_bf16 {vr(d,4)}, {vr(s0,4)}, {vr(s1,4)}, {cc}"
def cv(d, x):
    return f"v_cvt_pk_bf16_f32 v{d}, v{x}, v{x+1}"
def tr(d, addr, off):
    return f"ds_read_b64_tr_b16 {vr(d,2)}, v{addr} offset:{off}"
def weave(mfmas, others, per=2):
    o = list(others)
    for m in mfmas:
        a(m)
        for _ in range(per):
            if o: a(o.pop(0))
    for x in o: a(x)

def srd(dst, lo, nbytes):
    a(f"s_mov_b32 s{dst}, s{lo}\ns_mov_b32 s{dst+1}, s{lo+1}\ns_mov_b32 s{dst+2}, {nbytes}\ns_mov_b32 s{dst+3}, 0x20000")
def srds_rest():
    srd(SWO, 40, 663552); srd(SOUT, 44, 4718592); srd(SDBG, 46, 256); srd(SWS, 48, WS_SIZE)

class M0:
    def __init__(self, base): self.base = base; self.cur = None
    def set(self, imm):
        if self.cur is not None and -32768 <= imm - self.cur <= 32767:
            a(f"s_addk_i32 m0, {imm - self.cur}")
        else:
            a(f"s_add_u32 m0, s{self.base}, {imm}")
        self.cur = imm

CUR = [0]
def dma(voff, srd_, soff, half=False):
    if OPT.get("nodma") or (OPT.get("nos") and voff == VD + 6 and srd_ == SW and not half):
        return
    if half: a(f"s_mov_b64 exec, s[{sG01}:{sG01+1}]")
    nt = " nt" if OPT.get("nt", 0) >> {SX: 0, SW: 1, SWO: 2}[srd_] & 1 and CUR[0] < OPT.get("ntc", 99) else ""
    a(f"buffer_load_dwordx4 v{voff}, s[{srd_}:{srd_+3}], {soff} offen{nt} lds")
    if half: a("s_mov_b64 exec, -1")

def rd_lanes(r8, r2, t0, t1):
    a(f"""
v_lshrrev_b32 v{t0}, 5, v0
v_lshlrev_b32 v{t0}, 4, v{t0}
v_bfe_u32 v{t1}, v0, 4, 1
v_lshl_add_u32 v{t0}, v{t1}, 2, v{t0}
v_bfe_u32 v{t1}, v0, 2, 2
v_add_u32 v{t0}, v{t0}, v{t1}
v_and_b32 v{t1}, 3, v0
v_lshlrev_b32 v{t1}, 3, v{t1}
v_lshl_add_u32 v{r2}, v{t0}, 5, v{t1}
v_lshl_add_u32 v{r8}, v{t0}, 7, v{t1}
v_bfe_u32 v{t0}, v{t0}, 1, 2
v_lshl_add_u32 v{r8}, v{t0}, 5, v{r8}
""")
    for t in (1, 2, 3):
        a(f"v_xor_b32 v{r8+t}, {32*t}, v{r8}")

def x_lane(d0, d1, tmp):
    a(f"""
v_lshrrev_b32 v{d0}, 4, v0
v_bfe_u32 v{tmp}, v0, 1, 3
v_xor_b32 v{d0}, v{d0}, v{tmp}
v_and_b32 v{tmp}, 15, v0
v_lshlrev_b32 v{tmp}, 7, v{tmp}
v_lshl_add_u32 v{d0}, v{d0}, 4, v{tmp}
v_xor_b32 v{d1}, 64, v{d0}
""")

def col8(dst, tmp):
    a(f"v_bfe_u32 v{tmp}, v0, 4, 2\nv_lshlrev_b32 v{tmp}, 1, v{tmp}\nv_and_b32 v{dst}, 7, v0\nv_xor_b32 v{dst}, v{dst}, v{tmp}\nv_lshlrev_b32 v{dst}, 4, v{dst}")

def head_of(dst, src):
    a(f"v_mul_u32_u24 v{dst}, 57, v{src}\nv_lshrrev_b32 v{dst}, 10, v{dst}")

sOC, sKC, sFO, sFK = 92, 94, 96, 97

def arrive_wait(addr, target, label, arrive=True):
    if arrive:
        a(f"s_mov_b32 s{sT}, 1\ns_atomic_add s{sT}, s[{addr}:{addr+1}], 0 glc\ns_waitcnt lgkmcnt(0)\ns_cmp_ge_u32 s{sT}, {target-1}\ns_cbranch_scc1 {label}_x")
    a(f"""
s_mov_b32 s{sT3}, 0x20000
{label}:
s_mov_b32 s{sT}, 0
s_atomic_add s{sT}, s[{addr}:{addr+1}], 0 glc
s_waitcnt lgkmcnt(0)
s_sub_u32 s{sT3}, s{sT3}, 1
s_cbranch_scc1 {label}_x
s_cmp_ge_u32 s{sT}, {target}
s_cbranch_scc0 {label}
{label}_x:
""")

def flag_load(dst, offreg):
    a(f"s_load_dword s{dst}, s[{SDBG}:{SDBG+1}], s{offreg}")

def flag_check(val, offreg, label):
    a(f"""
s_mov_b32 s{sT3}, 0x20000
{label}:
s_waitcnt lgkmcnt(0)
s_cmp_lg_u32 s{val}, 0
s_cbranch_scc1 {label}_x
s_sub_u32 s{sT3}, s{sT3}, 1
s_cbranch_scc1 {label}_x
s_load_dword s{val}, s[{SDBG}:{SDBG+1}], s{offreg} glc
s_branch {label}
{label}_x:
""")

A_WSLOT, A_XSLOT = 14336, 18432
A_X0 = 5 * A_WSLOT
A_EX = A_X0 + 3 * A_XSLOT
B_KVSLOT, B_XSLOT = 9216, 16384
B_X0 = 5 * B_KVSLOT
B_EX = B_X0 + 3 * B_XSLOT
B_KVOP = 126976
B_STG = 136192
B_DUMP, B_LCNT = B_STG + 5632, B_STG + 6144
B_WQ0 = 143360
QORD = list(range(18))
def wq_slot(p):
    if p < 4: return B_WQ0 + 5120 * p
    if p < 7: return 5120 * (p - 4)
    if p < 13: return 40960 + 5120 * (p - 7)
    return 15360 + 5120 * (p - 13)
R1, R2 = 147456, 43008
WO = [R1, R1 + 5120, R1 + 10240] + [R2 + 5120 * n for n in range(6, 12)] + [0, 5120, 10240] + [R2 + 5120 * n for n in range(6)]
P_TR = 108544
SPLITS = {(1, 0): sG0, (2, 0): sG0, (2, 1): sG0, (3, 0): sG01, (3, 1): sG0}

VD = 16
VWO = 26
vCNT, vFLO, vFLK, vFO, vFK = 30, 31, 32, 33, 34

def w_head(kind):
    parts = (0, 1152, 2304) if kind == "A" else (1152, 2304)
    a(f"L_{kind}W0:")
    col8(VD, 1)
    a(f"""
v_bfe_u32 v1, v0, 5, 1
v_bfe_u32 v2, v0, 3, 2
v_lshl_add_u32 v1, v1, 3, v2
s_mul_i32 s{sT}, s{sV}, {16*3456}
s_add_u32 s{sT}, s{sT}, s{sM}
v_mul_u32_u24 v1, 3456, v1
v_add3_u32 v{VD}, v{VD}, v1, s{sT}
""")
    n = 2 * len(parts)
    for j in range(n - 1, -1, -1):
        off = parts[j // 2] + (j % 2) * 4 * 3456
        if off:
            a(f"v_add_u32 v{VD+j}, {off}, v{VD}")
    a(f"""
v_bfe_u32 v1, v0, 3, 1
v_bfe_u32 v2, v0, 4, 1
v_sub_u32 v1, v1, v2
v_lshrrev_b32 v2, 1, v0
v_lshl_add_u32 v1, v1, 2, v2
v_mul_u32_u24 v1, 3456, v1
v_and_b32 v2, 1, v0
""")
    if kind == "A":
        a(f"""
s_cmp_eq_u32 s{sV}, 0
s_cselect_b32 s{sT2}, 1152, 0
s_cselect_b32 s{sT}, 0, 2304
s_add_u32 s{sT}, s{sT}, s{sM}
s_addk_i32 s{sT}, 128
v_mad_u32_u24 v1, v2, s{sT2}, v1
v_add_u32 v{VD+6}, s{sT}, v1
""")
    else:
        a(f"""
s_add_u32 s{sT}, s{sT}, 128
v_add_u32 v{VD+7}, s{sT}, v1
v_mul_u32_u24 v2, 1152, v2
v_add_u32 v2, 1152, v2
v_add_u32 v{VD+4}, v2, v{VD+7}
""")
    a(f"s_lshl_b32 s42, s{sV}, 11\ns_lshl_b32 s43, s{sV}, {10 if kind == 'A' else 9}\ns_sub_u32 s43, s43, s42")
    a("s_waitcnt lgkmcnt(0)")
    srd(SW, 38, 1990656)
    m = M0(42)
    w_issue(kind, 0, m)
    a(f"s_branch L_{kind}W1")

def w_issue(kind, c, m):
    CUR[0] = c
    slot = (c % 5) * (A_WSLOT if kind == "A" else B_KVSLOT)
    n = 6 if kind == "A" else 4
    so = f"s{sK}" if c else "0"
    if OPT.get("rot"):
        so = "s90"
        if c:
            a(f"s_add_u32 s90, s90, {32*3456}\ns_cmp_eq_u32 s90, {18*32*3456}\ns_cselect_b32 s90, 0, s90")
    elif c:
        a(f"s_mov_b32 s{sK}, {c*32*3456}")
    for j in range(n):
        m.set(slot + 4096 * (j // 2) + 1024 * (j % 2))
        dma(VD + j, SW, so)
    m.set(slot + 4096 * (n // 2))
    a("s_add_u32 m0, m0, s43")
    m.cur = None
    dma(VD + n, SW, so, half=(kind == "B"))
    return n + 1

def wq_issue(p, m):
    if OPT.get("rot"):
        a(f"s_add_u32 s{sK}, s90, {(p+1)*32*3456}\ns_cmp_ge_u32 s{sK}, {18*32*3456}\ns_cselect_b32 s{sT}, {18*32*3456}, 0\ns_sub_u32 s{sK}, s{sK}, s{sT}")
    else:
        a(f"s_mov_b32 s{sK}, {QORD[p]*32*3456}")
    for j in range(2):
        m.set(wq_slot(p) + 1024 * j)
        dma(VD + 5 + j, SW, f"s{sK}")
    m.set(wq_slot(p) + 4096)
    a("s_add_u32 m0, m0, s43")
    m.cur = None
    dma(VD + 7, SW, f"s{sK}", half=True)
    return 3

def x_head(kind):
    nq = 9 if kind == "A" else 8
    a(f"L_{kind}X0:")
    a(f"""
v_lshrrev_b32 v1, 3, v0
v_mul_u32_u24 v1, {2304 if kind == 'A' else 1152}, v1
v_lshrrev_b32 v2, 4, v0
v_lshl_add_u32 v2, s{sV}, 2, v2
v_and_b32 v3, 7, v0
v_xor_b32 v2, v2, v3
v_lshl_add_u32 v1, v2, 4, v1
s_mul_i32 s{sT}, s{sRB}, {128*1152}
""")
    if kind == "A":
        a(f"""
s_mul_i32 s{sT2}, s{sV}, {16*1152}
s_add_u32 s{sT3}, s{sT}, s{sT2}
v_add_u32 v{VD}, s{sT3}, v1
s_sub_u32 s{sT3}, s{sT}, s{sT2}
s_add_u32 s{sT3}, s{sT3}, {17*1152}
v_add_u32 v{VD+4}, s{sT3}, v1
s_mul_i32 s{sT2}, s{sV}, 1152
s_sub_u32 s{sT3}, s{sT}, s{sT2}
s_sub_u32 s{sT3}, s{sT3}, {15*1152}
v_add_u32 v{VD+8}, s{sT3}, v1
""")
        for q in (1, 2, 3):
            a(f"v_add_u32 v{VD+q}, {32*1152*q}, v{VD}\nv_add_u32 v{VD+4+q}, {32*1152*q}, v{VD+4}")
    else:
        a(f"s_mul_i32 s{sT2}, s{sV}, {8*1152}\ns_add_u32 s{sT}, s{sT}, s{sT2}\nv_add_u32 v{VD}, s{sT}, v1")
        for q in range(1, 8):
            a(f"v_add_u32 v{VD+q}, {16*1152*q}, v{VD}")
    a(f"s_lshl_b32 s42, s{sV}, 10")
    a("s_waitcnt lgkmcnt(0)")
    srd(SX, 36, 2359296)
    x_issue(kind, 0, M0(42))
    a(f"s_branch L_{kind}X1")

def x_issue(kind, c, m):
    CUR[0] = c + (c & 1)
    nq, h, x0, xs = (9, 5, A_X0, A_XSLOT) if kind == "A" else (8, 4, B_X0, B_XSLOT)
    st = (c + 1) // 2
    if st > 8:
        return 0
    qs = range(nq) if c == 0 else (range(h) if c % 2 else range(h, nq))
    so = f"s{sK}" if st else "0"
    if OPT.get("rot"):
        so = "s91"
        if c % 2:
            a("s_addk_i32 s91, 128\ns_cmpk_eq_u32 s91, 1152\ns_cselect_b32 s91, 0, s91")
    elif st:
        a(f"s_movk_i32 s{sK}, {st*128}")
    for q in qs:
        m.set(x0 + (st % 3) * xs + 2048 * q)
        a("s_nop 0")
        dma(VD + q, SX, so)
    return len(qs)

def wo_setup(quad):
    col8(VWO, 1)
    a(f"""
s_mul_i32 s{sM}, s{sHG}, 144
v_add_u32 v{VWO}, s{sM}, v{VWO}
v_bfe_u32 v1, v0, 5, 1
v_bfe_u32 v2, v0, 3, 2
v_mul_u32_u24 v1, 72, v1
v_add_u32 v1, v1, v2
v_mul_u32_u24 v1, 1152, v1
v_add_u32 v{VWO+1}, v1, v{VWO}
v_lshrrev_b32 v1, 3, v0
v_mul_u32_u24 v1, 1152, v1
v_add_u32 v{VWO}, v1, v{VWO}
v_bfe_u32 v1, v0, 1, 2
v_bfe_u32 v2, v0, 3, 1
v_bfe_u32 v3, v0, 4, 1
v_bfe_u32 v4, v0, 5, 1
v_lshl_add_u32 v5, v2, 2, v1
v_lshl_add_u32 v5, v3, 4, v5
v_lshl_add_u32 v5, v4, 3, v5
v_mul_u32_u24 v5, 1152, v5
s_add_u32 s{sM}, s{sM}, 128
v_add_u32 v{VWO+2}, s{sM}, v5
v_lshl_add_u32 v5, v3, 2, v1
v_lshl_add_u32 v2, v4, 1, v2
v_mul_u32_u24 v2, 72, v2
v_add_u32 v5, v5, v2
v_mul_u32_u24 v5, 1152, v5
v_add_u32 v{VWO+3}, s{sM}, v5
s_and_b32 s55, s{sWAVE}, 3
s_lshl_b32 s57, s55, 3
""")
    rho(56)
    a(f"s_add_u32 s56, s56, s{55 if quad else sV}")

def rho(dst):
    few, many = (sRB, sHG) if OPT["mapping"] == 48 else (sHG, sRB)
    if OPT["mapping"] > 99:
        a(f"s_cmp_eq_u32 s{sBR}, {0 if OPT['mapping'] == 8448 else 1}\ns_cselect_b32 s{sT}, s{sHG}, s{sRB}\ns_cselect_b32 s{sT2}, s{sRB}, s{sHG}")
        few, many = sT, sT2
    a(f"s_lshl_b32 s{dst}, s{few}, 1\ns_add_u32 s{dst}, s{dst}, s{many}\ns_lshl_b32 s{dst}, s{dst}, 1")
    if not OPT.get("worot", 1):
        a(f"s_mov_b32 s{dst}, 0")

def wo_chunk(left, fadd):
    if left:
        a(f"s_mul_i32 s{sK}, s{sV}, {288*1152}\ns_add_u32 s{sK}, s{sK}, {64*1152}")
        steps = (4, 140, 4); v8, v2 = VWO + 1, VWO + 3
    else:
        a(f"""
s_add_u32 s{sT}, s56, {fadd}
s_bfe_u32 s{sK}, s{sT}, 0x30001
s_mul_i32 s{sK}, s{sK}, {72*1152}
s_bitcmp1_b32 s{sT}, 0
s_cselect_b32 s{sT}, {32*1152}, 0
s_add_u32 s{sK}, s{sK}, s{sT}
""")
        steps = (16, -8, 16); v8, v2 = VWO, VWO + 2
    a(f"s_mov_b32 s{sT2}, s{sK}")
    for j in range(4):
        dma(v8, SWO, f"s{sK}")
        a("s_addk_i32 m0, 1024")
        a(f"s_add_u32 s{sK}, s{sK}, {steps[j]*1152 & 0xffffffff}" if j < 3 else "s_nop 0")
    dma(v2, SWO, f"s{sT2}")
    return 5

def wo_issue(q):
    packed = sum((WO[2 + 4*q + w] // 1024) << (8 * w) for w in range(4))
    a(f"s_lshr_b32 s{sT}, {packed}, s57\ns_and_b32 s{sT}, s{sT}, 0xff\ns_lshl_b32 m0, s{sT}, 10")
    return wo_chunk(False, 4*q)

def wo_pair(g):
    a(f"s_mul_i32 s{sT}, s{sV}, {WO[2*g+1] - WO[2*g] & 0xffffffff}\ns_add_u32 m0, s{sT}, {WO[2*g]}")
    return wo_chunk(g == 0, 2*g - 2)

def sync_setup():
    a(f"""
s_lshl_b32 s{sT}, s{sBR}, 4
s_add_u32 s{sT}, s{sT}, s{sRB}
s_lshl_b32 s{sT2}, s{sT}, 8
s_add_u32 s{sT2}, s{sT2}, {WS_CNT}
s_add_u32 s{sOC}, s{SWS}, s{sT2}
s_addc_u32 s{sOC+1}, s{SWS+1}, 0
s_lshl_b32 s{sT}, s{sT}, 2
s_add_u32 s98, s{sT}, 32
s_lshl_b32 s99, s{sHG}, 2
s_mul_i32 s{sT2}, s{sHG}, {KV_ST}
s_add_u32 s{sT2}, s{sT2}, {WS_KV + 6144}
s_add_u32 s{sKC}, s{SWS}, s{sT2}
s_addc_u32 s{sKC+1}, s{SWS+1}, 0
""")

def loader_tail(tag, late=()):
    if tag[1] == "X":
        flag_check(sFO, 98, f"L_{tag}_fo")
    a("s_barrier")
    stamp()
    for g in late:
        wo_pair(g)
    if tag[1] == "X":
        a(f"s_cmp_eq_u32 s{sWAVE}, 6\ns_cbranch_scc0 L_{tag}_oc_x")
        arrive_wait(sOC, 8, f"L_{tag}_oc")
    a("s_waitcnt vmcnt(0)")
    stamp()
    a("s_barrier")
    stamps_out({"AW": 4, "AX": 6}.get(tag, -1))
    a("s_endpgm")

def a_loader(kind):
    a(f"L_A{kind}1:")
    m = M0(42)
    issue = (lambda c: w_issue("A", c, m)) if kind == "W" else (lambda c: x_issue("A", c, m))
    if OPT.get("prepass"):
        a("s_mov_b32 s58, s90\ns_mov_b32 s59, s91")
        n_ = {}
        for c in range(1, 18):
            if OPT["prepass"] == 2:
                a("s_mov_b32 s90, s58\ns_mov_b32 s91, s59")
            n_[c] = issue(c)
            a(f"s_waitcnt vmcnt({n_[c] + n_.get(c-1, 0)})")
            if c in (4, 9):
                stamp()
        a("s_waitcnt vmcnt(0)")
        stamp()
        a("s_barrier\ns_mov_b32 s90, s58\ns_mov_b32 s91, s59")
        m.cur = None
        issue(0)
    pre = 1 if OPT.get("early") and kind == "W" else 2
    cnt = {c: issue(c) for c in range(1, pre + 1)}
    stamp()
    x_lane(8, 9, 1)
    rd_lanes(36, 12, 1, 2)
    a(f"""
v_add_u32 v8, {A_X0 + 8*2048}, v8
v_add_u32 v9, {A_X0 + 8*2048}, v9
s_lshl_b32 s{sT}, s{sV}, 6
v_xor_b32 v10, s{sT}, v36
v_add_u32 v10, {4096 if kind == 'W' else 8192}, v10
v_xor_b32 v11, 32, v10
v_add_u32 v12, {12288 if kind == 'W' else 13312}, v12
v_add_u32 v13, {4*A_WSLOT}, v10
v_add_u32 v14, {4*A_WSLOT}, v11
v_add_u32 v15, {4*A_WSLOT}, v12
s_lshl_b32 s{sT}, s{sV}, 10
s_add_u32 s{sT}, s{sT}, {A_EX + (0 if kind == 'W' else 2560)}
v_lshlrev_b32 v7, 3, v0
v_add_u32 v6, s{sT}, v7
v_add_u32 v7, {A_EX + (2048 if kind == 'W' else 4608)}, v7
""")
    stamp()
    a(f"s_waitcnt vmcnt({sum(cnt.values())})\ns_barrier")
    stamp()
    extra = 0
    for i in range(-1, 17):
        ks = i + 1
        slot = ks % 5
        off = 0 if slot == 4 else slot * A_WSLOT
        ad = (13, 14, 15) if slot == 4 else (10, 11, 12)
        def lp(n):
            if OPT.get("lp") == n and i == OPT.get("lpi", 6):
                stamp()
                j_ = sST + 2*(nstamp[0]-1)
                a(f"s_waitcnt lgkmcnt(0)\ns_sub_u32 s{j_}, s{j_}, s100\ns_lshl_b32 s{j_}, s{j_}, 4\ns_add_u32 s{j_}, s{j_}, s100")
        if OPT.get("lp") and i == OPT.get("lpi", 6):
            a("s_memtime s[100:101]")
        a(f"ds_read_b128 v[40:43], v{8 + ks % 2} offset:{(ks//2 % 3)*A_XSLOT}")
        for j in range(3 if OPT.get("nohalo", 0) < 2 else 0):
            a(tr(44 + 4*j, ad[j], off)); a(tr(46 + 4*j, ad[j], off + (1024 if j < 2 else 256)))
        if i == -1 and pre == 1:
            cnt[2] = issue(2)
        if i + 4 <= 17:
            cnt[i+4] = issue(i + 4)
        lp(1)
        a("s_waitcnt lgkmcnt(0)")
        for j in range(3 if not OPT.get("nohalo") else 0):
            c = 60 + 4*j if ks else "0"
            a(mf(60 + 4*j, 44 + 4*j, 40, c) if kind == "W" else mf(60 + 4*j, 40, 44 + 4*j, c))
        if i == 1:
            srds_rest(); sync_setup()
        if i == 2:
            wo_setup(True)
        if i == 14 and kind == "W":
            extra += wo_pair(0)
        if i == 15:
            extra += wo_issue(0)
        if i + 1 <= 16:
            left = sum(cnt.get(c, 0) for c in range(i + 3, min(i + 4, 17) + 1)) + extra
            lp(2)
            a(f"s_waitcnt vmcnt({left})")
            lp(3)
            a("s_barrier")
            lp(4)
            if OPT.get("fine") and kind == "W" and i % 2 == 1 and 0 < i < 14:
                stamp()
    for j in range(3):
        a(cv(44 + 2*j, 60 + 4*j)); a(cv(45 + 2*j, 62 + 4*j))
    if kind == "W":
        a("v_mov_b32 v50, 0\nv_mov_b32 v51, 0")
        a("v_permlane32_swap_b32 v48, v50\nv_permlane32_swap_b32 v49, v51")
    a("ds_write_b64 v6, v[44:45]\nds_write_b64 v6, v[46:47] offset:512")
    a(f"ds_write_b64 v7, {'v[50:51]' if kind == 'W' else 'v[48:49]'}")
    stamp()
    a("s_waitcnt lgkmcnt(0)\ns_barrier")
    if kind == "X":
        flag_load(sFO, 98)
    wo_issue(1); wo_issue(2); wo_issue(3)
    stamp()
    loader_tail("A" + kind)

def o_store_addr(vfull, vleft, tmp, left_lo):
    a(f"""
s_lshl_b32 s{sT}, s{sRB}, 3
s_lshl_b32 s{sT2}, s{sWAVE}, 1
s_add_u32 s{sT}, s{sT}, s{sT2}
s_mul_i32 s{sT}, s{sT}, 18432
s_mul_i32 s{sT2}, s{sBR}, {O_BR}
s_add_u32 s58, s{sT}, s{sT2}
s_lshl_b32 s{sT2}, s{sHG}, 11
s_add_u32 s{sT2}, s{sT2}, s58
v_lshl_add_u32 v{vfull}, v0, 4, s{sT2}
s_lshr_b32 s{sT2}, s{sHG}, 2
s_add_u32 s{sT2}, s{sT2}, 16
s_lshl_b32 s{sT2}, s{sT2}, 10
s_add_u32 s{sT}, s58, s{sT2}
s_and_b32 s{sT2}, s{sHG}, 3
s_lshl_b32 s{sT2}, s{sT2}, 8
s_add_u32 s{sT}, s{sT}, s{sT2}
v_and_b32 v{vleft}, 15, v0
v_lshlrev_b32 v{vleft}, 4, v{vleft}
v_bfe_u32 v{tmp}, v0, 4, 1
v_lshl_add_u32 v{vleft}, v{tmp}, 3, v{vleft}
v_add_u32 v{vleft}, s{sT}, v{vleft}
v_mov_b32 v{tmp}, {OOB}
""")
    x, y = (tmp, vleft) if left_lo else (vleft, tmp)
    a(f"v_cndmask_b32 v{vleft}, v{x}, v{y}, s[{sG01}:{sG01+1}]")

def o_store(of, vfull, vleft, rt):
    so = f"s{sK}" if rt else "0"
    if rt:
        a(f"s_movk_i32 s{sK}, 18432")
    a(f"buffer_store_dwordx4 {vr(of,4)}, v{vfull}, s[{SWS}:{SWS+3}], {so} offen sc1")
    a(f"buffer_store_dwordx4 {vr(of+4,4)}, v{vfull}, s[{SWS}:{SWS+3}], {so} offen offset:1024 sc1")
    a(f"buffer_store_dwordx2 {vr(of+8,2)}, v{vleft}, s[{SWS}:{SWS+3}], {so} offen sc1")

def gap_touch(tag, parts):
    if not OPT.get("touch"):
        return
    nt = " nt" if OPT.get("tnt") else ""
    a(f"""
s_cmp_eq_u32 s{sWAVE}, 1
s_cbranch_scc1 L_{tag}_tw
s_cmp_eq_u32 s{sWAVE}, 2
s_cbranch_scc0 L_{tag}_tx
s_and_b32 s{sT}, s{sRB}, 7
s_cmp_eq_u32 s{sT}, 0
s_cselect_b32 s{sT}, 9, s{sT}
s_sub_u32 s{sT}, s{sT}, 1
s_lshl_b32 s{sT}, s{sT}, 7
s_and_b32 s{sT2}, s{sHG}, 3
s_lshl_b32 s{sT2}, s{sT2}, 5
s_lshl_b32 s{sT3}, s{sRB}, 7
s_add_u32 s{sT2}, s{sT2}, s{sT3}
v_and_b32 v1, 31, v0
v_add_u32 v1, s{sT2}, v1
v_mul_u32_u24 v1, 1152, v1
""")
    srd(SX, 36, 2359296)
    a(f"""
buffer_load_dword v26, v1, s[{SX}:{SX+3}], s{sT} offen{nt}
s_branch L_{tag}_tx
L_{tag}_tw:
s_and_b32 s{sT}, s{sHG}, 3
s_lshl_b32 s{sT}, s{sT}, 1
s_cmp_eq_u32 s{sT}, 0
s_cselect_b32 s{sT}, 9, s{sT}
s_sub_u32 s{sT}, s{sT}, 1
s_lshl_b32 s{sT}, s{sT}, 3
s_and_b32 s{sT2}, s{sRB}, 7
s_add_u32 s{sT}, s{sT}, s{sT2}
s_mul_i32 s{sT}, s{sT}, {8*3456}
s_add_u32 s{sT}, s{sT}, s{sM}
v_lshrrev_b32 v1, 3, v0
v_mul_u32_u24 v1, 3456, v1
v_bfe_u32 v2, v0, 1, 2
v_min_u32 v2, {parts-1}, v2
v_mul_u32_u24 v2, 1152, v2
v_and_b32 v3, 1, v0
v_mul_u32_u24 v3, 140, v3
v_add3_u32 v1, v1, v2, v3
""")
    srd(SW, 38, 1990656)
    a(f"buffer_load_dword v26, v1, s[{SW}:{SW+3}], s{sT} offen offset:{1152*(3-parts)}{nt}\nL_{tag}_tx:")

def init_stores(tag, with_kv):
    if OPT.get("skew"):
        a(f"v_mov_b32 v2, s{sST}\ns_lshl_b32 s{sT}, s2, 2\ns_add_u32 s{sT}, s{sT}, 0x6f0000\nv_mov_b32 v1, s{sT}\nbuffer_store_dword v2, v1, s[{SWS}:{SWS+3}], 0 offen sc1")
    if OPT.get("xcc"):
        a(f"s_getreg_b32 s{sT}, hwreg(HW_REG_XCC_ID, 0, 4)\nv_mov_b32 v2, s{sT}\ns_lshl_b32 s{sT}, s2, 2\ns_add_u32 s{sT}, s{sT}, 0x6f0000\nv_mov_b32 v1, s{sT}\nbuffer_store_dword v2, v1, s[{SWS}:{SWS+3}], 0 offen sc1")
    a(f"""
s_or_b32 s{sT}, s{sHG}, s{sWAVE}
s_cmp_eq_u32 s{sT}, 0
s_cselect_b32 s55, 1, 0
v_mov_b32 v20, 0
v_mov_b32 v21, 0
v_mov_b32 v22, 0
v_mov_b32 v23, 0
s_cbranch_scc0 L_{tag}_i1
s_lshl_b32 s{sT}, s{sBR}, 4
s_add_u32 s{sT}, s{sT}, s{sRB}
s_lshl_b32 s{sT}, s{sT}, 8
s_add_u32 s{sT}, s{sT}, {WS_CNT}
v_mov_b32 v24, s{sT}
buffer_store_dword v20, v24, s[{SWS}:{SWS+3}], 0 offen sc1
L_{tag}_i1:
""")
    if with_kv:
        a(f"""
s_or_b32 s{sT}, s{sRB}, s{sWAVE}
s_cmp_eq_u32 s{sT}, 0
s_cbranch_scc0 L_{tag}_i2
s_or_b32 s55, s55, 2
s_mul_i32 s{sT}, s{sHG}, {KV_ST}
s_add_u32 s{sT}, s{sT}, {WS_KV}
v_lshl_add_u32 v24, v0, 4, s{sT}
""")
        for j in range(7):
            a(f"s_movk_i32 s{sK}, {1024*j}\nbuffer_store_dwordx4 v[20:23], v24, s[{SWS}:{SWS+3}], s{sK} offen sc1")
        a(f"L_{tag}_i2:")

def init_flags(tag):
    a(f"""
s_waitcnt vmcnt(0)
s_cmp_eq_u32 s55, 0
s_cbranch_scc1 L_{tag}_f2
v_mov_b32 v20, 1
s_bitcmp1_b32 s55, 0
s_cbranch_scc0 L_{tag}_f1
s_lshl_b32 s{sT}, s{sBR}, 4
s_add_u32 s{sT}, s{sT}, s{sRB}
s_lshl_b32 s{sT}, s{sT}, 2
s_add_u32 s{sT}, s{sT}, 32
v_mov_b32 v24, s{sT}
buffer_store_dword v20, v24, s[{SDBG}:{SDBG+3}], 0 offen sc1
L_{tag}_f1:
s_bitcmp1_b32 s55, 1
s_cbranch_scc0 L_{tag}_f2
s_lshl_b32 s{sT}, s{sHG}, 2
v_mov_b32 v25, s{sT}
buffer_store_dword v20, v25, s[{SDBG}:{SDBG+3}], 0 offen sc1
L_{tag}_f2:
""")

def kstep(tiles, nxt_reads, first, waits):
    pend = list(first)
    for t, (m0_, m1_) in enumerate(tiles):
        if t in waits:
            a(waits[t])
        a(m0_)
        for x in pend: a(x)
        a(m1_)
        pend = []
        if nxt_reads:
            a(nxt_reads[t][0]); pend = [nxt_reads[t][1]]
    for x in pend: a(x)

def a_consumer():
    acc = lambda t, rt: 144 + (t * 2 + rt) * 4
    wf = lambda t: 88 + 4 * t
    xf = lambda buf, rt: 72 + buf * 8 + rt * 4
    R8, R2, R8b, R2b, aX = 1, 5, 6, 10, 11
    vOF, vOL, vEXW, vEXR = 13, 14, 15, 16
    MC, MP, MPF, PM = 56, 60, 64, 68
    a("L_AC:\ns_waitcnt lgkmcnt(0)")
    gap_touch("AC", 3)
    srds_rest()
    init_stores("AC", False)
    rd_lanes(R8, R2, 17, 18); x_lane(aX, aX + 1, 17)
    for j in range(5):
        a(f"v_add_u32 v{R8b+j}, {4*A_WSLOT}, v{R8+j}")
    a(f"""
s_lshl_b32 s{sT}, s{sWAVE}, 12
s_add_u32 s{sT}, s{sT}, {A_X0}
v_add_u32 v{aX}, s{sT}, v{aX}
v_add_u32 v{aX+1}, s{sT}, v{aX+1}
s_lshr_b32 s{sT}, s{sWAVE}, 1
s_lshl_b32 s{sT}, s{sT}, 3
v_and_b32 v17, 15, v0
v_xor_b32 v17, s{sT}, v17
v_lshrrev_b32 v18, 4, v0
v_lshlrev_b32 v18, 2, v18
v_xor_b32 v18, s{sT}, v18
v_sub_u32 v17, v17, v18
v_mov_b32 v19, {NEG}
s_and_b32 s{sT}, s{sWAVE}, 1
s_or_b32 s{sT}, s{sT}, s{sRB}
s_cmp_eq_u32 s{sT}, 0
s_cselect_b64 s[42:43], -1, 0
""")
    for r in range(4):
        a(f"""
v_subrev_u32 v18, {r}, v17
v_cmp_gt_u32 vcc, 8, v18
v_cndmask_b32 v{MC+r}, v19, 0, vcc
v_cmp_gt_i32 vcc, -8, v18
v_cndmask_b32 v{MP+r}, v19, 0, vcc
v_cndmask_b32 v{MPF+r}, v{MP+r}, v19, s[42:43]
v_cmp_lt_i32 vcc, -1, v18
v_mov_b32 v20, {'0xffff' if r % 2 == 0 else '0xffff0000'}
v_cndmask_b32 v20, 0, v20, vcc
""")
        a(f"v_mov_b32 v{PM + r//2}, v20" if r % 2 == 0 else f"v_or_b32 v{PM + r//2}, v{PM + r//2}, v20")
    o_store_addr(vOF, vOL, 17, True)
    a(f"""
s_lshr_b32 s{sT}, s{sWAVE}, 1
s_add_u32 s{sT}, s{sT}, 1
s_mul_i32 s{sT}, s{sT}, 5120
s_bitcmp1_b32 s{sWAVE}, 0
s_cselect_b32 s{sT3}, s{sT}, 0
v_lshlrev_b32 v17, 3, v0
v_add_u32 v17, {A_EX}, v17
v_add_u32 v{vEXW}, s{sT}, v17
v_add_u32 v{vEXR}, s{sT3}, v17
""")

    def wreads(ks, t):
        slot = ks % 5
        o = 0 if slot == 4 else slot * A_WSLOT
        r8, r2 = (R8b, R2b) if slot == 4 else (R8, R2)
        if t == 4 or t == 13:
            o += 12288 if t == 4 else 13312
            return [tr(wf(t), r2, o), tr(wf(t) + 2, r2, o + 256)]
        s, j = (0, t) if t < 4 else (1, t - 5) if t < 9 else (2, t - 9)
        return [tr(wf(t), r8 + j, o + 4096*s), tr(wf(t) + 2, r8 + j, o + 4096*s + 1024)]
    xread = lambda ks, rt: f"ds_read_b128 {vr(xf(ks % 2, rt),4)}, v{aX + ks % 2} offset:{(ks//2 % 3)*A_XSLOT + rt*2048}"

    if OPT.get("prepass"):
        a("s_barrier")
    stamp()
    a("s_barrier")
    stamp()
    a(xread(0, 0)); a(xread(0, 1))
    for t in range(14):
        for x in wreads(0, t): a(x)
    for ks in range(18):
        if OPT.get("body") and ks == OPT["body"] + 1:
            stamp()
            j_ = sST + 2*(nstamp[0]-1)
            a(f"s_waitcnt lgkmcnt(0)\ns_sub_u32 s{j_}, s{j_}, s100\ns_lshl_b32 s{j_}, s{j_}, 4\ns_add_u32 s{j_}, s{j_}, s100")
        if OPT.get("span") and ks == OPT["span"] + 4:
            a("s_barrier")
            stamp()
            j_ = sST + 2*(nstamp[0]-1)
            a(f"s_waitcnt lgkmcnt(0)\ns_sub_u32 s{j_}, s{j_}, s100\ns_lshl_b32 s{j_}, s{j_}, 2\ns_add_u32 s{j_}, s{j_}, s100")
        elif ks < 17:
            a("s_barrier")
        if ks and ks in (OPT.get("body"), OPT.get("span")):
            a("s_memtime s[100:101]")
        if OPT.get("fine") == 2 and ks in (2, 5, 8, 11, 14):
            stamp()
        if OPT.get("ret", 0) > 3 and ks == 1:
            base, off = {4: (38, 520*3456 + 160), 5: (36, 5*1152 + 1024), 6: (38, 200*3456 + 160), 7: (38, 520*3456 + 1152 + 160)}[OPT["ret"]]
            a(f"s_mul_i32 s40, s{sWAVE}, {3456 if base == 38 else 1152}\ns_add_u32 s40, s40, {off - 64}\ns_add_u32 s40, s40, s{base}\ns_addc_u32 s41, s{base+1}, 0")
        elif OPT.get("ret") and ks == 1:
            a(f"s_lshl_b32 s40, s2, 10\ns_lshl_b32 s41, s{sWAVE}, 8\ns_add_u32 s40, s40, s41\ns_add_u32 s40, s40, 0x580000\ns_add_u32 s40, s40, s{SWS}\ns_addc_u32 s41, s{SWS+1}, 0")
            if OPT["ret"] == 1:
                a("v_mov_b32 v28, 0\nglobal_load_dword v29, v28, s[40:41]")
        if OPT.get("ret") and ks == OPT.get("at", 7):
            if OPT["ret"] == 2:
                a("v_mov_b32 v28, 0\nglobal_load_dword v29, v28, s[40:41]\ns_waitcnt vmcnt(0)")
            a("s_waitcnt lgkmcnt(0)\ns_memtime s[100:101]\ns_waitcnt lgkmcnt(0)\ns_load_dword s38, s[40:41], 64\ns_waitcnt lgkmcnt(0)")
            stamp()
            j_ = sST + 2*(nstamp[0]-1)
            a(f"s_waitcnt lgkmcnt(0)\ns_sub_u32 s{j_}, s{j_}, s100\ns_lshl_b32 s{j_}, s{j_}, 3\ns_add_u32 s{j_}, s{j_}, s100")
        if OPT.get("dummy") == ks:
            if OPT.get("dpre"):
                a("s_getpc_b64 s[38:39]\nv_lshlrev_b32 v28, 7, v0\nv_min_u32 v28, 2304, v28\nglobal_load_dword v29, v28, s[38:39]\ns_waitcnt vmcnt(0)")
            a("s_waitcnt lgkmcnt(0)\ns_memtime s[100:101]\ns_memrealtime s[40:41]\ns_waitcnt lgkmcnt(0)")
            for n in range(128):
                kind = OPT.get("dkind", 0)
                if kind == 0:
                    a(mf(28 + 4 * (n % 4), 88, 72, "0"))
                elif kind == 1:
                    a(f"v_add3_u32 v{28 + n % 8}, v0, v0, v0\nv_add3_u32 v{36 + n % 8}, v0, v0, v0")
                else:
                    a(f"ds_read_b128 v[{28 + 4 * (n % 4)}:{31 + 4 * (n % 4)}], v{aX} offset:0")
            a("s_waitcnt lgkmcnt(0)")
            stamp()
            a("s_waitcnt lgkmcnt(0)")
            if not OPT.get("cyc"):
                a(f"s_sub_u32 s40, s{sST + 2*(nstamp[0]-1)}, s40\ns_add_u32 s{sST + 2*(nstamp[0]-1)}, s{sST}, s40")
        if ks == 3:
            init_flags("AC")
        tiles = []
        for t in range(14):
            c = lambda rt: acc(t, rt) if ks else "0"
            tiles.append([mf(acc(t, rt), wf(t), xf(ks % 2, rt), c(rt)) if t < 9 else mf(acc(t, rt), xf(ks % 2, rt), wf(t), c(rt)) for rt in range(2)])
        if ks < 17:
            nxt = [wreads(ks + 1, t) for t in range(14)]
            nxt[1] = [nxt[1][0], nxt[1][1] + "\n" + xread(ks + 1, 1)]
            kstep(tiles, nxt, [xread(ks + 1, 0)], {0: "s_waitcnt lgkmcnt(14)", 7: "s_waitcnt lgkmcnt(15)", 12: "s_waitcnt lgkmcnt(15)"})
        else:
            kstep(tiles, None, [], {0: "s_waitcnt lgkmcnt(14)", 7: "s_waitcnt lgkmcnt(0)"})
    stamp()
    KP = lambda j: 18 + 10 * j
    QT = lambda rt, h: 88 + 16 * rt + 4 * h
    VP = lambda t, j: 120 + 6 * t + 2 * j if t < 4 else 48 + 2 * j
    ONE = 72
    def pack_kv(rt):
        o = []
        for q in range(2):
            o += [cv(QT(rt, 3) + 2 + q, acc(4, rt) + 2*q), f"v_mov_b32 v{KP(1+rt) + 8 + q}, 0"]
        for tau in range(4):
            o += [cv(KP(1+rt) + 2*tau + q, acc(5+tau, rt) + 2*q) for q in range(2)]
        o += [f"v_permlane32_swap_b32 v{QT(rt,3) + 2 + q}, v{KP(1+rt) + 8 + q}" for q in range(2)]
        for t in range(5):
            o += [cv(VP(t, 1+rt) + q, acc(9+t, rt) + 2*q) for q in range(2)]
        return o
    def pack_q(rt):
        o = []
        for t in range(4):
            for q in range(2):
                d = QT(rt, t) + q
                o.append(cv(d, acc(t, rt) + 2*q))
                if (t, q) in SPLITS:
                    m = SPLITS[(t, q)]; lo = QT(rt, t-1) + 2 + q
                    o += [f"v_cndmask_b32 v{lo}, 0, v{d}, s[{m}:{m+1}]", f"v_xor_b32 v{d}, v{d}, v{lo}"]
        return o + [f"v_mov_b32 v{QT(rt,0) + 3}, 0"]
    weave([], pack_kv(1))
    a(f"s_bitcmp1_b32 s{sWAVE}, 0\ns_cbranch_scc1 L_AC_nodump")
    for j in range(5):
        a(f"ds_write_b64 v{vEXW}, {vr(KP(2) + 2*j, 2)} offset:{512*j}")
        a(f"ds_write_b64 v{vEXW}, {vr(VP(j, 2), 2)} offset:{512*(5+j)}")
    a("L_AC_nodump:")
    weave([], pack_kv(0) + pack_q(1))
    a("s_waitcnt lgkmcnt(0)\ns_barrier")
    for j in range(5):
        a(f"ds_read_b64 {vr(KP(0) + 2*j, 2)}, v{vEXR} offset:{512*j}")
        a(f"ds_read_b64 {vr(VP(j, 0), 2)}, v{vEXR} offset:{512*(5+j)}")
    SC = lambda rt, h: (224 if rt else 184) + 8 * h
    MX = lambda rt: [76 + 4 * rt + h for h in range(4)]
    PT = lambda rt, h: 144 + 16 * rt + 4 * h
    def qk(rt):
        o = []
        for h in range(4):
            o += [mf(SC(rt, h), KP(1+rt) + 2*h, QT(rt, h), MC), mf(SC(rt, h) + 4, KP(rt) + 2*h, QT(rt, h), MP if rt else MPF)]
        return o
    def rowmax(rt):
        o = []
        for h in range(4):
            s = SC(rt, h); m = MX(rt)[h]
            o += [f"v_max_f32 v{s+r}, v{s+r}, v{s+4+r}" for r in range(4)]
            o += [f"v_max3_f32 v{m}, v{s}, v{s+1}, v{s+2}", f"v_max_f32 v{m}, v{m}, v{s+3}"]
        return o
    def xmax(rt):
        m = MX(rt)
        return [f"v_permlane32_swap_b32 v{m[0]}, v{m[1]}", f"v_permlane32_swap_b32 v{m[2]}, v{m[3]}",
                f"v_max_f32 v{m[0]}, v{m[0]}, v{m[1]}", f"v_max_f32 v{m[2]}, v{m[2]}, v{m[3]}",
                f"v_permlane16_swap_b32 v{m[0]}, v{m[2]}", f"v_max_f32 v{m[0]}, v{m[0]}, v{m[2]}",
                f"v_mul_f32 v{m[0]}, s{sT2}, v{m[0]}", f"v_mov_b32 v{m[2]}, v{m[0]}",
                f"v_permlane16_swap_b32 v{m[0]}, v{m[2]}", f"v_mov_b32 v{m[1]}, v{m[0]}", f"v_mov_b32 v{m[3]}, v{m[2]}",
                f"v_permlane32_swap_b32 v{m[0]}, v{m[1]}", f"v_permlane32_swap_b32 v{m[2]}, v{m[3]}"]
    def probs(rt):
        o = []
        for h in range(4):
            s = SC(rt, h); p = PT(rt, h)
            o += [f"v_fma_f32 v{s+r}, v{s+r}, s{sT}, v{MX(rt)[h]}" for r in range(4)]
            o += [f"v_exp_f32 v{s+r}, v{s+r}" for r in range(4)]
            if h:
                o += split(rt, h - 1)
        return o + split(rt, 3)
    def split(rt, h):
        s = SC(rt, h); p = PT(rt, h); o = []
        for q in range(2):
            o += [cv(p + q, s + 2*q), f"v_and_b32 v{p+2+q}, v{p+q}, v{PM+q}", f"v_xor_b32 v{p+q}, v{p+q}, v{p+2+q}"]
        return o
    OB = lambda rt, t: (224 if rt else 184) + 4 * t
    OA = lambda rt, t: (224 if rt else 184) + 12 + 4 * t
    SM = lambda rt, h: 88 + 16 * rt + 4 * h
    OF = lambda rt: 18 + 10 * rt
    def pv(rt):
        o = [mf(SM(rt, h), ONE, PT(rt, h), "0") for h in range(4)]
        for t in range(5):
            if t < 4: o.append(mf(OB(rt, t), VP(t, rt), PT(rt, t), "0"))
            if t > 0: o.append(mf(OA(rt, t), VP(t, rt), PT(rt, t-1), "0"))
        return o
    def finish(rt):
        o = [f"v_rcp_f32 v{SM(rt,h)}, v{SM(rt,h)}" for h in range(4)]
        for t in range(5):
            for q in range(2):
                d = OF(rt) + 2*t + q
                srcs = []
                if t < 4: srcs.append((OB(rt, t) + 2*q, SM(rt, t), d))
                if t == 4: srcs.append((OA(rt, t) + 2*q, SM(rt, 3), d))
                if (t, q) in SPLITS: srcs.append((OA(rt, t) + 2*q, SM(rt, t-1), 17))
                for x, inv, dd in srcs:
                    o += [f"v_mul_f32 v{x}, v{x}, v{inv}", f"v_mul_f32 v{x+1}, v{x+1}, v{inv}", cv(dd, x)]
                if (t, q) in SPLITS:
                    m = SPLITS[(t, q)]
                    o.append(f"v_cndmask_b32 v{d}, v{d}, v17, s[{m}:{m+1}]")
        return o
    a(f"s_mov_b32 s{sT}, {f32(CSC)}\ns_mov_b32 s{sT2}, {f32(-CSC)}")
    weave(qk(1), pack_q(0) + [f"v_mov_b32 v{ONE+j}, 0x3f803f80" for j in range(4)])
    a("s_waitcnt lgkmcnt(0)")
    weave(qk(0), rowmax(1))
    x1, x0 = xmax(1), xmax(0)
    r0 = rowmax(0)
    for i, x in enumerate(x1):
        a(x)
        for y in r0[2*i:2*i+2]: a(y)
    p1 = probs(1)
    for i, x in enumerate(x0):
        a(x)
        for y in p1[2*i:2*i+2]: a(y)
    weave([], p1[2*len(x0):])
    weave(pv(1), probs(0))
    weave(pv(0), finish(1))
    o_store(OF(1), vOF, vOL, 1)
    weave([], finish(0))
    o_store(OF(0), vOF, vOL, 0)
    stamp()
    a("s_branch L_P2")

def phi(r, n, t):
    o = [f"v_pk_fma_f32 {vr(t+j,2)}, {vr(r+j,2)}, s[56:57], v[14:15]" for j in range(0, n, 2)]
    for j in range(n):
        o += [f"v_exp_f32 v{t+j}, v{t+j} clamp", f"v_max_f32 v{r+j}, s{sT2}, v{r+j}"]
    return o + [f"v_pk_add_f32 {vr(r+j,2)}, {vr(r+j,2)}, {vr(t+j,2)}" for j in range(0, n, 2)]

def b_consumer():
    acc = lambda t, rt: 184 + (t * 2 + rt) * 4
    wf = lambda t: 148 + 4 * t
    xf = lambda ks, rt: 52 + ks * 8 + rt * 4 if ks < 12 else 36 + (ks % 2) * 8 + rt * 4
    R8, R2, aX = 1, 5, 6
    vOF, vOL, vEX = 8, 9, 10
    CK, CS = 28, 32
    a("L_BC:\ns_waitcnt lgkmcnt(0)")
    gap_touch("BC", 2)
    srds_rest()
    init_stores("BC", True)
    rd_lanes(R8, R2, 17, 18); x_lane(aX, aX + 1, 17)
    a(f"""
s_lshl_b32 s{sT}, s{sWAVE}, 12
s_add_u32 s{sT}, s{sT}, {B_X0}
v_add_u32 v{aX}, s{sT}, v{aX}
v_add_u32 v{aX+1}, s{sT}, v{aX+1}
v_and_b32 v17, 15, v0
v_cmp_gt_u32 vcc, 8, v17
v_mov_b32 v18, {EPS}
s_mov_b64 s[42:43], vcc
s_mul_i32 s{sT}, s{sWAVE}, 10240
s_add_u32 s{sT}, s{sT}, {B_EX}
v_lshl_add_u32 v{vEX}, v0, 4, s{sT}
v_mov_b32 v14, {f32(-1e-6*LOG2E)}
v_mov_b32 v15, v14
s_mov_b32 s56, {f32(LOG2E)}
s_mov_b32 s57, s56
""")
    for r in range(4):
        a(f"v_mov_b32 v{CK+r}, v18\nv_cndmask_b32 v{CS+r}, 0, v18, vcc")
    o_store_addr(vOF, vOL, 17, False)

    def wreads(ks, t):
        o = (ks % 5) * B_KVSLOT
        if t == 4:
            return [tr(wf(t), R2, o + 8192), tr(wf(t) + 2, R2, o + 8192 + 256)]
        s, j = (0, t) if t < 4 else (1, t - 5)
        return [tr(wf(t), R8 + j, o + 4096*s), tr(wf(t) + 2, R8 + j, o + 4096*s + 1024)]
    xread = lambda ks, rt: f"ds_read_b128 {vr(xf(ks, rt),4)}, v{aX + ks % 2} offset:{(ks//2 % 3)*B_XSLOT + rt*2048}"

    stamp()
    a("s_barrier")
    stamp()
    a(xread(0, 0)); a(xread(0, 1))
    for t in range(9):
        for x in wreads(0, t): a(x)
    for ks in range(18):
        if ks < 17:
            a("s_barrier")
        if ks == 3:
            init_flags("BC")
        tiles = [[mf(acc(t, rt), xf(ks, rt), wf(t), acc(t, rt) if ks else (CK if t < 4 else CS if t == 4 else "0")) for rt in range(2)] for t in range(9)]
        if ks < 17:
            nxt = [wreads(ks + 1, t) for t in range(9)]
            nxt[1] = [nxt[1][0], nxt[1][1] + "\n" + xread(ks + 1, 1)]
            kstep(tiles, nxt, [xread(ks + 1, 0)], {0: "s_waitcnt lgkmcnt(12)", 3: "s_waitcnt lgkmcnt(13)", 6: "s_waitcnt lgkmcnt(13)", 8: "s_waitcnt lgkmcnt(11)"})
        else:
            kstep(tiles, None, [], {0: "s_waitcnt lgkmcnt(12)", 3: "s_waitcnt lgkmcnt(0)\ns_barrier"})
    stamp()
    a(f"s_mov_b32 s{sT2}, {EPS}\nv_mov_b32 v16, 0x3f803f80")
    wr = lambda reg, slot: f"ds_write_b128 v{vEX}, {vr(reg,4)} offset:{1024*slot}"
    pk = lambda d, s: [cv(d + j, s + 2*j) for j in range(4)]
    weave([], pk(156, acc(4, 0)) + [f"v_cndmask_b32 v{156+j}, v{156+j}, v16, s[42:43]" for j in range(4)] + [wr(156, 9)])
    xq = lambda ks, rt: 168 + (ks - 12) * 8 + rt * 4 if ks in (12, 13) else acc(2 * (ks - 14) + rt, 1) if ks in (14, 15) else xf(ks, rt)
    reread = lambda ks, rt: f"ds_read_b128 {vr(xq(ks, rt),4)}, v{aX + ks % 2} offset:{(ks//2 % 3)*B_XSLOT + rt*2048}"
    weave([], [reread(ks, rt) for ks in (12, 13) for rt in range(2)])
    for tau in range(5):
        o = phi(acc(tau, 0), 8, 148)
        if tau < 4:
            o = pk(acc(5+tau, 0), acc(5+tau, 0)) + o[:8] + [wr(acc(5+tau, 0), 5 + tau)] + o[8:]
        weave([], o + pk(acc(tau, 0), acc(tau, 0)) + [wr(acc(tau, 0), tau)])
        if tau < 4:
            a(reread(14 + tau // 2, tau % 2))
    for j in range(5):
        a(f"v_add_u32 v{R8+j}, {B_WQ0}, v{R8+j}")
    a("s_waitcnt lgkmcnt(0)\ns_barrier")
    stamp()
    QA = lambda t, rt: 216 + (t * 2 + rt) * 4
    qf = lambda t: 148 + 4 * t
    qbase = lambda p: B_WQ0 if p < 4 else 0 if p < 7 else 15360
    def qreads(p, t):
        o = wq_slot(p) - qbase(p)
        if t == 4:
            return [tr(qf(t), R2, o + 4096), tr(qf(t) + 2, R2, o + 4096 + 256)]
        return [tr(qf(t), R8 + t, o), tr(qf(t) + 2, R8 + t, o + 1024)]
    for t in range(5):
        for x in qreads(0, t): a(x)
    for p in range(18):
        ks = QORD[p]
        if p == 7 or (p == 13 and OPT.get('wob', 0)):
            a("s_barrier")
        tiles = [[mf(QA(t, rt), qf(t), xq(ks, rt), QA(t, rt) if p else CK) for rt in range(2)] for t in range(5)]
        if p < 17:
            nxt = [qreads(p + 1, t) for t in range(5)]
            if qbase(p + 1) != qbase(p):
                d = (qbase(p + 1) - qbase(p)) & 0xffffffff
                for t in range(5):
                    nxt[t][0] = f"v_add_u32 v{R8+t}, {d}, v{R8+t}\n" + nxt[t][0]
            kstep(tiles, nxt, [], {t: f"s_waitcnt lgkmcnt({7 if t else 8})" for t in range(5)})
        else:
            kstep(tiles, None, [], {t: f"s_waitcnt lgkmcnt({8 - 2*t})" for t in range(5)})
    stamp()
    PQ = lambda rt: 36 + 10 * rt
    KO = 84
    tup = {0: KO, 1: KO + 4, 2: KO + 12, 3: KO + 20, 4: KO + 28}
    ZO = KO + 32
    weave([], [f"v_mov_b32 v{r}, 0" for r in (tup[1]+4, tup[1]+5, tup[2]+4, tup[2]+5, tup[3]+4, tup[3]+5, ZO+8, ZO+9)])
    a(f"v_lshlrev_b32 v16, 3, v0\nv_add_u32 v16, {B_KVOP}, v16")
    for t in range(5):
        weave([], phi(QA(t, 0), 8, 148) + [cv(PQ(rt) + 2*t + q, QA(t, rt) + 2*q) for rt in range(2) for q in range(2)])
    stamp()
    a("s_barrier")
    stamp()
    tid = lambda tau, taup: {-1: tau - 1, 0: 4 + tau, 1: 9 + tau}[taup - tau]
    rd = lambda d, slot: a(f"ds_read_b64 {vr(d,2)}, v16 offset:{512*slot}")
    for j, d in enumerate((ZO, ZO + 2, ZO + 4, ZO + 6, ZO + 10)):
        rd(d, 13 + j)
    rd(tup[0], tid(0, 0)); rd(tup[0] + 2, tid(1, 0))
    for t in (1, 2, 3):
        rd(tup[t], tid(t-1, t)); rd(tup[t] + 2, tid(t, t)); rd(tup[t] + 6, tid(t+1, t))
    rd(tup[4], tid(3, 4)); rd(tup[4] + 2, tid(4, 4))
    DN = lambda rt: 148 + 4 * rt
    NM = lambda rt, t: 184 + 20 * rt + 4 * t
    OF = lambda rt: 156 + 10 * rt
    a("s_waitcnt lgkmcnt(13)")
    for k, (zo, po) in enumerate(((0, 0), (4, 4), (8, 6))):
        for rt in range(2):
            a(mf(DN(rt), ZO + zo, PQ(rt) + po, DN(rt) if k else CK))
    a("s_waitcnt lgkmcnt(0)")
    def num(rt):
        o = [mf(NM(rt, t), tup[t], PQ(rt) + 2*(t-1), "0") for t in (1, 2, 3)]
        o += [mf(NM(rt, 0), tup[0], PQ(rt), "0"), mf(NM(rt, 4), tup[4], PQ(rt) + 6, "0")]
        return o + [mf(NM(rt, t), tup[t] + 4, PQ(rt) + 2*t, NM(rt, t)) for t in (1, 2, 3)]
    def fin(rt, packed):
        o = []
        for t in (0, 4, 1, 2, 3):
            for q in range(2):
                inv = DN(rt) + min(t, 3)
                if (t, q) in SPLITS:
                    m = SPLITS[(t, q)]
                    o.append(f"v_cndmask_b32 v17, v{DN(rt)+t}, v{DN(rt)+t-1}, s[{m}:{m+1}]")
                    inv = 17
                n = NM(rt, t) + 2*q
                o += [f"v_mul_f32 v{n}, v{n}, v{inv}", f"v_mul_f32 v{n+1}, v{n+1}, v{inv}", cv(OF(rt) + 2*t + q, n)]
        return o
    weave(num(0), [], 0)
    weave(num(1), [f"v_rcp_f32 v{DN(rt)+h}, v{DN(rt)+h}" for rt in range(2) for h in range(4)], 1)
    for rt in range(2):
        weave([], fin(rt, True))
        o_store(OF(rt), vOF, vOL, rt)
    stamp()

def kv_index(wreg, VS, VG, VZ):
    a(f"s_cmp_eq_u32 s{wreg}, 0\ns_cselect_b32 s58, 4, s{wreg}")
    for slot in range(3):
        if slot == 0:
            a(f"s_lshl_b32 s{sT}, s58, 4\ns_sub_u32 s{sT2}, s{sT}, 16\ns_mov_b64 s[46:47], 0")
        elif slot == 1:
            a(f"s_lshl_b32 s{sT}, s{wreg}, 4\ns_mov_b32 s{sT2}, s{sT}")
        else:
            a(f"s_add_u32 s{sT2}, s{sT}, 16\ns_cmp_eq_u32 s{wreg}, 3\ns_cselect_b32 s{sT2}, 56, s{sT2}\ns_cselect_b64 s[46:47], s[44:45], 0")
        kv_tile(VS and VS + 2*slot, VG and VG + 2*slot, False)
    if VZ:
        kv_z(VZ)

def kv_tile(VS, VG, last):
    a(f"v_add_u32 v3, s{sT2}, v1")
    head_of(4, 3)
    a(f"v_mul_u32_u24 v5, 18, v4\nv_sub_u32 v3, v3, v5\nv_cndmask_b32 v4, v4, 7, s[46:47]")
    if last:
        a("v_cmp_eq_u32 vcc, 0, v1\nv_cndmask_b32 v4, v4, 3, vcc\nv_cndmask_b32 v3, v3, 18, vcc")
    for q in range(2):
        a(f"v_add3_u32 v5, v2, s{sT}, {2*q}")
        head_of(6, 5)
        a("v_cmp_eq_u32 vcc, v4, v6\nv_mad_u32_u24 v5, v5, 19, v3\nv_lshlrev_b32 v5, 2, v5")
        if VS:
            a(f"v_add_u32 v6, {B_STG}, v5\nv_cndmask_b32 v{VS+q}, v8, v6, vcc")
        if VG:
            a(f"v_add_u32 v6, s{sM}, v5\nv_cndmask_b32 v{VG+q}, v9, v6, vcc")

def kv_z(VZ):
    a("v_and_b32 v3, 3, v0")
    for q in range(2):
        a(f"v_add3_u32 v5, v2, s{sT}, {2*q}")
        head_of(6, 5)
        a(f"v_cmp_eq_u32 vcc, v3, v6\nv_mul_u32_u24 v5, 76, v5\nv_add3_u32 v5, v5, s{sM}, 64\nv_add_u32 v5, 8, v5\nv_cndmask_b32 v{VZ+q}, v9, v5, vcc")

def b_loader(kind):
    a(f"L_B{kind}1:")
    m = M0(42)
    issue = (lambda c: w_issue("B", c, m)) if kind == "W" else (lambda c: x_issue("B", c, m))
    pre = 1 if OPT.get("early") and kind == "W" else 2
    cnt = {c: issue(c) for c in range(1, pre + 1)}
    stamp()
    mark = len(a.lines)
    VS, VG, vZS, vEA, vE0, vEL, vLA, vGA, vLW = 72, 80, 98, 99, 100, 101, 102, 103, 105
    if kind == "W":
        a(f"v_subrev_u32 v{VD+5}, 1152, v{VD}\nv_subrev_u32 v{VD+6}, 1152, v{VD+1}")
    srds_rest()
    if kind == "W":
        wo_setup(False)
    else:
        sync_setup()
    a(f"""
s_add_u32 s55, s{sV}, 2
s_mul_i32 s{sM}, s{sHG}, {KV_ST}
s_add_u32 s{sM}, s{sM}, {WS_KV}
v_and_b32 v1, 15, v0
v_lshrrev_b32 v2, 4, v0
v_lshlrev_b32 v2, 2, v2
v_cmp_gt_u32 s[44:45], 8, v1
v_lshlrev_b32 v8, 2, v0
v_add_u32 v8, {B_DUMP}, v8
v_mov_b32 v9, {OOB}
""")
    own = sV if kind == "X" else 55
    if kind == "X":
        kv_index(55, None, VG, VG + 6)
        a(f"s_movk_i32 s{sT}, 64")
        kv_z(10)
    kv_index(own, VS, VG + 8 if kind == "X" else None, VG + 14 if kind == "X" else None)
    a(f"""
v_add_u32 v5, s{sT}, v0
v_mul_u32_u24 v5, 76, v5
v_add_u32 v5, {B_STG + 72}, v5
v_cndmask_b32 v{vZS}, v8, v5, s[{sG0}:{sG0+1}]
v_lshlrev_b32 v{vEL}, 4, v0
v_add_u32 v{vEL}, {B_EX}, v{vEL}
s_lshl_b32 s{sT}, s{own}, 10
v_add_u32 v{vEA}, s{sT}, v{vEL}
s_lshl_b32 s{sT}, s58, 10
v_add_u32 v{vE0}, s{sT}, v{vEL}
""")
    if kind == "X":
        a(f"s_movk_i32 s{sT}, 64\ns_movk_i32 s{sT2}, 56\ns_mov_b64 s[46:47], s[44:45]")
        kv_tile(VS + 6, VG + 16, True)
        a(f"s_cmp_eq_u32 s{sV}, 0\ns_cselect_b64 s[46:47], -1, 0")
        for q in range(2):
            a(f"v_cndmask_b32 v{VS+6+q}, v8, v{VS+6+q}, s[46:47]\nv_cndmask_b32 v{VG+16+q}, v{10+q}, v{VG+16+q}, s[46:47]")
        a(f"""
v_lshlrev_b32 v5, 3, v0
v_add_u32 v5, {B_KVOP}, v5
s_lshl_b32 s{sT2}, s58, 9
s_sub_u32 s{sT2}, s{sT2}, 512
v_add_u32 v{vLW+2}, s{sT2}, v5
s_lshl_b32 s{sT2}, s{sV}, 9
v_add_u32 v{vLW+1}, s{sT2}, v5
v_add_u32 v{vLW}, 1024, v{vLW+1}
s_mul_i32 s{sT2}, s{sV}, {9*512}
v_add_u32 v{vLW+3}, s{sT2}, v5
s_mul_i32 s{sT}, s{sV}, 2816
v_lshl_add_u32 v{vLA}, v0, 2, s{sT}
v_add_u32 v{vGA}, s{sM}, v{vLA}
v_cmp_gt_u32 vcc, {5472 - 2560}, v{vLA}
v_cndmask_b32 v{vGA+1}, v9, v{vGA}, vcc
v_add_u32 v{vLA}, {B_STG}, v{vLA}
v_mov_b32 v4, 0
""")
    a(f"v_mov_b32 v10, {B_LCNT}\nv_mov_b32 v11, 1")
    if kind == "X":
        a("ds_write_b32 v10, v4\ns_waitcnt lgkmcnt(0)")
    setup = a.lines[mark:]
    del a.lines[mark:]
    per = -(-len(setup) // 9)
    a(f"s_waitcnt vmcnt({sum(cnt.values())})\ns_barrier")
    stamp()
    extra = 0
    for i in range(-1, 16):
        if i == -1 and pre == 1:
            cnt[2] = issue(2)
        if i + 4 <= 17:
            cnt[i+4] = issue(i + 4)
        if 0 <= i < 9:
            a("s_cmp_eq_u32 s59, 1")
            a.lines += setup[per*i:per*(i+1)]
            a("s_cselect_b32 s59, 1, 0")
        if i == 10 and kind == "X":
            flag_load(sFO, 98); flag_load(sFK, 99)
        if kind == "W" and i >= 14:
            extra += wq_issue(2*(i-14), m) + wq_issue(2*(i-14) + 1, m)
        left = sum(cnt.get(c, 0) for c in range(i + 3, min(i + 4, 17) + 1)) + extra
        a(f"s_waitcnt vmcnt({left})\ns_barrier")
    a("s_barrier")
    if kind == "W":
        for p in (4, 5, 6, 7, 13, 14, 15, 16, 17):
            wq_issue(p, m)
        a("s_waitcnt vmcnt(15)")
    else:
        flag_check(sFK, 99, "L_BX_fk")
    stamp()
    a("s_barrier")
    stamp()
    if kind == "W":
        for p in range(8, 13):
            wq_issue(p, m)
    KT = lambda s: 40 + 4 * s
    RD = lambda src, j: 112 + 28 * src + 4 * j
    srcs = ((vEA, 0), (vE0, 0), (vE0, 4096), (vEA, 5120), (vEA, 6144), (vEL, 9216), (vEL, 4096))
    prods = ((1, 2), (0, 3), (0, 4), (6, 5), (5, 0))
    if kind == "W":
        srcs = ((vEA, 0), None, (vE0, 4096), (vEA, 5120), (vEA, 6144), (vEL, 9216))
        prods = ((0, 2), (0, 3), (0, 4), None, (5, 0))
    nr = sum(x is not None for x in srcs)
    for src in range(4):
        for j, x in enumerate(srcs):
            if x: a(f"ds_read_b128 {vr(RD(src, j),4)}, v{x[0]} offset:{src*10240 + x[1]}")
    for src in range(4):
        a(f"s_waitcnt lgkmcnt({min(15, nr*(3-src))})")
        for s_, x in enumerate(prods):
            if x: a(mf(KT(s_), RD(src, x[0]), RD(src, x[1]), KT(s_) if src else "0"))
    for s_ in range(4 if kind == "X" else 3):
        for r in range(4):
            a(f"ds_write_b32 v{VS + 2*s_ + r//2}, v{KT(s_)+r} offset:{76*(r%2)}")
    a(f"ds_write_b32 v{vZS}, v{KT(4)}")
    a("s_waitcnt lgkmcnt(0)\ns_mov_b64 exec, 1\nds_add_u32 v10, v11\ns_mov_b64 exec, -1")
    stamp()
    b1, b2, b3 = {0: ((0, 1, 2, 3, 4, 5), (), (6, 7, 8)), 1: ((0, 1, 2), (3, 4, 5, 6, 7, 8), ()), 2: ((0, 1, 2), (3, 4, 5), (6, 7, 8))}[OPT.get("wob", 0)]
    if kind == "W":
        a("s_waitcnt vmcnt(0)\ns_barrier")
        for g in b1: wo_pair(g)
        if b2:
            a("s_barrier")
            for g in b2: wo_pair(g)
        stamp()
        a("s_barrier")
        loader_tail("BW", b3)
        return
    a(f"""
s_mov_b32 s{sT3}, 0x400000
L_BX_st:
ds_read_b32 v2, v10
s_waitcnt lgkmcnt(0)
v_readfirstlane_b32 s{sT}, v2
s_sub_u32 s{sT3}, s{sT3}, 1
s_cbranch_scc1 L_BX_st_x
s_cmp_ge_u32 s{sT}, 4
s_cbranch_scc0 L_BX_st
L_BX_st_x:
""")
    for n in range(11):
        a(f"ds_read_b32 v{40+n}, v{vLA} offset:{256*n}")
    for n in range(11):
        a(f"s_waitcnt lgkmcnt({10-n})")
        a(f"buffer_atomic_add_f32 v{40+n}, v{vGA + (n == 10)}, s[{SWS}:{SWS+3}], 0 offen offset:{256*n}")
    stamp()
    a("s_barrier")
    if b2:
        a("s_barrier")
    a("s_waitcnt vmcnt(0)")
    stamp()
    arrive_wait(sKC, 32, "L_BX_kc")
    stamp()
    for s_ in range(9):
        for r in range(4):
            a(f"buffer_load_dword v{112+4*s_+r}, v{VG + 2*s_ + r//2}, s[{SWS}:{SWS+3}], 0 offen offset:{76*(r%2)} sc1")
    dst = ((vLW, -1), (vLW, 4), (vLW, 9), (vLW, 13), (vLW + 2, 0), (vLW + 1, 4), (vLW + 1, 9), (vLW + 1, 13), (vLW + 3, 8))
    a(f"v_subrev_u32 v11, 512, v{vLW}")
    for s_, (ad, off) in enumerate(dst):
        a(f"s_waitcnt vmcnt({4*(8-s_)})")
        a(cv(40 + 2*s_, 112 + 4*s_)); a(cv(41 + 2*s_, 114 + 4*s_))
        a(f"ds_write_b64 v{11 if off < 0 else ad}, {vr(40+2*s_,2)} offset:{512*max(off, 0)}")
    a("s_waitcnt lgkmcnt(0)")
    stamp()
    a("s_barrier")
    loader_tail("BX")

def p2_consumer():
    OFR = lambda ks, rt: 112 + ks * 8 + rt * 4
    ACC = lambda t, rt: 72 + (t * 2 + rt) * 4
    wf = lambda t: 52 + 4 * t
    R8, R2, vO, vTW, vTR, VS = 1, 5, 6, 7, 8, 9
    AH = OPT["ahead"]
    a("L_P2:")
    nstamp[0] = 10
    rd_lanes(R8, R2, 17, 18)
    for j in range(5):
        a(f"v_add_u32 v{R8+j}, {R1}, v{R8+j}")
    a(f"""
v_lshl_add_u32 v{vO}, v0, 4, s58
s_mul_i32 s{sT}, s{sWAVE}, 4608
s_add_u32 s{sT}, s{sT}, {P_TR}
v_and_b32 v17, 15, v0
v_mul_u32_u24 v17, 144, v17
v_lshrrev_b32 v18, 4, v0
v_lshl_add_u32 v17, v18, 3, v17
v_add_u32 v{vTW}, s{sT}, v17
v_lshl_add_u32 v{vTR}, v0, 4, s{sT}
s_lshr_b32 s{sT}, s{sWAVE}, 1
s_and_b32 s{sT2}, s{sWAVE}, 1
s_lshl_b32 s{sT2}, s{sT2}, 5
s_lshl_b32 s{sT3}, s{sWAVE}, 5
s_cmp_eq_u32 s{sBR}, 0
s_cselect_b32 s42, s{sT}, 0
s_cselect_b32 s43, s{sT2}, s{sT3}
s_cselect_b32 s55, 1, 0
s_lshl_b32 s56, s42, 3
s_lshl_b32 s{sT}, s{sRB}, 7
s_add_u32 s42, s42, s{sT}
s_mul_i32 s{sT}, s{sBR}, 1152
s_mul_i32 s{sT2}, s{sHG}, 144
s_add_u32 s57, s{sT}, s{sT2}
""")
    for n in range(5):
        a(f"""
v_add_u32 v17, {64*n}, v0
v_mul_u32_u24 v18, 7282, v17
v_lshrrev_b32 v18, 16, v18
v_mul_u32_u24 v19, 9, v18
v_sub_u32 v19, v17, v19
v_add_u32 v18, s43, v18
v_xor_b32 v18, s56, v18
v_lshlrev_b32 v18, s55, v18
v_add_u32 v18, s42, v18
v_mul_u32_u24 v18, 2304, v18
v_lshl_add_u32 v18, v19, 4, v18
v_add_u32 v{VS+n}, s57, v18
""")
    a(f"v_mov_b32 v17, {OOB}\nv_cndmask_b32 v{VS+4}, v17, v{VS+4}, s[{sG01}:{sG01+1}]")
    a(f"v_add_u32 v14, 18432, v{vO}")
    SO = [8, 9, 10, 11, 12, 13, 14, 15, 36]
    rho(37)
    a(f"s_movk_i32 s{SO[0]}, 16384")
    for j in range(1, 9):
        a(f"s_add_u32 s{sT}, s37, {2*j-2}\ns_and_b32 s{sT}, s{sT}, 15\ns_lshl_b32 s{SO[j]}, s{sT}, 10")
    a("s_waitcnt vmcnt(0)")
    stamp()
    a("s_barrier\ns_barrier")
    stamp()
    def oload(ks, rt):
        return f"buffer_load_dwordx4 {vr(OFR(ks, rt),4)}, v{14 if rt else vO}, s[{SWS}:{SWS+3}], s{SO[ks//2]} offen offset:{1024*(ks%2)} sc1"
    base = lambda ks: R1 if ks < 3 else 0 if 9 <= ks < 12 else R2_
    R2_ = 43008
    def wreads(ks, t):
        o = WO[ks] - base(ks)
        if t == 4:
            return [tr(wf(t), R2, o + 4096), tr(wf(t) + 2, R2, o + 4096 + 256)]
        return [tr(wf(t), R8 + t, o), tr(wf(t) + 2, R8 + t, o + 1024)]
    for ks in range(AH):
        a(oload(ks, 0)); a(oload(ks, 1))
    for t in range(5):
        for x in wreads(0, t): a(x)
    for ks in range(18):
        tiles = [[mf(ACC(t, rt), wf(t), OFR(ks, rt), ACC(t, rt) if ks else "0") for rt in range(2)] for t in range(5)]
        w0 = f"s_waitcnt vmcnt({2*min(AH - 1, 17 - ks)}) lgkmcnt(8)"
        if ks < 17:
            nxt = [wreads(ks + 1, t) for t in range(5)]
            if base(ks + 1) != base(ks):
                d = (base(ks + 1) - base(ks)) & 0xffffffff
                for t in range(5):
                    nxt[t][0] = f"v_add_u32 v{R8+t}, {d}, v{R8+t}\n" + nxt[t][0]
            first = []
            if ks + AH < 18:
                first = [oload(ks + AH, 0)]
                nxt[1][1] += "\n" + oload(ks + AH, 1)
            kstep(tiles, nxt, first, {t: "s_waitcnt lgkmcnt(7)" if t else w0 for t in range(5)})
        else:
            kstep(tiles, None, [], {t: f"s_waitcnt lgkmcnt({8 - 2*t})" if t else w0 for t in range(5)})
        if ks == 0:
            stamp()
    stamp()
    for rt in range(2):
        for t in range(5):
            d = 20 + 2*(rt*5 + t)
            a(cv(d, ACC(t, rt))); a(cv(d + 1, ACC(t, rt) + 2))
            if t == 4:
                a(f"s_mov_b64 exec, s[{sG01}:{sG01+1}]")
            a(f"ds_write_b64 v{vTW}, {vr(d,2)} offset:{rt*2304 + 32*t}")
            if t == 4:
                a("s_mov_b64 exec, -1")
    a("s_waitcnt lgkmcnt(0)")
    for n in range(5):
        a(f"ds_read_b128 {vr(112+4*n,4)}, v{vTR} offset:{1024*n}")
    for n in range(5):
        a(f"s_waitcnt lgkmcnt({4-n})")
        a(f"buffer_store_dwordx4 {vr(112+4*n,4)}, v{VS+n}, s[{SOUT}:{SOUT+3}], 0 offen")
    stamp()
    stamps_out(0)
    a("s_endpgm")

HEADER = open("concat_heads__sliding_local_dilated__linear_attn_block__prompt.s.ref").read().split("; Override")[0]
out = HEADER + "; @launch grid=(256,1,1) block=(512,1,1) lds=163840\n"
a('.amdgcn_target "amdgcn-amd-amdhsa--gfx950"\n.text')
a(kernel_head(KN))
if OPT["stamps"]:
    for i in range(16):
        a(f"s_mov_b32 s{sST+2*i}, 0")
stamp()
a(f"""
s_cmp_ge_u32 s2, 256
s_cbranch_scc1 L_end
s_and_b32 s{sT}, s2, 7
s_lshr_b32 s{sBR}, s{sT}, 2
{'s_xor_b32 s6, s6, 1' if OPT.get('swap') else ''}
s_mul_i32 s{sT2}, s{sBR}, 24
s_add_u32 s0, s0, s{sT2}
s_addc_u32 s1, s1, 0
s_load_dwordx4 s[36:39], s[0:1], 0
s_load_dwordx2 s[40:41], s[0:1], 16
s_sub_u32 s0, s0, s{sT2}
s_subb_u32 s1, s1, 0
s_load_dwordx4 s[44:47], s[0:1], 48
s_load_dwordx2 s[48:49], s[0:1], 64
v_lshrrev_b32 v1, 6, v0
v_and_b32 v0, 63, v0
v_readfirstlane_b32 s{sWAVE}, v1
s_lshr_b32 s{sT2}, s2, 3
""")
m84 = f"""
s_and_b32 s{sHG}, s{sT2}, 3
s_and_b32 s{sT3}, s{sT}, 1
s_lshl_b32 s{sT3}, s{sT3}, 2
s_add_u32 s{sHG}, s{sHG}, s{sT3}
s_lshr_b32 s{sRB}, s{sT2}, 2
s_and_b32 s{sT3}, s{sT}, 2
s_lshl_b32 s{sT3}, s{sT3}, 2
s_add_u32 s{sRB}, s{sRB}, s{sT3}
"""
m48 = f"""
s_and_b32 s{sHG}, s{sT2}, 7
s_lshr_b32 s{sRB}, s{sT2}, 3
s_and_b32 s{sT3}, s{sT}, 3
s_lshl_b32 s{sT3}, s{sT3}, 2
s_add_u32 s{sRB}, s{sRB}, s{sT3}
"""
if OPT["mapping"] == 84:
    a(m84)
elif OPT["mapping"] == 48:
    a(m48)
else:
    a(m48 + f"s_cmp_eq_u32 s{sBR}, {0 if OPT['mapping'] == 8448 else 1}\ns_cbranch_scc0 L_map" + m84 + "L_map:")
rot = ""
if OPT.get("rot") == 2:
    rot = f"""s_lshr_b32 s90, s2, 1
s_xor_b32 s90, s90, s2
s_and_b32 s90, s90, 1
s_mul_i32 s91, s90, {OPT.get("rotby", 5)*128}
s_mul_i32 s90, s90, {OPT.get("rotby", 5)*64*3456}"""
elif OPT.get("rot") == 3:
    rot = f"""s_lshr_b32 s90, s2, 1
s_xor_b32 s90, s90, s2
s_and_b32 s90, s90, 1
s_mul_i32 s90, s90, 5
s_add_u32 s91, s{sRB}, s{sHG}
s_and_b32 s91, s91, 3
s_add_u32 s90, s90, s91
s_lshl_b32 s91, s90, 7
s_mul_i32 s90, s90, {64*3456}"""
elif OPT.get("rot") == 7:
    rot = f"""s_and_b32 s90, s{sHG}, 3
s_and_b32 s91, s{sRB}, 7
s_lshl1_add_u32 s90, s90, s91
s_cmp_ge_u32 s90, 9
s_cselect_b32 s91, 9, 0
s_sub_u32 s90, s90, s91
s_lshl_b32 s91, s90, 7
s_mul_i32 s90, s90, {64*3456}"""
elif OPT.get("rot") in (4, 5, 6):
    tab = {4: 0x75207520, 5: 0x63006300, 6: 0x86427531}[OPT["rot"]]
    rot = f"""s_add_u32 s90, s{sRB}, s{sHG}
s_and_b32 s90, s90, 7
s_lshl_b32 s90, s90, 2
s_lshr_b32 s90, {hex(OPT.get("tab", tab))}, s90
s_and_b32 s90, s90, 15
s_lshl_b32 s91, s90, 7
s_mul_i32 s90, s90, {64*3456}"""
elif OPT.get("rot"):
    few, many = (sRB, sHG) if OPT["mapping"] == 48 else (sHG, sRB)
    rot = f"""s_and_b32 s90, s{few}, 3
s_lshl_b32 s90, s90, 2
s_lshr_b32 s90, 0x7520, s90
s_and_b32 s90, s90, 15
s_and_b32 s91, s{many}, 7
s_add_u32 s90, s90, s91
s_cmp_ge_u32 s90, 9
s_cselect_b32 s91, 9, 0
s_sub_u32 s90, s90, s91
s_lshl_b32 s91, s90, 7
s_mul_i32 s90, s90, {64*3456}"""
a(f"""
s_mov_b32 s{sG0}, 0xffff
s_mov_b32 s{sG0+1}, 0
s_mov_b32 s{sG01}, -1
s_mov_b32 s{sG01+1}, 0
s_and_b32 s{sV}, s{sWAVE}, 1
s_mul_i32 s{sM}, s{sHG}, 144
s_cmp_lt_u32 s{sWAVE}, 4
s_cbranch_scc1 L_cons
s_setprio {OPT.get("prio", 2)}
s_mov_b32 s59, 0
{rot}
s_cmp_lt_u32 s{sWAVE}, 6
s_cbranch_scc1 L_wld
s_cmp_eq_u32 s{sBR}, 0
s_cbranch_scc1 L_AX0
s_branch L_BX0
L_wld:
s_cmp_eq_u32 s{sBR}, 0
s_cbranch_scc1 L_AW0
s_branch L_BW0
L_cons:
s_getpc_b64 s[42:43]
L_pc:
s_lshl_b32 s{sT}, s{sT2}, 2
s_add_u32 s{sT}, s{sT}, s{sWAVE}
s_lshl_b32 s{sT}, s{sT}, 9
v_and_b32 v1, 3, v0
v_lshlrev_b32 v1, 7, v1
v_add_u32 v1, s{sT}, v1
v_min_u32 v1, {'L_last2' if OPT.get('ifetch') == 1 else 'L_last'}-L_pc, v1
{'global_load_dword v27, v1, s[42:43]' if not OPT.get('nopf') else ''}
s_cmp_eq_u32 s{sBR}, 0
s_cbranch_scc1 L_AC
s_branch L_BC
L_end:
s_endpgm
""")
w_head("A"); w_head("B"); x_head("A"); x_head("B")
n0 = nstamp[0]
for fn in (lambda: a_loader("W"), lambda: a_loader("X"), a_consumer, lambda: b_loader("W"), lambda: b_loader("X"), b_consumer, p2_consumer):
    nstamp[0] = n0
    fn()
a("s_endpgm" if OPT.get("ifetch", 0) > 1 else "L_last2:\ns_endpgm" if OPT.get("ifetch") else "L_last:\ns_endpgm")
lines = []
for l in a.lines: lines += l.split("\n")
if OPT.get("noread"):
    lines = [l for l in lines if not l.startswith("ds_read_b64_tr")]
if OPT.get("nomfma"):
    lines = [l for l in lines if not l.startswith("v_mfma")]
lines, added = hz.fix(lines)
out += "\n".join(lines) + "\n"
out += '.section .rodata,"a"\n.p2align 6\n' + kernel_desc(KN, 256, 102 if OPT.get('cyc') else 100, 256)
sys.stdout.write(out)
sys.stderr.write(f"nop states added: {added}\n")
```

```python
import sys, struct
from asmlib import *
import hz

OPT = dict(stamps=0, mapping=48, ahead=6, rot=4, nt=1)
for arg in sys.argv[1:]:
    k, v = arg.split("=")
    OPT[k] = int(v)
KN = "concat_heads__sliding_local_dilated__linear_attn_block__prompt_kernel"

def f32(x):
    return "0x%08x" % struct.unpack("<I", struct.pack("<f", x))[0]

LOG2E = 1.4426950408889634
CSC = 18 ** -0.5 * LOG2E
NEG = "0xf149f2ca"
EPS = f32(1e-6)
OOB = "0x80000000"

O_BR = 0x240000
WS_KV = 0x500000
KV_ST = 0x2000
WS_CNT = 0x540000
WS_STAMP = 0x600000
WS_SIZE = 0x700000

sWAVE, sHG, sRB, sBR, sT = 3, 4, 5, 6, 7
SX, SW, SWS, SDBG, SWO, SOUT = 8, 12, 16, 20, 24, 28
sG0, sG01 = 32, 34
sK, sV, sM, sT2, sT3 = 50, 51, 52, 53, 54
sST = 60

a = Asm()
nstamp = [0]

def stamp():
    if OPT["stamps"]:
        i = nstamp[0]; nstamp[0] += 1
        assert i < 15
        a(f"{'s_memrealtime' if OPT.get('rt') or OPT.get('probe') and not (OPT.get('cyc') and i) else 's_memtime'} s[{sST+2*i}:{sST+2*i+1}]")
        if OPT.get("cyc") and i == 0:
            a("s_memtime s[100:101]")

def stamps_out(last=-1):
    if not OPT["stamps"]:
        return
    if OPT.get("probe"):
        if last == OPT.get("pwave", 0):
            j = sST + 2 * OPT["probe"]
            if OPT.get("ifetch"):
                mode = OPT["ifetch"]
                a(f"""
s_waitcnt vmcnt(0) lgkmcnt(0)
s_cmp_eq_u32 s2, {OPT.get('wg', 0)}
s_cbranch_scc0 L_probe_x
s_cmp_eq_u32 s{sWAVE}, 0
s_cbranch_scc0 L_probe_x
s_sleep 127
s_sleep 127
s_getpc_b64 s[44:45]
L_if_pc:
s_add_u32 s44, s44, L_if_blk-L_if_pc
s_addc_u32 s45, s45, 0
v_lshlrev_b32 v1, 7, v0
v_min_u32 v1, 4096, v1
""")
                if mode == 2:
                    a("global_load_dword v2, v1, s[44:45]\ns_waitcnt vmcnt(0)")
                a(f"""
s_memtime s[100:101]
s_waitcnt lgkmcnt(0)
s_branch L_if_blk
L_last:
.fill {(0 if mode == 1 else 8192)}, 4, 0xbf800000
L_if_blk:
.rept 512
v_add3_u32 v5, v0, v0, v0
.endr
s_memtime s[{j}:{j+1}]
s_waitcnt lgkmcnt(0)
s_sub_u32 s{j}, s{j}, s100
s_lshl_b32 s{j}, s{j}, 3
s_add_u32 s{j}, s{j}, s100
""")
            if OPT.get("vrate"):
                isw = OPT["vrate"] == 1
                a(f"""
s_waitcnt vmcnt(0) lgkmcnt(0)
s_load_dwordx2 s[44:45], s[0:1], {8 if isw else 0}
s_sleep 127
s_sleep 127
s_waitcnt lgkmcnt(0)
s_mov_b32 s46, {1990656 if isw else 2359296}
s_mov_b32 s47, 0x20000
v_lshrrev_b32 v1, 3, v0
v_mul_u32_u24 v1, {3456 if isw else 2304}, v1
v_and_b32 v2, 7, v0
v_lshl_add_u32 v1, v2, 4, v1
s_mov_b32 m0, 0
""")
                for rep in range(2):
                    if rep:
                        a("s_memtime s[100:101]\ns_waitcnt lgkmcnt(0)")
                    a(f"s_mov_b32 s40, 0\nL_vr{rep}:")
                    for n in range(3):
                        a(f"buffer_load_dwordx4 v1, s[44:47], s40 offen offset:{n*1152 if isw else n*128} lds")
                    a(f"s_waitcnt vmcnt(24)\ns_add_u32 s40, s40, {8*3456 if isw else 8*2304}\ns_cmp_lt_u32 s40, {72*8*3456 if isw else 72*8*2304}\ns_cbranch_scc1 L_vr{rep}\ns_waitcnt vmcnt(0)")
                a(f"s_memtime s[{j}:{j+1}]\ns_waitcnt lgkmcnt(0)\ns_sub_u32 s{j}, s{j}, s100\ns_lshl_b32 s{j}, s{j}, 3\ns_add_u32 s{j}, s{j}, s100")
            if OPT.get("skew"):
                op = "max" if OPT["skew"] in (1, 3) else "min"
                a(f"""
s_waitcnt vmcnt(0) lgkmcnt(0)
v_lshlrev_b32 v1, {4 if OPT['skew'] < 3 else 5}, v0
{'v_and_b32 v1, 0x3e0, v1' if OPT['skew'] >= 3 else ''}
v_add_u32 v1, 0x6f0000, v1
buffer_load_dwordx4 v[4:7], v1, s[{SWS}:{SWS+3}], 0 offen sc1
s_waitcnt vmcnt(0)
v_subrev_u32 v4, s{sST}, v4
v_subrev_u32 v5, s{sST}, v5
v_subrev_u32 v6, s{sST}, v6
v_subrev_u32 v7, s{sST}, v7
""")
                if OPT["skew"] < 3:
                    a(f"v_{op}_i32 v4, v4, v5\nv_{op}_i32 v6, v6, v7\nv_{op}_i32 v4, v4, v6")
                a("s_mov_b32 s44, 0\ns_nop 4")
                for l in range(64):
                    a(f"v_readlane_b32 s45, v4, {l}\ns_nop 3\ns_{op}_i32 s44, s44, s45")
                a(f"s_abs_i32 s44, s44\ns_add_u32 s{j}, s{sST}, s44")
            if OPT.get("ptr"):
                a(f"s_waitcnt vmcnt(0) lgkmcnt(0)\ns_load_dword s44, s[0:1], {OPT['ptr'] - 8}\ns_waitcnt lgkmcnt(0)\ns_lshr_b32 s44, s44, {OPT.get('sh', 4)}\ns_and_b32 s44, s44, 0xff\ns_mul_i32 s44, s44, 10\ns_add_u32 s{j}, s{sST}, s44")
            if OPT.get("tlb"):
                a(f"""
s_waitcnt vmcnt(0) lgkmcnt(0)
s_cmp_eq_u32 s{sWAVE}, 0
s_cbranch_scc0 L_probe_x
s_load_dwordx2 s[44:45], s[0:1], {OPT['tlb'] - 8}
s_sleep 127
s_sleep 127
s_waitcnt lgkmcnt(0)
s_mov_b32 s46, 0x1e0000
s_mov_b32 s47, 0x20000
v_lshlrev_b32 v1, {OPT.get('sh', 12)}, v0
""")
                for rep in range(2):
                    if rep:
                        a("s_memtime s[100:101]\ns_waitcnt lgkmcnt(0)")
                    a(f"s_mov_b32 s40, 0\nL_vr{rep}:")
                    for n in range(4):
                        a(f"s_add_u32 s41, s40, {n << (OPT.get('sh', 12) + 6)}\nbuffer_load_dword v{4+n}, v1, s[44:47], s41 offen")
                    st = 128 if OPT.get('sh', 12) > 7 else 32768
                    a(f"s_waitcnt vmcnt(4)\ns_add_u32 s40, s40, {st}\ns_cmp_lt_u32 s40, {16*st}\ns_cbranch_scc1 L_vr{rep}\ns_waitcnt vmcnt(0)")
                a(f"s_memtime s[{j}:{j+1}]\ns_waitcnt lgkmcnt(0)\ns_sub_u32 s{j}, s{j}, s100\ns_lshl_b32 s{j}, s{j}, 2\ns_add_u32 s{j}, s{j}, s100")
            if OPT.get("lat"):
                a(f"""
s_waitcnt vmcnt(0) lgkmcnt(0)
s_load_dwordx2 s[44:45], s[0:1], {OPT['lat'] - 8}
s_sleep 127
s_sleep 127
s_sleep 127
s_waitcnt lgkmcnt(0)
s_mov_b32 s46, 0x100000
s_mov_b32 s47, 0x20000
v_mov_b32 v1, 0x20000
buffer_load_dword v2, v1, s[44:47], 0 offen {'sc1' if OPT.get('first') != 2 else ''}
s_waitcnt vmcnt(0)
v_mov_b32 v1, {'0x20000' if not OPT.get('first') else '0x20040'}
s_memtime s[100:101]
s_waitcnt lgkmcnt(0)
buffer_load_dword v2, v1, s[44:47], 0 offen sc1
s_waitcnt vmcnt(0)
s_memtime s[{j}:{j+1}]
s_waitcnt lgkmcnt(0)
s_sub_u32 s{j}, s{j}, s100
s_lshl_b32 s{j}, s{j}, 5
s_add_u32 s{j}, s{j}, s100
""")
            if OPT.get("xcc"):
                a(f"""
s_waitcnt vmcnt(0) lgkmcnt(0)
v_and_b32 v1, 31, v0
v_lshlrev_b32 v1, {5 if OPT['xcc'] == 1 else 2}, v1
v_add_u32 v1, 0x6f0000, v1
buffer_load_dword v2, v1, s[{SWS}:{SWS+3}], 0 offen sc1
s_getreg_b32 s44, hwreg(HW_REG_XCC_ID, 0, 4)
s_waitcnt vmcnt(0)
v_cmp_eq_u32 vcc, s44, v2
s_bcnt1_i32_b32 s44, vcc_lo
s_mul_i32 s44, s44, 10
s_add_u32 s{j}, s{sST}, s44
""")
            a(f"""
s_waitcnt vmcnt(0) lgkmcnt(0)
s_cmp_eq_u32 s2, {OPT.get('wg', 0)}
s_cbranch_scc0 L_probe_x
s_cmp_eq_u32 s{sWAVE}, {last}
s_cbranch_scc0 L_probe_x
s_sub_u32 s{sT}, s{j}, s{100 if OPT.get('cyc') else sST}
{'s_lshr_b32 s7, s7, 3' if OPT.get('cyc') else 's_mul_i32 s7, s7, 10'}
s_min_u32 s{sT}, s{sT}, 100000
s_add_u32 s{sT}, s{sT}, 6000
L_probe:
s_memrealtime s[44:45]
s_waitcnt lgkmcnt(0)
s_sub_u32 s44, s44, s{sST}
s_cmp_lt_u32 s44, s{sT}
s_cbranch_scc1 L_probe
L_probe_x:
""")
        return
    a("s_waitcnt vmcnt(0) lgkmcnt(0)")
    a(f"s_lshl_b32 s{sT}, s2, 3\ns_add_u32 s{sT}, s{sT}, s{sWAVE}\ns_lshl_b32 s{sT}, s{sT}, 6")
    a(f"s_add_u32 s{sT}, s{sT}, {WS_STAMP}\nv_mov_b32 v1, s{sT}")
    for i in range(16):
        a(f"v_mov_b32 v2, s{sST+2*i}")
        a(f"buffer_store_dword v2, v1, s[{SWS}:{SWS+3}], 0 offen offset:{4*i}")
    a("s_waitcnt vmcnt(0)")

def mf(d, s0, s1, c):
    cc = c if isinstance(c, str) else vr(c, 4)
    return f"v_mfma_f32_16x16x32_bf16 {vr(d,4)}, {vr(s0,4)}, {vr(s1,4)}, {cc}"
def cv(d, x):
    return f"v_cvt_pk_bf16_f32 v{d}, v{x}, v{x+1}"
def tr(d, addr, off):
    return f"ds_read_b64_tr_b16 {vr(d,2)}, v{addr} offset:{off}"
def weave(mfmas, others, per=2):
    o = list(others)
    for m in mfmas:
        a(m)
        for _ in range(per):
            if o: a(o.pop(0))
    for x in o: a(x)

def srd(dst, lo, nbytes):
    a(f"s_mov_b32 s{dst}, s{lo}\ns_mov_b32 s{dst+1}, s{lo+1}\ns_mov_b32 s{dst+2}, {nbytes}\ns_mov_b32 s{dst+3}, 0x20000")
def srds_rest():
    srd(SWO, 40, 663552); srd(SOUT, 44, 4718592); srd(SDBG, 46, 256); srd(SWS, 48, WS_SIZE)

class M0:
    def __init__(self, base): self.base = base; self.cur = None
    def set(self, imm):
        if self.cur is not None and -32768 <= imm - self.cur <= 32767:
            a(f"s_addk_i32 m0, {imm - self.cur}")
        else:
            a(f"s_add_u32 m0, s{self.base}, {imm}")
        self.cur = imm

CUR = [0]
def dma(voff, srd_, soff, half=False):
    if OPT.get("nodma") or (OPT.get("nos") and voff == VD + 6 and srd_ == SW and not half):
        return
    if half: a(f"s_mov_b64 exec, s[{sG01}:{sG01+1}]")
    nt = " nt" if OPT.get("nt", 0) >> {SX: 0, SW: 1, SWO: 2}[srd_] & 1 and CUR[0] < OPT.get("ntc", 99) else ""
    a(f"buffer_load_dwordx4 v{voff}, s[{srd_}:{srd_+3}], {soff} offen{nt} lds")
    if half: a("s_mov_b64 exec, -1")

def rd_lanes(r8, r2, t0, t1):
    a(f"""
v_lshrrev_b32 v{t0}, 5, v0
v_lshlrev_b32 v{t0}, 4, v{t0}
v_bfe_u32 v{t1}, v0, 4, 1
v_lshl_add_u32 v{t0}, v{t1}, 2, v{t0}
v_bfe_u32 v{t1}, v0, 2, 2
v_add_u32 v{t0}, v{t0}, v{t1}
v_and_b32 v{t1}, 3, v0
v_lshlrev_b32 v{t1}, 3, v{t1}
v_lshl_add_u32 v{r2}, v{t0}, 5, v{t1}
v_lshl_add_u32 v{r8}, v{t0}, 7, v{t1}
v_bfe_u32 v{t0}, v{t0}, 1, 2
v_lshl_add_u32 v{r8}, v{t0}, 5, v{r8}
""")
    for t in (1, 2, 3):
        a(f"v_xor_b32 v{r8+t}, {32*t}, v{r8}")

def x_lane(d0, d1, tmp):
    a(f"""
v_lshrrev_b32 v{d0}, 4, v0
v_bfe_u32 v{tmp}, v0, 1, 3
v_xor_b32 v{d0}, v{d0}, v{tmp}
v_and_b32 v{tmp}, 15, v0
v_lshlrev_b32 v{tmp}, 7, v{tmp}
v_lshl_add_u32 v{d0}, v{d0}, 4, v{tmp}
v_xor_b32 v{d1}, 64, v{d0}
""")

def col8(dst, tmp):
    a(f"v_bfe_u32 v{tmp}, v0, 4, 2\nv_lshlrev_b32 v{tmp}, 1, v{tmp}\nv_and_b32 v{dst}, 7, v0\nv_xor_b32 v{dst}, v{dst}, v{tmp}\nv_lshlrev_b32 v{dst}, 4, v{dst}")

def head_of(dst, src):
    a(f"v_mul_u32_u24 v{dst}, 57, v{src}\nv_lshrrev_b32 v{dst}, 10, v{dst}")

sOC, sKC, sFO, sFK = 92, 94, 96, 97

def arrive_wait(addr, target, label, arrive=True):
    if arrive:
        a(f"s_mov_b32 s{sT}, 1\ns_atomic_add s{sT}, s[{addr}:{addr+1}], 0 glc\ns_waitcnt lgkmcnt(0)\ns_cmp_ge_u32 s{sT}, {target-1}\ns_cbranch_scc1 {label}_x")
    a(f"""
s_mov_b32 s{sT3}, 0x20000
{label}:
s_mov_b32 s{sT}, 0
s_atomic_add s{sT}, s[{addr}:{addr+1}], 0 glc
s_waitcnt lgkmcnt(0)
s_sub_u32 s{sT3}, s{sT3}, 1
s_cbranch_scc1 {label}_x
s_cmp_ge_u32 s{sT}, {target}
s_cbranch_scc0 {label}
{label}_x:
""")

def flag_load(dst, offreg):
    a(f"s_load_dword s{dst}, s[{SDBG}:{SDBG+1}], s{offreg}")

def flag_check(val, offreg, label):
    a(f"""
s_mov_b32 s{sT3}, 0x20000
{label}:
s_waitcnt lgkmcnt(0)
s_cmp_lg_u32 s{val}, 0
s_cbranch_scc1 {label}_x
s_sub_u32 s{sT3}, s{sT3}, 1
s_cbranch_scc1 {label}_x
s_load_dword s{val}, s[{SDBG}:{SDBG+1}], s{offreg} glc
s_branch {label}
{label}_x:
""")

A_WSLOT, A_XSLOT = 14336, 18432
A_X0 = 5 * A_WSLOT
A_EX = A_X0 + 3 * A_XSLOT
B_KVSLOT, B_XSLOT = 9216, 16384
B_X0 = 5 * B_KVSLOT
B_EX = B_X0 + 3 * B_XSLOT
B_KVOP = 126976
B_STG = 136192
B_DUMP, B_LCNT = B_STG + 5632, B_STG + 6144
B_WQ0 = 143360
QORD = list(range(18))
def wq_slot(p):
    if p < 4: return B_WQ0 + 5120 * p
    if p < 7: return 5120 * (p - 4)
    if p < 13: return 40960 + 5120 * (p - 7)
    return 15360 + 5120 * (p - 13)
R1, R2 = 147456, 43008
WO = [R1, R1 + 5120, R1 + 10240] + [R2 + 5120 * n for n in range(6, 12)] + [0, 5120, 10240] + [R2 + 5120 * n for n in range(6)]
P_TR = 108544
SPLITS = {(1, 0): sG0, (2, 0): sG0, (2, 1): sG0, (3, 0): sG01, (3, 1): sG0}

VD = 16
VWO = 26
vCNT, vFLO, vFLK, vFO, vFK = 30, 31, 32, 33, 34

def w_head(kind):
    parts = (0, 1152, 2304) if kind == "A" else (1152, 2304)
    a(f"L_{kind}W0:")
    col8(VD, 1)
    a(f"""
v_bfe_u32 v1, v0, 5, 1
v_bfe_u32 v2, v0, 3, 2
v_lshl_add_u32 v1, v1, 3, v2
s_mul_i32 s{sT}, s{sV}, {16*3456}
s_add_u32 s{sT}, s{sT}, s{sM}
v_mul_u32_u24 v1, 3456, v1
v_add3_u32 v{VD}, v{VD}, v1, s{sT}
""")
    n = 2 * len(parts)
    for j in range(n - 1, -1, -1):
        off = parts[j // 2] + (j % 2) * 4 * 3456
        if off:
            a(f"v_add_u32 v{VD+j}, {off}, v{VD}")
    a(f"""
v_bfe_u32 v1, v0, 3, 1
v_bfe_u32 v2, v0, 4, 1
v_sub_u32 v1, v1, v2
v_lshrrev_b32 v2, 1, v0
v_lshl_add_u32 v1, v1, 2, v2
v_mul_u32_u24 v1, 3456, v1
v_and_b32 v2, 1, v0
""")
    if kind == "A":
        a(f"""
s_cmp_eq_u32 s{sV}, 0
s_cselect_b32 s{sT2}, 1152, 0
s_cselect_b32 s{sT}, 0, 2304
s_add_u32 s{sT}, s{sT}, s{sM}
s_addk_i32 s{sT}, 128
v_mad_u32_u24 v1, v2, s{sT2}, v1
v_add_u32 v{VD+6}, s{sT}, v1
""")
    else:
        a(f"""
s_add_u32 s{sT}, s{sT}, 128
v_add_u32 v{VD+7}, s{sT}, v1
v_mul_u32_u24 v2, 1152, v2
v_add_u32 v2, 1152, v2
v_add_u32 v{VD+4}, v2, v{VD+7}
""")
    a(f"s_lshl_b32 s42, s{sV}, 11\ns_lshl_b32 s43, s{sV}, {10 if kind == 'A' else 9}\ns_sub_u32 s43, s43, s42")
    a("s_waitcnt lgkmcnt(0)")
    srd(SW, 38, 1990656)
    m = M0(42)
    w_issue(kind, 0, m)
    a(f"s_branch L_{kind}W1")

def w_issue(kind, c, m):
    CUR[0] = c
    slot = (c % 5) * (A_WSLOT if kind == "A" else B_KVSLOT)
    n = 6 if kind == "A" else 4
    so = f"s{sK}" if c else "0"
    if OPT.get("rot"):
        so = "s90"
        if c:
            a(f"s_add_u32 s90, s90, {32*3456}\ns_cmp_eq_u32 s90, {18*32*3456}\ns_cselect_b32 s90, 0, s90")
    elif c:
        a(f"s_mov_b32 s{sK}, {c*32*3456}")
    for j in range(n):
        m.set(slot + 4096 * (j // 2) + 1024 * (j % 2))
        dma(VD + j, SW, so)
        if OPT.get("lp") == 10 + j and c == OPT.get("lpi", 6) + 4 and kind == "A":
            stamp()
            j_ = sST + 2*(nstamp[0]-1)
            a(f"s_waitcnt lgkmcnt(0)\ns_sub_u32 s{j_}, s{j_}, s100\ns_lshl_b32 s{j_}, s{j_}, 4\ns_add_u32 s{j_}, s{j_}, s100")
    m.set(slot + 4096 * (n // 2))
    a("s_add_u32 m0, m0, s43")
    m.cur = None
    dma(VD + n, SW, so, half=(kind == "B"))
    return n + 1

def wq_issue(p, m):
    if OPT.get("rot"):
        a(f"s_add_u32 s{sK}, s90, {(p+1)*32*3456}\ns_cmp_ge_u32 s{sK}, {18*32*3456}\ns_cselect_b32 s{sT}, {18*32*3456}, 0\ns_sub_u32 s{sK}, s{sK}, s{sT}")
    else:
        a(f"s_mov_b32 s{sK}, {QORD[p]*32*3456}")
    for j in range(2):
        m.set(wq_slot(p) + 1024 * j)
        dma(VD + 5 + j, SW, f"s{sK}")
    m.set(wq_slot(p) + 4096)
    a("s_add_u32 m0, m0, s43")
    m.cur = None
    dma(VD + 7, SW, f"s{sK}", half=True)
    return 3

def x_head(kind):
    nq = 9 if kind == "A" else 8
    a(f"L_{kind}X0:")
    a(f"""
v_lshrrev_b32 v1, 3, v0
v_mul_u32_u24 v1, {2304 if kind == 'A' else 1152}, v1
v_lshrrev_b32 v2, 4, v0
v_lshl_add_u32 v2, s{sV}, 2, v2
v_and_b32 v3, 7, v0
v_xor_b32 v2, v2, v3
v_lshl_add_u32 v1, v2, 4, v1
s_mul_i32 s{sT}, s{sRB}, {128*1152}
""")
    if kind == "A":
        a(f"""
s_mul_i32 s{sT2}, s{sV}, {16*1152}
s_add_u32 s{sT3}, s{sT}, s{sT2}
v_add_u32 v{VD}, s{sT3}, v1
s_sub_u32 s{sT3}, s{sT}, s{sT2}
s_add_u32 s{sT3}, s{sT3}, {17*1152}
v_add_u32 v{VD+4}, s{sT3}, v1
s_mul_i32 s{sT2}, s{sV}, 1152
s_sub_u32 s{sT3}, s{sT}, s{sT2}
s_sub_u32 s{sT3}, s{sT3}, {15*1152}
v_add_u32 v{VD+8}, s{sT3}, v1
""")
        for q in (1, 2, 3):
            a(f"v_add_u32 v{VD+q}, {32*1152*q}, v{VD}\nv_add_u32 v{VD+4+q}, {32*1152*q}, v{VD+4}")
    else:
        a(f"s_mul_i32 s{sT2}, s{sV}, {8*1152}\ns_add_u32 s{sT}, s{sT}, s{sT2}\nv_add_u32 v{VD}, s{sT}, v1")
        for q in range(1, 8):
            a(f"v_add_u32 v{VD+q}, {16*1152*q}, v{VD}")
    a(f"s_lshl_b32 s42, s{sV}, 10")
    a("s_waitcnt lgkmcnt(0)")
    srd(SX, 36, 2359296)
    x_issue(kind, 0, M0(42))
    a(f"s_branch L_{kind}X1")

def x_issue(kind, c, m):
    CUR[0] = c + (c & 1)
    nq, h, x0, xs = (9, 5, A_X0, A_XSLOT) if kind == "A" else (8, 4, B_X0, B_XSLOT)
    st = (c + 1) // 2
    if st > 8:
        return 0
    qs = range(nq) if c == 0 else (range(h) if c % 2 else range(h, nq))
    so = f"s{sK}" if st else "0"
    if OPT.get("rot"):
        so = "s91"
        if c % 2:
            a("s_addk_i32 s91, 128\ns_cmpk_eq_u32 s91, 1152\ns_cselect_b32 s91, 0, s91")
    elif st:
        a(f"s_movk_i32 s{sK}, {st*128}")
    for q in qs:
        m.set(x0 + (st % 3) * xs + 2048 * q)
        a("s_nop 0")
        dma(VD + q, SX, so)
    return len(qs)

def wo_setup(quad):
    col8(VWO, 1)
    a(f"""
s_mul_i32 s{sM}, s{sHG}, 144
v_add_u32 v{VWO}, s{sM}, v{VWO}
v_bfe_u32 v1, v0, 5, 1
v_bfe_u32 v2, v0, 3, 2
v_mul_u32_u24 v1, 72, v1
v_add_u32 v1, v1, v2
v_mul_u32_u24 v1, 1152, v1
v_add_u32 v{VWO+1}, v1, v{VWO}
v_lshrrev_b32 v1, 3, v0
v_mul_u32_u24 v1, 1152, v1
v_add_u32 v{VWO}, v1, v{VWO}
v_bfe_u32 v1, v0, 1, 2
v_bfe_u32 v2, v0, 3, 1
v_bfe_u32 v3, v0, 4, 1
v_bfe_u32 v4, v0, 5, 1
v_lshl_add_u32 v5, v2, 2, v1
v_lshl_add_u32 v5, v3, 4, v5
v_lshl_add_u32 v5, v4, 3, v5
v_mul_u32_u24 v5, 1152, v5
s_add_u32 s{sM}, s{sM}, 128
v_add_u32 v{VWO+2}, s{sM}, v5
v_lshl_add_u32 v5, v3, 2, v1
v_lshl_add_u32 v2, v4, 1, v2
v_mul_u32_u24 v2, 72, v2
v_add_u32 v5, v5, v2
v_mul_u32_u24 v5, 1152, v5
v_add_u32 v{VWO+3}, s{sM}, v5
s_and_b32 s55, s{sWAVE}, 3
s_lshl_b32 s57, s55, 3
""")
    rho(56)
    a(f"s_add_u32 s56, s56, s{55 if quad else sV}")

def rho(dst):
    few, many = (sRB, sHG) if OPT["mapping"] == 48 else (sHG, sRB)
    if OPT["mapping"] > 99:
        a(f"s_cmp_eq_u32 s{sBR}, {0 if OPT['mapping'] == 8448 else 1}\ns_cselect_b32 s{sT}, s{sHG}, s{sRB}\ns_cselect_b32 s{sT2}, s{sRB}, s{sHG}")
        few, many = sT, sT2
    a(f"s_lshl_b32 s{dst}, s{few}, 1\ns_add_u32 s{dst}, s{dst}, s{many}\ns_lshl_b32 s{dst}, s{dst}, 1")
    if not OPT.get("worot", 1):
        a(f"s_mov_b32 s{dst}, 0")

def wo_chunk(left, fadd):
    if left:
        a(f"s_mul_i32 s{sK}, s{sV}, {288*1152}\ns_add_u32 s{sK}, s{sK}, {64*1152}")
        steps = (4, 140, 4); v8, v2 = VWO + 1, VWO + 3
    else:
        a(f"""
s_add_u32 s{sT}, s56, {fadd}
s_bfe_u32 s{sK}, s{sT}, 0x30001
s_mul_i32 s{sK}, s{sK}, {72*1152}
s_bitcmp1_b32 s{sT}, 0
s_cselect_b32 s{sT}, {32*1152}, 0
s_add_u32 s{sK}, s{sK}, s{sT}
""")
        steps = (16, -8, 16); v8, v2 = VWO, VWO + 2
    a(f"s_mov_b32 s{sT2}, s{sK}")
    for j in range(4):
        dma(v8, SWO, f"s{sK}")
        a("s_addk_i32 m0, 1024")
        a(f"s_add_u32 s{sK}, s{sK}, {steps[j]*1152 & 0xffffffff}" if j < 3 else "s_nop 0")
    dma(v2, SWO, f"s{sT2}")
    return 5

def wo_issue(q):
    packed = sum((WO[2 + 4*q + w] // 1024) << (8 * w) for w in range(4))
    a(f"s_lshr_b32 s{sT}, {packed}, s57\ns_and_b32 s{sT}, s{sT}, 0xff\ns_lshl_b32 m0, s{sT}, 10")
    return wo_chunk(False, 4*q)

def wo_pair(g):
    a(f"s_mul_i32 s{sT}, s{sV}, {WO[2*g+1] - WO[2*g] & 0xffffffff}\ns_add_u32 m0, s{sT}, {WO[2*g]}")
    return wo_chunk(g == 0, 2*g - 2)

def sync_setup():
    a(f"""
s_lshl_b32 s{sT}, s{sBR}, 4
s_add_u32 s{sT}, s{sT}, s{sRB}
s_lshl_b32 s{sT2}, s{sT}, 8
s_add_u32 s{sT2}, s{sT2}, {WS_CNT}
s_add_u32 s{sOC}, s{SWS}, s{sT2}
s_addc_u32 s{sOC+1}, s{SWS+1}, 0
s_lshl_b32 s{sT}, s{sT}, 2
s_add_u32 s98, s{sT}, 32
s_lshl_b32 s99, s{sHG}, 2
s_mul_i32 s{sT2}, s{sHG}, {KV_ST}
s_add_u32 s{sT2}, s{sT2}, {WS_KV + 6144}
s_add_u32 s{sKC}, s{SWS}, s{sT2}
s_addc_u32 s{sKC+1}, s{SWS+1}, 0
""")

def loader_tail(tag, late=()):
    if tag[1] == "X":
        flag_check(sFO, 98, f"L_{tag}_fo")
    a("s_barrier")
    stamp()
    for g in late:
        wo_pair(g)
    if tag[1] == "X":
        a(f"s_cmp_eq_u32 s{sWAVE}, 6\ns_cbranch_scc0 L_{tag}_oc_x")
        arrive_wait(sOC, 8, f"L_{tag}_oc")
    a("s_waitcnt vmcnt(0)")
    stamp()
    a("s_barrier")
    stamps_out({"AW": 4, "AX": 6}.get(tag, -1))
    a("s_endpgm")

def a_loader(kind):
    a(f"L_A{kind}1:")
    m = M0(42)
    issue = (lambda c: w_issue("A", c, m)) if kind == "W" else (lambda c: x_issue("A", c, m))
    if OPT.get("prepass"):
        a("s_mov_b32 s58, s90\ns_mov_b32 s59, s91")
        n_ = {}
        for c in range(1, 18):
            if OPT["prepass"] == 2:
                a("s_mov_b32 s90, s58\ns_mov_b32 s91, s59")
            n_[c] = issue(c)
            a(f"s_waitcnt vmcnt({n_[c] + n_.get(c-1, 0)})")
            if c in (4, 9):
                stamp()
        a("s_waitcnt vmcnt(0)")
        stamp()
        a("s_barrier\ns_mov_b32 s90, s58\ns_mov_b32 s91, s59")
        m.cur = None
        issue(0)
    pre = 1 if OPT.get("early") and kind == "W" else 2
    cnt = {c: issue(c) for c in range(1, pre + 1)}
    stamp()
    x_lane(8, 9, 1)
    rd_lanes(36, 12, 1, 2)
    a(f"""
v_add_u32 v8, {A_X0 + 8*2048}, v8
v_add_u32 v9, {A_X0 + 8*2048}, v9
s_lshl_b32 s{sT}, s{sV}, 6
v_xor_b32 v10, s{sT}, v36
v_add_u32 v10, {4096 if kind == 'W' else 8192}, v10
v_xor_b32 v11, 32, v10
v_add_u32 v12, {12288 if kind == 'W' else 13312}, v12
v_add_u32 v13, {4*A_WSLOT}, v10
v_add_u32 v14, {4*A_WSLOT}, v11
v_add_u32 v15, {4*A_WSLOT}, v12
s_lshl_b32 s{sT}, s{sV}, 10
s_add_u32 s{sT}, s{sT}, {A_EX + (0 if kind == 'W' else 2560)}
v_lshlrev_b32 v7, 3, v0
v_add_u32 v6, s{sT}, v7
v_add_u32 v7, {A_EX + (2048 if kind == 'W' else 4608)}, v7
""")
    stamp()
    a(f"s_waitcnt vmcnt({sum(cnt.values())})\ns_barrier")
    stamp()
    extra = 0
    for i in range(-1, 17):
        ks = i + 1
        slot = ks % 5
        off = 0 if slot == 4 else slot * A_WSLOT
        ad = (13, 14, 15) if slot == 4 else (10, 11, 12)
        def lp(n):
            if OPT.get("lp") == n and i == OPT.get("lpi", 6):
                stamp()
                j_ = sST + 2*(nstamp[0]-1)
                a(f"s_waitcnt lgkmcnt(0)\ns_sub_u32 s{j_}, s{j_}, s100\ns_lshl_b32 s{j_}, s{j_}, 4\ns_add_u32 s{j_}, s{j_}, s100")
        if OPT.get("lp") and i == OPT.get("lpi", 6):
            a("s_memtime s[100:101]")
            if OPT["lp"] == 5:
                a(".rept 128\ns_mov_b32 s39, 0x12345\n.endr")
                lp(5)
        a(f"ds_read_b128 v[40:43], v{8 + ks % 2} offset:{(ks//2 % 3)*A_XSLOT}")
        for j in range(3 if OPT.get("nohalo", 0) < 2 else 0):
            a(tr(44 + 4*j, ad[j], off)); a(tr(46 + 4*j, ad[j], off + (1024 if j < 2 else 256)))
        if i == -1 and pre == 1:
            cnt[2] = issue(2)
        if i + 4 <= 17:
            cnt[i+4] = issue(i + 4)
        lp(1)
        a("s_waitcnt lgkmcnt(0)")
        for j in range(3 if not OPT.get("nohalo") else 0):
            c = 60 + 4*j if ks else "0"
            a(mf(60 + 4*j, 44 + 4*j, 40, c) if kind == "W" else mf(60 + 4*j, 40, 44 + 4*j, c))
        if i == 1:
            srds_rest(); sync_setup()
        if i == 2:
            wo_setup(True)
        if i == 14 and kind == "W":
            extra += wo_pair(0)
        if i == 15:
            extra += wo_issue(0)
        if i + 1 <= 16:
            left = sum(cnt.get(c, 0) for c in range(i + 3, min(i + 4, 17) + 1)) + extra
            lp(2)
            a(f"s_waitcnt vmcnt({left})")
            lp(3)
            a("s_barrier")
            lp(4)
            if OPT.get("fine") and kind == "W" and i % 2 == 1 and 0 < i < 14:
                stamp()
    for j in range(3):
        a(cv(44 + 2*j, 60 + 4*j)); a(cv(45 + 2*j, 62 + 4*j))
    if kind == "W":
        a("v_mov_b32 v50, 0\nv_mov_b32 v51, 0")
        a("v_permlane32_swap_b32 v48, v50\nv_permlane32_swap_b32 v49, v51")
    a("ds_write_b64 v6, v[44:45]\nds_write_b64 v6, v[46:47] offset:512")
    a(f"ds_write_b64 v7, {'v[50:51]' if kind == 'W' else 'v[48:49]'}")
    stamp()
    a("s_waitcnt lgkmcnt(0)\ns_barrier")
    if kind == "X":
        flag_load(sFO, 98)
    wo_issue(1); wo_issue(2); wo_issue(3)
    stamp()
    loader_tail("A" + kind)

def o_store_addr(vfull, vleft, tmp, left_lo):
    a(f"""
s_lshl_b32 s{sT}, s{sRB}, 3
s_lshl_b32 s{sT2}, s{sWAVE}, 1
s_add_u32 s{sT}, s{sT}, s{sT2}
s_mul_i32 s{sT}, s{sT}, 18432
s_mul_i32 s{sT2}, s{sBR}, {O_BR}
s_add_u32 s58, s{sT}, s{sT2}
s_lshl_b32 s{sT2}, s{sHG}, 11
s_add_u32 s{sT2}, s{sT2}, s58
v_lshl_add_u32 v{vfull}, v0, 4, s{sT2}
s_lshr_b32 s{sT2}, s{sHG}, 2
s_add_u32 s{sT2}, s{sT2}, 16
s_lshl_b32 s{sT2}, s{sT2}, 10
s_add_u32 s{sT}, s58, s{sT2}
s_and_b32 s{sT2}, s{sHG}, 3
s_lshl_b32 s{sT2}, s{sT2}, 8
s_add_u32 s{sT}, s{sT}, s{sT2}
v_and_b32 v{vleft}, 15, v0
v_lshlrev_b32 v{vleft}, 4, v{vleft}
v_bfe_u32 v{tmp}, v0, 4, 1
v_lshl_add_u32 v{vleft}, v{tmp}, 3, v{vleft}
v_add_u32 v{vleft}, s{sT}, v{vleft}
v_mov_b32 v{tmp}, {OOB}
""")
    x, y = (tmp, vleft) if left_lo else (vleft, tmp)
    a(f"v_cndmask_b32 v{vleft}, v{x}, v{y}, s[{sG01}:{sG01+1}]")

def o_store(of, vfull, vleft, rt):
    so = f"s{sK}" if rt else "0"
    if rt:
        a(f"s_movk_i32 s{sK}, 18432")
    a(f"buffer_store_dwordx4 {vr(of,4)}, v{vfull}, s[{SWS}:{SWS+3}], {so} offen sc1")
    a(f"buffer_store_dwordx4 {vr(of+4,4)}, v{vfull}, s[{SWS}:{SWS+3}], {so} offen offset:1024 sc1")
    a(f"buffer_store_dwordx2 {vr(of+8,2)}, v{vleft}, s[{SWS}:{SWS+3}], {so} offen sc1")

def gap_touch(tag, parts):
    if not OPT.get("touch"):
        return
    nt = " nt" if OPT.get("tnt") else ""
    a(f"""
s_cmp_eq_u32 s{sWAVE}, 1
s_cbranch_scc1 L_{tag}_tw
s_cmp_eq_u32 s{sWAVE}, 2
s_cbranch_scc0 L_{tag}_tx
s_and_b32 s{sT}, s{sRB}, 7
s_cmp_eq_u32 s{sT}, 0
s_cselect_b32 s{sT}, 9, s{sT}
s_sub_u32 s{sT}, s{sT}, 1
s_lshl_b32 s{sT}, s{sT}, 7
s_and_b32 s{sT2}, s{sHG}, 3
s_lshl_b32 s{sT2}, s{sT2}, 5
s_lshl_b32 s{sT3}, s{sRB}, 7
s_add_u32 s{sT2}, s{sT2}, s{sT3}
v_and_b32 v1, 31, v0
v_add_u32 v1, s{sT2}, v1
v_mul_u32_u24 v1, 1152, v1
""")
    srd(SX, 36, 2359296)
    a(f"""
buffer_load_dword v26, v1, s[{SX}:{SX+3}], s{sT} offen{nt}
s_branch L_{tag}_tx
L_{tag}_tw:
s_and_b32 s{sT}, s{sHG}, 3
s_lshl_b32 s{sT}, s{sT}, 1
s_cmp_eq_u32 s{sT}, 0
s_cselect_b32 s{sT}, 9, s{sT}
s_sub_u32 s{sT}, s{sT}, 1
s_lshl_b32 s{sT}, s{sT}, 3
s_and_b32 s{sT2}, s{sRB}, 7
s_add_u32 s{sT}, s{sT}, s{sT2}
s_mul_i32 s{sT}, s{sT}, {8*3456}
s_add_u32 s{sT}, s{sT}, s{sM}
v_lshrrev_b32 v1, 3, v0
v_mul_u32_u24 v1, 3456, v1
v_bfe_u32 v2, v0, 1, 2
v_min_u32 v2, {parts-1}, v2
v_mul_u32_u24 v2, 1152, v2
v_and_b32 v3, 1, v0
v_mul_u32_u24 v3, 140, v3
v_add3_u32 v1, v1, v2, v3
""")
    srd(SW, 38, 1990656)
    a(f"buffer_load_dword v26, v1, s[{SW}:{SW+3}], s{sT} offen offset:{1152*(3-parts)}{nt}\nL_{tag}_tx:")

def init_stores(tag, with_kv):
    if OPT.get("skew"):
        a(f"v_mov_b32 v2, s{sST}\ns_lshl_b32 s{sT}, s2, 2\ns_add_u32 s{sT}, s{sT}, 0x6f0000\nv_mov_b32 v1, s{sT}\nbuffer_store_dword v2, v1, s[{SWS}:{SWS+3}], 0 offen sc1")
    if OPT.get("xcc"):
        a(f"s_getreg_b32 s{sT}, hwreg(HW_REG_XCC_ID, 0, 4)\nv_mov_b32 v2, s{sT}\ns_lshl_b32 s{sT}, s2, 2\ns_add_u32 s{sT}, s{sT}, 0x6f0000\nv_mov_b32 v1, s{sT}\nbuffer_store_dword v2, v1, s[{SWS}:{SWS+3}], 0 offen sc1")
    a(f"""
s_or_b32 s{sT}, s{sHG}, s{sWAVE}
s_cmp_eq_u32 s{sT}, 0
s_cselect_b32 s55, 1, 0
v_mov_b32 v20, 0
v_mov_b32 v21, 0
v_mov_b32 v22, 0
v_mov_b32 v23, 0
s_cbranch_scc0 L_{tag}_i1
s_lshl_b32 s{sT}, s{sBR}, 4
s_add_u32 s{sT}, s{sT}, s{sRB}
s_lshl_b32 s{sT}, s{sT}, 8
s_add_u32 s{sT}, s{sT}, {WS_CNT}
v_mov_b32 v24, s{sT}
buffer_store_dword v20, v24, s[{SWS}:{SWS+3}], 0 offen sc1
L_{tag}_i1:
""")
    if with_kv:
        a(f"""
s_or_b32 s{sT}, s{sRB}, s{sWAVE}
s_cmp_eq_u32 s{sT}, 0
s_cbranch_scc0 L_{tag}_i2
s_or_b32 s55, s55, 2
s_mul_i32 s{sT}, s{sHG}, {KV_ST}
s_add_u32 s{sT}, s{sT}, {WS_KV}
v_lshl_add_u32 v24, v0, 4, s{sT}
""")
        for j in range(7):
            a(f"s_movk_i32 s{sK}, {1024*j}\nbuffer_store_dwordx4 v[20:23], v24, s[{SWS}:{SWS+3}], s{sK} offen sc1")
        a(f"L_{tag}_i2:")

def init_flags(tag):
    a(f"""
s_waitcnt vmcnt(0)
s_cmp_eq_u32 s55, 0
s_cbranch_scc1 L_{tag}_f2
v_mov_b32 v20, 1
s_bitcmp1_b32 s55, 0
s_cbranch_scc0 L_{tag}_f1
s_lshl_b32 s{sT}, s{sBR}, 4
s_add_u32 s{sT}, s{sT}, s{sRB}
s_lshl_b32 s{sT}, s{sT}, 2
s_add_u32 s{sT}, s{sT}, 32
v_mov_b32 v24, s{sT}
buffer_store_dword v20, v24, s[{SDBG}:{SDBG+3}], 0 offen sc1
L_{tag}_f1:
s_bitcmp1_b32 s55, 1
s_cbranch_scc0 L_{tag}_f2
s_lshl_b32 s{sT}, s{sHG}, 2
v_mov_b32 v25, s{sT}
buffer_store_dword v20, v25, s[{SDBG}:{SDBG+3}], 0 offen sc1
L_{tag}_f2:
""")

def kstep(tiles, nxt_reads, first, waits):
    pend = list(first)
    for t, (m0_, m1_) in enumerate(tiles):
        if t in waits:
            a(waits[t])
        a(m0_)
        for x in pend: a(x)
        a(m1_)
        pend = []
        if nxt_reads:
            a(nxt_reads[t][0]); pend = [nxt_reads[t][1]]
    for x in pend: a(x)

def a_consumer():
    acc = lambda t, rt: 144 + (t * 2 + rt) * 4
    wf = lambda t: 88 + 4 * t
    xf = lambda buf, rt: 72 + buf * 8 + rt * 4
    R8, R2, R8b, R2b, aX = 1, 5, 6, 10, 11
    vOF, vOL, vEXW, vEXR = 13, 14, 15, 16
    MC, MP, MPF, PM = 56, 60, 64, 68
    a("L_AC:\ns_waitcnt lgkmcnt(0)")
    gap_touch("AC", 3)
    srds_rest()
    init_stores("AC", False)
    rd_lanes(R8, R2, 17, 18); x_lane(aX, aX + 1, 17)
    for j in range(5):
        a(f"v_add_u32 v{R8b+j}, {4*A_WSLOT}, v{R8+j}")
    a(f"""
s_lshl_b32 s{sT}, s{sWAVE}, 12
s_add_u32 s{sT}, s{sT}, {A_X0}
v_add_u32 v{aX}, s{sT}, v{aX}
v_add_u32 v{aX+1}, s{sT}, v{aX+1}
s_lshr_b32 s{sT}, s{sWAVE}, 1
s_lshl_b32 s{sT}, s{sT}, 3
v_and_b32 v17, 15, v0
v_xor_b32 v17, s{sT}, v17
v_lshrrev_b32 v18, 4, v0
v_lshlrev_b32 v18, 2, v18
v_xor_b32 v18, s{sT}, v18
v_sub_u32 v17, v17, v18
v_mov_b32 v19, {NEG}
s_and_b32 s{sT}, s{sWAVE}, 1
s_or_b32 s{sT}, s{sT}, s{sRB}
s_cmp_eq_u32 s{sT}, 0
s_cselect_b64 s[42:43], -1, 0
""")
    for r in range(4):
        a(f"""
v_subrev_u32 v18, {r}, v17
v_cmp_gt_u32 vcc, 8, v18
v_cndmask_b32 v{MC+r}, v19, 0, vcc
v_cmp_gt_i32 vcc, -8, v18
v_cndmask_b32 v{MP+r}, v19, 0, vcc
v_cndmask_b32 v{MPF+r}, v{MP+r}, v19, s[42:43]
v_cmp_lt_i32 vcc, -1, v18
v_mov_b32 v20, {'0xffff' if r % 2 == 0 else '0xffff0000'}
v_cndmask_b32 v20, 0, v20, vcc
""")
        a(f"v_mov_b32 v{PM + r//2}, v20" if r % 2 == 0 else f"v_or_b32 v{PM + r//2}, v{PM + r//2}, v20")
    o_store_addr(vOF, vOL, 17, True)
    a(f"""
s_lshr_b32 s{sT}, s{sWAVE}, 1
s_add_u32 s{sT}, s{sT}, 1
s_mul_i32 s{sT}, s{sT}, 5120
s_bitcmp1_b32 s{sWAVE}, 0
s_cselect_b32 s{sT3}, s{sT}, 0
v_lshlrev_b32 v17, 3, v0
v_add_u32 v17, {A_EX}, v17
v_add_u32 v{vEXW}, s{sT}, v17
v_add_u32 v{vEXR}, s{sT3}, v17
""")

    def wreads(ks, t):
        slot = ks % 5
        o = 0 if slot == 4 else slot * A_WSLOT
        r8, r2 = (R8b, R2b) if slot == 4 else (R8, R2)
        if t == 4 or t == 13:
            o += 12288 if t == 4 else 13312
            return [tr(wf(t), r2, o), tr(wf(t) + 2, r2, o + 256)]
        s, j = (0, t) if t < 4 else (1, t - 5) if t < 9 else (2, t - 9)
        return [tr(wf(t), r8 + j, o + 4096*s), tr(wf(t) + 2, r8 + j, o + 4096*s + 1024)]
    xread = lambda ks, rt: f"ds_read_b128 {vr(xf(ks % 2, rt),4)}, v{aX + ks % 2} offset:{(ks//2 % 3)*A_XSLOT + rt*2048}"

    if OPT.get("prepass"):
        a("s_barrier")
    stamp()
    a("s_barrier")
    stamp()
    a(xread(0, 0)); a(xread(0, 1))
    for t in range(14):
        for x in wreads(0, t): a(x)
    for ks in range(18):
        if OPT.get("body") and ks == OPT["body"] + 1:
            stamp()
            j_ = sST + 2*(nstamp[0]-1)
            a(f"s_waitcnt lgkmcnt(0)\ns_sub_u32 s{j_}, s{j_}, s100\ns_lshl_b32 s{j_}, s{j_}, 4\ns_add_u32 s{j_}, s{j_}, s100")
        if OPT.get("span") and ks == OPT["span"] + 4:
            a("s_barrier")
            stamp()
            j_ = sST + 2*(nstamp[0]-1)
            a(f"s_waitcnt lgkmcnt(0)\ns_sub_u32 s{j_}, s{j_}, s100\ns_lshl_b32 s{j_}, s{j_}, 2\ns_add_u32 s{j_}, s{j_}, s100")
        elif ks < 17:
            a("s_barrier")
        if ks and ks in (OPT.get("body"), OPT.get("span")):
            a("s_memtime s[100:101]")
        if OPT.get("fine") == 2 and ks in (2, 5, 8, 11, 14):
            stamp()
        if OPT.get("ret", 0) > 3 and ks == 1:
            base, off = {4: (38, 520*3456 + 160), 5: (36, 5*1152 + 1024), 6: (38, 200*3456 + 160), 7: (38, 520*3456 + 1152 + 160)}[OPT["ret"]]
            a(f"s_mul_i32 s40, s{sWAVE}, {3456 if base == 38 else 1152}\ns_add_u32 s40, s40, {off - 64}\ns_add_u32 s40, s40, s{base}\ns_addc_u32 s41, s{base+1}, 0")
        elif OPT.get("ret") and ks == 1:
            a(f"s_lshl_b32 s40, s2, 10\ns_lshl_b32 s41, s{sWAVE}, 8\ns_add_u32 s40, s40, s41\ns_add_u32 s40, s40, 0x580000\ns_add_u32 s40, s40, s{SWS}\ns_addc_u32 s41, s{SWS+1}, 0")
            if OPT["ret"] == 1:
                a("v_mov_b32 v28, 0\nglobal_load_dword v29, v28, s[40:41]")
        if OPT.get("ret") and ks == OPT.get("at", 7):
            if OPT["ret"] == 2:
                a("v_mov_b32 v28, 0\nglobal_load_dword v29, v28, s[40:41]\ns_waitcnt vmcnt(0)")
            a("s_waitcnt lgkmcnt(0)\ns_memtime s[100:101]\ns_waitcnt lgkmcnt(0)\ns_load_dword s38, s[40:41], 64\ns_waitcnt lgkmcnt(0)")
            stamp()
            j_ = sST + 2*(nstamp[0]-1)
            a(f"s_waitcnt lgkmcnt(0)\ns_sub_u32 s{j_}, s{j_}, s100\ns_lshl_b32 s{j_}, s{j_}, 3\ns_add_u32 s{j_}, s{j_}, s100")
        if OPT.get("dummy") == ks:
            if OPT.get("dpre"):
                a("s_getpc_b64 s[38:39]\nv_lshlrev_b32 v28, 7, v0\nv_min_u32 v28, 2304, v28\nglobal_load_dword v29, v28, s[38:39]\ns_waitcnt vmcnt(0)")
            a("s_waitcnt lgkmcnt(0)\ns_memtime s[100:101]\ns_memrealtime s[40:41]\ns_waitcnt lgkmcnt(0)")
            for n in range(128):
                kind = OPT.get("dkind", 0)
                if kind == 0:
                    a(mf(28 + 4 * (n % 4), 88, 72, "0"))
                elif kind == 1:
                    a(f"v_add3_u32 v{28 + n % 8}, v0, v0, v0\nv_add3_u32 v{36 + n % 8}, v0, v0, v0")
                else:
                    a(f"ds_read_b128 v[{28 + 4 * (n % 4)}:{31 + 4 * (n % 4)}], v{aX} offset:0")
            a("s_waitcnt lgkmcnt(0)")
            stamp()
            a("s_waitcnt lgkmcnt(0)")
            if not OPT.get("cyc"):
                a(f"s_sub_u32 s40, s{sST + 2*(nstamp[0]-1)}, s40\ns_add_u32 s{sST + 2*(nstamp[0]-1)}, s{sST}, s40")
        if ks == 3:
            init_flags("AC")
        tiles = []
        for t in range(14):
            c = lambda rt: acc(t, rt) if ks else "0"
            tiles.append([mf(acc(t, rt), wf(t), xf(ks % 2, rt), c(rt)) if t < 9 else mf(acc(t, rt), xf(ks % 2, rt), wf(t), c(rt)) for rt in range(2)])
        if ks < 17:
            nxt = [wreads(ks + 1, t) for t in range(14)]
            nxt[1] = [nxt[1][0], nxt[1][1] + "\n" + xread(ks + 1, 1)]
            kstep(tiles, nxt, [xread(ks + 1, 0)], {0: "s_waitcnt lgkmcnt(14)", 7: "s_waitcnt lgkmcnt(15)", 12: "s_waitcnt lgkmcnt(15)"})
        else:
            kstep(tiles, None, [], {0: "s_waitcnt lgkmcnt(14)", 7: "s_waitcnt lgkmcnt(0)"})
    stamp()
    KP = lambda j: 18 + 10 * j
    QT = lambda rt, h: 88 + 16 * rt + 4 * h
    VP = lambda t, j: 120 + 6 * t + 2 * j if t < 4 else 48 + 2 * j
    ONE = 72
    def pack_kv(rt):
        o = []
        for q in range(2):
            o += [cv(QT(rt, 3) + 2 + q, acc(4, rt) + 2*q), f"v_mov_b32 v{KP(1+rt) + 8 + q}, 0"]
        for tau in range(4):
            o += [cv(KP(1+rt) + 2*tau + q, acc(5+tau, rt) + 2*q) for q in range(2)]
        o += [f"v_permlane32_swap_b32 v{QT(rt,3) + 2 + q}, v{KP(1+rt) + 8 + q}" for q in range(2)]
        for t in range(5):
            o += [cv(VP(t, 1+rt) + q, acc(9+t, rt) + 2*q) for q in range(2)]
        return o
    def pack_q(rt):
        o = []
        for t in range(4):
            for q in range(2):
                d = QT(rt, t) + q
                o.append(cv(d, acc(t, rt) + 2*q))
                if (t, q) in SPLITS:
                    m = SPLITS[(t, q)]; lo = QT(rt, t-1) + 2 + q
                    o += [f"v_cndmask_b32 v{lo}, 0, v{d}, s[{m}:{m+1}]", f"v_xor_b32 v{d}, v{d}, v{lo}"]
        return o + [f"v_mov_b32 v{QT(rt,0) + 3}, 0"]
    weave([], pack_kv(1))
    a(f"s_bitcmp1_b32 s{sWAVE}, 0\ns_cbranch_scc1 L_AC_nodump")
    for j in range(5):
        a(f"ds_write_b64 v{vEXW}, {vr(KP(2) + 2*j, 2)} offset:{512*j}")
        a(f"ds_write_b64 v{vEXW}, {vr(VP(j, 2), 2)} offset:{512*(5+j)}")
    a("L_AC_nodump:")
    weave([], pack_kv(0) + pack_q(1))
    a("s_waitcnt lgkmcnt(0)\ns_barrier")
    for j in range(5):
        a(f"ds_read_b64 {vr(KP(0) + 2*j, 2)}, v{vEXR} offset:{512*j}")
        a(f"ds_read_b64 {vr(VP(j, 0), 2)}, v{vEXR} offset:{512*(5+j)}")
    SC = lambda rt, h: (224 if rt else 184) + 8 * h
    MX = lambda rt: [76 + 4 * rt + h for h in range(4)]
    PT = lambda rt, h: 144 + 16 * rt + 4 * h
    def qk(rt):
        o = []
        for h in range(4):
            o += [mf(SC(rt, h), KP(1+rt) + 2*h, QT(rt, h), MC), mf(SC(rt, h) + 4, KP(rt) + 2*h, QT(rt, h), MP if rt else MPF)]
        return o
    def rowmax(rt):
        o = []
        for h in range(4):
            s = SC(rt, h); m = MX(rt)[h]
            o += [f"v_max_f32 v{s+r}, v{s+r}, v{s+4+r}" for r in range(4)]
            o += [f"v_max3_f32 v{m}, v{s}, v{s+1}, v{s+2}", f"v_max_f32 v{m}, v{m}, v{s+3}"]
        return o
    def xmax(rt):
        m = MX(rt)
        return [f"v_permlane32_swap_b32 v{m[0]}, v{m[1]}", f"v_permlane32_swap_b32 v{m[2]}, v{m[3]}",
                f"v_max_f32 v{m[0]}, v{m[0]}, v{m[1]}", f"v_max_f32 v{m[2]}, v{m[2]}, v{m[3]}",
                f"v_permlane16_swap_b32 v{m[0]}, v{m[2]}", f"v_max_f32 v{m[0]}, v{m[0]}, v{m[2]}",
                f"v_mul_f32 v{m[0]}, s{sT2}, v{m[0]}", f"v_mov_b32 v{m[2]}, v{m[0]}",
                f"v_permlane16_swap_b32 v{m[0]}, v{m[2]}", f"v_mov_b32 v{m[1]}, v{m[0]}", f"v_mov_b32 v{m[3]}, v{m[2]}",
                f"v_permlane32_swap_b32 v{m[0]}, v{m[1]}", f"v_permlane32_swap_b32 v{m[2]}, v{m[3]}"]
    def probs(rt):
        o = []
        for h in range(4):
            s = SC(rt, h); p = PT(rt, h)
            o += [f"v_fma_f32 v{s+r}, v{s+r}, s{sT}, v{MX(rt)[h]}" for r in range(4)]
            o += [f"v_exp_f32 v{s+r}, v{s+r}" for r in range(4)]
            if h:
                o += split(rt, h - 1)
        return o + split(rt, 3)
    def split(rt, h):
        s = SC(rt, h); p = PT(rt, h); o = []
        for q in range(2):
            o += [cv(p + q, s + 2*q), f"v_and_b32 v{p+2+q}, v{p+q}, v{PM+q}", f"v_xor_b32 v{p+q}, v{p+q}, v{p+2+q}"]
        return o
    OB = lambda rt, t: (224 if rt else 184) + 4 * t
    OA = lambda rt, t: (224 if rt else 184) + 12 + 4 * t
    SM = lambda rt, h: 88 + 16 * rt + 4 * h
    OF = lambda rt: 18 + 10 * rt
    def pv(rt):
        o = [mf(SM(rt, h), ONE, PT(rt, h), "0") for h in range(4)]
        for t in range(5):
            if t < 4: o.append(mf(OB(rt, t), VP(t, rt), PT(rt, t), "0"))
            if t > 0: o.append(mf(OA(rt, t), VP(t, rt), PT(rt, t-1), "0"))
        return o
    def finish(rt):
        o = [f"v_rcp_f32 v{SM(rt,h)}, v{SM(rt,h)}" for h in range(4)]
        for t in range(5):
            for q in range(2):
                d = OF(rt) + 2*t + q
                srcs = []
                if t < 4: srcs.append((OB(rt, t) + 2*q, SM(rt, t), d))
                if t == 4: srcs.append((OA(rt, t) + 2*q, SM(rt, 3), d))
                if (t, q) in SPLITS: srcs.append((OA(rt, t) + 2*q, SM(rt, t-1), 17))
                for x, inv, dd in srcs:
                    o += [f"v_mul_f32 v{x}, v{x}, v{inv}", f"v_mul_f32 v{x+1}, v{x+1}, v{inv}", cv(dd, x)]
                if (t, q) in SPLITS:
                    m = SPLITS[(t, q)]
                    o.append(f"v_cndmask_b32 v{d}, v{d}, v17, s[{m}:{m+1}]")
        return o
    a(f"s_mov_b32 s{sT}, {f32(CSC)}\ns_mov_b32 s{sT2}, {f32(-CSC)}")
    weave(qk(1), pack_q(0) + [f"v_mov_b32 v{ONE+j}, 0x3f803f80" for j in range(4)])
    a("s_waitcnt lgkmcnt(0)")
    weave(qk(0), rowmax(1))
    x1, x0 = xmax(1), xmax(0)
    r0 = rowmax(0)
    for i, x in enumerate(x1):
        a(x)
        for y in r0[2*i:2*i+2]: a(y)
    p1 = probs(1)
    for i, x in enumerate(x0):
        a(x)
        for y in p1[2*i:2*i+2]: a(y)
    weave([], p1[2*len(x0):])
    weave(pv(1), probs(0))
    weave(pv(0), finish(1))
    o_store(OF(1), vOF, vOL, 1)
    weave([], finish(0))
    o_store(OF(0), vOF, vOL, 0)
    stamp()
    a("s_branch L_P2")

def phi(r, n, t):
    o = [f"v_pk_fma_f32 {vr(t+j,2)}, {vr(r+j,2)}, s[56:57], v[14:15]" for j in range(0, n, 2)]
    for j in range(n):
        o += [f"v_exp_f32 v{t+j}, v{t+j} clamp", f"v_max_f32 v{r+j}, s{sT2}, v{r+j}"]
    return o + [f"v_pk_add_f32 {vr(r+j,2)}, {vr(r+j,2)}, {vr(t+j,2)}" for j in range(0, n, 2)]

def b_consumer():
    acc = lambda t, rt: 184 + (t * 2 + rt) * 4
    wf = lambda t: 148 + 4 * t
    xf = lambda ks, rt: 52 + ks * 8 + rt * 4 if ks < 12 else 36 + (ks % 2) * 8 + rt * 4
    R8, R2, aX = 1, 5, 6
    vOF, vOL, vEX = 8, 9, 10
    CK, CS = 28, 32
    a("L_BC:\ns_waitcnt lgkmcnt(0)")
    gap_touch("BC", 2)
    srds_rest()
    init_stores("BC", True)
    rd_lanes(R8, R2, 17, 18); x_lane(aX, aX + 1, 17)
    a(f"""
s_lshl_b32 s{sT}, s{sWAVE}, 12
s_add_u32 s{sT}, s{sT}, {B_X0}
v_add_u32 v{aX}, s{sT}, v{aX}
v_add_u32 v{aX+1}, s{sT}, v{aX+1}
v_and_b32 v17, 15, v0
v_cmp_gt_u32 vcc, 8, v17
v_mov_b32 v18, {EPS}
s_mov_b64 s[42:43], vcc
s_mul_i32 s{sT}, s{sWAVE}, 10240
s_add_u32 s{sT}, s{sT}, {B_EX}
v_lshl_add_u32 v{vEX}, v0, 4, s{sT}
v_mov_b32 v14, {f32(-1e-6*LOG2E)}
v_mov_b32 v15, v14
s_mov_b32 s56, {f32(LOG2E)}
s_mov_b32 s57, s56
""")
    for r in range(4):
        a(f"v_mov_b32 v{CK+r}, v18\nv_cndmask_b32 v{CS+r}, 0, v18, vcc")
    o_store_addr(vOF, vOL, 17, False)

    def wreads(ks, t):
        o = (ks % 5) * B_KVSLOT
        if t == 4:
            return [tr(wf(t), R2, o + 8192), tr(wf(t) + 2, R2, o + 8192 + 256)]
        s, j = (0, t) if t < 4 else (1, t - 5)
        return [tr(wf(t), R8 + j, o + 4096*s), tr(wf(t) + 2, R8 + j, o + 4096*s + 1024)]
    xread = lambda ks, rt: f"ds_read_b128 {vr(xf(ks, rt),4)}, v{aX + ks % 2} offset:{(ks//2 % 3)*B_XSLOT + rt*2048}"

    stamp()
    a("s_barrier")
    stamp()
    a(xread(0, 0)); a(xread(0, 1))
    for t in range(9):
        for x in wreads(0, t): a(x)
    for ks in range(18):
        if ks < 17:
            a("s_barrier")
        if ks == 3:
            init_flags("BC")
        tiles = [[mf(acc(t, rt), xf(ks, rt), wf(t), acc(t, rt) if ks else (CK if t < 4 else CS if t == 4 else "0")) for rt in range(2)] for t in range(9)]
        if ks < 17:
            nxt = [wreads(ks + 1, t) for t in range(9)]
            nxt[1] = [nxt[1][0], nxt[1][1] + "\n" + xread(ks + 1, 1)]
            kstep(tiles, nxt, [xread(ks + 1, 0)], {0: "s_waitcnt lgkmcnt(12)", 3: "s_waitcnt lgkmcnt(13)", 6: "s_waitcnt lgkmcnt(13)", 8: "s_waitcnt lgkmcnt(11)"})
        else:
            kstep(tiles, None, [], {0: "s_waitcnt lgkmcnt(12)", 3: "s_waitcnt lgkmcnt(0)\ns_barrier"})
    stamp()
    a(f"s_mov_b32 s{sT2}, {EPS}\nv_mov_b32 v16, 0x3f803f80")
    wr = lambda reg, slot: f"ds_write_b128 v{vEX}, {vr(reg,4)} offset:{1024*slot}"
    pk = lambda d, s: [cv(d + j, s + 2*j) for j in range(4)]
    weave([], pk(156, acc(4, 0)) + [f"v_cndmask_b32 v{156+j}, v{156+j}, v16, s[42:43]" for j in range(4)] + [wr(156, 9)])
    xq = lambda ks, rt: 168 + (ks - 12) * 8 + rt * 4 if ks in (12, 13) else acc(2 * (ks - 14) + rt, 1) if ks in (14, 15) else xf(ks, rt)
    reread = lambda ks, rt: f"ds_read_b128 {vr(xq(ks, rt),4)}, v{aX + ks % 2} offset:{(ks//2 % 3)*B_XSLOT + rt*2048}"
    weave([], [reread(ks, rt) for ks in (12, 13) for rt in range(2)])
    for tau in range(5):
        o = phi(acc(tau, 0), 8, 148)
        if tau < 4:
            o = pk(acc(5+tau, 0), acc(5+tau, 0)) + o[:8] + [wr(acc(5+tau, 0), 5 + tau)] + o[8:]
        weave([], o + pk(acc(tau, 0), acc(tau, 0)) + [wr(acc(tau, 0), tau)])
        if tau < 4:
            a(reread(14 + tau // 2, tau % 2))
    for j in range(5):
        a(f"v_add_u32 v{R8+j}, {B_WQ0}, v{R8+j}")
    a("s_waitcnt lgkmcnt(0)\ns_barrier")
    stamp()
    QA = lambda t, rt: 216 + (t * 2 + rt) * 4
    qf = lambda t: 148 + 4 * t
    qbase = lambda p: B_WQ0 if p < 4 else 0 if p < 7 else 15360
    def qreads(p, t):
        o = wq_slot(p) - qbase(p)
        if t == 4:
            return [tr(qf(t), R2, o + 4096), tr(qf(t) + 2, R2, o + 4096 + 256)]
        return [tr(qf(t), R8 + t, o), tr(qf(t) + 2, R8 + t, o + 1024)]
    for t in range(5):
        for x in qreads(0, t): a(x)
    for p in range(18):
        ks = QORD[p]
        if p == 7 or (p == 13 and OPT.get('wob', 0)):
            a("s_barrier")
        tiles = [[mf(QA(t, rt), qf(t), xq(ks, rt), QA(t, rt) if p else CK) for rt in range(2)] for t in range(5)]
        if p < 17:
            nxt = [qreads(p + 1, t) for t in range(5)]
            if qbase(p + 1) != qbase(p):
                d = (qbase(p + 1) - qbase(p)) & 0xffffffff
                for t in range(5):
                    nxt[t][0] = f"v_add_u32 v{R8+t}, {d}, v{R8+t}\n" + nxt[t][0]
            kstep(tiles, nxt, [], {t: f"s_waitcnt lgkmcnt({7 if t else 8})" for t in range(5)})
        else:
            kstep(tiles, None, [], {t: f"s_waitcnt lgkmcnt({8 - 2*t})" for t in range(5)})
    stamp()
    PQ = lambda rt: 36 + 10 * rt
    KO = 84
    tup = {0: KO, 1: KO + 4, 2: KO + 12, 3: KO + 20, 4: KO + 28}
    ZO = KO + 32
    weave([], [f"v_mov_b32 v{r}, 0" for r in (tup[1]+4, tup[1]+5, tup[2]+4, tup[2]+5, tup[3]+4, tup[3]+5, ZO+8, ZO+9)])
    a(f"v_lshlrev_b32 v16, 3, v0\nv_add_u32 v16, {B_KVOP}, v16")
    for t in range(5):
        weave([], phi(QA(t, 0), 8, 148) + [cv(PQ(rt) + 2*t + q, QA(t, rt) + 2*q) for rt in range(2) for q in range(2)])
    stamp()
    a("s_barrier")
    stamp()
    tid = lambda tau, taup: {-1: tau - 1, 0: 4 + tau, 1: 9 + tau}[taup - tau]
    rd = lambda d, slot: a(f"ds_read_b64 {vr(d,2)}, v16 offset:{512*slot}")
    for j, d in enumerate((ZO, ZO + 2, ZO + 4, ZO + 6, ZO + 10)):
        rd(d, 13 + j)
    rd(tup[0], tid(0, 0)); rd(tup[0] + 2, tid(1, 0))
    for t in (1, 2, 3):
        rd(tup[t], tid(t-1, t)); rd(tup[t] + 2, tid(t, t)); rd(tup[t] + 6, tid(t+1, t))
    rd(tup[4], tid(3, 4)); rd(tup[4] + 2, tid(4, 4))
    DN = lambda rt: 148 + 4 * rt
    NM = lambda rt, t: 184 + 20 * rt + 4 * t
    OF = lambda rt: 156 + 10 * rt
    a("s_waitcnt lgkmcnt(13)")
    for k, (zo, po) in enumerate(((0, 0), (4, 4), (8, 6))):
        for rt in range(2):
            a(mf(DN(rt), ZO + zo, PQ(rt) + po, DN(rt) if k else CK))
    a("s_waitcnt lgkmcnt(0)")
    def num(rt):
        o = [mf(NM(rt, t), tup[t], PQ(rt) + 2*(t-1), "0") for t in (1, 2, 3)]
        o += [mf(NM(rt, 0), tup[0], PQ(rt), "0"), mf(NM(rt, 4), tup[4], PQ(rt) + 6, "0")]
        return o + [mf(NM(rt, t), tup[t] + 4, PQ(rt) + 2*t, NM(rt, t)) for t in (1, 2, 3)]
    def fin(rt, packed):
        o = []
        for t in (0, 4, 1, 2, 3):
            for q in range(2):
                inv = DN(rt) + min(t, 3)
                if (t, q) in SPLITS:
                    m = SPLITS[(t, q)]
                    o.append(f"v_cndmask_b32 v17, v{DN(rt)+t}, v{DN(rt)+t-1}, s[{m}:{m+1}]")
                    inv = 17
                n = NM(rt, t) + 2*q
                o += [f"v_mul_f32 v{n}, v{n}, v{inv}", f"v_mul_f32 v{n+1}, v{n+1}, v{inv}", cv(OF(rt) + 2*t + q, n)]
        return o
    weave(num(0), [], 0)
    weave(num(1), [f"v_rcp_f32 v{DN(rt)+h}, v{DN(rt)+h}" for rt in range(2) for h in range(4)], 1)
    for rt in range(2):
        weave([], fin(rt, True))
        o_store(OF(rt), vOF, vOL, rt)
    stamp()

def kv_index(wreg, VS, VG, VZ):
    a(f"s_cmp_eq_u32 s{wreg}, 0\ns_cselect_b32 s58, 4, s{wreg}")
    for slot in range(3):
        if slot == 0:
            a(f"s_lshl_b32 s{sT}, s58, 4\ns_sub_u32 s{sT2}, s{sT}, 16\ns_mov_b64 s[46:47], 0")
        elif slot == 1:
            a(f"s_lshl_b32 s{sT}, s{wreg}, 4\ns_mov_b32 s{sT2}, s{sT}")
        else:
            a(f"s_add_u32 s{sT2}, s{sT}, 16\ns_cmp_eq_u32 s{wreg}, 3\ns_cselect_b32 s{sT2}, 56, s{sT2}\ns_cselect_b64 s[46:47], s[44:45], 0")
        kv_tile(VS and VS + 2*slot, VG and VG + 2*slot, False)
    if VZ:
        kv_z(VZ)

def kv_tile(VS, VG, last):
    a(f"v_add_u32 v3, s{sT2}, v1")
    head_of(4, 3)
    a(f"v_mul_u32_u24 v5, 18, v4\nv_sub_u32 v3, v3, v5\nv_cndmask_b32 v4, v4, 7, s[46:47]")
    if last:
        a("v_cmp_eq_u32 vcc, 0, v1\nv_cndmask_b32 v4, v4, 3, vcc\nv_cndmask_b32 v3, v3, 18, vcc")
    for q in range(2):
        a(f"v_add3_u32 v5, v2, s{sT}, {2*q}")
        head_of(6, 5)
        a("v_cmp_eq_u32 vcc, v4, v6\nv_mad_u32_u24 v5, v5, 19, v3\nv_lshlrev_b32 v5, 2, v5")
        if VS:
            a(f"v_add_u32 v6, {B_STG}, v5\nv_cndmask_b32 v{VS+q}, v8, v6, vcc")
        if VG:
            a(f"v_add_u32 v6, s{sM}, v5\nv_cndmask_b32 v{VG+q}, v9, v6, vcc")

def kv_z(VZ):
    a("v_and_b32 v3, 3, v0")
    for q in range(2):
        a(f"v_add3_u32 v5, v2, s{sT}, {2*q}")
        head_of(6, 5)
        a(f"v_cmp_eq_u32 vcc, v3, v6\nv_mul_u32_u24 v5, 76, v5\nv_add3_u32 v5, v5, s{sM}, 64\nv_add_u32 v5, 8, v5\nv_cndmask_b32 v{VZ+q}, v9, v5, vcc")

def b_loader(kind):
    a(f"L_B{kind}1:")
    m = M0(42)
    issue = (lambda c: w_issue("B", c, m)) if kind == "W" else (lambda c: x_issue("B", c, m))
    pre = 1 if OPT.get("early") and kind == "W" else 2
    cnt = {c: issue(c) for c in range(1, pre + 1)}
    stamp()
    mark = len(a.lines)
    VS, VG, vZS, vEA, vE0, vEL, vLA, vGA, vLW = 72, 80, 98, 99, 100, 101, 102, 103, 105
    if kind == "W":
        a(f"v_subrev_u32 v{VD+5}, 1152, v{VD}\nv_subrev_u32 v{VD+6}, 1152, v{VD+1}")
    srds_rest()
    if kind == "W":
        wo_setup(False)
    else:
        sync_setup()
    a(f"""
s_add_u32 s55, s{sV}, 2
s_mul_i32 s{sM}, s{sHG}, {KV_ST}
s_add_u32 s{sM}, s{sM}, {WS_KV}
v_and_b32 v1, 15, v0
v_lshrrev_b32 v2, 4, v0
v_lshlrev_b32 v2, 2, v2
v_cmp_gt_u32 s[44:45], 8, v1
v_lshlrev_b32 v8, 2, v0
v_add_u32 v8, {B_DUMP}, v8
v_mov_b32 v9, {OOB}
""")
    own = sV if kind == "X" else 55
    if kind == "X":
        kv_index(55, None, VG, VG + 6)
        a(f"s_movk_i32 s{sT}, 64")
        kv_z(10)
    kv_index(own, VS, VG + 8 if kind == "X" else None, VG + 14 if kind == "X" else None)
    a(f"""
v_add_u32 v5, s{sT}, v0
v_mul_u32_u24 v5, 76, v5
v_add_u32 v5, {B_STG + 72}, v5
v_cndmask_b32 v{vZS}, v8, v5, s[{sG0}:{sG0+1}]
v_lshlrev_b32 v{vEL}, 4, v0
v_add_u32 v{vEL}, {B_EX}, v{vEL}
s_lshl_b32 s{sT}, s{own}, 10
v_add_u32 v{vEA}, s{sT}, v{vEL}
s_lshl_b32 s{sT}, s58, 10
v_add_u32 v{vE0}, s{sT}, v{vEL}
""")
    if kind == "X":
        a(f"s_movk_i32 s{sT}, 64\ns_movk_i32 s{sT2}, 56\ns_mov_b64 s[46:47], s[44:45]")
        kv_tile(VS + 6, VG + 16, True)
        a(f"s_cmp_eq_u32 s{sV}, 0\ns_cselect_b64 s[46:47], -1, 0")
        for q in range(2):
            a(f"v_cndmask_b32 v{VS+6+q}, v8, v{VS+6+q}, s[46:47]\nv_cndmask_b32 v{VG+16+q}, v{10+q}, v{VG+16+q}, s[46:47]")
        a(f"""
v_lshlrev_b32 v5, 3, v0
v_add_u32 v5, {B_KVOP}, v5
s_lshl_b32 s{sT2}, s58, 9
s_sub_u32 s{sT2}, s{sT2}, 512
v_add_u32 v{vLW+2}, s{sT2}, v5
s_lshl_b32 s{sT2}, s{sV}, 9
v_add_u32 v{vLW+1}, s{sT2}, v5
v_add_u32 v{vLW}, 1024, v{vLW+1}
s_mul_i32 s{sT2}, s{sV}, {9*512}
v_add_u32 v{vLW+3}, s{sT2}, v5
s_mul_i32 s{sT}, s{sV}, 2816
v_lshl_add_u32 v{vLA}, v0, 2, s{sT}
v_add_u32 v{vGA}, s{sM}, v{vLA}
v_cmp_gt_u32 vcc, {5472 - 2560}, v{vLA}
v_cndmask_b32 v{vGA+1}, v9, v{vGA}, vcc
v_add_u32 v{vLA}, {B_STG}, v{vLA}
v_mov_b32 v4, 0
""")
    a(f"v_mov_b32 v10, {B_LCNT}\nv_mov_b32 v11, 1")
    if kind == "X":
        a("ds_write_b32 v10, v4\ns_waitcnt lgkmcnt(0)")
    setup = a.lines[mark:]
    del a.lines[mark:]
    per = -(-len(setup) // 9)
    a(f"s_waitcnt vmcnt({sum(cnt.values())})\ns_barrier")
    stamp()
    extra = 0
    for i in range(-1, 16):
        if i == -1 and pre == 1:
            cnt[2] = issue(2)
        if i + 4 <= 17:
            cnt[i+4] = issue(i + 4)
        if 0 <= i < 9:
            a("s_cmp_eq_u32 s59, 1")
            a.lines += setup[per*i:per*(i+1)]
            a("s_cselect_b32 s59, 1, 0")
        if i == 10 and kind == "X":
            flag_load(sFO, 98); flag_load(sFK, 99)
        if kind == "W" and i >= 14:
            extra += wq_issue(2*(i-14), m) + wq_issue(2*(i-14) + 1, m)
        left = sum(cnt.get(c, 0) for c in range(i + 3, min(i + 4, 17) + 1)) + extra
        a(f"s_waitcnt vmcnt({left})\ns_barrier")
    a("s_barrier")
    if kind == "W":
        for p in (4, 5, 6, 7, 13, 14, 15, 16, 17):
            wq_issue(p, m)
        a("s_waitcnt vmcnt(15)")
    else:
        flag_check(sFK, 99, "L_BX_fk")
    stamp()
    a("s_barrier")
    stamp()
    if kind == "W":
        for p in range(8, 13):
            wq_issue(p, m)
    KT = lambda s: 40 + 4 * s
    RD = lambda src, j: 112 + 28 * src + 4 * j
    srcs = ((vEA, 0), (vE0, 0), (vE0, 4096), (vEA, 5120), (vEA, 6144), (vEL, 9216), (vEL, 4096))
    prods = ((1, 2), (0, 3), (0, 4), (6, 5), (5, 0))
    if kind == "W":
        srcs = ((vEA, 0), None, (vE0, 4096), (vEA, 5120), (vEA, 6144), (vEL, 9216))
        prods = ((0, 2), (0, 3), (0, 4), None, (5, 0))
    nr = sum(x is not None for x in srcs)
    for src in range(4):
        for j, x in enumerate(srcs):
            if x: a(f"ds_read_b128 {vr(RD(src, j),4)}, v{x[0]} offset:{src*10240 + x[1]}")
    for src in range(4):
        a(f"s_waitcnt lgkmcnt({min(15, nr*(3-src))})")
        for s_, x in enumerate(prods):
            if x: a(mf(KT(s_), RD(src, x[0]), RD(src, x[1]), KT(s_) if src else "0"))
    for s_ in range(4 if kind == "X" else 3):
        for r in range(4):
            a(f"ds_write_b32 v{VS + 2*s_ + r//2}, v{KT(s_)+r} offset:{76*(r%2)}")
    a(f"ds_write_b32 v{vZS}, v{KT(4)}")
    a("s_waitcnt lgkmcnt(0)\ns_mov_b64 exec, 1\nds_add_u32 v10, v11\ns_mov_b64 exec, -1")
    stamp()
    b1, b2, b3 = {0: ((0, 1, 2, 3, 4, 5), (), (6, 7, 8)), 1: ((0, 1, 2), (3, 4, 5, 6, 7, 8), ()), 2: ((0, 1, 2), (3, 4, 5), (6, 7, 8))}[OPT.get("wob", 0)]
    if kind == "W":
        a("s_waitcnt vmcnt(0)\ns_barrier")
        for g in b1: wo_pair(g)
        if b2:
            a("s_barrier")
            for g in b2: wo_pair(g)
        stamp()
        a("s_barrier")
        loader_tail("BW", b3)
        return
    a(f"""
s_mov_b32 s{sT3}, 0x400000
L_BX_st:
ds_read_b32 v2, v10
s_waitcnt lgkmcnt(0)
v_readfirstlane_b32 s{sT}, v2
s_sub_u32 s{sT3}, s{sT3}, 1
s_cbranch_scc1 L_BX_st_x
s_cmp_ge_u32 s{sT}, 4
s_cbranch_scc0 L_BX_st
L_BX_st_x:
""")
    for n in range(11):
        a(f"ds_read_b32 v{40+n}, v{vLA} offset:{256*n}")
    for n in range(11):
        a(f"s_waitcnt lgkmcnt({10-n})")
        a(f"buffer_atomic_add_f32 v{40+n}, v{vGA + (n == 10)}, s[{SWS}:{SWS+3}], 0 offen offset:{256*n}")
    stamp()
    a("s_barrier")
    if b2:
        a("s_barrier")
    a("s_waitcnt vmcnt(0)")
    stamp()
    arrive_wait(sKC, 32, "L_BX_kc")
    stamp()
    for s_ in range(9):
        for r in range(4):
            a(f"buffer_load_dword v{112+4*s_+r}, v{VG + 2*s_ + r//2}, s[{SWS}:{SWS+3}], 0 offen offset:{76*(r%2)} sc1")
    dst = ((vLW, -1), (vLW, 4), (vLW, 9), (vLW, 13), (vLW + 2, 0), (vLW + 1, 4), (vLW + 1, 9), (vLW + 1, 13), (vLW + 3, 8))
    a(f"v_subrev_u32 v11, 512, v{vLW}")
    for s_, (ad, off) in enumerate(dst):
        a(f"s_waitcnt vmcnt({4*(8-s_)})")
        a(cv(40 + 2*s_, 112 + 4*s_)); a(cv(41 + 2*s_, 114 + 4*s_))
        a(f"ds_write_b64 v{11 if off < 0 else ad}, {vr(40+2*s_,2)} offset:{512*max(off, 0)}")
    a("s_waitcnt lgkmcnt(0)")
    stamp()
    a("s_barrier")
    loader_tail("BX")

def p2_consumer():
    OFR = lambda ks, rt: 112 + ks * 8 + rt * 4
    ACC = lambda t, rt: 72 + (t * 2 + rt) * 4
    wf = lambda t: 52 + 4 * t
    R8, R2, vO, vTW, vTR, VS = 1, 5, 6, 7, 8, 9
    AH = OPT["ahead"]
    a("L_P2:")
    nstamp[0] = 10
    rd_lanes(R8, R2, 17, 18)
    for j in range(5):
        a(f"v_add_u32 v{R8+j}, {R1}, v{R8+j}")
    a(f"""
v_lshl_add_u32 v{vO}, v0, 4, s58
s_mul_i32 s{sT}, s{sWAVE}, 4608
s_add_u32 s{sT}, s{sT}, {P_TR}
v_and_b32 v17, 15, v0
v_mul_u32_u24 v17, 144, v17
v_lshrrev_b32 v18, 4, v0
v_lshl_add_u32 v17, v18, 3, v17
v_add_u32 v{vTW}, s{sT}, v17
v_lshl_add_u32 v{vTR}, v0, 4, s{sT}
s_lshr_b32 s{sT}, s{sWAVE}, 1
s_and_b32 s{sT2}, s{sWAVE}, 1
s_lshl_b32 s{sT2}, s{sT2}, 5
s_lshl_b32 s{sT3}, s{sWAVE}, 5
s_cmp_eq_u32 s{sBR}, 0
s_cselect_b32 s42, s{sT}, 0
s_cselect_b32 s43, s{sT2}, s{sT3}
s_cselect_b32 s55, 1, 0
s_lshl_b32 s56, s42, 3
s_lshl_b32 s{sT}, s{sRB}, 7
s_add_u32 s42, s42, s{sT}
s_mul_i32 s{sT}, s{sBR}, 1152
s_mul_i32 s{sT2}, s{sHG}, 144
s_add_u32 s57, s{sT}, s{sT2}
""")
    for n in range(5):
        a(f"""
v_add_u32 v17, {64*n}, v0
v_mul_u32_u24 v18, 7282, v17
v_lshrrev_b32 v18, 16, v18
v_mul_u32_u24 v19, 9, v18
v_sub_u32 v19, v17, v19
v_add_u32 v18, s43, v18
v_xor_b32 v18, s56, v18
v_lshlrev_b32 v18, s55, v18
v_add_u32 v18, s42, v18
v_mul_u32_u24 v18, 2304, v18
v_lshl_add_u32 v18, v19, 4, v18
v_add_u32 v{VS+n}, s57, v18
""")
    a(f"v_mov_b32 v17, {OOB}\nv_cndmask_b32 v{VS+4}, v17, v{VS+4}, s[{sG01}:{sG01+1}]")
    a(f"v_add_u32 v14, 18432, v{vO}")
    SO = [8, 9, 10, 11, 12, 13, 14, 15, 36]
    rho(37)
    a(f"s_movk_i32 s{SO[0]}, 16384")
    for j in range(1, 9):
        a(f"s_add_u32 s{sT}, s37, {2*j-2}\ns_and_b32 s{sT}, s{sT}, 15\ns_lshl_b32 s{SO[j]}, s{sT}, 10")
    a("s_waitcnt vmcnt(0)")
    stamp()
    a("s_barrier\ns_barrier")
    stamp()
    def oload(ks, rt):
        return f"buffer_load_dwordx4 {vr(OFR(ks, rt),4)}, v{14 if rt else vO}, s[{SWS}:{SWS+3}], s{SO[ks//2]} offen offset:{1024*(ks%2)} sc1"
    base = lambda ks: R1 if ks < 3 else 0 if 9 <= ks < 12 else R2_
    R2_ = 43008
    def wreads(ks, t):
        o = WO[ks] - base(ks)
        if t == 4:
            return [tr(wf(t), R2, o + 4096), tr(wf(t) + 2, R2, o + 4096 + 256)]
        return [tr(wf(t), R8 + t, o), tr(wf(t) + 2, R8 + t, o + 1024)]
    for ks in range(AH):
        a(oload(ks, 0)); a(oload(ks, 1))
    for t in range(5):
        for x in wreads(0, t): a(x)
    for ks in range(18):
        tiles = [[mf(ACC(t, rt), wf(t), OFR(ks, rt), ACC(t, rt) if ks else "0") for rt in range(2)] for t in range(5)]
        w0 = f"s_waitcnt vmcnt({2*min(AH - 1, 17 - ks)}) lgkmcnt(8)"
        if ks < 17:
            nxt = [wreads(ks + 1, t) for t in range(5)]
            if base(ks + 1) != base(ks):
                d = (base(ks + 1) - base(ks)) & 0xffffffff
                for t in range(5):
                    nxt[t][0] = f"v_add_u32 v{R8+t}, {d}, v{R8+t}\n" + nxt[t][0]
            first = []
            if ks + AH < 18:
                first = [oload(ks + AH, 0)]
                nxt[1][1] += "\n" + oload(ks + AH, 1)
            kstep(tiles, nxt, first, {t: "s_waitcnt lgkmcnt(7)" if t else w0 for t in range(5)})
        else:
            kstep(tiles, None, [], {t: f"s_waitcnt lgkmcnt({8 - 2*t})" if t else w0 for t in range(5)})
        if ks == 0:
            stamp()
    stamp()
    for rt in range(2):
        for t in range(5):
            d = 20 + 2*(rt*5 + t)
            a(cv(d, ACC(t, rt))); a(cv(d + 1, ACC(t, rt) + 2))
            if t == 4:
                a(f"s_mov_b64 exec, s[{sG01}:{sG01+1}]")
            a(f"ds_write_b64 v{vTW}, {vr(d,2)} offset:{rt*2304 + 32*t}")
            if t == 4:
                a("s_mov_b64 exec, -1")
    a("s_waitcnt lgkmcnt(0)")
    for n in range(5):
        a(f"ds_read_b128 {vr(112+4*n,4)}, v{vTR} offset:{1024*n}")
    for n in range(5):
        a(f"s_waitcnt lgkmcnt({4-n})")
        a(f"buffer_store_dwordx4 {vr(112+4*n,4)}, v{VS+n}, s[{SOUT}:{SOUT+3}], 0 offen")
    stamp()
    stamps_out(0)
    a("s_endpgm")

HEADER = open("concat_heads__sliding_local_dilated__linear_attn_block__prompt.s.ref").read().split("; Override")[0]
out = HEADER + "; @launch grid=(256,1,1) block=(512,1,1) lds=163840\n"
a('.amdgcn_target "amdgcn-amd-amdhsa--gfx950"\n.text')
a(kernel_head(KN))
if OPT["stamps"]:
    for i in range(16):
        a(f"s_mov_b32 s{sST+2*i}, 0")
stamp()
a(f"""
s_cmp_ge_u32 s2, 256
s_cbranch_scc1 L_end
s_and_b32 s{sT}, s2, 7
s_lshr_b32 s{sBR}, s{sT}, 2
{'s_xor_b32 s6, s6, 1' if OPT.get('swap') else ''}
s_mul_i32 s{sT2}, s{sBR}, 24
s_add_u32 s0, s0, s{sT2}
s_addc_u32 s1, s1, 0
s_load_dwordx4 s[36:39], s[0:1], 0
s_load_dwordx2 s[40:41], s[0:1], 16
s_sub_u32 s0, s0, s{sT2}
s_subb_u32 s1, s1, 0
s_load_dwordx4 s[44:47], s[0:1], 48
s_load_dwordx2 s[48:49], s[0:1], 64
v_lshrrev_b32 v1, 6, v0
v_and_b32 v0, 63, v0
v_readfirstlane_b32 s{sWAVE}, v1
s_lshr_b32 s{sT2}, s2, 3
""")
m84 = f"""
s_and_b32 s{sHG}, s{sT2}, 3
s_and_b32 s{sT3}, s{sT}, 1
s_lshl_b32 s{sT3}, s{sT3}, 2
s_add_u32 s{sHG}, s{sHG}, s{sT3}
s_lshr_b32 s{sRB}, s{sT2}, 2
s_and_b32 s{sT3}, s{sT}, 2
s_lshl_b32 s{sT3}, s{sT3}, 2
s_add_u32 s{sRB}, s{sRB}, s{sT3}
"""
m48 = f"""
s_and_b32 s{sHG}, s{sT2}, 7
s_lshr_b32 s{sRB}, s{sT2}, 3
s_and_b32 s{sT3}, s{sT}, 3
s_lshl_b32 s{sT3}, s{sT3}, 2
s_add_u32 s{sRB}, s{sRB}, s{sT3}
"""
if OPT["mapping"] == 84:
    a(m84)
elif OPT["mapping"] == 48:
    a(m48)
else:
    a(m48 + f"s_cmp_eq_u32 s{sBR}, {0 if OPT['mapping'] == 8448 else 1}\ns_cbranch_scc0 L_map" + m84 + "L_map:")
rot = ""
if OPT.get("rot") == 2:
    rot = f"""s_lshr_b32 s90, s2, 1
s_xor_b32 s90, s90, s2
s_and_b32 s90, s90, 1
s_mul_i32 s91, s90, {OPT.get("rotby", 5)*128}
s_mul_i32 s90, s90, {OPT.get("rotby", 5)*64*3456}"""
elif OPT.get("rot") == 3:
    rot = f"""s_lshr_b32 s90, s2, 1
s_xor_b32 s90, s90, s2
s_and_b32 s90, s90, 1
s_mul_i32 s90, s90, 5
s_add_u32 s91, s{sRB}, s{sHG}
s_and_b32 s91, s91, 3
s_add_u32 s90, s90, s91
s_lshl_b32 s91, s90, 7
s_mul_i32 s90, s90, {64*3456}"""
elif OPT.get("rot") == 7:
    rot = f"""s_and_b32 s90, s{sHG}, 3
s_and_b32 s91, s{sRB}, 7
s_lshl1_add_u32 s90, s90, s91
s_cmp_ge_u32 s90, 9
s_cselect_b32 s91, 9, 0
s_sub_u32 s90, s90, s91
s_lshl_b32 s91, s90, 7
s_mul_i32 s90, s90, {64*3456}"""
elif OPT.get("rot") in (4, 5, 6):
    tab = {4: 0x75207520, 5: 0x63006300, 6: 0x86427531}[OPT["rot"]]
    rot = f"""s_add_u32 s90, s{sRB}, s{sHG}
s_and_b32 s90, s90, 7
s_lshl_b32 s90, s90, 2
s_lshr_b32 s90, {hex(OPT.get("tab", tab))}, s90
s_and_b32 s90, s90, 15
s_lshl_b32 s91, s90, 7
s_mul_i32 s90, s90, {64*3456}"""
elif OPT.get("rot"):
    few, many = (sRB, sHG) if OPT["mapping"] == 48 else (sHG, sRB)
    rot = f"""s_and_b32 s90, s{few}, 3
s_lshl_b32 s90, s90, 2
s_lshr_b32 s90, 0x7520, s90
s_and_b32 s90, s90, 15
s_and_b32 s91, s{many}, 7
s_add_u32 s90, s90, s91
s_cmp_ge_u32 s90, 9
s_cselect_b32 s91, 9, 0
s_sub_u32 s90, s90, s91
s_lshl_b32 s91, s90, 7
s_mul_i32 s90, s90, {64*3456}"""
a(f"""
s_mov_b32 s{sG0}, 0xffff
s_mov_b32 s{sG0+1}, 0
s_mov_b32 s{sG01}, -1
s_mov_b32 s{sG01+1}, 0
s_and_b32 s{sV}, s{sWAVE}, 1
s_mul_i32 s{sM}, s{sHG}, 144
s_cmp_lt_u32 s{sWAVE}, 4
s_cbranch_scc1 L_cons
s_setprio {OPT.get("prio", 2)}
s_mov_b32 s59, 0
{rot}
s_cmp_lt_u32 s{sWAVE}, 6
s_cbranch_scc1 L_wld
s_cmp_eq_u32 s{sBR}, 0
s_cbranch_scc1 L_AX0
s_branch L_BX0
L_wld:
s_cmp_eq_u32 s{sBR}, 0
s_cbranch_scc1 L_AW0
s_branch L_BW0
L_cons:
s_getpc_b64 s[42:43]
L_pc:
s_lshl_b32 s{sT}, s{sT2}, 2
s_add_u32 s{sT}, s{sT}, s{sWAVE}
s_lshl_b32 s{sT}, s{sT}, 9
v_and_b32 v1, 3, v0
v_lshlrev_b32 v1, 7, v1
v_add_u32 v1, s{sT}, v1
v_min_u32 v1, {'L_last2' if OPT.get('ifetch') == 1 else 'L_last'}-L_pc, v1
{'global_load_dword v27, v1, s[42:43]' if not OPT.get('nopf') else ''}
s_cmp_eq_u32 s{sBR}, 0
s_cbranch_scc1 L_AC
s_branch L_BC
L_end:
s_endpgm
""")
w_head("A"); w_head("B"); x_head("A"); x_head("B")
n0 = nstamp[0]
for fn in (lambda: a_loader("W"), lambda: a_loader("X"), a_consumer, lambda: b_loader("W"), lambda: b_loader("X"), b_consumer, p2_consumer):
    nstamp[0] = n0
    fn()
a("s_endpgm" if OPT.get("ifetch", 0) > 1 else "L_last2:\ns_endpgm" if OPT.get("ifetch") else "L_last:\ns_endpgm")
lines = []
for l in a.lines: lines += l.split("\n")
if OPT.get("noread"):
    lines = [l for l in lines if not l.startswith("ds_read_b64_tr")]
if OPT.get("nomfma"):
    lines = [l for l in lines if not l.startswith("v_mfma")]
lines, added = hz.fix(lines)
out += "\n".join(lines) + "\n"
out += '.section .rodata,"a"\n.p2align 6\n' + kernel_desc(KN, 256, 102 if OPT.get('cyc') else 100, 256)
sys.stdout.write(out)
sys.stderr.write(f"nop states added: {added}\n")
```

```python
import sys, struct
from asmlib import *
import hz

OPT = dict(stamps=0, mapping=48, ahead=6, rot=4, nt=1)
for arg in sys.argv[1:]:
    k, v = arg.split("=")
    OPT[k] = int(v)
KN = "concat_heads__sliding_local_dilated__linear_attn_block__prompt_kernel"

def f32(x):
    return "0x%08x" % struct.unpack("<I", struct.pack("<f", x))[0]

LOG2E = 1.4426950408889634
CSC = 18 ** -0.5 * LOG2E
NEG = "0xf149f2ca"
EPS = f32(1e-6)
OOB = "0x80000000"

O_BR = 0x240000
WS_KV = 0x500000
KV_ST = 0x2000
WS_CNT = 0x540000
WS_STAMP = 0x600000
WS_SIZE = 0x700000

sWAVE, sHG, sRB, sBR, sT = 3, 4, 5, 6, 7
SX, SW, SWS, SDBG, SWO, SOUT = 8, 12, 16, 20, 24, 28
sG0, sG01 = 32, 34
sK, sV, sM, sT2, sT3 = 50, 51, 52, 53, 54
sST = 60

a = Asm()
nstamp = [0]

def stamp():
    if OPT["stamps"]:
        i = nstamp[0]; nstamp[0] += 1
        assert i < 15
        a(f"{'s_memrealtime' if OPT.get('rt') or OPT.get('probe') and not (OPT.get('cyc') and i) else 's_memtime'} s[{sST+2*i}:{sST+2*i+1}]")
        if OPT.get("cyc") and i == 0:
            a("s_memtime s[100:101]")

def stamps_out(last=-1):
    if not OPT["stamps"]:
        return
    if OPT.get("probe"):
        if last == OPT.get("pwave", 0):
            j = sST + 2 * OPT["probe"]
            if OPT.get("ifetch"):
                mode = OPT["ifetch"]
                a(f"""
s_waitcnt vmcnt(0) lgkmcnt(0)
s_cmp_eq_u32 s2, {OPT.get('wg', 0)}
s_cbranch_scc0 L_probe_x
s_cmp_eq_u32 s{sWAVE}, 0
s_cbranch_scc0 L_probe_x
s_sleep 127
s_sleep 127
s_getpc_b64 s[44:45]
L_if_pc:
s_add_u32 s44, s44, L_if_blk-L_if_pc
s_addc_u32 s45, s45, 0
v_lshlrev_b32 v1, 7, v0
v_min_u32 v1, 4096, v1
""")
                if mode == 2:
                    a("global_load_dword v2, v1, s[44:45]\ns_waitcnt vmcnt(0)")
                a(f"""
s_memtime s[100:101]
s_waitcnt lgkmcnt(0)
s_branch L_if_blk
L_last:
.fill {(0 if mode == 1 else 8192)}, 4, 0xbf800000
L_if_blk:
.rept 512
v_add3_u32 v5, v0, v0, v0
.endr
s_memtime s[{j}:{j+1}]
s_waitcnt lgkmcnt(0)
s_sub_u32 s{j}, s{j}, s100
s_lshl_b32 s{j}, s{j}, 3
s_add_u32 s{j}, s{j}, s100
""")
            if OPT.get("vrate"):
                isw = OPT["vrate"] == 1
                a(f"""
s_waitcnt vmcnt(0) lgkmcnt(0)
s_load_dwordx2 s[44:45], s[0:1], {8 if isw else 0}
s_sleep 127
s_sleep 127
s_waitcnt lgkmcnt(0)
s_mov_b32 s46, {1990656 if isw else 2359296}
s_mov_b32 s47, 0x20000
v_lshrrev_b32 v1, 3, v0
v_mul_u32_u24 v1, {3456 if isw else 2304}, v1
v_and_b32 v2, 7, v0
v_lshl_add_u32 v1, v2, 4, v1
s_mov_b32 m0, 0
""")
                for rep in range(2):
                    if rep:
                        a("s_memtime s[100:101]\ns_waitcnt lgkmcnt(0)")
                    a(f"s_mov_b32 s40, 0\nL_vr{rep}:")
                    for n in range(3):
                        a(f"buffer_load_dwordx4 v1, s[44:47], s40 offen offset:{n*1152 if isw else n*128} lds")
                    a(f"s_waitcnt vmcnt(24)\ns_add_u32 s40, s40, {8*3456 if isw else 8*2304}\ns_cmp_lt_u32 s40, {72*8*3456 if isw else 72*8*2304}\ns_cbranch_scc1 L_vr{rep}\ns_waitcnt vmcnt(0)")
                a(f"s_memtime s[{j}:{j+1}]\ns_waitcnt lgkmcnt(0)\ns_sub_u32 s{j}, s{j}, s100\ns_lshl_b32 s{j}, s{j}, 3\ns_add_u32 s{j}, s{j}, s100")
            if OPT.get("skew"):
                op = "max" if OPT["skew"] in (1, 3) else "min"
                a(f"""
s_waitcnt vmcnt(0) lgkmcnt(0)
v_lshlrev_b32 v1, {4 if OPT['skew'] < 3 else 5}, v0
{'v_and_b32 v1, 0x3e0, v1' if OPT['skew'] >= 3 else ''}
v_add_u32 v1, 0x6f0000, v1
buffer_load_dwordx4 v[4:7], v1, s[{SWS}:{SWS+3}], 0 offen sc1
s_waitcnt vmcnt(0)
v_subrev_u32 v4, s{sST}, v4
v_subrev_u32 v5, s{sST}, v5
v_subrev_u32 v6, s{sST}, v6
v_subrev_u32 v7, s{sST}, v7
""")
                if OPT["skew"] < 3:
                    a(f"v_{op}_i32 v4, v4, v5\nv_{op}_i32 v6, v6, v7\nv_{op}_i32 v4, v4, v6")
                a("s_mov_b32 s44, 0\ns_nop 4")
                for l in range(64):
                    a(f"v_readlane_b32 s45, v4, {l}\ns_nop 3\ns_{op}_i32 s44, s44, s45")
                a(f"s_abs_i32 s44, s44\ns_add_u32 s{j}, s{sST}, s44")
            if OPT.get("ptr"):
                a(f"s_waitcnt vmcnt(0) lgkmcnt(0)\ns_load_dword s44, s[0:1], {OPT['ptr'] - 8}\ns_waitcnt lgkmcnt(0)\ns_lshr_b32 s44, s44, {OPT.get('sh', 4)}\ns_and_b32 s44, s44, 0xff\ns_mul_i32 s44, s44, 10\ns_add_u32 s{j}, s{sST}, s44")
            if OPT.get("tlb"):
                a(f"""
s_waitcnt vmcnt(0) lgkmcnt(0)
s_cmp_eq_u32 s{sWAVE}, 0
s_cbranch_scc0 L_probe_x
s_load_dwordx2 s[44:45], s[0:1], {OPT['tlb'] - 8}
s_sleep 127
s_sleep 127
s_waitcnt lgkmcnt(0)
s_mov_b32 s46, 0x1e0000
s_mov_b32 s47, 0x20000
v_lshlrev_b32 v1, {OPT.get('sh', 12)}, v0
""")
                for rep in range(2):
                    if rep:
                        a("s_memtime s[100:101]\ns_waitcnt lgkmcnt(0)")
                    a(f"s_mov_b32 s40, 0\nL_vr{rep}:")
                    for n in range(4):
                        a(f"s_add_u32 s41, s40, {n << (OPT.get('sh', 12) + 6)}\nbuffer_load_dword v{4+n}, v1, s[44:47], s41 offen")
                    st = 128 if OPT.get('sh', 12) > 7 else 32768
                    a(f"s_waitcnt vmcnt(4)\ns_add_u32 s40, s40, {st}\ns_cmp_lt_u32 s40, {16*st}\ns_cbranch_scc1 L_vr{rep}\ns_waitcnt vmcnt(0)")
                a(f"s_memtime s[{j}:{j+1}]\ns_waitcnt lgkmcnt(0)\ns_sub_u32 s{j}, s{j}, s100\ns_lshl_b32 s{j}, s{j}, 2\ns_add_u32 s{j}, s{j}, s100")
            if OPT.get("tlb2"):
                nb = OPT["tlb2"]
                a(f"""
s_waitcnt vmcnt(0) lgkmcnt(0)
s_cmp_eq_u32 s{sWAVE}, 0
s_cbranch_scc0 L_probe_x
s_load_dwordx2 s[8:9], s[0:1], 0
s_load_dwordx2 s[12:13], s[0:1], 8
s_load_dwordx2 s[24:25], s[0:1], 24
s_load_dwordx2 s[44:45], s[0:1], 32
s_sleep 127
s_sleep 127
s_waitcnt lgkmcnt(0)
v_lshlrev_b32 v1, 12, v0
""")
                for r_ in (8, 12, 24, 44):
                    a(f"s_mov_b32 s{r_+2}, 0x1e0000\ns_mov_b32 s{r_+3}, 0x20000")
                for rep in range(2):
                    if rep:
                        a("s_memtime s[100:101]\ns_waitcnt lgkmcnt(0)")
                    a(f"s_mov_b32 s40, 0\nL_vr{rep}:")
                    for r_ in (8, 12, 24, 44)[:nb]:
                        for n in range(7):
                            a(f"s_add_u32 s41, s40, {n << 18}\nbuffer_load_dword v{4+n}, v1, s[{r_}:{r_+3}], s41 offen\ns_waitcnt vmcnt(7)")
                    a(f"s_add_u32 s40, s40, 128\ns_cmp_lt_u32 s40, {128*16//nb}\ns_cbranch_scc1 L_vr{rep}\ns_waitcnt vmcnt(0)")
                a(f"s_memtime s[{j}:{j+1}]\ns_waitcnt lgkmcnt(0)\ns_sub_u32 s{j}, s{j}, s100\ns_lshl_b32 s{j}, s{j}, 1\ns_add_u32 s{j}, s{j}, s100")
            if OPT.get("lat"):
                a(f"""
s_waitcnt vmcnt(0) lgkmcnt(0)
s_load_dwordx2 s[44:45], s[0:1], {OPT['lat'] - 8}
s_sleep 127
s_sleep 127
s_sleep 127
s_waitcnt lgkmcnt(0)
s_mov_b32 s46, 0x100000
s_mov_b32 s47, 0x20000
v_mov_b32 v1, 0x20000
buffer_load_dword v2, v1, s[44:47], 0 offen {'sc1' if OPT.get('first') != 2 else ''}
s_waitcnt vmcnt(0)
v_mov_b32 v1, {'0x20000' if not OPT.get('first') else '0x20040'}
s_memtime s[100:101]
s_waitcnt lgkmcnt(0)
buffer_load_dword v2, v1, s[44:47], 0 offen sc1
s_waitcnt vmcnt(0)
s_memtime s[{j}:{j+1}]
s_waitcnt lgkmcnt(0)
s_sub_u32 s{j}, s{j}, s100
s_lshl_b32 s{j}, s{j}, 5
s_add_u32 s{j}, s{j}, s100
""")
            if OPT.get("xcc"):
                a(f"""
s_waitcnt vmcnt(0) lgkmcnt(0)
v_and_b32 v1, 31, v0
v_lshlrev_b32 v1, {5 if OPT['xcc'] == 1 else 2}, v1
v_add_u32 v1, 0x6f0000, v1
buffer_load_dword v2, v1, s[{SWS}:{SWS+3}], 0 offen sc1
s_getreg_b32 s44, hwreg(HW_REG_XCC_ID, 0, 4)
s_waitcnt vmcnt(0)
v_cmp_eq_u32 vcc, s44, v2
s_bcnt1_i32_b32 s44, vcc_lo
s_mul_i32 s44, s44, 10
s_add_u32 s{j}, s{sST}, s44
""")
            a(f"""
s_waitcnt vmcnt(0) lgkmcnt(0)
s_cmp_eq_u32 s2, {OPT.get('wg', 0)}
s_cbranch_scc0 L_probe_x
s_cmp_eq_u32 s{sWAVE}, {last}
s_cbranch_scc0 L_probe_x
s_sub_u32 s{sT}, s{j}, s{100 if OPT.get('cyc') else sST}
{'s_lshr_b32 s7, s7, 3' if OPT.get('cyc') else 's_mul_i32 s7, s7, 10'}
s_min_u32 s{sT}, s{sT}, 100000
s_add_u32 s{sT}, s{sT}, 6000
L_probe:
s_memrealtime s[44:45]
s_waitcnt lgkmcnt(0)
s_sub_u32 s44, s44, s{sST}
s_cmp_lt_u32 s44, s{sT}
s_cbranch_scc1 L_probe
L_probe_x:
""")
        return
    a("s_waitcnt vmcnt(0) lgkmcnt(0)")
    a(f"s_lshl_b32 s{sT}, s2, 3\ns_add_u32 s{sT}, s{sT}, s{sWAVE}\ns_lshl_b32 s{sT}, s{sT}, 6")
    a(f"s_add_u32 s{sT}, s{sT}, {WS_STAMP}\nv_mov_b32 v1, s{sT}")
    for i in range(16):
        a(f"v_mov_b32 v2, s{sST+2*i}")
        a(f"buffer_store_dword v2, v1, s[{SWS}:{SWS+3}], 0 offen offset:{4*i}")
    a("s_waitcnt vmcnt(0)")

def mf(d, s0, s1, c):
    cc = c if isinstance(c, str) else vr(c, 4)
    return f"v_mfma_f32_16x16x32_bf16 {vr(d,4)}, {vr(s0,4)}, {vr(s1,4)}, {cc}"
def cv(d, x):
    return f"v_cvt_pk_bf16_f32 v{d}, v{x}, v{x+1}"
def tr(d, addr, off):
    return f"ds_read_b64_tr_b16 {vr(d,2)}, v{addr} offset:{off}"
def weave(mfmas, others, per=2):
    o = list(others)
    for m in mfmas:
        a(m)
        for _ in range(per):
            if o: a(o.pop(0))
    for x in o: a(x)

def srd(dst, lo, nbytes):
    a(f"s_mov_b32 s{dst}, s{lo}\ns_mov_b32 s{dst+1}, s{lo+1}\ns_mov_b32 s{dst+2}, {nbytes}\ns_mov_b32 s{dst+3}, 0x20000")
def srds_rest():
    srd(SWO, 40, 663552); srd(SOUT, 44, 4718592); srd(SDBG, 46, 256); srd(SWS, 48, WS_SIZE)

class M0:
    def __init__(self, base): self.base = base; self.cur = None
    def set(self, imm):
        if self.cur is not None and -32768 <= imm - self.cur <= 32767:
            a(f"s_addk_i32 m0, {imm - self.cur}")
        else:
            a(f"s_add_u32 m0, s{self.base}, {imm}")
        self.cur = imm

CUR = [0]
def dma(voff, srd_, soff, half=False):
    if OPT.get("nodma") or (OPT.get("nos") and voff == VD + 6 and srd_ == SW and not half):
        return
    if half: a(f"s_mov_b64 exec, s[{sG01}:{sG01+1}]")
    nt = " nt" if OPT.get("nt", 0) >> {SX: 0, SW: 1, SWO: 2}[srd_] & 1 and CUR[0] < OPT.get("ntc", 99) else ""
    a(f"buffer_load_dwordx4 v{voff}, s[{srd_}:{srd_+3}], {soff} offen{nt} lds")
    if half: a("s_mov_b64 exec, -1")

def rd_lanes(r8, r2, t0, t1):
    a(f"""
v_lshrrev_b32 v{t0}, 5, v0
v_lshlrev_b32 v{t0}, 4, v{t0}
v_bfe_u32 v{t1}, v0, 4, 1
v_lshl_add_u32 v{t0}, v{t1}, 2, v{t0}
v_bfe_u32 v{t1}, v0, 2, 2
v_add_u32 v{t0}, v{t0}, v{t1}
v_and_b32 v{t1}, 3, v0
v_lshlrev_b32 v{t1}, 3, v{t1}
v_lshl_add_u32 v{r2}, v{t0}, 5, v{t1}
v_lshl_add_u32 v{r8}, v{t0}, 7, v{t1}
v_bfe_u32 v{t0}, v{t0}, 1, 2
v_lshl_add_u32 v{r8}, v{t0}, 5, v{r8}
""")
    for t in (1, 2, 3):
        a(f"v_xor_b32 v{r8+t}, {32*t}, v{r8}")

def x_lane(d0, d1, tmp):
    a(f"""
v_lshrrev_b32 v{d0}, 4, v0
v_bfe_u32 v{tmp}, v0, 1, 3
v_xor_b32 v{d0}, v{d0}, v{tmp}
v_and_b32 v{tmp}, 15, v0
v_lshlrev_b32 v{tmp}, 7, v{tmp}
v_lshl_add_u32 v{d0}, v{d0}, 4, v{tmp}
v_xor_b32 v{d1}, 64, v{d0}
""")

def col8(dst, tmp):
    a(f"v_bfe_u32 v{tmp}, v0, 4, 2\nv_lshlrev_b32 v{tmp}, 1, v{tmp}\nv_and_b32 v{dst}, 7, v0\nv_xor_b32 v{dst}, v{dst}, v{tmp}\nv_lshlrev_b32 v{dst}, 4, v{dst}")

def head_of(dst, src):
    a(f"v_mul_u32_u24 v{dst}, 57, v{src}\nv_lshrrev_b32 v{dst}, 10, v{dst}")

sOC, sKC, sFO, sFK = 92, 94, 96, 97

def arrive_wait(addr, target, label, arrive=True):
    if arrive:
        a(f"s_mov_b32 s{sT}, 1\ns_atomic_add s{sT}, s[{addr}:{addr+1}], 0 glc\ns_waitcnt lgkmcnt(0)\ns_cmp_ge_u32 s{sT}, {target-1}\ns_cbranch_scc1 {label}_x")
    a(f"""
s_mov_b32 s{sT3}, 0x20000
{label}:
s_mov_b32 s{sT}, 0
s_atomic_add s{sT}, s[{addr}:{addr+1}], 0 glc
s_waitcnt lgkmcnt(0)
s_sub_u32 s{sT3}, s{sT3}, 1
s_cbranch_scc1 {label}_x
s_cmp_ge_u32 s{sT}, {target}
s_cbranch_scc0 {label}
{label}_x:
""")

def flag_load(dst, offreg):
    a(f"s_load_dword s{dst}, s[{SDBG}:{SDBG+1}], s{offreg}")

def flag_check(val, offreg, label):
    a(f"""
s_mov_b32 s{sT3}, 0x20000
{label}:
s_waitcnt lgkmcnt(0)
s_cmp_lg_u32 s{val}, 0
s_cbranch_scc1 {label}_x
s_sub_u32 s{sT3}, s{sT3}, 1
s_cbranch_scc1 {label}_x
s_load_dword s{val}, s[{SDBG}:{SDBG+1}], s{offreg} glc
s_branch {label}
{label}_x:
""")

A_WSLOT, A_XSLOT = 14336, 18432
A_X0 = 5 * A_WSLOT
A_EX = A_X0 + 3 * A_XSLOT
B_KVSLOT, B_XSLOT = 9216, 16384
B_X0 = 5 * B_KVSLOT
B_EX = B_X0 + 3 * B_XSLOT
B_KVOP = 126976
B_STG = 136192
B_DUMP, B_LCNT = B_STG + 5632, B_STG + 6144
B_WQ0 = 143360
QORD = list(range(18))
def wq_slot(p):
    if p < 4: return B_WQ0 + 5120 * p
    if p < 7: return 5120 * (p - 4)
    if p < 13: return 40960 + 5120 * (p - 7)
    return 15360 + 5120 * (p - 13)
R1, R2 = 147456, 43008
WO = [R1, R1 + 5120, R1 + 10240] + [R2 + 5120 * n for n in range(6, 12)] + [0, 5120, 10240] + [R2 + 5120 * n for n in range(6)]
P_TR = 108544
SPLITS = {(1, 0): sG0, (2, 0): sG0, (2, 1): sG0, (3, 0): sG01, (3, 1): sG0}

VD = 16
VWO = 26
vCNT, vFLO, vFLK, vFO, vFK = 30, 31, 32, 33, 34

def w_head(kind):
    parts = (0, 1152, 2304) if kind == "A" else (1152, 2304)
    a(f"L_{kind}W0:")
    col8(VD, 1)
    a(f"""
v_bfe_u32 v1, v0, 5, 1
v_bfe_u32 v2, v0, 3, 2
v_lshl_add_u32 v1, v1, 3, v2
s_mul_i32 s{sT}, s{sV}, {16*3456}
s_add_u32 s{sT}, s{sT}, s{sM}
v_mul_u32_u24 v1, 3456, v1
v_add3_u32 v{VD}, v{VD}, v1, s{sT}
""")
    n = 2 * len(parts)
    for j in range(n - 1, -1, -1):
        off = parts[j // 2] + (j % 2) * 4 * 3456
        if off:
            a(f"v_add_u32 v{VD+j}, {off}, v{VD}")
    a(f"""
v_bfe_u32 v1, v0, 3, 1
v_bfe_u32 v2, v0, 4, 1
v_sub_u32 v1, v1, v2
v_lshrrev_b32 v2, 1, v0
v_lshl_add_u32 v1, v1, 2, v2
v_mul_u32_u24 v1, 3456, v1
v_and_b32 v2, 1, v0
""")
    if kind == "A":
        a(f"""
s_cmp_eq_u32 s{sV}, 0
s_cselect_b32 s{sT2}, 1152, 0
s_cselect_b32 s{sT}, 0, 2304
s_add_u32 s{sT}, s{sT}, s{sM}
s_addk_i32 s{sT}, 128
v_mad_u32_u24 v1, v2, s{sT2}, v1
v_add_u32 v{VD+6}, s{sT}, v1
""")
    else:
        a(f"""
s_add_u32 s{sT}, s{sT}, 128
v_add_u32 v{VD+7}, s{sT}, v1
v_mul_u32_u24 v2, 1152, v2
v_add_u32 v2, 1152, v2
v_add_u32 v{VD+4}, v2, v{VD+7}
""")
    a(f"s_lshl_b32 s42, s{sV}, 11\ns_lshl_b32 s43, s{sV}, {10 if kind == 'A' else 9}\ns_sub_u32 s43, s43, s42")
    a("s_waitcnt lgkmcnt(0)")
    srd(SW, 38, 1990656)
    m = M0(42)
    w_issue(kind, 0, m)
    a(f"s_branch L_{kind}W1")

def w_issue(kind, c, m):
    CUR[0] = c
    slot = (c % 5) * (A_WSLOT if kind == "A" else B_KVSLOT)
    n = 6 if kind == "A" else 4
    so = f"s{sK}" if c else "0"
    if OPT.get("rot"):
        so = "s90"
        if c:
            a(f"s_add_u32 s90, s90, {32*3456}\ns_cmp_eq_u32 s90, {18*32*3456}\ns_cselect_b32 s90, 0, s90")
    elif c:
        a(f"s_mov_b32 s{sK}, {c*32*3456}")
    for j in range(n):
        m.set(slot + 4096 * (j // 2) + 1024 * (j % 2))
        dma(VD + j, SW, so)
        if OPT.get("lp") == 10 + j and c == OPT.get("lpi", 6) + 4 and kind == "A":
            stamp()
            j_ = sST + 2*(nstamp[0]-1)
            a(f"s_waitcnt lgkmcnt(0)\ns_sub_u32 s{j_}, s{j_}, s100\ns_lshl_b32 s{j_}, s{j_}, 4\ns_add_u32 s{j_}, s{j_}, s100")
    m.set(slot + 4096 * (n // 2))
    a("s_add_u32 m0, m0, s43")
    m.cur = None
    dma(VD + n, SW, so, half=(kind == "B"))
    return n + 1

def wq_issue(p, m):
    if OPT.get("rot"):
        a(f"s_add_u32 s{sK}, s90, {(p+1)*32*3456}\ns_cmp_ge_u32 s{sK}, {18*32*3456}\ns_cselect_b32 s{sT}, {18*32*3456}, 0\ns_sub_u32 s{sK}, s{sK}, s{sT}")
    else:
        a(f"s_mov_b32 s{sK}, {QORD[p]*32*3456}")
    for j in range(2):
        m.set(wq_slot(p) + 1024 * j)
        dma(VD + 5 + j, SW, f"s{sK}")
    m.set(wq_slot(p) + 4096)
    a("s_add_u32 m0, m0, s43")
    m.cur = None
    dma(VD + 7, SW, f"s{sK}", half=True)
    return 3

def x_head(kind):
    nq = 9 if kind == "A" else 8
    a(f"L_{kind}X0:")
    a(f"""
v_lshrrev_b32 v1, 3, v0
v_mul_u32_u24 v1, {2304 if kind == 'A' else 1152}, v1
v_lshrrev_b32 v2, 4, v0
v_lshl_add_u32 v2, s{sV}, 2, v2
v_and_b32 v3, 7, v0
v_xor_b32 v2, v2, v3
v_lshl_add_u32 v1, v2, 4, v1
s_mul_i32 s{sT}, s{sRB}, {128*1152}
""")
    if kind == "A":
        a(f"""
s_mul_i32 s{sT2}, s{sV}, {16*1152}
s_add_u32 s{sT3}, s{sT}, s{sT2}
v_add_u32 v{VD}, s{sT3}, v1
s_sub_u32 s{sT3}, s{sT}, s{sT2}
s_add_u32 s{sT3}, s{sT3}, {17*1152}
v_add_u32 v{VD+4}, s{sT3}, v1
s_mul_i32 s{sT2}, s{sV}, 1152
s_sub_u32 s{sT3}, s{sT}, s{sT2}
s_sub_u32 s{sT3}, s{sT3}, {15*1152}
v_add_u32 v{VD+8}, s{sT3}, v1
""")
        for q in (1, 2, 3):
            a(f"v_add_u32 v{VD+q}, {32*1152*q}, v{VD}\nv_add_u32 v{VD+4+q}, {32*1152*q}, v{VD+4}")
    else:
        a(f"s_mul_i32 s{sT2}, s{sV}, {8*1152}\ns_add_u32 s{sT}, s{sT}, s{sT2}\nv_add_u32 v{VD}, s{sT}, v1")
        for q in range(1, 8):
            a(f"v_add_u32 v{VD+q}, {16*1152*q}, v{VD}")
    a(f"s_lshl_b32 s42, s{sV}, 10")
    a("s_waitcnt lgkmcnt(0)")
    srd(SX, 36, 2359296)
    x_issue(kind, 0, M0(42))
    a(f"s_branch L_{kind}X1")

def x_issue(kind, c, m):
    CUR[0] = c + (c & 1)
    nq, h, x0, xs = (9, 5, A_X0, A_XSLOT) if kind == "A" else (8, 4, B_X0, B_XSLOT)
    st = (c + 1) // 2
    if st > 8:
        return 0
    qs = range(nq) if c == 0 else (range(h) if c % 2 else range(h, nq))
    so = f"s{sK}" if st else "0"
    if OPT.get("rot"):
        so = "s91"
        if c % 2:
            a("s_addk_i32 s91, 128\ns_cmpk_eq_u32 s91, 1152\ns_cselect_b32 s91, 0, s91")
    elif st:
        a(f"s_movk_i32 s{sK}, {st*128}")
    for q in qs:
        m.set(x0 + (st % 3) * xs + 2048 * q)
        a("s_nop 0")
        dma(VD + q, SX, so)
    return len(qs)

def wo_setup(quad):
    col8(VWO, 1)
    a(f"""
s_mul_i32 s{sM}, s{sHG}, 144
v_add_u32 v{VWO}, s{sM}, v{VWO}
v_bfe_u32 v1, v0, 5, 1
v_bfe_u32 v2, v0, 3, 2
v_mul_u32_u24 v1, 72, v1
v_add_u32 v1, v1, v2
v_mul_u32_u24 v1, 1152, v1
v_add_u32 v{VWO+1}, v1, v{VWO}
v_lshrrev_b32 v1, 3, v0
v_mul_u32_u24 v1, 1152, v1
v_add_u32 v{VWO}, v1, v{VWO}
v_bfe_u32 v1, v0, 1, 2
v_bfe_u32 v2, v0, 3, 1
v_bfe_u32 v3, v0, 4, 1
v_bfe_u32 v4, v0, 5, 1
v_lshl_add_u32 v5, v2, 2, v1
v_lshl_add_u32 v5, v3, 4, v5
v_lshl_add_u32 v5, v4, 3, v5
v_mul_u32_u24 v5, 1152, v5
s_add_u32 s{sM}, s{sM}, 128
v_add_u32 v{VWO+2}, s{sM}, v5
v_lshl_add_u32 v5, v3, 2, v1
v_lshl_add_u32 v2, v4, 1, v2
v_mul_u32_u24 v2, 72, v2
v_add_u32 v5, v5, v2
v_mul_u32_u24 v5, 1152, v5
v_add_u32 v{VWO+3}, s{sM}, v5
s_and_b32 s55, s{sWAVE}, 3
s_lshl_b32 s57, s55, 3
""")
    rho(56)
    a(f"s_add_u32 s56, s56, s{55 if quad else sV}")

def rho(dst):
    few, many = (sRB, sHG) if OPT["mapping"] == 48 else (sHG, sRB)
    if OPT["mapping"] > 99:
        a(f"s_cmp_eq_u32 s{sBR}, {0 if OPT['mapping'] == 8448 else 1}\ns_cselect_b32 s{sT}, s{sHG}, s{sRB}\ns_cselect_b32 s{sT2}, s{sRB}, s{sHG}")
        few, many = sT, sT2
    a(f"s_lshl_b32 s{dst}, s{few}, 1\ns_add_u32 s{dst}, s{dst}, s{many}\ns_lshl_b32 s{dst}, s{dst}, 1")
    if not OPT.get("worot", 1):
        a(f"s_mov_b32 s{dst}, 0")

def wo_chunk(left, fadd):
    if left:
        a(f"s_mul_i32 s{sK}, s{sV}, {288*1152}\ns_add_u32 s{sK}, s{sK}, {64*1152}")
        steps = (4, 140, 4); v8, v2 = VWO + 1, VWO + 3
    else:
        a(f"""
s_add_u32 s{sT}, s56, {fadd}
s_bfe_u32 s{sK}, s{sT}, 0x30001
s_mul_i32 s{sK}, s{sK}, {72*1152}
s_bitcmp1_b32 s{sT}, 0
s_cselect_b32 s{sT}, {32*1152}, 0
s_add_u32 s{sK}, s{sK}, s{sT}
""")
        steps = (16, -8, 16); v8, v2 = VWO, VWO + 2
    a(f"s_mov_b32 s{sT2}, s{sK}")
    for j in range(4):
        dma(v8, SWO, f"s{sK}")
        a("s_addk_i32 m0, 1024")
        a(f"s_add_u32 s{sK}, s{sK}, {steps[j]*1152 & 0xffffffff}" if j < 3 else "s_nop 0")
    dma(v2, SWO, f"s{sT2}")
    return 5

def wo_issue(q):
    packed = sum((WO[2 + 4*q + w] // 1024) << (8 * w) for w in range(4))
    a(f"s_lshr_b32 s{sT}, {packed}, s57\ns_and_b32 s{sT}, s{sT}, 0xff\ns_lshl_b32 m0, s{sT}, 10")
    return wo_chunk(False, 4*q)

def wo_pair(g):
    a(f"s_mul_i32 s{sT}, s{sV}, {WO[2*g+1] - WO[2*g] & 0xffffffff}\ns_add_u32 m0, s{sT}, {WO[2*g]}")
    return wo_chunk(g == 0, 2*g - 2)

def sync_setup():
    a(f"""
s_lshl_b32 s{sT}, s{sBR}, 4
s_add_u32 s{sT}, s{sT}, s{sRB}
s_lshl_b32 s{sT2}, s{sT}, 8
s_add_u32 s{sT2}, s{sT2}, {WS_CNT}
s_add_u32 s{sOC}, s{SWS}, s{sT2}
s_addc_u32 s{sOC+1}, s{SWS+1}, 0
s_lshl_b32 s{sT}, s{sT}, 2
s_add_u32 s98, s{sT}, 32
s_lshl_b32 s99, s{sHG}, 2
s_mul_i32 s{sT2}, s{sHG}, {KV_ST}
s_add_u32 s{sT2}, s{sT2}, {WS_KV + 6144}
s_add_u32 s{sKC}, s{SWS}, s{sT2}
s_addc_u32 s{sKC+1}, s{SWS+1}, 0
""")

def loader_tail(tag, late=()):
    if tag[1] == "X":
        flag_check(sFO, 98, f"L_{tag}_fo")
    a("s_barrier")
    stamp()
    for g in late:
        wo_pair(g)
    if tag[1] == "X":
        a(f"s_cmp_eq_u32 s{sWAVE}, 6\ns_cbranch_scc0 L_{tag}_oc_x")
        arrive_wait(sOC, 8, f"L_{tag}_oc")
    a("s_waitcnt vmcnt(0)")
    stamp()
    a("s_barrier")
    stamps_out({"AW": 4, "AX": 6}.get(tag, -1))
    a("s_endpgm")

def a_loader(kind):
    a(f"L_A{kind}1:")
    m = M0(42)
    issue = (lambda c: w_issue("A", c, m)) if kind == "W" else (lambda c: x_issue("A", c, m))
    if OPT.get("prepass"):
        a("s_mov_b32 s58, s90\ns_mov_b32 s59, s91")
        n_ = {}
        for c in range(1, 18):
            if OPT["prepass"] == 2:
                a("s_mov_b32 s90, s58\ns_mov_b32 s91, s59")
            n_[c] = issue(c)
            a(f"s_waitcnt vmcnt({n_[c] + n_.get(c-1, 0)})")
            if c in (4, 9):
                stamp()
        a("s_waitcnt vmcnt(0)")
        stamp()
        a("s_barrier\ns_mov_b32 s90, s58\ns_mov_b32 s91, s59")
        m.cur = None
        issue(0)
    pre = 1 if OPT.get("early") and kind == "W" else 2
    cnt = {c: issue(c) for c in range(1, pre + 1)}
    stamp()
    x_lane(8, 9, 1)
    rd_lanes(36, 12, 1, 2)
    a(f"""
v_add_u32 v8, {A_X0 + 8*2048}, v8
v_add_u32 v9, {A_X0 + 8*2048}, v9
s_lshl_b32 s{sT}, s{sV}, 6
v_xor_b32 v10, s{sT}, v36
v_add_u32 v10, {4096 if kind == 'W' else 8192}, v10
v_xor_b32 v11, 32, v10
v_add_u32 v12, {12288 if kind == 'W' else 13312}, v12
v_add_u32 v13, {4*A_WSLOT}, v10
v_add_u32 v14, {4*A_WSLOT}, v11
v_add_u32 v15, {4*A_WSLOT}, v12
s_lshl_b32 s{sT}, s{sV}, 10
s_add_u32 s{sT}, s{sT}, {A_EX + (0 if kind == 'W' else 2560)}
v_lshlrev_b32 v7, 3, v0
v_add_u32 v6, s{sT}, v7
v_add_u32 v7, {A_EX + (2048 if kind == 'W' else 4608)}, v7
""")
    stamp()
    a(f"s_waitcnt vmcnt({sum(cnt.values())})\ns_barrier")
    stamp()
    extra = 0
    for i in range(-1, 17):
        ks = i + 1
        slot = ks % 5
        off = 0 if slot == 4 else slot * A_WSLOT
        ad = (13, 14, 15) if slot == 4 else (10, 11, 12)
        def lp(n):
            if OPT.get("lp") == n and i == OPT.get("lpi", 6):
                stamp()
                j_ = sST + 2*(nstamp[0]-1)
                a(f"s_waitcnt lgkmcnt(0)\ns_sub_u32 s{j_}, s{j_}, s100\ns_lshl_b32 s{j_}, s{j_}, 4\ns_add_u32 s{j_}, s{j_}, s100")
        if OPT.get("lp") and i == OPT.get("lpi", 6):
            a("s_memtime s[100:101]")
            if OPT["lp"] == 5:
                a(".rept 128\ns_mov_b32 s39, 0x12345\n.endr")
                lp(5)
        a(f"ds_read_b128 v[40:43], v{8 + ks % 2} offset:{(ks//2 % 3)*A_XSLOT}")
        for j in range(3 if OPT.get("nohalo", 0) < 2 else 0):
            a(tr(44 + 4*j, ad[j], off)); a(tr(46 + 4*j, ad[j], off + (1024 if j < 2 else 256)))
        if i == -1 and pre == 1:
            cnt[2] = issue(2)
        if i + 4 <= 17:
            cnt[i+4] = issue(i + 4)
        lp(1)
        a("s_waitcnt lgkmcnt(0)")
        for j in range(3 if not OPT.get("nohalo") else 0):
            c = 60 + 4*j if ks else "0"
            a(mf(60 + 4*j, 44 + 4*j, 40, c) if kind == "W" else mf(60 + 4*j, 40, 44 + 4*j, c))
        if i == 1:
            srds_rest(); sync_setup()
        if i == 2:
            wo_setup(True)
        if i == 14 and kind == "W":
            extra += wo_pair(0)
        if i == 15:
            extra += wo_issue(0)
        if i + 1 <= 16:
            left = sum(cnt.get(c, 0) for c in range(i + 3, min(i + 4, 17) + 1)) + extra
            lp(2)
            a(f"s_waitcnt vmcnt({left})")
            lp(3)
            a("s_barrier")
            lp(4)
            if OPT.get("fine") and kind == "W" and i % 2 == 1 and 0 < i < 14:
                stamp()
    for j in range(3):
        a(cv(44 + 2*j, 60 + 4*j)); a(cv(45 + 2*j, 62 + 4*j))
    if kind == "W":
        a("v_mov_b32 v50, 0\nv_mov_b32 v51, 0")
        a("v_permlane32_swap_b32 v48, v50\nv_permlane32_swap_b32 v49, v51")
    a("ds_write_b64 v6, v[44:45]\nds_write_b64 v6, v[46:47] offset:512")
    a(f"ds_write_b64 v7, {'v[50:51]' if kind == 'W' else 'v[48:49]'}")
    stamp()
    a("s_waitcnt lgkmcnt(0)\ns_barrier")
    if kind == "X":
        flag_load(sFO, 98)
    wo_issue(1); wo_issue(2); wo_issue(3)
    stamp()
    loader_tail("A" + kind)

def o_store_addr(vfull, vleft, tmp, left_lo):
    a(f"""
s_lshl_b32 s{sT}, s{sRB}, 3
s_lshl_b32 s{sT2}, s{sWAVE}, 1
s_add_u32 s{sT}, s{sT}, s{sT2}
s_mul_i32 s{sT}, s{sT}, 18432
s_mul_i32 s{sT2}, s{sBR}, {O_BR}
s_add_u32 s58, s{sT}, s{sT2}
s_lshl_b32 s{sT2}, s{sHG}, 11
s_add_u32 s{sT2}, s{sT2}, s58
v_lshl_add_u32 v{vfull}, v0, 4, s{sT2}
s_lshr_b32 s{sT2}, s{sHG}, 2
s_add_u32 s{sT2}, s{sT2}, 16
s_lshl_b32 s{sT2}, s{sT2}, 10
s_add_u32 s{sT}, s58, s{sT2}
s_and_b32 s{sT2}, s{sHG}, 3
s_lshl_b32 s{sT2}, s{sT2}, 8
s_add_u32 s{sT}, s{sT}, s{sT2}
v_and_b32 v{vleft}, 15, v0
v_lshlrev_b32 v{vleft}, 4, v{vleft}
v_bfe_u32 v{tmp}, v0, 4, 1
v_lshl_add_u32 v{vleft}, v{tmp}, 3, v{vleft}
v_add_u32 v{vleft}, s{sT}, v{vleft}
v_mov_b32 v{tmp}, {OOB}
""")
    x, y = (tmp, vleft) if left_lo else (vleft, tmp)
    a(f"v_cndmask_b32 v{vleft}, v{x}, v{y}, s[{sG01}:{sG01+1}]")

def o_store(of, vfull, vleft, rt):
    so = f"s{sK}" if rt else "0"
    if rt:
        a(f"s_movk_i32 s{sK}, 18432")
    a(f"buffer_store_dwordx4 {vr(of,4)}, v{vfull}, s[{SWS}:{SWS+3}], {so} offen sc1")
    a(f"buffer_store_dwordx4 {vr(of+4,4)}, v{vfull}, s[{SWS}:{SWS+3}], {so} offen offset:1024 sc1")
    a(f"buffer_store_dwordx2 {vr(of+8,2)}, v{vleft}, s[{SWS}:{SWS+3}], {so} offen sc1")

def gap_touch(tag, parts):
    if not OPT.get("touch"):
        return
    nt = " nt" if OPT.get("tnt") else ""
    a(f"""
s_cmp_eq_u32 s{sWAVE}, 1
s_cbranch_scc1 L_{tag}_tw
s_cmp_eq_u32 s{sWAVE}, 2
s_cbranch_scc0 L_{tag}_tx
s_and_b32 s{sT}, s{sRB}, 7
s_cmp_eq_u32 s{sT}, 0
s_cselect_b32 s{sT}, 9, s{sT}
s_sub_u32 s{sT}, s{sT}, 1
s_lshl_b32 s{sT}, s{sT}, 7
s_and_b32 s{sT2}, s{sHG}, 3
s_lshl_b32 s{sT2}, s{sT2}, 5
s_lshl_b32 s{sT3}, s{sRB}, 7
s_add_u32 s{sT2}, s{sT2}, s{sT3}
v_and_b32 v1, 31, v0
v_add_u32 v1, s{sT2}, v1
v_mul_u32_u24 v1, 1152, v1
""")
    srd(SX, 36, 2359296)
    a(f"""
buffer_load_dword v26, v1, s[{SX}:{SX+3}], s{sT} offen{nt}
s_branch L_{tag}_tx
L_{tag}_tw:
s_and_b32 s{sT}, s{sHG}, 3
s_lshl_b32 s{sT}, s{sT}, 1
s_cmp_eq_u32 s{sT}, 0
s_cselect_b32 s{sT}, 9, s{sT}
s_sub_u32 s{sT}, s{sT}, 1
s_lshl_b32 s{sT}, s{sT}, 3
s_and_b32 s{sT2}, s{sRB}, 7
s_add_u32 s{sT}, s{sT}, s{sT2}
s_mul_i32 s{sT}, s{sT}, {8*3456}
s_add_u32 s{sT}, s{sT}, s{sM}
v_lshrrev_b32 v1, 3, v0
v_mul_u32_u24 v1, 3456, v1
v_bfe_u32 v2, v0, 1, 2
v_min_u32 v2, {parts-1}, v2
v_mul_u32_u24 v2, 1152, v2
v_and_b32 v3, 1, v0
v_mul_u32_u24 v3, 140, v3
v_add3_u32 v1, v1, v2, v3
""")
    srd(SW, 38, 1990656)
    a(f"buffer_load_dword v26, v1, s[{SW}:{SW+3}], s{sT} offen offset:{1152*(3-parts)}{nt}\nL_{tag}_tx:")

def init_stores(tag, with_kv):
    if OPT.get("skew"):
        a(f"v_mov_b32 v2, s{sST}\ns_lshl_b32 s{sT}, s2, 2\ns_add_u32 s{sT}, s{sT}, 0x6f0000\nv_mov_b32 v1, s{sT}\nbuffer_store_dword v2, v1, s[{SWS}:{SWS+3}], 0 offen sc1")
    if OPT.get("xcc"):
        a(f"s_getreg_b32 s{sT}, hwreg(HW_REG_XCC_ID, 0, 4)\nv_mov_b32 v2, s{sT}\ns_lshl_b32 s{sT}, s2, 2\ns_add_u32 s{sT}, s{sT}, 0x6f0000\nv_mov_b32 v1, s{sT}\nbuffer_store_dword v2, v1, s[{SWS}:{SWS+3}], 0 offen sc1")
    a(f"""
s_or_b32 s{sT}, s{sHG}, s{sWAVE}
s_cmp_eq_u32 s{sT}, 0
s_cselect_b32 s55, 1, 0
v_mov_b32 v20, 0
v_mov_b32 v21, 0
v_mov_b32 v22, 0
v_mov_b32 v23, 0
s_cbranch_scc0 L_{tag}_i1
s_lshl_b32 s{sT}, s{sBR}, 4
s_add_u32 s{sT}, s{sT}, s{sRB}
s_lshl_b32 s{sT}, s{sT}, 8
s_add_u32 s{sT}, s{sT}, {WS_CNT}
v_mov_b32 v24, s{sT}
buffer_store_dword v20, v24, s[{SWS}:{SWS+3}], 0 offen sc1
L_{tag}_i1:
""")
    if with_kv:
        a(f"""
s_or_b32 s{sT}, s{sRB}, s{sWAVE}
s_cmp_eq_u32 s{sT}, 0
s_cbranch_scc0 L_{tag}_i2
s_or_b32 s55, s55, 2
s_mul_i32 s{sT}, s{sHG}, {KV_ST}
s_add_u32 s{sT}, s{sT}, {WS_KV}
v_lshl_add_u32 v24, v0, 4, s{sT}
""")
        for j in range(7):
            a(f"s_movk_i32 s{sK}, {1024*j}\nbuffer_store_dwordx4 v[20:23], v24, s[{SWS}:{SWS+3}], s{sK} offen sc1")
        a(f"L_{tag}_i2:")

def init_flags(tag):
    a(f"""
s_waitcnt vmcnt(0)
s_cmp_eq_u32 s55, 0
s_cbranch_scc1 L_{tag}_f2
v_mov_b32 v20, 1
s_bitcmp1_b32 s55, 0
s_cbranch_scc0 L_{tag}_f1
s_lshl_b32 s{sT}, s{sBR}, 4
s_add_u32 s{sT}, s{sT}, s{sRB}
s_lshl_b32 s{sT}, s{sT}, 2
s_add_u32 s{sT}, s{sT}, 32
v_mov_b32 v24, s{sT}
buffer_store_dword v20, v24, s[{SDBG}:{SDBG+3}], 0 offen sc1
L_{tag}_f1:
s_bitcmp1_b32 s55, 1
s_cbranch_scc0 L_{tag}_f2
s_lshl_b32 s{sT}, s{sHG}, 2
v_mov_b32 v25, s{sT}
buffer_store_dword v20, v25, s[{SDBG}:{SDBG+3}], 0 offen sc1
L_{tag}_f2:
""")

def kstep(tiles, nxt_reads, first, waits):
    pend = list(first)
    for t, (m0_, m1_) in enumerate(tiles):
        if t in waits:
            a(waits[t])
        a(m0_)
        for x in pend: a(x)
        a(m1_)
        pend = []
        if nxt_reads:
            a(nxt_reads[t][0]); pend = [nxt_reads[t][1]]
    for x in pend: a(x)

def a_consumer():
    acc = lambda t, rt: 144 + (t * 2 + rt) * 4
    wf = lambda t: 88 + 4 * t
    xf = lambda buf, rt: 72 + buf * 8 + rt * 4
    R8, R2, R8b, R2b, aX = 1, 5, 6, 10, 11
    vOF, vOL, vEXW, vEXR = 13, 14, 15, 16
    MC, MP, MPF, PM = 56, 60, 64, 68
    a("L_AC:\ns_waitcnt lgkmcnt(0)")
    gap_touch("AC", 3)
    srds_rest()
    init_stores("AC", False)
    rd_lanes(R8, R2, 17, 18); x_lane(aX, aX + 1, 17)
    for j in range(5):
        a(f"v_add_u32 v{R8b+j}, {4*A_WSLOT}, v{R8+j}")
    a(f"""
s_lshl_b32 s{sT}, s{sWAVE}, 12
s_add_u32 s{sT}, s{sT}, {A_X0}
v_add_u32 v{aX}, s{sT}, v{aX}
v_add_u32 v{aX+1}, s{sT}, v{aX+1}
s_lshr_b32 s{sT}, s{sWAVE}, 1
s_lshl_b32 s{sT}, s{sT}, 3
v_and_b32 v17, 15, v0
v_xor_b32 v17, s{sT}, v17
v_lshrrev_b32 v18, 4, v0
v_lshlrev_b32 v18, 2, v18
v_xor_b32 v18, s{sT}, v18
v_sub_u32 v17, v17, v18
v_mov_b32 v19, {NEG}
s_and_b32 s{sT}, s{sWAVE}, 1
s_or_b32 s{sT}, s{sT}, s{sRB}
s_cmp_eq_u32 s{sT}, 0
s_cselect_b64 s[42:43], -1, 0
""")
    for r in range(4):
        a(f"""
v_subrev_u32 v18, {r}, v17
v_cmp_gt_u32 vcc, 8, v18
v_cndmask_b32 v{MC+r}, v19, 0, vcc
v_cmp_gt_i32 vcc, -8, v18
v_cndmask_b32 v{MP+r}, v19, 0, vcc
v_cndmask_b32 v{MPF+r}, v{MP+r}, v19, s[42:43]
v_cmp_lt_i32 vcc, -1, v18
v_mov_b32 v20, {'0xffff' if r % 2 == 0 else '0xffff0000'}
v_cndmask_b32 v20, 0, v20, vcc
""")
        a(f"v_mov_b32 v{PM + r//2}, v20" if r % 2 == 0 else f"v_or_b32 v{PM + r//2}, v{PM + r//2}, v20")
    o_store_addr(vOF, vOL, 17, True)
    a(f"""
s_lshr_b32 s{sT}, s{sWAVE}, 1
s_add_u32 s{sT}, s{sT}, 1
s_mul_i32 s{sT}, s{sT}, 5120
s_bitcmp1_b32 s{sWAVE}, 0
s_cselect_b32 s{sT3}, s{sT}, 0
v_lshlrev_b32 v17, 3, v0
v_add_u32 v17, {A_EX}, v17
v_add_u32 v{vEXW}, s{sT}, v17
v_add_u32 v{vEXR}, s{sT3}, v17
""")

    def wreads(ks, t):
        slot = ks % 5
        o = 0 if slot == 4 else slot * A_WSLOT
        r8, r2 = (R8b, R2b) if slot == 4 else (R8, R2)
        if t == 4 or t == 13:
            o += 12288 if t == 4 else 13312
            return [tr(wf(t), r2, o), tr(wf(t) + 2, r2, o + 256)]
        s, j = (0, t) if t < 4 else (1, t - 5) if t < 9 else (2, t - 9)
        return [tr(wf(t), r8 + j, o + 4096*s), tr(wf(t) + 2, r8 + j, o + 4096*s + 1024)]
    xread = lambda ks, rt: f"ds_read_b128 {vr(xf(ks % 2, rt),4)}, v{aX + ks % 2} offset:{(ks//2 % 3)*A_XSLOT + rt*2048}"

    if OPT.get("prepass"):
        a("s_barrier")
    stamp()
    a("s_barrier")
    stamp()
    a(xread(0, 0)); a(xread(0, 1))
    for t in range(14):
        for x in wreads(0, t): a(x)
    for ks in range(18):
        if OPT.get("body") and ks == OPT["body"] + 1:
            stamp()
            j_ = sST + 2*(nstamp[0]-1)
            a(f"s_waitcnt lgkmcnt(0)\ns_sub_u32 s{j_}, s{j_}, s100\ns_lshl_b32 s{j_}, s{j_}, 4\ns_add_u32 s{j_}, s{j_}, s100")
        if OPT.get("span") and ks == OPT["span"] + 4:
            a("s_barrier")
            stamp()
            j_ = sST + 2*(nstamp[0]-1)
            a(f"s_waitcnt lgkmcnt(0)\ns_sub_u32 s{j_}, s{j_}, s100\ns_lshl_b32 s{j_}, s{j_}, 2\ns_add_u32 s{j_}, s{j_}, s100")
        elif ks < 17:
            a("s_barrier")
        if ks and ks in (OPT.get("body"), OPT.get("span")):
            a("s_memtime s[100:101]")
        if OPT.get("fine") == 2 and ks in (2, 5, 8, 11, 14):
            stamp()
        if OPT.get("ret", 0) > 3 and ks == 1:
            base, off = {4: (38, 520*3456 + 160), 5: (36, 5*1152 + 1024), 6: (38, 200*3456 + 160), 7: (38, 520*3456 + 1152 + 160)}[OPT["ret"]]
            a(f"s_mul_i32 s40, s{sWAVE}, {3456 if base == 38 else 1152}\ns_add_u32 s40, s40, {off - 64}\ns_add_u32 s40, s40, s{base}\ns_addc_u32 s41, s{base+1}, 0")
        elif OPT.get("ret") and ks == 1:
            a(f"s_lshl_b32 s40, s2, 10\ns_lshl_b32 s41, s{sWAVE}, 8\ns_add_u32 s40, s40, s41\ns_add_u32 s40, s40, 0x580000\ns_add_u32 s40, s40, s{SWS}\ns_addc_u32 s41, s{SWS+1}, 0")
            if OPT["ret"] == 1:
                a("v_mov_b32 v28, 0\nglobal_load_dword v29, v28, s[40:41]")
        if OPT.get("ret") and ks == OPT.get("at", 7):
            if OPT["ret"] == 2:
                a("v_mov_b32 v28, 0\nglobal_load_dword v29, v28, s[40:41]\ns_waitcnt vmcnt(0)")
            a("s_waitcnt lgkmcnt(0)\ns_memtime s[100:101]\ns_waitcnt lgkmcnt(0)\ns_load_dword s38, s[40:41], 64\ns_waitcnt lgkmcnt(0)")
            stamp()
            j_ = sST + 2*(nstamp[0]-1)
            a(f"s_waitcnt lgkmcnt(0)\ns_sub_u32 s{j_}, s{j_}, s100\ns_lshl_b32 s{j_}, s{j_}, 3\ns_add_u32 s{j_}, s{j_}, s100")
        if OPT.get("dummy") == ks:
            if OPT.get("dpre"):
                a("s_getpc_b64 s[38:39]\nv_lshlrev_b32 v28, 7, v0\nv_min_u32 v28, 2304, v28\nglobal_load_dword v29, v28, s[38:39]\ns_waitcnt vmcnt(0)")
            a("s_waitcnt lgkmcnt(0)\ns_memtime s[100:101]\ns_memrealtime s[40:41]\ns_waitcnt lgkmcnt(0)")
            for n in range(128):
                kind = OPT.get("dkind", 0)
                if kind == 0:
                    a(mf(28 + 4 * (n % 4), 88, 72, "0"))
                elif kind == 1:
                    a(f"v_add3_u32 v{28 + n % 8}, v0, v0, v0\nv_add3_u32 v{36 + n % 8}, v0, v0, v0")
                else:
                    a(f"ds_read_b128 v[{28 + 4 * (n % 4)}:{31 + 4 * (n % 4)}], v{aX} offset:0")
            a("s_waitcnt lgkmcnt(0)")
            stamp()
            a("s_waitcnt lgkmcnt(0)")
            if not OPT.get("cyc"):
                a(f"s_sub_u32 s40, s{sST + 2*(nstamp[0]-1)}, s40\ns_add_u32 s{sST + 2*(nstamp[0]-1)}, s{sST}, s40")
        if ks == 3:
            init_flags("AC")
        tiles = []
        for t in range(14):
            c = lambda rt: acc(t, rt) if ks else "0"
            tiles.append([mf(acc(t, rt), wf(t), xf(ks % 2, rt), c(rt)) if t < 9 else mf(acc(t, rt), xf(ks % 2, rt), wf(t), c(rt)) for rt in range(2)])
        if ks < 17:
            nxt = [wreads(ks + 1, t) for t in range(14)]
            nxt[1] = [nxt[1][0], nxt[1][1] + "\n" + xread(ks + 1, 1)]
            kstep(tiles, nxt, [xread(ks + 1, 0)], {0: "s_waitcnt lgkmcnt(14)", 7: "s_waitcnt lgkmcnt(15)", 12: "s_waitcnt lgkmcnt(15)"})
        else:
            kstep(tiles, None, [], {0: "s_waitcnt lgkmcnt(14)", 7: "s_waitcnt lgkmcnt(0)"})
    stamp()
    KP = lambda j: 18 + 10 * j
    QT = lambda rt, h: 88 + 16 * rt + 4 * h
    VP = lambda t, j: 120 + 6 * t + 2 * j if t < 4 else 48 + 2 * j
    ONE = 72
    def pack_kv(rt):
        o = []
        for q in range(2):
            o += [cv(QT(rt, 3) + 2 + q, acc(4, rt) + 2*q), f"v_mov_b32 v{KP(1+rt) + 8 + q}, 0"]
        for tau in range(4):
            o += [cv(KP(1+rt) + 2*tau + q, acc(5+tau, rt) + 2*q) for q in range(2)]
        o += [f"v_permlane32_swap_b32 v{QT(rt,3) + 2 + q}, v{KP(1+rt) + 8 + q}" for q in range(2)]
        for t in range(5):
            o += [cv(VP(t, 1+rt) + q, acc(9+t, rt) + 2*q) for q in range(2)]
        return o
    def pack_q(rt):
        o = []
        for t in range(4):
            for q in range(2):
                d = QT(rt, t) + q
                o.append(cv(d, acc(t, rt) + 2*q))
                if (t, q) in SPLITS:
                    m = SPLITS[(t, q)]; lo = QT(rt, t-1) + 2 + q
                    o += [f"v_cndmask_b32 v{lo}, 0, v{d}, s[{m}:{m+1}]", f"v_xor_b32 v{d}, v{d}, v{lo}"]
        return o + [f"v_mov_b32 v{QT(rt,0) + 3}, 0"]
    weave([], pack_kv(1))
    a(f"s_bitcmp1_b32 s{sWAVE}, 0\ns_cbranch_scc1 L_AC_nodump")
    for j in range(5):
        a(f"ds_write_b64 v{vEXW}, {vr(KP(2) + 2*j, 2)} offset:{512*j}")
        a(f"ds_write_b64 v{vEXW}, {vr(VP(j, 2), 2)} offset:{512*(5+j)}")
    a("L_AC_nodump:")
    weave([], pack_kv(0) + pack_q(1))
    a("s_waitcnt lgkmcnt(0)\ns_barrier")
    for j in range(5):
        a(f"ds_read_b64 {vr(KP(0) + 2*j, 2)}, v{vEXR} offset:{512*j}")
        a(f"ds_read_b64 {vr(VP(j, 0), 2)}, v{vEXR} offset:{512*(5+j)}")
    SC = lambda rt, h: (224 if rt else 184) + 8 * h
    MX = lambda rt: [76 + 4 * rt + h for h in range(4)]
    PT = lambda rt, h: 144 + 16 * rt + 4 * h
    def qk(rt):
        o = []
        for h in range(4):
            o += [mf(SC(rt, h), KP(1+rt) + 2*h, QT(rt, h), MC), mf(SC(rt, h) + 4, KP(rt) + 2*h, QT(rt, h), MP if rt else MPF)]
        return o
    def rowmax(rt):
        o = []
        for h in range(4):
            s = SC(rt, h); m = MX(rt)[h]
            o += [f"v_max_f32 v{s+r}, v{s+r}, v{s+4+r}" for r in range(4)]
            o += [f"v_max3_f32 v{m}, v{s}, v{s+1}, v{s+2}", f"v_max_f32 v{m}, v{m}, v{s+3}"]
        return o
    def xmax(rt):
        m = MX(rt)
        return [f"v_permlane32_swap_b32 v{m[0]}, v{m[1]}", f"v_permlane32_swap_b32 v{m[2]}, v{m[3]}",
                f"v_max_f32 v{m[0]}, v{m[0]}, v{m[1]}", f"v_max_f32 v{m[2]}, v{m[2]}, v{m[3]}",
                f"v_permlane16_swap_b32 v{m[0]}, v{m[2]}", f"v_max_f32 v{m[0]}, v{m[0]}, v{m[2]}",
                f"v_mul_f32 v{m[0]}, s{sT2}, v{m[0]}", f"v_mov_b32 v{m[2]}, v{m[0]}",
                f"v_permlane16_swap_b32 v{m[0]}, v{m[2]}", f"v_mov_b32 v{m[1]}, v{m[0]}", f"v_mov_b32 v{m[3]}, v{m[2]}",
                f"v_permlane32_swap_b32 v{m[0]}, v{m[1]}", f"v_permlane32_swap_b32 v{m[2]}, v{m[3]}"]
    def probs(rt):
        o = []
        for h in range(4):
            s = SC(rt, h); p = PT(rt, h)
            o += [f"v_fma_f32 v{s+r}, v{s+r}, s{sT}, v{MX(rt)[h]}" for r in range(4)]
            o += [f"v_exp_f32 v{s+r}, v{s+r}" for r in range(4)]
            if h:
                o += split(rt, h - 1)
        return o + split(rt, 3)
    def split(rt, h):
        s = SC(rt, h); p = PT(rt, h); o = []
        for q in range(2):
            o += [cv(p + q, s + 2*q), f"v_and_b32 v{p+2+q}, v{p+q}, v{PM+q}", f"v_xor_b32 v{p+q}, v{p+q}, v{p+2+q}"]
        return o
    OB = lambda rt, t: (224 if rt else 184) + 4 * t
    OA = lambda rt, t: (224 if rt else 184) + 12 + 4 * t
    SM = lambda rt, h: 88 + 16 * rt + 4 * h
    OF = lambda rt: 18 + 10 * rt
    def pv(rt):
        o = [mf(SM(rt, h), ONE, PT(rt, h), "0") for h in range(4)]
        for t in range(5):
            if t < 4: o.append(mf(OB(rt, t), VP(t, rt), PT(rt, t), "0"))
            if t > 0: o.append(mf(OA(rt, t), VP(t, rt), PT(rt, t-1), "0"))
        return o
    def finish(rt):
        o = [f"v_rcp_f32 v{SM(rt,h)}, v{SM(rt,h)}" for h in range(4)]
        for t in range(5):
            for q in range(2):
                d = OF(rt) + 2*t + q
                srcs = []
                if t < 4: srcs.append((OB(rt, t) + 2*q, SM(rt, t), d))
                if t == 4: srcs.append((OA(rt, t) + 2*q, SM(rt, 3), d))
                if (t, q) in SPLITS: srcs.append((OA(rt, t) + 2*q, SM(rt, t-1), 17))
                for x, inv, dd in srcs:
                    o += [f"v_mul_f32 v{x}, v{x}, v{inv}", f"v_mul_f32 v{x+1}, v{x+1}, v{inv}", cv(dd, x)]
                if (t, q) in SPLITS:
                    m = SPLITS[(t, q)]
                    o.append(f"v_cndmask_b32 v{d}, v{d}, v17, s[{m}:{m+1}]")
        return o
    a(f"s_mov_b32 s{sT}, {f32(CSC)}\ns_mov_b32 s{sT2}, {f32(-CSC)}")
    weave(qk(1), pack_q(0) + [f"v_mov_b32 v{ONE+j}, 0x3f803f80" for j in range(4)])
    a("s_waitcnt lgkmcnt(0)")
    weave(qk(0), rowmax(1))
    x1, x0 = xmax(1), xmax(0)
    r0 = rowmax(0)
    for i, x in enumerate(x1):
        a(x)
        for y in r0[2*i:2*i+2]: a(y)
    p1 = probs(1)
    for i, x in enumerate(x0):
        a(x)
        for y in p1[2*i:2*i+2]: a(y)
    weave([], p1[2*len(x0):])
    weave(pv(1), probs(0))
    weave(pv(0), finish(1))
    o_store(OF(1), vOF, vOL, 1)
    weave([], finish(0))
    o_store(OF(0), vOF, vOL, 0)
    stamp()
    a("s_branch L_P2")

def phi(r, n, t):
    o = [f"v_pk_fma_f32 {vr(t+j,2)}, {vr(r+j,2)}, s[56:57], v[14:15]" for j in range(0, n, 2)]
    for j in range(n):
        o += [f"v_exp_f32 v{t+j}, v{t+j} clamp", f"v_max_f32 v{r+j}, s{sT2}, v{r+j}"]
    return o + [f"v_pk_add_f32 {vr(r+j,2)}, {vr(r+j,2)}, {vr(t+j,2)}" for j in range(0, n, 2)]

def b_consumer():
    acc = lambda t, rt: 184 + (t * 2 + rt) * 4
    wf = lambda t: 148 + 4 * t
    xf = lambda ks, rt: 52 + ks * 8 + rt * 4 if ks < 12 else 36 + (ks % 2) * 8 + rt * 4
    R8, R2, aX = 1, 5, 6
    vOF, vOL, vEX = 8, 9, 10
    CK, CS = 28, 32
    a("L_BC:\ns_waitcnt lgkmcnt(0)")
    gap_touch("BC", 2)
    srds_rest()
    init_stores("BC", True)
    rd_lanes(R8, R2, 17, 18); x_lane(aX, aX + 1, 17)
    a(f"""
s_lshl_b32 s{sT}, s{sWAVE}, 12
s_add_u32 s{sT}, s{sT}, {B_X0}
v_add_u32 v{aX}, s{sT}, v{aX}
v_add_u32 v{aX+1}, s{sT}, v{aX+1}
v_and_b32 v17, 15, v0
v_cmp_gt_u32 vcc, 8, v17
v_mov_b32 v18, {EPS}
s_mov_b64 s[42:43], vcc
s_mul_i32 s{sT}, s{sWAVE}, 10240
s_add_u32 s{sT}, s{sT}, {B_EX}
v_lshl_add_u32 v{vEX}, v0, 4, s{sT}
v_mov_b32 v14, {f32(-1e-6*LOG2E)}
v_mov_b32 v15, v14
s_mov_b32 s56, {f32(LOG2E)}
s_mov_b32 s57, s56
""")
    for r in range(4):
        a(f"v_mov_b32 v{CK+r}, v18\nv_cndmask_b32 v{CS+r}, 0, v18, vcc")
    o_store_addr(vOF, vOL, 17, False)

    def wreads(ks, t):
        o = (ks % 5) * B_KVSLOT
        if t == 4:
            return [tr(wf(t), R2, o + 8192), tr(wf(t) + 2, R2, o + 8192 + 256)]
        s, j = (0, t) if t < 4 else (1, t - 5)
        return [tr(wf(t), R8 + j, o + 4096*s), tr(wf(t) + 2, R8 + j, o + 4096*s + 1024)]
    xread = lambda ks, rt: f"ds_read_b128 {vr(xf(ks, rt),4)}, v{aX + ks % 2} offset:{(ks//2 % 3)*B_XSLOT + rt*2048}"

    stamp()
    a("s_barrier")
    stamp()
    a(xread(0, 0)); a(xread(0, 1))
    for t in range(9):
        for x in wreads(0, t): a(x)
    for ks in range(18):
        if ks < 17:
            a("s_barrier")
        if ks == 3:
            init_flags("BC")
        tiles = [[mf(acc(t, rt), xf(ks, rt), wf(t), acc(t, rt) if ks else (CK if t < 4 else CS if t == 4 else "0")) for rt in range(2)] for t in range(9)]
        if ks < 17:
            nxt = [wreads(ks + 1, t) for t in range(9)]
            nxt[1] = [nxt[1][0], nxt[1][1] + "\n" + xread(ks + 1, 1)]
            kstep(tiles, nxt, [xread(ks + 1, 0)], {0: "s_waitcnt lgkmcnt(12)", 3: "s_waitcnt lgkmcnt(13)", 6: "s_waitcnt lgkmcnt(13)", 8: "s_waitcnt lgkmcnt(11)"})
        else:
            kstep(tiles, None, [], {0: "s_waitcnt lgkmcnt(12)", 3: "s_waitcnt lgkmcnt(0)\ns_barrier"})
    stamp()
    a(f"s_mov_b32 s{sT2}, {EPS}\nv_mov_b32 v16, 0x3f803f80")
    wr = lambda reg, slot: f"ds_write_b128 v{vEX}, {vr(reg,4)} offset:{1024*slot}"
    pk = lambda d, s: [cv(d + j, s + 2*j) for j in range(4)]
    weave([], pk(156, acc(4, 0)) + [f"v_cndmask_b32 v{156+j}, v{156+j}, v16, s[42:43]" for j in range(4)] + [wr(156, 9)])
    xq = lambda ks, rt: 168 + (ks - 12) * 8 + rt * 4 if ks in (12, 13) else acc(2 * (ks - 14) + rt, 1) if ks in (14, 15) else xf(ks, rt)
    reread = lambda ks, rt: f"ds_read_b128 {vr(xq(ks, rt),4)}, v{aX + ks % 2} offset:{(ks//2 % 3)*B_XSLOT + rt*2048}"
    weave([], [reread(ks, rt) for ks in (12, 13) for rt in range(2)])
    for tau in range(5):
        o = phi(acc(tau, 0), 8, 148)
        if tau < 4:
            o = pk(acc(5+tau, 0), acc(5+tau, 0)) + o[:8] + [wr(acc(5+tau, 0), 5 + tau)] + o[8:]
        weave([], o + pk(acc(tau, 0), acc(tau, 0)) + [wr(acc(tau, 0), tau)])
        if tau < 4:
            a(reread(14 + tau // 2, tau % 2))
    for j in range(5):
        a(f"v_add_u32 v{R8+j}, {B_WQ0}, v{R8+j}")
    a("s_waitcnt lgkmcnt(0)\ns_barrier")
    stamp()
    QA = lambda t, rt: 216 + (t * 2 + rt) * 4
    qf = lambda t: 148 + 4 * t
    qbase = lambda p: B_WQ0 if p < 4 else 0 if p < 7 else 15360
    def qreads(p, t):
        o = wq_slot(p) - qbase(p)
        if t == 4:
            return [tr(qf(t), R2, o + 4096), tr(qf(t) + 2, R2, o + 4096 + 256)]
        return [tr(qf(t), R8 + t, o), tr(qf(t) + 2, R8 + t, o + 1024)]
    for t in range(5):
        for x in qreads(0, t): a(x)
    for p in range(18):
        ks = QORD[p]
        if p == 7 or (p == 13 and OPT.get('wob', 0)):
            a("s_barrier")
        tiles = [[mf(QA(t, rt), qf(t), xq(ks, rt), QA(t, rt) if p else CK) for rt in range(2)] for t in range(5)]
        if p < 17:
            nxt = [qreads(p + 1, t) for t in range(5)]
            if qbase(p + 1) != qbase(p):
                d = (qbase(p + 1) - qbase(p)) & 0xffffffff
                for t in range(5):
                    nxt[t][0] = f"v_add_u32 v{R8+t}, {d}, v{R8+t}\n" + nxt[t][0]
            kstep(tiles, nxt, [], {t: f"s_waitcnt lgkmcnt({7 if t else 8})" for t in range(5)})
        else:
            kstep(tiles, None, [], {t: f"s_waitcnt lgkmcnt({8 - 2*t})" for t in range(5)})
    stamp()
    PQ = lambda rt: 36 + 10 * rt
    KO = 84
    tup = {0: KO, 1: KO + 4, 2: KO + 12, 3: KO + 20, 4: KO + 28}
    ZO = KO + 32
    weave([], [f"v_mov_b32 v{r}, 0" for r in (tup[1]+4, tup[1]+5, tup[2]+4, tup[2]+5, tup[3]+4, tup[3]+5, ZO+8, ZO+9)])
    a(f"v_lshlrev_b32 v16, 3, v0\nv_add_u32 v16, {B_KVOP}, v16")
    for t in range(5):
        weave([], phi(QA(t, 0), 8, 148) + [cv(PQ(rt) + 2*t + q, QA(t, rt) + 2*q) for rt in range(2) for q in range(2)])
    stamp()
    a("s_barrier")
    stamp()
    tid = lambda tau, taup: {-1: tau - 1, 0: 4 + tau, 1: 9 + tau}[taup - tau]
    rd = lambda d, slot: a(f"ds_read_b64 {vr(d,2)}, v16 offset:{512*slot}")
    for j, d in enumerate((ZO, ZO + 2, ZO + 4, ZO + 6, ZO + 10)):
        rd(d, 13 + j)
    rd(tup[0], tid(0, 0)); rd(tup[0] + 2, tid(1, 0))
    for t in (1, 2, 3):
        rd(tup[t], tid(t-1, t)); rd(tup[t] + 2, tid(t, t)); rd(tup[t] + 6, tid(t+1, t))
    rd(tup[4], tid(3, 4)); rd(tup[4] + 2, tid(4, 4))
    DN = lambda rt: 148 + 4 * rt
    NM = lambda rt, t: 184 + 20 * rt + 4 * t
    OF = lambda rt: 156 + 10 * rt
    a("s_waitcnt lgkmcnt(13)")
    for k, (zo, po) in enumerate(((0, 0), (4, 4), (8, 6))):
        for rt in range(2):
            a(mf(DN(rt), ZO + zo, PQ(rt) + po, DN(rt) if k else CK))
    a("s_waitcnt lgkmcnt(0)")
    def num(rt):
        o = [mf(NM(rt, t), tup[t], PQ(rt) + 2*(t-1), "0") for t in (1, 2, 3)]
        o += [mf(NM(rt, 0), tup[0], PQ(rt), "0"), mf(NM(rt, 4), tup[4], PQ(rt) + 6, "0")]
        return o + [mf(NM(rt, t), tup[t] + 4, PQ(rt) + 2*t, NM(rt, t)) for t in (1, 2, 3)]
    def fin(rt, packed):
        o = []
        for t in (0, 4, 1, 2, 3):
            for q in range(2):
                inv = DN(rt) + min(t, 3)
                if (t, q) in SPLITS:
                    m = SPLITS[(t, q)]
                    o.append(f"v_cndmask_b32 v17, v{DN(rt)+t}, v{DN(rt)+t-1}, s[{m}:{m+1}]")
                    inv = 17
                n = NM(rt, t) + 2*q
                o += [f"v_mul_f32 v{n}, v{n}, v{inv}", f"v_mul_f32 v{n+1}, v{n+1}, v{inv}", cv(OF(rt) + 2*t + q, n)]
        return o
    weave(num(0), [], 0)
    weave(num(1), [f"v_rcp_f32 v{DN(rt)+h}, v{DN(rt)+h}" for rt in range(2) for h in range(4)], 1)
    for rt in range(2):
        weave([], fin(rt, True))
        o_store(OF(rt), vOF, vOL, rt)
    stamp()

def kv_index(wreg, VS, VG, VZ):
    a(f"s_cmp_eq_u32 s{wreg}, 0\ns_cselect_b32 s58, 4, s{wreg}")
    for slot in range(3):
        if slot == 0:
            a(f"s_lshl_b32 s{sT}, s58, 4\ns_sub_u32 s{sT2}, s{sT}, 16\ns_mov_b64 s[46:47], 0")
        elif slot == 1:
            a(f"s_lshl_b32 s{sT}, s{wreg}, 4\ns_mov_b32 s{sT2}, s{sT}")
        else:
            a(f"s_add_u32 s{sT2}, s{sT}, 16\ns_cmp_eq_u32 s{wreg}, 3\ns_cselect_b32 s{sT2}, 56, s{sT2}\ns_cselect_b64 s[46:47], s[44:45], 0")
        kv_tile(VS and VS + 2*slot, VG and VG + 2*slot, False)
    if VZ:
        kv_z(VZ)

def kv_tile(VS, VG, last):
    a(f"v_add_u32 v3, s{sT2}, v1")
    head_of(4, 3)
    a(f"v_mul_u32_u24 v5, 18, v4\nv_sub_u32 v3, v3, v5\nv_cndmask_b32 v4, v4, 7, s[46:47]")
    if last:
        a("v_cmp_eq_u32 vcc, 0, v1\nv_cndmask_b32 v4, v4, 3, vcc\nv_cndmask_b32 v3, v3, 18, vcc")
    for q in range(2):
        a(f"v_add3_u32 v5, v2, s{sT}, {2*q}")
        head_of(6, 5)
        a("v_cmp_eq_u32 vcc, v4, v6\nv_mad_u32_u24 v5, v5, 19, v3\nv_lshlrev_b32 v5, 2, v5")
        if VS:
            a(f"v_add_u32 v6, {B_STG}, v5\nv_cndmask_b32 v{VS+q}, v8, v6, vcc")
        if VG:
            a(f"v_add_u32 v6, s{sM}, v5\nv_cndmask_b32 v{VG+q}, v9, v6, vcc")

def kv_z(VZ):
    a("v_and_b32 v3, 3, v0")
    for q in range(2):
        a(f"v_add3_u32 v5, v2, s{sT}, {2*q}")
        head_of(6, 5)
        a(f"v_cmp_eq_u32 vcc, v3, v6\nv_mul_u32_u24 v5, 76, v5\nv_add3_u32 v5, v5, s{sM}, 64\nv_add_u32 v5, 8, v5\nv_cndmask_b32 v{VZ+q}, v9, v5, vcc")

def b_loader(kind):
    a(f"L_B{kind}1:")
    m = M0(42)
    issue = (lambda c: w_issue("B", c, m)) if kind == "W" else (lambda c: x_issue("B", c, m))
    pre = 1 if OPT.get("early") and kind == "W" else 2
    cnt = {c: issue(c) for c in range(1, pre + 1)}
    stamp()
    mark = len(a.lines)
    VS, VG, vZS, vEA, vE0, vEL, vLA, vGA, vLW = 72, 80, 98, 99, 100, 101, 102, 103, 105
    if kind == "W":
        a(f"v_subrev_u32 v{VD+5}, 1152, v{VD}\nv_subrev_u32 v{VD+6}, 1152, v{VD+1}")
    srds_rest()
    if kind == "W":
        wo_setup(False)
    else:
        sync_setup()
    a(f"""
s_add_u32 s55, s{sV}, 2
s_mul_i32 s{sM}, s{sHG}, {KV_ST}
s_add_u32 s{sM}, s{sM}, {WS_KV}
v_and_b32 v1, 15, v0
v_lshrrev_b32 v2, 4, v0
v_lshlrev_b32 v2, 2, v2
v_cmp_gt_u32 s[44:45], 8, v1
v_lshlrev_b32 v8, 2, v0
v_add_u32 v8, {B_DUMP}, v8
v_mov_b32 v9, {OOB}
""")
    own = sV if kind == "X" else 55
    if kind == "X":
        kv_index(55, None, VG, VG + 6)
        a(f"s_movk_i32 s{sT}, 64")
        kv_z(10)
    kv_index(own, VS, VG + 8 if kind == "X" else None, VG + 14 if kind == "X" else None)
    a(f"""
v_add_u32 v5, s{sT}, v0
v_mul_u32_u24 v5, 76, v5
v_add_u32 v5, {B_STG + 72}, v5
v_cndmask_b32 v{vZS}, v8, v5, s[{sG0}:{sG0+1}]
v_lshlrev_b32 v{vEL}, 4, v0
v_add_u32 v{vEL}, {B_EX}, v{vEL}
s_lshl_b32 s{sT}, s{own}, 10
v_add_u32 v{vEA}, s{sT}, v{vEL}
s_lshl_b32 s{sT}, s58, 10
v_add_u32 v{vE0}, s{sT}, v{vEL}
""")
    if kind == "X":
        a(f"s_movk_i32 s{sT}, 64\ns_movk_i32 s{sT2}, 56\ns_mov_b64 s[46:47], s[44:45]")
        kv_tile(VS + 6, VG + 16, True)
        a(f"s_cmp_eq_u32 s{sV}, 0\ns_cselect_b64 s[46:47], -1, 0")
        for q in range(2):
            a(f"v_cndmask_b32 v{VS+6+q}, v8, v{VS+6+q}, s[46:47]\nv_cndmask_b32 v{VG+16+q}, v{10+q}, v{VG+16+q}, s[46:47]")
        a(f"""
v_lshlrev_b32 v5, 3, v0
v_add_u32 v5, {B_KVOP}, v5
s_lshl_b32 s{sT2}, s58, 9
s_sub_u32 s{sT2}, s{sT2}, 512
v_add_u32 v{vLW+2}, s{sT2}, v5
s_lshl_b32 s{sT2}, s{sV}, 9
v_add_u32 v{vLW+1}, s{sT2}, v5
v_add_u32 v{vLW}, 1024, v{vLW+1}
s_mul_i32 s{sT2}, s{sV}, {9*512}
v_add_u32 v{vLW+3}, s{sT2}, v5
s_mul_i32 s{sT}, s{sV}, 2816
v_lshl_add_u32 v{vLA}, v0, 2, s{sT}
v_add_u32 v{vGA}, s{sM}, v{vLA}
v_cmp_gt_u32 vcc, {5472 - 2560}, v{vLA}
v_cndmask_b32 v{vGA+1}, v9, v{vGA}, vcc
v_add_u32 v{vLA}, {B_STG}, v{vLA}
v_mov_b32 v4, 0
""")
    a(f"v_mov_b32 v10, {B_LCNT}\nv_mov_b32 v11, 1")
    if kind == "X":
        a("ds_write_b32 v10, v4\ns_waitcnt lgkmcnt(0)")
    setup = a.lines[mark:]
    del a.lines[mark:]
    per = -(-len(setup) // 9)
    a(f"s_waitcnt vmcnt({sum(cnt.values())})\ns_barrier")
    stamp()
    extra = 0
    for i in range(-1, 16):
        if i == -1 and pre == 1:
            cnt[2] = issue(2)
        if i + 4 <= 17:
            cnt[i+4] = issue(i + 4)
        if 0 <= i < 9:
            a("s_cmp_eq_u32 s59, 1")
            a.lines += setup[per*i:per*(i+1)]
            a("s_cselect_b32 s59, 1, 0")
        if i == 10 and kind == "X":
            flag_load(sFO, 98); flag_load(sFK, 99)
        if kind == "W" and i >= 14:
            extra += wq_issue(2*(i-14), m) + wq_issue(2*(i-14) + 1, m)
        left = sum(cnt.get(c, 0) for c in range(i + 3, min(i + 4, 17) + 1)) + extra
        a(f"s_waitcnt vmcnt({left})\ns_barrier")
    a("s_barrier")
    if kind == "W":
        for p in (4, 5, 6, 7, 13, 14, 15, 16, 17):
            wq_issue(p, m)
        a("s_waitcnt vmcnt(15)")
    else:
        flag_check(sFK, 99, "L_BX_fk")
    stamp()
    a("s_barrier")
    stamp()
    if kind == "W":
        for p in range(8, 13):
            wq_issue(p, m)
    KT = lambda s: 40 + 4 * s
    RD = lambda src, j: 112 + 28 * src + 4 * j
    srcs = ((vEA, 0), (vE0, 0), (vE0, 4096), (vEA, 5120), (vEA, 6144), (vEL, 9216), (vEL, 4096))
    prods = ((1, 2), (0, 3), (0, 4), (6, 5), (5, 0))
    if kind == "W":
        srcs = ((vEA, 0), None, (vE0, 4096), (vEA, 5120), (vEA, 6144), (vEL, 9216))
        prods = ((0, 2), (0, 3), (0, 4), None, (5, 0))
    nr = sum(x is not None for x in srcs)
    for src in range(4):
        for j, x in enumerate(srcs):
            if x: a(f"ds_read_b128 {vr(RD(src, j),4)}, v{x[0]} offset:{src*10240 + x[1]}")
    for src in range(4):
        a(f"s_waitcnt lgkmcnt({min(15, nr*(3-src))})")
        for s_, x in enumerate(prods):
            if x: a(mf(KT(s_), RD(src, x[0]), RD(src, x[1]), KT(s_) if src else "0"))
    for s_ in range(4 if kind == "X" else 3):
        for r in range(4):
            a(f"ds_write_b32 v{VS + 2*s_ + r//2}, v{KT(s_)+r} offset:{76*(r%2)}")
    a(f"ds_write_b32 v{vZS}, v{KT(4)}")
    a("s_waitcnt lgkmcnt(0)\ns_mov_b64 exec, 1\nds_add_u32 v10, v11\ns_mov_b64 exec, -1")
    stamp()
    b1, b2, b3 = {0: ((0, 1, 2, 3, 4, 5), (), (6, 7, 8)), 1: ((0, 1, 2), (3, 4, 5, 6, 7, 8), ()), 2: ((0, 1, 2), (3, 4, 5), (6, 7, 8))}[OPT.get("wob", 0)]
    if kind == "W":
        a("s_waitcnt vmcnt(0)\ns_barrier")
        for g in b1: wo_pair(g)
        if b2:
            a("s_barrier")
            for g in b2: wo_pair(g)
        stamp()
        a("s_barrier")
        loader_tail("BW", b3)
        return
    a(f"""
s_mov_b32 s{sT3}, 0x400000
L_BX_st:
ds_read_b32 v2, v10
s_waitcnt lgkmcnt(0)
v_readfirstlane_b32 s{sT}, v2
s_sub_u32 s{sT3}, s{sT3}, 1
s_cbranch_scc1 L_BX_st_x
s_cmp_ge_u32 s{sT}, 4
s_cbranch_scc0 L_BX_st
L_BX_st_x:
""")
    for n in range(11):
        a(f"ds_read_b32 v{40+n}, v{vLA} offset:{256*n}")
    for n in range(11):
        a(f"s_waitcnt lgkmcnt({10-n})")
        a(f"buffer_atomic_add_f32 v{40+n}, v{vGA + (n == 10)}, s[{SWS}:{SWS+3}], 0 offen offset:{256*n}")
    stamp()
    a("s_barrier")
    if b2:
        a("s_barrier")
    a("s_waitcnt vmcnt(0)")
    stamp()
    arrive_wait(sKC, 32, "L_BX_kc")
    stamp()
    for s_ in range(9):
        for r in range(4):
            a(f"buffer_load_dword v{112+4*s_+r}, v{VG + 2*s_ + r//2}, s[{SWS}:{SWS+3}], 0 offen offset:{76*(r%2)} sc1")
    dst = ((vLW, -1), (vLW, 4), (vLW, 9), (vLW, 13), (vLW + 2, 0), (vLW + 1, 4), (vLW + 1, 9), (vLW + 1, 13), (vLW + 3, 8))
    a(f"v_subrev_u32 v11, 512, v{vLW}")
    for s_, (ad, off) in enumerate(dst):
        a(f"s_waitcnt vmcnt({4*(8-s_)})")
        a(cv(40 + 2*s_, 112 + 4*s_)); a(cv(41 + 2*s_, 114 + 4*s_))
        a(f"ds_write_b64 v{11 if off < 0 else ad}, {vr(40+2*s_,2)} offset:{512*max(off, 0)}")
    a("s_waitcnt lgkmcnt(0)")
    stamp()
    a("s_barrier")
    loader_tail("BX")

def p2_consumer():
    OFR = lambda ks, rt: 112 + ks * 8 + rt * 4
    ACC = lambda t, rt: 72 + (t * 2 + rt) * 4
    wf = lambda t: 52 + 4 * t
    R8, R2, vO, vTW, vTR, VS = 1, 5, 6, 7, 8, 9
    AH = OPT["ahead"]
    a("L_P2:")
    nstamp[0] = 10
    rd_lanes(R8, R2, 17, 18)
    for j in range(5):
        a(f"v_add_u32 v{R8+j}, {R1}, v{R8+j}")
    a(f"""
v_lshl_add_u32 v{vO}, v0, 4, s58
s_mul_i32 s{sT}, s{sWAVE}, 4608
s_add_u32 s{sT}, s{sT}, {P_TR}
v_and_b32 v17, 15, v0
v_mul_u32_u24 v17, 144, v17
v_lshrrev_b32 v18, 4, v0
v_lshl_add_u32 v17, v18, 3, v17
v_add_u32 v{vTW}, s{sT}, v17
v_lshl_add_u32 v{vTR}, v0, 4, s{sT}
s_lshr_b32 s{sT}, s{sWAVE}, 1
s_and_b32 s{sT2}, s{sWAVE}, 1
s_lshl_b32 s{sT2}, s{sT2}, 5
s_lshl_b32 s{sT3}, s{sWAVE}, 5
s_cmp_eq_u32 s{sBR}, 0
s_cselect_b32 s42, s{sT}, 0
s_cselect_b32 s43, s{sT2}, s{sT3}
s_cselect_b32 s55, 1, 0
s_lshl_b32 s56, s42, 3
s_lshl_b32 s{sT}, s{sRB}, 7
s_add_u32 s42, s42, s{sT}
s_mul_i32 s{sT}, s{sBR}, 1152
s_mul_i32 s{sT2}, s{sHG}, 144
s_add_u32 s57, s{sT}, s{sT2}
""")
    for n in range(5):
        a(f"""
v_add_u32 v17, {64*n}, v0
v_mul_u32_u24 v18, 7282, v17
v_lshrrev_b32 v18, 16, v18
v_mul_u32_u24 v19, 9, v18
v_sub_u32 v19, v17, v19
v_add_u32 v18, s43, v18
v_xor_b32 v18, s56, v18
v_lshlrev_b32 v18, s55, v18
v_add_u32 v18, s42, v18
v_mul_u32_u24 v18, 2304, v18
v_lshl_add_u32 v18, v19, 4, v18
v_add_u32 v{VS+n}, s57, v18
""")
    a(f"v_mov_b32 v17, {OOB}\nv_cndmask_b32 v{VS+4}, v17, v{VS+4}, s[{sG01}:{sG01+1}]")
    a(f"v_add_u32 v14, 18432, v{vO}")
    SO = [8, 9, 10, 11, 12, 13, 14, 15, 36]
    rho(37)
    a(f"s_movk_i32 s{SO[0]}, 16384")
    for j in range(1, 9):
        a(f"s_add_u32 s{sT}, s37, {2*j-2}\ns_and_b32 s{sT}, s{sT}, 15\ns_lshl_b32 s{SO[j]}, s{sT}, 10")
    a("s_waitcnt vmcnt(0)")
    stamp()
    a("s_barrier\ns_barrier")
    stamp()
    def oload(ks, rt):
        return f"buffer_load_dwordx4 {vr(OFR(ks, rt),4)}, v{14 if rt else vO}, s[{SWS}:{SWS+3}], s{SO[ks//2]} offen offset:{1024*(ks%2)} sc1"
    base = lambda ks: R1 if ks < 3 else 0 if 9 <= ks < 12 else R2_
    R2_ = 43008
    def wreads(ks, t):
        o = WO[ks] - base(ks)
        if t == 4:
            return [tr(wf(t), R2, o + 4096), tr(wf(t) + 2, R2, o + 4096 + 256)]
        return [tr(wf(t), R8 + t, o), tr(wf(t) + 2, R8 + t, o + 1024)]
    for ks in range(AH):
        a(oload(ks, 0)); a(oload(ks, 1))
    for t in range(5):
        for x in wreads(0, t): a(x)
    for ks in range(18):
        tiles = [[mf(ACC(t, rt), wf(t), OFR(ks, rt), ACC(t, rt) if ks else "0") for rt in range(2)] for t in range(5)]
        w0 = f"s_waitcnt vmcnt({2*min(AH - 1, 17 - ks)}) lgkmcnt(8)"
        if ks < 17:
            nxt = [wreads(ks + 1, t) for t in range(5)]
            if base(ks + 1) != base(ks):
                d = (base(ks + 1) - base(ks)) & 0xffffffff
                for t in range(5):
                    nxt[t][0] = f"v_add_u32 v{R8+t}, {d}, v{R8+t}\n" + nxt[t][0]
            first = []
            if ks + AH < 18:
                first = [oload(ks + AH, 0)]
                nxt[1][1] += "\n" + oload(ks + AH, 1)
            kstep(tiles, nxt, first, {t: "s_waitcnt lgkmcnt(7)" if t else w0 for t in range(5)})
        else:
            kstep(tiles, None, [], {t: f"s_waitcnt lgkmcnt({8 - 2*t})" if t else w0 for t in range(5)})
        if ks == 0:
            stamp()
    stamp()
    for rt in range(2):
        for t in range(5):
            d = 20 + 2*(rt*5 + t)
            a(cv(d, ACC(t, rt))); a(cv(d + 1, ACC(t, rt) + 2))
            if t == 4:
                a(f"s_mov_b64 exec, s[{sG01}:{sG01+1}]")
            a(f"ds_write_b64 v{vTW}, {vr(d,2)} offset:{rt*2304 + 32*t}")
            if t == 4:
                a("s_mov_b64 exec, -1")
    a("s_waitcnt lgkmcnt(0)")
    for n in range(5):
        a(f"ds_read_b128 {vr(112+4*n,4)}, v{vTR} offset:{1024*n}")
    for n in range(5):
        a(f"s_waitcnt lgkmcnt({4-n})")
        a(f"buffer_store_dwordx4 {vr(112+4*n,4)}, v{VS+n}, s[{SOUT}:{SOUT+3}], 0 offen")
    stamp()
    stamps_out(0)
    a("s_endpgm")

HEADER = open("concat_heads__sliding_local_dilated__linear_attn_block__prompt.s.ref").read().split("; Override")[0]
out = HEADER + "; @launch grid=(256,1,1) block=(512,1,1) lds=163840\n"
a('.amdgcn_target "amdgcn-amd-amdhsa--gfx950"\n.text')
a(kernel_head(KN))
if OPT["stamps"]:
    for i in range(16):
        a(f"s_mov_b32 s{sST+2*i}, 0")
stamp()
a(f"""
s_cmp_ge_u32 s2, 256
s_cbranch_scc1 L_end
s_and_b32 s{sT}, s2, 7
s_lshr_b32 s{sBR}, s{sT}, 2
{'s_xor_b32 s6, s6, 1' if OPT.get('swap') else ''}
s_mul_i32 s{sT2}, s{sBR}, 24
s_add_u32 s0, s0, s{sT2}
s_addc_u32 s1, s1, 0
s_load_dwordx4 s[36:39], s[0:1], 0
s_load_dwordx2 s[40:41], s[0:1], 16
s_sub_u32 s0, s0, s{sT2}
s_subb_u32 s1, s1, 0
s_load_dwordx4 s[44:47], s[0:1], 48
s_load_dwordx2 s[48:49], s[0:1], 64
v_lshrrev_b32 v1, 6, v0
v_and_b32 v0, 63, v0
v_readfirstlane_b32 s{sWAVE}, v1
s_lshr_b32 s{sT2}, s2, 3
""")
m84 = f"""
s_and_b32 s{sHG}, s{sT2}, 3
s_and_b32 s{sT3}, s{sT}, 1
s_lshl_b32 s{sT3}, s{sT3}, 2
s_add_u32 s{sHG}, s{sHG}, s{sT3}
s_lshr_b32 s{sRB}, s{sT2}, 2
s_and_b32 s{sT3}, s{sT}, 2
s_lshl_b32 s{sT3}, s{sT3}, 2
s_add_u32 s{sRB}, s{sRB}, s{sT3}
"""
m48 = f"""
s_and_b32 s{sHG}, s{sT2}, 7
s_lshr_b32 s{sRB}, s{sT2}, 3
s_and_b32 s{sT3}, s{sT}, 3
s_lshl_b32 s{sT3}, s{sT3}, 2
s_add_u32 s{sRB}, s{sRB}, s{sT3}
"""
if OPT["mapping"] == 84:
    a(m84)
elif OPT["mapping"] == 48:
    a(m48)
else:
    a(m48 + f"s_cmp_eq_u32 s{sBR}, {0 if OPT['mapping'] == 8448 else 1}\ns_cbranch_scc0 L_map" + m84 + "L_map:")
rot = ""
if OPT.get("rot") == 2:
    rot = f"""s_lshr_b32 s90, s2, 1
s_xor_b32 s90, s90, s2
s_and_b32 s90, s90, 1
s_mul_i32 s91, s90, {OPT.get("rotby", 5)*128}
s_mul_i32 s90, s90, {OPT.get("rotby", 5)*64*3456}"""
elif OPT.get("rot") == 3:
    rot = f"""s_lshr_b32 s90, s2, 1
s_xor_b32 s90, s90, s2
s_and_b32 s90, s90, 1
s_mul_i32 s90, s90, 5
s_add_u32 s91, s{sRB}, s{sHG}
s_and_b32 s91, s91, 3
s_add_u32 s90, s90, s91
s_lshl_b32 s91, s90, 7
s_mul_i32 s90, s90, {64*3456}"""
elif OPT.get("rot") == 7:
    rot = f"""s_and_b32 s90, s{sHG}, 3
s_and_b32 s91, s{sRB}, 7
s_lshl1_add_u32 s90, s90, s91
s_cmp_ge_u32 s90, 9
s_cselect_b32 s91, 9, 0
s_sub_u32 s90, s90, s91
s_lshl_b32 s91, s90, 7
s_mul_i32 s90, s90, {64*3456}"""
elif OPT.get("rot") in (4, 5, 6):
    tab = {4: 0x75207520, 5: 0x63006300, 6: 0x86427531}[OPT["rot"]]
    rot = f"""s_add_u32 s90, s{sRB}, s{sHG}
s_and_b32 s90, s90, 7
s_lshl_b32 s90, s90, 2
s_lshr_b32 s90, {hex(OPT.get("tab", tab))}, s90
s_and_b32 s90, s90, 15
s_lshl_b32 s91, s90, 7
s_mul_i32 s90, s90, {64*3456}"""
elif OPT.get("rot"):
    few, many = (sRB, sHG) if OPT["mapping"] == 48 else (sHG, sRB)
    rot = f"""s_and_b32 s90, s{few}, 3
s_lshl_b32 s90, s90, 2
s_lshr_b32 s90, 0x7520, s90
s_and_b32 s90, s90, 15
s_and_b32 s91, s{many}, 7
s_add_u32 s90, s90, s91
s_cmp_ge_u32 s90, 9
s_cselect_b32 s91, 9, 0
s_sub_u32 s90, s90, s91
s_lshl_b32 s91, s90, 7
s_mul_i32 s90, s90, {64*3456}"""
a(f"""
s_mov_b32 s{sG0}, 0xffff
s_mov_b32 s{sG0+1}, 0
s_mov_b32 s{sG01}, -1
s_mov_b32 s{sG01+1}, 0
s_and_b32 s{sV}, s{sWAVE}, 1
s_mul_i32 s{sM}, s{sHG}, 144
s_cmp_lt_u32 s{sWAVE}, 4
s_cbranch_scc1 L_cons
s_setprio {OPT.get("prio", 2)}
s_mov_b32 s59, 0
{rot}
s_cmp_lt_u32 s{sWAVE}, 6
s_cbranch_scc1 L_wld
s_cmp_eq_u32 s{sBR}, 0
s_cbranch_scc1 L_AX0
s_branch L_BX0
L_wld:
s_cmp_eq_u32 s{sBR}, 0
s_cbranch_scc1 L_AW0
s_branch L_BW0
L_cons:
s_getpc_b64 s[42:43]
L_pc:
s_lshl_b32 s{sT}, s{sT2}, 2
s_add_u32 s{sT}, s{sT}, s{sWAVE}
s_lshl_b32 s{sT}, s{sT}, 9
v_and_b32 v1, 3, v0
v_lshlrev_b32 v1, 7, v1
v_add_u32 v1, s{sT}, v1
v_min_u32 v1, {'L_last2' if OPT.get('ifetch') == 1 else 'L_last'}-L_pc, v1
{'global_load_dword v27, v1, s[42:43]' if not OPT.get('nopf') else ''}
s_cmp_eq_u32 s{sBR}, 0
s_cbranch_scc1 L_AC
s_branch L_BC
L_end:
s_endpgm
""")
w_head("A"); w_head("B"); x_head("A"); x_head("B")
n0 = nstamp[0]
for fn in (lambda: a_loader("W"), lambda: a_loader("X"), a_consumer, lambda: b_loader("W"), lambda: b_loader("X"), b_consumer, p2_consumer):
    nstamp[0] = n0
    fn()
a("s_endpgm" if OPT.get("ifetch", 0) > 1 else "L_last2:\ns_endpgm" if OPT.get("ifetch") else "L_last:\ns_endpgm")
lines = []
for l in a.lines: lines += l.split("\n")
if OPT.get("noread"):
    lines = [l for l in lines if not l.startswith("ds_read_b64_tr")]
if OPT.get("nomfma"):
    lines = [l for l in lines if not l.startswith("v_mfma")]
lines, added = hz.fix(lines)
out += "\n".join(lines) + "\n"
out += '.section .rodata,"a"\n.p2align 6\n' + kernel_desc(KN, 256, 102 if OPT.get('cyc') else 100, 256)
sys.stdout.write(out)
sys.stderr.write(f"nop states added: {added}\n")
```

```python
import sys, struct
from asmlib import *
import hz

OPT = dict(stamps=0, mapping=48, ahead=6, rot=4, nt=1)
for arg in sys.argv[1:]:
    k, v = arg.split("=")
    OPT[k] = int(v)
KN = "concat_heads__sliding_local_dilated__linear_attn_block__prompt_kernel"

def f32(x):
    return "0x%08x" % struct.unpack("<I", struct.pack("<f", x))[0]

LOG2E = 1.4426950408889634
CSC = 18 ** -0.5 * LOG2E
NEG = "0xf149f2ca"
EPS = f32(1e-6)
OOB = "0x80000000"

O_BR = 0x240000
WS_KV = 0x500000
KV_ST = 0x2000
WS_CNT = 0x540000
WS_STAMP = 0x600000
WS_SIZE = 0x700000

sWAVE, sHG, sRB, sBR, sT = 3, 4, 5, 6, 7
SX, SW, SWS, SDBG, SWO, SOUT = 8, 12, 16, 20, 24, 28
sG0, sG01 = 32, 34
sK, sV, sM, sT2, sT3 = 50, 51, 52, 53, 54
sST = 60

a = Asm()
nstamp = [0]

def stamp():
    if OPT["stamps"]:
        i = nstamp[0]; nstamp[0] += 1
        assert i < 15
        a(f"{'s_memrealtime' if OPT.get('rt') or OPT.get('probe') and not (OPT.get('cyc') and i) else 's_memtime'} s[{sST+2*i}:{sST+2*i+1}]")
        if OPT.get("cyc") and i == 0:
            a("s_memtime s[100:101]")

def stamps_out(last=-1):
    if not OPT["stamps"]:
        return
    if OPT.get("probe"):
        if last == OPT.get("pwave", 0):
            j = sST + 2 * OPT["probe"]
            if OPT.get("ifetch"):
                mode = OPT["ifetch"]
                a(f"""
s_waitcnt vmcnt(0) lgkmcnt(0)
s_cmp_eq_u32 s2, {OPT.get('wg', 0)}
s_cbranch_scc0 L_probe_x
s_cmp_eq_u32 s{sWAVE}, 0
s_cbranch_scc0 L_probe_x
s_sleep 127
s_sleep 127
s_getpc_b64 s[44:45]
L_if_pc:
s_add_u32 s44, s44, L_if_blk-L_if_pc
s_addc_u32 s45, s45, 0
v_lshlrev_b32 v1, 7, v0
v_min_u32 v1, 4096, v1
""")
                if mode == 2:
                    a("global_load_dword v2, v1, s[44:45]\ns_waitcnt vmcnt(0)")
                a(f"""
s_memtime s[100:101]
s_waitcnt lgkmcnt(0)
s_branch L_if_blk
L_last:
.fill {(0 if mode == 1 else 8192)}, 4, 0xbf800000
L_if_blk:
.rept 512
v_add3_u32 v5, v0, v0, v0
.endr
s_memtime s[{j}:{j+1}]
s_waitcnt lgkmcnt(0)
s_sub_u32 s{j}, s{j}, s100
s_lshl_b32 s{j}, s{j}, 3
s_add_u32 s{j}, s{j}, s100
""")
            if OPT.get("vrate"):
                isw = OPT["vrate"] == 1
                a(f"""
s_waitcnt vmcnt(0) lgkmcnt(0)
s_load_dwordx2 s[44:45], s[0:1], {8 if isw else 0}
s_sleep 127
s_sleep 127
s_waitcnt lgkmcnt(0)
s_mov_b32 s46, {1990656 if isw else 2359296}
s_mov_b32 s47, 0x20000
v_lshrrev_b32 v1, 3, v0
v_mul_u32_u24 v1, {3456 if isw else 2304}, v1
v_and_b32 v2, 7, v0
v_lshl_add_u32 v1, v2, 4, v1
s_mov_b32 m0, 0
""")
                for rep in range(2):
                    if rep:
                        a("s_memtime s[100:101]\ns_waitcnt lgkmcnt(0)")
                    a(f"s_mov_b32 s40, 0\nL_vr{rep}:")
                    for n in range(3):
                        a(f"buffer_load_dwordx4 v1, s[44:47], s40 offen offset:{n*1152 if isw else n*128} lds")
                    a(f"s_waitcnt vmcnt(24)\ns_add_u32 s40, s40, {8*3456 if isw else 8*2304}\ns_cmp_lt_u32 s40, {72*8*3456 if isw else 72*8*2304}\ns_cbranch_scc1 L_vr{rep}\ns_waitcnt vmcnt(0)")
                a(f"s_memtime s[{j}:{j+1}]\ns_waitcnt lgkmcnt(0)\ns_sub_u32 s{j}, s{j}, s100\ns_lshl_b32 s{j}, s{j}, 3\ns_add_u32 s{j}, s{j}, s100")
            if OPT.get("skew"):
                op = "max" if OPT["skew"] in (1, 3) else "min"
                a(f"""
s_waitcnt vmcnt(0) lgkmcnt(0)
v_lshlrev_b32 v1, {4 if OPT['skew'] < 3 else 5}, v0
{'v_and_b32 v1, 0x3e0, v1' if OPT['skew'] >= 3 else ''}
v_add_u32 v1, 0x6f0000, v1
buffer_load_dwordx4 v[4:7], v1, s[{SWS}:{SWS+3}], 0 offen sc1
s_waitcnt vmcnt(0)
v_subrev_u32 v4, s{sST}, v4
v_subrev_u32 v5, s{sST}, v5
v_subrev_u32 v6, s{sST}, v6
v_subrev_u32 v7, s{sST}, v7
""")
                if OPT["skew"] < 3:
                    a(f"v_{op}_i32 v4, v4, v5\nv_{op}_i32 v6, v6, v7\nv_{op}_i32 v4, v4, v6")
                a("s_mov_b32 s44, 0\ns_nop 4")
                for l in range(64):
                    a(f"v_readlane_b32 s45, v4, {l}\ns_nop 3\ns_{op}_i32 s44, s44, s45")
                a(f"s_abs_i32 s44, s44\ns_add_u32 s{j}, s{sST}, s44")
            if OPT.get("ptr"):
                a(f"s_waitcnt vmcnt(0) lgkmcnt(0)\ns_load_dword s44, s[0:1], {OPT['ptr'] - 8}\ns_waitcnt lgkmcnt(0)\ns_lshr_b32 s44, s44, {OPT.get('sh', 4)}\ns_and_b32 s44, s44, 0xff\ns_mul_i32 s44, s44, 10\ns_add_u32 s{j}, s{sST}, s44")
            if OPT.get("tlb"):
                a(f"""
s_waitcnt vmcnt(0) lgkmcnt(0)
s_cmp_eq_u32 s{sWAVE}, 0
s_cbranch_scc0 L_probe_x
s_load_dwordx2 s[44:45], s[0:1], {OPT['tlb'] - 8}
s_sleep 127
s_sleep 127
s_waitcnt lgkmcnt(0)
s_mov_b32 s46, 0x1e0000
s_mov_b32 s47, 0x20000
v_lshlrev_b32 v1, {OPT.get('sh', 12)}, v0
""")
                for rep in range(2):
                    if rep:
                        a("s_memtime s[100:101]\ns_waitcnt lgkmcnt(0)")
                    a(f"s_mov_b32 s40, 0\nL_vr{rep}:")
                    for n in range(4):
                        a(f"s_add_u32 s41, s40, {n << (OPT.get('sh', 12) + 6)}\nbuffer_load_dword v{4+n}, v1, s[44:47], s41 offen")
                    st = 128 if OPT.get('sh', 12) > 7 else 32768
                    a(f"s_waitcnt vmcnt(4)\ns_add_u32 s40, s40, {st}\ns_cmp_lt_u32 s40, {16*st}\ns_cbranch_scc1 L_vr{rep}\ns_waitcnt vmcnt(0)")
                a(f"s_memtime s[{j}:{j+1}]\ns_waitcnt lgkmcnt(0)\ns_sub_u32 s{j}, s{j}, s100\ns_lshl_b32 s{j}, s{j}, 2\ns_add_u32 s{j}, s{j}, s100")
            if OPT.get("tlb2"):
                nb = OPT["tlb2"]
                a(f"""
s_waitcnt vmcnt(0) lgkmcnt(0)
s_cmp_eq_u32 s{sWAVE}, 0
s_cbranch_scc0 L_probe_x
s_load_dwordx2 s[8:9], s[0:1], 0
s_load_dwordx2 s[12:13], s[0:1], 8
s_load_dwordx2 s[24:25], s[0:1], 24
s_load_dwordx2 s[44:45], s[0:1], 32
s_sleep 127
s_sleep 127
s_waitcnt lgkmcnt(0)
v_lshlrev_b32 v1, 12, v0
""")
                for r_ in (8, 12, 24, 44):
                    a(f"s_mov_b32 s{r_+2}, 0x1e0000\ns_mov_b32 s{r_+3}, 0x20000")
                for rep in range(2):
                    if rep:
                        a("s_memtime s[100:101]\ns_waitcnt lgkmcnt(0)")
                    a(f"s_mov_b32 s40, 0\nL_vr{rep}:")
                    for r_ in (8, 12, 24, 44)[:nb]:
                        for n in range(7):
                            a(f"s_add_u32 s41, s40, {n << 18}\nbuffer_load_dword v{4+n}, v1, s[{r_}:{r_+3}], s41 offen\ns_waitcnt vmcnt(7)")
                    a(f"s_add_u32 s40, s40, 128\ns_cmp_lt_u32 s40, {128*16//nb}\ns_cbranch_scc1 L_vr{rep}\ns_waitcnt vmcnt(0)")
                a(f"s_memtime s[{j}:{j+1}]\ns_waitcnt lgkmcnt(0)\ns_sub_u32 s{j}, s{j}, s100\ns_lshl_b32 s{j}, s{j}, 1\ns_add_u32 s{j}, s{j}, s100")
            if OPT.get("lat"):
                a(f"""
s_waitcnt vmcnt(0) lgkmcnt(0)
s_load_dwordx2 s[44:45], s[0:1], {OPT['lat'] - 8}
s_sleep 127
s_sleep 127
s_sleep 127
s_waitcnt lgkmcnt(0)
s_mov_b32 s46, 0x100000
s_mov_b32 s47, 0x20000
v_mov_b32 v1, 0x20000
buffer_load_dword v2, v1, s[44:47], 0 offen {'sc1' if OPT.get('first') != 2 else ''}
s_waitcnt vmcnt(0)
v_mov_b32 v1, {'0x20000' if not OPT.get('first') else '0x20040'}
s_memtime s[100:101]
s_waitcnt lgkmcnt(0)
buffer_load_dword v2, v1, s[44:47], 0 offen sc1
s_waitcnt vmcnt(0)
s_memtime s[{j}:{j+1}]
s_waitcnt lgkmcnt(0)
s_sub_u32 s{j}, s{j}, s100
s_lshl_b32 s{j}, s{j}, 5
s_add_u32 s{j}, s{j}, s100
""")
            if OPT.get("xcc"):
                a(f"""
s_waitcnt vmcnt(0) lgkmcnt(0)
v_and_b32 v1, 31, v0
v_lshlrev_b32 v1, {5 if OPT['xcc'] == 1 else 2}, v1
v_add_u32 v1, 0x6f0000, v1
buffer_load_dword v2, v1, s[{SWS}:{SWS+3}], 0 offen sc1
s_getreg_b32 s44, hwreg(HW_REG_XCC_ID, 0, 4)
s_waitcnt vmcnt(0)
v_cmp_eq_u32 vcc, s44, v2
s_bcnt1_i32_b32 s44, vcc_lo
s_mul_i32 s44, s44, 10
s_add_u32 s{j}, s{sST}, s44
""")
            a(f"""
s_waitcnt vmcnt(0) lgkmcnt(0)
s_cmp_eq_u32 s2, {OPT.get('wg', 0)}
s_cbranch_scc0 L_probe_x
s_cmp_eq_u32 s{sWAVE}, {last}
s_cbranch_scc0 L_probe_x
s_sub_u32 s{sT}, s{j}, s{100 if OPT.get('cyc') else sST}
{'s_lshr_b32 s7, s7, 3' if OPT.get('cyc') else 's_mul_i32 s7, s7, 10'}
s_min_u32 s{sT}, s{sT}, 100000
s_add_u32 s{sT}, s{sT}, 6000
L_probe:
s_memrealtime s[44:45]
s_waitcnt lgkmcnt(0)
s_sub_u32 s44, s44, s{sST}
s_cmp_lt_u32 s44, s{sT}
s_cbranch_scc1 L_probe
L_probe_x:
""")
        return
    a("s_waitcnt vmcnt(0) lgkmcnt(0)")
    a(f"s_lshl_b32 s{sT}, s2, 3\ns_add_u32 s{sT}, s{sT}, s{sWAVE}\ns_lshl_b32 s{sT}, s{sT}, 6")
    a(f"s_add_u32 s{sT}, s{sT}, {WS_STAMP}\nv_mov_b32 v1, s{sT}")
    for i in range(16):
        a(f"v_mov_b32 v2, s{sST+2*i}")
        a(f"buffer_store_dword v2, v1, s[{SWS}:{SWS+3}], 0 offen offset:{4*i}")
    a("s_waitcnt vmcnt(0)")

def mf(d, s0, s1, c):
    cc = c if isinstance(c, str) else vr(c, 4)
    return f"v_mfma_f32_16x16x32_bf16 {vr(d,4)}, {vr(s0,4)}, {vr(s1,4)}, {cc}"
def cv(d, x):
    return f"v_cvt_pk_bf16_f32 v{d}, v{x}, v{x+1}"
def tr(d, addr, off):
    return f"ds_read_b64_tr_b16 {vr(d,2)}, v{addr} offset:{off}"
def weave(mfmas, others, per=2):
    o = list(others)
    for m in mfmas:
        a(m)
        for _ in range(per):
            if o: a(o.pop(0))
    for x in o: a(x)

def srd(dst, lo, nbytes):
    a(f"s_mov_b32 s{dst}, s{lo}\ns_mov_b32 s{dst+1}, s{lo+1}\ns_mov_b32 s{dst+2}, {nbytes}\ns_mov_b32 s{dst+3}, 0x20000")
def srds_rest():
    srd(SWO, 40, 663552); srd(SOUT, 44, 4718592); srd(SDBG, 46, 256); srd(SWS, 48, WS_SIZE)

class M0:
    def __init__(self, base): self.base = base; self.cur = None
    def set(self, imm):
        if self.cur is not None and -32768 <= imm - self.cur <= 32767:
            a(f"s_addk_i32 m0, {imm - self.cur}")
        else:
            a(f"s_add_u32 m0, s{self.base}, {imm}")
        self.cur = imm

CUR = [0]
def dma(voff, srd_, soff, half=False):
    if OPT.get("nodma") or (OPT.get("nos") and voff == VD + 6 and srd_ == SW and not half):
        return
    if half: a(f"s_mov_b64 exec, s[{sG01}:{sG01+1}]")
    nt = " nt" if OPT.get("nt", 0) >> {SX: 0, SW: 1, SWO: 2}[srd_] & 1 and CUR[0] < OPT.get("ntc", 99) else ""
    a(f"buffer_load_dwordx4 v{voff}, s[{srd_}:{srd_+3}], {soff} offen{nt} lds")
    if half: a("s_mov_b64 exec, -1")

def rd_lanes(r8, r2, t0, t1):
    a(f"""
v_lshrrev_b32 v{t0}, 5, v0
v_lshlrev_b32 v{t0}, 4, v{t0}
v_bfe_u32 v{t1}, v0, 4, 1
v_lshl_add_u32 v{t0}, v{t1}, 2, v{t0}
v_bfe_u32 v{t1}, v0, 2, 2
v_add_u32 v{t0}, v{t0}, v{t1}
v_and_b32 v{t1}, 3, v0
v_lshlrev_b32 v{t1}, 3, v{t1}
v_lshl_add_u32 v{r2}, v{t0}, 5, v{t1}
v_lshl_add_u32 v{r8}, v{t0}, 7, v{t1}
v_bfe_u32 v{t0}, v{t0}, 1, 2
v_lshl_add_u32 v{r8}, v{t0}, 5, v{r8}
""")
    for t in (1, 2, 3):
        a(f"v_xor_b32 v{r8+t}, {32*t}, v{r8}")

def x_lane(d0, d1, tmp):
    a(f"""
v_lshrrev_b32 v{d0}, 4, v0
v_bfe_u32 v{tmp}, v0, 1, 3
v_xor_b32 v{d0}, v{d0}, v{tmp}
v_and_b32 v{tmp}, 15, v0
v_lshlrev_b32 v{tmp}, 7, v{tmp}
v_lshl_add_u32 v{d0}, v{d0}, 4, v{tmp}
v_xor_b32 v{d1}, 64, v{d0}
""")

def col8(dst, tmp):
    a(f"v_bfe_u32 v{tmp}, v0, 4, 2\nv_lshlrev_b32 v{tmp}, 1, v{tmp}\nv_and_b32 v{dst}, 7, v0\nv_xor_b32 v{dst}, v{dst}, v{tmp}\nv_lshlrev_b32 v{dst}, 4, v{dst}")

def head_of(dst, src):
    a(f"v_mul_u32_u24 v{dst}, 57, v{src}\nv_lshrrev_b32 v{dst}, 10, v{dst}")

sOC, sKC, sFO, sFK = 92, 94, 96, 97

def arrive_wait(addr, target, label, arrive=True):
    if arrive:
        a(f"s_mov_b32 s{sT}, 1\ns_atomic_add s{sT}, s[{addr}:{addr+1}], 0 glc\ns_waitcnt lgkmcnt(0)\ns_cmp_ge_u32 s{sT}, {target-1}\ns_cbranch_scc1 {label}_x")
    a(f"""
s_mov_b32 s{sT3}, 0x20000
{label}:
s_mov_b32 s{sT}, 0
s_atomic_add s{sT}, s[{addr}:{addr+1}], 0 glc
s_waitcnt lgkmcnt(0)
s_sub_u32 s{sT3}, s{sT3}, 1
s_cbranch_scc1 {label}_x
s_cmp_ge_u32 s{sT}, {target}
s_cbranch_scc0 {label}
{label}_x:
""")

def flag_load(dst, offreg):
    a(f"s_load_dword s{dst}, s[{SDBG}:{SDBG+1}], s{offreg}")

def flag_check(val, offreg, label):
    a(f"""
s_mov_b32 s{sT3}, 0x20000
{label}:
s_waitcnt lgkmcnt(0)
s_cmp_lg_u32 s{val}, 0
s_cbranch_scc1 {label}_x
s_sub_u32 s{sT3}, s{sT3}, 1
s_cbranch_scc1 {label}_x
s_load_dword s{val}, s[{SDBG}:{SDBG+1}], s{offreg} glc
s_branch {label}
{label}_x:
""")

A_WSLOT, A_XSLOT = 14336, 18432
A_X0 = 5 * A_WSLOT
A_EX = A_X0 + 3 * A_XSLOT
B_KVSLOT, B_XSLOT = 9216, 16384
B_X0 = 5 * B_KVSLOT
B_EX = B_X0 + 3 * B_XSLOT
B_KVOP = 126976
B_STG = 136192
B_DUMP, B_LCNT = B_STG + 5632, B_STG + 6144
B_WQ0 = 143360
QORD = list(range(18))
def wq_slot(p):
    if p < 4: return B_WQ0 + 5120 * p
    if p < 7: return 5120 * (p - 4)
    if p < 13: return 40960 + 5120 * (p - 7)
    return 15360 + 5120 * (p - 13)
R1, R2 = 147456, 43008
WO = [R1, R1 + 5120, R1 + 10240] + [R2 + 5120 * n for n in range(6, 12)] + [0, 5120, 10240] + [R2 + 5120 * n for n in range(6)]
P_TR = 108544
SPLITS = {(1, 0): sG0, (2, 0): sG0, (2, 1): sG0, (3, 0): sG01, (3, 1): sG0}

VD = 16
VWO = 26
vCNT, vFLO, vFLK, vFO, vFK = 30, 31, 32, 33, 34

def w_head(kind):
    parts = (0, 1152, 2304) if kind == "A" else (1152, 2304)
    a(f"L_{kind}W0:")
    col8(VD, 1)
    a(f"""
v_bfe_u32 v1, v0, 5, 1
v_bfe_u32 v2, v0, 3, 2
v_lshl_add_u32 v1, v1, 3, v2
s_mul_i32 s{sT}, s{sV}, {16*3456}
s_add_u32 s{sT}, s{sT}, s{sM}
v_mul_u32_u24 v1, 3456, v1
v_add3_u32 v{VD}, v{VD}, v1, s{sT}
""")
    n = 2 * len(parts)
    for j in range(n - 1, -1, -1):
        off = parts[j // 2] + (j % 2) * 4 * 3456
        if off:
            a(f"v_add_u32 v{VD+j}, {off}, v{VD}")
    a(f"""
v_bfe_u32 v1, v0, 3, 1
v_bfe_u32 v2, v0, 4, 1
v_sub_u32 v1, v1, v2
v_lshrrev_b32 v2, 1, v0
v_lshl_add_u32 v1, v1, 2, v2
v_mul_u32_u24 v1, 3456, v1
v_and_b32 v2, 1, v0
""")
    if kind == "A":
        a(f"""
s_cmp_eq_u32 s{sV}, 0
s_cselect_b32 s{sT2}, 1152, 0
s_cselect_b32 s{sT}, 0, 2304
s_add_u32 s{sT}, s{sT}, s{sM}
s_addk_i32 s{sT}, 128
v_mad_u32_u24 v1, v2, s{sT2}, v1
v_add_u32 v{VD+6}, s{sT}, v1
""")
    else:
        a(f"""
s_add_u32 s{sT}, s{sT}, 128
v_add_u32 v{VD+7}, s{sT}, v1
v_mul_u32_u24 v2, 1152, v2
v_add_u32 v2, 1152, v2
v_add_u32 v{VD+4}, v2, v{VD+7}
""")
    a(f"s_lshl_b32 s42, s{sV}, 11\ns_lshl_b32 s43, s{sV}, {10 if kind == 'A' else 9}\ns_sub_u32 s43, s43, s42")
    a("s_waitcnt lgkmcnt(0)")
    srd(SW, 38, 1990656)
    m = M0(42)
    w_issue(kind, 0, m)
    a(f"s_branch L_{kind}W1")

def w_issue(kind, c, m):
    CUR[0] = c
    slot = (c % 5) * (A_WSLOT if kind == "A" else B_KVSLOT)
    n = 6 if kind == "A" else 4
    so = f"s{sK}" if c else "0"
    if OPT.get("rot"):
        so = "s90"
        if c:
            a(f"s_add_u32 s90, s90, {32*3456}\ns_cmp_eq_u32 s90, {18*32*3456}\ns_cselect_b32 s90, 0, s90")
    elif c:
        a(f"s_mov_b32 s{sK}, {c*32*3456}")
    for j in range(n):
        m.set(slot + 4096 * (j // 2) + 1024 * (j % 2))
        dma(VD + j, SW, so)
        if OPT.get("lp") == 10 + j and c == OPT.get("lpi", 6) + 4 and kind == "A":
            stamp()
            j_ = sST + 2*(nstamp[0]-1)
            a(f"s_waitcnt lgkmcnt(0)\ns_sub_u32 s{j_}, s{j_}, s100\ns_lshl_b32 s{j_}, s{j_}, 4\ns_add_u32 s{j_}, s{j_}, s100")
    m.set(slot + 4096 * (n // 2))
    a("s_add_u32 m0, m0, s43")
    m.cur = None
    dma(VD + n, SW, so, half=(kind == "B"))
    return n + 1

def wq_issue(p, m):
    if OPT.get("rot"):
        a(f"s_add_u32 s{sK}, s90, {(p+1)*32*3456}\ns_cmp_ge_u32 s{sK}, {18*32*3456}\ns_cselect_b32 s{sT}, {18*32*3456}, 0\ns_sub_u32 s{sK}, s{sK}, s{sT}")
    else:
        a(f"s_mov_b32 s{sK}, {QORD[p]*32*3456}")
    for j in range(2):
        m.set(wq_slot(p) + 1024 * j)
        dma(VD + 5 + j, SW, f"s{sK}")
    m.set(wq_slot(p) + 4096)
    a("s_add_u32 m0, m0, s43")
    m.cur = None
    dma(VD + 7, SW, f"s{sK}", half=True)
    return 3

def x_head(kind):
    nq = 9 if kind == "A" else 8
    a(f"L_{kind}X0:")
    a(f"""
v_lshrrev_b32 v1, 3, v0
v_mul_u32_u24 v1, {2304 if kind == 'A' else 1152}, v1
v_lshrrev_b32 v2, 4, v0
v_lshl_add_u32 v2, s{sV}, 2, v2
v_and_b32 v3, 7, v0
v_xor_b32 v2, v2, v3
v_lshl_add_u32 v1, v2, 4, v1
s_mul_i32 s{sT}, s{sRB}, {128*1152}
""")
    if kind == "A":
        a(f"""
s_mul_i32 s{sT2}, s{sV}, {16*1152}
s_add_u32 s{sT3}, s{sT}, s{sT2}
v_add_u32 v{VD}, s{sT3}, v1
s_sub_u32 s{sT3}, s{sT}, s{sT2}
s_add_u32 s{sT3}, s{sT3}, {17*1152}
v_add_u32 v{VD+4}, s{sT3}, v1
s_mul_i32 s{sT2}, s{sV}, 1152
s_sub_u32 s{sT3}, s{sT}, s{sT2}
s_sub_u32 s{sT3}, s{sT3}, {15*1152}
v_add_u32 v{VD+8}, s{sT3}, v1
""")
        for q in (1, 2, 3):
            a(f"v_add_u32 v{VD+q}, {32*1152*q}, v{VD}\nv_add_u32 v{VD+4+q}, {32*1152*q}, v{VD+4}")
    else:
        a(f"s_mul_i32 s{sT2}, s{sV}, {8*1152}\ns_add_u32 s{sT}, s{sT}, s{sT2}\nv_add_u32 v{VD}, s{sT}, v1")
        for q in range(1, 8):
            a(f"v_add_u32 v{VD+q}, {16*1152*q}, v{VD}")
    a(f"s_lshl_b32 s42, s{sV}, 10")
    a("s_waitcnt lgkmcnt(0)")
    srd(SX, 36, 2359296)
    x_issue(kind, 0, M0(42))
    a(f"s_branch L_{kind}X1")

def x_issue(kind, c, m):
    CUR[0] = c + (c & 1)
    nq, h, x0, xs = (9, 5, A_X0, A_XSLOT) if kind == "A" else (8, 4, B_X0, B_XSLOT)
    st = (c + 1) // 2
    if st > 8:
        return 0
    qs = range(nq) if c == 0 else (range(h) if c % 2 else range(h, nq))
    so = f"s{sK}" if st else "0"
    if OPT.get("rot"):
        so = "s91"
        if c % 2:
            a("s_addk_i32 s91, 128\ns_cmpk_eq_u32 s91, 1152\ns_cselect_b32 s91, 0, s91")
    elif st:
        a(f"s_movk_i32 s{sK}, {st*128}")
    for q in qs:
        m.set(x0 + (st % 3) * xs + 2048 * q)
        a("s_nop 0")
        dma(VD + q, SX, so)
    return len(qs)

def wo_setup(quad):
    col8(VWO, 1)
    a(f"""
s_mul_i32 s{sM}, s{sHG}, 144
v_add_u32 v{VWO}, s{sM}, v{VWO}
v_bfe_u32 v1, v0, 5, 1
v_bfe_u32 v2, v0, 3, 2
v_mul_u32_u24 v1, 72, v1
v_add_u32 v1, v1, v2
v_mul_u32_u24 v1, 1152, v1
v_add_u32 v{VWO+1}, v1, v{VWO}
v_lshrrev_b32 v1, 3, v0
v_mul_u32_u24 v1, 1152, v1
v_add_u32 v{VWO}, v1, v{VWO}
v_bfe_u32 v1, v0, 1, 2
v_bfe_u32 v2, v0, 3, 1
v_bfe_u32 v3, v0, 4, 1
v_bfe_u32 v4, v0, 5, 1
v_lshl_add_u32 v5, v2, 2, v1
v_lshl_add_u32 v5, v3, 4, v5
v_lshl_add_u32 v5, v4, 3, v5
v_mul_u32_u24 v5, 1152, v5
s_add_u32 s{sM}, s{sM}, 128
v_add_u32 v{VWO+2}, s{sM}, v5
v_lshl_add_u32 v5, v3, 2, v1
v_lshl_add_u32 v2, v4, 1, v2
v_mul_u32_u24 v2, 72, v2
v_add_u32 v5, v5, v2
v_mul_u32_u24 v5, 1152, v5
v_add_u32 v{VWO+3}, s{sM}, v5
s_and_b32 s55, s{sWAVE}, 3
s_lshl_b32 s57, s55, 3
""")
    rho(56)
    a(f"s_add_u32 s56, s56, s{55 if quad else sV}")

def rho(dst):
    few, many = (sRB, sHG) if OPT["mapping"] == 48 else (sHG, sRB)
    if OPT["mapping"] > 99:
        a(f"s_cmp_eq_u32 s{sBR}, {0 if OPT['mapping'] == 8448 else 1}\ns_cselect_b32 s{sT}, s{sHG}, s{sRB}\ns_cselect_b32 s{sT2}, s{sRB}, s{sHG}")
        few, many = sT, sT2
    a(f"s_lshl_b32 s{dst}, s{few}, 1\ns_add_u32 s{dst}, s{dst}, s{many}\ns_lshl_b32 s{dst}, s{dst}, 1")
    if not OPT.get("worot", 1):
        a(f"s_mov_b32 s{dst}, 0")

def wo_chunk(left, fadd):
    if left:
        a(f"s_mul_i32 s{sK}, s{sV}, {288*1152}\ns_add_u32 s{sK}, s{sK}, {64*1152}")
        steps = (4, 140, 4); v8, v2 = VWO + 1, VWO + 3
    else:
        a(f"""
s_add_u32 s{sT}, s56, {fadd}
s_bfe_u32 s{sK}, s{sT}, 0x30001
s_mul_i32 s{sK}, s{sK}, {72*1152}
s_bitcmp1_b32 s{sT}, 0
s_cselect_b32 s{sT}, {32*1152}, 0
s_add_u32 s{sK}, s{sK}, s{sT}
""")
        steps = (16, -8, 16); v8, v2 = VWO, VWO + 2
    a(f"s_mov_b32 s{sT2}, s{sK}")
    for j in range(4):
        dma(v8, SWO, f"s{sK}")
        a("s_addk_i32 m0, 1024")
        a(f"s_add_u32 s{sK}, s{sK}, {steps[j]*1152 & 0xffffffff}" if j < 3 else "s_nop 0")
    dma(v2, SWO, f"s{sT2}")
    return 5

def wo_issue(q):
    packed = sum((WO[2 + 4*q + w] // 1024) << (8 * w) for w in range(4))
    a(f"s_lshr_b32 s{sT}, {packed}, s57\ns_and_b32 s{sT}, s{sT}, 0xff\ns_lshl_b32 m0, s{sT}, 10")
    return wo_chunk(False, 4*q)

def wo_pair(g):
    a(f"s_mul_i32 s{sT}, s{sV}, {WO[2*g+1] - WO[2*g] & 0xffffffff}\ns_add_u32 m0, s{sT}, {WO[2*g]}")
    return wo_chunk(g == 0, 2*g - 2)

def sync_setup():
    a(f"""
s_lshl_b32 s{sT}, s{sBR}, 4
s_add_u32 s{sT}, s{sT}, s{sRB}
s_lshl_b32 s{sT2}, s{sT}, 8
s_add_u32 s{sT2}, s{sT2}, {WS_CNT}
s_add_u32 s{sOC}, s{SWS}, s{sT2}
s_addc_u32 s{sOC+1}, s{SWS+1}, 0
s_lshl_b32 s{sT}, s{sT}, 2
s_add_u32 s98, s{sT}, 32
s_lshl_b32 s99, s{sHG}, 2
s_mul_i32 s{sT2}, s{sHG}, {KV_ST}
s_add_u32 s{sT2}, s{sT2}, {WS_KV + 6144}
s_add_u32 s{sKC}, s{SWS}, s{sT2}
s_addc_u32 s{sKC+1}, s{SWS+1}, 0
""")

def loader_tail(tag, late=()):
    if tag[1] == "X":
        flag_check(sFO, 98, f"L_{tag}_fo")
    a("s_barrier")
    stamp()
    for g in late:
        wo_pair(g)
    if tag[1] == "X":
        a(f"s_cmp_eq_u32 s{sWAVE}, 6\ns_cbranch_scc0 L_{tag}_oc_x")
        arrive_wait(sOC, 8, f"L_{tag}_oc")
    a("s_waitcnt vmcnt(0)")
    stamp()
    a("s_barrier")
    stamps_out({"AW": 4, "AX": 6}.get(tag, -1))
    a("s_endpgm")

def a_loader(kind):
    a(f"L_A{kind}1:")
    m = M0(42)
    issue = (lambda c: w_issue("A", c, m)) if kind == "W" else (lambda c: x_issue("A", c, m))
    if OPT.get("prepass"):
        a("s_mov_b32 s58, s90\ns_mov_b32 s59, s91")
        n_ = {}
        for c in range(1, 18):
            if OPT["prepass"] == 2:
                a("s_mov_b32 s90, s58\ns_mov_b32 s91, s59")
            n_[c] = issue(c)
            a(f"s_waitcnt vmcnt({n_[c] + n_.get(c-1, 0)})")
            if c in (4, 9):
                stamp()
        a("s_waitcnt vmcnt(0)")
        stamp()
        a("s_barrier\ns_mov_b32 s90, s58\ns_mov_b32 s91, s59")
        m.cur = None
        issue(0)
    pre = 1 if OPT.get("early") and kind == "W" else 2
    cnt = {c: issue(c) for c in range(1, pre + 1)}
    stamp()
    x_lane(8, 9, 1)
    rd_lanes(36, 12, 1, 2)
    a(f"""
v_add_u32 v8, {A_X0 + 8*2048}, v8
v_add_u32 v9, {A_X0 + 8*2048}, v9
s_lshl_b32 s{sT}, s{sV}, 6
v_xor_b32 v10, s{sT}, v36
v_add_u32 v10, {4096 if kind == 'W' else 8192}, v10
v_xor_b32 v11, 32, v10
v_add_u32 v12, {12288 if kind == 'W' else 13312}, v12
v_add_u32 v13, {4*A_WSLOT}, v10
v_add_u32 v14, {4*A_WSLOT}, v11
v_add_u32 v15, {4*A_WSLOT}, v12
s_lshl_b32 s{sT}, s{sV}, 10
s_add_u32 s{sT}, s{sT}, {A_EX + (0 if kind == 'W' else 2560)}
v_lshlrev_b32 v7, 3, v0
v_add_u32 v6, s{sT}, v7
v_add_u32 v7, {A_EX + (2048 if kind == 'W' else 4608)}, v7
""")
    stamp()
    a(f"s_waitcnt vmcnt({sum(cnt.values())})\ns_barrier")
    stamp()
    extra = 0
    for i in range(-1, 17):
        ks = i + 1
        slot = ks % 5
        off = 0 if slot == 4 else slot * A_WSLOT
        ad = (13, 14, 15) if slot == 4 else (10, 11, 12)
        def lp(n):
            if OPT.get("lp") == n and i == OPT.get("lpi", 6):
                stamp()
                j_ = sST + 2*(nstamp[0]-1)
                a(f"s_waitcnt lgkmcnt(0)\ns_sub_u32 s{j_}, s{j_}, s100\ns_lshl_b32 s{j_}, s{j_}, 4\ns_add_u32 s{j_}, s{j_}, s100")
        if OPT.get("stat") and kind == "X" and 2 <= i <= 13:
            a("s_memtime s[38:39]")
        if OPT.get("lp") and i == OPT.get("lpi", 6):
            a("s_memtime s[100:101]")
            if OPT["lp"] == 5:
                a(".rept 128\ns_mov_b32 s39, 0x12345\n.endr")
                lp(5)
        a(f"ds_read_b128 v[40:43], v{8 + ks % 2} offset:{(ks//2 % 3)*A_XSLOT}")
        for j in range(3 if OPT.get("nohalo", 0) < 2 else 0):
            a(tr(44 + 4*j, ad[j], off)); a(tr(46 + 4*j, ad[j], off + (1024 if j < 2 else 256)))
        if i == -1 and pre == 1:
            cnt[2] = issue(2)
        if i + 4 <= 17:
            cnt[i+4] = issue(i + 4)
        lp(1)
        a("s_waitcnt lgkmcnt(0)")
        if OPT.get("stat") and kind == "X" and 2 <= i <= 13:
            if i == 2:
                a(f"s_mov_b32 s36, {0xffff if OPT['stat'] == 1 else 0}")
            else:
                a("s_sub_u32 s41, s38, s37")
                if OPT["stat"] == 3:
                    a("s_cmp_gt_u32 s41, 800\ns_cselect_b32 s41, 100, 0\ns_add_u32 s36, s36, s41")
                else:
                    a(f"s_{'min' if OPT['stat'] == 1 else 'max'}_u32 s36, s36, s41")
            a("s_mov_b32 s37, s38")
            if i == 13:
                a(f"s_lshl_b32 s36, s36, 4\ns_add_u32 s{sST + 2*13}, s36, s100")
        for j in range(3 if not OPT.get("nohalo") else 0):
            c = 60 + 4*j if ks else "0"
            a(mf(60 + 4*j, 44 + 4*j, 40, c) if kind == "W" else mf(60 + 4*j, 40, 44 + 4*j, c))
        if i == 1:
            srds_rest(); sync_setup()
        if i == 2:
            wo_setup(True)
        if i == 14 and kind == "W":
            extra += wo_pair(0)
        if i == 15:
            extra += wo_issue(0)
        if i + 1 <= 16:
            left = sum(cnt.get(c, 0) for c in range(i + 3, min(i + 4, 17) + 1)) + extra
            lp(2)
            a(f"s_waitcnt vmcnt({left})")
            lp(3)
            a("s_barrier")
            lp(4)
            if OPT.get("fine") and kind == "W" and i % 2 == 1 and 0 < i < 14:
                stamp()
    for j in range(3):
        a(cv(44 + 2*j, 60 + 4*j)); a(cv(45 + 2*j, 62 + 4*j))
    if kind == "W":
        a("v_mov_b32 v50, 0\nv_mov_b32 v51, 0")
        a("v_permlane32_swap_b32 v48, v50\nv_permlane32_swap_b32 v49, v51")
    a("ds_write_b64 v6, v[44:45]\nds_write_b64 v6, v[46:47] offset:512")
    a(f"ds_write_b64 v7, {'v[50:51]' if kind == 'W' else 'v[48:49]'}")
    stamp()
    a("s_waitcnt lgkmcnt(0)\ns_barrier")
    if kind == "X":
        flag_load(sFO, 98)
    wo_issue(1); wo_issue(2); wo_issue(3)
    stamp()
    loader_tail("A" + kind)

def o_store_addr(vfull, vleft, tmp, left_lo):
    a(f"""
s_lshl_b32 s{sT}, s{sRB}, 3
s_lshl_b32 s{sT2}, s{sWAVE}, 1
s_add_u32 s{sT}, s{sT}, s{sT2}
s_mul_i32 s{sT}, s{sT}, 18432
s_mul_i32 s{sT2}, s{sBR}, {O_BR}
s_add_u32 s58, s{sT}, s{sT2}
s_lshl_b32 s{sT2}, s{sHG}, 11
s_add_u32 s{sT2}, s{sT2}, s58
v_lshl_add_u32 v{vfull}, v0, 4, s{sT2}
s_lshr_b32 s{sT2}, s{sHG}, 2
s_add_u32 s{sT2}, s{sT2}, 16
s_lshl_b32 s{sT2}, s{sT2}, 10
s_add_u32 s{sT}, s58, s{sT2}
s_and_b32 s{sT2}, s{sHG}, 3
s_lshl_b32 s{sT2}, s{sT2}, 8
s_add_u32 s{sT}, s{sT}, s{sT2}
v_and_b32 v{vleft}, 15, v0
v_lshlrev_b32 v{vleft}, 4, v{vleft}
v_bfe_u32 v{tmp}, v0, 4, 1
v_lshl_add_u32 v{vleft}, v{tmp}, 3, v{vleft}
v_add_u32 v{vleft}, s{sT}, v{vleft}
v_mov_b32 v{tmp}, {OOB}
""")
    x, y = (tmp, vleft) if left_lo else (vleft, tmp)
    a(f"v_cndmask_b32 v{vleft}, v{x}, v{y}, s[{sG01}:{sG01+1}]")

def o_store(of, vfull, vleft, rt):
    so = f"s{sK}" if rt else "0"
    if rt:
        a(f"s_movk_i32 s{sK}, 18432")
    a(f"buffer_store_dwordx4 {vr(of,4)}, v{vfull}, s[{SWS}:{SWS+3}], {so} offen sc1")
    a(f"buffer_store_dwordx4 {vr(of+4,4)}, v{vfull}, s[{SWS}:{SWS+3}], {so} offen offset:1024 sc1")
    a(f"buffer_store_dwordx2 {vr(of+8,2)}, v{vleft}, s[{SWS}:{SWS+3}], {so} offen sc1")

def gap_touch(tag, parts):
    if not OPT.get("touch"):
        return
    nt = " nt" if OPT.get("tnt") else ""
    a(f"""
s_cmp_eq_u32 s{sWAVE}, 1
s_cbranch_scc1 L_{tag}_tw
s_cmp_eq_u32 s{sWAVE}, 2
s_cbranch_scc0 L_{tag}_tx
s_and_b32 s{sT}, s{sRB}, 7
s_cmp_eq_u32 s{sT}, 0
s_cselect_b32 s{sT}, 9, s{sT}
s_sub_u32 s{sT}, s{sT}, 1
s_lshl_b32 s{sT}, s{sT}, 7
s_and_b32 s{sT2}, s{sHG}, 3
s_lshl_b32 s{sT2}, s{sT2}, 5
s_lshl_b32 s{sT3}, s{sRB}, 7
s_add_u32 s{sT2}, s{sT2}, s{sT3}
v_and_b32 v1, 31, v0
v_add_u32 v1, s{sT2}, v1
v_mul_u32_u24 v1, 1152, v1
""")
    srd(SX, 36, 2359296)
    a(f"""
buffer_load_dword v26, v1, s[{SX}:{SX+3}], s{sT} offen{nt}
s_branch L_{tag}_tx
L_{tag}_tw:
s_and_b32 s{sT}, s{sHG}, 3
s_lshl_b32 s{sT}, s{sT}, 1
s_cmp_eq_u32 s{sT}, 0
s_cselect_b32 s{sT}, 9, s{sT}
s_sub_u32 s{sT}, s{sT}, 1
s_lshl_b32 s{sT}, s{sT}, 3
s_and_b32 s{sT2}, s{sRB}, 7
s_add_u32 s{sT}, s{sT}, s{sT2}
s_mul_i32 s{sT}, s{sT}, {8*3456}
s_add_u32 s{sT}, s{sT}, s{sM}
v_lshrrev_b32 v1, 3, v0
v_mul_u32_u24 v1, 3456, v1
v_bfe_u32 v2, v0, 1, 2
v_min_u32 v2, {parts-1}, v2
v_mul_u32_u24 v2, 1152, v2
v_and_b32 v3, 1, v0
v_mul_u32_u24 v3, 140, v3
v_add3_u32 v1, v1, v2, v3
""")
    srd(SW, 38, 1990656)
    a(f"buffer_load_dword v26, v1, s[{SW}:{SW+3}], s{sT} offen offset:{1152*(3-parts)}{nt}\nL_{tag}_tx:")

def init_stores(tag, with_kv):
    if OPT.get("skew"):
        a(f"v_mov_b32 v2, s{sST}\ns_lshl_b32 s{sT}, s2, 2\ns_add_u32 s{sT}, s{sT}, 0x6f0000\nv_mov_b32 v1, s{sT}\nbuffer_store_dword v2, v1, s[{SWS}:{SWS+3}], 0 offen sc1")
    if OPT.get("xcc"):
        a(f"s_getreg_b32 s{sT}, hwreg(HW_REG_XCC_ID, 0, 4)\nv_mov_b32 v2, s{sT}\ns_lshl_b32 s{sT}, s2, 2\ns_add_u32 s{sT}, s{sT}, 0x6f0000\nv_mov_b32 v1, s{sT}\nbuffer_store_dword v2, v1, s[{SWS}:{SWS+3}], 0 offen sc1")
    a(f"""
s_or_b32 s{sT}, s{sHG}, s{sWAVE}
s_cmp_eq_u32 s{sT}, 0
s_cselect_b32 s55, 1, 0
v_mov_b32 v20, 0
v_mov_b32 v21, 0
v_mov_b32 v22, 0
v_mov_b32 v23, 0
s_cbranch_scc0 L_{tag}_i1
s_lshl_b32 s{sT}, s{sBR}, 4
s_add_u32 s{sT}, s{sT}, s{sRB}
s_lshl_b32 s{sT}, s{sT}, 8
s_add_u32 s{sT}, s{sT}, {WS_CNT}
v_mov_b32 v24, s{sT}
buffer_store_dword v20, v24, s[{SWS}:{SWS+3}], 0 offen sc1
L_{tag}_i1:
""")
    if with_kv:
        a(f"""
s_or_b32 s{sT}, s{sRB}, s{sWAVE}
s_cmp_eq_u32 s{sT}, 0
s_cbranch_scc0 L_{tag}_i2
s_or_b32 s55, s55, 2
s_mul_i32 s{sT}, s{sHG}, {KV_ST}
s_add_u32 s{sT}, s{sT}, {WS_KV}
v_lshl_add_u32 v24, v0, 4, s{sT}
""")
        for j in range(7):
            a(f"s_movk_i32 s{sK}, {1024*j}\nbuffer_store_dwordx4 v[20:23], v24, s[{SWS}:{SWS+3}], s{sK} offen sc1")
        a(f"L_{tag}_i2:")

def init_flags(tag):
    a(f"""
s_waitcnt vmcnt(0)
s_cmp_eq_u32 s55, 0
s_cbranch_scc1 L_{tag}_f2
v_mov_b32 v20, 1
s_bitcmp1_b32 s55, 0
s_cbranch_scc0 L_{tag}_f1
s_lshl_b32 s{sT}, s{sBR}, 4
s_add_u32 s{sT}, s{sT}, s{sRB}
s_lshl_b32 s{sT}, s{sT}, 2
s_add_u32 s{sT}, s{sT}, 32
v_mov_b32 v24, s{sT}
buffer_store_dword v20, v24, s[{SDBG}:{SDBG+3}], 0 offen sc1
L_{tag}_f1:
s_bitcmp1_b32 s55, 1
s_cbranch_scc0 L_{tag}_f2
s_lshl_b32 s{sT}, s{sHG}, 2
v_mov_b32 v25, s{sT}
buffer_store_dword v20, v25, s[{SDBG}:{SDBG+3}], 0 offen sc1
L_{tag}_f2:
""")

def kstep(tiles, nxt_reads, first, waits):
    pend = list(first)
    for t, (m0_, m1_) in enumerate(tiles):
        if t in waits:
            a(waits[t])
        a(m0_)
        for x in pend: a(x)
        a(m1_)
        pend = []
        if nxt_reads:
            a(nxt_reads[t][0]); pend = [nxt_reads[t][1]]
    for x in pend: a(x)

def a_consumer():
    acc = lambda t, rt: 144 + (t * 2 + rt) * 4
    wf = lambda t: 88 + 4 * t
    xf = lambda buf, rt: 72 + buf * 8 + rt * 4
    R8, R2, R8b, R2b, aX = 1, 5, 6, 10, 11
    vOF, vOL, vEXW, vEXR = 13, 14, 15, 16
    MC, MP, MPF, PM = 56, 60, 64, 68
    a("L_AC:\ns_waitcnt lgkmcnt(0)")
    gap_touch("AC", 3)
    srds_rest()
    init_stores("AC", False)
    rd_lanes(R8, R2, 17, 18); x_lane(aX, aX + 1, 17)
    for j in range(5):
        a(f"v_add_u32 v{R8b+j}, {4*A_WSLOT}, v{R8+j}")
    a(f"""
s_lshl_b32 s{sT}, s{sWAVE}, 12
s_add_u32 s{sT}, s{sT}, {A_X0}
v_add_u32 v{aX}, s{sT}, v{aX}
v_add_u32 v{aX+1}, s{sT}, v{aX+1}
s_lshr_b32 s{sT}, s{sWAVE}, 1
s_lshl_b32 s{sT}, s{sT}, 3
v_and_b32 v17, 15, v0
v_xor_b32 v17, s{sT}, v17
v_lshrrev_b32 v18, 4, v0
v_lshlrev_b32 v18, 2, v18
v_xor_b32 v18, s{sT}, v18
v_sub_u32 v17, v17, v18
v_mov_b32 v19, {NEG}
s_and_b32 s{sT}, s{sWAVE}, 1
s_or_b32 s{sT}, s{sT}, s{sRB}
s_cmp_eq_u32 s{sT}, 0
s_cselect_b64 s[42:43], -1, 0
""")
    for r in range(4):
        a(f"""
v_subrev_u32 v18, {r}, v17
v_cmp_gt_u32 vcc, 8, v18
v_cndmask_b32 v{MC+r}, v19, 0, vcc
v_cmp_gt_i32 vcc, -8, v18
v_cndmask_b32 v{MP+r}, v19, 0, vcc
v_cndmask_b32 v{MPF+r}, v{MP+r}, v19, s[42:43]
v_cmp_lt_i32 vcc, -1, v18
v_mov_b32 v20, {'0xffff' if r % 2 == 0 else '0xffff0000'}
v_cndmask_b32 v20, 0, v20, vcc
""")
        a(f"v_mov_b32 v{PM + r//2}, v20" if r % 2 == 0 else f"v_or_b32 v{PM + r//2}, v{PM + r//2}, v20")
    o_store_addr(vOF, vOL, 17, True)
    a(f"""
s_lshr_b32 s{sT}, s{sWAVE}, 1
s_add_u32 s{sT}, s{sT}, 1
s_mul_i32 s{sT}, s{sT}, 5120
s_bitcmp1_b32 s{sWAVE}, 0
s_cselect_b32 s{sT3}, s{sT}, 0
v_lshlrev_b32 v17, 3, v0
v_add_u32 v17, {A_EX}, v17
v_add_u32 v{vEXW}, s{sT}, v17
v_add_u32 v{vEXR}, s{sT3}, v17
""")

    def wreads(ks, t):
        slot = ks % 5
        o = 0 if slot == 4 else slot * A_WSLOT
        r8, r2 = (R8b, R2b) if slot == 4 else (R8, R2)
        if t == 4 or t == 13:
            o += 12288 if t == 4 else 13312
            return [tr(wf(t), r2, o), tr(wf(t) + 2, r2, o + 256)]
        s, j = (0, t) if t < 4 else (1, t - 5) if t < 9 else (2, t - 9)
        return [tr(wf(t), r8 + j, o + 4096*s), tr(wf(t) + 2, r8 + j, o + 4096*s + 1024)]
    xread = lambda ks, rt: f"ds_read_b128 {vr(xf(ks % 2, rt),4)}, v{aX + ks % 2} offset:{(ks//2 % 3)*A_XSLOT + rt*2048}"

    if OPT.get("prepass"):
        a("s_barrier")
    stamp()
    a("s_barrier")
    stamp()
    a(xread(0, 0)); a(xread(0, 1))
    for t in range(14):
        for x in wreads(0, t): a(x)
    for ks in range(18):
        if OPT.get("body") and ks == OPT["body"] + 1:
            stamp()
            j_ = sST + 2*(nstamp[0]-1)
            a(f"s_waitcnt lgkmcnt(0)\ns_sub_u32 s{j_}, s{j_}, s100\ns_lshl_b32 s{j_}, s{j_}, 4\ns_add_u32 s{j_}, s{j_}, s100")
        if OPT.get("span") and ks == OPT["span"] + 4:
            a("s_barrier")
            stamp()
            j_ = sST + 2*(nstamp[0]-1)
            a(f"s_waitcnt lgkmcnt(0)\ns_sub_u32 s{j_}, s{j_}, s100\ns_lshl_b32 s{j_}, s{j_}, 2\ns_add_u32 s{j_}, s{j_}, s100")
        elif ks < 17:
            a("s_barrier")
        if ks and ks in (OPT.get("body"), OPT.get("span")):
            a("s_memtime s[100:101]")
        if OPT.get("fine") == 2 and ks in (2, 5, 8, 11, 14):
            stamp()
        if OPT.get("ret", 0) > 3 and ks == 1:
            base, off = {4: (38, 520*3456 + 160), 5: (36, 5*1152 + 1024), 6: (38, 200*3456 + 160), 7: (38, 520*3456 + 1152 + 160)}[OPT["ret"]]
            a(f"s_mul_i32 s40, s{sWAVE}, {3456 if base == 38 else 1152}\ns_add_u32 s40, s40, {off - 64}\ns_add_u32 s40, s40, s{base}\ns_addc_u32 s41, s{base+1}, 0")
        elif OPT.get("ret") and ks == 1:
            a(f"s_lshl_b32 s40, s2, 10\ns_lshl_b32 s41, s{sWAVE}, 8\ns_add_u32 s40, s40, s41\ns_add_u32 s40, s40, 0x580000\ns_add_u32 s40, s40, s{SWS}\ns_addc_u32 s41, s{SWS+1}, 0")
            if OPT["ret"] == 1:
                a("v_mov_b32 v28, 0\nglobal_load_dword v29, v28, s[40:41]")
        if OPT.get("ret") and ks == OPT.get("at", 7):
            if OPT["ret"] == 2:
                a("v_mov_b32 v28, 0\nglobal_load_dword v29, v28, s[40:41]\ns_waitcnt vmcnt(0)")
            a("s_waitcnt lgkmcnt(0)\ns_memtime s[100:101]\ns_waitcnt lgkmcnt(0)\ns_load_dword s38, s[40:41], 64\ns_waitcnt lgkmcnt(0)")
            stamp()
            j_ = sST + 2*(nstamp[0]-1)
            a(f"s_waitcnt lgkmcnt(0)\ns_sub_u32 s{j_}, s{j_}, s100\ns_lshl_b32 s{j_}, s{j_}, 3\ns_add_u32 s{j_}, s{j_}, s100")
        if OPT.get("dummy") == ks:
            if OPT.get("dpre"):
                a("s_getpc_b64 s[38:39]\nv_lshlrev_b32 v28, 7, v0\nv_min_u32 v28, 2304, v28\nglobal_load_dword v29, v28, s[38:39]\ns_waitcnt vmcnt(0)")
            a("s_waitcnt lgkmcnt(0)\ns_memtime s[100:101]\ns_memrealtime s[40:41]\ns_waitcnt lgkmcnt(0)")
            for n in range(128):
                kind = OPT.get("dkind", 0)
                if kind == 0:
                    a(mf(28 + 4 * (n % 4), 88, 72, "0"))
                elif kind == 1:
                    a(f"v_add3_u32 v{28 + n % 8}, v0, v0, v0\nv_add3_u32 v{36 + n % 8}, v0, v0, v0")
                else:
                    a(f"ds_read_b128 v[{28 + 4 * (n % 4)}:{31 + 4 * (n % 4)}], v{aX} offset:0")
            a("s_waitcnt lgkmcnt(0)")
            stamp()
            a("s_waitcnt lgkmcnt(0)")
            if not OPT.get("cyc"):
                a(f"s_sub_u32 s40, s{sST + 2*(nstamp[0]-1)}, s40\ns_add_u32 s{sST + 2*(nstamp[0]-1)}, s{sST}, s40")
        if ks == 3:
            init_flags("AC")
        tiles = []
        for t in range(14):
            c = lambda rt: acc(t, rt) if ks else "0"
            tiles.append([mf(acc(t, rt), wf(t), xf(ks % 2, rt), c(rt)) if t < 9 else mf(acc(t, rt), xf(ks % 2, rt), wf(t), c(rt)) for rt in range(2)])
        if ks < 17:
            nxt = [wreads(ks + 1, t) for t in range(14)]
            nxt[1] = [nxt[1][0], nxt[1][1] + "\n" + xread(ks + 1, 1)]
            kstep(tiles, nxt, [xread(ks + 1, 0)], {0: "s_waitcnt lgkmcnt(14)", 7: "s_waitcnt lgkmcnt(15)", 12: "s_waitcnt lgkmcnt(15)"})
        else:
            kstep(tiles, None, [], {0: "s_waitcnt lgkmcnt(14)", 7: "s_waitcnt lgkmcnt(0)"})
    stamp()
    KP = lambda j: 18 + 10 * j
    QT = lambda rt, h: 88 + 16 * rt + 4 * h
    VP = lambda t, j: 120 + 6 * t + 2 * j if t < 4 else 48 + 2 * j
    ONE = 72
    def pack_kv(rt):
        o = []
        for q in range(2):
            o += [cv(QT(rt, 3) + 2 + q, acc(4, rt) + 2*q), f"v_mov_b32 v{KP(1+rt) + 8 + q}, 0"]
        for tau in range(4):
            o += [cv(KP(1+rt) + 2*tau + q, acc(5+tau, rt) + 2*q) for q in range(2)]
        o += [f"v_permlane32_swap_b32 v{QT(rt,3) + 2 + q}, v{KP(1+rt) + 8 + q}" for q in range(2)]
        for t in range(5):
            o += [cv(VP(t, 1+rt) + q, acc(9+t, rt) + 2*q) for q in range(2)]
        return o
    def pack_q(rt):
        o = []
        for t in range(4):
            for q in range(2):
                d = QT(rt, t) + q
                o.append(cv(d, acc(t, rt) + 2*q))
                if (t, q) in SPLITS:
                    m = SPLITS[(t, q)]; lo = QT(rt, t-1) + 2 + q
                    o += [f"v_cndmask_b32 v{lo}, 0, v{d}, s[{m}:{m+1}]", f"v_xor_b32 v{d}, v{d}, v{lo}"]
        return o + [f"v_mov_b32 v{QT(rt,0) + 3}, 0"]
    weave([], pack_kv(1))
    a(f"s_bitcmp1_b32 s{sWAVE}, 0\ns_cbranch_scc1 L_AC_nodump")
    for j in range(5):
        a(f"ds_write_b64 v{vEXW}, {vr(KP(2) + 2*j, 2)} offset:{512*j}")
        a(f"ds_write_b64 v{vEXW}, {vr(VP(j, 2), 2)} offset:{512*(5+j)}")
    a("L_AC_nodump:")
    weave([], pack_kv(0) + pack_q(1))
    a("s_waitcnt lgkmcnt(0)\ns_barrier")
    for j in range(5):
        a(f"ds_read_b64 {vr(KP(0) + 2*j, 2)}, v{vEXR} offset:{512*j}")
        a(f"ds_read_b64 {vr(VP(j, 0), 2)}, v{vEXR} offset:{512*(5+j)}")
    SC = lambda rt, h: (224 if rt else 184) + 8 * h
    MX = lambda rt: [76 + 4 * rt + h for h in range(4)]
    PT = lambda rt, h: 144 + 16 * rt + 4 * h
    def qk(rt):
        o = []
        for h in range(4):
            o += [mf(SC(rt, h), KP(1+rt) + 2*h, QT(rt, h), MC), mf(SC(rt, h) + 4, KP(rt) + 2*h, QT(rt, h), MP if rt else MPF)]
        return o
    def rowmax(rt):
        o = []
        for h in range(4):
            s = SC(rt, h); m = MX(rt)[h]
            o += [f"v_max_f32 v{s+r}, v{s+r}, v{s+4+r}" for r in range(4)]
            o += [f"v_max3_f32 v{m}, v{s}, v{s+1}, v{s+2}", f"v_max_f32 v{m}, v{m}, v{s+3}"]
        return o
    def xmax(rt):
        m = MX(rt)
        return [f"v_permlane32_swap_b32 v{m[0]}, v{m[1]}", f"v_permlane32_swap_b32 v{m[2]}, v{m[3]}",
                f"v_max_f32 v{m[0]}, v{m[0]}, v{m[1]}", f"v_max_f32 v{m[2]}, v{m[2]}, v{m[3]}",
                f"v_permlane16_swap_b32 v{m[0]}, v{m[2]}", f"v_max_f32 v{m[0]}, v{m[0]}, v{m[2]}",
                f"v_mul_f32 v{m[0]}, s{sT2}, v{m[0]}", f"v_mov_b32 v{m[2]}, v{m[0]}",
                f"v_permlane16_swap_b32 v{m[0]}, v{m[2]}", f"v_mov_b32 v{m[1]}, v{m[0]}", f"v_mov_b32 v{m[3]}, v{m[2]}",
                f"v_permlane32_swap_b32 v{m[0]}, v{m[1]}", f"v_permlane32_swap_b32 v{m[2]}, v{m[3]}"]
    def probs(rt):
        o = []
        for h in range(4):
            s = SC(rt, h); p = PT(rt, h)
            o += [f"v_fma_f32 v{s+r}, v{s+r}, s{sT}, v{MX(rt)[h]}" for r in range(4)]
            o += [f"v_exp_f32 v{s+r}, v{s+r}" for r in range(4)]
            if h:
                o += split(rt, h - 1)
        return o + split(rt, 3)
    def split(rt, h):
        s = SC(rt, h); p = PT(rt, h); o = []
        for q in range(2):
            o += [cv(p + q, s + 2*q), f"v_and_b32 v{p+2+q}, v{p+q}, v{PM+q}", f"v_xor_b32 v{p+q}, v{p+q}, v{p+2+q}"]
        return o
    OB = lambda rt, t: (224 if rt else 184) + 4 * t
    OA = lambda rt, t: (224 if rt else 184) + 12 + 4 * t
    SM = lambda rt, h: 88 + 16 * rt + 4 * h
    OF = lambda rt: 18 + 10 * rt
    def pv(rt):
        o = [mf(SM(rt, h), ONE, PT(rt, h), "0") for h in range(4)]
        for t in range(5):
            if t < 4: o.append(mf(OB(rt, t), VP(t, rt), PT(rt, t), "0"))
            if t > 0: o.append(mf(OA(rt, t), VP(t, rt), PT(rt, t-1), "0"))
        return o
    def finish(rt):
        o = [f"v_rcp_f32 v{SM(rt,h)}, v{SM(rt,h)}" for h in range(4)]
        for t in range(5):
            for q in range(2):
                d = OF(rt) + 2*t + q
                srcs = []
                if t < 4: srcs.append((OB(rt, t) + 2*q, SM(rt, t), d))
                if t == 4: srcs.append((OA(rt, t) + 2*q, SM(rt, 3), d))
                if (t, q) in SPLITS: srcs.append((OA(rt, t) + 2*q, SM(rt, t-1), 17))
                for x, inv, dd in srcs:
                    o += [f"v_mul_f32 v{x}, v{x}, v{inv}", f"v_mul_f32 v{x+1}, v{x+1}, v{inv}", cv(dd, x)]
                if (t, q) in SPLITS:
                    m = SPLITS[(t, q)]
                    o.append(f"v_cndmask_b32 v{d}, v{d}, v17, s[{m}:{m+1}]")
        return o
    a(f"s_mov_b32 s{sT}, {f32(CSC)}\ns_mov_b32 s{sT2}, {f32(-CSC)}")
    weave(qk(1), pack_q(0) + [f"v_mov_b32 v{ONE+j}, 0x3f803f80" for j in range(4)])
    a("s_waitcnt lgkmcnt(0)")
    weave(qk(0), rowmax(1))
    x1, x0 = xmax(1), xmax(0)
    r0 = rowmax(0)
    for i, x in enumerate(x1):
        a(x)
        for y in r0[2*i:2*i+2]: a(y)
    p1 = probs(1)
    for i, x in enumerate(x0):
        a(x)
        for y in p1[2*i:2*i+2]: a(y)
    weave([], p1[2*len(x0):])
    weave(pv(1), probs(0))
    weave(pv(0), finish(1))
    o_store(OF(1), vOF, vOL, 1)
    weave([], finish(0))
    o_store(OF(0), vOF, vOL, 0)
    stamp()
    a("s_branch L_P2")

def phi(r, n, t):
    o = [f"v_pk_fma_f32 {vr(t+j,2)}, {vr(r+j,2)}, s[56:57], v[14:15]" for j in range(0, n, 2)]
    for j in range(n):
        o += [f"v_exp_f32 v{t+j}, v{t+j} clamp", f"v_max_f32 v{r+j}, s{sT2}, v{r+j}"]
    return o + [f"v_pk_add_f32 {vr(r+j,2)}, {vr(r+j,2)}, {vr(t+j,2)}" for j in range(0, n, 2)]

def b_consumer():
    acc = lambda t, rt: 184 + (t * 2 + rt) * 4
    wf = lambda t: 148 + 4 * t
    xf = lambda ks, rt: 52 + ks * 8 + rt * 4 if ks < 12 else 36 + (ks % 2) * 8 + rt * 4
    R8, R2, aX = 1, 5, 6
    vOF, vOL, vEX = 8, 9, 10
    CK, CS = 28, 32
    a("L_BC:\ns_waitcnt lgkmcnt(0)")
    gap_touch("BC", 2)
    srds_rest()
    init_stores("BC", True)
    rd_lanes(R8, R2, 17, 18); x_lane(aX, aX + 1, 17)
    a(f"""
s_lshl_b32 s{sT}, s{sWAVE}, 12
s_add_u32 s{sT}, s{sT}, {B_X0}
v_add_u32 v{aX}, s{sT}, v{aX}
v_add_u32 v{aX+1}, s{sT}, v{aX+1}
v_and_b32 v17, 15, v0
v_cmp_gt_u32 vcc, 8, v17
v_mov_b32 v18, {EPS}
s_mov_b64 s[42:43], vcc
s_mul_i32 s{sT}, s{sWAVE}, 10240
s_add_u32 s{sT}, s{sT}, {B_EX}
v_lshl_add_u32 v{vEX}, v0, 4, s{sT}
v_mov_b32 v14, {f32(-1e-6*LOG2E)}
v_mov_b32 v15, v14
s_mov_b32 s56, {f32(LOG2E)}
s_mov_b32 s57, s56
""")
    for r in range(4):
        a(f"v_mov_b32 v{CK+r}, v18\nv_cndmask_b32 v{CS+r}, 0, v18, vcc")
    o_store_addr(vOF, vOL, 17, False)

    def wreads(ks, t):
        o = (ks % 5) * B_KVSLOT
        if t == 4:
            return [tr(wf(t), R2, o + 8192), tr(wf(t) + 2, R2, o + 8192 + 256)]
        s, j = (0, t) if t < 4 else (1, t - 5)
        return [tr(wf(t), R8 + j, o + 4096*s), tr(wf(t) + 2, R8 + j, o + 4096*s + 1024)]
    xread = lambda ks, rt: f"ds_read_b128 {vr(xf(ks, rt),4)}, v{aX + ks % 2} offset:{(ks//2 % 3)*B_XSLOT + rt*2048}"

    stamp()
    a("s_barrier")
    stamp()
    a(xread(0, 0)); a(xread(0, 1))
    for t in range(9):
        for x in wreads(0, t): a(x)
    for ks in range(18):
        if ks < 17:
            a("s_barrier")
        if ks == 3:
            init_flags("BC")
        tiles = [[mf(acc(t, rt), xf(ks, rt), wf(t), acc(t, rt) if ks else (CK if t < 4 else CS if t == 4 else "0")) for rt in range(2)] for t in range(9)]
        if ks < 17:
            nxt = [wreads(ks + 1, t) for t in range(9)]
            nxt[1] = [nxt[1][0], nxt[1][1] + "\n" + xread(ks + 1, 1)]
            kstep(tiles, nxt, [xread(ks + 1, 0)], {0: "s_waitcnt lgkmcnt(12)", 3: "s_waitcnt lgkmcnt(13)", 6: "s_waitcnt lgkmcnt(13)", 8: "s_waitcnt lgkmcnt(11)"})
        else:
            kstep(tiles, None, [], {0: "s_waitcnt lgkmcnt(12)", 3: "s_waitcnt lgkmcnt(0)\ns_barrier"})
    stamp()
    a(f"s_mov_b32 s{sT2}, {EPS}\nv_mov_b32 v16, 0x3f803f80")
    wr = lambda reg, slot: f"ds_write_b128 v{vEX}, {vr(reg,4)} offset:{1024*slot}"
    pk = lambda d, s: [cv(d + j, s + 2*j) for j in range(4)]
    weave([], pk(156, acc(4, 0)) + [f"v_cndmask_b32 v{156+j}, v{156+j}, v16, s[42:43]" for j in range(4)] + [wr(156, 9)])
    xq = lambda ks, rt: 168 + (ks - 12) * 8 + rt * 4 if ks in (12, 13) else acc(2 * (ks - 14) + rt, 1) if ks in (14, 15) else xf(ks, rt)
    reread = lambda ks, rt: f"ds_read_b128 {vr(xq(ks, rt),4)}, v{aX + ks % 2} offset:{(ks//2 % 3)*B_XSLOT + rt*2048}"
    weave([], [reread(ks, rt) for ks in (12, 13) for rt in range(2)])
    for tau in range(5):
        o = phi(acc(tau, 0), 8, 148)
        if tau < 4:
            o = pk(acc(5+tau, 0), acc(5+tau, 0)) + o[:8] + [wr(acc(5+tau, 0), 5 + tau)] + o[8:]
        weave([], o + pk(acc(tau, 0), acc(tau, 0)) + [wr(acc(tau, 0), tau)])
        if tau < 4:
            a(reread(14 + tau // 2, tau % 2))
    for j in range(5):
        a(f"v_add_u32 v{R8+j}, {B_WQ0}, v{R8+j}")
    a("s_waitcnt lgkmcnt(0)\ns_barrier")
    stamp()
    QA = lambda t, rt: 216 + (t * 2 + rt) * 4
    qf = lambda t: 148 + 4 * t
    qbase = lambda p: B_WQ0 if p < 4 else 0 if p < 7 else 15360
    def qreads(p, t):
        o = wq_slot(p) - qbase(p)
        if t == 4:
            return [tr(qf(t), R2, o + 4096), tr(qf(t) + 2, R2, o + 4096 + 256)]
        return [tr(qf(t), R8 + t, o), tr(qf(t) + 2, R8 + t, o + 1024)]
    for t in range(5):
        for x in qreads(0, t): a(x)
    for p in range(18):
        ks = QORD[p]
        if p == 7 or (p == 13 and OPT.get('wob', 0)):
            a("s_barrier")
        tiles = [[mf(QA(t, rt), qf(t), xq(ks, rt), QA(t, rt) if p else CK) for rt in range(2)] for t in range(5)]
        if p < 17:
            nxt = [qreads(p + 1, t) for t in range(5)]
            if qbase(p + 1) != qbase(p):
                d = (qbase(p + 1) - qbase(p)) & 0xffffffff
                for t in range(5):
                    nxt[t][0] = f"v_add_u32 v{R8+t}, {d}, v{R8+t}\n" + nxt[t][0]
            kstep(tiles, nxt, [], {t: f"s_waitcnt lgkmcnt({7 if t else 8})" for t in range(5)})
        else:
            kstep(tiles, None, [], {t: f"s_waitcnt lgkmcnt({8 - 2*t})" for t in range(5)})
    stamp()
    PQ = lambda rt: 36 + 10 * rt
    KO = 84
    tup = {0: KO, 1: KO + 4, 2: KO + 12, 3: KO + 20, 4: KO + 28}
    ZO = KO + 32
    weave([], [f"v_mov_b32 v{r}, 0" for r in (tup[1]+4, tup[1]+5, tup[2]+4, tup[2]+5, tup[3]+4, tup[3]+5, ZO+8, ZO+9)])
    a(f"v_lshlrev_b32 v16, 3, v0\nv_add_u32 v16, {B_KVOP}, v16")
    for t in range(5):
        weave([], phi(QA(t, 0), 8, 148) + [cv(PQ(rt) + 2*t + q, QA(t, rt) + 2*q) for rt in range(2) for q in range(2)])
    stamp()
    a("s_barrier")
    stamp()
    tid = lambda tau, taup: {-1: tau - 1, 0: 4 + tau, 1: 9 + tau}[taup - tau]
    rd = lambda d, slot: a(f"ds_read_b64 {vr(d,2)}, v16 offset:{512*slot}")
    for j, d in enumerate((ZO, ZO + 2, ZO + 4, ZO + 6, ZO + 10)):
        rd(d, 13 + j)
    rd(tup[0], tid(0, 0)); rd(tup[0] + 2, tid(1, 0))
    for t in (1, 2, 3):
        rd(tup[t], tid(t-1, t)); rd(tup[t] + 2, tid(t, t)); rd(tup[t] + 6, tid(t+1, t))
    rd(tup[4], tid(3, 4)); rd(tup[4] + 2, tid(4, 4))
    DN = lambda rt: 148 + 4 * rt
    NM = lambda rt, t: 184 + 20 * rt + 4 * t
    OF = lambda rt: 156 + 10 * rt
    a("s_waitcnt lgkmcnt(13)")
    for k, (zo, po) in enumerate(((0, 0), (4, 4), (8, 6))):
        for rt in range(2):
            a(mf(DN(rt), ZO + zo, PQ(rt) + po, DN(rt) if k else CK))
    a("s_waitcnt lgkmcnt(0)")
    def num(rt):
        o = [mf(NM(rt, t), tup[t], PQ(rt) + 2*(t-1), "0") for t in (1, 2, 3)]
        o += [mf(NM(rt, 0), tup[0], PQ(rt), "0"), mf(NM(rt, 4), tup[4], PQ(rt) + 6, "0")]
        return o + [mf(NM(rt, t), tup[t] + 4, PQ(rt) + 2*t, NM(rt, t)) for t in (1, 2, 3)]
    def fin(rt, packed):
        o = []
        for t in (0, 4, 1, 2, 3):
            for q in range(2):
                inv = DN(rt) + min(t, 3)
                if (t, q) in SPLITS:
                    m = SPLITS[(t, q)]
                    o.append(f"v_cndmask_b32 v17, v{DN(rt)+t}, v{DN(rt)+t-1}, s[{m}:{m+1}]")
                    inv = 17
                n = NM(rt, t) + 2*q
                o += [f"v_mul_f32 v{n}, v{n}, v{inv}", f"v_mul_f32 v{n+1}, v{n+1}, v{inv}", cv(OF(rt) + 2*t + q, n)]
        return o
    weave(num(0), [], 0)
    weave(num(1), [f"v_rcp_f32 v{DN(rt)+h}, v{DN(rt)+h}" for rt in range(2) for h in range(4)], 1)
    for rt in range(2):
        weave([], fin(rt, True))
        o_store(OF(rt), vOF, vOL, rt)
    stamp()

def kv_index(wreg, VS, VG, VZ):
    a(f"s_cmp_eq_u32 s{wreg}, 0\ns_cselect_b32 s58, 4, s{wreg}")
    for slot in range(3):
        if slot == 0:
            a(f"s_lshl_b32 s{sT}, s58, 4\ns_sub_u32 s{sT2}, s{sT}, 16\ns_mov_b64 s[46:47], 0")
        elif slot == 1:
            a(f"s_lshl_b32 s{sT}, s{wreg}, 4\ns_mov_b32 s{sT2}, s{sT}")
        else:
            a(f"s_add_u32 s{sT2}, s{sT}, 16\ns_cmp_eq_u32 s{wreg}, 3\ns_cselect_b32 s{sT2}, 56, s{sT2}\ns_cselect_b64 s[46:47], s[44:45], 0")
        kv_tile(VS and VS + 2*slot, VG and VG + 2*slot, False)
    if VZ:
        kv_z(VZ)

def kv_tile(VS, VG, last):
    a(f"v_add_u32 v3, s{sT2}, v1")
    head_of(4, 3)
    a(f"v_mul_u32_u24 v5, 18, v4\nv_sub_u32 v3, v3, v5\nv_cndmask_b32 v4, v4, 7, s[46:47]")
    if last:
        a("v_cmp_eq_u32 vcc, 0, v1\nv_cndmask_b32 v4, v4, 3, vcc\nv_cndmask_b32 v3, v3, 18, vcc")
    for q in range(2):
        a(f"v_add3_u32 v5, v2, s{sT}, {2*q}")
        head_of(6, 5)
        a("v_cmp_eq_u32 vcc, v4, v6\nv_mad_u32_u24 v5, v5, 19, v3\nv_lshlrev_b32 v5, 2, v5")
        if VS:
            a(f"v_add_u32 v6, {B_STG}, v5\nv_cndmask_b32 v{VS+q}, v8, v6, vcc")
        if VG:
            a(f"v_add_u32 v6, s{sM}, v5\nv_cndmask_b32 v{VG+q}, v9, v6, vcc")

def kv_z(VZ):
    a("v_and_b32 v3, 3, v0")
    for q in range(2):
        a(f"v_add3_u32 v5, v2, s{sT}, {2*q}")
        head_of(6, 5)
        a(f"v_cmp_eq_u32 vcc, v3, v6\nv_mul_u32_u24 v5, 76, v5\nv_add3_u32 v5, v5, s{sM}, 64\nv_add_u32 v5, 8, v5\nv_cndmask_b32 v{VZ+q}, v9, v5, vcc")

def b_loader(kind):
    a(f"L_B{kind}1:")
    m = M0(42)
    issue = (lambda c: w_issue("B", c, m)) if kind == "W" else (lambda c: x_issue("B", c, m))
    pre = 1 if OPT.get("early") and kind == "W" else 2
    cnt = {c: issue(c) for c in range(1, pre + 1)}
    stamp()
    mark = len(a.lines)
    VS, VG, vZS, vEA, vE0, vEL, vLA, vGA, vLW = 72, 80, 98, 99, 100, 101, 102, 103, 105
    if kind == "W":
        a(f"v_subrev_u32 v{VD+5}, 1152, v{VD}\nv_subrev_u32 v{VD+6}, 1152, v{VD+1}")
    srds_rest()
    if kind == "W":
        wo_setup(False)
    else:
        sync_setup()
    a(f"""
s_add_u32 s55, s{sV}, 2
s_mul_i32 s{sM}, s{sHG}, {KV_ST}
s_add_u32 s{sM}, s{sM}, {WS_KV}
v_and_b32 v1, 15, v0
v_lshrrev_b32 v2, 4, v0
v_lshlrev_b32 v2, 2, v2
v_cmp_gt_u32 s[44:45], 8, v1
v_lshlrev_b32 v8, 2, v0
v_add_u32 v8, {B_DUMP}, v8
v_mov_b32 v9, {OOB}
""")
    own = sV if kind == "X" else 55
    if kind == "X":
        kv_index(55, None, VG, VG + 6)
        a(f"s_movk_i32 s{sT}, 64")
        kv_z(10)
    kv_index(own, VS, VG + 8 if kind == "X" else None, VG + 14 if kind == "X" else None)
    a(f"""
v_add_u32 v5, s{sT}, v0
v_mul_u32_u24 v5, 76, v5
v_add_u32 v5, {B_STG + 72}, v5
v_cndmask_b32 v{vZS}, v8, v5, s[{sG0}:{sG0+1}]
v_lshlrev_b32 v{vEL}, 4, v0
v_add_u32 v{vEL}, {B_EX}, v{vEL}
s_lshl_b32 s{sT}, s{own}, 10
v_add_u32 v{vEA}, s{sT}, v{vEL}
s_lshl_b32 s{sT}, s58, 10
v_add_u32 v{vE0}, s{sT}, v{vEL}
""")
    if kind == "X":
        a(f"s_movk_i32 s{sT}, 64\ns_movk_i32 s{sT2}, 56\ns_mov_b64 s[46:47], s[44:45]")
        kv_tile(VS + 6, VG + 16, True)
        a(f"s_cmp_eq_u32 s{sV}, 0\ns_cselect_b64 s[46:47], -1, 0")
        for q in range(2):
            a(f"v_cndmask_b32 v{VS+6+q}, v8, v{VS+6+q}, s[46:47]\nv_cndmask_b32 v{VG+16+q}, v{10+q}, v{VG+16+q}, s[46:47]")
        a(f"""
v_lshlrev_b32 v5, 3, v0
v_add_u32 v5, {B_KVOP}, v5
s_lshl_b32 s{sT2}, s58, 9
s_sub_u32 s{sT2}, s{sT2}, 512
v_add_u32 v{vLW+2}, s{sT2}, v5
s_lshl_b32 s{sT2}, s{sV}, 9
v_add_u32 v{vLW+1}, s{sT2}, v5
v_add_u32 v{vLW}, 1024, v{vLW+1}
s_mul_i32 s{sT2}, s{sV}, {9*512}
v_add_u32 v{vLW+3}, s{sT2}, v5
s_mul_i32 s{sT}, s{sV}, 2816
v_lshl_add_u32 v{vLA}, v0, 2, s{sT}
v_add_u32 v{vGA}, s{sM}, v{vLA}
v_cmp_gt_u32 vcc, {5472 - 2560}, v{vLA}
v_cndmask_b32 v{vGA+1}, v9, v{vGA}, vcc
v_add_u32 v{vLA}, {B_STG}, v{vLA}
v_mov_b32 v4, 0
""")
    a(f"v_mov_b32 v10, {B_LCNT}\nv_mov_b32 v11, 1")
    if kind == "X":
        a("ds_write_b32 v10, v4\ns_waitcnt lgkmcnt(0)")
    setup = a.lines[mark:]
    del a.lines[mark:]
    per = -(-len(setup) // 9)
    a(f"s_waitcnt vmcnt({sum(cnt.values())})\ns_barrier")
    stamp()
    extra = 0
    for i in range(-1, 16):
        if i == -1 and pre == 1:
            cnt[2] = issue(2)
        if i + 4 <= 17:
            cnt[i+4] = issue(i + 4)
        if 0 <= i < 9:
            a("s_cmp_eq_u32 s59, 1")
            a.lines += setup[per*i:per*(i+1)]
            a("s_cselect_b32 s59, 1, 0")
        if i == 10 and kind == "X":
            flag_load(sFO, 98); flag_load(sFK, 99)
        if kind == "W" and i >= 14:
            extra += wq_issue(2*(i-14), m) + wq_issue(2*(i-14) + 1, m)
        left = sum(cnt.get(c, 0) for c in range(i + 3, min(i + 4, 17) + 1)) + extra
        a(f"s_waitcnt vmcnt({left})\ns_barrier")
    a("s_barrier")
    if kind == "W":
        for p in (4, 5, 6, 7, 13, 14, 15, 16, 17):
            wq_issue(p, m)
        a("s_waitcnt vmcnt(15)")
    else:
        flag_check(sFK, 99, "L_BX_fk")
    stamp()
    a("s_barrier")
    stamp()
    if kind == "W":
        for p in range(8, 13):
            wq_issue(p, m)
    KT = lambda s: 40 + 4 * s
    RD = lambda src, j: 112 + 28 * src + 4 * j
    srcs = ((vEA, 0), (vE0, 0), (vE0, 4096), (vEA, 5120), (vEA, 6144), (vEL, 9216), (vEL, 4096))
    prods = ((1, 2), (0, 3), (0, 4), (6, 5), (5, 0))
    if kind == "W":
        srcs = ((vEA, 0), None, (vE0, 4096), (vEA, 5120), (vEA, 6144), (vEL, 9216))
        prods = ((0, 2), (0, 3), (0, 4), None, (5, 0))
    nr = sum(x is not None for x in srcs)
    for src in range(4):
        for j, x in enumerate(srcs):
            if x: a(f"ds_read_b128 {vr(RD(src, j),4)}, v{x[0]} offset:{src*10240 + x[1]}")
    for src in range(4):
        a(f"s_waitcnt lgkmcnt({min(15, nr*(3-src))})")
        for s_, x in enumerate(prods):
            if x: a(mf(KT(s_), RD(src, x[0]), RD(src, x[1]), KT(s_) if src else "0"))
    for s_ in range(4 if kind == "X" else 3):
        for r in range(4):
            a(f"ds_write_b32 v{VS + 2*s_ + r//2}, v{KT(s_)+r} offset:{76*(r%2)}")
    a(f"ds_write_b32 v{vZS}, v{KT(4)}")
    a("s_waitcnt lgkmcnt(0)\ns_mov_b64 exec, 1\nds_add_u32 v10, v11\ns_mov_b64 exec, -1")
    stamp()
    b1, b2, b3 = {0: ((0, 1, 2, 3, 4, 5), (), (6, 7, 8)), 1: ((0, 1, 2), (3, 4, 5, 6, 7, 8), ()), 2: ((0, 1, 2), (3, 4, 5), (6, 7, 8))}[OPT.get("wob", 0)]
    if kind == "W":
        a("s_waitcnt vmcnt(0)\ns_barrier")
        for g in b1: wo_pair(g)
        if b2:
            a("s_barrier")
            for g in b2: wo_pair(g)
        stamp()
        a("s_barrier")
        loader_tail("BW", b3)
        return
    a(f"""
s_mov_b32 s{sT3}, 0x400000
L_BX_st:
ds_read_b32 v2, v10
s_waitcnt lgkmcnt(0)
v_readfirstlane_b32 s{sT}, v2
s_sub_u32 s{sT3}, s{sT3}, 1
s_cbranch_scc1 L_BX_st_x
s_cmp_ge_u32 s{sT}, 4
s_cbranch_scc0 L_BX_st
L_BX_st_x:
""")
    for n in range(11):
        a(f"ds_read_b32 v{40+n}, v{vLA} offset:{256*n}")
    for n in range(11):
        a(f"s_waitcnt lgkmcnt({10-n})")
        a(f"buffer_atomic_add_f32 v{40+n}, v{vGA + (n == 10)}, s[{SWS}:{SWS+3}], 0 offen offset:{256*n}")
    stamp()
    a("s_barrier")
    if b2:
        a("s_barrier")
    a("s_waitcnt vmcnt(0)")
    stamp()
    arrive_wait(sKC, 32, "L_BX_kc")
    stamp()
    for s_ in range(9):
        for r in range(4):
            a(f"buffer_load_dword v{112+4*s_+r}, v{VG + 2*s_ + r//2}, s[{SWS}:{SWS+3}], 0 offen offset:{76*(r%2)} sc1")
    dst = ((vLW, -1), (vLW, 4), (vLW, 9), (vLW, 13), (vLW + 2, 0), (vLW + 1, 4), (vLW + 1, 9), (vLW + 1, 13), (vLW + 3, 8))
    a(f"v_subrev_u32 v11, 512, v{vLW}")
    for s_, (ad, off) in enumerate(dst):
        a(f"s_waitcnt vmcnt({4*(8-s_)})")
        a(cv(40 + 2*s_, 112 + 4*s_)); a(cv(41 + 2*s_, 114 + 4*s_))
        a(f"ds_write_b64 v{11 if off < 0 else ad}, {vr(40+2*s_,2)} offset:{512*max(off, 0)}")
    a("s_waitcnt lgkmcnt(0)")
    stamp()
    a("s_barrier")
    loader_tail("BX")

def p2_consumer():
    OFR = lambda ks, rt: 112 + ks * 8 + rt * 4
    ACC = lambda t, rt: 72 + (t * 2 + rt) * 4
    wf = lambda t: 52 + 4 * t
    R8, R2, vO, vTW, vTR, VS = 1, 5, 6, 7, 8, 9
    AH = OPT["ahead"]
    a("L_P2:")
    nstamp[0] = 10
    rd_lanes(R8, R2, 17, 18)
    for j in range(5):
        a(f"v_add_u32 v{R8+j}, {R1}, v{R8+j}")
    a(f"""
v_lshl_add_u32 v{vO}, v0, 4, s58
s_mul_i32 s{sT}, s{sWAVE}, 4608
s_add_u32 s{sT}, s{sT}, {P_TR}
v_and_b32 v17, 15, v0
v_mul_u32_u24 v17, 144, v17
v_lshrrev_b32 v18, 4, v0
v_lshl_add_u32 v17, v18, 3, v17
v_add_u32 v{vTW}, s{sT}, v17
v_lshl_add_u32 v{vTR}, v0, 4, s{sT}
s_lshr_b32 s{sT}, s{sWAVE}, 1
s_and_b32 s{sT2}, s{sWAVE}, 1
s_lshl_b32 s{sT2}, s{sT2}, 5
s_lshl_b32 s{sT3}, s{sWAVE}, 5
s_cmp_eq_u32 s{sBR}, 0
s_cselect_b32 s42, s{sT}, 0
s_cselect_b32 s43, s{sT2}, s{sT3}
s_cselect_b32 s55, 1, 0
s_lshl_b32 s56, s42, 3
s_lshl_b32 s{sT}, s{sRB}, 7
s_add_u32 s42, s42, s{sT}
s_mul_i32 s{sT}, s{sBR}, 1152
s_mul_i32 s{sT2}, s{sHG}, 144
s_add_u32 s57, s{sT}, s{sT2}
""")
    for n in range(5):
        a(f"""
v_add_u32 v17, {64*n}, v0
v_mul_u32_u24 v18, 7282, v17
v_lshrrev_b32 v18, 16, v18
v_mul_u32_u24 v19, 9, v18
v_sub_u32 v19, v17, v19
v_add_u32 v18, s43, v18
v_xor_b32 v18, s56, v18
v_lshlrev_b32 v18, s55, v18
v_add_u32 v18, s42, v18
v_mul_u32_u24 v18, 2304, v18
v_lshl_add_u32 v18, v19, 4, v18
v_add_u32 v{VS+n}, s57, v18
""")
    a(f"v_mov_b32 v17, {OOB}\nv_cndmask_b32 v{VS+4}, v17, v{VS+4}, s[{sG01}:{sG01+1}]")
    a(f"v_add_u32 v14, 18432, v{vO}")
    SO = [8, 9, 10, 11, 12, 13, 14, 15, 36]
    rho(37)
    a(f"s_movk_i32 s{SO[0]}, 16384")
    for j in range(1, 9):
        a(f"s_add_u32 s{sT}, s37, {2*j-2}\ns_and_b32 s{sT}, s{sT}, 15\ns_lshl_b32 s{SO[j]}, s{sT}, 10")
    a("s_waitcnt vmcnt(0)")
    stamp()
    a("s_barrier\ns_barrier")
    stamp()
    def oload(ks, rt):
        return f"buffer_load_dwordx4 {vr(OFR(ks, rt),4)}, v{14 if rt else vO}, s[{SWS}:{SWS+3}], s{SO[ks//2]} offen offset:{1024*(ks%2)} sc1"
    base = lambda ks: R1 if ks < 3 else 0 if 9 <= ks < 12 else R2_
    R2_ = 43008
    def wreads(ks, t):
        o = WO[ks] - base(ks)
        if t == 4:
            return [tr(wf(t), R2, o + 4096), tr(wf(t) + 2, R2, o + 4096 + 256)]
        return [tr(wf(t), R8 + t, o), tr(wf(t) + 2, R8 + t, o + 1024)]
    for ks in range(AH):
        a(oload(ks, 0)); a(oload(ks, 1))
    for t in range(5):
        for x in wreads(0, t): a(x)
    for ks in range(18):
        tiles = [[mf(ACC(t, rt), wf(t), OFR(ks, rt), ACC(t, rt) if ks else "0") for rt in range(2)] for t in range(5)]
        w0 = f"s_waitcnt vmcnt({2*min(AH - 1, 17 - ks)}) lgkmcnt(8)"
        if ks < 17:
            nxt = [wreads(ks + 1, t) for t in range(5)]
            if base(ks + 1) != base(ks):
                d = (base(ks + 1) - base(ks)) & 0xffffffff
                for t in range(5):
                    nxt[t][0] = f"v_add_u32 v{R8+t}, {d}, v{R8+t}\n" + nxt[t][0]
            first = []
            if ks + AH < 18:
                first = [oload(ks + AH, 0)]
                nxt[1][1] += "\n" + oload(ks + AH, 1)
            kstep(tiles, nxt, first, {t: "s_waitcnt lgkmcnt(7)" if t else w0 for t in range(5)})
        else:
            kstep(tiles, None, [], {t: f"s_waitcnt lgkmcnt({8 - 2*t})" if t else w0 for t in range(5)})
        if ks == 0:
            stamp()
    stamp()
    for rt in range(2):
        for t in range(5):
            d = 20 + 2*(rt*5 + t)
            a(cv(d, ACC(t, rt))); a(cv(d + 1, ACC(t, rt) + 2))
            if t == 4:
                a(f"s_mov_b64 exec, s[{sG01}:{sG01+1}]")
            a(f"ds_write_b64 v{vTW}, {vr(d,2)} offset:{rt*2304 + 32*t}")
            if t == 4:
                a("s_mov_b64 exec, -1")
    a("s_waitcnt lgkmcnt(0)")
    for n in range(5):
        a(f"ds_read_b128 {vr(112+4*n,4)}, v{vTR} offset:{1024*n}")
    for n in range(5):
        a(f"s_waitcnt lgkmcnt({4-n})")
        a(f"buffer_store_dwordx4 {vr(112+4*n,4)}, v{VS+n}, s[{SOUT}:{SOUT+3}], 0 offen")
    stamp()
    stamps_out(0)
    a("s_endpgm")

HEADER = open("concat_heads__sliding_local_dilated__linear_attn_block__prompt.s.ref").read().split("; Override")[0]
out = HEADER + "; @launch grid=(256,1,1) block=(512,1,1) lds=163840\n"
a('.amdgcn_target "amdgcn-amd-amdhsa--gfx950"\n.text')
a(kernel_head(KN))
if OPT["stamps"]:
    for i in range(16):
        a(f"s_mov_b32 s{sST+2*i}, 0")
stamp()
a(f"""
s_cmp_ge_u32 s2, 256
s_cbranch_scc1 L_end
s_and_b32 s{sT}, s2, 7
s_lshr_b32 s{sBR}, s{sT}, 2
{'s_xor_b32 s6, s6, 1' if OPT.get('swap') else ''}
s_mul_i32 s{sT2}, s{sBR}, 24
s_add_u32 s0, s0, s{sT2}
s_addc_u32 s1, s1, 0
s_load_dwordx4 s[36:39], s[0:1], 0
s_load_dwordx2 s[40:41], s[0:1], 16
s_sub_u32 s0, s0, s{sT2}
s_subb_u32 s1, s1, 0
s_load_dwordx4 s[44:47], s[0:1], 48
s_load_dwordx2 s[48:49], s[0:1], 64
v_lshrrev_b32 v1, 6, v0
v_and_b32 v0, 63, v0
v_readfirstlane_b32 s{sWAVE}, v1
s_lshr_b32 s{sT2}, s2, 3
""")
m84 = f"""
s_and_b32 s{sHG}, s{sT2}, 3
s_and_b32 s{sT3}, s{sT}, 1
s_lshl_b32 s{sT3}, s{sT3}, 2
s_add_u32 s{sHG}, s{sHG}, s{sT3}
s_lshr_b32 s{sRB}, s{sT2}, 2
s_and_b32 s{sT3}, s{sT}, 2
s_lshl_b32 s{sT3}, s{sT3}, 2
s_add_u32 s{sRB}, s{sRB}, s{sT3}
"""
m48 = f"""
s_and_b32 s{sHG}, s{sT2}, 7
s_lshr_b32 s{sRB}, s{sT2}, 3
s_and_b32 s{sT3}, s{sT}, 3
s_lshl_b32 s{sT3}, s{sT3}, 2
s_add_u32 s{sRB}, s{sRB}, s{sT3}
"""
if OPT["mapping"] == 84:
    a(m84)
elif OPT["mapping"] == 48:
    a(m48)
else:
    a(m48 + f"s_cmp_eq_u32 s{sBR}, {0 if OPT['mapping'] == 8448 else 1}\ns_cbranch_scc0 L_map" + m84 + "L_map:")
rot = ""
if OPT.get("rot") == 2:
    rot = f"""s_lshr_b32 s90, s2, 1
s_xor_b32 s90, s90, s2
s_and_b32 s90, s90, 1
s_mul_i32 s91, s90, {OPT.get("rotby", 5)*128}
s_mul_i32 s90, s90, {OPT.get("rotby", 5)*64*3456}"""
elif OPT.get("rot") == 3:
    rot = f"""s_lshr_b32 s90, s2, 1
s_xor_b32 s90, s90, s2
s_and_b32 s90, s90, 1
s_mul_i32 s90, s90, 5
s_add_u32 s91, s{sRB}, s{sHG}
s_and_b32 s91, s91, 3
s_add_u32 s90, s90, s91
s_lshl_b32 s91, s90, 7
s_mul_i32 s90, s90, {64*3456}"""
elif OPT.get("rot") == 7:
    rot = f"""s_and_b32 s90, s{sHG}, 3
s_and_b32 s91, s{sRB}, 7
s_lshl1_add_u32 s90, s90, s91
s_cmp_ge_u32 s90, 9
s_cselect_b32 s91, 9, 0
s_sub_u32 s90, s90, s91
s_lshl_b32 s91, s90, 7
s_mul_i32 s90, s90, {64*3456}"""
elif OPT.get("rot") in (4, 5, 6):
    tab = {4: 0x75207520, 5: 0x63006300, 6: 0x86427531}[OPT["rot"]]
    rot = f"""s_add_u32 s90, s{sRB}, s{sHG}
s_and_b32 s90, s90, 7
s_lshl_b32 s90, s90, 2
s_lshr_b32 s90, {hex(OPT.get("tab", tab))}, s90
s_and_b32 s90, s90, 15
s_lshl_b32 s91, s90, 7
s_mul_i32 s90, s90, {64*3456}"""
elif OPT.get("rot"):
    few, many = (sRB, sHG) if OPT["mapping"] == 48 else (sHG, sRB)
    rot = f"""s_and_b32 s90, s{few}, 3
s_lshl_b32 s90, s90, 2
s_lshr_b32 s90, 0x7520, s90
s_and_b32 s90, s90, 15
s_and_b32 s91, s{many}, 7
s_add_u32 s90, s90, s91
s_cmp_ge_u32 s90, 9
s_cselect_b32 s91, 9, 0
s_sub_u32 s90, s90, s91
s_lshl_b32 s91, s90, 7
s_mul_i32 s90, s90, {64*3456}"""
a(f"""
s_mov_b32 s{sG0}, 0xffff
s_mov_b32 s{sG0+1}, 0
s_mov_b32 s{sG01}, -1
s_mov_b32 s{sG01+1}, 0
s_and_b32 s{sV}, s{sWAVE}, 1
s_mul_i32 s{sM}, s{sHG}, 144
s_cmp_lt_u32 s{sWAVE}, 4
s_cbranch_scc1 L_cons
s_setprio {OPT.get("prio", 2)}
s_mov_b32 s59, 0
{rot}
s_cmp_lt_u32 s{sWAVE}, 6
s_cbranch_scc1 L_wld
s_cmp_eq_u32 s{sBR}, 0
s_cbranch_scc1 L_AX0
s_branch L_BX0
L_wld:
s_cmp_eq_u32 s{sBR}, 0
s_cbranch_scc1 L_AW0
s_branch L_BW0
L_cons:
s_getpc_b64 s[42:43]
L_pc:
s_lshl_b32 s{sT}, s{sT2}, 2
s_add_u32 s{sT}, s{sT}, s{sWAVE}
s_lshl_b32 s{sT}, s{sT}, 9
v_and_b32 v1, 3, v0
v_lshlrev_b32 v1, 7, v1
v_add_u32 v1, s{sT}, v1
v_min_u32 v1, {'L_last2' if OPT.get('ifetch') == 1 else 'L_last'}-L_pc, v1
{'global_load_dword v27, v1, s[42:43]' if not OPT.get('nopf') else ''}
s_cmp_eq_u32 s{sBR}, 0
s_cbranch_scc1 L_AC
s_branch L_BC
L_end:
s_endpgm
""")
w_head("A"); w_head("B"); x_head("A"); x_head("B")
n0 = nstamp[0]
for fn in (lambda: a_loader("W"), lambda: a_loader("X"), a_consumer, lambda: b_loader("W"), lambda: b_loader("X"), b_consumer, p2_consumer):
    nstamp[0] = n0
    fn()
a("s_endpgm" if OPT.get("ifetch", 0) > 1 else "L_last2:\ns_endpgm" if OPT.get("ifetch") else "L_last:\ns_endpgm")
lines = []
for l in a.lines: lines += l.split("\n")
if OPT.get("noread"):
    lines = [l for l in lines if not l.startswith("ds_read_b64_tr")]
if OPT.get("nomfma"):
    lines = [l for l in lines if not l.startswith("v_mfma")]
lines, added = hz.fix(lines)
out += "\n".join(lines) + "\n"
out += '.section .rodata,"a"\n.p2align 6\n' + kernel_desc(KN, 256, 102 if OPT.get('cyc') else 100, 256)
sys.stdout.write(out)
sys.stderr.write(f"nop states added: {added}\n")
```

```python
import sys, struct
from asmlib import *
import hz

OPT = dict(stamps=0, mapping=48, ahead=6, rot=4, nt=1)
for arg in sys.argv[1:]:
    k, v = arg.split("=")
    OPT[k] = int(v)
KN = "concat_heads__sliding_local_dilated__linear_attn_block__prompt_kernel"

def f32(x):
    return "0x%08x" % struct.unpack("<I", struct.pack("<f", x))[0]

LOG2E = 1.4426950408889634
CSC = 18 ** -0.5 * LOG2E
NEG = "0xf149f2ca"
EPS = f32(1e-6)
OOB = "0x80000000"

O_BR = 0x240000
WS_KV = 0x500000
KV_ST = 0x2000
WS_CNT = 0x540000
WS_STAMP = 0x600000
WS_SIZE = 0x700000

sWAVE, sHG, sRB, sBR, sT = 3, 4, 5, 6, 7
SX, SW, SWS, SDBG, SWO, SOUT = 8, 12, 16, 20, 24, 28
sG0, sG01 = 32, 34
sK, sV, sM, sT2, sT3 = 50, 51, 52, 53, 54
sST = 60

a = Asm()
nstamp = [0]

def stamp():
    if OPT["stamps"]:
        i = nstamp[0]; nstamp[0] += 1
        assert i < 15
        a(f"{'s_memrealtime' if OPT.get('rt') or OPT.get('probe') and not (OPT.get('cyc') and i) else 's_memtime'} s[{sST+2*i}:{sST+2*i+1}]")
        if OPT.get("cyc") and i == 0:
            a("s_memtime s[100:101]")

def stamps_out(last=-1):
    if not OPT["stamps"]:
        return
    if OPT.get("probe"):
        if last == OPT.get("pwave", 0):
            j = sST + 2 * OPT["probe"]
            if OPT.get("ifetch"):
                mode = OPT["ifetch"]
                a(f"""
s_waitcnt vmcnt(0) lgkmcnt(0)
s_cmp_eq_u32 s2, {OPT.get('wg', 0)}
s_cbranch_scc0 L_probe_x
s_cmp_eq_u32 s{sWAVE}, 0
s_cbranch_scc0 L_probe_x
s_sleep 127
s_sleep 127
s_getpc_b64 s[44:45]
L_if_pc:
s_add_u32 s44, s44, L_if_blk-L_if_pc
s_addc_u32 s45, s45, 0
v_lshlrev_b32 v1, 7, v0
v_min_u32 v1, 4096, v1
""")
                if mode == 2:
                    a("global_load_dword v2, v1, s[44:45]\ns_waitcnt vmcnt(0)")
                a(f"""
s_memtime s[100:101]
s_waitcnt lgkmcnt(0)
s_branch L_if_blk
L_last:
.fill {(0 if mode == 1 else 8192)}, 4, 0xbf800000
L_if_blk:
.rept 512
v_add3_u32 v5, v0, v0, v0
.endr
s_memtime s[{j}:{j+1}]
s_waitcnt lgkmcnt(0)
s_sub_u32 s{j}, s{j}, s100
s_lshl_b32 s{j}, s{j}, 3
s_add_u32 s{j}, s{j}, s100
""")
            if OPT.get("vrate"):
                isw = OPT["vrate"] == 1
                a(f"""
s_waitcnt vmcnt(0) lgkmcnt(0)
s_load_dwordx2 s[44:45], s[0:1], {8 if isw else 0}
s_sleep 127
s_sleep 127
s_waitcnt lgkmcnt(0)
s_mov_b32 s46, {1990656 if isw else 2359296}
s_mov_b32 s47, 0x20000
v_lshrrev_b32 v1, 3, v0
v_mul_u32_u24 v1, {3456 if isw else 2304}, v1
v_and_b32 v2, 7, v0
v_lshl_add_u32 v1, v2, 4, v1
s_mov_b32 m0, 0
""")
                for rep in range(2):
                    if rep:
                        a("s_memtime s[100:101]\ns_waitcnt lgkmcnt(0)")
                    a(f"s_mov_b32 s40, 0\nL_vr{rep}:")
                    for n in range(3):
                        a(f"buffer_load_dwordx4 v1, s[44:47], s40 offen offset:{n*1152 if isw else n*128} lds")
                    a(f"s_waitcnt vmcnt(24)\ns_add_u32 s40, s40, {8*3456 if isw else 8*2304}\ns_cmp_lt_u32 s40, {72*8*3456 if isw else 72*8*2304}\ns_cbranch_scc1 L_vr{rep}\ns_waitcnt vmcnt(0)")
                a(f"s_memtime s[{j}:{j+1}]\ns_waitcnt lgkmcnt(0)\ns_sub_u32 s{j}, s{j}, s100\ns_lshl_b32 s{j}, s{j}, 3\ns_add_u32 s{j}, s{j}, s100")
            if OPT.get("skew"):
                op = "max" if OPT["skew"] in (1, 3) else "min"
                a(f"""
s_waitcnt vmcnt(0) lgkmcnt(0)
v_lshlrev_b32 v1, {4 if OPT['skew'] < 3 else 5}, v0
{'v_and_b32 v1, 0x3e0, v1' if OPT['skew'] >= 3 else ''}
v_add_u32 v1, 0x6f0000, v1
buffer_load_dwordx4 v[4:7], v1, s[{SWS}:{SWS+3}], 0 offen sc1
s_waitcnt vmcnt(0)
v_subrev_u32 v4, s{sST}, v4
v_subrev_u32 v5, s{sST}, v5
v_subrev_u32 v6, s{sST}, v6
v_subrev_u32 v7, s{sST}, v7
""")
                if OPT["skew"] < 3:
                    a(f"v_{op}_i32 v4, v4, v5\nv_{op}_i32 v6, v6, v7\nv_{op}_i32 v4, v4, v6")
                a("s_mov_b32 s44, 0\ns_nop 4")
                for l in range(64):
                    a(f"v_readlane_b32 s45, v4, {l}\ns_nop 3\ns_{op}_i32 s44, s44, s45")
                a(f"s_abs_i32 s44, s44\ns_add_u32 s{j}, s{sST}, s44")
            if OPT.get("ptr"):
                a(f"s_waitcnt vmcnt(0) lgkmcnt(0)\ns_load_dword s44, s[0:1], {OPT['ptr'] - 8}\ns_waitcnt lgkmcnt(0)\ns_lshr_b32 s44, s44, {OPT.get('sh', 4)}\ns_and_b32 s44, s44, 0xff\ns_mul_i32 s44, s44, 10\ns_add_u32 s{j}, s{sST}, s44")
            if OPT.get("tlb"):
                a(f"""
s_waitcnt vmcnt(0) lgkmcnt(0)
s_cmp_eq_u32 s{sWAVE}, 0
s_cbranch_scc0 L_probe_x
s_load_dwordx2 s[44:45], s[0:1], {OPT['tlb'] - 8}
s_sleep 127
s_sleep 127
s_waitcnt lgkmcnt(0)
s_mov_b32 s46, 0x1e0000
s_mov_b32 s47, 0x20000
v_lshlrev_b32 v1, {OPT.get('sh', 12)}, v0
""")
                for rep in range(2):
                    if rep:
                        a("s_memtime s[100:101]\ns_waitcnt lgkmcnt(0)")
                    a(f"s_mov_b32 s40, 0\nL_vr{rep}:")
                    for n in range(4):
                        a(f"s_add_u32 s41, s40, {n << (OPT.get('sh', 12) + 6)}\nbuffer_load_dword v{4+n}, v1, s[44:47], s41 offen")
                    st = 128 if OPT.get('sh', 12) > 7 else 32768
                    a(f"s_waitcnt vmcnt(4)\ns_add_u32 s40, s40, {st}\ns_cmp_lt_u32 s40, {16*st}\ns_cbranch_scc1 L_vr{rep}\ns_waitcnt vmcnt(0)")
                a(f"s_memtime s[{j}:{j+1}]\ns_waitcnt lgkmcnt(0)\ns_sub_u32 s{j}, s{j}, s100\ns_lshl_b32 s{j}, s{j}, 2\ns_add_u32 s{j}, s{j}, s100")
            if OPT.get("tlb2"):
                nb = OPT["tlb2"]
                a(f"""
s_waitcnt vmcnt(0) lgkmcnt(0)
s_cmp_eq_u32 s{sWAVE}, 0
s_cbranch_scc0 L_probe_x
s_load_dwordx2 s[8:9], s[0:1], 0
s_load_dwordx2 s[12:13], s[0:1], 8
s_load_dwordx2 s[24:25], s[0:1], 24
s_load_dwordx2 s[44:45], s[0:1], 32
s_sleep 127
s_sleep 127
s_waitcnt lgkmcnt(0)
v_lshlrev_b32 v1, 12, v0
""")
                for r_ in (8, 12, 24, 44):
                    a(f"s_mov_b32 s{r_+2}, 0x1e0000\ns_mov_b32 s{r_+3}, 0x20000")
                for rep in range(2):
                    if rep:
                        a("s_memtime s[100:101]\ns_waitcnt lgkmcnt(0)")
                    a(f"s_mov_b32 s40, 0\nL_vr{rep}:")
                    for r_ in (8, 12, 24, 44)[:nb]:
                        for n in range(7):
                            a(f"s_add_u32 s41, s40, {n << 18}\nbuffer_load_dword v{4+n}, v1, s[{r_}:{r_+3}], s41 offen\ns_waitcnt vmcnt(7)")
                    a(f"s_add_u32 s40, s40, 128\ns_cmp_lt_u32 s40, {128*16//nb}\ns_cbranch_scc1 L_vr{rep}\ns_waitcnt vmcnt(0)")
                a(f"s_memtime s[{j}:{j+1}]\ns_waitcnt lgkmcnt(0)\ns_sub_u32 s{j}, s{j}, s100\ns_lshl_b32 s{j}, s{j}, 1\ns_add_u32 s{j}, s{j}, s100")
            if OPT.get("l1"):
                lds_ = OPT["l1"] == 1
                a(f"""
s_waitcnt vmcnt(0) lgkmcnt(0)
s_cmp_eq_u32 s{sWAVE}, 0
s_cbranch_scc0 L_probe_x
s_load_dwordx2 s[44:45], s[0:1], {OPT.get('buf', 0)}
s_sleep 127
s_sleep 127
s_waitcnt lgkmcnt(0)
s_mov_b32 s46, 0x1e0000
s_mov_b32 s47, 0x20000
v_lshrrev_b32 v1, 2, v0
v_lshlrev_b32 v1, 7, v1
v_and_b32 v2, 3, v0
v_lshl_add_u32 v1, v2, 4, v1
v_add_u32 v2, 64, v1
s_mov_b32 m0, 0
""")
                for rep in range(2):
                    if rep:
                        a("s_memtime s[100:101]\ns_waitcnt lgkmcnt(0)")
                    a(f"s_mov_b32 s40, 0\nL_vr{rep}:")
                    for n in range(2):
                        a(f"buffer_load_dwordx4 v{1+n}, s[44:47], s40 offen lds" if lds_ else f"buffer_load_dwordx4 v[{4+4*n}:{7+4*n}], v{1+n}, s[44:47], s40 offen")
                    a(f"s_waitcnt vmcnt(20)\ns_add_u32 s40, s40, 2048\ns_cmp_lt_u32 s40, {2048*256}\ns_cbranch_scc1 L_vr{rep}\ns_waitcnt vmcnt(0)")
                a(f"s_memtime s[{j}:{j+1}]\ns_waitcnt lgkmcnt(0)\ns_sub_u32 s{j}, s{j}, s100\ns_lshl_b32 s{j}, s{j}, 1\ns_add_u32 s{j}, s{j}, s100")
            if OPT.get("lat"):
                a(f"""
s_waitcnt vmcnt(0) lgkmcnt(0)
s_load_dwordx2 s[44:45], s[0:1], {OPT['lat'] - 8}
s_sleep 127
s_sleep 127
s_sleep 127
s_waitcnt lgkmcnt(0)
s_mov_b32 s46, 0x100000
s_mov_b32 s47, 0x20000
v_mov_b32 v1, 0x20000
buffer_load_dword v2, v1, s[44:47], 0 offen {'sc1' if OPT.get('first') != 2 else ''}
s_waitcnt vmcnt(0)
v_mov_b32 v1, {'0x20000' if not OPT.get('first') else '0x20040'}
s_memtime s[100:101]
s_waitcnt lgkmcnt(0)
buffer_load_dword v2, v1, s[44:47], 0 offen sc1
s_waitcnt vmcnt(0)
s_memtime s[{j}:{j+1}]
s_waitcnt lgkmcnt(0)
s_sub_u32 s{j}, s{j}, s100
s_lshl_b32 s{j}, s{j}, 5
s_add_u32 s{j}, s{j}, s100
""")
            if OPT.get("xcc"):
                a(f"""
s_waitcnt vmcnt(0) lgkmcnt(0)
v_and_b32 v1, 31, v0
v_lshlrev_b32 v1, {5 if OPT['xcc'] == 1 else 2}, v1
v_add_u32 v1, 0x6f0000, v1
buffer_load_dword v2, v1, s[{SWS}:{SWS+3}], 0 offen sc1
s_getreg_b32 s44, hwreg(HW_REG_XCC_ID, 0, 4)
s_waitcnt vmcnt(0)
v_cmp_eq_u32 vcc, s44, v2
s_bcnt1_i32_b32 s44, vcc_lo
s_mul_i32 s44, s44, 10
s_add_u32 s{j}, s{sST}, s44
""")
            a(f"""
s_waitcnt vmcnt(0) lgkmcnt(0)
s_cmp_eq_u32 s2, {OPT.get('wg', 0)}
s_cbranch_scc0 L_probe_x
s_cmp_eq_u32 s{sWAVE}, {last}
s_cbranch_scc0 L_probe_x
s_sub_u32 s{sT}, s{j}, s{100 if OPT.get('cyc') else sST}
{'s_lshr_b32 s7, s7, 3' if OPT.get('cyc') else 's_mul_i32 s7, s7, 10'}
s_min_u32 s{sT}, s{sT}, 100000
s_add_u32 s{sT}, s{sT}, 6000
L_probe:
s_memrealtime s[44:45]
s_waitcnt lgkmcnt(0)
s_sub_u32 s44, s44, s{sST}
s_cmp_lt_u32 s44, s{sT}
s_cbranch_scc1 L_probe
L_probe_x:
""")
        return
    a("s_waitcnt vmcnt(0) lgkmcnt(0)")
    a(f"s_lshl_b32 s{sT}, s2, 3\ns_add_u32 s{sT}, s{sT}, s{sWAVE}\ns_lshl_b32 s{sT}, s{sT}, 6")
    a(f"s_add_u32 s{sT}, s{sT}, {WS_STAMP}\nv_mov_b32 v1, s{sT}")
    for i in range(16):
        a(f"v_mov_b32 v2, s{sST+2*i}")
        a(f"buffer_store_dword v2, v1, s[{SWS}:{SWS+3}], 0 offen offset:{4*i}")
    a("s_waitcnt vmcnt(0)")

def mf(d, s0, s1, c):
    cc = c if isinstance(c, str) else vr(c, 4)
    return f"v_mfma_f32_16x16x32_bf16 {vr(d,4)}, {vr(s0,4)}, {vr(s1,4)}, {cc}"
def cv(d, x):
    return f"v_cvt_pk_bf16_f32 v{d}, v{x}, v{x+1}"
def tr(d, addr, off):
    return f"ds_read_b64_tr_b16 {vr(d,2)}, v{addr} offset:{off}"
def weave(mfmas, others, per=2):
    o = list(others)
    for m in mfmas:
        a(m)
        for _ in range(per):
            if o: a(o.pop(0))
    for x in o: a(x)

def srd(dst, lo, nbytes):
    a(f"s_mov_b32 s{dst}, s{lo}\ns_mov_b32 s{dst+1}, s{lo+1}\ns_mov_b32 s{dst+2}, {nbytes}\ns_mov_b32 s{dst+3}, 0x20000")
def srds_rest():
    srd(SWO, 40, 663552); srd(SOUT, 44, 4718592); srd(SDBG, 46, 256); srd(SWS, 48, WS_SIZE)

class M0:
    def __init__(self, base): self.base = base; self.cur = None
    def set(self, imm):
        if self.cur is not None and -32768 <= imm - self.cur <= 32767:
            a(f"s_addk_i32 m0, {imm - self.cur}")
        else:
            a(f"s_add_u32 m0, s{self.base}, {imm}")
        self.cur = imm

CUR = [0]
def dma(voff, srd_, soff, half=False):
    if OPT.get("nodma") or (OPT.get("nos") and voff == VD + 6 and srd_ == SW and not half):
        return
    if half: a(f"s_mov_b64 exec, s[{sG01}:{sG01+1}]")
    nt = " nt" if OPT.get("nt", 0) >> {SX: 0, SW: 1, SWO: 2}[srd_] & 1 and CUR[0] < OPT.get("ntc", 99) else ""
    a(f"buffer_load_dwordx4 v{voff}, s[{srd_}:{srd_+3}], {soff} offen{nt} lds")
    if half: a("s_mov_b64 exec, -1")

def rd_lanes(r8, r2, t0, t1):
    a(f"""
v_lshrrev_b32 v{t0}, 5, v0
v_lshlrev_b32 v{t0}, 4, v{t0}
v_bfe_u32 v{t1}, v0, 4, 1
v_lshl_add_u32 v{t0}, v{t1}, 2, v{t0}
v_bfe_u32 v{t1}, v0, 2, 2
v_add_u32 v{t0}, v{t0}, v{t1}
v_and_b32 v{t1}, 3, v0
v_lshlrev_b32 v{t1}, 3, v{t1}
v_lshl_add_u32 v{r2}, v{t0}, 5, v{t1}
v_lshl_add_u32 v{r8}, v{t0}, 7, v{t1}
v_bfe_u32 v{t0}, v{t0}, 1, 2
v_lshl_add_u32 v{r8}, v{t0}, 5, v{r8}
""")
    for t in (1, 2, 3):
        a(f"v_xor_b32 v{r8+t}, {32*t}, v{r8}")

def x_lane(d0, d1, tmp):
    a(f"""
v_lshrrev_b32 v{d0}, 4, v0
v_bfe_u32 v{tmp}, v0, 1, 3
v_xor_b32 v{d0}, v{d0}, v{tmp}
v_and_b32 v{tmp}, 15, v0
v_lshlrev_b32 v{tmp}, 7, v{tmp}
v_lshl_add_u32 v{d0}, v{d0}, 4, v{tmp}
v_xor_b32 v{d1}, 64, v{d0}
""")

def col8(dst, tmp):
    a(f"v_bfe_u32 v{tmp}, v0, 4, 2\nv_lshlrev_b32 v{tmp}, 1, v{tmp}\nv_and_b32 v{dst}, 7, v0\nv_xor_b32 v{dst}, v{dst}, v{tmp}\nv_lshlrev_b32 v{dst}, 4, v{dst}")

def head_of(dst, src):
    a(f"v_mul_u32_u24 v{dst}, 57, v{src}\nv_lshrrev_b32 v{dst}, 10, v{dst}")

sOC, sKC, sFO, sFK = 92, 94, 96, 97

def arrive_wait(addr, target, label, arrive=True):
    if arrive:
        a(f"s_mov_b32 s{sT}, 1\ns_atomic_add s{sT}, s[{addr}:{addr+1}], 0 glc\ns_waitcnt lgkmcnt(0)\ns_cmp_ge_u32 s{sT}, {target-1}\ns_cbranch_scc1 {label}_x")
    a(f"""
s_mov_b32 s{sT3}, 0x20000
{label}:
s_mov_b32 s{sT}, 0
s_atomic_add s{sT}, s[{addr}:{addr+1}], 0 glc
s_waitcnt lgkmcnt(0)
s_sub_u32 s{sT3}, s{sT3}, 1
s_cbranch_scc1 {label}_x
s_cmp_ge_u32 s{sT}, {target}
s_cbranch_scc0 {label}
{label}_x:
""")

def flag_load(dst, offreg):
    a(f"s_load_dword s{dst}, s[{SDBG}:{SDBG+1}], s{offreg}")

def flag_check(val, offreg, label):
    a(f"""
s_mov_b32 s{sT3}, 0x20000
{label}:
s_waitcnt lgkmcnt(0)
s_cmp_lg_u32 s{val}, 0
s_cbranch_scc1 {label}_x
s_sub_u32 s{sT3}, s{sT3}, 1
s_cbranch_scc1 {label}_x
s_load_dword s{val}, s[{SDBG}:{SDBG+1}], s{offreg} glc
s_branch {label}
{label}_x:
""")

A_WSLOT, A_XSLOT = 14336, 18432
A_X0 = 5 * A_WSLOT
A_EX = A_X0 + 3 * A_XSLOT
B_KVSLOT, B_XSLOT = 9216, 16384
B_X0 = 5 * B_KVSLOT
B_EX = B_X0 + 3 * B_XSLOT
B_KVOP = 126976
B_STG = 136192
B_DUMP, B_LCNT = B_STG + 5632, B_STG + 6144
B_WQ0 = 143360
QORD = list(range(18))
def wq_slot(p):
    if p < 4: return B_WQ0 + 5120 * p
    if p < 7: return 5120 * (p - 4)
    if p < 13: return 40960 + 5120 * (p - 7)
    return 15360 + 5120 * (p - 13)
R1, R2 = 147456, 43008
WO = [R1, R1 + 5120, R1 + 10240] + [R2 + 5120 * n for n in range(6, 12)] + [0, 5120, 10240] + [R2 + 5120 * n for n in range(6)]
P_TR = 108544
SPLITS = {(1, 0): sG0, (2, 0): sG0, (2, 1): sG0, (3, 0): sG01, (3, 1): sG0}

VD = 16
VWO = 26
vCNT, vFLO, vFLK, vFO, vFK = 30, 31, 32, 33, 34

def w_head(kind):
    parts = (0, 1152, 2304) if kind == "A" else (1152, 2304)
    a(f"L_{kind}W0:")
    col8(VD, 1)
    a(f"""
v_bfe_u32 v1, v0, 5, 1
v_bfe_u32 v2, v0, 3, 2
v_lshl_add_u32 v1, v1, 3, v2
s_mul_i32 s{sT}, s{sV}, {16*3456}
s_add_u32 s{sT}, s{sT}, s{sM}
v_mul_u32_u24 v1, 3456, v1
v_add3_u32 v{VD}, v{VD}, v1, s{sT}
""")
    n = 2 * len(parts)
    for j in range(n - 1, -1, -1):
        off = parts[j // 2] + (j % 2) * 4 * 3456
        if off:
            a(f"v_add_u32 v{VD+j}, {off}, v{VD}")
    a(f"""
v_bfe_u32 v1, v0, 3, 1
v_bfe_u32 v2, v0, 4, 1
v_sub_u32 v1, v1, v2
v_lshrrev_b32 v2, 1, v0
v_lshl_add_u32 v1, v1, 2, v2
v_mul_u32_u24 v1, 3456, v1
v_and_b32 v2, 1, v0
""")
    if kind == "A":
        a(f"""
s_cmp_eq_u32 s{sV}, 0
s_cselect_b32 s{sT2}, 1152, 0
s_cselect_b32 s{sT}, 0, 2304
s_add_u32 s{sT}, s{sT}, s{sM}
s_addk_i32 s{sT}, 128
v_mad_u32_u24 v1, v2, s{sT2}, v1
v_add_u32 v{VD+6}, s{sT}, v1
""")
    else:
        a(f"""
s_add_u32 s{sT}, s{sT}, 128
v_add_u32 v{VD+7}, s{sT}, v1
v_mul_u32_u24 v2, 1152, v2
v_add_u32 v2, 1152, v2
v_add_u32 v{VD+4}, v2, v{VD+7}
""")
    a(f"s_lshl_b32 s42, s{sV}, 11\ns_lshl_b32 s43, s{sV}, {10 if kind == 'A' else 9}\ns_sub_u32 s43, s43, s42")
    a("s_waitcnt lgkmcnt(0)")
    srd(SW, 38, 1990656)
    m = M0(42)
    w_issue(kind, 0, m)
    a(f"s_branch L_{kind}W1")

def w_issue(kind, c, m):
    CUR[0] = c
    slot = (c % 5) * (A_WSLOT if kind == "A" else B_KVSLOT)
    n = 6 if kind == "A" else 4
    so = f"s{sK}" if c else "0"
    if OPT.get("rot"):
        so = "s90"
        if c:
            a(f"s_add_u32 s90, s90, {32*3456}\ns_cmp_eq_u32 s90, {18*32*3456}\ns_cselect_b32 s90, 0, s90")
    elif c:
        a(f"s_mov_b32 s{sK}, {c*32*3456}")
    for j in range(n):
        m.set(slot + 4096 * (j // 2) + 1024 * (j % 2))
        dma(VD + j, SW, so)
        if OPT.get("lp") == 10 + j and c == OPT.get("lpi", 6) + 4 and kind == "A":
            stamp()
            j_ = sST + 2*(nstamp[0]-1)
            a(f"s_waitcnt lgkmcnt(0)\ns_sub_u32 s{j_}, s{j_}, s100\ns_lshl_b32 s{j_}, s{j_}, 4\ns_add_u32 s{j_}, s{j_}, s100")
    m.set(slot + 4096 * (n // 2))
    a("s_add_u32 m0, m0, s43")
    m.cur = None
    dma(VD + n, SW, so, half=(kind == "B"))
    return n + 1

def wq_issue(p, m):
    if OPT.get("rot"):
        a(f"s_add_u32 s{sK}, s90, {(p+1)*32*3456}\ns_cmp_ge_u32 s{sK}, {18*32*3456}\ns_cselect_b32 s{sT}, {18*32*3456}, 0\ns_sub_u32 s{sK}, s{sK}, s{sT}")
    else:
        a(f"s_mov_b32 s{sK}, {QORD[p]*32*3456}")
    for j in range(2):
        m.set(wq_slot(p) + 1024 * j)
        dma(VD + 5 + j, SW, f"s{sK}")
    m.set(wq_slot(p) + 4096)
    a("s_add_u32 m0, m0, s43")
    m.cur = None
    dma(VD + 7, SW, f"s{sK}", half=True)
    return 3

def x_head(kind):
    nq = 9 if kind == "A" else 8
    a(f"L_{kind}X0:")
    a(f"""
v_lshrrev_b32 v1, 3, v0
v_mul_u32_u24 v1, {2304 if kind == 'A' else 1152}, v1
v_lshrrev_b32 v2, 4, v0
v_lshl_add_u32 v2, s{sV}, 2, v2
v_and_b32 v3, 7, v0
v_xor_b32 v2, v2, v3
v_lshl_add_u32 v1, v2, 4, v1
s_mul_i32 s{sT}, s{sRB}, {128*1152}
""")
    if kind == "A":
        a(f"""
s_mul_i32 s{sT2}, s{sV}, {16*1152}
s_add_u32 s{sT3}, s{sT}, s{sT2}
v_add_u32 v{VD}, s{sT3}, v1
s_sub_u32 s{sT3}, s{sT}, s{sT2}
s_add_u32 s{sT3}, s{sT3}, {17*1152}
v_add_u32 v{VD+4}, s{sT3}, v1
s_mul_i32 s{sT2}, s{sV}, 1152
s_sub_u32 s{sT3}, s{sT}, s{sT2}
s_sub_u32 s{sT3}, s{sT3}, {15*1152}
v_add_u32 v{VD+8}, s{sT3}, v1
""")
        for q in (1, 2, 3):
            a(f"v_add_u32 v{VD+q}, {32*1152*q}, v{VD}\nv_add_u32 v{VD+4+q}, {32*1152*q}, v{VD+4}")
    else:
        a(f"s_mul_i32 s{sT2}, s{sV}, {8*1152}\ns_add_u32 s{sT}, s{sT}, s{sT2}\nv_add_u32 v{VD}, s{sT}, v1")
        for q in range(1, 8):
            a(f"v_add_u32 v{VD+q}, {16*1152*q}, v{VD}")
    a(f"s_lshl_b32 s42, s{sV}, 10")
    a("s_waitcnt lgkmcnt(0)")
    srd(SX, 36, 2359296)
    x_issue(kind, 0, M0(42))
    a(f"s_branch L_{kind}X1")

def x_issue(kind, c, m):
    CUR[0] = c + (c & 1)
    nq, h, x0, xs = (9, 5, A_X0, A_XSLOT) if kind == "A" else (8, 4, B_X0, B_XSLOT)
    st = (c + 1) // 2
    if st > 8:
        return 0
    qs = range(nq) if c == 0 else (range(h) if c % 2 else range(h, nq))
    so = f"s{sK}" if st else "0"
    if OPT.get("rot"):
        so = "s91"
        if c % 2:
            a("s_addk_i32 s91, 128\ns_cmpk_eq_u32 s91, 1152\ns_cselect_b32 s91, 0, s91")
    elif st:
        a(f"s_movk_i32 s{sK}, {st*128}")
    for q in qs:
        m.set(x0 + (st % 3) * xs + 2048 * q)
        a("s_nop 0")
        dma(VD + q, SX, so)
    return len(qs)

def wo_setup(quad):
    col8(VWO, 1)
    a(f"""
s_mul_i32 s{sM}, s{sHG}, 144
v_add_u32 v{VWO}, s{sM}, v{VWO}
v_bfe_u32 v1, v0, 5, 1
v_bfe_u32 v2, v0, 3, 2
v_mul_u32_u24 v1, 72, v1
v_add_u32 v1, v1, v2
v_mul_u32_u24 v1, 1152, v1
v_add_u32 v{VWO+1}, v1, v{VWO}
v_lshrrev_b32 v1, 3, v0
v_mul_u32_u24 v1, 1152, v1
v_add_u32 v{VWO}, v1, v{VWO}
v_bfe_u32 v1, v0, 1, 2
v_bfe_u32 v2, v0, 3, 1
v_bfe_u32 v3, v0, 4, 1
v_bfe_u32 v4, v0, 5, 1
v_lshl_add_u32 v5, v2, 2, v1
v_lshl_add_u32 v5, v3, 4, v5
v_lshl_add_u32 v5, v4, 3, v5
v_mul_u32_u24 v5, 1152, v5
s_add_u32 s{sM}, s{sM}, 128
v_add_u32 v{VWO+2}, s{sM}, v5
v_lshl_add_u32 v5, v3, 2, v1
v_lshl_add_u32 v2, v4, 1, v2
v_mul_u32_u24 v2, 72, v2
v_add_u32 v5, v5, v2
v_mul_u32_u24 v5, 1152, v5
v_add_u32 v{VWO+3}, s{sM}, v5
s_and_b32 s55, s{sWAVE}, 3
s_lshl_b32 s57, s55, 3
""")
    rho(56)
    a(f"s_add_u32 s56, s56, s{55 if quad else sV}")

def rho(dst):
    few, many = (sRB, sHG) if OPT["mapping"] == 48 else (sHG, sRB)
    if OPT["mapping"] > 99:
        a(f"s_cmp_eq_u32 s{sBR}, {0 if OPT['mapping'] == 8448 else 1}\ns_cselect_b32 s{sT}, s{sHG}, s{sRB}\ns_cselect_b32 s{sT2}, s{sRB}, s{sHG}")
        few, many = sT, sT2
    a(f"s_lshl_b32 s{dst}, s{few}, 1\ns_add_u32 s{dst}, s{dst}, s{many}\ns_lshl_b32 s{dst}, s{dst}, 1")
    if not OPT.get("worot", 1):
        a(f"s_mov_b32 s{dst}, 0")

def wo_chunk(left, fadd):
    if left:
        a(f"s_mul_i32 s{sK}, s{sV}, {288*1152}\ns_add_u32 s{sK}, s{sK}, {64*1152}")
        steps = (4, 140, 4); v8, v2 = VWO + 1, VWO + 3
    else:
        a(f"""
s_add_u32 s{sT}, s56, {fadd}
s_bfe_u32 s{sK}, s{sT}, 0x30001
s_mul_i32 s{sK}, s{sK}, {72*1152}
s_bitcmp1_b32 s{sT}, 0
s_cselect_b32 s{sT}, {32*1152}, 0
s_add_u32 s{sK}, s{sK}, s{sT}
""")
        steps = (16, -8, 16); v8, v2 = VWO, VWO + 2
    a(f"s_mov_b32 s{sT2}, s{sK}")
    for j in range(4):
        dma(v8, SWO, f"s{sK}")
        a("s_addk_i32 m0, 1024")
        a(f"s_add_u32 s{sK}, s{sK}, {steps[j]*1152 & 0xffffffff}" if j < 3 else "s_nop 0")
    dma(v2, SWO, f"s{sT2}")
    return 5

def wo_issue(q):
    packed = sum((WO[2 + 4*q + w] // 1024) << (8 * w) for w in range(4))
    a(f"s_lshr_b32 s{sT}, {packed}, s57\ns_and_b32 s{sT}, s{sT}, 0xff\ns_lshl_b32 m0, s{sT}, 10")
    return wo_chunk(False, 4*q)

def wo_pair(g):
    a(f"s_mul_i32 s{sT}, s{sV}, {WO[2*g+1] - WO[2*g] & 0xffffffff}\ns_add_u32 m0, s{sT}, {WO[2*g]}")
    return wo_chunk(g == 0, 2*g - 2)

def sync_setup():
    a(f"""
s_lshl_b32 s{sT}, s{sBR}, 4
s_add_u32 s{sT}, s{sT}, s{sRB}
s_lshl_b32 s{sT2}, s{sT}, 8
s_add_u32 s{sT2}, s{sT2}, {WS_CNT}
s_add_u32 s{sOC}, s{SWS}, s{sT2}
s_addc_u32 s{sOC+1}, s{SWS+1}, 0
s_lshl_b32 s{sT}, s{sT}, 2
s_add_u32 s98, s{sT}, 32
s_lshl_b32 s99, s{sHG}, 2
s_mul_i32 s{sT2}, s{sHG}, {KV_ST}
s_add_u32 s{sT2}, s{sT2}, {WS_KV + 6144}
s_add_u32 s{sKC}, s{SWS}, s{sT2}
s_addc_u32 s{sKC+1}, s{SWS+1}, 0
""")

def loader_tail(tag, late=()):
    if tag[1] == "X":
        flag_check(sFO, 98, f"L_{tag}_fo")
    a("s_barrier")
    stamp()
    for g in late:
        wo_pair(g)
    if tag[1] == "X":
        a(f"s_cmp_eq_u32 s{sWAVE}, 6\ns_cbranch_scc0 L_{tag}_oc_x")
        arrive_wait(sOC, 8, f"L_{tag}_oc")
    a("s_waitcnt vmcnt(0)")
    stamp()
    a("s_barrier")
    stamps_out({"AW": 4, "AX": 6}.get(tag, -1))
    a("s_endpgm")

def a_loader(kind):
    a(f"L_A{kind}1:")
    m = M0(42)
    issue = (lambda c: w_issue("A", c, m)) if kind == "W" else (lambda c: x_issue("A", c, m))
    if OPT.get("prepass"):
        a("s_mov_b32 s58, s90\ns_mov_b32 s59, s91")
        n_ = {}
        for c in range(1, 18):
            if OPT["prepass"] == 2:
                a("s_mov_b32 s90, s58\ns_mov_b32 s91, s59")
            n_[c] = issue(c)
            a(f"s_waitcnt vmcnt({n_[c] + n_.get(c-1, 0)})")
            if c in (4, 9):
                stamp()
        a("s_waitcnt vmcnt(0)")
        stamp()
        a("s_barrier\ns_mov_b32 s90, s58\ns_mov_b32 s91, s59")
        m.cur = None
        issue(0)
    pre = 1 if OPT.get("early") and kind == "W" else 2
    cnt = {c: issue(c) for c in range(1, pre + 1)}
    stamp()
    x_lane(8, 9, 1)
    rd_lanes(36, 12, 1, 2)
    a(f"""
v_add_u32 v8, {A_X0 + 8*2048}, v8
v_add_u32 v9, {A_X0 + 8*2048}, v9
s_lshl_b32 s{sT}, s{sV}, 6
v_xor_b32 v10, s{sT}, v36
v_add_u32 v10, {4096 if kind == 'W' else 8192}, v10
v_xor_b32 v11, 32, v10
v_add_u32 v12, {12288 if kind == 'W' else 13312}, v12
v_add_u32 v13, {4*A_WSLOT}, v10
v_add_u32 v14, {4*A_WSLOT}, v11
v_add_u32 v15, {4*A_WSLOT}, v12
s_lshl_b32 s{sT}, s{sV}, 10
s_add_u32 s{sT}, s{sT}, {A_EX + (0 if kind == 'W' else 2560)}
v_lshlrev_b32 v7, 3, v0
v_add_u32 v6, s{sT}, v7
v_add_u32 v7, {A_EX + (2048 if kind == 'W' else 4608)}, v7
""")
    stamp()
    a(f"s_waitcnt vmcnt({sum(cnt.values())})\ns_barrier")
    stamp()
    extra = 0
    for i in range(-1, 17):
        ks = i + 1
        slot = ks % 5
        off = 0 if slot == 4 else slot * A_WSLOT
        ad = (13, 14, 15) if slot == 4 else (10, 11, 12)
        def lp(n):
            if OPT.get("lp") == n and i == OPT.get("lpi", 6):
                stamp()
                j_ = sST + 2*(nstamp[0]-1)
                a(f"s_waitcnt lgkmcnt(0)\ns_sub_u32 s{j_}, s{j_}, s100\ns_lshl_b32 s{j_}, s{j_}, 4\ns_add_u32 s{j_}, s{j_}, s100")
        if OPT.get("stat") and kind == "X" and 2 <= i <= 13:
            a("s_memtime s[38:39]")
        if OPT.get("lp") and i == OPT.get("lpi", 6):
            a("s_memtime s[100:101]")
            if OPT["lp"] == 5:
                a(".rept 128\ns_mov_b32 s39, 0x12345\n.endr")
                lp(5)
        a(f"ds_read_b128 v[40:43], v{8 + ks % 2} offset:{(ks//2 % 3)*A_XSLOT}")
        for j in range(3 if OPT.get("nohalo", 0) < 2 else 0):
            a(tr(44 + 4*j, ad[j], off)); a(tr(46 + 4*j, ad[j], off + (1024 if j < 2 else 256)))
        if i == -1 and pre == 1:
            cnt[2] = issue(2)
        if i + 4 <= 17:
            cnt[i+4] = issue(i + 4)
        lp(1)
        a("s_waitcnt lgkmcnt(0)")
        if OPT.get("stat") and kind == "X" and 2 <= i <= 13:
            if i == 2:
                a(f"s_mov_b32 s36, {0xffff if OPT['stat'] == 1 else 0}")
            else:
                a("s_sub_u32 s41, s38, s37")
                if OPT["stat"] == 3:
                    a("s_cmp_gt_u32 s41, 800\ns_cselect_b32 s41, 100, 0\ns_add_u32 s36, s36, s41")
                else:
                    a(f"s_{'min' if OPT['stat'] == 1 else 'max'}_u32 s36, s36, s41")
            a("s_mov_b32 s37, s38")
            if i == 13:
                a(f"s_lshl_b32 s36, s36, 4\ns_add_u32 s{sST + 2*13}, s36, s100")
        for j in range(3 if not OPT.get("nohalo") else 0):
            c = 60 + 4*j if ks else "0"
            a(mf(60 + 4*j, 44 + 4*j, 40, c) if kind == "W" else mf(60 + 4*j, 40, 44 + 4*j, c))
        if i == 1:
            srds_rest(); sync_setup()
        if i == 2:
            wo_setup(True)
        if i == 14 and kind == "W":
            extra += wo_pair(0)
        if i == 15:
            extra += wo_issue(0)
        if i + 1 <= 16:
            left = sum(cnt.get(c, 0) for c in range(i + 3, min(i + 4, 17) + 1)) + extra
            lp(2)
            a(f"s_waitcnt vmcnt({left})")
            lp(3)
            a("s_barrier")
            lp(4)
            if OPT.get("fine") and kind == "W" and i % 2 == 1 and 0 < i < 14:
                stamp()
    for j in range(3):
        a(cv(44 + 2*j, 60 + 4*j)); a(cv(45 + 2*j, 62 + 4*j))
    if kind == "W":
        a("v_mov_b32 v50, 0\nv_mov_b32 v51, 0")
        a("v_permlane32_swap_b32 v48, v50\nv_permlane32_swap_b32 v49, v51")
    a("ds_write_b64 v6, v[44:45]\nds_write_b64 v6, v[46:47] offset:512")
    a(f"ds_write_b64 v7, {'v[50:51]' if kind == 'W' else 'v[48:49]'}")
    stamp()
    a("s_waitcnt lgkmcnt(0)\ns_barrier")
    if kind == "X":
        flag_load(sFO, 98)
    wo_issue(1); wo_issue(2); wo_issue(3)
    stamp()
    loader_tail("A" + kind)

def o_store_addr(vfull, vleft, tmp, left_lo):
    a(f"""
s_lshl_b32 s{sT}, s{sRB}, 3
s_lshl_b32 s{sT2}, s{sWAVE}, 1
s_add_u32 s{sT}, s{sT}, s{sT2}
s_mul_i32 s{sT}, s{sT}, 18432
s_mul_i32 s{sT2}, s{sBR}, {O_BR}
s_add_u32 s58, s{sT}, s{sT2}
s_lshl_b32 s{sT2}, s{sHG}, 11
s_add_u32 s{sT2}, s{sT2}, s58
v_lshl_add_u32 v{vfull}, v0, 4, s{sT2}
s_lshr_b32 s{sT2}, s{sHG}, 2
s_add_u32 s{sT2}, s{sT2}, 16
s_lshl_b32 s{sT2}, s{sT2}, 10
s_add_u32 s{sT}, s58, s{sT2}
s_and_b32 s{sT2}, s{sHG}, 3
s_lshl_b32 s{sT2}, s{sT2}, 8
s_add_u32 s{sT}, s{sT}, s{sT2}
v_and_b32 v{vleft}, 15, v0
v_lshlrev_b32 v{vleft}, 4, v{vleft}
v_bfe_u32 v{tmp}, v0, 4, 1
v_lshl_add_u32 v{vleft}, v{tmp}, 3, v{vleft}
v_add_u32 v{vleft}, s{sT}, v{vleft}
v_mov_b32 v{tmp}, {OOB}
""")
    x, y = (tmp, vleft) if left_lo else (vleft, tmp)
    a(f"v_cndmask_b32 v{vleft}, v{x}, v{y}, s[{sG01}:{sG01+1}]")

def o_store(of, vfull, vleft, rt):
    so = f"s{sK}" if rt else "0"
    if rt:
        a(f"s_movk_i32 s{sK}, 18432")
    a(f"buffer_store_dwordx4 {vr(of,4)}, v{vfull}, s[{SWS}:{SWS+3}], {so} offen sc1")
    a(f"buffer_store_dwordx4 {vr(of+4,4)}, v{vfull}, s[{SWS}:{SWS+3}], {so} offen offset:1024 sc1")
    a(f"buffer_store_dwordx2 {vr(of+8,2)}, v{vleft}, s[{SWS}:{SWS+3}], {so} offen sc1")

def gap_touch(tag, parts):
    if not OPT.get("touch"):
        return
    nt = " nt" if OPT.get("tnt") else ""
    a(f"""
s_cmp_eq_u32 s{sWAVE}, 1
s_cbranch_scc1 L_{tag}_tw
s_cmp_eq_u32 s{sWAVE}, 2
s_cbranch_scc0 L_{tag}_tx
s_and_b32 s{sT}, s{sRB}, 7
s_cmp_eq_u32 s{sT}, 0
s_cselect_b32 s{sT}, 9, s{sT}
s_sub_u32 s{sT}, s{sT}, 1
s_lshl_b32 s{sT}, s{sT}, 7
s_and_b32 s{sT2}, s{sHG}, 3
s_lshl_b32 s{sT2}, s{sT2}, 5
s_lshl_b32 s{sT3}, s{sRB}, 7
s_add_u32 s{sT2}, s{sT2}, s{sT3}
v_and_b32 v1, 31, v0
v_add_u32 v1, s{sT2}, v1
v_mul_u32_u24 v1, 1152, v1
""")
    srd(SX, 36, 2359296)
    a(f"""
buffer_load_dword v26, v1, s[{SX}:{SX+3}], s{sT} offen{nt}
s_branch L_{tag}_tx
L_{tag}_tw:
s_and_b32 s{sT}, s{sHG}, 3
s_lshl_b32 s{sT}, s{sT}, 1
s_cmp_eq_u32 s{sT}, 0
s_cselect_b32 s{sT}, 9, s{sT}
s_sub_u32 s{sT}, s{sT}, 1
s_lshl_b32 s{sT}, s{sT}, 3
s_and_b32 s{sT2}, s{sRB}, 7
s_add_u32 s{sT}, s{sT}, s{sT2}
s_mul_i32 s{sT}, s{sT}, {8*3456}
s_add_u32 s{sT}, s{sT}, s{sM}
v_lshrrev_b32 v1, 3, v0
v_mul_u32_u24 v1, 3456, v1
v_bfe_u32 v2, v0, 1, 2
v_min_u32 v2, {parts-1}, v2
v_mul_u32_u24 v2, 1152, v2
v_and_b32 v3, 1, v0
v_mul_u32_u24 v3, 140, v3
v_add3_u32 v1, v1, v2, v3
""")
    srd(SW, 38, 1990656)
    a(f"buffer_load_dword v26, v1, s[{SW}:{SW+3}], s{sT} offen offset:{1152*(3-parts)}{nt}\nL_{tag}_tx:")

def init_stores(tag, with_kv):
    if OPT.get("skew"):
        a(f"v_mov_b32 v2, s{sST}\ns_lshl_b32 s{sT}, s2, 2\ns_add_u32 s{sT}, s{sT}, 0x6f0000\nv_mov_b32 v1, s{sT}\nbuffer_store_dword v2, v1, s[{SWS}:{SWS+3}], 0 offen sc1")
    if OPT.get("xcc"):
        a(f"s_getreg_b32 s{sT}, hwreg(HW_REG_XCC_ID, 0, 4)\nv_mov_b32 v2, s{sT}\ns_lshl_b32 s{sT}, s2, 2\ns_add_u32 s{sT}, s{sT}, 0x6f0000\nv_mov_b32 v1, s{sT}\nbuffer_store_dword v2, v1, s[{SWS}:{SWS+3}], 0 offen sc1")
    a(f"""
s_or_b32 s{sT}, s{sHG}, s{sWAVE}
s_cmp_eq_u32 s{sT}, 0
s_cselect_b32 s55, 1, 0
v_mov_b32 v20, 0
v_mov_b32 v21, 0
v_mov_b32 v22, 0
v_mov_b32 v23, 0
s_cbranch_scc0 L_{tag}_i1
s_lshl_b32 s{sT}, s{sBR}, 4
s_add_u32 s{sT}, s{sT}, s{sRB}
s_lshl_b32 s{sT}, s{sT}, 8
s_add_u32 s{sT}, s{sT}, {WS_CNT}
v_mov_b32 v24, s{sT}
buffer_store_dword v20, v24, s[{SWS}:{SWS+3}], 0 offen sc1
L_{tag}_i1:
""")
    if with_kv:
        a(f"""
s_or_b32 s{sT}, s{sRB}, s{sWAVE}
s_cmp_eq_u32 s{sT}, 0
s_cbranch_scc0 L_{tag}_i2
s_or_b32 s55, s55, 2
s_mul_i32 s{sT}, s{sHG}, {KV_ST}
s_add_u32 s{sT}, s{sT}, {WS_KV}
v_lshl_add_u32 v24, v0, 4, s{sT}
""")
        for j in range(7):
            a(f"s_movk_i32 s{sK}, {1024*j}\nbuffer_store_dwordx4 v[20:23], v24, s[{SWS}:{SWS+3}], s{sK} offen sc1")
        a(f"L_{tag}_i2:")

def init_flags(tag):
    a(f"""
s_waitcnt vmcnt(0)
s_cmp_eq_u32 s55, 0
s_cbranch_scc1 L_{tag}_f2
v_mov_b32 v20, 1
s_bitcmp1_b32 s55, 0
s_cbranch_scc0 L_{tag}_f1
s_lshl_b32 s{sT}, s{sBR}, 4
s_add_u32 s{sT}, s{sT}, s{sRB}
s_lshl_b32 s{sT}, s{sT}, 2
s_add_u32 s{sT}, s{sT}, 32
v_mov_b32 v24, s{sT}
buffer_store_dword v20, v24, s[{SDBG}:{SDBG+3}], 0 offen sc1
L_{tag}_f1:
s_bitcmp1_b32 s55, 1
s_cbranch_scc0 L_{tag}_f2
s_lshl_b32 s{sT}, s{sHG}, 2
v_mov_b32 v25, s{sT}
buffer_store_dword v20, v25, s[{SDBG}:{SDBG+3}], 0 offen sc1
L_{tag}_f2:
""")

def kstep(tiles, nxt_reads, first, waits):
    pend = list(first)
    for t, (m0_, m1_) in enumerate(tiles):
        if t in waits:
            a(waits[t])
        a(m0_)
        for x in pend: a(x)
        a(m1_)
        pend = []
        if nxt_reads:
            a(nxt_reads[t][0]); pend = [nxt_reads[t][1]]
    for x in pend: a(x)

def a_consumer():
    acc = lambda t, rt: 144 + (t * 2 + rt) * 4
    wf = lambda t: 88 + 4 * t
    xf = lambda buf, rt: 72 + buf * 8 + rt * 4
    R8, R2, R8b, R2b, aX = 1, 5, 6, 10, 11
    vOF, vOL, vEXW, vEXR = 13, 14, 15, 16
    MC, MP, MPF, PM = 56, 60, 64, 68
    a("L_AC:\ns_waitcnt lgkmcnt(0)")
    gap_touch("AC", 3)
    srds_rest()
    init_stores("AC", False)
    rd_lanes(R8, R2, 17, 18); x_lane(aX, aX + 1, 17)
    for j in range(5):
        a(f"v_add_u32 v{R8b+j}, {4*A_WSLOT}, v{R8+j}")
    a(f"""
s_lshl_b32 s{sT}, s{sWAVE}, 12
s_add_u32 s{sT}, s{sT}, {A_X0}
v_add_u32 v{aX}, s{sT}, v{aX}
v_add_u32 v{aX+1}, s{sT}, v{aX+1}
s_lshr_b32 s{sT}, s{sWAVE}, 1
s_lshl_b32 s{sT}, s{sT}, 3
v_and_b32 v17, 15, v0
v_xor_b32 v17, s{sT}, v17
v_lshrrev_b32 v18, 4, v0
v_lshlrev_b32 v18, 2, v18
v_xor_b32 v18, s{sT}, v18
v_sub_u32 v17, v17, v18
v_mov_b32 v19, {NEG}
s_and_b32 s{sT}, s{sWAVE}, 1
s_or_b32 s{sT}, s{sT}, s{sRB}
s_cmp_eq_u32 s{sT}, 0
s_cselect_b64 s[42:43], -1, 0
""")
    for r in range(4):
        a(f"""
v_subrev_u32 v18, {r}, v17
v_cmp_gt_u32 vcc, 8, v18
v_cndmask_b32 v{MC+r}, v19, 0, vcc
v_cmp_gt_i32 vcc, -8, v18
v_cndmask_b32 v{MP+r}, v19, 0, vcc
v_cndmask_b32 v{MPF+r}, v{MP+r}, v19, s[42:43]
v_cmp_lt_i32 vcc, -1, v18
v_mov_b32 v20, {'0xffff' if r % 2 == 0 else '0xffff0000'}
v_cndmask_b32 v20, 0, v20, vcc
""")
        a(f"v_mov_b32 v{PM + r//2}, v20" if r % 2 == 0 else f"v_or_b32 v{PM + r//2}, v{PM + r//2}, v20")
    o_store_addr(vOF, vOL, 17, True)
    a(f"""
s_lshr_b32 s{sT}, s{sWAVE}, 1
s_add_u32 s{sT}, s{sT}, 1
s_mul_i32 s{sT}, s{sT}, 5120
s_bitcmp1_b32 s{sWAVE}, 0
s_cselect_b32 s{sT3}, s{sT}, 0
v_lshlrev_b32 v17, 3, v0
v_add_u32 v17, {A_EX}, v17
v_add_u32 v{vEXW}, s{sT}, v17
v_add_u32 v{vEXR}, s{sT3}, v17
""")

    def wreads(ks, t):
        slot = ks % 5
        o = 0 if slot == 4 else slot * A_WSLOT
        r8, r2 = (R8b, R2b) if slot == 4 else (R8, R2)
        if t == 4 or t == 13:
            o += 12288 if t == 4 else 13312
            return [tr(wf(t), r2, o), tr(wf(t) + 2, r2, o + 256)]
        s, j = (0, t) if t < 4 else (1, t - 5) if t < 9 else (2, t - 9)
        return [tr(wf(t), r8 + j, o + 4096*s), tr(wf(t) + 2, r8 + j, o + 4096*s + 1024)]
    xread = lambda ks, rt: f"ds_read_b128 {vr(xf(ks % 2, rt),4)}, v{aX + ks % 2} offset:{(ks//2 % 3)*A_XSLOT + rt*2048}"

    if OPT.get("prepass"):
        a("s_barrier")
    stamp()
    a("s_barrier")
    stamp()
    a(xread(0, 0)); a(xread(0, 1))
    for t in range(14):
        for x in wreads(0, t): a(x)
    for ks in range(18):
        if OPT.get("body") and ks == OPT["body"] + 1:
            stamp()
            j_ = sST + 2*(nstamp[0]-1)
            a(f"s_waitcnt lgkmcnt(0)\ns_sub_u32 s{j_}, s{j_}, s100\ns_lshl_b32 s{j_}, s{j_}, 4\ns_add_u32 s{j_}, s{j_}, s100")
        if OPT.get("span") and ks == OPT["span"] + 4:
            a("s_barrier")
            stamp()
            j_ = sST + 2*(nstamp[0]-1)
            a(f"s_waitcnt lgkmcnt(0)\ns_sub_u32 s{j_}, s{j_}, s100\ns_lshl_b32 s{j_}, s{j_}, 2\ns_add_u32 s{j_}, s{j_}, s100")
        elif ks < 17:
            a("s_barrier")
        if ks and ks in (OPT.get("body"), OPT.get("span")):
            a("s_memtime s[100:101]")
        if OPT.get("fine") == 2 and ks in (2, 5, 8, 11, 14):
            stamp()
        if OPT.get("ret", 0) > 3 and ks == 1:
            base, off = {4: (38, 520*3456 + 160), 5: (36, 5*1152 + 1024), 6: (38, 200*3456 + 160), 7: (38, 520*3456 + 1152 + 160)}[OPT["ret"]]
            a(f"s_mul_i32 s40, s{sWAVE}, {3456 if base == 38 else 1152}\ns_add_u32 s40, s40, {off - 64}\ns_add_u32 s40, s40, s{base}\ns_addc_u32 s41, s{base+1}, 0")
        elif OPT.get("ret") and ks == 1:
            a(f"s_lshl_b32 s40, s2, 10\ns_lshl_b32 s41, s{sWAVE}, 8\ns_add_u32 s40, s40, s41\ns_add_u32 s40, s40, 0x580000\ns_add_u32 s40, s40, s{SWS}\ns_addc_u32 s41, s{SWS+1}, 0")
            if OPT["ret"] == 1:
                a("v_mov_b32 v28, 0\nglobal_load_dword v29, v28, s[40:41]")
        if OPT.get("ret") and ks == OPT.get("at", 7):
            if OPT["ret"] == 2:
                a("v_mov_b32 v28, 0\nglobal_load_dword v29, v28, s[40:41]\ns_waitcnt vmcnt(0)")
            a("s_waitcnt lgkmcnt(0)\ns_memtime s[100:101]\ns_waitcnt lgkmcnt(0)\ns_load_dword s38, s[40:41], 64\ns_waitcnt lgkmcnt(0)")
            stamp()
            j_ = sST + 2*(nstamp[0]-1)
            a(f"s_waitcnt lgkmcnt(0)\ns_sub_u32 s{j_}, s{j_}, s100\ns_lshl_b32 s{j_}, s{j_}, 3\ns_add_u32 s{j_}, s{j_}, s100")
        if OPT.get("dummy") == ks:
            if OPT.get("dpre"):
                a("s_getpc_b64 s[38:39]\nv_lshlrev_b32 v28, 7, v0\nv_min_u32 v28, 2304, v28\nglobal_load_dword v29, v28, s[38:39]\ns_waitcnt vmcnt(0)")
            a("s_waitcnt lgkmcnt(0)\ns_memtime s[100:101]\ns_memrealtime s[40:41]\ns_waitcnt lgkmcnt(0)")
            for n in range(128):
                kind = OPT.get("dkind", 0)
                if kind == 0:
                    a(mf(28 + 4 * (n % 4), 88, 72, "0"))
                elif kind == 1:
                    a(f"v_add3_u32 v{28 + n % 8}, v0, v0, v0\nv_add3_u32 v{36 + n % 8}, v0, v0, v0")
                else:
                    a(f"ds_read_b128 v[{28 + 4 * (n % 4)}:{31 + 4 * (n % 4)}], v{aX} offset:0")
            a("s_waitcnt lgkmcnt(0)")
            stamp()
            a("s_waitcnt lgkmcnt(0)")
            if not OPT.get("cyc"):
                a(f"s_sub_u32 s40, s{sST + 2*(nstamp[0]-1)}, s40\ns_add_u32 s{sST + 2*(nstamp[0]-1)}, s{sST}, s40")
        if ks == 3:
            init_flags("AC")
        tiles = []
        for t in range(14):
            c = lambda rt: acc(t, rt) if ks else "0"
            tiles.append([mf(acc(t, rt), wf(t), xf(ks % 2, rt), c(rt)) if t < 9 else mf(acc(t, rt), xf(ks % 2, rt), wf(t), c(rt)) for rt in range(2)])
        if ks < 17:
            nxt = [wreads(ks + 1, t) for t in range(14)]
            nxt[1] = [nxt[1][0], nxt[1][1] + "\n" + xread(ks + 1, 1)]
            kstep(tiles, nxt, [xread(ks + 1, 0)], {0: "s_waitcnt lgkmcnt(14)", 7: "s_waitcnt lgkmcnt(15)", 12: "s_waitcnt lgkmcnt(15)"})
        else:
            kstep(tiles, None, [], {0: "s_waitcnt lgkmcnt(14)", 7: "s_waitcnt lgkmcnt(0)"})
    stamp()
    KP = lambda j: 18 + 10 * j
    QT = lambda rt, h: 88 + 16 * rt + 4 * h
    VP = lambda t, j: 120 + 6 * t + 2 * j if t < 4 else 48 + 2 * j
    ONE = 72
    def pack_kv(rt):
        o = []
        for q in range(2):
            o += [cv(QT(rt, 3) + 2 + q, acc(4, rt) + 2*q), f"v_mov_b32 v{KP(1+rt) + 8 + q}, 0"]
        for tau in range(4):
            o += [cv(KP(1+rt) + 2*tau + q, acc(5+tau, rt) + 2*q) for q in range(2)]
        o += [f"v_permlane32_swap_b32 v{QT(rt,3) + 2 + q}, v{KP(1+rt) + 8 + q}" for q in range(2)]
        for t in range(5):
            o += [cv(VP(t, 1+rt) + q, acc(9+t, rt) + 2*q) for q in range(2)]
        return o
    def pack_q(rt):
        o = []
        for t in range(4):
            for q in range(2):
                d = QT(rt, t) + q
                o.append(cv(d, acc(t, rt) + 2*q))
                if (t, q) in SPLITS:
                    m = SPLITS[(t, q)]; lo = QT(rt, t-1) + 2 + q
                    o += [f"v_cndmask_b32 v{lo}, 0, v{d}, s[{m}:{m+1}]", f"v_xor_b32 v{d}, v{d}, v{lo}"]
        return o + [f"v_mov_b32 v{QT(rt,0) + 3}, 0"]
    weave([], pack_kv(1))
    a(f"s_bitcmp1_b32 s{sWAVE}, 0\ns_cbranch_scc1 L_AC_nodump")
    for j in range(5):
        a(f"ds_write_b64 v{vEXW}, {vr(KP(2) + 2*j, 2)} offset:{512*j}")
        a(f"ds_write_b64 v{vEXW}, {vr(VP(j, 2), 2)} offset:{512*(5+j)}")
    a("L_AC_nodump:")
    weave([], pack_kv(0) + pack_q(1))
    a("s_waitcnt lgkmcnt(0)\ns_barrier")
    for j in range(5):
        a(f"ds_read_b64 {vr(KP(0) + 2*j, 2)}, v{vEXR} offset:{512*j}")
        a(f"ds_read_b64 {vr(VP(j, 0), 2)}, v{vEXR} offset:{512*(5+j)}")
    SC = lambda rt, h: (224 if rt else 184) + 8 * h
    MX = lambda rt: [76 + 4 * rt + h for h in range(4)]
    PT = lambda rt, h: 144 + 16 * rt + 4 * h
    def qk(rt):
        o = []
        for h in range(4):
            o += [mf(SC(rt, h), KP(1+rt) + 2*h, QT(rt, h), MC), mf(SC(rt, h) + 4, KP(rt) + 2*h, QT(rt, h), MP if rt else MPF)]
        return o
    def rowmax(rt):
        o = []
        for h in range(4):
            s = SC(rt, h); m = MX(rt)[h]
            o += [f"v_max_f32 v{s+r}, v{s+r}, v{s+4+r}" for r in range(4)]
            o += [f"v_max3_f32 v{m}, v{s}, v{s+1}, v{s+2}", f"v_max_f32 v{m}, v{m}, v{s+3}"]
        return o
    def xmax(rt):
        m = MX(rt)
        return [f"v_permlane32_swap_b32 v{m[0]}, v{m[1]}", f"v_permlane32_swap_b32 v{m[2]}, v{m[3]}",
                f"v_max_f32 v{m[0]}, v{m[0]}, v{m[1]}", f"v_max_f32 v{m[2]}, v{m[2]}, v{m[3]}",
                f"v_permlane16_swap_b32 v{m[0]}, v{m[2]}", f"v_max_f32 v{m[0]}, v{m[0]}, v{m[2]}",
                f"v_mul_f32 v{m[0]}, s{sT2}, v{m[0]}", f"v_mov_b32 v{m[2]}, v{m[0]}",
                f"v_permlane16_swap_b32 v{m[0]}, v{m[2]}", f"v_mov_b32 v{m[1]}, v{m[0]}", f"v_mov_b32 v{m[3]}, v{m[2]}",
                f"v_permlane32_swap_b32 v{m[0]}, v{m[1]}", f"v_permlane32_swap_b32 v{m[2]}, v{m[3]}"]
    def probs(rt):
        o = []
        for h in range(4):
            s = SC(rt, h); p = PT(rt, h)
            o += [f"v_fma_f32 v{s+r}, v{s+r}, s{sT}, v{MX(rt)[h]}" for r in range(4)]
            o += [f"v_exp_f32 v{s+r}, v{s+r}" for r in range(4)]
            if h:
                o += split(rt, h - 1)
        return o + split(rt, 3)
    def split(rt, h):
        s = SC(rt, h); p = PT(rt, h); o = []
        for q in range(2):
            o += [cv(p + q, s + 2*q), f"v_and_b32 v{p+2+q}, v{p+q}, v{PM+q}", f"v_xor_b32 v{p+q}, v{p+q}, v{p+2+q}"]
        return o
    OB = lambda rt, t: (224 if rt else 184) + 4 * t
    OA = lambda rt, t: (224 if rt else 184) + 12 + 4 * t
    SM = lambda rt, h: 88 + 16 * rt + 4 * h
    OF = lambda rt: 18 + 10 * rt
    def pv(rt):
        o = [mf(SM(rt, h), ONE, PT(rt, h), "0") for h in range(4)]
        for t in range(5):
            if t < 4: o.append(mf(OB(rt, t), VP(t, rt), PT(rt, t), "0"))
            if t > 0: o.append(mf(OA(rt, t), VP(t, rt), PT(rt, t-1), "0"))
        return o
    def finish(rt):
        o = [f"v_rcp_f32 v{SM(rt,h)}, v{SM(rt,h)}" for h in range(4)]
        for t in range(5):
            for q in range(2):
                d = OF(rt) + 2*t + q
                srcs = []
                if t < 4: srcs.append((OB(rt, t) + 2*q, SM(rt, t), d))
                if t == 4: srcs.append((OA(rt, t) + 2*q, SM(rt, 3), d))
                if (t, q) in SPLITS: srcs.append((OA(rt, t) + 2*q, SM(rt, t-1), 17))
                for x, inv, dd in srcs:
                    o += [f"v_mul_f32 v{x}, v{x}, v{inv}", f"v_mul_f32 v{x+1}, v{x+1}, v{inv}", cv(dd, x)]
                if (t, q) in SPLITS:
                    m = SPLITS[(t, q)]
                    o.append(f"v_cndmask_b32 v{d}, v{d}, v17, s[{m}:{m+1}]")
        return o
    a(f"s_mov_b32 s{sT}, {f32(CSC)}\ns_mov_b32 s{sT2}, {f32(-CSC)}")
    weave(qk(1), pack_q(0) + [f"v_mov_b32 v{ONE+j}, 0x3f803f80" for j in range(4)])
    a("s_waitcnt lgkmcnt(0)")
    weave(qk(0), rowmax(1))
    x1, x0 = xmax(1), xmax(0)
    r0 = rowmax(0)
    for i, x in enumerate(x1):
        a(x)
        for y in r0[2*i:2*i+2]: a(y)
    p1 = probs(1)
    for i, x in enumerate(x0):
        a(x)
        for y in p1[2*i:2*i+2]: a(y)
    weave([], p1[2*len(x0):])
    weave(pv(1), probs(0))
    weave(pv(0), finish(1))
    o_store(OF(1), vOF, vOL, 1)
    weave([], finish(0))
    o_store(OF(0), vOF, vOL, 0)
    stamp()
    a("s_branch L_P2")

def phi(r, n, t):
    o = [f"v_pk_fma_f32 {vr(t+j,2)}, {vr(r+j,2)}, s[56:57], v[14:15]" for j in range(0, n, 2)]
    for j in range(n):
        o += [f"v_exp_f32 v{t+j}, v{t+j} clamp", f"v_max_f32 v{r+j}, s{sT2}, v{r+j}"]
    return o + [f"v_pk_add_f32 {vr(r+j,2)}, {vr(r+j,2)}, {vr(t+j,2)}" for j in range(0, n, 2)]

def b_consumer():
    acc = lambda t, rt: 184 + (t * 2 + rt) * 4
    wf = lambda t: 148 + 4 * t
    xf = lambda ks, rt: 52 + ks * 8 + rt * 4 if ks < 12 else 36 + (ks % 2) * 8 + rt * 4
    R8, R2, aX = 1, 5, 6
    vOF, vOL, vEX = 8, 9, 10
    CK, CS = 28, 32
    a("L_BC:\ns_waitcnt lgkmcnt(0)")
    gap_touch("BC", 2)
    srds_rest()
    init_stores("BC", True)
    rd_lanes(R8, R2, 17, 18); x_lane(aX, aX + 1, 17)
    a(f"""
s_lshl_b32 s{sT}, s{sWAVE}, 12
s_add_u32 s{sT}, s{sT}, {B_X0}
v_add_u32 v{aX}, s{sT}, v{aX}
v_add_u32 v{aX+1}, s{sT}, v{aX+1}
v_and_b32 v17, 15, v0
v_cmp_gt_u32 vcc, 8, v17
v_mov_b32 v18, {EPS}
s_mov_b64 s[42:43], vcc
s_mul_i32 s{sT}, s{sWAVE}, 10240
s_add_u32 s{sT}, s{sT}, {B_EX}
v_lshl_add_u32 v{vEX}, v0, 4, s{sT}
v_mov_b32 v14, {f32(-1e-6*LOG2E)}
v_mov_b32 v15, v14
s_mov_b32 s56, {f32(LOG2E)}
s_mov_b32 s57, s56
""")
    for r in range(4):
        a(f"v_mov_b32 v{CK+r}, v18\nv_cndmask_b32 v{CS+r}, 0, v18, vcc")
    o_store_addr(vOF, vOL, 17, False)

    def wreads(ks, t):
        o = (ks % 5) * B_KVSLOT
        if t == 4:
            return [tr(wf(t), R2, o + 8192), tr(wf(t) + 2, R2, o + 8192 + 256)]
        s, j = (0, t) if t < 4 else (1, t - 5)
        return [tr(wf(t), R8 + j, o + 4096*s), tr(wf(t) + 2, R8 + j, o + 4096*s + 1024)]
    xread = lambda ks, rt: f"ds_read_b128 {vr(xf(ks, rt),4)}, v{aX + ks % 2} offset:{(ks//2 % 3)*B_XSLOT + rt*2048}"

    stamp()
    a("s_barrier")
    stamp()
    a(xread(0, 0)); a(xread(0, 1))
    for t in range(9):
        for x in wreads(0, t): a(x)
    for ks in range(18):
        if ks < 17:
            a("s_barrier")
        if ks == 3:
            init_flags("BC")
        tiles = [[mf(acc(t, rt), xf(ks, rt), wf(t), acc(t, rt) if ks else (CK if t < 4 else CS if t == 4 else "0")) for rt in range(2)] for t in range(9)]
        if ks < 17:
            nxt = [wreads(ks + 1, t) for t in range(9)]
            nxt[1] = [nxt[1][0], nxt[1][1] + "\n" + xread(ks + 1, 1)]
            kstep(tiles, nxt, [xread(ks + 1, 0)], {0: "s_waitcnt lgkmcnt(12)", 3: "s_waitcnt lgkmcnt(13)", 6: "s_waitcnt lgkmcnt(13)", 8: "s_waitcnt lgkmcnt(11)"})
        else:
            kstep(tiles, None, [], {0: "s_waitcnt lgkmcnt(12)", 3: "s_waitcnt lgkmcnt(0)\ns_barrier"})
    stamp()
    a(f"s_mov_b32 s{sT2}, {EPS}\nv_mov_b32 v16, 0x3f803f80")
    wr = lambda reg, slot: f"ds_write_b128 v{vEX}, {vr(reg,4)} offset:{1024*slot}"
    pk = lambda d, s: [cv(d + j, s + 2*j) for j in range(4)]
    weave([], pk(156, acc(4, 0)) + [f"v_cndmask_b32 v{156+j}, v{156+j}, v16, s[42:43]" for j in range(4)] + [wr(156, 9)])
    xq = lambda ks, rt: 168 + (ks - 12) * 8 + rt * 4 if ks in (12, 13) else acc(2 * (ks - 14) + rt, 1) if ks in (14, 15) else xf(ks, rt)
    reread = lambda ks, rt: f"ds_read_b128 {vr(xq(ks, rt),4)}, v{aX + ks % 2} offset:{(ks//2 % 3)*B_XSLOT + rt*2048}"
    weave([], [reread(ks, rt) for ks in (12, 13) for rt in range(2)])
    for tau in range(5):
        o = phi(acc(tau, 0), 8, 148)
        if tau < 4:
            o = pk(acc(5+tau, 0), acc(5+tau, 0)) + o[:8] + [wr(acc(5+tau, 0), 5 + tau)] + o[8:]
        weave([], o + pk(acc(tau, 0), acc(tau, 0)) + [wr(acc(tau, 0), tau)])
        if tau < 4:
            a(reread(14 + tau // 2, tau % 2))
    for j in range(5):
        a(f"v_add_u32 v{R8+j}, {B_WQ0}, v{R8+j}")
    a("s_waitcnt lgkmcnt(0)\ns_barrier")
    stamp()
    QA = lambda t, rt: 216 + (t * 2 + rt) * 4
    qf = lambda t: 148 + 4 * t
    qbase = lambda p: B_WQ0 if p < 4 else 0 if p < 7 else 15360
    def qreads(p, t):
        o = wq_slot(p) - qbase(p)
        if t == 4:
            return [tr(qf(t), R2, o + 4096), tr(qf(t) + 2, R2, o + 4096 + 256)]
        return [tr(qf(t), R8 + t, o), tr(qf(t) + 2, R8 + t, o + 1024)]
    for t in range(5):
        for x in qreads(0, t): a(x)
    for p in range(18):
        ks = QORD[p]
        if p == 7 or (p == 13 and OPT.get('wob', 0)):
            a("s_barrier")
        tiles = [[mf(QA(t, rt), qf(t), xq(ks, rt), QA(t, rt) if p else CK) for rt in range(2)] for t in range(5)]
        if p < 17:
            nxt = [qreads(p + 1, t) for t in range(5)]
            if qbase(p + 1) != qbase(p):
                d = (qbase(p + 1) - qbase(p)) & 0xffffffff
                for t in range(5):
                    nxt[t][0] = f"v_add_u32 v{R8+t}, {d}, v{R8+t}\n" + nxt[t][0]
            kstep(tiles, nxt, [], {t: f"s_waitcnt lgkmcnt({7 if t else 8})" for t in range(5)})
        else:
            kstep(tiles, None, [], {t: f"s_waitcnt lgkmcnt({8 - 2*t})" for t in range(5)})
    stamp()
    PQ = lambda rt: 36 + 10 * rt
    KO = 84
    tup = {0: KO, 1: KO + 4, 2: KO + 12, 3: KO + 20, 4: KO + 28}
    ZO = KO + 32
    weave([], [f"v_mov_b32 v{r}, 0" for r in (tup[1]+4, tup[1]+5, tup[2]+4, tup[2]+5, tup[3]+4, tup[3]+5, ZO+8, ZO+9)])
    a(f"v_lshlrev_b32 v16, 3, v0\nv_add_u32 v16, {B_KVOP}, v16")
    for t in range(5):
        weave([], phi(QA(t, 0), 8, 148) + [cv(PQ(rt) + 2*t + q, QA(t, rt) + 2*q) for rt in range(2) for q in range(2)])
    stamp()
    a("s_barrier")
    stamp()
    tid = lambda tau, taup: {-1: tau - 1, 0: 4 + tau, 1: 9 + tau}[taup - tau]
    rd = lambda d, slot: a(f"ds_read_b64 {vr(d,2)}, v16 offset:{512*slot}")
    for j, d in enumerate((ZO, ZO + 2, ZO + 4, ZO + 6, ZO + 10)):
        rd(d, 13 + j)
    rd(tup[0], tid(0, 0)); rd(tup[0] + 2, tid(1, 0))
    for t in (1, 2, 3):
        rd(tup[t], tid(t-1, t)); rd(tup[t] + 2, tid(t, t)); rd(tup[t] + 6, tid(t+1, t))
    rd(tup[4], tid(3, 4)); rd(tup[4] + 2, tid(4, 4))
    DN = lambda rt: 148 + 4 * rt
    NM = lambda rt, t: 184 + 20 * rt + 4 * t
    OF = lambda rt: 156 + 10 * rt
    a("s_waitcnt lgkmcnt(13)")
    for k, (zo, po) in enumerate(((0, 0), (4, 4), (8, 6))):
        for rt in range(2):
            a(mf(DN(rt), ZO + zo, PQ(rt) + po, DN(rt) if k else CK))
    a("s_waitcnt lgkmcnt(0)")
    def num(rt):
        o = [mf(NM(rt, t), tup[t], PQ(rt) + 2*(t-1), "0") for t in (1, 2, 3)]
        o += [mf(NM(rt, 0), tup[0], PQ(rt), "0"), mf(NM(rt, 4), tup[4], PQ(rt) + 6, "0")]
        return o + [mf(NM(rt, t), tup[t] + 4, PQ(rt) + 2*t, NM(rt, t)) for t in (1, 2, 3)]
    def fin(rt, packed):
        o = []
        for t in (0, 4, 1, 2, 3):
            for q in range(2):
                inv = DN(rt) + min(t, 3)
                if (t, q) in SPLITS:
                    m = SPLITS[(t, q)]
                    o.append(f"v_cndmask_b32 v17, v{DN(rt)+t}, v{DN(rt)+t-1}, s[{m}:{m+1}]")
                    inv = 17
                n = NM(rt, t) + 2*q
                o += [f"v_mul_f32 v{n}, v{n}, v{inv}", f"v_mul_f32 v{n+1}, v{n+1}, v{inv}", cv(OF(rt) + 2*t + q, n)]
        return o
    weave(num(0), [], 0)
    weave(num(1), [f"v_rcp_f32 v{DN(rt)+h}, v{DN(rt)+h}" for rt in range(2) for h in range(4)], 1)
    for rt in range(2):
        weave([], fin(rt, True))
        o_store(OF(rt), vOF, vOL, rt)
    stamp()

def kv_index(wreg, VS, VG, VZ):
    a(f"s_cmp_eq_u32 s{wreg}, 0\ns_cselect_b32 s58, 4, s{wreg}")
    for slot in range(3):
        if slot == 0:
            a(f"s_lshl_b32 s{sT}, s58, 4\ns_sub_u32 s{sT2}, s{sT}, 16\ns_mov_b64 s[46:47], 0")
        elif slot == 1:
            a(f"s_lshl_b32 s{sT}, s{wreg}, 4\ns_mov_b32 s{sT2}, s{sT}")
        else:
            a(f"s_add_u32 s{sT2}, s{sT}, 16\ns_cmp_eq_u32 s{wreg}, 3\ns_cselect_b32 s{sT2}, 56, s{sT2}\ns_cselect_b64 s[46:47], s[44:45], 0")
        kv_tile(VS and VS + 2*slot, VG and VG + 2*slot, False)
    if VZ:
        kv_z(VZ)

def kv_tile(VS, VG, last):
    a(f"v_add_u32 v3, s{sT2}, v1")
    head_of(4, 3)
    a(f"v_mul_u32_u24 v5, 18, v4\nv_sub_u32 v3, v3, v5\nv_cndmask_b32 v4, v4, 7, s[46:47]")
    if last:
        a("v_cmp_eq_u32 vcc, 0, v1\nv_cndmask_b32 v4, v4, 3, vcc\nv_cndmask_b32 v3, v3, 18, vcc")
    for q in range(2):
        a(f"v_add3_u32 v5, v2, s{sT}, {2*q}")
        head_of(6, 5)
        a("v_cmp_eq_u32 vcc, v4, v6\nv_mad_u32_u24 v5, v5, 19, v3\nv_lshlrev_b32 v5, 2, v5")
        if VS:
            a(f"v_add_u32 v6, {B_STG}, v5\nv_cndmask_b32 v{VS+q}, v8, v6, vcc")
        if VG:
            a(f"v_add_u32 v6, s{sM}, v5\nv_cndmask_b32 v{VG+q}, v9, v6, vcc")

def kv_z(VZ):
    a("v_and_b32 v3, 3, v0")
    for q in range(2):
        a(f"v_add3_u32 v5, v2, s{sT}, {2*q}")
        head_of(6, 5)
        a(f"v_cmp_eq_u32 vcc, v3, v6\nv_mul_u32_u24 v5, 76, v5\nv_add3_u32 v5, v5, s{sM}, 64\nv_add_u32 v5, 8, v5\nv_cndmask_b32 v{VZ+q}, v9, v5, vcc")

def b_loader(kind):
    a(f"L_B{kind}1:")
    m = M0(42)
    issue = (lambda c: w_issue("B", c, m)) if kind == "W" else (lambda c: x_issue("B", c, m))
    pre = 1 if OPT.get("early") and kind == "W" else 2
    cnt = {c: issue(c) for c in range(1, pre + 1)}
    stamp()
    mark = len(a.lines)
    VS, VG, vZS, vEA, vE0, vEL, vLA, vGA, vLW = 72, 80, 98, 99, 100, 101, 102, 103, 105
    if kind == "W":
        a(f"v_subrev_u32 v{VD+5}, 1152, v{VD}\nv_subrev_u32 v{VD+6}, 1152, v{VD+1}")
    srds_rest()
    if kind == "W":
        wo_setup(False)
    else:
        sync_setup()
    a(f"""
s_add_u32 s55, s{sV}, 2
s_mul_i32 s{sM}, s{sHG}, {KV_ST}
s_add_u32 s{sM}, s{sM}, {WS_KV}
v_and_b32 v1, 15, v0
v_lshrrev_b32 v2, 4, v0
v_lshlrev_b32 v2, 2, v2
v_cmp_gt_u32 s[44:45], 8, v1
v_lshlrev_b32 v8, 2, v0
v_add_u32 v8, {B_DUMP}, v8
v_mov_b32 v9, {OOB}
""")
    own = sV if kind == "X" else 55
    if kind == "X":
        kv_index(55, None, VG, VG + 6)
        a(f"s_movk_i32 s{sT}, 64")
        kv_z(10)
    kv_index(own, VS, VG + 8 if kind == "X" else None, VG + 14 if kind == "X" else None)
    a(f"""
v_add_u32 v5, s{sT}, v0
v_mul_u32_u24 v5, 76, v5
v_add_u32 v5, {B_STG + 72}, v5
v_cndmask_b32 v{vZS}, v8, v5, s[{sG0}:{sG0+1}]
v_lshlrev_b32 v{vEL}, 4, v0
v_add_u32 v{vEL}, {B_EX}, v{vEL}
s_lshl_b32 s{sT}, s{own}, 10
v_add_u32 v{vEA}, s{sT}, v{vEL}
s_lshl_b32 s{sT}, s58, 10
v_add_u32 v{vE0}, s{sT}, v{vEL}
""")
    if kind == "X":
        a(f"s_movk_i32 s{sT}, 64\ns_movk_i32 s{sT2}, 56\ns_mov_b64 s[46:47], s[44:45]")
        kv_tile(VS + 6, VG + 16, True)
        a(f"s_cmp_eq_u32 s{sV}, 0\ns_cselect_b64 s[46:47], -1, 0")
        for q in range(2):
            a(f"v_cndmask_b32 v{VS+6+q}, v8, v{VS+6+q}, s[46:47]\nv_cndmask_b32 v{VG+16+q}, v{10+q}, v{VG+16+q}, s[46:47]")
        a(f"""
v_lshlrev_b32 v5, 3, v0
v_add_u32 v5, {B_KVOP}, v5
s_lshl_b32 s{sT2}, s58, 9
s_sub_u32 s{sT2}, s{sT2}, 512
v_add_u32 v{vLW+2}, s{sT2}, v5
s_lshl_b32 s{sT2}, s{sV}, 9
v_add_u32 v{vLW+1}, s{sT2}, v5
v_add_u32 v{vLW}, 1024, v{vLW+1}
s_mul_i32 s{sT2}, s{sV}, {9*512}
v_add_u32 v{vLW+3}, s{sT2}, v5
s_mul_i32 s{sT}, s{sV}, 2816
v_lshl_add_u32 v{vLA}, v0, 2, s{sT}
v_add_u32 v{vGA}, s{sM}, v{vLA}
v_cmp_gt_u32 vcc, {5472 - 2560}, v{vLA}
v_cndmask_b32 v{vGA+1}, v9, v{vGA}, vcc
v_add_u32 v{vLA}, {B_STG}, v{vLA}
v_mov_b32 v4, 0
""")
    a(f"v_mov_b32 v10, {B_LCNT}\nv_mov_b32 v11, 1")
    if kind == "X":
        a("ds_write_b32 v10, v4\ns_waitcnt lgkmcnt(0)")
    setup = a.lines[mark:]
    del a.lines[mark:]
    per = -(-len(setup) // 9)
    a(f"s_waitcnt vmcnt({sum(cnt.values())})\ns_barrier")
    stamp()
    extra = 0
    for i in range(-1, 16):
        if i == -1 and pre == 1:
            cnt[2] = issue(2)
        if i + 4 <= 17:
            cnt[i+4] = issue(i + 4)
        if 0 <= i < 9:
            a("s_cmp_eq_u32 s59, 1")
            a.lines += setup[per*i:per*(i+1)]
            a("s_cselect_b32 s59, 1, 0")
        if i == 10 and kind == "X":
            flag_load(sFO, 98); flag_load(sFK, 99)
        if kind == "W" and i >= 14:
            extra += wq_issue(2*(i-14), m) + wq_issue(2*(i-14) + 1, m)
        left = sum(cnt.get(c, 0) for c in range(i + 3, min(i + 4, 17) + 1)) + extra
        a(f"s_waitcnt vmcnt({left})\ns_barrier")
    a("s_barrier")
    if kind == "W":
        for p in (4, 5, 6, 7, 13, 14, 15, 16, 17):
            wq_issue(p, m)
        a("s_waitcnt vmcnt(15)")
    else:
        flag_check(sFK, 99, "L_BX_fk")
    stamp()
    a("s_barrier")
    stamp()
    if kind == "W":
        for p in range(8, 13):
            wq_issue(p, m)
    KT = lambda s: 40 + 4 * s
    RD = lambda src, j: 112 + 28 * src + 4 * j
    srcs = ((vEA, 0), (vE0, 0), (vE0, 4096), (vEA, 5120), (vEA, 6144), (vEL, 9216), (vEL, 4096))
    prods = ((1, 2), (0, 3), (0, 4), (6, 5), (5, 0))
    if kind == "W":
        srcs = ((vEA, 0), None, (vE0, 4096), (vEA, 5120), (vEA, 6144), (vEL, 9216))
        prods = ((0, 2), (0, 3), (0, 4), None, (5, 0))
    nr = sum(x is not None for x in srcs)
    for src in range(4):
        for j, x in enumerate(srcs):
            if x: a(f"ds_read_b128 {vr(RD(src, j),4)}, v{x[0]} offset:{src*10240 + x[1]}")
    for src in range(4):
        a(f"s_waitcnt lgkmcnt({min(15, nr*(3-src))})")
        for s_, x in enumerate(prods):
            if x: a(mf(KT(s_), RD(src, x[0]), RD(src, x[1]), KT(s_) if src else "0"))
    for s_ in range(4 if kind == "X" else 3):
        for r in range(4):
            a(f"ds_write_b32 v{VS + 2*s_ + r//2}, v{KT(s_)+r} offset:{76*(r%2)}")
    a(f"ds_write_b32 v{vZS}, v{KT(4)}")
    a("s_waitcnt lgkmcnt(0)\ns_mov_b64 exec, 1\nds_add_u32 v10, v11\ns_mov_b64 exec, -1")
    stamp()
    b1, b2, b3 = {0: ((0, 1, 2, 3, 4, 5), (), (6, 7, 8)), 1: ((0, 1, 2), (3, 4, 5, 6, 7, 8), ()), 2: ((0, 1, 2), (3, 4, 5), (6, 7, 8))}[OPT.get("wob", 0)]
    if kind == "W":
        a("s_waitcnt vmcnt(0)\ns_barrier")
        for g in b1: wo_pair(g)
        if b2:
            a("s_barrier")
            for g in b2: wo_pair(g)
        stamp()
        a("s_barrier")
        loader_tail("BW", b3)
        return
    a(f"""
s_mov_b32 s{sT3}, 0x400000
L_BX_st:
ds_read_b32 v2, v10
s_waitcnt lgkmcnt(0)
v_readfirstlane_b32 s{sT}, v2
s_sub_u32 s{sT3}, s{sT3}, 1
s_cbranch_scc1 L_BX_st_x
s_cmp_ge_u32 s{sT}, 4
s_cbranch_scc0 L_BX_st
L_BX_st_x:
""")
    for n in range(11):
        a(f"ds_read_b32 v{40+n}, v{vLA} offset:{256*n}")
    for n in range(11):
        a(f"s_waitcnt lgkmcnt({10-n})")
        a(f"buffer_atomic_add_f32 v{40+n}, v{vGA + (n == 10)}, s[{SWS}:{SWS+3}], 0 offen offset:{256*n}")
    stamp()
    a("s_barrier")
    if b2:
        a("s_barrier")
    a("s_waitcnt vmcnt(0)")
    stamp()
    arrive_wait(sKC, 32, "L_BX_kc")
    stamp()
    for s_ in range(9):
        for r in range(4):
            a(f"buffer_load_dword v{112+4*s_+r}, v{VG + 2*s_ + r//2}, s[{SWS}:{SWS+3}], 0 offen offset:{76*(r%2)} sc1")
    dst = ((vLW, -1), (vLW, 4), (vLW, 9), (vLW, 13), (vLW + 2, 0), (vLW + 1, 4), (vLW + 1, 9), (vLW + 1, 13), (vLW + 3, 8))
    a(f"v_subrev_u32 v11, 512, v{vLW}")
    for s_, (ad, off) in enumerate(dst):
        a(f"s_waitcnt vmcnt({4*(8-s_)})")
        a(cv(40 + 2*s_, 112 + 4*s_)); a(cv(41 + 2*s_, 114 + 4*s_))
        a(f"ds_write_b64 v{11 if off < 0 else ad}, {vr(40+2*s_,2)} offset:{512*max(off, 0)}")
    a("s_waitcnt lgkmcnt(0)")
    stamp()
    a("s_barrier")
    loader_tail("BX")

def p2_consumer():
    OFR = lambda ks, rt: 112 + ks * 8 + rt * 4
    ACC = lambda t, rt: 72 + (t * 2 + rt) * 4
    wf = lambda t: 52 + 4 * t
    R8, R2, vO, vTW, vTR, VS = 1, 5, 6, 7, 8, 9
    AH = OPT["ahead"]
    a("L_P2:")
    nstamp[0] = 10
    rd_lanes(R8, R2, 17, 18)
    for j in range(5):
        a(f"v_add_u32 v{R8+j}, {R1}, v{R8+j}")
    a(f"""
v_lshl_add_u32 v{vO}, v0, 4, s58
s_mul_i32 s{sT}, s{sWAVE}, 4608
s_add_u32 s{sT}, s{sT}, {P_TR}
v_and_b32 v17, 15, v0
v_mul_u32_u24 v17, 144, v17
v_lshrrev_b32 v18, 4, v0
v_lshl_add_u32 v17, v18, 3, v17
v_add_u32 v{vTW}, s{sT}, v17
v_lshl_add_u32 v{vTR}, v0, 4, s{sT}
s_lshr_b32 s{sT}, s{sWAVE}, 1
s_and_b32 s{sT2}, s{sWAVE}, 1
s_lshl_b32 s{sT2}, s{sT2}, 5
s_lshl_b32 s{sT3}, s{sWAVE}, 5
s_cmp_eq_u32 s{sBR}, 0
s_cselect_b32 s42, s{sT}, 0
s_cselect_b32 s43, s{sT2}, s{sT3}
s_cselect_b32 s55, 1, 0
s_lshl_b32 s56, s42, 3
s_lshl_b32 s{sT}, s{sRB}, 7
s_add_u32 s42, s42, s{sT}
s_mul_i32 s{sT}, s{sBR}, 1152
s_mul_i32 s{sT2}, s{sHG}, 144
s_add_u32 s57, s{sT}, s{sT2}
""")
    for n in range(5):
        a(f"""
v_add_u32 v17, {64*n}, v0
v_mul_u32_u24 v18, 7282, v17
v_lshrrev_b32 v18, 16, v18
v_mul_u32_u24 v19, 9, v18
v_sub_u32 v19, v17, v19
v_add_u32 v18, s43, v18
v_xor_b32 v18, s56, v18
v_lshlrev_b32 v18, s55, v18
v_add_u32 v18, s42, v18
v_mul_u32_u24 v18, 2304, v18
v_lshl_add_u32 v18, v19, 4, v18
v_add_u32 v{VS+n}, s57, v18
""")
    a(f"v_mov_b32 v17, {OOB}\nv_cndmask_b32 v{VS+4}, v17, v{VS+4}, s[{sG01}:{sG01+1}]")
    a(f"v_add_u32 v14, 18432, v{vO}")
    SO = [8, 9, 10, 11, 12, 13, 14, 15, 36]
    rho(37)
    a(f"s_movk_i32 s{SO[0]}, 16384")
    for j in range(1, 9):
        a(f"s_add_u32 s{sT}, s37, {2*j-2}\ns_and_b32 s{sT}, s{sT}, 15\ns_lshl_b32 s{SO[j]}, s{sT}, 10")
    a("s_waitcnt vmcnt(0)")
    stamp()
    a("s_barrier\ns_barrier")
    stamp()
    def oload(ks, rt):
        return f"buffer_load_dwordx4 {vr(OFR(ks, rt),4)}, v{14 if rt else vO}, s[{SWS}:{SWS+3}], s{SO[ks//2]} offen offset:{1024*(ks%2)} sc1"
    base = lambda ks: R1 if ks < 3 else 0 if 9 <= ks < 12 else R2_
    R2_ = 43008
    def wreads(ks, t):
        o = WO[ks] - base(ks)
        if t == 4:
            return [tr(wf(t), R2, o + 4096), tr(wf(t) + 2, R2, o + 4096 + 256)]
        return [tr(wf(t), R8 + t, o), tr(wf(t) + 2, R8 + t, o + 1024)]
    for ks in range(AH):
        a(oload(ks, 0)); a(oload(ks, 1))
    for t in range(5):
        for x in wreads(0, t): a(x)
    for ks in range(18):
        tiles = [[mf(ACC(t, rt), wf(t), OFR(ks, rt), ACC(t, rt) if ks else "0") for rt in range(2)] for t in range(5)]
        w0 = f"s_waitcnt vmcnt({2*min(AH - 1, 17 - ks)}) lgkmcnt(8)"
        if ks < 17:
            nxt = [wreads(ks + 1, t) for t in range(5)]
            if base(ks + 1) != base(ks):
                d = (base(ks + 1) - base(ks)) & 0xffffffff
                for t in range(5):
                    nxt[t][0] = f"v_add_u32 v{R8+t}, {d}, v{R8+t}\n" + nxt[t][0]
            first = []
            if ks + AH < 18:
                first = [oload(ks + AH, 0)]
                nxt[1][1] += "\n" + oload(ks + AH, 1)
            kstep(tiles, nxt, first, {t: "s_waitcnt lgkmcnt(7)" if t else w0 for t in range(5)})
        else:
            kstep(tiles, None, [], {t: f"s_waitcnt lgkmcnt({8 - 2*t})" if t else w0 for t in range(5)})
        if ks == 0:
            stamp()
    stamp()
    for rt in range(2):
        for t in range(5):
            d = 20 + 2*(rt*5 + t)
            a(cv(d, ACC(t, rt))); a(cv(d + 1, ACC(t, rt) + 2))
            if t == 4:
                a(f"s_mov_b64 exec, s[{sG01}:{sG01+1}]")
            a(f"ds_write_b64 v{vTW}, {vr(d,2)} offset:{rt*2304 + 32*t}")
            if t == 4:
                a("s_mov_b64 exec, -1")
    a("s_waitcnt lgkmcnt(0)")
    for n in range(5):
        a(f"ds_read_b128 {vr(112+4*n,4)}, v{vTR} offset:{1024*n}")
    for n in range(5):
        a(f"s_waitcnt lgkmcnt({4-n})")
        a(f"buffer_store_dwordx4 {vr(112+4*n,4)}, v{VS+n}, s[{SOUT}:{SOUT+3}], 0 offen")
    stamp()
    stamps_out(0)
    a("s_endpgm")

HEADER = open("concat_heads__sliding_local_dilated__linear_attn_block__prompt.s.ref").read().split("; Override")[0]
out = HEADER + "; @launch grid=(256,1,1) block=(512,1,1) lds=163840\n"
a('.amdgcn_target "amdgcn-amd-amdhsa--gfx950"\n.text')
a(kernel_head(KN))
if OPT["stamps"]:
    for i in range(16):
        a(f"s_mov_b32 s{sST+2*i}, 0")
stamp()
a(f"""
s_cmp_ge_u32 s2, 256
s_cbranch_scc1 L_end
s_and_b32 s{sT}, s2, 7
s_lshr_b32 s{sBR}, s{sT}, 2
{'s_xor_b32 s6, s6, 1' if OPT.get('swap') else ''}
s_mul_i32 s{sT2}, s{sBR}, 24
s_add_u32 s0, s0, s{sT2}
s_addc_u32 s1, s1, 0
s_load_dwordx4 s[36:39], s[0:1], 0
s_load_dwordx2 s[40:41], s[0:1], 16
s_sub_u32 s0, s0, s{sT2}
s_subb_u32 s1, s1, 0
s_load_dwordx4 s[44:47], s[0:1], 48
s_load_dwordx2 s[48:49], s[0:1], 64
v_lshrrev_b32 v1, 6, v0
v_and_b32 v0, 63, v0
v_readfirstlane_b32 s{sWAVE}, v1
s_lshr_b32 s{sT2}, s2, 3
""")
m84 = f"""
s_and_b32 s{sHG}, s{sT2}, 3
s_and_b32 s{sT3}, s{sT}, 1
s_lshl_b32 s{sT3}, s{sT3}, 2
s_add_u32 s{sHG}, s{sHG}, s{sT3}
s_lshr_b32 s{sRB}, s{sT2}, 2
s_and_b32 s{sT3}, s{sT}, 2
s_lshl_b32 s{sT3}, s{sT3}, 2
s_add_u32 s{sRB}, s{sRB}, s{sT3}
"""
m48 = f"""
s_and_b32 s{sHG}, s{sT2}, 7
s_lshr_b32 s{sRB}, s{sT2}, 3
s_and_b32 s{sT3}, s{sT}, 3
s_lshl_b32 s{sT3}, s{sT3}, 2
s_add_u32 s{sRB}, s{sRB}, s{sT3}
"""
if OPT["mapping"] == 84:
    a(m84)
elif OPT["mapping"] == 48:
    a(m48)
else:
    a(m48 + f"s_cmp_eq_u32 s{sBR}, {0 if OPT['mapping'] == 8448 else 1}\ns_cbranch_scc0 L_map" + m84 + "L_map:")
rot = ""
if OPT.get("rot") == 2:
    rot = f"""s_lshr_b32 s90, s2, 1
s_xor_b32 s90, s90, s2
s_and_b32 s90, s90, 1
s_mul_i32 s91, s90, {OPT.get("rotby", 5)*128}
s_mul_i32 s90, s90, {OPT.get("rotby", 5)*64*3456}"""
elif OPT.get("rot") == 3:
    rot = f"""s_lshr_b32 s90, s2, 1
s_xor_b32 s90, s90, s2
s_and_b32 s90, s90, 1
s_mul_i32 s90, s90, 5
s_add_u32 s91, s{sRB}, s{sHG}
s_and_b32 s91, s91, 3
s_add_u32 s90, s90, s91
s_lshl_b32 s91, s90, 7
s_mul_i32 s90, s90, {64*3456}"""
elif OPT.get("rot") == 7:
    rot = f"""s_and_b32 s90, s{sHG}, 3
s_and_b32 s91, s{sRB}, 7
s_lshl1_add_u32 s90, s90, s91
s_cmp_ge_u32 s90, 9
s_cselect_b32 s91, 9, 0
s_sub_u32 s90, s90, s91
s_lshl_b32 s91, s90, 7
s_mul_i32 s90, s90, {64*3456}"""
elif OPT.get("rot") in (4, 5, 6):
    tab = {4: 0x75207520, 5: 0x63006300, 6: 0x86427531}[OPT["rot"]]
    rot = f"""s_add_u32 s90, s{sRB}, s{sHG}
s_and_b32 s90, s90, 7
s_lshl_b32 s90, s90, 2
s_lshr_b32 s90, {hex(OPT.get("tab", tab))}, s90
s_and_b32 s90, s90, 15
s_lshl_b32 s91, s90, 7
s_mul_i32 s90, s90, {64*3456}"""
elif OPT.get("rot"):
    few, many = (sRB, sHG) if OPT["mapping"] == 48 else (sHG, sRB)
    rot = f"""s_and_b32 s90, s{few}, 3
s_lshl_b32 s90, s90, 2
s_lshr_b32 s90, 0x7520, s90
s_and_b32 s90, s90, 15
s_and_b32 s91, s{many}, 7
s_add_u32 s90, s90, s91
s_cmp_ge_u32 s90, 9
s_cselect_b32 s91, 9, 0
s_sub_u32 s90, s90, s91
s_lshl_b32 s91, s90, 7
s_mul_i32 s90, s90, {64*3456}"""
a(f"""
s_mov_b32 s{sG0}, 0xffff
s_mov_b32 s{sG0+1}, 0
s_mov_b32 s{sG01}, -1
s_mov_b32 s{sG01+1}, 0
s_and_b32 s{sV}, s{sWAVE}, 1
s_mul_i32 s{sM}, s{sHG}, 144
s_cmp_lt_u32 s{sWAVE}, 4
s_cbranch_scc1 L_cons
s_setprio {OPT.get("prio", 2)}
s_mov_b32 s59, 0
{rot}
s_cmp_lt_u32 s{sWAVE}, 6
s_cbranch_scc1 L_wld
s_cmp_eq_u32 s{sBR}, 0
s_cbranch_scc1 L_AX0
s_branch L_BX0
L_wld:
s_cmp_eq_u32 s{sBR}, 0
s_cbranch_scc1 L_AW0
s_branch L_BW0
L_cons:
s_getpc_b64 s[42:43]
L_pc:
s_lshl_b32 s{sT}, s{sT2}, 2
s_add_u32 s{sT}, s{sT}, s{sWAVE}
s_lshl_b32 s{sT}, s{sT}, 9
v_and_b32 v1, 3, v0
v_lshlrev_b32 v1, 7, v1
v_add_u32 v1, s{sT}, v1
v_min_u32 v1, {'L_last2' if OPT.get('ifetch') == 1 else 'L_last'}-L_pc, v1
{'global_load_dword v27, v1, s[42:43]' if not OPT.get('nopf') else ''}
s_cmp_eq_u32 s{sBR}, 0
s_cbranch_scc1 L_AC
s_branch L_BC
L_end:
s_endpgm
""")
w_head("A"); w_head("B"); x_head("A"); x_head("B")
n0 = nstamp[0]
for fn in (lambda: a_loader("W"), lambda: a_loader("X"), a_consumer, lambda: b_loader("W"), lambda: b_loader("X"), b_consumer, p2_consumer):
    nstamp[0] = n0
    fn()
a("s_endpgm" if OPT.get("ifetch", 0) > 1 else "L_last2:\ns_endpgm" if OPT.get("ifetch") else "L_last:\ns_endpgm")
lines = []
for l in a.lines: lines += l.split("\n")
if OPT.get("noread"):
    lines = [l for l in lines if not l.startswith("ds_read_b64_tr")]
if OPT.get("nomfma"):
    lines = [l for l in lines if not l.startswith("v_mfma")]
lines, added = hz.fix(lines)
out += "\n".join(lines) + "\n"
out += '.section .rodata,"a"\n.p2align 6\n' + kernel_desc(KN, 256, 102 if OPT.get('cyc') else 100, 256)
sys.stdout.write(out)
sys.stderr.write(f"nop states added: {added}\n")
```

```python
import sys, struct
from asmlib import *
import hz

OPT = dict(stamps=0, mapping=48, ahead=6, rot=4, nt=1)
for arg in sys.argv[1:]:
    k, v = arg.split("=")
    OPT[k] = int(v)
KN = "concat_heads__sliding_local_dilated__linear_attn_block__prompt_kernel"

def f32(x):
    return "0x%08x" % struct.unpack("<I", struct.pack("<f", x))[0]

LOG2E = 1.4426950408889634
CSC = 18 ** -0.5 * LOG2E
NEG = "0xf149f2ca"
EPS = f32(1e-6)
OOB = "0x80000000"

O_BR = 0x240000
WS_KV = 0x500000
KV_ST = 0x2000
WS_CNT = 0x540000
WS_STAMP = 0x600000
WS_SIZE = 0x700000

sWAVE, sHG, sRB, sBR, sT = 3, 4, 5, 6, 7
SX, SW, SWS, SDBG, SWO, SOUT = 8, 12, 16, 20, 24, 28
sG0, sG01 = 32, 34
sK, sV, sM, sT2, sT3 = 50, 51, 52, 53, 54
sST = 60

a = Asm()
nstamp = [0]

def stamp():
    if OPT["stamps"]:
        i = nstamp[0]; nstamp[0] += 1
        assert i < 15
        a(f"{'s_memrealtime' if OPT.get('rt') or OPT.get('probe') and not (OPT.get('cyc') and i) else 's_memtime'} s[{sST+2*i}:{sST+2*i+1}]")
        if OPT.get("cyc") and i == 0:
            a("s_memtime s[100:101]")

def stamps_out(last=-1):
    if not OPT["stamps"]:
        return
    if OPT.get("probe"):
        if last == OPT.get("pwave", 0):
            j = sST + 2 * OPT["probe"]
            if OPT.get("ifetch"):
                mode = OPT["ifetch"]
                a(f"""
s_waitcnt vmcnt(0) lgkmcnt(0)
s_cmp_eq_u32 s2, {OPT.get('wg', 0)}
s_cbranch_scc0 L_probe_x
s_cmp_eq_u32 s{sWAVE}, 0
s_cbranch_scc0 L_probe_x
s_sleep 127
s_sleep 127
s_getpc_b64 s[44:45]
L_if_pc:
s_add_u32 s44, s44, L_if_blk-L_if_pc
s_addc_u32 s45, s45, 0
v_lshlrev_b32 v1, 7, v0
v_min_u32 v1, 4096, v1
""")
                if mode == 2:
                    a("global_load_dword v2, v1, s[44:45]\ns_waitcnt vmcnt(0)")
                a(f"""
s_memtime s[100:101]
s_waitcnt lgkmcnt(0)
s_branch L_if_blk
L_last:
.fill {(0 if mode == 1 else 8192)}, 4, 0xbf800000
L_if_blk:
.rept 512
v_add3_u32 v5, v0, v0, v0
.endr
s_memtime s[{j}:{j+1}]
s_waitcnt lgkmcnt(0)
s_sub_u32 s{j}, s{j}, s100
s_lshl_b32 s{j}, s{j}, 3
s_add_u32 s{j}, s{j}, s100
""")
            if OPT.get("vrate"):
                isw = OPT["vrate"] == 1
                a(f"""
s_waitcnt vmcnt(0) lgkmcnt(0)
s_load_dwordx2 s[44:45], s[0:1], {8 if isw else 0}
s_sleep 127
s_sleep 127
s_waitcnt lgkmcnt(0)
s_mov_b32 s46, {1990656 if isw else 2359296}
s_mov_b32 s47, 0x20000
v_lshrrev_b32 v1, 3, v0
v_mul_u32_u24 v1, {3456 if isw else 2304}, v1
v_and_b32 v2, 7, v0
v_lshl_add_u32 v1, v2, 4, v1
s_mov_b32 m0, 0
""")
                for rep in range(2):
                    if rep:
                        a("s_memtime s[100:101]\ns_waitcnt lgkmcnt(0)")
                    a(f"s_mov_b32 s40, 0\nL_vr{rep}:")
                    for n in range(3):
                        a(f"buffer_load_dwordx4 v1, s[44:47], s40 offen offset:{n*1152 if isw else n*128} lds")
                    a(f"s_waitcnt vmcnt(24)\ns_add_u32 s40, s40, {8*3456 if isw else 8*2304}\ns_cmp_lt_u32 s40, {72*8*3456 if isw else 72*8*2304}\ns_cbranch_scc1 L_vr{rep}\ns_waitcnt vmcnt(0)")
                a(f"s_memtime s[{j}:{j+1}]\ns_waitcnt lgkmcnt(0)\ns_sub_u32 s{j}, s{j}, s100\ns_lshl_b32 s{j}, s{j}, 3\ns_add_u32 s{j}, s{j}, s100")
            if OPT.get("skew"):
                op = "max" if OPT["skew"] in (1, 3) else "min"
                a(f"""
s_waitcnt vmcnt(0) lgkmcnt(0)
v_lshlrev_b32 v1, {4 if OPT['skew'] < 3 else 5}, v0
{'v_and_b32 v1, 0x3e0, v1' if OPT['skew'] >= 3 else ''}
v_add_u32 v1, 0x6f0000, v1
buffer_load_dwordx4 v[4:7], v1, s[{SWS}:{SWS+3}], 0 offen sc1
s_waitcnt vmcnt(0)
v_subrev_u32 v4, s{sST}, v4
v_subrev_u32 v5, s{sST}, v5
v_subrev_u32 v6, s{sST}, v6
v_subrev_u32 v7, s{sST}, v7
""")
                if OPT["skew"] < 3:
                    a(f"v_{op}_i32 v4, v4, v5\nv_{op}_i32 v6, v6, v7\nv_{op}_i32 v4, v4, v6")
                a("s_mov_b32 s44, 0\ns_nop 4")
                for l in range(64):
                    a(f"v_readlane_b32 s45, v4, {l}\ns_nop 3\ns_{op}_i32 s44, s44, s45")
                a(f"s_abs_i32 s44, s44\ns_add_u32 s{j}, s{sST}, s44")
            if OPT.get("ptr"):
                a(f"s_waitcnt vmcnt(0) lgkmcnt(0)\ns_load_dword s44, s[0:1], {OPT['ptr'] - 8}\ns_waitcnt lgkmcnt(0)\ns_lshr_b32 s44, s44, {OPT.get('sh', 4)}\ns_and_b32 s44, s44, 0xff\ns_mul_i32 s44, s44, 10\ns_add_u32 s{j}, s{sST}, s44")
            if OPT.get("tlb"):
                a(f"""
s_waitcnt vmcnt(0) lgkmcnt(0)
s_cmp_eq_u32 s{sWAVE}, 0
s_cbranch_scc0 L_probe_x
s_load_dwordx2 s[44:45], s[0:1], {OPT['tlb'] - 8}
s_sleep 127
s_sleep 127
s_waitcnt lgkmcnt(0)
s_mov_b32 s46, 0x1e0000
s_mov_b32 s47, 0x20000
v_lshlrev_b32 v1, {OPT.get('sh', 12)}, v0
""")
                for rep in range(2):
                    if rep:
                        a("s_memtime s[100:101]\ns_waitcnt lgkmcnt(0)")
                    a(f"s_mov_b32 s40, 0\nL_vr{rep}:")
                    for n in range(4):
                        a(f"s_add_u32 s41, s40, {n << (OPT.get('sh', 12) + 6)}\nbuffer_load_dword v{4+n}, v1, s[44:47], s41 offen")
                    st = 128 if OPT.get('sh', 12) > 7 else 32768
                    a(f"s_waitcnt vmcnt(4)\ns_add_u32 s40, s40, {st}\ns_cmp_lt_u32 s40, {16*st}\ns_cbranch_scc1 L_vr{rep}\ns_waitcnt vmcnt(0)")
                a(f"s_memtime s[{j}:{j+1}]\ns_waitcnt lgkmcnt(0)\ns_sub_u32 s{j}, s{j}, s100\ns_lshl_b32 s{j}, s{j}, 2\ns_add_u32 s{j}, s{j}, s100")
            if OPT.get("tlb2"):
                nb = OPT["tlb2"]
                a(f"""
s_waitcnt vmcnt(0) lgkmcnt(0)
s_cmp_eq_u32 s{sWAVE}, 0
s_cbranch_scc0 L_probe_x
s_load_dwordx2 s[8:9], s[0:1], 0
s_load_dwordx2 s[12:13], s[0:1], 8
s_load_dwordx2 s[24:25], s[0:1], 24
s_load_dwordx2 s[44:45], s[0:1], 32
s_sleep 127
s_sleep 127
s_waitcnt lgkmcnt(0)
v_lshlrev_b32 v1, 12, v0
""")
                for r_ in (8, 12, 24, 44):
                    a(f"s_mov_b32 s{r_+2}, 0x1e0000\ns_mov_b32 s{r_+3}, 0x20000")
                for rep in range(2):
                    if rep:
                        a("s_memtime s[100:101]\ns_waitcnt lgkmcnt(0)")
                    a(f"s_mov_b32 s40, 0\nL_vr{rep}:")
                    for r_ in (8, 12, 24, 44)[:nb]:
                        for n in range(7):
                            a(f"s_add_u32 s41, s40, {n << 18}\nbuffer_load_dword v{4+n}, v1, s[{r_}:{r_+3}], s41 offen\ns_waitcnt vmcnt(7)")
                    a(f"s_add_u32 s40, s40, 128\ns_cmp_lt_u32 s40, {128*16//nb}\ns_cbranch_scc1 L_vr{rep}\ns_waitcnt vmcnt(0)")
                a(f"s_memtime s[{j}:{j+1}]\ns_waitcnt lgkmcnt(0)\ns_sub_u32 s{j}, s{j}, s100\ns_lshl_b32 s{j}, s{j}, 1\ns_add_u32 s{j}, s{j}, s100")
            if OPT.get("l1"):
                lds_ = OPT["l1"] == 1
                a(f"""
s_waitcnt vmcnt(0) lgkmcnt(0)
s_cmp_eq_u32 s{sWAVE}, 0
s_cbranch_scc0 L_probe_x
s_load_dwordx2 s[44:45], s[0:1], {OPT.get('buf', 0)}
s_sleep 127
s_sleep 127
s_waitcnt lgkmcnt(0)
s_mov_b32 s46, 0x1e0000
s_mov_b32 s47, 0x20000
v_lshrrev_b32 v1, 2, v0
v_lshlrev_b32 v1, 7, v1
v_and_b32 v2, 3, v0
v_lshl_add_u32 v1, v2, 4, v1
v_add_u32 v2, 64, v1
s_mov_b32 m0, 0
""")
                for rep in range(2):
                    if rep:
                        a("s_memtime s[100:101]\ns_waitcnt lgkmcnt(0)")
                    a(f"s_mov_b32 s40, 0\nL_vr{rep}:")
                    for n in range(2):
                        a(f"buffer_load_dwordx4 v{1+n}, s[44:47], s40 offen lds" if lds_ else f"buffer_load_dwordx4 v[{4+4*n}:{7+4*n}], v{1+n}, s[44:47], s40 offen")
                    a(f"s_waitcnt vmcnt(20)\ns_add_u32 s40, s40, 2048\ns_cmp_lt_u32 s40, {2048*256}\ns_cbranch_scc1 L_vr{rep}\ns_waitcnt vmcnt(0)")
                a(f"s_memtime s[{j}:{j+1}]\ns_waitcnt lgkmcnt(0)\ns_sub_u32 s{j}, s{j}, s100\ns_lshl_b32 s{j}, s{j}, 1\ns_add_u32 s{j}, s{j}, s100")
            if OPT.get("lat"):
                a(f"""
s_waitcnt vmcnt(0) lgkmcnt(0)
s_load_dwordx2 s[44:45], s[0:1], {OPT['lat'] - 8}
s_sleep 127
s_sleep 127
s_sleep 127
s_waitcnt lgkmcnt(0)
s_mov_b32 s46, 0x100000
s_mov_b32 s47, 0x20000
v_mov_b32 v1, 0x20000
buffer_load_dword v2, v1, s[44:47], 0 offen {'sc1' if OPT.get('first') != 2 else ''}
s_waitcnt vmcnt(0)
v_mov_b32 v1, {'0x20000' if not OPT.get('first') else '0x20040'}
s_memtime s[100:101]
s_waitcnt lgkmcnt(0)
buffer_load_dword v2, v1, s[44:47], 0 offen sc1
s_waitcnt vmcnt(0)
s_memtime s[{j}:{j+1}]
s_waitcnt lgkmcnt(0)
s_sub_u32 s{j}, s{j}, s100
s_lshl_b32 s{j}, s{j}, 5
s_add_u32 s{j}, s{j}, s100
""")
            if OPT.get("xcc"):
                a(f"""
s_waitcnt vmcnt(0) lgkmcnt(0)
v_and_b32 v1, 31, v0
v_lshlrev_b32 v1, {5 if OPT['xcc'] == 1 else 2}, v1
v_add_u32 v1, 0x6f0000, v1
buffer_load_dword v2, v1, s[{SWS}:{SWS+3}], 0 offen sc1
s_getreg_b32 s44, hwreg(HW_REG_XCC_ID, 0, 4)
s_waitcnt vmcnt(0)
v_cmp_eq_u32 vcc, s44, v2
s_bcnt1_i32_b32 s44, vcc_lo
s_mul_i32 s44, s44, 10
s_add_u32 s{j}, s{sST}, s44
""")
            a(f"""
s_waitcnt vmcnt(0) lgkmcnt(0)
s_cmp_eq_u32 s2, {OPT.get('wg', 0)}
s_cbranch_scc0 L_probe_x
s_cmp_eq_u32 s{sWAVE}, {last}
s_cbranch_scc0 L_probe_x
s_sub_u32 s{sT}, s{j}, s{100 if OPT.get('cyc') else sST}
{'s_lshr_b32 s7, s7, 3' if OPT.get('cyc') else 's_mul_i32 s7, s7, 10'}
s_min_u32 s{sT}, s{sT}, 100000
s_add_u32 s{sT}, s{sT}, 6000
L_probe:
s_memrealtime s[44:45]
s_waitcnt lgkmcnt(0)
s_sub_u32 s44, s44, s{sST}
s_cmp_lt_u32 s44, s{sT}
s_cbranch_scc1 L_probe
L_probe_x:
""")
        return
    a("s_waitcnt vmcnt(0) lgkmcnt(0)")
    a(f"s_lshl_b32 s{sT}, s2, 3\ns_add_u32 s{sT}, s{sT}, s{sWAVE}\ns_lshl_b32 s{sT}, s{sT}, 6")
    a(f"s_add_u32 s{sT}, s{sT}, {WS_STAMP}\nv_mov_b32 v1, s{sT}")
    for i in range(16):
        a(f"v_mov_b32 v2, s{sST+2*i}")
        a(f"buffer_store_dword v2, v1, s[{SWS}:{SWS+3}], 0 offen offset:{4*i}")
    a("s_waitcnt vmcnt(0)")

def mf(d, s0, s1, c):
    cc = c if isinstance(c, str) else vr(c, 4)
    return f"v_mfma_f32_16x16x32_bf16 {vr(d,4)}, {vr(s0,4)}, {vr(s1,4)}, {cc}"
def cv(d, x):
    return f"v_cvt_pk_bf16_f32 v{d}, v{x}, v{x+1}"
def tr(d, addr, off):
    return f"ds_read_b64_tr_b16 {vr(d,2)}, v{addr} offset:{off}"
def weave(mfmas, others, per=2):
    o = list(others)
    for m in mfmas:
        a(m)
        for _ in range(per):
            if o: a(o.pop(0))
    for x in o: a(x)

def srd(dst, lo, nbytes):
    a(f"s_mov_b32 s{dst}, s{lo}\ns_mov_b32 s{dst+1}, s{lo+1}\ns_mov_b32 s{dst+2}, {nbytes}\ns_mov_b32 s{dst+3}, 0x20000")
def srds_rest():
    srd(SWO, 40, 663552); srd(SOUT, 44, 4718592); srd(SDBG, 46, 256); srd(SWS, 48, WS_SIZE)

class M0:
    def __init__(self, base): self.base = base; self.cur = None
    def set(self, imm):
        if self.cur is not None and -32768 <= imm - self.cur <= 32767:
            a(f"s_addk_i32 m0, {imm - self.cur}")
        else:
            a(f"s_add_u32 m0, s{self.base}, {imm}")
        self.cur = imm

CUR = [0]
def dma(voff, srd_, soff, half=False):
    if OPT.get("nodma") or (OPT.get("nos") and voff == VD + 6 and srd_ == SW and not half):
        return
    if half: a(f"s_mov_b64 exec, s[{sG01}:{sG01+1}]")
    nt = " nt" if OPT.get("nt", 0) >> {SX: 0, SW: 1, SWO: 2}[srd_] & 1 and CUR[0] < OPT.get("ntc", 99) else ""
    a(f"buffer_load_dwordx4 v{voff}, s[{srd_}:{srd_+3}], {soff} offen{nt} lds")
    if half: a("s_mov_b64 exec, -1")

def rd_lanes(r8, r2, t0, t1):
    a(f"""
v_lshrrev_b32 v{t0}, 5, v0
v_lshlrev_b32 v{t0}, 4, v{t0}
v_bfe_u32 v{t1}, v0, 4, 1
v_lshl_add_u32 v{t0}, v{t1}, 2, v{t0}
v_bfe_u32 v{t1}, v0, 2, 2
v_add_u32 v{t0}, v{t0}, v{t1}
v_and_b32 v{t1}, 3, v0
v_lshlrev_b32 v{t1}, 3, v{t1}
v_lshl_add_u32 v{r2}, v{t0}, 5, v{t1}
v_lshl_add_u32 v{r8}, v{t0}, 7, v{t1}
v_bfe_u32 v{t0}, v{t0}, 1, 2
v_lshl_add_u32 v{r8}, v{t0}, 5, v{r8}
""")
    for t in (1, 2, 3):
        a(f"v_xor_b32 v{r8+t}, {32*t}, v{r8}")

def x_lane(d0, d1, tmp):
    a(f"""
v_lshrrev_b32 v{d0}, 4, v0
v_bfe_u32 v{tmp}, v0, 1, 3
v_xor_b32 v{d0}, v{d0}, v{tmp}
v_and_b32 v{tmp}, 15, v0
v_lshlrev_b32 v{tmp}, 7, v{tmp}
v_lshl_add_u32 v{d0}, v{d0}, 4, v{tmp}
v_xor_b32 v{d1}, 64, v{d0}
""")

def col8(dst, tmp):
    a(f"v_bfe_u32 v{tmp}, v0, 4, 2\nv_lshlrev_b32 v{tmp}, 1, v{tmp}\nv_and_b32 v{dst}, 7, v0\nv_xor_b32 v{dst}, v{dst}, v{tmp}\nv_lshlrev_b32 v{dst}, 4, v{dst}")

def head_of(dst, src):
    a(f"v_mul_u32_u24 v{dst}, 57, v{src}\nv_lshrrev_b32 v{dst}, 10, v{dst}")

sOC, sKC, sFO, sFK = 92, 94, 96, 97

def arrive_wait(addr, target, label, arrive=True):
    if arrive:
        a(f"s_mov_b32 s{sT}, 1\ns_atomic_add s{sT}, s[{addr}:{addr+1}], 0 glc\ns_waitcnt lgkmcnt(0)\ns_cmp_ge_u32 s{sT}, {target-1}\ns_cbranch_scc1 {label}_x")
    a(f"""
s_mov_b32 s{sT3}, 0x20000
{label}:
s_mov_b32 s{sT}, 0
s_atomic_add s{sT}, s[{addr}:{addr+1}], 0 glc
s_waitcnt lgkmcnt(0)
s_sub_u32 s{sT3}, s{sT3}, 1
s_cbranch_scc1 {label}_x
s_cmp_ge_u32 s{sT}, {target}
s_cbranch_scc0 {label}
{label}_x:
""")

def flag_load(dst, offreg):
    a(f"s_load_dword s{dst}, s[{SDBG}:{SDBG+1}], s{offreg}")

def flag_check(val, offreg, label):
    a(f"""
s_mov_b32 s{sT3}, 0x20000
{label}:
s_waitcnt lgkmcnt(0)
s_cmp_lg_u32 s{val}, 0
s_cbranch_scc1 {label}_x
s_sub_u32 s{sT3}, s{sT3}, 1
s_cbranch_scc1 {label}_x
s_load_dword s{val}, s[{SDBG}:{SDBG+1}], s{offreg} glc
s_branch {label}
{label}_x:
""")

A_WSLOT, A_XSLOT = 14336, 18432
A_X0 = 5 * A_WSLOT
A_EX = A_X0 + 3 * A_XSLOT
B_KVSLOT, B_XSLOT = 9216, 16384
B_X0 = 5 * B_KVSLOT
B_EX = B_X0 + 3 * B_XSLOT
B_KVOP = 126976
B_STG = 136192
B_DUMP, B_LCNT = B_STG + 5632, B_STG + 6144
B_WQ0 = 143360
QORD = list(range(18))
def wq_slot(p):
    if p < 4: return B_WQ0 + 5120 * p
    if p < 7: return 5120 * (p - 4)
    if p < 13: return 40960 + 5120 * (p - 7)
    return 15360 + 5120 * (p - 13)
R1, R2 = 147456, 43008
WO = [R1, R1 + 5120, R1 + 10240] + [R2 + 5120 * n for n in range(6, 12)] + [0, 5120, 10240] + [R2 + 5120 * n for n in range(6)]
P_TR = 108544
SPLITS = {(1, 0): sG0, (2, 0): sG0, (2, 1): sG0, (3, 0): sG01, (3, 1): sG0}

VD = 16
VWO = 26
vCNT, vFLO, vFLK, vFO, vFK = 30, 31, 32, 33, 34

def w_head(kind):
    parts = (0, 1152, 2304) if kind == "A" else (1152, 2304)
    a(f"L_{kind}W0:")
    col8(VD, 1)
    a(f"""
v_bfe_u32 v1, v0, 5, 1
v_bfe_u32 v2, v0, 3, 2
v_lshl_add_u32 v1, v1, 3, v2
s_mul_i32 s{sT}, s{sV}, {16*3456}
s_add_u32 s{sT}, s{sT}, s{sM}
v_mul_u32_u24 v1, 3456, v1
v_add3_u32 v{VD}, v{VD}, v1, s{sT}
""")
    n = 2 * len(parts)
    for j in range(n - 1, -1, -1):
        off = parts[j // 2] + (j % 2) * 4 * 3456
        if off:
            a(f"v_add_u32 v{VD+j}, {off}, v{VD}")
    a(f"""
v_bfe_u32 v1, v0, 3, 1
v_bfe_u32 v2, v0, 4, 1
v_sub_u32 v1, v1, v2
v_lshrrev_b32 v2, 1, v0
v_lshl_add_u32 v1, v1, 2, v2
v_mul_u32_u24 v1, 3456, v1
v_and_b32 v2, 1, v0
""")
    if kind == "A" and OPT.get("shalf"):
        a(f"""
s_add_u32 s{sT}, s{sT}, 128
v_add_u32 v1, s{sT}, v1
v_add_u32 v{VD+7}, 2304, v1
v_mul_u32_u24 v2, 1152, v2
v_add_u32 v{VD+6}, v2, v1
""")
    elif kind == "A":
        a(f"""
s_cmp_eq_u32 s{sV}, 0
s_cselect_b32 s{sT2}, 1152, 0
s_cselect_b32 s{sT}, 0, 2304
s_add_u32 s{sT}, s{sT}, s{sM}
s_addk_i32 s{sT}, 128
v_mad_u32_u24 v1, v2, s{sT2}, v1
v_add_u32 v{VD+6}, s{sT}, v1
""")
    else:
        a(f"""
s_add_u32 s{sT}, s{sT}, 128
v_add_u32 v{VD+7}, s{sT}, v1
v_mul_u32_u24 v2, 1152, v2
v_add_u32 v2, 1152, v2
v_add_u32 v{VD+4}, v2, v{VD+7}
""")
    a(f"s_lshl_b32 s42, s{sV}, 11\ns_lshl_b32 s43, s{sV}, {10 if kind == 'A' and not OPT.get('shalf') else 9}\ns_sub_u32 s43, s43, s42")
    a("s_waitcnt lgkmcnt(0)")
    srd(SW, 38, 1990656)
    m = M0(42)
    w_issue(kind, 0, m)
    a(f"s_branch L_{kind}W1")

def w_issue(kind, c, m):
    CUR[0] = c
    slot = (c % 5) * (A_WSLOT if kind == "A" else B_KVSLOT)
    n = 6 if kind == "A" else 4
    so = f"s{sK}" if c else "0"
    if OPT.get("rot"):
        so = "s90"
        if c:
            a(f"s_add_u32 s90, s90, {32*3456}\ns_cmp_eq_u32 s90, {18*32*3456}\ns_cselect_b32 s90, 0, s90")
    elif c:
        a(f"s_mov_b32 s{sK}, {c*32*3456}")
    for j in range(n):
        m.set(slot + 4096 * (j // 2) + 1024 * (j % 2))
        dma(VD + j, SW, so)
        if OPT.get("lp") == 10 + j and c == OPT.get("lpi", 6) + 4 and kind == "A":
            stamp()
            j_ = sST + 2*(nstamp[0]-1)
            a(f"s_waitcnt lgkmcnt(0)\ns_sub_u32 s{j_}, s{j_}, s100\ns_lshl_b32 s{j_}, s{j_}, 4\ns_add_u32 s{j_}, s{j_}, s100")
        if kind == "A" and OPT.get("shalf") and j in (3, 5):
            m.set(slot + (12288 if j == 3 else 13312))
            a("s_add_u32 m0, m0, s43")
            m.cur = None
            dma(VD + (6 if j == 3 else 7), SW, so, half=True)
    if kind == "A" and OPT.get("shalf"):
        return 8
    m.set(slot + 4096 * (n // 2))
    a("s_add_u32 m0, m0, s43")
    m.cur = None
    dma(VD + n, SW, so, half=(kind == "B"))
    return n + 1

def wq_issue(p, m):
    if OPT.get("rot"):
        a(f"s_add_u32 s{sK}, s90, {(p+1)*32*3456}\ns_cmp_ge_u32 s{sK}, {18*32*3456}\ns_cselect_b32 s{sT}, {18*32*3456}, 0\ns_sub_u32 s{sK}, s{sK}, s{sT}")
    else:
        a(f"s_mov_b32 s{sK}, {QORD[p]*32*3456}")
    for j in range(2):
        m.set(wq_slot(p) + 1024 * j)
        dma(VD + 5 + j, SW, f"s{sK}")
    m.set(wq_slot(p) + 4096)
    a("s_add_u32 m0, m0, s43")
    m.cur = None
    dma(VD + 7, SW, f"s{sK}", half=True)
    return 3

def x_head(kind):
    nq = 9 if kind == "A" else 8
    a(f"L_{kind}X0:")
    a(f"""
v_lshrrev_b32 v1, 3, v0
v_mul_u32_u24 v1, {2304 if kind == 'A' else 1152}, v1
v_lshrrev_b32 v2, 4, v0
v_lshl_add_u32 v2, s{sV}, 2, v2
v_and_b32 v3, 7, v0
v_xor_b32 v2, v2, v3
v_lshl_add_u32 v1, v2, 4, v1
s_mul_i32 s{sT}, s{sRB}, {128*1152}
""")
    if kind == "A":
        a(f"""
s_mul_i32 s{sT2}, s{sV}, {16*1152}
s_add_u32 s{sT3}, s{sT}, s{sT2}
v_add_u32 v{VD}, s{sT3}, v1
s_sub_u32 s{sT3}, s{sT}, s{sT2}
s_add_u32 s{sT3}, s{sT3}, {17*1152}
v_add_u32 v{VD+4}, s{sT3}, v1
s_mul_i32 s{sT2}, s{sV}, 1152
s_sub_u32 s{sT3}, s{sT}, s{sT2}
s_sub_u32 s{sT3}, s{sT3}, {15*1152}
v_add_u32 v{VD+8}, s{sT3}, v1
""")
        for q in (1, 2, 3):
            a(f"v_add_u32 v{VD+q}, {32*1152*q}, v{VD}\nv_add_u32 v{VD+4+q}, {32*1152*q}, v{VD+4}")
    else:
        a(f"s_mul_i32 s{sT2}, s{sV}, {8*1152}\ns_add_u32 s{sT}, s{sT}, s{sT2}\nv_add_u32 v{VD}, s{sT}, v1")
        for q in range(1, 8):
            a(f"v_add_u32 v{VD+q}, {16*1152*q}, v{VD}")
    a(f"s_lshl_b32 s42, s{sV}, 10")
    a("s_waitcnt lgkmcnt(0)")
    srd(SX, 36, 2359296)
    x_issue(kind, 0, M0(42))
    a(f"s_branch L_{kind}X1")

def x_issue(kind, c, m):
    CUR[0] = c + (c & 1)
    nq, h, x0, xs = (9, 5, A_X0, A_XSLOT) if kind == "A" else (8, 4, B_X0, B_XSLOT)
    st = (c + 1) // 2
    if st > 8:
        return 0
    qs = range(nq) if c == 0 else (range(h) if c % 2 else range(h, nq))
    so = f"s{sK}" if st else "0"
    if OPT.get("rot"):
        so = "s91"
        if c % 2:
            a("s_addk_i32 s91, 128\ns_cmpk_eq_u32 s91, 1152\ns_cselect_b32 s91, 0, s91")
    elif st:
        a(f"s_movk_i32 s{sK}, {st*128}")
    for q in qs:
        m.set(x0 + (st % 3) * xs + 2048 * q)
        a("s_nop 0")
        dma(VD + q, SX, so)
    return len(qs)

def wo_setup(quad):
    col8(VWO, 1)
    a(f"""
s_mul_i32 s{sM}, s{sHG}, 144
v_add_u32 v{VWO}, s{sM}, v{VWO}
v_bfe_u32 v1, v0, 5, 1
v_bfe_u32 v2, v0, 3, 2
v_mul_u32_u24 v1, 72, v1
v_add_u32 v1, v1, v2
v_mul_u32_u24 v1, 1152, v1
v_add_u32 v{VWO+1}, v1, v{VWO}
v_lshrrev_b32 v1, 3, v0
v_mul_u32_u24 v1, 1152, v1
v_add_u32 v{VWO}, v1, v{VWO}
v_bfe_u32 v1, v0, 1, 2
v_bfe_u32 v2, v0, 3, 1
v_bfe_u32 v3, v0, 4, 1
v_bfe_u32 v4, v0, 5, 1
v_lshl_add_u32 v5, v2, 2, v1
v_lshl_add_u32 v5, v3, 4, v5
v_lshl_add_u32 v5, v4, 3, v5
v_mul_u32_u24 v5, 1152, v5
s_add_u32 s{sM}, s{sM}, 128
v_add_u32 v{VWO+2}, s{sM}, v5
v_lshl_add_u32 v5, v3, 2, v1
v_lshl_add_u32 v2, v4, 1, v2
v_mul_u32_u24 v2, 72, v2
v_add_u32 v5, v5, v2
v_mul_u32_u24 v5, 1152, v5
v_add_u32 v{VWO+3}, s{sM}, v5
s_and_b32 s55, s{sWAVE}, 3
s_lshl_b32 s57, s55, 3
""")
    rho(56)
    a(f"s_add_u32 s56, s56, s{55 if quad else sV}")

def rho(dst):
    few, many = (sRB, sHG) if OPT["mapping"] == 48 else (sHG, sRB)
    if OPT["mapping"] > 99:
        a(f"s_cmp_eq_u32 s{sBR}, {0 if OPT['mapping'] == 8448 else 1}\ns_cselect_b32 s{sT}, s{sHG}, s{sRB}\ns_cselect_b32 s{sT2}, s{sRB}, s{sHG}")
        few, many = sT, sT2
    a(f"s_lshl_b32 s{dst}, s{few}, 1\ns_add_u32 s{dst}, s{dst}, s{many}\ns_lshl_b32 s{dst}, s{dst}, 1")
    if not OPT.get("worot", 1):
        a(f"s_mov_b32 s{dst}, 0")

def wo_chunk(left, fadd):
    if left:
        a(f"s_mul_i32 s{sK}, s{sV}, {288*1152}\ns_add_u32 s{sK}, s{sK}, {64*1152}")
        steps = (4, 140, 4); v8, v2 = VWO + 1, VWO + 3
    else:
        a(f"""
s_add_u32 s{sT}, s56, {fadd}
s_bfe_u32 s{sK}, s{sT}, 0x30001
s_mul_i32 s{sK}, s{sK}, {72*1152}
s_bitcmp1_b32 s{sT}, 0
s_cselect_b32 s{sT}, {32*1152}, 0
s_add_u32 s{sK}, s{sK}, s{sT}
""")
        steps = (16, -8, 16); v8, v2 = VWO, VWO + 2
    a(f"s_mov_b32 s{sT2}, s{sK}")
    for j in range(4):
        dma(v8, SWO, f"s{sK}")
        a("s_addk_i32 m0, 1024")
        a(f"s_add_u32 s{sK}, s{sK}, {steps[j]*1152 & 0xffffffff}" if j < 3 else "s_nop 0")
    dma(v2, SWO, f"s{sT2}")
    return 5

def wo_issue(q):
    packed = sum((WO[2 + 4*q + w] // 1024) << (8 * w) for w in range(4))
    a(f"s_lshr_b32 s{sT}, {packed}, s57\ns_and_b32 s{sT}, s{sT}, 0xff\ns_lshl_b32 m0, s{sT}, 10")
    return wo_chunk(False, 4*q)

def wo_pair(g):
    a(f"s_mul_i32 s{sT}, s{sV}, {WO[2*g+1] - WO[2*g] & 0xffffffff}\ns_add_u32 m0, s{sT}, {WO[2*g]}")
    return wo_chunk(g == 0, 2*g - 2)

def sync_setup():
    a(f"""
s_lshl_b32 s{sT}, s{sBR}, 4
s_add_u32 s{sT}, s{sT}, s{sRB}
s_lshl_b32 s{sT2}, s{sT}, 8
s_add_u32 s{sT2}, s{sT2}, {WS_CNT}
s_add_u32 s{sOC}, s{SWS}, s{sT2}
s_addc_u32 s{sOC+1}, s{SWS+1}, 0
s_lshl_b32 s{sT}, s{sT}, 2
s_add_u32 s98, s{sT}, 32
s_lshl_b32 s99, s{sHG}, 2
s_mul_i32 s{sT2}, s{sHG}, {KV_ST}
s_add_u32 s{sT2}, s{sT2}, {WS_KV + 6144}
s_add_u32 s{sKC}, s{SWS}, s{sT2}
s_addc_u32 s{sKC+1}, s{SWS+1}, 0
""")

def loader_tail(tag, late=()):
    if tag[1] == "X":
        flag_check(sFO, 98, f"L_{tag}_fo")
    a("s_barrier")
    stamp()
    for g in late:
        wo_pair(g)
    if tag[1] == "X":
        a(f"s_cmp_eq_u32 s{sWAVE}, 6\ns_cbranch_scc0 L_{tag}_oc_x")
        arrive_wait(sOC, 8, f"L_{tag}_oc")
    a("s_waitcnt vmcnt(0)")
    stamp()
    a("s_barrier")
    stamps_out({"AW": 4, "AX": 6}.get(tag, -1))
    a("s_endpgm")

def a_loader(kind):
    a(f"L_A{kind}1:")
    m = M0(42)
    issue = (lambda c: w_issue("A", c, m)) if kind == "W" else (lambda c: x_issue("A", c, m))
    if OPT.get("prepass"):
        a("s_mov_b32 s58, s90\ns_mov_b32 s59, s91")
        n_ = {}
        for c in range(1, 18):
            if OPT["prepass"] == 2:
                a("s_mov_b32 s90, s58\ns_mov_b32 s91, s59")
            n_[c] = issue(c)
            a(f"s_waitcnt vmcnt({n_[c] + n_.get(c-1, 0)})")
            if c in (4, 9):
                stamp()
        a("s_waitcnt vmcnt(0)")
        stamp()
        a("s_barrier\ns_mov_b32 s90, s58\ns_mov_b32 s91, s59")
        m.cur = None
        issue(0)
    pre = 1 if OPT.get("early") and kind == "W" else 2
    cnt = {c: issue(c) for c in range(1, pre + 1)}
    stamp()
    x_lane(8, 9, 1)
    rd_lanes(36, 12, 1, 2)
    a(f"""
v_add_u32 v8, {A_X0 + 8*2048}, v8
v_add_u32 v9, {A_X0 + 8*2048}, v9
s_lshl_b32 s{sT}, s{sV}, 6
v_xor_b32 v10, s{sT}, v36
v_add_u32 v10, {4096 if kind == 'W' else 8192}, v10
v_xor_b32 v11, 32, v10
v_add_u32 v12, {12288 if kind == 'W' else 13312}, v12
v_add_u32 v13, {4*A_WSLOT}, v10
v_add_u32 v14, {4*A_WSLOT}, v11
v_add_u32 v15, {4*A_WSLOT}, v12
s_lshl_b32 s{sT}, s{sV}, 10
s_add_u32 s{sT}, s{sT}, {A_EX + (0 if kind == 'W' else 2560)}
v_lshlrev_b32 v7, 3, v0
v_add_u32 v6, s{sT}, v7
v_add_u32 v7, {A_EX + (2048 if kind == 'W' else 4608)}, v7
""")
    stamp()
    a(f"s_waitcnt vmcnt({sum(cnt.values())})\ns_barrier")
    stamp()
    extra = 0
    for i in range(-1, 17):
        ks = i + 1
        slot = ks % 5
        off = 0 if slot == 4 else slot * A_WSLOT
        ad = (13, 14, 15) if slot == 4 else (10, 11, 12)
        def lp(n):
            if OPT.get("lp") == n and i == OPT.get("lpi", 6):
                stamp()
                j_ = sST + 2*(nstamp[0]-1)
                a(f"s_waitcnt lgkmcnt(0)\ns_sub_u32 s{j_}, s{j_}, s100\ns_lshl_b32 s{j_}, s{j_}, 4\ns_add_u32 s{j_}, s{j_}, s100")
        if OPT.get("stat") and kind == "X" and 2 <= i <= 13:
            a("s_memtime s[38:39]")
        if OPT.get("lp") and i == OPT.get("lpi", 6):
            a("s_memtime s[100:101]")
            if OPT["lp"] == 5:
                a(".rept 128\ns_mov_b32 s39, 0x12345\n.endr")
                lp(5)
        a(f"ds_read_b128 v[40:43], v{8 + ks % 2} offset:{(ks//2 % 3)*A_XSLOT}")
        for j in range(3 if OPT.get("nohalo", 0) < 2 else 0):
            a(tr(44 + 4*j, ad[j], off)); a(tr(46 + 4*j, ad[j], off + (1024 if j < 2 else 256)))
        if i == -1 and pre == 1:
            cnt[2] = issue(2)
        if i + 4 <= 17:
            cnt[i+4] = issue(i + 4)
        lp(1)
        a("s_waitcnt lgkmcnt(0)")
        if OPT.get("stat") and kind == "X" and 2 <= i <= 13:
            if i == 2:
                a(f"s_mov_b32 s36, {0xffff if OPT['stat'] == 1 else 0}")
            else:
                a("s_sub_u32 s41, s38, s37")
                if OPT["stat"] == 3:
                    a("s_cmp_gt_u32 s41, 800\ns_cselect_b32 s41, 100, 0\ns_add_u32 s36, s36, s41")
                else:
                    a(f"s_{'min' if OPT['stat'] == 1 else 'max'}_u32 s36, s36, s41")
            a("s_mov_b32 s37, s38")
            if i == 13:
                a(f"s_lshl_b32 s36, s36, 4\ns_add_u32 s{sST + 2*13}, s36, s100")
        for j in range(3 if not OPT.get("nohalo") else 0):
            c = 60 + 4*j if ks else "0"
            a(mf(60 + 4*j, 44 + 4*j, 40, c) if kind == "W" else mf(60 + 4*j, 40, 44 + 4*j, c))
        if i == 1:
            srds_rest(); sync_setup()
        if i == 2:
            wo_setup(True)
        if i == 14 and kind == "W":
            extra += wo_pair(0)
        if i == 15:
            extra += wo_issue(0)
        if i + 1 <= 16:
            left = sum(cnt.get(c, 0) for c in range(i + 3, min(i + 4, 17) + 1)) + extra
            lp(2)
            a(f"s_waitcnt vmcnt({left})")
            lp(3)
            a("s_barrier")
            lp(4)
            if OPT.get("fine") and kind == "W" and i % 2 == 1 and 0 < i < 14:
                stamp()
    for j in range(3):
        a(cv(44 + 2*j, 60 + 4*j)); a(cv(45 + 2*j, 62 + 4*j))
    if kind == "W":
        a("v_mov_b32 v50, 0\nv_mov_b32 v51, 0")
        a("v_permlane32_swap_b32 v48, v50\nv_permlane32_swap_b32 v49, v51")
    a("ds_write_b64 v6, v[44:45]\nds_write_b64 v6, v[46:47] offset:512")
    a(f"ds_write_b64 v7, {'v[50:51]' if kind == 'W' else 'v[48:49]'}")
    stamp()
    a("s_waitcnt lgkmcnt(0)\ns_barrier")
    if kind == "X":
        flag_load(sFO, 98)
    wo_issue(1); wo_issue(2); wo_issue(3)
    stamp()
    loader_tail("A" + kind)

def o_store_addr(vfull, vleft, tmp, left_lo):
    a(f"""
s_lshl_b32 s{sT}, s{sRB}, 3
s_lshl_b32 s{sT2}, s{sWAVE}, 1
s_add_u32 s{sT}, s{sT}, s{sT2}
s_mul_i32 s{sT}, s{sT}, 18432
s_mul_i32 s{sT2}, s{sBR}, {O_BR}
s_add_u32 s58, s{sT}, s{sT2}
s_lshl_b32 s{sT2}, s{sHG}, 11
s_add_u32 s{sT2}, s{sT2}, s58
v_lshl_add_u32 v{vfull}, v0, 4, s{sT2}
s_lshr_b32 s{sT2}, s{sHG}, 2
s_add_u32 s{sT2}, s{sT2}, 16
s_lshl_b32 s{sT2}, s{sT2}, 10
s_add_u32 s{sT}, s58, s{sT2}
s_and_b32 s{sT2}, s{sHG}, 3
s_lshl_b32 s{sT2}, s{sT2}, 8
s_add_u32 s{sT}, s{sT}, s{sT2}
v_and_b32 v{vleft}, 15, v0
v_lshlrev_b32 v{vleft}, 4, v{vleft}
v_bfe_u32 v{tmp}, v0, 4, 1
v_lshl_add_u32 v{vleft}, v{tmp}, 3, v{vleft}
v_add_u32 v{vleft}, s{sT}, v{vleft}
v_mov_b32 v{tmp}, {OOB}
""")
    x, y = (tmp, vleft) if left_lo else (vleft, tmp)
    a(f"v_cndmask_b32 v{vleft}, v{x}, v{y}, s[{sG01}:{sG01+1}]")

def o_store(of, vfull, vleft, rt):
    so = f"s{sK}" if rt else "0"
    if rt:
        a(f"s_movk_i32 s{sK}, 18432")
    a(f"buffer_store_dwordx4 {vr(of,4)}, v{vfull}, s[{SWS}:{SWS+3}], {so} offen sc1")
    a(f"buffer_store_dwordx4 {vr(of+4,4)}, v{vfull}, s[{SWS}:{SWS+3}], {so} offen offset:1024 sc1")
    a(f"buffer_store_dwordx2 {vr(of+8,2)}, v{vleft}, s[{SWS}:{SWS+3}], {so} offen sc1")

def gap_touch(tag, parts):
    if not OPT.get("touch"):
        return
    nt = " nt" if OPT.get("tnt") else ""
    a(f"""
s_cmp_eq_u32 s{sWAVE}, 1
s_cbranch_scc1 L_{tag}_tw
s_cmp_eq_u32 s{sWAVE}, 2
s_cbranch_scc0 L_{tag}_tx
s_and_b32 s{sT}, s{sRB}, 7
s_cmp_eq_u32 s{sT}, 0
s_cselect_b32 s{sT}, 9, s{sT}
s_sub_u32 s{sT}, s{sT}, 1
s_lshl_b32 s{sT}, s{sT}, 7
s_and_b32 s{sT2}, s{sHG}, 3
s_lshl_b32 s{sT2}, s{sT2}, 5
s_lshl_b32 s{sT3}, s{sRB}, 7
s_add_u32 s{sT2}, s{sT2}, s{sT3}
v_and_b32 v1, 31, v0
v_add_u32 v1, s{sT2}, v1
v_mul_u32_u24 v1, 1152, v1
""")
    srd(SX, 36, 2359296)
    a(f"""
buffer_load_dword v26, v1, s[{SX}:{SX+3}], s{sT} offen{nt}
s_branch L_{tag}_tx
L_{tag}_tw:
s_and_b32 s{sT}, s{sHG}, 3
s_lshl_b32 s{sT}, s{sT}, 1
s_cmp_eq_u32 s{sT}, 0
s_cselect_b32 s{sT}, 9, s{sT}
s_sub_u32 s{sT}, s{sT}, 1
s_lshl_b32 s{sT}, s{sT}, 3
s_and_b32 s{sT2}, s{sRB}, 7
s_add_u32 s{sT}, s{sT}, s{sT2}
s_mul_i32 s{sT}, s{sT}, {8*3456}
s_add_u32 s{sT}, s{sT}, s{sM}
v_lshrrev_b32 v1, 3, v0
v_mul_u32_u24 v1, 3456, v1
v_bfe_u32 v2, v0, 1, 2
v_min_u32 v2, {parts-1}, v2
v_mul_u32_u24 v2, 1152, v2
v_and_b32 v3, 1, v0
v_mul_u32_u24 v3, 140, v3
v_add3_u32 v1, v1, v2, v3
""")
    srd(SW, 38, 1990656)
    a(f"buffer_load_dword v26, v1, s[{SW}:{SW+3}], s{sT} offen offset:{1152*(3-parts)}{nt}\nL_{tag}_tx:")

def init_stores(tag, with_kv):
    if OPT.get("skew"):
        a(f"v_mov_b32 v2, s{sST}\ns_lshl_b32 s{sT}, s2, 2\ns_add_u32 s{sT}, s{sT}, 0x6f0000\nv_mov_b32 v1, s{sT}\nbuffer_store_dword v2, v1, s[{SWS}:{SWS+3}], 0 offen sc1")
    if OPT.get("xcc"):
        a(f"s_getreg_b32 s{sT}, hwreg(HW_REG_XCC_ID, 0, 4)\nv_mov_b32 v2, s{sT}\ns_lshl_b32 s{sT}, s2, 2\ns_add_u32 s{sT}, s{sT}, 0x6f0000\nv_mov_b32 v1, s{sT}\nbuffer_store_dword v2, v1, s[{SWS}:{SWS+3}], 0 offen sc1")
    a(f"""
s_or_b32 s{sT}, s{sHG}, s{sWAVE}
s_cmp_eq_u32 s{sT}, 0
s_cselect_b32 s55, 1, 0
v_mov_b32 v20, 0
v_mov_b32 v21, 0
v_mov_b32 v22, 0
v_mov_b32 v23, 0
s_cbranch_scc0 L_{tag}_i1
s_lshl_b32 s{sT}, s{sBR}, 4
s_add_u32 s{sT}, s{sT}, s{sRB}
s_lshl_b32 s{sT}, s{sT}, 8
s_add_u32 s{sT}, s{sT}, {WS_CNT}
v_mov_b32 v24, s{sT}
buffer_store_dword v20, v24, s[{SWS}:{SWS+3}], 0 offen sc1
L_{tag}_i1:
""")
    if with_kv:
        a(f"""
s_or_b32 s{sT}, s{sRB}, s{sWAVE}
s_cmp_eq_u32 s{sT}, 0
s_cbranch_scc0 L_{tag}_i2
s_or_b32 s55, s55, 2
s_mul_i32 s{sT}, s{sHG}, {KV_ST}
s_add_u32 s{sT}, s{sT}, {WS_KV}
v_lshl_add_u32 v24, v0, 4, s{sT}
""")
        for j in range(7):
            a(f"s_movk_i32 s{sK}, {1024*j}\nbuffer_store_dwordx4 v[20:23], v24, s[{SWS}:{SWS+3}], s{sK} offen sc1")
        a(f"L_{tag}_i2:")

def init_flags(tag):
    a(f"""
s_waitcnt vmcnt(0)
s_cmp_eq_u32 s55, 0
s_cbranch_scc1 L_{tag}_f2
v_mov_b32 v20, 1
s_bitcmp1_b32 s55, 0
s_cbranch_scc0 L_{tag}_f1
s_lshl_b32 s{sT}, s{sBR}, 4
s_add_u32 s{sT}, s{sT}, s{sRB}
s_lshl_b32 s{sT}, s{sT}, 2
s_add_u32 s{sT}, s{sT}, 32
v_mov_b32 v24, s{sT}
buffer_store_dword v20, v24, s[{SDBG}:{SDBG+3}], 0 offen sc1
L_{tag}_f1:
s_bitcmp1_b32 s55, 1
s_cbranch_scc0 L_{tag}_f2
s_lshl_b32 s{sT}, s{sHG}, 2
v_mov_b32 v25, s{sT}
buffer_store_dword v20, v25, s[{SDBG}:{SDBG+3}], 0 offen sc1
L_{tag}_f2:
""")

def kstep(tiles, nxt_reads, first, waits):
    pend = list(first)
    for t, (m0_, m1_) in enumerate(tiles):
        if t in waits:
            a(waits[t])
        a(m0_)
        for x in pend: a(x)
        a(m1_)
        pend = []
        if nxt_reads:
            a(nxt_reads[t][0]); pend = [nxt_reads[t][1]]
    for x in pend: a(x)

def a_consumer():
    acc = lambda t, rt: 144 + (t * 2 + rt) * 4
    wf = lambda t: 88 + 4 * t
    xf = lambda buf, rt: 72 + buf * 8 + rt * 4
    R8, R2, R8b, R2b, aX = 1, 5, 6, 10, 11
    vOF, vOL, vEXW, vEXR = 13, 14, 15, 16
    MC, MP, MPF, PM = 56, 60, 64, 68
    a("L_AC:\ns_waitcnt lgkmcnt(0)")
    gap_touch("AC", 3)
    srds_rest()
    init_stores("AC", False)
    rd_lanes(R8, R2, 17, 18); x_lane(aX, aX + 1, 17)
    for j in range(5):
        a(f"v_add_u32 v{R8b+j}, {4*A_WSLOT}, v{R8+j}")
    a(f"""
s_lshl_b32 s{sT}, s{sWAVE}, 12
s_add_u32 s{sT}, s{sT}, {A_X0}
v_add_u32 v{aX}, s{sT}, v{aX}
v_add_u32 v{aX+1}, s{sT}, v{aX+1}
s_lshr_b32 s{sT}, s{sWAVE}, 1
s_lshl_b32 s{sT}, s{sT}, 3
v_and_b32 v17, 15, v0
v_xor_b32 v17, s{sT}, v17
v_lshrrev_b32 v18, 4, v0
v_lshlrev_b32 v18, 2, v18
v_xor_b32 v18, s{sT}, v18
v_sub_u32 v17, v17, v18
v_mov_b32 v19, {NEG}
s_and_b32 s{sT}, s{sWAVE}, 1
s_or_b32 s{sT}, s{sT}, s{sRB}
s_cmp_eq_u32 s{sT}, 0
s_cselect_b64 s[42:43], -1, 0
""")
    for r in range(4):
        a(f"""
v_subrev_u32 v18, {r}, v17
v_cmp_gt_u32 vcc, 8, v18
v_cndmask_b32 v{MC+r}, v19, 0, vcc
v_cmp_gt_i32 vcc, -8, v18
v_cndmask_b32 v{MP+r}, v19, 0, vcc
v_cndmask_b32 v{MPF+r}, v{MP+r}, v19, s[42:43]
v_cmp_lt_i32 vcc, -1, v18
v_mov_b32 v20, {'0xffff' if r % 2 == 0 else '0xffff0000'}
v_cndmask_b32 v20, 0, v20, vcc
""")
        a(f"v_mov_b32 v{PM + r//2}, v20" if r % 2 == 0 else f"v_or_b32 v{PM + r//2}, v{PM + r//2}, v20")
    o_store_addr(vOF, vOL, 17, True)
    a(f"""
s_lshr_b32 s{sT}, s{sWAVE}, 1
s_add_u32 s{sT}, s{sT}, 1
s_mul_i32 s{sT}, s{sT}, 5120
s_bitcmp1_b32 s{sWAVE}, 0
s_cselect_b32 s{sT3}, s{sT}, 0
v_lshlrev_b32 v17, 3, v0
v_add_u32 v17, {A_EX}, v17
v_add_u32 v{vEXW}, s{sT}, v17
v_add_u32 v{vEXR}, s{sT3}, v17
""")

    def wreads(ks, t):
        slot = ks % 5
        o = 0 if slot == 4 else slot * A_WSLOT
        r8, r2 = (R8b, R2b) if slot == 4 else (R8, R2)
        if t == 4 or t == 13:
            o += 12288 if t == 4 else 13312
            return [tr(wf(t), r2, o), tr(wf(t) + 2, r2, o + 256)]
        s, j = (0, t) if t < 4 else (1, t - 5) if t < 9 else (2, t - 9)
        return [tr(wf(t), r8 + j, o + 4096*s), tr(wf(t) + 2, r8 + j, o + 4096*s + 1024)]
    xread = lambda ks, rt: f"ds_read_b128 {vr(xf(ks % 2, rt),4)}, v{aX + ks % 2} offset:{(ks//2 % 3)*A_XSLOT + rt*2048}"

    if OPT.get("prepass"):
        a("s_barrier")
    stamp()
    a("s_barrier")
    stamp()
    a(xread(0, 0)); a(xread(0, 1))
    for t in range(14):
        for x in wreads(0, t): a(x)
    for ks in range(18):
        if OPT.get("body") and ks == OPT["body"] + 1:
            stamp()
            j_ = sST + 2*(nstamp[0]-1)
            a(f"s_waitcnt lgkmcnt(0)\ns_sub_u32 s{j_}, s{j_}, s100\ns_lshl_b32 s{j_}, s{j_}, 4\ns_add_u32 s{j_}, s{j_}, s100")
        if OPT.get("span") and ks == OPT["span"] + 4:
            a("s_barrier")
            stamp()
            j_ = sST + 2*(nstamp[0]-1)
            a(f"s_waitcnt lgkmcnt(0)\ns_sub_u32 s{j_}, s{j_}, s100\ns_lshl_b32 s{j_}, s{j_}, 2\ns_add_u32 s{j_}, s{j_}, s100")
        elif ks < 17:
            a("s_barrier")
        if ks and ks in (OPT.get("body"), OPT.get("span")):
            a("s_memtime s[100:101]")
        if OPT.get("fine") == 2 and ks in (2, 5, 8, 11, 14):
            stamp()
        if OPT.get("ret", 0) > 3 and ks == 1:
            base, off = {4: (38, 520*3456 + 160), 5: (36, 5*1152 + 1024), 6: (38, 200*3456 + 160), 7: (38, 520*3456 + 1152 + 160)}[OPT["ret"]]
            a(f"s_mul_i32 s40, s{sWAVE}, {3456 if base == 38 else 1152}\ns_add_u32 s40, s40, {off - 64}\ns_add_u32 s40, s40, s{base}\ns_addc_u32 s41, s{base+1}, 0")
        elif OPT.get("ret") and ks == 1:
            a(f"s_lshl_b32 s40, s2, 10\ns_lshl_b32 s41, s{sWAVE}, 8\ns_add_u32 s40, s40, s41\ns_add_u32 s40, s40, 0x580000\ns_add_u32 s40, s40, s{SWS}\ns_addc_u32 s41, s{SWS+1}, 0")
            if OPT["ret"] == 1:
                a("v_mov_b32 v28, 0\nglobal_load_dword v29, v28, s[40:41]")
        if OPT.get("ret") and ks == OPT.get("at", 7):
            if OPT["ret"] == 2:
                a("v_mov_b32 v28, 0\nglobal_load_dword v29, v28, s[40:41]\ns_waitcnt vmcnt(0)")
            a("s_waitcnt lgkmcnt(0)\ns_memtime s[100:101]\ns_waitcnt lgkmcnt(0)\ns_load_dword s38, s[40:41], 64\ns_waitcnt lgkmcnt(0)")
            stamp()
            j_ = sST + 2*(nstamp[0]-1)
            a(f"s_waitcnt lgkmcnt(0)\ns_sub_u32 s{j_}, s{j_}, s100\ns_lshl_b32 s{j_}, s{j_}, 3\ns_add_u32 s{j_}, s{j_}, s100")
        if OPT.get("dummy") == ks:
            if OPT.get("dpre"):
                a("s_getpc_b64 s[38:39]\nv_lshlrev_b32 v28, 7, v0\nv_min_u32 v28, 2304, v28\nglobal_load_dword v29, v28, s[38:39]\ns_waitcnt vmcnt(0)")
            a("s_waitcnt lgkmcnt(0)\ns_memtime s[100:101]\ns_memrealtime s[40:41]\ns_waitcnt lgkmcnt(0)")
            for n in range(128):
                kind = OPT.get("dkind", 0)
                if kind == 0:
                    a(mf(28 + 4 * (n % 4), 88, 72, "0"))
                elif kind == 1:
                    a(f"v_add3_u32 v{28 + n % 8}, v0, v0, v0\nv_add3_u32 v{36 + n % 8}, v0, v0, v0")
                else:
                    a(f"ds_read_b128 v[{28 + 4 * (n % 4)}:{31 + 4 * (n % 4)}], v{aX} offset:0")
            a("s_waitcnt lgkmcnt(0)")
            stamp()
            a("s_waitcnt lgkmcnt(0)")
            if not OPT.get("cyc"):
                a(f"s_sub_u32 s40, s{sST + 2*(nstamp[0]-1)}, s40\ns_add_u32 s{sST + 2*(nstamp[0]-1)}, s{sST}, s40")
        if ks == 3:
            init_flags("AC")
        tiles = []
        for t in range(14):
            c = lambda rt: acc(t, rt) if ks else "0"
            tiles.append([mf(acc(t, rt), wf(t), xf(ks % 2, rt), c(rt)) if t < 9 else mf(acc(t, rt), xf(ks % 2, rt), wf(t), c(rt)) for rt in range(2)])
        if ks < 17:
            nxt = [wreads(ks + 1, t) for t in range(14)]
            nxt[1] = [nxt[1][0], nxt[1][1] + "\n" + xread(ks + 1, 1)]
            kstep(tiles, nxt, [xread(ks + 1, 0)], {0: "s_waitcnt lgkmcnt(14)", 7: "s_waitcnt lgkmcnt(15)", 12: "s_waitcnt lgkmcnt(15)"})
        else:
            kstep(tiles, None, [], {0: "s_waitcnt lgkmcnt(14)", 7: "s_waitcnt lgkmcnt(0)"})
    stamp()
    KP = lambda j: 18 + 10 * j
    QT = lambda rt, h: 88 + 16 * rt + 4 * h
    VP = lambda t, j: 120 + 6 * t + 2 * j if t < 4 else 48 + 2 * j
    ONE = 72
    def pack_kv(rt):
        o = []
        for q in range(2):
            o += [cv(QT(rt, 3) + 2 + q, acc(4, rt) + 2*q), f"v_mov_b32 v{KP(1+rt) + 8 + q}, 0"]
        for tau in range(4):
            o += [cv(KP(1+rt) + 2*tau + q, acc(5+tau, rt) + 2*q) for q in range(2)]
        o += [f"v_permlane32_swap_b32 v{QT(rt,3) + 2 + q}, v{KP(1+rt) + 8 + q}" for q in range(2)]
        for t in range(5):
            o += [cv(VP(t, 1+rt) + q, acc(9+t, rt) + 2*q) for q in range(2)]
        return o
    def pack_q(rt):
        o = []
        for t in range(4):
            for q in range(2):
                d = QT(rt, t) + q
                o.append(cv(d, acc(t, rt) + 2*q))
                if (t, q) in SPLITS:
                    m = SPLITS[(t, q)]; lo = QT(rt, t-1) + 2 + q
                    o += [f"v_cndmask_b32 v{lo}, 0, v{d}, s[{m}:{m+1}]", f"v_xor_b32 v{d}, v{d}, v{lo}"]
        return o + [f"v_mov_b32 v{QT(rt,0) + 3}, 0"]
    weave([], pack_kv(1))
    a(f"s_bitcmp1_b32 s{sWAVE}, 0\ns_cbranch_scc1 L_AC_nodump")
    for j in range(5):
        a(f"ds_write_b64 v{vEXW}, {vr(KP(2) + 2*j, 2)} offset:{512*j}")
        a(f"ds_write_b64 v{vEXW}, {vr(VP(j, 2), 2)} offset:{512*(5+j)}")
    a("L_AC_nodump:")
    weave([], pack_kv(0) + pack_q(1))
    a("s_waitcnt lgkmcnt(0)\ns_barrier")
    for j in range(5):
        a(f"ds_read_b64 {vr(KP(0) + 2*j, 2)}, v{vEXR} offset:{512*j}")
        a(f"ds_read_b64 {vr(VP(j, 0), 2)}, v{vEXR} offset:{512*(5+j)}")
    SC = lambda rt, h: (224 if rt else 184) + 8 * h
    MX = lambda rt: [76 + 4 * rt + h for h in range(4)]
    PT = lambda rt, h: 144 + 16 * rt + 4 * h
    def qk(rt):
        o = []
        for h in range(4):
            o += [mf(SC(rt, h), KP(1+rt) + 2*h, QT(rt, h), MC), mf(SC(rt, h) + 4, KP(rt) + 2*h, QT(rt, h), MP if rt else MPF)]
        return o
    def rowmax(rt):
        o = []
        for h in range(4):
            s = SC(rt, h); m = MX(rt)[h]
            o += [f"v_max_f32 v{s+r}, v{s+r}, v{s+4+r}" for r in range(4)]
            o += [f"v_max3_f32 v{m}, v{s}, v{s+1}, v{s+2}", f"v_max_f32 v{m}, v{m}, v{s+3}"]
        return o
    def xmax(rt):
        m = MX(rt)
        return [f"v_permlane32_swap_b32 v{m[0]}, v{m[1]}", f"v_permlane32_swap_b32 v{m[2]}, v{m[3]}",
                f"v_max_f32 v{m[0]}, v{m[0]}, v{m[1]}", f"v_max_f32 v{m[2]}, v{m[2]}, v{m[3]}",
                f"v_permlane16_swap_b32 v{m[0]}, v{m[2]}", f"v_max_f32 v{m[0]}, v{m[0]}, v{m[2]}",
                f"v_mul_f32 v{m[0]}, s{sT2}, v{m[0]}", f"v_mov_b32 v{m[2]}, v{m[0]}",
                f"v_permlane16_swap_b32 v{m[0]}, v{m[2]}", f"v_mov_b32 v{m[1]}, v{m[0]}", f"v_mov_b32 v{m[3]}, v{m[2]}",
                f"v_permlane32_swap_b32 v{m[0]}, v{m[1]}", f"v_permlane32_swap_b32 v{m[2]}, v{m[3]}"]
    def probs(rt):
        o = []
        for h in range(4):
            s = SC(rt, h); p = PT(rt, h)
            o += [f"v_fma_f32 v{s+r}, v{s+r}, s{sT}, v{MX(rt)[h]}" for r in range(4)]
            o += [f"v_exp_f32 v{s+r}, v{s+r}" for r in range(4)]
            if h:
                o += split(rt, h - 1)
        return o + split(rt, 3)
    def split(rt, h):
        s = SC(rt, h); p = PT(rt, h); o = []
        for q in range(2):
            o += [cv(p + q, s + 2*q), f"v_and_b32 v{p+2+q}, v{p+q}, v{PM+q}", f"v_xor_b32 v{p+q}, v{p+q}, v{p+2+q}"]
        return o
    OB = lambda rt, t: (224 if rt else 184) + 4 * t
    OA = lambda rt, t: (224 if rt else 184) + 12 + 4 * t
    SM = lambda rt, h: 88 + 16 * rt + 4 * h
    OF = lambda rt: 18 + 10 * rt
    def pv(rt):
        o = [mf(SM(rt, h), ONE, PT(rt, h), "0") for h in range(4)]
        for t in range(5):
            if t < 4: o.append(mf(OB(rt, t), VP(t, rt), PT(rt, t), "0"))
            if t > 0: o.append(mf(OA(rt, t), VP(t, rt), PT(rt, t-1), "0"))
        return o
    def finish(rt):
        o = [f"v_rcp_f32 v{SM(rt,h)}, v{SM(rt,h)}" for h in range(4)]
        for t in range(5):
            for q in range(2):
                d = OF(rt) + 2*t + q
                srcs = []
                if t < 4: srcs.append((OB(rt, t) + 2*q, SM(rt, t), d))
                if t == 4: srcs.append((OA(rt, t) + 2*q, SM(rt, 3), d))
                if (t, q) in SPLITS: srcs.append((OA(rt, t) + 2*q, SM(rt, t-1), 17))
                for x, inv, dd in srcs:
                    o += [f"v_mul_f32 v{x}, v{x}, v{inv}", f"v_mul_f32 v{x+1}, v{x+1}, v{inv}", cv(dd, x)]
                if (t, q) in SPLITS:
                    m = SPLITS[(t, q)]
                    o.append(f"v_cndmask_b32 v{d}, v{d}, v17, s[{m}:{m+1}]")
        return o
    a(f"s_mov_b32 s{sT}, {f32(CSC)}\ns_mov_b32 s{sT2}, {f32(-CSC)}")
    weave(qk(1), pack_q(0) + [f"v_mov_b32 v{ONE+j}, 0x3f803f80" for j in range(4)])
    a("s_waitcnt lgkmcnt(0)")
    weave(qk(0), rowmax(1))
    x1, x0 = xmax(1), xmax(0)
    r0 = rowmax(0)
    for i, x in enumerate(x1):
        a(x)
        for y in r0[2*i:2*i+2]: a(y)
    p1 = probs(1)
    for i, x in enumerate(x0):
        a(x)
        for y in p1[2*i:2*i+2]: a(y)
    weave([], p1[2*len(x0):])
    weave(pv(1), probs(0))
    weave(pv(0), finish(1))
    o_store(OF(1), vOF, vOL, 1)
    weave([], finish(0))
    o_store(OF(0), vOF, vOL, 0)
    stamp()
    a("s_branch L_P2")

def phi(r, n, t):
    o = [f"v_pk_fma_f32 {vr(t+j,2)}, {vr(r+j,2)}, s[56:57], v[14:15]" for j in range(0, n, 2)]
    for j in range(n):
        o += [f"v_exp_f32 v{t+j}, v{t+j} clamp", f"v_max_f32 v{r+j}, s{sT2}, v{r+j}"]
    return o + [f"v_pk_add_f32 {vr(r+j,2)}, {vr(r+j,2)}, {vr(t+j,2)}" for j in range(0, n, 2)]

def b_consumer():
    acc = lambda t, rt: 184 + (t * 2 + rt) * 4
    wf = lambda t: 148 + 4 * t
    xf = lambda ks, rt: 52 + ks * 8 + rt * 4 if ks < 12 else 36 + (ks % 2) * 8 + rt * 4
    R8, R2, aX = 1, 5, 6
    vOF, vOL, vEX = 8, 9, 10
    CK, CS = 28, 32
    a("L_BC:\ns_waitcnt lgkmcnt(0)")
    gap_touch("BC", 2)
    srds_rest()
    init_stores("BC", True)
    rd_lanes(R8, R2, 17, 18); x_lane(aX, aX + 1, 17)
    a(f"""
s_lshl_b32 s{sT}, s{sWAVE}, 12
s_add_u32 s{sT}, s{sT}, {B_X0}
v_add_u32 v{aX}, s{sT}, v{aX}
v_add_u32 v{aX+1}, s{sT}, v{aX+1}
v_and_b32 v17, 15, v0
v_cmp_gt_u32 vcc, 8, v17
v_mov_b32 v18, {EPS}
s_mov_b64 s[42:43], vcc
s_mul_i32 s{sT}, s{sWAVE}, 10240
s_add_u32 s{sT}, s{sT}, {B_EX}
v_lshl_add_u32 v{vEX}, v0, 4, s{sT}
v_mov_b32 v14, {f32(-1e-6*LOG2E)}
v_mov_b32 v15, v14
s_mov_b32 s56, {f32(LOG2E)}
s_mov_b32 s57, s56
""")
    for r in range(4):
        a(f"v_mov_b32 v{CK+r}, v18\nv_cndmask_b32 v{CS+r}, 0, v18, vcc")
    o_store_addr(vOF, vOL, 17, False)

    def wreads(ks, t):
        o = (ks % 5) * B_KVSLOT
        if t == 4:
            return [tr(wf(t), R2, o + 8192), tr(wf(t) + 2, R2, o + 8192 + 256)]
        s, j = (0, t) if t < 4 else (1, t - 5)
        return [tr(wf(t), R8 + j, o + 4096*s), tr(wf(t) + 2, R8 + j, o + 4096*s + 1024)]
    xread = lambda ks, rt: f"ds_read_b128 {vr(xf(ks, rt),4)}, v{aX + ks % 2} offset:{(ks//2 % 3)*B_XSLOT + rt*2048}"

    stamp()
    a("s_barrier")
    stamp()
    a(xread(0, 0)); a(xread(0, 1))
    for t in range(9):
        for x in wreads(0, t): a(x)
    for ks in range(18):
        if ks < 17:
            a("s_barrier")
        if ks == 3:
            init_flags("BC")
        tiles = [[mf(acc(t, rt), xf(ks, rt), wf(t), acc(t, rt) if ks else (CK if t < 4 else CS if t == 4 else "0")) for rt in range(2)] for t in range(9)]
        if ks < 17:
            nxt = [wreads(ks + 1, t) for t in range(9)]
            nxt[1] = [nxt[1][0], nxt[1][1] + "\n" + xread(ks + 1, 1)]
            kstep(tiles, nxt, [xread(ks + 1, 0)], {0: "s_waitcnt lgkmcnt(12)", 3: "s_waitcnt lgkmcnt(13)", 6: "s_waitcnt lgkmcnt(13)", 8: "s_waitcnt lgkmcnt(11)"})
        else:
            kstep(tiles, None, [], {0: "s_waitcnt lgkmcnt(12)", 3: "s_waitcnt lgkmcnt(0)\ns_barrier"})
    stamp()
    a(f"s_mov_b32 s{sT2}, {EPS}\nv_mov_b32 v16, 0x3f803f80")
    wr = lambda reg, slot: f"ds_write_b128 v{vEX}, {vr(reg,4)} offset:{1024*slot}"
    pk = lambda d, s: [cv(d + j, s + 2*j) for j in range(4)]
    weave([], pk(156, acc(4, 0)) + [f"v_cndmask_b32 v{156+j}, v{156+j}, v16, s[42:43]" for j in range(4)] + [wr(156, 9)])
    xq = lambda ks, rt: 168 + (ks - 12) * 8 + rt * 4 if ks in (12, 13) else acc(2 * (ks - 14) + rt, 1) if ks in (14, 15) else xf(ks, rt)
    reread = lambda ks, rt: f"ds_read_b128 {vr(xq(ks, rt),4)}, v{aX + ks % 2} offset:{(ks//2 % 3)*B_XSLOT + rt*2048}"
    weave([], [reread(ks, rt) for ks in (12, 13) for rt in range(2)])
    for tau in range(5):
        o = phi(acc(tau, 0), 8, 148)
        if tau < 4:
            o = pk(acc(5+tau, 0), acc(5+tau, 0)) + o[:8] + [wr(acc(5+tau, 0), 5 + tau)] + o[8:]
        weave([], o + pk(acc(tau, 0), acc(tau, 0)) + [wr(acc(tau, 0), tau)])
        if tau < 4:
            a(reread(14 + tau // 2, tau % 2))
    for j in range(5):
        a(f"v_add_u32 v{R8+j}, {B_WQ0}, v{R8+j}")
    a("s_waitcnt lgkmcnt(0)\ns_barrier")
    stamp()
    QA = lambda t, rt: 216 + (t * 2 + rt) * 4
    qf = lambda t: 148 + 4 * t
    qbase = lambda p: B_WQ0 if p < 4 else 0 if p < 7 else 15360
    def qreads(p, t):
        o = wq_slot(p) - qbase(p)
        if t == 4:
            return [tr(qf(t), R2, o + 4096), tr(qf(t) + 2, R2, o + 4096 + 256)]
        return [tr(qf(t), R8 + t, o), tr(qf(t) + 2, R8 + t, o + 1024)]
    for t in range(5):
        for x in qreads(0, t): a(x)
    for p in range(18):
        ks = QORD[p]
        if p == 7 or (p == 13 and OPT.get('wob', 0)):
            a("s_barrier")
        tiles = [[mf(QA(t, rt), qf(t), xq(ks, rt), QA(t, rt) if p else CK) for rt in range(2)] for t in range(5)]
        if p < 17:
            nxt = [qreads(p + 1, t) for t in range(5)]
            if qbase(p + 1) != qbase(p):
                d = (qbase(p + 1) - qbase(p)) & 0xffffffff
                for t in range(5):
                    nxt[t][0] = f"v_add_u32 v{R8+t}, {d}, v{R8+t}\n" + nxt[t][0]
            kstep(tiles, nxt, [], {t: f"s_waitcnt lgkmcnt({7 if t else 8})" for t in range(5)})
        else:
            kstep(tiles, None, [], {t: f"s_waitcnt lgkmcnt({8 - 2*t})" for t in range(5)})
    stamp()
    PQ = lambda rt: 36 + 10 * rt
    KO = 84
    tup = {0: KO, 1: KO + 4, 2: KO + 12, 3: KO + 20, 4: KO + 28}
    ZO = KO + 32
    weave([], [f"v_mov_b32 v{r}, 0" for r in (tup[1]+4, tup[1]+5, tup[2]+4, tup[2]+5, tup[3]+4, tup[3]+5, ZO+8, ZO+9)])
    a(f"v_lshlrev_b32 v16, 3, v0\nv_add_u32 v16, {B_KVOP}, v16")
    for t in range(5):
        weave([], phi(QA(t, 0), 8, 148) + [cv(PQ(rt) + 2*t + q, QA(t, rt) + 2*q) for rt in range(2) for q in range(2)])
    stamp()
    a("s_barrier")
    stamp()
    tid = lambda tau, taup: {-1: tau - 1, 0: 4 + tau, 1: 9 + tau}[taup - tau]
    rd = lambda d, slot: a(f"ds_read_b64 {vr(d,2)}, v16 offset:{512*slot}")
    for j, d in enumerate((ZO, ZO + 2, ZO + 4, ZO + 6, ZO + 10)):
        rd(d, 13 + j)
    rd(tup[0], tid(0, 0)); rd(tup[0] + 2, tid(1, 0))
    for t in (1, 2, 3):
        rd(tup[t], tid(t-1, t)); rd(tup[t] + 2, tid(t, t)); rd(tup[t] + 6, tid(t+1, t))
    rd(tup[4], tid(3, 4)); rd(tup[4] + 2, tid(4, 4))
    DN = lambda rt: 148 + 4 * rt
    NM = lambda rt, t: 184 + 20 * rt + 4 * t
    OF = lambda rt: 156 + 10 * rt
    a("s_waitcnt lgkmcnt(13)")
    for k, (zo, po) in enumerate(((0, 0), (4, 4), (8, 6))):
        for rt in range(2):
            a(mf(DN(rt), ZO + zo, PQ(rt) + po, DN(rt) if k else CK))
    a("s_waitcnt lgkmcnt(0)")
    def num(rt):
        o = [mf(NM(rt, t), tup[t], PQ(rt) + 2*(t-1), "0") for t in (1, 2, 3)]
        o += [mf(NM(rt, 0), tup[0], PQ(rt), "0"), mf(NM(rt, 4), tup[4], PQ(rt) + 6, "0")]
        return o + [mf(NM(rt, t), tup[t] + 4, PQ(rt) + 2*t, NM(rt, t)) for t in (1, 2, 3)]
    def fin(rt, packed):
        o = []
        for t in (0, 4, 1, 2, 3):
            for q in range(2):
                inv = DN(rt) + min(t, 3)
                if (t, q) in SPLITS:
                    m = SPLITS[(t, q)]
                    o.append(f"v_cndmask_b32 v17, v{DN(rt)+t}, v{DN(rt)+t-1}, s[{m}:{m+1}]")
                    inv = 17
                n = NM(rt, t) + 2*q
                o += [f"v_mul_f32 v{n}, v{n}, v{inv}", f"v_mul_f32 v{n+1}, v{n+1}, v{inv}", cv(OF(rt) + 2*t + q, n)]
        return o
    weave(num(0), [], 0)
    weave(num(1), [f"v_rcp_f32 v{DN(rt)+h}, v{DN(rt)+h}" for rt in range(2) for h in range(4)], 1)
    for rt in range(2):
        weave([], fin(rt, True))
        o_store(OF(rt), vOF, vOL, rt)
    stamp()

def kv_index(wreg, VS, VG, VZ):
    a(f"s_cmp_eq_u32 s{wreg}, 0\ns_cselect_b32 s58, 4, s{wreg}")
    for slot in range(3):
        if slot == 0:
            a(f"s_lshl_b32 s{sT}, s58, 4\ns_sub_u32 s{sT2}, s{sT}, 16\ns_mov_b64 s[46:47], 0")
        elif slot == 1:
            a(f"s_lshl_b32 s{sT}, s{wreg}, 4\ns_mov_b32 s{sT2}, s{sT}")
        else:
            a(f"s_add_u32 s{sT2}, s{sT}, 16\ns_cmp_eq_u32 s{wreg}, 3\ns_cselect_b32 s{sT2}, 56, s{sT2}\ns_cselect_b64 s[46:47], s[44:45], 0")
        kv_tile(VS and VS + 2*slot, VG and VG + 2*slot, False)
    if VZ:
        kv_z(VZ)

def kv_tile(VS, VG, last):
    a(f"v_add_u32 v3, s{sT2}, v1")
    head_of(4, 3)
    a(f"v_mul_u32_u24 v5, 18, v4\nv_sub_u32 v3, v3, v5\nv_cndmask_b32 v4, v4, 7, s[46:47]")
    if last:
        a("v_cmp_eq_u32 vcc, 0, v1\nv_cndmask_b32 v4, v4, 3, vcc\nv_cndmask_b32 v3, v3, 18, vcc")
    for q in range(2):
        a(f"v_add3_u32 v5, v2, s{sT}, {2*q}")
        head_of(6, 5)
        a("v_cmp_eq_u32 vcc, v4, v6\nv_mad_u32_u24 v5, v5, 19, v3\nv_lshlrev_b32 v5, 2, v5")
        if VS:
            a(f"v_add_u32 v6, {B_STG}, v5\nv_cndmask_b32 v{VS+q}, v8, v6, vcc")
        if VG:
            a(f"v_add_u32 v6, s{sM}, v5\nv_cndmask_b32 v{VG+q}, v9, v6, vcc")

def kv_z(VZ):
    a("v_and_b32 v3, 3, v0")
    for q in range(2):
        a(f"v_add3_u32 v5, v2, s{sT}, {2*q}")
        head_of(6, 5)
        a(f"v_cmp_eq_u32 vcc, v3, v6\nv_mul_u32_u24 v5, 76, v5\nv_add3_u32 v5, v5, s{sM}, 64\nv_add_u32 v5, 8, v5\nv_cndmask_b32 v{VZ+q}, v9, v5, vcc")

def b_loader(kind):
    a(f"L_B{kind}1:")
    m = M0(42)
    issue = (lambda c: w_issue("B", c, m)) if kind == "W" else (lambda c: x_issue("B", c, m))
    pre = 1 if OPT.get("early") and kind == "W" else 2
    cnt = {c: issue(c) for c in range(1, pre + 1)}
    stamp()
    mark = len(a.lines)
    VS, VG, vZS, vEA, vE0, vEL, vLA, vGA, vLW = 72, 80, 98, 99, 100, 101, 102, 103, 105
    if kind == "W":
        a(f"v_subrev_u32 v{VD+5}, 1152, v{VD}\nv_subrev_u32 v{VD+6}, 1152, v{VD+1}")
    srds_rest()
    if kind == "W":
        wo_setup(False)
    else:
        sync_setup()
    a(f"""
s_add_u32 s55, s{sV}, 2
s_mul_i32 s{sM}, s{sHG}, {KV_ST}
s_add_u32 s{sM}, s{sM}, {WS_KV}
v_and_b32 v1, 15, v0
v_lshrrev_b32 v2, 4, v0
v_lshlrev_b32 v2, 2, v2
v_cmp_gt_u32 s[44:45], 8, v1
v_lshlrev_b32 v8, 2, v0
v_add_u32 v8, {B_DUMP}, v8
v_mov_b32 v9, {OOB}
""")
    own = sV if kind == "X" else 55
    if kind == "X":
        kv_index(55, None, VG, VG + 6)
        a(f"s_movk_i32 s{sT}, 64")
        kv_z(10)
    kv_index(own, VS, VG + 8 if kind == "X" else None, VG + 14 if kind == "X" else None)
    a(f"""
v_add_u32 v5, s{sT}, v0
v_mul_u32_u24 v5, 76, v5
v_add_u32 v5, {B_STG + 72}, v5
v_cndmask_b32 v{vZS}, v8, v5, s[{sG0}:{sG0+1}]
v_lshlrev_b32 v{vEL}, 4, v0
v_add_u32 v{vEL}, {B_EX}, v{vEL}
s_lshl_b32 s{sT}, s{own}, 10
v_add_u32 v{vEA}, s{sT}, v{vEL}
s_lshl_b32 s{sT}, s58, 10
v_add_u32 v{vE0}, s{sT}, v{vEL}
""")
    if kind == "X":
        a(f"s_movk_i32 s{sT}, 64\ns_movk_i32 s{sT2}, 56\ns_mov_b64 s[46:47], s[44:45]")
        kv_tile(VS + 6, VG + 16, True)
        a(f"s_cmp_eq_u32 s{sV}, 0\ns_cselect_b64 s[46:47], -1, 0")
        for q in range(2):
            a(f"v_cndmask_b32 v{VS+6+q}, v8, v{VS+6+q}, s[46:47]\nv_cndmask_b32 v{VG+16+q}, v{10+q}, v{VG+16+q}, s[46:47]")
        a(f"""
v_lshlrev_b32 v5, 3, v0
v_add_u32 v5, {B_KVOP}, v5
s_lshl_b32 s{sT2}, s58, 9
s_sub_u32 s{sT2}, s{sT2}, 512
v_add_u32 v{vLW+2}, s{sT2}, v5
s_lshl_b32 s{sT2}, s{sV}, 9
v_add_u32 v{vLW+1}, s{sT2}, v5
v_add_u32 v{vLW}, 1024, v{vLW+1}
s_mul_i32 s{sT2}, s{sV}, {9*512}
v_add_u32 v{vLW+3}, s{sT2}, v5
s_mul_i32 s{sT}, s{sV}, 2816
v_lshl_add_u32 v{vLA}, v0, 2, s{sT}
v_add_u32 v{vGA}, s{sM}, v{vLA}
v_cmp_gt_u32 vcc, {5472 - 2560}, v{vLA}
v_cndmask_b32 v{vGA+1}, v9, v{vGA}, vcc
v_add_u32 v{vLA}, {B_STG}, v{vLA}
v_mov_b32 v4, 0
""")
    a(f"v_mov_b32 v10, {B_LCNT}\nv_mov_b32 v11, 1")
    if kind == "X":
        a("ds_write_b32 v10, v4\ns_waitcnt lgkmcnt(0)")
    setup = a.lines[mark:]
    del a.lines[mark:]
    per = -(-len(setup) // 9)
    a(f"s_waitcnt vmcnt({sum(cnt.values())})\ns_barrier")
    stamp()
    extra = 0
    for i in range(-1, 16):
        if i == -1 and pre == 1:
            cnt[2] = issue(2)
        if i + 4 <= 17:
            cnt[i+4] = issue(i + 4)
        if 0 <= i < 9:
            a("s_cmp_eq_u32 s59, 1")
            a.lines += setup[per*i:per*(i+1)]
            a("s_cselect_b32 s59, 1, 0")
        if i == 10 and kind == "X":
            flag_load(sFO, 98); flag_load(sFK, 99)
        if kind == "W" and i >= 14:
            extra += wq_issue(2*(i-14), m) + wq_issue(2*(i-14) + 1, m)
        left = sum(cnt.get(c, 0) for c in range(i + 3, min(i + 4, 17) + 1)) + extra
        a(f"s_waitcnt vmcnt({left})\ns_barrier")
    a("s_barrier")
    if kind == "W":
        for p in (4, 5, 6, 7, 13, 14, 15, 16, 17):
            wq_issue(p, m)
        a("s_waitcnt vmcnt(15)")
    else:
        flag_check(sFK, 99, "L_BX_fk")
    stamp()
    a("s_barrier")
    stamp()
    if kind == "W":
        for p in range(8, 13):
            wq_issue(p, m)
    KT = lambda s: 40 + 4 * s
    RD = lambda src, j: 112 + 28 * src + 4 * j
    srcs = ((vEA, 0), (vE0, 0), (vE0, 4096), (vEA, 5120), (vEA, 6144), (vEL, 9216), (vEL, 4096))
    prods = ((1, 2), (0, 3), (0, 4), (6, 5), (5, 0))
    if kind == "W":
        srcs = ((vEA, 0), None, (vE0, 4096), (vEA, 5120), (vEA, 6144), (vEL, 9216))
        prods = ((0, 2), (0, 3), (0, 4), None, (5, 0))
    nr = sum(x is not None for x in srcs)
    for src in range(4):
        for j, x in enumerate(srcs):
            if x: a(f"ds_read_b128 {vr(RD(src, j),4)}, v{x[0]} offset:{src*10240 + x[1]}")
    for src in range(4):
        a(f"s_waitcnt lgkmcnt({min(15, nr*(3-src))})")
        for s_, x in enumerate(prods):
            if x: a(mf(KT(s_), RD(src, x[0]), RD(src, x[1]), KT(s_) if src else "0"))
    for s_ in range(4 if kind == "X" else 3):
        for r in range(4):
            a(f"ds_write_b32 v{VS + 2*s_ + r//2}, v{KT(s_)+r} offset:{76*(r%2)}")
    a(f"ds_write_b32 v{vZS}, v{KT(4)}")
    a("s_waitcnt lgkmcnt(0)\ns_mov_b64 exec, 1\nds_add_u32 v10, v11\ns_mov_b64 exec, -1")
    stamp()
    b1, b2, b3 = {0: ((0, 1, 2, 3, 4, 5), (), (6, 7, 8)), 1: ((0, 1, 2), (3, 4, 5, 6, 7, 8), ()), 2: ((0, 1, 2), (3, 4, 5), (6, 7, 8))}[OPT.get("wob", 0)]
    if kind == "W":
        a("s_waitcnt vmcnt(0)\ns_barrier")
        for g in b1: wo_pair(g)
        if b2:
            a("s_barrier")
            for g in b2: wo_pair(g)
        stamp()
        a("s_barrier")
        loader_tail("BW", b3)
        return
    a(f"""
s_mov_b32 s{sT3}, 0x400000
L_BX_st:
ds_read_b32 v2, v10
s_waitcnt lgkmcnt(0)
v_readfirstlane_b32 s{sT}, v2
s_sub_u32 s{sT3}, s{sT3}, 1
s_cbranch_scc1 L_BX_st_x
s_cmp_ge_u32 s{sT}, 4
s_cbranch_scc0 L_BX_st
L_BX_st_x:
""")
    for n in range(11):
        a(f"ds_read_b32 v{40+n}, v{vLA} offset:{256*n}")
    for n in range(11):
        a(f"s_waitcnt lgkmcnt({10-n})")
        a(f"buffer_atomic_add_f32 v{40+n}, v{vGA + (n == 10)}, s[{SWS}:{SWS+3}], 0 offen offset:{256*n}")
    stamp()
    a("s_barrier")
    if b2:
        a("s_barrier")
    a("s_waitcnt vmcnt(0)")
    stamp()
    arrive_wait(sKC, 32, "L_BX_kc")
    stamp()
    for s_ in range(9):
        for r in range(4):
            a(f"buffer_load_dword v{112+4*s_+r}, v{VG + 2*s_ + r//2}, s[{SWS}:{SWS+3}], 0 offen offset:{76*(r%2)} sc1")
    dst = ((vLW, -1), (vLW, 4), (vLW, 9), (vLW, 13), (vLW + 2, 0), (vLW + 1, 4), (vLW + 1, 9), (vLW + 1, 13), (vLW + 3, 8))
    a(f"v_subrev_u32 v11, 512, v{vLW}")
    for s_, (ad, off) in enumerate(dst):
        a(f"s_waitcnt vmcnt({4*(8-s_)})")
        a(cv(40 + 2*s_, 112 + 4*s_)); a(cv(41 + 2*s_, 114 + 4*s_))
        a(f"ds_write_b64 v{11 if off < 0 else ad}, {vr(40+2*s_,2)} offset:{512*max(off, 0)}")
    a("s_waitcnt lgkmcnt(0)")
    stamp()
    a("s_barrier")
    loader_tail("BX")

def p2_consumer():
    OFR = lambda ks, rt: 112 + ks * 8 + rt * 4
    ACC = lambda t, rt: 72 + (t * 2 + rt) * 4
    wf = lambda t: 52 + 4 * t
    R8, R2, vO, vTW, vTR, VS = 1, 5, 6, 7, 8, 9
    AH = OPT["ahead"]
    a("L_P2:")
    nstamp[0] = 10
    rd_lanes(R8, R2, 17, 18)
    for j in range(5):
        a(f"v_add_u32 v{R8+j}, {R1}, v{R8+j}")
    a(f"""
v_lshl_add_u32 v{vO}, v0, 4, s58
s_mul_i32 s{sT}, s{sWAVE}, 4608
s_add_u32 s{sT}, s{sT}, {P_TR}
v_and_b32 v17, 15, v0
v_mul_u32_u24 v17, 144, v17
v_lshrrev_b32 v18, 4, v0
v_lshl_add_u32 v17, v18, 3, v17
v_add_u32 v{vTW}, s{sT}, v17
v_lshl_add_u32 v{vTR}, v0, 4, s{sT}
s_lshr_b32 s{sT}, s{sWAVE}, 1
s_and_b32 s{sT2}, s{sWAVE}, 1
s_lshl_b32 s{sT2}, s{sT2}, 5
s_lshl_b32 s{sT3}, s{sWAVE}, 5
s_cmp_eq_u32 s{sBR}, 0
s_cselect_b32 s42, s{sT}, 0
s_cselect_b32 s43, s{sT2}, s{sT3}
s_cselect_b32 s55, 1, 0
s_lshl_b32 s56, s42, 3
s_lshl_b32 s{sT}, s{sRB}, 7
s_add_u32 s42, s42, s{sT}
s_mul_i32 s{sT}, s{sBR}, 1152
s_mul_i32 s{sT2}, s{sHG}, 144
s_add_u32 s57, s{sT}, s{sT2}
""")
    for n in range(5):
        a(f"""
v_add_u32 v17, {64*n}, v0
v_mul_u32_u24 v18, 7282, v17
v_lshrrev_b32 v18, 16, v18
v_mul_u32_u24 v19, 9, v18
v_sub_u32 v19, v17, v19
v_add_u32 v18, s43, v18
v_xor_b32 v18, s56, v18
v_lshlrev_b32 v18, s55, v18
v_add_u32 v18, s42, v18
v_mul_u32_u24 v18, 2304, v18
v_lshl_add_u32 v18, v19, 4, v18
v_add_u32 v{VS+n}, s57, v18
""")
    a(f"v_mov_b32 v17, {OOB}\nv_cndmask_b32 v{VS+4}, v17, v{VS+4}, s[{sG01}:{sG01+1}]")
    a(f"v_add_u32 v14, 18432, v{vO}")
    SO = [8, 9, 10, 11, 12, 13, 14, 15, 36]
    rho(37)
    a(f"s_movk_i32 s{SO[0]}, 16384")
    for j in range(1, 9):
        a(f"s_add_u32 s{sT}, s37, {2*j-2}\ns_and_b32 s{sT}, s{sT}, 15\ns_lshl_b32 s{SO[j]}, s{sT}, 10")
    a("s_waitcnt vmcnt(0)")
    stamp()
    a("s_barrier\ns_barrier")
    stamp()
    def oload(ks, rt):
        return f"buffer_load_dwordx4 {vr(OFR(ks, rt),4)}, v{14 if rt else vO}, s[{SWS}:{SWS+3}], s{SO[ks//2]} offen offset:{1024*(ks%2)} sc1"
    base = lambda ks: R1 if ks < 3 else 0 if 9 <= ks < 12 else R2_
    R2_ = 43008
    def wreads(ks, t):
        o = WO[ks] - base(ks)
        if t == 4:
            return [tr(wf(t), R2, o + 4096), tr(wf(t) + 2, R2, o + 4096 + 256)]
        return [tr(wf(t), R8 + t, o), tr(wf(t) + 2, R8 + t, o + 1024)]
    for ks in range(AH):
        a(oload(ks, 0)); a(oload(ks, 1))
    for t in range(5):
        for x in wreads(0, t): a(x)
    for ks in range(18):
        tiles = [[mf(ACC(t, rt), wf(t), OFR(ks, rt), ACC(t, rt) if ks else "0") for rt in range(2)] for t in range(5)]
        w0 = f"s_waitcnt vmcnt({2*min(AH - 1, 17 - ks)}) lgkmcnt(8)"
        if ks < 17:
            nxt = [wreads(ks + 1, t) for t in range(5)]
            if base(ks + 1) != base(ks):
                d = (base(ks + 1) - base(ks)) & 0xffffffff
                for t in range(5):
                    nxt[t][0] = f"v_add_u32 v{R8+t}, {d}, v{R8+t}\n" + nxt[t][0]
            first = []
            if ks + AH < 18:
                first = [oload(ks + AH, 0)]
                nxt[1][1] += "\n" + oload(ks + AH, 1)
            kstep(tiles, nxt, first, {t: "s_waitcnt lgkmcnt(7)" if t else w0 for t in range(5)})
        else:
            kstep(tiles, None, [], {t: f"s_waitcnt lgkmcnt({8 - 2*t})" if t else w0 for t in range(5)})
        if ks == 0:
            stamp()
    stamp()
    for rt in range(2):
        for t in range(5):
            d = 20 + 2*(rt*5 + t)
            a(cv(d, ACC(t, rt))); a(cv(d + 1, ACC(t, rt) + 2))
            if t == 4:
                a(f"s_mov_b64 exec, s[{sG01}:{sG01+1}]")
            a(f"ds_write_b64 v{vTW}, {vr(d,2)} offset:{rt*2304 + 32*t}")
            if t == 4:
                a("s_mov_b64 exec, -1")
    a("s_waitcnt lgkmcnt(0)")
    for n in range(5):
        a(f"ds_read_b128 {vr(112+4*n,4)}, v{vTR} offset:{1024*n}")
    for n in range(5):
        a(f"s_waitcnt lgkmcnt({4-n})")
        a(f"buffer_store_dwordx4 {vr(112+4*n,4)}, v{VS+n}, s[{SOUT}:{SOUT+3}], 0 offen")
    stamp()
    stamps_out(0)
    a("s_endpgm")

HEADER = open("concat_heads__sliding_local_dilated__linear_attn_block__prompt.s.ref").read().split("; Override")[0]
out = HEADER + "; @launch grid=(256,1,1) block=(512,1,1) lds=163840\n"
a('.amdgcn_target "amdgcn-amd-amdhsa--gfx950"\n.text')
a(kernel_head(KN))
if OPT["stamps"]:
    for i in range(16):
        a(f"s_mov_b32 s{sST+2*i}, 0")
stamp()
a(f"""
s_cmp_ge_u32 s2, 256
s_cbranch_scc1 L_end
s_and_b32 s{sT}, s2, 7
s_lshr_b32 s{sBR}, s{sT}, 2
{'s_xor_b32 s6, s6, 1' if OPT.get('swap') else ''}
s_mul_i32 s{sT2}, s{sBR}, 24
s_add_u32 s0, s0, s{sT2}
s_addc_u32 s1, s1, 0
s_load_dwordx4 s[36:39], s[0:1], 0
s_load_dwordx2 s[40:41], s[0:1], 16
s_sub_u32 s0, s0, s{sT2}
s_subb_u32 s1, s1, 0
s_load_dwordx4 s[44:47], s[0:1], 48
s_load_dwordx2 s[48:49], s[0:1], 64
v_lshrrev_b32 v1, 6, v0
v_and_b32 v0, 63, v0
v_readfirstlane_b32 s{sWAVE}, v1
s_lshr_b32 s{sT2}, s2, 3
""")
m84 = f"""
s_and_b32 s{sHG}, s{sT2}, 3
s_and_b32 s{sT3}, s{sT}, 1
s_lshl_b32 s{sT3}, s{sT3}, 2
s_add_u32 s{sHG}, s{sHG}, s{sT3}
s_lshr_b32 s{sRB}, s{sT2}, 2
s_and_b32 s{sT3}, s{sT}, 2
s_lshl_b32 s{sT3}, s{sT3}, 2
s_add_u32 s{sRB}, s{sRB}, s{sT3}
"""
m48 = f"""
s_and_b32 s{sHG}, s{sT2}, 7
s_lshr_b32 s{sRB}, s{sT2}, 3
s_and_b32 s{sT3}, s{sT}, 3
s_lshl_b32 s{sT3}, s{sT3}, 2
s_add_u32 s{sRB}, s{sRB}, s{sT3}
"""
if OPT["mapping"] == 84:
    a(m84)
elif OPT["mapping"] == 48:
    a(m48)
else:
    a(m48 + f"s_cmp_eq_u32 s{sBR}, {0 if OPT['mapping'] == 8448 else 1}\ns_cbranch_scc0 L_map" + m84 + "L_map:")
rot = ""
if OPT.get("rot") == 2:
    rot = f"""s_lshr_b32 s90, s2, 1
s_xor_b32 s90, s90, s2
s_and_b32 s90, s90, 1
s_mul_i32 s91, s90, {OPT.get("rotby", 5)*128}
s_mul_i32 s90, s90, {OPT.get("rotby", 5)*64*3456}"""
elif OPT.get("rot") == 3:
    rot = f"""s_lshr_b32 s90, s2, 1
s_xor_b32 s90, s90, s2
s_and_b32 s90, s90, 1
s_mul_i32 s90, s90, 5
s_add_u32 s91, s{sRB}, s{sHG}
s_and_b32 s91, s91, 3
s_add_u32 s90, s90, s91
s_lshl_b32 s91, s90, 7
s_mul_i32 s90, s90, {64*3456}"""
elif OPT.get("rot") == 7:
    rot = f"""s_and_b32 s90, s{sHG}, 3
s_and_b32 s91, s{sRB}, 7
s_lshl1_add_u32 s90, s90, s91
s_cmp_ge_u32 s90, 9
s_cselect_b32 s91, 9, 0
s_sub_u32 s90, s90, s91
s_lshl_b32 s91, s90, 7
s_mul_i32 s90, s90, {64*3456}"""
elif OPT.get("rot") in (4, 5, 6):
    tab = {4: 0x75207520, 5: 0x63006300, 6: 0x86427531}[OPT["rot"]]
    rot = f"""s_add_u32 s90, s{sRB}, s{sHG}
s_and_b32 s90, s90, 7
s_lshl_b32 s90, s90, 2
s_lshr_b32 s90, {hex(OPT.get("tab", tab))}, s90
s_and_b32 s90, s90, 15
s_lshl_b32 s91, s90, 7
s_mul_i32 s90, s90, {64*3456}"""
elif OPT.get("rot"):
    few, many = (sRB, sHG) if OPT["mapping"] == 48 else (sHG, sRB)
    rot = f"""s_and_b32 s90, s{few}, 3
s_lshl_b32 s90, s90, 2
s_lshr_b32 s90, 0x7520, s90
s_and_b32 s90, s90, 15
s_and_b32 s91, s{many}, 7
s_add_u32 s90, s90, s91
s_cmp_ge_u32 s90, 9
s_cselect_b32 s91, 9, 0
s_sub_u32 s90, s90, s91
s_lshl_b32 s91, s90, 7
s_mul_i32 s90, s90, {64*3456}"""
a(f"""
s_mov_b32 s{sG0}, 0xffff
s_mov_b32 s{sG0+1}, 0
s_mov_b32 s{sG01}, -1
s_mov_b32 s{sG01+1}, 0
s_and_b32 s{sV}, s{sWAVE}, 1
s_mul_i32 s{sM}, s{sHG}, 144
s_cmp_lt_u32 s{sWAVE}, 4
s_cbranch_scc1 L_cons
s_setprio {OPT.get("prio", 2)}
s_mov_b32 s59, 0
{rot}
s_cmp_lt_u32 s{sWAVE}, 6
s_cbranch_scc1 L_wld
s_cmp_eq_u32 s{sBR}, 0
s_cbranch_scc1 L_AX0
s_branch L_BX0
L_wld:
s_cmp_eq_u32 s{sBR}, 0
s_cbranch_scc1 L_AW0
s_branch L_BW0
L_cons:
s_getpc_b64 s[42:43]
L_pc:
s_lshl_b32 s{sT}, s{sT2}, 2
s_add_u32 s{sT}, s{sT}, s{sWAVE}
s_lshl_b32 s{sT}, s{sT}, 9
v_and_b32 v1, 3, v0
v_lshlrev_b32 v1, 7, v1
v_add_u32 v1, s{sT}, v1
v_min_u32 v1, {'L_last2' if OPT.get('ifetch') == 1 else 'L_last'}-L_pc, v1
{'global_load_dword v27, v1, s[42:43]' if not OPT.get('nopf') else ''}
s_cmp_eq_u32 s{sBR}, 0
s_cbranch_scc1 L_AC
s_branch L_BC
L_end:
s_endpgm
""")
w_head("A"); w_head("B"); x_head("A"); x_head("B")
n0 = nstamp[0]
for fn in (lambda: a_loader("W"), lambda: a_loader("X"), a_consumer, lambda: b_loader("W"), lambda: b_loader("X"), b_consumer, p2_consumer):
    nstamp[0] = n0
    fn()
a("s_endpgm" if OPT.get("ifetch", 0) > 1 else "L_last2:\ns_endpgm" if OPT.get("ifetch") else "L_last:\ns_endpgm")
lines = []
for l in a.lines: lines += l.split("\n")
if OPT.get("noread"):
    lines = [l for l in lines if not l.startswith("ds_read_b64_tr")]
if OPT.get("nomfma"):
    lines = [l for l in lines if not l.startswith("v_mfma")]
lines, added = hz.fix(lines)
out += "\n".join(lines) + "\n"
out += '.section .rodata,"a"\n.p2align 6\n' + kernel_desc(KN, 256, 102 if OPT.get('cyc') else 100, 256)
sys.stdout.write(out)
sys.stderr.write(f"nop states added: {added}\n")
```

```python
import sys, struct
from asmlib import *
import hz

OPT = dict(stamps=0, p0=3, ramp=6)
for arg in sys.argv[1:]:
    k, v = arg.split("=")
    OPT[k] = int(v)
KN = "concat_heads__sliding_local_dilated__linear_attn_block__prompt_kernel"

def f32(x):
    return "0x%08x" % struct.unpack("<I", struct.pack("<f", x))[0]

LOG2E = 1.4426950408889634
CSC = 18 ** -0.5 * LOG2E
NEG = "0xf149f2ca"
EPS = f32(1e-6)
OOB = "0x80000000"

O_BR = 0x240000
WS_KV = 0x500000
KV_ST = 0x2000
WS_CNT = 0x540000
WS_STAMP = 0x600000
WS_SIZE = 0x700000

sWAVE, sHG, sRB, sBR, sT = 3, 4, 5, 6, 7
SX, SW, SWS, SDBG, SWO, SOUT = 8, 12, 16, 20, 24, 28
sG0, sG01 = 32, 34
sK, sV, sM, sT2, sT3 = 50, 51, 52, 53, 54
sST = 60

a = Asm()
nstamp = [0]

def stamp():
    if OPT["stamps"]:
        i = nstamp[0]; nstamp[0] += 1
        assert i < 15
        a(f"{'s_memrealtime' if OPT.get('rt') or OPT.get('probe') and not (OPT.get('cyc') and i) else 's_memtime'} s[{sST+2*i}:{sST+2*i+1}]")
        if OPT.get("cyc") and i == 0:
            a("s_memtime s[100:101]")

def stamps_out(last=-1):
    if not OPT["stamps"]:
        return
    if OPT.get("probe"):
        if last == OPT.get("pwave", 0):
            j = sST + 2 * OPT["probe"]
            a(f"""
s_waitcnt vmcnt(0) lgkmcnt(0)
s_cmp_eq_u32 s2, {OPT.get('wg', 0)}
s_cbranch_scc0 L_probe_x
s_cmp_eq_u32 s{sWAVE}, {last}
s_cbranch_scc0 L_probe_x
s_sub_u32 s{sT}, s{j}, s{100 if OPT.get('cyc') else sST}
{'s_lshr_b32 s7, s7, 3' if OPT.get('cyc') else 's_mul_i32 s7, s7, 10'}
s_min_u32 s{sT}, s{sT}, 100000
s_add_u32 s{sT}, s{sT}, 6000
L_probe:
s_memrealtime s[44:45]
s_waitcnt lgkmcnt(0)
s_sub_u32 s44, s44, s{sST}
s_cmp_lt_u32 s44, s{sT}
s_cbranch_scc1 L_probe
L_probe_x:
""")
        return
    a("s_waitcnt vmcnt(0) lgkmcnt(0)")
    a(f"s_lshl_b32 s{sT}, s2, 3\ns_add_u32 s{sT}, s{sT}, s{sWAVE}\ns_lshl_b32 s{sT}, s{sT}, 6")
    a(f"s_add_u32 s{sT}, s{sT}, {WS_STAMP}\nv_mov_b32 v1, s{sT}")
    for i in range(16):
        a(f"v_mov_b32 v2, s{sST+2*i}")
        a(f"buffer_store_dword v2, v1, s[{SWS}:{SWS+3}], 0 offen offset:{4*i}")
    a("s_waitcnt vmcnt(0)")

def mf(d, s0, s1, c):
    cc = c if isinstance(c, str) else vr(c, 4)
    return f"v_mfma_f32_16x16x32_bf16 {vr(d,4)}, {vr(s0,4)}, {vr(s1,4)}, {cc}"
def cv(d, x):
    return f"v_cvt_pk_bf16_f32 v{d}, v{x}, v{x+1}"
def tr(d, addr, off):
    return f"ds_read_b64_tr_b16 {vr(d,2)}, v{addr} offset:{off}"
def weave(mfmas, others, per=2):
    o = list(others)
    for m in mfmas:
        a(m)
        for _ in range(per):
            if o: a(o.pop(0))
    for x in o: a(x)

def srd(dst, lo, nbytes):
    a(f"s_mov_b32 s{dst}, s{lo}\ns_mov_b32 s{dst+1}, s{lo+1}\ns_mov_b32 s{dst+2}, {nbytes}\ns_mov_b32 s{dst+3}, 0x20000")
def srds_rest():
    srd(SWO, 40, 663552); srd(SOUT, 44, 4718592); srd(SDBG, 46, 256); srd(SWS, 48, WS_SIZE)

class M0:
    def __init__(self, base): self.base = base; self.cur = None
    def set(self, imm):
        if self.cur is not None and -32768 <= imm - self.cur <= 32767:
            a(f"s_addk_i32 m0, {imm - self.cur}")
        else:
            a(f"s_add_u32 m0, s{self.base}, {imm}")
        self.cur = imm

def dma(voff, srd_, soff, half=False):
    if OPT.get("nodma"):
        return
    if half: a(f"s_mov_b64 exec, s[{sG01}:{sG01+1}]")
    a(f"buffer_load_dwordx4 v{voff}, s[{srd_}:{srd_+3}], {soff} offen lds")
    if half: a("s_mov_b64 exec, -1")

def rd_lanes(r8, r2, t0, t1):
    a(f"""
v_lshrrev_b32 v{t0}, 5, v0
v_lshlrev_b32 v{t0}, 4, v{t0}
v_bfe_u32 v{t1}, v0, 4, 1
v_lshl_add_u32 v{t0}, v{t1}, 2, v{t0}
v_bfe_u32 v{t1}, v0, 2, 2
v_add_u32 v{t0}, v{t0}, v{t1}
v_and_b32 v{t1}, 3, v0
v_lshlrev_b32 v{t1}, 3, v{t1}
v_lshl_add_u32 v{r2}, v{t0}, 5, v{t1}
v_lshl_add_u32 v{r8}, v{t0}, 7, v{t1}
v_bfe_u32 v{t0}, v{t0}, 1, 2
v_lshl_add_u32 v{r8}, v{t0}, 5, v{r8}
""")
    for t in (1, 2, 3):
        a(f"v_xor_b32 v{r8+t}, {32*t}, v{r8}")

def x_lane(d0, d1, tmp):
    a(f"""
v_lshrrev_b32 v{d0}, 4, v0
v_bfe_u32 v{tmp}, v0, 1, 3
v_xor_b32 v{d0}, v{d0}, v{tmp}
v_and_b32 v{tmp}, 15, v0
v_lshlrev_b32 v{tmp}, 7, v{tmp}
v_lshl_add_u32 v{d0}, v{d0}, 4, v{tmp}
v_xor_b32 v{d1}, 64, v{d0}
""")

def col8(dst, tmp):
    a(f"v_bfe_u32 v{tmp}, v0, 4, 2\nv_lshlrev_b32 v{tmp}, 1, v{tmp}\nv_and_b32 v{dst}, 7, v0\nv_xor_b32 v{dst}, v{dst}, v{tmp}\nv_lshlrev_b32 v{dst}, 4, v{dst}")

def head_of(dst, src):
    a(f"v_mul_u32_u24 v{dst}, 57, v{src}\nv_lshrrev_b32 v{dst}, 10, v{dst}")

sOC, sKC, sFO, sFK = 92, 94, 96, 97

def arrive_wait(addr, target, label, arrive=True):
    if arrive:
        a(f"s_mov_b32 s{sT}, 1\ns_atomic_add s{sT}, s[{addr}:{addr+1}], 0 glc\ns_waitcnt lgkmcnt(0)\ns_cmp_ge_u32 s{sT}, {target-1}\ns_cbranch_scc1 {label}_x")
    a(f"""
s_mov_b32 s{sT3}, 0x20000
{label}:
s_mov_b32 s{sT}, 0
s_atomic_add s{sT}, s[{addr}:{addr+1}], 0 glc
s_waitcnt lgkmcnt(0)
s_sub_u32 s{sT3}, s{sT3}, 1
s_cbranch_scc1 {label}_x
s_cmp_ge_u32 s{sT}, {target}
s_cbranch_scc0 {label}
{label}_x:
""")

def flag_load(dst, offreg):
    a(f"s_load_dword s{dst}, s[{SDBG}:{SDBG+1}], s{offreg}")

def flag_check(val, offreg, label):
    a(f"""
s_mov_b32 s{sT3}, 0x20000
{label}:
s_waitcnt lgkmcnt(0)
s_cmp_lg_u32 s{val}, 0
s_cbranch_scc1 {label}_x
s_sub_u32 s{sT3}, s{sT3}, 1
s_cbranch_scc1 {label}_x
s_load_dword s{val}, s[{SDBG}:{SDBG+1}], s{offreg} glc
s_branch {label}
{label}_x:
""")

A_WSLOT, A_XSLOT = 14336, 18432
A_X0 = 5 * A_WSLOT
A_EX = A_X0 + 3 * A_XSLOT
B_KVSLOT, B_XSLOT = 9216, 16384
B_X0 = 5 * B_KVSLOT
B_EX = B_X0 + 3 * B_XSLOT
B_KVOP = 126976
B_STG = 136192
B_DUMP, B_LCNT = B_STG + 5632, B_STG + 6144
B_WQ0 = 143360
def wq_slot(p):
    if p < 4: return B_WQ0 + 5120 * p
    if p < 7: return 5120 * (p - 4)
    if p < 13: return 40960 + 5120 * (p - 7)
    return 15360 + 5120 * (p - 13)
R1, R2 = 147456, 43008
WO = [R1, R1 + 5120, R1 + 10240] + [R2 + 5120 * n for n in range(6, 12)] + [0, 5120, 10240] + [R2 + 5120 * n for n in range(6)]
P_TR = 108544
SPLITS = {(1, 0): sG0, (2, 0): sG0, (2, 1): sG0, (3, 0): sG01, (3, 1): sG0}

VD = 16
VWO = 26
sRW, sRX = 90, 91

def w_head(kind):
    parts = (0, 1152, 2304) if kind == "A" else (1152, 2304)
    a(f"L_{kind}W0:")
    col8(VD, 1)
    a(f"""
v_bfe_u32 v1, v0, 5, 1
v_bfe_u32 v2, v0, 3, 2
v_lshl_add_u32 v1, v1, 3, v2
s_mul_i32 s{sT}, s{sV}, {16*3456}
s_add_u32 s{sT}, s{sT}, s{sM}
v_mul_u32_u24 v1, 3456, v1
v_add3_u32 v{VD}, v{VD}, v1, s{sT}
""")
    n = 2 * len(parts)
    for j in range(n - 1, -1, -1):
        off = parts[j // 2] + (j % 2) * 4 * 3456
        if off:
            a(f"v_add_u32 v{VD+j}, {off}, v{VD}")
    a(f"""
v_bfe_u32 v1, v0, 3, 1
v_bfe_u32 v2, v0, 4, 1
v_sub_u32 v1, v1, v2
v_lshrrev_b32 v2, 1, v0
v_lshl_add_u32 v1, v1, 2, v2
v_mul_u32_u24 v1, 3456, v1
v_and_b32 v2, 1, v0
""")
    if kind == "A":
        a(f"""
s_mul_i32 s{sT2}, s{sV}, 13
s_lshl_b32 s{sT2}, 1152, s{sT2}
s_mul_i32 s{sT}, s{sV}, 2304
s_add_u32 s{sT}, s{sT}, s{sM}
s_addk_i32 s{sT}, 128
v_mad_u32_u24 v1, v2, s{sT2}, v1
v_add_u32 v{VD+6}, s{sT}, v1
""")
    else:
        a(f"""
s_add_u32 s{sT}, s{sT}, 128
v_add_u32 v1, s{sT}, v1
v_lshl_add_u32 v{VD+7}, v2, 23, v1
v_mul_u32_u24 v2, 1152, v2
v_add_u32 v2, 1152, v2
v_add_u32 v{VD+4}, v2, v1
""")
    a(f"s_lshl_b32 s42, s{sV}, 11\ns_lshl_b32 s43, s{sV}, {10 if kind == 'A' else 9}\ns_sub_u32 s43, s43, s42")
    a("s_waitcnt lgkmcnt(0)")
    srd(SW, 38, 1990656)
    m = M0(42)
    w_issue(kind, 0, m)
    a(f"s_branch L_{kind}W1")

def w_issue(kind, c, m):
    slot = (c % 5) * (A_WSLOT if kind == "A" else B_KVSLOT)
    n = 6 if kind == "A" else 4
    if c:
        a(f"s_add_u32 s{sRW}, s{sRW}, {32*3456}\ns_cmp_eq_u32 s{sRW}, {18*32*3456}\ns_cselect_b32 s{sRW}, 0, s{sRW}")
    for j in range(n):
        m.set(slot + 4096 * (j // 2) + 1024 * (j % 2))
        dma(VD + j, SW, f"s{sRW}")
    m.set(slot + 4096 * (n // 2))
    a("s_add_u32 m0, m0, s43")
    m.cur = None
    dma(VD + n, SW, f"s{sRW}", half=(kind == "B"))
    return n + 1

def wq_issue(p, m):
    a(f"s_add_u32 s{sK}, s{sRW}, {(p+1)*32*3456}\ns_cmp_ge_u32 s{sK}, {18*32*3456}\ns_cselect_b32 s{sT}, {18*32*3456}, 0\ns_sub_u32 s{sK}, s{sK}, s{sT}")
    for j in range(2):
        m.set(wq_slot(p) + 1024 * j)
        dma(VD + 5 + j, SW, f"s{sK}")
    m.set(wq_slot(p) + 4096)
    a("s_add_u32 m0, m0, s43")
    m.cur = None
    dma(VD + 7, SW, f"s{sK}", half=True)
    return 3

def x_head(kind):
    nq = 9 if kind == "A" else 8
    a(f"L_{kind}X0:")
    a(f"""
v_lshrrev_b32 v1, 3, v0
v_mul_u32_u24 v1, {2304 if kind == 'A' else 1152}, v1
v_lshrrev_b32 v2, 4, v0
v_lshl_add_u32 v2, s{sV}, 2, v2
v_and_b32 v3, 7, v0
v_xor_b32 v2, v2, v3
v_lshl_add_u32 v1, v2, 4, v1
s_mul_i32 s{sT}, s{sRB}, {128*1152}
""")
    if kind == "A":
        a(f"""
s_mul_i32 s{sT2}, s{sV}, {16*1152}
s_add_u32 s{sT3}, s{sT}, s{sT2}
v_add_u32 v{VD}, s{sT3}, v1
s_sub_u32 s{sT3}, s{sT}, s{sT2}
s_add_u32 s{sT3}, s{sT3}, {17*1152}
v_add_u32 v{VD+4}, s{sT3}, v1
s_mul_i32 s{sT2}, s{sV}, 1152
s_sub_u32 s{sT3}, s{sT}, s{sT2}
s_sub_u32 s{sT3}, s{sT3}, {15*1152}
v_add_u32 v{VD+8}, s{sT3}, v1
""")
        for q in (1, 2, 3):
            a(f"v_add_u32 v{VD+q}, {32*1152*q}, v{VD}\nv_add_u32 v{VD+4+q}, {32*1152*q}, v{VD+4}")
    else:
        a(f"s_mul_i32 s{sT2}, s{sV}, {8*1152}\ns_add_u32 s{sT}, s{sT}, s{sT2}\nv_add_u32 v{VD}, s{sT}, v1")
        for q in range(1, 8):
            a(f"v_add_u32 v{VD+q}, {16*1152*q}, v{VD}")
    a(f"s_lshl_b32 s42, s{sV}, 10")
    a("s_waitcnt lgkmcnt(0)")
    srd(SX, 36, 2359296)
    x_issue(kind, 0, M0(42))
    a(f"s_branch L_{kind}X1")

def x_issue(kind, c, m):
    nq, h, x0, xs = (9, 5, A_X0, A_XSLOT) if kind == "A" else (8, 4, B_X0, B_XSLOT)
    st = (c + 1) // 2
    if st > 8:
        return 0
    qs = range(nq) if c == 0 else (range(h) if c % 2 else range(h, nq))
    if c % 2:
        a(f"s_addk_i32 s{sRX}, 128\ns_cmpk_eq_u32 s{sRX}, 1152\ns_cselect_b32 s{sRX}, 0, s{sRX}")
    for q in qs:
        m.set(x0 + (st % 3) * xs + 2048 * q)
        a("s_nop 0")
        dma(VD + q, SX, f"s{sRX}")
    return len(qs)

def wo_setup(quad):
    col8(VWO, 1)
    a(f"""
s_mul_i32 s{sM}, s{sHG}, 144
v_add_u32 v{VWO}, s{sM}, v{VWO}
v_bfe_u32 v1, v0, 5, 1
v_bfe_u32 v2, v0, 3, 2
v_mul_u32_u24 v1, 72, v1
v_add_u32 v1, v1, v2
v_mul_u32_u24 v1, 1152, v1
v_add_u32 v{VWO+1}, v1, v{VWO}
v_lshrrev_b32 v1, 3, v0
v_mul_u32_u24 v1, 1152, v1
v_add_u32 v{VWO}, v1, v{VWO}
v_bfe_u32 v1, v0, 1, 2
v_bfe_u32 v2, v0, 3, 1
v_bfe_u32 v3, v0, 4, 1
v_bfe_u32 v4, v0, 5, 1
v_lshl_add_u32 v5, v2, 2, v1
v_lshl_add_u32 v5, v3, 4, v5
v_lshl_add_u32 v5, v4, 3, v5
v_mul_u32_u24 v5, 1152, v5
s_add_u32 s{sM}, s{sM}, 128
v_add_u32 v{VWO+2}, s{sM}, v5
v_lshl_add_u32 v5, v3, 2, v1
v_lshl_add_u32 v2, v4, 1, v2
v_mul_u32_u24 v2, 72, v2
v_add_u32 v5, v5, v2
v_mul_u32_u24 v5, 1152, v5
v_add_u32 v{VWO+3}, s{sM}, v5
v_and_b32 v1, 1, v0
v_lshl_add_u32 v{VWO+2}, v1, 23, v{VWO+2}
v_lshl_add_u32 v{VWO+3}, v1, 23, v{VWO+3}
s_and_b32 s55, s{sWAVE}, 3
s_lshl_b32 s57, s55, 3
""")
    rho(56)
    a(f"s_add_u32 s56, s56, s{55 if quad else sV}")

def rho(dst):
    a(f"s_lshl_b32 s{dst}, s{sRB}, 1\ns_add_u32 s{dst}, s{dst}, s{sHG}\ns_lshl_b32 s{dst}, s{dst}, 1")

def wo_chunk(left, fadd):
    if left:
        a(f"s_mul_i32 s{sK}, s{sV}, {288*1152}\ns_add_u32 s{sK}, s{sK}, {64*1152}")
        steps = (4, 140, 4); v8, v2 = VWO + 1, VWO + 3
    else:
        a(f"""
s_add_u32 s{sT}, s56, {fadd}
s_bfe_u32 s{sK}, s{sT}, 0x30001
s_mul_i32 s{sK}, s{sK}, {72*1152}
s_bitcmp1_b32 s{sT}, 0
s_cselect_b32 s{sT}, {32*1152}, 0
s_add_u32 s{sK}, s{sK}, s{sT}
""")
        steps = (16, -8, 16); v8, v2 = VWO, VWO + 2
    a(f"s_mov_b32 s{sT2}, s{sK}")
    for j in range(4):
        dma(v8, SWO, f"s{sK}")
        a("s_addk_i32 m0, 1024")
        a(f"s_add_u32 s{sK}, s{sK}, {steps[j]*1152 & 0xffffffff}" if j < 3 else "s_nop 0")
    dma(v2, SWO, f"s{sT2}")
    return 5

def wo_issue(q):
    packed = sum((WO[2 + 4*q + w] // 1024) << (8 * w) for w in range(4))
    a(f"s_lshr_b32 s{sT}, {packed}, s57\ns_and_b32 s{sT}, s{sT}, 0xff\ns_lshl_b32 m0, s{sT}, 10")
    return wo_chunk(False, 4*q)

def wo_pair(g):
    a(f"s_mul_i32 s{sT}, s{sV}, {WO[2*g+1] - WO[2*g] & 0xffffffff}\ns_add_u32 m0, s{sT}, {WO[2*g]}")
    return wo_chunk(g == 0, 2*g - 2)

def sync_setup():
    a(f"""
s_lshl_b32 s{sT}, s{sBR}, 4
s_add_u32 s{sT}, s{sT}, s{sRB}
s_lshl_b32 s{sT2}, s{sT}, 8
s_add_u32 s{sT2}, s{sT2}, {WS_CNT}
s_add_u32 s{sOC}, s{SWS}, s{sT2}
s_addc_u32 s{sOC+1}, s{SWS+1}, 0
s_lshl_b32 s{sT}, s{sT}, 2
s_add_u32 s98, s{sT}, 32
s_lshl_b32 s99, s{sHG}, 2
s_mul_i32 s{sT2}, s{sHG}, {KV_ST}
s_add_u32 s{sT2}, s{sT2}, {WS_KV + 6144}
s_add_u32 s{sKC}, s{SWS}, s{sT2}
s_addc_u32 s{sKC+1}, s{SWS+1}, 0
""")

def loader_tail(tag, late=None):
    sig = tag != "BW"
    if sig:
        flag_check(sFO, 98, f"L_{tag}_fo")
    a("s_barrier")
    stamp()
    if sig:
        a(f"s_cmp_eq_u32 s{sWAVE}, 6\ns_cbranch_scc0 L_{tag}_na\ns_mov_b32 s96, 1\ns_atomic_add s96, s[{sOC}:{sOC+1}], 0 glc\nL_{tag}_na:")
    if late:
        late()
    if sig:
        a(f"s_cmp_eq_u32 s{sWAVE}, 6\ns_cbranch_scc0 L_{tag}_oc_x\ns_waitcnt lgkmcnt(0)\ns_cmp_ge_u32 s96, 7\ns_cbranch_scc1 L_{tag}_oc_x")
        arrive_wait(sOC, 8, f"L_{tag}_oc", False)
    a("s_waitcnt vmcnt(0)")
    stamp()
    a("s_barrier")
    stamps_out()
    a("s_endpgm")

def spread(setup, i, n):
    per = -(-len(setup) // n)
    a("s_cmp_eq_u32 s59, 1")
    a.lines += setup[per*i:per*(i+1)]
    a("s_cselect_b32 s59, 1, 0")

def captured(fn):
    mark = len(a.lines)
    fn()
    out_ = a.lines[mark:]
    del a.lines[mark:]
    return out_

def att_masks(MC, MP, MPF, PM, t):
    a(f"""
s_lshr_b32 s{sT}, s{sWAVE}, 1
s_lshl_b32 s{sT}, s{sT}, 3
v_and_b32 v{t}, 15, v0
v_xor_b32 v{t}, s{sT}, v{t}
v_lshrrev_b32 v{t+1}, 4, v0
v_lshlrev_b32 v{t+1}, 2, v{t+1}
v_xor_b32 v{t+1}, s{sT}, v{t+1}
v_sub_u32 v{t}, v{t}, v{t+1}
v_mov_b32 v{t+2}, {NEG}
s_and_b32 s{sT}, s{sWAVE}, 1
s_or_b32 s{sT}, s{sT}, s{sRB}
s_cmp_eq_u32 s{sT}, 0
s_cselect_b64 s[42:43], -1, 0
""")
    for r in range(4):
        a(f"""
v_subrev_u32 v{t+1}, {r}, v{t}
v_cmp_gt_u32 vcc, 8, v{t+1}
v_cndmask_b32 v{MC+r}, v{t+2}, 0, vcc
v_cmp_gt_i32 vcc, -8, v{t+1}
v_cndmask_b32 v{MP+r}, v{t+2}, 0, vcc
v_cndmask_b32 v{MPF+r}, v{MP+r}, v{t+2}, s[42:43]
v_cmp_lt_i32 vcc, -1, v{t+1}
v_mov_b32 v{t+3}, {'0xffff' if r % 2 == 0 else '0xffff0000'}
v_cndmask_b32 v{t+3}, 0, v{t+3}, vcc
""")
        a(f"v_mov_b32 v{PM + r//2}, v{t+3}" if r % 2 == 0 else f"v_or_b32 v{PM + r//2}, v{PM + r//2}, v{t+3}")

def a_loader(kind):
    a(f"L_A{kind}1:")
    m = M0(42)
    issue = (lambda c: w_issue("A", c, m)) if kind == "W" else (lambda c: x_issue("A", c, m))
    cnt = {c: issue(c) for c in (1, 2)}
    stamp()
    x_lane(8, 9, 1)
    rd_lanes(36, 12, 1, 2)
    a(f"""
v_add_u32 v8, {A_X0 + 8*2048}, v8
v_add_u32 v9, {A_X0 + 8*2048}, v9
s_lshl_b32 s{sT}, s{sV}, 6
v_xor_b32 v10, s{sT}, v36
v_add_u32 v10, {4096 if kind == 'W' else 8192}, v10
v_xor_b32 v11, 32, v10
v_add_u32 v12, {12288 if kind == 'W' else 13312}, v12
v_add_u32 v13, {4*A_WSLOT}, v10
v_add_u32 v14, {4*A_WSLOT}, v11
v_add_u32 v15, {4*A_WSLOT}, v12
""")
    def setup():
        srds_rest(); sync_setup(); wo_setup(True)
        a(f"""
s_lshl_b32 s{sT}, s{sV}, 10
s_add_u32 s{sT}, s{sT}, {A_EX + (0 if kind == 'W' else 2560)}
v_lshlrev_b32 v1, 3, v0
v_add_u32 v6, s{sT}, v1
v_add_u32 v7, {A_EX + (2048 if kind == 'W' else 4608)}, v1
""")
    setup = captured(setup)
    a(f"s_waitcnt vmcnt({cnt[1] + cnt[2]})\ns_barrier")
    stamp()
    extra = 0
    for i in range(-1, 17):
        ks = i + 1
        slot = ks % 5
        off = 0 if slot == 4 else slot * A_WSLOT
        ad = (13, 14, 15) if slot == 4 else (10, 11, 12)
        a(f"ds_read_b128 v[40:43], v{8 + ks % 2} offset:{(ks//2 % 3)*A_XSLOT}")
        for j in range(2):
            a(tr(44 + 4*j, ad[j], off)); a(tr(46 + 4*j, ad[j], off + 1024))
        a(f"s_cmp_eq_u32 s{sV}, 0\ns_cbranch_scc0 L_A{kind}_r{ks}")
        a(tr(52, ad[2], off)); a(tr(54, ad[2], off + 256))
        a(f"L_A{kind}_r{ks}:")
        if i + 4 <= 17:
            cnt[i+4] = issue(i + 4)
        a("s_waitcnt lgkmcnt(0)")
        for j in range(3):
            c = 60 + 4*j if ks else "0"
            if j == 2:
                a(f"s_cmp_eq_u32 s{sV}, 0\ns_cbranch_scc0 L_A{kind}_m{ks}")
            a(mf(60 + 4*j, 44 + 4*j, 40, c) if kind == "W" else mf(60 + 4*j, 40, 44 + 4*j, c))
        a(f"L_A{kind}_m{ks}:")
        if 1 <= i < 11:
            spread(setup, i - 1, 10)
        if i == 14 and kind == "W":
            extra += wo_pair(0)
        if i == 15:
            extra += wo_issue(0)
        if i + 1 <= 16:
            left = sum(cnt.get(c, 0) for c in range(i + 3, min(i + 4, 17) + 1)) + extra
            a(f"s_waitcnt vmcnt({left})\ns_barrier")
    for j in range(3):
        a(cv(44 + 2*j, 60 + 4*j)); a(cv(45 + 2*j, 62 + 4*j))
    if kind == "W":
        a("v_mov_b32 v50, 0\nv_mov_b32 v51, 0")
        a("v_permlane32_swap_b32 v48, v50\nv_permlane32_swap_b32 v49, v51")
    a("ds_write_b64 v6, v[44:45]\nds_write_b64 v6, v[46:47] offset:512")
    a(f"s_cmp_eq_u32 s{sV}, 0\ns_cbranch_scc0 L_A_att")
    a(f"ds_write_b64 v7, {'v[50:51]' if kind == 'W' else 'v[48:49]'}")
    if kind == "W":
        a("s_branch L_A_att")
        return
    a("L_A_att:")
    stamp()
    a("s_waitcnt lgkmcnt(0)\ns_barrier")
    stamp()
    flag_load(sFO, 98)
    wo_issue(1); wo_issue(2); wo_issue(3)
    stamp()
    loader_tail("A")

def o_store_addr(vfull, vleft, tmp, left_lo, wreg=sWAVE):
    a(f"""
s_lshl_b32 s{sT}, s{sRB}, 3
s_lshl_b32 s{sT2}, s{wreg}, 1
s_add_u32 s{sT}, s{sT}, s{sT2}
s_mul_i32 s{sT}, s{sT}, 18432
s_mul_i32 s{sT2}, s{sBR}, {O_BR}
s_add_u32 s58, s{sT}, s{sT2}
s_lshl_b32 s{sT2}, s{sHG}, 11
s_add_u32 s{sT2}, s{sT2}, s58
v_lshl_add_u32 v{vfull}, v0, 4, s{sT2}
s_lshr_b32 s{sT2}, s{sHG}, 2
s_add_u32 s{sT2}, s{sT2}, 16
s_lshl_b32 s{sT2}, s{sT2}, 10
s_add_u32 s{sT}, s58, s{sT2}
s_and_b32 s{sT2}, s{sHG}, 3
s_lshl_b32 s{sT2}, s{sT2}, 8
s_add_u32 s{sT}, s{sT}, s{sT2}
v_and_b32 v{vleft}, 15, v0
v_lshlrev_b32 v{vleft}, 4, v{vleft}
v_bfe_u32 v{tmp}, v0, 4, 1
v_lshl_add_u32 v{vleft}, v{tmp}, 3, v{vleft}
v_add_u32 v{vleft}, s{sT}, v{vleft}
v_mov_b32 v{tmp}, {OOB}
""")
    x, y = (tmp, vleft) if left_lo else (vleft, tmp)
    a(f"v_cndmask_b32 v{vleft}, v{x}, v{y}, s[{sG01}:{sG01+1}]")

FLAGS = ["", " nt", " sc1", " sc1 nt", " sc0 sc1"]
def o_store(of, vfull, vleft, rt):
    so = f"s{sK}" if rt else "0"
    fl = FLAGS[OPT.get("ost", 2)]
    if rt:
        a(f"s_movk_i32 s{sK}, 18432")
    a(f"buffer_store_dwordx4 {vr(of,4)}, v{vfull}, s[{SWS}:{SWS+3}], {so} offen{fl}")
    a(f"buffer_store_dwordx4 {vr(of+4,4)}, v{vfull}, s[{SWS}:{SWS+3}], {so} offen offset:1024{fl}")
    a(f"buffer_store_dwordx2 {vr(of+8,2)}, v{vleft}, s[{SWS}:{SWS+3}], {so} offen{fl}")

def init_stores(tag, with_kv):
    a(f"""
s_or_b32 s{sT}, s{sHG}, s{sWAVE}
s_cmp_eq_u32 s{sT}, 0
s_cselect_b32 s55, 1, 0
v_mov_b32 v20, 0
v_mov_b32 v21, 0
v_mov_b32 v22, 0
v_mov_b32 v23, 0
s_cbranch_scc0 L_{tag}_i1
s_lshl_b32 s{sT}, s{sBR}, 4
s_add_u32 s{sT}, s{sT}, s{sRB}
s_lshl_b32 s{sT}, s{sT}, 8
s_add_u32 s{sT}, s{sT}, {WS_CNT}
v_mov_b32 v24, s{sT}
buffer_store_dword v20, v24, s[{SWS}:{SWS+3}], 0 offen sc1
L_{tag}_i1:
""")
    if with_kv:
        a(f"""
s_or_b32 s{sT}, s{sRB}, s{sWAVE}
s_cmp_eq_u32 s{sT}, 0
s_cbranch_scc0 L_{tag}_i2
s_or_b32 s55, s55, 2
s_mul_i32 s{sT}, s{sHG}, {KV_ST}
s_add_u32 s{sT}, s{sT}, {WS_KV}
v_lshl_add_u32 v24, v0, 4, s{sT}
""")
        for j in range(7):
            a(f"s_movk_i32 s{sK}, {1024*j}\nbuffer_store_dwordx4 v[20:23], v24, s[{SWS}:{SWS+3}], s{sK} offen sc1")
        a(f"L_{tag}_i2:")

def init_flags(tag):
    a(f"""
s_waitcnt vmcnt(0)
s_cmp_eq_u32 s55, 0
s_cbranch_scc1 L_{tag}_f2
v_mov_b32 v20, 1
s_bitcmp1_b32 s55, 0
s_cbranch_scc0 L_{tag}_f1
s_lshl_b32 s{sT}, s{sBR}, 4
s_add_u32 s{sT}, s{sT}, s{sRB}
s_lshl_b32 s{sT}, s{sT}, 2
s_add_u32 s{sT}, s{sT}, 32
v_mov_b32 v24, s{sT}
buffer_store_dword v20, v24, s[{SDBG}:{SDBG+3}], 0 offen sc1
L_{tag}_f1:
s_bitcmp1_b32 s55, 1
s_cbranch_scc0 L_{tag}_f2
s_lshl_b32 s{sT}, s{sHG}, 2
v_mov_b32 v25, s{sT}
buffer_store_dword v20, v25, s[{SDBG}:{SDBG+3}], 0 offen sc1
L_{tag}_f2:
""")

def kstep(tiles, nxt_reads, first, waits):
    pend = list(first)
    for t, (m0_, m1_) in enumerate(tiles):
        if OPT.get("snake") and t % 2:
            m0_, m1_ = m1_, m0_
        if t in waits:
            a(waits[t])
        a(m0_)
        for x in pend: a(x)
        a(m1_)
        pend = []
        if nxt_reads:
            a(nxt_reads[t][0]); pend = [nxt_reads[t][1]]
    for x in pend: a(x)

def a_consumer():
    acc = lambda t, rt: 144 + (t * 2 + rt) * 4
    wf = lambda t: 88 + 4 * t
    xf = lambda buf, rt: 72 + buf * 8 + rt * 4
    R8, R2, R8b, R2b, aX = 1, 5, 6, 10, 11
    vOF, vOL, vEXW, vEXR = 13, 14, 15, 16
    MC, MP, MPF, PM = 56, 60, 64, 68
    a("L_AC:\ns_waitcnt lgkmcnt(0)")
    srds_rest()
    init_stores("AC", False)
    rd_lanes(R8, R2, 17, 18); x_lane(aX, aX + 1, 17)
    for j in range(5):
        a(f"v_add_u32 v{R8b+j}, {4*A_WSLOT}, v{R8+j}")
    a(f"""
s_lshl_b32 s{sT}, s{sWAVE}, 12
s_add_u32 s{sT}, s{sT}, {A_X0}
v_add_u32 v{aX}, s{sT}, v{aX}
v_add_u32 v{aX+1}, s{sT}, v{aX+1}
""")
    att_masks(MC, MP, MPF, PM, 17)
    o_store_addr(vOF, vOL, 17, True)
    a(f"""
s_lshr_b32 s{sT}, s{sWAVE}, 1
s_add_u32 s{sT}, s{sT}, 1
s_mul_i32 s{sT}, s{sT}, 5120
s_bitcmp1_b32 s{sWAVE}, 0
s_cselect_b32 s{sT3}, s{sT}, 0
v_lshlrev_b32 v17, 3, v0
v_add_u32 v17, {A_EX}, v17
v_add_u32 v{vEXW}, s{sT}, v17
v_add_u32 v{vEXR}, s{sT3}, v17
""")

    def wreads(ks, t):
        slot = ks % 5
        o = 0 if slot == 4 else slot * A_WSLOT
        r8, r2 = (R8b, R2b) if slot == 4 else (R8, R2)
        if t == 4 or t == 13:
            o += 12288 if t == 4 else 13312
            return [tr(wf(t), r2, o), tr(wf(t) + 2, r2, o + 256)]
        s, j = (0, t) if t < 4 else (1, t - 5) if t < 9 else (2, t - 9)
        return [tr(wf(t), r8 + j, o + 4096*s), tr(wf(t) + 2, r8 + j, o + 4096*s + 1024)]
    xread = lambda ks, rt: f"ds_read_b128 {vr(xf(ks % 2, rt),4)}, v{aX + ks % 2} offset:{(ks//2 % 3)*A_XSLOT + rt*2048}"

    stamp()
    a("s_barrier")
    stamp()
    a(xread(0, 0)); a(xread(0, 1))
    for t in range(14):
        for x in wreads(0, t): a(x)
    for ks in range(18):
        if ks < 17:
            a("s_barrier")
        if OPT.get("fine") == 2 and ks in (2, 5, 8, 11, 14):
            stamp()
        if ks == 3:
            init_flags("AC")
        tiles = []
        for t in range(14):
            c = lambda rt: acc(t, rt) if ks else "0"
            tiles.append([mf(acc(t, rt), wf(t), xf(ks % 2, rt), c(rt)) if t < 9 else mf(acc(t, rt), xf(ks % 2, rt), wf(t), c(rt)) for rt in range(2)])
        if ks < 17:
            nxt = [wreads(ks + 1, t) for t in range(14)]
            nxt[1] = [nxt[1][0], nxt[1][1] + "\n" + xread(ks + 1, 1)]
            kstep(tiles, nxt, [xread(ks + 1, 0)], {0: "s_waitcnt lgkmcnt(14)", 7: "s_waitcnt lgkmcnt(15)", 12: "s_waitcnt lgkmcnt(15)"})
        else:
            kstep(tiles, None, [], {0: "s_waitcnt lgkmcnt(14)", 7: "s_waitcnt lgkmcnt(0)"})
    stamp()
    KP = lambda j: 18 + 10 * j
    QT = lambda rt, h: 88 + 16 * rt + 4 * h
    VP = lambda t, j: 120 + 6 * t + 2 * j if t < 4 else 48 + 2 * j
    ONE = 72
    def pack_kv(rt):
        o = []
        for q in range(2):
            o += [cv(QT(rt, 3) + 2 + q, acc(4, rt) + 2*q), f"v_mov_b32 v{KP(1+rt) + 8 + q}, 0"]
        for tau in range(4):
            o += [cv(KP(1+rt) + 2*tau + q, acc(5+tau, rt) + 2*q) for q in range(2)]
        o += [f"v_permlane32_swap_b32 v{QT(rt,3) + 2 + q}, v{KP(1+rt) + 8 + q}" for q in range(2)]
        for t in range(5):
            o += [cv(VP(t, 1+rt) + q, acc(9+t, rt) + 2*q) for q in range(2)]
        return o
    def pack_q(rt):
        o = []
        for t in range(4):
            for q in range(2):
                d = QT(rt, t) + q
                o.append(cv(d, acc(t, rt) + 2*q))
                if (t, q) in SPLITS:
                    m = SPLITS[(t, q)]; lo = QT(rt, t-1) + 2 + q
                    o += [f"v_cndmask_b32 v{lo}, 0, v{d}, s[{m}:{m+1}]", f"v_xor_b32 v{d}, v{d}, v{lo}"]
        return o + [f"v_mov_b32 v{QT(rt,0) + 3}, 0"]
    weave([], pack_kv(1))
    a(f"s_bitcmp1_b32 s{sWAVE}, 0\ns_cbranch_scc1 L_AC_nodump")
    for j in range(5):
        a(f"ds_write_b64 v{vEXW}, {vr(KP(2) + 2*j, 2)} offset:{512*j}")
        a(f"ds_write_b64 v{vEXW}, {vr(VP(j, 2), 2)} offset:{512*(5+j)}")
    a("L_AC_nodump:")
    weave([], pack_kv(0) + pack_q(1))
    a("s_waitcnt lgkmcnt(0)\ns_barrier")
    for j in range(5):
        a(f"ds_read_b64 {vr(KP(0) + 2*j, 2)}, v{vEXR} offset:{512*j}")
        a(f"ds_read_b64 {vr(VP(j, 0), 2)}, v{vEXR} offset:{512*(5+j)}")
    SC = lambda rt, h: (224 if rt else 184) + 8 * h
    MX = lambda rt: [76 + 4 * rt + h for h in range(4)]
    PT = lambda rt, h: 144 + 16 * rt + 4 * h
    def qk(rt):
        o = []
        for h in range(4):
            o += [mf(SC(rt, h), KP(1+rt) + 2*h, QT(rt, h), MC), mf(SC(rt, h) + 4, KP(rt) + 2*h, QT(rt, h), MP if rt else MPF)]
        return o
    def rowmax(rt):
        o = []
        for h in range(4):
            s = SC(rt, h); m = MX(rt)[h]
            o += [f"v_max_f32 v{s+r}, v{s+r}, v{s+4+r}" for r in range(4)]
            o += [f"v_max3_f32 v{m}, v{s}, v{s+1}, v{s+2}", f"v_max_f32 v{m}, v{m}, v{s+3}"]
        return o
    def xmax(rt):
        m = MX(rt)
        return [f"v_permlane32_swap_b32 v{m[0]}, v{m[1]}", f"v_permlane32_swap_b32 v{m[2]}, v{m[3]}",
                f"v_max_f32 v{m[0]}, v{m[0]}, v{m[1]}", f"v_max_f32 v{m[2]}, v{m[2]}, v{m[3]}",
                f"v_permlane16_swap_b32 v{m[0]}, v{m[2]}", f"v_max_f32 v{m[0]}, v{m[0]}, v{m[2]}",
                f"v_mul_f32 v{m[0]}, s{sT2}, v{m[0]}", f"v_mov_b32 v{m[2]}, v{m[0]}",
                f"v_permlane16_swap_b32 v{m[0]}, v{m[2]}", f"v_mov_b32 v{m[1]}, v{m[0]}", f"v_mov_b32 v{m[3]}, v{m[2]}",
                f"v_permlane32_swap_b32 v{m[0]}, v{m[1]}", f"v_permlane32_swap_b32 v{m[2]}, v{m[3]}"]
    def probs(rt):
        o = []
        for h in range(4):
            s = SC(rt, h); p = PT(rt, h)
            o += [f"v_fma_f32 v{s+r}, v{s+r}, s{sT}, v{MX(rt)[h]}" for r in range(4)]
            o += [f"v_exp_f32 v{s+r}, v{s+r}" for r in range(4)]
            if h:
                o += split(rt, h - 1)
        return o + split(rt, 3)
    def split(rt, h):
        s = SC(rt, h); p = PT(rt, h); o = []
        for q in range(2):
            o += [cv(p + q, s + 2*q), f"v_and_b32 v{p+2+q}, v{p+q}, v{PM+q}", f"v_xor_b32 v{p+q}, v{p+q}, v{p+2+q}"]
        return o
    OB = lambda rt, t: (224 if rt else 184) + 4 * t
    OA = lambda rt, t: (224 if rt else 184) + 12 + 4 * t
    SM = lambda rt, h: 88 + 16 * rt + 4 * h
    OF = lambda rt: 18 + 10 * rt
    def pv(rt):
        o = [mf(SM(rt, h), ONE, PT(rt, h), "0") for h in range(4)]
        for t in range(5):
            if t < 4: o.append(mf(OB(rt, t), VP(t, rt), PT(rt, t), "0"))
            if t > 0: o.append(mf(OA(rt, t), VP(t, rt), PT(rt, t-1), "0"))
        return o
    def finish(rt):
        o = [f"v_rcp_f32 v{SM(rt,h)}, v{SM(rt,h)}" for h in range(4)]
        for t in range(5):
            for q in range(2):
                d = OF(rt) + 2*t + q
                srcs = []
                if t < 4: srcs.append((OB(rt, t) + 2*q, SM(rt, t), d))
                if t == 4: srcs.append((OA(rt, t) + 2*q, SM(rt, 3), d))
                if (t, q) in SPLITS: srcs.append((OA(rt, t) + 2*q, SM(rt, t-1), 17))
                for x, inv, dd in srcs:
                    o += [f"v_mul_f32 v{x}, v{x}, v{inv}", f"v_mul_f32 v{x+1}, v{x+1}, v{inv}", cv(dd, x)]
                if (t, q) in SPLITS:
                    m = SPLITS[(t, q)]
                    o.append(f"v_cndmask_b32 v{d}, v{d}, v17, s[{m}:{m+1}]")
        return o
    a(f"s_mov_b32 s{sT}, {f32(CSC)}\ns_mov_b32 s{sT2}, {f32(-CSC)}")
    weave(qk(1), pack_q(0) + [f"v_mov_b32 v{ONE+j}, 0x3f803f80" for j in range(4)])
    a("s_waitcnt lgkmcnt(0)")
    weave(qk(0), rowmax(1))
    x1, x0 = xmax(1), xmax(0)
    r0 = rowmax(0)
    for i, x in enumerate(x1):
        a(x)
        for y in r0[2*i:2*i+2]: a(y)
    p1 = probs(1)
    for i, x in enumerate(x0):
        a(x)
        for y in p1[2*i:2*i+2]: a(y)
    weave([], p1[2*len(x0):])
    weave(pv(1), probs(0))
    weave(pv(0), finish(1))
    o_store(OF(1), vOF, vOL, 1)
    weave([], finish(0))
    o_store(OF(0), vOF, vOL, 0)
    stamp()
    a("s_branch L_P2")

def phi(r, n, t):
    o = [f"v_pk_fma_f32 {vr(t[j],2)}, {vr(r+j,2)}, s[56:57], v[14:15]" for j in range(0, n, 2)]
    for j in range(n):
        o += [f"v_exp_f32 v{t[j]}, v{t[j]} clamp", f"v_max_f32 v{r+j}, s{sT2}, v{r+j}"]
    return o + [f"v_pk_add_f32 {vr(r+j,2)}, {vr(r+j,2)}, {vr(t[j],2)}" for j in range(0, n, 2)]

def b_consumer():
    acc = lambda t, rt: 184 + (t * 2 + rt) * 4
    wf = lambda t: 148 + 4 * t
    xf = lambda ks, rt: 52 + ks * 8 + rt * 4 if ks < 12 else 36 + (ks % 2) * 8 + rt * 4
    R8, R2, aX = 1, 5, 6
    vOF, vOL, vEX = 8, 9, 10
    CK, CS = 28, 32
    a("L_BC:\ns_waitcnt lgkmcnt(0)")
    srds_rest()
    init_stores("BC", True)
    rd_lanes(R8, R2, 17, 18); x_lane(aX, aX + 1, 17)
    a(f"""
s_lshl_b32 s{sT}, s{sWAVE}, 12
s_add_u32 s{sT}, s{sT}, {B_X0}
v_add_u32 v{aX}, s{sT}, v{aX}
v_add_u32 v{aX+1}, s{sT}, v{aX+1}
v_and_b32 v17, 15, v0
v_cmp_gt_u32 vcc, 8, v17
v_mov_b32 v18, {EPS}
s_mov_b64 s[42:43], vcc
s_mul_i32 s{sT}, s{sWAVE}, 10240
s_add_u32 s{sT}, s{sT}, {B_EX}
v_lshl_add_u32 v{vEX}, v0, 4, s{sT}
v_mov_b32 v14, {f32(-1e-6*LOG2E)}
v_mov_b32 v15, v14
s_mov_b32 s56, {f32(LOG2E)}
s_mov_b32 s57, s56
""")
    for r in range(4):
        a(f"v_mov_b32 v{CK+r}, v18\nv_cndmask_b32 v{CS+r}, 0, v18, vcc")
    o_store_addr(vOF, vOL, 17, False)

    def wreads(ks, t):
        o = (ks % 5) * B_KVSLOT
        if t == 4:
            return [tr(wf(t), R2, o + 8192), tr(wf(t) + 2, R2, o + 8192 + 256)]
        s, j = (0, t) if t < 4 else (1, t - 5)
        return [tr(wf(t), R8 + j, o + 4096*s), tr(wf(t) + 2, R8 + j, o + 4096*s + 1024)]
    xread = lambda ks, rt: f"ds_read_b128 {vr(xf(ks, rt),4)}, v{aX + ks % 2} offset:{(ks//2 % 3)*B_XSLOT + rt*2048}"

    stamp()
    a("s_barrier")
    stamp()
    a(xread(0, 0)); a(xread(0, 1))
    for t in range(9):
        for x in wreads(0, t): a(x)
    for ks in range(18):
        if ks < 17:
            a("s_barrier")
        if ks == 3:
            init_flags("BC")
        tiles = [[mf(acc(t, rt), xf(ks, rt), wf(t), acc(t, rt) if ks else (CK if t < 4 else CS if t == 4 else "0")) for rt in range(2)] for t in range(9)]
        if ks < 17:
            nxt = [wreads(ks + 1, t) for t in range(9)]
            nxt[1] = [nxt[1][0], nxt[1][1] + "\n" + xread(ks + 1, 1)]
            kstep(tiles, nxt, [xread(ks + 1, 0)], {0: "s_waitcnt lgkmcnt(12)", 3: "s_waitcnt lgkmcnt(13)", 6: "s_waitcnt lgkmcnt(13)", 8: "s_waitcnt lgkmcnt(11)"})
        else:
            rr = [[f"ds_read_b128 {vr(wf(t),4)}, v{aX + t//2 % 2} offset:{(6 + t//4) % 3*B_XSLOT + t % 2*2048}" if t < 8 else "", ""] for t in range(9)]
            kstep(tiles, rr, [], {0: "s_waitcnt lgkmcnt(12)", 3: "s_waitcnt lgkmcnt(3)\ns_barrier"})
    stamp()
    a(f"s_mov_b32 s{sT2}, {EPS}\nv_mov_b32 v16, 0x3f803f80")
    wr = lambda reg, slot: f"ds_write_b128 v{vEX}, {vr(reg,4)} offset:{1024*slot}"
    pk = lambda d, s: [cv(d + j, s + 2*j) for j in range(4)]
    xq = lambda ks, rt: wf(2 * (ks - 12) + rt) if 12 <= ks < 16 else xf(ks, rt)
    for tau in range(4):
        weave([], pk(acc(5+tau, 0), acc(5+tau, 0)))
    V4, TM = acc(7, 1), [acc(5, 1) + j for j in range(4)] + [acc(6, 1) + j for j in range(4)]
    a("s_waitcnt lgkmcnt(0)\ns_barrier")
    weave([], pk(V4, acc(4, 0)) + [f"v_cndmask_b32 v{V4+j}, v{V4+j}, v16, s[42:43]" for j in range(4)])
    for tau in range(5):
        o = phi(acc(tau, 0), 8, TM)
        weave([], o[:8] + [wr(acc(5+tau, 0) if tau < 4 else V4, 5 + tau)] + o[8:] + pk(acc(tau, 0), acc(tau, 0)) + [wr(acc(tau, 0), tau)])
    for j in range(5):
        a(f"v_add_u32 v{R8+j}, {B_WQ0}, v{R8+j}")
    a("s_waitcnt lgkmcnt(0)\ns_barrier")
    stamp()
    QA = lambda t, rt: 216 + (t * 2 + rt) * 4
    qf = lambda t: 184 + 4 * t
    qbase = lambda p: B_WQ0 if p < 4 else 0 if p < 7 else 15360
    def qreads(p, t):
        o = wq_slot(p) - qbase(p)
        if t == 4:
            return [tr(qf(t), R2, o + 4096), tr(qf(t) + 2, R2, o + 4096 + 256)]
        return [tr(qf(t), R8 + t, o), tr(qf(t) + 2, R8 + t, o + 1024)]
    for t in range(5):
        for x in qreads(0, t): a(x)
    for p in range(18):
        ks = p
        if p == 7:
            if OPT.get("fine") == 3: stamp()
            a("s_barrier")
            if OPT.get("fine") == 3: stamp()
        tiles = [[mf(QA(t, rt), qf(t), xq(ks, rt), QA(t, rt) if p else CK) for rt in range(2)] for t in range(5)]
        if p < 17:
            nxt = [qreads(p + 1, t) for t in range(5)]
            if qbase(p + 1) != qbase(p):
                d = (qbase(p + 1) - qbase(p)) & 0xffffffff
                for t in range(5):
                    nxt[t][0] = f"v_add_u32 v{R8+t}, {d}, v{R8+t}\n" + nxt[t][0]
            kstep(tiles, nxt, [], {t: f"s_waitcnt lgkmcnt({7 if t else 8})" for t in range(5)})
        else:
            kstep(tiles, None, [], {t: f"s_waitcnt lgkmcnt({8 - 2*t})" for t in range(5)})
    stamp()
    PQ = lambda rt: 36 + 10 * rt
    KO = 84
    tup = {0: KO, 1: KO + 4, 2: KO + 12, 3: KO + 20, 4: KO + 28}
    ZO = KO + 32
    weave([], [f"v_mov_b32 v{r}, 0" for r in (tup[1]+4, tup[1]+5, tup[2]+4, tup[2]+5, tup[3]+4, tup[3]+5, ZO+8, ZO+9)])
    a(f"v_lshlrev_b32 v16, 3, v0\nv_add_u32 v16, {B_KVOP}, v16")
    for t in range(5):
        weave([], phi(QA(t, 0), 8, list(range(148, 156))) + [cv(PQ(rt) + 2*t + q, QA(t, rt) + 2*q) for rt in range(2) for q in range(2)])
    stamp()
    a("s_barrier")
    stamp()
    tid = lambda tau, taup: {-1: tau - 1, 0: 4 + tau, 1: 9 + tau}[taup - tau]
    rd = lambda d, slot: a(f"ds_read_b64 {vr(d,2)}, v16 offset:{512*slot}")
    for j, d in enumerate((ZO, ZO + 2, ZO + 4, ZO + 6, ZO + 10)):
        rd(d, 13 + j)
    rd(tup[0], tid(0, 0)); rd(tup[0] + 2, tid(1, 0))
    for t in (1, 2, 3):
        rd(tup[t], tid(t-1, t)); rd(tup[t] + 2, tid(t, t)); rd(tup[t] + 6, tid(t+1, t))
    rd(tup[4], tid(3, 4)); rd(tup[4] + 2, tid(4, 4))
    DN = lambda rt: 148 + 4 * rt
    NM = lambda rt, t: 184 + 20 * rt + 4 * t
    OF = lambda rt: 156 + 10 * rt
    a("s_waitcnt lgkmcnt(13)")
    for k, (zo, po) in enumerate(((0, 0), (4, 4), (8, 6))):
        for rt in range(2):
            a(mf(DN(rt), ZO + zo, PQ(rt) + po, DN(rt) if k else CK))
    a("s_waitcnt lgkmcnt(0)")
    def num(rt):
        o = [mf(NM(rt, t), tup[t], PQ(rt) + 2*(t-1), "0") for t in (1, 2, 3)]
        o += [mf(NM(rt, 0), tup[0], PQ(rt), "0"), mf(NM(rt, 4), tup[4], PQ(rt) + 6, "0")]
        return o + [mf(NM(rt, t), tup[t] + 4, PQ(rt) + 2*t, NM(rt, t)) for t in (1, 2, 3)]
    def fin(rt, packed):
        o = []
        for t in (0, 4, 1, 2, 3):
            for q in range(2):
                inv = DN(rt) + min(t, 3)
                if (t, q) in SPLITS:
                    m = SPLITS[(t, q)]
                    o.append(f"v_cndmask_b32 v17, v{DN(rt)+t}, v{DN(rt)+t-1}, s[{m}:{m+1}]")
                    inv = 17
                n = NM(rt, t) + 2*q
                o += [f"v_mul_f32 v{n}, v{n}, v{inv}", f"v_mul_f32 v{n+1}, v{n+1}, v{inv}", cv(OF(rt) + 2*t + q, n)]
        return o
    weave(num(0), [], 0)
    weave(num(1), [f"v_rcp_f32 v{DN(rt)+h}, v{DN(rt)+h}" for rt in range(2) for h in range(4)], 1)
    for rt in range(2):
        weave([], fin(rt, True))
        o_store(OF(rt), vOF, vOL, rt)
    stamp()

def kv_index(wreg, VS, VG, VZ):
    a(f"s_cmp_eq_u32 s{wreg}, 0\ns_cselect_b32 s58, 4, s{wreg}")
    for slot in range(3):
        if slot == 0:
            a(f"s_lshl_b32 s{sT}, s58, 4\ns_sub_u32 s{sT2}, s{sT}, 16\ns_mov_b64 s[46:47], 0")
        elif slot == 1:
            a(f"s_lshl_b32 s{sT}, s{wreg}, 4\ns_mov_b32 s{sT2}, s{sT}")
        else:
            a(f"s_add_u32 s{sT2}, s{sT}, 16\ns_cmp_eq_u32 s{wreg}, 3\ns_cselect_b32 s{sT2}, 56, s{sT2}\ns_cselect_b64 s[46:47], s[44:45], 0")
        kv_tile(VS and VS + 2*slot, VG and VG + 2*slot, False)
    if VZ:
        kv_z(VZ)

def kv_tile(VS, VG, last):
    a(f"v_add_u32 v3, s{sT2}, v1")
    head_of(4, 3)
    a(f"v_mul_u32_u24 v5, 18, v4\nv_sub_u32 v3, v3, v5\nv_cndmask_b32 v4, v4, 7, s[46:47]")
    if last:
        a("v_cmp_eq_u32 vcc, 0, v1\nv_cndmask_b32 v4, v4, 3, vcc\nv_cndmask_b32 v3, v3, 18, vcc")
    for q in range(2):
        a(f"v_add3_u32 v5, v2, s{sT}, {2*q}")
        head_of(6, 5)
        a("v_cmp_eq_u32 vcc, v4, v6\nv_mad_u32_u24 v5, v5, 19, v3\nv_lshlrev_b32 v5, 2, v5")
        if VS:
            a(f"v_add_u32 v6, {B_STG}, v5\nv_cndmask_b32 v{VS+q}, v8, v6, vcc")
        if VG:
            a(f"v_add_u32 v6, s{sM}, v5\nv_cndmask_b32 v{VG+q}, v9, v6, vcc")

def kv_z(VZ):
    a("v_and_b32 v3, 3, v0")
    for q in range(2):
        a(f"v_add3_u32 v5, v2, s{sT}, {2*q}")
        head_of(6, 5)
        a(f"v_cmp_eq_u32 vcc, v3, v6\nv_mul_u32_u24 v5, 76, v5\nv_add3_u32 v5, v5, s{sM}, 64\nv_add_u32 v5, 8, v5\nv_cndmask_b32 v{VZ+q}, v9, v5, vcc")

def b_loader(kind):
    a(f"L_B{kind}1:")
    m = M0(42)
    issue = (lambda c: w_issue("B", c, m)) if kind == "W" else (lambda c: x_issue("B", c, m))
    cnt = {c: issue(c) for c in (1, 2)}
    stamp()
    mark = len(a.lines)
    VS, VG, vZS, vEA, vE0, vEL, vLA, vGA, vLW = 72, 80, 98, 99, 100, 101, 102, 103, 105
    if kind == "W":
        a(f"v_subrev_u32 v{VD+5}, 1152, v{VD}\nv_subrev_u32 v{VD+6}, 1152, v{VD+1}")
    srds_rest()
    if kind == "W":
        wo_setup(False)
    else:
        sync_setup()
    a(f"""
s_add_u32 s55, s{sV}, 2
s_mul_i32 s{sM}, s{sHG}, {KV_ST}
s_add_u32 s{sM}, s{sM}, {WS_KV}
v_and_b32 v1, 15, v0
v_lshrrev_b32 v2, 4, v0
v_lshlrev_b32 v2, 2, v2
v_cmp_gt_u32 s[44:45], 8, v1
v_lshlrev_b32 v8, 2, v0
v_add_u32 v8, {B_DUMP}, v8
v_mov_b32 v9, {OOB}
""")
    own = sV if kind == "X" else 55
    if kind == "X":
        kv_index(55, None, VG, VG + 6)
        a(f"s_movk_i32 s{sT}, 64")
        kv_z(10)
    kv_index(own, VS, VG + 8 if kind == "X" else None, VG + 14 if kind == "X" else None)
    a(f"""
v_add_u32 v5, s{sT}, v0
v_mul_u32_u24 v5, 76, v5
v_add_u32 v5, {B_STG + 72}, v5
v_cndmask_b32 v{vZS}, v8, v5, s[{sG0}:{sG0+1}]
v_lshlrev_b32 v{vEL}, 4, v0
v_add_u32 v{vEL}, {B_EX}, v{vEL}
s_lshl_b32 s{sT}, s{own}, 10
v_add_u32 v{vEA}, s{sT}, v{vEL}
s_lshl_b32 s{sT}, s58, 10
v_add_u32 v{vE0}, s{sT}, v{vEL}
""")
    if kind == "X":
        a(f"s_movk_i32 s{sT}, 64\ns_movk_i32 s{sT2}, 56\ns_mov_b64 s[46:47], s[44:45]")
        kv_tile(VS + 6, VG + 16, True)
        a(f"s_cmp_eq_u32 s{sV}, 0\ns_cselect_b64 s[46:47], -1, 0")
        for q in range(2):
            a(f"v_cndmask_b32 v{VS+6+q}, v8, v{VS+6+q}, s[46:47]\nv_cndmask_b32 v{VG+16+q}, v{10+q}, v{VG+16+q}, s[46:47]")
        a(f"""
v_lshlrev_b32 v5, 3, v0
v_add_u32 v5, {B_KVOP}, v5
s_lshl_b32 s{sT2}, s58, 9
s_sub_u32 s{sT2}, s{sT2}, 512
v_add_u32 v{vLW+2}, s{sT2}, v5
s_lshl_b32 s{sT2}, s{sV}, 9
v_add_u32 v{vLW+1}, s{sT2}, v5
v_add_u32 v{vLW}, 1024, v{vLW+1}
s_mul_i32 s{sT2}, s{sV}, {9*512}
v_add_u32 v{vLW+3}, s{sT2}, v5
s_mul_i32 s{sT}, s{sV}, 2816
v_lshl_add_u32 v{vLA}, v0, 2, s{sT}
v_add_u32 v{vGA}, s{sM}, v{vLA}
v_cmp_gt_u32 vcc, {5472 - 2560}, v{vLA}
v_cndmask_b32 v{vGA+1}, v9, v{vGA}, vcc
v_add_u32 v{vLA}, {B_STG}, v{vLA}
v_mov_b32 v4, 0
""")
    a(f"v_mov_b32 v10, {B_LCNT}\nv_mov_b32 v11, 1")
    if kind == "X":
        a("ds_write_b32 v10, v4\ns_waitcnt lgkmcnt(0)")
    setup = a.lines[mark:]
    del a.lines[mark:]
    a(f"s_waitcnt vmcnt({sum(cnt.values())})\ns_barrier")
    stamp()
    extra = 0
    for i in range(-1, 16):
        if i + 4 <= 17:
            cnt[i+4] = issue(i + 4)
        if 0 <= i < 9:
            spread(setup, i, 9)
        if i == 10 and kind == "X":
            flag_load(sFO, 98); flag_load(sFK, 99)
        if kind == "W" and i >= 14:
            extra += wq_issue(2*(i-14), m) + wq_issue(2*(i-14) + 1, m)
        left = sum(cnt.get(c, 0) for c in range(i + 3, min(i + 4, 17) + 1)) + extra
        a(f"s_waitcnt vmcnt({left})\ns_barrier")
    a("s_barrier")
    if kind == "W":
        for p in (4, 5, 6, 7):
            wq_issue(p, m)
    a("s_barrier")
    if kind == "W":
        for p in range(8, 18):
            wq_issue(p, m)
        a("s_waitcnt vmcnt(30)")
    else:
        flag_check(sFK, 99, "L_BX_fk")
    stamp()
    a("s_barrier")
    stamp()
    KT = lambda s: 40 + 4 * s
    RD = lambda src, j: 112 + 28 * src + 4 * j
    srcs = ((vEA, 0), (vE0, 0), (vE0, 4096), (vEA, 5120), (vEA, 6144), (vEL, 9216), (vEL, 4096))
    prods = ((1, 2), (0, 3), (0, 4), (6, 5), (5, 0))
    if kind == "W":
        srcs = ((vEA, 0), None, (vE0, 4096), (vEA, 5120), (vEA, 6144), (vEL, 9216))
        prods = ((0, 2), (0, 3), (0, 4), None, (5, 0))
    nr = sum(x is not None for x in srcs)
    for src in range(4):
        for j, x in enumerate(srcs):
            if x: a(f"ds_read_b128 {vr(RD(src, j),4)}, v{x[0]} offset:{src*10240 + x[1]}")
    for src in range(4):
        a(f"s_waitcnt lgkmcnt({min(15, nr*(3-src))})")
        for s_, x in enumerate(prods):
            if x: a(mf(KT(s_), RD(src, x[0]), RD(src, x[1]), KT(s_) if src else "0"))
    for s_ in range(4 if kind == "X" else 3):
        for r in range(4):
            a(f"ds_write_b32 v{VS + 2*s_ + r//2}, v{KT(s_)+r} offset:{76*(r%2)}")
    a(f"ds_write_b32 v{vZS}, v{KT(4)}")
    a("s_waitcnt lgkmcnt(0)\ns_mov_b64 exec, 1\nds_add_u32 v10, v11\ns_mov_b64 exec, -1")
    stamp()
    if kind == "W":
        a("s_waitcnt vmcnt(0)\ns_barrier")
        for g in range(6): wo_pair(g)
        stamp()
        a("s_barrier")
        loader_tail("BW", lambda: [wo_pair(g) for g in (6, 7, 8)])
        return
    a(f"""
s_mov_b32 s{sT3}, 0x400000
L_BX_st:
ds_read_b32 v2, v10
s_waitcnt lgkmcnt(0)
v_readfirstlane_b32 s{sT}, v2
s_sub_u32 s{sT3}, s{sT3}, 1
s_cbranch_scc1 L_BX_st_x
s_cmp_ge_u32 s{sT}, 4
s_cbranch_scc0 L_BX_st
L_BX_st_x:
""")
    for n in range(11):
        a(f"ds_read_b32 v{40+n}, v{vLA} offset:{256*n}")
    for n in range(11):
        a(f"s_waitcnt lgkmcnt({10-n})")
        a(f"buffer_atomic_add_f32 v{40+n}, v{vGA + (n == 10)}, s[{SWS}:{SWS+3}], 0 offen offset:{256*n}")
    stamp()
    a("s_barrier\ns_waitcnt vmcnt(0)")
    stamp()
    arrive_wait(sKC, 32, "L_BX_kc")
    stamp()
    for s_ in range(9):
        for r in range(4):
            a(f"buffer_load_dword v{112+4*s_+r}, v{VG + 2*s_ + r//2}, s[{SWS}:{SWS+3}], 0 offen offset:{76*(r%2)} sc1")
    dst = ((vLW, -1), (vLW, 4), (vLW, 9), (vLW, 13), (vLW + 2, 0), (vLW + 1, 4), (vLW + 1, 9), (vLW + 1, 13), (vLW + 3, 8))
    a(f"v_subrev_u32 v11, 512, v{vLW}")
    for s_, (ad, off) in enumerate(dst):
        a(f"s_waitcnt vmcnt({4*(8-s_)})")
        a(cv(40 + 2*s_, 112 + 4*s_)); a(cv(41 + 2*s_, 114 + 4*s_))
        a(f"ds_write_b64 v{11 if off < 0 else ad}, {vr(40+2*s_,2)} offset:{512*max(off, 0)}")
    a("s_waitcnt lgkmcnt(0)")
    stamp()
    a("s_barrier")
    loader_tail("BX")

def p2_consumer():
    OFR = lambda ks, rt: 112 + ks * 8 + rt * 4
    ACC = lambda t, rt: 72 + (t * 2 + rt) * 4
    wf = lambda t: 52 + 4 * t
    R8, R2, vO, vTW, vTR, VS = 1, 5, 6, 7, 8, 9
    a("L_P2:")
    nstamp[0] = 10 if OPT.get('fine') != 3 else 11
    rd_lanes(R8, R2, 17, 18)
    for j in range(5):
        a(f"v_add_u32 v{R8+j}, {R1}, v{R8+j}")
    a(f"""
v_lshl_add_u32 v{vO}, v0, 4, s58
s_mul_i32 s{sT}, s{sWAVE}, 4608
s_add_u32 s{sT}, s{sT}, {P_TR}
v_and_b32 v17, 15, v0
v_mul_u32_u24 v17, 144, v17
v_lshrrev_b32 v18, 4, v0
v_lshl_add_u32 v17, v18, 3, v17
v_add_u32 v{vTW}, s{sT}, v17
v_lshl_add_u32 v{vTR}, v0, 4, s{sT}
s_lshr_b32 s{sT}, s{sWAVE}, 1
s_and_b32 s{sT2}, s{sWAVE}, 1
s_lshl_b32 s{sT2}, s{sT2}, 5
s_lshl_b32 s{sT3}, s{sWAVE}, 5
s_cmp_eq_u32 s{sBR}, 0
s_cselect_b32 s42, s{sT}, 0
s_cselect_b32 s43, s{sT2}, s{sT3}
s_cselect_b32 s55, 1, 0
s_lshl_b32 s56, s42, 3
s_lshl_b32 s{sT}, s{sRB}, 7
s_add_u32 s42, s42, s{sT}
s_mul_i32 s{sT}, s{sBR}, 1152
s_mul_i32 s{sT2}, s{sHG}, 144
s_add_u32 s57, s{sT}, s{sT2}
""")
    for n in range(5):
        a(f"""
v_add_u32 v17, {64*n}, v0
v_mul_u32_u24 v18, 7282, v17
v_lshrrev_b32 v18, 16, v18
v_mul_u32_u24 v19, 9, v18
v_sub_u32 v19, v17, v19
v_add_u32 v18, s43, v18
v_xor_b32 v18, s56, v18
v_lshlrev_b32 v18, s55, v18
v_add_u32 v18, s42, v18
v_mul_u32_u24 v18, 2304, v18
v_lshl_add_u32 v18, v19, 4, v18
v_add_u32 v{VS+n}, s57, v18
""")
    a(f"v_mov_b32 v17, {OOB}\nv_cndmask_b32 v{VS+4}, v17, v{VS+4}, s[{sG01}:{sG01+1}]")
    a(f"v_add_u32 v14, 18432, v{vO}")
    SO = [8, 9, 10, 11, 12, 13, 14, 15, 36]
    rho(37)
    a(f"s_movk_i32 s{SO[0]}, 16384")
    for j in range(1, 9):
        a(f"s_add_u32 s{sT}, s37, {2*j-2}\ns_and_b32 s{sT}, s{sT}, 15\ns_lshl_b32 s{SO[j]}, s{sT}, 10")
    a("s_waitcnt vmcnt(0)")
    stamp()
    a("s_barrier\ns_barrier")
    stamp()
    def oload(ks, rt):
        return f"buffer_load_dwordx4 {vr(OFR(ks, rt),4)}, v{14 if rt else vO}, s[{SWS}:{SWS+3}], s{SO[ks//2]} offen offset:{1024*(ks%2)} sc1"
    base = lambda ks: R1 if ks < 3 else 0 if 9 <= ks < 12 else R2_
    R2_ = 43008
    def wreads(ks, t):
        o = WO[ks] - base(ks)
        if t == 4:
            return [tr(wf(t), R2, o + 4096), tr(wf(t) + 2, R2, o + 4096 + 256)]
        return [tr(wf(t), R8 + t, o), tr(wf(t) + 2, R8 + t, o + 1024)]
    todo = [oload(ks, rt) for ks in range(18) for rt in range(2)]
    done = 2 * OPT["p0"]
    weave([], todo[:done])
    for t in range(5):
        for x in wreads(0, t): a(x)
    for ks in range(18):
        tiles = [[mf(ACC(t, rt), wf(t), OFR(ks, rt), ACC(t, rt) if ks else "0") for rt in range(2)] for t in range(5)]
        w0 = f"s_waitcnt vmcnt({done - 2*(ks + 1)}) lgkmcnt(8)"
        if ks < 17:
            nxt = [wreads(ks + 1, t) for t in range(5)]
            if base(ks + 1) != base(ks):
                d = (base(ks + 1) - base(ks)) & 0xffffffff
                for t in range(5):
                    nxt[t][0] = f"v_add_u32 v{R8+t}, {d}, v{R8+t}\n" + nxt[t][0]
            now = todo[done:done + (3 if ks < OPT["ramp"] else 2)]
            done += len(now)
            for x, t in zip(now[1:], (1, 3)):
                nxt[t][1] += "\n" + x
            kstep(tiles, nxt, now[:1], {t: "s_waitcnt lgkmcnt(7)" if t else w0 for t in range(5)})
        else:
            kstep(tiles, None, [], {t: f"s_waitcnt lgkmcnt({8 - 2*t})" if t else w0 for t in range(5)})
        if ks == 0 and OPT.get("fine") != 3:
            stamp()
    stamp()
    for rt in range(2):
        for t in range(5):
            d = 20 + 2*(rt*5 + t)
            a(cv(d, ACC(t, rt))); a(cv(d + 1, ACC(t, rt) + 2))
            if t == 4:
                a(f"s_mov_b64 exec, s[{sG01}:{sG01+1}]")
            a(f"ds_write_b64 v{vTW}, {vr(d,2)} offset:{rt*2304 + 32*t}")
            if t == 4:
                a("s_mov_b64 exec, -1")
    a("s_waitcnt lgkmcnt(0)")
    for n in range(5):
        a(f"ds_read_b128 {vr(112+4*n,4)}, v{vTR} offset:{1024*n}")
    for n in range(5):
        a(f"s_waitcnt lgkmcnt({4-n})")
        a(f"buffer_store_dwordx4 {vr(112+4*n,4)}, v{VS+n}, s[{SOUT}:{SOUT+3}], 0 offen{FLAGS[OPT.get('outst', 0)]}")
    stamp()
    stamps_out(0)
    a("s_endpgm")

HEADER = open("concat_heads__sliding_local_dilated__linear_attn_block__prompt.s.ref").read().split("; Override")[0]
out = HEADER + "; @launch grid=(256,1,1) block=(512,1,1) lds=163840\n"
a('.amdgcn_target "amdgcn-amd-amdhsa--gfx950"\n.text')
a(kernel_head(KN))
if OPT["stamps"]:
    for i in range(16):
        a(f"s_mov_b32 s{sST+2*i}, 0")
stamp()
a(f"""
s_cmp_ge_u32 s2, 256
s_cbranch_scc1 L_end
s_and_b32 s{sT}, s2, 7
s_lshr_b32 s{sBR}, s{sT}, 2
s_mul_i32 s{sT2}, s{sBR}, 24
s_add_u32 s0, s0, s{sT2}
s_addc_u32 s1, s1, 0
s_load_dwordx4 s[36:39], s[0:1], 0
s_load_dwordx2 s[40:41], s[0:1], 16
s_sub_u32 s0, s0, s{sT2}
s_subb_u32 s1, s1, 0
s_load_dwordx4 s[44:47], s[0:1], 48
s_load_dwordx2 s[48:49], s[0:1], 64
v_lshrrev_b32 v1, 6, v0
v_and_b32 v0, 63, v0
v_readfirstlane_b32 s{sWAVE}, v1
s_lshr_b32 s{sT2}, s2, 3
""")
a(f"""
s_and_b32 s{sHG}, s{sT2}, 7
s_lshr_b32 s{sRB}, s{sT2}, 3
s_and_b32 s{sT3}, s{sT}, 3
s_lshl_b32 s{sT3}, s{sT3}, 2
s_add_u32 s{sRB}, s{sRB}, s{sT3}
""")
rot = f"""s_add_u32 s{sRW}, s{sRB}, s{sHG}
s_and_b32 s{sRW}, s{sRW}, 7
s_lshl_b32 s{sRW}, s{sRW}, 2
s_lshr_b32 s{sRW}, {hex(OPT.get("tab", 0x75207520))}, s{sRW}
s_and_b32 s{sRW}, s{sRW}, 15
s_lshl_b32 s{sRX}, s{sRW}, 7
s_mul_i32 s{sRW}, s{sRW}, {64*3456}"""
a(f"""
s_mov_b32 s{sG0}, 0xffff
s_mov_b32 s{sG0+1}, 0
s_mov_b32 s{sG01}, -1
s_mov_b32 s{sG01+1}, 0
s_and_b32 s{sV}, s{sWAVE}, 1
s_mul_i32 s{sM}, s{sHG}, 144
s_cmp_lt_u32 s{sWAVE}, 4
s_cbranch_scc1 L_cons
s_setprio {OPT.get("prio", 2)}
s_mov_b32 s59, 0
{rot}
s_cmp_lt_u32 s{sWAVE}, 6
s_cbranch_scc1 L_wld
s_cmp_eq_u32 s{sBR}, 0
s_cbranch_scc1 L_AX0
s_branch L_BX0
L_wld:
s_cmp_eq_u32 s{sBR}, 0
s_cbranch_scc1 L_AW0
s_branch L_BW0
L_cons:
s_getpc_b64 s[42:43]
L_pc:
s_lshl_b32 s{sT}, s{sT2}, 2
s_add_u32 s{sT}, s{sT}, s{sWAVE}
s_lshl_b32 s{sT}, s{sT}, 9
v_and_b32 v1, 3, v0
v_lshlrev_b32 v1, 7, v1
v_add_u32 v1, s{sT}, v1
v_min_u32 v1, L_last-L_pc, v1
global_load_dword v27, v1, s[42:43]
s_cmp_eq_u32 s{sBR}, 0
s_cbranch_scc1 L_AC
s_branch L_BC
L_end:
s_endpgm
""")
w_head("A"); w_head("B"); x_head("A"); x_head("B")
n0 = nstamp[0]
for fn in (lambda: a_loader("W"), lambda: a_loader("X"), a_consumer, lambda: b_loader("W"), lambda: b_loader("X"), b_consumer, p2_consumer):
    nstamp[0] = n0
    fn()
a("L_last:\ns_endpgm")
lines = []
for l in a.lines: lines += [x for x in l.split("\n") if x.strip()]
if OPT.get("noread"):
    lines = [l for l in lines if not l.startswith("ds_read_b64_tr")]
if OPT.get("nomfma"):
    lines = [l for l in lines if not l.startswith("v_mfma")]
lines, added = hz.fix(lines)
out += "\n".join(lines) + "\n"
out += '.section .rodata,"a"\n.p2align 6\n' + kernel_desc(KN, 256, 102 if OPT.get('cyc') else 100, 256)
sys.stdout.write(out)
sys.stderr.write(f"nop states added: {added}\n")
```

```python
import sys, struct
from asmlib import *
import hz

OPT = dict(stamps=0, mapping=48, ahead=6, rot=4, nt=0)
for arg in sys.argv[1:]:
    k, v = arg.split("=")
    OPT[k] = int(v)
KN = "concat_heads__sliding_local_dilated__linear_attn_block__prompt_kernel"

def f32(x):
    return "0x%08x" % struct.unpack("<I", struct.pack("<f", x))[0]

LOG2E = 1.4426950408889634
CSC = 18 ** -0.5 * LOG2E
NEG = "0xf149f2ca"
EPS = f32(1e-6)
OOB = "0x80000000"

O_BR = 0x240000
WS_KV = 0x500000
KV_ST = 0x2000
WS_CNT = 0x540000
WS_STAMP = 0x600000
WS_SIZE = 0x700000

sWAVE, sHG, sRB, sBR, sT = 3, 4, 5, 6, 7
SX, SW, SWS, SDBG, SWO, SOUT = 8, 12, 16, 20, 24, 28
sG0, sG01 = 32, 34
sK, sV, sM, sT2, sT3 = 50, 51, 52, 53, 54
sST = 60

a = Asm()
nstamp = [0]

def stamp():
    if OPT["stamps"]:
        i = nstamp[0]; nstamp[0] += 1
        assert i < 15
        a(f"{'s_memrealtime' if OPT.get('rt') or OPT.get('probe') and not (OPT.get('cyc') and i) else 's_memtime'} s[{sST+2*i}:{sST+2*i+1}]")
        if OPT.get("cyc") and i == 0:
            a("s_memtime s[100:101]")

def stamps_out(last=-1):
    if not OPT["stamps"]:
        return
    if OPT.get("probe"):
        if last == OPT.get("pwave", 0):
            j = sST + 2 * OPT["probe"]
            if OPT.get("ifetch"):
                mode = OPT["ifetch"]
                a(f"""
s_waitcnt vmcnt(0) lgkmcnt(0)
s_cmp_eq_u32 s2, {OPT.get('wg', 0)}
s_cbranch_scc0 L_probe_x
s_cmp_eq_u32 s{sWAVE}, 0
s_cbranch_scc0 L_probe_x
s_sleep 127
s_sleep 127
s_getpc_b64 s[44:45]
L_if_pc:
s_add_u32 s44, s44, L_if_blk-L_if_pc
s_addc_u32 s45, s45, 0
v_lshlrev_b32 v1, 7, v0
v_min_u32 v1, 4096, v1
""")
                if mode == 2:
                    a("global_load_dword v2, v1, s[44:45]\ns_waitcnt vmcnt(0)")
                a(f"""
s_memtime s[100:101]
s_waitcnt lgkmcnt(0)
s_branch L_if_blk
L_last:
.fill {(0 if mode == 1 else 8192)}, 4, 0xbf800000
L_if_blk:
.rept 512
v_add3_u32 v5, v0, v0, v0
.endr
s_memtime s[{j}:{j+1}]
s_waitcnt lgkmcnt(0)
s_sub_u32 s{j}, s{j}, s100
s_lshl_b32 s{j}, s{j}, 3
s_add_u32 s{j}, s{j}, s100
""")
            if OPT.get("vrate"):
                isw = OPT["vrate"] == 1
                a(f"""
s_waitcnt vmcnt(0) lgkmcnt(0)
s_load_dwordx2 s[44:45], s[0:1], {8 if isw else 0}
s_sleep 127
s_sleep 127
s_waitcnt lgkmcnt(0)
s_mov_b32 s46, {1990656 if isw else 2359296}
s_mov_b32 s47, 0x20000
v_lshrrev_b32 v1, 3, v0
v_mul_u32_u24 v1, {3456 if isw else 2304}, v1
v_and_b32 v2, 7, v0
v_lshl_add_u32 v1, v2, 4, v1
s_mov_b32 m0, 0
""")
                for rep in range(2):
                    if rep:
                        a("s_memtime s[100:101]\ns_waitcnt lgkmcnt(0)")
                    a(f"s_mov_b32 s40, 0\nL_vr{rep}:")
                    for n in range(3):
                        a(f"buffer_load_dwordx4 v1, s[44:47], s40 offen offset:{n*1152 if isw else n*128} lds")
                    a(f"s_waitcnt vmcnt(24)\ns_add_u32 s40, s40, {8*3456 if isw else 8*2304}\ns_cmp_lt_u32 s40, {72*8*3456 if isw else 72*8*2304}\ns_cbranch_scc1 L_vr{rep}\ns_waitcnt vmcnt(0)")
                a(f"s_memtime s[{j}:{j+1}]\ns_waitcnt lgkmcnt(0)\ns_sub_u32 s{j}, s{j}, s100\ns_lshl_b32 s{j}, s{j}, 3\ns_add_u32 s{j}, s{j}, s100")
            if OPT.get("skew"):
                op = "max" if OPT["skew"] in (1, 3) else "min"
                a(f"""
s_waitcnt vmcnt(0) lgkmcnt(0)
v_lshlrev_b32 v1, {4 if OPT['skew'] < 3 else 5}, v0
{'v_and_b32 v1, 0x3e0, v1' if OPT['skew'] >= 3 else ''}
v_add_u32 v1, 0x6f0000, v1
buffer_load_dwordx4 v[4:7], v1, s[{SWS}:{SWS+3}], 0 offen sc1
s_waitcnt vmcnt(0)
v_subrev_u32 v4, s{sST}, v4
v_subrev_u32 v5, s{sST}, v5
v_subrev_u32 v6, s{sST}, v6
v_subrev_u32 v7, s{sST}, v7
""")
                if OPT["skew"] < 3:
                    a(f"v_{op}_i32 v4, v4, v5\nv_{op}_i32 v6, v6, v7\nv_{op}_i32 v4, v4, v6")
                a("s_mov_b32 s44, 0\ns_nop 4")
                for l in range(64):
                    a(f"v_readlane_b32 s45, v4, {l}\ns_nop 3\ns_{op}_i32 s44, s44, s45")
                a(f"s_abs_i32 s44, s44\ns_add_u32 s{j}, s{sST}, s44")
            if OPT.get("ptr"):
                a(f"s_waitcnt vmcnt(0) lgkmcnt(0)\ns_load_dword s44, s[0:1], {OPT['ptr'] - 8}\ns_waitcnt lgkmcnt(0)\ns_lshr_b32 s44, s44, {OPT.get('sh', 4)}\ns_and_b32 s44, s44, 0xff\ns_mul_i32 s44, s44, 10\ns_add_u32 s{j}, s{sST}, s44")
            if OPT.get("tlb"):
                a(f"""
s_waitcnt vmcnt(0) lgkmcnt(0)
s_cmp_eq_u32 s{sWAVE}, 0
s_cbranch_scc0 L_probe_x
s_load_dwordx2 s[44:45], s[0:1], {OPT['tlb'] - 8}
s_sleep 127
s_sleep 127
s_waitcnt lgkmcnt(0)
s_mov_b32 s46, 0x1e0000
s_mov_b32 s47, 0x20000
v_lshlrev_b32 v1, {OPT.get('sh', 12)}, v0
""")
                for rep in range(2):
                    if rep:
                        a("s_memtime s[100:101]\ns_waitcnt lgkmcnt(0)")
                    a(f"s_mov_b32 s40, 0\nL_vr{rep}:")
                    for n in range(4):
                        a(f"s_add_u32 s41, s40, {n << (OPT.get('sh', 12) + 6)}\nbuffer_load_dword v{4+n}, v1, s[44:47], s41 offen")
                    st = 128 if OPT.get('sh', 12) > 7 else 32768
                    a(f"s_waitcnt vmcnt(4)\ns_add_u32 s40, s40, {st}\ns_cmp_lt_u32 s40, {16*st}\ns_cbranch_scc1 L_vr{rep}\ns_waitcnt vmcnt(0)")
                a(f"s_memtime s[{j}:{j+1}]\ns_waitcnt lgkmcnt(0)\ns_sub_u32 s{j}, s{j}, s100\ns_lshl_b32 s{j}, s{j}, 2\ns_add_u32 s{j}, s{j}, s100")
            if OPT.get("tlb2"):
                nb = OPT["tlb2"]
                a(f"""
s_waitcnt vmcnt(0) lgkmcnt(0)
s_cmp_eq_u32 s{sWAVE}, 0
s_cbranch_scc0 L_probe_x
s_load_dwordx2 s[8:9], s[0:1], 0
s_load_dwordx2 s[12:13], s[0:1], 8
s_load_dwordx2 s[24:25], s[0:1], 24
s_load_dwordx2 s[44:45], s[0:1], 32
s_sleep 127
s_sleep 127
s_waitcnt lgkmcnt(0)
v_lshlrev_b32 v1, 12, v0
""")
                for r_ in (8, 12, 24, 44):
                    a(f"s_mov_b32 s{r_+2}, 0x1e0000\ns_mov_b32 s{r_+3}, 0x20000")
                for rep in range(2):
                    if rep:
                        a("s_memtime s[100:101]\ns_waitcnt lgkmcnt(0)")
                    a(f"s_mov_b32 s40, 0\nL_vr{rep}:")
                    for r_ in (8, 12, 24, 44)[:nb]:
                        for n in range(7):
                            a(f"s_add_u32 s41, s40, {n << 18}\nbuffer_load_dword v{4+n}, v1, s[{r_}:{r_+3}], s41 offen\ns_waitcnt vmcnt(7)")
                    a(f"s_add_u32 s40, s40, 128\ns_cmp_lt_u32 s40, {128*16//nb}\ns_cbranch_scc1 L_vr{rep}\ns_waitcnt vmcnt(0)")
                a(f"s_memtime s[{j}:{j+1}]\ns_waitcnt lgkmcnt(0)\ns_sub_u32 s{j}, s{j}, s100\ns_lshl_b32 s{j}, s{j}, 1\ns_add_u32 s{j}, s{j}, s100")
            if OPT.get("l1"):
                lds_ = OPT["l1"] == 1
                a(f"""
s_waitcnt vmcnt(0) lgkmcnt(0)
s_cmp_eq_u32 s{sWAVE}, 0
s_cbranch_scc0 L_probe_x
s_load_dwordx2 s[44:45], s[0:1], {OPT.get('buf', 0)}
s_sleep 127
s_sleep 127
s_waitcnt lgkmcnt(0)
s_mov_b32 s46, 0x1e0000
s_mov_b32 s47, 0x20000
v_lshrrev_b32 v1, 2, v0
v_lshlrev_b32 v1, 7, v1
v_and_b32 v2, 3, v0
v_lshl_add_u32 v1, v2, 4, v1
v_add_u32 v2, 64, v1
s_mov_b32 m0, 0
""")
                for rep in range(2):
                    if rep:
                        a("s_memtime s[100:101]\ns_waitcnt lgkmcnt(0)")
                    a(f"s_mov_b32 s40, 0\nL_vr{rep}:")
                    for n in range(2):
                        a(f"buffer_load_dwordx4 v{1+n}, s[44:47], s40 offen lds" if lds_ else f"buffer_load_dwordx4 v[{4+4*n}:{7+4*n}], v{1+n}, s[44:47], s40 offen")
                    a(f"s_waitcnt vmcnt(20)\ns_add_u32 s40, s40, 2048\ns_cmp_lt_u32 s40, {2048*256}\ns_cbranch_scc1 L_vr{rep}\ns_waitcnt vmcnt(0)")
                a(f"s_memtime s[{j}:{j+1}]\ns_waitcnt lgkmcnt(0)\ns_sub_u32 s{j}, s{j}, s100\ns_lshl_b32 s{j}, s{j}, 1\ns_add_u32 s{j}, s{j}, s100")
            if OPT.get("lat"):
                a(f"""
s_waitcnt vmcnt(0) lgkmcnt(0)
s_load_dwordx2 s[44:45], s[0:1], {OPT['lat'] - 8}
s_sleep 127
s_sleep 127
s_sleep 127
s_waitcnt lgkmcnt(0)
s_mov_b32 s46, 0x100000
s_mov_b32 s47, 0x20000
v_mov_b32 v1, 0x20000
buffer_load_dword v2, v1, s[44:47], 0 offen {'sc1' if OPT.get('first') != 2 else ''}
s_waitcnt vmcnt(0)
v_mov_b32 v1, {'0x20000' if not OPT.get('first') else '0x20040'}
s_memtime s[100:101]
s_waitcnt lgkmcnt(0)
buffer_load_dword v2, v1, s[44:47], 0 offen sc1
s_waitcnt vmcnt(0)
s_memtime s[{j}:{j+1}]
s_waitcnt lgkmcnt(0)
s_sub_u32 s{j}, s{j}, s100
s_lshl_b32 s{j}, s{j}, 5
s_add_u32 s{j}, s{j}, s100
""")
            if OPT.get("xcc"):
                a(f"""
s_waitcnt vmcnt(0) lgkmcnt(0)
v_and_b32 v1, 31, v0
v_lshlrev_b32 v1, {5 if OPT['xcc'] == 1 else 2}, v1
v_add_u32 v1, 0x6f0000, v1
buffer_load_dword v2, v1, s[{SWS}:{SWS+3}], 0 offen sc1
s_getreg_b32 s44, hwreg(HW_REG_XCC_ID, 0, 4)
s_waitcnt vmcnt(0)
v_cmp_eq_u32 vcc, s44, v2
s_bcnt1_i32_b32 s44, vcc_lo
s_mul_i32 s44, s44, 10
s_add_u32 s{j}, s{sST}, s44
""")
            a(f"""
s_waitcnt vmcnt(0) lgkmcnt(0)
s_cmp_eq_u32 s2, {OPT.get('wg', 0)}
s_cbranch_scc0 L_probe_x
s_cmp_eq_u32 s{sWAVE}, {last}
s_cbranch_scc0 L_probe_x
s_sub_u32 s{sT}, s{j}, s{100 if OPT.get('cyc') else sST}
{'s_lshr_b32 s7, s7, 3' if OPT.get('cyc') else 's_mul_i32 s7, s7, 10'}
s_min_u32 s{sT}, s{sT}, 100000
s_add_u32 s{sT}, s{sT}, 6000
L_probe:
s_memrealtime s[44:45]
s_waitcnt lgkmcnt(0)
s_sub_u32 s44, s44, s{sST}
s_cmp_lt_u32 s44, s{sT}
s_cbranch_scc1 L_probe
L_probe_x:
""")
        return
    a("s_waitcnt vmcnt(0) lgkmcnt(0)")
    a(f"s_lshl_b32 s{sT}, s2, 3\ns_add_u32 s{sT}, s{sT}, s{sWAVE}\ns_lshl_b32 s{sT}, s{sT}, 6")
    a(f"s_add_u32 s{sT}, s{sT}, {WS_STAMP}\nv_mov_b32 v1, s{sT}")
    for i in range(16):
        a(f"v_mov_b32 v2, s{sST+2*i}")
        a(f"buffer_store_dword v2, v1, s[{SWS}:{SWS+3}], 0 offen offset:{4*i}")
    a("s_waitcnt vmcnt(0)")

def mf(d, s0, s1, c):
    cc = c if isinstance(c, str) else vr(c, 4)
    return f"v_mfma_f32_16x16x32_bf16 {vr(d,4)}, {vr(s0,4)}, {vr(s1,4)}, {cc}"
def cv(d, x):
    return f"v_cvt_pk_bf16_f32 v{d}, v{x}, v{x+1}"
def tr(d, addr, off):
    return f"ds_read_b64_tr_b16 {vr(d,2)}, v{addr} offset:{off}"
def weave(mfmas, others, per=2):
    o = list(others)
    for m in mfmas:
        a(m)
        for _ in range(per):
            if o: a(o.pop(0))
    for x in o: a(x)

def srd(dst, lo, nbytes):
    a(f"s_mov_b32 s{dst}, s{lo}\ns_mov_b32 s{dst+1}, s{lo+1}\ns_mov_b32 s{dst+2}, {nbytes}\ns_mov_b32 s{dst+3}, 0x20000")
def srds_rest():
    srd(SWO, 40, 663552); srd(SOUT, 44, 4718592); srd(SDBG, 46, 256); srd(SWS, 48, WS_SIZE)

class M0:
    def __init__(self, base): self.base = base; self.cur = None
    def set(self, imm):
        if self.cur is not None and -32768 <= imm - self.cur <= 32767:
            a(f"s_addk_i32 m0, {imm - self.cur}")
        else:
            a(f"s_add_u32 m0, s{self.base}, {imm}")
        self.cur = imm

CUR = [0]
def dma(voff, srd_, soff, half=False):
    if OPT.get("nodma") or (OPT.get("nos") and voff == VD + 6 and srd_ == SW and not half):
        return
    if half: a(f"s_mov_b64 exec, s[{sG01}:{sG01+1}]")
    nt = " nt" if OPT.get("nt", 0) >> {SX: 0, SW: 1, SWO: 2}[srd_] & 1 and CUR[0] < OPT.get("ntc", 99) else ""
    a(f"buffer_load_dwordx4 v{voff}, s[{srd_}:{srd_+3}], {soff} offen{nt} lds")
    if half: a("s_mov_b64 exec, -1")

def rd_lanes(r8, r2, t0, t1):
    a(f"""
v_lshrrev_b32 v{t0}, 5, v0
v_lshlrev_b32 v{t0}, 4, v{t0}
v_bfe_u32 v{t1}, v0, 4, 1
v_lshl_add_u32 v{t0}, v{t1}, 2, v{t0}
v_bfe_u32 v{t1}, v0, 2, 2
v_add_u32 v{t0}, v{t0}, v{t1}
v_and_b32 v{t1}, 3, v0
v_lshlrev_b32 v{t1}, 3, v{t1}
v_lshl_add_u32 v{r2}, v{t0}, 5, v{t1}
v_lshl_add_u32 v{r8}, v{t0}, 7, v{t1}
v_bfe_u32 v{t0}, v{t0}, 1, 2
v_lshl_add_u32 v{r8}, v{t0}, 5, v{r8}
""")
    for t in (1, 2, 3):
        a(f"v_xor_b32 v{r8+t}, {32*t}, v{r8}")

def x_lane(d0, d1, tmp):
    a(f"""
v_lshrrev_b32 v{d0}, 4, v0
v_bfe_u32 v{tmp}, v0, 1, 3
v_xor_b32 v{d0}, v{d0}, v{tmp}
v_and_b32 v{tmp}, 15, v0
v_lshlrev_b32 v{tmp}, 7, v{tmp}
v_lshl_add_u32 v{d0}, v{d0}, 4, v{tmp}
v_xor_b32 v{d1}, 64, v{d0}
""")

def col8(dst, tmp):
    a(f"v_bfe_u32 v{tmp}, v0, 4, 2\nv_lshlrev_b32 v{tmp}, 1, v{tmp}\nv_and_b32 v{dst}, 7, v0\nv_xor_b32 v{dst}, v{dst}, v{tmp}\nv_lshlrev_b32 v{dst}, 4, v{dst}")

def head_of(dst, src):
    a(f"v_mul_u32_u24 v{dst}, 57, v{src}\nv_lshrrev_b32 v{dst}, 10, v{dst}")

sOC, sKC, sFO, sFK = 92, 94, 96, 97

def arrive_wait(addr, target, label, arrive=True):
    if arrive:
        a(f"s_mov_b32 s{sT}, 1\ns_atomic_add s{sT}, s[{addr}:{addr+1}], 0 glc\ns_waitcnt lgkmcnt(0)\ns_cmp_ge_u32 s{sT}, {target-1}\ns_cbranch_scc1 {label}_x")
    a(f"""
s_mov_b32 s{sT3}, 0x20000
{label}:
s_mov_b32 s{sT}, 0
s_atomic_add s{sT}, s[{addr}:{addr+1}], 0 glc
s_waitcnt lgkmcnt(0)
s_sub_u32 s{sT3}, s{sT3}, 1
s_cbranch_scc1 {label}_x
s_cmp_ge_u32 s{sT}, {target}
s_cbranch_scc0 {label}
{label}_x:
""")

def flag_load(dst, offreg):
    a(f"s_load_dword s{dst}, s[{SDBG}:{SDBG+1}], s{offreg}")

def flag_check(val, offreg, label):
    a(f"""
s_mov_b32 s{sT3}, 0x20000
{label}:
s_waitcnt lgkmcnt(0)
s_cmp_lg_u32 s{val}, 0
s_cbranch_scc1 {label}_x
s_sub_u32 s{sT3}, s{sT3}, 1
s_cbranch_scc1 {label}_x
s_load_dword s{val}, s[{SDBG}:{SDBG+1}], s{offreg} glc
s_branch {label}
{label}_x:
""")

A_WSLOT, A_XSLOT = 14336, 18432
A_X0 = 5 * A_WSLOT
A_EX = A_X0 + 3 * A_XSLOT
B_KVSLOT, B_XSLOT = 9216, 16384
B_X0 = 5 * B_KVSLOT
B_EX = B_X0 + 3 * B_XSLOT
B_KVOP = 126976
B_STG = 136192
B_DUMP, B_LCNT = B_STG + 5632, B_STG + 6144
B_WQ0 = 143360
QORD = list(range(18))
def wq_slot(p):
    if p < 4: return B_WQ0 + 5120 * p
    if p < 7: return 5120 * (p - 4)
    if p < 13: return 40960 + 5120 * (p - 7)
    return 15360 + 5120 * (p - 13)
R1, R2 = 147456, 43008
WO = [R1, R1 + 5120, R1 + 10240] + [R2 + 5120 * n for n in range(6, 12)] + [0, 5120, 10240] + [R2 + 5120 * n for n in range(6)]
P_TR = 108544
SPLITS = {(1, 0): sG0, (2, 0): sG0, (2, 1): sG0, (3, 0): sG01, (3, 1): sG0}

VD = 16
VWO = 26
vCNT, vFLO, vFLK, vFO, vFK = 30, 31, 32, 33, 34

def w_head(kind):
    parts = (0, 1152, 2304) if kind == "A" else (1152, 2304)
    a(f"L_{kind}W0:")
    col8(VD, 1)
    a(f"""
v_bfe_u32 v1, v0, 5, 1
v_bfe_u32 v2, v0, 3, 2
v_lshl_add_u32 v1, v1, 3, v2
s_mul_i32 s{sT}, s{sV}, {16*3456}
s_add_u32 s{sT}, s{sT}, s{sM}
v_mul_u32_u24 v1, 3456, v1
v_add3_u32 v{VD}, v{VD}, v1, s{sT}
""")
    n = 2 * len(parts)
    for j in range(n - 1, -1, -1):
        off = parts[j // 2] + (j % 2) * 4 * 3456
        if off:
            a(f"v_add_u32 v{VD+j}, {off}, v{VD}")
    a(f"""
v_bfe_u32 v1, v0, 3, 1
v_bfe_u32 v2, v0, 4, 1
v_sub_u32 v1, v1, v2
v_lshrrev_b32 v2, 1, v0
v_lshl_add_u32 v1, v1, 2, v2
v_mul_u32_u24 v1, 3456, v1
v_and_b32 v2, 1, v0
""")
    if kind == "A" and OPT.get("shalf"):
        a(f"""
s_add_u32 s{sT}, s{sT}, 128
v_add_u32 v1, s{sT}, v1
v_add_u32 v{VD+7}, 2304, v1
v_mul_u32_u24 v2, 1152, v2
v_add_u32 v{VD+6}, v2, v1
""")
    elif kind == "A":
        a(f"""
s_cmp_eq_u32 s{sV}, 0
s_cselect_b32 s{sT2}, 1152, 0
s_cselect_b32 s{sT}, 0, 2304
s_add_u32 s{sT}, s{sT}, s{sM}
s_addk_i32 s{sT}, 128
v_mad_u32_u24 v1, v2, s{sT2}, v1
v_add_u32 v{VD+6}, s{sT}, v1
""")
    else:
        a(f"""
s_add_u32 s{sT}, s{sT}, 128
v_add_u32 v{VD+7}, s{sT}, v1
v_mul_u32_u24 v2, 1152, v2
v_add_u32 v2, 1152, v2
v_add_u32 v{VD+4}, v2, v{VD+7}
""")
    a(f"s_lshl_b32 s42, s{sV}, 11\ns_lshl_b32 s43, s{sV}, {10 if kind == 'A' and not OPT.get('shalf') else 9}\ns_sub_u32 s43, s43, s42")
    a("s_waitcnt lgkmcnt(0)")
    srd(SW, 38, 1990656)
    m = M0(42)
    w_issue(kind, 0, m)
    a(f"s_branch L_{kind}W1")

def w_issue(kind, c, m):
    CUR[0] = c
    slot = (c % 5) * (A_WSLOT if kind == "A" else B_KVSLOT)
    n = 6 if kind == "A" else 4
    so = f"s{sK}" if c else "0"
    if OPT.get("rot"):
        so = "s90"
        if c:
            a(f"s_add_u32 s90, s90, {32*3456}\ns_cmp_eq_u32 s90, {18*32*3456}\ns_cselect_b32 s90, 0, s90")
    elif c:
        a(f"s_mov_b32 s{sK}, {c*32*3456}")
    for j in range(n):
        m.set(slot + 4096 * (j // 2) + 1024 * (j % 2))
        dma(VD + j, SW, so)
        if OPT.get("lp") == 10 + j and c == OPT.get("lpi", 6) + 4 and kind == "A":
            stamp()
            j_ = sST + 2*(nstamp[0]-1)
            a(f"s_waitcnt lgkmcnt(0)\ns_sub_u32 s{j_}, s{j_}, s100\ns_lshl_b32 s{j_}, s{j_}, 4\ns_add_u32 s{j_}, s{j_}, s100")
        if kind == "A" and OPT.get("shalf") and j in (3, 5):
            m.set(slot + (12288 if j == 3 else 13312))
            a("s_add_u32 m0, m0, s43")
            m.cur = None
            dma(VD + (6 if j == 3 else 7), SW, so, half=True)
    if kind == "A" and OPT.get("shalf"):
        return 8
    m.set(slot + 4096 * (n // 2))
    a("s_add_u32 m0, m0, s43")
    m.cur = None
    dma(VD + n, SW, so, half=(kind == "B"))
    return n + 1

def wq_issue(p, m):
    if OPT.get("rot"):
        a(f"s_add_u32 s{sK}, s90, {(p+1)*32*3456}\ns_cmp_ge_u32 s{sK}, {18*32*3456}\ns_cselect_b32 s{sT}, {18*32*3456}, 0\ns_sub_u32 s{sK}, s{sK}, s{sT}")
    else:
        a(f"s_mov_b32 s{sK}, {QORD[p]*32*3456}")
    for j in range(2):
        m.set(wq_slot(p) + 1024 * j)
        dma(VD + 5 + j, SW, f"s{sK}")
    m.set(wq_slot(p) + 4096)
    a("s_add_u32 m0, m0, s43")
    m.cur = None
    dma(VD + 7, SW, f"s{sK}", half=True)
    return 3

def x_head(kind):
    nq = 9 if kind == "A" else 8
    a(f"L_{kind}X0:")
    a(f"""
v_lshrrev_b32 v1, 3, v0
v_mul_u32_u24 v1, {2304 if kind == 'A' else 1152}, v1
v_lshrrev_b32 v2, 4, v0
v_lshl_add_u32 v2, s{sV}, 2, v2
v_and_b32 v3, 7, v0
v_xor_b32 v2, v2, v3
v_lshl_add_u32 v1, v2, 4, v1
s_mul_i32 s{sT}, s{sRB}, {128*1152}
""")
    if kind == "A":
        a(f"""
s_mul_i32 s{sT2}, s{sV}, {16*1152}
s_add_u32 s{sT3}, s{sT}, s{sT2}
v_add_u32 v{VD}, s{sT3}, v1
s_sub_u32 s{sT3}, s{sT}, s{sT2}
s_add_u32 s{sT3}, s{sT3}, {17*1152}
v_add_u32 v{VD+4}, s{sT3}, v1
s_mul_i32 s{sT2}, s{sV}, 1152
s_sub_u32 s{sT3}, s{sT}, s{sT2}
s_sub_u32 s{sT3}, s{sT3}, {15*1152}
v_add_u32 v{VD+8}, s{sT3}, v1
""")
        for q in (1, 2, 3):
            a(f"v_add_u32 v{VD+q}, {32*1152*q}, v{VD}\nv_add_u32 v{VD+4+q}, {32*1152*q}, v{VD+4}")
    else:
        a(f"s_mul_i32 s{sT2}, s{sV}, {8*1152}\ns_add_u32 s{sT}, s{sT}, s{sT2}\nv_add_u32 v{VD}, s{sT}, v1")
        for q in range(1, 8):
            a(f"v_add_u32 v{VD+q}, {16*1152*q}, v{VD}")
    a(f"s_lshl_b32 s42, s{sV}, 10")
    a("s_waitcnt lgkmcnt(0)")
    srd(SX, 36, 2359296)
    x_issue(kind, 0, M0(42))
    a(f"s_branch L_{kind}X1")

def x_issue(kind, c, m):
    CUR[0] = c + (c & 1)
    nq, h, x0, xs = (9, 5, A_X0, A_XSLOT) if kind == "A" else (8, 4, B_X0, B_XSLOT)
    st = (c + 1) // 2
    if st > 8:
        return 0
    qs = range(nq) if c == 0 else (range(h) if c % 2 else range(h, nq))
    so = f"s{sK}" if st else "0"
    if OPT.get("rot"):
        so = "s91"
        if c % 2:
            a("s_addk_i32 s91, 128\ns_cmpk_eq_u32 s91, 1152\ns_cselect_b32 s91, 0, s91")
    elif st:
        a(f"s_movk_i32 s{sK}, {st*128}")
    for q in qs:
        m.set(x0 + (st % 3) * xs + 2048 * q)
        a("s_nop 0")
        dma(VD + q, SX, so)
    return len(qs)

def wo_setup(quad):
    col8(VWO, 1)
    a(f"""
s_mul_i32 s{sM}, s{sHG}, 144
v_add_u32 v{VWO}, s{sM}, v{VWO}
v_bfe_u32 v1, v0, 5, 1
v_bfe_u32 v2, v0, 3, 2
v_mul_u32_u24 v1, 72, v1
v_add_u32 v1, v1, v2
v_mul_u32_u24 v1, 1152, v1
v_add_u32 v{VWO+1}, v1, v{VWO}
v_lshrrev_b32 v1, 3, v0
v_mul_u32_u24 v1, 1152, v1
v_add_u32 v{VWO}, v1, v{VWO}
v_bfe_u32 v1, v0, 1, 2
v_bfe_u32 v2, v0, 3, 1
v_bfe_u32 v3, v0, 4, 1
v_bfe_u32 v4, v0, 5, 1
v_lshl_add_u32 v5, v2, 2, v1
v_lshl_add_u32 v5, v3, 4, v5
v_lshl_add_u32 v5, v4, 3, v5
v_mul_u32_u24 v5, 1152, v5
s_add_u32 s{sM}, s{sM}, 128
v_add_u32 v{VWO+2}, s{sM}, v5
v_lshl_add_u32 v5, v3, 2, v1
v_lshl_add_u32 v2, v4, 1, v2
v_mul_u32_u24 v2, 72, v2
v_add_u32 v5, v5, v2
v_mul_u32_u24 v5, 1152, v5
v_add_u32 v{VWO+3}, s{sM}, v5
s_and_b32 s55, s{sWAVE}, 3
s_lshl_b32 s57, s55, 3
""")
    rho(56)
    a(f"s_add_u32 s56, s56, s{55 if quad else sV}")

def rho(dst):
    few, many = (sRB, sHG) if OPT["mapping"] in (48, 44) else (sHG, sRB)
    if OPT["mapping"] > 99:
        a(f"s_cmp_eq_u32 s{sBR}, {0 if OPT['mapping'] == 8448 else 1}\ns_cselect_b32 s{sT}, s{sHG}, s{sRB}\ns_cselect_b32 s{sT2}, s{sRB}, s{sHG}")
        few, many = sT, sT2
    a(f"s_lshl_b32 s{dst}, s{few}, 1\ns_add_u32 s{dst}, s{dst}, s{many}\ns_lshl_b32 s{dst}, s{dst}, 1")
    if not OPT.get("worot", 1):
        a(f"s_mov_b32 s{dst}, 0")

def wo_chunk(left, fadd):
    if left:
        a(f"s_mul_i32 s{sK}, s{sV}, {288*1152}\ns_add_u32 s{sK}, s{sK}, {64*1152}")
        steps = (4, 140, 4); v8, v2 = VWO + 1, VWO + 3
    else:
        a(f"""
s_add_u32 s{sT}, s56, {fadd}
s_bfe_u32 s{sK}, s{sT}, 0x30001
s_mul_i32 s{sK}, s{sK}, {72*1152}
s_bitcmp1_b32 s{sT}, 0
s_cselect_b32 s{sT}, {32*1152}, 0
s_add_u32 s{sK}, s{sK}, s{sT}
""")
        steps = (16, -8, 16); v8, v2 = VWO, VWO + 2
    a(f"s_mov_b32 s{sT2}, s{sK}")
    for j in range(4):
        dma(v8, SWO, f"s{sK}")
        a("s_addk_i32 m0, 1024")
        a(f"s_add_u32 s{sK}, s{sK}, {steps[j]*1152 & 0xffffffff}" if j < 3 else "s_nop 0")
    dma(v2, SWO, f"s{sT2}")
    return 5

def wo_issue(q):
    packed = sum((WO[2 + 4*q + w] // 1024) << (8 * w) for w in range(4))
    a(f"s_lshr_b32 s{sT}, {packed}, s57\ns_and_b32 s{sT}, s{sT}, 0xff\ns_lshl_b32 m0, s{sT}, 10")
    return wo_chunk(False, 4*q)

def wo_pair(g):
    a(f"s_mul_i32 s{sT}, s{sV}, {WO[2*g+1] - WO[2*g] & 0xffffffff}\ns_add_u32 m0, s{sT}, {WO[2*g]}")
    return wo_chunk(g == 0, 2*g - 2)

def sync_setup():
    a(f"""
s_lshl_b32 s{sT}, s{sBR}, 4
s_add_u32 s{sT}, s{sT}, s{sRB}
s_lshl_b32 s{sT2}, s{sT}, 8
s_add_u32 s{sT2}, s{sT2}, {WS_CNT}
s_add_u32 s{sOC}, s{SWS}, s{sT2}
s_addc_u32 s{sOC+1}, s{SWS+1}, 0
s_lshl_b32 s{sT}, s{sT}, 2
s_add_u32 s98, s{sT}, 32
s_lshl_b32 s99, s{sHG}, 2
s_mul_i32 s{sT2}, s{sHG}, {KV_ST}
s_add_u32 s{sT2}, s{sT2}, {WS_KV + 6144}
s_add_u32 s{sKC}, s{SWS}, s{sT2}
s_addc_u32 s{sKC+1}, s{SWS+1}, 0
""")

def loader_tail(tag, late=()):
    if tag[1] == "X":
        flag_check(sFO, 98, f"L_{tag}_fo")
    a("s_barrier")
    stamp()
    for g in late:
        wo_pair(g)
    if tag[1] == "X":
        a(f"s_cmp_eq_u32 s{sWAVE}, 6\ns_cbranch_scc0 L_{tag}_oc_x")
        arrive_wait(sOC, 8, f"L_{tag}_oc")
    a("s_waitcnt vmcnt(0)")
    stamp()
    a("s_barrier")
    stamps_out({"AW": 4, "AX": 6}.get(tag, -1))
    a("s_endpgm")

def a_loader(kind):
    a(f"L_A{kind}1:")
    m = M0(42)
    issue = (lambda c: w_issue("A", c, m)) if kind == "W" else (lambda c: x_issue("A", c, m))
    if OPT.get("prepass"):
        a("s_mov_b32 s58, s90\ns_mov_b32 s59, s91")
        n_ = {}
        for c in range(1, 18):
            if OPT["prepass"] == 2:
                a("s_mov_b32 s90, s58\ns_mov_b32 s91, s59")
            n_[c] = issue(c)
            a(f"s_waitcnt vmcnt({n_[c] + n_.get(c-1, 0)})")
            if c in (4, 9):
                stamp()
        a("s_waitcnt vmcnt(0)")
        stamp()
        a("s_barrier\ns_mov_b32 s90, s58\ns_mov_b32 s91, s59")
        m.cur = None
        issue(0)
    pre = 1 if OPT.get("early") and kind == "W" else 2
    cnt = {c: issue(c) for c in range(1, pre + 1)}
    stamp()
    x_lane(8, 9, 1)
    rd_lanes(36, 12, 1, 2)
    a(f"""
v_add_u32 v8, {A_X0 + 8*2048}, v8
v_add_u32 v9, {A_X0 + 8*2048}, v9
s_lshl_b32 s{sT}, s{sV}, 6
v_xor_b32 v10, s{sT}, v36
v_add_u32 v10, {4096 if kind == 'W' else 8192}, v10
v_xor_b32 v11, 32, v10
v_add_u32 v12, {12288 if kind == 'W' else 13312}, v12
v_add_u32 v13, {4*A_WSLOT}, v10
v_add_u32 v14, {4*A_WSLOT}, v11
v_add_u32 v15, {4*A_WSLOT}, v12
s_lshl_b32 s{sT}, s{sV}, 10
s_add_u32 s{sT}, s{sT}, {A_EX + (0 if kind == 'W' else 2560)}
v_lshlrev_b32 v7, 3, v0
v_add_u32 v6, s{sT}, v7
v_add_u32 v7, {A_EX + (2048 if kind == 'W' else 4608)}, v7
""")
    stamp()
    a(f"s_waitcnt vmcnt({sum(cnt.values())})\ns_barrier")
    stamp()
    extra = 0
    for i in range(-1, 17):
        ks = i + 1
        slot = ks % 5
        off = 0 if slot == 4 else slot * A_WSLOT
        ad = (13, 14, 15) if slot == 4 else (10, 11, 12)
        def lp(n):
            if OPT.get("lp") == n and i == OPT.get("lpi", 6):
                stamp()
                j_ = sST + 2*(nstamp[0]-1)
                a(f"s_waitcnt lgkmcnt(0)\ns_sub_u32 s{j_}, s{j_}, s100\ns_lshl_b32 s{j_}, s{j_}, 4\ns_add_u32 s{j_}, s{j_}, s100")
        if OPT.get("stat") and kind == "X" and 2 <= i <= 13:
            a("s_memtime s[38:39]")
        if OPT.get("lp") and i == OPT.get("lpi", 6):
            a("s_memtime s[100:101]")
            if OPT["lp"] == 5:
                a(".rept 128\ns_mov_b32 s39, 0x12345\n.endr")
                lp(5)
        a(f"ds_read_b128 v[40:43], v{8 + ks % 2} offset:{(ks//2 % 3)*A_XSLOT}")
        for j in range(3 if OPT.get("nohalo", 0) < 2 else 0):
            a(tr(44 + 4*j, ad[j], off)); a(tr(46 + 4*j, ad[j], off + (1024 if j < 2 else 256)))
        if i == -1 and pre == 1:
            cnt[2] = issue(2)
        if i + 4 <= 17:
            cnt[i+4] = issue(i + 4)
        lp(1)
        a("s_waitcnt lgkmcnt(0)")
        if OPT.get("stat") and kind == "X" and 2 <= i <= 13:
            if i == 2:
                a(f"s_mov_b32 s36, {0xffff if OPT['stat'] == 1 else 0}")
            else:
                a("s_sub_u32 s41, s38, s37")
                if OPT["stat"] == 3:
                    a("s_cmp_gt_u32 s41, 800\ns_cselect_b32 s41, 100, 0\ns_add_u32 s36, s36, s41")
                else:
                    a(f"s_{'min' if OPT['stat'] == 1 else 'max'}_u32 s36, s36, s41")
            a("s_mov_b32 s37, s38")
            if i == 13:
                a(f"s_lshl_b32 s36, s36, 4\ns_add_u32 s{sST + 2*13}, s36, s100")
        for j in range(3 if not OPT.get("nohalo") else 0):
            c = 60 + 4*j if ks else "0"
            a(mf(60 + 4*j, 44 + 4*j, 40, c) if kind == "W" else mf(60 + 4*j, 40, 44 + 4*j, c))
        if i == 1:
            srds_rest(); sync_setup()
        if i == 2:
            wo_setup(True)
        if i == 14 and kind == "W":
            extra += wo_pair(0)
        if i == 15:
            extra += wo_issue(0)
        if i + 1 <= 16:
            left = sum(cnt.get(c, 0) for c in range(i + 3, min(i + 4, 17) + 1)) + extra
            lp(2)
            a(f"s_waitcnt vmcnt({left})")
            lp(3)
            a("s_barrier")
            lp(4)
            if OPT.get("fine") and kind == "W" and i % 2 == 1 and 0 < i < 14:
                stamp()
    for j in range(3):
        a(cv(44 + 2*j, 60 + 4*j)); a(cv(45 + 2*j, 62 + 4*j))
    if kind == "W":
        a("v_mov_b32 v50, 0\nv_mov_b32 v51, 0")
        a("v_permlane32_swap_b32 v48, v50\nv_permlane32_swap_b32 v49, v51")
    a("ds_write_b64 v6, v[44:45]\nds_write_b64 v6, v[46:47] offset:512")
    a(f"ds_write_b64 v7, {'v[50:51]' if kind == 'W' else 'v[48:49]'}")
    stamp()
    a("s_waitcnt lgkmcnt(0)\ns_barrier")
    if kind == "X":
        flag_load(sFO, 98)
    wo_issue(1); wo_issue(2); wo_issue(3)
    stamp()
    loader_tail("A" + kind)

def o_store_addr(vfull, vleft, tmp, left_lo):
    a(f"""
s_lshl_b32 s{sT}, s{sRB}, 3
s_lshl_b32 s{sT2}, s{sWAVE}, 1
s_add_u32 s{sT}, s{sT}, s{sT2}
s_mul_i32 s{sT}, s{sT}, 18432
s_mul_i32 s{sT2}, s{sBR}, {O_BR}
s_add_u32 s58, s{sT}, s{sT2}
s_lshl_b32 s{sT2}, s{sHG}, 11
s_add_u32 s{sT2}, s{sT2}, s58
v_lshl_add_u32 v{vfull}, v0, 4, s{sT2}
s_lshr_b32 s{sT2}, s{sHG}, 2
s_add_u32 s{sT2}, s{sT2}, 16
s_lshl_b32 s{sT2}, s{sT2}, 10
s_add_u32 s{sT}, s58, s{sT2}
s_and_b32 s{sT2}, s{sHG}, 3
s_lshl_b32 s{sT2}, s{sT2}, 8
s_add_u32 s{sT}, s{sT}, s{sT2}
v_and_b32 v{vleft}, 15, v0
v_lshlrev_b32 v{vleft}, 4, v{vleft}
v_bfe_u32 v{tmp}, v0, 4, 1
v_lshl_add_u32 v{vleft}, v{tmp}, 3, v{vleft}
v_add_u32 v{vleft}, s{sT}, v{vleft}
v_mov_b32 v{tmp}, {OOB}
""")
    x, y = (tmp, vleft) if left_lo else (vleft, tmp)
    a(f"v_cndmask_b32 v{vleft}, v{x}, v{y}, s[{sG01}:{sG01+1}]")

FLAGS = ["", " nt", " sc1", " sc1 nt", " sc0 sc1"]
def o_store(of, vfull, vleft, rt):
    so = f"s{sK}" if rt else "0"
    fl = FLAGS[OPT.get("ost", 2)]
    if rt:
        a(f"s_movk_i32 s{sK}, 18432")
    a(f"buffer_store_dwordx4 {vr(of,4)}, v{vfull}, s[{SWS}:{SWS+3}], {so} offen{fl}")
    a(f"buffer_store_dwordx4 {vr(of+4,4)}, v{vfull}, s[{SWS}:{SWS+3}], {so} offen offset:1024{fl}")
    a(f"buffer_store_dwordx2 {vr(of+8,2)}, v{vleft}, s[{SWS}:{SWS+3}], {so} offen{fl}")

def gap_touch(tag, parts):
    if not OPT.get("touch"):
        return
    nt = " nt" if OPT.get("tnt") else ""
    a(f"""
s_cmp_eq_u32 s{sWAVE}, 1
s_cbranch_scc1 L_{tag}_tw
s_cmp_eq_u32 s{sWAVE}, 2
s_cbranch_scc0 L_{tag}_tx
s_and_b32 s{sT}, s{sRB}, 7
s_cmp_eq_u32 s{sT}, 0
s_cselect_b32 s{sT}, 9, s{sT}
s_sub_u32 s{sT}, s{sT}, 1
s_lshl_b32 s{sT}, s{sT}, 7
s_and_b32 s{sT2}, s{sHG}, 3
s_lshl_b32 s{sT2}, s{sT2}, 5
s_lshl_b32 s{sT3}, s{sRB}, 7
s_add_u32 s{sT2}, s{sT2}, s{sT3}
v_and_b32 v1, 31, v0
v_add_u32 v1, s{sT2}, v1
v_mul_u32_u24 v1, 1152, v1
""")
    srd(SX, 36, 2359296)
    a(f"""
buffer_load_dword v26, v1, s[{SX}:{SX+3}], s{sT} offen{nt}
s_branch L_{tag}_tx
L_{tag}_tw:
s_and_b32 s{sT}, s{sHG}, 3
s_lshl_b32 s{sT}, s{sT}, 1
s_cmp_eq_u32 s{sT}, 0
s_cselect_b32 s{sT}, 9, s{sT}
s_sub_u32 s{sT}, s{sT}, 1
s_lshl_b32 s{sT}, s{sT}, 3
s_and_b32 s{sT2}, s{sRB}, 7
s_add_u32 s{sT}, s{sT}, s{sT2}
s_mul_i32 s{sT}, s{sT}, {8*3456}
s_add_u32 s{sT}, s{sT}, s{sM}
v_lshrrev_b32 v1, 3, v0
v_mul_u32_u24 v1, 3456, v1
v_bfe_u32 v2, v0, 1, 2
v_min_u32 v2, {parts-1}, v2
v_mul_u32_u24 v2, 1152, v2
v_and_b32 v3, 1, v0
v_mul_u32_u24 v3, 140, v3
v_add3_u32 v1, v1, v2, v3
""")
    srd(SW, 38, 1990656)
    a(f"buffer_load_dword v26, v1, s[{SW}:{SW+3}], s{sT} offen offset:{1152*(3-parts)}{nt}\nL_{tag}_tx:")

def init_stores(tag, with_kv):
    if OPT.get("skew"):
        a(f"v_mov_b32 v2, s{sST}\ns_lshl_b32 s{sT}, s2, 2\ns_add_u32 s{sT}, s{sT}, 0x6f0000\nv_mov_b32 v1, s{sT}\nbuffer_store_dword v2, v1, s[{SWS}:{SWS+3}], 0 offen sc1")
    if OPT.get("xcc"):
        a(f"s_getreg_b32 s{sT}, hwreg(HW_REG_XCC_ID, 0, 4)\nv_mov_b32 v2, s{sT}\ns_lshl_b32 s{sT}, s2, 2\ns_add_u32 s{sT}, s{sT}, 0x6f0000\nv_mov_b32 v1, s{sT}\nbuffer_store_dword v2, v1, s[{SWS}:{SWS+3}], 0 offen sc1")
    a(f"""
s_or_b32 s{sT}, s{sHG}, s{sWAVE}
s_cmp_eq_u32 s{sT}, 0
s_cselect_b32 s55, 1, 0
v_mov_b32 v20, 0
v_mov_b32 v21, 0
v_mov_b32 v22, 0
v_mov_b32 v23, 0
s_cbranch_scc0 L_{tag}_i1
s_lshl_b32 s{sT}, s{sBR}, 4
s_add_u32 s{sT}, s{sT}, s{sRB}
s_lshl_b32 s{sT}, s{sT}, 8
s_add_u32 s{sT}, s{sT}, {WS_CNT}
v_mov_b32 v24, s{sT}
buffer_store_dword v20, v24, s[{SWS}:{SWS+3}], 0 offen sc1
L_{tag}_i1:
""")
    if with_kv:
        a(f"""
s_or_b32 s{sT}, s{sRB}, s{sWAVE}
s_cmp_eq_u32 s{sT}, 0
s_cbranch_scc0 L_{tag}_i2
s_or_b32 s55, s55, 2
s_mul_i32 s{sT}, s{sHG}, {KV_ST}
s_add_u32 s{sT}, s{sT}, {WS_KV}
v_lshl_add_u32 v24, v0, 4, s{sT}
""")
        for j in range(7):
            a(f"s_movk_i32 s{sK}, {1024*j}\nbuffer_store_dwordx4 v[20:23], v24, s[{SWS}:{SWS+3}], s{sK} offen sc1")
        a(f"L_{tag}_i2:")

def init_flags(tag):
    a(f"""
s_waitcnt vmcnt(0)
s_cmp_eq_u32 s55, 0
s_cbranch_scc1 L_{tag}_f2
v_mov_b32 v20, 1
s_bitcmp1_b32 s55, 0
s_cbranch_scc0 L_{tag}_f1
s_lshl_b32 s{sT}, s{sBR}, 4
s_add_u32 s{sT}, s{sT}, s{sRB}
s_lshl_b32 s{sT}, s{sT}, 2
s_add_u32 s{sT}, s{sT}, 32
v_mov_b32 v24, s{sT}
buffer_store_dword v20, v24, s[{SDBG}:{SDBG+3}], 0 offen sc1
L_{tag}_f1:
s_bitcmp1_b32 s55, 1
s_cbranch_scc0 L_{tag}_f2
s_lshl_b32 s{sT}, s{sHG}, 2
v_mov_b32 v25, s{sT}
buffer_store_dword v20, v25, s[{SDBG}:{SDBG+3}], 0 offen sc1
L_{tag}_f2:
""")

def kstep(tiles, nxt_reads, first, waits):
    pend = list(first)
    for t, (m0_, m1_) in enumerate(tiles):
        if t in waits:
            a(waits[t])
        a(m0_)
        for x in pend: a(x)
        a(m1_)
        pend = []
        if nxt_reads:
            a(nxt_reads[t][0]); pend = [nxt_reads[t][1]]
    for x in pend: a(x)

def a_consumer():
    acc = lambda t, rt: 144 + (t * 2 + rt) * 4
    wf = lambda t: 88 + 4 * t
    xf = lambda buf, rt: 72 + buf * 8 + rt * 4
    R8, R2, R8b, R2b, aX = 1, 5, 6, 10, 11
    vOF, vOL, vEXW, vEXR = 13, 14, 15, 16
    MC, MP, MPF, PM = 56, 60, 64, 68
    a("L_AC:\ns_waitcnt lgkmcnt(0)")
    gap_touch("AC", 3)
    srds_rest()
    init_stores("AC", False)
    rd_lanes(R8, R2, 17, 18); x_lane(aX, aX + 1, 17)
    for j in range(5):
        a(f"v_add_u32 v{R8b+j}, {4*A_WSLOT}, v{R8+j}")
    a(f"""
s_lshl_b32 s{sT}, s{sWAVE}, 12
s_add_u32 s{sT}, s{sT}, {A_X0}
v_add_u32 v{aX}, s{sT}, v{aX}
v_add_u32 v{aX+1}, s{sT}, v{aX+1}
s_lshr_b32 s{sT}, s{sWAVE}, 1
s_lshl_b32 s{sT}, s{sT}, 3
v_and_b32 v17, 15, v0
v_xor_b32 v17, s{sT}, v17
v_lshrrev_b32 v18, 4, v0
v_lshlrev_b32 v18, 2, v18
v_xor_b32 v18, s{sT}, v18
v_sub_u32 v17, v17, v18
v_mov_b32 v19, {NEG}
s_and_b32 s{sT}, s{sWAVE}, 1
s_or_b32 s{sT}, s{sT}, s{sRB}
s_cmp_eq_u32 s{sT}, 0
s_cselect_b64 s[42:43], -1, 0
""")
    for r in range(4):
        a(f"""
v_subrev_u32 v18, {r}, v17
v_cmp_gt_u32 vcc, 8, v18
v_cndmask_b32 v{MC+r}, v19, 0, vcc
v_cmp_gt_i32 vcc, -8, v18
v_cndmask_b32 v{MP+r}, v19, 0, vcc
v_cndmask_b32 v{MPF+r}, v{MP+r}, v19, s[42:43]
v_cmp_lt_i32 vcc, -1, v18
v_mov_b32 v20, {'0xffff' if r % 2 == 0 else '0xffff0000'}
v_cndmask_b32 v20, 0, v20, vcc
""")
        a(f"v_mov_b32 v{PM + r//2}, v20" if r % 2 == 0 else f"v_or_b32 v{PM + r//2}, v{PM + r//2}, v20")
    o_store_addr(vOF, vOL, 17, True)
    a(f"""
s_lshr_b32 s{sT}, s{sWAVE}, 1
s_add_u32 s{sT}, s{sT}, 1
s_mul_i32 s{sT}, s{sT}, 5120
s_bitcmp1_b32 s{sWAVE}, 0
s_cselect_b32 s{sT3}, s{sT}, 0
v_lshlrev_b32 v17, 3, v0
v_add_u32 v17, {A_EX}, v17
v_add_u32 v{vEXW}, s{sT}, v17
v_add_u32 v{vEXR}, s{sT3}, v17
""")

    def wreads(ks, t):
        slot = ks % 5
        o = 0 if slot == 4 else slot * A_WSLOT
        r8, r2 = (R8b, R2b) if slot == 4 else (R8, R2)
        if t == 4 or t == 13:
            o += 12288 if t == 4 else 13312
            return [tr(wf(t), r2, o), tr(wf(t) + 2, r2, o + 256)]
        s, j = (0, t) if t < 4 else (1, t - 5) if t < 9 else (2, t - 9)
        return [tr(wf(t), r8 + j, o + 4096*s), tr(wf(t) + 2, r8 + j, o + 4096*s + 1024)]
    xread = lambda ks, rt: f"ds_read_b128 {vr(xf(ks % 2, rt),4)}, v{aX + ks % 2} offset:{(ks//2 % 3)*A_XSLOT + rt*2048}"

    if OPT.get("prepass"):
        a("s_barrier")
    stamp()
    a("s_barrier")
    stamp()
    a(xread(0, 0)); a(xread(0, 1))
    for t in range(14):
        for x in wreads(0, t): a(x)
    for ks in range(18):
        if OPT.get("body") and ks == OPT["body"] + 1:
            stamp()
            j_ = sST + 2*(nstamp[0]-1)
            a(f"s_waitcnt lgkmcnt(0)\ns_sub_u32 s{j_}, s{j_}, s100\ns_lshl_b32 s{j_}, s{j_}, 4\ns_add_u32 s{j_}, s{j_}, s100")
        if OPT.get("span") and ks == OPT["span"] + 4:
            a("s_barrier")
            stamp()
            j_ = sST + 2*(nstamp[0]-1)
            a(f"s_waitcnt lgkmcnt(0)\ns_sub_u32 s{j_}, s{j_}, s100\ns_lshl_b32 s{j_}, s{j_}, 2\ns_add_u32 s{j_}, s{j_}, s100")
        elif ks < 17:
            a("s_barrier")
        if ks and ks in (OPT.get("body"), OPT.get("span")):
            a("s_memtime s[100:101]")
        if OPT.get("fine") == 2 and ks in (2, 5, 8, 11, 14):
            stamp()
        if OPT.get("ret", 0) > 3 and ks == 1:
            base, off = {4: (38, 520*3456 + 160), 5: (36, 5*1152 + 1024), 6: (38, 200*3456 + 160), 7: (38, 520*3456 + 1152 + 160)}[OPT["ret"]]
            a(f"s_mul_i32 s40, s{sWAVE}, {3456 if base == 38 else 1152}\ns_add_u32 s40, s40, {off - 64}\ns_add_u32 s40, s40, s{base}\ns_addc_u32 s41, s{base+1}, 0")
        elif OPT.get("ret") and ks == 1:
            a(f"s_lshl_b32 s40, s2, 10\ns_lshl_b32 s41, s{sWAVE}, 8\ns_add_u32 s40, s40, s41\ns_add_u32 s40, s40, 0x580000\ns_add_u32 s40, s40, s{SWS}\ns_addc_u32 s41, s{SWS+1}, 0")
            if OPT["ret"] == 1:
                a("v_mov_b32 v28, 0\nglobal_load_dword v29, v28, s[40:41]")
        if OPT.get("ret") and ks == OPT.get("at", 7):
            if OPT["ret"] == 2:
                a("v_mov_b32 v28, 0\nglobal_load_dword v29, v28, s[40:41]\ns_waitcnt vmcnt(0)")
            a("s_waitcnt lgkmcnt(0)\ns_memtime s[100:101]\ns_waitcnt lgkmcnt(0)\ns_load_dword s38, s[40:41], 64\ns_waitcnt lgkmcnt(0)")
            stamp()
            j_ = sST + 2*(nstamp[0]-1)
            a(f"s_waitcnt lgkmcnt(0)\ns_sub_u32 s{j_}, s{j_}, s100\ns_lshl_b32 s{j_}, s{j_}, 3\ns_add_u32 s{j_}, s{j_}, s100")
        if OPT.get("dummy") == ks:
            if OPT.get("dpre"):
                a("s_getpc_b64 s[38:39]\nv_lshlrev_b32 v28, 7, v0\nv_min_u32 v28, 2304, v28\nglobal_load_dword v29, v28, s[38:39]\ns_waitcnt vmcnt(0)")
            a("s_waitcnt lgkmcnt(0)\ns_memtime s[100:101]\ns_memrealtime s[40:41]\ns_waitcnt lgkmcnt(0)")
            for n in range(128):
                kind = OPT.get("dkind", 0)
                if kind == 0:
                    a(mf(28 + 4 * (n % 4), 88, 72, "0"))
                elif kind == 1:
                    a(f"v_add3_u32 v{28 + n % 8}, v0, v0, v0\nv_add3_u32 v{36 + n % 8}, v0, v0, v0")
                else:
                    a(f"ds_read_b128 v[{28 + 4 * (n % 4)}:{31 + 4 * (n % 4)}], v{aX} offset:0")
            a("s_waitcnt lgkmcnt(0)")
            stamp()
            a("s_waitcnt lgkmcnt(0)")
            if not OPT.get("cyc"):
                a(f"s_sub_u32 s40, s{sST + 2*(nstamp[0]-1)}, s40\ns_add_u32 s{sST + 2*(nstamp[0]-1)}, s{sST}, s40")
        if ks == 3:
            init_flags("AC")
        tiles = []
        for t in range(14):
            c = lambda rt: acc(t, rt) if ks else "0"
            tiles.append([mf(acc(t, rt), wf(t), xf(ks % 2, rt), c(rt)) if t < 9 else mf(acc(t, rt), xf(ks % 2, rt), wf(t), c(rt)) for rt in range(2)])
        if ks < 17:
            nxt = [wreads(ks + 1, t) for t in range(14)]
            nxt[1] = [nxt[1][0], nxt[1][1] + "\n" + xread(ks + 1, 1)]
            kstep(tiles, nxt, [xread(ks + 1, 0)], {0: "s_waitcnt lgkmcnt(14)", 7: "s_waitcnt lgkmcnt(15)", 12: "s_waitcnt lgkmcnt(15)"})
        else:
            kstep(tiles, None, [], {0: "s_waitcnt lgkmcnt(14)", 7: "s_waitcnt lgkmcnt(0)"})
    stamp()
    KP = lambda j: 18 + 10 * j
    QT = lambda rt, h: 88 + 16 * rt + 4 * h
    VP = lambda t, j: 120 + 6 * t + 2 * j if t < 4 else 48 + 2 * j
    ONE = 72
    def pack_kv(rt):
        o = []
        for q in range(2):
            o += [cv(QT(rt, 3) + 2 + q, acc(4, rt) + 2*q), f"v_mov_b32 v{KP(1+rt) + 8 + q}, 0"]
        for tau in range(4):
            o += [cv(KP(1+rt) + 2*tau + q, acc(5+tau, rt) + 2*q) for q in range(2)]
        o += [f"v_permlane32_swap_b32 v{QT(rt,3) + 2 + q}, v{KP(1+rt) + 8 + q}" for q in range(2)]
        for t in range(5):
            o += [cv(VP(t, 1+rt) + q, acc(9+t, rt) + 2*q) for q in range(2)]
        return o
    def pack_q(rt):
        o = []
        for t in range(4):
            for q in range(2):
                d = QT(rt, t) + q
                o.append(cv(d, acc(t, rt) + 2*q))
                if (t, q) in SPLITS:
                    m = SPLITS[(t, q)]; lo = QT(rt, t-1) + 2 + q
                    o += [f"v_cndmask_b32 v{lo}, 0, v{d}, s[{m}:{m+1}]", f"v_xor_b32 v{d}, v{d}, v{lo}"]
        return o + [f"v_mov_b32 v{QT(rt,0) + 3}, 0"]
    weave([], pack_kv(1))
    a(f"s_bitcmp1_b32 s{sWAVE}, 0\ns_cbranch_scc1 L_AC_nodump")
    for j in range(5):
        a(f"ds_write_b64 v{vEXW}, {vr(KP(2) + 2*j, 2)} offset:{512*j}")
        a(f"ds_write_b64 v{vEXW}, {vr(VP(j, 2), 2)} offset:{512*(5+j)}")
    a("L_AC_nodump:")
    weave([], pack_kv(0) + pack_q(1))
    a("s_waitcnt lgkmcnt(0)\ns_barrier")
    for j in range(5):
        a(f"ds_read_b64 {vr(KP(0) + 2*j, 2)}, v{vEXR} offset:{512*j}")
        a(f"ds_read_b64 {vr(VP(j, 0), 2)}, v{vEXR} offset:{512*(5+j)}")
    SC = lambda rt, h: (224 if rt else 184) + 8 * h
    MX = lambda rt: [76 + 4 * rt + h for h in range(4)]
    PT = lambda rt, h: 144 + 16 * rt + 4 * h
    def qk(rt):
        o = []
        for h in range(4):
            o += [mf(SC(rt, h), KP(1+rt) + 2*h, QT(rt, h), MC), mf(SC(rt, h) + 4, KP(rt) + 2*h, QT(rt, h), MP if rt else MPF)]
        return o
    def rowmax(rt):
        o = []
        for h in range(4):
            s = SC(rt, h); m = MX(rt)[h]
            o += [f"v_max_f32 v{s+r}, v{s+r}, v{s+4+r}" for r in range(4)]
            o += [f"v_max3_f32 v{m}, v{s}, v{s+1}, v{s+2}", f"v_max_f32 v{m}, v{m}, v{s+3}"]
        return o
    def xmax(rt):
        m = MX(rt)
        return [f"v_permlane32_swap_b32 v{m[0]}, v{m[1]}", f"v_permlane32_swap_b32 v{m[2]}, v{m[3]}",
                f"v_max_f32 v{m[0]}, v{m[0]}, v{m[1]}", f"v_max_f32 v{m[2]}, v{m[2]}, v{m[3]}",
                f"v_permlane16_swap_b32 v{m[0]}, v{m[2]}", f"v_max_f32 v{m[0]}, v{m[0]}, v{m[2]}",
                f"v_mul_f32 v{m[0]}, s{sT2}, v{m[0]}", f"v_mov_b32 v{m[2]}, v{m[0]}",
                f"v_permlane16_swap_b32 v{m[0]}, v{m[2]}", f"v_mov_b32 v{m[1]}, v{m[0]}", f"v_mov_b32 v{m[3]}, v{m[2]}",
                f"v_permlane32_swap_b32 v{m[0]}, v{m[1]}", f"v_permlane32_swap_b32 v{m[2]}, v{m[3]}"]
    def probs(rt):
        o = []
        for h in range(4):
            s = SC(rt, h); p = PT(rt, h)
            o += [f"v_fma_f32 v{s+r}, v{s+r}, s{sT}, v{MX(rt)[h]}" for r in range(4)]
            o += [f"v_exp_f32 v{s+r}, v{s+r}" for r in range(4)]
            if h:
                o += split(rt, h - 1)
        return o + split(rt, 3)
    def split(rt, h):
        s = SC(rt, h); p = PT(rt, h); o = []
        for q in range(2):
            o += [cv(p + q, s + 2*q), f"v_and_b32 v{p+2+q}, v{p+q}, v{PM+q}", f"v_xor_b32 v{p+q}, v{p+q}, v{p+2+q}"]
        return o
    OB = lambda rt, t: (224 if rt else 184) + 4 * t
    OA = lambda rt, t: (224 if rt else 184) + 12 + 4 * t
    SM = lambda rt, h: 88 + 16 * rt + 4 * h
    OF = lambda rt: 18 + 10 * rt
    def pv(rt):
        o = [mf(SM(rt, h), ONE, PT(rt, h), "0") for h in range(4)]
        for t in range(5):
            if t < 4: o.append(mf(OB(rt, t), VP(t, rt), PT(rt, t), "0"))
            if t > 0: o.append(mf(OA(rt, t), VP(t, rt), PT(rt, t-1), "0"))
        return o
    def finish(rt):
        o = [f"v_rcp_f32 v{SM(rt,h)}, v{SM(rt,h)}" for h in range(4)]
        for t in range(5):
            for q in range(2):
                d = OF(rt) + 2*t + q
                srcs = []
                if t < 4: srcs.append((OB(rt, t) + 2*q, SM(rt, t), d))
                if t == 4: srcs.append((OA(rt, t) + 2*q, SM(rt, 3), d))
                if (t, q) in SPLITS: srcs.append((OA(rt, t) + 2*q, SM(rt, t-1), 17))
                for x, inv, dd in srcs:
                    o += [f"v_mul_f32 v{x}, v{x}, v{inv}", f"v_mul_f32 v{x+1}, v{x+1}, v{inv}", cv(dd, x)]
                if (t, q) in SPLITS:
                    m = SPLITS[(t, q)]
                    o.append(f"v_cndmask_b32 v{d}, v{d}, v17, s[{m}:{m+1}]")
        return o
    a(f"s_mov_b32 s{sT}, {f32(CSC)}\ns_mov_b32 s{sT2}, {f32(-CSC)}")
    weave(qk(1), pack_q(0) + [f"v_mov_b32 v{ONE+j}, 0x3f803f80" for j in range(4)])
    a("s_waitcnt lgkmcnt(0)")
    weave(qk(0), rowmax(1))
    x1, x0 = xmax(1), xmax(0)
    r0 = rowmax(0)
    for i, x in enumerate(x1):
        a(x)
        for y in r0[2*i:2*i+2]: a(y)
    p1 = probs(1)
    for i, x in enumerate(x0):
        a(x)
        for y in p1[2*i:2*i+2]: a(y)
    weave([], p1[2*len(x0):])
    weave(pv(1), probs(0))
    weave(pv(0), finish(1))
    o_store(OF(1), vOF, vOL, 1)
    weave([], finish(0))
    o_store(OF(0), vOF, vOL, 0)
    stamp()
    a("s_branch L_P2")

def phi(r, n, t):
    o = [f"v_pk_fma_f32 {vr(t+j,2)}, {vr(r+j,2)}, s[56:57], v[14:15]" for j in range(0, n, 2)]
    for j in range(n):
        o += [f"v_exp_f32 v{t+j}, v{t+j} clamp", f"v_max_f32 v{r+j}, s{sT2}, v{r+j}"]
    return o + [f"v_pk_add_f32 {vr(r+j,2)}, {vr(r+j,2)}, {vr(t+j,2)}" for j in range(0, n, 2)]

def b_consumer():
    acc = lambda t, rt: 184 + (t * 2 + rt) * 4
    wf = lambda t: 148 + 4 * t
    xf = lambda ks, rt: 52 + ks * 8 + rt * 4 if ks < 12 else 36 + (ks % 2) * 8 + rt * 4
    R8, R2, aX = 1, 5, 6
    vOF, vOL, vEX = 8, 9, 10
    CK, CS = 28, 32
    a("L_BC:\ns_waitcnt lgkmcnt(0)")
    gap_touch("BC", 2)
    srds_rest()
    init_stores("BC", True)
    rd_lanes(R8, R2, 17, 18); x_lane(aX, aX + 1, 17)
    a(f"""
s_lshl_b32 s{sT}, s{sWAVE}, 12
s_add_u32 s{sT}, s{sT}, {B_X0}
v_add_u32 v{aX}, s{sT}, v{aX}
v_add_u32 v{aX+1}, s{sT}, v{aX+1}
v_and_b32 v17, 15, v0
v_cmp_gt_u32 vcc, 8, v17
v_mov_b32 v18, {EPS}
s_mov_b64 s[42:43], vcc
s_mul_i32 s{sT}, s{sWAVE}, 10240
s_add_u32 s{sT}, s{sT}, {B_EX}
v_lshl_add_u32 v{vEX}, v0, 4, s{sT}
v_mov_b32 v14, {f32(-1e-6*LOG2E)}
v_mov_b32 v15, v14
s_mov_b32 s56, {f32(LOG2E)}
s_mov_b32 s57, s56
""")
    for r in range(4):
        a(f"v_mov_b32 v{CK+r}, v18\nv_cndmask_b32 v{CS+r}, 0, v18, vcc")
    o_store_addr(vOF, vOL, 17, False)

    def wreads(ks, t):
        o = (ks % 5) * B_KVSLOT
        if t == 4:
            return [tr(wf(t), R2, o + 8192), tr(wf(t) + 2, R2, o + 8192 + 256)]
        s, j = (0, t) if t < 4 else (1, t - 5)
        return [tr(wf(t), R8 + j, o + 4096*s), tr(wf(t) + 2, R8 + j, o + 4096*s + 1024)]
    xread = lambda ks, rt: f"ds_read_b128 {vr(xf(ks, rt),4)}, v{aX + ks % 2} offset:{(ks//2 % 3)*B_XSLOT + rt*2048}"

    stamp()
    a("s_barrier")
    stamp()
    a(xread(0, 0)); a(xread(0, 1))
    for t in range(9):
        for x in wreads(0, t): a(x)
    for ks in range(18):
        if ks < 17:
            a("s_barrier")
        if ks == 3:
            init_flags("BC")
        tiles = [[mf(acc(t, rt), xf(ks, rt), wf(t), acc(t, rt) if ks else (CK if t < 4 else CS if t == 4 else "0")) for rt in range(2)] for t in range(9)]
        if ks < 17:
            nxt = [wreads(ks + 1, t) for t in range(9)]
            nxt[1] = [nxt[1][0], nxt[1][1] + "\n" + xread(ks + 1, 1)]
            kstep(tiles, nxt, [xread(ks + 1, 0)], {0: "s_waitcnt lgkmcnt(12)", 3: "s_waitcnt lgkmcnt(13)", 6: "s_waitcnt lgkmcnt(13)", 8: "s_waitcnt lgkmcnt(11)"})
        else:
            kstep(tiles, None, [], {0: "s_waitcnt lgkmcnt(12)", 3: "s_waitcnt lgkmcnt(0)\ns_barrier"})
    stamp()
    a(f"s_mov_b32 s{sT2}, {EPS}\nv_mov_b32 v16, 0x3f803f80")
    wr = lambda reg, slot: f"ds_write_b128 v{vEX}, {vr(reg,4)} offset:{1024*slot}"
    pk = lambda d, s: [cv(d + j, s + 2*j) for j in range(4)]
    weave([], pk(156, acc(4, 0)) + [f"v_cndmask_b32 v{156+j}, v{156+j}, v16, s[42:43]" for j in range(4)] + [wr(156, 9)])
    xq = lambda ks, rt: 168 + (ks - 12) * 8 + rt * 4 if ks in (12, 13) else acc(2 * (ks - 14) + rt, 1) if ks in (14, 15) else xf(ks, rt)
    reread = lambda ks, rt: f"ds_read_b128 {vr(xq(ks, rt),4)}, v{aX + ks % 2} offset:{(ks//2 % 3)*B_XSLOT + rt*2048}"
    weave([], [reread(ks, rt) for ks in (12, 13) for rt in range(2)])
    for tau in range(5):
        o = phi(acc(tau, 0), 8, 148)
        if tau < 4:
            o = pk(acc(5+tau, 0), acc(5+tau, 0)) + o[:8] + [wr(acc(5+tau, 0), 5 + tau)] + o[8:]
        weave([], o + pk(acc(tau, 0), acc(tau, 0)) + [wr(acc(tau, 0), tau)])
        if tau < 4:
            a(reread(14 + tau // 2, tau % 2))
    for j in range(5):
        a(f"v_add_u32 v{R8+j}, {B_WQ0}, v{R8+j}")
    a("s_waitcnt lgkmcnt(0)\ns_barrier")
    stamp()
    QA = lambda t, rt: 216 + (t * 2 + rt) * 4
    qf = lambda t: 148 + 4 * t
    qbase = lambda p: B_WQ0 if p < 4 else 0 if p < 7 else 15360
    def qreads(p, t):
        o = wq_slot(p) - qbase(p)
        if t == 4:
            return [tr(qf(t), R2, o + 4096), tr(qf(t) + 2, R2, o + 4096 + 256)]
        return [tr(qf(t), R8 + t, o), tr(qf(t) + 2, R8 + t, o + 1024)]
    for t in range(5):
        for x in qreads(0, t): a(x)
    for p in range(18):
        ks = QORD[p]
        if p == 7 or (p == 13 and OPT.get('wob', 0)):
            if OPT.get("fine") == 3: stamp()
            a("s_barrier")
            if OPT.get("fine") == 3: stamp()
        tiles = [[mf(QA(t, rt), qf(t), xq(ks, rt), QA(t, rt) if p else CK) for rt in range(2)] for t in range(5)]
        if p < 17:
            nxt = [qreads(p + 1, t) for t in range(5)]
            if qbase(p + 1) != qbase(p):
                d = (qbase(p + 1) - qbase(p)) & 0xffffffff
                for t in range(5):
                    nxt[t][0] = f"v_add_u32 v{R8+t}, {d}, v{R8+t}\n" + nxt[t][0]
            kstep(tiles, nxt, [], {t: f"s_waitcnt lgkmcnt({7 if t else 8})" for t in range(5)})
        else:
            kstep(tiles, None, [], {t: f"s_waitcnt lgkmcnt({8 - 2*t})" for t in range(5)})
    stamp()
    PQ = lambda rt: 36 + 10 * rt
    KO = 84
    tup = {0: KO, 1: KO + 4, 2: KO + 12, 3: KO + 20, 4: KO + 28}
    ZO = KO + 32
    weave([], [f"v_mov_b32 v{r}, 0" for r in (tup[1]+4, tup[1]+5, tup[2]+4, tup[2]+5, tup[3]+4, tup[3]+5, ZO+8, ZO+9)])
    a(f"v_lshlrev_b32 v16, 3, v0\nv_add_u32 v16, {B_KVOP}, v16")
    for t in range(5):
        weave([], phi(QA(t, 0), 8, 148) + [cv(PQ(rt) + 2*t + q, QA(t, rt) + 2*q) for rt in range(2) for q in range(2)])
    stamp()
    a("s_barrier")
    stamp()
    tid = lambda tau, taup: {-1: tau - 1, 0: 4 + tau, 1: 9 + tau}[taup - tau]
    rd = lambda d, slot: a(f"ds_read_b64 {vr(d,2)}, v16 offset:{512*slot}")
    for j, d in enumerate((ZO, ZO + 2, ZO + 4, ZO + 6, ZO + 10)):
        rd(d, 13 + j)
    rd(tup[0], tid(0, 0)); rd(tup[0] + 2, tid(1, 0))
    for t in (1, 2, 3):
        rd(tup[t], tid(t-1, t)); rd(tup[t] + 2, tid(t, t)); rd(tup[t] + 6, tid(t+1, t))
    rd(tup[4], tid(3, 4)); rd(tup[4] + 2, tid(4, 4))
    DN = lambda rt: 148 + 4 * rt
    NM = lambda rt, t: 184 + 20 * rt + 4 * t
    OF = lambda rt: 156 + 10 * rt
    a("s_waitcnt lgkmcnt(13)")
    for k, (zo, po) in enumerate(((0, 0), (4, 4), (8, 6))):
        for rt in range(2):
            a(mf(DN(rt), ZO + zo, PQ(rt) + po, DN(rt) if k else CK))
    a("s_waitcnt lgkmcnt(0)")
    def num(rt):
        o = [mf(NM(rt, t), tup[t], PQ(rt) + 2*(t-1), "0") for t in (1, 2, 3)]
        o += [mf(NM(rt, 0), tup[0], PQ(rt), "0"), mf(NM(rt, 4), tup[4], PQ(rt) + 6, "0")]
        return o + [mf(NM(rt, t), tup[t] + 4, PQ(rt) + 2*t, NM(rt, t)) for t in (1, 2, 3)]
    def fin(rt, packed):
        o = []
        for t in (0, 4, 1, 2, 3):
            for q in range(2):
                inv = DN(rt) + min(t, 3)
                if (t, q) in SPLITS:
                    m = SPLITS[(t, q)]
                    o.append(f"v_cndmask_b32 v17, v{DN(rt)+t}, v{DN(rt)+t-1}, s[{m}:{m+1}]")
                    inv = 17
                n = NM(rt, t) + 2*q
                o += [f"v_mul_f32 v{n}, v{n}, v{inv}", f"v_mul_f32 v{n+1}, v{n+1}, v{inv}", cv(OF(rt) + 2*t + q, n)]
        return o
    weave(num(0), [], 0)
    weave(num(1), [f"v_rcp_f32 v{DN(rt)+h}, v{DN(rt)+h}" for rt in range(2) for h in range(4)], 1)
    for rt in range(2):
        weave([], fin(rt, True))
        o_store(OF(rt), vOF, vOL, rt)
    stamp()

def kv_index(wreg, VS, VG, VZ):
    a(f"s_cmp_eq_u32 s{wreg}, 0\ns_cselect_b32 s58, 4, s{wreg}")
    for slot in range(3):
        if slot == 0:
            a(f"s_lshl_b32 s{sT}, s58, 4\ns_sub_u32 s{sT2}, s{sT}, 16\ns_mov_b64 s[46:47], 0")
        elif slot == 1:
            a(f"s_lshl_b32 s{sT}, s{wreg}, 4\ns_mov_b32 s{sT2}, s{sT}")
        else:
            a(f"s_add_u32 s{sT2}, s{sT}, 16\ns_cmp_eq_u32 s{wreg}, 3\ns_cselect_b32 s{sT2}, 56, s{sT2}\ns_cselect_b64 s[46:47], s[44:45], 0")
        kv_tile(VS and VS + 2*slot, VG and VG + 2*slot, False)
    if VZ:
        kv_z(VZ)

def kv_tile(VS, VG, last):
    a(f"v_add_u32 v3, s{sT2}, v1")
    head_of(4, 3)
    a(f"v_mul_u32_u24 v5, 18, v4\nv_sub_u32 v3, v3, v5\nv_cndmask_b32 v4, v4, 7, s[46:47]")
    if last:
        a("v_cmp_eq_u32 vcc, 0, v1\nv_cndmask_b32 v4, v4, 3, vcc\nv_cndmask_b32 v3, v3, 18, vcc")
    for q in range(2):
        a(f"v_add3_u32 v5, v2, s{sT}, {2*q}")
        head_of(6, 5)
        a("v_cmp_eq_u32 vcc, v4, v6\nv_mad_u32_u24 v5, v5, 19, v3\nv_lshlrev_b32 v5, 2, v5")
        if VS:
            a(f"v_add_u32 v6, {B_STG}, v5\nv_cndmask_b32 v{VS+q}, v8, v6, vcc")
        if VG:
            a(f"v_add_u32 v6, s{sM}, v5\nv_cndmask_b32 v{VG+q}, v9, v6, vcc")

def kv_z(VZ):
    a("v_and_b32 v3, 3, v0")
    for q in range(2):
        a(f"v_add3_u32 v5, v2, s{sT}, {2*q}")
        head_of(6, 5)
        a(f"v_cmp_eq_u32 vcc, v3, v6\nv_mul_u32_u24 v5, 76, v5\nv_add3_u32 v5, v5, s{sM}, 64\nv_add_u32 v5, 8, v5\nv_cndmask_b32 v{VZ+q}, v9, v5, vcc")

def b_loader(kind):
    a(f"L_B{kind}1:")
    m = M0(42)
    issue = (lambda c: w_issue("B", c, m)) if kind == "W" else (lambda c: x_issue("B", c, m))
    pre = 1 if OPT.get("early") and kind == "W" else 2
    cnt = {c: issue(c) for c in range(1, pre + 1)}
    stamp()
    mark = len(a.lines)
    VS, VG, vZS, vEA, vE0, vEL, vLA, vGA, vLW = 72, 80, 98, 99, 100, 101, 102, 103, 105
    if kind == "W":
        a(f"v_subrev_u32 v{VD+5}, 1152, v{VD}\nv_subrev_u32 v{VD+6}, 1152, v{VD+1}")
    srds_rest()
    if kind == "W":
        wo_setup(False)
    else:
        sync_setup()
    a(f"""
s_add_u32 s55, s{sV}, 2
s_mul_i32 s{sM}, s{sHG}, {KV_ST}
s_add_u32 s{sM}, s{sM}, {WS_KV}
v_and_b32 v1, 15, v0
v_lshrrev_b32 v2, 4, v0
v_lshlrev_b32 v2, 2, v2
v_cmp_gt_u32 s[44:45], 8, v1
v_lshlrev_b32 v8, 2, v0
v_add_u32 v8, {B_DUMP}, v8
v_mov_b32 v9, {OOB}
""")
    own = sV if kind == "X" else 55
    if kind == "X":
        kv_index(55, None, VG, VG + 6)
        a(f"s_movk_i32 s{sT}, 64")
        kv_z(10)
    kv_index(own, VS, VG + 8 if kind == "X" else None, VG + 14 if kind == "X" else None)
    a(f"""
v_add_u32 v5, s{sT}, v0
v_mul_u32_u24 v5, 76, v5
v_add_u32 v5, {B_STG + 72}, v5
v_cndmask_b32 v{vZS}, v8, v5, s[{sG0}:{sG0+1}]
v_lshlrev_b32 v{vEL}, 4, v0
v_add_u32 v{vEL}, {B_EX}, v{vEL}
s_lshl_b32 s{sT}, s{own}, 10
v_add_u32 v{vEA}, s{sT}, v{vEL}
s_lshl_b32 s{sT}, s58, 10
v_add_u32 v{vE0}, s{sT}, v{vEL}
""")
    if kind == "X":
        a(f"s_movk_i32 s{sT}, 64\ns_movk_i32 s{sT2}, 56\ns_mov_b64 s[46:47], s[44:45]")
        kv_tile(VS + 6, VG + 16, True)
        a(f"s_cmp_eq_u32 s{sV}, 0\ns_cselect_b64 s[46:47], -1, 0")
        for q in range(2):
            a(f"v_cndmask_b32 v{VS+6+q}, v8, v{VS+6+q}, s[46:47]\nv_cndmask_b32 v{VG+16+q}, v{10+q}, v{VG+16+q}, s[46:47]")
        a(f"""
v_lshlrev_b32 v5, 3, v0
v_add_u32 v5, {B_KVOP}, v5
s_lshl_b32 s{sT2}, s58, 9
s_sub_u32 s{sT2}, s{sT2}, 512
v_add_u32 v{vLW+2}, s{sT2}, v5
s_lshl_b32 s{sT2}, s{sV}, 9
v_add_u32 v{vLW+1}, s{sT2}, v5
v_add_u32 v{vLW}, 1024, v{vLW+1}
s_mul_i32 s{sT2}, s{sV}, {9*512}
v_add_u32 v{vLW+3}, s{sT2}, v5
s_mul_i32 s{sT}, s{sV}, 2816
v_lshl_add_u32 v{vLA}, v0, 2, s{sT}
v_add_u32 v{vGA}, s{sM}, v{vLA}
v_cmp_gt_u32 vcc, {5472 - 2560}, v{vLA}
v_cndmask_b32 v{vGA+1}, v9, v{vGA}, vcc
v_add_u32 v{vLA}, {B_STG}, v{vLA}
v_mov_b32 v4, 0
""")
    a(f"v_mov_b32 v10, {B_LCNT}\nv_mov_b32 v11, 1")
    if kind == "X":
        a("ds_write_b32 v10, v4\ns_waitcnt lgkmcnt(0)")
    setup = a.lines[mark:]
    del a.lines[mark:]
    per = -(-len(setup) // 9)
    a(f"s_waitcnt vmcnt({sum(cnt.values())})\ns_barrier")
    stamp()
    extra = 0
    for i in range(-1, 16):
        if i == -1 and pre == 1:
            cnt[2] = issue(2)
        if i + 4 <= 17:
            cnt[i+4] = issue(i + 4)
        if 0 <= i < 9:
            a("s_cmp_eq_u32 s59, 1")
            a.lines += setup[per*i:per*(i+1)]
            a("s_cselect_b32 s59, 1, 0")
        if i == 10 and kind == "X":
            flag_load(sFO, 98); flag_load(sFK, 99)
        if kind == "W" and i >= 14:
            extra += wq_issue(2*(i-14), m) + wq_issue(2*(i-14) + 1, m)
        left = sum(cnt.get(c, 0) for c in range(i + 3, min(i + 4, 17) + 1)) + extra
        a(f"s_waitcnt vmcnt({left})\ns_barrier")
    a("s_barrier")
    if kind == "W":
        for p in (4, 5, 6, 7, 13, 14, 15, 16, 17):
            wq_issue(p, m)
        a("s_waitcnt vmcnt(15)")
    else:
        flag_check(sFK, 99, "L_BX_fk")
    stamp()
    a("s_barrier")
    stamp()
    if kind == "W":
        for p in range(8, 13):
            wq_issue(p, m)
    KT = lambda s: 40 + 4 * s
    RD = lambda src, j: 112 + 28 * src + 4 * j
    srcs = ((vEA, 0), (vE0, 0), (vE0, 4096), (vEA, 5120), (vEA, 6144), (vEL, 9216), (vEL, 4096))
    prods = ((1, 2), (0, 3), (0, 4), (6, 5), (5, 0))
    if kind == "W":
        srcs = ((vEA, 0), None, (vE0, 4096), (vEA, 5120), (vEA, 6144), (vEL, 9216))
        prods = ((0, 2), (0, 3), (0, 4), None, (5, 0))
    nr = sum(x is not None for x in srcs)
    for src in range(4):
        for j, x in enumerate(srcs):
            if x: a(f"ds_read_b128 {vr(RD(src, j),4)}, v{x[0]} offset:{src*10240 + x[1]}")
    for src in range(4):
        a(f"s_waitcnt lgkmcnt({min(15, nr*(3-src))})")
        for s_, x in enumerate(prods):
            if x: a(mf(KT(s_), RD(src, x[0]), RD(src, x[1]), KT(s_) if src else "0"))
    for s_ in range(4 if kind == "X" else 3):
        for r in range(4):
            a(f"ds_write_b32 v{VS + 2*s_ + r//2}, v{KT(s_)+r} offset:{76*(r%2)}")
    a(f"ds_write_b32 v{vZS}, v{KT(4)}")
    a("s_waitcnt lgkmcnt(0)\ns_mov_b64 exec, 1\nds_add_u32 v10, v11\ns_mov_b64 exec, -1")
    stamp()
    b1, b2, b3 = {0: ((0, 1, 2, 3, 4, 5), (), (6, 7, 8)), 1: ((0, 1, 2), (3, 4, 5, 6, 7, 8), ()), 2: ((0, 1, 2), (3, 4, 5), (6, 7, 8))}[OPT.get("wob", 0)]
    if kind == "W":
        a("s_waitcnt vmcnt(0)\ns_barrier")
        for g in b1: wo_pair(g)
        if b2:
            a("s_barrier")
            for g in b2: wo_pair(g)
        stamp()
        a("s_barrier")
        loader_tail("BW", b3)
        return
    a(f"""
s_mov_b32 s{sT3}, 0x400000
L_BX_st:
ds_read_b32 v2, v10
s_waitcnt lgkmcnt(0)
v_readfirstlane_b32 s{sT}, v2
s_sub_u32 s{sT3}, s{sT3}, 1
s_cbranch_scc1 L_BX_st_x
s_cmp_ge_u32 s{sT}, 4
s_cbranch_scc0 L_BX_st
L_BX_st_x:
""")
    for n in range(11):
        a(f"ds_read_b32 v{40+n}, v{vLA} offset:{256*n}")
    for n in range(11):
        a(f"s_waitcnt lgkmcnt({10-n})")
        a(f"buffer_atomic_add_f32 v{40+n}, v{vGA + (n == 10)}, s[{SWS}:{SWS+3}], 0 offen offset:{256*n}")
    stamp()
    a("s_barrier")
    if b2:
        a("s_barrier")
    a("s_waitcnt vmcnt(0)")
    stamp()
    arrive_wait(sKC, 32, "L_BX_kc")
    stamp()
    for s_ in range(9):
        for r in range(4):
            a(f"buffer_load_dword v{112+4*s_+r}, v{VG + 2*s_ + r//2}, s[{SWS}:{SWS+3}], 0 offen offset:{76*(r%2)} sc1")
    dst = ((vLW, -1), (vLW, 4), (vLW, 9), (vLW, 13), (vLW + 2, 0), (vLW + 1, 4), (vLW + 1, 9), (vLW + 1, 13), (vLW + 3, 8))
    a(f"v_subrev_u32 v11, 512, v{vLW}")
    for s_, (ad, off) in enumerate(dst):
        a(f"s_waitcnt vmcnt({4*(8-s_)})")
        a(cv(40 + 2*s_, 112 + 4*s_)); a(cv(41 + 2*s_, 114 + 4*s_))
        a(f"ds_write_b64 v{11 if off < 0 else ad}, {vr(40+2*s_,2)} offset:{512*max(off, 0)}")
    a("s_waitcnt lgkmcnt(0)")
    stamp()
    a("s_barrier")
    loader_tail("BX")

def p2_consumer():
    OFR = lambda ks, rt: 112 + ks * 8 + rt * 4
    ACC = lambda t, rt: 72 + (t * 2 + rt) * 4
    wf = lambda t: 52 + 4 * t
    R8, R2, vO, vTW, vTR, VS = 1, 5, 6, 7, 8, 9
    AH = OPT["ahead"]
    a("L_P2:")
    nstamp[0] = 10 if OPT.get('fine') != 3 else 11
    rd_lanes(R8, R2, 17, 18)
    for j in range(5):
        a(f"v_add_u32 v{R8+j}, {R1}, v{R8+j}")
    a(f"""
v_lshl_add_u32 v{vO}, v0, 4, s58
s_mul_i32 s{sT}, s{sWAVE}, 4608
s_add_u32 s{sT}, s{sT}, {P_TR}
v_and_b32 v17, 15, v0
v_mul_u32_u24 v17, 144, v17
v_lshrrev_b32 v18, 4, v0
v_lshl_add_u32 v17, v18, 3, v17
v_add_u32 v{vTW}, s{sT}, v17
v_lshl_add_u32 v{vTR}, v0, 4, s{sT}
s_lshr_b32 s{sT}, s{sWAVE}, 1
s_and_b32 s{sT2}, s{sWAVE}, 1
s_lshl_b32 s{sT2}, s{sT2}, 5
s_lshl_b32 s{sT3}, s{sWAVE}, 5
s_cmp_eq_u32 s{sBR}, 0
s_cselect_b32 s42, s{sT}, 0
s_cselect_b32 s43, s{sT2}, s{sT3}
s_cselect_b32 s55, 1, 0
s_lshl_b32 s56, s42, 3
s_lshl_b32 s{sT}, s{sRB}, 7
s_add_u32 s42, s42, s{sT}
s_mul_i32 s{sT}, s{sBR}, 1152
s_mul_i32 s{sT2}, s{sHG}, 144
s_add_u32 s57, s{sT}, s{sT2}
""")
    for n in range(5):
        a(f"""
v_add_u32 v17, {64*n}, v0
v_mul_u32_u24 v18, 7282, v17
v_lshrrev_b32 v18, 16, v18
v_mul_u32_u24 v19, 9, v18
v_sub_u32 v19, v17, v19
v_add_u32 v18, s43, v18
v_xor_b32 v18, s56, v18
v_lshlrev_b32 v18, s55, v18
v_add_u32 v18, s42, v18
v_mul_u32_u24 v18, 2304, v18
v_lshl_add_u32 v18, v19, 4, v18
v_add_u32 v{VS+n}, s57, v18
""")
    a(f"v_mov_b32 v17, {OOB}\nv_cndmask_b32 v{VS+4}, v17, v{VS+4}, s[{sG01}:{sG01+1}]")
    a(f"v_add_u32 v14, 18432, v{vO}")
    SO = [8, 9, 10, 11, 12, 13, 14, 15, 36]
    rho(37)
    a(f"s_movk_i32 s{SO[0]}, 16384")
    for j in range(1, 9):
        a(f"s_add_u32 s{sT}, s37, {2*j-2}\ns_and_b32 s{sT}, s{sT}, 15\ns_lshl_b32 s{SO[j]}, s{sT}, 10")
    a("s_waitcnt vmcnt(0)")
    stamp()
    a("s_barrier\ns_barrier")
    stamp()
    def oload(ks, rt):
        return f"buffer_load_dwordx4 {vr(OFR(ks, rt),4)}, v{14 if rt else vO}, s[{SWS}:{SWS+3}], s{SO[ks//2]} offen offset:{1024*(ks%2)} sc1"
    base = lambda ks: R1 if ks < 3 else 0 if 9 <= ks < 12 else R2_
    R2_ = 43008
    def wreads(ks, t):
        o = WO[ks] - base(ks)
        if t == 4:
            return [tr(wf(t), R2, o + 4096), tr(wf(t) + 2, R2, o + 4096 + 256)]
        return [tr(wf(t), R8 + t, o), tr(wf(t) + 2, R8 + t, o + 1024)]
    for ks in range(AH):
        a(oload(ks, 0)); a(oload(ks, 1))
    for t in range(5):
        for x in wreads(0, t): a(x)
    for ks in range(18):
        tiles = [[mf(ACC(t, rt), wf(t), OFR(ks, rt), ACC(t, rt) if ks else "0") for rt in range(2)] for t in range(5)]
        w0 = f"s_waitcnt vmcnt({2*min(AH - 1, 17 - ks)}) lgkmcnt(8)"
        if ks < 17:
            nxt = [wreads(ks + 1, t) for t in range(5)]
            if base(ks + 1) != base(ks):
                d = (base(ks + 1) - base(ks)) & 0xffffffff
                for t in range(5):
                    nxt[t][0] = f"v_add_u32 v{R8+t}, {d}, v{R8+t}\n" + nxt[t][0]
            first = []
            if ks + AH < 18:
                first = [oload(ks + AH, 0)]
                nxt[1][1] += "\n" + oload(ks + AH, 1)
            kstep(tiles, nxt, first, {t: "s_waitcnt lgkmcnt(7)" if t else w0 for t in range(5)})
        else:
            kstep(tiles, None, [], {t: f"s_waitcnt lgkmcnt({8 - 2*t})" if t else w0 for t in range(5)})
        if ks == 0 and OPT.get("fine") != 3:
            stamp()
    stamp()
    for rt in range(2):
        for t in range(5):
            d = 20 + 2*(rt*5 + t)
            a(cv(d, ACC(t, rt))); a(cv(d + 1, ACC(t, rt) + 2))
            if t == 4:
                a(f"s_mov_b64 exec, s[{sG01}:{sG01+1}]")
            a(f"ds_write_b64 v{vTW}, {vr(d,2)} offset:{rt*2304 + 32*t}")
            if t == 4:
                a("s_mov_b64 exec, -1")
    a("s_waitcnt lgkmcnt(0)")
    for n in range(5):
        a(f"ds_read_b128 {vr(112+4*n,4)}, v{vTR} offset:{1024*n}")
    for n in range(5):
        a(f"s_waitcnt lgkmcnt({4-n})")
        a(f"buffer_store_dwordx4 {vr(112+4*n,4)}, v{VS+n}, s[{SOUT}:{SOUT+3}], 0 offen{FLAGS[OPT.get('outst', 0)]}")
    stamp()
    stamps_out(0)
    a("s_endpgm")

HEADER = open("concat_heads__sliding_local_dilated__linear_attn_block__prompt.s.ref").read().split("; Override")[0]
out = HEADER + "; @launch grid=(256,1,1) block=(512,1,1) lds=163840\n"
a('.amdgcn_target "amdgcn-amd-amdhsa--gfx950"\n.text')
a(kernel_head(KN))
if OPT["stamps"]:
    for i in range(16):
        a(f"s_mov_b32 s{sST+2*i}, 0")
stamp()
a(f"""
s_cmp_ge_u32 s2, 256
s_cbranch_scc1 L_end
s_and_b32 s{sT}, s2, 7
{f"s_lshr_b32 s{sBR}, s{sT}, 2" if OPT["mapping"] != 44 else f"s_bfe_u32 s{sBR}, s2, {hex(0x10000 + OPT.get('brbit', 7))}"}
{'s_xor_b32 s6, s6, 1' if OPT.get('swap') else ''}
s_mul_i32 s{sT2}, s{sBR}, 24
s_add_u32 s0, s0, s{sT2}
s_addc_u32 s1, s1, 0
s_load_dwordx4 s[36:39], s[0:1], 0
s_load_dwordx2 s[40:41], s[0:1], 16
s_sub_u32 s0, s0, s{sT2}
s_subb_u32 s1, s1, 0
s_load_dwordx4 s[44:47], s[0:1], 48
s_load_dwordx2 s[48:49], s[0:1], 64
v_lshrrev_b32 v1, 6, v0
v_and_b32 v0, 63, v0
v_readfirstlane_b32 s{sWAVE}, v1
s_lshr_b32 s{sT2}, s2, 3
""")
m84 = f"""
s_and_b32 s{sHG}, s{sT2}, 3
s_and_b32 s{sT3}, s{sT}, 1
s_lshl_b32 s{sT3}, s{sT3}, 2
s_add_u32 s{sHG}, s{sHG}, s{sT3}
s_lshr_b32 s{sRB}, s{sT2}, 2
s_and_b32 s{sT3}, s{sT}, 2
s_lshl_b32 s{sT3}, s{sT3}, 2
s_add_u32 s{sRB}, s{sRB}, s{sT3}
"""
m48 = f"""
s_and_b32 s{sHG}, s{sT2}, 7
s_lshr_b32 s{sRB}, s{sT2}, 3
s_and_b32 s{sT3}, s{sT}, 3
s_lshl_b32 s{sT3}, s{sT3}, 2
s_add_u32 s{sRB}, s{sRB}, s{sT3}
"""
if OPT["mapping"] == 84:
    a(m84)
elif OPT["mapping"] == 48:
    a(m48)
elif OPT["mapping"] == 44:
    lo = 1 if OPT.get("brbit", 7) == 3 else 0
    a(f"""
s_bfe_u32 s{sHG}, s{sT2}, {hex(0x20000 + lo)}
s_and_b32 s{sT3}, s{sT}, 1
s_lshl_b32 s{sT3}, s{sT3}, 2
s_add_u32 s{sHG}, s{sHG}, s{sT3}
s_bfe_u32 s{sRB}, s{sT2}, {hex(0x20002 + lo)}
s_and_b32 s{sT3}, s{sT}, 6
s_lshl_b32 s{sT3}, s{sT3}, 1
s_add_u32 s{sRB}, s{sRB}, s{sT3}
""")
else:
    a(m48 + f"s_cmp_eq_u32 s{sBR}, {0 if OPT['mapping'] == 8448 else 1}\ns_cbranch_scc0 L_map" + m84 + "L_map:")
rot = ""
if OPT.get("rot") == 2:
    rot = f"""s_lshr_b32 s90, s2, 1
s_xor_b32 s90, s90, s2
s_and_b32 s90, s90, 1
s_mul_i32 s91, s90, {OPT.get("rotby", 5)*128}
s_mul_i32 s90, s90, {OPT.get("rotby", 5)*64*3456}"""
elif OPT.get("rot") == 3:
    rot = f"""s_lshr_b32 s90, s2, 1
s_xor_b32 s90, s90, s2
s_and_b32 s90, s90, 1
s_mul_i32 s90, s90, 5
s_add_u32 s91, s{sRB}, s{sHG}
s_and_b32 s91, s91, 3
s_add_u32 s90, s90, s91
s_lshl_b32 s91, s90, 7
s_mul_i32 s90, s90, {64*3456}"""
elif OPT.get("rot") == 7:
    rot = f"""s_and_b32 s90, s{sHG}, 3
s_and_b32 s91, s{sRB}, 7
s_lshl1_add_u32 s90, s90, s91
s_cmp_ge_u32 s90, 9
s_cselect_b32 s91, 9, 0
s_sub_u32 s90, s90, s91
s_lshl_b32 s91, s90, 7
s_mul_i32 s90, s90, {64*3456}"""
elif OPT.get("rot") in (4, 5, 6):
    tab = {4: 0x75207520, 5: 0x63006300, 6: 0x86427531}[OPT["rot"]]
    rot = f"""s_add_u32 s90, s{sRB}, s{sHG}
s_and_b32 s90, s90, 7
s_lshl_b32 s90, s90, 2
s_lshr_b32 s90, {hex(OPT.get("tab", tab))}, s90
s_and_b32 s90, s90, 15
s_lshl_b32 s91, s90, 7
s_mul_i32 s90, s90, {64*3456}"""
elif OPT.get("rot"):
    few, many = (sRB, sHG) if OPT["mapping"] in (48, 44) else (sHG, sRB)
    rot = f"""s_and_b32 s90, s{few}, 3
s_lshl_b32 s90, s90, 2
s_lshr_b32 s90, 0x7520, s90
s_and_b32 s90, s90, 15
s_and_b32 s91, s{many}, 7
s_add_u32 s90, s90, s91
s_cmp_ge_u32 s90, 9
s_cselect_b32 s91, 9, 0
s_sub_u32 s90, s90, s91
s_lshl_b32 s91, s90, 7
s_mul_i32 s90, s90, {64*3456}"""
a(f"""
s_mov_b32 s{sG0}, 0xffff
s_mov_b32 s{sG0+1}, 0
s_mov_b32 s{sG01}, -1
s_mov_b32 s{sG01+1}, 0
s_and_b32 s{sV}, s{sWAVE}, 1
s_mul_i32 s{sM}, s{sHG}, 144
s_cmp_lt_u32 s{sWAVE}, 4
s_cbranch_scc1 L_cons
s_setprio {OPT.get("prio", 2)}
s_mov_b32 s59, 0
{rot}
s_cmp_lt_u32 s{sWAVE}, 6
s_cbranch_scc1 L_wld
s_cmp_eq_u32 s{sBR}, 0
s_cbranch_scc1 L_AX0
s_branch L_BX0
L_wld:
s_cmp_eq_u32 s{sBR}, 0
s_cbranch_scc1 L_AW0
s_branch L_BW0
L_cons:
s_getpc_b64 s[42:43]
L_pc:
s_lshl_b32 s{sT}, s{sT2}, 2
s_add_u32 s{sT}, s{sT}, s{sWAVE}
s_lshl_b32 s{sT}, s{sT}, 9
v_and_b32 v1, 3, v0
v_lshlrev_b32 v1, 7, v1
v_add_u32 v1, s{sT}, v1
v_min_u32 v1, {'L_last2' if OPT.get('ifetch') == 1 else 'L_last'}-L_pc, v1
{'global_load_dword v27, v1, s[42:43]' if not OPT.get('nopf') else ''}
s_cmp_eq_u32 s{sBR}, 0
s_cbranch_scc1 L_AC
s_branch L_BC
L_end:
s_endpgm
""")
w_head("A"); w_head("B"); x_head("A"); x_head("B")
n0 = nstamp[0]
for fn in (lambda: a_loader("W"), lambda: a_loader("X"), a_consumer, lambda: b_loader("W"), lambda: b_loader("X"), b_consumer, p2_consumer):
    nstamp[0] = n0
    fn()
a("s_endpgm" if OPT.get("ifetch", 0) > 1 else "L_last2:\ns_endpgm" if OPT.get("ifetch") else "L_last:\ns_endpgm")
lines = []
for l in a.lines: lines += l.split("\n")
if OPT.get("noread"):
    lines = [l for l in lines if not l.startswith("ds_read_b64_tr")]
if OPT.get("nomfma"):
    lines = [l for l in lines if not l.startswith("v_mfma")]
lines, added = hz.fix(lines)
out += "\n".join(lines) + "\n"
out += '.section .rodata,"a"\n.p2align 6\n' + kernel_desc(KN, 256, 102 if OPT.get('cyc') else 100, 256)
sys.stdout.write(out)
sys.stderr.write(f"nop states added: {added}\n")
```

```python
import re

REG = re.compile(r"\b([vsa])(\d+)\b|\b([vsa])\[(\d+):(\d+)\]|\b(vcc|exec|m0|scc)\b")
TRANS = ("v_exp_f32", "v_log_f32", "v_rcp_f32", "v_rsq_f32", "v_sqrt_f32", "v_sin_f32", "v_cos_f32")

def regs(tok):
    out = set()
    for m in REG.finditer(tok):
        if m.group(1):
            out.add((m.group(1), int(m.group(2))))
        elif m.group(3):
            out.update((m.group(3), i) for i in range(int(m.group(4)), int(m.group(5)) + 1))
        else:
            out.add((m.group(6), 0))
    return out

def split_ops(s):
    ops, depth, cur = [], 0, ""
    for ch in s:
        if ch == "[": depth += 1
        if ch == "]": depth -= 1
        if ch == "," and depth == 0:
            ops.append(cur.strip()); cur = ""
        else:
            cur += ch
    if cur.strip(): ops.append(cur.strip())
    return ops

class I:
    def __init__(self, line):
        self.line = line
        code = line.split(";")[0].strip()
        self.kind = None
        self.w = set(); self.r = set(); self.srcc = set(); self.ab = set(); self.sdata = set()
        self.states = 0
        if not code or code.endswith(":") or code.startswith("."):
            return
        parts = code.split(None, 1)
        op = parts[0]; self.op = op
        ops = split_ops(parts[1]) if len(parts) > 1 else []
        self.states = 1
        if op == "s_nop":
            self.kind = "nop"; self.states = int(ops[0], 0) + 1
        elif op.startswith("v_mfma"):
            self.kind = "mfma"
            self.w = regs(ops[0]); self.ab = regs(ops[1]) | regs(ops[2]); self.srcc = regs(ops[3].split()[0])
            self.r = self.ab | self.srcc
            self.passes = 8 if "32x32" in op else 4
        elif op.startswith("v_"):
            self.kind = "valu"
            nd = 1
            if op.startswith("v_add_co") or op.startswith("v_sub_co") or op.startswith("v_addc_co"): nd = 2
            for o in ops[:nd]: self.w |= regs(o)
            for o in ops[nd:]: self.r |= regs(o)
            if op.startswith("v_permlane") and "swap" in op:
                self.w = regs(ops[0]) | regs(ops[1]); self.r = set(self.w)
            if op.startswith("v_fmac") or op.startswith("v_pk_fmac") or op.startswith("v_dot2c"):
                self.r |= self.w
            if op.startswith("v_cmpx"): self.w.add(("exec", 0))
        elif op.startswith("buffer_") or op.startswith("global_"):
            self.kind = "vmem"
            allr = [regs(o) for o in ops]
            lds = re.search(r"\blds\b", code) is not None or "load_lds" in op
            self.lds = lds
            if "load" in op and not lds:
                self.w = allr[0]
                for x in allr[1:]: self.r |= x
            else:
                for x in allr: self.r |= x
                if "store" in op and ("x4" in op or "x3" in op):
                    self.sdata = allr[0] if op.startswith("buffer_") else allr[1]
                if "atomic" in op and " sc0" in code:
                    self.w = allr[0]
            if lds: self.r.add(("m0", 0))
        elif op.startswith("ds_"):
            self.kind = "ds"
            allr = [regs(o) for o in ops]
            if "read" in op or "permute" in op or "swizzle" in op:
                self.w = allr[0]
                for x in allr[1:]: self.r |= x
            else:
                for x in allr: self.r |= x
        else:
            self.kind = "salu"
            if ops and not op.startswith("s_cmp") and not op.startswith("s_cbranch") and not op.startswith("s_waitcnt"):
                self.w = regs(ops[0])
                for o in ops[1:]: self.r |= regs(o)

def vg(s): return {x for x in s if x[0] in "va"}
def sg(s): return {x for x in s if x[0] in ("s", "vcc", "exec")}

def need(p, c):
    n = 0
    if p.kind == "valu":
        if c.kind == "mfma" and vg(p.w) & c.r: n = max(n, 2)
        if c.kind == "valu":
            if p.op.startswith(TRANS) and vg(p.w) & c.r: n = max(n, 1)
            if c.op.startswith("v_permlane") and vg(p.w) & c.r: n = max(n, 2)
            if (c.op.startswith("v_readfirstlane") or c.op.startswith("v_readlane")) and vg(p.w) & c.r: n = max(n, 1)
            if "dpp" in c.line or "row_" in c.line or "quad_perm" in c.line:
                if vg(p.w) & c.r: n = max(n, 2)
            if sg(p.w) & c.r: n = max(n, 2)
            if (("op_sel" in p.line and not p.op.endswith("_f32")) or "sdwa" in p.op) and vg(p.w) & (c.r | c.w): n = max(n, 1)
        if c.kind == "vmem" and sg(p.w) & c.r: n = max(n, 5)
        if c.kind == "mfma" and ("exec", 0) in p.w: n = max(n, 4)
    if p.kind == "mfma":
        big = {4: 8, 8: 12}[p.passes]
        if c.kind == "mfma":
            if p.w & c.ab: n = max(n, big)
            if p.w & c.srcc and p.w != c.srcc: n = max(n, {4: 6, 8: 10}[p.passes])
            if p.w & c.w and p.w != c.srcc: n = max(n, {4: 6, 8: 10}[p.passes])
        elif c.kind in ("valu", "vmem", "ds"):
            if p.w & (c.r | c.w): n = max(n, big)
        if c.kind == "valu" and p.srcc & c.w: n = max(n, {4: 3, 8: 7}[p.passes])
    if p.kind == "vmem" and p.sdata & c.w:
        n = max(n, 2 if c.kind in ("valu", "mfma") else 1)
    if p.kind == "salu" and ("m0", 0) in p.w and c.kind == "vmem" and getattr(c, "lds", False): n = max(n, 1)
    return n

def fix(lines):
    out = []; added = 0
    hists = [[]]
    pending = {}
    seen = set()
    for line in lines:
        code = line.split(";")[0].strip()
        if code.endswith(":"):
            lab = code[:-1]
            seen.add(lab)
            hists = hists + pending.pop(lab, [])
            out.append(line); continue
        c = I(line)
        if c.kind is None:
            out.append(line); continue
        pad = 0
        for hist in hists:
            dist = 0
            for p in reversed(hist):
                if dist >= 20: break
                pad = max(pad, need(p, c) - dist)
                dist += p.states
        if pad > 0:
            out.append(f"s_nop {pad-1}"); added += pad
            n = I(f"s_nop {pad-1}")
            hists = [h + [n] for h in hists]
        out.append(line)
        hists = [(h + [c])[-24:] for h in hists] or [[c]]
        uniq = {}
        for h in hists:
            uniq[tuple(id(x) for x in h[-20:])] = h
        hists = list(uniq.values())
        if c.op.startswith("s_cbranch") or c.op == "s_branch":
            tgt = code.split()[1]
            if tgt not in seen:
                pending.setdefault(tgt, []).extend([list(h) for h in hists])
            if c.op == "s_branch":
                hists = []
        if c.op == "s_endpgm":
            hists = []
    return out, added
```

```python
import sys, struct
from asmlib import *
import hz

OPT = dict(stamps=0, p0=3, ramp=6)
for arg in sys.argv[1:]:
    k, v = arg.split("=")
    OPT[k] = int(v)
KN = "concat_heads__sliding_local_dilated__linear_attn_block__prompt_kernel"

def f32(x):
    return "0x%08x" % struct.unpack("<I", struct.pack("<f", x))[0]

LOG2E = 1.4426950408889634
CSC = 18 ** -0.5 * LOG2E
NEG = "0xf149f2ca"
EPS = f32(1e-6)
OOB = "0x80000000"

O_BR = 0x240000
WS_KV = 0x500000
KV_ST = 0x2000
WS_CNT = 0x540000
WS_STAMP = 0x600000
WS_SIZE = 0x700000

sWAVE, sHG, sRB, sBR, sT = 3, 4, 5, 6, 7
SX, SW, SWS, SDBG, SWO, SOUT = 8, 12, 16, 20, 24, 28
sG0, sG01 = 32, 34
sK, sV, sM, sT2, sT3 = 50, 51, 52, 53, 54
sST = 60

a = Asm()
nstamp = [0]

def stamp():
    if OPT["stamps"] and not (OPT.get("fine") == 4 and nstamp[0] >= 10):
        i = nstamp[0]; nstamp[0] += 1
        assert i < 14
        a(f"{'s_memrealtime' if OPT.get('rt') or OPT.get('probe') and not (OPT.get('cyc') and i) else 's_memtime'} s[{sST+2*i}:{sST+2*i+1}]")
        if OPT.get("cyc") and i == 0:
            a("s_memtime s[100:101]")

def stamps_out(last=-1):
    if not OPT["stamps"]:
        return
    if OPT.get("probe"):
        if last == OPT.get("pwave", 0):
            j = sST + 2 * OPT["probe"]
            a(f"""
s_waitcnt vmcnt(0) lgkmcnt(0)
s_cmp_eq_u32 s2, {OPT.get('wg', 0)}
s_cbranch_scc0 L_probe_x
s_cmp_eq_u32 s{sWAVE}, {last}
s_cbranch_scc0 L_probe_x
s_sub_u32 s{sT}, s{j}, s{100 if OPT.get('cyc') else sST}
{'s_lshr_b32 s7, s7, 3' if OPT.get('cyc') else 's_mul_i32 s7, s7, 10'}
s_min_u32 s{sT}, s{sT}, 100000
s_add_u32 s{sT}, s{sT}, 6000
L_probe:
s_memrealtime s[44:45]
s_waitcnt lgkmcnt(0)
s_sub_u32 s44, s44, s{sST}
s_cmp_lt_u32 s44, s{sT}
s_cbranch_scc1 L_probe
L_probe_x:
""")
        return
    a("s_waitcnt vmcnt(0) lgkmcnt(0)")
    a(f"s_lshl_b32 s{sT}, s2, 3\ns_add_u32 s{sT}, s{sT}, s{sWAVE}\ns_lshl_b32 s{sT}, s{sT}, 6")
    a(f"s_add_u32 s{sT}, s{sT}, {WS_STAMP}\nv_mov_b32 v1, s{sT}")
    for i in range(16):
        a(f"v_mov_b32 v2, {'s%d' % (sST+2*i) if i < 14 else 0}")
        a(f"buffer_store_dword v2, v1, s[{SWS}:{SWS+3}], 0 offen offset:{4*i}")
    a("s_waitcnt vmcnt(0)")

def mf(d, s0, s1, c):
    cc = c if isinstance(c, str) else vr(c, 4)
    return f"v_mfma_f32_16x16x32_bf16 {vr(d,4)}, {vr(s0,4)}, {vr(s1,4)}, {cc}"
def cv(d, x):
    return f"v_cvt_pk_bf16_f32 v{d}, v{x}, v{x+1}"
def tr(d, addr, off):
    return f"ds_read_b64_tr_b16 {vr(d,2)}, v{addr} offset:{off}"
def weave(mfmas, others, per=2):
    o = list(others)
    for m in mfmas:
        a(m)
        for _ in range(per):
            if o: a(o.pop(0))
    for x in o: a(x)

def srd(dst, lo, nbytes):
    a(f"s_mov_b32 s{dst}, s{lo}\ns_mov_b32 s{dst+1}, s{lo+1}\ns_mov_b32 s{dst+2}, {nbytes}\ns_mov_b32 s{dst+3}, 0x20000")
def srds_rest():
    srd(SWO, 40, 663552); srd(SOUT, 44, 4718592); srd(SDBG, 46, 256); srd(SWS, 48, WS_SIZE)

class M0:
    def __init__(self, base): self.base = base; self.cur = None
    def set(self, imm):
        if self.cur is not None and -32768 <= imm - self.cur <= 32767:
            a(f"s_addk_i32 m0, {imm - self.cur}")
        else:
            a(f"s_add_u32 m0, s{self.base}, {imm}")
        self.cur = imm

def dma(voff, srd_, soff, half=False, off=0):
    if OPT.get("nodma"):
        return
    if half: a("s_mov_b32 exec_hi, 0")
    a(f"buffer_load_dwordx4 v{voff}, s[{srd_}:{srd_+3}], {soff} offen offset:{off} lds")
    if half: a("s_mov_b32 exec_hi, -1")

def rd_lanes(aw, ash, t0, t1):
    a(f"""
v_lshrrev_b32 v{t0}, 5, v0
v_lshlrev_b32 v{t0}, 4, v{t0}
v_bfe_u32 v{t1}, v0, 4, 1
v_lshl_add_u32 v{t0}, v{t1}, 2, v{t0}
v_bfe_u32 v{t1}, v0, 2, 2
v_add_u32 v{t0}, v{t0}, v{t1}
v_mul_u32_u24 v{t0}, 160, v{t0}
v_and_b32 v{t1}, 3, v0
v_lshl_add_u32 v{aw}, v{t1}, 3, v{t0}
""")
    if ash:
        a(f"v_bfe_u32 v{t1}, v0, 1, 1\nv_mul_u32_u24 v{t1}, {SLAB2 - 16}, v{t1}\nv_add_u32 v{t1}, 128, v{t1}\nv_add_u32 v{ash}, v{t1}, v{aw}")

def x_lane(d0, d1, tmp):
    a(f"""
v_lshrrev_b32 v{d0}, 4, v0
v_bfe_u32 v{tmp}, v0, 1, 3
v_xor_b32 v{d0}, v{d0}, v{tmp}
v_and_b32 v{tmp}, 15, v0
v_lshlrev_b32 v{tmp}, 7, v{tmp}
v_lshl_add_u32 v{d0}, v{d0}, 4, v{tmp}
v_xor_b32 v{d1}, 64, v{d0}
""")

def slab_src(dst, j, mul, stride, base):
    a(f"""
v_add_u32 v1, {64*j}, v0
v_mul_u32_u24 v2, 6554, v1
v_lshrrev_b32 v2, 16, v2
v_mad_i32_i24 v1, v2, -10, v1
""")
    if mul is None:
        a("v_bfe_u32 v3, v2, 2, 1\nv_bfe_u32 v4, v2, 3, 1\nv_sub_u32 v3, v3, v4\nv_lshl_add_u32 v2, v3, 2, v2")
    else:
        a("v_and_b32 v3, 3, v2")
        for bit, w in zip((4, 3, 2), mul):
            a(f"v_bfe_u32 v4, v2, {bit}, 1\nv_mul_u32_u24 v4, {w}, v4\nv_add_u32 v3, v3, v4")
        a("v_mov_b32 v2, v3")
    a(f"""
v_mul_u32_u24 v2, {stride}, v2
v_lshl_add_u32 v2, v1, 4, v2
v_add_u32 v1, 7, v1
v_lshrrev_b32 v1, 4, v1
v_lshl_add_u32 v2, v1, 23, v2
v_add_u32 v{dst}, s{base}, v2
""")

def head_of(dst, src):
    a(f"v_mul_u32_u24 v{dst}, 57, v{src}\nv_lshrrev_b32 v{dst}, 10, v{dst}")

sOC, sKC, sFO, sFK = 92, 94, 96, 97

def arrive_wait(addr, target, label, arrive=True):
    if arrive:
        a(f"s_mov_b32 s{sT}, 1\ns_atomic_add s{sT}, s[{addr}:{addr+1}], 0 glc\ns_waitcnt lgkmcnt(0)\ns_cmp_ge_u32 s{sT}, {target-1}\ns_cbranch_scc1 {label}_x")
    a(f"""
s_mov_b32 s{sT3}, 0x20000
{label}:
s_mov_b32 s{sT}, 0
s_atomic_add s{sT}, s[{addr}:{addr+1}], 0 glc
s_waitcnt lgkmcnt(0)
s_sub_u32 s{sT3}, s{sT3}, 1
s_cbranch_scc1 {label}_x
s_cmp_ge_u32 s{sT}, {target}
s_cbranch_scc0 {label}
{label}_x:
""")

def flag_load(dst, offreg):
    a(f"s_load_dword s{dst}, s[{SDBG}:{SDBG+1}], s{offreg}")

def flag_check(val, offreg, label):
    a(f"""
s_mov_b32 s{sT3}, 0x20000
{label}:
s_waitcnt lgkmcnt(0)
s_cmp_lg_u32 s{val}, 0
s_cbranch_scc1 {label}_x
s_sub_u32 s{sT3}, s{sT3}, 1
s_cbranch_scc1 {label}_x
s_load_dword s{val}, s[{SDBG}:{SDBG+1}], s{offreg} glc
s_branch {label}
{label}_x:
""")

SLAB2 = 5136
A_WSLOT, A_XSLOT = 15392, 18432
A_X0 = 5 * A_WSLOT
A_EX = A_X0 + 3 * A_XSLOT
B_KVSLOT, B_XSLOT = 10272, 16384
B_X0 = 5 * B_KVSLOT
B_EX = B_X0 + 3 * B_XSLOT
B_KVOP = 132256
B_STG = B_EX + 40960
B_DUMP, B_LCNT = B_STG + 5504, B_STG + 5888
R1, R2 = 148480, 47104
def wq_slot(p):
    if p < 3: return R1 + 5120 * p
    if p < 6: return 5120 * (p - 3)
    if p == 6: return 46080
    if p < 12: return B_X0 + 5120 * (p - 7)
    return 15360 + 5120 * (p - 12)
WO = [R1, R1 + 5120, R1 + 10240] + [R2 + 5120 * n for n in range(6, 12)] + [0, 5120, 10240] + [R2 + 5120 * n for n in range(6)]
P_TR = 113824
SPLITS = {(1, 0): sG0, (2, 0): sG0, (2, 1): sG0, (3, 0): sG01, (3, 1): sG0}

VD = 16
VWO = 26
sRW, sRX = 90, 91

def hstamp(i):
    if OPT.get("fine") == 4:
        a(f"s_memrealtime s[{sST+2*i}:{sST+2*i+1}]")

def w_head():
    a(f"""
L_W0:
s_mul_i32 s{sT}, s{sV}, {16*3456}
s_mul_i32 s{sT2}, s{sHG}, 144
s_add_u32 s{sT}, s{sT}, s{sT2}
s_mul_i32 s{sT2}, s{sBR}, 1152
s_add_u32 s{sT}, s{sT}, s{sT2}
""")
    for j in range(3):
        slab_src(VD + j, j, None, 3456, sT)
    a(f"s_mul_i32 s42, s{sV}, 2560\ns_mov_b32 m0, s42\ns_mov_b32 s{sT3}, 0")
    hstamp(10)
    a("s_waitcnt lgkmcnt(0)")
    srd(SW, 38, 1990656)
    D = SLAB2 - 1152
    a("L_W0l:")
    pos = 0
    for sl, j in ((0, 0), (0, 1), (1, 0), (1, 1), (0, 2), (1, 2), (2, 2), (2, 0), (2, 1)):
        tgt = D * sl + 1024 * j
        if tgt != pos:
            a(f"s_addk_i32 m0, {tgt - pos}")
        pos = tgt
        if (sl, j) == (0, 2): a("s_mov_b32 exec_hi, 0")
        if (sl, j) == (2, 2): a(f"s_cmp_lg_u32 s{sBR}, 0\ns_cbranch_scc1 L_W0b")
        if (sl, j) == (2, 0): a("s_mov_b32 exec_hi, -1")
        dma(VD + j, SW, f"s{sRW}", off=1152 * sl)
    a(f"""
s_addk_i32 m0, {A_WSLOT - pos - (B_KVSLOT - (2*D + 2048))}
L_W0b:
s_mov_b32 exec_hi, -1
s_addk_i32 m0, {B_KVSLOT - (2*D + 2048)}
s_cmp_lg_u32 s{sT3}, 0
s_cbranch_scc1 L_W0x
s_mov_b32 s{sT3}, 1
s_add_u32 s{sRW}, s{sRW}, {32*3456}
s_branch L_W0l
L_W0x:
""")
    hstamp(11)
    a(f"s_cmp_eq_u32 s{sBR}, 0\ns_cbranch_scc1 L_AW1\ns_branch L_BW1")

def w_issue(kind, c, m):
    slot = (c % 5) * (A_WSLOT if kind == "A" else B_KVSLOT)
    n = 3 if kind == "A" else 2
    if c:
        a(f"s_add_u32 s{sRW}, s{sRW}, {32*3456}\ns_cmp_eq_u32 s{sRW}, {18*32*3456}\ns_cselect_b32 s{sRW}, 0, s{sRW}")
    order = [(sl, j) for sl in range(n) for j in range(2)] + [(sl, 2) for sl in range(n)]
    for sl, j in order:
        m.set(slot + (SLAB2 - 1152) * sl + 1024 * j)
        if (sl, j) == (0, 2):
            a("s_mov_b32 exec_hi, 0")
        dma(VD + j, SW, f"s{sRW}", off=1152 * sl)
    a("s_mov_b32 exec_hi, -1")
    return 3 * n

def wq_issue(p, m):
    a(f"s_add_u32 s{sK}, s{sRW}, {(p+1)*32*3456}\ns_cmp_ge_u32 s{sK}, {18*32*3456}\ns_cselect_b32 s{sT}, {18*32*3456}, 0\ns_sub_u32 s{sK}, s{sK}, s{sT}")
    for j in range(3):
        m.set(wq_slot(p) + 1024 * j)
        dma(VD + 3 + j, SW, f"s{sK}", half=(j == 2))
    return 3

def x_head():
    a(f"""
s_cmp_eq_u32 s{sBR}, 0
s_cselect_b32 s{sT2}, 1, 0
s_lshl_b32 s{sT3}, 1152, s{sT2}
v_lshrrev_b32 v1, 3, v0
v_mul_u32_u24 v1, s{sT3}, v1
v_lshrrev_b32 v2, 4, v0
v_lshl_add_u32 v2, s{sV}, 2, v2
v_and_b32 v3, 7, v0
v_xor_b32 v2, v2, v3
v_lshl_add_u32 v1, v2, 4, v1
s_mul_i32 s{sT}, s{sRB}, {128*1152}
v_add_u32 v1, s{sT}, v1
s_lshl_b32 s43, s{sT3}, 4
s_mul_i32 s{sT}, s{sV}, s{sT3}
s_lshl_b32 s{sT}, s{sT}, 3
v_add_u32 v{VD}, s{sT}, v1
s_mul_i32 s{sT3}, s{sV}, 1152
s_add_u32 s{sT3}, s{sT3}, {15*1152}
v_subrev_u32 v{VD+8}, s{sT3}, v1
s_sub_u32 s{sT3}, {17*1152}, s{sT}
s_add_u32 s{sT}, s{sT}, {64*1152}
s_cmp_eq_u32 s{sBR}, 0
s_cselect_b32 s{sT}, s{sT3}, s{sT}
v_add_u32 v{VD+4}, s{sT}, v1
s_movk_i32 s{sT}, {(A_X0 - B_X0)}
s_cselect_b32 s{sT}, s{sT}, 0
s_lshl_b32 s42, s{sV}, 10
s_add_u32 s{sT}, s{sT}, s42
s_add_u32 m0, s{sT}, {B_X0}
""")
    for q in (1, 2, 3):
        a(f"v_add_u32 v{VD+q}, s43, v{VD+q-1}\nv_add_u32 v{VD+4+q}, s43, v{VD+3+q}")
    a(f"s_mov_b32 s{sT3}, 0")
    hstamp(10)
    a("s_waitcnt lgkmcnt(0)")
    srd(SX, 36, 2359296)
    a("L_X0l:")
    for q in range(9):
        if q == 8:
            a(f"s_cbranch_scc0 L_X0b")
        dma(VD + q, SX, f"s{sRX}")
        a("s_addk_i32 m0, 2048")
        a(f"s_cmp_eq_u32 s{sBR}, 0" if q == 7 else "s_nop 0")
    a(f"""
L_X0b:
s_cmp_lg_u32 s{sT3}, 0
s_cbranch_scc1 L_X0x
s_mov_b32 s{sT3}, 1
s_addk_i32 s{sRX}, 128
s_cmpk_eq_u32 s{sRX}, 1152
s_cselect_b32 s{sRX}, 0, s{sRX}
s_branch L_X0l
L_X0x:
""")
    hstamp(11)
    a(f"s_cmp_eq_u32 s{sBR}, 0\ns_cbranch_scc1 L_AX1\ns_branch L_BX1")

def karg_rest():
    a(f"""
s_mul_i32 s{sT}, s{sBR}, 24
s_add_u32 s{sT}, s{sT}, 16
s_load_dwordx2 s[40:41], s[0:1], s{sT}
s_load_dwordx4 s[44:47], s[0:1], 48
s_load_dwordx2 s[48:49], s[0:1], 64
s_mov_b32 s{sG0}, 0xffff
s_mov_b32 s{sG0+1}, 0
s_mov_b32 s{sG01}, -1
s_mov_b32 s{sG01+1}, 0
""")

def x_issue(kind, c, m):
    nq, h, x0, xs = (9, 5, A_X0, A_XSLOT) if kind == "A" else (8, 4, B_X0, B_XSLOT)
    st = (c + 1) // 2
    if st > 8:
        return 0
    qs = range(nq) if c == 0 else (range(h) if c % 2 else range(h, nq))
    if c % 2:
        a(f"s_addk_i32 s{sRX}, 128\ns_cmpk_eq_u32 s{sRX}, 1152\ns_cselect_b32 s{sRX}, 0, s{sRX}")
    for q in qs:
        m.set(x0 + (st % 3) * xs + 2048 * q)
        a("s_nop 0")
        dma(VD + q, SX, f"s{sRX}")
    return len(qs)

def wo_setup(quad):
    a(f"s_mul_i32 s{sM}, s{sHG}, 144")
    for j in range(5):
        slab_src(VWO + j, j, (8, 16, 4), 1152, sM)
        slab_src(VWO + 5 + j, j, (144, 4, 72), 1152, sM)
    a(f"s_and_b32 s55, s{sWAVE}, 3\ns_lshl_b32 s57, s55, 3")
    rho(56)
    a(f"s_add_u32 s56, s56, s{55 if quad else sV}")

def rho(dst):
    a(f"s_lshl_b32 s{dst}, s{sRB}, 1\ns_add_u32 s{dst}, s{dst}, s{sHG}\ns_lshl_b32 s{dst}, s{dst}, 1")

def wo_chunk(left, fadd):
    if left:
        a(f"s_mul_i32 s{sK}, s{sV}, {288*1152}\ns_add_u32 s{sK}, s{sK}, {64*1152}")
    else:
        a(f"""
s_add_u32 s{sT}, s56, {fadd}
s_bfe_u32 s{sK}, s{sT}, 0x30001
s_mul_i32 s{sK}, s{sK}, {72*1152}
s_bitcmp1_b32 s{sT}, 0
s_cselect_b32 s{sT}, {32*1152}, 0
s_add_u32 s{sK}, s{sK}, s{sT}
""")
    for j in range(5):
        dma(VWO + (5 if left else 0) + j, SWO, f"s{sK}")
        if j < 4:
            a("s_addk_i32 m0, 1024")
    return 5

def wo_issue(q):
    packed = sum((WO[2 + 4*q + w] // 1024) << (8 * w) for w in range(4))
    a(f"s_lshr_b32 s{sT}, {packed}, s57\ns_and_b32 s{sT}, s{sT}, 0xff\ns_lshl_b32 m0, s{sT}, 10")
    return wo_chunk(False, 4*q)

def wo_pair(g):
    a(f"s_mul_i32 s{sT}, s{sV}, {WO[2*g+1] - WO[2*g] & 0xffffffff}\ns_add_u32 m0, s{sT}, {WO[2*g]}")
    return wo_chunk(g == 0, 2*g - 2)

def sync_setup():
    a(f"""
s_lshl_b32 s{sT}, s{sBR}, 4
s_add_u32 s{sT}, s{sT}, s{sRB}
s_lshl_b32 s{sT2}, s{sT}, 8
s_add_u32 s{sT2}, s{sT2}, {WS_CNT}
s_add_u32 s{sOC}, s{SWS}, s{sT2}
s_addc_u32 s{sOC+1}, s{SWS+1}, 0
s_lshl_b32 s{sT}, s{sT}, 2
s_add_u32 s98, s{sT}, 32
s_lshl_b32 s99, s{sHG}, 2
s_mul_i32 s{sT2}, s{sHG}, {KV_ST}
s_add_u32 s{sT2}, s{sT2}, {WS_KV + 6144}
s_add_u32 s{sKC}, s{SWS}, s{sT2}
s_addc_u32 s{sKC+1}, s{SWS+1}, 0
""")

def loader_tail(tag, late=None):
    sig = tag != "BW"
    if sig:
        flag_check(sFO, 98, f"L_{tag}_fo")
    a("s_barrier")
    stamp()
    if sig:
        a(f"s_cmp_eq_u32 s{sWAVE}, 6\ns_cbranch_scc0 L_{tag}_na\ns_mov_b32 s96, 1\ns_atomic_add s96, s[{sOC}:{sOC+1}], 0 glc\nL_{tag}_na:")
    if late:
        late()
    if sig:
        a(f"s_cmp_eq_u32 s{sWAVE}, 6\ns_cbranch_scc0 L_{tag}_oc_x")
        a(f"s_waitcnt lgkmcnt(0)\ns_cmp_ge_u32 s96, 7\ns_cbranch_scc1 L_{tag}_oc_x")
        arrive_wait(sOC, 8, f"L_{tag}_oc", False)
    a("s_waitcnt vmcnt(0)")
    stamp()
    a("s_barrier")
    stamps_out()
    a("s_endpgm")

def spread(setup, i, n):
    per = -(-len(setup) // n)
    a("s_cmp_eq_u32 s59, 1")
    a.lines += setup[per*i:per*(i+1)]
    a("s_cselect_b32 s59, 1, 0")

def captured(fn):
    mark = len(a.lines)
    fn()
    out_ = a.lines[mark:]
    del a.lines[mark:]
    return out_

def att_masks(MC, MP, MPF, PM, t):
    a(f"""
s_lshr_b32 s{sT}, s{sWAVE}, 1
s_lshl_b32 s{sT}, s{sT}, 3
v_and_b32 v{t}, 15, v0
v_xor_b32 v{t}, s{sT}, v{t}
v_lshrrev_b32 v{t+1}, 4, v0
v_lshlrev_b32 v{t+1}, 2, v{t+1}
v_xor_b32 v{t+1}, s{sT}, v{t+1}
v_sub_u32 v{t}, v{t}, v{t+1}
v_mov_b32 v{t+2}, {NEG}
s_and_b32 s{sT}, s{sWAVE}, 1
s_or_b32 s{sT}, s{sT}, s{sRB}
s_cmp_eq_u32 s{sT}, 0
s_cselect_b64 s[42:43], -1, 0
""")
    for r in range(4):
        a(f"""
v_subrev_u32 v{t+1}, {r}, v{t}
v_cmp_gt_u32 vcc, 8, v{t+1}
v_cndmask_b32 v{MC+r}, v{t+2}, 0, vcc
v_cmp_gt_i32 vcc, -8, v{t+1}
v_cndmask_b32 v{MP+r}, v{t+2}, 0, vcc
v_cndmask_b32 v{MPF+r}, v{MP+r}, v{t+2}, s[42:43]
v_cmp_lt_i32 vcc, -1, v{t+1}
v_mov_b32 v{t+3}, {'0xffff' if r % 2 == 0 else '0xffff0000'}
v_cndmask_b32 v{t+3}, 0, v{t+3}, vcc
""")
        a(f"v_mov_b32 v{PM + r//2}, v{t+3}" if r % 2 == 0 else f"v_or_b32 v{PM + r//2}, v{PM + r//2}, v{t+3}")

def a_loader(kind):
    a(f"L_A{kind}1:")
    m = M0(42)
    issue = (lambda c: w_issue("A", c, m)) if kind == "W" else (lambda c: x_issue("A", c, m))
    cnt = {1: 9, 2: issue(2)} if kind == "W" else {1: 5, 2: 4}
    karg_rest()
    a("s_mov_b32 s59, 0")
    stamp()
    x_lane(8, 9, 1)
    rd_lanes(10, 12 if kind == "W" else None, 1, 2)
    if kind == "X":
        a(f"v_add_u32 v12, {2*SLAB2 + 128}, v10")
    a(f"""
v_add_u32 v8, {A_X0 + 8*2048}, v8
v_add_u32 v9, {A_X0 + 8*2048}, v9
s_lshl_b32 s{sT}, s{sV}, 6
s_add_u32 s{sT}, s{sT}, {SLAB2 if kind == 'W' else 2*SLAB2}
v_add_u32 v10, s{sT}, v10
v_add_u32 v13, {4*A_WSLOT}, v10
v_add_u32 v15, {4*A_WSLOT}, v12
""")
    def setup():
        srds_rest(); sync_setup(); wo_setup(True)
        a(f"""
s_lshl_b32 s{sT}, s{sV}, 10
s_add_u32 s{sT}, s{sT}, {A_EX + (0 if kind == 'W' else 2560)}
v_lshlrev_b32 v1, 3, v0
v_add_u32 v6, s{sT}, v1
v_add_u32 v7, {A_EX + (2048 if kind == 'W' else 4608)}, v1
""")
    setup = captured(setup)
    a(f"s_waitcnt vmcnt({cnt[1] + cnt[2]})\ns_barrier")
    stamp()
    extra = 0
    for i in range(-1, 17):
        ks = i + 1
        slot = ks % 5
        off = 0 if slot == 4 else slot * A_WSLOT
        ad = (13, 15) if slot == 4 else (10, 12)
        a(f"ds_read_b128 v[40:43], v{8 + ks % 2} offset:{(ks//2 % 3)*A_XSLOT}")
        for j in range(2):
            a(tr(44 + 4*j, ad[0], off + 32*j)); a(tr(46 + 4*j, ad[0], off + 32*j + 1280))
        a(f"s_cmp_eq_u32 s{sV}, 0\ns_cbranch_scc0 L_A{kind}_r{ks}")
        a(tr(52, ad[1], off)); a(tr(54, ad[1], off + 1280))
        a(f"L_A{kind}_r{ks}:")
        if i + 4 <= 17:
            cnt[i+4] = issue(i + 4)
        a("s_waitcnt lgkmcnt(0)")
        for j in range(3):
            c = 60 + 4*j if ks else "0"
            if j == 2:
                a(f"s_cmp_eq_u32 s{sV}, 0\ns_cbranch_scc0 L_A{kind}_m{ks}")
            a(mf(60 + 4*j, 44 + 4*j, 40, c) if kind == "W" else mf(60 + 4*j, 40, 44 + 4*j, c))
        a(f"L_A{kind}_m{ks}:")
        if 1 <= i < 11:
            spread(setup, i - 1, 10)
        if i == 14 and kind == "W":
            extra += wo_pair(0)
        if i == 15:
            extra += wo_issue(0)
        if i + 1 <= 16:
            left = sum(cnt.get(c, 0) for c in range(i + 3, min(i + 4, 17) + 1)) + extra
            a(f"s_waitcnt vmcnt({left})\ns_barrier")
    for j in range(3):
        a(cv(44 + 2*j, 60 + 4*j)); a(cv(45 + 2*j, 62 + 4*j))
    if kind == "W":
        a("v_mov_b32 v50, 0\nv_mov_b32 v51, 0")
        a("v_permlane32_swap_b32 v48, v50\nv_permlane32_swap_b32 v49, v51")
    a("ds_write_b64 v6, v[44:45]\nds_write_b64 v6, v[46:47] offset:512")
    a(f"s_cmp_eq_u32 s{sV}, 0\ns_cbranch_scc0 L_A_att")
    a(f"ds_write_b64 v7, {'v[50:51]' if kind == 'W' else 'v[48:49]'}")
    if kind == "W":
        a("s_branch L_A_att")
        return
    a("L_A_att:")
    stamp()
    a("s_waitcnt lgkmcnt(0)\ns_barrier")
    stamp()
    flag_load(sFO, 98)
    wo_issue(1); wo_issue(2); wo_issue(3)
    stamp()
    loader_tail("A")

def o_store_addr(vfull, vleft, tmp, left_lo, wreg=sWAVE):
    a(f"""
s_lshl_b32 s{sT}, s{sRB}, 3
s_lshl_b32 s{sT2}, s{wreg}, 1
s_add_u32 s{sT}, s{sT}, s{sT2}
s_mul_i32 s{sT}, s{sT}, 18432
s_mul_i32 s{sT2}, s{sBR}, {O_BR}
s_add_u32 s58, s{sT}, s{sT2}
s_lshl_b32 s{sT2}, s{sHG}, 11
s_add_u32 s{sT2}, s{sT2}, s58
v_lshl_add_u32 v{vfull}, v0, 4, s{sT2}
s_lshr_b32 s{sT2}, s{sHG}, 2
s_add_u32 s{sT2}, s{sT2}, 16
s_lshl_b32 s{sT2}, s{sT2}, 10
s_add_u32 s{sT}, s58, s{sT2}
s_and_b32 s{sT2}, s{sHG}, 3
s_lshl_b32 s{sT2}, s{sT2}, 8
s_add_u32 s{sT}, s{sT}, s{sT2}
v_and_b32 v{vleft}, 15, v0
v_lshlrev_b32 v{vleft}, 4, v{vleft}
v_bfe_u32 v{tmp}, v0, 4, 1
v_lshl_add_u32 v{vleft}, v{tmp}, 3, v{vleft}
v_add_u32 v{vleft}, s{sT}, v{vleft}
v_mov_b32 v{tmp}, {OOB}
""")
    x, y = (tmp, vleft) if left_lo else (vleft, tmp)
    a(f"v_cndmask_b32 v{vleft}, v{x}, v{y}, s[{sG01}:{sG01+1}]")

FLAGS = ["", " nt", " sc1", " sc1 nt", " sc0 sc1"]
def o_store(of, vfull, vleft, rt):
    so = f"s{sK}" if rt else "0"
    fl = FLAGS[OPT.get("ost", 2)]
    if rt:
        a(f"s_movk_i32 s{sK}, 18432")
    a(f"buffer_store_dwordx4 {vr(of,4)}, v{vfull}, s[{SWS}:{SWS+3}], {so} offen{fl}")
    a(f"buffer_store_dwordx4 {vr(of+4,4)}, v{vfull}, s[{SWS}:{SWS+3}], {so} offen offset:1024{fl}")
    a(f"buffer_store_dwordx2 {vr(of+8,2)}, v{vleft}, s[{SWS}:{SWS+3}], {so} offen{fl}")

def init_stores(tag, with_kv):
    a(f"""
s_or_b32 s{sT}, s{sHG}, s{sWAVE}
s_cmp_eq_u32 s{sT}, 0
s_cselect_b32 s55, 1, 0
v_mov_b32 v20, 0
v_mov_b32 v21, 0
v_mov_b32 v22, 0
v_mov_b32 v23, 0
s_cbranch_scc0 L_{tag}_i1
s_lshl_b32 s{sT}, s{sBR}, 4
s_add_u32 s{sT}, s{sT}, s{sRB}
s_lshl_b32 s{sT}, s{sT}, 8
s_add_u32 s{sT}, s{sT}, {WS_CNT}
v_mov_b32 v24, s{sT}
buffer_store_dword v20, v24, s[{SWS}:{SWS+3}], 0 offen sc1
L_{tag}_i1:
""")
    if with_kv:
        a(f"""
s_or_b32 s{sT}, s{sRB}, s{sWAVE}
s_cmp_eq_u32 s{sT}, 0
s_cbranch_scc0 L_{tag}_i2
s_or_b32 s55, s55, 2
s_mul_i32 s{sT}, s{sHG}, {KV_ST}
s_add_u32 s{sT}, s{sT}, {WS_KV}
v_lshl_add_u32 v24, v0, 4, s{sT}
""")
        for j in range(7):
            a(f"s_movk_i32 s{sK}, {1024*j}\nbuffer_store_dwordx4 v[20:23], v24, s[{SWS}:{SWS+3}], s{sK} offen sc1")
        a(f"L_{tag}_i2:")

def init_flags(tag):
    a(f"""
s_waitcnt vmcnt(0)
s_cmp_eq_u32 s55, 0
s_cbranch_scc1 L_{tag}_f2
v_mov_b32 v20, 1
s_bitcmp1_b32 s55, 0
s_cbranch_scc0 L_{tag}_f1
s_lshl_b32 s{sT}, s{sBR}, 4
s_add_u32 s{sT}, s{sT}, s{sRB}
s_lshl_b32 s{sT}, s{sT}, 2
s_add_u32 s{sT}, s{sT}, 32
v_mov_b32 v24, s{sT}
buffer_store_dword v20, v24, s[{SDBG}:{SDBG+3}], 0 offen sc1
L_{tag}_f1:
s_bitcmp1_b32 s55, 1
s_cbranch_scc0 L_{tag}_f2
s_lshl_b32 s{sT}, s{sHG}, 2
v_mov_b32 v25, s{sT}
buffer_store_dword v20, v25, s[{SDBG}:{SDBG+3}], 0 offen sc1
L_{tag}_f2:
""")

def kstep(tiles, nxt_reads, first, waits):
    pend = list(first)
    for t, (m0_, m1_) in enumerate(tiles):
        if OPT.get("snake") and t % 2:
            m0_, m1_ = m1_, m0_
        if t in waits:
            a(waits[t])
        a(m0_)
        for x in pend: a(x)
        a(m1_)
        pend = []
        if nxt_reads:
            a(nxt_reads[t][0]); pend = [nxt_reads[t][1]]
    for x in pend: a(x)

def a_consumer():
    acc = lambda t, rt: 144 + (t * 2 + rt) * 4
    wf = lambda t: 88 + 4 * t
    xf = lambda buf, rt: 72 + buf * 8 + rt * 4
    aW, aS, aWb, aSb, aX = 1, 2, 3, 4, 11
    vOF, vOL, vEXW, vEXR = 13, 14, 15, 16
    MC, MP, MPF, PM = 56, 60, 64, 68
    a("L_AC:")
    karg_rest()
    a("s_waitcnt lgkmcnt(0)")
    srds_rest()
    init_stores("AC", False)
    rd_lanes(aW, aS, 17, 18); x_lane(aX, aX + 1, 17)
    a(f"v_add_u32 v{aWb}, {4*A_WSLOT}, v{aW}\nv_add_u32 v{aSb}, {4*A_WSLOT}, v{aS}")
    a(f"""
s_lshl_b32 s{sT}, s{sWAVE}, 12
s_add_u32 s{sT}, s{sT}, {A_X0}
v_add_u32 v{aX}, s{sT}, v{aX}
v_add_u32 v{aX+1}, s{sT}, v{aX+1}
""")
    att_masks(MC, MP, MPF, PM, 17)
    o_store_addr(vOF, vOL, 17, True)
    a(f"""
s_lshr_b32 s{sT}, s{sWAVE}, 1
s_add_u32 s{sT}, s{sT}, 1
s_mul_i32 s{sT}, s{sT}, 5120
s_bitcmp1_b32 s{sWAVE}, 0
s_cselect_b32 s{sT3}, s{sT}, 0
v_lshlrev_b32 v17, 3, v0
v_add_u32 v17, {A_EX}, v17
v_add_u32 v{vEXW}, s{sT}, v17
v_add_u32 v{vEXR}, s{sT3}, v17
""")

    def wreads(ks, t):
        slot = ks % 5
        o = 0 if slot == 4 else slot * A_WSLOT
        ad = (aSb if slot == 4 else aS) if t == 4 else (aWb if slot == 4 else aW)
        if t != 4:
            o += 32 * t if t < 4 else SLAB2 + 32 * (t - 5) if t < 9 else 2 * SLAB2 + 32 * (t - 9)
        return [tr(wf(t), ad, o), tr(wf(t) + 2, ad, o + 1280)]
    xread = lambda ks, rt: f"ds_read_b128 {vr(xf(ks % 2, rt),4)}, v{aX + ks % 2} offset:{(ks//2 % 3)*A_XSLOT + rt*2048}"

    stamp()
    a("s_barrier")
    stamp()
    a(xread(0, 0)); a(xread(0, 1))
    for t in range(14):
        for x in wreads(0, t): a(x)
    for ks in range(18):
        if ks < 17:
            a("s_barrier")
        if OPT.get("fine") == 2 and ks in (2, 5, 8, 11, 14):
            stamp()
        if ks == 3:
            init_flags("AC")
        tiles = []
        for t in range(14):
            c = lambda rt: acc(t, rt) if ks else "0"
            tiles.append([mf(acc(t, rt), wf(t), xf(ks % 2, rt), c(rt)) if t < 9 else mf(acc(t, rt), xf(ks % 2, rt), wf(t), c(rt)) for rt in range(2)])
        if ks < 17:
            nxt = [wreads(ks + 1, t) for t in range(14)]
            nxt[1] = [nxt[1][0], nxt[1][1] + "\n" + xread(ks + 1, 1)]
            kstep(tiles, nxt, [xread(ks + 1, 0)], {0: "s_waitcnt lgkmcnt(14)", 7: "s_waitcnt lgkmcnt(15)", 12: "s_waitcnt lgkmcnt(15)"})
        else:
            kstep(tiles, None, [], {0: "s_waitcnt lgkmcnt(14)", 7: "s_waitcnt lgkmcnt(0)"})
    stamp()
    KP = lambda j: 18 + 10 * j
    QT = lambda rt, h: 88 + 16 * rt + 4 * h
    VP = lambda t, j: 120 + 6 * t + 2 * j if t < 4 else 48 + 2 * j
    ONE = 72
    def pack_kv(rt):
        o = []
        for q in range(2):
            o += [cv(QT(rt, 3) + 2 + q, acc(4, rt) + 2*q), f"v_mov_b32 v{KP(1+rt) + 8 + q}, 0"]
        for tau in range(4):
            o += [cv(KP(1+rt) + 2*tau + q, acc(5+tau, rt) + 2*q) for q in range(2)]
        o += [f"v_permlane32_swap_b32 v{QT(rt,3) + 2 + q}, v{KP(1+rt) + 8 + q}" for q in range(2)]
        for t in range(5):
            o += [cv(VP(t, 1+rt) + q, acc(9+t, rt) + 2*q) for q in range(2)]
        return o
    def pack_q(rt):
        o = []
        for t in range(4):
            for q in range(2):
                d = QT(rt, t) + q
                o.append(cv(d, acc(t, rt) + 2*q))
                if (t, q) in SPLITS:
                    m = SPLITS[(t, q)]; lo = QT(rt, t-1) + 2 + q
                    o += [f"v_cndmask_b32 v{lo}, 0, v{d}, s[{m}:{m+1}]", f"v_xor_b32 v{d}, v{d}, v{lo}"]
        return o + [f"v_mov_b32 v{QT(rt,0) + 3}, 0"]
    weave([], pack_kv(1))
    a(f"s_bitcmp1_b32 s{sWAVE}, 0\ns_cbranch_scc1 L_AC_nodump")
    for j in range(5):
        a(f"ds_write_b64 v{vEXW}, {vr(KP(2) + 2*j, 2)} offset:{512*j}")
        a(f"ds_write_b64 v{vEXW}, {vr(VP(j, 2), 2)} offset:{512*(5+j)}")
    a("L_AC_nodump:")
    weave([], pack_kv(0) + pack_q(1))
    a("s_waitcnt lgkmcnt(0)\ns_barrier")
    for j in range(5):
        a(f"ds_read_b64 {vr(KP(0) + 2*j, 2)}, v{vEXR} offset:{512*j}")
        a(f"ds_read_b64 {vr(VP(j, 0), 2)}, v{vEXR} offset:{512*(5+j)}")
    SC = lambda rt, h: (224 if rt else 184) + 8 * h
    MX = lambda rt: [76 + 4 * rt + h for h in range(4)]
    PT = lambda rt, h: 144 + 16 * rt + 4 * h
    def qk(rt):
        o = []
        for h in range(4):
            o += [mf(SC(rt, h), KP(1+rt) + 2*h, QT(rt, h), MC), mf(SC(rt, h) + 4, KP(rt) + 2*h, QT(rt, h), MP if rt else MPF)]
        return o
    def rowmax(rt):
        o = []
        for h in range(4):
            s = SC(rt, h); m = MX(rt)[h]
            o += [f"v_max_f32 v{s+r}, v{s+r}, v{s+4+r}" for r in range(4)]
            o += [f"v_max3_f32 v{m}, v{s}, v{s+1}, v{s+2}", f"v_max_f32 v{m}, v{m}, v{s+3}"]
        return o
    def xmax(rt):
        m = MX(rt)
        return [f"v_permlane32_swap_b32 v{m[0]}, v{m[1]}", f"v_permlane32_swap_b32 v{m[2]}, v{m[3]}",
                f"v_max_f32 v{m[0]}, v{m[0]}, v{m[1]}", f"v_max_f32 v{m[2]}, v{m[2]}, v{m[3]}",
                f"v_permlane16_swap_b32 v{m[0]}, v{m[2]}", f"v_max_f32 v{m[0]}, v{m[0]}, v{m[2]}",
                f"v_mul_f32 v{m[0]}, s{sT2}, v{m[0]}", f"v_mov_b32 v{m[2]}, v{m[0]}",
                f"v_permlane16_swap_b32 v{m[0]}, v{m[2]}", f"v_mov_b32 v{m[1]}, v{m[0]}", f"v_mov_b32 v{m[3]}, v{m[2]}",
                f"v_permlane32_swap_b32 v{m[0]}, v{m[1]}", f"v_permlane32_swap_b32 v{m[2]}, v{m[3]}"]
    def scale(rt):
        if OPT.get("pka", 2) < 2:
            return [f"v_fma_f32 v{SC(rt,h)+r}, v{SC(rt,h)+r}, s56, v{MX(rt)[h]}" for h in range(4) for r in range(4)]
        return [f"v_pk_fma_f32 {vr(SC(rt,h)+r,2)}, {vr(SC(rt,h)+r,2)}, s[56:57], {vr(MX(rt)[h] & ~1, 2)} op_sel:[0,0,{h%2}] op_sel_hi:[1,1,{h%2}]"
                for h in range(4) for r in (0, 2)]
    def probs(rt):
        o = []
        for h in range(4):
            s = SC(rt, h); p = PT(rt, h)
            o += [f"v_exp_f32 v{s+r}, v{s+r}" for r in range(4)]
            if h:
                o += split(rt, h - 1)
        return o + split(rt, 3)
    def split(rt, h):
        s = SC(rt, h); p = PT(rt, h); o = []
        for q in range(2):
            o += [cv(p + q, s + 2*q), f"v_and_b32 v{p+2+q}, v{p+q}, v{PM+q}", f"v_xor_b32 v{p+q}, v{p+q}, v{p+2+q}"]
        return o
    OB = lambda rt, t: (224 if rt else 184) + 4 * t
    OA = lambda rt, t: (224 if rt else 184) + 12 + 4 * t
    SM = lambda rt, h: 88 + 16 * rt + 4 * h
    OF = lambda rt: 18 + 10 * rt
    def pv(rt):
        o = [mf(SM(rt, h), ONE, PT(rt, h), "0") for h in range(4)]
        for t in range(5):
            if t < 4: o.append(mf(OB(rt, t), VP(t, rt), PT(rt, t), "0"))
            if t > 0: o.append(mf(OA(rt, t), VP(t, rt), PT(rt, t-1), "0"))
        return o
    def finish(rt, pk):
        o = [f"v_rcp_f32 v{SM(rt,h)}, v{SM(rt,h)}" for h in range(4)]
        for t in range(5):
            for q in range(2):
                d = OF(rt) + 2*t + q
                srcs = []
                if t < 4: srcs.append((OB(rt, t) + 2*q, SM(rt, t), d))
                if t == 4: srcs.append((OA(rt, t) + 2*q, SM(rt, 3), d))
                if (t, q) in SPLITS: srcs.append((OA(rt, t) + 2*q, SM(rt, t-1), 17))
                for x, inv, dd in srcs:
                    if pk:
                        o += [f"v_pk_mul_f32 {vr(x,2)}, {vr(x,2)}, {vr(inv,2)} op_sel_hi:[1,0]", cv(dd, x)]
                    else:
                        o += [f"v_mul_f32 v{x}, v{x}, v{inv}", f"v_mul_f32 v{x+1}, v{x+1}, v{inv}", cv(dd, x)]
                if (t, q) in SPLITS:
                    m = SPLITS[(t, q)]
                    o.append(f"v_cndmask_b32 v{d}, v{d}, v17, s[{m}:{m+1}]")
        return o
    a(f"s_mov_b32 s56, {f32(CSC)}\ns_mov_b32 s57, s56\ns_mov_b32 s{sT2}, {f32(-CSC)}")
    weave(qk(1), pack_q(0) + [f"v_mov_b32 v{ONE+j}, 0x3f803f80" for j in range(4)])
    a("s_waitcnt lgkmcnt(0)")
    weave(qk(0), rowmax(1))
    x1, x0 = xmax(1), xmax(0)
    r0 = rowmax(0)
    for i, x in enumerate(x1):
        a(x)
        for y in r0[2*i:2*i+2]: a(y)
    p1 = scale(1) + probs(1)
    for i, x in enumerate(x0):
        a(x)
        for y in p1[2*i:2*i+2]: a(y)
    if OPT.get("pka", 2) > 1:
        weave([], p1[2*len(x0):] + scale(0))
        weave(pv(1), probs(0))
    else:
        weave([], p1[2*len(x0):])
        weave(pv(1), scale(0) + probs(0))
    f1 = finish(1, False)
    f1p = finish(1, OPT.get('pka', 2) > 1)
    cutp = next(i for i, x in enumerate(f1p) if x.startswith(f"v_cvt_pk_bf16_f32 v{OF(1) + 3},")) + 1
    cutn = next(i for i, x in enumerate(f1) if x.startswith(f"v_cvt_pk_bf16_f32 v{OF(1) + 3},")) + 1
    weave(pv(0), f1[:cutn])
    weave([], f1p[cutp:])
    o_store(OF(1), vOF, vOL, 1)
    weave([], finish(0, OPT.get('pka', 2) > 0))
    o_store(OF(0), vOF, vOL, 0)
    stamp()
    a("s_branch L_P2")

def phi(r, n, t):
    o = [f"v_pk_fma_f32 {vr(t[j],2)}, {vr(r+j,2)}, s[56:57], v[14:15]" for j in range(0, n, 2)]
    for j in range(n):
        o += [f"v_exp_f32 v{t[j]}, v{t[j]} clamp", f"v_max_f32 v{r+j}, s{sT2}, v{r+j}"]
    return o + [f"v_pk_add_f32 {vr(r+j,2)}, {vr(r+j,2)}, {vr(t[j],2)}" for j in range(0, n, 2)]

def b_consumer():
    acc = lambda t, rt: 184 + (t * 2 + rt) * 4
    wf = lambda t: 148 + 4 * t
    xf = lambda ks, rt: 52 + ks * 8 + rt * 4 if ks < 12 else 36 + (ks % 2) * 8 + rt * 4
    aW, aS, aX = 1, 2, 6
    vOF, vOL, vEX = 8, 9, 10
    CK, CS = 28, 32
    a("L_BC:")
    karg_rest()
    a("s_waitcnt lgkmcnt(0)")
    srds_rest()
    init_stores("BC", True)
    rd_lanes(aW, aS, 17, 18); x_lane(aX, aX + 1, 17)
    a(f"""
s_lshl_b32 s{sT}, s{sWAVE}, 12
s_add_u32 s{sT}, s{sT}, {B_X0}
v_add_u32 v{aX}, s{sT}, v{aX}
v_add_u32 v{aX+1}, s{sT}, v{aX+1}
v_and_b32 v17, 15, v0
v_cmp_gt_u32 vcc, 8, v17
v_mov_b32 v18, {EPS}
s_mov_b64 s[42:43], vcc
s_mul_i32 s{sT}, s{sWAVE}, 10240
s_add_u32 s{sT}, s{sT}, {B_EX}
v_lshl_add_u32 v{vEX}, v0, 4, s{sT}
v_mov_b32 v14, {f32(-1e-6*LOG2E)}
v_mov_b32 v15, v14
s_mov_b32 s56, {f32(LOG2E)}
s_mov_b32 s57, s56
""")
    for r in range(4):
        a(f"v_mov_b32 v{CK+r}, v18\nv_cndmask_b32 v{CS+r}, 0, v18, vcc")
    o_store_addr(vOF, vOL, 17, False)

    def wreads(ks, t):
        o = (ks % 5) * B_KVSLOT
        if t != 4:
            o += 32 * t if t < 4 else SLAB2 + 32 * (t - 5)
        return [tr(wf(t), aS if t == 4 else aW, o), tr(wf(t) + 2, aS if t == 4 else aW, o + 1280)]
    xread = lambda ks, rt: f"ds_read_b128 {vr(xf(ks, rt),4)}, v{aX + ks % 2} offset:{(ks//2 % 3)*B_XSLOT + rt*2048}"

    stamp()
    a("s_barrier")
    stamp()
    a(xread(0, 0)); a(xread(0, 1))
    for t in range(9):
        for x in wreads(0, t): a(x)
    for ks in range(18):
        if ks < 17:
            a("s_barrier")
        if ks == 3:
            init_flags("BC")
        tiles = [[mf(acc(t, rt), xf(ks, rt), wf(t), acc(t, rt) if ks else (CK if t < 4 else CS if t == 4 else "0")) for rt in range(2)] for t in range(9)]
        if ks < 17:
            nxt = [wreads(ks + 1, t) for t in range(9)]
            nxt[1] = [nxt[1][0], nxt[1][1] + "\n" + xread(ks + 1, 1)]
            kstep(tiles, nxt, [xread(ks + 1, 0)], {0: "s_waitcnt lgkmcnt(12)", 3: "s_waitcnt lgkmcnt(13)", 6: "s_waitcnt lgkmcnt(13)", 8: "s_waitcnt lgkmcnt(11)"})
        else:
            rr = [[f"ds_read_b128 {vr(wf(t),4)}, v{aX + t//2 % 2} offset:{(6 + t//4) % 3*B_XSLOT + t % 2*2048}" if t < 8 else "", ""] for t in range(9)]
            kstep(tiles, rr, [], {0: "s_waitcnt lgkmcnt(12)", 3: "s_waitcnt lgkmcnt(3)\ns_barrier"})
    stamp()
    a(f"s_mov_b32 s{sT2}, {EPS}\nv_mov_b32 v16, 0x3f803f80")
    wr = lambda reg, slot: f"ds_write_b128 v{vEX}, {vr(reg,4)} offset:{1024*slot}"
    pk = lambda d, s: [cv(d + j, s + 2*j) for j in range(4)]
    xq = lambda ks, rt: wf(2 * (ks - 12) + rt) if 12 <= ks < 16 else xf(ks, rt)
    for tau in range(4):
        weave([], pk(acc(5+tau, 0), acc(5+tau, 0)))
    V4, TM = acc(7, 1), [acc(5, 1) + j for j in range(4)] + [acc(6, 1) + j for j in range(4)]
    a("s_waitcnt lgkmcnt(0)\ns_barrier")
    weave([], pk(V4, acc(4, 0)) + [f"v_cndmask_b32 v{V4+j}, v{V4+j}, v16, s[42:43]" for j in range(4)])
    for tau in range(5):
        o = phi(acc(tau, 0), 8, TM)
        weave([], o[:8] + [wr(acc(5+tau, 0) if tau < 4 else V4, 5 + tau)] + o[8:] + pk(acc(tau, 0), acc(tau, 0)) + [wr(acc(tau, 0), tau)])
    a(f"v_add_u32 v3, {R1}, v{aW}\nv_add_u32 v4, 15360, v{aW}")
    a("s_waitcnt lgkmcnt(0)\ns_barrier")
    stamp()
    QA = lambda t, rt: 216 + (t * 2 + rt) * 4
    qf = lambda t: 184 + 4 * t
    def qreads(p, t):
        ad, o = (3, wq_slot(p) - R1) if p < 3 else (aW, wq_slot(p)) if p < 6 else (4, wq_slot(p) - 15360)
        return [tr(qf(t), ad, o + 32*t), tr(qf(t) + 2, ad, o + 32*t + 1280)]
    for t in range(5):
        for x in qreads(0, t): a(x)
    if OPT.get("x2", 1):
        a("s_barrier")
    for p in range(18):
        ks = p
        if p == 7:
            if OPT.get("fine") == 3: stamp()
            a("s_barrier")
            if OPT.get("fine") == 3: stamp()
        tiles = [[mf(QA(t, rt), qf(t), xq(ks, rt), QA(t, rt) if p else CK) for rt in range(2)] for t in range(5)]
        if p < 17:
            nxt = [qreads(p + 1, t) for t in range(5)]
            kstep(tiles, nxt, [], {t: f"s_waitcnt lgkmcnt({7 if t else 8})" for t in range(5)})
        else:
            kstep(tiles, None, [], {t: f"s_waitcnt lgkmcnt({8 - 2*t})" for t in range(5)})
    stamp()
    PQ = lambda rt: 36 + 10 * rt
    KO = 84
    tup = {0: KO, 1: KO + 4, 2: KO + 12, 3: KO + 20, 4: KO + 28}
    ZO = KO + 32
    weave([], [f"v_mov_b32 v{r}, 0" for r in (tup[1]+4, tup[1]+5, tup[2]+4, tup[2]+5, tup[3]+4, tup[3]+5, ZO+8, ZO+9)])
    a(f"v_lshlrev_b32 v16, 3, v0\nv_add_u32 v16, {B_KVOP}, v16")
    for t in range(5):
        weave([], phi(QA(t, 0), 8, list(range(148, 156))) + [cv(PQ(rt) + 2*t + q, QA(t, rt) + 2*q) for rt in range(2) for q in range(2)])
    stamp()
    a("s_barrier")
    stamp()
    tid = lambda tau, taup: {-1: tau - 1, 0: 4 + tau, 1: 9 + tau}[taup - tau]
    rd = lambda d, slot: a(f"ds_read_b64 {vr(d,2)}, v16 offset:{512*slot}")
    for j, d in enumerate((ZO, ZO + 2, ZO + 4, ZO + 6, ZO + 10)):
        rd(d, 13 + j)
    rd(tup[0], tid(0, 0)); rd(tup[0] + 2, tid(1, 0))
    for t in (1, 2, 3):
        rd(tup[t], tid(t-1, t)); rd(tup[t] + 2, tid(t, t)); rd(tup[t] + 6, tid(t+1, t))
    rd(tup[4], tid(3, 4)); rd(tup[4] + 2, tid(4, 4))
    DN = lambda rt: 148 + 4 * rt
    NM = lambda rt, t: 184 + 20 * rt + 4 * t
    OF = lambda rt: 156 + 10 * rt
    a("s_waitcnt lgkmcnt(13)")
    for k, (zo, po) in enumerate(((0, 0), (4, 4), (8, 6))):
        for rt in range(2):
            a(mf(DN(rt), ZO + zo, PQ(rt) + po, DN(rt) if k else CK))
    a("s_waitcnt lgkmcnt(0)")
    def num(rt):
        o = [mf(NM(rt, t), tup[t], PQ(rt) + 2*(t-1), "0") for t in (1, 2, 3)]
        o += [mf(NM(rt, 0), tup[0], PQ(rt), "0"), mf(NM(rt, 4), tup[4], PQ(rt) + 6, "0")]
        return o + [mf(NM(rt, t), tup[t] + 4, PQ(rt) + 2*t, NM(rt, t)) for t in (1, 2, 3)]
    def fin(rt, packed):
        o = []
        for t in (0, 4, 1, 2, 3):
            for q in range(2):
                inv = DN(rt) + min(t, 3)
                if (t, q) in SPLITS:
                    m = SPLITS[(t, q)]
                    o.append(f"v_cndmask_b32 v17, v{DN(rt)+t}, v{DN(rt)+t-1}, s[{m}:{m+1}]")
                    inv = 17
                n = NM(rt, t) + 2*q
                o += [f"v_pk_mul_f32 {vr(n,2)}, {vr(n,2)}, {vr(inv & ~1,2)} op_sel:[0,{inv%2}] op_sel_hi:[1,{inv%2}]", cv(OF(rt) + 2*t + q, n)]
        return o
    weave(num(0), [], 0)
    weave(num(1), [f"v_rcp_f32 v{DN(rt)+h}, v{DN(rt)+h}" for rt in range(2) for h in range(4)], 1)
    for rt in range(2):
        weave([], fin(rt, True))
        o_store(OF(rt), vOF, vOL, rt)
    stamp()

def kv_index(wreg, VS, VG, VZ):
    a(f"s_cmp_eq_u32 s{wreg}, 0\ns_cselect_b32 s58, 4, s{wreg}")
    for slot in range(3):
        if slot == 0:
            a(f"s_lshl_b32 s{sT}, s58, 4\ns_sub_u32 s{sT2}, s{sT}, 16\ns_mov_b64 s[46:47], 0")
        elif slot == 1:
            a(f"s_lshl_b32 s{sT}, s{wreg}, 4\ns_mov_b32 s{sT2}, s{sT}")
        else:
            a(f"s_add_u32 s{sT2}, s{sT}, 16\ns_cmp_eq_u32 s{wreg}, 3\ns_cselect_b32 s{sT2}, 56, s{sT2}\ns_cselect_b64 s[46:47], s[44:45], 0")
        kv_tile(VS and VS + 2*slot, VG and VG + 2*slot, False)
    if VZ:
        kv_z(VZ)

def kv_tile(VS, VG, last):
    a(f"v_add_u32 v3, s{sT2}, v1")
    head_of(4, 3)
    a(f"v_mul_u32_u24 v5, 18, v4\nv_sub_u32 v3, v3, v5\nv_cndmask_b32 v4, v4, 7, s[46:47]")
    if last:
        a("v_cmp_eq_u32 vcc, 0, v1\nv_cndmask_b32 v4, v4, 3, vcc\nv_cndmask_b32 v3, v3, 18, vcc")
    for q in range(2):
        a(f"v_add3_u32 v5, v2, s{sT}, {2*q}")
        head_of(6, 5)
        a("v_cmp_eq_u32 vcc, v4, v6\nv_mad_u32_u24 v5, v5, 19, v3\nv_lshlrev_b32 v5, 2, v5")
        if VS:
            a(f"v_add_u32 v6, {B_STG}, v5\nv_cndmask_b32 v{VS+q}, v8, v6, vcc")
        if VG:
            a(f"v_add_u32 v6, s{sM}, v5\nv_cndmask_b32 v{VG+q}, v9, v6, vcc")

def kv_z(VZ):
    a("v_and_b32 v3, 3, v0")
    for q in range(2):
        a(f"v_add3_u32 v5, v2, s{sT}, {2*q}")
        head_of(6, 5)
        a(f"v_cmp_eq_u32 vcc, v3, v6\nv_mul_u32_u24 v5, 76, v5\nv_add3_u32 v5, v5, s{sM}, 64\nv_add_u32 v5, 8, v5\nv_cndmask_b32 v{VZ+q}, v9, v5, vcc")

def b_loader(kind):
    a(f"L_B{kind}1:")
    m = M0(42)
    issue = (lambda c: w_issue("B", c, m)) if kind == "W" else (lambda c: x_issue("B", c, m))
    cnt = {1: 6, 2: issue(2)} if kind == "W" else {1: 4, 2: 4}
    karg_rest()
    a("s_mov_b32 s59, 0")
    stamp()
    mark = len(a.lines)
    a("s_waitcnt lgkmcnt(0)")
    VS, VG, vZS, vEA, vE0, vEL, vLA, vGA, vLW = 72, 80, 98, 99, 100, 101, 102, 103, 105
    if kind == "W":
        for j in range(3):
            a(f"v_subrev_u32 v{VD+3+j}, 1152, v{VD+j}")
    srds_rest()
    if kind == "W":
        wo_setup(False)
    else:
        sync_setup()
    a(f"""
s_add_u32 s55, s{sV}, 2
s_mul_i32 s{sM}, s{sHG}, {KV_ST}
s_add_u32 s{sM}, s{sM}, {WS_KV}
v_and_b32 v1, 15, v0
v_lshrrev_b32 v2, 4, v0
v_lshlrev_b32 v2, 2, v2
v_cmp_gt_u32 s[44:45], 8, v1
v_lshlrev_b32 v8, 2, v0
v_add_u32 v8, {B_DUMP}, v8
v_mov_b32 v9, {OOB}
""")
    own = sV if kind == "X" else 55
    if kind == "X":
        kv_index(55, None, VG, VG + 6)
        a(f"s_movk_i32 s{sT}, 64")
        kv_z(10)
    kv_index(own, VS, VG + 8 if kind == "X" else None, VG + 14 if kind == "X" else None)
    a(f"""
v_add_u32 v5, s{sT}, v0
v_mul_u32_u24 v5, 76, v5
v_add_u32 v5, {B_STG + 72}, v5
v_cndmask_b32 v{vZS}, v8, v5, s[{sG0}:{sG0+1}]
v_lshlrev_b32 v{vEL}, 4, v0
v_add_u32 v{vEL}, {B_EX}, v{vEL}
s_lshl_b32 s{sT}, s{own}, 10
v_add_u32 v{vEA}, s{sT}, v{vEL}
s_lshl_b32 s{sT}, s58, 10
v_add_u32 v{vE0}, s{sT}, v{vEL}
""")
    if kind == "X":
        a(f"s_movk_i32 s{sT}, 64\ns_movk_i32 s{sT2}, 56\ns_mov_b64 s[46:47], s[44:45]")
        kv_tile(VS + 6, VG + 16, True)
        a(f"s_cmp_eq_u32 s{sV}, 0\ns_cselect_b64 s[46:47], -1, 0")
        for q in range(2):
            a(f"v_cndmask_b32 v{VS+6+q}, v8, v{VS+6+q}, s[46:47]\nv_cndmask_b32 v{VG+16+q}, v{10+q}, v{VG+16+q}, s[46:47]")
        a(f"""
v_lshlrev_b32 v5, 3, v0
v_add_u32 v5, {B_KVOP}, v5
s_lshl_b32 s{sT2}, s58, 9
s_sub_u32 s{sT2}, s{sT2}, 512
v_add_u32 v{vLW+2}, s{sT2}, v5
s_lshl_b32 s{sT2}, s{sV}, 9
v_add_u32 v{vLW+1}, s{sT2}, v5
v_add_u32 v{vLW}, 1024, v{vLW+1}
s_mul_i32 s{sT2}, s{sV}, {9*512}
v_add_u32 v{vLW+3}, s{sT2}, v5
s_mul_i32 s{sT}, s{sV}, 2816
v_lshl_add_u32 v{vLA}, v0, 2, s{sT}
v_add_u32 v{vGA}, s{sM}, v{vLA}
v_cmp_gt_u32 vcc, {5472 - 2560}, v{vLA}
v_cndmask_b32 v{vGA+1}, v9, v{vGA}, vcc
v_add_u32 v{vLA}, {B_STG}, v{vLA}
v_mov_b32 v4, 0
""")
    a(f"v_mov_b32 v10, {B_LCNT}\nv_mov_b32 v11, 1")
    if kind == "X":
        a("ds_write_b32 v10, v4\ns_waitcnt lgkmcnt(0)")
    setup = a.lines[mark:]
    del a.lines[mark:]
    a(f"s_waitcnt vmcnt({sum(cnt.values())})\ns_barrier")
    stamp()
    extra = 0
    for i in range(-1, 16):
        if i + 4 <= 17:
            cnt[i+4] = issue(i + 4)
        if 0 <= i < 9:
            spread(setup, i, 9)
        if i == 10 and kind == "X":
            flag_load(sFO, 98); flag_load(sFK, 99)
        if kind == "W" and i >= 14:
            extra += sum(wq_issue(p, m) for p in ((0, 1) if i == 14 else (2,)))
        left = sum(cnt.get(c, 0) for c in range(i + 3, min(i + 4, 17) + 1)) + extra
        a(f"s_waitcnt vmcnt({left})\ns_barrier")
    a("s_barrier")
    if kind == "W":
        for p in (3, 4, 5, 6):
            wq_issue(p, m)
    a("s_barrier")
    if kind == "W":
        for p in range(7, 18):
            wq_issue(p, m)
        a("s_waitcnt vmcnt(30)")
    else:
        flag_check(sFK, 99, "L_BX_fk")
    stamp()
    a("s_barrier")
    stamp()
    KT = lambda s: 40 + 4 * s
    RD = lambda src, j: 112 + 28 * src + 4 * j
    srcs = ((vEA, 0), (vE0, 0), (vE0, 4096), (vEA, 5120), (vEA, 6144), (vEL, 9216), (vEL, 4096))
    prods = ((1, 2), (0, 3), (0, 4), (6, 5), (5, 0))
    if kind == "W":
        srcs = ((vEA, 0), None, (vE0, 4096), (vEA, 5120), (vEA, 6144), (vEL, 9216))
        prods = ((0, 2), (0, 3), (0, 4), None, (5, 0))
    nr = sum(x is not None for x in srcs)
    for src in range(4):
        for j, x in enumerate(srcs):
            if x: a(f"ds_read_b128 {vr(RD(src, j),4)}, v{x[0]} offset:{src*10240 + x[1]}")
    for src in range(4):
        a(f"s_waitcnt lgkmcnt({min(15, nr*(3-src))})")
        for s_, x in enumerate(prods):
            if x: a(mf(KT(s_), RD(src, x[0]), RD(src, x[1]), KT(s_) if src else "0"))
    for s_ in range(4 if kind == "X" else 3):
        for r in range(4):
            a(f"ds_write_b32 v{VS + 2*s_ + r//2}, v{KT(s_)+r} offset:{76*(r%2)}")
    a(f"ds_write_b32 v{vZS}, v{KT(4)}")
    if OPT.get("x2", 1):
        a("s_waitcnt lgkmcnt(0)\ns_barrier")
    else:
        a("s_waitcnt lgkmcnt(0)\ns_mov_b64 exec, 1\nds_add_u32 v10, v11\ns_mov_b64 exec, -1")
    stamp()
    if kind == "W":
        a("s_waitcnt vmcnt(0)\ns_barrier")
        for g in range(OPT.get('nb1', 5)): wo_pair(g)
        stamp()
        a("s_barrier")
        loader_tail("BW", lambda: [wo_pair(g) for g in range(OPT.get('nb1', 5), 9)])
        return
    if not OPT.get("x2", 1):
      a(f"""
s_mov_b32 s{sT3}, 0x400000
L_BX_st:
ds_read_b32 v2, v10
s_waitcnt lgkmcnt(0)
v_readfirstlane_b32 s{sT}, v2
s_sub_u32 s{sT3}, s{sT3}, 1
s_cbranch_scc1 L_BX_st_x
s_cmp_ge_u32 s{sT}, 4
s_cbranch_scc0 L_BX_st
L_BX_st_x:
""")
    for n in range(11):
        a(f"ds_read_b32 v{40+n}, v{vLA} offset:{256*n}")
    for n in range(11):
        a(f"s_waitcnt lgkmcnt({10-n})")
        a(f"buffer_atomic_add_f32 v{40+n}, v{vGA + (n == 10)}, s[{SWS}:{SWS+3}], 0 offen offset:{256*n}")
    stamp()
    a("s_barrier\ns_waitcnt vmcnt(0)")
    stamp()
    arrive_wait(sKC, 32, "L_BX_kc")
    stamp()
    for s_ in range(9):
        for r in range(4):
            a(f"buffer_load_dword v{112+4*s_+r}, v{VG + 2*s_ + r//2}, s[{SWS}:{SWS+3}], 0 offen offset:{76*(r%2)} sc1")
    dst = ((vLW, -1), (vLW, 4), (vLW, 9), (vLW, 13), (vLW + 2, 0), (vLW + 1, 4), (vLW + 1, 9), (vLW + 1, 13), (vLW + 3, 8))
    a(f"v_subrev_u32 v11, 512, v{vLW}")
    for s_, (ad, off) in enumerate(dst):
        a(f"s_waitcnt vmcnt({4*(8-s_)})")
        a(cv(40 + 2*s_, 112 + 4*s_)); a(cv(41 + 2*s_, 114 + 4*s_))
        a(f"ds_write_b64 v{11 if off < 0 else ad}, {vr(40+2*s_,2)} offset:{512*max(off, 0)}")
    a("s_waitcnt lgkmcnt(0)")
    stamp()
    a("s_barrier")
    loader_tail("BX")

def p2_consumer():
    OFR = lambda ks, rt: 112 + ks * 8 + rt * 4
    ACC = lambda t, rt: 72 + (t * 2 + rt) * 4
    wf = lambda t: 52 + 4 * t
    aW, vO, vTW, vTR, VS = 1, 6, 7, 8, 9
    a("L_P2:")
    nstamp[0] = 9 if OPT.get('fine') != 3 else 10
    rd_lanes(aW, None, 17, 18)
    a(f"v_add_u32 v2, {R1}, v{aW}\nv_add_u32 v3, {R2}, v{aW}")
    a(f"""
v_lshl_add_u32 v{vO}, v0, 4, s58
s_mul_i32 s{sT}, s{sWAVE}, 4608
s_add_u32 s{sT}, s{sT}, {P_TR}
v_and_b32 v17, 15, v0
v_mul_u32_u24 v17, 144, v17
v_lshrrev_b32 v18, 4, v0
v_lshl_add_u32 v17, v18, 3, v17
v_add_u32 v{vTW}, s{sT}, v17
v_lshl_add_u32 v{vTR}, v0, 4, s{sT}
s_lshr_b32 s{sT}, s{sWAVE}, 1
s_and_b32 s{sT2}, s{sWAVE}, 1
s_lshl_b32 s{sT2}, s{sT2}, 5
s_lshl_b32 s{sT3}, s{sWAVE}, 5
s_cmp_eq_u32 s{sBR}, 0
s_cselect_b32 s42, s{sT}, 0
s_cselect_b32 s43, s{sT2}, s{sT3}
s_cselect_b32 s55, 1, 0
s_lshl_b32 s56, s42, 3
s_lshl_b32 s{sT}, s{sRB}, 7
s_add_u32 s42, s42, s{sT}
s_mul_i32 s{sT}, s{sBR}, 1152
s_mul_i32 s{sT2}, s{sHG}, 144
s_add_u32 s57, s{sT}, s{sT2}
""")
    for n in range(5):
        a(f"""
v_add_u32 v17, {64*n}, v0
v_mul_u32_u24 v18, 7282, v17
v_lshrrev_b32 v18, 16, v18
v_mul_u32_u24 v19, 9, v18
v_sub_u32 v19, v17, v19
v_add_u32 v18, s43, v18
v_xor_b32 v18, s56, v18
v_lshlrev_b32 v18, s55, v18
v_add_u32 v18, s42, v18
v_mul_u32_u24 v18, 2304, v18
v_lshl_add_u32 v18, v19, 4, v18
v_add_u32 v{VS+n}, s57, v18
""")
    a(f"v_mov_b32 v17, {OOB}\nv_cndmask_b32 v{VS+4}, v17, v{VS+4}, s[{sG01}:{sG01+1}]")
    a(f"v_add_u32 v14, 18432, v{vO}")
    SO = [8, 9, 10, 11, 12, 13, 14, 15, 36]
    rho(37)
    a(f"s_movk_i32 s{SO[0]}, 16384")
    for j in range(1, 9):
        a(f"s_add_u32 s{sT}, s37, {2*j-2}\ns_and_b32 s{sT}, s{sT}, 15\ns_lshl_b32 s{SO[j]}, s{sT}, 10")
    a("s_waitcnt vmcnt(0)")
    stamp()
    a("s_barrier\ns_barrier")
    stamp()
    def oload(ks, rt):
        return f"buffer_load_dwordx4 {vr(OFR(ks, rt),4)}, v{14 if rt else vO}, s[{SWS}:{SWS+3}], s{SO[ks//2]} offen offset:{1024*(ks%2)} sc1"
    def wreads(ks, t):
        ad, o = (2, WO[ks] - R1) if ks < 3 else (aW, WO[ks]) if 9 <= ks < 12 else (3, WO[ks] - R2)
        return [tr(wf(t), ad, o + 32*t), tr(wf(t) + 2, ad, o + 32*t + 1280)]
    todo = [oload(ks, rt) for ks in range(18) for rt in range(2)]
    done = 2 * OPT["p0"]
    weave([], todo[:done])
    for t in range(5):
        for x in wreads(0, t): a(x)
    for ks in range(18):
        tiles = [[mf(ACC(t, rt), wf(t), OFR(ks, rt), ACC(t, rt) if ks else "0") for rt in range(2)] for t in range(5)]
        w0 = f"s_waitcnt vmcnt({done - 2*(ks + 1)}) lgkmcnt(8)"
        if ks < 17:
            nxt = [wreads(ks + 1, t) for t in range(5)]
            now = todo[done:done + (3 if ks < OPT["ramp"] else 2)]
            done += len(now)
            for x, t in zip(now[1:], (1, 3)):
                nxt[t][1] += "\n" + x
            kstep(tiles, nxt, now[:1], {t: "s_waitcnt lgkmcnt(7)" if t else w0 for t in range(5)})
        else:
            stage = []
            for t in range(5):
                for rt in range(2):
                    d = 20 + 2*(rt*5 + t)
                    stage += [cv(d, ACC(t, rt)), cv(d + 1, ACC(t, rt) + 2)]
                    w = f"ds_write_b64 v{vTW}, {vr(d,2)} offset:{rt*2304 + 32*t}"
                    stage.append(w if t < 4 else f"s_mov_b32 exec_hi, 0\n{w}\ns_mov_b32 exec_hi, -1")
            a(w0)
            for t in range(5):
                if t: a(f"s_waitcnt lgkmcnt({8 - 2*t + max(0, t - 3)})")
                for rt in range(2):
                    a(tiles[t][rt])
                    if 2*t + rt >= 5:
                        for _ in range(2): a(stage.pop(0))
            stamp()
            weave([], stage)
        if ks == 0 and OPT.get("fine") != 3:
            stamp()
    a("s_waitcnt lgkmcnt(0)")
    for n in range(5):
        a(f"ds_read_b128 {vr(112+4*n,4)}, v{vTR} offset:{1024*n}")
    for n in range(5):
        a(f"s_waitcnt lgkmcnt({4-n})")
        a(f"buffer_store_dwordx4 {vr(112+4*n,4)}, v{VS+n}, s[{SOUT}:{SOUT+3}], 0 offen{FLAGS[OPT.get('outst', 0)]}")
    stamp()
    stamps_out(0)
    a("s_endpgm")

HEADER = open("concat_heads__sliding_local_dilated__linear_attn_block__prompt.s.ref").read().split("; Override")[0]
out = HEADER + "; @launch grid=(256,1,1) block=(512,1,1) lds=163840\n"
a('.amdgcn_target "amdgcn-amd-amdhsa--gfx950"\n.text')
a(kernel_head(KN))
if OPT["stamps"]:
    for i in range(14):
        a(f"s_mov_b32 s{sST+2*i}, 0")
stamp()
a(f"""
s_cmp_ge_u32 s2, 256
s_cbranch_scc1 L_end
s_and_b32 s{sT}, s2, 7
s_lshr_b32 s{sBR}, s{sT}, 2
s_mul_i32 s{sT2}, s{sBR}, 24
s_load_dwordx4 s[36:39], s[0:1], s{sT2}
v_lshrrev_b32 v1, 6, v0
v_and_b32 v0, 63, v0
v_readfirstlane_b32 s{sWAVE}, v1
s_bfe_u32 s{sHG}, s2, 0x30003
s_lshr_b32 s{sRB}, s2, 6
s_and_b32 s{sT3}, s{sT}, 3
s_lshl2_add_u32 s{sRB}, s{sT3}, s{sRB}
s_cmp_lt_u32 s{sWAVE}, 4
s_cbranch_scc1 L_cons
s_setprio {OPT.get("prio", 2)}
s_and_b32 s{sV}, s{sWAVE}, 1
s_add_u32 s{sRW}, s{sRB}, s{sHG}
s_and_b32 s{sRW}, s{sRW}, 7
s_lshl_b32 s{sRW}, s{sRW}, 2
s_lshr_b32 s{sRW}, {hex(OPT.get("tab", 0x75207520))}, s{sRW}
s_and_b32 s{sRW}, s{sRW}, 15
s_lshl_b32 s{sRX}, s{sRW}, 7
s_mul_i32 s{sRW}, s{sRW}, {64*3456}
s_cmp_lt_u32 s{sWAVE}, 6
s_cbranch_scc1 L_W0
""")
x_head()
a(f"""
L_cons:
s_getpc_b64 s[42:43]
L_pc:
s_lshr_b32 s{sT}, s2, 3
s_lshl2_add_u32 s{sT}, s{sT}, s{sWAVE}
s_lshl_b32 s{sT}, s{sT}, 9
v_and_b32 v1, 3, v0
v_lshl_add_u32 v1, v1, 7, s{sT}
v_min_u32 v1, L_last-L_pc, v1
global_load_dword v27, v1, s[42:43]
s_cmp_eq_u32 s{sBR}, 0
s_cbranch_scc1 L_AC
s_branch L_BC
L_end:
s_endpgm
""")
w_head()
n0 = nstamp[0]
for fn in (lambda: a_loader("W"), lambda: a_loader("X"), a_consumer, lambda: b_loader("W"), lambda: b_loader("X"), b_consumer, p2_consumer):
    nstamp[0] = n0
    fn()
a("L_last:\ns_endpgm")
lines = []
for l in a.lines: lines += [x for x in l.split("\n") if x.strip()]
if OPT.get("noread"):
    lines = [l for l in lines if not l.startswith("ds_read_b64_tr")]
if OPT.get("nomfma"):
    lines = [l for l in lines if not l.startswith("v_mfma")]
lines, added = hz.fix(lines)
out += "\n".join(lines) + "\n"
out += '.section .rodata,"a"\n.p2align 6\n' + kernel_desc(KN, 256, 102 if OPT.get('cyc') else 100, 256)
sys.stdout.write(out)
sys.stderr.write(f"nop states added: {added}\n")
```

```python
import sys, struct
from asmlib import *
import hz

OPT = dict(stamps=0, p0=3, ramp=4)
for arg in sys.argv[1:]:
    k, v = arg.split("=")
    OPT[k] = int(v)
KN = "concat_heads__sliding_local_dilated__linear_attn_block__prompt_kernel"

def f32(x):
    return "0x%08x" % struct.unpack("<I", struct.pack("<f", x))[0]

LOG2E = 1.4426950408889634
CSC = 18 ** -0.5 * LOG2E
NEG = "0xf149f2ca"
EPS = f32(1e-6)
OOB = "0x80000000"

O_BR = 0x240000
WS_KV = 0x500000
KV_ST = 0x2000
WS_CNT = 0x540000
WS_STAMP = 0x600000
WS_SIZE = 0x700000

sWAVE, sHG, sRB, sBR, sT = 3, 4, 5, 6, 7
SX, SW, SWS, SDBG, SWO, SOUT = 8, 12, 16, 20, 24, 28
sG0, sG01 = 32, 34
sK, sV, sM, sT2, sT3 = 50, 51, 52, 53, 54
sST = 60

a = Asm()
nstamp = [0]

def stamp():
    if OPT["stamps"] and not (OPT.get("fine") == 4 and nstamp[0] >= 10):
        i = nstamp[0]; nstamp[0] += 1
        assert i < 14
        a(f"{'s_memrealtime' if OPT.get('rt') or OPT.get('probe') and not (OPT.get('cyc') and i) else 's_memtime'} s[{sST+2*i}:{sST+2*i+1}]")
        if OPT.get("cyc") and i == 0:
            a("s_memtime s[100:101]")

def stamps_out(last=-1):
    if not OPT["stamps"]:
        return
    if OPT.get("probe"):
        if last == OPT.get("pwave", 0):
            j = sST + 2 * OPT["probe"]
            a(f"""
s_waitcnt vmcnt(0) lgkmcnt(0)
s_cmp_eq_u32 s2, {OPT.get('wg', 0)}
s_cbranch_scc0 L_probe_x
s_cmp_eq_u32 s{sWAVE}, {last}
s_cbranch_scc0 L_probe_x
s_sub_u32 s{sT}, s{j}, s{100 if OPT.get('cyc') else sST}
{'s_lshr_b32 s7, s7, 3' if OPT.get('cyc') else 's_mul_i32 s7, s7, 10'}
s_min_u32 s{sT}, s{sT}, 100000
s_add_u32 s{sT}, s{sT}, 6000
L_probe:
s_memrealtime s[44:45]
s_waitcnt lgkmcnt(0)
s_sub_u32 s44, s44, s{sST}
s_cmp_lt_u32 s44, s{sT}
s_cbranch_scc1 L_probe
L_probe_x:
""")
        return
    a("s_waitcnt vmcnt(0) lgkmcnt(0)")
    a(f"s_lshl_b32 s{sT}, s2, 3\ns_add_u32 s{sT}, s{sT}, s{sWAVE}\ns_lshl_b32 s{sT}, s{sT}, 6")
    a(f"s_add_u32 s{sT}, s{sT}, {WS_STAMP}\nv_mov_b32 v1, s{sT}")
    for i in range(16):
        a(f"v_mov_b32 v2, {'s%d' % (sST+2*i) if i < 14 else 0}")
        a(f"buffer_store_dword v2, v1, s[{SWS}:{SWS+3}], 0 offen offset:{4*i}")
    a("s_waitcnt vmcnt(0)")

def mf(d, s0, s1, c):
    cc = c if isinstance(c, str) else vr(c, 4)
    return f"v_mfma_f32_16x16x32_bf16 {vr(d,4)}, {vr(s0,4)}, {vr(s1,4)}, {cc}"
def cv(d, x):
    return f"v_cvt_pk_bf16_f32 v{d}, v{x}, v{x+1}"
def tr(d, addr, off):
    return f"ds_read_b64_tr_b16 {vr(d,2)}, v{addr} offset:{off}"
def weave(mfmas, others, per=2):
    o = list(others)
    for m in mfmas:
        a(m)
        for _ in range(per):
            if o: a(o.pop(0))
    for x in o: a(x)

def srd(dst, lo, nbytes):
    a(f"s_mov_b32 s{dst}, s{lo}\ns_mov_b32 s{dst+1}, s{lo+1}\ns_mov_b32 s{dst+2}, {nbytes}\ns_mov_b32 s{dst+3}, 0x20000")
def srds_rest():
    srd(SWO, 40, 663552); srd(SOUT, 44, 4718592); srd(SDBG, 46, 256); srd(SWS, 48, WS_SIZE)

class M0:
    def __init__(self, base): self.base = base; self.cur = None
    def set(self, imm):
        if self.cur is not None and -32768 <= imm - self.cur <= 32767:
            a(f"s_addk_i32 m0, {imm - self.cur}")
        else:
            a(f"s_add_u32 m0, s{self.base}, {imm}")
        self.cur = imm

def dma(voff, srd_, soff, half=False, off=0):
    if OPT.get("nodma"):
        return
    if half: a("s_mov_b32 exec_hi, 0")
    a(f"buffer_load_dwordx4 v{voff}, s[{srd_}:{srd_+3}], {soff} offen offset:{off} lds")
    if half: a("s_mov_b32 exec_hi, -1")

def rd_lanes(aw, ash, t0, t1):
    a(f"""
v_lshrrev_b32 v{t0}, 5, v0
v_lshlrev_b32 v{t0}, 4, v{t0}
v_bfe_u32 v{t1}, v0, 4, 1
v_lshl_add_u32 v{t0}, v{t1}, 2, v{t0}
v_bfe_u32 v{t1}, v0, 2, 2
v_add_u32 v{t0}, v{t0}, v{t1}
v_mul_u32_u24 v{t0}, 160, v{t0}
v_and_b32 v{t1}, 3, v0
v_lshl_add_u32 v{aw}, v{t1}, 3, v{t0}
""")
    if ash:
        a(f"v_bfe_u32 v{t1}, v0, 1, 1\nv_mul_u32_u24 v{t1}, {SLAB2 - 16}, v{t1}\nv_add_u32 v{t1}, 128, v{t1}\nv_add_u32 v{ash}, v{t1}, v{aw}")

def x_lane(d0, d1, tmp):
    a(f"""
v_lshrrev_b32 v{d0}, 4, v0
v_bfe_u32 v{tmp}, v0, 1, 3
v_xor_b32 v{d0}, v{d0}, v{tmp}
v_and_b32 v{tmp}, 15, v0
v_lshlrev_b32 v{tmp}, 7, v{tmp}
v_lshl_add_u32 v{d0}, v{d0}, 4, v{tmp}
v_xor_b32 v{d1}, 64, v{d0}
""")

def slab_src(dst, j, stride, base):
    a(f"""
v_add_u32 v1, {64*j}, v0
v_mul_u32_u24 v2, 6554, v1
v_lshrrev_b32 v2, 16, v2
v_mad_i32_i24 v1, v2, -10, v1
""")
    a("v_bfe_u32 v3, v2, 2, 1\nv_bfe_u32 v4, v2, 3, 1\nv_sub_u32 v3, v3, v4\nv_lshl_add_u32 v2, v3, 2, v2")
    a(f"""
v_mul_u32_u24 v2, {stride}, v2
v_lshl_add_u32 v2, v1, 4, v2
v_add_u32 v1, 7, v1
v_lshrrev_b32 v1, 4, v1
v_lshl_add_u32 v2, v1, 23, v2
v_add_u32 v{dst}, s{base}, v2
""")

def head_of(dst, src):
    a(f"v_mul_u32_u24 v{dst}, 57, v{src}\nv_lshrrev_b32 v{dst}, 10, v{dst}")

sOC, sKC, sFO, sFK = 92, 94, 96, 97

def arrive_wait(addr, target, label, arrive=True):
    if arrive:
        a(f"s_mov_b32 s{sT}, 1\ns_atomic_add s{sT}, s[{addr}:{addr+1}], 0 glc\ns_waitcnt lgkmcnt(0)\ns_cmp_ge_u32 s{sT}, {target-1}\ns_cbranch_scc1 {label}_x")
    a(f"""
s_mov_b32 s{sT3}, 0x20000
{label}:
s_mov_b32 s{sT}, 0
s_atomic_add s{sT}, s[{addr}:{addr+1}], 0 glc
s_waitcnt lgkmcnt(0)
s_sub_u32 s{sT3}, s{sT3}, 1
s_cbranch_scc1 {label}_x
s_cmp_ge_u32 s{sT}, {target}
s_cbranch_scc0 {label}
{label}_x:
""")

def flag_load(dst, offreg):
    a(f"s_load_dword s{dst}, s[{SDBG}:{SDBG+1}], s{offreg}")

def flag_check(val, offreg, label):
    a(f"""
s_mov_b32 s{sT3}, 0x20000
{label}:
s_waitcnt lgkmcnt(0)
s_cmp_lg_u32 s{val}, 0
s_cbranch_scc1 {label}_x
s_sub_u32 s{sT3}, s{sT3}, 1
s_cbranch_scc1 {label}_x
s_load_dword s{val}, s[{SDBG}:{SDBG+1}], s{offreg} glc
s_branch {label}
{label}_x:
""")

SLAB2 = 5136
A_WSLOT, A_XSLOT = 15392, 18432
A_X0 = 5 * A_WSLOT
A_EX = A_X0 + 3 * A_XSLOT
B_KVSLOT, B_XSLOT = 10272, 16384
B_X0 = 5 * B_KVSLOT
B_EX = B_X0 + 3 * B_XSLOT
B_KVOP = 132256
B_STG = B_EX + 40960
B_DUMP, B_LCNT = B_STG + 5504, B_STG + 5888
R1 = 148480
def wq_slot(p):
    if p < 3: return R1 + 5120 * p
    if p < 6: return 5120 * (p - 3)
    if p == 6: return 46080
    if p < 12: return B_X0 + 5120 * (p - 7)
    return 15360 + 5120 * (p - 12)
WOC = 6144
R2 = 77824
WO = [R1, R1 + WOC] + [R2 + WOC * n for n in range(8)] + [0, WOC] + [15360 + WOC * n for n in range(6)]
P_TR = 52224
SPLITS = {(1, 0): sG0, (2, 0): sG0, (2, 1): sG0, (3, 0): sG01, (3, 1): sG0}

VD = 16
VWO = 26
sRW, sRX = 90, 91

def hstamp(i):
    if OPT.get("fine") == 4:
        a(f"s_memrealtime s[{sST+2*i}:{sST+2*i+1}]")

def w_head():
    a(f"""
L_W0:
s_mul_i32 s{sT}, s{sV}, {16*3456}
s_mul_i32 s{sT2}, s{sHG}, 144
s_add_u32 s{sT}, s{sT}, s{sT2}
s_mul_i32 s{sT2}, s{sBR}, 1152
s_add_u32 s{sT}, s{sT}, s{sT2}
""")
    for j in range(3):
        slab_src(VD + j, j, 3456, sT)
    a(f"s_mul_i32 s42, s{sV}, 2560\ns_mov_b32 m0, s42\ns_mov_b32 s{sT3}, 0")
    hstamp(10)
    a("s_waitcnt lgkmcnt(0)")
    hstamp(13)
    srd(SW, 38, 1990656)
    D = SLAB2 - 1152
    a("L_W0l:")
    pos = 0
    for sl, j in ((0, 0), (0, 1), (1, 0), (1, 1), (0, 2), (1, 2), (2, 2), (2, 0), (2, 1)):
        tgt = D * sl + 1024 * j
        if tgt != pos:
            a(f"s_addk_i32 m0, {tgt - pos}")
        pos = tgt
        if (sl, j) == (0, 2): a("s_mov_b32 exec_hi, 0")
        if (sl, j) == (2, 2): a(f"s_cmp_lg_u32 s{sBR}, 0\ns_cbranch_scc1 L_W0b")
        if (sl, j) == (2, 0): a("s_mov_b32 exec_hi, -1")
        dma(VD + j, SW, f"s{sRW}", off=1152 * sl)
    a(f"""
s_addk_i32 m0, {A_WSLOT - pos - (B_KVSLOT - (2*D + 2048))}
L_W0b:
s_mov_b32 exec_hi, -1
s_addk_i32 m0, {B_KVSLOT - (2*D + 2048)}
s_cmp_lg_u32 s{sT3}, 0
s_cbranch_scc1 L_W0x
s_mov_b32 s{sT3}, 1
s_add_u32 s{sRW}, s{sRW}, {32*3456}
s_branch L_W0l
L_W0x:
""")
    hstamp(11)
    a(f"s_cmp_eq_u32 s{sBR}, 0\ns_cbranch_scc1 L_AW1\ns_branch L_BW1")

def w_issue(kind, c, m):
    slot = (c % 5) * (A_WSLOT if kind == "A" else B_KVSLOT)
    n = 3 if kind == "A" else 2
    if c:
        a(f"s_add_u32 s{sRW}, s{sRW}, {32*3456}\ns_cmp_eq_u32 s{sRW}, {18*32*3456}\ns_cselect_b32 s{sRW}, 0, s{sRW}")
    order = [(sl, j) for sl in range(n) for j in range(2)] + [(sl, 2) for sl in range(n)]
    for sl, j in order:
        m.set(slot + (SLAB2 - 1152) * sl + 1024 * j)
        if (sl, j) == (0, 2):
            a("s_mov_b32 exec_hi, 0")
        dma(VD + j, SW, f"s{sRW}", off=1152 * sl)
    a("s_mov_b32 exec_hi, -1")
    return 3 * n

def wq_issue(p, m):
    a(f"s_add_u32 s{sK}, s{sRW}, {(p+1)*32*3456}\ns_cmp_ge_u32 s{sK}, {18*32*3456}\ns_cselect_b32 s{sT}, {18*32*3456}, 0\ns_sub_u32 s{sK}, s{sK}, s{sT}")
    for j in range(3):
        m.set(wq_slot(p) + 1024 * j)
        dma(VD + 3 + j, SW, f"s{sK}", half=(j == 2))
    return 3

def x_head():
    a(f"""
s_cmp_eq_u32 s{sBR}, 0
s_cselect_b32 s{sT2}, 1, 0
s_lshl_b32 s{sT3}, 1152, s{sT2}
v_lshrrev_b32 v1, 3, v0
v_mul_u32_u24 v1, s{sT3}, v1
v_lshrrev_b32 v2, 4, v0
v_lshl_add_u32 v2, s{sV}, 2, v2
v_and_b32 v3, 7, v0
v_xor_b32 v2, v2, v3
v_lshl_add_u32 v1, v2, 4, v1
s_mul_i32 s{sT}, s{sRB}, {128*1152}
v_add_u32 v1, s{sT}, v1
s_lshl_b32 s43, s{sT3}, 4
s_mul_i32 s{sT}, s{sV}, s{sT3}
s_lshl_b32 s{sT}, s{sT}, 3
v_add_u32 v{VD}, s{sT}, v1
s_mul_i32 s{sT3}, s{sV}, 1152
s_add_u32 s{sT3}, s{sT3}, {15*1152}
v_subrev_u32 v{VD+8}, s{sT3}, v1
s_sub_u32 s{sT3}, {17*1152}, s{sT}
s_add_u32 s{sT}, s{sT}, {64*1152}
s_cmp_eq_u32 s{sBR}, 0
s_cselect_b32 s{sT}, s{sT3}, s{sT}
v_add_u32 v{VD+4}, s{sT}, v1
s_movk_i32 s{sT}, {(A_X0 - B_X0)}
s_cselect_b32 s{sT}, s{sT}, 0
s_lshl_b32 s42, s{sV}, 10
s_add_u32 s{sT}, s{sT}, s42
s_add_u32 m0, s{sT}, {B_X0}
""")
    for q in (1, 2, 3):
        a(f"v_add_u32 v{VD+q}, s43, v{VD+q-1}\nv_add_u32 v{VD+4+q}, s43, v{VD+3+q}")
    a(f"s_mov_b32 s{sT3}, 0")
    hstamp(10)
    a("s_waitcnt lgkmcnt(0)")
    hstamp(13)
    srd(SX, 36, 2359296)
    a("L_X0l:")
    for q in range(9):
        if q == 8:
            a(f"s_cbranch_scc0 L_X0b")
        dma(VD + q, SX, f"s{sRX}")
        a("s_addk_i32 m0, 2048")
        a(f"s_cmp_eq_u32 s{sBR}, 0" if q == 7 else "s_nop 0")
    a(f"""
L_X0b:
s_cmp_lg_u32 s{sT3}, 0
s_cbranch_scc1 L_X0x
s_mov_b32 s{sT3}, 1
s_addk_i32 s{sRX}, 128
s_cmpk_eq_u32 s{sRX}, 1152
s_cselect_b32 s{sRX}, 0, s{sRX}
s_branch L_X0l
L_X0x:
""")
    hstamp(11)
    a(f"s_cmp_eq_u32 s{sBR}, 0\ns_cbranch_scc1 L_AX1\ns_branch L_BX1")

def karg_rest():
    if OPT["stamps"]:
        for i in range(1, 10 if OPT.get("fine") == 4 else 14):
            a(f"s_mov_b32 s{sST+2*i}, 0")
    a(f"""
s_mul_i32 s{sT}, s{sBR}, 24
s_add_u32 s{sT}, s{sT}, 16
s_load_dwordx2 s[40:41], s[0:1], s{sT}
s_load_dwordx4 s[44:47], s[0:1], 48
s_load_dwordx2 s[48:49], s[0:1], 64
s_mov_b32 s{sG0}, 0xffff
s_mov_b32 s{sG0+1}, 0
s_mov_b32 s{sG01}, -1
s_mov_b32 s{sG01+1}, 0
""")

def x_issue(kind, c, m):
    nq, h, x0, xs = (9, 5, A_X0, A_XSLOT) if kind == "A" else (8, 4, B_X0, B_XSLOT)
    st = (c + 1) // 2
    if st > 8:
        return 0
    qs = range(nq) if c == 0 else (range(h) if c % 2 else range(h, nq))
    if c % 2:
        a(f"s_addk_i32 s{sRX}, 128\ns_cmpk_eq_u32 s{sRX}, 1152\ns_cselect_b32 s{sRX}, 0, s{sRX}")
    for q in qs:
        m.set(x0 + (st % 3) * xs + 2048 * q)
        a("s_nop 0")
        dma(VD + q, SX, f"s{sRX}")
    return len(qs)

def out_cols(sb, fo, lim):
    a(f"""
s_and_b32 s{sT}, s{sHG}, 3
s_lshl_b32 s{sT2}, s{sT}, 3
s_lshr_b32 s{sb}, 0x07050200, s{sT2}
s_and_b32 s{sb}, s{sb}, 0xff
s_lshr_b32 s{sT2}, s{sHG}, 2
s_mul_i32 s{sT2}, s{sT2}, 9
s_add_u32 s{sb}, s{sb}, s{sT2}
s_lshl_b32 s{sb}, s{sb}, 6
s_cmp_eq_u32 s{sT}, 1
s_cselect_b32 s{fo}, 64, 0
s_cmp_lt_u32 s{sT}, 2
s_cselect_b32 s{lim}, 12, 8
""")

def wo_setup(quad):
    out_cols(sM, 55, 56)
    for j in range(6):
        a(f"""
v_add_u32 v1, {64*j}, v0
v_mul_u32_u24 v2, 5462, v1
v_lshrrev_b32 v2, 16, v2
v_mad_i32_i24 v1, v2, -12, v1
v_bfe_u32 v3, v2, 2, 1
v_lshlrev_b32 v4, 1, v3
v_xor_b32 v1, v1, v4
v_cmp_gt_u32 vcc, s56, v1
v_lshl_add_u32 v1, v1, 4, s{sM}
v_mov_b32 v4, {1 << 23}
v_cndmask_b32 v1, v4, v1, vcc
v_and_b32 v4, 3, v2
v_lshl_add_u32 v5, v3, 2, v4
v_mul_u32_u24 v3, 72, v3
v_add_u32 v4, v3, v4
v_bfe_u32 v3, v2, 3, 1
v_lshl_add_u32 v5, v3, 4, v5
v_lshl_add_u32 v4, v3, 2, v4
v_bfe_u32 v3, v2, 4, 1
v_lshl_add_u32 v5, v3, 3, v5
v_mul_u32_u24 v3, 144, v3
v_add_u32 v4, v3, v4
v_mul_u32_u24 v5, 1152, v5
v_add_u32 v{VWO+j}, v5, v1
v_mul_u32_u24 v4, 1152, v4
v_add_u32 v{VWO+6+j}, v4, v1
""")
    a(f"s_and_b32 s55, s{sWAVE}, 3\ns_lshl_b32 s57, s55, 3")
    rho(56)
    a(f"s_add_u32 s56, s56, s{55 if quad else sV}")

def rho(dst):
    a(f"s_lshl_b32 s{dst}, s{sRB}, 1\ns_add_u32 s{dst}, s{dst}, s{sHG}\ns_lshl_b32 s{dst}, s{dst}, 1")

def wo_chunk(left, fadd):
    if left:
        a(f"s_mul_i32 s{sK}, s{sV}, {288*1152}\ns_add_u32 s{sK}, s{sK}, {64*1152}")
    else:
        a(f"""
s_add_u32 s{sT}, s56, {fadd}
s_bfe_u32 s{sK}, s{sT}, 0x30001
s_mul_i32 s{sK}, s{sK}, {72*1152}
s_bitcmp1_b32 s{sT}, 0
s_cselect_b32 s{sT}, {32*1152}, 0
s_add_u32 s{sK}, s{sK}, s{sT}
""")
    for j in range(6):
        dma(VWO + (6 if left else 0) + j, SWO, f"s{sK}")
        if j < 5:
            a("s_addk_i32 m0, 1024")
    return 6

def wo_issue(q):
    packed = sum((WO[2 + 4*q + w] // 1024) << (8 * w) for w in range(4))
    a(f"s_lshr_b32 s{sT}, {packed}, s57\ns_and_b32 s{sT}, s{sT}, 0xff\ns_lshl_b32 m0, s{sT}, 10")
    return wo_chunk(False, 4*q)

def wo_pair(g):
    a(f"s_mul_i32 s{sT}, s{sV}, {WO[2*g+1] - WO[2*g] & 0xffffffff}\ns_add_u32 m0, s{sT}, {WO[2*g]}")
    return wo_chunk(g == 0, 2*g - 2)

def sync_setup():
    a(f"""
s_lshl_b32 s{sT}, s{sBR}, 4
s_add_u32 s{sT}, s{sT}, s{sRB}
s_lshl_b32 s{sT2}, s{sT}, 8
s_add_u32 s{sT2}, s{sT2}, {WS_CNT}
s_add_u32 s{sOC}, s{SWS}, s{sT2}
s_addc_u32 s{sOC+1}, s{SWS+1}, 0
s_lshl_b32 s{sT}, s{sT}, 2
s_add_u32 s98, s{sT}, 32
s_lshl_b32 s99, s{sHG}, 2
s_mul_i32 s{sT2}, s{sHG}, {KV_ST}
s_add_u32 s{sT2}, s{sT2}, {WS_KV + 6144}
s_add_u32 s{sKC}, s{SWS}, s{sT2}
s_addc_u32 s{sKC+1}, s{SWS+1}, 0
""")

def loader_tail(tag, late=None):
    sig = tag != "BW"
    if sig:
        flag_check(sFO, 98, f"L_{tag}_fo")
    a("s_barrier")
    stamp()
    if sig:
        a(f"s_cmp_eq_u32 s{sWAVE}, 6\ns_cbranch_scc0 L_{tag}_na\ns_mov_b32 s96, 1\ns_atomic_add s96, s[{sOC}:{sOC+1}], 0 glc\nL_{tag}_na:")
    if late:
        late()
    if sig:
        a(f"s_cmp_eq_u32 s{sWAVE}, 6\ns_cbranch_scc0 L_{tag}_oc_x")
        a(f"s_waitcnt lgkmcnt(0)\ns_cmp_ge_u32 s96, 7\ns_cbranch_scc1 L_{tag}_oc_x")
        arrive_wait(sOC, 8, f"L_{tag}_oc", False)
    a("s_waitcnt vmcnt(0)")
    stamp()
    a("s_barrier")
    stamps_out()
    a("s_endpgm")

def spread(setup, i, n):
    per = -(-len(setup) // n)
    a("s_cmp_eq_u32 s59, 1")
    a.lines += setup[per*i:per*(i+1)]
    a("s_cselect_b32 s59, 1, 0")

def captured(fn):
    mark = len(a.lines)
    fn()
    out_ = a.lines[mark:]
    del a.lines[mark:]
    return out_

def att_masks(MC, MP, MPF, PM, t):
    a(f"""
s_lshr_b32 s{sT}, s{sWAVE}, 1
s_lshl_b32 s{sT}, s{sT}, 3
v_and_b32 v{t}, 15, v0
v_xor_b32 v{t}, s{sT}, v{t}
v_lshrrev_b32 v{t+1}, 4, v0
v_lshlrev_b32 v{t+1}, 2, v{t+1}
v_xor_b32 v{t+1}, s{sT}, v{t+1}
v_sub_u32 v{t}, v{t}, v{t+1}
v_mov_b32 v{t+2}, {NEG}
s_and_b32 s{sT}, s{sWAVE}, 1
s_or_b32 s{sT}, s{sT}, s{sRB}
s_cmp_eq_u32 s{sT}, 0
s_cselect_b64 s[42:43], -1, 0
""")
    for r in range(4):
        a(f"""
v_subrev_u32 v{t+1}, {r}, v{t}
v_cmp_gt_u32 vcc, 8, v{t+1}
v_cndmask_b32 v{MC+r}, v{t+2}, 0, vcc
v_cmp_gt_i32 vcc, -8, v{t+1}
v_cndmask_b32 v{MP+r}, v{t+2}, 0, vcc
v_cndmask_b32 v{MPF+r}, v{MP+r}, v{t+2}, s[42:43]
v_cmp_lt_i32 vcc, -1, v{t+1}
v_mov_b32 v{t+3}, {'0xffff' if r % 2 == 0 else '0xffff0000'}
v_cndmask_b32 v{t+3}, 0, v{t+3}, vcc
""")
        a(f"v_mov_b32 v{PM + r//2}, v{t+3}" if r % 2 == 0 else f"v_or_b32 v{PM + r//2}, v{PM + r//2}, v{t+3}")

def a_loader(kind):
    a(f"L_A{kind}1:")
    m = M0(42)
    issue = (lambda c: w_issue("A", c, m)) if kind == "W" else (lambda c: x_issue("A", c, m))
    cnt = {1: 9, 2: issue(2)} if kind == "W" else {1: 5, 2: 4}
    karg_rest()
    a("s_mov_b32 s59, 0")
    stamp()
    x_lane(8, 9, 1)
    rd_lanes(10, 12 if kind == "W" else None, 1, 2)
    if kind == "X":
        a(f"v_add_u32 v12, {2*SLAB2 + 128}, v10")
    a(f"""
v_add_u32 v8, {A_X0 + 8*2048}, v8
v_add_u32 v9, {A_X0 + 8*2048}, v9
s_lshl_b32 s{sT}, s{sV}, 6
s_add_u32 s{sT}, s{sT}, {SLAB2 if kind == 'W' else 2*SLAB2}
v_add_u32 v10, s{sT}, v10
v_add_u32 v13, {4*A_WSLOT}, v10
v_add_u32 v15, {4*A_WSLOT}, v12
""")
    def setup():
        srds_rest(); sync_setup(); wo_setup(True)
        a(f"""
s_lshl_b32 s{sT}, s{sV}, 10
s_add_u32 s{sT}, s{sT}, {A_EX + (0 if kind == 'W' else 2560)}
v_lshlrev_b32 v1, 3, v0
v_add_u32 v6, s{sT}, v1
v_add_u32 v7, {A_EX + (2048 if kind == 'W' else 4608)}, v1
""")
    setup = captured(setup)
    a(f"s_waitcnt vmcnt({cnt[1] + cnt[2]})\ns_barrier")
    stamp()
    extra = 0
    for i in range(-1, 17):
        ks = i + 1
        slot = ks % 5
        off = 0 if slot == 4 else slot * A_WSLOT
        ad = (13, 15) if slot == 4 else (10, 12)
        a(f"ds_read_b128 v[40:43], v{8 + ks % 2} offset:{(ks//2 % 3)*A_XSLOT}")
        for j in range(2):
            a(tr(44 + 4*j, ad[0], off + 32*j)); a(tr(46 + 4*j, ad[0], off + 32*j + 1280))
        a(f"s_cmp_eq_u32 s{sV}, 0\ns_cbranch_scc0 L_A{kind}_r{ks}")
        a(tr(52, ad[1], off)); a(tr(54, ad[1], off + 1280))
        a(f"L_A{kind}_r{ks}:")
        if i + 4 <= 17:
            cnt[i+4] = issue(i + 4)
        a("s_waitcnt lgkmcnt(0)")
        for j in range(3):
            c = 60 + 4*j if ks else "0"
            if j == 2:
                a(f"s_cmp_eq_u32 s{sV}, 0\ns_cbranch_scc0 L_A{kind}_m{ks}")
            a(mf(60 + 4*j, 44 + 4*j, 40, c) if kind == "W" else mf(60 + 4*j, 40, 44 + 4*j, c))
        a(f"L_A{kind}_m{ks}:")
        if 1 <= i < 11:
            spread(setup, i - 1, 10)
        if i == 14 and kind == "W":
            extra += wo_pair(0)
        if i == 15:
            extra += wo_issue(0)
        if i + 1 <= 16:
            left = sum(cnt.get(c, 0) for c in range(i + 3, min(i + 4, 17) + 1)) + extra
            a(f"s_waitcnt vmcnt({left})\ns_barrier")
    for j in range(3):
        a(cv(44 + 2*j, 60 + 4*j)); a(cv(45 + 2*j, 62 + 4*j))
    if kind == "W":
        a("v_mov_b32 v50, 0\nv_mov_b32 v51, 0")
        a("v_permlane32_swap_b32 v48, v50\nv_permlane32_swap_b32 v49, v51")
    a("ds_write_b64 v6, v[44:45]\nds_write_b64 v6, v[46:47] offset:512")
    a(f"s_cmp_eq_u32 s{sV}, 0\ns_cbranch_scc0 L_A_att")
    a(f"ds_write_b64 v7, {'v[50:51]' if kind == 'W' else 'v[48:49]'}")
    if kind == "W":
        a("s_branch L_A_att")
        return
    a("L_A_att:")
    stamp()
    a("s_waitcnt lgkmcnt(0)\ns_barrier")
    stamp()
    flag_load(sFO, 98)
    wo_issue(1); wo_issue(2); wo_issue(3)
    stamp()
    loader_tail("A")

def o_store_addr(vfull, vleft, tmp, left_lo, wreg=sWAVE):
    a(f"""
s_lshl_b32 s{sT}, s{sRB}, 3
s_lshl_b32 s{sT2}, s{wreg}, 1
s_add_u32 s{sT}, s{sT}, s{sT2}
s_mul_i32 s{sT}, s{sT}, 18432
s_mul_i32 s{sT2}, s{sBR}, {O_BR}
s_add_u32 s58, s{sT}, s{sT2}
s_lshl_b32 s{sT2}, s{sHG}, 11
s_add_u32 s{sT2}, s{sT2}, s58
v_lshl_add_u32 v{vfull}, v0, 4, s{sT2}
s_lshr_b32 s{sT2}, s{sHG}, 2
s_add_u32 s{sT2}, s{sT2}, 16
s_lshl_b32 s{sT2}, s{sT2}, 10
s_add_u32 s{sT}, s58, s{sT2}
s_and_b32 s{sT2}, s{sHG}, 3
s_lshl_b32 s{sT2}, s{sT2}, 8
s_add_u32 s{sT}, s{sT}, s{sT2}
v_and_b32 v{vleft}, 15, v0
v_lshlrev_b32 v{vleft}, 4, v{vleft}
v_bfe_u32 v{tmp}, v0, 4, 1
v_lshl_add_u32 v{vleft}, v{tmp}, 3, v{vleft}
v_add_u32 v{vleft}, s{sT}, v{vleft}
v_mov_b32 v{tmp}, {OOB}
""")
    x, y = (tmp, vleft) if left_lo else (vleft, tmp)
    a(f"v_cndmask_b32 v{vleft}, v{x}, v{y}, s[{sG01}:{sG01+1}]")

FLAGS = ["", " nt", " sc1", " sc1 nt", " sc0 sc1"]
def o_store(of, vfull, vleft, rt):
    so = f"s{sK}" if rt else "0"
    fl = FLAGS[OPT.get("ost", 2)]
    if rt:
        a(f"s_movk_i32 s{sK}, 18432")
    a(f"buffer_store_dwordx4 {vr(of,4)}, v{vfull}, s[{SWS}:{SWS+3}], {so} offen{fl}")
    a(f"buffer_store_dwordx4 {vr(of+4,4)}, v{vfull}, s[{SWS}:{SWS+3}], {so} offen offset:1024{fl}")
    a(f"buffer_store_dwordx2 {vr(of+8,2)}, v{vleft}, s[{SWS}:{SWS+3}], {so} offen{fl}")

def init_stores(tag, with_kv):
    a(f"""
s_or_b32 s{sT}, s{sHG}, s{sWAVE}
s_cmp_eq_u32 s{sT}, 0
s_cselect_b32 s55, 1, 0
v_mov_b32 v20, 0
v_mov_b32 v21, 0
v_mov_b32 v22, 0
v_mov_b32 v23, 0
s_cbranch_scc0 L_{tag}_i1
s_lshl_b32 s{sT}, s{sBR}, 4
s_add_u32 s{sT}, s{sT}, s{sRB}
s_lshl_b32 s{sT}, s{sT}, 8
s_add_u32 s{sT}, s{sT}, {WS_CNT}
v_mov_b32 v24, s{sT}
buffer_store_dword v20, v24, s[{SWS}:{SWS+3}], 0 offen sc1
L_{tag}_i1:
""")
    if with_kv:
        a(f"""
s_or_b32 s{sT}, s{sRB}, s{sWAVE}
s_cmp_eq_u32 s{sT}, 0
s_cbranch_scc0 L_{tag}_i2
s_or_b32 s55, s55, 2
s_mul_i32 s{sT}, s{sHG}, {KV_ST}
s_add_u32 s{sT}, s{sT}, {WS_KV}
v_lshl_add_u32 v24, v0, 4, s{sT}
""")
        for j in range(7):
            a(f"s_movk_i32 s{sK}, {1024*j}\nbuffer_store_dwordx4 v[20:23], v24, s[{SWS}:{SWS+3}], s{sK} offen sc1")
        a(f"L_{tag}_i2:")

def init_flags(tag):
    a(f"""
s_waitcnt vmcnt(0)
s_cmp_eq_u32 s55, 0
s_cbranch_scc1 L_{tag}_f2
v_mov_b32 v20, 1
s_bitcmp1_b32 s55, 0
s_cbranch_scc0 L_{tag}_f1
s_lshl_b32 s{sT}, s{sBR}, 4
s_add_u32 s{sT}, s{sT}, s{sRB}
s_lshl_b32 s{sT}, s{sT}, 2
s_add_u32 s{sT}, s{sT}, 32
v_mov_b32 v24, s{sT}
buffer_store_dword v20, v24, s[{SDBG}:{SDBG+3}], 0 offen sc1
L_{tag}_f1:
s_bitcmp1_b32 s55, 1
s_cbranch_scc0 L_{tag}_f2
s_lshl_b32 s{sT}, s{sHG}, 2
v_mov_b32 v25, s{sT}
buffer_store_dword v20, v25, s[{SDBG}:{SDBG+3}], 0 offen sc1
L_{tag}_f2:
""")

def kstep(tiles, nxt_reads, first, waits):
    pend = list(first)
    for t, (m0_, m1_) in enumerate(tiles):
        if OPT.get("snake") and t % 2:
            m0_, m1_ = m1_, m0_
        if t in waits:
            a(waits[t])
        a(m0_)
        for x in pend: a(x)
        a(m1_)
        pend = []
        if nxt_reads:
            a(nxt_reads[t][0]); pend = [nxt_reads[t][1]]
    for x in pend: a(x)

def a_consumer():
    acc = lambda t, rt: 144 + (t * 2 + rt) * 4
    wf = lambda t: 88 + 4 * t
    xf = lambda buf, rt: 72 + buf * 8 + rt * 4
    aW, aS, aWb, aSb, aX = 1, 2, 3, 4, 11
    vOF, vOL, vEXW, vEXR = 13, 14, 15, 16
    MC, MP, MPF, PM = 56, 60, 64, 68
    a("L_AC:")
    karg_rest()
    a("s_waitcnt lgkmcnt(0)")
    srds_rest()
    init_stores("AC", False)
    rd_lanes(aW, aS, 17, 18); x_lane(aX, aX + 1, 17)
    a(f"v_add_u32 v{aWb}, {4*A_WSLOT}, v{aW}\nv_add_u32 v{aSb}, {4*A_WSLOT}, v{aS}")
    a(f"""
s_lshl_b32 s{sT}, s{sWAVE}, 12
s_add_u32 s{sT}, s{sT}, {A_X0}
v_add_u32 v{aX}, s{sT}, v{aX}
v_add_u32 v{aX+1}, s{sT}, v{aX+1}
""")
    att_masks(MC, MP, MPF, PM, 17)
    o_store_addr(vOF, vOL, 17, True)
    a(f"""
s_lshr_b32 s{sT}, s{sWAVE}, 1
s_add_u32 s{sT}, s{sT}, 1
s_mul_i32 s{sT}, s{sT}, 5120
s_bitcmp1_b32 s{sWAVE}, 0
s_cselect_b32 s{sT3}, s{sT}, 0
v_lshlrev_b32 v17, 3, v0
v_add_u32 v17, {A_EX}, v17
v_add_u32 v{vEXW}, s{sT}, v17
v_add_u32 v{vEXR}, s{sT3}, v17
""")

    def wreads(ks, t):
        slot = ks % 5
        o = 0 if slot == 4 else slot * A_WSLOT
        ad = (aSb if slot == 4 else aS) if t == 4 else (aWb if slot == 4 else aW)
        if t != 4:
            o += 32 * t if t < 4 else SLAB2 + 32 * (t - 5) if t < 9 else 2 * SLAB2 + 32 * (t - 9)
        return [tr(wf(t), ad, o), tr(wf(t) + 2, ad, o + 1280)]
    xread = lambda ks, rt: f"ds_read_b128 {vr(xf(ks % 2, rt),4)}, v{aX + ks % 2} offset:{(ks//2 % 3)*A_XSLOT + rt*2048}"

    stamp()
    a("s_barrier")
    stamp()
    a(xread(0, 0)); a(xread(0, 1))
    for t in range(14):
        for x in wreads(0, t): a(x)
    for ks in range(18):
        if ks < 17:
            a("s_barrier")
        if OPT.get("fine") == 2 and ks in (2, 5, 8, 11, 14):
            stamp()
        if ks == 3:
            init_flags("AC")
        tiles = []
        for t in range(14):
            c = lambda rt: acc(t, rt) if ks else "0"
            tiles.append([mf(acc(t, rt), wf(t), xf(ks % 2, rt), c(rt)) if t < 9 else mf(acc(t, rt), xf(ks % 2, rt), wf(t), c(rt)) for rt in range(2)])
        if ks < 17:
            nxt = [wreads(ks + 1, t) for t in range(14)]
            nxt[1] = [nxt[1][0], nxt[1][1] + "\n" + xread(ks + 1, 1)]
            kstep(tiles, nxt, [xread(ks + 1, 0)], {0: "s_waitcnt lgkmcnt(14)", 7: "s_waitcnt lgkmcnt(15)", 12: "s_waitcnt lgkmcnt(15)"})
        else:
            kstep(tiles, None, [], {0: "s_waitcnt lgkmcnt(14)", 7: "s_waitcnt lgkmcnt(0)"})
    stamp()
    KP = lambda j: 18 + 10 * j
    QT = lambda rt, h: 88 + 16 * rt + 4 * h
    VP = lambda t, j: 120 + 6 * t + 2 * j if t < 4 else 48 + 2 * j
    ONE = 72
    def pack_kv(rt):
        o = []
        for q in range(2):
            o += [cv(QT(rt, 3) + 2 + q, acc(4, rt) + 2*q), f"v_mov_b32 v{KP(1+rt) + 8 + q}, 0"]
        for tau in range(4):
            o += [cv(KP(1+rt) + 2*tau + q, acc(5+tau, rt) + 2*q) for q in range(2)]
        o += [f"v_permlane32_swap_b32 v{QT(rt,3) + 2 + q}, v{KP(1+rt) + 8 + q}" for q in range(2)]
        for t in range(5):
            o += [cv(VP(t, 1+rt) + q, acc(9+t, rt) + 2*q) for q in range(2)]
        return o
    def pack_q(rt):
        o = []
        for t in range(4):
            for q in range(2):
                d = QT(rt, t) + q
                o.append(cv(d, acc(t, rt) + 2*q))
                if (t, q) in SPLITS:
                    m = SPLITS[(t, q)]; lo = QT(rt, t-1) + 2 + q
                    o += [f"v_cndmask_b32 v{lo}, 0, v{d}, s[{m}:{m+1}]", f"v_xor_b32 v{d}, v{d}, v{lo}"]
        return o + [f"v_mov_b32 v{QT(rt,0) + 3}, 0"]
    weave([], pack_kv(1))
    a(f"s_bitcmp1_b32 s{sWAVE}, 0\ns_cbranch_scc1 L_AC_nodump")
    for j in range(5):
        a(f"ds_write_b64 v{vEXW}, {vr(KP(2) + 2*j, 2)} offset:{512*j}")
        a(f"ds_write_b64 v{vEXW}, {vr(VP(j, 2), 2)} offset:{512*(5+j)}")
    a("L_AC_nodump:")
    weave([], pack_kv(0) + pack_q(1))
    a("s_waitcnt lgkmcnt(0)\ns_barrier")
    for j in range(5):
        a(f"ds_read_b64 {vr(KP(0) + 2*j, 2)}, v{vEXR} offset:{512*j}")
        a(f"ds_read_b64 {vr(VP(j, 0), 2)}, v{vEXR} offset:{512*(5+j)}")
    SC = lambda rt, h: (224 if rt else 184) + 8 * h
    MX = lambda rt: [76 + 4 * rt + h for h in range(4)]
    PT = lambda rt, h: 144 + 16 * rt + 4 * h
    def qk(rt):
        o = []
        for h in range(4):
            o += [mf(SC(rt, h), KP(1+rt) + 2*h, QT(rt, h), MC), mf(SC(rt, h) + 4, KP(rt) + 2*h, QT(rt, h), MP if rt else MPF)]
        return o
    def rowmax(rt):
        o = []
        for h in range(4):
            s = SC(rt, h); m = MX(rt)[h]
            o += [f"v_max_f32 v{s+r}, v{s+r}, v{s+4+r}" for r in range(4)]
            o += [f"v_max3_f32 v{m}, v{s}, v{s+1}, v{s+2}", f"v_max_f32 v{m}, v{m}, v{s+3}"]
        return o
    def xmax(rt):
        m = MX(rt)
        return [f"v_permlane32_swap_b32 v{m[0]}, v{m[1]}", f"v_permlane32_swap_b32 v{m[2]}, v{m[3]}",
                f"v_max_f32 v{m[0]}, v{m[0]}, v{m[1]}", f"v_max_f32 v{m[2]}, v{m[2]}, v{m[3]}",
                f"v_permlane16_swap_b32 v{m[0]}, v{m[2]}", f"v_max_f32 v{m[0]}, v{m[0]}, v{m[2]}",
                f"v_mul_f32 v{m[0]}, s{sT2}, v{m[0]}", f"v_mov_b32 v{m[2]}, v{m[0]}",
                f"v_permlane16_swap_b32 v{m[0]}, v{m[2]}", f"v_mov_b32 v{m[1]}, v{m[0]}", f"v_mov_b32 v{m[3]}, v{m[2]}",
                f"v_permlane32_swap_b32 v{m[0]}, v{m[1]}", f"v_permlane32_swap_b32 v{m[2]}, v{m[3]}"]
    def scale(rt):
        if OPT.get("pka", 2) < 2:
            return [f"v_fma_f32 v{SC(rt,h)+r}, v{SC(rt,h)+r}, s56, v{MX(rt)[h]}" for h in range(4) for r in range(4)]
        return [f"v_pk_fma_f32 {vr(SC(rt,h)+r,2)}, {vr(SC(rt,h)+r,2)}, s[56:57], {vr(MX(rt)[h] & ~1, 2)} op_sel:[0,0,{h%2}] op_sel_hi:[1,1,{h%2}]"
                for h in range(4) for r in (0, 2)]
    def probs(rt):
        o = []
        for h in range(4):
            s = SC(rt, h); p = PT(rt, h)
            o += [f"v_exp_f32 v{s+r}, v{s+r}" for r in range(4)]
            if h:
                o += split(rt, h - 1)
        return o + split(rt, 3)
    def split(rt, h):
        s = SC(rt, h); p = PT(rt, h); o = []
        for q in range(2):
            o += [cv(p + q, s + 2*q), f"v_and_b32 v{p+2+q}, v{p+q}, v{PM+q}", f"v_xor_b32 v{p+q}, v{p+q}, v{p+2+q}"]
        return o
    OB = lambda rt, t: (224 if rt else 184) + 4 * t
    OA = lambda rt, t: (224 if rt else 184) + 12 + 4 * t
    SM = lambda rt, h: 88 + 16 * rt + 4 * h
    OF = lambda rt: 18 + 10 * rt
    def pv(rt):
        o = [mf(SM(rt, h), ONE, PT(rt, h), "0") for h in range(4)]
        for t in range(5):
            if t < 4: o.append(mf(OB(rt, t), VP(t, rt), PT(rt, t), "0"))
            if t > 0: o.append(mf(OA(rt, t), VP(t, rt), PT(rt, t-1), "0"))
        return o
    def finish(rt, pk):
        o = [f"v_rcp_f32 v{SM(rt,h)}, v{SM(rt,h)}" for h in range(4)]
        for t in range(5):
            for q in range(2):
                d = OF(rt) + 2*t + q
                srcs = []
                if t < 4: srcs.append((OB(rt, t) + 2*q, SM(rt, t), d))
                if t == 4: srcs.append((OA(rt, t) + 2*q, SM(rt, 3), d))
                if (t, q) in SPLITS: srcs.append((OA(rt, t) + 2*q, SM(rt, t-1), 17))
                for x, inv, dd in srcs:
                    if pk:
                        o += [f"v_pk_mul_f32 {vr(x,2)}, {vr(x,2)}, {vr(inv,2)} op_sel_hi:[1,0]", cv(dd, x)]
                    else:
                        o += [f"v_mul_f32 v{x}, v{x}, v{inv}", f"v_mul_f32 v{x+1}, v{x+1}, v{inv}", cv(dd, x)]
                if (t, q) in SPLITS:
                    m = SPLITS[(t, q)]
                    o.append(f"v_cndmask_b32 v{d}, v{d}, v17, s[{m}:{m+1}]")
        return o
    a(f"s_mov_b32 s56, {f32(CSC)}\ns_mov_b32 s57, s56\ns_mov_b32 s{sT2}, {f32(-CSC)}")
    weave(qk(1), pack_q(0) + [f"v_mov_b32 v{ONE+j}, 0x3f803f80" for j in range(4)])
    a("s_waitcnt lgkmcnt(0)")
    weave(qk(0), rowmax(1))
    x1, x0 = xmax(1), xmax(0)
    r0 = rowmax(0)
    for i, x in enumerate(x1):
        a(x)
        for y in r0[2*i:2*i+2]: a(y)
    p1 = scale(1) + probs(1)
    for i, x in enumerate(x0):
        a(x)
        for y in p1[2*i:2*i+2]: a(y)
    if OPT.get("pka", 2) > 1:
        weave([], p1[2*len(x0):] + scale(0))
        weave(pv(1), probs(0))
    else:
        weave([], p1[2*len(x0):])
        weave(pv(1), scale(0) + probs(0))
    f1 = finish(1, False)
    f1p = finish(1, OPT.get('pka', 2) > 1)
    cutp = next(i for i, x in enumerate(f1p) if x.startswith(f"v_cvt_pk_bf16_f32 v{OF(1) + 3},")) + 1
    cutn = next(i for i, x in enumerate(f1) if x.startswith(f"v_cvt_pk_bf16_f32 v{OF(1) + 3},")) + 1
    weave(pv(0), f1[:cutn])
    weave([], f1p[cutp:])
    o_store(OF(1), vOF, vOL, 1)
    weave([], finish(0, OPT.get('pka', 2) > 0))
    o_store(OF(0), vOF, vOL, 0)
    stamp()
    a("s_branch L_P2")

def phi(r, n, t):
    o = [f"v_pk_fma_f32 {vr(t[j],2)}, {vr(r+j,2)}, s[56:57], v[14:15]" for j in range(0, n, 2)]
    for j in range(n):
        o += [f"v_exp_f32 v{t[j]}, v{t[j]} clamp", f"v_max_f32 v{r+j}, s{sT2}, v{r+j}"]
    return o + [f"v_pk_add_f32 {vr(r+j,2)}, {vr(r+j,2)}, {vr(t[j],2)}" for j in range(0, n, 2)]

def b_consumer():
    acc = lambda t, rt: 184 + (t * 2 + rt) * 4
    wf = lambda t: 148 + 4 * t
    xf = lambda ks, rt: 52 + ks * 8 + rt * 4 if ks < 12 else 36 + (ks % 2) * 8 + rt * 4
    aW, aS, aX = 1, 2, 6
    vOF, vOL, vEX = 8, 9, 10
    CK, CS = 28, 32
    a("L_BC:")
    karg_rest()
    a("s_waitcnt lgkmcnt(0)")
    srds_rest()
    init_stores("BC", True)
    rd_lanes(aW, aS, 17, 18); x_lane(aX, aX + 1, 17)
    a(f"""
s_lshl_b32 s{sT}, s{sWAVE}, 12
s_add_u32 s{sT}, s{sT}, {B_X0}
v_add_u32 v{aX}, s{sT}, v{aX}
v_add_u32 v{aX+1}, s{sT}, v{aX+1}
v_and_b32 v17, 15, v0
v_cmp_gt_u32 vcc, 8, v17
v_mov_b32 v18, {EPS}
s_mov_b64 s[42:43], vcc
s_mul_i32 s{sT}, s{sWAVE}, 10240
s_add_u32 s{sT}, s{sT}, {B_EX}
v_lshl_add_u32 v{vEX}, v0, 4, s{sT}
v_mov_b32 v14, {f32(-1e-6*LOG2E)}
v_mov_b32 v15, v14
s_mov_b32 s56, {f32(LOG2E)}
s_mov_b32 s57, s56
""")
    for r in range(4):
        a(f"v_mov_b32 v{CK+r}, v18\nv_cndmask_b32 v{CS+r}, 0, v18, vcc")
    o_store_addr(vOF, vOL, 17, False)

    def wreads(ks, t):
        o = (ks % 5) * B_KVSLOT
        if t != 4:
            o += 32 * t if t < 4 else SLAB2 + 32 * (t - 5)
        return [tr(wf(t), aS if t == 4 else aW, o), tr(wf(t) + 2, aS if t == 4 else aW, o + 1280)]
    xread = lambda ks, rt: f"ds_read_b128 {vr(xf(ks, rt),4)}, v{aX + ks % 2} offset:{(ks//2 % 3)*B_XSLOT + rt*2048}"

    stamp()
    a("s_barrier")
    stamp()
    a(xread(0, 0)); a(xread(0, 1))
    for t in range(9):
        for x in wreads(0, t): a(x)
    for ks in range(18):
        if ks < 17:
            a("s_barrier")
        if ks == 3:
            init_flags("BC")
        tiles = [[mf(acc(t, rt), xf(ks, rt), wf(t), acc(t, rt) if ks else (CK if t < 4 else CS if t == 4 else "0")) for rt in range(2)] for t in range(9)]
        if ks < 17:
            nxt = [wreads(ks + 1, t) for t in range(9)]
            nxt[1] = [nxt[1][0], nxt[1][1] + "\n" + xread(ks + 1, 1)]
            kstep(tiles, nxt, [xread(ks + 1, 0)], {0: "s_waitcnt lgkmcnt(12)", 3: "s_waitcnt lgkmcnt(13)", 6: "s_waitcnt lgkmcnt(13)", 8: "s_waitcnt lgkmcnt(11)"})
        else:
            rr = [[f"ds_read_b128 {vr(wf(t),4)}, v{aX + t//2 % 2} offset:{(6 + t//4) % 3*B_XSLOT + t % 2*2048}" if t < 8 else "", ""] for t in range(9)]
            kstep(tiles, rr, [], {0: "s_waitcnt lgkmcnt(12)", 3: "s_waitcnt lgkmcnt(3)\ns_barrier"})
    stamp()
    a(f"s_mov_b32 s{sT2}, {EPS}\nv_mov_b32 v16, 0x3f803f80")
    wr = lambda reg, slot: f"ds_write_b128 v{vEX}, {vr(reg,4)} offset:{1024*slot}"
    pk = lambda d, s: [cv(d + j, s + 2*j) for j in range(4)]
    xq = lambda ks, rt: wf(2 * (ks - 12) + rt) if 12 <= ks < 16 else xf(ks, rt)
    for tau in range(4):
        weave([], pk(acc(5+tau, 0), acc(5+tau, 0)))
    V4, TM = acc(7, 1), [acc(5, 1) + j for j in range(4)] + [acc(6, 1) + j for j in range(4)]
    a("s_waitcnt lgkmcnt(0)\ns_barrier")
    weave([], pk(V4, acc(4, 0)) + [f"v_cndmask_b32 v{V4+j}, v{V4+j}, v16, s[42:43]" for j in range(4)])
    for tau in range(5):
        o = phi(acc(tau, 0), 8, TM)
        weave([], o[:8] + [wr(acc(5+tau, 0) if tau < 4 else V4, 5 + tau)] + o[8:] + pk(acc(tau, 0), acc(tau, 0)) + [wr(acc(tau, 0), tau)])
    a(f"v_add_u32 v3, {R1}, v{aW}\nv_add_u32 v4, 15360, v{aW}")
    a("s_waitcnt lgkmcnt(0)\ns_barrier")
    stamp()
    QA = lambda t, rt: 216 + (t * 2 + rt) * 4
    qf = lambda t: 184 + 4 * t
    def qreads(p, t):
        ad, o = (3, wq_slot(p) - R1) if p < 3 else (aW, wq_slot(p)) if p < 6 else (4, wq_slot(p) - 15360)
        return [tr(qf(t), ad, o + 32*t), tr(qf(t) + 2, ad, o + 32*t + 1280)]
    for t in range(5):
        for x in qreads(0, t): a(x)
    if OPT.get("x2", 1):
        a("s_barrier")
    for p in range(18):
        ks = p
        if p == 7:
            if OPT.get("fine") == 3: stamp()
            a("s_barrier")
            if OPT.get("fine") == 3: stamp()
        tiles = [[mf(QA(t, rt), qf(t), xq(ks, rt), QA(t, rt) if p else CK) for rt in range(2)] for t in range(5)]
        if p < 17:
            nxt = [qreads(p + 1, t) for t in range(5)]
            kstep(tiles, nxt, [], {t: f"s_waitcnt lgkmcnt({7 if t else 8})" for t in range(5)})
        else:
            kstep(tiles, None, [], {t: f"s_waitcnt lgkmcnt({8 - 2*t})" for t in range(5)})
    stamp()
    PQ = lambda rt: 36 + 10 * rt
    KO = 84
    tup = {0: KO, 1: KO + 4, 2: KO + 12, 3: KO + 20, 4: KO + 28}
    ZO = KO + 32
    weave([], [f"v_mov_b32 v{r}, 0" for r in (tup[1]+4, tup[1]+5, tup[2]+4, tup[2]+5, tup[3]+4, tup[3]+5, ZO+8, ZO+9)])
    a(f"v_lshlrev_b32 v16, 3, v0\nv_add_u32 v16, {B_KVOP}, v16")
    for t in range(5):
        weave([], phi(QA(t, 0), 8, list(range(148, 156))) + [cv(PQ(rt) + 2*t + q, QA(t, rt) + 2*q) for rt in range(2) for q in range(2)])
    stamp()
    a("s_barrier")
    stamp()
    tid = lambda tau, taup: {-1: tau - 1, 0: 4 + tau, 1: 9 + tau}[taup - tau]
    rd = lambda d, slot: a(f"ds_read_b64 {vr(d,2)}, v16 offset:{512*slot}")
    for j, d in enumerate((ZO, ZO + 2, ZO + 4, ZO + 6, ZO + 10)):
        rd(d, 13 + j)
    rd(tup[0], tid(0, 0)); rd(tup[0] + 2, tid(1, 0))
    for t in (1, 2, 3):
        rd(tup[t], tid(t-1, t)); rd(tup[t] + 2, tid(t, t)); rd(tup[t] + 6, tid(t+1, t))
    rd(tup[4], tid(3, 4)); rd(tup[4] + 2, tid(4, 4))
    DN = lambda rt: 148 + 4 * rt
    NM = lambda rt, t: 184 + 20 * rt + 4 * t
    OF = lambda rt: 156 + 10 * rt
    a("s_waitcnt lgkmcnt(13)")
    for k, (zo, po) in enumerate(((0, 0), (4, 4), (8, 6))):
        for rt in range(2):
            a(mf(DN(rt), ZO + zo, PQ(rt) + po, DN(rt) if k else CK))
    a("s_waitcnt lgkmcnt(0)")
    def num(rt):
        o = [mf(NM(rt, t), tup[t], PQ(rt) + 2*(t-1), "0") for t in (1, 2, 3)]
        o += [mf(NM(rt, 0), tup[0], PQ(rt), "0"), mf(NM(rt, 4), tup[4], PQ(rt) + 6, "0")]
        return o + [mf(NM(rt, t), tup[t] + 4, PQ(rt) + 2*t, NM(rt, t)) for t in (1, 2, 3)]
    def fin(rt, packed):
        o = []
        for t in (0, 4, 1, 2, 3):
            for q in range(2):
                inv = DN(rt) + min(t, 3)
                if (t, q) in SPLITS:
                    m = SPLITS[(t, q)]
                    o.append(f"v_cndmask_b32 v17, v{DN(rt)+t}, v{DN(rt)+t-1}, s[{m}:{m+1}]")
                    inv = 17
                n = NM(rt, t) + 2*q
                o += [f"v_pk_mul_f32 {vr(n,2)}, {vr(n,2)}, {vr(inv & ~1,2)} op_sel:[0,{inv%2}] op_sel_hi:[1,{inv%2}]", cv(OF(rt) + 2*t + q, n)]
        return o
    weave(num(0), [], 0)
    weave(num(1), [f"v_rcp_f32 v{DN(rt)+h}, v{DN(rt)+h}" for rt in range(2) for h in range(4)], 1)
    for rt in range(2):
        weave([], fin(rt, True))
        o_store(OF(rt), vOF, vOL, rt)
    stamp()

def kv_index(wreg, VS, VG, VZ):
    a(f"s_cmp_eq_u32 s{wreg}, 0\ns_cselect_b32 s58, 4, s{wreg}")
    for slot in range(3):
        if slot == 0:
            a(f"s_lshl_b32 s{sT}, s58, 4\ns_sub_u32 s{sT2}, s{sT}, 16\ns_mov_b64 s[46:47], 0")
        elif slot == 1:
            a(f"s_lshl_b32 s{sT}, s{wreg}, 4\ns_mov_b32 s{sT2}, s{sT}")
        else:
            a(f"s_add_u32 s{sT2}, s{sT}, 16\ns_cmp_eq_u32 s{wreg}, 3\ns_cselect_b32 s{sT2}, 56, s{sT2}\ns_cselect_b64 s[46:47], s[44:45], 0")
        kv_tile(VS and VS + 2*slot, VG and VG + 2*slot, False)
    if VZ:
        kv_z(VZ)

def kv_tile(VS, VG, last):
    a(f"v_add_u32 v3, s{sT2}, v1")
    head_of(4, 3)
    a(f"v_mul_u32_u24 v5, 18, v4\nv_sub_u32 v3, v3, v5\nv_cndmask_b32 v4, v4, 7, s[46:47]")
    if last:
        a("v_cmp_eq_u32 vcc, 0, v1\nv_cndmask_b32 v4, v4, 3, vcc\nv_cndmask_b32 v3, v3, 18, vcc")
    for q in range(2):
        a(f"v_add3_u32 v5, v2, s{sT}, {2*q}")
        head_of(6, 5)
        a("v_cmp_eq_u32 vcc, v4, v6\nv_mad_u32_u24 v5, v5, 19, v3\nv_lshlrev_b32 v5, 2, v5")
        if VS:
            a(f"v_add_u32 v6, {B_STG}, v5\nv_cndmask_b32 v{VS+q}, v8, v6, vcc")
        if VG:
            a(f"v_add_u32 v6, s{sM}, v5\nv_cndmask_b32 v{VG+q}, v9, v6, vcc")

def kv_z(VZ):
    a("v_and_b32 v3, 3, v0")
    for q in range(2):
        a(f"v_add3_u32 v5, v2, s{sT}, {2*q}")
        head_of(6, 5)
        a(f"v_cmp_eq_u32 vcc, v3, v6\nv_mul_u32_u24 v5, 76, v5\nv_add3_u32 v5, v5, s{sM}, 64\nv_add_u32 v5, 8, v5\nv_cndmask_b32 v{VZ+q}, v9, v5, vcc")

def b_loader(kind):
    a(f"L_B{kind}1:")
    m = M0(42)
    issue = (lambda c: w_issue("B", c, m)) if kind == "W" else (lambda c: x_issue("B", c, m))
    cnt = {1: 6, 2: issue(2)} if kind == "W" else {1: 4, 2: 4}
    karg_rest()
    a("s_mov_b32 s59, 0")
    stamp()
    mark = len(a.lines)
    a("s_waitcnt lgkmcnt(0)")
    VS, VG, vZS, vEA, vE0, vEL, vLA, vGA, vLW = 72, 80, 98, 99, 100, 101, 102, 103, 105
    if kind == "W":
        for j in range(3):
            a(f"v_subrev_u32 v{VD+3+j}, 1152, v{VD+j}")
    srds_rest()
    if kind == "W":
        wo_setup(False)
    else:
        sync_setup()
    a(f"""
s_add_u32 s55, s{sV}, 2
s_mul_i32 s{sM}, s{sHG}, {KV_ST}
s_add_u32 s{sM}, s{sM}, {WS_KV}
v_and_b32 v1, 15, v0
v_lshrrev_b32 v2, 4, v0
v_lshlrev_b32 v2, 2, v2
v_cmp_gt_u32 s[44:45], 8, v1
v_lshlrev_b32 v8, 2, v0
v_add_u32 v8, {B_DUMP}, v8
v_mov_b32 v9, {OOB}
""")
    own = sV if kind == "X" else 55
    if kind == "X":
        kv_index(55, None, VG, VG + 6)
        a(f"s_movk_i32 s{sT}, 64")
        kv_z(10)
    kv_index(own, VS, VG + 8 if kind == "X" else None, VG + 14 if kind == "X" else None)
    a(f"""
v_add_u32 v5, s{sT}, v0
v_mul_u32_u24 v5, 76, v5
v_add_u32 v5, {B_STG + 72}, v5
v_cndmask_b32 v{vZS}, v8, v5, s[{sG0}:{sG0+1}]
v_lshlrev_b32 v{vEL}, 4, v0
v_add_u32 v{vEL}, {B_EX}, v{vEL}
s_lshl_b32 s{sT}, s{own}, 10
v_add_u32 v{vEA}, s{sT}, v{vEL}
s_lshl_b32 s{sT}, s58, 10
v_add_u32 v{vE0}, s{sT}, v{vEL}
""")
    if kind == "X":
        a(f"s_movk_i32 s{sT}, 64\ns_movk_i32 s{sT2}, 56\ns_mov_b64 s[46:47], s[44:45]")
        kv_tile(VS + 6, VG + 16, True)
        a(f"s_cmp_eq_u32 s{sV}, 0\ns_cselect_b64 s[46:47], -1, 0")
        for q in range(2):
            a(f"v_cndmask_b32 v{VS+6+q}, v8, v{VS+6+q}, s[46:47]\nv_cndmask_b32 v{VG+16+q}, v{10+q}, v{VG+16+q}, s[46:47]")
        a(f"""
v_lshlrev_b32 v5, 3, v0
v_add_u32 v5, {B_KVOP}, v5
s_lshl_b32 s{sT2}, s58, 9
s_sub_u32 s{sT2}, s{sT2}, 512
v_add_u32 v{vLW+2}, s{sT2}, v5
s_lshl_b32 s{sT2}, s{sV}, 9
v_add_u32 v{vLW+1}, s{sT2}, v5
v_add_u32 v{vLW}, 1024, v{vLW+1}
s_mul_i32 s{sT2}, s{sV}, {9*512}
v_add_u32 v{vLW+3}, s{sT2}, v5
s_mul_i32 s{sT}, s{sV}, 2816
v_lshl_add_u32 v{vLA}, v0, 2, s{sT}
v_add_u32 v{vGA}, s{sM}, v{vLA}
v_cmp_gt_u32 vcc, {5472 - 2560}, v{vLA}
v_cndmask_b32 v{vGA+1}, v9, v{vGA}, vcc
v_add_u32 v{vLA}, {B_STG}, v{vLA}
v_mov_b32 v4, 0
""")
    a(f"v_mov_b32 v10, {B_LCNT}\nv_mov_b32 v11, 1")
    if kind == "X":
        a("ds_write_b32 v10, v4\ns_waitcnt lgkmcnt(0)")
    setup = a.lines[mark:]
    del a.lines[mark:]
    a(f"s_waitcnt vmcnt({sum(cnt.values())})\ns_barrier")
    stamp()
    extra = 0
    for i in range(-1, 16):
        if i + 4 <= 17:
            cnt[i+4] = issue(i + 4)
        if 0 <= i < 9:
            spread(setup, i, 9)
        if i == 10 and kind == "X":
            flag_load(sFO, 98); flag_load(sFK, 99)
        if kind == "W" and i >= 14:
            extra += sum(wq_issue(p, m) for p in ((0, 1) if i == 14 else (2,)))
        left = sum(cnt.get(c, 0) for c in range(i + 3, min(i + 4, 17) + 1)) + extra
        a(f"s_waitcnt vmcnt({left})\ns_barrier")
    a("s_barrier")
    if kind == "W":
        for p in (3, 4, 5, 6):
            wq_issue(p, m)
    a("s_barrier")
    if kind == "W":
        for p in range(7, 18):
            wq_issue(p, m)
        a("s_waitcnt vmcnt(30)")
    else:
        flag_check(sFK, 99, "L_BX_fk")
    stamp()
    a("s_barrier")
    stamp()
    KT = lambda s: 40 + 4 * s
    RD = lambda src, j: 112 + 28 * src + 4 * j
    srcs = ((vEA, 0), (vE0, 0), (vE0, 4096), (vEA, 5120), (vEA, 6144), (vEL, 9216), (vEL, 4096))
    prods = ((1, 2), (0, 3), (0, 4), (6, 5), (5, 0))
    if kind == "W":
        srcs = ((vEA, 0), None, (vE0, 4096), (vEA, 5120), (vEA, 6144), (vEL, 9216))
        prods = ((0, 2), (0, 3), (0, 4), None, (5, 0))
    nr = sum(x is not None for x in srcs)
    for src in range(4):
        for j, x in enumerate(srcs):
            if x: a(f"ds_read_b128 {vr(RD(src, j),4)}, v{x[0]} offset:{src*10240 + x[1]}")
    for src in range(4):
        a(f"s_waitcnt lgkmcnt({min(15, nr*(3-src))})")
        for s_, x in enumerate(prods):
            if x: a(mf(KT(s_), RD(src, x[0]), RD(src, x[1]), KT(s_) if src else "0"))
    for s_ in range(4 if kind == "X" else 3):
        for r in range(4):
            a(f"ds_write_b32 v{VS + 2*s_ + r//2}, v{KT(s_)+r} offset:{76*(r%2)}")
    a(f"ds_write_b32 v{vZS}, v{KT(4)}")
    if OPT.get("x2", 1):
        a("s_waitcnt lgkmcnt(0)\ns_barrier")
    else:
        a("s_waitcnt lgkmcnt(0)\ns_mov_b64 exec, 1\nds_add_u32 v10, v11\ns_mov_b64 exec, -1")
    stamp()
    if kind == "W":
        a("s_waitcnt vmcnt(0)\ns_barrier")
        for g in range(OPT.get('nb1', 6)): wo_pair(g)
        stamp()
        a("s_barrier")
        loader_tail("BW", lambda: [wo_pair(g) for g in range(OPT.get('nb1', 6), 9)])
        return
    if not OPT.get("x2", 1):
      a(f"""
s_mov_b32 s{sT3}, 0x400000
L_BX_st:
ds_read_b32 v2, v10
s_waitcnt lgkmcnt(0)
v_readfirstlane_b32 s{sT}, v2
s_sub_u32 s{sT3}, s{sT3}, 1
s_cbranch_scc1 L_BX_st_x
s_cmp_ge_u32 s{sT}, 4
s_cbranch_scc0 L_BX_st
L_BX_st_x:
""")
    for n in range(11):
        a(f"ds_read_b32 v{40+n}, v{vLA} offset:{256*n}")
    for n in range(11):
        a(f"s_waitcnt lgkmcnt({10-n})")
        a(f"buffer_atomic_add_f32 v{40+n}, v{vGA + (n == 10)}, s[{SWS}:{SWS+3}], 0 offen offset:{256*n}")
    stamp()
    a("s_barrier\ns_waitcnt vmcnt(0)")
    stamp()
    arrive_wait(sKC, 32, "L_BX_kc")
    stamp()
    for s_ in range(9):
        for r in range(4):
            a(f"buffer_load_dword v{112+4*s_+r}, v{VG + 2*s_ + r//2}, s[{SWS}:{SWS+3}], 0 offen offset:{76*(r%2)} sc1")
    dst = ((vLW, -1), (vLW, 4), (vLW, 9), (vLW, 13), (vLW + 2, 0), (vLW + 1, 4), (vLW + 1, 9), (vLW + 1, 13), (vLW + 3, 8))
    a(f"v_subrev_u32 v11, 512, v{vLW}")
    for s_, (ad, off) in enumerate(dst):
        a(f"s_waitcnt vmcnt({4*(8-s_)})")
        a(cv(40 + 2*s_, 112 + 4*s_)); a(cv(41 + 2*s_, 114 + 4*s_))
        a(f"ds_write_b64 v{11 if off < 0 else ad}, {vr(40+2*s_,2)} offset:{512*max(off, 0)}")
    a("s_waitcnt lgkmcnt(0)")
    stamp()
    a("s_barrier")
    loader_tail("BX")

def p2_consumer():
    OFR = lambda ks, c: 112 + ks * 8 + c * 4
    ORDER = [(0, 0), (0, 1), (4, 0), (1, 0), (1, 1), (2, 0), (2, 1), (5, 0), (3, 0), (3, 1)]
    ACC = lambda t, c: 72 + 4 * ORDER.index((t, c))
    wf = lambda t: 48 + 4 * t
    AD, vO, vTW, vTR, VS = 1, 5, 7, 10, 14
    a("L_P2:")
    nstamp[0] = 9 if OPT.get('fine') != 3 else 10
    out_cols(57, 59, 39)
    a(f"""
v_lshrrev_b32 v40, 5, v0
v_lshlrev_b32 v40, 4, v40
v_bfe_u32 v41, v0, 4, 1
v_lshl_add_u32 v40, v41, 2, v40
v_bfe_u32 v42, v0, 2, 2
v_add_u32 v40, v40, v42
v_mul_u32_u24 v40, 192, v40
v_and_b32 v42, 3, v0
v_lshl_add_u32 v40, v42, 3, v40
v_add_u32 v40, {R1}, v40
v_lshl_add_u32 v42, v41, 5, v40
v_xor_b32 v41, 1, v41
v_lshl_add_u32 v43, v41, 5, v40
v_add_u32 v{AD}, s59, v42
v_add_u32 v{AD+1}, s59, v43
s_lshl_b32 s{sT}, s59, 1
s_sub_u32 s38, 128, s{sT}
v_add_u32 v{AD+2}, s38, v42
v_add_u32 v{AD+3}, s38, v43
s_mul_i32 s{sT}, s59, 288
s_add_u32 s{sT2}, s58, s{sT}
v_lshl_add_u32 v{vO}, v0, 4, s{sT2}
s_sub_u32 s{sT2}, s58, s{sT}
s_add_u32 s{sT2}, s{sT2}, 18432
v_lshl_add_u32 v{vO+1}, v0, 4, s{sT2}
s_mul_i32 s40, s{sWAVE}, 5632
s_add_u32 s40, s40, {P_TR}
v_and_b32 v40, 15, v0
v_lshrrev_b32 v41, 4, v0
v_lshl_add_u32 v41, v41, 3, s40
v_mul_u32_u24 v42, 208, v40
v_add_u32 v42, v42, v41
v_add_u32 v{vTW}, s59, v42
v_add_u32 v{vTW+1}, s38, v42
v_mul_u32_u24 v42, 144, v40
v_add_u32 v42, 3328, v42
v_add_u32 v{vTW+2}, v42, v41
s_lshr_b32 s{sT}, s{sWAVE}, 1
s_and_b32 s{sT2}, s{sWAVE}, 1
s_lshl_b32 s{sT2}, s{sT2}, 5
s_lshl_b32 s{sT3}, s{sWAVE}, 5
s_cmp_eq_u32 s{sBR}, 0
s_cselect_b32 s42, s{sT}, 0
s_cselect_b32 s43, s{sT2}, s{sT3}
s_cselect_b32 s55, 1, 0
s_lshl_b32 s56, s42, 3
s_lshl_b32 s{sT}, s{sRB}, 7
s_add_u32 s42, s42, s{sT}
s_mul_i32 s{sT}, s{sBR}, 1152
s_add_u32 s57, s57, s{sT}
s_lshr_b32 s{sT}, s59, 2
s_add_u32 s41, s43, s{sT}
s_sub_u32 s43, s43, s{sT}
s_add_u32 s43, s43, 16
s_add_u32 s59, s59, s57
v_mov_b32 v43, {OOB}
""")
    for n in range(5):
        if n < 3:
            a(f"""
v_add_u32 v40, {64*n}, v0
v_mul_u32_u24 v41, 5462, v40
v_lshrrev_b32 v41, 16, v41
v_mad_i32_i24 v40, v41, -12, v40
v_mul_u32_u24 v42, 208, v41
v_lshl_add_u32 v42, v40, 4, v42
v_add_u32 v{vTR+n}, s40, v42
v_cmp_gt_u32 vcc, s39, v40
v_add_u32 v41, s41, v41
""")
        else:
            a(f"v_and_b32 v40, 7, v0\nv_lshrrev_b32 v41, 3, v0")
            if n == 3:
                a(f"v_mul_u32_u24 v42, 144, v41\nv_lshl_add_u32 v42, v40, 4, v42\nv_add_u32 v42, 3328, v42\nv_add_u32 v{vTR+3}, s40, v42")
            a(f"v_add3_u32 v41, v41, s43, {8*(n-3)}")
        a(f"""
v_xor_b32 v41, s56, v41
v_lshlrev_b32 v41, s55, v41
v_add_u32 v41, s42, v41
v_mul_u32_u24 v41, 2304, v41
v_lshl_add_u32 v41, v40, 4, v41
v_add_u32 v{VS+n}, s{57 if n < 3 else 59}, v41
""")
        if n < 3:
            a(f"v_cndmask_b32 v{VS+n}, v43, v{VS+n}, vcc")
    SO = [8, 9, 10, 11, 12, 13, 14, 15, 36]
    rho(37)
    a(f"s_movk_i32 s{SO[0]}, 16384")
    for j in range(1, 9):
        a(f"s_add_u32 s{sT}, s37, {2*j-2}\ns_and_b32 s{sT}, s{sT}, 15\ns_lshl_b32 s{SO[j]}, s{sT}, 10")
    a("s_waitcnt vmcnt(0)")
    stamp()
    a("s_barrier\ns_barrier")
    stamp()
    oload = lambda ks, c: f"buffer_load_dwordx4 {vr(OFR(ks, c),4)}, v{vO + c}, s[{SWS}:{SWS+3}], s{SO[ks//2]} offen offset:{1024*(ks%2)} sc1"
    base = lambda ks: R1 if ks < 2 else R2 if ks < 10 else 0
    adr = lambda t: AD + (2 if t >= 4 else 0) + t % 2
    moved = set()
    def wreads(ks, t):
        o = WO[ks] - base(ks) + (64 * (t // 2) if t < 4 else 0)
        pre = ""
        if ks and base(ks) != base(ks - 1) and (ks, adr(t)) not in moved:
            moved.add((ks, adr(t)))
            pre = f"v_add_u32 v{adr(t)}, {(base(ks) - base(ks - 1)) & 0xffffffff}, v{adr(t)}\n"
        return [pre + tr(wf(t), adr(t), o), tr(wf(t) + 2, adr(t), o + 1536)]
    todo = [oload(ks, c) for ks in range(18) for c in range(2)]
    done = 2 * OPT["p0"]
    weave([], todo[:done])
    issued, mark, pend, safe = 0, {}, [], -1
    def emit_read():
        nonlocal issued
        key, x = pend.pop(0)
        a(x); mark[key] = issued; issued += 1
    first = list(dict.fromkeys(t for t, c in ORDER))
    for t in first:
        pend += [((0, t), x) for x in wreads(0, t)]
    while pend: emit_read()
    stage = []
    for t, c in ORDER:
        d = 20 + 2 * ORDER.index((t, c))
        ad, off = (vTW + 2, 32*t) if c else (vTW, 32*t) if t < 4 else (vTW + 1, 32*(t - 4))
        stage += [cv(d, ACC(t, c)), cv(d + 1, ACC(t, c) + 2), f"ds_write_b64 v{ad}, {vr(d,2)} offset:{off}"]
    COVER = {0: {}, 2: {0: (0, 4, 1), 5: (2, 5, 3)}, 3: {0: (0, 4), 3: (1, 2), 7: (5, 3)}}
    for ks in range(18):
        now = todo[done:done + (3 if ks < OPT["ramp"] else 2)]
        vm = done - 2 * (ks + 1)
        done += len(now)
        for i, (t, c) in enumerate(ORDER):
            while (ks, t) in [k for k, _ in pend]:
                emit_read()
            w = f"vmcnt({vm}) " if i == 0 else ""
            if mark[(ks, t)] > safe:
                cover = COVER[OPT.get("cov", 2)].get(i, (t,))
                n_ = min(15, issued - 1 - max(mark[(ks, u)] for u in cover if (ks, u) not in [k for k, _ in pend]))
                safe = issued - 1 - n_
                w += f"lgkmcnt({n_})"
            if w:
                a("s_waitcnt " + w)
            a(mf(ACC(t, c), wf(t), OFR(ks, c), ACC(t, c) if ks else "0"))
            if ks < 17 and (c == 1 or t >= 4):
                pend += [((ks + 1, t), x) for x in wreads(ks + 1, t)]
            for _ in range(2 if len(pend) > 2 else 1):
                if pend: emit_read()
            if now and i in {0: (0, 4, 8), 1: (1, 3, 6), 2: (0, 3, 6), 3: (1, 5, 8)}[OPT.get('lg', 2)]:
                a(now.pop(0))
            if ks == 17 and i >= 5:
                for _ in range(2):
                    x = stage.pop(0); a(x)
                    if x.startswith("ds_write"): issued += 1
        if ks == 0 and OPT.get("fine") != 3:
            stamp()
    stamp()
    weave([], stage)
    a("s_waitcnt lgkmcnt(0)")
    for n in range(5):
        a(f"ds_read_b128 {vr(112+4*n,4)}, v{vTR + min(n, 3)} offset:{1152 if n == 4 else 0}")
    for n in range(5):
        a(f"s_waitcnt lgkmcnt({4-n})")
        a(f"buffer_store_dwordx4 {vr(112+4*n,4)}, v{VS+n}, s[{SOUT}:{SOUT+3}], 0 offen{FLAGS[OPT.get('outst', 2)]}")
    stamp()
    stamps_out(0)
    a("s_endpgm")

HEADER = open("concat_heads__sliding_local_dilated__linear_attn_block__prompt.s.ref").read().split("; Override")[0]
out = HEADER + "; @launch grid=(256,1,1) block=(512,1,1) lds=163840\n"
a('.amdgcn_target "amdgcn-amd-amdhsa--gfx950"\n.text')
a(kernel_head(KN))
stamp()
a(f"""
s_cmp_ge_u32 s2, 256
s_cbranch_scc1 L_end
s_and_b32 s{sT}, s2, 7
s_lshr_b32 s{sBR}, s{sT}, 2
s_mul_i32 s{sT2}, s{sBR}, 24
s_load_dwordx4 s[36:39], s[0:1], s{sT2}
v_lshrrev_b32 v1, 6, v0
v_and_b32 v0, 63, v0
v_readfirstlane_b32 s{sWAVE}, v1
{'s_xor_b32 s3, s3, 4' if OPT.get('lfirst', 0) else ''}
s_bfe_u32 s{sHG}, s2, 0x30003
s_lshr_b32 s{sRB}, s2, 6
s_and_b32 s{sT3}, s{sT}, 3
s_lshl2_add_u32 s{sRB}, s{sT3}, s{sRB}
s_cmp_lt_u32 s{sWAVE}, 4
s_cbranch_scc1 L_cons
s_setprio {OPT.get("prio", 2)}
s_and_b32 s{sV}, s{sWAVE}, 1
s_add_u32 s{sRW}, s{sRB}, s{sHG}
s_and_b32 s{sRW}, s{sRW}, 7
s_lshl_b32 s{sRW}, s{sRW}, 2
s_lshr_b32 s{sRW}, {hex(OPT.get("tab", 0x75207520))}, s{sRW}
s_and_b32 s{sRW}, s{sRW}, 15
s_lshl_b32 s{sRX}, s{sRW}, 7
s_mul_i32 s{sRW}, s{sRW}, {64*3456}
""")
hstamp(12)
a(f"""
s_cmp_lt_u32 s{sWAVE}, 6
s_cbranch_scc1 L_W0
""")
x_head()
a(f"""
L_cons:
s_getpc_b64 s[42:43]
L_pc:
s_lshr_b32 s{sT}, s2, 3
s_lshl2_add_u32 s{sT}, s{sT}, s{sWAVE}
s_lshl_b32 s{sT}, s{sT}, 9
v_and_b32 v1, 3, v0
v_lshl_add_u32 v1, v1, 7, s{sT}
v_min_u32 v1, L_last-L_pc, v1
global_load_dword v27, v1, s[42:43]
s_cmp_eq_u32 s{sBR}, 0
s_cbranch_scc1 L_AC
s_branch L_BC
L_end:
s_endpgm
""")
w_head()
n0 = nstamp[0]
for fn in (lambda: a_loader("W"), lambda: a_loader("X"), a_consumer, lambda: b_loader("W"), lambda: b_loader("X"), b_consumer, p2_consumer):
    nstamp[0] = n0
    fn()
a("L_last:\ns_endpgm")
lines = []
for l in a.lines: lines += [x for x in l.split("\n") if x.strip()]
if OPT.get("noread"):
    lines = [l for l in lines if not l.startswith("ds_read_b64_tr")]
if OPT.get("nomfma"):
    lines = [l for l in lines if not l.startswith("v_mfma")]
lines, added = hz.fix(lines)
out += "\n".join(lines) + "\n"
out += '.section .rodata,"a"\n.p2align 6\n' + kernel_desc(KN, 256, 102 if OPT.get('cyc') else 100, 256)
sys.stdout.write(out)
sys.stderr.write(f"nop states added: {added}\n")
```

```python
import sys, struct
from asmlib import *
import hz

OPT = dict(stamps=0, p0=3, ramp=4)
for arg in sys.argv[1:]:
    k, v = arg.split("=")
    OPT[k] = int(v)
KN = "concat_heads__sliding_local_dilated__linear_attn_block__prompt_kernel"

def f32(x):
    return "0x%08x" % struct.unpack("<I", struct.pack("<f", x))[0]

LOG2E = 1.4426950408889634
CSC = 18 ** -0.5 * LOG2E
NEG = "0xf149f2ca"
EPS = f32(1e-6)
OOB = "0x80000000"

O_BR = 0x240000
WS_KV = 0x500000
KV_ST = 0x2000
WS_CNT = 0x540000
WS_STAMP = 0x600000
WS_SIZE = 0x700000

sWAVE, sHG, sRB, sBR, sT = 3, 4, 5, 6, 7
SX, SW, SWS, SDBG, SWO, SOUT = 8, 12, 16, 20, 24, 28
sG0, sG01 = 32, 34
sK, sV, sM, sT2, sT3 = 50, 51, 52, 53, 54
sST = 60

a = Asm()
nstamp = [0]

def stamp():
    if OPT["stamps"] and not (OPT.get("fine") == 4 and nstamp[0] >= 10):
        i = nstamp[0]; nstamp[0] += 1
        assert i < 14
        a(f"{'s_memrealtime' if OPT.get('rt') or OPT.get('probe') and not (OPT.get('cyc') and i) else 's_memtime'} s[{sST+2*i}:{sST+2*i+1}]")
        if OPT.get("cyc") and i == 0:
            a("s_memtime s[100:101]")

def stamps_out(last=-1):
    if not OPT["stamps"]:
        return
    if OPT.get("probe"):
        if last == OPT.get("pwave", 0):
            j = sST + 2 * OPT["probe"]
            a(f"""
s_waitcnt vmcnt(0) lgkmcnt(0)
s_cmp_eq_u32 s2, {OPT.get('wg', 0)}
s_cbranch_scc0 L_probe_x
s_cmp_eq_u32 s{sWAVE}, {last}
s_cbranch_scc0 L_probe_x
s_sub_u32 s{sT}, s{j}, s{100 if OPT.get('cyc') else sST}
{'s_lshr_b32 s7, s7, 3' if OPT.get('cyc') else 's_mul_i32 s7, s7, 10'}
s_min_u32 s{sT}, s{sT}, 100000
s_add_u32 s{sT}, s{sT}, 6000
L_probe:
s_memrealtime s[44:45]
s_waitcnt lgkmcnt(0)
s_sub_u32 s44, s44, s{sST}
s_cmp_lt_u32 s44, s{sT}
s_cbranch_scc1 L_probe
L_probe_x:
""")
        return
    a("s_waitcnt vmcnt(0) lgkmcnt(0)")
    a(f"s_lshl_b32 s{sT}, s2, 3\ns_add_u32 s{sT}, s{sT}, s{sWAVE}\ns_lshl_b32 s{sT}, s{sT}, 6")
    a(f"s_add_u32 s{sT}, s{sT}, {WS_STAMP}\nv_mov_b32 v1, s{sT}")
    for i in range(16):
        a(f"v_mov_b32 v2, {'s%d' % (sST+2*i) if i < 14 else 0}")
        a(f"buffer_store_dword v2, v1, s[{SWS}:{SWS+3}], 0 offen offset:{4*i}")
    a("s_waitcnt vmcnt(0)")

def mf(d, s0, s1, c):
    cc = c if isinstance(c, str) else vr(c, 4)
    return f"v_mfma_f32_16x16x32_bf16 {vr(d,4)}, {vr(s0,4)}, {vr(s1,4)}, {cc}"
def cv(d, x):
    return f"v_cvt_pk_bf16_f32 v{d}, v{x}, v{x+1}"
def tr(d, addr, off):
    return f"ds_read_b64_tr_b16 {vr(d,2)}, v{addr} offset:{off}"
def weave(mfmas, others, per=2):
    o = list(others)
    for m in mfmas:
        a(m)
        for _ in range(per):
            if o: a(o.pop(0))
    for x in o: a(x)

def srd(dst, lo, nbytes):
    a(f"s_mov_b32 s{dst}, s{lo}\ns_mov_b32 s{dst+1}, s{lo+1}\ns_mov_b32 s{dst+2}, {nbytes}\ns_mov_b32 s{dst+3}, 0x20000")
def srds_rest():
    srd(SWO, 40, 663552); srd(SOUT, 44, 4718592); srd(SDBG, 46, 256); srd(SWS, 48, WS_SIZE)

class M0:
    def __init__(self, base): self.base = base; self.cur = None
    def set(self, imm):
        if self.cur is not None and -32768 <= imm - self.cur <= 32767:
            a(f"s_addk_i32 m0, {imm - self.cur}")
        else:
            a(f"s_add_u32 m0, s{self.base}, {imm}")
        self.cur = imm

def dma(voff, srd_, soff, half=False, off=0):
    if OPT.get("nodma"):
        return
    if half: a("s_mov_b32 exec_hi, 0")
    a(f"buffer_load_dwordx4 v{voff}, s[{srd_}:{srd_+3}], {soff} offen offset:{off} lds")
    if half: a("s_mov_b32 exec_hi, -1")

def rd_lanes(aw, ash, t0, t1):
    a(f"""
v_lshrrev_b32 v{t0}, 5, v0
v_lshlrev_b32 v{t0}, 4, v{t0}
v_bfe_u32 v{t1}, v0, 4, 1
v_lshl_add_u32 v{t0}, v{t1}, 2, v{t0}
v_bfe_u32 v{t1}, v0, 2, 2
v_add_u32 v{t0}, v{t0}, v{t1}
v_mul_u32_u24 v{t0}, 160, v{t0}
v_and_b32 v{t1}, 3, v0
v_lshl_add_u32 v{aw}, v{t1}, 3, v{t0}
""")
    if ash:
        a(f"v_bfe_u32 v{t1}, v0, 1, 1\nv_mul_u32_u24 v{t1}, {SLAB2 - 16}, v{t1}\nv_add_u32 v{t1}, 128, v{t1}\nv_add_u32 v{ash}, v{t1}, v{aw}")

def x_lane(d0, d1, tmp):
    a(f"""
v_lshrrev_b32 v{d0}, 4, v0
v_bfe_u32 v{tmp}, v0, 1, 3
v_xor_b32 v{d0}, v{d0}, v{tmp}
v_and_b32 v{tmp}, 15, v0
v_lshlrev_b32 v{tmp}, 7, v{tmp}
v_lshl_add_u32 v{d0}, v{d0}, 4, v{tmp}
v_xor_b32 v{d1}, 64, v{d0}
""")

def slab_src(dst, j, stride, base):
    a(f"""
v_add_u32 v1, {64*j}, v0
v_mul_u32_u24 v2, 6554, v1
v_lshrrev_b32 v2, 16, v2
v_mad_i32_i24 v1, v2, -10, v1
""")
    a("v_bfe_u32 v3, v2, 2, 1\nv_bfe_u32 v4, v2, 3, 1\nv_sub_u32 v3, v3, v4\nv_lshl_add_u32 v2, v3, 2, v2")
    a(f"""
v_mul_u32_u24 v2, {stride}, v2
v_lshl_add_u32 v2, v1, 4, v2
v_add_u32 v1, 7, v1
v_lshrrev_b32 v1, 4, v1
v_lshl_add_u32 v2, v1, 23, v2
v_add_u32 v{dst}, s{base}, v2
""")

def head_of(dst, src):
    a(f"v_mul_u32_u24 v{dst}, 57, v{src}\nv_lshrrev_b32 v{dst}, 10, v{dst}")

sOC, sKC, sFO, sFK = 92, 94, 96, 97

def arrive_wait(addr, target, label, arrive=True):
    if arrive:
        a(f"s_mov_b32 s{sT}, 1\ns_atomic_add s{sT}, s[{addr}:{addr+1}], 0 glc\ns_waitcnt lgkmcnt(0)\ns_cmp_ge_u32 s{sT}, {target-1}\ns_cbranch_scc1 {label}_x")
    a(f"""
s_mov_b32 s{sT3}, 0x20000
{label}:
s_mov_b32 s{sT}, 0
s_atomic_add s{sT}, s[{addr}:{addr+1}], 0 glc
s_waitcnt lgkmcnt(0)
s_sub_u32 s{sT3}, s{sT3}, 1
s_cbranch_scc1 {label}_x
s_cmp_ge_u32 s{sT}, {target}
s_cbranch_scc0 {label}
{label}_x:
""")

def flag_load(dst, offreg):
    a(f"s_load_dword s{dst}, s[{SDBG}:{SDBG+1}], s{offreg}")

def flag_check(val, offreg, label):
    a(f"""
s_mov_b32 s{sT3}, 0x20000
{label}:
s_waitcnt lgkmcnt(0)
s_cmp_lg_u32 s{val}, 0
s_cbranch_scc1 {label}_x
s_sub_u32 s{sT3}, s{sT3}, 1
s_cbranch_scc1 {label}_x
s_load_dword s{val}, s[{SDBG}:{SDBG+1}], s{offreg} glc
s_branch {label}
{label}_x:
""")

SLAB2 = 5136
A_WSLOT, A_XSLOT = 15392, 18432
A_X0 = 5 * A_WSLOT
A_EX = A_X0 + 3 * A_XSLOT
B_KVSLOT, B_XSLOT = 10272, 16384
B_X0 = 5 * B_KVSLOT
B_EX = B_X0 + 3 * B_XSLOT
B_KVOP = 132256
B_STG = B_EX + 40960
B_DUMP, B_LCNT = B_STG + 5504, B_STG + 5888
R1 = 148480
def wq_slot(p):
    if p < 3: return R1 + 5120 * p
    if p < 6: return 5120 * (p - 3)
    if p == 6: return 46080
    if p < 12: return B_X0 + 5120 * (p - 7)
    return 15360 + 5120 * (p - 12)
WOC = 6144
R2 = 77824
WO = [R1, R1 + WOC] + [R2 + WOC * n for n in range(8)] + [0, WOC] + [15360 + WOC * n for n in range(6)]
P_TR = 52224
SPLITS = {(1, 0): sG0, (2, 0): sG0, (2, 1): sG0, (3, 0): sG01, (3, 1): sG0}

VD = 16
VWO = 26
sRW, sRX = 90, 91

def hstamp(i):
    if OPT.get("fine") == 4:
        a(f"s_memrealtime s[{sST+2*i}:{sST+2*i+1}]")

def w_head():
    a(f"""
L_W0:
s_mul_i32 s{sT}, s{sV}, {16*3456}
s_mul_i32 s{sT2}, s{sHG}, 144
s_add_u32 s{sT}, s{sT}, s{sT2}
s_mul_i32 s{sT2}, s{sBR}, 1152
s_add_u32 s{sT}, s{sT}, s{sT2}
""")
    for j in range(3):
        slab_src(VD + j, j, 3456, sT)
    a(f"s_mul_i32 s42, s{sV}, 2560\ns_mov_b32 m0, s42\ns_mov_b32 s{sT3}, 0")
    hstamp(10)
    a("s_waitcnt lgkmcnt(0)")
    hstamp(13)
    srd(SW, 38, 1990656)
    D = SLAB2 - 1152
    a("L_W0l:")
    pos = 0
    for sl, j in ((0, 0), (0, 1), (1, 0), (1, 1), (0, 2), (1, 2), (2, 2), (2, 0), (2, 1)):
        tgt = D * sl + 1024 * j
        if tgt != pos:
            a(f"s_addk_i32 m0, {tgt - pos}")
        pos = tgt
        if (sl, j) == (0, 2): a("s_mov_b32 exec_hi, 0")
        if (sl, j) == (2, 2): a(f"s_cmp_lg_u32 s{sBR}, 0\ns_cbranch_scc1 L_W0b")
        if (sl, j) == (2, 0): a("s_mov_b32 exec_hi, -1")
        dma(VD + j, SW, f"s{sRW}", off=1152 * sl)
    a(f"""
s_addk_i32 m0, {A_WSLOT - pos - (B_KVSLOT - (2*D + 2048))}
L_W0b:
s_mov_b32 exec_hi, -1
s_addk_i32 m0, {B_KVSLOT - (2*D + 2048)}
s_cmp_lg_u32 s{sT3}, 0
s_cbranch_scc1 L_W0x
s_mov_b32 s{sT3}, 1
s_add_u32 s{sRW}, s{sRW}, {32*3456}
s_branch L_W0l
L_W0x:
""")
    hstamp(11)
    a(f"s_cmp_eq_u32 s{sBR}, 0\ns_cbranch_scc1 L_AW1\ns_branch L_BW1")

def w_issue(kind, c, m):
    slot = (c % 5) * (A_WSLOT if kind == "A" else B_KVSLOT)
    n = 3 if kind == "A" else 2
    if c:
        a(f"s_add_u32 s{sRW}, s{sRW}, {32*3456}\ns_cmp_eq_u32 s{sRW}, {18*32*3456}\ns_cselect_b32 s{sRW}, 0, s{sRW}")
    order = [(sl, j) for sl in range(n) for j in range(2)] + [(sl, 2) for sl in range(n)]
    for sl, j in order:
        m.set(slot + (SLAB2 - 1152) * sl + 1024 * j)
        if (sl, j) == (0, 2):
            a("s_mov_b32 exec_hi, 0")
        dma(VD + j, SW, f"s{sRW}", off=1152 * sl)
    a("s_mov_b32 exec_hi, -1")
    return 3 * n

def wq_issue(p, m):
    a(f"s_add_u32 s{sK}, s{sRW}, {(p+1)*32*3456}\ns_cmp_ge_u32 s{sK}, {18*32*3456}\ns_cselect_b32 s{sT}, {18*32*3456}, 0\ns_sub_u32 s{sK}, s{sK}, s{sT}")
    for j in range(3):
        m.set(wq_slot(p) + 1024 * j)
        dma(VD + 3 + j, SW, f"s{sK}", half=(j == 2))
    return 3

def x_head():
    a(f"""
s_cmp_eq_u32 s{sBR}, 0
s_cselect_b32 s{sT2}, 1, 0
s_lshl_b32 s{sT3}, 1152, s{sT2}
v_lshrrev_b32 v1, 3, v0
v_mul_u32_u24 v1, s{sT3}, v1
v_lshrrev_b32 v2, 4, v0
v_lshl_add_u32 v2, s{sV}, 2, v2
v_and_b32 v3, 7, v0
v_xor_b32 v2, v2, v3
v_lshl_add_u32 v1, v2, 4, v1
s_mul_i32 s{sT}, s{sRB}, {128*1152}
v_add_u32 v1, s{sT}, v1
s_lshl_b32 s43, s{sT3}, 4
s_mul_i32 s{sT}, s{sV}, s{sT3}
s_lshl_b32 s{sT}, s{sT}, 3
v_add_u32 v{VD}, s{sT}, v1
s_mul_i32 s{sT3}, s{sV}, 1152
s_add_u32 s{sT3}, s{sT3}, {15*1152}
v_subrev_u32 v{VD+8}, s{sT3}, v1
s_sub_u32 s{sT3}, {17*1152}, s{sT}
s_add_u32 s{sT}, s{sT}, {64*1152}
s_cmp_eq_u32 s{sBR}, 0
s_cselect_b32 s{sT}, s{sT3}, s{sT}
v_add_u32 v{VD+4}, s{sT}, v1
s_movk_i32 s{sT}, {(A_X0 - B_X0)}
s_cselect_b32 s{sT}, s{sT}, 0
s_lshl_b32 s42, s{sV}, 10
s_add_u32 s{sT}, s{sT}, s42
s_add_u32 m0, s{sT}, {B_X0}
""")
    for q in (1, 2, 3):
        a(f"v_add_u32 v{VD+q}, s43, v{VD+q-1}\nv_add_u32 v{VD+4+q}, s43, v{VD+3+q}")
    a(f"s_mov_b32 s{sT3}, 0")
    hstamp(10)
    a("s_waitcnt lgkmcnt(0)")
    hstamp(13)
    srd(SX, 36, 2359296)
    a("L_X0l:")
    for q in range(9):
        if q == 8:
            a(f"s_cbranch_scc0 L_X0b")
        dma(VD + q, SX, f"s{sRX}")
        a("s_addk_i32 m0, 2048")
        a(f"s_cmp_eq_u32 s{sBR}, 0" if q == 7 else "s_nop 0")
    a(f"""
L_X0b:
s_cmp_lg_u32 s{sT3}, 0
s_cbranch_scc1 L_X0x
s_mov_b32 s{sT3}, 1
s_addk_i32 s{sRX}, 128
s_cmpk_eq_u32 s{sRX}, 1152
s_cselect_b32 s{sRX}, 0, s{sRX}
s_branch L_X0l
L_X0x:
""")
    hstamp(11)
    a(f"s_cmp_eq_u32 s{sBR}, 0\ns_cbranch_scc1 L_AX1\ns_branch L_BX1")

def karg_rest():
    if OPT["stamps"]:
        for i in range(1, 10 if OPT.get("fine") == 4 else 14):
            a(f"s_mov_b32 s{sST+2*i}, 0")
    a(f"""
s_mul_i32 s{sT}, s{sBR}, 24
s_add_u32 s{sT}, s{sT}, 16
s_load_dwordx2 s[40:41], s[0:1], s{sT}
s_load_dwordx4 s[44:47], s[0:1], 48
s_load_dwordx2 s[48:49], s[0:1], 64
s_mov_b32 s{sG0}, 0xffff
s_mov_b32 s{sG0+1}, 0
s_mov_b32 s{sG01}, -1
s_mov_b32 s{sG01+1}, 0
""")

def x_issue(kind, c, m):
    nq, h, x0, xs = (9, 5, A_X0, A_XSLOT) if kind == "A" else (8, 4, B_X0, B_XSLOT)
    st = (c + 1) // 2
    if st > 8:
        return 0
    qs = range(nq) if c == 0 else (range(h) if c % 2 else range(h, nq))
    if c % 2:
        a(f"s_addk_i32 s{sRX}, 128\ns_cmpk_eq_u32 s{sRX}, 1152\ns_cselect_b32 s{sRX}, 0, s{sRX}")
    for q in qs:
        m.set(x0 + (st % 3) * xs + 2048 * q)
        a("s_nop 0")
        dma(VD + q, SX, f"s{sRX}")
    return len(qs)

def out_cols(sb, fo, lim):
    a(f"""
s_and_b32 s{sT}, s{sHG}, 3
s_lshl_b32 s{sT2}, s{sT}, 3
s_lshr_b32 s{sb}, 0x07050200, s{sT2}
s_and_b32 s{sb}, s{sb}, 0xff
s_lshr_b32 s{sT2}, s{sHG}, 2
s_mul_i32 s{sT2}, s{sT2}, 9
s_add_u32 s{sb}, s{sb}, s{sT2}
s_lshl_b32 s{sb}, s{sb}, 6
s_cmp_eq_u32 s{sT}, 1
s_cselect_b32 s{fo}, 64, 0
s_cmp_lt_u32 s{sT}, 2
s_cselect_b32 s{lim}, 12, 8
""")

def wo_setup(quad):
    out_cols(sM, 55, 56)
    for j in range(6):
        a(f"""
v_add_u32 v1, {64*j}, v0
v_mul_u32_u24 v2, 5462, v1
v_lshrrev_b32 v2, 16, v2
v_mad_i32_i24 v1, v2, -12, v1
v_bfe_u32 v3, v2, 2, 1
v_lshlrev_b32 v4, 1, v3
v_xor_b32 v1, v1, v4
v_cmp_gt_u32 vcc, s56, v1
v_lshl_add_u32 v1, v1, 4, s{sM}
v_mov_b32 v4, {1 << 23}
v_cndmask_b32 v1, v4, v1, vcc
v_and_b32 v4, 3, v2
v_lshl_add_u32 v5, v3, 2, v4
v_mul_u32_u24 v3, 72, v3
v_add_u32 v4, v3, v4
v_bfe_u32 v3, v2, 3, 1
v_lshl_add_u32 v5, v3, 4, v5
v_lshl_add_u32 v4, v3, 2, v4
v_bfe_u32 v3, v2, 4, 1
v_lshl_add_u32 v5, v3, 3, v5
v_mul_u32_u24 v3, 144, v3
v_add_u32 v4, v3, v4
v_mul_u32_u24 v5, 1152, v5
v_add_u32 v{VWO+j}, v5, v1
v_mul_u32_u24 v4, 1152, v4
v_add_u32 v{VWO+6+j}, v4, v1
""")
    a(f"s_and_b32 s55, s{sWAVE}, 3\ns_lshl_b32 s57, s55, 3")
    rho(56)
    a(f"s_add_u32 s56, s56, s{55 if quad else sV}")

def rho(dst):
    a(f"s_lshl_b32 s{dst}, s{sRB}, 1\ns_add_u32 s{dst}, s{dst}, s{sHG}\ns_lshl_b32 s{dst}, s{dst}, 1")

def wo_chunk(left, fadd):
    if left:
        a(f"s_mul_i32 s{sK}, s{sV}, {288*1152}\ns_add_u32 s{sK}, s{sK}, {64*1152}")
    else:
        a(f"""
s_add_u32 s{sT}, s56, {fadd}
s_bfe_u32 s{sK}, s{sT}, 0x30001
s_mul_i32 s{sK}, s{sK}, {72*1152}
s_bitcmp1_b32 s{sT}, 0
s_cselect_b32 s{sT}, {32*1152}, 0
s_add_u32 s{sK}, s{sK}, s{sT}
""")
    for j in range(6):
        dma(VWO + (6 if left else 0) + j, SWO, f"s{sK}")
        if j < 5:
            a("s_addk_i32 m0, 1024")
    return 6

def wo_issue(q):
    packed = sum((WO[2 + 4*q + w] // 1024) << (8 * w) for w in range(4))
    a(f"s_lshr_b32 s{sT}, {packed}, s57\ns_and_b32 s{sT}, s{sT}, 0xff\ns_lshl_b32 m0, s{sT}, 10")
    return wo_chunk(False, 4*q)

def wo_pair(g):
    a(f"s_mul_i32 s{sT}, s{sV}, {WO[2*g+1] - WO[2*g] & 0xffffffff}\ns_add_u32 m0, s{sT}, {WO[2*g]}")
    return wo_chunk(g == 0, 2*g - 2)

def sync_setup():
    a(f"""
s_lshl_b32 s{sT}, s{sBR}, 4
s_add_u32 s{sT}, s{sT}, s{sRB}
s_lshl_b32 s{sT2}, s{sT}, 8
s_add_u32 s{sT2}, s{sT2}, {WS_CNT}
s_add_u32 s{sOC}, s{SWS}, s{sT2}
s_addc_u32 s{sOC+1}, s{SWS+1}, 0
s_lshl_b32 s{sT}, s{sT}, 2
s_add_u32 s98, s{sT}, 32
s_lshl_b32 s99, s{sHG}, 2
s_mul_i32 s{sT2}, s{sHG}, {KV_ST}
s_add_u32 s{sT2}, s{sT2}, {WS_KV + 6144}
s_add_u32 s{sKC}, s{SWS}, s{sT2}
s_addc_u32 s{sKC+1}, s{SWS+1}, 0
""")

def loader_tail(tag, late=None):
    sig = tag != "BW"
    if sig:
        flag_check(sFO, 98, f"L_{tag}_fo")
    a("s_barrier")
    stamp()
    if sig:
        a(f"s_cmp_eq_u32 s{sWAVE}, 6\ns_cbranch_scc0 L_{tag}_na\ns_mov_b32 s96, 1\ns_atomic_add s96, s[{sOC}:{sOC+1}], 0 glc\nL_{tag}_na:")
    if late:
        late()
    if sig:
        a(f"s_cmp_eq_u32 s{sWAVE}, 6\ns_cbranch_scc0 L_{tag}_oc_x")
        a(f"s_waitcnt lgkmcnt(0)\ns_cmp_ge_u32 s96, 7\ns_cbranch_scc1 L_{tag}_oc_x")
        arrive_wait(sOC, 8, f"L_{tag}_oc", False)
    a("s_waitcnt vmcnt(0)")
    stamp()
    a("s_barrier")
    stamps_out()
    a("s_endpgm")

def spread(setup, i, n):
    per = -(-len(setup) // n)
    a("s_cmp_eq_u32 s59, 1")
    a.lines += setup[per*i:per*(i+1)]
    a("s_cselect_b32 s59, 1, 0")

def captured(fn):
    mark = len(a.lines)
    fn()
    out_ = a.lines[mark:]
    del a.lines[mark:]
    return out_

def att_masks(MC, MP, MPF, PM, t):
    a(f"""
s_lshr_b32 s{sT}, s{sWAVE}, 1
s_lshl_b32 s{sT}, s{sT}, 3
v_and_b32 v{t}, 15, v0
v_xor_b32 v{t}, s{sT}, v{t}
v_lshrrev_b32 v{t+1}, 4, v0
v_lshlrev_b32 v{t+1}, 2, v{t+1}
v_xor_b32 v{t+1}, s{sT}, v{t+1}
v_sub_u32 v{t}, v{t}, v{t+1}
v_mov_b32 v{t+2}, {NEG}
s_and_b32 s{sT}, s{sWAVE}, 1
s_or_b32 s{sT}, s{sT}, s{sRB}
s_cmp_eq_u32 s{sT}, 0
s_cselect_b64 s[42:43], -1, 0
""")
    for r in range(4):
        a(f"""
v_subrev_u32 v{t+1}, {r}, v{t}
v_cmp_gt_u32 vcc, 8, v{t+1}
v_cndmask_b32 v{MC+r}, v{t+2}, 0, vcc
v_cmp_gt_i32 vcc, -8, v{t+1}
v_cndmask_b32 v{MP+r}, v{t+2}, 0, vcc
v_cndmask_b32 v{MPF+r}, v{MP+r}, v{t+2}, s[42:43]
v_cmp_lt_i32 vcc, -1, v{t+1}
v_mov_b32 v{t+3}, {'0xffff' if r % 2 == 0 else '0xffff0000'}
v_cndmask_b32 v{t+3}, 0, v{t+3}, vcc
""")
        a(f"v_mov_b32 v{PM + r//2}, v{t+3}" if r % 2 == 0 else f"v_or_b32 v{PM + r//2}, v{PM + r//2}, v{t+3}")

def a_loader(kind):
    a(f"L_A{kind}1:")
    m = M0(42)
    issue = (lambda c: w_issue("A", c, m)) if kind == "W" else (lambda c: x_issue("A", c, m))
    cnt = {1: 9, 2: issue(2)} if kind == "W" else {1: 5, 2: 4}
    karg_rest()
    a("s_mov_b32 s59, 0")
    stamp()
    x_lane(8, 9, 1)
    rd_lanes(10, 12 if kind == "W" else None, 1, 2)
    if kind == "X":
        a(f"v_add_u32 v12, {2*SLAB2 + 128}, v10")
    a(f"""
v_add_u32 v8, {A_X0 + 8*2048}, v8
v_add_u32 v9, {A_X0 + 8*2048}, v9
s_lshl_b32 s{sT}, s{sV}, 6
s_add_u32 s{sT}, s{sT}, {SLAB2 if kind == 'W' else 2*SLAB2}
v_add_u32 v10, s{sT}, v10
v_add_u32 v13, {4*A_WSLOT}, v10
v_add_u32 v15, {4*A_WSLOT}, v12
""")
    def setup():
        srds_rest(); sync_setup(); wo_setup(True)
        a(f"""
s_lshl_b32 s{sT}, s{sV}, 10
s_add_u32 s{sT}, s{sT}, {A_EX + (0 if kind == 'W' else 2560)}
v_lshlrev_b32 v1, 3, v0
v_add_u32 v6, s{sT}, v1
v_add_u32 v7, {A_EX + (2048 if kind == 'W' else 4608)}, v1
""")
    setup = captured(setup)
    a(f"s_waitcnt vmcnt({cnt[1] + cnt[2]})\ns_barrier")
    stamp()
    extra = 0
    for i in range(-1, 17):
        ks = i + 1
        slot = ks % 5
        off = 0 if slot == 4 else slot * A_WSLOT
        ad = (13, 15) if slot == 4 else (10, 12)
        a(f"ds_read_b128 v[40:43], v{8 + ks % 2} offset:{(ks//2 % 3)*A_XSLOT}")
        for j in range(2):
            a(tr(44 + 4*j, ad[0], off + 32*j)); a(tr(46 + 4*j, ad[0], off + 32*j + 1280))
        a(f"s_cmp_eq_u32 s{sV}, 0\ns_cbranch_scc0 L_A{kind}_r{ks}")
        a(tr(52, ad[1], off)); a(tr(54, ad[1], off + 1280))
        a(f"L_A{kind}_r{ks}:")
        if i + 4 <= 17:
            cnt[i+4] = issue(i + 4)
        a("s_waitcnt lgkmcnt(0)")
        for j in range(3):
            c = 60 + 4*j if ks else "0"
            if j == 2:
                a(f"s_cmp_eq_u32 s{sV}, 0\ns_cbranch_scc0 L_A{kind}_m{ks}")
            a(mf(60 + 4*j, 44 + 4*j, 40, c) if kind == "W" else mf(60 + 4*j, 40, 44 + 4*j, c))
        a(f"L_A{kind}_m{ks}:")
        if 1 <= i < 11:
            spread(setup, i - 1, 10)
        if i == 14 and kind == "W":
            extra += wo_pair(0)
        if i == 15:
            extra += wo_issue(0)
        if i + 1 <= 16:
            left = sum(cnt.get(c, 0) for c in range(i + 3, min(i + 4, 17) + 1)) + extra
            a(f"s_waitcnt vmcnt({left})\ns_barrier")
    for j in range(3):
        a(cv(44 + 2*j, 60 + 4*j)); a(cv(45 + 2*j, 62 + 4*j))
    if kind == "W":
        a("v_mov_b32 v50, 0\nv_mov_b32 v51, 0")
        a("v_permlane32_swap_b32 v48, v50\nv_permlane32_swap_b32 v49, v51")
    a("ds_write_b64 v6, v[44:45]\nds_write_b64 v6, v[46:47] offset:512")
    a(f"s_cmp_eq_u32 s{sV}, 0\ns_cbranch_scc0 L_A_att")
    a(f"ds_write_b64 v7, {'v[50:51]' if kind == 'W' else 'v[48:49]'}")
    if kind == "W":
        a("s_branch L_A_att")
        return
    a("L_A_att:")
    stamp()
    a("s_waitcnt lgkmcnt(0)\ns_barrier")
    stamp()
    flag_load(sFO, 98)
    wo_issue(1); wo_issue(2); wo_issue(3)
    stamp()
    loader_tail("A")

def o_store_addr(vfull, vleft, tmp, left_lo, wreg=sWAVE):
    a(f"""
s_lshl_b32 s{sT}, s{sRB}, 3
s_lshl_b32 s{sT2}, s{wreg}, 1
s_add_u32 s{sT}, s{sT}, s{sT2}
s_mul_i32 s{sT}, s{sT}, 18432
s_mul_i32 s{sT2}, s{sBR}, {O_BR}
s_add_u32 s58, s{sT}, s{sT2}
s_lshl_b32 s{sT2}, s{sHG}, 11
s_add_u32 s{sT2}, s{sT2}, s58
v_lshl_add_u32 v{vfull}, v0, 4, s{sT2}
s_lshr_b32 s{sT2}, s{sHG}, 2
s_add_u32 s{sT2}, s{sT2}, 16
s_lshl_b32 s{sT2}, s{sT2}, 10
s_add_u32 s{sT}, s58, s{sT2}
s_and_b32 s{sT2}, s{sHG}, 3
s_lshl_b32 s{sT2}, s{sT2}, 8
s_add_u32 s{sT}, s{sT}, s{sT2}
v_and_b32 v{vleft}, 15, v0
v_lshlrev_b32 v{vleft}, 4, v{vleft}
v_bfe_u32 v{tmp}, v0, 4, 1
v_lshl_add_u32 v{vleft}, v{tmp}, 3, v{vleft}
v_add_u32 v{vleft}, s{sT}, v{vleft}
v_mov_b32 v{tmp}, {OOB}
""")
    x, y = (tmp, vleft) if left_lo else (vleft, tmp)
    a(f"v_cndmask_b32 v{vleft}, v{x}, v{y}, s[{sG01}:{sG01+1}]")

FLAGS = ["", " nt", " sc1", " sc1 nt", " sc0 sc1"]
def o_store(of, vfull, vleft, rt):
    so = f"s{sK}" if rt else "0"
    fl = FLAGS[OPT.get("ost", 2)]
    if rt:
        a(f"s_movk_i32 s{sK}, 18432")
    a(f"buffer_store_dwordx4 {vr(of,4)}, v{vfull}, s[{SWS}:{SWS+3}], {so} offen{fl}")
    a(f"buffer_store_dwordx4 {vr(of+4,4)}, v{vfull}, s[{SWS}:{SWS+3}], {so} offen offset:1024{fl}")
    a(f"buffer_store_dwordx2 {vr(of+8,2)}, v{vleft}, s[{SWS}:{SWS+3}], {so} offen{fl}")

def init_stores(tag, with_kv):
    a(f"""
s_or_b32 s{sT}, s{sHG}, s{sWAVE}
s_cmp_eq_u32 s{sT}, 0
s_cselect_b32 s55, 1, 0
v_mov_b32 v20, 0
v_mov_b32 v21, 0
v_mov_b32 v22, 0
v_mov_b32 v23, 0
s_cbranch_scc0 L_{tag}_i1
s_lshl_b32 s{sT}, s{sBR}, 4
s_add_u32 s{sT}, s{sT}, s{sRB}
s_lshl_b32 s{sT}, s{sT}, 8
s_add_u32 s{sT}, s{sT}, {WS_CNT}
v_mov_b32 v24, s{sT}
buffer_store_dword v20, v24, s[{SWS}:{SWS+3}], 0 offen sc1
L_{tag}_i1:
""")
    if with_kv:
        a(f"""
s_or_b32 s{sT}, s{sRB}, s{sWAVE}
s_cmp_eq_u32 s{sT}, 0
s_cbranch_scc0 L_{tag}_i2
s_or_b32 s55, s55, 2
s_mul_i32 s{sT}, s{sHG}, {KV_ST}
s_add_u32 s{sT}, s{sT}, {WS_KV}
v_lshl_add_u32 v24, v0, 4, s{sT}
""")
        for j in range(7):
            a(f"s_movk_i32 s{sK}, {1024*j}\nbuffer_store_dwordx4 v[20:23], v24, s[{SWS}:{SWS+3}], s{sK} offen sc1")
        a(f"L_{tag}_i2:")

def init_flags(tag):
    a(f"""
s_waitcnt vmcnt(0)
s_cmp_eq_u32 s55, 0
s_cbranch_scc1 L_{tag}_f2
v_mov_b32 v20, 1
s_bitcmp1_b32 s55, 0
s_cbranch_scc0 L_{tag}_f1
s_lshl_b32 s{sT}, s{sBR}, 4
s_add_u32 s{sT}, s{sT}, s{sRB}
s_lshl_b32 s{sT}, s{sT}, 2
s_add_u32 s{sT}, s{sT}, 32
v_mov_b32 v24, s{sT}
buffer_store_dword v20, v24, s[{SDBG}:{SDBG+3}], 0 offen sc1
L_{tag}_f1:
s_bitcmp1_b32 s55, 1
s_cbranch_scc0 L_{tag}_f2
s_lshl_b32 s{sT}, s{sHG}, 2
v_mov_b32 v25, s{sT}
buffer_store_dword v20, v25, s[{SDBG}:{SDBG+3}], 0 offen sc1
L_{tag}_f2:
""")

def kstep(tiles, nxt_reads, first, waits):
    pend = list(first)
    for t, (m0_, m1_) in enumerate(tiles):
        if OPT.get("snake") and t % 2:
            m0_, m1_ = m1_, m0_
        if t in waits:
            a(waits[t])
        a(m0_)
        for x in pend: a(x)
        a(m1_)
        pend = []
        if nxt_reads:
            a(nxt_reads[t][0]); pend = [nxt_reads[t][1]]
    for x in pend: a(x)

def ring_loop(T, D, pair, wreads, xread, hook, last_gap=None):
    issued, mark, q = 0, {}, []
    def rd(key, x):
        nonlocal issued
        a(x); mark[key] = issued; issued += 1
    def feed(n):
        ks, t = divmod(n, T)
        if ks > 17: return
        if t == 0:
            if ks: q.append((None, "s_barrier"))
            q.extend(((ks, "x"), xread(ks, rt)) for rt in range(2))
        q.extend(((ks, t), x) for x in wreads(ks, t))
    def fill(k):
        for _ in range(k):
            while q and q[0][0] is None:
                a(q.pop(0)[1])
            if q: rd(*q.pop(0))
    for n in range(D):
        feed(n)
    fill(len(q))
    for n in range(18 * T):
        ks, t = divmod(n, T)
        hook(ks, t)
        assert not [k for k, _ in q if k in ((ks, t), (ks, "x"))]
        need = max(mark[(ks, t)], mark[(ks, "x")])
        a(f"s_waitcnt lgkmcnt({min(15, issued - 1 - need)})")
        feed(n + D)
        m0_, m1_ = pair(ks, t)
        a(m0_); fill(1)
        a(m1_); fill(2 if len(q) > 2 else 1)
        if last_gap and ks == 17:
            x = last_gap(t)
            if x: a(x); issued += 1

def a_consumer():
    acc = lambda t, rt: 144 + (t * 2 + rt) * 4
    wf = lambda t: 88 + 4 * t
    xf = lambda buf, rt: 72 + buf * 8 + rt * 4
    aW, aS, aWb, aSb, aX = 1, 2, 3, 4, 11
    vOF, vOL, vEXW, vEXR = 13, 14, 15, 16
    MC, MP, MPF, PM = 56, 60, 64, 68
    a("L_AC:")
    karg_rest()
    a("s_waitcnt lgkmcnt(0)")
    srds_rest()
    init_stores("AC", False)
    rd_lanes(aW, aS, 17, 18); x_lane(aX, aX + 1, 17)
    a(f"v_add_u32 v{aWb}, {4*A_WSLOT}, v{aW}\nv_add_u32 v{aSb}, {4*A_WSLOT}, v{aS}")
    a(f"""
s_lshl_b32 s{sT}, s{sWAVE}, 12
s_add_u32 s{sT}, s{sT}, {A_X0}
v_add_u32 v{aX}, s{sT}, v{aX}
v_add_u32 v{aX+1}, s{sT}, v{aX+1}
""")
    att_masks(MC, MP, MPF, PM, 17)
    o_store_addr(vOF, vOL, 17, True)
    a(f"""
s_lshr_b32 s{sT}, s{sWAVE}, 1
s_add_u32 s{sT}, s{sT}, 1
s_mul_i32 s{sT}, s{sT}, 5120
s_bitcmp1_b32 s{sWAVE}, 0
s_cselect_b32 s{sT3}, s{sT}, 0
v_lshlrev_b32 v17, 3, v0
v_add_u32 v17, {A_EX}, v17
v_add_u32 v{vEXW}, s{sT}, v17
v_add_u32 v{vEXR}, s{sT3}, v17
""")

    def wreads(ks, t):
        slot = ks % 5
        o = 0 if slot == 4 else slot * A_WSLOT
        ad = (aSb if slot == 4 else aS) if t == 4 else (aWb if slot == 4 else aW)
        if t != 4:
            o += 32 * t if t < 4 else SLAB2 + 32 * (t - 5) if t < 9 else 2 * SLAB2 + 32 * (t - 9)
        return [tr(wf(t), ad, o), tr(wf(t) + 2, ad, o + 1280)]
    xread = lambda ks, rt: f"ds_read_b128 {vr(xf(ks % 2, rt),4)}, v{aX + ks % 2} offset:{(ks//2 % 3)*A_XSLOT + rt*2048}"

    stamp()
    a("s_barrier")
    stamp()
    def pair(ks, t):
        c = lambda rt: acc(t, rt) if ks else "0"
        return [mf(acc(t, rt), wf(t), xf(ks % 2, rt), c(rt)) if t < 9 else mf(acc(t, rt), xf(ks % 2, rt), wf(t), c(rt)) for rt in range(2)]
    def hook(ks, t):
        if t == 0 and OPT.get("fine") == 2 and ks in (2, 5, 8, 11, 14):
            stamp()
        if (ks, t) == (3, 0):
            init_flags("AC")
    ring_loop(14, OPT.get("da", 4), pair, wreads, xread, hook)
    stamp()
    KP = lambda j: 18 + 10 * j
    QT = lambda rt, h: 88 + 16 * rt + 4 * h
    VP = lambda t, j: 120 + 6 * t + 2 * j if t < 4 else 48 + 2 * j
    ONE = 72
    def pack_kv(rt):
        o = []
        for q in range(2):
            o += [cv(QT(rt, 3) + 2 + q, acc(4, rt) + 2*q), f"v_mov_b32 v{KP(1+rt) + 8 + q}, 0"]
        for tau in range(4):
            o += [cv(KP(1+rt) + 2*tau + q, acc(5+tau, rt) + 2*q) for q in range(2)]
        o += [f"v_permlane32_swap_b32 v{QT(rt,3) + 2 + q}, v{KP(1+rt) + 8 + q}" for q in range(2)]
        for t in range(5):
            o += [cv(VP(t, 1+rt) + q, acc(9+t, rt) + 2*q) for q in range(2)]
        return o
    def pack_q(rt):
        o = []
        for t in range(4):
            for q in range(2):
                d = QT(rt, t) + q
                o.append(cv(d, acc(t, rt) + 2*q))
                if (t, q) in SPLITS:
                    m = SPLITS[(t, q)]; lo = QT(rt, t-1) + 2 + q
                    o += [f"v_cndmask_b32 v{lo}, 0, v{d}, s[{m}:{m+1}]", f"v_xor_b32 v{d}, v{d}, v{lo}"]
        return o + [f"v_mov_b32 v{QT(rt,0) + 3}, 0"]
    weave([], pack_kv(1))
    a(f"s_bitcmp1_b32 s{sWAVE}, 0\ns_cbranch_scc1 L_AC_nodump")
    for j in range(5):
        a(f"ds_write_b64 v{vEXW}, {vr(KP(2) + 2*j, 2)} offset:{512*j}")
        a(f"ds_write_b64 v{vEXW}, {vr(VP(j, 2), 2)} offset:{512*(5+j)}")
    a("L_AC_nodump:")
    weave([], pack_kv(0) + pack_q(1))
    a("s_waitcnt lgkmcnt(0)\ns_barrier")
    for j in range(5):
        a(f"ds_read_b64 {vr(KP(0) + 2*j, 2)}, v{vEXR} offset:{512*j}")
        a(f"ds_read_b64 {vr(VP(j, 0), 2)}, v{vEXR} offset:{512*(5+j)}")
    SC = lambda rt, h: (224 if rt else 184) + 8 * h
    MX = lambda rt: [76 + 4 * rt + h for h in range(4)]
    PT = lambda rt, h: 144 + 16 * rt + 4 * h
    def qk(rt):
        o = []
        for h in range(4):
            o += [mf(SC(rt, h), KP(1+rt) + 2*h, QT(rt, h), MC), mf(SC(rt, h) + 4, KP(rt) + 2*h, QT(rt, h), MP if rt else MPF)]
        return o
    def rowmax(rt):
        o = []
        for h in range(4):
            s = SC(rt, h); m = MX(rt)[h]
            o += [f"v_max_f32 v{s+r}, v{s+r}, v{s+4+r}" for r in range(4)]
            o += [f"v_max3_f32 v{m}, v{s}, v{s+1}, v{s+2}", f"v_max_f32 v{m}, v{m}, v{s+3}"]
        return o
    def xmax(rt):
        m = MX(rt)
        return [f"v_permlane32_swap_b32 v{m[0]}, v{m[1]}", f"v_permlane32_swap_b32 v{m[2]}, v{m[3]}",
                f"v_max_f32 v{m[0]}, v{m[0]}, v{m[1]}", f"v_max_f32 v{m[2]}, v{m[2]}, v{m[3]}",
                f"v_permlane16_swap_b32 v{m[0]}, v{m[2]}", f"v_max_f32 v{m[0]}, v{m[0]}, v{m[2]}",
                f"v_mul_f32 v{m[0]}, s{sT2}, v{m[0]}", f"v_mov_b32 v{m[2]}, v{m[0]}",
                f"v_permlane16_swap_b32 v{m[0]}, v{m[2]}", f"v_mov_b32 v{m[1]}, v{m[0]}", f"v_mov_b32 v{m[3]}, v{m[2]}",
                f"v_permlane32_swap_b32 v{m[0]}, v{m[1]}", f"v_permlane32_swap_b32 v{m[2]}, v{m[3]}"]
    def scale(rt):
        if OPT.get("pka", 2) < 2:
            return [f"v_fma_f32 v{SC(rt,h)+r}, v{SC(rt,h)+r}, s56, v{MX(rt)[h]}" for h in range(4) for r in range(4)]
        return [f"v_pk_fma_f32 {vr(SC(rt,h)+r,2)}, {vr(SC(rt,h)+r,2)}, s[56:57], {vr(MX(rt)[h] & ~1, 2)} op_sel:[0,0,{h%2}] op_sel_hi:[1,1,{h%2}]"
                for h in range(4) for r in (0, 2)]
    def probs(rt):
        o = []
        for h in range(4):
            s = SC(rt, h); p = PT(rt, h)
            o += [f"v_exp_f32 v{s+r}, v{s+r}" for r in range(4)]
            if h:
                o += split(rt, h - 1)
        return o + split(rt, 3)
    def split(rt, h):
        s = SC(rt, h); p = PT(rt, h); o = []
        for q in range(2):
            o += [cv(p + q, s + 2*q), f"v_and_b32 v{p+2+q}, v{p+q}, v{PM+q}", f"v_xor_b32 v{p+q}, v{p+q}, v{p+2+q}"]
        return o
    OB = lambda rt, t: (224 if rt else 184) + 4 * t
    OA = lambda rt, t: (224 if rt else 184) + 12 + 4 * t
    SM = lambda rt, h: 88 + 16 * rt + 4 * h
    OF = lambda rt: 18 + 10 * rt
    def pv(rt):
        o = [mf(SM(rt, h), ONE, PT(rt, h), "0") for h in range(4)]
        for t in range(5):
            if t < 4: o.append(mf(OB(rt, t), VP(t, rt), PT(rt, t), "0"))
            if t > 0: o.append(mf(OA(rt, t), VP(t, rt), PT(rt, t-1), "0"))
        return o
    def finish(rt, pk):
        o = [f"v_rcp_f32 v{SM(rt,h)}, v{SM(rt,h)}" for h in range(4)]
        for t in range(5):
            for q in range(2):
                d = OF(rt) + 2*t + q
                srcs = []
                if t < 4: srcs.append((OB(rt, t) + 2*q, SM(rt, t), d))
                if t == 4: srcs.append((OA(rt, t) + 2*q, SM(rt, 3), d))
                if (t, q) in SPLITS: srcs.append((OA(rt, t) + 2*q, SM(rt, t-1), 17))
                for x, inv, dd in srcs:
                    if pk:
                        o += [f"v_pk_mul_f32 {vr(x,2)}, {vr(x,2)}, {vr(inv,2)} op_sel_hi:[1,0]", cv(dd, x)]
                    else:
                        o += [f"v_mul_f32 v{x}, v{x}, v{inv}", f"v_mul_f32 v{x+1}, v{x+1}, v{inv}", cv(dd, x)]
                if (t, q) in SPLITS:
                    m = SPLITS[(t, q)]
                    o.append(f"v_cndmask_b32 v{d}, v{d}, v17, s[{m}:{m+1}]")
        return o
    a(f"s_mov_b32 s56, {f32(CSC)}\ns_mov_b32 s57, s56\ns_mov_b32 s{sT2}, {f32(-CSC)}")
    weave(qk(1), pack_q(0) + [f"v_mov_b32 v{ONE+j}, 0x3f803f80" for j in range(4)])
    a("s_waitcnt lgkmcnt(0)")
    weave(qk(0), rowmax(1))
    x1, x0 = xmax(1), xmax(0)
    r0 = rowmax(0)
    for i, x in enumerate(x1):
        a(x)
        for y in r0[2*i:2*i+2]: a(y)
    p1 = scale(1) + probs(1)
    for i, x in enumerate(x0):
        a(x)
        for y in p1[2*i:2*i+2]: a(y)
    if OPT.get("pka", 2) > 1:
        weave([], p1[2*len(x0):] + scale(0))
        weave(pv(1), probs(0))
    else:
        weave([], p1[2*len(x0):])
        weave(pv(1), scale(0) + probs(0))
    f1 = finish(1, False)
    f1p = finish(1, OPT.get('pka', 2) > 1)
    cutp = next(i for i, x in enumerate(f1p) if x.startswith(f"v_cvt_pk_bf16_f32 v{OF(1) + 3},")) + 1
    cutn = next(i for i, x in enumerate(f1) if x.startswith(f"v_cvt_pk_bf16_f32 v{OF(1) + 3},")) + 1
    weave(pv(0), f1[:cutn])
    weave([], f1p[cutp:])
    o_store(OF(1), vOF, vOL, 1)
    weave([], finish(0, OPT.get('pka', 2) > 0))
    o_store(OF(0), vOF, vOL, 0)
    stamp()
    a("s_branch L_P2")

def phi(r, n, t):
    o = [f"v_pk_fma_f32 {vr(t[j],2)}, {vr(r+j,2)}, s[56:57], v[14:15]" for j in range(0, n, 2)]
    for j in range(n):
        o += [f"v_exp_f32 v{t[j]}, v{t[j]} clamp", f"v_max_f32 v{r+j}, s{sT2}, v{r+j}"]
    return o + [f"v_pk_add_f32 {vr(r+j,2)}, {vr(r+j,2)}, {vr(t[j],2)}" for j in range(0, n, 2)]

def b_consumer():
    acc = lambda t, rt: 184 + (t * 2 + rt) * 4
    wf = lambda t: 148 + 4 * t
    xf = lambda ks, rt: 52 + ks * 8 + rt * 4 if ks < 12 else 36 + (ks % 2) * 8 + rt * 4
    aW, aS, aX = 1, 2, 6
    vOF, vOL, vEX = 8, 9, 10
    CK, CS = 28, 32
    a("L_BC:")
    karg_rest()
    a("s_waitcnt lgkmcnt(0)")
    srds_rest()
    init_stores("BC", True)
    rd_lanes(aW, aS, 17, 18); x_lane(aX, aX + 1, 17)
    a(f"""
s_lshl_b32 s{sT}, s{sWAVE}, 12
s_add_u32 s{sT}, s{sT}, {B_X0}
v_add_u32 v{aX}, s{sT}, v{aX}
v_add_u32 v{aX+1}, s{sT}, v{aX+1}
v_and_b32 v17, 15, v0
v_cmp_gt_u32 vcc, 8, v17
v_mov_b32 v18, {EPS}
s_mov_b64 s[42:43], vcc
s_mul_i32 s{sT}, s{sWAVE}, 10240
s_add_u32 s{sT}, s{sT}, {B_EX}
v_lshl_add_u32 v{vEX}, v0, 4, s{sT}
v_mov_b32 v14, {f32(-1e-6*LOG2E)}
v_mov_b32 v15, v14
s_mov_b32 s56, {f32(LOG2E)}
s_mov_b32 s57, s56
""")
    for r in range(4):
        a(f"v_mov_b32 v{CK+r}, v18\nv_cndmask_b32 v{CS+r}, 0, v18, vcc")
    o_store_addr(vOF, vOL, 17, False)

    def wreads(ks, t):
        o = (ks % 5) * B_KVSLOT
        if t != 4:
            o += 32 * t if t < 4 else SLAB2 + 32 * (t - 5)
        return [tr(wf(t), aS if t == 4 else aW, o), tr(wf(t) + 2, aS if t == 4 else aW, o + 1280)]
    xread = lambda ks, rt: f"ds_read_b128 {vr(xf(ks, rt),4)}, v{aX + ks % 2} offset:{(ks//2 % 3)*B_XSLOT + rt*2048}"

    stamp()
    a("s_barrier")
    stamp()
    pair = lambda ks, t: [mf(acc(t, rt), xf(ks, rt), wf(t), acc(t, rt) if ks else (CK if t < 4 else CS if t == 4 else "0")) for rt in range(2)]
    def hook(ks, t):
        if (ks, t) == (3, 0):
            init_flags("BC")
    reread = lambda t: f"ds_read_b128 {vr(wf(t),4)}, v{aX + t//2 % 2} offset:{(6 + t//4) % 3*B_XSLOT + t % 2*2048}" if t < 8 else None
    ring_loop(9, OPT.get("db", 4), pair, wreads, xread, hook, reread)
    stamp()
    a(f"s_mov_b32 s{sT2}, {EPS}\nv_mov_b32 v16, 0x3f803f80")
    wr = lambda reg, slot: f"ds_write_b128 v{vEX}, {vr(reg,4)} offset:{1024*slot}"
    pk = lambda d, s: [cv(d + j, s + 2*j) for j in range(4)]
    xq = lambda ks, rt: wf(2 * (ks - 12) + rt) if 12 <= ks < 16 else xf(ks, rt)
    for tau in range(4):
        weave([], pk(acc(5+tau, 0), acc(5+tau, 0)))
    V4, TM = acc(7, 1), [acc(5, 1) + j for j in range(4)] + [acc(6, 1) + j for j in range(4)]
    a("s_waitcnt lgkmcnt(0)\ns_barrier")
    weave([], pk(V4, acc(4, 0)) + [f"v_cndmask_b32 v{V4+j}, v{V4+j}, v16, s[42:43]" for j in range(4)])
    for tau in range(5):
        o = phi(acc(tau, 0), 8, TM)
        weave([], o[:8] + [wr(acc(5+tau, 0) if tau < 4 else V4, 5 + tau)] + o[8:] + pk(acc(tau, 0), acc(tau, 0)) + [wr(acc(tau, 0), tau)])
    a(f"v_add_u32 v3, {R1}, v{aW}\nv_add_u32 v4, 15360, v{aW}")
    a("s_waitcnt lgkmcnt(0)\ns_barrier")
    stamp()
    QA = lambda t, rt: 216 + (t * 2 + rt) * 4
    qf = lambda t: 184 + 4 * t
    def qreads(p, t):
        ad, o = (3, wq_slot(p) - R1) if p < 3 else (aW, wq_slot(p)) if p < 6 else (4, wq_slot(p) - 15360)
        return [tr(qf(t), ad, o + 32*t), tr(qf(t) + 2, ad, o + 32*t + 1280)]
    for t in range(5):
        for x in qreads(0, t): a(x)
    if OPT.get("x2", 1):
        a("s_barrier")
    for p in range(18):
        ks = p
        if p in (2, 11):
            if OPT.get("fine") == 3: stamp()
            a("s_barrier")
            if OPT.get("fine") == 3: stamp()
        tiles = [[mf(QA(t, rt), qf(t), xq(ks, rt), QA(t, rt) if p else CK) for rt in range(2)] for t in range(5)]
        if p < 17:
            nxt = [qreads(p + 1, t) for t in range(5)]
            kstep(tiles, nxt, [], {t: f"s_waitcnt lgkmcnt({7 if t else 8})" for t in range(5)})
        else:
            kstep(tiles, None, [], {t: f"s_waitcnt lgkmcnt({8 - 2*t})" for t in range(5)})
    stamp()
    PQ = lambda rt: 36 + 10 * rt
    KO = 84
    tup = {0: KO, 1: KO + 4, 2: KO + 12, 3: KO + 20, 4: KO + 28}
    ZO = KO + 32
    weave([], [f"v_mov_b32 v{r}, 0" for r in (tup[1]+4, tup[1]+5, tup[2]+4, tup[2]+5, tup[3]+4, tup[3]+5, ZO+8, ZO+9)])
    a(f"v_lshlrev_b32 v16, 3, v0\nv_add_u32 v16, {B_KVOP}, v16")
    for t in range(5):
        weave([], phi(QA(t, 0), 8, list(range(148, 156))) + [cv(PQ(rt) + 2*t + q, QA(t, rt) + 2*q) for rt in range(2) for q in range(2)])
    stamp()
    a("s_barrier")
    stamp()
    tid = lambda tau, taup: {-1: tau - 1, 0: 4 + tau, 1: 9 + tau}[taup - tau]
    rd = lambda d, slot: a(f"ds_read_b64 {vr(d,2)}, v16 offset:{512*slot}")
    for j, d in enumerate((ZO, ZO + 2, ZO + 4, ZO + 6, ZO + 10)):
        rd(d, 13 + j)
    rd(tup[0], tid(0, 0)); rd(tup[0] + 2, tid(1, 0))
    for t in (1, 2, 3):
        rd(tup[t], tid(t-1, t)); rd(tup[t] + 2, tid(t, t)); rd(tup[t] + 6, tid(t+1, t))
    rd(tup[4], tid(3, 4)); rd(tup[4] + 2, tid(4, 4))
    DN = lambda rt: 148 + 4 * rt
    NM = lambda rt, t: 184 + 20 * rt + 4 * t
    OF = lambda rt: 156 + 10 * rt
    a("s_waitcnt lgkmcnt(13)")
    for k, (zo, po) in enumerate(((0, 0), (4, 4), (8, 6))):
        for rt in range(2):
            a(mf(DN(rt), ZO + zo, PQ(rt) + po, DN(rt) if k else CK))
    a("s_waitcnt lgkmcnt(0)")
    def num(rt):
        o = [mf(NM(rt, t), tup[t], PQ(rt) + 2*(t-1), "0") for t in (1, 2, 3)]
        o += [mf(NM(rt, 0), tup[0], PQ(rt), "0"), mf(NM(rt, 4), tup[4], PQ(rt) + 6, "0")]
        return o + [mf(NM(rt, t), tup[t] + 4, PQ(rt) + 2*t, NM(rt, t)) for t in (1, 2, 3)]
    def fin(rt, packed):
        o = []
        for t in (0, 4, 1, 2, 3):
            for q in range(2):
                inv = DN(rt) + min(t, 3)
                if (t, q) in SPLITS:
                    m = SPLITS[(t, q)]
                    o.append(f"v_cndmask_b32 v17, v{DN(rt)+t}, v{DN(rt)+t-1}, s[{m}:{m+1}]")
                    inv = 17
                n = NM(rt, t) + 2*q
                o += [f"v_pk_mul_f32 {vr(n,2)}, {vr(n,2)}, {vr(inv & ~1,2)} op_sel:[0,{inv%2}] op_sel_hi:[1,{inv%2}]", cv(OF(rt) + 2*t + q, n)]
        return o
    weave(num(0), [], 0)
    weave(num(1), [f"v_rcp_f32 v{DN(rt)+h}, v{DN(rt)+h}" for rt in range(2) for h in range(4)], 1)
    for rt in range(2):
        weave([], fin(rt, True))
        o_store(OF(rt), vOF, vOL, rt)
    stamp()

def kv_index(wreg, VS, VG, VZ):
    a(f"s_cmp_eq_u32 s{wreg}, 0\ns_cselect_b32 s58, 4, s{wreg}")
    for slot in range(3):
        if slot == 0:
            a(f"s_lshl_b32 s{sT}, s58, 4\ns_sub_u32 s{sT2}, s{sT}, 16\ns_mov_b64 s[46:47], 0")
        elif slot == 1:
            a(f"s_lshl_b32 s{sT}, s{wreg}, 4\ns_mov_b32 s{sT2}, s{sT}")
        else:
            a(f"s_add_u32 s{sT2}, s{sT}, 16\ns_cmp_eq_u32 s{wreg}, 3\ns_cselect_b32 s{sT2}, 56, s{sT2}\ns_cselect_b64 s[46:47], s[44:45], 0")
        kv_tile(VS and VS + 2*slot, VG and VG + 2*slot, False)
    if VZ:
        kv_z(VZ)

def kv_tile(VS, VG, last):
    a(f"v_add_u32 v3, s{sT2}, v1")
    head_of(4, 3)
    a(f"v_mul_u32_u24 v5, 18, v4\nv_sub_u32 v3, v3, v5\nv_cndmask_b32 v4, v4, 7, s[46:47]")
    if last:
        a("v_cmp_eq_u32 vcc, 0, v1\nv_cndmask_b32 v4, v4, 3, vcc\nv_cndmask_b32 v3, v3, 18, vcc")
    for q in range(2):
        a(f"v_add3_u32 v5, v2, s{sT}, {2*q}")
        head_of(6, 5)
        a("v_cmp_eq_u32 vcc, v4, v6\nv_mad_u32_u24 v5, v5, 19, v3\nv_lshlrev_b32 v5, 2, v5")
        if VS:
            a(f"v_add_u32 v6, {B_STG}, v5\nv_cndmask_b32 v{VS+q}, v8, v6, vcc")
        if VG:
            a(f"v_add_u32 v6, s{sM}, v5\nv_cndmask_b32 v{VG+q}, v9, v6, vcc")

def kv_z(VZ):
    a("v_and_b32 v3, 3, v0")
    for q in range(2):
        a(f"v_add3_u32 v5, v2, s{sT}, {2*q}")
        head_of(6, 5)
        a(f"v_cmp_eq_u32 vcc, v3, v6\nv_mul_u32_u24 v5, 76, v5\nv_add3_u32 v5, v5, s{sM}, 64\nv_add_u32 v5, 8, v5\nv_cndmask_b32 v{VZ+q}, v9, v5, vcc")

def b_loader(kind):
    a(f"L_B{kind}1:")
    m = M0(42)
    issue = (lambda c: w_issue("B", c, m)) if kind == "W" else (lambda c: x_issue("B", c, m))
    cnt = {1: 6, 2: issue(2)} if kind == "W" else {1: 4, 2: 4}
    karg_rest()
    a("s_mov_b32 s59, 0")
    stamp()
    mark = len(a.lines)
    a("s_waitcnt lgkmcnt(0)")
    VS, VG, vZS, vEA, vE0, vEL, vLA, vGA, vLW = 72, 80, 98, 99, 100, 101, 102, 103, 105
    if kind == "W":
        for j in range(3):
            a(f"v_subrev_u32 v{VD+3+j}, 1152, v{VD+j}")
    srds_rest()
    if kind == "W":
        wo_setup(False)
    else:
        sync_setup()
    a(f"""
s_add_u32 s55, s{sV}, 2
s_mul_i32 s{sM}, s{sHG}, {KV_ST}
s_add_u32 s{sM}, s{sM}, {WS_KV}
v_and_b32 v1, 15, v0
v_lshrrev_b32 v2, 4, v0
v_lshlrev_b32 v2, 2, v2
v_cmp_gt_u32 s[44:45], 8, v1
v_lshlrev_b32 v8, 2, v0
v_add_u32 v8, {B_DUMP}, v8
v_mov_b32 v9, {OOB}
""")
    own = sV if kind == "X" else 55
    if kind == "X":
        kv_index(55, None, VG, VG + 6)
        a(f"s_movk_i32 s{sT}, 64")
        kv_z(10)
    kv_index(own, VS, VG + 8 if kind == "X" else None, VG + 14 if kind == "X" else None)
    a(f"""
v_add_u32 v5, s{sT}, v0
v_mul_u32_u24 v5, 76, v5
v_add_u32 v5, {B_STG + 72}, v5
v_cndmask_b32 v{vZS}, v8, v5, s[{sG0}:{sG0+1}]
v_lshlrev_b32 v{vEL}, 4, v0
v_add_u32 v{vEL}, {B_EX}, v{vEL}
s_lshl_b32 s{sT}, s{own}, 10
v_add_u32 v{vEA}, s{sT}, v{vEL}
s_lshl_b32 s{sT}, s58, 10
v_add_u32 v{vE0}, s{sT}, v{vEL}
""")
    if kind == "X":
        a(f"s_movk_i32 s{sT}, 64\ns_movk_i32 s{sT2}, 56\ns_mov_b64 s[46:47], s[44:45]")
        kv_tile(VS + 6, VG + 16, True)
        a(f"s_cmp_eq_u32 s{sV}, 0\ns_cselect_b64 s[46:47], -1, 0")
        for q in range(2):
            a(f"v_cndmask_b32 v{VS+6+q}, v8, v{VS+6+q}, s[46:47]\nv_cndmask_b32 v{VG+16+q}, v{10+q}, v{VG+16+q}, s[46:47]")
        a(f"""
v_lshlrev_b32 v5, 3, v0
v_add_u32 v5, {B_KVOP}, v5
s_lshl_b32 s{sT2}, s58, 9
s_sub_u32 s{sT2}, s{sT2}, 512
v_add_u32 v{vLW+2}, s{sT2}, v5
s_lshl_b32 s{sT2}, s{sV}, 9
v_add_u32 v{vLW+1}, s{sT2}, v5
v_add_u32 v{vLW}, 1024, v{vLW+1}
s_mul_i32 s{sT2}, s{sV}, {9*512}
v_add_u32 v{vLW+3}, s{sT2}, v5
s_mul_i32 s{sT}, s{sV}, 2816
v_lshl_add_u32 v{vLA}, v0, 2, s{sT}
v_add_u32 v{vGA}, s{sM}, v{vLA}
v_cmp_gt_u32 vcc, {5472 - 2560}, v{vLA}
v_cndmask_b32 v{vGA+1}, v9, v{vGA}, vcc
v_add_u32 v{vLA}, {B_STG}, v{vLA}
v_mov_b32 v4, 0
""")
    a(f"v_mov_b32 v10, {B_LCNT}\nv_mov_b32 v11, 1")
    if kind == "X":
        a("ds_write_b32 v10, v4\ns_waitcnt lgkmcnt(0)")
    setup = a.lines[mark:]
    del a.lines[mark:]
    a(f"s_waitcnt vmcnt({sum(cnt.values())})\ns_barrier")
    stamp()
    extra = 0
    for i in range(-1, 16):
        if i + 4 <= 17:
            cnt[i+4] = issue(i + 4)
        if 0 <= i < 9:
            spread(setup, i, 9)
        if i == 10 and kind == "X":
            flag_load(sFO, 98); flag_load(sFK, 99)
        if kind == "W" and i >= 14:
            extra += sum(wq_issue(p, m) for p in ((0, 1) if i == 14 else (2,)))
        left = sum(cnt.get(c, 0) for c in range(i + 3, min(i + 4, 17) + 1)) + extra
        a(f"s_waitcnt vmcnt({left})\ns_barrier")
    a("s_barrier")
    if kind == "W":
        for p in range(3, 12):
            wq_issue(p, m)
        a("s_waitcnt vmcnt(33)")
    else:
        flag_check(sFK, 99, "L_BX_fk")
    stamp()
    a("s_barrier")
    stamp()
    KT = lambda s: 40 + 4 * s
    RD = lambda src, j: 112 + 28 * src + 4 * j
    srcs = ((vEA, 0), (vE0, 0), (vE0, 4096), (vEA, 5120), (vEA, 6144), (vEL, 9216), (vEL, 4096))
    prods = ((1, 2), (0, 3), (0, 4), (6, 5), (5, 0))
    if kind == "W":
        srcs = ((vEA, 0), None, (vE0, 4096), (vEA, 5120), (vEA, 6144), (vEL, 9216))
        prods = ((0, 2), (0, 3), (0, 4), None, (5, 0))
    nr = sum(x is not None for x in srcs)
    for src in range(4):
        for j, x in enumerate(srcs):
            if x: a(f"ds_read_b128 {vr(RD(src, j),4)}, v{x[0]} offset:{src*10240 + x[1]}")
    for src in range(4):
        a(f"s_waitcnt lgkmcnt({min(15, nr*(3-src))})")
        for s_, x in enumerate(prods):
            if x: a(mf(KT(s_), RD(src, x[0]), RD(src, x[1]), KT(s_) if src else "0"))
    for s_ in range(4 if kind == "X" else 3):
        for r in range(4):
            a(f"ds_write_b32 v{VS + 2*s_ + r//2}, v{KT(s_)+r} offset:{76*(r%2)}")
    a(f"ds_write_b32 v{vZS}, v{KT(4)}")
    if OPT.get("x2", 1):
        a(f"s_waitcnt {'vmcnt(0) ' if kind == 'W' else ''}lgkmcnt(0)\ns_barrier")
    else:
        a("s_waitcnt lgkmcnt(0)\ns_mov_b64 exec, 1\nds_add_u32 v10, v11\ns_mov_b64 exec, -1")
    stamp()
    if kind == "W":
        a("s_barrier")
        for p in range(12, 18):
            wq_issue(p, m)
        early = range(1, 1 + OPT.get("nb0", 2))
        n = sum(wo_pair(g) for g in early)
        a(f"s_waitcnt vmcnt({n})\ns_barrier")
        for g in range(OPT.get('nb1', 4)):
            if g not in early: wo_pair(g)
        stamp()
        a("s_barrier")
        for g in range(OPT.get('nb1', 4), OPT.get('nb2', 6)): wo_pair(g)
        loader_tail("BW", lambda: [wo_pair(g) for g in range(OPT.get('nb2', 6), 9)])
        return
    if not OPT.get("x2", 1):
      a(f"""
s_mov_b32 s{sT3}, 0x400000
L_BX_st:
ds_read_b32 v2, v10
s_waitcnt lgkmcnt(0)
v_readfirstlane_b32 s{sT}, v2
s_sub_u32 s{sT3}, s{sT3}, 1
s_cbranch_scc1 L_BX_st_x
s_cmp_ge_u32 s{sT}, 4
s_cbranch_scc0 L_BX_st
L_BX_st_x:
""")
    for n in range(11):
        a(f"ds_read_b32 v{40+n}, v{vLA} offset:{256*n}")
    for n in range(11):
        a(f"s_waitcnt lgkmcnt({10-n})")
        a(f"buffer_atomic_add_f32 v{40+n}, v{vGA + (n == 10)}, s[{SWS}:{SWS+3}], 0 offen offset:{256*n}")
    stamp()
    a("s_barrier\ns_waitcnt vmcnt(0)")
    stamp()
    a(f"s_mov_b32 s97, 1\ns_atomic_add s97, s[{sKC}:{sKC+1}], 0 glc\ns_barrier\ns_waitcnt lgkmcnt(0)\ns_cmp_ge_u32 s97, 31\ns_cbranch_scc1 L_BX_kc_x")
    arrive_wait(sKC, 32, "L_BX_kc", False)
    stamp()
    for s_ in range(9):
        for r in range(4):
            a(f"buffer_load_dword v{112+4*s_+r}, v{VG + 2*s_ + r//2}, s[{SWS}:{SWS+3}], 0 offen offset:{76*(r%2)} sc1")
    dst = ((vLW, -1), (vLW, 4), (vLW, 9), (vLW, 13), (vLW + 2, 0), (vLW + 1, 4), (vLW + 1, 9), (vLW + 1, 13), (vLW + 3, 8))
    a(f"v_subrev_u32 v11, 512, v{vLW}")
    for s_, (ad, off) in enumerate(dst):
        a(f"s_waitcnt vmcnt({4*(8-s_)})")
        a(cv(40 + 2*s_, 112 + 4*s_)); a(cv(41 + 2*s_, 114 + 4*s_))
        a(f"ds_write_b64 v{11 if off < 0 else ad}, {vr(40+2*s_,2)} offset:{512*max(off, 0)}")
    a("s_waitcnt lgkmcnt(0)")
    stamp()
    a("s_barrier")
    loader_tail("BX")

def p2_consumer():
    OFR = lambda ks, c: 112 + ks * 8 + c * 4
    ORDER = [(0, 0), (0, 1), (4, 0), (1, 0), (1, 1), (2, 0), (2, 1), (5, 0), (3, 0), (3, 1)]
    ACC = lambda t, c: 72 + 4 * ORDER.index((t, c))
    wf = lambda t: 48 + 4 * t
    AD, vO, vTW, vTR, VS = 1, 5, 7, 10, 14
    a("L_P2:")
    nstamp[0] = 9 if OPT.get('fine') != 3 else 10
    out_cols(57, 59, 39)
    a(f"""
v_lshrrev_b32 v40, 5, v0
v_lshlrev_b32 v40, 4, v40
v_bfe_u32 v41, v0, 4, 1
v_lshl_add_u32 v40, v41, 2, v40
v_bfe_u32 v42, v0, 2, 2
v_add_u32 v40, v40, v42
v_mul_u32_u24 v40, 192, v40
v_and_b32 v42, 3, v0
v_lshl_add_u32 v40, v42, 3, v40
v_add_u32 v40, {R1}, v40
v_lshl_add_u32 v42, v41, 5, v40
v_xor_b32 v41, 1, v41
v_lshl_add_u32 v43, v41, 5, v40
v_add_u32 v{AD}, s59, v42
v_add_u32 v{AD+1}, s59, v43
s_lshl_b32 s{sT}, s59, 1
s_sub_u32 s38, 128, s{sT}
v_add_u32 v{AD+2}, s38, v42
v_add_u32 v{AD+3}, s38, v43
s_mul_i32 s{sT}, s59, 288
s_add_u32 s{sT2}, s58, s{sT}
v_lshl_add_u32 v{vO}, v0, 4, s{sT2}
s_sub_u32 s{sT2}, s58, s{sT}
s_add_u32 s{sT2}, s{sT2}, 18432
v_lshl_add_u32 v{vO+1}, v0, 4, s{sT2}
s_mul_i32 s40, s{sWAVE}, 5632
s_add_u32 s40, s40, {P_TR}
v_and_b32 v40, 15, v0
v_lshrrev_b32 v41, 4, v0
v_lshl_add_u32 v41, v41, 3, s40
v_mul_u32_u24 v42, 208, v40
v_add_u32 v42, v42, v41
v_add_u32 v{vTW}, s59, v42
v_add_u32 v{vTW+1}, s38, v42
v_mul_u32_u24 v42, 144, v40
v_add_u32 v42, 3328, v42
v_add_u32 v{vTW+2}, v42, v41
s_lshr_b32 s{sT}, s{sWAVE}, 1
s_and_b32 s{sT2}, s{sWAVE}, 1
s_lshl_b32 s{sT2}, s{sT2}, 5
s_lshl_b32 s{sT3}, s{sWAVE}, 5
s_cmp_eq_u32 s{sBR}, 0
s_cselect_b32 s42, s{sT}, 0
s_cselect_b32 s43, s{sT2}, s{sT3}
s_cselect_b32 s55, 1, 0
s_lshl_b32 s56, s42, 3
s_lshl_b32 s{sT}, s{sRB}, 7
s_add_u32 s42, s42, s{sT}
s_mul_i32 s{sT}, s{sBR}, 1152
s_add_u32 s57, s57, s{sT}
s_lshr_b32 s{sT}, s59, 2
s_add_u32 s41, s43, s{sT}
s_sub_u32 s43, s43, s{sT}
s_add_u32 s43, s43, 16
s_add_u32 s59, s59, s57
v_mov_b32 v43, {OOB}
""")
    for n in range(5):
        if n < 3:
            a(f"""
v_add_u32 v40, {64*n}, v0
v_mul_u32_u24 v41, 5462, v40
v_lshrrev_b32 v41, 16, v41
v_mad_i32_i24 v40, v41, -12, v40
v_mul_u32_u24 v42, 208, v41
v_lshl_add_u32 v42, v40, 4, v42
v_add_u32 v{vTR+n}, s40, v42
v_cmp_gt_u32 vcc, s39, v40
v_add_u32 v41, s41, v41
""")
        else:
            a(f"v_and_b32 v40, 7, v0\nv_lshrrev_b32 v41, 3, v0")
            if n == 3:
                a(f"v_mul_u32_u24 v42, 144, v41\nv_lshl_add_u32 v42, v40, 4, v42\nv_add_u32 v42, 3328, v42\nv_add_u32 v{vTR+3}, s40, v42")
            a(f"v_add3_u32 v41, v41, s43, {8*(n-3)}")
        a(f"""
v_xor_b32 v41, s56, v41
v_lshlrev_b32 v41, s55, v41
v_add_u32 v41, s42, v41
v_mul_u32_u24 v41, 2304, v41
v_lshl_add_u32 v41, v40, 4, v41
v_add_u32 v{VS+n}, s{57 if n < 3 else 59}, v41
""")
        if n < 3:
            a(f"v_cndmask_b32 v{VS+n}, v43, v{VS+n}, vcc")
    SO = [8, 9, 10, 11, 12, 13, 14, 15, 36]
    rho(37)
    a(f"s_movk_i32 s{SO[0]}, 16384")
    for j in range(1, 9):
        a(f"s_add_u32 s{sT}, s37, {2*j-2}\ns_and_b32 s{sT}, s{sT}, 15\ns_lshl_b32 s{SO[j]}, s{sT}, 10")
    if OPT.get("touch"):
        a(f"""
v_bfe_u32 v40, v0, 4, 1
v_and_b32 v41, 15, v0
s_lshl_b32 s{sT}, s{sHG}, 11
s_add_u32 s{sT}, s{sT}, s58
v_lshl_add_u32 v41, v41, 7, s{sT}
v_mul_u32_u24 v40, 18432, v40
v_add_u32 v42, v40, v41
v_bfe_u32 v40, v0, 1, 1
v_and_b32 v41, 1, v0
s_lshr_b32 s{sT}, s{sHG}, 2
s_lshl_b32 s{sT}, s{sT}, 10
s_and_b32 s{sT2}, s{sHG}, 3
s_lshl_b32 s{sT2}, s{sT2}, 8
s_add_u32 s{sT}, s{sT}, s{sT2}
s_add_u32 s{sT}, s{sT}, s58
s_add_u32 s{sT}, s{sT}, 16384
v_lshl_add_u32 v41, v41, 7, s{sT}
v_mul_u32_u24 v40, 18432, v40
v_add_u32 v40, v40, v41
v_cndmask_b32 v42, v40, v42, s[{sG01}:{sG01+1}]
""")
    a("s_waitcnt vmcnt(0)")
    if OPT.get("touch"):
        a(f"buffer_load_dword v19, v42, s[{SWS}:{SWS+3}], 0 offen")
    stamp()
    a("s_barrier\ns_barrier")
    stamp()
    oload = lambda ks, c: f"buffer_load_dwordx4 {vr(OFR(ks, c),4)}, v{vO + c}, s[{SWS}:{SWS+3}], s{SO[ks//2]} offen offset:{1024*(ks%2)}{FLAGS[OPT.get('old', 2)]}"
    base = lambda ks: R1 if ks < 2 else R2 if ks < 10 else 0
    adr = lambda t: AD + (2 if t >= 4 else 0) + t % 2
    moved = set()
    def wreads(ks, t):
        o = WO[ks] - base(ks) + (64 * (t // 2) if t < 4 else 0)
        pre = ""
        if ks and base(ks) != base(ks - 1) and (ks, adr(t)) not in moved:
            moved.add((ks, adr(t)))
            pre = f"v_add_u32 v{adr(t)}, {(base(ks) - base(ks - 1)) & 0xffffffff}, v{adr(t)}\n"
        return [pre + tr(wf(t), adr(t), o), tr(wf(t) + 2, adr(t), o + 1536)]
    todo = [oload(ks, c) for ks in range(18) for c in range(2)]
    done = 2 * OPT["p0"]
    weave([], todo[:done])
    issued, mark, pend, safe = 0, {}, [], -1
    def emit_read():
        nonlocal issued
        key, x = pend.pop(0)
        a(x); mark[key] = issued; issued += 1
    first = list(dict.fromkeys(t for t, c in ORDER))
    for t in first:
        pend += [((0, t), x) for x in wreads(0, t)]
    while pend: emit_read()
    stage = []
    for t, c in ORDER:
        d = 20 + 2 * ORDER.index((t, c))
        ad, off = (vTW + 2, 32*t) if c else (vTW, 32*t) if t < 4 else (vTW + 1, 32*(t - 4))
        stage += [cv(d, ACC(t, c)), cv(d + 1, ACC(t, c) + 2), f"ds_write_b64 v{ad}, {vr(d,2)} offset:{off}"]
    COVER = {0: {}, 2: {0: (0, 4, 1), 5: (2, 5, 3)}, 3: {0: (0, 4), 3: (1, 2), 7: (5, 3)}}
    for ks in range(18):
        now = todo[done:done + (3 if ks < OPT["ramp"] else 2)]
        vm = done - 2 * (ks + 1)
        done += len(now)
        for i, (t, c) in enumerate(ORDER):
            while (ks, t) in [k for k, _ in pend]:
                emit_read()
            w = f"vmcnt({vm}) " if i == 0 else ""
            if mark[(ks, t)] > safe:
                cover = COVER[OPT.get("cov", 2)].get(i, (t,))
                n_ = min(15, issued - 1 - max(mark[(ks, u)] for u in cover if (ks, u) not in [k for k, _ in pend]))
                safe = issued - 1 - n_
                w += f"lgkmcnt({n_})"
            if w:
                a("s_waitcnt " + w)
            a(mf(ACC(t, c), wf(t), OFR(ks, c), ACC(t, c) if ks else "0"))
            if ks < 17 and (c == 1 or t >= 4):
                pend += [((ks + 1, t), x) for x in wreads(ks + 1, t)]
            for _ in range(2 if len(pend) > 2 else 1):
                if pend: emit_read()
            if now and i in {0: (0, 4, 8), 1: (1, 3, 6), 2: (0, 3, 6), 3: (1, 5, 8)}[OPT.get('lg', 2)]:
                a(now.pop(0))
            if ks == 17 and i >= 5:
                for _ in range(2):
                    x = stage.pop(0); a(x)
                    if x.startswith("ds_write"): issued += 1
        if ks == 0 and OPT.get("fine") != 3:
            stamp()
    stamp()
    weave([], stage)
    a("s_waitcnt lgkmcnt(0)")
    for n in range(5):
        a(f"ds_read_b128 {vr(112+4*n,4)}, v{vTR + min(n, 3)} offset:{1152 if n == 4 else 0}")
    for n in range(5):
        a(f"s_waitcnt lgkmcnt({4-n})")
        a(f"buffer_store_dwordx4 {vr(112+4*n,4)}, v{VS+n}, s[{SOUT}:{SOUT+3}], 0 offen{FLAGS[OPT.get('outst', 2)]}")
    stamp()
    stamps_out(0)
    a("s_endpgm")

HEADER = open("concat_heads__sliding_local_dilated__linear_attn_block__prompt.s.ref").read().split("; Override")[0]
out = HEADER + """; One workgroup per CU: (branch, 128-row block, group of 4 heads). Waves 0-3 do the MFMA work, waves 4-7 stream
; weights / activations into LDS. Phase 1: QKV projection + attention (A) or K,V -> kv sums -> Q -> o (B); the o tiles
; are handed over through d_ws; phase 2: output projection. Counters in d_ws are cleared in-launch (flags in d_debug).
; @launch grid=(256,1,1) block=(512,1,1) lds=163840
"""
a('.amdgcn_target "amdgcn-amd-amdhsa--gfx950"\n.text')
a(kernel_head(KN))
stamp()
a(f"""
s_cmp_ge_u32 s2, 256
s_cbranch_scc1 L_end
s_and_b32 s{sT}, s2, 7
s_lshr_b32 s{sBR}, s{sT}, 2
s_mul_i32 s{sT2}, s{sBR}, 24
s_load_dwordx4 s[36:39], s[0:1], s{sT2}
v_lshrrev_b32 v1, 6, v0
v_and_b32 v0, 63, v0
v_readfirstlane_b32 s{sWAVE}, v1
{'s_xor_b32 s3, s3, 4' if OPT.get('lfirst', 0) else ''}
s_bfe_u32 s{sHG}, s2, 0x30003
s_lshr_b32 s{sRB}, s2, 6
s_and_b32 s{sT3}, s{sT}, 3
s_lshl2_add_u32 s{sRB}, s{sT3}, s{sRB}
s_cmp_lt_u32 s{sWAVE}, 4
s_cbranch_scc1 L_cons
s_setprio {OPT.get("prio", 2)}
s_and_b32 s{sV}, s{sWAVE}, 1
s_add_u32 s{sRW}, s{sRB}, s{sHG}
s_and_b32 s{sRW}, s{sRW}, 7
s_lshl_b32 s{sRW}, s{sRW}, 2
s_lshr_b32 s{sRW}, {hex(OPT.get("tab", 0x75207520))}, s{sRW}
s_and_b32 s{sRW}, s{sRW}, 15
s_lshl_b32 s{sRX}, s{sRW}, 7
s_mul_i32 s{sRW}, s{sRW}, {64*3456}
""")
hstamp(12)
a(f"""
s_cmp_lt_u32 s{sWAVE}, 6
s_cbranch_scc1 L_W0
""")
x_head()
a(f"""
L_cons:
s_getpc_b64 s[42:43]
L_pc:
s_lshr_b32 s{sT}, s2, 3
s_lshl2_add_u32 s{sT}, s{sT}, s{sWAVE}
s_lshl_b32 s{sT}, s{sT}, 9
v_and_b32 v1, 3, v0
v_lshl_add_u32 v1, v1, 7, s{sT}
v_min_u32 v1, L_last-L_pc, v1
global_load_dword v27, v1, s[42:43]
s_cmp_eq_u32 s{sBR}, 0
s_cbranch_scc1 L_AC
s_branch L_BC
L_end:
s_endpgm
""")
w_head()
n0 = nstamp[0]
for fn in (lambda: a_loader("W"), lambda: a_loader("X"), a_consumer, lambda: b_loader("W"), lambda: b_loader("X"), b_consumer, p2_consumer):
    nstamp[0] = n0
    fn()
a("L_last:\ns_endpgm")
lines = []
for l in a.lines: lines += [x for x in l.split("\n") if x.strip()]
if OPT.get("noread"):
    lines = [l for l in lines if not l.startswith("ds_read_b64_tr")]
if OPT.get("nomfma"):
    lines = [l for l in lines if not l.startswith("v_mfma")]
lines, added = hz.fix(lines)
out += "\n".join(lines) + "\n"
out += '.section .rodata,"a"\n.p2align 6\n' + kernel_desc(KN, 256, 102 if OPT.get('cyc') else 100, 256)
sys.stdout.write(out)
sys.stderr.write(f"nop states added: {added}\n")
```

```python
import sys, struct
from asmlib import *
import hz

OPT = dict(stamps=0, p0=3, ramp=4)
for arg in sys.argv[1:]:
    k, v = arg.split("=")
    OPT[k] = int(v)
KN = "concat_heads__sliding_local_dilated__linear_attn_block__prompt_kernel"

def f32(x):
    return "0x%08x" % struct.unpack("<I", struct.pack("<f", x))[0]

LOG2E = 1.4426950408889634
CSC = 18 ** -0.5 * LOG2E
NEG = "0xf149f2ca"
EPS = f32(1e-6)
OOB = "0x80000000"

O_BR = 0x240000
WS_KV = 0x500000
KV_ST = 0x2000
WS_CNT = 0x540000
WS_STAMP = 0x600000
WS_SIZE = 0x700000

sWAVE, sHG, sRB, sBR, sT = 3, 4, 5, 6, 7
SX, SW, SWS, SDBG, SWO, SOUT = 8, 12, 16, 20, 24, 28
sG0, sG01 = 32, 34
sK, sV, sM, sT2, sT3 = 50, 51, 52, 53, 54
sST = 60

a = Asm()
nstamp = [0]

def stamp():
    if OPT["stamps"] and not (OPT.get("fine") == 4 and nstamp[0] >= 10):
        i = nstamp[0]; nstamp[0] += 1
        assert i < 14
        a(f"{'s_memrealtime' if OPT.get('rt') or OPT.get('probe') and not (OPT.get('cyc') and i) else 's_memtime'} s[{sST+2*i}:{sST+2*i+1}]")
        if OPT.get("cyc") and i == 0:
            a("s_memtime s[100:101]")

def stamps_out(last=-1):
    if not OPT["stamps"]:
        return
    if OPT.get("probe"):
        if last == OPT.get("pwave", 0):
            j = sST + 2 * OPT["probe"]
            a(f"""
s_waitcnt vmcnt(0) lgkmcnt(0)
s_cmp_eq_u32 s2, {OPT.get('wg', 0)}
s_cbranch_scc0 L_probe_x
s_cmp_eq_u32 s{sWAVE}, {last}
s_cbranch_scc0 L_probe_x
s_sub_u32 s{sT}, s{j}, s{100 if OPT.get('cyc') else sST}
{'s_lshr_b32 s7, s7, 3' if OPT.get('cyc') else 's_mul_i32 s7, s7, 10'}
s_min_u32 s{sT}, s{sT}, 100000
s_add_u32 s{sT}, s{sT}, 6000
L_probe:
s_memrealtime s[44:45]
s_waitcnt lgkmcnt(0)
s_sub_u32 s44, s44, s{sST}
s_cmp_lt_u32 s44, s{sT}
s_cbranch_scc1 L_probe
L_probe_x:
""")
        return
    a("s_waitcnt vmcnt(0) lgkmcnt(0)")
    a(f"s_lshl_b32 s{sT}, s2, 3\ns_add_u32 s{sT}, s{sT}, s{sWAVE}\ns_lshl_b32 s{sT}, s{sT}, 6")
    a(f"s_add_u32 s{sT}, s{sT}, {WS_STAMP}\nv_mov_b32 v1, s{sT}")
    for i in range(16):
        a(f"v_mov_b32 v2, {'s%d' % (sST+2*i) if i < 14 else 0}")
        a(f"buffer_store_dword v2, v1, s[{SWS}:{SWS+3}], 0 offen offset:{4*i}")
    a("s_waitcnt vmcnt(0)")

def mf(d, s0, s1, c):
    cc = c if isinstance(c, str) else vr(c, 4)
    return f"v_mfma_f32_16x16x32_bf16 {vr(d,4)}, {vr(s0,4)}, {vr(s1,4)}, {cc}"
def cv(d, x):
    return f"v_cvt_pk_bf16_f32 v{d}, v{x}, v{x+1}"
def tr(d, addr, off):
    return f"ds_read_b64_tr_b16 {vr(d,2)}, v{addr} offset:{off}"
def weave(mfmas, others, per=2):
    o = list(others)
    for m in mfmas:
        a(m)
        for _ in range(per):
            if o: a(o.pop(0))
    for x in o: a(x)

def srd(dst, lo, nbytes):
    a(f"s_mov_b32 s{dst}, s{lo}\ns_mov_b32 s{dst+1}, s{lo+1}\ns_mov_b32 s{dst+2}, {nbytes}\ns_mov_b32 s{dst+3}, 0x20000")
def srds_rest():
    srd(SWO, 40, 663552); srd(SOUT, 44, 4718592); srd(SDBG, 46, 256); srd(SWS, 48, WS_SIZE)

class M0:
    def __init__(self, base): self.base = base; self.cur = None
    def set(self, imm):
        if self.cur is not None and -32768 <= imm - self.cur <= 32767:
            a(f"s_addk_i32 m0, {imm - self.cur}")
        else:
            a(f"s_add_u32 m0, s{self.base}, {imm}")
        self.cur = imm

def dma(voff, srd_, soff, half=False, off=0):
    if OPT.get("nodma"):
        return
    if half: a("s_mov_b32 exec_hi, 0")
    a(f"buffer_load_dwordx4 v{voff}, s[{srd_}:{srd_+3}], {soff} offen offset:{off} lds")
    if half: a("s_mov_b32 exec_hi, -1")

def rd_lanes(aw, ash, t0, t1):
    a(f"""
v_lshrrev_b32 v{t0}, 5, v0
v_lshlrev_b32 v{t0}, 4, v{t0}
v_bfe_u32 v{t1}, v0, 4, 1
v_lshl_add_u32 v{t0}, v{t1}, 2, v{t0}
v_bfe_u32 v{t1}, v0, 2, 2
v_add_u32 v{t0}, v{t0}, v{t1}
v_mul_u32_u24 v{t0}, 160, v{t0}
v_and_b32 v{t1}, 3, v0
v_lshl_add_u32 v{aw}, v{t1}, 3, v{t0}
""")
    if ash:
        a(f"v_bfe_u32 v{t1}, v0, 1, 1\nv_mul_u32_u24 v{t1}, {SLAB2 - 16}, v{t1}\nv_add_u32 v{t1}, 128, v{t1}\nv_add_u32 v{ash}, v{t1}, v{aw}")

def x_lane(d0, d1, tmp):
    a(f"""
v_lshrrev_b32 v{d0}, 4, v0
v_bfe_u32 v{tmp}, v0, 1, 3
v_xor_b32 v{d0}, v{d0}, v{tmp}
v_and_b32 v{tmp}, 15, v0
v_lshlrev_b32 v{tmp}, 7, v{tmp}
v_lshl_add_u32 v{d0}, v{d0}, 4, v{tmp}
v_xor_b32 v{d1}, 64, v{d0}
""")

def slab_src(dst, j, stride, base):
    a(f"""
v_add_u32 v1, {64*j}, v0
v_mul_u32_u24 v2, 6554, v1
v_lshrrev_b32 v2, 16, v2
v_mad_i32_i24 v1, v2, -10, v1
""")
    a("v_bfe_u32 v3, v2, 2, 1\nv_bfe_u32 v4, v2, 3, 1\nv_sub_u32 v3, v3, v4\nv_lshl_add_u32 v2, v3, 2, v2")
    a(f"""
v_mul_u32_u24 v2, {stride}, v2
v_lshl_add_u32 v2, v1, 4, v2
v_add_u32 v1, 7, v1
v_lshrrev_b32 v1, 4, v1
v_lshl_add_u32 v2, v1, 23, v2
v_add_u32 v{dst}, s{base}, v2
""")

def head_of(dst, src):
    a(f"v_mul_u32_u24 v{dst}, 57, v{src}\nv_lshrrev_b32 v{dst}, 10, v{dst}")

sOC, sKC, sFO, sFK = 92, 94, 96, 97

def arrive_wait(addr, target, label, arrive=True):
    if arrive:
        a(f"s_mov_b32 s{sT}, 1\ns_atomic_add s{sT}, s[{addr}:{addr+1}], 0 glc\ns_waitcnt lgkmcnt(0)\ns_cmp_ge_u32 s{sT}, {target-1}\ns_cbranch_scc1 {label}_x")
    a(f"""
s_mov_b32 s{sT3}, 0x20000
{label}:
s_mov_b32 s{sT}, 0
s_atomic_add s{sT}, s[{addr}:{addr+1}], 0 glc
s_waitcnt lgkmcnt(0)
s_sub_u32 s{sT3}, s{sT3}, 1
s_cbranch_scc1 {label}_x
s_cmp_ge_u32 s{sT}, {target}
s_cbranch_scc0 {label}
{label}_x:
""")

def flag_load(dst, offreg):
    a(f"s_load_dword s{dst}, s[{SDBG}:{SDBG+1}], s{offreg}")

def flag_check(val, offreg, label):
    a(f"""
s_mov_b32 s{sT3}, 0x20000
{label}:
s_waitcnt lgkmcnt(0)
s_cmp_lg_u32 s{val}, 0
s_cbranch_scc1 {label}_x
s_sub_u32 s{sT3}, s{sT3}, 1
s_cbranch_scc1 {label}_x
s_load_dword s{val}, s[{SDBG}:{SDBG+1}], s{offreg} glc
s_branch {label}
{label}_x:
""")

SLAB2 = 5136
A_WSLOT, A_XSLOT = 15392, 18432
A_X0 = 5 * A_WSLOT
A_EX = A_X0 + 3 * A_XSLOT
B_KVSLOT, B_XSLOT = 10272, 16384
B_X0 = 5 * B_KVSLOT
B_EX = B_X0 + 3 * B_XSLOT
B_KVOP = 132256
B_STG = B_EX + 40960
B_DUMP, B_LCNT = B_STG + 5504, B_STG + 5888
R1 = 148480
def wq_slot(p):
    if p < 3: return R1 + 5120 * p
    if p < 6: return 5120 * (p - 3)
    if p == 6: return 46080
    if p < 12: return B_X0 + 5120 * (p - 7)
    return 15360 + 5120 * (p - 12)
WOC = 6144
R2 = 77824
WO = [R1, R1 + WOC] + [R2 + WOC * n for n in range(8)] + [0, WOC] + [15360 + WOC * n for n in range(6)]
P_TR = 52224
SPLITS = {(1, 0): sG0, (2, 0): sG0, (2, 1): sG0, (3, 0): sG01, (3, 1): sG0}

VD = 16
VWO = 26
sRW, sRX = 90, 91

def hstamp(i):
    if OPT.get("fine") == 4:
        a(f"s_memrealtime s[{sST+2*i}:{sST+2*i+1}]")

def w_head():
    a(f"""
L_W0:
s_mul_i32 s{sT}, s{sV}, {16*3456}
s_mul_i32 s{sT2}, s{sHG}, 144
s_add_u32 s{sT}, s{sT}, s{sT2}
s_mul_i32 s{sT2}, s{sBR}, 1152
s_add_u32 s{sT}, s{sT}, s{sT2}
""")
    for j in range(3):
        slab_src(VD + j, j, 3456, sT)
    a(f"s_mul_i32 s42, s{sV}, 2560\ns_mov_b32 m0, s42\ns_mov_b32 s{sT3}, 0")
    hstamp(10)
    a("s_waitcnt lgkmcnt(0)")
    hstamp(13)
    srd(SW, 38, 1990656)
    D = SLAB2 - 1152
    a("L_W0l:")
    pos = 0
    for sl, j in ((0, 0), (0, 1), (1, 0), (1, 1), (0, 2), (1, 2), (2, 2), (2, 0), (2, 1)):
        tgt = D * sl + 1024 * j
        if tgt != pos:
            a(f"s_addk_i32 m0, {tgt - pos}")
        pos = tgt
        if (sl, j) == (0, 2): a("s_mov_b32 exec_hi, 0")
        if (sl, j) == (2, 2): a(f"s_cmp_lg_u32 s{sBR}, 0\ns_cbranch_scc1 L_W0b")
        if (sl, j) == (2, 0): a("s_mov_b32 exec_hi, -1")
        dma(VD + j, SW, f"s{sRW}", off=1152 * sl)
    a(f"""
s_addk_i32 m0, {A_WSLOT - pos - (B_KVSLOT - (2*D + 2048))}
L_W0b:
s_mov_b32 exec_hi, -1
s_addk_i32 m0, {B_KVSLOT - (2*D + 2048)}
s_cmp_lg_u32 s{sT3}, 0
s_cbranch_scc1 L_W0x
s_mov_b32 s{sT3}, 1
s_add_u32 s{sRW}, s{sRW}, {32*3456}
s_branch L_W0l
L_W0x:
""")
    hstamp(11)
    a(f"s_cmp_eq_u32 s{sBR}, 0\ns_cbranch_scc1 L_AW1\ns_branch L_BW1")

def w_issue(kind, c, m):
    slot = (c % 5) * (A_WSLOT if kind == "A" else B_KVSLOT)
    n = 3 if kind == "A" else 2
    if c:
        a(f"s_add_u32 s{sRW}, s{sRW}, {32*3456}\ns_cmp_eq_u32 s{sRW}, {18*32*3456}\ns_cselect_b32 s{sRW}, 0, s{sRW}")
    order = [(sl, j) for sl in range(n) for j in range(2)] + [(sl, 2) for sl in range(n)]
    for sl, j in order:
        m.set(slot + (SLAB2 - 1152) * sl + 1024 * j)
        if (sl, j) == (0, 2):
            a("s_mov_b32 exec_hi, 0")
        dma(VD + j, SW, f"s{sRW}", off=1152 * sl)
    a("s_mov_b32 exec_hi, -1")
    return 3 * n

def wq_issue(p, m):
    a(f"s_add_u32 s{sK}, s{sRW}, {(p+1)*32*3456}\ns_cmp_ge_u32 s{sK}, {18*32*3456}\ns_cselect_b32 s{sT}, {18*32*3456}, 0\ns_sub_u32 s{sK}, s{sK}, s{sT}")
    for j in range(3):
        m.set(wq_slot(p) + 1024 * j)
        dma(VD + 3 + j, SW, f"s{sK}", half=(j == 2))
    return 3

def x_head():
    a(f"""
s_cmp_eq_u32 s{sBR}, 0
s_cselect_b32 s{sT2}, 1, 0
s_lshl_b32 s{sT3}, 1152, s{sT2}
v_lshrrev_b32 v1, 3, v0
v_mul_u32_u24 v1, s{sT3}, v1
v_lshrrev_b32 v2, 4, v0
v_lshl_add_u32 v2, s{sV}, 2, v2
v_and_b32 v3, 7, v0
v_xor_b32 v2, v2, v3
v_lshl_add_u32 v1, v2, 4, v1
s_mul_i32 s{sT}, s{sRB}, {128*1152}
v_add_u32 v1, s{sT}, v1
s_lshl_b32 s43, s{sT3}, 4
s_mul_i32 s{sT}, s{sV}, s{sT3}
s_lshl_b32 s{sT}, s{sT}, 3
v_add_u32 v{VD}, s{sT}, v1
s_mul_i32 s{sT3}, s{sV}, 1152
s_add_u32 s{sT3}, s{sT3}, {15*1152}
v_subrev_u32 v{VD+8}, s{sT3}, v1
s_sub_u32 s{sT3}, {17*1152}, s{sT}
s_add_u32 s{sT}, s{sT}, {64*1152}
s_cmp_eq_u32 s{sBR}, 0
s_cselect_b32 s{sT}, s{sT3}, s{sT}
v_add_u32 v{VD+4}, s{sT}, v1
s_movk_i32 s{sT}, {(A_X0 - B_X0)}
s_cselect_b32 s{sT}, s{sT}, 0
s_lshl_b32 s42, s{sV}, 10
s_add_u32 s{sT}, s{sT}, s42
s_add_u32 m0, s{sT}, {B_X0}
""")
    for q in (1, 2, 3):
        a(f"v_add_u32 v{VD+q}, s43, v{VD+q-1}\nv_add_u32 v{VD+4+q}, s43, v{VD+3+q}")
    a(f"s_mov_b32 s{sT3}, 0")
    hstamp(10)
    a("s_waitcnt lgkmcnt(0)")
    hstamp(13)
    srd(SX, 36, 2359296)
    a("L_X0l:")
    for q in range(9):
        if q == 8:
            a(f"s_cbranch_scc0 L_X0b")
        dma(VD + q, SX, f"s{sRX}")
        a("s_addk_i32 m0, 2048")
        a(f"s_cmp_eq_u32 s{sBR}, 0" if q == 7 else "s_nop 0")
    a(f"""
L_X0b:
s_cmp_lg_u32 s{sT3}, 0
s_cbranch_scc1 L_X0x
s_mov_b32 s{sT3}, 1
s_addk_i32 s{sRX}, 128
s_cmpk_eq_u32 s{sRX}, 1152
s_cselect_b32 s{sRX}, 0, s{sRX}
s_branch L_X0l
L_X0x:
""")
    hstamp(11)
    a(f"s_cmp_eq_u32 s{sBR}, 0\ns_cbranch_scc1 L_AX1\ns_branch L_BX1")

def karg_loads():
    a(f"""
s_mul_i32 s{sT}, s{sBR}, 24
s_add_u32 s{sT}, s{sT}, 16
s_load_dwordx2 s[40:41], s[0:1], s{sT}
s_load_dwordx4 s[44:47], s[0:1], 48
s_load_dwordx2 s[48:49], s[0:1], 64
""")

def karg_rest(loads=True):
    if loads:
        karg_loads()
    if OPT["stamps"]:
        for i in range(1, 10 if OPT.get("fine") == 4 else 14):
            a(f"s_mov_b32 s{sST+2*i}, 0")
    a(f"""
s_mov_b32 s{sG0}, 0xffff
s_mov_b32 s{sG0+1}, 0
s_mov_b32 s{sG01}, -1
s_mov_b32 s{sG01+1}, 0
""")

def x_issue(kind, c, m):
    nq, h, x0, xs = (9, 5, A_X0, A_XSLOT) if kind == "A" else (8, 4, B_X0, B_XSLOT)
    st = (c + 1) // 2
    if st > 8:
        return 0
    qs = range(nq) if c == 0 else (range(h) if c % 2 else range(h, nq))
    if c % 2:
        a(f"s_addk_i32 s{sRX}, 128\ns_cmpk_eq_u32 s{sRX}, 1152\ns_cselect_b32 s{sRX}, 0, s{sRX}")
    for q in qs:
        m.set(x0 + (st % 3) * xs + 2048 * q)
        a("s_nop 0")
        dma(VD + q, SX, f"s{sRX}")
    return len(qs)

def out_cols(sb, fo, lim):
    a(f"""
s_and_b32 s{sT}, s{sHG}, 3
s_lshl_b32 s{sT2}, s{sT}, 3
s_lshr_b32 s{sb}, 0x07050200, s{sT2}
s_and_b32 s{sb}, s{sb}, 0xff
s_lshr_b32 s{sT2}, s{sHG}, 2
s_mul_i32 s{sT2}, s{sT2}, 9
s_add_u32 s{sb}, s{sb}, s{sT2}
s_lshl_b32 s{sb}, s{sb}, 6
s_cmp_eq_u32 s{sT}, 1
s_cselect_b32 s{fo}, 64, 0
s_cmp_lt_u32 s{sT}, 2
s_cselect_b32 s{lim}, 12, 8
""")

def wo_setup(quad):
    out_cols(sM, 55, 56)
    for j in range(6):
        a(f"""
v_add_u32 v1, {64*j}, v0
v_mul_u32_u24 v2, 5462, v1
v_lshrrev_b32 v2, 16, v2
v_mad_i32_i24 v1, v2, -12, v1
v_bfe_u32 v3, v2, 2, 1
v_lshlrev_b32 v4, 1, v3
v_xor_b32 v1, v1, v4
v_cmp_gt_u32 vcc, s56, v1
v_lshl_add_u32 v1, v1, 4, s{sM}
v_mov_b32 v4, {1 << 23}
v_cndmask_b32 v1, v4, v1, vcc
v_and_b32 v4, 3, v2
v_lshl_add_u32 v5, v3, 2, v4
v_mul_u32_u24 v3, 72, v3
v_add_u32 v4, v3, v4
v_bfe_u32 v3, v2, 3, 1
v_lshl_add_u32 v5, v3, 4, v5
v_lshl_add_u32 v4, v3, 2, v4
v_bfe_u32 v3, v2, 4, 1
v_lshl_add_u32 v5, v3, 3, v5
v_mul_u32_u24 v3, 144, v3
v_add_u32 v4, v3, v4
v_mul_u32_u24 v5, 1152, v5
v_add_u32 v{VWO+j}, v5, v1
v_mul_u32_u24 v4, 1152, v4
v_add_u32 v{VWO+6+j}, v4, v1
""")
    a(f"s_and_b32 s55, s{sWAVE}, 3\ns_lshl_b32 s57, s55, 3")
    rho(56)
    a(f"s_add_u32 s56, s56, s{55 if quad else sV}")

def rho(dst):
    a(f"s_lshl_b32 s{dst}, s{sRB}, 1\ns_add_u32 s{dst}, s{dst}, s{sHG}\ns_lshl_b32 s{dst}, s{dst}, 1")

def wo_chunk(left, fadd):
    if left:
        a(f"s_mul_i32 s{sK}, s{sV}, {288*1152}\ns_add_u32 s{sK}, s{sK}, {64*1152}")
    else:
        a(f"""
s_add_u32 s{sT}, s56, {fadd}
s_bfe_u32 s{sK}, s{sT}, 0x30001
s_mul_i32 s{sK}, s{sK}, {72*1152}
s_bitcmp1_b32 s{sT}, 0
s_cselect_b32 s{sT}, {32*1152}, 0
s_add_u32 s{sK}, s{sK}, s{sT}
""")
    for j in range(6):
        dma(VWO + (6 if left else 0) + j, SWO, f"s{sK}")
        if j < 5:
            a("s_addk_i32 m0, 1024")
    return 6

def wo_issue(q):
    packed = sum((WO[2 + 4*q + w] // 1024) << (8 * w) for w in range(4))
    a(f"s_lshr_b32 s{sT}, {packed}, s57\ns_and_b32 s{sT}, s{sT}, 0xff\ns_lshl_b32 m0, s{sT}, 10")
    return wo_chunk(False, 4*q)

def wo_pair(g):
    a(f"s_mul_i32 s{sT}, s{sV}, {WO[2*g+1] - WO[2*g] & 0xffffffff}\ns_add_u32 m0, s{sT}, {WO[2*g]}")
    return wo_chunk(g == 0, 2*g - 2)

def sync_setup():
    a(f"""
s_lshl_b32 s{sT}, s{sBR}, 4
s_add_u32 s{sT}, s{sT}, s{sRB}
s_lshl_b32 s{sT2}, s{sT}, 8
s_add_u32 s{sT2}, s{sT2}, {WS_CNT}
s_add_u32 s{sOC}, s{SWS}, s{sT2}
s_addc_u32 s{sOC+1}, s{SWS+1}, 0
s_lshl_b32 s{sT}, s{sT}, 2
s_add_u32 s98, s{sT}, 32
s_lshl_b32 s99, s{sHG}, 2
s_mul_i32 s{sT2}, s{sHG}, {KV_ST}
s_add_u32 s{sT2}, s{sT2}, {WS_KV + 6144}
s_add_u32 s{sKC}, s{SWS}, s{sT2}
s_addc_u32 s{sKC+1}, s{SWS+1}, 0
""")

def loader_tail(tag, late=None):
    sig = tag != "BW"
    if sig:
        flag_check(sFO, 98, f"L_{tag}_fo")
    a("s_barrier")
    stamp()
    if sig:
        a(f"s_cmp_eq_u32 s{sWAVE}, 6\ns_cbranch_scc0 L_{tag}_na\ns_mov_b32 s96, 1\ns_atomic_add s96, s[{sOC}:{sOC+1}], 0 glc\nL_{tag}_na:")
    if late:
        late()
    if sig:
        a(f"s_cmp_eq_u32 s{sWAVE}, 6\ns_cbranch_scc0 L_{tag}_oc_x")
        a(f"s_waitcnt lgkmcnt(0)\ns_cmp_ge_u32 s96, 7\ns_cbranch_scc1 L_{tag}_oc_x")
        arrive_wait(sOC, 8, f"L_{tag}_oc", False)
    a("s_waitcnt vmcnt(0)")
    stamp()
    a("s_barrier")
    stamps_out()
    a("s_endpgm")

def spread(setup, i, n):
    per = -(-len(setup) // n)
    a("s_cmp_eq_u32 s59, 1")
    a.lines += setup[per*i:per*(i+1)]
    a("s_cselect_b32 s59, 1, 0")

def captured(fn):
    mark = len(a.lines)
    fn()
    out_ = a.lines[mark:]
    del a.lines[mark:]
    return out_

def att_masks(MC, MP, MPF, PM, t):
    a(f"""
s_lshr_b32 s{sT}, s{sWAVE}, 1
s_lshl_b32 s{sT}, s{sT}, 3
v_and_b32 v{t}, 15, v0
v_xor_b32 v{t}, s{sT}, v{t}
v_lshrrev_b32 v{t+1}, 4, v0
v_lshlrev_b32 v{t+1}, 2, v{t+1}
v_xor_b32 v{t+1}, s{sT}, v{t+1}
v_sub_u32 v{t}, v{t}, v{t+1}
v_mov_b32 v{t+2}, {NEG}
s_and_b32 s{sT}, s{sWAVE}, 1
s_or_b32 s{sT}, s{sT}, s{sRB}
s_cmp_eq_u32 s{sT}, 0
s_cselect_b64 s[42:43], -1, 0
""")
    for r in range(4):
        a(f"""
v_subrev_u32 v{t+1}, {r}, v{t}
v_cmp_gt_u32 vcc, 8, v{t+1}
v_cndmask_b32 v{MC+r}, v{t+2}, 0, vcc
v_cmp_gt_i32 vcc, -8, v{t+1}
v_cndmask_b32 v{MP+r}, v{t+2}, 0, vcc
v_cndmask_b32 v{MPF+r}, v{MP+r}, v{t+2}, s[42:43]
v_cmp_lt_i32 vcc, -1, v{t+1}
v_mov_b32 v{t+3}, {'0xffff' if r % 2 == 0 else '0xffff0000'}
v_cndmask_b32 v{t+3}, 0, v{t+3}, vcc
""")
        a(f"v_mov_b32 v{PM + r//2}, v{t+3}" if r % 2 == 0 else f"v_or_b32 v{PM + r//2}, v{PM + r//2}, v{t+3}")

def a_loader(kind):
    a(f"L_A{kind}1:")
    m = M0(42)
    issue = (lambda c: w_issue("A", c, m)) if kind == "W" else (lambda c: x_issue("A", c, m))
    late2 = kind == "W" and OPT.get("early", 2) & 1
    cnt = ({1: 9} if late2 else {1: 9, 2: issue(2)}) if kind == "W" else {1: 5, 2: 4}
    karg_rest()
    a("s_mov_b32 s59, 0")
    stamp()
    x_lane(8, 9, 1)
    rd_lanes(10, 12 if kind == "W" else None, 1, 2)
    if kind == "X":
        a(f"v_add_u32 v12, {2*SLAB2 + 128}, v10")
    a(f"""
v_add_u32 v8, {A_X0 + 8*2048}, v8
v_add_u32 v9, {A_X0 + 8*2048}, v9
s_lshl_b32 s{sT}, s{sV}, 6
s_add_u32 s{sT}, s{sT}, {SLAB2 if kind == 'W' else 2*SLAB2}
v_add_u32 v10, s{sT}, v10
v_add_u32 v13, {4*A_WSLOT}, v10
v_add_u32 v15, {4*A_WSLOT}, v12
""")
    def setup():
        srds_rest(); sync_setup(); wo_setup(True)
        a(f"""
s_lshl_b32 s{sT}, s{sV}, 10
s_add_u32 s{sT}, s{sT}, {A_EX + (0 if kind == 'W' else 2560)}
v_lshlrev_b32 v1, 3, v0
v_add_u32 v6, s{sT}, v1
v_add_u32 v7, {A_EX + (2048 if kind == 'W' else 4608)}, v1
""")
    setup = captured(setup)
    a(f"s_waitcnt vmcnt({sum(cnt.values())})\ns_barrier")
    stamp()
    extra = 0
    for i in range(-1, 17):
        ks = i + 1
        slot = ks % 5
        off = 0 if slot == 4 else slot * A_WSLOT
        ad = (13, 15) if slot == 4 else (10, 12)
        a(f"ds_read_b128 v[40:43], v{8 + ks % 2} offset:{(ks//2 % 3)*A_XSLOT}")
        for j in range(2):
            a(tr(44 + 4*j, ad[0], off + 32*j)); a(tr(46 + 4*j, ad[0], off + 32*j + 1280))
        a(f"s_cmp_eq_u32 s{sV}, 0\ns_cbranch_scc0 L_A{kind}_r{ks}")
        a(tr(52, ad[1], off)); a(tr(54, ad[1], off + 1280))
        a(f"L_A{kind}_r{ks}:")
        if i == -1 and late2:
            cnt[2] = issue(2)
        if i + 4 <= 17:
            cnt[i+4] = issue(i + 4)
        a("s_waitcnt lgkmcnt(0)")
        for j in range(3):
            c = 60 + 4*j if ks else "0"
            if j == 2:
                a(f"s_cmp_eq_u32 s{sV}, 0\ns_cbranch_scc0 L_A{kind}_m{ks}")
            a(mf(60 + 4*j, 44 + 4*j, 40, c) if kind == "W" else mf(60 + 4*j, 40, 44 + 4*j, c))
        a(f"L_A{kind}_m{ks}:")
        if 1 <= i < 11:
            spread(setup, i - 1, 10)
        if i == 14 and kind == "W":
            extra += wo_pair(0)
        if i == 15:
            extra += wo_issue(0)
        if i + 1 <= 16:
            left = sum(cnt.get(c, 0) for c in range(i + 3, min(i + 4, 17) + 1)) + extra
            a(f"s_waitcnt vmcnt({left})\ns_barrier")
    for j in range(3):
        a(cv(44 + 2*j, 60 + 4*j)); a(cv(45 + 2*j, 62 + 4*j))
    if kind == "W":
        a("v_mov_b32 v50, 0\nv_mov_b32 v51, 0")
        a("v_permlane32_swap_b32 v48, v50\nv_permlane32_swap_b32 v49, v51")
    a("ds_write_b64 v6, v[44:45]\nds_write_b64 v6, v[46:47] offset:512")
    a(f"s_cmp_eq_u32 s{sV}, 0\ns_cbranch_scc0 L_A_att")
    a(f"ds_write_b64 v7, {'v[50:51]' if kind == 'W' else 'v[48:49]'}")
    if kind == "W":
        a("s_branch L_A_att")
        return
    a("L_A_att:")
    stamp()
    a("s_waitcnt lgkmcnt(0)\ns_barrier")
    stamp()
    flag_load(sFO, 98)
    wo_issue(1); wo_issue(2); wo_issue(3)
    stamp()
    loader_tail("A")

def o_store_addr(vfull, vleft, tmp, left_lo, wreg=sWAVE):
    a(f"""
s_lshl_b32 s{sT}, s{sRB}, 3
s_lshl_b32 s{sT2}, s{wreg}, 1
s_add_u32 s{sT}, s{sT}, s{sT2}
s_mul_i32 s{sT}, s{sT}, 18432
s_mul_i32 s{sT2}, s{sBR}, {O_BR}
s_add_u32 s58, s{sT}, s{sT2}
s_lshl_b32 s{sT2}, s{sHG}, 11
s_add_u32 s{sT2}, s{sT2}, s58
v_lshl_add_u32 v{vfull}, v0, 4, s{sT2}
s_lshr_b32 s{sT2}, s{sHG}, 2
s_add_u32 s{sT2}, s{sT2}, 16
s_lshl_b32 s{sT2}, s{sT2}, 10
s_add_u32 s{sT}, s58, s{sT2}
s_and_b32 s{sT2}, s{sHG}, 3
s_lshl_b32 s{sT2}, s{sT2}, 8
s_add_u32 s{sT}, s{sT}, s{sT2}
v_and_b32 v{vleft}, 15, v0
v_lshlrev_b32 v{vleft}, 4, v{vleft}
v_bfe_u32 v{tmp}, v0, 4, 1
v_lshl_add_u32 v{vleft}, v{tmp}, 3, v{vleft}
v_add_u32 v{vleft}, s{sT}, v{vleft}
v_mov_b32 v{tmp}, {OOB}
""")
    x, y = (tmp, vleft) if left_lo else (vleft, tmp)
    a(f"v_cndmask_b32 v{vleft}, v{x}, v{y}, s[{sG01}:{sG01+1}]")

FLAGS = ["", " nt", " sc1", " sc1 nt", " sc0 sc1"]
def o_store(of, vfull, vleft, rt):
    so = f"s{sK}" if rt else "0"
    fl = FLAGS[OPT.get("ost", 2)]
    if rt:
        a(f"s_movk_i32 s{sK}, 18432")
    a(f"buffer_store_dwordx4 {vr(of,4)}, v{vfull}, s[{SWS}:{SWS+3}], {so} offen{fl}")
    a(f"buffer_store_dwordx4 {vr(of+4,4)}, v{vfull}, s[{SWS}:{SWS+3}], {so} offen offset:1024{fl}")
    a(f"buffer_store_dwordx2 {vr(of+8,2)}, v{vleft}, s[{SWS}:{SWS+3}], {so} offen{fl}")

def init_stores(tag, with_kv):
    a(f"""
s_or_b32 s{sT}, s{sHG}, s{sWAVE}
s_cmp_eq_u32 s{sT}, 0
s_cselect_b32 s55, 1, 0
v_mov_b32 v20, 0
v_mov_b32 v21, 0
v_mov_b32 v22, 0
v_mov_b32 v23, 0
s_cbranch_scc0 L_{tag}_i1
{chr(10).join(["s_sleep 127"] * OPT.get("late", 0))}
s_lshl_b32 s{sT}, s{sBR}, 4
s_add_u32 s{sT}, s{sT}, s{sRB}
s_lshl_b32 s{sT}, s{sT}, 8
s_add_u32 s{sT}, s{sT}, {WS_CNT}
v_mov_b32 v24, s{sT}
buffer_store_dword v20, v24, s[{SWS}:{SWS+3}], 0 offen sc1
L_{tag}_i1:
""")
    if with_kv:
        a(f"""
s_or_b32 s{sT}, s{sRB}, s{sWAVE}
s_cmp_eq_u32 s{sT}, 0
s_cbranch_scc0 L_{tag}_i2
{chr(10).join(["s_sleep 127"] * OPT.get("late", 0))}
s_or_b32 s55, s55, 2
s_mul_i32 s{sT}, s{sHG}, {KV_ST}
s_add_u32 s{sT}, s{sT}, {WS_KV}
v_lshl_add_u32 v24, v0, 4, s{sT}
""")
        for j in range(7):
            a(f"s_movk_i32 s{sK}, {1024*j}\nbuffer_store_dwordx4 v[20:23], v24, s[{SWS}:{SWS+3}], s{sK} offen sc1")
        a(f"L_{tag}_i2:")

def init_flags(tag):
    a(f"""
s_waitcnt vmcnt(0)
s_cmp_eq_u32 s55, 0
s_cbranch_scc1 L_{tag}_f2
v_mov_b32 v20, 1
s_bitcmp1_b32 s55, 0
s_cbranch_scc0 L_{tag}_f1
s_lshl_b32 s{sT}, s{sBR}, 4
s_add_u32 s{sT}, s{sT}, s{sRB}
s_lshl_b32 s{sT}, s{sT}, 2
s_add_u32 s{sT}, s{sT}, 32
v_mov_b32 v24, s{sT}
buffer_store_dword v20, v24, s[{SDBG}:{SDBG+3}], 0 offen sc1
L_{tag}_f1:
s_bitcmp1_b32 s55, 1
s_cbranch_scc0 L_{tag}_f2
s_lshl_b32 s{sT}, s{sHG}, 2
v_mov_b32 v25, s{sT}
buffer_store_dword v20, v25, s[{SDBG}:{SDBG+3}], 0 offen sc1
L_{tag}_f2:
""")

def kstep(tiles, nxt_reads, first, waits):
    pend = list(first)
    for t, (m0_, m1_) in enumerate(tiles):
        if OPT.get("snake") and t % 2:
            m0_, m1_ = m1_, m0_
        if t in waits:
            a(waits[t])
        a(m0_)
        for x in pend: a(x)
        a(m1_)
        pend = []
        if nxt_reads:
            a(nxt_reads[t][0]); pend = [nxt_reads[t][1]]
    for x in pend: a(x)

def ring_loop(T, D, pair, wreads, xread, hook, last_gap=None):
    issued, mark, q = 0, {}, []
    def rd(key, x):
        nonlocal issued
        a(x); mark[key] = issued; issued += 1
    def feed(n):
        ks, t = divmod(n, T)
        if ks > 17: return
        if t == 0:
            if ks: q.append((None, "s_barrier"))
            q.extend(((ks, "x"), xread(ks, rt)) for rt in range(2))
        q.extend(((ks, t), x) for x in wreads(ks, t))
    def fill(k):
        for _ in range(k):
            while q and q[0][0] is None:
                a(q.pop(0)[1])
            if q: rd(*q.pop(0))
    for n in range(D):
        feed(n)
    fill(len(q))
    for n in range(18 * T):
        ks, t = divmod(n, T)
        hook(ks, t)
        assert not [k for k, _ in q if k in ((ks, t), (ks, "x"))]
        need = max(mark[(ks, t)], mark[(ks, "x")])
        a(f"s_waitcnt lgkmcnt({min(15, issued - 1 - need)})")
        feed(n + D)
        m0_, m1_ = pair(ks, t)
        a(m0_); fill(1)
        a(m1_); fill(2 if len(q) > 2 else 1)
        if last_gap and ks == 17:
            x = last_gap(t)
            if x: a(x); issued += 1

def a_consumer():
    acc = lambda t, rt: 144 + (t * 2 + rt) * 4
    wf = lambda t: 88 + 4 * t
    xf = lambda buf, rt: 72 + buf * 8 + rt * 4
    aW, aS, aWb, aSb, aX = 1, 2, 3, 4, 11
    vOF, vOL, vEXW, vEXR = 13, 14, 15, 16
    MC, MP, MPF, PM = 56, 60, 64, 68
    a("L_AC:")
    karg_rest(False)
    a("s_waitcnt lgkmcnt(0)")
    srds_rest()
    init_stores("AC", False)
    rd_lanes(aW, aS, 17, 18); x_lane(aX, aX + 1, 17)
    a(f"v_add_u32 v{aWb}, {4*A_WSLOT}, v{aW}\nv_add_u32 v{aSb}, {4*A_WSLOT}, v{aS}")
    a(f"""
s_lshl_b32 s{sT}, s{sWAVE}, 12
s_add_u32 s{sT}, s{sT}, {A_X0}
v_add_u32 v{aX}, s{sT}, v{aX}
v_add_u32 v{aX+1}, s{sT}, v{aX+1}
""")
    att_masks(MC, MP, MPF, PM, 17)
    o_store_addr(vOF, vOL, 17, True)
    a(f"""
s_lshr_b32 s{sT}, s{sWAVE}, 1
s_add_u32 s{sT}, s{sT}, 1
s_mul_i32 s{sT}, s{sT}, 5120
s_bitcmp1_b32 s{sWAVE}, 0
s_cselect_b32 s{sT3}, s{sT}, 0
v_lshlrev_b32 v17, 3, v0
v_add_u32 v17, {A_EX}, v17
v_add_u32 v{vEXW}, s{sT}, v17
v_add_u32 v{vEXR}, s{sT3}, v17
""")

    def wreads(ks, t):
        slot = ks % 5
        o = 0 if slot == 4 else slot * A_WSLOT
        ad = (aSb if slot == 4 else aS) if t == 4 else (aWb if slot == 4 else aW)
        if t != 4:
            o += 32 * t if t < 4 else SLAB2 + 32 * (t - 5) if t < 9 else 2 * SLAB2 + 32 * (t - 9)
        return [tr(wf(t), ad, o), tr(wf(t) + 2, ad, o + 1280)]
    xread = lambda ks, rt: f"ds_read_b128 {vr(xf(ks % 2, rt),4)}, v{aX + ks % 2} offset:{(ks//2 % 3)*A_XSLOT + rt*2048}"

    stamp()
    a("s_barrier")
    stamp()
    def pair(ks, t):
        c = lambda rt: acc(t, rt) if ks else "0"
        return [mf(acc(t, rt), wf(t), xf(ks % 2, rt), c(rt)) if t < 9 else mf(acc(t, rt), xf(ks % 2, rt), wf(t), c(rt)) for rt in range(2)]
    def hook(ks, t):
        if t == 0 and OPT.get("fine") == 2 and ks in (2, 5, 8, 11, 14):
            stamp()
        if (ks, t) == (3, 0):
            init_flags("AC")
    ring_loop(14, OPT.get("da", 4), pair, wreads, xread, hook)
    stamp()
    KP = lambda j: 18 + 10 * j
    QT = lambda rt, h: 88 + 16 * rt + 4 * h
    VP = lambda t, j: 120 + 6 * t + 2 * j if t < 4 else 48 + 2 * j
    ONE = 72
    def pack_kv(rt):
        o = []
        for q in range(2):
            o += [cv(QT(rt, 3) + 2 + q, acc(4, rt) + 2*q), f"v_mov_b32 v{KP(1+rt) + 8 + q}, 0"]
        for tau in range(4):
            o += [cv(KP(1+rt) + 2*tau + q, acc(5+tau, rt) + 2*q) for q in range(2)]
        o += [f"v_permlane32_swap_b32 v{QT(rt,3) + 2 + q}, v{KP(1+rt) + 8 + q}" for q in range(2)]
        for t in range(5):
            o += [cv(VP(t, 1+rt) + q, acc(9+t, rt) + 2*q) for q in range(2)]
        return o
    def pack_q(rt):
        o = []
        for t in range(4):
            for q in range(2):
                d = QT(rt, t) + q
                o.append(cv(d, acc(t, rt) + 2*q))
                if (t, q) in SPLITS:
                    m = SPLITS[(t, q)]; lo = QT(rt, t-1) + 2 + q
                    o += [f"v_cndmask_b32 v{lo}, 0, v{d}, s[{m}:{m+1}]", f"v_xor_b32 v{d}, v{d}, v{lo}"]
        return o + [f"v_mov_b32 v{QT(rt,0) + 3}, 0"]
    weave([], pack_kv(1))
    a(f"s_bitcmp1_b32 s{sWAVE}, 0\ns_cbranch_scc1 L_AC_nodump")
    for j in range(5):
        a(f"ds_write_b64 v{vEXW}, {vr(KP(2) + 2*j, 2)} offset:{512*j}")
        a(f"ds_write_b64 v{vEXW}, {vr(VP(j, 2), 2)} offset:{512*(5+j)}")
    a("L_AC_nodump:")
    weave([], pack_kv(0) + pack_q(1))
    a("s_waitcnt lgkmcnt(0)\ns_barrier")
    for j in range(5):
        a(f"ds_read_b64 {vr(KP(0) + 2*j, 2)}, v{vEXR} offset:{512*j}")
        a(f"ds_read_b64 {vr(VP(j, 0), 2)}, v{vEXR} offset:{512*(5+j)}")
    SC = lambda rt, h: (224 if rt else 184) + 8 * h
    MX = lambda rt: [76 + 4 * rt + h for h in range(4)]
    PT = lambda rt, h: 144 + 16 * rt + 4 * h
    def qk(rt):
        o = []
        for h in range(4):
            o += [mf(SC(rt, h), KP(1+rt) + 2*h, QT(rt, h), MC), mf(SC(rt, h) + 4, KP(rt) + 2*h, QT(rt, h), MP if rt else MPF)]
        return o
    def rowmax(rt):
        o = []
        for h in range(4):
            s = SC(rt, h); m = MX(rt)[h]
            o += [f"v_max_f32 v{s+r}, v{s+r}, v{s+4+r}" for r in range(4)]
            o += [f"v_max3_f32 v{m}, v{s}, v{s+1}, v{s+2}", f"v_max_f32 v{m}, v{m}, v{s+3}"]
        return o
    def xmax(rt):
        m = MX(rt)
        return [f"v_permlane32_swap_b32 v{m[0]}, v{m[1]}", f"v_permlane32_swap_b32 v{m[2]}, v{m[3]}",
                f"v_max_f32 v{m[0]}, v{m[0]}, v{m[1]}", f"v_max_f32 v{m[2]}, v{m[2]}, v{m[3]}",
                f"v_permlane16_swap_b32 v{m[0]}, v{m[2]}", f"v_max_f32 v{m[0]}, v{m[0]}, v{m[2]}",
                f"v_mul_f32 v{m[0]}, s{sT2}, v{m[0]}", f"v_mov_b32 v{m[2]}, v{m[0]}",
                f"v_permlane16_swap_b32 v{m[0]}, v{m[2]}", f"v_mov_b32 v{m[1]}, v{m[0]}", f"v_mov_b32 v{m[3]}, v{m[2]}",
                f"v_permlane32_swap_b32 v{m[0]}, v{m[1]}", f"v_permlane32_swap_b32 v{m[2]}, v{m[3]}"]
    def scale(rt):
        if OPT.get("pka", 2) < 2:
            return [f"v_fma_f32 v{SC(rt,h)+r}, v{SC(rt,h)+r}, s56, v{MX(rt)[h]}" for h in range(4) for r in range(4)]
        return [f"v_pk_fma_f32 {vr(SC(rt,h)+r,2)}, {vr(SC(rt,h)+r,2)}, s[56:57], {vr(MX(rt)[h] & ~1, 2)} op_sel:[0,0,{h%2}] op_sel_hi:[1,1,{h%2}]"
                for h in range(4) for r in (0, 2)]
    def probs(rt):
        o = []
        for h in range(4):
            s = SC(rt, h); p = PT(rt, h)
            o += [f"v_exp_f32 v{s+r}, v{s+r}" for r in range(4)]
            if h:
                o += split(rt, h - 1)
        return o + split(rt, 3)
    def split(rt, h):
        s = SC(rt, h); p = PT(rt, h); o = []
        for q in range(2):
            o += [cv(p + q, s + 2*q), f"v_and_b32 v{p+2+q}, v{p+q}, v{PM+q}", f"v_xor_b32 v{p+q}, v{p+q}, v{p+2+q}"]
        return o
    OB = lambda rt, t: (224 if rt else 184) + 4 * t
    OA = lambda rt, t: (224 if rt else 184) + 12 + 4 * t
    SM = lambda rt, h: 88 + 16 * rt + 4 * h
    OF = lambda rt: 18 + 10 * rt
    def pv(rt):
        o = [mf(SM(rt, h), ONE, PT(rt, h), "0") for h in range(4)]
        for t in range(5):
            if t < 4: o.append(mf(OB(rt, t), VP(t, rt), PT(rt, t), "0"))
            if t > 0: o.append(mf(OA(rt, t), VP(t, rt), PT(rt, t-1), "0"))
        return o
    def finish(rt, pk):
        o = [f"v_rcp_f32 v{SM(rt,h)}, v{SM(rt,h)}" for h in range(4)]
        for t in range(5):
            for q in range(2):
                d = OF(rt) + 2*t + q
                srcs = []
                if t < 4: srcs.append((OB(rt, t) + 2*q, SM(rt, t), d))
                if t == 4: srcs.append((OA(rt, t) + 2*q, SM(rt, 3), d))
                if (t, q) in SPLITS: srcs.append((OA(rt, t) + 2*q, SM(rt, t-1), 17))
                for x, inv, dd in srcs:
                    if pk:
                        o += [f"v_pk_mul_f32 {vr(x,2)}, {vr(x,2)}, {vr(inv,2)} op_sel_hi:[1,0]", cv(dd, x)]
                    else:
                        o += [f"v_mul_f32 v{x}, v{x}, v{inv}", f"v_mul_f32 v{x+1}, v{x+1}, v{inv}", cv(dd, x)]
                if (t, q) in SPLITS:
                    m = SPLITS[(t, q)]
                    o.append(f"v_cndmask_b32 v{d}, v{d}, v17, s[{m}:{m+1}]")
        return o
    a(f"s_mov_b32 s56, {f32(CSC)}\ns_mov_b32 s57, s56\ns_mov_b32 s{sT2}, {f32(-CSC)}")
    weave(qk(1), pack_q(0) + [f"v_mov_b32 v{ONE+j}, 0x3f803f80" for j in range(4)])
    a("s_waitcnt lgkmcnt(0)")
    weave(qk(0), rowmax(1))
    x1, x0 = xmax(1), xmax(0)
    r0 = rowmax(0)
    for i, x in enumerate(x1):
        a(x)
        for y in r0[2*i:2*i+2]: a(y)
    p1 = scale(1) + probs(1)
    for i, x in enumerate(x0):
        a(x)
        for y in p1[2*i:2*i+2]: a(y)
    if OPT.get("pka", 2) > 1:
        weave([], p1[2*len(x0):] + scale(0))
        weave(pv(1), probs(0))
    else:
        weave([], p1[2*len(x0):])
        weave(pv(1), scale(0) + probs(0))
    f1 = finish(1, False)
    f1p = finish(1, OPT.get('pka', 2) > 1)
    cutp = next(i for i, x in enumerate(f1p) if x.startswith(f"v_cvt_pk_bf16_f32 v{OF(1) + 3},")) + 1
    cutn = next(i for i, x in enumerate(f1) if x.startswith(f"v_cvt_pk_bf16_f32 v{OF(1) + 3},")) + 1
    weave(pv(0), f1[:cutn])
    weave([], f1p[cutp:])
    o_store(OF(1), vOF, vOL, 1)
    weave([], finish(0, OPT.get('pka', 2) > 0))
    o_store(OF(0), vOF, vOL, 0)
    stamp()
    a("s_branch L_P2")

def phi(r, n, t):
    o = [f"v_pk_fma_f32 {vr(t[j],2)}, {vr(r+j,2)}, s[56:57], v[14:15]" for j in range(0, n, 2)]
    for j in range(n):
        o += [f"v_exp_f32 v{t[j]}, v{t[j]} clamp", f"v_max_f32 v{r+j}, s{sT2}, v{r+j}"]
    return o + [f"v_pk_add_f32 {vr(r+j,2)}, {vr(r+j,2)}, {vr(t[j],2)}" for j in range(0, n, 2)]

def b_consumer():
    acc = lambda t, rt: 184 + (t * 2 + rt) * 4
    wf = lambda t: 148 + 4 * t
    xf = lambda ks, rt: 52 + ks * 8 + rt * 4 if ks < 12 else 36 + (ks % 2) * 8 + rt * 4
    aW, aS, aX = 1, 2, 6
    vOF, vOL, vEX = 8, 9, 10
    CK, CS = 28, 32
    a("L_BC:")
    karg_rest(False)
    a("s_waitcnt lgkmcnt(0)")
    srds_rest()
    init_stores("BC", True)
    rd_lanes(aW, aS, 17, 18); x_lane(aX, aX + 1, 17)
    a(f"""
s_lshl_b32 s{sT}, s{sWAVE}, 12
s_add_u32 s{sT}, s{sT}, {B_X0}
v_add_u32 v{aX}, s{sT}, v{aX}
v_add_u32 v{aX+1}, s{sT}, v{aX+1}
v_and_b32 v17, 15, v0
v_cmp_gt_u32 vcc, 8, v17
v_mov_b32 v18, {EPS}
s_mov_b64 s[42:43], vcc
s_mul_i32 s{sT}, s{sWAVE}, 10240
s_add_u32 s{sT}, s{sT}, {B_EX}
v_lshl_add_u32 v{vEX}, v0, 4, s{sT}
v_mov_b32 v14, {f32(-1e-6*LOG2E)}
v_mov_b32 v15, v14
s_mov_b32 s56, {f32(LOG2E)}
s_mov_b32 s57, s56
""")
    for r in range(4):
        a(f"v_mov_b32 v{CK+r}, v18\nv_cndmask_b32 v{CS+r}, 0, v18, vcc")
    o_store_addr(vOF, vOL, 17, False)

    def wreads(ks, t):
        o = (ks % 5) * B_KVSLOT
        if t != 4:
            o += 32 * t if t < 4 else SLAB2 + 32 * (t - 5)
        return [tr(wf(t), aS if t == 4 else aW, o), tr(wf(t) + 2, aS if t == 4 else aW, o + 1280)]
    xread = lambda ks, rt: f"ds_read_b128 {vr(xf(ks, rt),4)}, v{aX + ks % 2} offset:{(ks//2 % 3)*B_XSLOT + rt*2048}"

    stamp()
    a("s_barrier")
    stamp()
    pair = lambda ks, t: [mf(acc(t, rt), xf(ks, rt), wf(t), acc(t, rt) if ks else (CK if t < 4 else CS if t == 4 else "0")) for rt in range(2)]
    def hook(ks, t):
        if (ks, t) == (3, 0):
            init_flags("BC")
    reread = lambda t: f"ds_read_b128 {vr(wf(t),4)}, v{aX + t//2 % 2} offset:{(6 + t//4) % 3*B_XSLOT + t % 2*2048}" if t < 8 else None
    ring_loop(9, OPT.get("db", 4), pair, wreads, xread, hook, reread)
    stamp()
    a(f"s_mov_b32 s{sT2}, {EPS}\nv_mov_b32 v16, 0x3f803f80")
    wr = lambda reg, slot: f"ds_write_b128 v{vEX}, {vr(reg,4)} offset:{1024*slot}"
    pk = lambda d, s: [cv(d + j, s + 2*j) for j in range(4)]
    xq = lambda ks, rt: wf(2 * (ks - 12) + rt) if 12 <= ks < 16 else xf(ks, rt)
    for tau in range(4):
        weave([], pk(acc(5+tau, 0), acc(5+tau, 0)))
    V4, TM = acc(7, 1), [acc(5, 1) + j for j in range(4)] + [acc(6, 1) + j for j in range(4)]
    a("s_waitcnt lgkmcnt(0)\ns_barrier")
    weave([], pk(V4, acc(4, 0)) + [f"v_cndmask_b32 v{V4+j}, v{V4+j}, v16, s[42:43]" for j in range(4)])
    for tau in range(5):
        o = phi(acc(tau, 0), 8, TM)
        weave([], o[:8] + [wr(acc(5+tau, 0) if tau < 4 else V4, 5 + tau)] + o[8:] + pk(acc(tau, 0), acc(tau, 0)) + [wr(acc(tau, 0), tau)])
    a(f"v_add_u32 v3, {R1}, v{aW}\nv_add_u32 v4, 15360, v{aW}")
    a("s_waitcnt lgkmcnt(0)\ns_barrier")
    stamp()
    QA = lambda t, rt: 216 + (t * 2 + rt) * 4
    qf = lambda t: 184 + 4 * t
    def qreads(p, t):
        ad, o = (3, wq_slot(p) - R1) if p < 3 else (aW, wq_slot(p)) if p < 6 else (4, wq_slot(p) - 15360)
        return [tr(qf(t), ad, o + 32*t), tr(qf(t) + 2, ad, o + 32*t + 1280)]
    for t in range(5):
        for x in qreads(0, t): a(x)
    if OPT.get("x2", 1):
        a("s_barrier")
    for p in range(18):
        ks = p
        if p in (2, 11):
            if OPT.get("fine") == 3: stamp()
            a("s_barrier")
            if OPT.get("fine") == 3: stamp()
        tiles = [[mf(QA(t, rt), qf(t), xq(ks, rt), QA(t, rt) if p else CK) for rt in range(2)] for t in range(5)]
        if p < 17:
            nxt = [qreads(p + 1, t) for t in range(5)]
            kstep(tiles, nxt, [], {t: f"s_waitcnt lgkmcnt({7 if t else 8})" for t in range(5)})
        else:
            kstep(tiles, None, [], {t: f"s_waitcnt lgkmcnt({8 - 2*t})" for t in range(5)})
    stamp()
    PQ = lambda rt: 36 + 10 * rt
    KO = 84
    tup = {0: KO, 1: KO + 4, 2: KO + 12, 3: KO + 20, 4: KO + 28}
    ZO = KO + 32
    weave([], [f"v_mov_b32 v{r}, 0" for r in (tup[1]+4, tup[1]+5, tup[2]+4, tup[2]+5, tup[3]+4, tup[3]+5, ZO+8, ZO+9)])
    a(f"v_lshlrev_b32 v16, 3, v0\nv_add_u32 v16, {B_KVOP}, v16")
    for t in range(5):
        weave([], phi(QA(t, 0), 8, list(range(148, 156))) + [cv(PQ(rt) + 2*t + q, QA(t, rt) + 2*q) for rt in range(2) for q in range(2)])
    stamp()
    a("s_barrier")
    stamp()
    tid = lambda tau, taup: {-1: tau - 1, 0: 4 + tau, 1: 9 + tau}[taup - tau]
    rd = lambda d, slot: a(f"ds_read_b64 {vr(d,2)}, v16 offset:{512*slot}")
    for j, d in enumerate((ZO, ZO + 2, ZO + 4, ZO + 6, ZO + 10)):
        rd(d, 13 + j)
    rd(tup[0], tid(0, 0)); rd(tup[0] + 2, tid(1, 0))
    for t in (1, 2, 3):
        rd(tup[t], tid(t-1, t)); rd(tup[t] + 2, tid(t, t)); rd(tup[t] + 6, tid(t+1, t))
    rd(tup[4], tid(3, 4)); rd(tup[4] + 2, tid(4, 4))
    DN = lambda rt: 148 + 4 * rt
    NM = lambda rt, t: 184 + 20 * rt + 4 * t
    OF = lambda rt: 156 + 10 * rt
    a("s_waitcnt lgkmcnt(13)")
    for k, (zo, po) in enumerate(((0, 0), (4, 4), (8, 6))):
        for rt in range(2):
            a(mf(DN(rt), ZO + zo, PQ(rt) + po, DN(rt) if k else CK))
    a("s_waitcnt lgkmcnt(0)")
    def num(rt):
        o = [mf(NM(rt, t), tup[t], PQ(rt) + 2*(t-1), "0") for t in (1, 2, 3)]
        o += [mf(NM(rt, 0), tup[0], PQ(rt), "0"), mf(NM(rt, 4), tup[4], PQ(rt) + 6, "0")]
        return o + [mf(NM(rt, t), tup[t] + 4, PQ(rt) + 2*t, NM(rt, t)) for t in (1, 2, 3)]
    def fin(rt, packed):
        o = []
        for t in (0, 4, 1, 2, 3):
            for q in range(2):
                inv = DN(rt) + min(t, 3)
                if (t, q) in SPLITS:
                    m = SPLITS[(t, q)]
                    o.append(f"v_cndmask_b32 v17, v{DN(rt)+t}, v{DN(rt)+t-1}, s[{m}:{m+1}]")
                    inv = 17
                n = NM(rt, t) + 2*q
                o += [f"v_pk_mul_f32 {vr(n,2)}, {vr(n,2)}, {vr(inv & ~1,2)} op_sel:[0,{inv%2}] op_sel_hi:[1,{inv%2}]", cv(OF(rt) + 2*t + q, n)]
        return o
    weave(num(0), [], 0)
    weave(num(1), [f"v_rcp_f32 v{DN(rt)+h}, v{DN(rt)+h}" for rt in range(2) for h in range(4)], 1)
    for rt in range(2):
        weave([], fin(rt, True))
        o_store(OF(rt), vOF, vOL, rt)
    stamp()

def kv_index(wreg, VS, VG, VZ):
    a(f"s_cmp_eq_u32 s{wreg}, 0\ns_cselect_b32 s58, 4, s{wreg}")
    for slot in range(3):
        if slot == 0:
            a(f"s_lshl_b32 s{sT}, s58, 4\ns_sub_u32 s{sT2}, s{sT}, 16\ns_mov_b64 s[46:47], 0")
        elif slot == 1:
            a(f"s_lshl_b32 s{sT}, s{wreg}, 4\ns_mov_b32 s{sT2}, s{sT}")
        else:
            a(f"s_add_u32 s{sT2}, s{sT}, 16\ns_cmp_eq_u32 s{wreg}, 3\ns_cselect_b32 s{sT2}, 56, s{sT2}\ns_cselect_b64 s[46:47], s[44:45], 0")
        kv_tile(VS and VS + 2*slot, VG and VG + 2*slot, False)
    if VZ:
        kv_z(VZ)

def kv_tile(VS, VG, last):
    a(f"v_add_u32 v3, s{sT2}, v1")
    head_of(4, 3)
    a(f"v_mul_u32_u24 v5, 18, v4\nv_sub_u32 v3, v3, v5\nv_cndmask_b32 v4, v4, 7, s[46:47]")
    if last:
        a("v_cmp_eq_u32 vcc, 0, v1\nv_cndmask_b32 v4, v4, 3, vcc\nv_cndmask_b32 v3, v3, 18, vcc")
    for q in range(2):
        a(f"v_add3_u32 v5, v2, s{sT}, {2*q}")
        head_of(6, 5)
        a("v_cmp_eq_u32 vcc, v4, v6\nv_mad_u32_u24 v5, v5, 19, v3\nv_lshlrev_b32 v5, 2, v5")
        if VS:
            a(f"v_add_u32 v6, {B_STG}, v5\nv_cndmask_b32 v{VS+q}, v8, v6, vcc")
        if VG:
            a(f"v_add_u32 v6, s{sM}, v5\nv_cndmask_b32 v{VG+q}, v9, v6, vcc")

def kv_z(VZ):
    a("v_and_b32 v3, 3, v0")
    for q in range(2):
        a(f"v_add3_u32 v5, v2, s{sT}, {2*q}")
        head_of(6, 5)
        a(f"v_cmp_eq_u32 vcc, v3, v6\nv_mul_u32_u24 v5, 76, v5\nv_add3_u32 v5, v5, s{sM}, 64\nv_add_u32 v5, 8, v5\nv_cndmask_b32 v{VZ+q}, v9, v5, vcc")

def b_loader(kind):
    a(f"L_B{kind}1:")
    m = M0(42)
    issue = (lambda c: w_issue("B", c, m)) if kind == "W" else (lambda c: x_issue("B", c, m))
    late2 = kind == "W" and OPT.get("early", 2) & 2
    cnt = ({1: 6} if late2 else {1: 6, 2: issue(2)}) if kind == "W" else {1: 4, 2: 4}
    karg_rest()
    a("s_mov_b32 s59, 0")
    stamp()
    mark = len(a.lines)
    a("s_waitcnt lgkmcnt(0)")
    VS, VG, vZS, vEA, vE0, vEL, vLA, vGA, vLW = 72, 80, 98, 99, 100, 101, 102, 103, 105
    if kind == "W":
        for j in range(3):
            a(f"v_subrev_u32 v{VD+3+j}, 1152, v{VD+j}")
    srds_rest()
    if kind == "W":
        wo_setup(False)
    else:
        sync_setup()
    a(f"""
s_add_u32 s55, s{sV}, 2
s_mul_i32 s{sM}, s{sHG}, {KV_ST}
s_add_u32 s{sM}, s{sM}, {WS_KV}
v_and_b32 v1, 15, v0
v_lshrrev_b32 v2, 4, v0
v_lshlrev_b32 v2, 2, v2
v_cmp_gt_u32 s[44:45], 8, v1
v_lshlrev_b32 v8, 2, v0
v_add_u32 v8, {B_DUMP}, v8
v_mov_b32 v9, {OOB}
""")
    own = sV if kind == "X" else 55
    if kind == "X":
        kv_index(55, None, VG, VG + 6)
        a(f"s_movk_i32 s{sT}, 64")
        kv_z(10)
    kv_index(own, VS, VG + 8 if kind == "X" else None, VG + 14 if kind == "X" else None)
    a(f"""
v_add_u32 v5, s{sT}, v0
v_mul_u32_u24 v5, 76, v5
v_add_u32 v5, {B_STG + 72}, v5
v_cndmask_b32 v{vZS}, v8, v5, s[{sG0}:{sG0+1}]
v_lshlrev_b32 v{vEL}, 4, v0
v_add_u32 v{vEL}, {B_EX}, v{vEL}
s_lshl_b32 s{sT}, s{own}, 10
v_add_u32 v{vEA}, s{sT}, v{vEL}
s_lshl_b32 s{sT}, s58, 10
v_add_u32 v{vE0}, s{sT}, v{vEL}
""")
    if kind == "X":
        a(f"s_movk_i32 s{sT}, 64\ns_movk_i32 s{sT2}, 56\ns_mov_b64 s[46:47], s[44:45]")
        kv_tile(VS + 6, VG + 16, True)
        a(f"s_cmp_eq_u32 s{sV}, 0\ns_cselect_b64 s[46:47], -1, 0")
        for q in range(2):
            a(f"v_cndmask_b32 v{VS+6+q}, v8, v{VS+6+q}, s[46:47]\nv_cndmask_b32 v{VG+16+q}, v{10+q}, v{VG+16+q}, s[46:47]")
        a(f"""
v_lshlrev_b32 v5, 3, v0
v_add_u32 v5, {B_KVOP}, v5
s_lshl_b32 s{sT2}, s58, 9
s_sub_u32 s{sT2}, s{sT2}, 512
v_add_u32 v{vLW+2}, s{sT2}, v5
s_lshl_b32 s{sT2}, s{sV}, 9
v_add_u32 v{vLW+1}, s{sT2}, v5
v_add_u32 v{vLW}, 1024, v{vLW+1}
s_mul_i32 s{sT2}, s{sV}, {9*512}
v_add_u32 v{vLW+3}, s{sT2}, v5
s_mul_i32 s{sT}, s{sV}, 2816
v_lshl_add_u32 v{vLA}, v0, 2, s{sT}
v_add_u32 v{vGA}, s{sM}, v{vLA}
v_cmp_gt_u32 vcc, {5472 - 2560}, v{vLA}
v_cndmask_b32 v{vGA+1}, v9, v{vGA}, vcc
v_add_u32 v{vLA}, {B_STG}, v{vLA}
v_mov_b32 v4, 0
""")
    a(f"v_mov_b32 v10, {B_LCNT}\nv_mov_b32 v11, 1")
    if kind == "X":
        a("ds_write_b32 v10, v4\ns_waitcnt lgkmcnt(0)")
    setup = a.lines[mark:]
    del a.lines[mark:]
    a(f"s_waitcnt vmcnt({sum(cnt.values())})\ns_barrier")
    stamp()
    extra = 0
    for i in range(-1, 16):
        if i == -1 and late2:
            cnt[2] = issue(2)
        if i + 4 <= 17:
            cnt[i+4] = issue(i + 4)
        if 0 <= i < 9:
            spread(setup, i, 9)
        if i == 10 and kind == "X":
            flag_load(sFO, 98); flag_load(sFK, 99)
        if kind == "W" and i >= 14:
            extra += sum(wq_issue(p, m) for p in ((0, 1) if i == 14 else (2,)))
        left = sum(cnt.get(c, 0) for c in range(i + 3, min(i + 4, 17) + 1)) + extra
        a(f"s_waitcnt vmcnt({left})\ns_barrier")
    a("s_barrier")
    if kind == "W":
        for p in range(3, 12):
            wq_issue(p, m)
        a("s_waitcnt vmcnt(33)")
    else:
        flag_check(sFK, 99, "L_BX_fk")
    stamp()
    a("s_barrier")
    stamp()
    KT = lambda s: 40 + 4 * s
    RD = lambda src, j: 112 + 28 * src + 4 * j
    srcs = ((vEA, 0), (vE0, 0), (vE0, 4096), (vEA, 5120), (vEA, 6144), (vEL, 9216), (vEL, 4096))
    prods = ((1, 2), (0, 3), (0, 4), (6, 5), (5, 0))
    if kind == "W":
        srcs = ((vEA, 0), None, (vE0, 4096), (vEA, 5120), (vEA, 6144), (vEL, 9216))
        prods = ((0, 2), (0, 3), (0, 4), None, (5, 0))
    nr = sum(x is not None for x in srcs)
    for src in range(4):
        for j, x in enumerate(srcs):
            if x: a(f"ds_read_b128 {vr(RD(src, j),4)}, v{x[0]} offset:{src*10240 + x[1]}")
    for src in range(4):
        a(f"s_waitcnt lgkmcnt({min(15, nr*(3-src))})")
        for s_, x in enumerate(prods):
            if x: a(mf(KT(s_), RD(src, x[0]), RD(src, x[1]), KT(s_) if src else "0"))
    for s_ in range(4 if kind == "X" else 3):
        for r in range(4):
            a(f"ds_write_b32 v{VS + 2*s_ + r//2}, v{KT(s_)+r} offset:{76*(r%2)}")
    a(f"ds_write_b32 v{vZS}, v{KT(4)}")
    if OPT.get("x2", 1):
        a(f"s_waitcnt {'vmcnt(0) ' if kind == 'W' else ''}lgkmcnt(0)\ns_barrier")
    else:
        a("s_waitcnt lgkmcnt(0)\ns_mov_b64 exec, 1\nds_add_u32 v10, v11\ns_mov_b64 exec, -1")
    stamp()
    if kind == "W":
        a("s_barrier")
        for p in range(12, 18):
            wq_issue(p, m)
        early = range(1, 1 + OPT.get("nb0", 2))
        n = sum(wo_pair(g) for g in early)
        a(f"s_waitcnt vmcnt({n})\ns_barrier")
        for g in range(OPT.get('nb1', 4)):
            if g not in early: wo_pair(g)
        stamp()
        a("s_barrier")
        for g in range(OPT.get('nb1', 4), OPT.get('nb2', 6)): wo_pair(g)
        loader_tail("BW", lambda: [wo_pair(g) for g in range(OPT.get('nb2', 6), 9)])
        return
    if not OPT.get("x2", 1):
      a(f"""
s_mov_b32 s{sT3}, 0x400000
L_BX_st:
ds_read_b32 v2, v10
s_waitcnt lgkmcnt(0)
v_readfirstlane_b32 s{sT}, v2
s_sub_u32 s{sT3}, s{sT3}, 1
s_cbranch_scc1 L_BX_st_x
s_cmp_ge_u32 s{sT}, 4
s_cbranch_scc0 L_BX_st
L_BX_st_x:
""")
    for n in range(11):
        a(f"ds_read_b32 v{40+n}, v{vLA} offset:{256*n}")
    for n in range(11):
        a(f"s_waitcnt lgkmcnt({10-n})")
        a(f"buffer_atomic_add_f32 v{40+n}, v{vGA + (n == 10)}, s[{SWS}:{SWS+3}], 0 offen offset:{256*n}")
    stamp()
    a("s_barrier\ns_waitcnt vmcnt(0)")
    stamp()
    a(f"s_mov_b32 s97, 1\ns_atomic_add s97, s[{sKC}:{sKC+1}], 0 glc\ns_barrier\ns_waitcnt lgkmcnt(0)\ns_cmp_ge_u32 s97, 31\ns_cbranch_scc1 L_BX_kc_x")
    arrive_wait(sKC, 32, "L_BX_kc", False)
    stamp()
    for s_ in range(9):
        for r in range(4):
            a(f"buffer_load_dword v{112+4*s_+r}, v{VG + 2*s_ + r//2}, s[{SWS}:{SWS+3}], 0 offen offset:{76*(r%2)} sc1")
    dst = ((vLW, -1), (vLW, 4), (vLW, 9), (vLW, 13), (vLW + 2, 0), (vLW + 1, 4), (vLW + 1, 9), (vLW + 1, 13), (vLW + 3, 8))
    a(f"v_subrev_u32 v11, 512, v{vLW}")
    for s_, (ad, off) in enumerate(dst):
        a(f"s_waitcnt vmcnt({4*(8-s_)})")
        a(cv(40 + 2*s_, 112 + 4*s_)); a(cv(41 + 2*s_, 114 + 4*s_))
        a(f"ds_write_b64 v{11 if off < 0 else ad}, {vr(40+2*s_,2)} offset:{512*max(off, 0)}")
    a("s_waitcnt lgkmcnt(0)")
    stamp()
    a("s_barrier")
    loader_tail("BX")

def p2_consumer():
    OFR = lambda ks, c: 112 + ks * 8 + c * 4
    ORDER = [(0, 0), (0, 1), (4, 0), (1, 0), (1, 1), (2, 0), (2, 1), (5, 0), (3, 0), (3, 1)]
    ACC = lambda t, c: 72 + 4 * ORDER.index((t, c))
    wf = lambda t: 48 + 4 * t
    AD, vO, vTW, vTR, VS = 1, 5, 7, 10, 14
    a("L_P2:")
    nstamp[0] = 9 if OPT.get('fine') != 3 else 10
    out_cols(57, 59, 39)
    a(f"""
v_lshrrev_b32 v40, 5, v0
v_lshlrev_b32 v40, 4, v40
v_bfe_u32 v41, v0, 4, 1
v_lshl_add_u32 v40, v41, 2, v40
v_bfe_u32 v42, v0, 2, 2
v_add_u32 v40, v40, v42
v_mul_u32_u24 v40, 192, v40
v_and_b32 v42, 3, v0
v_lshl_add_u32 v40, v42, 3, v40
v_add_u32 v40, {R1}, v40
v_lshl_add_u32 v42, v41, 5, v40
v_xor_b32 v41, 1, v41
v_lshl_add_u32 v43, v41, 5, v40
v_add_u32 v{AD}, s59, v42
v_add_u32 v{AD+1}, s59, v43
s_lshl_b32 s{sT}, s59, 1
s_sub_u32 s38, 128, s{sT}
v_add_u32 v{AD+2}, s38, v42
v_add_u32 v{AD+3}, s38, v43
s_mul_i32 s{sT}, s59, 288
s_add_u32 s{sT2}, s58, s{sT}
v_lshl_add_u32 v{vO}, v0, 4, s{sT2}
s_sub_u32 s{sT2}, s58, s{sT}
s_add_u32 s{sT2}, s{sT2}, 18432
v_lshl_add_u32 v{vO+1}, v0, 4, s{sT2}
s_mul_i32 s40, s{sWAVE}, 5632
s_add_u32 s40, s40, {P_TR}
v_and_b32 v40, 15, v0
v_lshrrev_b32 v41, 4, v0
v_lshl_add_u32 v41, v41, 3, s40
v_mul_u32_u24 v42, 208, v40
v_add_u32 v42, v42, v41
v_add_u32 v{vTW}, s59, v42
v_add_u32 v{vTW+1}, s38, v42
v_mul_u32_u24 v42, 144, v40
v_add_u32 v42, 3328, v42
v_add_u32 v{vTW+2}, v42, v41
s_lshr_b32 s{sT}, s{sWAVE}, 1
s_and_b32 s{sT2}, s{sWAVE}, 1
s_lshl_b32 s{sT2}, s{sT2}, 5
s_lshl_b32 s{sT3}, s{sWAVE}, 5
s_cmp_eq_u32 s{sBR}, 0
s_cselect_b32 s42, s{sT}, 0
s_cselect_b32 s43, s{sT2}, s{sT3}
s_cselect_b32 s55, 1, 0
s_lshl_b32 s56, s42, 3
s_lshl_b32 s{sT}, s{sRB}, 7
s_add_u32 s42, s42, s{sT}
s_mul_i32 s{sT}, s{sBR}, 1152
s_add_u32 s57, s57, s{sT}
s_lshr_b32 s{sT}, s59, 2
s_add_u32 s41, s43, s{sT}
s_sub_u32 s43, s43, s{sT}
s_add_u32 s43, s43, 16
s_add_u32 s59, s59, s57
v_mov_b32 v43, {OOB}
""")
    for n in range(5):
        if n < 3:
            a(f"""
v_add_u32 v40, {64*n}, v0
v_mul_u32_u24 v41, 5462, v40
v_lshrrev_b32 v41, 16, v41
v_mad_i32_i24 v40, v41, -12, v40
v_mul_u32_u24 v42, 208, v41
v_lshl_add_u32 v42, v40, 4, v42
v_add_u32 v{vTR+n}, s40, v42
v_cmp_gt_u32 vcc, s39, v40
v_add_u32 v41, s41, v41
""")
        else:
            a(f"v_and_b32 v40, 7, v0\nv_lshrrev_b32 v41, 3, v0")
            if n == 3:
                a(f"v_mul_u32_u24 v42, 144, v41\nv_lshl_add_u32 v42, v40, 4, v42\nv_add_u32 v42, 3328, v42\nv_add_u32 v{vTR+3}, s40, v42")
            a(f"v_add3_u32 v41, v41, s43, {8*(n-3)}")
        a(f"""
v_xor_b32 v41, s56, v41
v_lshlrev_b32 v41, s55, v41
v_add_u32 v41, s42, v41
v_mul_u32_u24 v41, 2304, v41
v_lshl_add_u32 v41, v40, 4, v41
v_add_u32 v{VS+n}, s{57 if n < 3 else 59}, v41
""")
        if n < 3:
            a(f"v_cndmask_b32 v{VS+n}, v43, v{VS+n}, vcc")
    SO = [8, 9, 10, 11, 12, 13, 14, 15, 36]
    rho(37)
    a(f"s_movk_i32 s{SO[0]}, 16384")
    for j in range(1, 9):
        a(f"s_add_u32 s{sT}, s37, {2*j-2}\ns_and_b32 s{sT}, s{sT}, 15\ns_lshl_b32 s{SO[j]}, s{sT}, 10")
    if OPT.get("touch"):
        a(f"""
v_bfe_u32 v40, v0, 4, 1
v_and_b32 v41, 15, v0
s_lshl_b32 s{sT}, s{sHG}, 11
s_add_u32 s{sT}, s{sT}, s58
v_lshl_add_u32 v41, v41, 7, s{sT}
v_mul_u32_u24 v40, 18432, v40
v_add_u32 v42, v40, v41
v_bfe_u32 v40, v0, 1, 1
v_and_b32 v41, 1, v0
s_lshr_b32 s{sT}, s{sHG}, 2
s_lshl_b32 s{sT}, s{sT}, 10
s_and_b32 s{sT2}, s{sHG}, 3
s_lshl_b32 s{sT2}, s{sT2}, 8
s_add_u32 s{sT}, s{sT}, s{sT2}
s_add_u32 s{sT}, s{sT}, s58
s_add_u32 s{sT}, s{sT}, 16384
v_lshl_add_u32 v41, v41, 7, s{sT}
v_mul_u32_u24 v40, 18432, v40
v_add_u32 v40, v40, v41
v_cndmask_b32 v42, v40, v42, s[{sG01}:{sG01+1}]
""")
    a("s_waitcnt vmcnt(0)")
    if OPT.get("touch"):
        a(f"buffer_load_dword v19, v42, s[{SWS}:{SWS+3}], 0 offen")
    stamp()
    a("s_barrier\ns_barrier")
    stamp()
    oload = lambda ks, c: f"buffer_load_dwordx4 {vr(OFR(ks, c),4)}, v{vO + c}, s[{SWS}:{SWS+3}], s{SO[ks//2]} offen offset:{1024*(ks%2)}{FLAGS[OPT.get('old', 2)]}"
    base = lambda ks: R1 if ks < 2 else R2 if ks < 10 else 0
    adr = lambda t: AD + (2 if t >= 4 else 0) + t % 2
    moved = set()
    def wreads(ks, t):
        o = WO[ks] - base(ks) + (64 * (t // 2) if t < 4 else 0)
        pre = ""
        if ks and base(ks) != base(ks - 1) and (ks, adr(t)) not in moved:
            moved.add((ks, adr(t)))
            pre = f"v_add_u32 v{adr(t)}, {(base(ks) - base(ks - 1)) & 0xffffffff}, v{adr(t)}\n"
        return [pre + tr(wf(t), adr(t), o), tr(wf(t) + 2, adr(t), o + 1536)]
    todo = [oload(ks, c) for ks in range(18) for c in range(2)]
    done = 2 * OPT["p0"]
    weave([], todo[:done])
    issued, mark, pend, safe = 0, {}, [], -1
    def emit_read():
        nonlocal issued
        key, x = pend.pop(0)
        a(x); mark[key] = issued; issued += 1
    first = list(dict.fromkeys(t for t, c in ORDER))
    for t in first:
        pend += [((0, t), x) for x in wreads(0, t)]
    while pend: emit_read()
    stage = []
    for t, c in ORDER:
        d = 20 + 2 * ORDER.index((t, c))
        ad, off = (vTW + 2, 32*t) if c else (vTW, 32*t) if t < 4 else (vTW + 1, 32*(t - 4))
        stage += [cv(d, ACC(t, c)), cv(d + 1, ACC(t, c) + 2), f"ds_write_b64 v{ad}, {vr(d,2)} offset:{off}"]
    COVER = {0: {}, 2: {0: (0, 4, 1), 5: (2, 5, 3)}, 3: {0: (0, 4), 3: (1, 2), 7: (5, 3)}}
    for ks in range(18):
        now = todo[done:done + (3 if ks < OPT["ramp"] else 2)]
        vm = done - 2 * (ks + 1)
        done += len(now)
        for i, (t, c) in enumerate(ORDER):
            while (ks, t) in [k for k, _ in pend]:
                emit_read()
            w = f"vmcnt({vm}) " if i == 0 else ""
            if mark[(ks, t)] > safe:
                cover = COVER[OPT.get("cov", 2)].get(i, (t,))
                n_ = min(15, issued - 1 - max(mark[(ks, u)] for u in cover if (ks, u) not in [k for k, _ in pend]))
                safe = issued - 1 - n_
                w += f"lgkmcnt({n_})"
            if w:
                a("s_waitcnt " + w)
            a(mf(ACC(t, c), wf(t), OFR(ks, c), ACC(t, c) if ks else "0"))
            if ks < 17 and (c == 1 or t >= 4):
                pend += [((ks + 1, t), x) for x in wreads(ks + 1, t)]
            for _ in range(2 if len(pend) > 2 else 1):
                if pend: emit_read()
            if now and i in {0: (0, 4, 8), 1: (1, 3, 6), 2: (0, 3, 6), 3: (1, 5, 8)}[OPT.get('lg', 2)]:
                a(now.pop(0))
            if ks == 17 and i >= 5:
                for _ in range(2):
                    x = stage.pop(0); a(x)
                    if x.startswith("ds_write"): issued += 1
        if ks == 0 and OPT.get("fine") != 3:
            stamp()
    stamp()
    weave([], stage)
    a("s_waitcnt lgkmcnt(0)")
    for n in range(5):
        a(f"ds_read_b128 {vr(112+4*n,4)}, v{vTR + min(n, 3)} offset:{1152 if n == 4 else 0}")
    for n in range(5):
        a(f"s_waitcnt lgkmcnt({4-n})")
        a(f"buffer_store_dwordx4 {vr(112+4*n,4)}, v{VS+n}, s[{SOUT}:{SOUT+3}], 0 offen{FLAGS[OPT.get('outst', 2)]}")
    stamp()
    stamps_out(0)
    a("s_endpgm")

HEADER = open("concat_heads__sliding_local_dilated__linear_attn_block__prompt.s.ref").read().split("; Override")[0]
out = HEADER + """; One workgroup per CU: (branch, 128-row block, group of 4 heads). Waves 0-3 do the MFMA work, waves 4-7 stream
; weights / activations into LDS. Phase 1: QKV projection + attention (A) or K,V -> kv sums -> Q -> o (B); the o tiles
; are handed over through d_ws; phase 2: output projection. Counters in d_ws are cleared in-launch (flags in d_debug).
; @launch grid=(256,1,1) block=(512,1,1) lds=163840
"""
a('.amdgcn_target "amdgcn-amd-amdhsa--gfx950"\n.text')
a(kernel_head(KN))
stamp()
a(f"""
s_cmp_ge_u32 s2, 256
s_cbranch_scc1 L_end
s_and_b32 s{sT}, s2, 7
s_lshr_b32 s{sBR}, s{sT}, 2
s_mul_i32 s{sT2}, s{sBR}, 24
s_load_dwordx4 s[36:39], s[0:1], s{sT2}
v_lshrrev_b32 v1, 6, v0
v_and_b32 v0, 63, v0
v_readfirstlane_b32 s{sWAVE}, v1
{'s_xor_b32 s3, s3, 4' if OPT.get('lfirst', 0) else ''}
s_bfe_u32 s{sHG}, s2, 0x30003
s_lshr_b32 s{sRB}, s2, 6
s_and_b32 s{sT3}, s{sT}, 3
s_lshl2_add_u32 s{sRB}, s{sT3}, s{sRB}
s_cmp_lt_u32 s{sWAVE}, 4
s_cbranch_scc1 L_cons
s_setprio {OPT.get("prio", 2)}
s_and_b32 s{sV}, s{sWAVE}, 1
s_add_u32 s{sRW}, s{sRB}, s{sHG}
s_and_b32 s{sRW}, s{sRW}, 7
s_lshl_b32 s{sRW}, s{sRW}, 2
s_lshr_b32 s{sRW}, {hex(OPT.get("tab", 0x75207520))}, s{sRW}
s_and_b32 s{sRW}, s{sRW}, 15
s_lshl_b32 s{sRX}, s{sRW}, 7
s_mul_i32 s{sRW}, s{sRW}, {64*3456}
""")
hstamp(12)
a(f"""
s_cmp_lt_u32 s{sWAVE}, 6
s_cbranch_scc1 L_W0
""")
x_head()
a(f"""
L_cons:
s_getpc_b64 s[42:43]
L_pc:
s_lshr_b32 s{sT}, s2, 3
s_lshl2_add_u32 s{sT}, s{sT}, s{sWAVE}
s_lshl_b32 s{sT}, s{sT}, 9
v_and_b32 v1, 3, v0
v_lshl_add_u32 v1, v1, 7, s{sT}
v_min_u32 v1, L_last-L_pc, v1
global_load_dword v27, v1, s[42:43]
""")
karg_loads()
a(f"""
s_cmp_eq_u32 s{sBR}, 0
s_cbranch_scc1 L_AC
s_branch L_BC
L_end:
s_endpgm
""")
w_head()
n0 = nstamp[0]
for fn in (lambda: a_loader("W"), lambda: a_loader("X"), a_consumer, lambda: b_loader("W"), lambda: b_loader("X"), b_consumer, p2_consumer):
    nstamp[0] = n0
    fn()
a("L_last:\ns_endpgm")
lines = []
for l in a.lines: lines += [x for x in l.split("\n") if x.strip()]
if OPT.get("noread"):
    lines = [l for l in lines if not l.startswith("ds_read_b64_tr")]
if OPT.get("nomfma"):
    lines = [l for l in lines if not l.startswith("v_mfma")]
if OPT.get("jitter"):
    import random
    rnd = random.Random(OPT["jitter"])
    jl = []
    for n_, l in enumerate(lines):
        if l == "s_barrier":
            for pos in (0, 1):
                if pos: jl.append(l)
                if rnd.random() < 0.5:
                    if rnd.random() < 0.5:
                        jl += [f"s_bitcmp1_b32 s{sWAVE}, {rnd.randrange(2)}", f"s_cbranch_scc1 L_j{n_}_{pos}"]
                    else:
                        jl += [f"s_bitcmp1_b32 s2, {rnd.randrange(8)}", f"s_cbranch_scc1 L_j{n_}_{pos}"]
                    jl += [f"s_sleep {rnd.randrange(1, 30)}", f"L_j{n_}_{pos}:"]
        else:
            jl.append(l)
    lines = jl
lines, added = hz.fix(lines)
out += "\n".join(lines) + "\n"
out += '.section .rodata,"a"\n.p2align 6\n' + kernel_desc(KN, 256, 102 if OPT.get('cyc') else 100, 256)
sys.stdout.write(out)
sys.stderr.write(f"nop states added: {added}\n")
```

```python
import sys, struct
from asmlib import *
import hz

OPT = dict(stamps=0, p0=3, ramp=4)
for arg in sys.argv[1:]:
    k, v = arg.split("=")
    OPT[k] = int(v)
KN = "concat_heads__sliding_local_dilated__linear_attn_block__prompt_kernel"

def f32(x):
    return "0x%08x" % struct.unpack("<I", struct.pack("<f", x))[0]

LOG2E = 1.4426950408889634
CSC = 18 ** -0.5 * LOG2E
NEG = "0xf149f2ca"
EPS = f32(1e-6)
OOB = "0x80000000"

O_BR = 0x240000
WS_KV = 0x500000
KV_ST = 0x2000
WS_CNT = 0x540000
WS_STAMP = 0x600000
WS_SIZE = 0x700000

sWAVE, sHG, sRB, sBR, sT = 3, 4, 5, 6, 7
SX, SW, SWS, SDBG, SWO, SOUT = 8, 12, 16, 20, 24, 28
sG0, sG01 = 32, 34
sK, sV, sM, sT2, sT3 = 50, 51, 52, 53, 54
sST = 60

a = Asm()
nstamp = [0]

def stamp():
    if OPT["stamps"] and not (OPT.get("fine") == 4 and nstamp[0] >= 10):
        i = nstamp[0]; nstamp[0] += 1
        assert i < 14
        a(f"{'s_memrealtime' if OPT.get('rt') or OPT.get('probe') and not (OPT.get('cyc') and i) else 's_memtime'} s[{sST+2*i}:{sST+2*i+1}]")
        if OPT.get("cyc") and i == 0:
            a("s_memtime s[100:101]")

def stamps_out(last=-1):
    if not OPT["stamps"]:
        return
    if OPT.get("probe"):
        if last == OPT.get("pwave", 0):
            j = sST + 2 * OPT["probe"]
            a(f"""
s_waitcnt vmcnt(0) lgkmcnt(0)
s_cmp_eq_u32 s2, {OPT.get('wg', 0)}
s_cbranch_scc0 L_probe_x
s_cmp_eq_u32 s{sWAVE}, {last}
s_cbranch_scc0 L_probe_x
s_sub_u32 s{sT}, s{j}, s{100 if OPT.get('cyc') else sST}
{'s_lshr_b32 s7, s7, 3' if OPT.get('cyc') else 's_mul_i32 s7, s7, 10'}
s_min_u32 s{sT}, s{sT}, 100000
s_add_u32 s{sT}, s{sT}, 6000
L_probe:
s_memrealtime s[44:45]
s_waitcnt lgkmcnt(0)
s_sub_u32 s44, s44, s{sST}
s_cmp_lt_u32 s44, s{sT}
s_cbranch_scc1 L_probe
L_probe_x:
""")
        return
    a("s_waitcnt vmcnt(0) lgkmcnt(0)")
    a(f"s_lshl_b32 s{sT}, s2, 3\ns_add_u32 s{sT}, s{sT}, s{sWAVE}\ns_lshl_b32 s{sT}, s{sT}, 6")
    a(f"s_add_u32 s{sT}, s{sT}, {WS_STAMP}\nv_mov_b32 v1, s{sT}")
    for i in range(16):
        a(f"v_mov_b32 v2, {'s%d' % (sST+2*i) if i < 14 else 0}")
        a(f"buffer_store_dword v2, v1, s[{SWS}:{SWS+3}], 0 offen offset:{4*i}")
    a("s_waitcnt vmcnt(0)")

def mf(d, s0, s1, c):
    cc = c if isinstance(c, str) else vr(c, 4)
    return f"v_mfma_f32_16x16x32_bf16 {vr(d,4)}, {vr(s0,4)}, {vr(s1,4)}, {cc}"
def cv(d, x):
    return f"v_cvt_pk_bf16_f32 v{d}, v{x}, v{x+1}"
def tr(d, addr, off):
    return f"ds_read_b64_tr_b16 {vr(d,2)}, v{addr} offset:{off}"
def weave(mfmas, others, per=2):
    o = list(others)
    for m in mfmas:
        a(m)
        for _ in range(per):
            if o: a(o.pop(0))
    for x in o: a(x)

def srd(dst, lo, nbytes):
    a(f"s_mov_b32 s{dst}, s{lo}\ns_mov_b32 s{dst+1}, s{lo+1}\ns_mov_b32 s{dst+2}, {nbytes}\ns_mov_b32 s{dst+3}, 0x20000")
def srds_rest():
    srd(SWO, 40, 663552); srd(SOUT, 44, 4718592); srd(SDBG, 46, 256); srd(SWS, 48, WS_SIZE)

class M0:
    def __init__(self, base): self.base = base; self.cur = None
    def set(self, imm):
        if self.cur is not None and -32768 <= imm - self.cur <= 32767:
            a(f"s_addk_i32 m0, {imm - self.cur}")
        else:
            a(f"s_add_u32 m0, s{self.base}, {imm}")
        self.cur = imm

def dma(voff, srd_, soff, half=False, off=0):
    if OPT.get("nodma"):
        return
    if half: a("s_mov_b32 exec_hi, 0")
    a(f"buffer_load_dwordx4 v{voff}, s[{srd_}:{srd_+3}], {soff} offen offset:{off} lds")
    if half: a("s_mov_b32 exec_hi, -1")

def rd_lanes(aw, ash, t0, t1):
    a(f"""
v_lshrrev_b32 v{t0}, 5, v0
v_lshlrev_b32 v{t0}, 4, v{t0}
v_bfe_u32 v{t1}, v0, 4, 1
v_lshl_add_u32 v{t0}, v{t1}, 2, v{t0}
v_bfe_u32 v{t1}, v0, 2, 2
v_add_u32 v{t0}, v{t0}, v{t1}
v_mul_u32_u24 v{t0}, 160, v{t0}
v_and_b32 v{t1}, 3, v0
v_lshl_add_u32 v{aw}, v{t1}, 3, v{t0}
""")
    if ash:
        a(f"v_bfe_u32 v{t1}, v0, 1, 1\nv_mul_u32_u24 v{t1}, {SLAB2 - 16}, v{t1}\nv_add_u32 v{t1}, 128, v{t1}\nv_add_u32 v{ash}, v{t1}, v{aw}")

def x_lane(d0, d1, tmp):
    a(f"""
v_lshrrev_b32 v{d0}, 4, v0
v_bfe_u32 v{tmp}, v0, 1, 3
v_xor_b32 v{d0}, v{d0}, v{tmp}
v_and_b32 v{tmp}, 15, v0
v_lshlrev_b32 v{tmp}, 7, v{tmp}
v_lshl_add_u32 v{d0}, v{d0}, 4, v{tmp}
v_xor_b32 v{d1}, 64, v{d0}
""")

def slab_src(dst, j, stride, base):
    a(f"""
v_add_u32 v1, {64*j}, v0
v_mul_u32_u24 v2, 6554, v1
v_lshrrev_b32 v2, 16, v2
v_mad_i32_i24 v1, v2, -10, v1
""")
    a("v_bfe_u32 v3, v2, 2, 1\nv_bfe_u32 v4, v2, 3, 1\nv_sub_u32 v3, v3, v4\nv_lshl_add_u32 v2, v3, 2, v2")
    a(f"""
v_mul_u32_u24 v2, {stride}, v2
v_lshl_add_u32 v2, v1, 4, v2
v_add_u32 v1, 7, v1
v_lshrrev_b32 v1, 4, v1
v_lshl_add_u32 v2, v1, 23, v2
v_add_u32 v{dst}, s{base}, v2
""")

def head_of(dst, src):
    a(f"v_mul_u32_u24 v{dst}, 57, v{src}\nv_lshrrev_b32 v{dst}, 10, v{dst}")

sOC, sKC, sFO, sFK = 92, 94, 96, 97

def arrive_wait(addr, target, label, arrive=True):
    if arrive:
        a(f"s_mov_b32 s{sT}, 1\ns_atomic_add s{sT}, s[{addr}:{addr+1}], 0 glc\ns_waitcnt lgkmcnt(0)\ns_cmp_ge_u32 s{sT}, {target-1}\ns_cbranch_scc1 {label}_x")
    a(f"""
s_mov_b32 s{sT3}, 0x20000
{label}:
s_mov_b32 s{sT}, 0
s_atomic_add s{sT}, s[{addr}:{addr+1}], 0 glc
s_waitcnt lgkmcnt(0)
s_sub_u32 s{sT3}, s{sT3}, 1
s_cbranch_scc1 {label}_x
s_cmp_ge_u32 s{sT}, {target}
s_cbranch_scc0 {label}
{label}_x:
""")

def flag_load(dst, offreg):
    a(f"s_load_dword s{dst}, s[{SDBG}:{SDBG+1}], s{offreg}")

def flag_check(val, offreg, label):
    a(f"""
s_mov_b32 s{sT3}, 0x20000
{label}:
s_waitcnt lgkmcnt(0)
s_cmp_lg_u32 s{val}, 0
s_cbranch_scc1 {label}_x
s_sub_u32 s{sT3}, s{sT3}, 1
s_cbranch_scc1 {label}_x
s_atomic_add s{val}, s[{SDBG}:{SDBG+1}], s{offreg} glc
s_branch {label}
{label}_x:
""")

SLAB2 = 5136
A_WSLOT, A_XSLOT = 15392, 18432
A_X0 = 5 * A_WSLOT
A_EX = A_X0 + 3 * A_XSLOT
B_KVSLOT, B_XSLOT = 10272, 16384
B_X0 = 5 * B_KVSLOT
B_EX = B_X0 + 3 * B_XSLOT
B_KVOP = 132256
B_STG = B_EX + 40960
B_DUMP, B_LCNT = B_STG + 5504, B_STG + 5888
R1 = 148480
def wq_slot(p):
    if p < 3: return R1 + 5120 * p
    if p < 6: return 5120 * (p - 3)
    if p == 6: return 46080
    if p < 12: return B_X0 + 5120 * (p - 7)
    return 15360 + 5120 * (p - 12)
WOC = 6144
R2 = 77824
WO = [R1, R1 + WOC] + [R2 + WOC * n for n in range(8)] + [0, WOC] + [15360 + WOC * n for n in range(6)]
P_TR = 52224
SPLITS = {(1, 0): sG0, (2, 0): sG0, (2, 1): sG0, (3, 0): sG01, (3, 1): sG0}

VD = 16
VWO = 26
sRW, sRX = 90, 91

def hstamp(i):
    if OPT.get("fine") == 4:
        a(f"s_memrealtime s[{sST+2*i}:{sST+2*i+1}]")

def w_head():
    a(f"""
L_W0:
s_mul_i32 s{sT}, s{sV}, {16*3456}
s_mul_i32 s{sT2}, s{sHG}, 144
s_add_u32 s{sT}, s{sT}, s{sT2}
s_mul_i32 s{sT2}, s{sBR}, 1152
s_add_u32 s{sT}, s{sT}, s{sT2}
""")
    for j in range(3):
        slab_src(VD + j, j, 3456, sT)
    a(f"s_mul_i32 s42, s{sV}, 2560\ns_mov_b32 m0, s42\ns_mov_b32 s{sT3}, 0")
    hstamp(10)
    a("s_waitcnt lgkmcnt(0)")
    hstamp(13)
    srd(SW, 38, 1990656)
    D = SLAB2 - 1152
    a("L_W0l:")
    pos = 0
    for sl, j in ((0, 0), (0, 1), (1, 0), (1, 1), (0, 2), (1, 2), (2, 2), (2, 0), (2, 1)):
        tgt = D * sl + 1024 * j
        if tgt != pos:
            a(f"s_addk_i32 m0, {tgt - pos}")
        pos = tgt
        if (sl, j) == (0, 2): a("s_mov_b32 exec_hi, 0")
        if (sl, j) == (2, 2): a(f"s_cmp_lg_u32 s{sBR}, 0\ns_cbranch_scc1 L_W0b")
        if (sl, j) == (2, 0): a("s_mov_b32 exec_hi, -1")
        dma(VD + j, SW, f"s{sRW}", off=1152 * sl)
    a(f"""
s_addk_i32 m0, {A_WSLOT - pos - (B_KVSLOT - (2*D + 2048))}
L_W0b:
s_mov_b32 exec_hi, -1
s_addk_i32 m0, {B_KVSLOT - (2*D + 2048)}
s_cmp_lg_u32 s{sT3}, 0
s_cbranch_scc1 L_W0x
s_mov_b32 s{sT3}, 1
s_add_u32 s{sRW}, s{sRW}, {32*3456}
s_branch L_W0l
L_W0x:
""")
    hstamp(11)
    a(f"s_cmp_eq_u32 s{sBR}, 0\ns_cbranch_scc1 L_AW1\ns_branch L_BW1")

def w_issue(kind, c, m):
    slot = (c % 5) * (A_WSLOT if kind == "A" else B_KVSLOT)
    n = 3 if kind == "A" else 2
    if c:
        a(f"s_add_u32 s{sRW}, s{sRW}, {32*3456}\ns_cmp_eq_u32 s{sRW}, {18*32*3456}\ns_cselect_b32 s{sRW}, 0, s{sRW}")
    order = [(sl, j) for sl in range(n) for j in range(2)] + [(sl, 2) for sl in range(n)]
    for sl, j in order:
        m.set(slot + (SLAB2 - 1152) * sl + 1024 * j)
        if (sl, j) == (0, 2):
            a("s_mov_b32 exec_hi, 0")
        dma(VD + j, SW, f"s{sRW}", off=1152 * sl)
    a("s_mov_b32 exec_hi, -1")
    return 3 * n

def wq_issue(p, m):
    a(f"s_add_u32 s{sK}, s{sRW}, {(p+1)*32*3456}\ns_cmp_ge_u32 s{sK}, {18*32*3456}\ns_cselect_b32 s{sT}, {18*32*3456}, 0\ns_sub_u32 s{sK}, s{sK}, s{sT}")
    for j in range(3):
        m.set(wq_slot(p) + 1024 * j)
        dma(VD + 3 + j, SW, f"s{sK}", half=(j == 2))
    return 3

def x_head():
    a(f"""
s_cmp_eq_u32 s{sBR}, 0
s_cselect_b32 s{sT2}, 1, 0
s_lshl_b32 s{sT3}, 1152, s{sT2}
v_lshrrev_b32 v1, 3, v0
v_mul_u32_u24 v1, s{sT3}, v1
v_lshrrev_b32 v2, 4, v0
v_lshl_add_u32 v2, s{sV}, 2, v2
v_and_b32 v3, 7, v0
v_xor_b32 v2, v2, v3
v_lshl_add_u32 v1, v2, 4, v1
s_mul_i32 s{sT}, s{sRB}, {128*1152}
v_add_u32 v1, s{sT}, v1
s_lshl_b32 s43, s{sT3}, 4
s_mul_i32 s{sT}, s{sV}, s{sT3}
s_lshl_b32 s{sT}, s{sT}, 3
v_add_u32 v{VD}, s{sT}, v1
s_mul_i32 s{sT3}, s{sV}, 1152
s_add_u32 s{sT3}, s{sT3}, {15*1152}
v_subrev_u32 v{VD+8}, s{sT3}, v1
s_sub_u32 s{sT3}, {17*1152}, s{sT}
s_add_u32 s{sT}, s{sT}, {64*1152}
s_cmp_eq_u32 s{sBR}, 0
s_cselect_b32 s{sT}, s{sT3}, s{sT}
v_add_u32 v{VD+4}, s{sT}, v1
s_movk_i32 s{sT}, {(A_X0 - B_X0)}
s_cselect_b32 s{sT}, s{sT}, 0
s_lshl_b32 s42, s{sV}, 10
s_add_u32 s{sT}, s{sT}, s42
s_add_u32 m0, s{sT}, {B_X0}
""")
    for q in (1, 2, 3):
        a(f"v_add_u32 v{VD+q}, s43, v{VD+q-1}\nv_add_u32 v{VD+4+q}, s43, v{VD+3+q}")
    a(f"s_mov_b32 s{sT3}, 0")
    hstamp(10)
    a("s_waitcnt lgkmcnt(0)")
    hstamp(13)
    srd(SX, 36, 2359296)
    a("L_X0l:")
    for q in range(9):
        if q == 8:
            a(f"s_cbranch_scc0 L_X0b")
        dma(VD + q, SX, f"s{sRX}")
        a("s_addk_i32 m0, 2048")
        a(f"s_cmp_eq_u32 s{sBR}, 0" if q == 7 else "s_nop 0")
    a(f"""
L_X0b:
s_cmp_lg_u32 s{sT3}, 0
s_cbranch_scc1 L_X0x
s_mov_b32 s{sT3}, 1
s_addk_i32 s{sRX}, 128
s_cmpk_eq_u32 s{sRX}, 1152
s_cselect_b32 s{sRX}, 0, s{sRX}
s_branch L_X0l
L_X0x:
""")
    hstamp(11)
    a(f"s_cmp_eq_u32 s{sBR}, 0\ns_cbranch_scc1 L_AX1\ns_branch L_BX1")

def karg_loads():
    a(f"""
s_mul_i32 s{sT}, s{sBR}, 24
s_add_u32 s{sT}, s{sT}, 16
s_load_dwordx2 s[40:41], s[0:1], s{sT}
s_load_dwordx4 s[44:47], s[0:1], 48
s_load_dwordx2 s[48:49], s[0:1], 64
""")

def karg_rest(loads=True):
    if loads:
        karg_loads()
    if OPT["stamps"]:
        for i in range(1, 10 if OPT.get("fine") == 4 else 14):
            a(f"s_mov_b32 s{sST+2*i}, 0")
    a(f"""
s_mov_b32 s{sG0}, 0xffff
s_mov_b32 s{sG0+1}, 0
s_mov_b32 s{sG01}, -1
s_mov_b32 s{sG01+1}, 0
""")

def x_issue(kind, c, m):
    nq, h, x0, xs = (9, 5, A_X0, A_XSLOT) if kind == "A" else (8, 4, B_X0, B_XSLOT)
    st = (c + 1) // 2
    if st > 8:
        return 0
    qs = range(nq) if c == 0 else (range(h) if c % 2 else range(h, nq))
    if c % 2:
        a(f"s_addk_i32 s{sRX}, 128\ns_cmpk_eq_u32 s{sRX}, 1152\ns_cselect_b32 s{sRX}, 0, s{sRX}")
    for q in qs:
        m.set(x0 + (st % 3) * xs + 2048 * q)
        a("s_nop 0")
        dma(VD + q, SX, f"s{sRX}")
    return len(qs)

def out_cols(sb, fo, lim):
    a(f"""
s_and_b32 s{sT}, s{sHG}, 3
s_lshl_b32 s{sT2}, s{sT}, 3
s_lshr_b32 s{sb}, 0x07050200, s{sT2}
s_and_b32 s{sb}, s{sb}, 0xff
s_lshr_b32 s{sT2}, s{sHG}, 2
s_mul_i32 s{sT2}, s{sT2}, 9
s_add_u32 s{sb}, s{sb}, s{sT2}
s_lshl_b32 s{sb}, s{sb}, 6
s_cmp_eq_u32 s{sT}, 1
s_cselect_b32 s{fo}, 64, 0
s_cmp_lt_u32 s{sT}, 2
s_cselect_b32 s{lim}, 12, 8
""")

def wo_setup(quad):
    out_cols(sM, 55, 56)
    for j in range(6):
        a(f"""
v_add_u32 v1, {64*j}, v0
v_mul_u32_u24 v2, 5462, v1
v_lshrrev_b32 v2, 16, v2
v_mad_i32_i24 v1, v2, -12, v1
v_bfe_u32 v3, v2, 2, 1
v_lshlrev_b32 v4, 1, v3
v_xor_b32 v1, v1, v4
v_cmp_gt_u32 vcc, s56, v1
v_lshl_add_u32 v1, v1, 4, s{sM}
v_mov_b32 v4, {1 << 23}
v_cndmask_b32 v1, v4, v1, vcc
v_and_b32 v4, 3, v2
v_lshl_add_u32 v5, v3, 2, v4
v_mul_u32_u24 v3, 72, v3
v_add_u32 v4, v3, v4
v_bfe_u32 v3, v2, 3, 1
v_lshl_add_u32 v5, v3, 4, v5
v_lshl_add_u32 v4, v3, 2, v4
v_bfe_u32 v3, v2, 4, 1
v_lshl_add_u32 v5, v3, 3, v5
v_mul_u32_u24 v3, 144, v3
v_add_u32 v4, v3, v4
v_mul_u32_u24 v5, 1152, v5
v_add_u32 v{VWO+j}, v5, v1
v_mul_u32_u24 v4, 1152, v4
v_add_u32 v{VWO+6+j}, v4, v1
""")
    a(f"s_and_b32 s55, s{sWAVE}, 3\ns_lshl_b32 s57, s55, 3")
    rho(56)
    a(f"s_add_u32 s56, s56, s{55 if quad else sV}")

def rho(dst):
    a(f"s_lshl_b32 s{dst}, s{sRB}, 1\ns_add_u32 s{dst}, s{dst}, s{sHG}\ns_lshl_b32 s{dst}, s{dst}, 1")

def wo_chunk(left, fadd):
    if left:
        a(f"s_mul_i32 s{sK}, s{sV}, {288*1152}\ns_add_u32 s{sK}, s{sK}, {64*1152}")
    else:
        a(f"""
s_add_u32 s{sT}, s56, {fadd}
s_bfe_u32 s{sK}, s{sT}, 0x30001
s_mul_i32 s{sK}, s{sK}, {72*1152}
s_bitcmp1_b32 s{sT}, 0
s_cselect_b32 s{sT}, {32*1152}, 0
s_add_u32 s{sK}, s{sK}, s{sT}
""")
    for j in range(6):
        dma(VWO + (6 if left else 0) + j, SWO, f"s{sK}")
        if j < 5:
            a("s_addk_i32 m0, 1024")
    return 6

def wo_issue(q):
    packed = sum((WO[2 + 4*q + w] // 1024) << (8 * w) for w in range(4))
    a(f"s_lshr_b32 s{sT}, {packed}, s57\ns_and_b32 s{sT}, s{sT}, 0xff\ns_lshl_b32 m0, s{sT}, 10")
    return wo_chunk(False, 4*q)

def wo_pair(g):
    a(f"s_mul_i32 s{sT}, s{sV}, {WO[2*g+1] - WO[2*g] & 0xffffffff}\ns_add_u32 m0, s{sT}, {WO[2*g]}")
    return wo_chunk(g == 0, 2*g - 2)

def sync_setup():
    a(f"""
s_lshl_b32 s{sT}, s{sBR}, 4
s_add_u32 s{sT}, s{sT}, s{sRB}
s_lshl_b32 s{sT2}, s{sT}, 8
s_add_u32 s{sT2}, s{sT2}, {WS_CNT}
s_add_u32 s{sOC}, s{SWS}, s{sT2}
s_addc_u32 s{sOC+1}, s{SWS+1}, 0
s_lshl_b32 s{sT}, s{sT}, 2
s_add_u32 s98, s{sT}, 32
s_lshl_b32 s99, s{sHG}, 2
s_mul_i32 s{sT2}, s{sHG}, {KV_ST}
s_add_u32 s{sT2}, s{sT2}, {WS_KV + 6144}
s_add_u32 s{sKC}, s{SWS}, s{sT2}
s_addc_u32 s{sKC+1}, s{SWS+1}, 0
""")

def loader_tail(tag, late=None):
    sig = tag != "BW"
    if sig:
        flag_check(sFO, 98, f"L_{tag}_fo")
    a("s_barrier")
    stamp()
    if sig:
        a(f"s_cmp_eq_u32 s{sWAVE}, 6\ns_cbranch_scc0 L_{tag}_na\ns_mov_b32 s96, 1\ns_atomic_add s96, s[{sOC}:{sOC+1}], 0 glc\nL_{tag}_na:")
    if late:
        late()
    if sig:
        a(f"s_cmp_eq_u32 s{sWAVE}, 6\ns_cbranch_scc0 L_{tag}_oc_x")
        a(f"s_waitcnt lgkmcnt(0)\ns_cmp_ge_u32 s96, 7\ns_cbranch_scc1 L_{tag}_oc_x")
        arrive_wait(sOC, 8, f"L_{tag}_oc", False)
    a("s_waitcnt vmcnt(0)")
    stamp()
    a("s_barrier")
    stamps_out()
    a("s_endpgm")

def spread(setup, i, n):
    per = -(-len(setup) // n)
    a("s_cmp_eq_u32 s59, 1")
    a.lines += setup[per*i:per*(i+1)]
    a("s_cselect_b32 s59, 1, 0")

def captured(fn):
    mark = len(a.lines)
    fn()
    out_ = a.lines[mark:]
    del a.lines[mark:]
    return out_

def att_masks(MC, MP, MPF, PM, t):
    a(f"""
s_lshr_b32 s{sT}, s{sWAVE}, 1
s_lshl_b32 s{sT}, s{sT}, 3
v_and_b32 v{t}, 15, v0
v_xor_b32 v{t}, s{sT}, v{t}
v_lshrrev_b32 v{t+1}, 4, v0
v_lshlrev_b32 v{t+1}, 2, v{t+1}
v_xor_b32 v{t+1}, s{sT}, v{t+1}
v_sub_u32 v{t}, v{t}, v{t+1}
v_mov_b32 v{t+2}, {NEG}
s_and_b32 s{sT}, s{sWAVE}, 1
s_or_b32 s{sT}, s{sT}, s{sRB}
s_cmp_eq_u32 s{sT}, 0
s_cselect_b64 s[42:43], -1, 0
""")
    for r in range(4):
        a(f"""
v_subrev_u32 v{t+1}, {r}, v{t}
v_cmp_gt_u32 vcc, 8, v{t+1}
v_cndmask_b32 v{MC+r}, v{t+2}, 0, vcc
v_cmp_gt_i32 vcc, -8, v{t+1}
v_cndmask_b32 v{MP+r}, v{t+2}, 0, vcc
v_cndmask_b32 v{MPF+r}, v{MP+r}, v{t+2}, s[42:43]
v_cmp_lt_i32 vcc, -1, v{t+1}
v_mov_b32 v{t+3}, {'0xffff' if r % 2 == 0 else '0xffff0000'}
v_cndmask_b32 v{t+3}, 0, v{t+3}, vcc
""")
        a(f"v_mov_b32 v{PM + r//2}, v{t+3}" if r % 2 == 0 else f"v_or_b32 v{PM + r//2}, v{PM + r//2}, v{t+3}")

def a_loader(kind):
    a(f"L_A{kind}1:")
    m = M0(42)
    issue = (lambda c: w_issue("A", c, m)) if kind == "W" else (lambda c: x_issue("A", c, m))
    late2 = kind == "W" and OPT.get("early", 2) & 1
    cnt = ({1: 9} if late2 else {1: 9, 2: issue(2)}) if kind == "W" else {1: 5, 2: 4}
    karg_rest()
    a("s_mov_b32 s59, 0")
    stamp()
    x_lane(8, 9, 1)
    rd_lanes(10, 12 if kind == "W" else None, 1, 2)
    if kind == "X":
        a(f"v_add_u32 v12, {2*SLAB2 + 128}, v10")
    a(f"""
v_add_u32 v8, {A_X0 + 8*2048}, v8
v_add_u32 v9, {A_X0 + 8*2048}, v9
s_lshl_b32 s{sT}, s{sV}, 6
s_add_u32 s{sT}, s{sT}, {SLAB2 if kind == 'W' else 2*SLAB2}
v_add_u32 v10, s{sT}, v10
v_add_u32 v13, {4*A_WSLOT}, v10
v_add_u32 v15, {4*A_WSLOT}, v12
""")
    def setup():
        srds_rest(); sync_setup(); wo_setup(True)
        a(f"""
s_lshl_b32 s{sT}, s{sV}, 10
s_add_u32 s{sT}, s{sT}, {A_EX + (0 if kind == 'W' else 2560)}
v_lshlrev_b32 v1, 3, v0
v_add_u32 v6, s{sT}, v1
v_add_u32 v7, {A_EX + (2048 if kind == 'W' else 4608)}, v1
""")
    setup = captured(setup)
    a(f"s_waitcnt vmcnt({sum(cnt.values())})\ns_barrier")
    stamp()
    extra = 0
    for i in range(-1, 17):
        ks = i + 1
        slot = ks % 5
        off = 0 if slot == 4 else slot * A_WSLOT
        ad = (13, 15) if slot == 4 else (10, 12)
        a(f"ds_read_b128 v[40:43], v{8 + ks % 2} offset:{(ks//2 % 3)*A_XSLOT}")
        for j in range(2):
            a(tr(44 + 4*j, ad[0], off + 32*j)); a(tr(46 + 4*j, ad[0], off + 32*j + 1280))
        a(f"s_cmp_eq_u32 s{sV}, 0\ns_cbranch_scc0 L_A{kind}_r{ks}")
        a(tr(52, ad[1], off)); a(tr(54, ad[1], off + 1280))
        a(f"L_A{kind}_r{ks}:")
        if i == -1 and late2:
            cnt[2] = issue(2)
        if i + 4 <= 17:
            cnt[i+4] = issue(i + 4)
        a("s_waitcnt lgkmcnt(0)")
        for j in range(3):
            c = 60 + 4*j if ks else "0"
            if j == 2:
                a(f"s_cmp_eq_u32 s{sV}, 0\ns_cbranch_scc0 L_A{kind}_m{ks}")
            a(mf(60 + 4*j, 44 + 4*j, 40, c) if kind == "W" else mf(60 + 4*j, 40, 44 + 4*j, c))
        a(f"L_A{kind}_m{ks}:")
        if 1 <= i < 11:
            spread(setup, i - 1, 10)
        if i == 14 and kind == "W":
            extra += wo_pair(0)
        if i == 15:
            extra += wo_issue(0)
        if i + 1 <= 16:
            left = sum(cnt.get(c, 0) for c in range(i + 3, min(i + 4, 17) + 1)) + extra
            a(f"s_waitcnt vmcnt({left})\ns_barrier")
    for j in range(3):
        a(cv(44 + 2*j, 60 + 4*j)); a(cv(45 + 2*j, 62 + 4*j))
    if kind == "W":
        a("v_mov_b32 v50, 0\nv_mov_b32 v51, 0")
        a("v_permlane32_swap_b32 v48, v50\nv_permlane32_swap_b32 v49, v51")
    a("ds_write_b64 v6, v[44:45]\nds_write_b64 v6, v[46:47] offset:512")
    a(f"s_cmp_eq_u32 s{sV}, 0\ns_cbranch_scc0 L_A_att")
    a(f"ds_write_b64 v7, {'v[50:51]' if kind == 'W' else 'v[48:49]'}")
    if kind == "W":
        a("s_branch L_A_att")
        return
    a("L_A_att:")
    stamp()
    a("s_waitcnt lgkmcnt(0)\ns_barrier")
    stamp()
    flag_load(sFO, 98)
    wo_issue(1); wo_issue(2); wo_issue(3)
    stamp()
    loader_tail("A")

def o_store_addr(vfull, vleft, tmp, left_lo, wreg=sWAVE):
    a(f"""
s_lshl_b32 s{sT}, s{sRB}, 3
s_lshl_b32 s{sT2}, s{wreg}, 1
s_add_u32 s{sT}, s{sT}, s{sT2}
s_mul_i32 s{sT}, s{sT}, 18432
s_mul_i32 s{sT2}, s{sBR}, {O_BR}
s_add_u32 s58, s{sT}, s{sT2}
s_lshl_b32 s{sT2}, s{sHG}, 11
s_add_u32 s{sT2}, s{sT2}, s58
v_lshl_add_u32 v{vfull}, v0, 4, s{sT2}
s_lshr_b32 s{sT2}, s{sHG}, 2
s_add_u32 s{sT2}, s{sT2}, 16
s_lshl_b32 s{sT2}, s{sT2}, 10
s_add_u32 s{sT}, s58, s{sT2}
s_and_b32 s{sT2}, s{sHG}, 3
s_lshl_b32 s{sT2}, s{sT2}, 8
s_add_u32 s{sT}, s{sT}, s{sT2}
v_and_b32 v{vleft}, 15, v0
v_lshlrev_b32 v{vleft}, 4, v{vleft}
v_bfe_u32 v{tmp}, v0, 4, 1
v_lshl_add_u32 v{vleft}, v{tmp}, 3, v{vleft}
v_add_u32 v{vleft}, s{sT}, v{vleft}
v_mov_b32 v{tmp}, {OOB}
""")
    x, y = (tmp, vleft) if left_lo else (vleft, tmp)
    a(f"v_cndmask_b32 v{vleft}, v{x}, v{y}, s[{sG01}:{sG01+1}]")

FLAGS = ["", " nt", " sc1", " sc1 nt", " sc0 sc1"]
def o_store(of, vfull, vleft, rt):
    so = f"s{sK}" if rt else "0"
    fl = FLAGS[OPT.get("ost", 2)]
    if rt:
        a(f"s_movk_i32 s{sK}, 18432")
    a(f"buffer_store_dwordx4 {vr(of,4)}, v{vfull}, s[{SWS}:{SWS+3}], {so} offen{fl}")
    a(f"buffer_store_dwordx4 {vr(of+4,4)}, v{vfull}, s[{SWS}:{SWS+3}], {so} offen offset:1024{fl}")
    a(f"buffer_store_dwordx2 {vr(of+8,2)}, v{vleft}, s[{SWS}:{SWS+3}], {so} offen{fl}")

def init_stores(tag, with_kv):
    a(f"""
s_or_b32 s{sT}, s{sHG}, s{sWAVE}
s_cmp_eq_u32 s{sT}, 0
s_cselect_b32 s55, 1, 0
v_mov_b32 v20, 0
v_mov_b32 v21, 0
v_mov_b32 v22, 0
v_mov_b32 v23, 0
s_cbranch_scc0 L_{tag}_i1
{chr(10).join(["s_sleep 127"] * OPT.get("late", 0))}
s_lshl_b32 s{sT}, s{sBR}, 4
s_add_u32 s{sT}, s{sT}, s{sRB}
s_lshl_b32 s{sT}, s{sT}, 8
s_add_u32 s{sT}, s{sT}, {WS_CNT}
v_mov_b32 v24, s{sT}
buffer_store_dword v20, v24, s[{SWS}:{SWS+3}], 0 offen sc1
L_{tag}_i1:
""")
    if with_kv:
        a(f"""
s_or_b32 s{sT}, s{sRB}, s{sWAVE}
s_cmp_eq_u32 s{sT}, 0
s_cbranch_scc0 L_{tag}_i2
{chr(10).join(["s_sleep 127"] * OPT.get("late", 0))}
s_or_b32 s55, s55, 2
s_mul_i32 s{sT}, s{sHG}, {KV_ST}
s_add_u32 s{sT}, s{sT}, {WS_KV}
v_lshl_add_u32 v24, v0, 4, s{sT}
""")
        for j in range(7):
            a(f"s_movk_i32 s{sK}, {1024*j}\nbuffer_store_dwordx4 v[20:23], v24, s[{SWS}:{SWS+3}], s{sK} offen sc1")
        a(f"L_{tag}_i2:")

def init_flags(tag):
    a(f"""
s_waitcnt vmcnt(0)
s_cmp_eq_u32 s55, 0
s_cbranch_scc1 L_{tag}_f2
v_mov_b32 v20, 1
s_bitcmp1_b32 s55, 0
s_cbranch_scc0 L_{tag}_f1
s_lshl_b32 s{sT}, s{sBR}, 4
s_add_u32 s{sT}, s{sT}, s{sRB}
s_lshl_b32 s{sT}, s{sT}, 2
s_add_u32 s{sT}, s{sT}, 32
v_mov_b32 v24, s{sT}
buffer_store_dword v20, v24, s[{SDBG}:{SDBG+3}], 0 offen sc1
L_{tag}_f1:
s_bitcmp1_b32 s55, 1
s_cbranch_scc0 L_{tag}_f2
s_lshl_b32 s{sT}, s{sHG}, 2
v_mov_b32 v25, s{sT}
buffer_store_dword v20, v25, s[{SDBG}:{SDBG+3}], 0 offen sc1
L_{tag}_f2:
""")

def kstep(tiles, nxt_reads, first, waits):
    pend = list(first)
    for t, (m0_, m1_) in enumerate(tiles):
        if OPT.get("snake") and t % 2:
            m0_, m1_ = m1_, m0_
        if t in waits:
            a(waits[t])
        a(m0_)
        for x in pend: a(x)
        a(m1_)
        pend = []
        if nxt_reads:
            a(nxt_reads[t][0]); pend = [nxt_reads[t][1]]
    for x in pend: a(x)

def ring_loop(T, D, pair, wreads, xread, hook, last_gap=None):
    issued, mark, q = 0, {}, []
    def rd(key, x):
        nonlocal issued
        a(x); mark[key] = issued; issued += 1
    def feed(n):
        ks, t = divmod(n, T)
        if ks > 17: return
        if t == 0:
            if ks: q.append((None, "s_barrier"))
            q.extend(((ks, "x"), xread(ks, rt)) for rt in range(2))
        q.extend(((ks, t), x) for x in wreads(ks, t))
    def fill(k):
        for _ in range(k):
            while q and q[0][0] is None:
                a(q.pop(0)[1])
            if q: rd(*q.pop(0))
    for n in range(D):
        feed(n)
    fill(len(q))
    for n in range(18 * T):
        ks, t = divmod(n, T)
        hook(ks, t)
        assert not [k for k, _ in q if k in ((ks, t), (ks, "x"))]
        need = max(mark[(ks, t)], mark[(ks, "x")])
        a(f"s_waitcnt lgkmcnt({min(15, issued - 1 - need)})")
        feed(n + D)
        m0_, m1_ = pair(ks, t)
        a(m0_); fill(1)
        a(m1_); fill(2 if len(q) > 2 else 1)
        if last_gap and ks == 17:
            x = last_gap(t)
            if x: a(x); issued += 1

def a_consumer():
    acc = lambda t, rt: 144 + (t * 2 + rt) * 4
    wf = lambda t: 88 + 4 * t
    xf = lambda buf, rt: 72 + buf * 8 + rt * 4
    aW, aS, aWb, aSb, aX = 1, 2, 3, 4, 11
    vOF, vOL, vEXW, vEXR = 13, 14, 15, 16
    MC, MP, MPF, PM = 56, 60, 64, 68
    a("L_AC:")
    karg_rest(False)
    a("s_waitcnt lgkmcnt(0)")
    srds_rest()
    init_stores("AC", False)
    rd_lanes(aW, aS, 17, 18); x_lane(aX, aX + 1, 17)
    a(f"v_add_u32 v{aWb}, {4*A_WSLOT}, v{aW}\nv_add_u32 v{aSb}, {4*A_WSLOT}, v{aS}")
    a(f"""
s_lshl_b32 s{sT}, s{sWAVE}, 12
s_add_u32 s{sT}, s{sT}, {A_X0}
v_add_u32 v{aX}, s{sT}, v{aX}
v_add_u32 v{aX+1}, s{sT}, v{aX+1}
""")
    att_masks(MC, MP, MPF, PM, 17)
    o_store_addr(vOF, vOL, 17, True)
    a(f"""
s_lshr_b32 s{sT}, s{sWAVE}, 1
s_add_u32 s{sT}, s{sT}, 1
s_mul_i32 s{sT}, s{sT}, 5120
s_bitcmp1_b32 s{sWAVE}, 0
s_cselect_b32 s{sT3}, s{sT}, 0
v_lshlrev_b32 v17, 3, v0
v_add_u32 v17, {A_EX}, v17
v_add_u32 v{vEXW}, s{sT}, v17
v_add_u32 v{vEXR}, s{sT3}, v17
""")

    def wreads(ks, t):
        slot = ks % 5
        o = 0 if slot == 4 else slot * A_WSLOT
        ad = (aSb if slot == 4 else aS) if t == 4 else (aWb if slot == 4 else aW)
        if t != 4:
            o += 32 * t if t < 4 else SLAB2 + 32 * (t - 5) if t < 9 else 2 * SLAB2 + 32 * (t - 9)
        return [tr(wf(t), ad, o), tr(wf(t) + 2, ad, o + 1280)]
    xread = lambda ks, rt: f"ds_read_b128 {vr(xf(ks % 2, rt),4)}, v{aX + ks % 2} offset:{(ks//2 % 3)*A_XSLOT + rt*2048}"

    stamp()
    a("s_barrier")
    stamp()
    def pair(ks, t):
        c = lambda rt: acc(t, rt) if ks else "0"
        return [mf(acc(t, rt), wf(t), xf(ks % 2, rt), c(rt)) if t < 9 else mf(acc(t, rt), xf(ks % 2, rt), wf(t), c(rt)) for rt in range(2)]
    def hook(ks, t):
        if t == 0 and OPT.get("fine") == 2 and ks in (2, 5, 8, 11, 14):
            stamp()
        if (ks, t) == (OPT.get('fk', 2), 0):
            init_flags("AC")
    ring_loop(14, OPT.get("da", 4), pair, wreads, xread, hook)
    stamp()
    KP = lambda j: 18 + 10 * j
    QT = lambda rt, h: 88 + 16 * rt + 4 * h
    VP = lambda t, j: 120 + 6 * t + 2 * j if t < 4 else 48 + 2 * j
    ONE = 72
    def pack_kv(rt):
        o = []
        for q in range(2):
            o += [cv(QT(rt, 3) + 2 + q, acc(4, rt) + 2*q), f"v_mov_b32 v{KP(1+rt) + 8 + q}, 0"]
        for tau in range(4):
            o += [cv(KP(1+rt) + 2*tau + q, acc(5+tau, rt) + 2*q) for q in range(2)]
        o += [f"v_permlane32_swap_b32 v{QT(rt,3) + 2 + q}, v{KP(1+rt) + 8 + q}" for q in range(2)]
        for t in range(5):
            o += [cv(VP(t, 1+rt) + q, acc(9+t, rt) + 2*q) for q in range(2)]
        return o
    def pack_q(rt):
        o = []
        for t in range(4):
            for q in range(2):
                d = QT(rt, t) + q
                o.append(cv(d, acc(t, rt) + 2*q))
                if (t, q) in SPLITS:
                    m = SPLITS[(t, q)]; lo = QT(rt, t-1) + 2 + q
                    o += [f"v_cndmask_b32 v{lo}, 0, v{d}, s[{m}:{m+1}]", f"v_xor_b32 v{d}, v{d}, v{lo}"]
        return o + [f"v_mov_b32 v{QT(rt,0) + 3}, 0"]
    weave([], pack_kv(1))
    a(f"s_bitcmp1_b32 s{sWAVE}, 0\ns_cbranch_scc1 L_AC_nodump")
    for j in range(5):
        a(f"ds_write_b64 v{vEXW}, {vr(KP(2) + 2*j, 2)} offset:{512*j}")
        a(f"ds_write_b64 v{vEXW}, {vr(VP(j, 2), 2)} offset:{512*(5+j)}")
    a("L_AC_nodump:")
    weave([], pack_kv(0) + pack_q(1))
    a("s_waitcnt lgkmcnt(0)\ns_barrier")
    for j in range(5):
        a(f"ds_read_b64 {vr(KP(0) + 2*j, 2)}, v{vEXR} offset:{512*j}")
        a(f"ds_read_b64 {vr(VP(j, 0), 2)}, v{vEXR} offset:{512*(5+j)}")
    SC = lambda rt, h: (224 if rt else 184) + 8 * h
    MX = lambda rt: [76 + 4 * rt + h for h in range(4)]
    PT = lambda rt, h: 144 + 16 * rt + 4 * h
    def qk(rt):
        o = []
        for h in range(4):
            o += [mf(SC(rt, h), KP(1+rt) + 2*h, QT(rt, h), MC), mf(SC(rt, h) + 4, KP(rt) + 2*h, QT(rt, h), MP if rt else MPF)]
        return o
    def rowmax(rt):
        o = []
        for h in range(4):
            s = SC(rt, h); m = MX(rt)[h]
            o += [f"v_max_f32 v{s+r}, v{s+r}, v{s+4+r}" for r in range(4)]
            o += [f"v_max3_f32 v{m}, v{s}, v{s+1}, v{s+2}", f"v_max_f32 v{m}, v{m}, v{s+3}"]
        return o
    def xmax(rt):
        m = MX(rt)
        return [f"v_permlane32_swap_b32 v{m[0]}, v{m[1]}", f"v_permlane32_swap_b32 v{m[2]}, v{m[3]}",
                f"v_max_f32 v{m[0]}, v{m[0]}, v{m[1]}", f"v_max_f32 v{m[2]}, v{m[2]}, v{m[3]}",
                f"v_permlane16_swap_b32 v{m[0]}, v{m[2]}", f"v_max_f32 v{m[0]}, v{m[0]}, v{m[2]}",
                f"v_mul_f32 v{m[0]}, s{sT2}, v{m[0]}", f"v_mov_b32 v{m[2]}, v{m[0]}",
                f"v_permlane16_swap_b32 v{m[0]}, v{m[2]}", f"v_mov_b32 v{m[1]}, v{m[0]}", f"v_mov_b32 v{m[3]}, v{m[2]}",
                f"v_permlane32_swap_b32 v{m[0]}, v{m[1]}", f"v_permlane32_swap_b32 v{m[2]}, v{m[3]}"]
    def scale(rt):
        if OPT.get("pka", 2) < 2:
            return [f"v_fma_f32 v{SC(rt,h)+r}, v{SC(rt,h)+r}, s56, v{MX(rt)[h]}" for h in range(4) for r in range(4)]
        return [f"v_pk_fma_f32 {vr(SC(rt,h)+r,2)}, {vr(SC(rt,h)+r,2)}, s[56:57], {vr(MX(rt)[h] & ~1, 2)} op_sel:[0,0,{h%2}] op_sel_hi:[1,1,{h%2}]"
                for h in range(4) for r in (0, 2)]
    def probs(rt):
        o = []
        for h in range(4):
            s = SC(rt, h); p = PT(rt, h)
            o += [f"v_exp_f32 v{s+r}, v{s+r}" for r in range(4)]
            if h:
                o += split(rt, h - 1)
        return o + split(rt, 3)
    def split(rt, h):
        s = SC(rt, h); p = PT(rt, h); o = []
        for q in range(2):
            o += [cv(p + q, s + 2*q), f"v_and_b32 v{p+2+q}, v{p+q}, v{PM+q}", f"v_xor_b32 v{p+q}, v{p+q}, v{p+2+q}"]
        return o
    OB = lambda rt, t: (224 if rt else 184) + 4 * t
    OA = lambda rt, t: (224 if rt else 184) + 12 + 4 * t
    SM = lambda rt, h: 88 + 16 * rt + 4 * h
    OF = lambda rt: 18 + 10 * rt
    def pv(rt):
        o = [mf(SM(rt, h), ONE, PT(rt, h), "0") for h in range(4)]
        for t in range(5):
            if t < 4: o.append(mf(OB(rt, t), VP(t, rt), PT(rt, t), "0"))
            if t > 0: o.append(mf(OA(rt, t), VP(t, rt), PT(rt, t-1), "0"))
        return o
    def finish(rt, pk):
        o = [f"v_rcp_f32 v{SM(rt,h)}, v{SM(rt,h)}" for h in range(4)]
        for t in range(5):
            for q in range(2):
                d = OF(rt) + 2*t + q
                srcs = []
                if t < 4: srcs.append((OB(rt, t) + 2*q, SM(rt, t), d))
                if t == 4: srcs.append((OA(rt, t) + 2*q, SM(rt, 3), d))
                if (t, q) in SPLITS: srcs.append((OA(rt, t) + 2*q, SM(rt, t-1), 17))
                for x, inv, dd in srcs:
                    if pk:
                        o += [f"v_pk_mul_f32 {vr(x,2)}, {vr(x,2)}, {vr(inv,2)} op_sel_hi:[1,0]", cv(dd, x)]
                    else:
                        o += [f"v_mul_f32 v{x}, v{x}, v{inv}", f"v_mul_f32 v{x+1}, v{x+1}, v{inv}", cv(dd, x)]
                if (t, q) in SPLITS:
                    m = SPLITS[(t, q)]
                    o.append(f"v_cndmask_b32 v{d}, v{d}, v17, s[{m}:{m+1}]")
        return o
    a(f"s_mov_b32 s56, {f32(CSC)}\ns_mov_b32 s57, s56\ns_mov_b32 s{sT2}, {f32(-CSC)}")
    weave(qk(1), pack_q(0) + [f"v_mov_b32 v{ONE+j}, 0x3f803f80" for j in range(4)])
    a("s_waitcnt lgkmcnt(0)")
    weave(qk(0), rowmax(1))
    x1, x0 = xmax(1), xmax(0)
    r0 = rowmax(0)
    for i, x in enumerate(x1):
        a(x)
        for y in r0[2*i:2*i+2]: a(y)
    p1 = scale(1) + probs(1)
    for i, x in enumerate(x0):
        a(x)
        for y in p1[2*i:2*i+2]: a(y)
    if OPT.get("pka", 2) > 1:
        weave([], p1[2*len(x0):] + scale(0))
        weave(pv(1), probs(0))
    else:
        weave([], p1[2*len(x0):])
        weave(pv(1), scale(0) + probs(0))
    f1 = finish(1, False)
    f1p = finish(1, OPT.get('pka', 2) > 1)
    cutp = next(i for i, x in enumerate(f1p) if x.startswith(f"v_cvt_pk_bf16_f32 v{OF(1) + 3},")) + 1
    cutn = next(i for i, x in enumerate(f1) if x.startswith(f"v_cvt_pk_bf16_f32 v{OF(1) + 3},")) + 1
    weave(pv(0), f1[:cutn])
    weave([], f1p[cutp:])
    o_store(OF(1), vOF, vOL, 1)
    weave([], finish(0, OPT.get('pka', 2) > 0))
    o_store(OF(0), vOF, vOL, 0)
    stamp()
    a("s_branch L_P2")

def phi(r, n, t):
    o = [f"v_pk_fma_f32 {vr(t[j],2)}, {vr(r+j,2)}, s[56:57], v[14:15]" for j in range(0, n, 2)]
    for j in range(n):
        o += [f"v_exp_f32 v{t[j]}, v{t[j]} clamp", f"v_max_f32 v{r+j}, s{sT2}, v{r+j}"]
    return o + [f"v_pk_add_f32 {vr(r+j,2)}, {vr(r+j,2)}, {vr(t[j],2)}" for j in range(0, n, 2)]

def b_consumer():
    acc = lambda t, rt: 184 + (t * 2 + rt) * 4
    wf = lambda t: 148 + 4 * t
    xf = lambda ks, rt: 52 + ks * 8 + rt * 4 if ks < 12 else 36 + (ks % 2) * 8 + rt * 4
    aW, aS, aX = 1, 2, 6
    vOF, vOL, vEX = 8, 9, 10
    CK, CS = 28, 32
    a("L_BC:")
    karg_rest(False)
    a("s_waitcnt lgkmcnt(0)")
    srds_rest()
    init_stores("BC", True)
    rd_lanes(aW, aS, 17, 18); x_lane(aX, aX + 1, 17)
    a(f"""
s_lshl_b32 s{sT}, s{sWAVE}, 12
s_add_u32 s{sT}, s{sT}, {B_X0}
v_add_u32 v{aX}, s{sT}, v{aX}
v_add_u32 v{aX+1}, s{sT}, v{aX+1}
v_and_b32 v17, 15, v0
v_cmp_gt_u32 vcc, 8, v17
v_mov_b32 v18, {EPS}
s_mov_b64 s[42:43], vcc
s_mul_i32 s{sT}, s{sWAVE}, 10240
s_add_u32 s{sT}, s{sT}, {B_EX}
v_lshl_add_u32 v{vEX}, v0, 4, s{sT}
v_mov_b32 v14, {f32(-1e-6*LOG2E)}
v_mov_b32 v15, v14
s_mov_b32 s56, {f32(LOG2E)}
s_mov_b32 s57, s56
""")
    for r in range(4):
        a(f"v_mov_b32 v{CK+r}, v18\nv_cndmask_b32 v{CS+r}, 0, v18, vcc")
    o_store_addr(vOF, vOL, 17, False)

    def wreads(ks, t):
        o = (ks % 5) * B_KVSLOT
        if t != 4:
            o += 32 * t if t < 4 else SLAB2 + 32 * (t - 5)
        return [tr(wf(t), aS if t == 4 else aW, o), tr(wf(t) + 2, aS if t == 4 else aW, o + 1280)]
    xread = lambda ks, rt: f"ds_read_b128 {vr(xf(ks, rt),4)}, v{aX + ks % 2} offset:{(ks//2 % 3)*B_XSLOT + rt*2048}"

    stamp()
    a("s_barrier")
    stamp()
    pair = lambda ks, t: [mf(acc(t, rt), xf(ks, rt), wf(t), acc(t, rt) if ks else (CK if t < 4 else CS if t == 4 else "0")) for rt in range(2)]
    def hook(ks, t):
        if (ks, t) == (OPT.get('fk', 2), 0):
            init_flags("BC")
    reread = lambda t: f"ds_read_b128 {vr(wf(t),4)}, v{aX + t//2 % 2} offset:{(6 + t//4) % 3*B_XSLOT + t % 2*2048}" if t < 8 else None
    ring_loop(9, OPT.get("db", 4), pair, wreads, xread, hook, reread)
    stamp()
    a(f"s_mov_b32 s{sT2}, {EPS}\nv_mov_b32 v16, 0x3f803f80")
    wr = lambda reg, slot: f"ds_write_b128 v{vEX}, {vr(reg,4)} offset:{1024*slot}"
    pk = lambda d, s: [cv(d + j, s + 2*j) for j in range(4)]
    xq = lambda ks, rt: wf(2 * (ks - 12) + rt) if 12 <= ks < 16 else xf(ks, rt)
    for tau in range(4):
        weave([], pk(acc(5+tau, 0), acc(5+tau, 0)))
    V4, TM = acc(7, 1), [acc(5, 1) + j for j in range(4)] + [acc(6, 1) + j for j in range(4)]
    a("s_waitcnt lgkmcnt(0)\ns_barrier")
    weave([], pk(V4, acc(4, 0)) + [f"v_cndmask_b32 v{V4+j}, v{V4+j}, v16, s[42:43]" for j in range(4)])
    for tau in range(5):
        o = phi(acc(tau, 0), 8, TM)
        weave([], o[:8] + [wr(acc(5+tau, 0) if tau < 4 else V4, 5 + tau)] + o[8:] + pk(acc(tau, 0), acc(tau, 0)) + [wr(acc(tau, 0), tau)])
    a(f"v_add_u32 v3, {R1}, v{aW}\nv_add_u32 v4, 15360, v{aW}")
    a("s_waitcnt lgkmcnt(0)\ns_barrier")
    stamp()
    QA = lambda t, rt: 216 + (t * 2 + rt) * 4
    qf = lambda t: 184 + 4 * t
    def qreads(p, t):
        ad, o = (3, wq_slot(p) - R1) if p < 3 else (aW, wq_slot(p)) if p < 6 else (4, wq_slot(p) - 15360)
        return [tr(qf(t), ad, o + 32*t), tr(qf(t) + 2, ad, o + 32*t + 1280)]
    for t in range(5):
        for x in qreads(0, t): a(x)
    if OPT.get("x2", 1):
        a("s_barrier")
    for p in range(18):
        ks = p
        if p in (2, 11):
            if OPT.get("fine") == 3: stamp()
            a("s_barrier")
            if OPT.get("fine") == 3: stamp()
        tiles = [[mf(QA(t, rt), qf(t), xq(ks, rt), QA(t, rt) if p else CK) for rt in range(2)] for t in range(5)]
        if p < 17:
            nxt = [qreads(p + 1, t) for t in range(5)]
            kstep(tiles, nxt, [], {t: f"s_waitcnt lgkmcnt({7 if t else 8})" for t in range(5)})
        else:
            kstep(tiles, None, [], {t: f"s_waitcnt lgkmcnt({8 - 2*t})" for t in range(5)})
    stamp()
    PQ = lambda rt: 36 + 10 * rt
    KO = 84
    tup = {0: KO, 1: KO + 4, 2: KO + 12, 3: KO + 20, 4: KO + 28}
    ZO = KO + 32
    weave([], [f"v_mov_b32 v{r}, 0" for r in (tup[1]+4, tup[1]+5, tup[2]+4, tup[2]+5, tup[3]+4, tup[3]+5, ZO+8, ZO+9)])
    a(f"v_lshlrev_b32 v16, 3, v0\nv_add_u32 v16, {B_KVOP}, v16")
    for t in range(5):
        weave([], phi(QA(t, 0), 8, list(range(148, 156))) + [cv(PQ(rt) + 2*t + q, QA(t, rt) + 2*q) for rt in range(2) for q in range(2)])
    stamp()
    a("s_barrier")
    stamp()
    tid = lambda tau, taup: {-1: tau - 1, 0: 4 + tau, 1: 9 + tau}[taup - tau]
    rd = lambda d, slot: a(f"ds_read_b64 {vr(d,2)}, v16 offset:{512*slot}")
    for j, d in enumerate((ZO, ZO + 2, ZO + 4, ZO + 6, ZO + 10)):
        rd(d, 13 + j)
    rd(tup[0], tid(0, 0)); rd(tup[0] + 2, tid(1, 0))
    for t in (1, 2, 3):
        rd(tup[t], tid(t-1, t)); rd(tup[t] + 2, tid(t, t)); rd(tup[t] + 6, tid(t+1, t))
    rd(tup[4], tid(3, 4)); rd(tup[4] + 2, tid(4, 4))
    DN = lambda rt: 148 + 4 * rt
    NM = lambda rt, t: 184 + 20 * rt + 4 * t
    OF = lambda rt: 156 + 10 * rt
    a("s_waitcnt lgkmcnt(13)")
    for k, (zo, po) in enumerate(((0, 0), (4, 4), (8, 6))):
        for rt in range(2):
            a(mf(DN(rt), ZO + zo, PQ(rt) + po, DN(rt) if k else CK))
    a("s_waitcnt lgkmcnt(0)")
    def num(rt):
        o = [mf(NM(rt, t), tup[t], PQ(rt) + 2*(t-1), "0") for t in (1, 2, 3)]
        o += [mf(NM(rt, 0), tup[0], PQ(rt), "0"), mf(NM(rt, 4), tup[4], PQ(rt) + 6, "0")]
        return o + [mf(NM(rt, t), tup[t] + 4, PQ(rt) + 2*t, NM(rt, t)) for t in (1, 2, 3)]
    def fin(rt, packed):
        o = []
        for t in (0, 4, 1, 2, 3):
            for q in range(2):
                inv = DN(rt) + min(t, 3)
                if (t, q) in SPLITS:
                    m = SPLITS[(t, q)]
                    o.append(f"v_cndmask_b32 v17, v{DN(rt)+t}, v{DN(rt)+t-1}, s[{m}:{m+1}]")
                    inv = 17
                n = NM(rt, t) + 2*q
                o += [f"v_pk_mul_f32 {vr(n,2)}, {vr(n,2)}, {vr(inv & ~1,2)} op_sel:[0,{inv%2}] op_sel_hi:[1,{inv%2}]", cv(OF(rt) + 2*t + q, n)]
        return o
    weave(num(0), [], 0)
    weave(num(1), [f"v_rcp_f32 v{DN(rt)+h}, v{DN(rt)+h}" for rt in range(2) for h in range(4)], 1)
    for rt in range(2):
        weave([], fin(rt, True))
        o_store(OF(rt), vOF, vOL, rt)
    stamp()

def kv_index(wreg, VS, VG, VZ):
    a(f"s_cmp_eq_u32 s{wreg}, 0\ns_cselect_b32 s58, 4, s{wreg}")
    for slot in range(3):
        if slot == 0:
            a(f"s_lshl_b32 s{sT}, s58, 4\ns_sub_u32 s{sT2}, s{sT}, 16\ns_mov_b64 s[46:47], 0")
        elif slot == 1:
            a(f"s_lshl_b32 s{sT}, s{wreg}, 4\ns_mov_b32 s{sT2}, s{sT}")
        else:
            a(f"s_add_u32 s{sT2}, s{sT}, 16\ns_cmp_eq_u32 s{wreg}, 3\ns_cselect_b32 s{sT2}, 56, s{sT2}\ns_cselect_b64 s[46:47], s[44:45], 0")
        kv_tile(VS and VS + 2*slot, VG and VG + 2*slot, False)
    if VZ:
        kv_z(VZ)

def kv_tile(VS, VG, last):
    a(f"v_add_u32 v3, s{sT2}, v1")
    head_of(4, 3)
    a(f"v_mul_u32_u24 v5, 18, v4\nv_sub_u32 v3, v3, v5\nv_cndmask_b32 v4, v4, 7, s[46:47]")
    if last:
        a("v_cmp_eq_u32 vcc, 0, v1\nv_cndmask_b32 v4, v4, 3, vcc\nv_cndmask_b32 v3, v3, 18, vcc")
    for q in range(2):
        a(f"v_add3_u32 v5, v2, s{sT}, {2*q}")
        head_of(6, 5)
        a("v_cmp_eq_u32 vcc, v4, v6\nv_mad_u32_u24 v5, v5, 19, v3\nv_lshlrev_b32 v5, 2, v5")
        if VS:
            a(f"v_add_u32 v6, {B_STG}, v5\nv_cndmask_b32 v{VS+q}, v8, v6, vcc")
        if VG:
            a(f"v_add_u32 v6, s{sM}, v5\nv_cndmask_b32 v{VG+q}, v9, v6, vcc")

def kv_z(VZ):
    a("v_and_b32 v3, 3, v0")
    for q in range(2):
        a(f"v_add3_u32 v5, v2, s{sT}, {2*q}")
        head_of(6, 5)
        a(f"v_cmp_eq_u32 vcc, v3, v6\nv_mul_u32_u24 v5, 76, v5\nv_add3_u32 v5, v5, s{sM}, 64\nv_add_u32 v5, 8, v5\nv_cndmask_b32 v{VZ+q}, v9, v5, vcc")

def b_loader(kind):
    a(f"L_B{kind}1:")
    m = M0(42)
    issue = (lambda c: w_issue("B", c, m)) if kind == "W" else (lambda c: x_issue("B", c, m))
    late2 = kind == "W" and OPT.get("early", 2) & 2
    cnt = ({1: 6} if late2 else {1: 6, 2: issue(2)}) if kind == "W" else {1: 4, 2: 4}
    karg_rest()
    a("s_mov_b32 s59, 0")
    stamp()
    mark = len(a.lines)
    a("s_waitcnt lgkmcnt(0)")
    VS, VG, vZS, vEA, vE0, vEL, vLA, vGA, vLW = 72, 80, 98, 99, 100, 101, 102, 103, 105
    if kind == "W":
        for j in range(3):
            a(f"v_subrev_u32 v{VD+3+j}, 1152, v{VD+j}")
    srds_rest()
    if kind == "W":
        wo_setup(False)
    else:
        sync_setup()
    a(f"""
s_add_u32 s55, s{sV}, 2
s_mul_i32 s{sM}, s{sHG}, {KV_ST}
s_add_u32 s{sM}, s{sM}, {WS_KV}
v_and_b32 v1, 15, v0
v_lshrrev_b32 v2, 4, v0
v_lshlrev_b32 v2, 2, v2
v_cmp_gt_u32 s[44:45], 8, v1
v_lshlrev_b32 v8, 2, v0
v_add_u32 v8, {B_DUMP}, v8
v_mov_b32 v9, {OOB}
""")
    own = sV if kind == "X" else 55
    if kind == "X":
        kv_index(55, None, VG, VG + 6)
        a(f"s_movk_i32 s{sT}, 64")
        kv_z(10)
    kv_index(own, VS, VG + 8 if kind == "X" else None, VG + 14 if kind == "X" else None)
    a(f"""
v_add_u32 v5, s{sT}, v0
v_mul_u32_u24 v5, 76, v5
v_add_u32 v5, {B_STG + 72}, v5
v_cndmask_b32 v{vZS}, v8, v5, s[{sG0}:{sG0+1}]
v_lshlrev_b32 v{vEL}, 4, v0
v_add_u32 v{vEL}, {B_EX}, v{vEL}
s_lshl_b32 s{sT}, s{own}, 10
v_add_u32 v{vEA}, s{sT}, v{vEL}
s_lshl_b32 s{sT}, s58, 10
v_add_u32 v{vE0}, s{sT}, v{vEL}
""")
    if kind == "X":
        a(f"s_movk_i32 s{sT}, 64\ns_movk_i32 s{sT2}, 56\ns_mov_b64 s[46:47], s[44:45]")
        kv_tile(VS + 6, VG + 16, True)
        a(f"s_cmp_eq_u32 s{sV}, 0\ns_cselect_b64 s[46:47], -1, 0")
        for q in range(2):
            a(f"v_cndmask_b32 v{VS+6+q}, v8, v{VS+6+q}, s[46:47]\nv_cndmask_b32 v{VG+16+q}, v{10+q}, v{VG+16+q}, s[46:47]")
        a(f"""
v_lshlrev_b32 v5, 3, v0
v_add_u32 v5, {B_KVOP}, v5
s_lshl_b32 s{sT2}, s58, 9
s_sub_u32 s{sT2}, s{sT2}, 512
v_add_u32 v{vLW+2}, s{sT2}, v5
s_lshl_b32 s{sT2}, s{sV}, 9
v_add_u32 v{vLW+1}, s{sT2}, v5
v_add_u32 v{vLW}, 1024, v{vLW+1}
s_mul_i32 s{sT2}, s{sV}, {9*512}
v_add_u32 v{vLW+3}, s{sT2}, v5
s_mul_i32 s{sT}, s{sV}, 2816
v_lshl_add_u32 v{vLA}, v0, 2, s{sT}
v_add_u32 v{vGA}, s{sM}, v{vLA}
v_cmp_gt_u32 vcc, {5472 - 2560}, v{vLA}
v_cndmask_b32 v{vGA+1}, v9, v{vGA}, vcc
v_add_u32 v{vLA}, {B_STG}, v{vLA}
v_mov_b32 v4, 0
""")
    a(f"v_mov_b32 v10, {B_LCNT}\nv_mov_b32 v11, 1")
    if kind == "X":
        a("ds_write_b32 v10, v4\ns_waitcnt lgkmcnt(0)")
    setup = a.lines[mark:]
    del a.lines[mark:]
    a(f"s_waitcnt vmcnt({sum(cnt.values())})\ns_barrier")
    stamp()
    extra = 0
    for i in range(-1, 16):
        if i == -1 and late2:
            cnt[2] = issue(2)
        if i + 4 <= 17:
            cnt[i+4] = issue(i + 4)
        if 0 <= i < 9:
            spread(setup, i, 9)
        if kind == "W" and i >= 14:
            extra += sum(wq_issue(p, m) for p in ((0, 1) if i == 14 else (2,)))
        left = sum(cnt.get(c, 0) for c in range(i + 3, min(i + 4, 17) + 1)) + extra
        a(f"s_waitcnt vmcnt({left})\ns_barrier")
    a("s_barrier")
    if kind == "W":
        for p in range(3, 12):
            wq_issue(p, m)
        a("s_waitcnt vmcnt(33)")
    else:
        flag_load(sFK, 99)
        flag_check(sFK, 99, "L_BX_fk")
    stamp()
    a("s_barrier")
    stamp()
    KT = lambda s: 40 + 4 * s
    RD = lambda src, j: 112 + 28 * src + 4 * j
    srcs = ((vEA, 0), (vE0, 0), (vE0, 4096), (vEA, 5120), (vEA, 6144), (vEL, 9216), (vEL, 4096))
    prods = ((1, 2), (0, 3), (0, 4), (6, 5), (5, 0))
    if kind == "W":
        srcs = ((vEA, 0), None, (vE0, 4096), (vEA, 5120), (vEA, 6144), (vEL, 9216))
        prods = ((0, 2), (0, 3), (0, 4), None, (5, 0))
    nr = sum(x is not None for x in srcs)
    for src in range(4):
        for j, x in enumerate(srcs):
            if x: a(f"ds_read_b128 {vr(RD(src, j),4)}, v{x[0]} offset:{src*10240 + x[1]}")
    for src in range(4):
        a(f"s_waitcnt lgkmcnt({min(15, nr*(3-src))})")
        for s_, x in enumerate(prods):
            if x: a(mf(KT(s_), RD(src, x[0]), RD(src, x[1]), KT(s_) if src else "0"))
    for s_ in range(4 if kind == "X" else 3):
        for r in range(4):
            a(f"ds_write_b32 v{VS + 2*s_ + r//2}, v{KT(s_)+r} offset:{76*(r%2)}")
    a(f"ds_write_b32 v{vZS}, v{KT(4)}")
    if OPT.get("x2", 1):
        a(f"s_waitcnt {'vmcnt(0) ' if kind == 'W' else ''}lgkmcnt(0)\ns_barrier")
    else:
        a("s_waitcnt lgkmcnt(0)\ns_mov_b64 exec, 1\nds_add_u32 v10, v11\ns_mov_b64 exec, -1")
    stamp()
    if kind == "W":
        a("s_barrier")
        for p in range(12, 18):
            wq_issue(p, m)
        early = range(1, 1 + OPT.get("nb0", 2))
        n = sum(wo_pair(g) for g in early)
        a(f"s_waitcnt vmcnt({n})\ns_barrier")
        for g in range(OPT.get('nb1', 4)):
            if g not in early: wo_pair(g)
        stamp()
        a("s_barrier")
        for g in range(OPT.get('nb1', 4), OPT.get('nb2', 6)): wo_pair(g)
        loader_tail("BW", lambda: [wo_pair(g) for g in range(OPT.get('nb2', 6), 9)])
        return
    if not OPT.get("x2", 1):
      a(f"""
s_mov_b32 s{sT3}, 0x400000
L_BX_st:
ds_read_b32 v2, v10
s_waitcnt lgkmcnt(0)
v_readfirstlane_b32 s{sT}, v2
s_sub_u32 s{sT3}, s{sT3}, 1
s_cbranch_scc1 L_BX_st_x
s_cmp_ge_u32 s{sT}, 4
s_cbranch_scc0 L_BX_st
L_BX_st_x:
""")
    for n in range(11):
        a(f"ds_read_b32 v{40+n}, v{vLA} offset:{256*n}")
    for n in range(11):
        a(f"s_waitcnt lgkmcnt({10-n})")
        a(f"buffer_atomic_add_f32 v{40+n}, v{vGA + (n == 10)}, s[{SWS}:{SWS+3}], 0 offen offset:{256*n}")
    stamp()
    a("s_barrier\ns_waitcnt vmcnt(0)")
    stamp()
    a(f"s_mov_b32 s97, 1\ns_atomic_add s97, s[{sKC}:{sKC+1}], 0 glc\ns_barrier\ns_waitcnt lgkmcnt(0)\ns_cmp_ge_u32 s97, 31\ns_cbranch_scc1 L_BX_kc_x")
    arrive_wait(sKC, 32, "L_BX_kc", False)
    stamp()
    for s_ in range(9):
        for r in range(4):
            a(f"buffer_load_dword v{112+4*s_+r}, v{VG + 2*s_ + r//2}, s[{SWS}:{SWS+3}], 0 offen offset:{76*(r%2)} sc1")
    dst = ((vLW, -1), (vLW, 4), (vLW, 9), (vLW, 13), (vLW + 2, 0), (vLW + 1, 4), (vLW + 1, 9), (vLW + 1, 13), (vLW + 3, 8))
    a(f"v_subrev_u32 v11, 512, v{vLW}")
    for s_, (ad, off) in enumerate(dst):
        a(f"s_waitcnt vmcnt({4*(8-s_)})")
        a(cv(40 + 2*s_, 112 + 4*s_)); a(cv(41 + 2*s_, 114 + 4*s_))
        a(f"ds_write_b64 v{11 if off < 0 else ad}, {vr(40+2*s_,2)} offset:{512*max(off, 0)}")
    a("s_waitcnt lgkmcnt(0)")
    stamp()
    a("s_barrier")
    flag_load(sFO, 98)
    loader_tail("BX")

def p2_consumer():
    OFR = lambda ks, c: 112 + ks * 8 + c * 4
    ORDER = [(0, 0), (0, 1), (4, 0), (1, 0), (1, 1), (2, 0), (2, 1), (5, 0), (3, 0), (3, 1)]
    ACC = lambda t, c: 72 + 4 * ORDER.index((t, c))
    wf = lambda t: 48 + 4 * t
    AD, vO, vTW, vTR, VS = 1, 5, 7, 10, 14
    a("L_P2:")
    nstamp[0] = 9 if OPT.get('fine') != 3 else 10
    out_cols(57, 59, 39)
    a(f"""
v_lshrrev_b32 v40, 5, v0
v_lshlrev_b32 v40, 4, v40
v_bfe_u32 v41, v0, 4, 1
v_lshl_add_u32 v40, v41, 2, v40
v_bfe_u32 v42, v0, 2, 2
v_add_u32 v40, v40, v42
v_mul_u32_u24 v40, 192, v40
v_and_b32 v42, 3, v0
v_lshl_add_u32 v40, v42, 3, v40
v_add_u32 v40, {R1}, v40
v_lshl_add_u32 v42, v41, 5, v40
v_xor_b32 v41, 1, v41
v_lshl_add_u32 v43, v41, 5, v40
v_add_u32 v{AD}, s59, v42
v_add_u32 v{AD+1}, s59, v43
s_lshl_b32 s{sT}, s59, 1
s_sub_u32 s38, 128, s{sT}
v_add_u32 v{AD+2}, s38, v42
v_add_u32 v{AD+3}, s38, v43
s_mul_i32 s{sT}, s59, 288
s_add_u32 s{sT2}, s58, s{sT}
v_lshl_add_u32 v{vO}, v0, 4, s{sT2}
s_sub_u32 s{sT2}, s58, s{sT}
s_add_u32 s{sT2}, s{sT2}, 18432
v_lshl_add_u32 v{vO+1}, v0, 4, s{sT2}
s_mul_i32 s40, s{sWAVE}, 5632
s_add_u32 s40, s40, {P_TR}
v_and_b32 v40, 15, v0
v_lshrrev_b32 v41, 4, v0
v_lshl_add_u32 v41, v41, 3, s40
v_mul_u32_u24 v42, 208, v40
v_add_u32 v42, v42, v41
v_add_u32 v{vTW}, s59, v42
v_add_u32 v{vTW+1}, s38, v42
v_mul_u32_u24 v42, 144, v40
v_add_u32 v42, 3328, v42
v_add_u32 v{vTW+2}, v42, v41
s_lshr_b32 s{sT}, s{sWAVE}, 1
s_and_b32 s{sT2}, s{sWAVE}, 1
s_lshl_b32 s{sT2}, s{sT2}, 5
s_lshl_b32 s{sT3}, s{sWAVE}, 5
s_cmp_eq_u32 s{sBR}, 0
s_cselect_b32 s42, s{sT}, 0
s_cselect_b32 s43, s{sT2}, s{sT3}
s_cselect_b32 s55, 1, 0
s_lshl_b32 s56, s42, 3
s_lshl_b32 s{sT}, s{sRB}, 7
s_add_u32 s42, s42, s{sT}
s_mul_i32 s{sT}, s{sBR}, 1152
s_add_u32 s57, s57, s{sT}
s_lshr_b32 s{sT}, s59, 2
s_add_u32 s41, s43, s{sT}
s_sub_u32 s43, s43, s{sT}
s_add_u32 s43, s43, 16
s_add_u32 s59, s59, s57
v_mov_b32 v43, {OOB}
""")
    for n in range(5):
        if n < 3:
            a(f"""
v_add_u32 v40, {64*n}, v0
v_mul_u32_u24 v41, 5462, v40
v_lshrrev_b32 v41, 16, v41
v_mad_i32_i24 v40, v41, -12, v40
v_mul_u32_u24 v42, 208, v41
v_lshl_add_u32 v42, v40, 4, v42
v_add_u32 v{vTR+n}, s40, v42
v_cmp_gt_u32 vcc, s39, v40
v_add_u32 v41, s41, v41
""")
        else:
            a(f"v_and_b32 v40, 7, v0\nv_lshrrev_b32 v41, 3, v0")
            if n == 3:
                a(f"v_mul_u32_u24 v42, 144, v41\nv_lshl_add_u32 v42, v40, 4, v42\nv_add_u32 v42, 3328, v42\nv_add_u32 v{vTR+3}, s40, v42")
            a(f"v_add3_u32 v41, v41, s43, {8*(n-3)}")
        a(f"""
v_xor_b32 v41, s56, v41
v_lshlrev_b32 v41, s55, v41
v_add_u32 v41, s42, v41
v_mul_u32_u24 v41, 2304, v41
v_lshl_add_u32 v41, v40, 4, v41
v_add_u32 v{VS+n}, s{57 if n < 3 else 59}, v41
""")
        if n < 3:
            a(f"v_cndmask_b32 v{VS+n}, v43, v{VS+n}, vcc")
    SO = [8, 9, 10, 11, 12, 13, 14, 15, 36]
    rho(37)
    a(f"s_movk_i32 s{SO[0]}, 16384")
    for j in range(1, 9):
        a(f"s_add_u32 s{sT}, s37, {2*j-2}\ns_and_b32 s{sT}, s{sT}, 15\ns_lshl_b32 s{SO[j]}, s{sT}, 10")
    if OPT.get("touch"):
        a(f"""
v_bfe_u32 v40, v0, 4, 1
v_and_b32 v41, 15, v0
s_lshl_b32 s{sT}, s{sHG}, 11
s_add_u32 s{sT}, s{sT}, s58
v_lshl_add_u32 v41, v41, 7, s{sT}
v_mul_u32_u24 v40, 18432, v40
v_add_u32 v42, v40, v41
v_bfe_u32 v40, v0, 1, 1
v_and_b32 v41, 1, v0
s_lshr_b32 s{sT}, s{sHG}, 2
s_lshl_b32 s{sT}, s{sT}, 10
s_and_b32 s{sT2}, s{sHG}, 3
s_lshl_b32 s{sT2}, s{sT2}, 8
s_add_u32 s{sT}, s{sT}, s{sT2}
s_add_u32 s{sT}, s{sT}, s58
s_add_u32 s{sT}, s{sT}, 16384
v_lshl_add_u32 v41, v41, 7, s{sT}
v_mul_u32_u24 v40, 18432, v40
v_add_u32 v40, v40, v41
v_cndmask_b32 v42, v40, v42, s[{sG01}:{sG01+1}]
""")
    a("s_waitcnt vmcnt(0)")
    if OPT.get("touch"):
        a(f"buffer_load_dword v19, v42, s[{SWS}:{SWS+3}], 0 offen")
    stamp()
    a("s_barrier\ns_barrier")
    stamp()
    oload = lambda ks, c: f"buffer_load_dwordx4 {vr(OFR(ks, c),4)}, v{vO + c}, s[{SWS}:{SWS+3}], s{SO[ks//2]} offen offset:{1024*(ks%2)}{FLAGS[OPT.get('old', 2)]}"
    base = lambda ks: R1 if ks < 2 else R2 if ks < 10 else 0
    adr = lambda t: AD + (2 if t >= 4 else 0) + t % 2
    moved = set()
    def wreads(ks, t):
        o = WO[ks] - base(ks) + (64 * (t // 2) if t < 4 else 0)
        pre = ""
        if ks and base(ks) != base(ks - 1) and (ks, adr(t)) not in moved:
            moved.add((ks, adr(t)))
            pre = f"v_add_u32 v{adr(t)}, {(base(ks) - base(ks - 1)) & 0xffffffff}, v{adr(t)}\n"
        return [pre + tr(wf(t), adr(t), o), tr(wf(t) + 2, adr(t), o + 1536)]
    todo = [oload(ks, c) for ks in range(18) for c in range(2)]
    done = 2 * OPT["p0"]
    weave([], todo[:done])
    issued, mark, pend, safe = 0, {}, [], -1
    def emit_read():
        nonlocal issued
        key, x = pend.pop(0)
        a(x); mark[key] = issued; issued += 1
    first = list(dict.fromkeys(t for t, c in ORDER))
    for t in first:
        pend += [((0, t), x) for x in wreads(0, t)]
    while pend: emit_read()
    stage = []
    for t, c in ORDER:
        d = 20 + 2 * ORDER.index((t, c))
        ad, off = (vTW + 2, 32*t) if c else (vTW, 32*t) if t < 4 else (vTW + 1, 32*(t - 4))
        stage += [cv(d, ACC(t, c)), cv(d + 1, ACC(t, c) + 2), f"ds_write_b64 v{ad}, {vr(d,2)} offset:{off}"]
    COVER = {0: {}, 2: {0: (0, 4, 1), 5: (2, 5, 3)}, 3: {0: (0, 4), 3: (1, 2), 7: (5, 3)}}
    for ks in range(18):
        now = todo[done:done + (3 if ks < OPT["ramp"] else 2)]
        vm = done - 2 * (ks + 1)
        done += len(now)
        for i, (t, c) in enumerate(ORDER):
            while (ks, t) in [k for k, _ in pend]:
                emit_read()
            w = f"vmcnt({vm}) " if i == 0 else ""
            if mark[(ks, t)] > safe:
                cover = COVER[OPT.get("cov", 2)].get(i, (t,))
                n_ = min(15, issued - 1 - max(mark[(ks, u)] for u in cover if (ks, u) not in [k for k, _ in pend]))
                safe = issued - 1 - n_
                w += f"lgkmcnt({n_})"
            if w:
                a("s_waitcnt " + w)
            a(mf(ACC(t, c), wf(t), OFR(ks, c), ACC(t, c) if ks else "0"))
            if ks < 17 and (c == 1 or t >= 4):
                pend += [((ks + 1, t), x) for x in wreads(ks + 1, t)]
            for _ in range(2 if len(pend) > 2 else 1):
                if pend: emit_read()
            if now and i in {0: (0, 4, 8), 1: (1, 3, 6), 2: (0, 3, 6), 3: (1, 5, 8)}[OPT.get('lg', 2)]:
                a(now.pop(0))
            if ks == 17 and i >= 5:
                for _ in range(2):
                    x = stage.pop(0); a(x)
                    if x.startswith("ds_write"): issued += 1
        if ks == 0 and OPT.get("fine") != 3:
            stamp()
    stamp()
    weave([], stage)
    a("s_waitcnt lgkmcnt(0)")
    for n in range(5):
        a(f"ds_read_b128 {vr(112+4*n,4)}, v{vTR + min(n, 3)} offset:{1152 if n == 4 else 0}")
    for n in range(5):
        a(f"s_waitcnt lgkmcnt({4-n})")
        a(f"buffer_store_dwordx4 {vr(112+4*n,4)}, v{VS+n}, s[{SOUT}:{SOUT+3}], 0 offen{FLAGS[OPT.get('outst', 2)]}")
    stamp()
    stamps_out(0)
    a("s_endpgm")

HEADER = open("concat_heads__sliding_local_dilated__linear_attn_block__prompt.s.ref").read().split("; Override")[0]
out = HEADER + """; One workgroup per CU: (branch, 128-row block, group of 4 heads). Waves 0-3 do the MFMA work, waves 4-7 stream
; weights / activations into LDS. Phase 1: QKV projection + attention (A) or K,V -> kv sums -> Q -> o (B); the o tiles
; are handed over through d_ws; phase 2: output projection. Counters in d_ws are cleared in-launch (flags in d_debug).
; @launch grid=(256,1,1) block=(512,1,1) lds=163840
"""
a('.amdgcn_target "amdgcn-amd-amdhsa--gfx950"\n.text')
a(kernel_head(KN))
stamp()
a(f"""
s_cmp_ge_u32 s2, 256
s_cbranch_scc1 L_end
s_and_b32 s{sT}, s2, 7
s_lshr_b32 s{sBR}, s{sT}, 2
s_mul_i32 s{sT2}, s{sBR}, 24
s_load_dwordx4 s[36:39], s[0:1], s{sT2}
v_lshrrev_b32 v1, 6, v0
v_and_b32 v0, 63, v0
v_readfirstlane_b32 s{sWAVE}, v1
{'s_xor_b32 s3, s3, 4' if OPT.get('lfirst', 0) else ''}
s_bfe_u32 s{sHG}, s2, 0x30003
s_lshr_b32 s{sRB}, s2, 6
s_and_b32 s{sT3}, s{sT}, 3
s_lshl2_add_u32 s{sRB}, s{sT3}, s{sRB}
s_cmp_lt_u32 s{sWAVE}, 4
s_cbranch_scc1 L_cons
s_setprio {OPT.get("prio", 2)}
s_and_b32 s{sV}, s{sWAVE}, 1
s_add_u32 s{sRW}, s{sRB}, s{sHG}
{f"s_mul_i32 s{sRX}, s{sT3}, {OPT['xs'] + 4}{chr(10)}s_add_u32 s{sRW}, s{sRW}, s{sRX}" if "xs" in OPT else ""}
s_and_b32 s{sRW}, s{sRW}, 7
s_lshl_b32 s{sRX}, s{sRW}, 7
s_mul_i32 s{sRW}, s{sRW}, {64*3456}
""")
hstamp(12)
a(f"""
s_cmp_lt_u32 s{sWAVE}, 6
s_cbranch_scc1 L_W0
""")
x_head()
a(f"""
L_cons:
s_getpc_b64 s[42:43]
L_pc:
s_lshr_b32 s{sT}, s2, 3
s_lshl2_add_u32 s{sT}, s{sT}, s{sWAVE}
s_lshl_b32 s{sT}, s{sT}, 9
v_and_b32 v1, 3, v0
v_lshl_add_u32 v1, v1, 7, s{sT}
v_min_u32 v1, L_last-L_pc, v1
global_load_dword v27, v1, s[42:43]
""")
karg_loads()
a(f"""
s_cmp_eq_u32 s{sBR}, 0
s_cbranch_scc1 L_AC
s_branch L_BC
L_end:
s_endpgm
""")
w_head()
n0 = nstamp[0]
for fn in (lambda: a_loader("W"), lambda: a_loader("X"), a_consumer, lambda: b_loader("W"), lambda: b_loader("X"), b_consumer, p2_consumer):
    nstamp[0] = n0
    fn()
a("L_last:\ns_endpgm")
lines = []
for l in a.lines: lines += [x for x in l.split("\n") if x.strip()]
if OPT.get("noread"):
    lines = [l for l in lines if not l.startswith("ds_read_b64_tr")]
if OPT.get("nomfma"):
    lines = [l for l in lines if not l.startswith("v_mfma")]
if OPT.get("jitter"):
    import random
    rnd = random.Random(OPT["jitter"])
    jl = []
    for n_, l in enumerate(lines):
        if l == "s_barrier":
            for pos in (0, 1):
                if pos: jl.append(l)
                if rnd.random() < 0.5:
                    if rnd.random() < 0.5:
                        jl += [f"s_bitcmp1_b32 s{sWAVE}, {rnd.randrange(2)}", f"s_cbranch_scc1 L_j{n_}_{pos}"]
                    else:
                        jl += [f"s_bitcmp1_b32 s2, {rnd.randrange(8)}", f"s_cbranch_scc1 L_j{n_}_{pos}"]
                    jl += [f"s_sleep {rnd.randrange(1, 30)}", f"L_j{n_}_{pos}:"]
        else:
            jl.append(l)
    lines = jl
lines, added = hz.fix(lines)
out += "\n".join(lines) + "\n"
out += '.section .rodata,"a"\n.p2align 6\n' + kernel_desc(KN, 256, 102 if OPT.get('cyc') else 100, 256)
sys.stdout.write(out)
sys.stderr.write(f"nop states added: {added}\n")
```

```python
import sys, struct
from asmlib import *
import hz

OPT = dict(stamps=0, p0=3, ramp=4)
for arg in sys.argv[1:]:
    k, v = arg.split("=")
    OPT[k] = int(v)
KN = "concat_heads__sliding_local_dilated__linear_attn_block__prompt_kernel"

def f32(x):
    return "0x%08x" % struct.unpack("<I", struct.pack("<f", x))[0]

LOG2E = 1.4426950408889634
CSC = 18 ** -0.5 * LOG2E
NEG = "0xf149f2ca"
EPS = f32(1e-6)
OOB = "0x80000000"

O_BR = 0x240000
WS_KV = 0x500000
KV_ST = 0x2000
WS_CNT = 0x540000
WS_STAMP = 0x600000
WS_SIZE = 0x700000

sWAVE, sHG, sRB, sBR, sT = 3, 4, 5, 6, 7
SX, SW, SWS, SDBG, SWO, SOUT = 8, 12, 16, 20, 24, 28
sG0, sG01 = 32, 34
sK, sV, sM, sT2, sT3 = 50, 51, 52, 53, 54
sST = 60

a = Asm()
nstamp = [0]

def stamp():
    if OPT["stamps"] and not (OPT.get("fine") == 4 and nstamp[0] >= 10):
        i = nstamp[0]; nstamp[0] += 1
        assert i < 14
        a(f"{'s_memrealtime' if OPT.get('rt') or OPT.get('probe') and not (OPT.get('cyc') and i) else 's_memtime'} s[{sST+2*i}:{sST+2*i+1}]")
        if OPT.get("cyc") and i == 0:
            a("s_memtime s[100:101]")

def stamps_out(last=-1):
    if not OPT["stamps"]:
        return
    if OPT.get("probe"):
        if last == OPT.get("pwave", 0):
            j = sST + 2 * OPT["probe"]
            a(f"""
s_waitcnt vmcnt(0) lgkmcnt(0)
s_cmp_eq_u32 s2, {OPT.get('wg', 0)}
s_cbranch_scc0 L_probe_x
s_cmp_eq_u32 s{sWAVE}, {last}
s_cbranch_scc0 L_probe_x
s_sub_u32 s{sT}, s{j}, s{100 if OPT.get('cyc') else sST}
{'s_lshr_b32 s7, s7, 3' if OPT.get('cyc') else 's_mul_i32 s7, s7, 10'}
s_min_u32 s{sT}, s{sT}, 100000
s_add_u32 s{sT}, s{sT}, 6000
L_probe:
s_memrealtime s[44:45]
s_waitcnt lgkmcnt(0)
s_sub_u32 s44, s44, s{sST}
s_cmp_lt_u32 s44, s{sT}
s_cbranch_scc1 L_probe
L_probe_x:
""")
        return
    a("s_waitcnt vmcnt(0) lgkmcnt(0)")
    a(f"s_lshl_b32 s{sT}, s2, 3\ns_add_u32 s{sT}, s{sT}, s{sWAVE}\ns_lshl_b32 s{sT}, s{sT}, 6")
    a(f"s_add_u32 s{sT}, s{sT}, {WS_STAMP}\nv_mov_b32 v1, s{sT}")
    for i in range(16):
        a(f"v_mov_b32 v2, {'s%d' % (sST+2*i) if i < 14 else 0}")
        a(f"buffer_store_dword v2, v1, s[{SWS}:{SWS+3}], 0 offen offset:{4*i}")
    a("s_waitcnt vmcnt(0)")

def mf(d, s0, s1, c):
    cc = c if isinstance(c, str) else vr(c, 4)
    return f"v_mfma_f32_16x16x32_bf16 {vr(d,4)}, {vr(s0,4)}, {vr(s1,4)}, {cc}"
def cv(d, x):
    return f"v_cvt_pk_bf16_f32 v{d}, v{x}, v{x+1}"
def tr(d, addr, off):
    return f"ds_read_b64_tr_b16 {vr(d,2)}, v{addr} offset:{off}"
def weave(mfmas, others, per=2):
    o = list(others)
    for m in mfmas:
        a(m)
        for _ in range(per):
            if o: a(o.pop(0))
    for x in o: a(x)

def srd(dst, lo, nbytes):
    a(f"s_mov_b32 s{dst}, s{lo}\ns_mov_b32 s{dst+1}, s{lo+1}\ns_mov_b32 s{dst+2}, {nbytes}\ns_mov_b32 s{dst+3}, 0x20000")
def srds_rest():
    srd(SWO, 40, 663552); srd(SOUT, 44, 4718592); srd(SDBG, 46, 256); srd(SWS, 48, WS_SIZE)

class M0:
    def __init__(self, base): self.base = base; self.cur = None
    def set(self, imm):
        if self.cur is not None and -32768 <= imm - self.cur <= 32767:
            a(f"s_addk_i32 m0, {imm - self.cur}")
        else:
            a(f"s_add_u32 m0, s{self.base}, {imm}")
        self.cur = imm

def dma(voff, srd_, soff, half=False, off=0):
    if OPT.get("nodma"):
        return
    if half: a("s_mov_b32 exec_hi, 0")
    a(f"buffer_load_dwordx4 v{voff}, s[{srd_}:{srd_+3}], {soff} offen offset:{off} lds")
    if half: a("s_mov_b32 exec_hi, -1")

def rd_lanes(aw, ash, t0, t1):
    a(f"""
v_lshrrev_b32 v{t0}, 5, v0
v_lshlrev_b32 v{t0}, 4, v{t0}
v_bfe_u32 v{t1}, v0, 4, 1
v_lshl_add_u32 v{t0}, v{t1}, 2, v{t0}
v_bfe_u32 v{t1}, v0, 2, 2
v_add_u32 v{t0}, v{t0}, v{t1}
v_mul_u32_u24 v{t0}, 160, v{t0}
v_and_b32 v{t1}, 3, v0
v_lshl_add_u32 v{aw}, v{t1}, 3, v{t0}
""")
    if ash:
        a(f"v_bfe_u32 v{t1}, v0, 1, 1\nv_mul_u32_u24 v{t1}, {SLAB2 - 16}, v{t1}\nv_add_u32 v{t1}, 128, v{t1}\nv_add_u32 v{ash}, v{t1}, v{aw}")

def x_lane(d0, d1, tmp):
    a(f"""
v_lshrrev_b32 v{d0}, 4, v0
v_bfe_u32 v{tmp}, v0, 1, 3
v_xor_b32 v{d0}, v{d0}, v{tmp}
v_and_b32 v{tmp}, 15, v0
v_lshlrev_b32 v{tmp}, 7, v{tmp}
v_lshl_add_u32 v{d0}, v{d0}, 4, v{tmp}
v_xor_b32 v{d1}, 64, v{d0}
""")

def slab_src(dst, j, stride, base):
    a(f"""
v_add_u32 v1, {64*j}, v0
v_mul_u32_u24 v2, 6554, v1
v_lshrrev_b32 v2, 16, v2
v_mad_i32_i24 v1, v2, -10, v1
""")
    a("v_bfe_u32 v3, v2, 2, 1\nv_bfe_u32 v4, v2, 3, 1\nv_sub_u32 v3, v3, v4\nv_lshl_add_u32 v2, v3, 2, v2")
    a(f"""
v_mul_u32_u24 v2, {stride}, v2
v_lshl_add_u32 v2, v1, 4, v2
v_add_u32 v1, 7, v1
v_lshrrev_b32 v1, 4, v1
v_lshl_add_u32 v2, v1, 23, v2
v_add_u32 v{dst}, s{base}, v2
""")

def head_of(dst, src):
    a(f"v_mul_u32_u24 v{dst}, 57, v{src}\nv_lshrrev_b32 v{dst}, 10, v{dst}")

sOC, sKC, sFO, sFK = 92, 94, 96, 97

def arrive_wait(addr, target, label, arrive=True):
    if arrive:
        a(f"s_mov_b32 s{sT}, 1\ns_atomic_add s{sT}, s[{addr}:{addr+1}], 0 glc\ns_waitcnt lgkmcnt(0)\ns_cmp_ge_u32 s{sT}, {target-1}\ns_cbranch_scc1 {label}_x")
    a(f"""
s_mov_b32 s{sT3}, 0x20000
{label}:
s_mov_b32 s{sT}, 0
s_atomic_add s{sT}, s[{addr}:{addr+1}], 0 glc
s_waitcnt lgkmcnt(0)
s_sub_u32 s{sT3}, s{sT3}, 1
s_cbranch_scc1 {label}_x
s_cmp_ge_u32 s{sT}, {target}
s_cbranch_scc0 {label}
{label}_x:
""")

def flag_load(dst, offreg):
    a(f"s_load_dword s{dst}, s[{SDBG}:{SDBG+1}], s{offreg}")

def flag_check(val, offreg, label):
    a(f"""
s_mov_b32 s{sT3}, 0x20000
{label}:
s_waitcnt lgkmcnt(0)
s_cmp_lg_u32 s{val}, 0
s_cbranch_scc1 {label}_x
s_sub_u32 s{sT3}, s{sT3}, 1
s_cbranch_scc1 {label}_x
s_atomic_add s{val}, s[{SDBG}:{SDBG+1}], s{offreg} glc
s_branch {label}
{label}_x:
""")

SLAB2 = 5136
A_WSLOT, A_XSLOT = 15392, 18432
A_X0 = 5 * A_WSLOT
A_EX = A_X0 + 3 * A_XSLOT
B_KVSLOT, B_XSLOT = 10272, 16384
B_X0 = 5 * B_KVSLOT
B_EX = B_X0 + 3 * B_XSLOT
B_KVOP = 132256
B_STG = B_EX + 40960
B_DUMP, B_LCNT = B_STG + 5504, B_STG + 5888
R1 = 148480
def wq_slot(p):
    if p < 3: return R1 + 5120 * p
    if p < 6: return 5120 * (p - 3)
    if p == 6: return 46080
    if p < 12: return B_X0 + 5120 * (p - 7)
    return 15360 + 5120 * (p - 12)
WOC = 6144
R2 = 77824
WO = [R1, R1 + WOC] + [R2 + WOC * n for n in range(8)] + [0, WOC] + [15360 + WOC * n for n in range(6)]
P_TR = 52224
SPLITS = {(1, 0): sG0, (2, 0): sG0, (2, 1): sG0, (3, 0): sG01, (3, 1): sG0}

VD = 16
VWO = 26
sRW, sRX = 90, 91

def hstamp(i):
    if OPT.get("fine") == 4:
        a(f"s_memrealtime s[{sST+2*i}:{sST+2*i+1}]")

def w_head():
    a(f"""
L_W0:
s_mul_i32 s{sT}, s{sV}, {16*3456}
s_mul_i32 s{sT2}, s{sHG}, 144
s_add_u32 s{sT}, s{sT}, s{sT2}
s_mul_i32 s{sT2}, s{sBR}, 1152
s_add_u32 s{sT}, s{sT}, s{sT2}
""")
    for j in range(3):
        slab_src(VD + j, j, 3456, sT)
    a(f"s_mul_i32 s42, s{sV}, 2560\ns_mov_b32 m0, s42\ns_mov_b32 s{sT3}, 0")
    hstamp(10)
    a("s_waitcnt lgkmcnt(0)")
    hstamp(13)
    srd(SW, 38, 1990656)
    D = SLAB2 - 1152
    a("L_W0l:")
    pos = 0
    for sl, j in ((0, 0), (0, 1), (1, 0), (1, 1), (0, 2), (1, 2), (2, 2), (2, 0), (2, 1)):
        tgt = D * sl + 1024 * j
        if tgt != pos:
            a(f"s_addk_i32 m0, {tgt - pos}")
        pos = tgt
        if (sl, j) == (0, 2): a("s_mov_b32 exec_hi, 0")
        if (sl, j) == (2, 2): a(f"s_cmp_lg_u32 s{sBR}, 0\ns_cbranch_scc1 L_W0b")
        if (sl, j) == (2, 0): a("s_mov_b32 exec_hi, -1")
        dma(VD + j, SW, f"s{sRW}", off=1152 * sl)
    a(f"""
s_addk_i32 m0, {A_WSLOT - pos - (B_KVSLOT - (2*D + 2048))}
L_W0b:
s_mov_b32 exec_hi, -1
s_addk_i32 m0, {B_KVSLOT - (2*D + 2048)}
s_cmp_lg_u32 s{sT3}, 0
s_cbranch_scc1 L_W0x
s_mov_b32 s{sT3}, 1
s_add_u32 s{sRW}, s{sRW}, {32*3456}
s_branch L_W0l
L_W0x:
""")
    hstamp(11)
    a(f"s_cmp_eq_u32 s{sBR}, 0\ns_cbranch_scc1 L_AW1\ns_branch L_BW1")

def w_issue(kind, c, m):
    slot = (c % 5) * (A_WSLOT if kind == "A" else B_KVSLOT)
    n = 3 if kind == "A" else 2
    if c:
        a(f"s_add_u32 s{sRW}, s{sRW}, {32*3456}\ns_cmp_eq_u32 s{sRW}, {18*32*3456}\ns_cselect_b32 s{sRW}, 0, s{sRW}")
    order = [(sl, j) for sl in range(n) for j in range(2)] + [(sl, 2) for sl in range(n)]
    for sl, j in order:
        m.set(slot + (SLAB2 - 1152) * sl + 1024 * j)
        if (sl, j) == (0, 2):
            a("s_mov_b32 exec_hi, 0")
        dma(VD + j, SW, f"s{sRW}", off=1152 * sl)
    a("s_mov_b32 exec_hi, -1")
    return 3 * n

def wq_issue(p, m):
    a(f"s_add_u32 s{sK}, s{sRW}, {(p+1)*32*3456}\ns_cmp_ge_u32 s{sK}, {18*32*3456}\ns_cselect_b32 s{sT}, {18*32*3456}, 0\ns_sub_u32 s{sK}, s{sK}, s{sT}")
    for j in range(3):
        m.set(wq_slot(p) + 1024 * j)
        dma(VD + 3 + j, SW, f"s{sK}", half=(j == 2))
    return 3

def x_head():
    a(f"""
s_cmp_eq_u32 s{sBR}, 0
s_cselect_b32 s{sT2}, 1, 0
s_lshl_b32 s{sT3}, 1152, s{sT2}
v_lshrrev_b32 v1, 3, v0
v_mul_u32_u24 v1, s{sT3}, v1
v_lshrrev_b32 v2, 4, v0
v_lshl_add_u32 v2, s{sV}, 2, v2
v_and_b32 v3, 7, v0
v_xor_b32 v2, v2, v3
v_lshl_add_u32 v1, v2, 4, v1
s_mul_i32 s{sT}, s{sRB}, {128*1152}
v_add_u32 v1, s{sT}, v1
s_lshl_b32 s43, s{sT3}, 4
s_mul_i32 s{sT}, s{sV}, s{sT3}
s_lshl_b32 s{sT}, s{sT}, 3
v_add_u32 v{VD}, s{sT}, v1
s_mul_i32 s{sT3}, s{sV}, 1152
s_add_u32 s{sT3}, s{sT3}, {15*1152}
v_subrev_u32 v{VD+8}, s{sT3}, v1
s_sub_u32 s{sT3}, {17*1152}, s{sT}
s_add_u32 s{sT}, s{sT}, {64*1152}
s_cmp_eq_u32 s{sBR}, 0
s_cselect_b32 s{sT}, s{sT3}, s{sT}
v_add_u32 v{VD+4}, s{sT}, v1
s_movk_i32 s{sT}, {(A_X0 - B_X0)}
s_cselect_b32 s{sT}, s{sT}, 0
s_lshl_b32 s42, s{sV}, 10
s_add_u32 s{sT}, s{sT}, s42
s_add_u32 m0, s{sT}, {B_X0}
""")
    for q in (1, 2, 3):
        a(f"v_add_u32 v{VD+q}, s43, v{VD+q-1}\nv_add_u32 v{VD+4+q}, s43, v{VD+3+q}")
    a(f"s_mov_b32 s{sT3}, 0")
    hstamp(10)
    a("s_waitcnt lgkmcnt(0)")
    hstamp(13)
    srd(SX, 36, 2359296)
    a("L_X0l:")
    for q in range(9):
        if q == 8:
            a(f"s_cbranch_scc0 L_X0b")
        dma(VD + q, SX, f"s{sRX}")
        a("s_addk_i32 m0, 2048")
        a(f"s_cmp_eq_u32 s{sBR}, 0" if q == 7 else "s_nop 0")
    a(f"""
L_X0b:
s_cmp_lg_u32 s{sT3}, 0
s_cbranch_scc1 L_X0x
s_mov_b32 s{sT3}, 1
s_addk_i32 s{sRX}, 128
s_cmpk_eq_u32 s{sRX}, 1152
s_cselect_b32 s{sRX}, 0, s{sRX}
s_branch L_X0l
L_X0x:
""")
    hstamp(11)
    a(f"s_cmp_eq_u32 s{sBR}, 0\ns_cbranch_scc1 L_AX1\ns_branch L_BX1")

def karg_loads():
    a(f"""
s_mul_i32 s{sT}, s{sBR}, 24
s_add_u32 s{sT}, s{sT}, 16
s_load_dwordx2 s[40:41], s[0:1], s{sT}
s_load_dwordx4 s[44:47], s[0:1], 48
s_load_dwordx2 s[48:49], s[0:1], 64
""")

def karg_rest(loads=True):
    if loads:
        karg_loads()
    if OPT["stamps"]:
        for i in range(1, 10 if OPT.get("fine") == 4 else 14):
            a(f"s_mov_b32 s{sST+2*i}, 0")
    a(f"""
s_mov_b32 s{sG0}, 0xffff
s_mov_b32 s{sG0+1}, 0
s_mov_b32 s{sG01}, -1
s_mov_b32 s{sG01+1}, 0
""")

def x_issue(kind, c, m):
    nq, h, x0, xs = (9, 5, A_X0, A_XSLOT) if kind == "A" else (8, 4, B_X0, B_XSLOT)
    st = (c + 1) // 2
    if st > 8:
        return 0
    qs = range(nq) if c == 0 else (range(h) if c % 2 else range(h, nq))
    if c % 2:
        a(f"s_addk_i32 s{sRX}, 128\ns_cmpk_eq_u32 s{sRX}, 1152\ns_cselect_b32 s{sRX}, 0, s{sRX}")
    for q in qs:
        m.set(x0 + (st % 3) * xs + 2048 * q)
        a("s_nop 0")
        dma(VD + q, SX, f"s{sRX}")
    return len(qs)

def out_cols(sb, fo, lim):
    a(f"""
s_and_b32 s{sT}, s{sHG}, 3
s_lshl_b32 s{sT2}, s{sT}, 3
s_lshr_b32 s{sb}, 0x07050200, s{sT2}
s_and_b32 s{sb}, s{sb}, 0xff
s_lshr_b32 s{sT2}, s{sHG}, 2
s_mul_i32 s{sT2}, s{sT2}, 9
s_add_u32 s{sb}, s{sb}, s{sT2}
s_lshl_b32 s{sb}, s{sb}, 6
s_cmp_eq_u32 s{sT}, 1
s_cselect_b32 s{fo}, 64, 0
s_cmp_lt_u32 s{sT}, 2
s_cselect_b32 s{lim}, 12, 8
""")

def wo_setup(quad):
    out_cols(sM, 55, 56)
    for j in range(6):
        a(f"""
v_add_u32 v1, {64*j}, v0
v_mul_u32_u24 v2, 5462, v1
v_lshrrev_b32 v2, 16, v2
v_mad_i32_i24 v1, v2, -12, v1
v_bfe_u32 v3, v2, 2, 1
v_lshlrev_b32 v4, 1, v3
v_xor_b32 v1, v1, v4
v_cmp_gt_u32 vcc, s56, v1
v_lshl_add_u32 v1, v1, 4, s{sM}
v_mov_b32 v4, {1 << 23}
v_cndmask_b32 v1, v4, v1, vcc
v_and_b32 v4, 3, v2
v_lshl_add_u32 v5, v3, 2, v4
v_mul_u32_u24 v3, 72, v3
v_add_u32 v4, v3, v4
v_bfe_u32 v3, v2, 3, 1
v_lshl_add_u32 v5, v3, 4, v5
v_lshl_add_u32 v4, v3, 2, v4
v_bfe_u32 v3, v2, 4, 1
v_lshl_add_u32 v5, v3, 3, v5
v_mul_u32_u24 v3, 144, v3
v_add_u32 v4, v3, v4
v_mul_u32_u24 v5, 1152, v5
v_add_u32 v{VWO+j}, v5, v1
v_mul_u32_u24 v4, 1152, v4
v_add_u32 v{VWO+6+j}, v4, v1
""")
    a(f"s_and_b32 s55, s{sWAVE}, 3\ns_lshl_b32 s57, s55, 3")
    rho(56)
    a(f"s_add_u32 s56, s56, s{55 if quad else sV}")

def rho(dst):
    a(f"s_lshl_b32 s{dst}, s{sRB}, 1\ns_add_u32 s{dst}, s{dst}, s{sHG}")
    if OPT.get("wx"):
        a(f"s_lshr_b32 s{sT}, s{sRB}, 2\ns_mul_i32 s{sT}, s{sT}, {OPT['wx']}\ns_add_u32 s{dst}, s{dst}, s{sT}")
    a(f"s_lshl_b32 s{dst}, s{dst}, 1")

def wo_chunk(left, fadd):
    if left:
        a(f"s_mul_i32 s{sK}, s{sV}, {288*1152}\ns_add_u32 s{sK}, s{sK}, {64*1152}")
    else:
        a(f"""
s_add_u32 s{sT}, s56, {fadd}
s_bfe_u32 s{sK}, s{sT}, 0x30001
s_mul_i32 s{sK}, s{sK}, {72*1152}
s_bitcmp1_b32 s{sT}, 0
s_cselect_b32 s{sT}, {32*1152}, 0
s_add_u32 s{sK}, s{sK}, s{sT}
""")
    for j in range(6):
        dma(VWO + (6 if left else 0) + j, SWO, f"s{sK}")
        if j < 5:
            a("s_addk_i32 m0, 1024")
    return 6

def wo_issue(q):
    packed = sum((WO[2 + 4*q + w] // 1024) << (8 * w) for w in range(4))
    a(f"s_lshr_b32 s{sT}, {packed}, s57\ns_and_b32 s{sT}, s{sT}, 0xff\ns_lshl_b32 m0, s{sT}, 10")
    return wo_chunk(False, 4*q)

def wo_pair(g):
    a(f"s_mul_i32 s{sT}, s{sV}, {WO[2*g+1] - WO[2*g] & 0xffffffff}\ns_add_u32 m0, s{sT}, {WO[2*g]}")
    return wo_chunk(g == 0, 2*g - 2)

def sync_setup():
    a(f"""
s_lshl_b32 s{sT}, s{sBR}, 4
s_add_u32 s{sT}, s{sT}, s{sRB}
s_lshl_b32 s{sT2}, s{sT}, 8
s_add_u32 s{sT2}, s{sT2}, {WS_CNT}
s_add_u32 s{sOC}, s{SWS}, s{sT2}
s_addc_u32 s{sOC+1}, s{SWS+1}, 0
s_lshl_b32 s{sT}, s{sT}, 2
s_add_u32 s98, s{sT}, 32
s_lshl_b32 s99, s{sHG}, 2
s_mul_i32 s{sT2}, s{sHG}, {KV_ST}
s_add_u32 s{sT2}, s{sT2}, {WS_KV + 6144}
s_add_u32 s{sKC}, s{SWS}, s{sT2}
s_addc_u32 s{sKC+1}, s{SWS+1}, 0
""")

def loader_tail(tag, late=None):
    sig = tag != "BW"
    if sig:
        flag_check(sFO, 98, f"L_{tag}_fo")
    a("s_barrier")
    stamp()
    if sig:
        a(f"s_cmp_eq_u32 s{sWAVE}, 6\ns_cbranch_scc0 L_{tag}_na\ns_mov_b32 s96, 1\ns_atomic_add s96, s[{sOC}:{sOC+1}], 0 glc\nL_{tag}_na:")
    if late:
        late()
    if sig:
        a(f"s_cmp_eq_u32 s{sWAVE}, 6\ns_cbranch_scc0 L_{tag}_oc_x")
        a(f"s_waitcnt lgkmcnt(0)\ns_cmp_ge_u32 s96, 7\ns_cbranch_scc1 L_{tag}_oc_x")
        arrive_wait(sOC, 8, f"L_{tag}_oc", False)
    a("s_waitcnt vmcnt(0)")
    stamp()
    a("s_barrier")
    stamps_out()
    a("s_endpgm")

def spread(setup, i, n):
    per = -(-len(setup) // n)
    a("s_cmp_eq_u32 s59, 1")
    a.lines += setup[per*i:per*(i+1)]
    a("s_cselect_b32 s59, 1, 0")

def captured(fn):
    mark = len(a.lines)
    fn()
    out_ = a.lines[mark:]
    del a.lines[mark:]
    return out_

def att_masks(MC, MP, MPF, PM, t):
    a(f"""
s_lshr_b32 s{sT}, s{sWAVE}, 1
s_lshl_b32 s{sT}, s{sT}, 3
v_and_b32 v{t}, 15, v0
v_xor_b32 v{t}, s{sT}, v{t}
v_lshrrev_b32 v{t+1}, 4, v0
v_lshlrev_b32 v{t+1}, 2, v{t+1}
v_xor_b32 v{t+1}, s{sT}, v{t+1}
v_sub_u32 v{t}, v{t}, v{t+1}
v_mov_b32 v{t+2}, {NEG}
s_and_b32 s{sT}, s{sWAVE}, 1
s_or_b32 s{sT}, s{sT}, s{sRB}
s_cmp_eq_u32 s{sT}, 0
s_cselect_b64 s[42:43], -1, 0
""")
    for r in range(4):
        a(f"""
v_subrev_u32 v{t+1}, {r}, v{t}
v_cmp_gt_u32 vcc, 8, v{t+1}
v_cndmask_b32 v{MC+r}, v{t+2}, 0, vcc
v_cmp_gt_i32 vcc, -8, v{t+1}
v_cndmask_b32 v{MP+r}, v{t+2}, 0, vcc
v_cndmask_b32 v{MPF+r}, v{MP+r}, v{t+2}, s[42:43]
v_cmp_lt_i32 vcc, -1, v{t+1}
v_mov_b32 v{t+3}, {'0xffff' if r % 2 == 0 else '0xffff0000'}
v_cndmask_b32 v{t+3}, 0, v{t+3}, vcc
""")
        a(f"v_mov_b32 v{PM + r//2}, v{t+3}" if r % 2 == 0 else f"v_or_b32 v{PM + r//2}, v{PM + r//2}, v{t+3}")

def a_loader(kind):
    a(f"L_A{kind}1:")
    m = M0(42)
    issue = (lambda c: w_issue("A", c, m)) if kind == "W" else (lambda c: x_issue("A", c, m))
    late2 = kind == "W" and OPT.get("early", 2) & 1
    cnt = ({1: 9} if late2 else {1: 9, 2: issue(2)}) if kind == "W" else {1: 5, 2: 4}
    karg_rest()
    a("s_mov_b32 s59, 0")
    stamp()
    x_lane(8, 9, 1)
    rd_lanes(10, 12 if kind == "W" else None, 1, 2)
    if kind == "X":
        a(f"v_add_u32 v12, {2*SLAB2 + 128}, v10")
    a(f"""
v_add_u32 v8, {A_X0 + 8*2048}, v8
v_add_u32 v9, {A_X0 + 8*2048}, v9
s_lshl_b32 s{sT}, s{sV}, 6
s_add_u32 s{sT}, s{sT}, {SLAB2 if kind == 'W' else 2*SLAB2}
v_add_u32 v10, s{sT}, v10
v_add_u32 v13, {4*A_WSLOT}, v10
v_add_u32 v15, {4*A_WSLOT}, v12
""")
    def setup():
        srds_rest(); sync_setup(); wo_setup(True)
        a(f"""
s_lshl_b32 s{sT}, s{sV}, 10
s_add_u32 s{sT}, s{sT}, {A_EX + (0 if kind == 'W' else 2560)}
v_lshlrev_b32 v1, 3, v0
v_add_u32 v6, s{sT}, v1
v_add_u32 v7, {A_EX + (2048 if kind == 'W' else 4608)}, v1
""")
    setup = captured(setup)
    a(f"s_waitcnt vmcnt({sum(cnt.values())})\ns_barrier")
    stamp()
    extra = 0
    for i in range(-1, 17):
        ks = i + 1
        slot = ks % 5
        off = 0 if slot == 4 else slot * A_WSLOT
        ad = (13, 15) if slot == 4 else (10, 12)
        a(f"ds_read_b128 v[40:43], v{8 + ks % 2} offset:{(ks//2 % 3)*A_XSLOT}")
        for j in range(2):
            a(tr(44 + 4*j, ad[0], off + 32*j)); a(tr(46 + 4*j, ad[0], off + 32*j + 1280))
        a(f"s_cmp_eq_u32 s{sV}, 0\ns_cbranch_scc0 L_A{kind}_r{ks}")
        a(tr(52, ad[1], off)); a(tr(54, ad[1], off + 1280))
        a(f"L_A{kind}_r{ks}:")
        if i == -1 and late2:
            cnt[2] = issue(2)
        if i + 4 <= 17:
            cnt[i+4] = issue(i + 4)
        a("s_waitcnt lgkmcnt(0)")
        for j in range(3):
            c = 60 + 4*j if ks else "0"
            if j == 2:
                a(f"s_cmp_eq_u32 s{sV}, 0\ns_cbranch_scc0 L_A{kind}_m{ks}")
            a(mf(60 + 4*j, 44 + 4*j, 40, c) if kind == "W" else mf(60 + 4*j, 40, 44 + 4*j, c))
        a(f"L_A{kind}_m{ks}:")
        if 1 <= i < 11:
            spread(setup, i - 1, 10)
        if i == 14 and kind == "W":
            extra += wo_pair(0)
        if i == 15:
            extra += wo_issue(0)
        if i + 1 <= 16:
            left = sum(cnt.get(c, 0) for c in range(i + 3, min(i + 4, 17) + 1)) + extra
            a(f"s_waitcnt vmcnt({left})\ns_barrier")
    for j in range(3):
        a(cv(44 + 2*j, 60 + 4*j)); a(cv(45 + 2*j, 62 + 4*j))
    if kind == "W":
        a("v_mov_b32 v50, 0\nv_mov_b32 v51, 0")
        a("v_permlane32_swap_b32 v48, v50\nv_permlane32_swap_b32 v49, v51")
    a("ds_write_b64 v6, v[44:45]\nds_write_b64 v6, v[46:47] offset:512")
    a(f"s_cmp_eq_u32 s{sV}, 0\ns_cbranch_scc0 L_A_att")
    a(f"ds_write_b64 v7, {'v[50:51]' if kind == 'W' else 'v[48:49]'}")
    if kind == "W":
        a("s_branch L_A_att")
        return
    a("L_A_att:")
    stamp()
    a("s_waitcnt lgkmcnt(0)\ns_barrier")
    stamp()
    flag_load(sFO, 98)
    wo_issue(1); wo_issue(2); wo_issue(3)
    stamp()
    loader_tail("A")

def o_store_addr(vfull, vleft, tmp, left_lo, wreg=sWAVE):
    a(f"""
s_lshl_b32 s{sT}, s{sRB}, 3
s_lshl_b32 s{sT2}, s{wreg}, 1
s_add_u32 s{sT}, s{sT}, s{sT2}
s_mul_i32 s{sT}, s{sT}, 18432
s_mul_i32 s{sT2}, s{sBR}, {O_BR}
s_add_u32 s58, s{sT}, s{sT2}
s_lshl_b32 s{sT2}, s{sHG}, 11
s_add_u32 s{sT2}, s{sT2}, s58
v_lshl_add_u32 v{vfull}, v0, 4, s{sT2}
s_lshr_b32 s{sT2}, s{sHG}, 2
s_add_u32 s{sT2}, s{sT2}, 16
s_lshl_b32 s{sT2}, s{sT2}, 10
s_add_u32 s{sT}, s58, s{sT2}
s_and_b32 s{sT2}, s{sHG}, 3
s_lshl_b32 s{sT2}, s{sT2}, 8
s_add_u32 s{sT}, s{sT}, s{sT2}
v_and_b32 v{vleft}, 15, v0
v_lshlrev_b32 v{vleft}, 4, v{vleft}
v_bfe_u32 v{tmp}, v0, 4, 1
v_lshl_add_u32 v{vleft}, v{tmp}, 3, v{vleft}
v_add_u32 v{vleft}, s{sT}, v{vleft}
v_mov_b32 v{tmp}, {OOB}
""")
    x, y = (tmp, vleft) if left_lo else (vleft, tmp)
    a(f"v_cndmask_b32 v{vleft}, v{x}, v{y}, s[{sG01}:{sG01+1}]")

FLAGS = ["", " nt", " sc1", " sc1 nt", " sc0 sc1"]
def o_store(of, vfull, vleft, rt):
    so = f"s{sK}" if rt else "0"
    fl = FLAGS[OPT.get("ost", 2)]
    if rt:
        a(f"s_movk_i32 s{sK}, 18432")
    a(f"buffer_store_dwordx4 {vr(of,4)}, v{vfull}, s[{SWS}:{SWS+3}], {so} offen{fl}")
    a(f"buffer_store_dwordx4 {vr(of+4,4)}, v{vfull}, s[{SWS}:{SWS+3}], {so} offen offset:1024{fl}")
    a(f"buffer_store_dwordx2 {vr(of+8,2)}, v{vleft}, s[{SWS}:{SWS+3}], {so} offen{fl}")

def init_stores(tag, with_kv):
    a(f"""
s_or_b32 s{sT}, s{sHG}, s{sWAVE}
s_cmp_eq_u32 s{sT}, 0
s_cselect_b32 s55, 1, 0
v_mov_b32 v20, 0
v_mov_b32 v21, 0
v_mov_b32 v22, 0
v_mov_b32 v23, 0
s_cbranch_scc0 L_{tag}_i1
{chr(10).join(["s_sleep 127"] * OPT.get("late", 0))}
s_lshl_b32 s{sT}, s{sBR}, 4
s_add_u32 s{sT}, s{sT}, s{sRB}
s_lshl_b32 s{sT}, s{sT}, 8
s_add_u32 s{sT}, s{sT}, {WS_CNT}
v_mov_b32 v24, s{sT}
buffer_store_dword v20, v24, s[{SWS}:{SWS+3}], 0 offen sc1
L_{tag}_i1:
""")
    if with_kv:
        a(f"""
s_or_b32 s{sT}, s{sRB}, s{sWAVE}
s_cmp_eq_u32 s{sT}, 0
s_cbranch_scc0 L_{tag}_i2
{chr(10).join(["s_sleep 127"] * OPT.get("late", 0))}
s_or_b32 s55, s55, 2
s_mul_i32 s{sT}, s{sHG}, {KV_ST}
s_add_u32 s{sT}, s{sT}, {WS_KV}
v_lshl_add_u32 v24, v0, 4, s{sT}
""")
        for j in range(7):
            a(f"s_movk_i32 s{sK}, {1024*j}\nbuffer_store_dwordx4 v[20:23], v24, s[{SWS}:{SWS+3}], s{sK} offen sc1")
        a(f"L_{tag}_i2:")

def init_flags(tag):
    a(f"""
s_waitcnt vmcnt(0)
s_cmp_eq_u32 s55, 0
s_cbranch_scc1 L_{tag}_f2
v_mov_b32 v20, 1
s_bitcmp1_b32 s55, 0
s_cbranch_scc0 L_{tag}_f1
s_lshl_b32 s{sT}, s{sBR}, 4
s_add_u32 s{sT}, s{sT}, s{sRB}
s_lshl_b32 s{sT}, s{sT}, 2
s_add_u32 s{sT}, s{sT}, 32
v_mov_b32 v24, s{sT}
buffer_store_dword v20, v24, s[{SDBG}:{SDBG+3}], 0 offen sc1
L_{tag}_f1:
s_bitcmp1_b32 s55, 1
s_cbranch_scc0 L_{tag}_f2
s_lshl_b32 s{sT}, s{sHG}, 2
v_mov_b32 v25, s{sT}
buffer_store_dword v20, v25, s[{SDBG}:{SDBG+3}], 0 offen sc1
L_{tag}_f2:
""")

def kstep(tiles, nxt_reads, first, waits):
    pend = list(first)
    for t, (m0_, m1_) in enumerate(tiles):
        if OPT.get("snake") and t % 2:
            m0_, m1_ = m1_, m0_
        if t in waits:
            a(waits[t])
        a(m0_)
        for x in pend: a(x)
        a(m1_)
        pend = []
        if nxt_reads:
            a(nxt_reads[t][0]); pend = [nxt_reads[t][1]]
    for x in pend: a(x)

def ring_loop(T, D, pair, wreads, xread, hook, last_gap=None):
    issued, mark, q = 0, {}, []
    def rd(key, x):
        nonlocal issued
        a(x); mark[key] = issued; issued += 1
    def feed(n):
        ks, t = divmod(n, T)
        if ks > 17: return
        if t == 0:
            if ks: q.append((None, "s_barrier"))
            q.extend(((ks, "x"), xread(ks, rt)) for rt in range(2))
        q.extend(((ks, t), x) for x in wreads(ks, t))
    def fill(k):
        for _ in range(k):
            while q and q[0][0] is None:
                a(q.pop(0)[1])
            if q: rd(*q.pop(0))
    for n in range(D):
        feed(n)
    fill(len(q))
    for n in range(18 * T):
        ks, t = divmod(n, T)
        hook(ks, t)
        assert not [k for k, _ in q if k in ((ks, t), (ks, "x"))]
        need = max(mark[(ks, t)], mark[(ks, "x")])
        a(f"s_waitcnt lgkmcnt({min(15, issued - 1 - need)})")
        feed(n + D)
        m0_, m1_ = pair(ks, t)
        a(m0_); fill(1)
        a(m1_); fill(2 if len(q) > 2 else 1)
        if last_gap and ks == 17:
            x = last_gap(t)
            if x: a(x); issued += 1

def a_consumer():
    acc = lambda t, rt: 144 + (t * 2 + rt) * 4
    wf = lambda t: 88 + 4 * t
    xf = lambda buf, rt: 72 + buf * 8 + rt * 4
    aW, aS, aWb, aSb, aX = 1, 2, 3, 4, 11
    vOF, vOL, vEXW, vEXR = 13, 14, 15, 16
    MC, MP, MPF, PM = 56, 60, 64, 68
    a("L_AC:")
    karg_rest(False)
    a("s_waitcnt lgkmcnt(0)")
    srds_rest()
    init_stores("AC", False)
    rd_lanes(aW, aS, 17, 18); x_lane(aX, aX + 1, 17)
    a(f"v_add_u32 v{aWb}, {4*A_WSLOT}, v{aW}\nv_add_u32 v{aSb}, {4*A_WSLOT}, v{aS}")
    a(f"""
s_lshl_b32 s{sT}, s{sWAVE}, 12
s_add_u32 s{sT}, s{sT}, {A_X0}
v_add_u32 v{aX}, s{sT}, v{aX}
v_add_u32 v{aX+1}, s{sT}, v{aX+1}
""")
    att_masks(MC, MP, MPF, PM, 17)
    o_store_addr(vOF, vOL, 17, True)
    a(f"""
s_lshr_b32 s{sT}, s{sWAVE}, 1
s_add_u32 s{sT}, s{sT}, 1
s_mul_i32 s{sT}, s{sT}, 5120
s_bitcmp1_b32 s{sWAVE}, 0
s_cselect_b32 s{sT3}, s{sT}, 0
v_lshlrev_b32 v17, 3, v0
v_add_u32 v17, {A_EX}, v17
v_add_u32 v{vEXW}, s{sT}, v17
v_add_u32 v{vEXR}, s{sT3}, v17
""")

    def wreads(ks, t):
        slot = ks % 5
        o = 0 if slot == 4 else slot * A_WSLOT
        ad = (aSb if slot == 4 else aS) if t == 4 else (aWb if slot == 4 else aW)
        if t != 4:
            o += 32 * t if t < 4 else SLAB2 + 32 * (t - 5) if t < 9 else 2 * SLAB2 + 32 * (t - 9)
        return [tr(wf(t), ad, o), tr(wf(t) + 2, ad, o + 1280)]
    xread = lambda ks, rt: f"ds_read_b128 {vr(xf(ks % 2, rt),4)}, v{aX + ks % 2} offset:{(ks//2 % 3)*A_XSLOT + rt*2048}"

    stamp()
    a("s_barrier")
    stamp()
    def pair(ks, t):
        c = lambda rt: acc(t, rt) if ks else "0"
        return [mf(acc(t, rt), wf(t), xf(ks % 2, rt), c(rt)) if t < 9 else mf(acc(t, rt), xf(ks % 2, rt), wf(t), c(rt)) for rt in range(2)]
    def hook(ks, t):
        if t == 0 and OPT.get("fine") == 2 and ks in (2, 5, 8, 11, 14):
            stamp()
        if (ks, t) == (OPT.get('fk', 2), 0):
            init_flags("AC")
    ring_loop(14, OPT.get("da", 4), pair, wreads, xread, hook)
    stamp()
    KP = lambda j: 18 + 10 * j
    QT = lambda rt, h: 88 + 16 * rt + 4 * h
    VP = lambda t, j: 120 + 6 * t + 2 * j if t < 4 else 48 + 2 * j
    ONE = 72
    def pack_kv(rt):
        o = []
        for q in range(2):
            o += [cv(QT(rt, 3) + 2 + q, acc(4, rt) + 2*q), f"v_mov_b32 v{KP(1+rt) + 8 + q}, 0"]
        for tau in range(4):
            o += [cv(KP(1+rt) + 2*tau + q, acc(5+tau, rt) + 2*q) for q in range(2)]
        o += [f"v_permlane32_swap_b32 v{QT(rt,3) + 2 + q}, v{KP(1+rt) + 8 + q}" for q in range(2)]
        for t in range(5):
            o += [cv(VP(t, 1+rt) + q, acc(9+t, rt) + 2*q) for q in range(2)]
        return o
    def pack_q(rt):
        o = []
        for t in range(4):
            for q in range(2):
                d = QT(rt, t) + q
                o.append(cv(d, acc(t, rt) + 2*q))
                if (t, q) in SPLITS:
                    m = SPLITS[(t, q)]; lo = QT(rt, t-1) + 2 + q
                    o += [f"v_cndmask_b32 v{lo}, 0, v{d}, s[{m}:{m+1}]", f"v_xor_b32 v{d}, v{d}, v{lo}"]
        return o + [f"v_mov_b32 v{QT(rt,0) + 3}, 0"]
    weave([], pack_kv(1))
    a(f"s_bitcmp1_b32 s{sWAVE}, 0\ns_cbranch_scc1 L_AC_nodump")
    for j in range(5):
        a(f"ds_write_b64 v{vEXW}, {vr(KP(2) + 2*j, 2)} offset:{512*j}")
        a(f"ds_write_b64 v{vEXW}, {vr(VP(j, 2), 2)} offset:{512*(5+j)}")
    a("L_AC_nodump:")
    weave([], pack_kv(0) + pack_q(1))
    a("s_waitcnt lgkmcnt(0)\ns_barrier")
    for j in range(5):
        a(f"ds_read_b64 {vr(KP(0) + 2*j, 2)}, v{vEXR} offset:{512*j}")
        a(f"ds_read_b64 {vr(VP(j, 0), 2)}, v{vEXR} offset:{512*(5+j)}")
    SC = lambda rt, h: (224 if rt else 184) + 8 * h
    MX = lambda rt: [76 + 4 * rt + h for h in range(4)]
    PT = lambda rt, h: 144 + 16 * rt + 4 * h
    def qk(rt):
        o = []
        for h in range(4):
            o += [mf(SC(rt, h), KP(1+rt) + 2*h, QT(rt, h), MC), mf(SC(rt, h) + 4, KP(rt) + 2*h, QT(rt, h), MP if rt else MPF)]
        return o
    def rowmax(rt):
        o = []
        for h in range(4):
            s = SC(rt, h); m = MX(rt)[h]
            o += [f"v_max_f32 v{s+r}, v{s+r}, v{s+4+r}" for r in range(4)]
            o += [f"v_max3_f32 v{m}, v{s}, v{s+1}, v{s+2}", f"v_max_f32 v{m}, v{m}, v{s+3}"]
        return o
    def xmax(rt):
        m = MX(rt)
        return [f"v_permlane32_swap_b32 v{m[0]}, v{m[1]}", f"v_permlane32_swap_b32 v{m[2]}, v{m[3]}",
                f"v_max_f32 v{m[0]}, v{m[0]}, v{m[1]}", f"v_max_f32 v{m[2]}, v{m[2]}, v{m[3]}",
                f"v_permlane16_swap_b32 v{m[0]}, v{m[2]}", f"v_max_f32 v{m[0]}, v{m[0]}, v{m[2]}",
                f"v_mul_f32 v{m[0]}, s{sT2}, v{m[0]}", f"v_mov_b32 v{m[2]}, v{m[0]}",
                f"v_permlane16_swap_b32 v{m[0]}, v{m[2]}", f"v_mov_b32 v{m[1]}, v{m[0]}", f"v_mov_b32 v{m[3]}, v{m[2]}",
                f"v_permlane32_swap_b32 v{m[0]}, v{m[1]}", f"v_permlane32_swap_b32 v{m[2]}, v{m[3]}"]
    def scale(rt):
        if OPT.get("pka", 2) < 2:
            return [f"v_fma_f32 v{SC(rt,h)+r}, v{SC(rt,h)+r}, s56, v{MX(rt)[h]}" for h in range(4) for r in range(4)]
        return [f"v_pk_fma_f32 {vr(SC(rt,h)+r,2)}, {vr(SC(rt,h)+r,2)}, s[56:57], {vr(MX(rt)[h] & ~1, 2)} op_sel:[0,0,{h%2}] op_sel_hi:[1,1,{h%2}]"
                for h in range(4) for r in (0, 2)]
    def probs(rt):
        o = []
        for h in range(4):
            s = SC(rt, h); p = PT(rt, h)
            o += [f"v_exp_f32 v{s+r}, v{s+r}" for r in range(4)]
            if h:
                o += split(rt, h - 1)
        return o + split(rt, 3)
    def split(rt, h):
        s = SC(rt, h); p = PT(rt, h); o = []
        for q in range(2):
            o += [cv(p + q, s + 2*q), f"v_and_b32 v{p+2+q}, v{p+q}, v{PM+q}", f"v_xor_b32 v{p+q}, v{p+q}, v{p+2+q}"]
        return o
    OB = lambda rt, t: (224 if rt else 184) + 4 * t
    OA = lambda rt, t: (224 if rt else 184) + 12 + 4 * t
    SM = lambda rt, h: 88 + 16 * rt + 4 * h
    OF = lambda rt: 18 + 10 * rt
    def pv(rt):
        o = [mf(SM(rt, h), ONE, PT(rt, h), "0") for h in range(4)]
        for t in range(5):
            if t < 4: o.append(mf(OB(rt, t), VP(t, rt), PT(rt, t), "0"))
            if t > 0: o.append(mf(OA(rt, t), VP(t, rt), PT(rt, t-1), "0"))
        return o
    def finish(rt, pk):
        o = [f"v_rcp_f32 v{SM(rt,h)}, v{SM(rt,h)}" for h in range(4)]
        for t in range(5):
            for q in range(2):
                d = OF(rt) + 2*t + q
                srcs = []
                if t < 4: srcs.append((OB(rt, t) + 2*q, SM(rt, t), d))
                if t == 4: srcs.append((OA(rt, t) + 2*q, SM(rt, 3), d))
                if (t, q) in SPLITS: srcs.append((OA(rt, t) + 2*q, SM(rt, t-1), 17))
                for x, inv, dd in srcs:
                    if pk:
                        o += [f"v_pk_mul_f32 {vr(x,2)}, {vr(x,2)}, {vr(inv,2)} op_sel_hi:[1,0]", cv(dd, x)]
                    else:
                        o += [f"v_mul_f32 v{x}, v{x}, v{inv}", f"v_mul_f32 v{x+1}, v{x+1}, v{inv}", cv(dd, x)]
                if (t, q) in SPLITS:
                    m = SPLITS[(t, q)]
                    o.append(f"v_cndmask_b32 v{d}, v{d}, v17, s[{m}:{m+1}]")
        return o
    a(f"s_mov_b32 s56, {f32(CSC)}\ns_mov_b32 s57, s56\ns_mov_b32 s{sT2}, {f32(-CSC)}")
    weave(qk(1), pack_q(0) + [f"v_mov_b32 v{ONE+j}, 0x3f803f80" for j in range(4)])
    a("s_waitcnt lgkmcnt(0)")
    weave(qk(0), rowmax(1))
    x1, x0 = xmax(1), xmax(0)
    r0 = rowmax(0)
    for i, x in enumerate(x1):
        a(x)
        for y in r0[2*i:2*i+2]: a(y)
    p1 = scale(1) + probs(1)
    for i, x in enumerate(x0):
        a(x)
        for y in p1[2*i:2*i+2]: a(y)
    if OPT.get("pka", 2) > 1:
        weave([], p1[2*len(x0):] + scale(0))
        weave(pv(1), probs(0))
    else:
        weave([], p1[2*len(x0):])
        weave(pv(1), scale(0) + probs(0))
    f1 = finish(1, False)
    f1p = finish(1, OPT.get('pka', 2) > 1)
    cutp = next(i for i, x in enumerate(f1p) if x.startswith(f"v_cvt_pk_bf16_f32 v{OF(1) + 3},")) + 1
    cutn = next(i for i, x in enumerate(f1) if x.startswith(f"v_cvt_pk_bf16_f32 v{OF(1) + 3},")) + 1
    weave(pv(0), f1[:cutn])
    weave([], f1p[cutp:])
    o_store(OF(1), vOF, vOL, 1)
    weave([], finish(0, OPT.get('pka', 2) > 0))
    o_store(OF(0), vOF, vOL, 0)
    stamp()
    a("s_branch L_P2")

def phi(r, n, t):
    o = [f"v_pk_fma_f32 {vr(t[j],2)}, {vr(r+j,2)}, s[56:57], v[14:15]" for j in range(0, n, 2)]
    for j in range(n):
        o += [f"v_exp_f32 v{t[j]}, v{t[j]} clamp", f"v_max_f32 v{r+j}, s{sT2}, v{r+j}"]
    return o + [f"v_pk_add_f32 {vr(r+j,2)}, {vr(r+j,2)}, {vr(t[j],2)}" for j in range(0, n, 2)]

def b_consumer():
    acc = lambda t, rt: 184 + (t * 2 + rt) * 4
    wf = lambda t: 148 + 4 * t
    xf = lambda ks, rt: 52 + ks * 8 + rt * 4 if ks < 12 else 36 + (ks % 2) * 8 + rt * 4
    aW, aS, aX = 1, 2, 6
    vOF, vOL, vEX = 8, 9, 10
    CK, CS = 28, 32
    a("L_BC:")
    karg_rest(False)
    a("s_waitcnt lgkmcnt(0)")
    srds_rest()
    init_stores("BC", True)
    rd_lanes(aW, aS, 17, 18); x_lane(aX, aX + 1, 17)
    a(f"""
s_lshl_b32 s{sT}, s{sWAVE}, 12
s_add_u32 s{sT}, s{sT}, {B_X0}
v_add_u32 v{aX}, s{sT}, v{aX}
v_add_u32 v{aX+1}, s{sT}, v{aX+1}
v_and_b32 v17, 15, v0
v_cmp_gt_u32 vcc, 8, v17
v_mov_b32 v18, {EPS}
s_mov_b64 s[42:43], vcc
s_mul_i32 s{sT}, s{sWAVE}, 10240
s_add_u32 s{sT}, s{sT}, {B_EX}
v_lshl_add_u32 v{vEX}, v0, 4, s{sT}
v_mov_b32 v14, {f32(-1e-6*LOG2E)}
v_mov_b32 v15, v14
s_mov_b32 s56, {f32(LOG2E)}
s_mov_b32 s57, s56
""")
    for r in range(4):
        a(f"v_mov_b32 v{CK+r}, v18\nv_cndmask_b32 v{CS+r}, 0, v18, vcc")
    o_store_addr(vOF, vOL, 17, False)

    def wreads(ks, t):
        o = (ks % 5) * B_KVSLOT
        if t != 4:
            o += 32 * t if t < 4 else SLAB2 + 32 * (t - 5)
        return [tr(wf(t), aS if t == 4 else aW, o), tr(wf(t) + 2, aS if t == 4 else aW, o + 1280)]
    xread = lambda ks, rt: f"ds_read_b128 {vr(xf(ks, rt),4)}, v{aX + ks % 2} offset:{(ks//2 % 3)*B_XSLOT + rt*2048}"

    stamp()
    a("s_barrier")
    stamp()
    pair = lambda ks, t: [mf(acc(t, rt), xf(ks, rt), wf(t), acc(t, rt) if ks else (CK if t < 4 else CS if t == 4 else "0")) for rt in range(2)]
    def hook(ks, t):
        if (ks, t) == (OPT.get('fk', 2), 0):
            init_flags("BC")
    reread = lambda t: f"ds_read_b128 {vr(wf(t),4)}, v{aX + t//2 % 2} offset:{(6 + t//4) % 3*B_XSLOT + t % 2*2048}" if t < 8 else None
    ring_loop(9, OPT.get("db", 4), pair, wreads, xread, hook, reread)
    stamp()
    a(f"s_mov_b32 s{sT2}, {EPS}\nv_mov_b32 v16, 0x3f803f80")
    wr = lambda reg, slot: f"ds_write_b128 v{vEX}, {vr(reg,4)} offset:{1024*slot}"
    pk = lambda d, s: [cv(d + j, s + 2*j) for j in range(4)]
    xq = lambda ks, rt: wf(2 * (ks - 12) + rt) if 12 <= ks < 16 else xf(ks, rt)
    for tau in range(4):
        weave([], pk(acc(5+tau, 0), acc(5+tau, 0)))
    V4, TM = acc(7, 1), [acc(5, 1) + j for j in range(4)] + [acc(6, 1) + j for j in range(4)]
    a("s_waitcnt lgkmcnt(0)\ns_barrier")
    weave([], pk(V4, acc(4, 0)) + [f"v_cndmask_b32 v{V4+j}, v{V4+j}, v16, s[42:43]" for j in range(4)])
    for tau in range(5):
        o = phi(acc(tau, 0), 8, TM)
        weave([], o[:8] + [wr(acc(5+tau, 0) if tau < 4 else V4, 5 + tau)] + o[8:] + pk(acc(tau, 0), acc(tau, 0)) + [wr(acc(tau, 0), tau)])
    a(f"v_add_u32 v3, {R1}, v{aW}\nv_add_u32 v4, 15360, v{aW}")
    a("s_waitcnt lgkmcnt(0)\ns_barrier")
    stamp()
    QA = lambda t, rt: 216 + (t * 2 + rt) * 4
    qf = lambda t: 184 + 4 * t
    def qreads(p, t):
        ad, o = (3, wq_slot(p) - R1) if p < 3 else (aW, wq_slot(p)) if p < 6 else (4, wq_slot(p) - 15360)
        return [tr(qf(t), ad, o + 32*t), tr(qf(t) + 2, ad, o + 32*t + 1280)]
    for t in range(5):
        for x in qreads(0, t): a(x)
    if OPT.get("x2", 1):
        a("s_barrier")
    for p in range(18):
        ks = p
        if p in (2, 11):
            if OPT.get("fine") == 3: stamp()
            a("s_barrier")
            if OPT.get("fine") == 3: stamp()
        tiles = [[mf(QA(t, rt), qf(t), xq(ks, rt), QA(t, rt) if p else CK) for rt in range(2)] for t in range(5)]
        if p < 17:
            nxt = [qreads(p + 1, t) for t in range(5)]
            kstep(tiles, nxt, [], {t: f"s_waitcnt lgkmcnt({7 if t else 8})" for t in range(5)})
        else:
            kstep(tiles, None, [], {t: f"s_waitcnt lgkmcnt({8 - 2*t})" for t in range(5)})
    stamp()
    PQ = lambda rt: 36 + 10 * rt
    KO = 84
    tup = {0: KO, 1: KO + 4, 2: KO + 12, 3: KO + 20, 4: KO + 28}
    ZO = KO + 32
    weave([], [f"v_mov_b32 v{r}, 0" for r in (tup[1]+4, tup[1]+5, tup[2]+4, tup[2]+5, tup[3]+4, tup[3]+5, ZO+8, ZO+9)])
    a(f"v_lshlrev_b32 v16, 3, v0\nv_add_u32 v16, {B_KVOP}, v16")
    for t in range(5):
        weave([], phi(QA(t, 0), 8, list(range(148, 156))) + [cv(PQ(rt) + 2*t + q, QA(t, rt) + 2*q) for rt in range(2) for q in range(2)])
    stamp()
    a("s_barrier")
    stamp()
    tid = lambda tau, taup: {-1: tau - 1, 0: 4 + tau, 1: 9 + tau}[taup - tau]
    rd = lambda d, slot: a(f"ds_read_b64 {vr(d,2)}, v16 offset:{512*slot}")
    for j, d in enumerate((ZO, ZO + 2, ZO + 4, ZO + 6, ZO + 10)):
        rd(d, 13 + j)
    rd(tup[0], tid(0, 0)); rd(tup[0] + 2, tid(1, 0))
    for t in (1, 2, 3):
        rd(tup[t], tid(t-1, t)); rd(tup[t] + 2, tid(t, t)); rd(tup[t] + 6, tid(t+1, t))
    rd(tup[4], tid(3, 4)); rd(tup[4] + 2, tid(4, 4))
    DN = lambda rt: 148 + 4 * rt
    NM = lambda rt, t: 184 + 20 * rt + 4 * t
    OF = lambda rt: 156 + 10 * rt
    a("s_waitcnt lgkmcnt(13)")
    for k, (zo, po) in enumerate(((0, 0), (4, 4), (8, 6))):
        for rt in range(2):
            a(mf(DN(rt), ZO + zo, PQ(rt) + po, DN(rt) if k else CK))
    a("s_waitcnt lgkmcnt(0)")
    def num(rt):
        o = [mf(NM(rt, t), tup[t], PQ(rt) + 2*(t-1), "0") for t in (1, 2, 3)]
        o += [mf(NM(rt, 0), tup[0], PQ(rt), "0"), mf(NM(rt, 4), tup[4], PQ(rt) + 6, "0")]
        return o + [mf(NM(rt, t), tup[t] + 4, PQ(rt) + 2*t, NM(rt, t)) for t in (1, 2, 3)]
    def fin(rt, packed):
        o = []
        for t in (0, 4, 1, 2, 3):
            for q in range(2):
                inv = DN(rt) + min(t, 3)
                if (t, q) in SPLITS:
                    m = SPLITS[(t, q)]
                    o.append(f"v_cndmask_b32 v17, v{DN(rt)+t}, v{DN(rt)+t-1}, s[{m}:{m+1}]")
                    inv = 17
                n = NM(rt, t) + 2*q
                o += [f"v_pk_mul_f32 {vr(n,2)}, {vr(n,2)}, {vr(inv & ~1,2)} op_sel:[0,{inv%2}] op_sel_hi:[1,{inv%2}]", cv(OF(rt) + 2*t + q, n)]
        return o
    weave(num(0), [], 0)
    weave(num(1), [f"v_rcp_f32 v{DN(rt)+h}, v{DN(rt)+h}" for rt in range(2) for h in range(4)], 1)
    for rt in range(2):
        weave([], fin(rt, True))
        o_store(OF(rt), vOF, vOL, rt)
    stamp()

def kv_index(wreg, VS, VG, VZ):
    a(f"s_cmp_eq_u32 s{wreg}, 0\ns_cselect_b32 s58, 4, s{wreg}")
    for slot in range(3):
        if slot == 0:
            a(f"s_lshl_b32 s{sT}, s58, 4\ns_sub_u32 s{sT2}, s{sT}, 16\ns_mov_b64 s[46:47], 0")
        elif slot == 1:
            a(f"s_lshl_b32 s{sT}, s{wreg}, 4\ns_mov_b32 s{sT2}, s{sT}")
        else:
            a(f"s_add_u32 s{sT2}, s{sT}, 16\ns_cmp_eq_u32 s{wreg}, 3\ns_cselect_b32 s{sT2}, 56, s{sT2}\ns_cselect_b64 s[46:47], s[44:45], 0")
        kv_tile(VS and VS + 2*slot, VG and VG + 2*slot, False)
    if VZ:
        kv_z(VZ)

def kv_tile(VS, VG, last):
    a(f"v_add_u32 v3, s{sT2}, v1")
    head_of(4, 3)
    a(f"v_mul_u32_u24 v5, 18, v4\nv_sub_u32 v3, v3, v5\nv_cndmask_b32 v4, v4, 7, s[46:47]")
    if last:
        a("v_cmp_eq_u32 vcc, 0, v1\nv_cndmask_b32 v4, v4, 3, vcc\nv_cndmask_b32 v3, v3, 18, vcc")
    for q in range(2):
        a(f"v_add3_u32 v5, v2, s{sT}, {2*q}")
        head_of(6, 5)
        a("v_cmp_eq_u32 vcc, v4, v6\nv_mad_u32_u24 v5, v5, 19, v3\nv_lshlrev_b32 v5, 2, v5")
        if VS:
            a(f"v_add_u32 v6, {B_STG}, v5\nv_cndmask_b32 v{VS+q}, v8, v6, vcc")
        if VG:
            a(f"v_add_u32 v6, s{sM}, v5\nv_cndmask_b32 v{VG+q}, v9, v6, vcc")

def kv_z(VZ):
    a("v_and_b32 v3, 3, v0")
    for q in range(2):
        a(f"v_add3_u32 v5, v2, s{sT}, {2*q}")
        head_of(6, 5)
        a(f"v_cmp_eq_u32 vcc, v3, v6\nv_mul_u32_u24 v5, 76, v5\nv_add3_u32 v5, v5, s{sM}, 64\nv_add_u32 v5, 8, v5\nv_cndmask_b32 v{VZ+q}, v9, v5, vcc")

def b_loader(kind):
    a(f"L_B{kind}1:")
    m = M0(42)
    issue = (lambda c: w_issue("B", c, m)) if kind == "W" else (lambda c: x_issue("B", c, m))
    late2 = kind == "W" and OPT.get("early", 2) & 2
    cnt = ({1: 6} if late2 else {1: 6, 2: issue(2)}) if kind == "W" else {1: 4, 2: 4}
    karg_rest()
    a("s_mov_b32 s59, 0")
    stamp()
    mark = len(a.lines)
    a("s_waitcnt lgkmcnt(0)")
    VS, VG, vZS, vEA, vE0, vEL, vLA, vGA, vLW = 72, 80, 98, 99, 100, 101, 102, 103, 105
    if kind == "W":
        for j in range(3):
            a(f"v_subrev_u32 v{VD+3+j}, 1152, v{VD+j}")
    srds_rest()
    if kind == "W":
        wo_setup(False)
    else:
        sync_setup()
    a(f"""
s_add_u32 s55, s{sV}, 2
s_mul_i32 s{sM}, s{sHG}, {KV_ST}
s_add_u32 s{sM}, s{sM}, {WS_KV}
v_and_b32 v1, 15, v0
v_lshrrev_b32 v2, 4, v0
v_lshlrev_b32 v2, 2, v2
v_cmp_gt_u32 s[44:45], 8, v1
v_lshlrev_b32 v8, 2, v0
v_add_u32 v8, {B_DUMP}, v8
v_mov_b32 v9, {OOB}
""")
    own = sV if kind == "X" else 55
    if kind == "X":
        kv_index(55, None, VG, VG + 6)
        a(f"s_movk_i32 s{sT}, 64")
        kv_z(10)
    kv_index(own, VS, VG + 8 if kind == "X" else None, VG + 14 if kind == "X" else None)
    a(f"""
v_add_u32 v5, s{sT}, v0
v_mul_u32_u24 v5, 76, v5
v_add_u32 v5, {B_STG + 72}, v5
v_cndmask_b32 v{vZS}, v8, v5, s[{sG0}:{sG0+1}]
v_lshlrev_b32 v{vEL}, 4, v0
v_add_u32 v{vEL}, {B_EX}, v{vEL}
s_lshl_b32 s{sT}, s{own}, 10
v_add_u32 v{vEA}, s{sT}, v{vEL}
s_lshl_b32 s{sT}, s58, 10
v_add_u32 v{vE0}, s{sT}, v{vEL}
""")
    if kind == "X":
        a(f"s_movk_i32 s{sT}, 64\ns_movk_i32 s{sT2}, 56\ns_mov_b64 s[46:47], s[44:45]")
        kv_tile(VS + 6, VG + 16, True)
        a(f"s_cmp_eq_u32 s{sV}, 0\ns_cselect_b64 s[46:47], -1, 0")
        for q in range(2):
            a(f"v_cndmask_b32 v{VS+6+q}, v8, v{VS+6+q}, s[46:47]\nv_cndmask_b32 v{VG+16+q}, v{10+q}, v{VG+16+q}, s[46:47]")
        a(f"""
v_lshlrev_b32 v5, 3, v0
v_add_u32 v5, {B_KVOP}, v5
s_lshl_b32 s{sT2}, s58, 9
s_sub_u32 s{sT2}, s{sT2}, 512
v_add_u32 v{vLW+2}, s{sT2}, v5
s_lshl_b32 s{sT2}, s{sV}, 9
v_add_u32 v{vLW+1}, s{sT2}, v5
v_add_u32 v{vLW}, 1024, v{vLW+1}
s_mul_i32 s{sT2}, s{sV}, {9*512}
v_add_u32 v{vLW+3}, s{sT2}, v5
s_mul_i32 s{sT}, s{sV}, 2816
v_lshl_add_u32 v{vLA}, v0, 2, s{sT}
v_add_u32 v{vGA}, s{sM}, v{vLA}
v_cmp_gt_u32 vcc, {5472 - 2560}, v{vLA}
v_cndmask_b32 v{vGA+1}, v9, v{vGA}, vcc
v_add_u32 v{vLA}, {B_STG}, v{vLA}
v_mov_b32 v4, 0
""")
    a(f"v_mov_b32 v10, {B_LCNT}\nv_mov_b32 v11, 1")
    if kind == "X":
        a("ds_write_b32 v10, v4\ns_waitcnt lgkmcnt(0)")
    setup = a.lines[mark:]
    del a.lines[mark:]
    a(f"s_waitcnt vmcnt({sum(cnt.values())})\ns_barrier")
    stamp()
    extra = 0
    for i in range(-1, 16):
        if i == -1 and late2:
            cnt[2] = issue(2)
        if i + 4 <= 17:
            cnt[i+4] = issue(i + 4)
        if 0 <= i < 9:
            spread(setup, i, 9)
        if kind == "W" and i >= 14:
            extra += sum(wq_issue(p, m) for p in ((0, 1) if i == 14 else (2,)))
        left = sum(cnt.get(c, 0) for c in range(i + 3, min(i + 4, 17) + 1)) + extra
        a(f"s_waitcnt vmcnt({left})\ns_barrier")
    a("s_barrier")
    if kind == "W":
        for p in range(3, 12):
            wq_issue(p, m)
        a("s_waitcnt vmcnt(33)")
    else:
        flag_load(sFK, 99)
        flag_check(sFK, 99, "L_BX_fk")
    stamp()
    a("s_barrier")
    stamp()
    KT = lambda s: 40 + 4 * s
    RD = lambda src, j: 112 + 28 * src + 4 * j
    srcs = ((vEA, 0), (vE0, 0), (vE0, 4096), (vEA, 5120), (vEA, 6144), (vEL, 9216), (vEL, 4096))
    prods = ((1, 2), (0, 3), (0, 4), (6, 5), (5, 0))
    if kind == "W":
        srcs = ((vEA, 0), None, (vE0, 4096), (vEA, 5120), (vEA, 6144), (vEL, 9216))
        prods = ((0, 2), (0, 3), (0, 4), None, (5, 0))
    nr = sum(x is not None for x in srcs)
    for src in range(4):
        for j, x in enumerate(srcs):
            if x: a(f"ds_read_b128 {vr(RD(src, j),4)}, v{x[0]} offset:{src*10240 + x[1]}")
    for src in range(4):
        a(f"s_waitcnt lgkmcnt({min(15, nr*(3-src))})")
        for s_, x in enumerate(prods):
            if x: a(mf(KT(s_), RD(src, x[0]), RD(src, x[1]), KT(s_) if src else "0"))
    for s_ in range(4 if kind == "X" else 3):
        for r in range(4):
            a(f"ds_write_b32 v{VS + 2*s_ + r//2}, v{KT(s_)+r} offset:{76*(r%2)}")
    a(f"ds_write_b32 v{vZS}, v{KT(4)}")
    if OPT.get("x2", 1):
        a(f"s_waitcnt {'vmcnt(0) ' if kind == 'W' else ''}lgkmcnt(0)\ns_barrier")
    else:
        a("s_waitcnt lgkmcnt(0)\ns_mov_b64 exec, 1\nds_add_u32 v10, v11\ns_mov_b64 exec, -1")
    stamp()
    if kind == "W":
        a("s_barrier")
        for p in range(12, 18):
            wq_issue(p, m)
        early = range(1, 1 + OPT.get("nb0", 2))
        n = sum(wo_pair(g) for g in early)
        a(f"s_waitcnt vmcnt({n})\ns_barrier")
        for g in range(OPT.get('nb1', 4)):
            if g not in early: wo_pair(g)
        stamp()
        a("s_barrier")
        for g in range(OPT.get('nb1', 4), OPT.get('nb2', 6)): wo_pair(g)
        loader_tail("BW", lambda: [wo_pair(g) for g in range(OPT.get('nb2', 6), 9)])
        return
    if not OPT.get("x2", 1):
      a(f"""
s_mov_b32 s{sT3}, 0x400000
L_BX_st:
ds_read_b32 v2, v10
s_waitcnt lgkmcnt(0)
v_readfirstlane_b32 s{sT}, v2
s_sub_u32 s{sT3}, s{sT3}, 1
s_cbranch_scc1 L_BX_st_x
s_cmp_ge_u32 s{sT}, 4
s_cbranch_scc0 L_BX_st
L_BX_st_x:
""")
    for n in range(11):
        a(f"ds_read_b32 v{40+n}, v{vLA} offset:{256*n}")
    for n in range(11):
        a(f"s_waitcnt lgkmcnt({10-n})")
        a(f"buffer_atomic_add_f32 v{40+n}, v{vGA + (n == 10)}, s[{SWS}:{SWS+3}], 0 offen offset:{256*n}")
    stamp()
    a("s_barrier\ns_waitcnt vmcnt(0)")
    stamp()
    a(f"s_mov_b32 s97, 1\ns_atomic_add s97, s[{sKC}:{sKC+1}], 0 glc\ns_barrier\ns_waitcnt lgkmcnt(0)\ns_cmp_ge_u32 s97, 31\ns_cbranch_scc1 L_BX_kc_x")
    arrive_wait(sKC, 32, "L_BX_kc", False)
    stamp()
    for s_ in range(9):
        for r in range(4):
            a(f"buffer_load_dword v{112+4*s_+r}, v{VG + 2*s_ + r//2}, s[{SWS}:{SWS+3}], 0 offen offset:{76*(r%2)} sc1")
    dst = ((vLW, -1), (vLW, 4), (vLW, 9), (vLW, 13), (vLW + 2, 0), (vLW + 1, 4), (vLW + 1, 9), (vLW + 1, 13), (vLW + 3, 8))
    a(f"v_subrev_u32 v11, 512, v{vLW}")
    for s_, (ad, off) in enumerate(dst):
        a(f"s_waitcnt vmcnt({4*(8-s_)})")
        a(cv(40 + 2*s_, 112 + 4*s_)); a(cv(41 + 2*s_, 114 + 4*s_))
        a(f"ds_write_b64 v{11 if off < 0 else ad}, {vr(40+2*s_,2)} offset:{512*max(off, 0)}")
    a("s_waitcnt lgkmcnt(0)")
    stamp()
    a("s_barrier")
    flag_load(sFO, 98)
    loader_tail("BX")

def p2_consumer():
    OFR = lambda ks, c: 112 + ks * 8 + c * 4
    ORDER = [(0, 0), (0, 1), (4, 0), (1, 0), (1, 1), (2, 0), (2, 1), (5, 0), (3, 0), (3, 1)]
    ACC = lambda t, c: 72 + 4 * ORDER.index((t, c))
    wf = lambda t: 48 + 4 * t
    AD, vO, vTW, vTR, VS = 1, 5, 7, 10, 14
    a("L_P2:")
    nstamp[0] = 9 if OPT.get('fine') != 3 else 10
    out_cols(57, 59, 39)
    a(f"""
v_lshrrev_b32 v40, 5, v0
v_lshlrev_b32 v40, 4, v40
v_bfe_u32 v41, v0, 4, 1
v_lshl_add_u32 v40, v41, 2, v40
v_bfe_u32 v42, v0, 2, 2
v_add_u32 v40, v40, v42
v_mul_u32_u24 v40, 192, v40
v_and_b32 v42, 3, v0
v_lshl_add_u32 v40, v42, 3, v40
v_add_u32 v40, {R1}, v40
v_lshl_add_u32 v42, v41, 5, v40
v_xor_b32 v41, 1, v41
v_lshl_add_u32 v43, v41, 5, v40
v_add_u32 v{AD}, s59, v42
v_add_u32 v{AD+1}, s59, v43
s_lshl_b32 s{sT}, s59, 1
s_sub_u32 s38, 128, s{sT}
v_add_u32 v{AD+2}, s38, v42
v_add_u32 v{AD+3}, s38, v43
s_mul_i32 s{sT}, s59, 288
s_add_u32 s{sT2}, s58, s{sT}
v_lshl_add_u32 v{vO}, v0, 4, s{sT2}
s_sub_u32 s{sT2}, s58, s{sT}
s_add_u32 s{sT2}, s{sT2}, 18432
v_lshl_add_u32 v{vO+1}, v0, 4, s{sT2}
s_mul_i32 s40, s{sWAVE}, 5632
s_add_u32 s40, s40, {P_TR}
v_and_b32 v40, 15, v0
v_lshrrev_b32 v41, 4, v0
v_lshl_add_u32 v41, v41, 3, s40
v_mul_u32_u24 v42, 208, v40
v_add_u32 v42, v42, v41
v_add_u32 v{vTW}, s59, v42
v_add_u32 v{vTW+1}, s38, v42
v_mul_u32_u24 v42, 144, v40
v_add_u32 v42, 3328, v42
v_add_u32 v{vTW+2}, v42, v41
s_lshr_b32 s{sT}, s{sWAVE}, 1
s_and_b32 s{sT2}, s{sWAVE}, 1
s_lshl_b32 s{sT2}, s{sT2}, 5
s_lshl_b32 s{sT3}, s{sWAVE}, 5
s_cmp_eq_u32 s{sBR}, 0
s_cselect_b32 s42, s{sT}, 0
s_cselect_b32 s43, s{sT2}, s{sT3}
s_cselect_b32 s55, 1, 0
s_lshl_b32 s56, s42, 3
s_lshl_b32 s{sT}, s{sRB}, 7
s_add_u32 s42, s42, s{sT}
s_mul_i32 s{sT}, s{sBR}, 1152
s_add_u32 s57, s57, s{sT}
s_lshr_b32 s{sT}, s59, 2
s_add_u32 s41, s43, s{sT}
s_sub_u32 s43, s43, s{sT}
s_add_u32 s43, s43, 16
s_add_u32 s59, s59, s57
v_mov_b32 v43, {OOB}
""")
    for n in range(5):
        if n < 3:
            a(f"""
v_add_u32 v40, {64*n}, v0
v_mul_u32_u24 v41, 5462, v40
v_lshrrev_b32 v41, 16, v41
v_mad_i32_i24 v40, v41, -12, v40
v_mul_u32_u24 v42, 208, v41
v_lshl_add_u32 v42, v40, 4, v42
v_add_u32 v{vTR+n}, s40, v42
v_cmp_gt_u32 vcc, s39, v40
v_add_u32 v41, s41, v41
""")
        else:
            a(f"v_and_b32 v40, 7, v0\nv_lshrrev_b32 v41, 3, v0")
            if n == 3:
                a(f"v_mul_u32_u24 v42, 144, v41\nv_lshl_add_u32 v42, v40, 4, v42\nv_add_u32 v42, 3328, v42\nv_add_u32 v{vTR+3}, s40, v42")
            a(f"v_add3_u32 v41, v41, s43, {8*(n-3)}")
        a(f"""
v_xor_b32 v41, s56, v41
v_lshlrev_b32 v41, s55, v41
v_add_u32 v41, s42, v41
v_mul_u32_u24 v41, 2304, v41
v_lshl_add_u32 v41, v40, 4, v41
v_add_u32 v{VS+n}, s{57 if n < 3 else 59}, v41
""")
        if n < 3:
            a(f"v_cndmask_b32 v{VS+n}, v43, v{VS+n}, vcc")
    SO = [8, 9, 10, 11, 12, 13, 14, 15, 36]
    rho(37)
    a(f"s_movk_i32 s{SO[0]}, 16384")
    for j in range(1, 9):
        a(f"s_add_u32 s{sT}, s37, {2*j-2}\ns_and_b32 s{sT}, s{sT}, 15\ns_lshl_b32 s{SO[j]}, s{sT}, 10")
    if OPT.get("touch"):
        a(f"""
v_bfe_u32 v40, v0, 4, 1
v_and_b32 v41, 15, v0
s_lshl_b32 s{sT}, s{sHG}, 11
s_add_u32 s{sT}, s{sT}, s58
v_lshl_add_u32 v41, v41, 7, s{sT}
v_mul_u32_u24 v40, 18432, v40
v_add_u32 v42, v40, v41
v_bfe_u32 v40, v0, 1, 1
v_and_b32 v41, 1, v0
s_lshr_b32 s{sT}, s{sHG}, 2
s_lshl_b32 s{sT}, s{sT}, 10
s_and_b32 s{sT2}, s{sHG}, 3
s_lshl_b32 s{sT2}, s{sT2}, 8
s_add_u32 s{sT}, s{sT}, s{sT2}
s_add_u32 s{sT}, s{sT}, s58
s_add_u32 s{sT}, s{sT}, 16384
v_lshl_add_u32 v41, v41, 7, s{sT}
v_mul_u32_u24 v40, 18432, v40
v_add_u32 v40, v40, v41
v_cndmask_b32 v42, v40, v42, s[{sG01}:{sG01+1}]
""")
    a("s_waitcnt vmcnt(0)")
    if OPT.get("touch"):
        a(f"buffer_load_dword v19, v42, s[{SWS}:{SWS+3}], 0 offen")
    stamp()
    a("s_barrier\ns_barrier")
    stamp()
    oload = lambda ks, c: f"buffer_load_dwordx4 {vr(OFR(ks, c),4)}, v{vO + c}, s[{SWS}:{SWS+3}], s{SO[ks//2]} offen offset:{1024*(ks%2)}{FLAGS[OPT.get('old', 2)]}"
    base = lambda ks: R1 if ks < 2 else R2 if ks < 10 else 0
    adr = lambda t: AD + (2 if t >= 4 else 0) + t % 2
    moved = set()
    def wreads(ks, t):
        o = WO[ks] - base(ks) + (64 * (t // 2) if t < 4 else 0)
        pre = ""
        if ks and base(ks) != base(ks - 1) and (ks, adr(t)) not in moved:
            moved.add((ks, adr(t)))
            pre = f"v_add_u32 v{adr(t)}, {(base(ks) - base(ks - 1)) & 0xffffffff}, v{adr(t)}\n"
        return [pre + tr(wf(t), adr(t), o), tr(wf(t) + 2, adr(t), o + 1536)]
    todo = [oload(ks, c) for ks in range(18) for c in range(2)]
    done = 2 * OPT["p0"]
    weave([], todo[:done])
    issued, mark, pend, safe = 0, {}, [], -1
    def emit_read():
        nonlocal issued
        key, x = pend.pop(0)
        a(x); mark[key] = issued; issued += 1
    first = list(dict.fromkeys(t for t, c in ORDER))
    for t in first:
        pend += [((0, t), x) for x in wreads(0, t)]
    while pend: emit_read()
    stage = []
    for t, c in ORDER:
        d = 20 + 2 * ORDER.index((t, c))
        ad, off = (vTW + 2, 32*t) if c else (vTW, 32*t) if t < 4 else (vTW + 1, 32*(t - 4))
        stage += [cv(d, ACC(t, c)), cv(d + 1, ACC(t, c) + 2), f"ds_write_b64 v{ad}, {vr(d,2)} offset:{off}"]
    COVER = {0: {}, 2: {0: (0, 4, 1), 5: (2, 5, 3)}, 3: {0: (0, 4), 3: (1, 2), 7: (5, 3)}}
    for ks in range(18):
        now = todo[done:done + (3 if ks < OPT["ramp"] else 2)]
        vm = done - 2 * (ks + 1)
        done += len(now)
        for i, (t, c) in enumerate(ORDER):
            while (ks, t) in [k for k, _ in pend]:
                emit_read()
            w = f"vmcnt({vm}) " if i == 0 else ""
            if mark[(ks, t)] > safe:
                cover = COVER[OPT.get("cov", 2)].get(i, (t,))
                n_ = min(15, issued - 1 - max(mark[(ks, u)] for u in cover if (ks, u) not in [k for k, _ in pend]))
                safe = issued - 1 - n_
                w += f"lgkmcnt({n_})"
            if w:
                a("s_waitcnt " + w)
            a(mf(ACC(t, c), wf(t), OFR(ks, c), ACC(t, c) if ks else "0"))
            if ks < 17 and (c == 1 or t >= 4):
                pend += [((ks + 1, t), x) for x in wreads(ks + 1, t)]
            for _ in range(2 if len(pend) > 2 else 1):
                if pend: emit_read()
            if now and i in {0: (0, 4, 8), 1: (1, 3, 6), 2: (0, 3, 6), 3: (1, 5, 8)}[OPT.get('lg', 2)]:
                a(now.pop(0))
            if ks == 17 and i >= 5:
                for _ in range(2):
                    x = stage.pop(0); a(x)
                    if x.startswith("ds_write"): issued += 1
        if ks == 0 and OPT.get("fine") != 3:
            stamp()
    stamp()
    weave([], stage)
    a("s_waitcnt lgkmcnt(0)")
    for n in range(5):
        a(f"ds_read_b128 {vr(112+4*n,4)}, v{vTR + min(n, 3)} offset:{1152 if n == 4 else 0}")
    for n in range(5):
        a(f"s_waitcnt lgkmcnt({4-n})")
        a(f"buffer_store_dwordx4 {vr(112+4*n,4)}, v{VS+n}, s[{SOUT}:{SOUT+3}], 0 offen{FLAGS[OPT.get('outst', 2)]}")
    stamp()
    stamps_out(0)
    a("s_endpgm")

HEADER = open("concat_heads__sliding_local_dilated__linear_attn_block__prompt.s.ref").read().split("; Override")[0]
out = HEADER + """; One workgroup per CU: (branch, 128-row block, group of 4 heads). Waves 0-3 do the MFMA work, waves 4-7 stream
; weights / activations into LDS. Phase 1: QKV projection + attention (A) or K,V -> kv sums -> Q -> o (B); the o tiles
; are handed over through d_ws; phase 2: output projection. Counters in d_ws are cleared in-launch (flags in d_debug).
; @launch grid=(256,1,1) block=(512,1,1) lds=163840
"""
a('.amdgcn_target "amdgcn-amd-amdhsa--gfx950"\n.text')
a(kernel_head(KN))
stamp()
a(f"""
s_cmp_ge_u32 s2, 256
s_cbranch_scc1 L_end
s_and_b32 s{sT}, s2, 7
s_lshr_b32 s{sBR}, s{sT}, 2
s_mul_i32 s{sT2}, s{sBR}, 24
s_load_dwordx4 s[36:39], s[0:1], s{sT2}
v_lshrrev_b32 v1, 6, v0
v_and_b32 v0, 63, v0
v_readfirstlane_b32 s{sWAVE}, v1
{'s_xor_b32 s3, s3, 4' if OPT.get('lfirst', 0) else ''}
s_bfe_u32 s{sHG}, s2, 0x30003
s_lshr_b32 s{sRB}, s2, 6
s_and_b32 s{sT3}, s{sT}, 3
s_lshl2_add_u32 s{sRB}, s{sT3}, s{sRB}
s_cmp_lt_u32 s{sWAVE}, 4
s_cbranch_scc1 L_cons
s_setprio {OPT.get("prio", 2)}
s_and_b32 s{sV}, s{sWAVE}, 1
s_add_u32 s{sRW}, s{sRB}, s{sHG}
{f"s_mul_i32 s{sRX}, s{sT3}, {OPT['xs'] + 4}{chr(10)}s_add_u32 s{sRW}, s{sRW}, s{sRX}" if "xs" in OPT else ""}
s_and_b32 s{sRW}, s{sRW}, 7
s_lshl_b32 s{sRX}, s{sRW}, 7
s_mul_i32 s{sRW}, s{sRW}, {64*3456}
""")
hstamp(12)
a(f"""
s_cmp_lt_u32 s{sWAVE}, 6
s_cbranch_scc1 L_W0
""")
x_head()
a(f"""
L_cons:
s_getpc_b64 s[42:43]
L_pc:
s_lshr_b32 s{sT}, s2, 3
s_lshl2_add_u32 s{sT}, s{sT}, s{sWAVE}
s_lshl_b32 s{sT}, s{sT}, 9
v_and_b32 v1, 3, v0
v_lshl_add_u32 v1, v1, 7, s{sT}
v_min_u32 v1, L_last-L_pc, v1
global_load_dword v27, v1, s[42:43]
""")
karg_loads()
a(f"""
s_cmp_eq_u32 s{sBR}, 0
s_cbranch_scc1 L_AC
s_branch L_BC
L_end:
s_endpgm
""")
w_head()
n0 = nstamp[0]
for fn in (lambda: a_loader("W"), lambda: a_loader("X"), a_consumer, lambda: b_loader("W"), lambda: b_loader("X"), b_consumer, p2_consumer):
    nstamp[0] = n0
    fn()
a("L_last:\ns_endpgm")
lines = []
for l in a.lines: lines += [x for x in l.split("\n") if x.strip()]
if OPT.get("noread"):
    lines = [l for l in lines if not l.startswith("ds_read_b64_tr")]
if OPT.get("nomfma"):
    lines = [l for l in lines if not l.startswith("v_mfma")]
if OPT.get("jitter"):
    import random
    rnd = random.Random(OPT["jitter"])
    jl = []
    for n_, l in enumerate(lines):
        if l == "s_barrier":
            for pos in (0, 1):
                if pos: jl.append(l)
                if rnd.random() < 0.5:
                    if rnd.random() < 0.5:
                        jl += [f"s_bitcmp1_b32 s{sWAVE}, {rnd.randrange(2)}", f"s_cbranch_scc1 L_j{n_}_{pos}"]
                    else:
                        jl += [f"s_bitcmp1_b32 s2, {rnd.randrange(8)}", f"s_cbranch_scc1 L_j{n_}_{pos}"]
                    jl += [f"s_sleep {rnd.randrange(1, 30)}", f"L_j{n_}_{pos}:"]
        else:
            jl.append(l)
    lines = jl
lines, added = hz.fix(lines)
out += "\n".join(lines) + "\n"
out += '.section .rodata,"a"\n.p2align 6\n' + kernel_desc(KN, 256, 102 if OPT.get('cyc') else 100, 256)
sys.stdout.write(out)
sys.stderr.write(f"nop states added: {added}\n")
```

```python
import sys, struct
from asmlib import *
import hz

OPT = dict(stamps=0, p0=3, ramp=4)
for arg in sys.argv[1:]:
    k, v = arg.split("=")
    OPT[k] = int(v)
KN = "concat_heads__sliding_local_dilated__linear_attn_block__prompt_kernel"

def f32(x):
    return "0x%08x" % struct.unpack("<I", struct.pack("<f", x))[0]

LOG2E = 1.4426950408889634
CSC = 18 ** -0.5 * LOG2E
NEG = "0xf149f2ca"
EPS = f32(1e-6)
OOB = "0x80000000"

O_BR = 0x240000
WS_KV = 0x500000
KV_ST = 0x2000
WS_CNT = 0x540000
WS_STAMP = 0x600000
WS_SIZE = 0x700000

sWAVE, sHG, sRB, sBR, sT = 3, 4, 5, 6, 7
SX, SW, SWS, SDBG, SWO, SOUT = 8, 12, 16, 20, 24, 28
sG0, sG01 = 32, 34
sK, sV, sM, sT2, sT3 = 50, 51, 52, 53, 54
sST = 60

a = Asm()
nstamp = [0]

def stamp():
    if OPT["stamps"] and not (OPT.get("fine") == 4 and nstamp[0] >= 10):
        i = nstamp[0]; nstamp[0] += 1
        assert i < 14
        a(f"{'s_memrealtime' if OPT.get('rt') or OPT.get('probe') and not (OPT.get('cyc') and i) else 's_memtime'} s[{sST+2*i}:{sST+2*i+1}]")
        if OPT.get("cyc") and i == 0:
            a("s_memtime s[100:101]")

def stamps_out(last=-1):
    if not OPT["stamps"]:
        return
    if OPT.get("probe"):
        if last == OPT.get("pwave", 0):
            j = sST + 2 * OPT["probe"]
            a(f"""
s_waitcnt vmcnt(0) lgkmcnt(0)
s_cmp_eq_u32 s2, {OPT.get('wg', 0)}
s_cbranch_scc0 L_probe_x
s_cmp_eq_u32 s{sWAVE}, {last}
s_cbranch_scc0 L_probe_x
s_sub_u32 s{sT}, s{j}, s{100 if OPT.get('cyc') else sST}
{'s_lshr_b32 s7, s7, 3' if OPT.get('cyc') else 's_mul_i32 s7, s7, 10'}
s_min_u32 s{sT}, s{sT}, 100000
s_add_u32 s{sT}, s{sT}, 6000
L_probe:
s_memrealtime s[44:45]
s_waitcnt lgkmcnt(0)
s_sub_u32 s44, s44, s{sST}
s_cmp_lt_u32 s44, s{sT}
s_cbranch_scc1 L_probe
L_probe_x:
""")
        return
    a("s_waitcnt vmcnt(0) lgkmcnt(0)")
    a(f"s_lshl_b32 s{sT}, s2, 3\ns_add_u32 s{sT}, s{sT}, s{sWAVE}\ns_lshl_b32 s{sT}, s{sT}, 6")
    a(f"s_add_u32 s{sT}, s{sT}, {WS_STAMP}\nv_mov_b32 v1, s{sT}")
    for i in range(16):
        a(f"v_mov_b32 v2, {'s%d' % (sST+2*i) if i < 14 else 0}")
        a(f"buffer_store_dword v2, v1, s[{SWS}:{SWS+3}], 0 offen offset:{4*i}")
    a("s_waitcnt vmcnt(0)")

def mf(d, s0, s1, c):
    cc = c if isinstance(c, str) else vr(c, 4)
    return f"v_mfma_f32_16x16x32_bf16 {vr(d,4)}, {vr(s0,4)}, {vr(s1,4)}, {cc}"
def cv(d, x):
    return f"v_cvt_pk_bf16_f32 v{d}, v{x}, v{x+1}"
def tr(d, addr, off):
    return f"ds_read_b64_tr_b16 {vr(d,2)}, v{addr} offset:{off}"
def weave(mfmas, others, per=2):
    o = list(others)
    for m in mfmas:
        a(m)
        for _ in range(per):
            if o: a(o.pop(0))
    for x in o: a(x)

def srd(dst, lo, nbytes):
    a(f"s_mov_b32 s{dst}, s{lo}\ns_mov_b32 s{dst+1}, s{lo+1}\ns_mov_b32 s{dst+2}, {nbytes}\ns_mov_b32 s{dst+3}, 0x20000")
def srds_rest():
    srd(SWO, 40, 663552); srd(SOUT, 44, 4718592); srd(SDBG, 46, 256); srd(SWS, 48, WS_SIZE)

class M0:
    def __init__(self, base): self.base = base; self.cur = None
    def set(self, imm):
        if self.cur is not None and -32768 <= imm - self.cur <= 32767:
            a(f"s_addk_i32 m0, {imm - self.cur}")
        else:
            a(f"s_add_u32 m0, s{self.base}, {imm}")
        self.cur = imm

def dma(voff, srd_, soff, half=False, off=0):
    if OPT.get("nodma"):
        return
    if half: a("s_mov_b32 exec_hi, 0")
    a(f"buffer_load_dwordx4 v{voff}, s[{srd_}:{srd_+3}], {soff} offen offset:{off} lds")
    if half: a("s_mov_b32 exec_hi, -1")

def rd_lanes(aw, ash, t0, t1):
    a(f"""
v_lshrrev_b32 v{t0}, 5, v0
v_lshlrev_b32 v{t0}, 4, v{t0}
v_bfe_u32 v{t1}, v0, 4, 1
v_lshl_add_u32 v{t0}, v{t1}, 2, v{t0}
v_bfe_u32 v{t1}, v0, 2, 2
v_add_u32 v{t0}, v{t0}, v{t1}
v_mul_u32_u24 v{t0}, 160, v{t0}
v_and_b32 v{t1}, 3, v0
v_lshl_add_u32 v{aw}, v{t1}, 3, v{t0}
""")
    if ash:
        a(f"v_bfe_u32 v{t1}, v0, 1, 1\nv_mul_u32_u24 v{t1}, {SLAB2 - 16}, v{t1}\nv_add_u32 v{t1}, 128, v{t1}\nv_add_u32 v{ash}, v{t1}, v{aw}")

def x_lane(d0, d1, tmp):
    a(f"""
v_lshrrev_b32 v{d0}, 4, v0
v_bfe_u32 v{tmp}, v0, 1, 3
v_xor_b32 v{d0}, v{d0}, v{tmp}
v_and_b32 v{tmp}, 15, v0
v_lshlrev_b32 v{tmp}, 7, v{tmp}
v_lshl_add_u32 v{d0}, v{d0}, 4, v{tmp}
v_xor_b32 v{d1}, 64, v{d0}
""")

def slab_src(dst, j, stride, base):
    a(f"""
v_add_u32 v1, {64*j}, v0
v_mul_u32_u24 v2, 6554, v1
v_lshrrev_b32 v2, 16, v2
v_mad_i32_i24 v1, v2, -10, v1
""")
    a("v_bfe_u32 v3, v2, 2, 1\nv_bfe_u32 v4, v2, 3, 1\nv_sub_u32 v3, v3, v4\nv_lshl_add_u32 v2, v3, 2, v2")
    a(f"""
v_mul_u32_u24 v2, {stride}, v2
v_lshl_add_u32 v2, v1, 4, v2
v_add_u32 v1, 7, v1
v_lshrrev_b32 v1, 4, v1
v_lshl_add_u32 v2, v1, 23, v2
v_add_u32 v{dst}, s{base}, v2
""")

def head_of(dst, src):
    a(f"v_mul_u32_u24 v{dst}, 57, v{src}\nv_lshrrev_b32 v{dst}, 10, v{dst}")

sOC, sKC, sFO, sFK = 92, 94, 96, 97

def arrive_wait(addr, target, label, arrive=True):
    if arrive:
        a(f"s_mov_b32 s{sT}, 1\ns_atomic_add s{sT}, s[{addr}:{addr+1}], 0 glc\ns_waitcnt lgkmcnt(0)\ns_cmp_ge_u32 s{sT}, {target-1}\ns_cbranch_scc1 {label}_x")
    a(f"""
s_mov_b32 s{sT3}, 0x20000
{label}:
s_mov_b32 s{sT}, 0
s_atomic_add s{sT}, s[{addr}:{addr+1}], 0 glc
s_waitcnt lgkmcnt(0)
s_sub_u32 s{sT3}, s{sT3}, 1
s_cbranch_scc1 {label}_x
s_cmp_ge_u32 s{sT}, {target}
s_cbranch_scc0 {label}
{label}_x:
""")

def flag_load(dst, offreg):
    a(f"s_load_dword s{dst}, s[{SDBG}:{SDBG+1}], s{offreg}")

def flag_check(val, offreg, label):
    a(f"""
s_mov_b32 s{sT3}, 0x20000
{label}:
s_waitcnt lgkmcnt(0)
s_cmp_lg_u32 s{val}, 0
s_cbranch_scc1 {label}_x
s_sub_u32 s{sT3}, s{sT3}, 1
s_cbranch_scc1 {label}_x
s_atomic_add s{val}, s[{SDBG}:{SDBG+1}], s{offreg} glc
s_branch {label}
{label}_x:
""")

SLAB2 = 5136
A_WSLOT, A_XSLOT = 15392, 18432
A_X0 = 5 * A_WSLOT
A_EX = A_X0 + 3 * A_XSLOT
B_KVSLOT, B_XSLOT = 10272, 16384
B_X0 = 5 * B_KVSLOT
B_EX = B_X0 + 3 * B_XSLOT
B_KVOP = 132256
B_STG = B_EX + 40960
B_DUMP, B_LCNT = B_STG + 5504, B_STG + 5888
R1 = 148480
def wq_slot(p):
    if p < 3: return R1 + 5120 * p
    if p < 6: return 5120 * (p - 3)
    if p == 6: return 46080
    if p < 12: return B_X0 + 5120 * (p - 7)
    return 15360 + 5120 * (p - 12)
WOC = 6144
R2 = 77824
WO = [R1, R1 + WOC] + [R2 + WOC * n for n in range(8)] + [0, WOC] + [15360 + WOC * n for n in range(6)]
P_TR = 52224
SPLITS = {(1, 0): sG0, (2, 0): sG0, (2, 1): sG0, (3, 0): sG01, (3, 1): sG0}

VD = 16
VWO = 26
sRW, sRX = 90, 91

def hstamp(i):
    if OPT.get("fine") == 4:
        a(f"s_memrealtime s[{sST+2*i}:{sST+2*i+1}]")

def w_head():
    a(f"""
L_W0:
s_mul_i32 s{sT}, s{sV}, {16*3456}
s_mul_i32 s{sT2}, s{sHG}, 144
s_add_u32 s{sT}, s{sT}, s{sT2}
s_mul_i32 s{sT2}, s{sBR}, 1152
s_add_u32 s{sT}, s{sT}, s{sT2}
""")
    for j in range(3):
        slab_src(VD + j, j, 3456, sT)
    a(f"s_mul_i32 s42, s{sV}, 2560\ns_mov_b32 m0, s42\ns_mov_b32 s{sT3}, 0")
    hstamp(10)
    a("s_waitcnt lgkmcnt(0)")
    hstamp(13)
    srd(SW, 38, 1990656)
    D = SLAB2 - 1152
    a("L_W0l:")
    pos = 0
    for sl, j in ((0, 0), (0, 1), (1, 0), (1, 1), (0, 2), (1, 2), (2, 2), (2, 0), (2, 1)):
        tgt = D * sl + 1024 * j
        if tgt != pos:
            a(f"s_addk_i32 m0, {tgt - pos}")
        pos = tgt
        if (sl, j) == (0, 2): a("s_mov_b32 exec_hi, 0")
        if (sl, j) == (2, 2): a(f"s_cmp_lg_u32 s{sBR}, 0\ns_cbranch_scc1 L_W0b")
        if (sl, j) == (2, 0): a("s_mov_b32 exec_hi, -1")
        dma(VD + j, SW, f"s{sRW}", off=1152 * sl)
    a(f"""
s_addk_i32 m0, {A_WSLOT - pos - (B_KVSLOT - (2*D + 2048))}
L_W0b:
s_mov_b32 exec_hi, -1
s_addk_i32 m0, {B_KVSLOT - (2*D + 2048)}
s_cmp_lg_u32 s{sT3}, 0
s_cbranch_scc1 L_W0x
s_mov_b32 s{sT3}, 1
s_add_u32 s{sRW}, s{sRW}, {32*3456}
s_branch L_W0l
L_W0x:
""")
    hstamp(11)
    a(f"s_cmp_eq_u32 s{sBR}, 0\ns_cbranch_scc1 L_AW1\ns_branch L_BW1")

def w_issue(kind, c, m):
    slot = (c % 5) * (A_WSLOT if kind == "A" else B_KVSLOT)
    n = 3 if kind == "A" else 2
    if c:
        a(f"s_add_u32 s{sRW}, s{sRW}, {32*3456}\ns_cmp_eq_u32 s{sRW}, {18*32*3456}\ns_cselect_b32 s{sRW}, 0, s{sRW}")
    order = [(sl, j) for sl in range(n) for j in range(2)] + [(sl, 2) for sl in range(n)]
    for sl, j in order:
        m.set(slot + (SLAB2 - 1152) * sl + 1024 * j)
        if (sl, j) == (0, 2):
            a("s_mov_b32 exec_hi, 0")
        dma(VD + j, SW, f"s{sRW}", off=1152 * sl)
    a("s_mov_b32 exec_hi, -1")
    return 3 * n

def wq_issue(p, m):
    a(f"s_add_u32 s{sK}, s{sRW}, {(p+1)*32*3456}\ns_cmp_ge_u32 s{sK}, {18*32*3456}\ns_cselect_b32 s{sT}, {18*32*3456}, 0\ns_sub_u32 s{sK}, s{sK}, s{sT}")
    for j in range(3):
        m.set(wq_slot(p) + 1024 * j)
        dma(VD + 3 + j, SW, f"s{sK}", half=(j == 2))
    return 3

def x_head():
    a(f"""
s_cmp_eq_u32 s{sBR}, 0
s_cselect_b32 s{sT2}, 1, 0
s_lshl_b32 s{sT3}, 1152, s{sT2}
v_lshrrev_b32 v1, 3, v0
v_mul_u32_u24 v1, s{sT3}, v1
v_lshrrev_b32 v2, 4, v0
v_lshl_add_u32 v2, s{sV}, 2, v2
v_and_b32 v3, 7, v0
v_xor_b32 v2, v2, v3
v_lshl_add_u32 v1, v2, 4, v1
s_mul_i32 s{sT}, s{sRB}, {128*1152}
v_add_u32 v1, s{sT}, v1
s_lshl_b32 s43, s{sT3}, 4
s_mul_i32 s{sT}, s{sV}, s{sT3}
s_lshl_b32 s{sT}, s{sT}, 3
v_add_u32 v{VD}, s{sT}, v1
s_mul_i32 s{sT3}, s{sV}, 1152
s_add_u32 s{sT3}, s{sT3}, {15*1152}
v_subrev_u32 v{VD+8}, s{sT3}, v1
s_sub_u32 s{sT3}, {17*1152}, s{sT}
s_add_u32 s{sT}, s{sT}, {64*1152}
s_cmp_eq_u32 s{sBR}, 0
s_cselect_b32 s{sT}, s{sT3}, s{sT}
v_add_u32 v{VD+4}, s{sT}, v1
s_movk_i32 s{sT}, {(A_X0 - B_X0)}
s_cselect_b32 s{sT}, s{sT}, 0
s_lshl_b32 s42, s{sV}, 10
s_add_u32 s{sT}, s{sT}, s42
s_add_u32 m0, s{sT}, {B_X0}
""")
    for q in (1, 2, 3):
        a(f"v_add_u32 v{VD+q}, s43, v{VD+q-1}\nv_add_u32 v{VD+4+q}, s43, v{VD+3+q}")
    a(f"s_mov_b32 s{sT3}, 0")
    hstamp(10)
    a("s_waitcnt lgkmcnt(0)")
    hstamp(13)
    srd(SX, 36, 2359296)
    a("L_X0l:")
    for q in range(9):
        if q == 8:
            a(f"s_cbranch_scc0 L_X0b")
        dma(VD + q, SX, f"s{sRX}")
        a("s_addk_i32 m0, 2048")
        a(f"s_cmp_eq_u32 s{sBR}, 0" if q == 7 else "s_nop 0")
    a(f"""
L_X0b:
s_cmp_lg_u32 s{sT3}, 0
s_cbranch_scc1 L_X0x
s_mov_b32 s{sT3}, 1
s_addk_i32 s{sRX}, 128
s_cmpk_eq_u32 s{sRX}, 1152
s_cselect_b32 s{sRX}, 0, s{sRX}
s_branch L_X0l
L_X0x:
""")
    hstamp(11)
    a(f"s_cmp_eq_u32 s{sBR}, 0\ns_cbranch_scc1 L_AX1\ns_branch L_BX1")

def karg_loads():
    a(f"""
s_mul_i32 s{sT}, s{sBR}, 24
s_add_u32 s{sT}, s{sT}, 16
s_load_dwordx2 s[40:41], s[0:1], s{sT}
s_load_dwordx4 s[44:47], s[0:1], 48
s_load_dwordx2 s[48:49], s[0:1], 64
""")

def karg_rest(loads=True):
    if loads:
        karg_loads()
    if OPT["stamps"]:
        for i in range(1, 10 if OPT.get("fine") == 4 else 14):
            a(f"s_mov_b32 s{sST+2*i}, 0")
    a(f"""
s_mov_b32 s{sG0}, 0xffff
s_mov_b32 s{sG0+1}, 0
s_mov_b32 s{sG01}, -1
s_mov_b32 s{sG01+1}, 0
""")

def x_issue(kind, c, m):
    nq, h, x0, xs = (9, 5, A_X0, A_XSLOT) if kind == "A" else (8, 4, B_X0, B_XSLOT)
    st = (c + 1) // 2
    if st > 8:
        return 0
    qs = range(nq) if c == 0 else (range(h) if c % 2 else range(h, nq))
    if c % 2:
        a(f"s_addk_i32 s{sRX}, 128\ns_cmpk_eq_u32 s{sRX}, 1152\ns_cselect_b32 s{sRX}, 0, s{sRX}")
    for q in qs:
        m.set(x0 + (st % 3) * xs + 2048 * q)
        a("s_nop 0")
        dma(VD + q, SX, f"s{sRX}")
    return len(qs)

def out_cols(sb, fo, lim):
    a(f"""
s_and_b32 s{sT}, s{sHG}, 3
s_lshl_b32 s{sT2}, s{sT}, 3
s_lshr_b32 s{sb}, 0x07050200, s{sT2}
s_and_b32 s{sb}, s{sb}, 0xff
s_lshr_b32 s{sT2}, s{sHG}, 2
s_mul_i32 s{sT2}, s{sT2}, 9
s_add_u32 s{sb}, s{sb}, s{sT2}
s_lshl_b32 s{sb}, s{sb}, 6
s_cmp_eq_u32 s{sT}, 1
s_cselect_b32 s{fo}, 64, 0
s_cmp_lt_u32 s{sT}, 2
s_cselect_b32 s{lim}, 12, 8
""")

def wo_setup(quad):
    out_cols(sM, 55, 56)
    for j in range(6):
        a(f"""
v_add_u32 v1, {64*j}, v0
v_mul_u32_u24 v2, 5462, v1
v_lshrrev_b32 v2, 16, v2
v_mad_i32_i24 v1, v2, -12, v1
v_bfe_u32 v3, v2, 2, 1
v_lshlrev_b32 v4, 1, v3
v_xor_b32 v1, v1, v4
v_cmp_gt_u32 vcc, s56, v1
v_lshl_add_u32 v1, v1, 4, s{sM}
v_mov_b32 v4, {1 << 23}
v_cndmask_b32 v1, v4, v1, vcc
v_and_b32 v4, 3, v2
v_lshl_add_u32 v5, v3, 2, v4
v_mul_u32_u24 v3, 72, v3
v_add_u32 v4, v3, v4
v_bfe_u32 v3, v2, 3, 1
v_lshl_add_u32 v5, v3, 4, v5
v_lshl_add_u32 v4, v3, 2, v4
v_bfe_u32 v3, v2, 4, 1
v_lshl_add_u32 v5, v3, 3, v5
v_mul_u32_u24 v3, 144, v3
v_add_u32 v4, v3, v4
v_mul_u32_u24 v5, 1152, v5
v_add_u32 v{VWO+j}, v5, v1
v_mul_u32_u24 v4, 1152, v4
v_add_u32 v{VWO+6+j}, v4, v1
""")
    a(f"s_and_b32 s55, s{sWAVE}, 3\ns_lshl_b32 s57, s55, 3")
    rho(56)
    a(f"s_add_u32 s56, s56, s{55 if quad else sV}")

def rho(dst):
    a(f"s_lshl_b32 s{dst}, s{sRB}, 1\ns_add_u32 s{dst}, s{dst}, s{sHG}")
    if OPT.get("wx"):
        a(f"s_lshr_b32 s{sT}, s{sRB}, 2\ns_mul_i32 s{sT}, s{sT}, {OPT['wx']}\ns_add_u32 s{dst}, s{dst}, s{sT}")
    a(f"s_lshl_b32 s{dst}, s{dst}, 1")

def wo_chunk(left, fadd):
    if left:
        a(f"s_mul_i32 s{sK}, s{sV}, {288*1152}\ns_add_u32 s{sK}, s{sK}, {64*1152}")
    else:
        a(f"""
s_add_u32 s{sT}, s56, {fadd}
s_bfe_u32 s{sK}, s{sT}, 0x30001
s_mul_i32 s{sK}, s{sK}, {72*1152}
s_bitcmp1_b32 s{sT}, 0
s_cselect_b32 s{sT}, {32*1152}, 0
s_add_u32 s{sK}, s{sK}, s{sT}
""")
    for j in range(6):
        dma(VWO + (6 if left else 0) + j, SWO, f"s{sK}")
        if j < 5:
            a("s_addk_i32 m0, 1024")
    return 6

def wo_issue(q):
    packed = sum((WO[2 + 4*q + w] // 1024) << (8 * w) for w in range(4))
    a(f"s_lshr_b32 s{sT}, {packed}, s57\ns_and_b32 s{sT}, s{sT}, 0xff\ns_lshl_b32 m0, s{sT}, 10")
    return wo_chunk(False, 4*q)

def wo_pair(g):
    a(f"s_mul_i32 s{sT}, s{sV}, {WO[2*g+1] - WO[2*g] & 0xffffffff}\ns_add_u32 m0, s{sT}, {WO[2*g]}")
    return wo_chunk(g == 0, 2*g - 2)

def sync_setup():
    a(f"""
s_lshl_b32 s{sT}, s{sBR}, 4
s_add_u32 s{sT}, s{sT}, s{sRB}
s_lshl_b32 s{sT2}, s{sT}, 8
s_add_u32 s{sT2}, s{sT2}, {WS_CNT}
s_add_u32 s{sOC}, s{SWS}, s{sT2}
s_addc_u32 s{sOC+1}, s{SWS+1}, 0
s_lshl_b32 s{sT}, s{sT}, 2
s_add_u32 s98, s{sT}, 32
s_lshl_b32 s99, s{sHG}, 2
s_mul_i32 s{sT2}, s{sHG}, {KV_ST}
s_add_u32 s{sT2}, s{sT2}, {WS_KV + 6144}
s_add_u32 s{sKC}, s{SWS}, s{sT2}
s_addc_u32 s{sKC+1}, s{SWS+1}, 0
""")

def loader_tail(tag, late=None):
    sig = tag != "BW"
    if sig:
        flag_check(sFO, 98, f"L_{tag}_fo")
    a("s_barrier")
    stamp()
    if sig:
        a(f"s_cmp_eq_u32 s{sWAVE}, 6\ns_cbranch_scc0 L_{tag}_na\ns_mov_b32 s96, 1\ns_atomic_add s96, s[{sOC}:{sOC+1}], 0 glc\nL_{tag}_na:")
    if late:
        late()
    if sig:
        a(f"s_cmp_eq_u32 s{sWAVE}, 6\ns_cbranch_scc0 L_{tag}_oc_x")
        a(f"s_waitcnt lgkmcnt(0)\ns_cmp_ge_u32 s96, 7\ns_cbranch_scc1 L_{tag}_oc_x")
        arrive_wait(sOC, 8, f"L_{tag}_oc", False)
    a("s_waitcnt vmcnt(0)")
    stamp()
    a("s_barrier")
    stamps_out()
    a("s_endpgm")

def spread(setup, i, n):
    per = -(-len(setup) // n)
    a("s_cmp_eq_u32 s59, 1")
    a.lines += setup[per*i:per*(i+1)]
    a("s_cselect_b32 s59, 1, 0")

def captured(fn):
    mark = len(a.lines)
    fn()
    out_ = a.lines[mark:]
    del a.lines[mark:]
    return out_

def att_masks(MC, MP, MPF, PM, t):
    a(f"""
s_lshr_b32 s{sT}, s{sWAVE}, 1
s_lshl_b32 s{sT}, s{sT}, 3
v_and_b32 v{t}, 15, v0
v_xor_b32 v{t}, s{sT}, v{t}
v_lshrrev_b32 v{t+1}, 4, v0
v_lshlrev_b32 v{t+1}, 2, v{t+1}
v_xor_b32 v{t+1}, s{sT}, v{t+1}
v_sub_u32 v{t}, v{t}, v{t+1}
v_mov_b32 v{t+2}, {NEG}
s_and_b32 s{sT}, s{sWAVE}, 1
s_or_b32 s{sT}, s{sT}, s{sRB}
s_cmp_eq_u32 s{sT}, 0
s_cselect_b64 s[42:43], -1, 0
""")
    for r in range(4):
        a(f"""
v_subrev_u32 v{t+1}, {r}, v{t}
v_cmp_gt_u32 vcc, 8, v{t+1}
v_cndmask_b32 v{MC+r}, v{t+2}, 0, vcc
v_cmp_gt_i32 vcc, -8, v{t+1}
v_cndmask_b32 v{MP+r}, v{t+2}, 0, vcc
v_cndmask_b32 v{MPF+r}, v{MP+r}, v{t+2}, s[42:43]
v_cmp_lt_i32 vcc, -1, v{t+1}
v_mov_b32 v{t+3}, {'0xffff' if r % 2 == 0 else '0xffff0000'}
v_cndmask_b32 v{t+3}, 0, v{t+3}, vcc
""")
        a(f"v_mov_b32 v{PM + r//2}, v{t+3}" if r % 2 == 0 else f"v_or_b32 v{PM + r//2}, v{PM + r//2}, v{t+3}")

def a_loader(kind):
    a(f"L_A{kind}1:")
    m = M0(42)
    issue = (lambda c: w_issue("A", c, m)) if kind == "W" else (lambda c: x_issue("A", c, m))
    late2 = kind == "W" and OPT.get("early", 2) & 1
    cnt = ({1: 9} if late2 else {1: 9, 2: issue(2)}) if kind == "W" else {1: 5, 2: 4}
    pre3 = kind == "X" and OPT.get("x3", 0) & 1
    if pre3:
        cnt[3] = issue(3); cnt[4] = issue(4)
    karg_rest()
    a("s_mov_b32 s59, 0")
    stamp()
    x_lane(8, 9, 1)
    rd_lanes(10, 12 if kind == "W" else None, 1, 2)
    if kind == "X":
        a(f"v_add_u32 v12, {2*SLAB2 + 128}, v10")
    a(f"""
v_add_u32 v8, {A_X0 + 8*2048}, v8
v_add_u32 v9, {A_X0 + 8*2048}, v9
s_lshl_b32 s{sT}, s{sV}, 6
s_add_u32 s{sT}, s{sT}, {SLAB2 if kind == 'W' else 2*SLAB2}
v_add_u32 v10, s{sT}, v10
v_add_u32 v13, {4*A_WSLOT}, v10
v_add_u32 v15, {4*A_WSLOT}, v12
""")
    def setup():
        srds_rest(); sync_setup(); wo_setup(True)
        a(f"""
s_lshl_b32 s{sT}, s{sV}, 10
s_add_u32 s{sT}, s{sT}, {A_EX + (0 if kind == 'W' else 2560)}
v_lshlrev_b32 v1, 3, v0
v_add_u32 v6, s{sT}, v1
v_add_u32 v7, {A_EX + (2048 if kind == 'W' else 4608)}, v1
""")
    setup = captured(setup)
    a(f"s_waitcnt vmcnt({sum(cnt.values())})\ns_barrier")
    stamp()
    extra = 0
    for i in range(-1, 17):
        ks = i + 1
        slot = ks % 5
        off = 0 if slot == 4 else slot * A_WSLOT
        ad = (13, 15) if slot == 4 else (10, 12)
        a(f"ds_read_b128 v[40:43], v{8 + ks % 2} offset:{(ks//2 % 3)*A_XSLOT}")
        for j in range(2):
            a(tr(44 + 4*j, ad[0], off + 32*j)); a(tr(46 + 4*j, ad[0], off + 32*j + 1280))
        a(f"s_cmp_eq_u32 s{sV}, 0\ns_cbranch_scc0 L_A{kind}_r{ks}")
        a(tr(52, ad[1], off)); a(tr(54, ad[1], off + 1280))
        a(f"L_A{kind}_r{ks}:")
        if i == -1 and late2:
            cnt[2] = issue(2)
        if i + 4 <= 17 and i + 4 not in cnt:
            cnt[i+4] = issue(i + 4)
        a("s_waitcnt lgkmcnt(0)")
        for j in range(3):
            c = 60 + 4*j if ks else "0"
            if j == 2:
                a(f"s_cmp_eq_u32 s{sV}, 0\ns_cbranch_scc0 L_A{kind}_m{ks}")
            a(mf(60 + 4*j, 44 + 4*j, 40, c) if kind == "W" else mf(60 + 4*j, 40, 44 + 4*j, c))
        a(f"L_A{kind}_m{ks}:")
        if 1 <= i < 11:
            spread(setup, i - 1, 10)
        if i == 14 and kind == "W":
            extra += wo_pair(0)
        if i == 15:
            extra += wo_issue(0)
        if i + 1 <= 16:
            left = sum(n_ for c, n_ in cnt.items() if c >= i + 3) + extra
            a(f"s_waitcnt vmcnt({left})\ns_barrier")
    for j in range(3):
        a(cv(44 + 2*j, 60 + 4*j)); a(cv(45 + 2*j, 62 + 4*j))
    if kind == "W":
        a("v_mov_b32 v50, 0\nv_mov_b32 v51, 0")
        a("v_permlane32_swap_b32 v48, v50\nv_permlane32_swap_b32 v49, v51")
    a("ds_write_b64 v6, v[44:45]\nds_write_b64 v6, v[46:47] offset:512")
    a(f"s_cmp_eq_u32 s{sV}, 0\ns_cbranch_scc0 L_A_att")
    a(f"ds_write_b64 v7, {'v[50:51]' if kind == 'W' else 'v[48:49]'}")
    if kind == "W":
        a("s_branch L_A_att")
        return
    a("L_A_att:")
    stamp()
    a("s_waitcnt lgkmcnt(0)\ns_barrier")
    stamp()
    flag_load(sFO, 98)
    wo_issue(1); wo_issue(2); wo_issue(3)
    stamp()
    loader_tail("A")

def o_store_addr(vfull, vleft, tmp, left_lo, wreg=sWAVE):
    a(f"""
s_lshl_b32 s{sT}, s{sRB}, 3
s_lshl_b32 s{sT2}, s{wreg}, 1
s_add_u32 s{sT}, s{sT}, s{sT2}
s_mul_i32 s{sT}, s{sT}, 18432
s_mul_i32 s{sT2}, s{sBR}, {O_BR}
s_add_u32 s58, s{sT}, s{sT2}
s_lshl_b32 s{sT2}, s{sHG}, 11
s_add_u32 s{sT2}, s{sT2}, s58
v_lshl_add_u32 v{vfull}, v0, 4, s{sT2}
s_lshr_b32 s{sT2}, s{sHG}, 2
s_add_u32 s{sT2}, s{sT2}, 16
s_lshl_b32 s{sT2}, s{sT2}, 10
s_add_u32 s{sT}, s58, s{sT2}
s_and_b32 s{sT2}, s{sHG}, 3
s_lshl_b32 s{sT2}, s{sT2}, 8
s_add_u32 s{sT}, s{sT}, s{sT2}
v_and_b32 v{vleft}, 15, v0
v_lshlrev_b32 v{vleft}, 4, v{vleft}
v_bfe_u32 v{tmp}, v0, 4, 1
v_lshl_add_u32 v{vleft}, v{tmp}, 3, v{vleft}
v_add_u32 v{vleft}, s{sT}, v{vleft}
v_mov_b32 v{tmp}, {OOB}
""")
    x, y = (tmp, vleft) if left_lo else (vleft, tmp)
    a(f"v_cndmask_b32 v{vleft}, v{x}, v{y}, s[{sG01}:{sG01+1}]")

FLAGS = ["", " nt", " sc1", " sc1 nt", " sc0 sc1"]
def o_store(of, vfull, vleft, rt):
    so = f"s{sK}" if rt else "0"
    fl = FLAGS[OPT.get("ost", 2)]
    if rt:
        a(f"s_movk_i32 s{sK}, 18432")
    a(f"buffer_store_dwordx4 {vr(of,4)}, v{vfull}, s[{SWS}:{SWS+3}], {so} offen{fl}")
    a(f"buffer_store_dwordx4 {vr(of+4,4)}, v{vfull}, s[{SWS}:{SWS+3}], {so} offen offset:1024{fl}")
    a(f"buffer_store_dwordx2 {vr(of+8,2)}, v{vleft}, s[{SWS}:{SWS+3}], {so} offen{fl}")

def init_stores(tag, with_kv):
    a(f"""
s_or_b32 s{sT}, s{sHG}, s{sWAVE}
s_cmp_eq_u32 s{sT}, 0
s_cselect_b32 s55, 1, 0
v_mov_b32 v20, 0
v_mov_b32 v21, 0
v_mov_b32 v22, 0
v_mov_b32 v23, 0
s_cbranch_scc0 L_{tag}_i1
{chr(10).join(["s_sleep 127"] * OPT.get("late", 0))}
s_lshl_b32 s{sT}, s{sBR}, 4
s_add_u32 s{sT}, s{sT}, s{sRB}
s_lshl_b32 s{sT}, s{sT}, 8
s_add_u32 s{sT}, s{sT}, {WS_CNT}
v_mov_b32 v24, s{sT}
buffer_store_dword v20, v24, s[{SWS}:{SWS+3}], 0 offen sc1
L_{tag}_i1:
""")
    if with_kv:
        a(f"""
s_or_b32 s{sT}, s{sRB}, s{sWAVE}
s_cmp_eq_u32 s{sT}, 0
s_cbranch_scc0 L_{tag}_i2
{chr(10).join(["s_sleep 127"] * OPT.get("late", 0))}
s_or_b32 s55, s55, 2
s_mul_i32 s{sT}, s{sHG}, {KV_ST}
s_add_u32 s{sT}, s{sT}, {WS_KV}
v_lshl_add_u32 v24, v0, 4, s{sT}
""")
        for j in range(7):
            a(f"s_movk_i32 s{sK}, {1024*j}\nbuffer_store_dwordx4 v[20:23], v24, s[{SWS}:{SWS+3}], s{sK} offen sc1")
        a(f"L_{tag}_i2:")

def init_flags(tag):
    a(f"""
s_waitcnt vmcnt(0)
s_cmp_eq_u32 s55, 0
s_cbranch_scc1 L_{tag}_f2
v_mov_b32 v20, 1
s_bitcmp1_b32 s55, 0
s_cbranch_scc0 L_{tag}_f1
s_lshl_b32 s{sT}, s{sBR}, 4
s_add_u32 s{sT}, s{sT}, s{sRB}
s_lshl_b32 s{sT}, s{sT}, 2
s_add_u32 s{sT}, s{sT}, 32
v_mov_b32 v24, s{sT}
buffer_store_dword v20, v24, s[{SDBG}:{SDBG+3}], 0 offen sc1
L_{tag}_f1:
s_bitcmp1_b32 s55, 1
s_cbranch_scc0 L_{tag}_f2
s_lshl_b32 s{sT}, s{sHG}, 2
v_mov_b32 v25, s{sT}
buffer_store_dword v20, v25, s[{SDBG}:{SDBG+3}], 0 offen sc1
L_{tag}_f2:
""")

def kstep(tiles, nxt_reads, first, waits):
    pend = list(first)
    for t, (m0_, m1_) in enumerate(tiles):
        if OPT.get("snake") and t % 2:
            m0_, m1_ = m1_, m0_
        if t in waits:
            a(waits[t])
        a(m0_)
        for x in pend: a(x)
        a(m1_)
        pend = []
        if nxt_reads:
            a(nxt_reads[t][0]); pend = [nxt_reads[t][1]]
    for x in pend: a(x)

def ring_loop(T, D, pair, wreads, xread, hook, last_gap=None):
    issued, mark, q = 0, {}, []
    def rd(key, x):
        nonlocal issued
        a(x); mark[key] = issued; issued += 1
    def feed(n):
        ks, t = divmod(n, T)
        if ks > 17: return
        if t == 0:
            if ks: q.append((None, "s_barrier"))
            q.extend(((ks, "x"), xread(ks, rt)) for rt in range(2))
        q.extend(((ks, t), x) for x in wreads(ks, t))
    def fill(k):
        for _ in range(k):
            while q and q[0][0] is None:
                a(q.pop(0)[1])
            if q: rd(*q.pop(0))
    for n in range(D):
        feed(n)
    fill(len(q))
    for n in range(18 * T):
        ks, t = divmod(n, T)
        hook(ks, t)
        assert not [k for k, _ in q if k in ((ks, t), (ks, "x"))]
        need = max(mark[(ks, t)], mark[(ks, "x")])
        a(f"s_waitcnt lgkmcnt({min(15, issued - 1 - need)})")
        feed(n + D)
        m0_, m1_ = pair(ks, t)
        a(m0_); fill(1)
        a(m1_); fill(2 if len(q) > 2 else 1)
        if last_gap and ks == 17:
            x = last_gap(t)
            if x: a(x); issued += 1

def a_consumer():
    acc = lambda t, rt: 144 + (t * 2 + rt) * 4
    wf = lambda t: 88 + 4 * t
    xf = lambda buf, rt: 72 + buf * 8 + rt * 4
    aW, aS, aWb, aSb, aX = 1, 2, 3, 4, 11
    vOF, vOL, vEXW, vEXR = 13, 14, 15, 16
    MC, MP, MPF, PM = 56, 60, 64, 68
    a("L_AC:")
    karg_rest(False)
    a("s_waitcnt lgkmcnt(0)")
    srds_rest()
    init_stores("AC", False)
    rd_lanes(aW, aS, 17, 18); x_lane(aX, aX + 1, 17)
    a(f"v_add_u32 v{aWb}, {4*A_WSLOT}, v{aW}\nv_add_u32 v{aSb}, {4*A_WSLOT}, v{aS}")
    a(f"""
s_lshl_b32 s{sT}, s{sWAVE}, 12
s_add_u32 s{sT}, s{sT}, {A_X0}
v_add_u32 v{aX}, s{sT}, v{aX}
v_add_u32 v{aX+1}, s{sT}, v{aX+1}
""")
    att_masks(MC, MP, MPF, PM, 17)
    o_store_addr(vOF, vOL, 17, True)
    a(f"""
s_lshr_b32 s{sT}, s{sWAVE}, 1
s_add_u32 s{sT}, s{sT}, 1
s_mul_i32 s{sT}, s{sT}, 5120
s_bitcmp1_b32 s{sWAVE}, 0
s_cselect_b32 s{sT3}, s{sT}, 0
v_lshlrev_b32 v17, 3, v0
v_add_u32 v17, {A_EX}, v17
v_add_u32 v{vEXW}, s{sT}, v17
v_add_u32 v{vEXR}, s{sT3}, v17
""")

    def wreads(ks, t):
        slot = ks % 5
        o = 0 if slot == 4 else slot * A_WSLOT
        ad = (aSb if slot == 4 else aS) if t == 4 else (aWb if slot == 4 else aW)
        if t != 4:
            o += 32 * t if t < 4 else SLAB2 + 32 * (t - 5) if t < 9 else 2 * SLAB2 + 32 * (t - 9)
        return [tr(wf(t), ad, o), tr(wf(t) + 2, ad, o + 1280)]
    xread = lambda ks, rt: f"ds_read_b128 {vr(xf(ks % 2, rt),4)}, v{aX + ks % 2} offset:{(ks//2 % 3)*A_XSLOT + rt*2048}"

    stamp()
    a("s_barrier")
    stamp()
    def pair(ks, t):
        c = lambda rt: acc(t, rt) if ks else "0"
        return [mf(acc(t, rt), wf(t), xf(ks % 2, rt), c(rt)) if t < 9 else mf(acc(t, rt), xf(ks % 2, rt), wf(t), c(rt)) for rt in range(2)]
    def hook(ks, t):
        if t == 0 and OPT.get("fine") == 2 and ks in (2, 5, 8, 11, 14):
            stamp()
        if (ks, t) == (OPT.get('fk', 2), 0):
            init_flags("AC")
    ring_loop(14, OPT.get("da", 4), pair, wreads, xread, hook)
    stamp()
    KP = lambda j: 18 + 10 * j
    QT = lambda rt, h: 88 + 16 * rt + 4 * h
    VP = lambda t, j: 120 + 6 * t + 2 * j if t < 4 else 48 + 2 * j
    ONE = 72
    def pack_kv(rt):
        o = []
        for q in range(2):
            o += [cv(QT(rt, 3) + 2 + q, acc(4, rt) + 2*q), f"v_mov_b32 v{KP(1+rt) + 8 + q}, 0"]
        for tau in range(4):
            o += [cv(KP(1+rt) + 2*tau + q, acc(5+tau, rt) + 2*q) for q in range(2)]
        o += [f"v_permlane32_swap_b32 v{QT(rt,3) + 2 + q}, v{KP(1+rt) + 8 + q}" for q in range(2)]
        for t in range(5):
            o += [cv(VP(t, 1+rt) + q, acc(9+t, rt) + 2*q) for q in range(2)]
        return o
    def pack_q(rt):
        o = []
        for t in range(4):
            for q in range(2):
                d = QT(rt, t) + q
                o.append(cv(d, acc(t, rt) + 2*q))
                if (t, q) in SPLITS:
                    m = SPLITS[(t, q)]; lo = QT(rt, t-1) + 2 + q
                    o += [f"v_cndmask_b32 v{lo}, 0, v{d}, s[{m}:{m+1}]", f"v_xor_b32 v{d}, v{d}, v{lo}"]
        return o + [f"v_mov_b32 v{QT(rt,0) + 3}, 0"]
    weave([], pack_kv(1))
    a(f"s_bitcmp1_b32 s{sWAVE}, 0\ns_cbranch_scc1 L_AC_nodump")
    for j in range(5):
        a(f"ds_write_b64 v{vEXW}, {vr(KP(2) + 2*j, 2)} offset:{512*j}")
        a(f"ds_write_b64 v{vEXW}, {vr(VP(j, 2), 2)} offset:{512*(5+j)}")
    a("L_AC_nodump:")
    weave([], pack_kv(0) + pack_q(1))
    a("s_waitcnt lgkmcnt(0)\ns_barrier")
    for j in range(5):
        a(f"ds_read_b64 {vr(KP(0) + 2*j, 2)}, v{vEXR} offset:{512*j}")
        a(f"ds_read_b64 {vr(VP(j, 0), 2)}, v{vEXR} offset:{512*(5+j)}")
    SC = lambda rt, h: (224 if rt else 184) + 8 * h
    MX = lambda rt: [76 + 4 * rt + h for h in range(4)]
    PT = lambda rt, h: 144 + 16 * rt + 4 * h
    def qk(rt):
        o = []
        for h in range(4):
            o += [mf(SC(rt, h), KP(1+rt) + 2*h, QT(rt, h), MC), mf(SC(rt, h) + 4, KP(rt) + 2*h, QT(rt, h), MP if rt else MPF)]
        return o
    def rowmax(rt):
        o = []
        for h in range(4):
            s = SC(rt, h); m = MX(rt)[h]
            o += [f"v_max_f32 v{s+r}, v{s+r}, v{s+4+r}" for r in range(4)]
            o += [f"v_max3_f32 v{m}, v{s}, v{s+1}, v{s+2}", f"v_max_f32 v{m}, v{m}, v{s+3}"]
        return o
    def xmax(rt):
        m = MX(rt)
        return [f"v_permlane32_swap_b32 v{m[0]}, v{m[1]}", f"v_permlane32_swap_b32 v{m[2]}, v{m[3]}",
                f"v_max_f32 v{m[0]}, v{m[0]}, v{m[1]}", f"v_max_f32 v{m[2]}, v{m[2]}, v{m[3]}",
                f"v_permlane16_swap_b32 v{m[0]}, v{m[2]}", f"v_max_f32 v{m[0]}, v{m[0]}, v{m[2]}",
                f"v_mul_f32 v{m[0]}, s{sT2}, v{m[0]}", f"v_mov_b32 v{m[2]}, v{m[0]}",
                f"v_permlane16_swap_b32 v{m[0]}, v{m[2]}", f"v_mov_b32 v{m[1]}, v{m[0]}", f"v_mov_b32 v{m[3]}, v{m[2]}",
                f"v_permlane32_swap_b32 v{m[0]}, v{m[1]}", f"v_permlane32_swap_b32 v{m[2]}, v{m[3]}"]
    def scale(rt):
        if OPT.get("pka", 2) < 2:
            return [f"v_fma_f32 v{SC(rt,h)+r}, v{SC(rt,h)+r}, s56, v{MX(rt)[h]}" for h in range(4) for r in range(4)]
        return [f"v_pk_fma_f32 {vr(SC(rt,h)+r,2)}, {vr(SC(rt,h)+r,2)}, s[56:57], {vr(MX(rt)[h] & ~1, 2)} op_sel:[0,0,{h%2}] op_sel_hi:[1,1,{h%2}]"
                for h in range(4) for r in (0, 2)]
    def probs(rt):
        o = []
        for h in range(4):
            s = SC(rt, h); p = PT(rt, h)
            o += [f"v_exp_f32 v{s+r}, v{s+r}" for r in range(4)]
            if h:
                o += split(rt, h - 1)
        return o + split(rt, 3)
    def split(rt, h):
        s = SC(rt, h); p = PT(rt, h); o = []
        for q in range(2):
            o += [cv(p + q, s + 2*q), f"v_and_b32 v{p+2+q}, v{p+q}, v{PM+q}", f"v_xor_b32 v{p+q}, v{p+q}, v{p+2+q}"]
        return o
    OB = lambda rt, t: (224 if rt else 184) + 4 * t
    OA = lambda rt, t: (224 if rt else 184) + 12 + 4 * t
    SM = lambda rt, h: 88 + 16 * rt + 4 * h
    OF = lambda rt: 18 + 10 * rt
    def pv(rt):
        o = [mf(SM(rt, h), ONE, PT(rt, h), "0") for h in range(4)]
        for t in range(5):
            if t < 4: o.append(mf(OB(rt, t), VP(t, rt), PT(rt, t), "0"))
            if t > 0: o.append(mf(OA(rt, t), VP(t, rt), PT(rt, t-1), "0"))
        return o
    def finish(rt, pk):
        o = [f"v_rcp_f32 v{SM(rt,h)}, v{SM(rt,h)}" for h in range(4)]
        for t in range(5):
            for q in range(2):
                d = OF(rt) + 2*t + q
                srcs = []
                if t < 4: srcs.append((OB(rt, t) + 2*q, SM(rt, t), d))
                if t == 4: srcs.append((OA(rt, t) + 2*q, SM(rt, 3), d))
                if (t, q) in SPLITS: srcs.append((OA(rt, t) + 2*q, SM(rt, t-1), 17))
                for x, inv, dd in srcs:
                    if pk:
                        o += [f"v_pk_mul_f32 {vr(x,2)}, {vr(x,2)}, {vr(inv,2)} op_sel_hi:[1,0]", cv(dd, x)]
                    else:
                        o += [f"v_mul_f32 v{x}, v{x}, v{inv}", f"v_mul_f32 v{x+1}, v{x+1}, v{inv}", cv(dd, x)]
                if (t, q) in SPLITS:
                    m = SPLITS[(t, q)]
                    o.append(f"v_cndmask_b32 v{d}, v{d}, v17, s[{m}:{m+1}]")
        return o
    a(f"s_mov_b32 s56, {f32(CSC)}\ns_mov_b32 s57, s56\ns_mov_b32 s{sT2}, {f32(-CSC)}")
    weave(qk(1), pack_q(0) + [f"v_mov_b32 v{ONE+j}, 0x3f803f80" for j in range(4)])
    a("s_waitcnt lgkmcnt(0)")
    weave(qk(0), rowmax(1))
    x1, x0 = xmax(1), xmax(0)
    r0 = rowmax(0)
    for i, x in enumerate(x1):
        a(x)
        for y in r0[2*i:2*i+2]: a(y)
    p1 = scale(1) + probs(1)
    for i, x in enumerate(x0):
        a(x)
        for y in p1[2*i:2*i+2]: a(y)
    if OPT.get("pka", 2) > 1:
        weave([], p1[2*len(x0):] + scale(0))
        weave(pv(1), probs(0))
    else:
        weave([], p1[2*len(x0):])
        weave(pv(1), scale(0) + probs(0))
    f1 = finish(1, False)
    f1p = finish(1, OPT.get('pka', 2) > 1)
    cutp = next(i for i, x in enumerate(f1p) if x.startswith(f"v_cvt_pk_bf16_f32 v{OF(1) + 3},")) + 1
    cutn = next(i for i, x in enumerate(f1) if x.startswith(f"v_cvt_pk_bf16_f32 v{OF(1) + 3},")) + 1
    weave(pv(0), f1[:cutn])
    weave([], f1p[cutp:])
    o_store(OF(1), vOF, vOL, 1)
    weave([], finish(0, OPT.get('pka', 2) > 0))
    o_store(OF(0), vOF, vOL, 0)
    stamp()
    a("s_branch L_P2")

def phi(r, n, t):
    o = [f"v_pk_fma_f32 {vr(t[j],2)}, {vr(r+j,2)}, s[56:57], v[14:15]" for j in range(0, n, 2)]
    for j in range(n):
        o += [f"v_exp_f32 v{t[j]}, v{t[j]} clamp", f"v_max_f32 v{r+j}, s{sT2}, v{r+j}"]
    return o + [f"v_pk_add_f32 {vr(r+j,2)}, {vr(r+j,2)}, {vr(t[j],2)}" for j in range(0, n, 2)]

def b_consumer():
    acc = lambda t, rt: 184 + (t * 2 + rt) * 4
    wf = lambda t: 148 + 4 * t
    xf = lambda ks, rt: 52 + ks * 8 + rt * 4 if ks < 12 else 36 + (ks % 2) * 8 + rt * 4
    aW, aS, aX = 1, 2, 6
    vOF, vOL, vEX = 8, 9, 10
    CK, CS = 28, 32
    a("L_BC:")
    karg_rest(False)
    a("s_waitcnt lgkmcnt(0)")
    srds_rest()
    init_stores("BC", True)
    rd_lanes(aW, aS, 17, 18); x_lane(aX, aX + 1, 17)
    a(f"""
s_lshl_b32 s{sT}, s{sWAVE}, 12
s_add_u32 s{sT}, s{sT}, {B_X0}
v_add_u32 v{aX}, s{sT}, v{aX}
v_add_u32 v{aX+1}, s{sT}, v{aX+1}
v_and_b32 v17, 15, v0
v_cmp_gt_u32 vcc, 8, v17
v_mov_b32 v18, {EPS}
s_mov_b64 s[42:43], vcc
s_mul_i32 s{sT}, s{sWAVE}, 10240
s_add_u32 s{sT}, s{sT}, {B_EX}
v_lshl_add_u32 v{vEX}, v0, 4, s{sT}
v_mov_b32 v14, {f32(-1e-6*LOG2E)}
v_mov_b32 v15, v14
s_mov_b32 s56, {f32(LOG2E)}
s_mov_b32 s57, s56
""")
    for r in range(4):
        a(f"v_mov_b32 v{CK+r}, v18\nv_cndmask_b32 v{CS+r}, 0, v18, vcc")
    o_store_addr(vOF, vOL, 17, False)

    def wreads(ks, t):
        o = (ks % 5) * B_KVSLOT
        if t != 4:
            o += 32 * t if t < 4 else SLAB2 + 32 * (t - 5)
        return [tr(wf(t), aS if t == 4 else aW, o), tr(wf(t) + 2, aS if t == 4 else aW, o + 1280)]
    xread = lambda ks, rt: f"ds_read_b128 {vr(xf(ks, rt),4)}, v{aX + ks % 2} offset:{(ks//2 % 3)*B_XSLOT + rt*2048}"

    stamp()
    a("s_barrier")
    stamp()
    pair = lambda ks, t: [mf(acc(t, rt), xf(ks, rt), wf(t), acc(t, rt) if ks else (CK if t < 4 else CS if t == 4 else "0")) for rt in range(2)]
    def hook(ks, t):
        if (ks, t) == (OPT.get('fk', 2), 0):
            init_flags("BC")
    reread = lambda t: f"ds_read_b128 {vr(wf(t),4)}, v{aX + t//2 % 2} offset:{(6 + t//4) % 3*B_XSLOT + t % 2*2048}" if t < 8 else None
    ring_loop(9, OPT.get("db", 4), pair, wreads, xread, hook, reread)
    stamp()
    a(f"s_mov_b32 s{sT2}, {EPS}\nv_mov_b32 v16, 0x3f803f80")
    wr = lambda reg, slot: f"ds_write_b128 v{vEX}, {vr(reg,4)} offset:{1024*slot}"
    pk = lambda d, s: [cv(d + j, s + 2*j) for j in range(4)]
    xq = lambda ks, rt: wf(2 * (ks - 12) + rt) if 12 <= ks < 16 else xf(ks, rt)
    for tau in range(4):
        weave([], pk(acc(5+tau, 0), acc(5+tau, 0)))
    V4, TM = acc(7, 1), [acc(5, 1) + j for j in range(4)] + [acc(6, 1) + j for j in range(4)]
    a("s_waitcnt lgkmcnt(0)\ns_barrier")
    weave([], pk(V4, acc(4, 0)) + [f"v_cndmask_b32 v{V4+j}, v{V4+j}, v16, s[42:43]" for j in range(4)])
    for tau in range(5):
        o = phi(acc(tau, 0), 8, TM)
        weave([], o[:8] + [wr(acc(5+tau, 0) if tau < 4 else V4, 5 + tau)] + o[8:] + pk(acc(tau, 0), acc(tau, 0)) + [wr(acc(tau, 0), tau)])
    a(f"v_add_u32 v3, {R1}, v{aW}\nv_add_u32 v4, 15360, v{aW}")
    a("s_waitcnt lgkmcnt(0)\ns_barrier")
    stamp()
    QA = lambda t, rt: 216 + (t * 2 + rt) * 4
    qf = lambda t: 184 + 4 * t
    def qreads(p, t):
        ad, o = (3, wq_slot(p) - R1) if p < 3 else (aW, wq_slot(p)) if p < 6 else (4, wq_slot(p) - 15360)
        return [tr(qf(t), ad, o + 32*t), tr(qf(t) + 2, ad, o + 32*t + 1280)]
    for t in range(5):
        for x in qreads(0, t): a(x)
    if OPT.get("x2", 1):
        a("s_barrier")
    for p in range(18):
        ks = p
        if p in (2, 11):
            if OPT.get("fine") == 3: stamp()
            a("s_barrier")
            if OPT.get("fine") == 3: stamp()
        tiles = [[mf(QA(t, rt), qf(t), xq(ks, rt), QA(t, rt) if p else CK) for rt in range(2)] for t in range(5)]
        if p < 17:
            nxt = [qreads(p + 1, t) for t in range(5)]
            kstep(tiles, nxt, [], {t: f"s_waitcnt lgkmcnt({7 if t else 8})" for t in range(5)})
        else:
            kstep(tiles, None, [], {t: f"s_waitcnt lgkmcnt({8 - 2*t})" for t in range(5)})
    stamp()
    PQ = lambda rt: 36 + 10 * rt
    KO = 84
    tup = {0: KO, 1: KO + 4, 2: KO + 12, 3: KO + 20, 4: KO + 28}
    ZO = KO + 32
    weave([], [f"v_mov_b32 v{r}, 0" for r in (tup[1]+4, tup[1]+5, tup[2]+4, tup[2]+5, tup[3]+4, tup[3]+5, ZO+8, ZO+9)])
    a(f"v_lshlrev_b32 v16, 3, v0\nv_add_u32 v16, {B_KVOP}, v16")
    for t in range(5):
        weave([], phi(QA(t, 0), 8, list(range(148, 156))) + [cv(PQ(rt) + 2*t + q, QA(t, rt) + 2*q) for rt in range(2) for q in range(2)])
    stamp()
    a("s_barrier")
    stamp()
    tid = lambda tau, taup: {-1: tau - 1, 0: 4 + tau, 1: 9 + tau}[taup - tau]
    rd = lambda d, slot: a(f"ds_read_b64 {vr(d,2)}, v16 offset:{512*slot}")
    for j, d in enumerate((ZO, ZO + 2, ZO + 4, ZO + 6, ZO + 10)):
        rd(d, 13 + j)
    rd(tup[0], tid(0, 0)); rd(tup[0] + 2, tid(1, 0))
    for t in (1, 2, 3):
        rd(tup[t], tid(t-1, t)); rd(tup[t] + 2, tid(t, t)); rd(tup[t] + 6, tid(t+1, t))
    rd(tup[4], tid(3, 4)); rd(tup[4] + 2, tid(4, 4))
    DN = lambda rt: 148 + 4 * rt
    NM = lambda rt, t: 184 + 20 * rt + 4 * t
    OF = lambda rt: 156 + 10 * rt
    a("s_waitcnt lgkmcnt(13)")
    for k, (zo, po) in enumerate(((0, 0), (4, 4), (8, 6))):
        for rt in range(2):
            a(mf(DN(rt), ZO + zo, PQ(rt) + po, DN(rt) if k else CK))
    a("s_waitcnt lgkmcnt(0)")
    def num(rt):
        o = [mf(NM(rt, t), tup[t], PQ(rt) + 2*(t-1), "0") for t in (1, 2, 3)]
        o += [mf(NM(rt, 0), tup[0], PQ(rt), "0"), mf(NM(rt, 4), tup[4], PQ(rt) + 6, "0")]
        return o + [mf(NM(rt, t), tup[t] + 4, PQ(rt) + 2*t, NM(rt, t)) for t in (1, 2, 3)]
    def fin(rt, packed):
        o = []
        for t in (0, 4, 1, 2, 3):
            for q in range(2):
                inv = DN(rt) + min(t, 3)
                if (t, q) in SPLITS:
                    m = SPLITS[(t, q)]
                    o.append(f"v_cndmask_b32 v17, v{DN(rt)+t}, v{DN(rt)+t-1}, s[{m}:{m+1}]")
                    inv = 17
                n = NM(rt, t) + 2*q
                o += [f"v_pk_mul_f32 {vr(n,2)}, {vr(n,2)}, {vr(inv & ~1,2)} op_sel:[0,{inv%2}] op_sel_hi:[1,{inv%2}]", cv(OF(rt) + 2*t + q, n)]
        return o
    weave(num(0), [], 0)
    weave(num(1), [f"v_rcp_f32 v{DN(rt)+h}, v{DN(rt)+h}" for rt in range(2) for h in range(4)], 1)
    for rt in range(2):
        weave([], fin(rt, True))
        o_store(OF(rt), vOF, vOL, rt)
    stamp()

def kv_index(wreg, VS, VG, VZ):
    a(f"s_cmp_eq_u32 s{wreg}, 0\ns_cselect_b32 s58, 4, s{wreg}")
    for slot in range(3):
        if slot == 0:
            a(f"s_lshl_b32 s{sT}, s58, 4\ns_sub_u32 s{sT2}, s{sT}, 16\ns_mov_b64 s[46:47], 0")
        elif slot == 1:
            a(f"s_lshl_b32 s{sT}, s{wreg}, 4\ns_mov_b32 s{sT2}, s{sT}")
        else:
            a(f"s_add_u32 s{sT2}, s{sT}, 16\ns_cmp_eq_u32 s{wreg}, 3\ns_cselect_b32 s{sT2}, 56, s{sT2}\ns_cselect_b64 s[46:47], s[44:45], 0")
        kv_tile(VS and VS + 2*slot, VG and VG + 2*slot, False)
    if VZ:
        kv_z(VZ)

def kv_tile(VS, VG, last):
    a(f"v_add_u32 v3, s{sT2}, v1")
    head_of(4, 3)
    a(f"v_mul_u32_u24 v5, 18, v4\nv_sub_u32 v3, v3, v5\nv_cndmask_b32 v4, v4, 7, s[46:47]")
    if last:
        a("v_cmp_eq_u32 vcc, 0, v1\nv_cndmask_b32 v4, v4, 3, vcc\nv_cndmask_b32 v3, v3, 18, vcc")
    for q in range(2):
        a(f"v_add3_u32 v5, v2, s{sT}, {2*q}")
        head_of(6, 5)
        a("v_cmp_eq_u32 vcc, v4, v6\nv_mad_u32_u24 v5, v5, 19, v3\nv_lshlrev_b32 v5, 2, v5")
        if VS:
            a(f"v_add_u32 v6, {B_STG}, v5\nv_cndmask_b32 v{VS+q}, v8, v6, vcc")
        if VG:
            a(f"v_add_u32 v6, s{sM}, v5\nv_cndmask_b32 v{VG+q}, v9, v6, vcc")

def kv_z(VZ):
    a("v_and_b32 v3, 3, v0")
    for q in range(2):
        a(f"v_add3_u32 v5, v2, s{sT}, {2*q}")
        head_of(6, 5)
        a(f"v_cmp_eq_u32 vcc, v3, v6\nv_mul_u32_u24 v5, 76, v5\nv_add3_u32 v5, v5, s{sM}, 64\nv_add_u32 v5, 8, v5\nv_cndmask_b32 v{VZ+q}, v9, v5, vcc")

def b_loader(kind):
    a(f"L_B{kind}1:")
    m = M0(42)
    issue = (lambda c: w_issue("B", c, m)) if kind == "W" else (lambda c: x_issue("B", c, m))
    late2 = kind == "W" and OPT.get("early", 2) & 2
    cnt = ({1: 6} if late2 else {1: 6, 2: issue(2)}) if kind == "W" else {1: 4, 2: 4}
    pre3 = kind == "X" and OPT.get("x3", 0) & 2
    if pre3:
        cnt[3] = issue(3); cnt[4] = issue(4)
    karg_rest()
    a("s_mov_b32 s59, 0")
    stamp()
    mark = len(a.lines)
    a("s_waitcnt lgkmcnt(0)")
    VS, VG, vZS, vEA, vE0, vEL, vLA, vGA, vLW = 72, 80, 98, 99, 100, 101, 102, 103, 105
    if kind == "W":
        for j in range(3):
            a(f"v_subrev_u32 v{VD+3+j}, 1152, v{VD+j}")
    srds_rest()
    if kind == "W":
        wo_setup(False)
    else:
        sync_setup()
    a(f"""
s_add_u32 s55, s{sV}, 2
s_mul_i32 s{sM}, s{sHG}, {KV_ST}
s_add_u32 s{sM}, s{sM}, {WS_KV}
v_and_b32 v1, 15, v0
v_lshrrev_b32 v2, 4, v0
v_lshlrev_b32 v2, 2, v2
v_cmp_gt_u32 s[44:45], 8, v1
v_lshlrev_b32 v8, 2, v0
v_add_u32 v8, {B_DUMP}, v8
v_mov_b32 v9, {OOB}
""")
    own = sV if kind == "X" else 55
    if kind == "X":
        kv_index(55, None, VG, VG + 6)
        a(f"s_movk_i32 s{sT}, 64")
        kv_z(10)
    kv_index(own, VS, VG + 8 if kind == "X" else None, VG + 14 if kind == "X" else None)
    a(f"""
v_add_u32 v5, s{sT}, v0
v_mul_u32_u24 v5, 76, v5
v_add_u32 v5, {B_STG + 72}, v5
v_cndmask_b32 v{vZS}, v8, v5, s[{sG0}:{sG0+1}]
v_lshlrev_b32 v{vEL}, 4, v0
v_add_u32 v{vEL}, {B_EX}, v{vEL}
s_lshl_b32 s{sT}, s{own}, 10
v_add_u32 v{vEA}, s{sT}, v{vEL}
s_lshl_b32 s{sT}, s58, 10
v_add_u32 v{vE0}, s{sT}, v{vEL}
""")
    if kind == "X":
        a(f"s_movk_i32 s{sT}, 64\ns_movk_i32 s{sT2}, 56\ns_mov_b64 s[46:47], s[44:45]")
        kv_tile(VS + 6, VG + 16, True)
        a(f"s_cmp_eq_u32 s{sV}, 0\ns_cselect_b64 s[46:47], -1, 0")
        for q in range(2):
            a(f"v_cndmask_b32 v{VS+6+q}, v8, v{VS+6+q}, s[46:47]\nv_cndmask_b32 v{VG+16+q}, v{10+q}, v{VG+16+q}, s[46:47]")
        a(f"""
v_lshlrev_b32 v5, 3, v0
v_add_u32 v5, {B_KVOP}, v5
s_lshl_b32 s{sT2}, s58, 9
s_sub_u32 s{sT2}, s{sT2}, 512
v_add_u32 v{vLW+2}, s{sT2}, v5
s_lshl_b32 s{sT2}, s{sV}, 9
v_add_u32 v{vLW+1}, s{sT2}, v5
v_add_u32 v{vLW}, 1024, v{vLW+1}
s_mul_i32 s{sT2}, s{sV}, {9*512}
v_add_u32 v{vLW+3}, s{sT2}, v5
s_mul_i32 s{sT}, s{sV}, 2816
v_lshl_add_u32 v{vLA}, v0, 2, s{sT}
v_add_u32 v{vGA}, s{sM}, v{vLA}
v_cmp_gt_u32 vcc, {5472 - 2560}, v{vLA}
v_cndmask_b32 v{vGA+1}, v9, v{vGA}, vcc
v_add_u32 v{vLA}, {B_STG}, v{vLA}
v_mov_b32 v4, 0
""")
    a(f"v_mov_b32 v10, {B_LCNT}\nv_mov_b32 v11, 1")
    if kind == "X":
        a("ds_write_b32 v10, v4\ns_waitcnt lgkmcnt(0)")
    setup = a.lines[mark:]
    del a.lines[mark:]
    a(f"s_waitcnt vmcnt({sum(cnt.values())})\ns_barrier")
    stamp()
    extra = 0
    for i in range(-1, 16):
        if i == -1 and late2:
            cnt[2] = issue(2)
        if i + 4 <= 17 and i + 4 not in cnt:
            cnt[i+4] = issue(i + 4)
        if 0 <= i < 9:
            spread(setup, i, 9)
        if kind == "W" and i >= 14:
            extra += sum(wq_issue(p, m) for p in ((0, 1) if i == 14 else (2,)))
        left = sum(n_ for c, n_ in cnt.items() if c >= i + 3) + extra
        a(f"s_waitcnt vmcnt({left})\ns_barrier")
    a("s_barrier")
    if kind == "W":
        for p in range(3, 12):
            wq_issue(p, m)
        a("s_waitcnt vmcnt(33)")
    else:
        flag_load(sFK, 99)
        flag_check(sFK, 99, "L_BX_fk")
    stamp()
    a("s_barrier")
    stamp()
    KT = lambda s: 40 + 4 * s
    RD = lambda src, j: 112 + 28 * src + 4 * j
    srcs = ((vEA, 0), (vE0, 0), (vE0, 4096), (vEA, 5120), (vEA, 6144), (vEL, 9216), (vEL, 4096))
    prods = ((1, 2), (0, 3), (0, 4), (6, 5), (5, 0))
    if kind == "W":
        srcs = ((vEA, 0), None, (vE0, 4096), (vEA, 5120), (vEA, 6144), (vEL, 9216))
        prods = ((0, 2), (0, 3), (0, 4), None, (5, 0))
    nr = sum(x is not None for x in srcs)
    for src in range(4):
        for j, x in enumerate(srcs):
            if x: a(f"ds_read_b128 {vr(RD(src, j),4)}, v{x[0]} offset:{src*10240 + x[1]}")
    for src in range(4):
        a(f"s_waitcnt lgkmcnt({min(15, nr*(3-src))})")
        for s_, x in enumerate(prods):
            if x: a(mf(KT(s_), RD(src, x[0]), RD(src, x[1]), KT(s_) if src else "0"))
    for s_ in range(4 if kind == "X" else 3):
        for r in range(4):
            a(f"ds_write_b32 v{VS + 2*s_ + r//2}, v{KT(s_)+r} offset:{76*(r%2)}")
    a(f"ds_write_b32 v{vZS}, v{KT(4)}")
    if OPT.get("x2", 1):
        a(f"s_waitcnt {'vmcnt(0) ' if kind == 'W' else ''}lgkmcnt(0)\ns_barrier")
    else:
        a("s_waitcnt lgkmcnt(0)\ns_mov_b64 exec, 1\nds_add_u32 v10, v11\ns_mov_b64 exec, -1")
    stamp()
    if kind == "W":
        a("s_barrier")
        for p in range(12, 18):
            wq_issue(p, m)
        early = range(1, 1 + OPT.get("nb0", 2))
        n = sum(wo_pair(g) for g in early)
        a(f"s_waitcnt vmcnt({n})\ns_barrier")
        for g in range(OPT.get('nb1', 4)):
            if g not in early: wo_pair(g)
        stamp()
        a("s_barrier")
        for g in range(OPT.get('nb1', 4), OPT.get('nb2', 6)): wo_pair(g)
        loader_tail("BW", lambda: [wo_pair(g) for g in range(OPT.get('nb2', 6), 9)])
        return
    if not OPT.get("x2", 1):
      a(f"""
s_mov_b32 s{sT3}, 0x400000
L_BX_st:
ds_read_b32 v2, v10
s_waitcnt lgkmcnt(0)
v_readfirstlane_b32 s{sT}, v2
s_sub_u32 s{sT3}, s{sT3}, 1
s_cbranch_scc1 L_BX_st_x
s_cmp_ge_u32 s{sT}, 4
s_cbranch_scc0 L_BX_st
L_BX_st_x:
""")
    for n in range(11):
        a(f"ds_read_b32 v{40+n}, v{vLA} offset:{256*n}")
    for n in range(11):
        a(f"s_waitcnt lgkmcnt({10-n})")
        a(f"buffer_atomic_add_f32 v{40+n}, v{vGA + (n == 10)}, s[{SWS}:{SWS+3}], 0 offen offset:{256*n}")
    stamp()
    a("s_barrier\ns_waitcnt vmcnt(0)")
    stamp()
    a(f"s_mov_b32 s97, 1\ns_atomic_add s97, s[{sKC}:{sKC+1}], 0 glc\ns_barrier\ns_waitcnt lgkmcnt(0)\ns_cmp_ge_u32 s97, 31\ns_cbranch_scc1 L_BX_kc_x")
    arrive_wait(sKC, 32, "L_BX_kc", False)
    stamp()
    for s_ in range(9):
        for r in range(4):
            a(f"buffer_load_dword v{112+4*s_+r}, v{VG + 2*s_ + r//2}, s[{SWS}:{SWS+3}], 0 offen offset:{76*(r%2)} sc1")
    dst = ((vLW, -1), (vLW, 4), (vLW, 9), (vLW, 13), (vLW + 2, 0), (vLW + 1, 4), (vLW + 1, 9), (vLW + 1, 13), (vLW + 3, 8))
    a(f"v_subrev_u32 v11, 512, v{vLW}")
    for s_, (ad, off) in enumerate(dst):
        a(f"s_waitcnt vmcnt({4*(8-s_)})")
        a(cv(40 + 2*s_, 112 + 4*s_)); a(cv(41 + 2*s_, 114 + 4*s_))
        a(f"ds_write_b64 v{11 if off < 0 else ad}, {vr(40+2*s_,2)} offset:{512*max(off, 0)}")
    a("s_waitcnt lgkmcnt(0)")
    stamp()
    a("s_barrier")
    flag_load(sFO, 98)
    loader_tail("BX")

def p2_consumer():
    OFR = lambda ks, c: 112 + ks * 8 + c * 4
    ORDER = [(0, 0), (0, 1), (4, 0), (1, 0), (1, 1), (2, 0), (2, 1), (5, 0), (3, 0), (3, 1)]
    ACC = lambda t, c: 72 + 4 * ORDER.index((t, c))
    wf = lambda t: 48 + 4 * t
    AD, vO, vTW, vTR, VS = 1, 5, 7, 10, 14
    a("L_P2:")
    nstamp[0] = 9 if OPT.get('fine') != 3 else 10
    out_cols(57, 59, 39)
    a(f"""
v_lshrrev_b32 v40, 5, v0
v_lshlrev_b32 v40, 4, v40
v_bfe_u32 v41, v0, 4, 1
v_lshl_add_u32 v40, v41, 2, v40
v_bfe_u32 v42, v0, 2, 2
v_add_u32 v40, v40, v42
v_mul_u32_u24 v40, 192, v40
v_and_b32 v42, 3, v0
v_lshl_add_u32 v40, v42, 3, v40
v_add_u32 v40, {R1}, v40
v_lshl_add_u32 v42, v41, 5, v40
v_xor_b32 v41, 1, v41
v_lshl_add_u32 v43, v41, 5, v40
v_add_u32 v{AD}, s59, v42
v_add_u32 v{AD+1}, s59, v43
s_lshl_b32 s{sT}, s59, 1
s_sub_u32 s38, 128, s{sT}
v_add_u32 v{AD+2}, s38, v42
v_add_u32 v{AD+3}, s38, v43
s_mul_i32 s{sT}, s59, 288
s_add_u32 s{sT2}, s58, s{sT}
v_lshl_add_u32 v{vO}, v0, 4, s{sT2}
s_sub_u32 s{sT2}, s58, s{sT}
s_add_u32 s{sT2}, s{sT2}, 18432
v_lshl_add_u32 v{vO+1}, v0, 4, s{sT2}
s_mul_i32 s40, s{sWAVE}, 5632
s_add_u32 s40, s40, {P_TR}
v_and_b32 v40, 15, v0
v_lshrrev_b32 v41, 4, v0
v_lshl_add_u32 v41, v41, 3, s40
v_mul_u32_u24 v42, 208, v40
v_add_u32 v42, v42, v41
v_add_u32 v{vTW}, s59, v42
v_add_u32 v{vTW+1}, s38, v42
v_mul_u32_u24 v42, 144, v40
v_add_u32 v42, 3328, v42
v_add_u32 v{vTW+2}, v42, v41
s_lshr_b32 s{sT}, s{sWAVE}, 1
s_and_b32 s{sT2}, s{sWAVE}, 1
s_lshl_b32 s{sT2}, s{sT2}, 5
s_lshl_b32 s{sT3}, s{sWAVE}, 5
s_cmp_eq_u32 s{sBR}, 0
s_cselect_b32 s42, s{sT}, 0
s_cselect_b32 s43, s{sT2}, s{sT3}
s_cselect_b32 s55, 1, 0
s_lshl_b32 s56, s42, 3
s_lshl_b32 s{sT}, s{sRB}, 7
s_add_u32 s42, s42, s{sT}
s_mul_i32 s{sT}, s{sBR}, 1152
s_add_u32 s57, s57, s{sT}
s_lshr_b32 s{sT}, s59, 2
s_add_u32 s41, s43, s{sT}
s_sub_u32 s43, s43, s{sT}
s_add_u32 s43, s43, 16
s_add_u32 s59, s59, s57
v_mov_b32 v43, {OOB}
""")
    for n in range(5):
        if n < 3:
            a(f"""
v_add_u32 v40, {64*n}, v0
v_mul_u32_u24 v41, 5462, v40
v_lshrrev_b32 v41, 16, v41
v_mad_i32_i24 v40, v41, -12, v40
v_mul_u32_u24 v42, 208, v41
v_lshl_add_u32 v42, v40, 4, v42
v_add_u32 v{vTR+n}, s40, v42
v_cmp_gt_u32 vcc, s39, v40
v_add_u32 v41, s41, v41
""")
        else:
            a(f"v_and_b32 v40, 7, v0\nv_lshrrev_b32 v41, 3, v0")
            if n == 3:
                a(f"v_mul_u32_u24 v42, 144, v41\nv_lshl_add_u32 v42, v40, 4, v42\nv_add_u32 v42, 3328, v42\nv_add_u32 v{vTR+3}, s40, v42")
            a(f"v_add3_u32 v41, v41, s43, {8*(n-3)}")
        a(f"""
v_xor_b32 v41, s56, v41
v_lshlrev_b32 v41, s55, v41
v_add_u32 v41, s42, v41
v_mul_u32_u24 v41, 2304, v41
v_lshl_add_u32 v41, v40, 4, v41
v_add_u32 v{VS+n}, s{57 if n < 3 else 59}, v41
""")
        if n < 3:
            a(f"v_cndmask_b32 v{VS+n}, v43, v{VS+n}, vcc")
    SO = [8, 9, 10, 11, 12, 13, 14, 15, 36]
    rho(37)
    a(f"s_movk_i32 s{SO[0]}, 16384")
    for j in range(1, 9):
        a(f"s_add_u32 s{sT}, s37, {2*j-2}\ns_and_b32 s{sT}, s{sT}, 15\ns_lshl_b32 s{SO[j]}, s{sT}, 10")
    if OPT.get("touch"):
        a(f"""
v_bfe_u32 v40, v0, 4, 1
v_and_b32 v41, 15, v0
s_lshl_b32 s{sT}, s{sHG}, 11
s_add_u32 s{sT}, s{sT}, s58
v_lshl_add_u32 v41, v41, 7, s{sT}
v_mul_u32_u24 v40, 18432, v40
v_add_u32 v42, v40, v41
v_bfe_u32 v40, v0, 1, 1
v_and_b32 v41, 1, v0
s_lshr_b32 s{sT}, s{sHG}, 2
s_lshl_b32 s{sT}, s{sT}, 10
s_and_b32 s{sT2}, s{sHG}, 3
s_lshl_b32 s{sT2}, s{sT2}, 8
s_add_u32 s{sT}, s{sT}, s{sT2}
s_add_u32 s{sT}, s{sT}, s58
s_add_u32 s{sT}, s{sT}, 16384
v_lshl_add_u32 v41, v41, 7, s{sT}
v_mul_u32_u24 v40, 18432, v40
v_add_u32 v40, v40, v41
v_cndmask_b32 v42, v40, v42, s[{sG01}:{sG01+1}]
""")
    a("s_waitcnt vmcnt(0)")
    if OPT.get("touch"):
        a(f"buffer_load_dword v19, v42, s[{SWS}:{SWS+3}], 0 offen")
    stamp()
    a("s_barrier\ns_barrier")
    stamp()
    oload = lambda ks, c: f"buffer_load_dwordx4 {vr(OFR(ks, c),4)}, v{vO + c}, s[{SWS}:{SWS+3}], s{SO[ks//2]} offen offset:{1024*(ks%2)}{FLAGS[OPT.get('old', 2)]}"
    base = lambda ks: R1 if ks < 2 else R2 if ks < 10 else 0
    adr = lambda t: AD + (2 if t >= 4 else 0) + t % 2
    moved = set()
    def wreads(ks, t):
        o = WO[ks] - base(ks) + (64 * (t // 2) if t < 4 else 0)
        pre = ""
        if ks and base(ks) != base(ks - 1) and (ks, adr(t)) not in moved:
            moved.add((ks, adr(t)))
            pre = f"v_add_u32 v{adr(t)}, {(base(ks) - base(ks - 1)) & 0xffffffff}, v{adr(t)}\n"
        return [pre + tr(wf(t), adr(t), o), tr(wf(t) + 2, adr(t), o + 1536)]
    todo = [oload(ks, c) for ks in range(18) for c in range(2)]
    done = 2 * OPT["p0"]
    weave([], todo[:done])
    issued, mark, pend, safe = 0, {}, [], -1
    def emit_read():
        nonlocal issued
        key, x = pend.pop(0)
        a(x); mark[key] = issued; issued += 1
    first = list(dict.fromkeys(t for t, c in ORDER))
    for t in first:
        pend += [((0, t), x) for x in wreads(0, t)]
    while pend: emit_read()
    stage = []
    for t, c in ORDER:
        d = 20 + 2 * ORDER.index((t, c))
        ad, off = (vTW + 2, 32*t) if c else (vTW, 32*t) if t < 4 else (vTW + 1, 32*(t - 4))
        stage += [cv(d, ACC(t, c)), cv(d + 1, ACC(t, c) + 2), f"ds_write_b64 v{ad}, {vr(d,2)} offset:{off}"]
    COVER = {0: {}, 2: {0: (0, 4, 1), 5: (2, 5, 3)}, 3: {0: (0, 4), 3: (1, 2), 7: (5, 3)}}
    for ks in range(18):
        now = todo[done:done + (3 if ks < OPT["ramp"] else 2)]
        vm = done - 2 * (ks + 1)
        done += len(now)
        for i, (t, c) in enumerate(ORDER):
            while (ks, t) in [k for k, _ in pend]:
                emit_read()
            w = f"vmcnt({vm}) " if i == 0 else ""
            if mark[(ks, t)] > safe:
                cover = COVER[OPT.get("cov", 2)].get(i, (t,))
                n_ = min(15, issued - 1 - max(mark[(ks, u)] for u in cover if (ks, u) not in [k for k, _ in pend]))
                safe = issued - 1 - n_
                w += f"lgkmcnt({n_})"
            if w:
                a("s_waitcnt " + w)
            a(mf(ACC(t, c), wf(t), OFR(ks, c), ACC(t, c) if ks else "0"))
            if ks < 17 and (c == 1 or t >= 4):
                pend += [((ks + 1, t), x) for x in wreads(ks + 1, t)]
            for _ in range(2 if len(pend) > 2 else 1):
                if pend: emit_read()
            if now and i in {0: (0, 4, 8), 1: (1, 3, 6), 2: (0, 3, 6), 3: (1, 5, 8)}[OPT.get('lg', 2)]:
                a(now.pop(0))
            if ks == 17 and i >= 5:
                for _ in range(2):
                    x = stage.pop(0); a(x)
                    if x.startswith("ds_write"): issued += 1
        if ks == 0 and OPT.get("fine") != 3:
            stamp()
    stamp()
    weave([], stage)
    a("s_waitcnt lgkmcnt(0)")
    for n in range(5):
        a(f"ds_read_b128 {vr(112+4*n,4)}, v{vTR + min(n, 3)} offset:{1152 if n == 4 else 0}")
    for n in range(5):
        a(f"s_waitcnt lgkmcnt({4-n})")
        a(f"buffer_store_dwordx4 {vr(112+4*n,4)}, v{VS+n}, s[{SOUT}:{SOUT+3}], 0 offen{FLAGS[OPT.get('outst', 2)]}")
    stamp()
    stamps_out(0)
    a("s_endpgm")

HEADER = open("concat_heads__sliding_local_dilated__linear_attn_block__prompt.s.ref").read().split("; Override")[0]
out = HEADER + """; One workgroup per CU: (branch, 128-row block, group of 4 heads). Waves 0-3 do the MFMA work, waves 4-7 stream
; weights / activations into LDS. Phase 1: QKV projection + attention (A) or K,V -> kv sums -> Q -> o (B); the o tiles
; are handed over through d_ws; phase 2: output projection. Counters in d_ws are cleared in-launch (flags in d_debug).
; @launch grid=(256,1,1) block=(512,1,1) lds=163840
"""
a('.amdgcn_target "amdgcn-amd-amdhsa--gfx950"\n.text')
a(kernel_head(KN))
stamp()
a(f"""
s_cmp_ge_u32 s2, 256
s_cbranch_scc1 L_end
s_and_b32 s{sT}, s2, 7
s_lshr_b32 s{sBR}, s{sT}, 2
s_mul_i32 s{sT2}, s{sBR}, 24
s_load_dwordx4 s[36:39], s[0:1], s{sT2}
v_lshrrev_b32 v1, 6, v0
v_and_b32 v0, 63, v0
v_readfirstlane_b32 s{sWAVE}, v1
{'s_xor_b32 s3, s3, 4' if OPT.get('lfirst', 0) else ''}
s_bfe_u32 s{sHG}, s2, 0x30003
s_lshr_b32 s{sRB}, s2, 6
s_and_b32 s{sT3}, s{sT}, 3
s_lshl2_add_u32 s{sRB}, s{sT3}, s{sRB}
s_cmp_lt_u32 s{sWAVE}, 4
s_cbranch_scc1 L_cons
s_setprio {OPT.get("prio", 2)}
s_and_b32 s{sV}, s{sWAVE}, 1
s_add_u32 s{sRW}, s{sRB}, s{sHG}
{f"s_mul_i32 s{sRX}, s{sT3}, {OPT['xs'] + 4}{chr(10)}s_add_u32 s{sRW}, s{sRW}, s{sRX}" if "xs" in OPT else ""}
s_and_b32 s{sRW}, s{sRW}, 7
s_lshl_b32 s{sRX}, s{sRW}, 7
s_mul_i32 s{sRW}, s{sRW}, {64*3456}
""")
hstamp(12)
a(f"""
s_cmp_lt_u32 s{sWAVE}, 6
s_cbranch_scc1 L_W0
""")
x_head()
a(f"""
L_cons:
s_getpc_b64 s[42:43]
L_pc:
s_lshr_b32 s{sT}, s2, 3
s_lshl2_add_u32 s{sT}, s{sT}, s{sWAVE}
s_lshl_b32 s{sT}, s{sT}, 9
v_and_b32 v1, 3, v0
v_lshl_add_u32 v1, v1, 7, s{sT}
v_min_u32 v1, L_last-L_pc, v1
global_load_dword v27, v1, s[42:43]
""")
karg_loads()
a(f"""
s_cmp_eq_u32 s{sBR}, 0
s_cbranch_scc1 L_AC
s_branch L_BC
L_end:
s_endpgm
""")
w_head()
n0 = nstamp[0]
for fn in (lambda: a_loader("W"), lambda: a_loader("X"), a_consumer, lambda: b_loader("W"), lambda: b_loader("X"), b_consumer, p2_consumer):
    nstamp[0] = n0
    fn()
a("L_last:\ns_endpgm")
lines = []
for l in a.lines: lines += [x for x in l.split("\n") if x.strip()]
if OPT.get("noread"):
    lines = [l for l in lines if not l.startswith("ds_read_b64_tr")]
if OPT.get("nomfma"):
    lines = [l for l in lines if not l.startswith("v_mfma")]
if OPT.get("jitter"):
    import random
    rnd = random.Random(OPT["jitter"])
    jl = []
    for n_, l in enumerate(lines):
        if l == "s_barrier":
            for pos in (0, 1):
                if pos: jl.append(l)
                if rnd.random() < 0.5:
                    if rnd.random() < 0.5:
                        jl += [f"s_bitcmp1_b32 s{sWAVE}, {rnd.randrange(2)}", f"s_cbranch_scc1 L_j{n_}_{pos}"]
                    else:
                        jl += [f"s_bitcmp1_b32 s2, {rnd.randrange(8)}", f"s_cbranch_scc1 L_j{n_}_{pos}"]
                    jl += [f"s_sleep {rnd.randrange(1, 30)}", f"L_j{n_}_{pos}:"]
        else:
            jl.append(l)
    lines = jl
lines, added = hz.fix(lines)
out += "\n".join(lines) + "\n"
out += '.section .rodata,"a"\n.p2align 6\n' + kernel_desc(KN, 256, 102 if OPT.get('cyc') else 100, 256)
sys.stdout.write(out)
sys.stderr.write(f"nop states added: {added}\n")
```
